```python
import torch

def _softmax(x, axis=-1):
    return torch.softmax(x, dim=axis)
def _gelu(x):
    return torch.nn.functional.gelu(x, approximate="tanh")
def _silu(x):
    return torch.nn.functional.silu(x)
def _sigmoid(x):
    return torch.sigmoid(x)
def _layernorm(x, axis=-1, eps=1e-5):
    m = x.mean(dim=axis, keepdim=True)
    v = x.var(dim=axis, keepdim=True, unbiased=False)
    return (x - m) / torch.sqrt(v + eps)
def _scatter_add(tgt, idx, src, axis=0):
    return tgt.clone().index_add_(axis, idx, src)
def _segment_sum(src, seg, n):
    out = torch.zeros((n,) + src.shape[1:], dtype=src.dtype)
    return out.index_add_(0, seg, src)
def _pad(x, pw):
    flat = tuple(v for pair in reversed(pw) for v in pair)
    return torch.nn.functional.pad(x, flat)

kernel_name = 'interleave_layers__spectral_fnet__moe_arch_mod__prompt'

def setup_inputs():

    _w = (lambda a: (lambda t: t.to(torch.bfloat16) if t.is_floating_point() else t)(torch.as_tensor(a)))
    def _A_setup():
        B, S, D = 1, 2048, 640
        ns = torch.arange(S)[:, None] * torch.arange(S)[None, :]
        nd = torch.arange(D)[:, None] * torch.arange(D)[None, :]
        Ws_re = torch.cos(-2.0 * torch.pi * ns / S).to(float)
        Ws_im = torch.sin(-2.0 * torch.pi * ns / S).to(float)
        Wd_re = torch.cos(-2.0 * torch.pi * nd / D).to(float)
        Wd_im = torch.sin(-2.0 * torch.pi * nd / D).to(float)
        return {
            "x": _w((lambda *s: torch.randn(*s, dtype=torch.bfloat16) * 0.1)(B, S, D)),
            "dft_seq_re": _w(Ws_re),
            "dft_seq_im": _w(Ws_im),
            "dft_hid_re": _w(Wd_re),
            "dft_hid_im": _w(Wd_im),
        }
    _A_in = _A_setup()

    def _B_setup():
        B, S, D, F, C = 1, 2048, 640, 1728, 8
        return {
            "x": _w((lambda *s: torch.randn(*s, dtype=torch.bfloat16) * 0.1)(B, S, D)),
            "w_r": _w((lambda *s: torch.randn(*s, dtype=torch.bfloat16) * 1.6)(D)),
            "w_gate": _w((lambda *s: torch.randn(*s, dtype=torch.bfloat16) * 0.4)(D, F)),
            "w_up": _w((lambda *s: torch.randn(*s, dtype=torch.bfloat16) * 0.4)(D, F)),
            "w_down": _w((lambda *s: torch.randn(*s, dtype=torch.bfloat16) * 0.4)(F, D)),
        }
    _B_in = _B_setup()

    return {
        "A_x": _A_in["x"],
        "A_dft_seq_re": _A_in["dft_seq_re"],
        "A_dft_seq_im": _A_in["dft_seq_im"],
        "A_dft_hid_re": _A_in["dft_hid_re"],
        "A_dft_hid_im": _A_in["dft_hid_im"],
        "B_x": _B_in["x"],
        "B_w_r": _B_in["w_r"],
        "B_w_gate": _B_in["w_gate"],
        "B_w_up": _B_in["w_up"],
        "B_w_down": _B_in["w_down"],
    }

def reference(A_x, A_dft_seq_re, A_dft_seq_im, A_dft_hid_re, A_dft_hid_im, B_x, B_w_r, B_w_gate, B_w_up, B_w_down):
    def _A_ref(x, dft_seq_re, dft_seq_im, dft_hid_re, dft_hid_im):
        a = torch.einsum("bsd,ed->bse", x, dft_hid_re)
        b = torch.einsum("bsd,ed->bse", x, dft_hid_im)
        y = torch.einsum("ts,bse->bte", dft_seq_re, a) - torch.einsum("ts,bse->bte", dft_seq_im, b)
        return y

    def _B_ref(x, w_r, w_gate, w_up, w_down):
        B, S, D = x.shape
        C = 8
        r = x @ w_r
        idx = torch.argsort(-r, axis=-1)[:, :C]
        idx_e = (lambda x, n, axis: torch.repeat_interleave(x, n, dim=axis))(idx.reshape(B, C, 1), D, axis=2)
        x_sel = (lambda x, i, axis: torch.take_along_dim(x, i, dim=axis))(x, idx_e, axis=1)
        g = _silu(x_sel @ w_gate)
        u = x_sel @ w_up
        y = (g * u) @ w_down
        r_sel = _sigmoid((lambda x, i, axis: torch.take_along_dim(x, i, dim=axis))(r, idx, axis=1))
        y = y * r_sel.reshape(B, C, 1)
        b_off = (torch.arange(B) * S).reshape(B, 1)
        flat_idx = (idx + b_off).reshape(B * C)
        zero = (x * 0.0).reshape(B * S, D)
        upd = _scatter_add(zero, flat_idx, y.reshape(B * C, D), axis=0)
        return x + upd.reshape(B, S, D)

    x = A_x
    x = x + _A_ref(_layernorm(x, axis=-1), A_dft_seq_re, A_dft_seq_im, A_dft_hid_re, A_dft_hid_im)
    x = x + _B_ref(_layernorm(x, axis=-1), B_w_r, B_w_gate, B_w_up, B_w_down)
    x = x + _A_ref(_layernorm(x, axis=-1), A_dft_seq_re, A_dft_seq_im, A_dft_hid_re, A_dft_hid_im)
    x = x + _B_ref(_layernorm(x, axis=-1), B_w_r, B_w_gate, B_w_up, B_w_down)
    return x
```

```python
import re

TRANS = ("v_exp_f32", "v_log_f32", "v_rcp_f32", "v_rsq_f32", "v_sqrt_f32", "v_sin_f32", "v_cos_f32")
_reg = re.compile(r"^-?(?:abs\()?\|?([vsa])(?:\[(\d+):(\d+)\]|(\d+))\|?\)?$")


def regs_of(tok):
    tok = tok.strip()
    if tok in ("vcc", "vcc_lo", "vcc_hi"):
        return [("s", 106), ("s", 107)]
    if tok == "exec":
        return [("s", 126), ("s", 127)]
    if tok == "m0":
        return [("s", 124)]
    m = _reg.match(tok)
    if not m:
        return []
    k = m.group(1)
    if m.group(4) is not None:
        return [(k, int(m.group(4)))]
    return [(k, i) for i in range(int(m.group(2)), int(m.group(3)) + 1)]


def split_ops(s):
    out, depth, cur = [], 0, ""
    for ch in s:
        if ch in "[(":
            depth += 1
        if ch in "])":
            depth -= 1
        if ch == "," and depth == 0:
            out.append(cur.strip())
            cur = ""
        else:
            cur += ch
    if cur.strip():
        out.append(cur.strip())
    return out


class Asm:
    def __init__(self):
        self.lines = []
        self.pos = 0
        self.reset_state()
        self.nlabel = 0
        self.ninstr = 0

    def reset_state(self):
        self.valu_w = {}
        self.trans_w = {}
        self.mfma_w = {}
        self.mfma_c = {}
        self.store_r = {}

    def raw(self, s):
        self.lines.append(s)

    def comment(self, s):
        self.lines.append("    ; " + s)

    def _nop(self, n):
        while n > 0:
            k = min(n, 16)
            self.lines.append("    s_nop %d" % (k - 1))
            self.pos += k
            self.ninstr += 1
            n -= k

    def flush(self):
        need = 0
        p = self.pos
        for r, q in self.valu_w.items():
            need = max(need, q + 1 + (5 if r[0] == "s" else 2) - p)
        for r, (q, ps, _) in self.mfma_w.items():
            need = max(need, q + 1 + (12 if ps == 8 else 8) - p)
        for r, (q, ps) in self.mfma_c.items():
            need = max(need, q + 1 + (7 if ps == 8 else 3) - p)
        for r, q in self.store_r.items():
            need = max(need, q + 1 + 2 - p)
        self._nop(need)
        self.reset_state()

    def label(self, name):
        self.flush()
        self.lines.append(name + ":")

    def newlabel(self, base="L"):
        self.nlabel += 1
        return "%s_%d" % (base, self.nlabel)

    def __call__(self, text):
        for ln in text.strip().split("\n"):
            ln = ln.split(";")[0].strip()
            if ln:
                self.ins(ln)

    def ins(self, text):
        parts = text.split(None, 1)
        mn = parts[0]
        rest = parts[1] if len(parts) > 1 else ""
        ops = split_ops(rest)
        if ops:
            last = ops[-1].split()
            ops[-1] = last[0] if last else ""
        mods = rest
        base = re.sub(r"_(e32|e64|dpp|sdwa)$", "", mn)
        is_mfma = mn.startswith("v_mfma")
        is_valu = mn.startswith("v_") and not is_mfma
        is_vmem = mn.startswith(("buffer_", "global_"))
        is_ds = mn.startswith("ds_")
        is_branch = mn.startswith(("s_branch", "s_cbranch", "s_setpc", "s_swappc", "s_endpgm"))
        is_dpp = ("_dpp" in mn) or ("quad_perm" in mods) or ("row_" in mods)
        R = [regs_of(o) for o in ops]
        dst, src = [], []
        if is_valu:
            dst = R[0]
            src = [r for x in R[1:] for r in x]
            if base.startswith(("v_fmac", "v_pk_fmac", "v_writelane", "v_dot2c")):
                src += R[0]
            if base.startswith("v_permlane"):
                dst = R[0] + R[1]
                src = R[0] + R[1]
            if base in ("v_add_co_u32", "v_sub_co_u32", "v_addc_co_u32", "v_subb_co_u32"):
                dst = R[0] + R[1]
                src = [r for x in R[2:] for r in x]
        elif is_mfma:
            dst = R[0]
            src = R[1] + R[2] + R[3]
        elif is_vmem:
            if "_load" in mn or ("atomic" in mn and " sc0" in mods):
                dst = R[0]
                src = [r for x in R[1:] for r in x]
                if "atomic" in mn:
                    src += R[0]
            else:
                src = [r for x in R for r in x]
        elif is_ds:
            if mn.startswith(("ds_read", "ds_bpermute", "ds_permute", "ds_swizzle")):
                dst = R[0]
                src = [r for x in R[1:] for r in x]
            else:
                src = [r for x in R for r in x]
        if is_branch:
            self.flush()
        p = self.pos
        need = 0

        def req(q, w):
            nonlocal need
            need = max(need, q + 1 + w - p)

        if is_mfma:
            ps = 8 if "32x32" in mn else 4
            key = (mn, tuple(R[0]))
            for r in src:
                if r in self.valu_w:
                    req(self.valu_w[r], 2)
            for r in R[1] + R[2]:
                if r in self.mfma_w:
                    q, pp, _ = self.mfma_w[r]
                    req(q, 12 if pp == 8 else 8)
            for r in R[3]:
                if r in self.mfma_w:
                    q, pp, k = self.mfma_w[r]
                    if not (k == (mn, tuple(R[3]))):
                        req(q, 10 if pp == 8 else 6)
            for r in R[0]:
                if r in self.mfma_w and not (R[3] == R[0] and self.mfma_w[r][2] == key):
                    q, pp, k = self.mfma_w[r]
                    req(q, 10 if pp == 8 else 6)
        elif is_valu:
            for r in src:
                if r[0] == "s" and r in self.valu_w:
                    req(self.valu_w[r], 4 if base.startswith(("v_readlane", "v_writelane")) else 2)
                if r[0] == "v" and r in self.valu_w:
                    if is_dpp or base.startswith("v_permlane"):
                        req(self.valu_w[r], 2)
                    if base.startswith(("v_readlane", "v_readfirstlane")):
                        req(self.valu_w[r], 1)
                if r in self.trans_w and base not in TRANS:
                    req(self.trans_w[r], 1)
            for r in src + dst:
                if r in self.mfma_w:
                    q, pp, _ = self.mfma_w[r]
                    req(q, 12 if pp == 8 else 8)
            for r in dst:
                if r in self.mfma_c:
                    q, pp = self.mfma_c[r]
                    req(q, 7 if pp == 8 else 3)
                if r in self.store_r:
                    req(self.store_r[r], 2)
        elif is_vmem or is_ds:
            for r in src:
                if r[0] == "s" and r in self.valu_w:
                    req(self.valu_w[r], 5)
                if r in self.trans_w:
                    req(self.trans_w[r], 1)
            for r in src + dst:
                if r in self.mfma_w:
                    q, pp, _ = self.mfma_w[r]
                    req(q, 12 if pp == 8 else 8)
            for r in dst:
                if r in self.store_r:
                    req(self.store_r[r], 1)
                if r in self.mfma_c:
                    q, pp = self.mfma_c[r]
                    req(q, 7 if pp == 8 else 3)
        else:
            allr = [r for x in R for r in x]
            if mn.startswith("s_cbranch_vcc"):
                allr += [("s", 106), ("s", 107)]
            for r in allr:
                if r in self.valu_w:
                    req(self.valu_w[r], 1)
        if need > 0:
            self._nop(need)
        p = self.pos
        self.lines.append("    " + text)
        self.ninstr += 1
        if mn == "s_nop":
            self.pos += int(ops[0]) + 1
        else:
            self.pos += 1
        for r in dst:
            self.valu_w.pop(r, None)
            self.trans_w.pop(r, None)
            self.mfma_w.pop(r, None)
        if is_valu:
            for r in dst:
                self.valu_w[r] = p
                if base in TRANS:
                    self.trans_w[r] = p
        elif is_mfma:
            for r in dst:
                self.mfma_w[r] = (p, ps, key)
            for r in R[3]:
                self.mfma_c[r] = (p, ps)
        elif is_vmem and ("store" in mn) and ("x3" in mn or "x4" in mn):
            for r in R[0]:
                self.store_r[r] = p
        elif not (is_vmem or is_ds) and R and mn.startswith("s_") and not mn.startswith(("s_cmp", "s_cbranch", "s_waitcnt", "s_barrier", "s_sleep", "s_nop")):
            for r in R[0]:
                self.valu_w.pop(r, None)

    def text(self):
        return "\n".join(self.lines) + "\n"
```

```python
import sys, struct
from asmb import Asm

NAME = "interleave_layers__spectral_fnet__moe_arch_mod__prompt"
STAMPS = "--stamps" in sys.argv
NR, NC, NFA, NFB = 256, 161, 54, 20
C0, FA0, FB0, NWG = 256, 417, 471, 491
FL_OFF = 0x1000; FL_K = 32768; NREP = 32
RG_OFF = 0x30000; NRR = 16; RG_REP = 8192
RESET_OFF = 0x70000
H_OFF = 0x70000; HREP = 0x7000
X2_OFF = 0x90000; X2REP = 0x5100; NRX = 8; SEL_OFF = 0x5000
W_OFF = 0x100000; W_SZ = 0x280000
Y_OFF = 0x600000; Y_SZ = 0x180000
T_OFF = 0x900000; T_REC = 2688; T_SZ = 2048 * T_REC
ST_OFF = 0x1400000
WS_BYTES = 0x1500000
NONCE_C = 0x9E3779B9
SPIN = 40000
LDS_BYTES = 24576

def f32(x):
    return "0x%08x" % struct.unpack("<I", struct.pack("<f", x))[0]

def v(i, n=1):
    return "v%d" % i if n == 1 else "v[%d:%d]" % (i, i + n - 1)

def s(i, n=1):
    return "s%d" % i if n == 1 else "s[%d:%d]" % (i, i + n - 1)

A = Asm()
WS = "s[4:7]"; SRD1 = "s[8:11]"; SRD2 = "s[12:15]"; SRD3 = "s[16:19]"
NONCE = 20; WV = 21

def srd(base, ptr, nbytes):
    A(f"s_mov_b32 s{base}, s{ptr}")
    A(f"s_and_b32 s{base+1}, s{ptr+1}, 0xffff")
    A(f"s_mov_b32 s{base+2}, {nbytes}")
    A(f"s_mov_b32 s{base+3}, 0x00020000")

def set_exec(m):
    A(f"s_mov_b32 exec_lo, 0x{m & 0xffffffff:x}")
    A(f"s_mov_b32 exec_hi, 0x{m >> 32:x}")

def stamp(idx):
    if not STAMPS:
        return
    L = A.newlabel("Lst")
    A(f"s_cmp_lg_u32 s{WV}, 0")
    A(f"s_cbranch_scc1 {L}")
    A("s_memrealtime s[98:99]")
    A("s_waitcnt lgkmcnt(0)")
    A("v_mov_b32 v254, s98")
    A("v_mov_b32 v255, s99")
    A("v_mov_b32 v253, 0")
    A("s_lshl_b32 s97, s2, 8")
    A(f"s_add_u32 s97, s97, {ST_OFF + idx * 8}")
    A("s_mov_b64 exec, 1")
    A(f"buffer_store_dwordx2 v[254:255], v253, {WS}, s97 offen")
    A("s_mov_b64 exec, -1")
    A.label(L)

def spin_tail(loop, cnt, done, sleep=1):
    A(f"s_sleep {sleep}")
    A(f"s_sub_u32 s{cnt}, s{cnt}, 1")
    A(f"s_cmp_lg_u32 s{cnt}, 0")
    A(f"s_cbranch_scc1 {loop}")

def poll_flags(k, nlanes, srep, t, tag_layer_sgpr=None):
    loop, done = A.newlabel("Lpoll"), A.newlabel("Lpolld")
    A(f"s_cmp_lg_u32 s{WV}, 0")
    A(f"s_cbranch_scc1 {done}")
    if isinstance(k, int):
        A(f"s_add_u32 s60, s{srep}, {FL_OFF + k * FL_K}")
        A(f"s_add_u32 s61, s{NONCE}, {k}")
    else:
        A(f"s_lshl_b32 s60, {k}, 15")
        A(f"s_add_u32 s60, s60, s{srep}")
        A(f"s_add_u32 s60, s60, {FL_OFF}")
        A(f"s_add_u32 s61, s{NONCE}, {k}")
    A(f"v_lshlrev_b32 {v(t+4)}, 4, v1")
    A(f"s_mov_b32 s62, {SPIN}")
    if nlanes < 64:
        A(f"s_bfm_b64 s[64:65], {nlanes}, 0")
    A.label(loop)
    A(f"buffer_load_dwordx4 {v(t,4)}, {v(t+4)}, {WS}, s60 offen sc1")
    A("s_waitcnt vmcnt(0)")
    for i in range(4):
        A(f"v_xor_b32 {v(t+i)}, s61, {v(t+i)}")
    A(f"v_or3_b32 {v(t)}, {v(t)}, {v(t+1)}, {v(t+2)}")
    A(f"v_or_b32 {v(t)}, {v(t)}, {v(t+3)}")
    A(f"v_cmp_ne_u32 vcc, 0, {v(t)}")
    if nlanes < 64:
        A("s_and_b64 vcc, vcc, s[64:65]")
    A(f"s_cbranch_vccz {done}")
    spin_tail(loop, 62, done)
    A.label(done)
    A("s_barrier")

def signal(k, sme, t, x4=None):
    L = A.newlabel("Lsig")
    A("s_waitcnt vmcnt(0)")
    A("s_barrier")
    A(f"s_cmp_lg_u32 s{WV}, 0")
    A(f"s_cbranch_scc1 {L}")
    if isinstance(k, int):
        A(f"s_add_u32 s60, s{sme}, {FL_OFF + k * FL_K}")
        A(f"s_add_u32 s61, s{NONCE}, {k}")
    else:
        A(f"s_lshl_b32 s60, {k}, 15")
        A(f"s_add_u32 s60, s60, s{sme}")
        A(f"s_add_u32 s60, s60, {FL_OFF}")
        A(f"s_add_u32 s61, s{NONCE}, {k}")
    A(f"v_lshlrev_b32 {v(t+4)}, 10, v1")
    A(f"v_mov_b32 {v(t)}, s61")
    set_exec((1 << NREP) - 1)
    if x4 is not None:
        L2 = A.newlabel("Lsig4")
        A(f"s_cmp_lg_u32 s{x4}, {NC - 1}")
        A(f"s_cbranch_scc1 {L2}")
        A(f"buffer_store_dword {v(t)}, {v(t+4)}, {WS}, s60 offen offset:4 sc1")
        A(f"buffer_store_dword {v(t)}, {v(t+4)}, {WS}, s60 offen offset:8 sc1")
        A(f"buffer_store_dword {v(t)}, {v(t+4)}, {WS}, s60 offen offset:12 sc1")
        A.label(L2)
    A(f"buffer_store_dword {v(t)}, {v(t+4)}, {WS}, s60 offen sc1")
    A("s_mov_b64 exec, -1")
    A.label(L)

def rnd_pair(a, b, t):
    A(f"v_cvt_pk_bf16_f32 {v(t)}, {v(a)}, {v(b)}")
    A(f"v_lshlrev_b32 {v(a)}, 16, {v(t)}")
    A(f"v_and_b32 {v(b)}, 0xffff0000, {v(t)}")

def sincos(arg, c, sn):
    A(f"v_cos_f32 {v(c)}, {v(arg)}")
    A(f"v_sin_f32 {v(sn)}, {v(arg)}")

def prologue():
    A(f"s_cmp_ge_u32 s2, {NWG}")
    A("s_cbranch_scc1 L_end")
    A("s_load_dwordx2 s[40:41], s[0:1], 96")
    A("s_load_dwordx2 s[42:43], s[0:1], 0")
    A("s_load_dwordx4 s[44:47], s[0:1], 48")
    A("s_load_dwordx4 s[48:51], s[0:1], 64")
    A("s_load_dwordx2 s[52:53], s[0:1], 80")
    A("v_lshrrev_b32 v2, 6, v0")
    A("v_and_b32 v1, 63, v0")
    A(f"v_readfirstlane_b32 s{WV}, v2")
    A("s_waitcnt lgkmcnt(0)")
    A(f"s_load_dword s{NONCE}, s[40:41], 0")
    srd(4, 40, WS_BYTES)
    A(f"s_cmp_lt_u32 s2, {C0}")
    A("s_cbranch_scc1 L_roleR")
    A(f"s_cmp_lt_u32 s2, {FA0}")
    A("s_cbranch_scc1 L_roleC")
    A(f"s_cmp_lt_u32 s2, {FB0}")
    A("s_cbranch_scc1 L_roleFa")
    A("s_branch L_roleFb")

def get_nonce():
    A("s_waitcnt lgkmcnt(0)")
    A(f"s_add_u32 s{NONCE}, s{NONCE}, 0x{NONCE_C:x}")

B1R, B1I, TWC, TWS, B2R, B2I, WR, INV = 16, 28, 40, 56, 72, 88, 104, 114
X, XN, MM, RS = 116, 136, 156, 158
ACR, ACI, AF1, AF2, AC2R, AC2I = 160, 176, 192, 204, 220, 236
vX, vY0, vY1, vY2, vY1x, vY2x, vLYW, vLYR, vLWW, vLWR0, vWG, vTA = 2, 3, 4, 5, 6, 7, 8, 9, 10, 11, 14, 15
vTB = 252
sRHO, sA, sS2, sRA, sME, sREP, sXO, sWB, sTB, sP, sS, sQ = 22, 23, 24, 25, 26, 27, 28, 29, 30, 32, 34, 36
sSEL = 80
s32f = 38
LDS_Y, LDS_W, LDS_NEW, LDS_OUT = 0, 10240, 21504, 10240

def reduce4(s0, q0, dS, dQ):
    A(f"v_permlane32_swap_b32 {v(s0)}, {v(s0+1)}")
    A(f"v_permlane32_swap_b32 {v(q0)}, {v(q0+1)}")
    A(f"v_add_f32 {v(s0)}, {v(s0)}, {v(s0+1)}")
    A(f"v_add_f32 {v(q0)}, {v(q0)}, {v(q0+1)}")
    A(f"v_permlane16_swap_b32 {v(s0)}, {v(q0)}")
    A(f"v_add_f32 {v(s0)}, {v(s0)}, {v(q0)}")
    for r in (8, 4, 2, 1):
        A(f"v_add_f32_dpp {v(s0)}, {v(s0)}, {v(s0)} row_ror:{r} row_mask:0xf bank_mask:0xf")
    A(f"v_readlane_b32 s{dS}, {v(s0)}, 0")
    A(f"v_readlane_b32 s{dS+1}, {v(s0)}, 32")
    A(f"v_readlane_b32 s{dQ}, {v(s0)}, 16")
    A(f"v_readlane_b32 s{dQ+1}, {v(s0)}, 48")

def ln_stats(xb, t):
    S_, Q_, D0, D1 = t, t + 2, t + 4, t + 6
    A(f"v_readfirstlane_b32 s{sP}, {v(xb)}")
    A(f"v_readfirstlane_b32 s{sP+1}, {v(xb+1)}")
    for i in range(10):
        D = S_ if i == 0 else (D0 if i % 2 else D1)
        A(f"v_pk_add_f32 {v(D,2)}, {v(xb+2*i,2)}, {s(sP,2)} neg_lo:[0,1] neg_hi:[0,1]")
        if i == 0:
            A(f"v_pk_mul_f32 {v(Q_,2)}, {v(D,2)}, {v(D,2)}")
        else:
            A(f"v_pk_add_f32 {v(S_,2)}, {v(S_,2)}, {v(D,2)}")
            A(f"v_pk_fma_f32 {v(Q_,2)}, {v(D,2)}, {v(D,2)}, {v(Q_,2)}")
    reduce4(S_, Q_, sS, sQ)
    A(f"v_pk_mul_f32 {v(MM,2)}, {s(sS,2)}, {v(INV,2)} op_sel_hi:[1,0]")
    A(f"v_pk_mul_f32 {v(RS,2)}, {s(sQ,2)}, {v(INV,2)} op_sel_hi:[1,0]")
    A(f"v_pk_fma_f32 {v(RS,2)}, {v(MM,2)}, {v(MM,2)}, {v(RS,2)} neg_lo:[1,0,0] neg_hi:[1,0,0]")
    A(f"v_pk_add_f32 {v(MM,2)}, {v(MM,2)}, {s(sP,2)}")
    A(f"v_max_f32 {v(RS)}, 0, {v(RS)}")
    A(f"v_max_f32 {v(RS+1)}, 0, {v(RS+1)}")
    rnd_pair(RS, RS + 1, D0)
    rnd_pair(MM, MM + 1, D1)
    A(f"v_add_f32 {v(RS)}, {f32(1e-5)}, {v(RS)}")
    A(f"v_add_f32 {v(RS+1)}, {f32(1e-5)}, {v(RS+1)}")
    rnd_pair(RS, RS + 1, D0)
    A(f"v_sqrt_f32 {v(RS)}, {v(RS)}")
    A(f"v_sqrt_f32 {v(RS+1)}, {v(RS+1)}")
    rnd_pair(RS, RS + 1, D0)
    A(f"v_rcp_f32 {v(RS)}, {v(RS)}")
    A(f"v_rcp_f32 {v(RS+1)}, {v(RS+1)}")

def ln_center_scale(xb, zb, t):
    for i in range(10):
        A(f"v_pk_add_f32 {v(zb+2*i,2)}, {v(xb+2*i,2)}, {v(MM,2)} neg_lo:[0,1] neg_hi:[0,1]")
    for i in range(10):
        rnd_pair(zb + 2 * i, zb + 2 * i + 1, t + (i % 4))
    for i in range(10):
        A(f"v_pk_mul_f32 {v(zb+2*i,2)}, {v(zb+2*i,2)}, {v(RS,2)}")

def pack_rows(zb, pa, pb, unpack=True):
    for u in range(5):
        A(f"v_cvt_pk_bf16_f32 {v(pa+u)}, {v(zb+4*u)}, {v(zb+4*u+2)}")
        A(f"v_cvt_pk_bf16_f32 {v(pb+u)}, {v(zb+4*u+1)}, {v(zb+4*u+3)}")
    if unpack:
        for u in range(5):
            A(f"v_lshlrev_b32 {v(zb+4*u)}, 16, {v(pa+u)}")
            A(f"v_and_b32 {v(zb+4*u+2)}, 0xffff0000, {v(pa+u)}")
            A(f"v_lshlrev_b32 {v(zb+4*u+1)}, 16, {v(pb+u)}")
            A(f"v_and_b32 {v(zb+4*u+3)}, 0xffff0000, {v(pb+u)}")

def store_rows(pa, pb, off):
    A(f"buffer_store_dwordx4 {v(pa,4)}, {v(vTA)}, {WS}, s{sTB} offen offset:{off} sc1")
    A(f"buffer_store_dword {v(pa+4)}, {v(vTB)}, {WS}, s{sTB} offen offset:{off} sc1")
    A(f"buffer_store_dwordx4 {v(pb,4)}, {v(vTA)}, {WS}, s{sTB+1} offen offset:{off} sc1")
    A(f"buffer_store_dword {v(pb+4)}, {v(vTB)}, {WS}, s{sTB+1} offen offset:{off} sc1")

def to_f16(zb, t, sub=None):
    for i in range(10):
        rnd_pair(zb + 2 * i, zb + 2 * i + 1, t + (i % 4))
        if sub is not None:
            tt = t + 4 + 2 * (i % 2)
            A(f"v_lshlrev_b32 {v(tt)}, 16, {v(sub(i))}")
            A(f"v_and_b32 {v(tt+1)}, 0xffff0000, {v(sub(i))}")
            A(f"v_pk_add_f32 {v(zb+2*i,2)}, {v(zb+2*i,2)}, {v(tt,2)} neg_lo:[0,1] neg_hi:[0,1]")
        A(f"v_cvt_pk_f16_f32 {v(AF1+i)}, {v(zb+2*i)}, {v(zb+2*i+1)}")

def row_dft(t, shadow=None):
    for kk in range(3):
        c = "0" if kk == 0 else None
        A(f"v_mfma_f32_32x32x16_f16 {v(ACR,16)}, {v(AF1+4*kk,4)}, {v(B1R+4*kk,4)}, {c or v(ACR,16)}")
        A(f"v_mfma_f32_32x32x16_f16 {v(ACI,16)}, {v(AF1+4*kk,4)}, {v(B1I+4*kk,4)}, {c or v(ACI,16)}")
    for kk in range(4):
        for i in (4 * kk, 4 * kk + 2):
            pr, pi = t + (i % 4) * 2, t + (i % 4) * 2 + 2
            A(f"v_pk_mul_f32 {v(pr,2)}, {v(ACR+i,2)}, {v(TWC+i,2)}")
            A(f"v_pk_mul_f32 {v(pi,2)}, {v(ACI+i,2)}, {v(TWC+i,2)}")
            A(f"v_pk_fma_f32 {v(pr,2)}, {v(ACI+i,2)}, {v(TWS+i,2)}, {v(pr,2)}")
            A(f"v_pk_fma_f32 {v(pi,2)}, {v(ACR+i,2)}, {v(TWS+i,2)}, {v(pi,2)} neg_lo:[1,0,0] neg_hi:[1,0,0]")
            A(f"v_cvt_pk_f16_f32 {v(AF2+i)}, {v(pr)}, {v(pi)}")
            A(f"v_cvt_pk_f16_f32 {v(AF2+i+1)}, {v(pr+1)}, {v(pi+1)}")
        c = "0" if kk == 0 else None
        A(f"v_mfma_f32_32x32x16_f16 {v(AC2R,16)}, {v(AF2+4*kk,4)}, {v(B2R+4*kk,4)}, {c or v(AC2R,16)}")
        A(f"v_mfma_f32_32x32x16_f16 {v(AC2I,16)}, {v(AF2+4*kk,4)}, {v(B2I+4*kk,4)}, {c or v(AC2I,16)}")
    if shadow:
        shadow()

def write_W(layer):
    for i in range(10):
        A(f"v_cvt_pk_f16_f32 {v(ACR+i)}, {v(AC2R+i)}, {v(AC2I+i)}")
        A(f"ds_write_b32 {v(vLWW)}, {v(ACR+i)} offset:{4*i}")
    A("s_waitcnt lgkmcnt(0)")
    A("s_barrier")
    L = A.newlabel("Lw2")
    for j in range(2):
        A(f"ds_read2st64_b32 {v(ACI+4*j,2)}, {v(vLWR0+j)} offset0:0 offset1:11")
        A(f"ds_read2st64_b32 {v(ACI+4*j+2,2)}, {v(vLWR0+j)} offset0:22 offset1:33")
    A(f"s_add_u32 s60, s{sWB}, {W_OFF + layer * W_SZ}")
    A(f"s_add_u32 s61, s60, 4096")
    A(f"s_add_u32 s62, s60, 8192")
    A("s_waitcnt lgkmcnt(2)")
    A(f"buffer_store_dwordx4 {v(ACI,4)}, {v(vWG)}, {WS}, s60 offen sc1")
    A("s_waitcnt lgkmcnt(0)")
    A(f"buffer_store_dwordx4 {v(ACI+4,4)}, {v(vWG)}, {WS}, s61 offen sc1")
    A(f"s_cmp_ge_u32 s{WV}, 2")
    A(f"s_cbranch_scc1 {L}")
    A(f"ds_read2st64_b32 {v(ACI+8,2)}, {v(vLWR0+2)} offset0:0 offset1:11")
    A(f"ds_read2st64_b32 {v(ACI+10,2)}, {v(vLWR0+2)} offset0:22 offset1:33")
    A("s_waitcnt lgkmcnt(0)")
    A(f"buffer_store_dwordx4 {v(ACI+8,4)}, {v(vWG)}, {WS}, s62 offen sc1")
    A.label(L)

def stage_Y(layer):
    c0, c1, c2, e1, e2, t = ACR, ACR + 4, ACR + 8, ACR + 12, ACR + 13, ACR + 16
    L2, L3, L4, L5, L6 = [A.newlabel("Ly") for _ in range(5)]
    A(f"s_mov_b32 s60, {Y_OFF + layer * Y_SZ}")
    A(f"buffer_load_dwordx4 {v(c0,4)}, {v(vY0)}, {WS}, s60 offen sc1")
    A(f"buffer_load_dwordx4 {v(c1,4)}, {v(vY1)}, {WS}, s60 offen sc1")
    A(f"s_cmp_ge_u32 s{WV}, 2")
    A(f"s_cbranch_scc1 {L2}")
    A(f"buffer_load_dwordx4 {v(c2,4)}, {v(vY2)}, {WS}, s60 offen sc1")
    A.label(L2)
    A(f"s_cmp_lg_u32 s{sS2}, 0")
    A(f"s_cbranch_scc1 {L3}")
    A(f"buffer_load_dword {v(e1)}, {v(vY1x)}, {WS}, s60 offen sc1")
    A(f"buffer_load_dword {v(e2)}, {v(vY2x)}, {WS}, s60 offen sc1")
    A("s_waitcnt vmcnt(0)")
    A(f"s_cmp_eq_u32 s{WV}, 0")
    A(f"s_cbranch_scc1 {L6}")
    for k in range(3):
        A(f"v_alignbit_b32 {v(c1+k)}, {v(c1+k+1)}, {v(c1+k)}, 16")
    A(f"v_alignbit_b32 {v(c1+3)}, {v(e1)}, {v(c1+3)}, 16")
    A.label(L6)
    for k in range(3):
        A(f"v_alignbit_b32 {v(c2+k)}, {v(c2+k+1)}, {v(c2+k)}, 16")
    A(f"v_alignbit_b32 {v(c2+3)}, {v(e2)}, {v(c2+3)}, 16")
    A.label(L3)
    A("s_waitcnt vmcnt(0)")
    A(f"ds_write2st64_b32 {v(vLYW)}, {v(c0)}, {v(c0+1)} offset0:0 offset1:10")
    A(f"ds_write2st64_b32 {v(vLYW)}, {v(c0+2)}, {v(c0+3)} offset0:20 offset1:30")
    A(f"s_cmp_eq_u32 s{WV}, 0")
    A(f"s_cbranch_scc1 {L4}")
    for k in range(4):
        A(f"v_alignbit_b32 {v(t+k)}, {v(c1+3-k)}, {v(c1+3-k)}, 16")
    for k in range(4):
        A(f"v_mov_b32 {v(c1+k)}, {v(t+k)}")
    A.label(L4)
    A(f"ds_write2st64_b32 {v(vLYW)}, {v(c1)}, {v(c1+1)} offset0:4 offset1:14")
    A(f"ds_write2st64_b32 {v(vLYW)}, {v(c1+2)}, {v(c1+3)} offset0:24 offset1:34")
    A(f"s_cmp_ge_u32 s{WV}, 2")
    A(f"s_cbranch_scc1 {L5}")
    for k in range(4):
        A(f"v_alignbit_b32 {v(t+k)}, {v(c2+3-k)}, {v(c2+3-k)}, 16")
    A(f"ds_write2st64_b32 {v(vLYW)}, {v(t)}, {v(t+1)} offset0:8 offset1:18")
    A(f"ds_write2st64_b32 {v(vLYW)}, {v(t+2)}, {v(t+3)} offset0:28 offset1:38")
    A.label(L5)
    A("s_waitcnt lgkmcnt(0)")
    A("s_barrier")

def router_publish(layer, t, between=None):
    R_ = t
    for i in range(10):
        os_ = i & 1
        wv = v(WR + (i & ~1), 2)
        if i == 0:
            A(f"v_pk_mul_f32 {v(R_,2)}, {v(XN,2)}, {wv} op_sel:[0,{os_}] op_sel_hi:[1,{os_}]")
        else:
            A(f"v_pk_fma_f32 {v(R_,2)}, {v(XN+2*i,2)}, {wv}, {v(R_,2)} op_sel:[0,{os_},0] op_sel_hi:[1,{os_},1]")
    A(f"v_permlane32_swap_b32 {v(R_)}, {v(R_+1)}")
    A(f"v_add_f32 {v(R_)}, {v(R_)}, {v(R_+1)}")
    A(f"v_mov_b32 {v(R_+1)}, {v(R_)}")
    A(f"v_permlane16_swap_b32 {v(R_)}, {v(R_+1)}")
    A(f"v_add_f32 {v(R_)}, {v(R_)}, {v(R_+1)}")
    for r in (8, 4, 2, 1):
        A(f"v_add_f32_dpp {v(R_)}, {v(R_)}, {v(R_)} row_ror:{r} row_mask:0xf bank_mask:0xf")
    A(f"v_readlane_b32 s70, {v(R_)}, 0")
    A(f"v_readlane_b32 s71, {v(R_)}, 32")
    A(f"v_mov_b32 {v(R_+1)}, s71")
    A(f"v_cvt_pk_bf16_f32 {v(R_)}, s70, {v(R_+1)}")
    A(f"v_lshrrev_b32 {v(R_+1)}, 15, {v(R_)}")
    A(f"v_and_b32 {v(R_+1)}, 0x10001, {v(R_+1)}")
    A(f"v_mul_u32_u24 {v(R_+1)}, 0x7fff, {v(R_+1)}")
    A(f"v_or_b32 {v(R_+1)}, 0x80008000, {v(R_+1)}")
    A(f"v_xor_b32 {v(R_)}, {v(R_)}, {v(R_+1)}")
    A(f"s_add_u32 s72, s{NONCE}, {5 + layer}")
    A(f"v_mov_b32 {v(R_+1)}, s72")
    A(f"v_lshlrev_b32 {v(R_+2)}, 13, v1")
    A(f"s_lshl_b32 s73, s{sRHO}, 2")
    A(f"s_add_u32 s73, s73, s{WV}")
    A(f"s_lshl_b32 s73, s73, 3")
    A(f"s_add_u32 s73, s73, {RG_OFF + layer * NRR * RG_REP}")
    if between:
        between()
    A("s_waitcnt vmcnt(0)")
    set_exec((1 << NRR) - 1)
    A(f"buffer_store_dwordx2 {v(R_,2)}, {v(R_+2)}, {WS}, s73 offen sc1")
    A("s_mov_b64 exec, -1")

def roleR():
    A.label("L_roleR")
    srd(8, 42, 2621440)
    srd(12, 52, 2621440)
    srd(16, 44, 1280)
    A("s_and_b32 s60, s2, 7")
    A("s_lshr_b32 s61, s2, 3")
    A(f"s_lshr_b32 s{sA}, s61, 3")
    A("s_and_b32 s61, s61, 7")
    A("s_lshl_b32 s60, s60, 3")
    A("s_sub_u32 s62, 56, s60")
    A(f"s_cmp_lt_u32 s{sA}, 2")
    A("s_cselect_b32 s60, s60, s62")
    A(f"s_add_u32 s{sS2}, s60, s61")
    A(f"s_lshl_b32 s{sRHO}, s{sA}, 6")
    A(f"s_add_u32 s{sRHO}, s{sRHO}, s{sS2}")
    A(f"s_lshl_b32 s60, s{sA}, 9")
    A(f"s_lshl_b32 s61, s{WV}, 7")
    A(f"s_add_u32 s{sRA}, s60, s61")
    A(f"s_add_u32 s{sRA}, s{sRA}, s{sS2}")
    A(f"s_mul_i32 s{sXO}, s{sRA}, 1280")
    A(f"s_add_u32 s63, s{sXO}, {64 * 1280}")
    T = ACR
    A(f"v_and_b32 {v(T)}, 31, v1")
    A(f"v_lshrrev_b32 {v(T+1)}, 5, v1")
    A(f"v_mul_u32_u24 {v(vX)}, 640, {v(T+1)}")
    A(f"v_lshl_add_u32 {v(vX)}, {v(T)}, 1, {v(vX)}")
    for i in range(20):
        A(f"v_mov_b32 {v(X+i)}, 0")
    for i in range(10):
        A(f"buffer_load_short_d16_hi {v(X+2*i)}, {v(vX)}, {SRD1}, s{sXO} offen offset:{64*i}")
        A(f"buffer_load_short_d16_hi {v(X+2*i+1)}, {v(vX)}, {SRD1}, s63 offen offset:{64*i}")
    for i in range(10):
        A(f"v_mov_b32 {v(WR+i)}, 0")
    for i in range(10):
        A(f"buffer_load_short_d16_hi {v(WR+i)}, {v(vX)}, {SRD3}, 0 offen offset:{64*i}")
    A(f"v_mov_b32 {v(T+2)}, -1")
    A(f"v_mov_b32 {v(T+3)}, -1")
    A(f"v_lshlrev_b32 {v(T+4)}, 3, v0")
    A(f"s_lshl_b32 s60, s{sRHO}, 11")
    A(f"s_add_u32 s60, s60, {RESET_OFF}")
    A(f"buffer_store_dwordx2 {v(T+2,2)}, {v(T+4)}, {WS}, s60 offen sc1")
    n, h = T, T + 1
    e1, e1s, base, arg, c_, s_ = T + 6, T + 7, T + 8, T + 9, T + 10, T + 11
    A(f"v_bfe_u32 {v(e1)}, {v(n)}, 2, 1")
    A(f"v_mul_u32_u24 {v(e1)}, 10, {v(e1)}")
    A(f"v_and_b32 {v(arg)}, 3, {v(n)}")
    A(f"v_add_u32 {v(e1)}, {v(e1)}, {v(arg)}")
    A(f"v_lshrrev_b32 {v(arg)}, 3, {v(n)}")
    A(f"v_lshl_add_u32 {v(e1)}, {v(arg)}, 2, {v(e1)}")
    A(f"v_cvt_f32_u32 {v(e1)}, {v(e1)}")
    hf_ = T + 12
    A(f"v_cvt_f32_u32 {v(hf_)}, {v(h)}")
    A(f"v_mul_f32 {v(e1s)}, {f32(1/20)}, {v(e1)}")
    A(f"v_mul_f32 {v(base)}, {v(e1s)}, {v(hf_)}")
    A(f"v_mul_f32 {v(base)}, {f32(10.0)}, {v(base)}")
    for u in range(10):
        A(f"v_fmamk_f32 {v(arg)}, {v(e1s)}, {f32(u)}, {v(base)}")
        sincos(arg, c_, s_)
        A(f"v_cvt_pk_f16_f32 {v(B1R+u)}, {v(c_)}, {v(s_)}")
        A(f"v_cvt_pk_f16_f32 {v(B1I+u)}, -{v(s_)}, {v(c_)}")
    for r in (B1R + 10, B1R + 11, B1I + 10, B1I + 11, AF1 + 10, AF1 + 11):
        A(f"v_mov_b32 {v(r)}, 0")
    A(f"v_mul_f32 {v(e1s)}, {f32(1/640)}, {v(e1)}")
    A(f"v_mul_f32 {v(base)}, {v(e1s)}, {v(hf_)}")
    A(f"v_mul_f32 {v(base)}, 4.0, {v(base)}")
    for i in range(16):
        A(f"v_fmamk_f32 {v(arg)}, {v(e1s)}, {f32((i % 4) + 8 * (i // 4))}, {v(base)}")
        sincos(arg, TWC + i, TWS + i)
    A(f"v_cvt_f32_u32 {v(e1s)}, {v(n)}")
    A(f"v_mul_f32 {v(e1s)}, {f32(1/32)}, {v(e1s)}")
    A(f"v_mul_f32 {v(base)}, {v(e1s)}, {v(hf_)}")
    A(f"v_mul_f32 {v(base)}, 4.0, {v(base)}")
    for i in range(16):
        A(f"v_fmamk_f32 {v(arg)}, {v(e1s)}, {f32((i % 4) + 8 * (i // 4))}, {v(base)}")
        sincos(arg, c_, s_)
        A(f"v_cvt_pk_f16_f32 {v(B2R+i)}, {v(c_)}, {v(s_)}")
        A(f"v_cvt_pk_f16_f32 {v(B2I+i)}, -{v(s_)}, {v(c_)}")
    A(f"v_mov_b32 {v(INV)}, {f32(1/640)}")
    A(f"v_mov_b32 {v(INV+1)}, {f32(1/640)}")
    A(f"s_mov_b32 s{s32f}, {f32(32.0)}")
    A(f"v_mul_u32_u24 {v(vLWW)}, 21, {v(n)}")
    A(f"v_mad_u32_u24 {v(vLWW)}, {v(h)}, 10, {v(vLWW)}")
    A(f"s_mul_i32 s60, s{WV}, 704")
    A(f"s_add_u32 s60, s60, {LDS_W // 4}")
    A(f"v_add_lshl_u32 {v(vLWW)}, {v(vLWW)}, s60, 2")
    for j in range(3):
        A(f"v_add_u32 {v(arg)}, {256*j}, v0")
        A(f"v_mul_u32_u24 {v(c_)}, 3277, {v(arg)}")
        A(f"v_lshrrev_b32 {v(c_)}, 16, {v(c_)}")
        A(f"v_add_u32 {v(arg)}, {v(arg)}, {v(c_)}")
        A(f"v_lshlrev_b32 {v(arg)}, 2, {v(arg)}")
        A(f"v_add_u32 {v(vLWR0+j)}, {LDS_W}, {v(arg)}")
    A(f"v_lshlrev_b32 {v(vWG)}, 4, v0")
    A(f"s_mul_i32 s{sWB}, s{sRHO}, 10240")
    A(f"v_lshlrev_b32 {v(vTA)}, 4, v1")
    A(f"v_lshlrev_b32 {v(vTB)}, 2, v1")
    A(f"v_add_u32 {v(vTB)}, 1024, {v(vTB)}")
    A(f"v_lshlrev_b32 {v(vLYW)}, 2, v0")
    A(f"v_mul_u32_u24 {v(vLYR)}, 320, {v(h)}")
    A(f"s_mul_i32 s60, s{WV}, 640")
    A(f"v_add3_u32 {v(vLYR)}, {v(vLYR)}, {v(n)}, s60")
    A(f"v_lshlrev_b32 {v(vLYR)}, 2, {v(vLYR)}")
    A(f"s_sub_u32 s60, 3, s{sA}")
    A(f"s_lshl_b32 s60, s60, 6")
    A(f"s_sub_u32 s61, 64, s{sS2}")
    A(f"s_and_b32 s61, s61, 63")
    A(f"s_add_u32 s60, s60, s61")
    A(f"s_lshl_b32 s60, s60, 4")
    A(f"s_sub_u32 s61, 4, s{sA}")
    A(f"s_and_b32 s61, s61, 3")
    A(f"s_lshl_b32 s61, s61, 10")
    A(f"s_lshl_b32 s62, s{sRHO}, 4")
    A(f"v_lshlrev_b32 {v(vY0)}, 12, v0")
    A(f"v_add_u32 {v(vY0)}, s62, {v(vY0)}")
    A(f"v_sub_u32 {v(arg)}, 384, v0")
    A(f"v_lshlrev_b32 {v(arg)}, 12, {v(arg)}")
    A(f"v_add_u32 {v(vY1)}, s60, {v(arg)}")
    A(f"v_add_u32 {v(vY1x)}, s61, {v(arg)}")
    A(f"v_add_u32 {v(c_)}, {256 << 12}, {v(vY0)}")
    A(f"v_cmp_gt_u32 vcc, 64, v0")
    A(f"v_cndmask_b32 {v(vY1)}, {v(vY1)}, {v(c_)}, vcc")
    A(f"v_sub_u32 {v(arg)}, 128, v0")
    A(f"v_and_b32 {v(arg)}, 0xff, {v(arg)}")
    A(f"v_lshlrev_b32 {v(arg)}, 12, {v(arg)}")
    A(f"v_add_u32 {v(vY2)}, s60, {v(arg)}")
    A(f"v_add_u32 {v(vY2x)}, s61, {v(arg)}")
    A(f"s_lshl_b32 s{sME}, s{sRHO}, 2")
    A(f"s_and_b32 s{sREP}, s2, {NREP - 1}")
    A(f"s_lshl_b32 s{sREP}, s{sREP}, 10")
    get_nonce()
    stamp(0)
    A("s_waitcnt vmcnt(11)")
    ln_stats(X, ACR)
    ln_center_scale(X, XN, ACR)
    to_f16(XN, ACR)
    row_dft(XN)
    write_W(0)
    signal(0, sME, ACR)
    stamp(1)
    poll_flags(1, 41, sREP, ACR)
    stamp(2)
    stage_Y(0)
    for i in range(10):
        A(f"ds_read_b32 {v(ACI+i)}, {v(vLYR)} offset:{128*i}")
    A(f"s_mul_i32 s{sTB}, s{sRA}, {T_REC}")
    A(f"s_add_u32 s{sTB}, s{sTB}, {T_OFF}")
    A(f"s_add_u32 s{sTB+1}, s{sTB}, {64 * T_REC}")
    for i in range(10):
        A(f"s_waitcnt lgkmcnt({9-i})")
        A(f"v_fma_mix_f32 {v(X+2*i)}, {v(ACI+i)}, s{s32f}, {v(X+2*i)} op_sel:[0,0,0] op_sel_hi:[1,0,0]")
        A(f"v_fma_mix_f32 {v(X+2*i+1)}, {v(ACI+i)}, s{s32f}, {v(X+2*i+1)} op_sel:[1,0,0] op_sel_hi:[1,0,0]")
    PA, PB = AC2R, AC2R + 8
    pack_rows(X, PA, PB)
    store_rows(PA, PB, 1280)
    ln_stats(X, ACR)
    ln_center_scale(X, XN, ACR)
    pack_rows(XN, PA + 16, PB + 16)
    store_rows(PA + 16, PB + 16, 0)
    def mid():
        for i in range(10):
            A(f"v_pk_add_f32 {v(X+2*i,2)}, {v(X+2*i,2)}, {v(XN+2*i,2)}")
        for i in range(10):
            rnd_pair(X + 2 * i, X + 2 * i + 1, ACR + (i % 4))
        ln_stats(X, ACR)
    router_publish(0, ACI, mid)
    stamp(3)
    A(f"v_cmp_gt_u32 vcc, 32, v1")
    A(f"v_cndmask_b32 {v(ACR)}, {v(MM+1)}, {v(MM)}, vcc")
    A(f"v_cndmask_b32 {v(ACR+1)}, {v(RS+1)}, {v(RS)}, vcc")
    A(f"s_add_u32 s60, s{NONCE}, 7")
    A(f"v_mov_b32 {v(ACR+2)}, s60")
    A(f"v_mov_b32 {v(ACR+3)}, s60")
    A(f"v_lshrrev_b32 {v(ACR+4)}, 5, v1")
    A(f"v_mul_u32_u24 {v(ACR+4)}, {64 * T_REC}, {v(ACR+4)}")
    A(f"s_mov_b32 exec_lo, 1")
    A(f"s_mov_b32 exec_hi, 1")
    A(f"buffer_store_dwordx4 {v(ACR,4)}, {v(ACR+4)}, {WS}, s{sTB} offen offset:2560 sc1")
    A("s_mov_b64 exec, -1")
    ln_center_scale(X, XN, ACR + 8)
    to_f16(XN, ACR + 8)
    row_dft(XN)
    write_W(1)
    signal(2, sME, ACR)
    stamp(4)
    loop, done = A.newlabel("Lsel"), A.newlabel("Lseld")
    A(f"s_and_b32 s74, s2, {NRX - 1}")
    A(f"s_mul_i32 s74, s74, {X2REP}")
    A(f"s_add_u32 s74, s74, {X2_OFF}")
    A(f"s_add_u32 s60, s74, {SEL_OFF}")
    A(f"v_and_b32 {v(ACR)}, 7, v1")
    A(f"v_lshlrev_b32 {v(ACR)}, 2, {v(ACR)}")
    A(f"s_mov_b32 s62, {SPIN}")
    A.label(loop)
    A(f"buffer_load_dword {v(ACR+1)}, {v(ACR)}, {WS}, s60 offen sc1")
    A("s_waitcnt vmcnt(0)")
    A(f"v_cmp_eq_u32 vcc, -1, {v(ACR+1)}")
    A(f"s_cbranch_vccz {done}")
    spin_tail(loop, 62, done, 4)
    A.label(done)
    for j in range(8):
        A(f"v_readlane_b32 s{sSEL+j}, {v(ACR+1)}, {j}")
    stamp(5)
    CU, CV = XN + 12, XN + 16
    tr, ca, sa, cb, sb, ar, t0, t1_ = ACR, ACR + 1, ACR + 2, ACR + 3, ACR + 4, ACR + 5, ACR + 6, ACR + 7
    A(f"v_and_b32 {v(tr)}, 1, v1")
    A(f"v_lshlrev_b32 {v(tr)}, 6, {v(tr)}")
    A(f"v_add_u32 {v(tr)}, s{sRA}, {v(tr)}")
    A(f"s_mov_b32 s64, 0x00300003")
    A(f"s_mov_b32 s65, 0x30000300")
    for p in range(4):
        for (j, cc, ss) in ((2 * p, ca, sa), (2 * p + 1, cb, sb)):
            A(f"v_mul_u32_u24 {v(ar)}, s{sSEL+j}, {v(tr)}")
            A(f"v_and_b32 {v(ar)}, 0x7ff, {v(ar)}")
            A(f"v_cvt_f32_u32 {v(ar)}, {v(ar)}")
            A(f"v_mul_f32 {v(ar)}, {f32(1/2048)}, {v(ar)}")
            sincos(ar, cc, ss)
        A(f"v_sub_f32 {v(t0)}, {v(ca)}, {v(sb)}")
        A(f"v_add_f32 {v(t1_)}, {v(sa)}, {v(cb)}")
        A(f"v_mul_f32 {v(t0)}, 0.5, {v(t0)}")
        A(f"v_mul_f32 {v(t1_)}, 0.5, {v(t1_)}")
        A(f"v_cvt_pk_f16_f32 {v(CU+p)}, {v(t0)}, {v(t1_)}")
        A(f"v_add_f32 {v(t0)}, {v(ca)}, {v(sb)}")
        A(f"v_sub_f32 {v(t1_)}, {v(cb)}, {v(sa)}")
        A(f"v_mul_f32 {v(t0)}, 0.5, {v(t0)}")
        A(f"v_mul_f32 {v(t1_)}, 0.5, {v(t1_)}")
        A(f"v_cvt_pk_f16_f32 {v(CV+p)}, {v(t0)}, {v(t1_)}")
        A(f"v_cndmask_b32 {v(CU+p)}, 0, {v(CU+p)}, s[64:65]")
        A(f"v_cndmask_b32 {v(CV+p)}, 0, {v(CV+p)}, s[64:65]")
    vE0, vDF, vDM, vP2, vNW = vLWW, vLWR0, vLWR0 + 1, vLWR0 + 2, vWG
    n, h = ACR + 8, ACR + 9
    A(f"v_and_b32 {v(n)}, 31, v1")
    A(f"v_lshrrev_b32 {v(h)}, 5, v1")
    A(f"v_mul_u32_u24 {v(vE0)}, 20, {v(n)}")
    A(f"v_mad_u32_u24 {v(vE0)}, {v(h)}, 10, {v(vE0)}")
    A(f"v_mul_u32_u24 {v(vDF)}, 330, {v(h)}")
    A(f"v_add_u32 {v(vDF)}, {v(vDF)}, {v(n)}")
    A(f"v_lshlrev_b32 {v(vDF)}, 4, {v(vDF)}")
    A(f"v_add_u32 {v(vDF)}, {LDS_W}, {v(vDF)}")
    A(f"v_mul_u32_u24 {v(vDM)}, 330, {v(h)}")
    A(f"v_add_u32 {v(vDM)}, {v(vDM)}, {v(n)}")
    A(f"v_sub_u32 {v(vDM)}, 362, {v(vDM)}")
    A(f"v_cmp_eq_u32 vcc, 0, {v(n)}")
    A(f"v_addc_co_u32 {v(vDM)}, vcc, 0, {v(vDM)}, vcc")
    A(f"v_lshlrev_b32 {v(vDM)}, 4, {v(vDM)}")
    A(f"v_add_u32 {v(vDM)}, {LDS_W}, {v(vDM)}")
    A(f"s_lshl_b32 s60, s{WV}, 8")
    A(f"v_mul_u32_u24 {v(vP2)}, 10240, {v(h)}")
    A(f"v_lshl_add_u32 {v(vP2)}, {v(n)}, 3, {v(vP2)}")
    A(f"v_add_u32 {v(vP2)}, s60, {v(vP2)}")
    A(f"v_lshlrev_b32 {v(vNW)}, 2, v1")
    A(f"v_add_u32 {v(vNW)}, {LDS_Y}, {v(vNW)}")
    poll_flags(3, 41, sREP, ACR)
    stamp(6)
    stage_Y(1)
    loop, done = A.newlabel("Lx2"), A.newlabel("Lx2d")
    RAW = AC2R
    A(f"s_add_u32 s60, s74, 4096")
    A(f"s_add_u32 s61, s74, 8192")
    A(f"s_mov_b32 s62, {SPIN}")
    A.label(loop)
    for i in range(10):
        so = ("s74", "s60", "s61")[i // 4]
        A(f"buffer_load_dwordx2 {v(RAW+2*i,2)}, {v(vP2)}, {WS}, {so} offen offset:{1024*(i%4)} sc1")
    A("s_waitcnt vmcnt(0)")
    A(f"v_max3_u32 {v(ACR)}, {v(RAW)}, {v(RAW+1)}, {v(RAW+2)}")
    for k in range(3, 19, 2):
        A(f"v_max3_u32 {v(ACR)}, {v(ACR)}, {v(RAW+k)}, {v(RAW+k+1)}")
    A(f"v_max_u32 {v(ACR)}, {v(ACR)}, {v(RAW+19)}")
    A(f"v_cmp_eq_u32 vcc, -1, {v(ACR)}")
    A(f"s_cbranch_vccz {done}")
    spin_tail(loop, 62, done, 2)
    A.label(done)
    stamp(7)
    Z = ACR + 12
    A(f"s_mul_i32 s60, s{WV}, 2560")
    A(f"s_add_u32 s60, s60, {LDS_NEW - 0}")
    A(f"v_lshlrev_b32 {v(ACR)}, 2, v1")
    A(f"v_add_u32 {v(ACR)}, s60, {v(ACR)}")
    for i in range(10):
        A(f"ds_write_b32 {v(ACR)}, {v(RAW+2*i)} offset:{256*i}")
        A(f"v_lshlrev_b32 {v(Z+2*i)}, 16, {v(RAW+2*i)}")
        A(f"v_and_b32 {v(Z+2*i+1)}, 0xffff0000, {v(RAW+2*i)}")
    ln_stats(Z, ACR + 2)
    ln_center_scale(Z, Z, ACR + 2)
    to_f16(Z, ACR + 2, sub=lambda i: RAW + 2 * i + 1)
    CB = 16
    YR = 56
    AD = 66
    def shadow():
        for i in range(10):
            A(f"ds_read_b32 {v(YR+i)}, {v(vLYR)} offset:{128*i}")
        for i in range(10):
            A(f"v_mov_b32 {v(CB+4*i+2)}, 0")
            A(f"v_mov_b32 {v(CB+4*i+3)}, 0")
        for i in range(10):
            A(f"s_waitcnt lgkmcnt({9-i})")
            A(f"v_fma_mix_f32 {v(CB+4*i)}, {v(YR+i)}, s{s32f}, {v(X+2*i)} op_sel:[0,0,0] op_sel_hi:[1,0,0]")
            A(f"v_fma_mix_f32 {v(CB+4*i+1)}, {v(YR+i)}, s{s32f}, {v(X+2*i+1)} op_sel:[1,0,0] op_sel_hi:[1,0,0]")
        A(f"s_lshl_b32 s60, s{WV}, 2")
        A(f"s_add_u32 s60, s60, {LDS_W}")
        for i in range(10):
            A(f"v_add_u32 {v(YR+i)}, {i}, {v(vE0)}")
            A(f"v_lshrrev_b32 {v(AD)}, 5, {v(YR+i)}")
            A(f"v_add_u32 {v(YR+i)}, {v(YR+i)}, {v(AD)}")
            A(f"v_lshl_add_u32 {v(YR+i)}, {v(YR+i)}, 4, s60")
        A(f"s_add_u32 s60, s60, {660 * 16}")
        A(f"v_mov_b32 {v(AD)}, s60")
        A(f"v_cmp_eq_u32 vcc, 0, v1")
        A(f"v_cndmask_b32 {v(AD)}, {v(YR)}, {v(AD)}, vcc")
    row_dft(XN, shadow)
    for i in range(10):
        A(f"v_cvt_pk_f16_f32 {v(ACR+i)}, {v(AC2R+i)}, {v(AC2I+i)}")
        A(f"ds_write_b32 {v(YR+i)}, {v(ACR+i)}")
    A(f"ds_write_b32 {v(AD)}, {v(ACR)}")
    A("s_waitcnt lgkmcnt(0)")
    A("s_barrier")
    FR = 160
    for i in range(10):
        A(f"ds_read_b128 {v(FR+8*i,4)}, {v(vDF)} offset:{528*i}")
        A(f"ds_read_b128 {v(FR+8*i+4,4)}, {v(vDM)} offset:{528*(9-i)}")
        if i >= 6:
            k = i - 6
            A(f"s_waitcnt lgkmcnt(12)")
            A(f"v_mfma_f32_16x16x32_f16 {v(CB+4*k,4)}, {v(CU,4)}, {v(FR+8*k,4)}, {v(CB+4*k,4)}")
            A(f"v_mfma_f32_16x16x32_f16 {v(CB+4*k,4)}, {v(CV,4)}, {v(FR+8*k+4,4)}, {v(CB+4*k,4)}")
    for k in range(4, 10):
        A(f"s_waitcnt lgkmcnt({2*(9-k)})")
        A(f"v_mfma_f32_16x16x32_f16 {v(CB+4*k,4)}, {v(CU,4)}, {v(FR+8*k,4)}, {v(CB+4*k,4)}")
        A(f"v_mfma_f32_16x16x32_f16 {v(CB+4*k,4)}, {v(CV,4)}, {v(FR+8*k+4,4)}, {v(CB+4*k,4)}")
    for row in range(2):
        Lnext = A.newlabel("Lown")
        A(f"s_add_u32 s60, s{sRA}, {64 * row}")
        A("s_mov_b32 s61, -1")
        for j in range(8):
            A(f"s_cmp_eq_u32 s60, s{sSEL+j}")
            A(f"s_cselect_b32 s61, {j}, s61")
        A("s_cmp_lt_i32 s61, 0")
        A(f"s_cbranch_scc1 {Lnext}")
        A("s_lshr_b32 s62, s61, 1")
        A("s_mul_i32 s62, s62, 2560")
        A(f"s_add_u32 s62, s62, {LDS_NEW}")
        A("s_and_b32 s61, s61, 1")
        A("s_lshl_b32 s61, s61, 4")
        A("s_sub_u32 s61, 16, s61")
        A(f"v_lshlrev_b32 {v(240)}, 2, v1")
        A(f"v_add_u32 {v(240)}, s62, {v(240)}")
        for i in range(10):
            A(f"ds_read_b32 {v(241+i)}, {v(240)} offset:{256*i}")
        A("s_waitcnt lgkmcnt(0)")
        for i in range(10):
            A(f"v_lshlrev_b32 {v(241+i)}, s61, {v(241+i)}")
            A(f"v_and_b32 {v(241+i)}, 0xffff0000, {v(241+i)}")
            A(f"v_sub_f32 {v(241+i)}, {v(241+i)}, {v(X+2*i+row)}")
            A(f"v_add_f32 {v(CB+4*i+row)}, {v(CB+4*i+row)}, {v(241+i)}")
        A.label(Lnext)
    for i in range(10):
        A(f"v_mov_b32 {v(X+2*i)}, {v(CB+4*i)}")
        A(f"v_mov_b32 {v(X+2*i+1)}, {v(CB+4*i+1)}")
    A(f"s_add_u32 s{sTB}, s{sTB}, {T_SZ}")
    A(f"s_add_u32 s{sTB+1}, s{sTB+1}, {T_SZ}")
    pack_rows(X, PA, PB)
    store_rows(PA, PB, 1280)
    ln_stats(X, ACR)
    ln_center_scale(X, XN, ACR)
    pack_rows(XN, PA + 16, PB + 16)
    store_rows(PA + 16, PB + 16, 0)
    def fin():
        A(f"s_mul_i32 s60, s{WV}, 2560")
        A(f"v_add_u32 {v(ACR)}, s60, {v(vX)}")
        for i in range(10):
            A(f"v_pk_add_f32 {v(X+2*i,2)}, {v(X+2*i,2)}, {v(XN+2*i,2)}")
            A(f"v_cvt_pk_bf16_f32 {v(ACR+2+i)}, {v(X+2*i)}, {v(X+2*i+1)}")
            A(f"ds_write_b16 {v(ACR)}, {v(ACR+2+i)} offset:{64*i}")
            A(f"ds_write_b16_d16_hi {v(ACR)}, {v(ACR+2+i)} offset:{1280+64*i}")
        A(f"v_lshlrev_b32 {v(ACR+1)}, 4, v1")
        A(f"v_add_u32 {v(ACR)}, s60, {v(ACR+1)}")
        A("s_waitcnt lgkmcnt(0)")
        for k in range(3):
            A(f"ds_read_b128 {v(ACR+12+4*k,4)}, {v(ACR)} offset:{1024*k}")
    A("s_barrier")
    router_publish(1, ACI + 12, fin)
    stamp(8)
    A(f"v_add_u32 {v(ACR+2)}, {1024 + 63 * 1280}, {v(ACR+1)}")
    A(f"v_add_u32 {v(ACR+3)}, 1024, {v(ACR+1)}")
    A(f"v_cmp_gt_u32 vcc, 16, v1")
    A(f"v_cndmask_b32 {v(ACR+3)}, {v(ACR+2)}, {v(ACR+3)}, vcc")
    A("s_waitcnt lgkmcnt(0)")
    A(f"buffer_store_dwordx4 {v(ACR+12,4)}, {v(ACR+1)}, {SRD2}, s{sXO} offen sc1")
    A(f"buffer_store_dwordx4 {v(ACR+16,4)}, {v(ACR+3)}, {SRD2}, s{sXO} offen sc1")
    set_exec(0xffffffff)
    A(f"buffer_store_dwordx4 {v(ACR+20,4)}, {v(ACR+2)}, {SRD2}, s{sXO} offen offset:1024 sc1")
    A("s_mov_b64 exec, -1")
    signal(4, sME, ACR + 24)
    stamp(9)
    A("s_endpgm")

def roleC():
    A.label("L_roleC")
    B1, TC, TS, A2, DT, RAW, AR, AI, P, AC, O, T = 16, 32, 48, 64, 128, 160, 176, 192, 208, 224, 240, 248
    sC, sCME, sCREP, sK, sW0, sW1, sY = 22, 23, 24, 25, 26, 27, 28
    A(f"s_sub_u32 s60, s2, {C0}")
    A("s_and_b32 s61, s60, 7")
    A("s_lshr_b32 s62, s60, 3")
    A("s_lshr_b32 s63, s62, 2")
    A("s_lshl_b32 s63, s63, 5")
    A("s_lshl_b32 s61, s61, 2")
    A("s_and_b32 s62, s62, 3")
    A(f"s_add_u32 s{sC}, s63, s61")
    A(f"s_add_u32 s{sC}, s{sC}, s62")
    A(f"s_lshl_b32 s{sCME}, s{sC}, 2")
    A(f"s_and_b32 s{sCREP}, s2, {NREP - 1}")
    A(f"s_lshl_b32 s{sCREP}, s{sCREP}, 10")
    n, g, t1, gs, arg, base, st = RAW, RAW + 1, RAW + 2, RAW + 3, RAW + 4, RAW + 5, RAW + 6
    ca, sa, cb, sb, x0, x1 = RAW + 7, RAW + 8, RAW + 9, RAW + 10, RAW + 11, RAW + 12
    A(f"v_and_b32 {v(n)}, 15, v1")
    A(f"v_lshrrev_b32 {v(g)}, 4, v1")
    A(f"s_and_b32 s60, s{WV}, 1")
    A(f"s_lshl_b32 s60, s60, 4")
    A(f"s_lshr_b32 s61, s{WV}, 1")
    A(f"v_lshrrev_b32 v2, 1, v0")
    A(f"v_and_b32 v6, 1, v0")
    A(f"s_lshl_b32 s62, s{sC}, 1")
    A(f"v_add_u32 v3, s62, v6")
    A(f"v_sub_u32 v4, 640, v3")
    A(f"v_cmp_ne_u32 vcc, 0, v3")
    A(f"v_cndmask_b32 v4, 0, v4, vcc")
    A(f"v_mul_u32_u24 v5, 10240, v2")
    A(f"v_mul_u32_u24 v6, 8256, v6")
    A(f"v_lshl_add_u32 v6, v2, 4, v6")
    A(f"v_lshl_add_u32 v2, v3, 4, v5")
    A(f"v_lshl_add_u32 v3, v4, 4, v5")
    A(f"s_mul_i32 s63, s61, 8256")
    A(f"v_lshlrev_b32 v7, 10, {v(g)}")
    A(f"v_lshl_add_u32 v7, {v(n)}, 4, v7")
    A(f"v_add_u32 v7, s63, v7")
    A(f"s_add_u32 s62, s62, s61")
    A(f"s_lshl_b32 s62, s62, 12")
    A(f"v_lshl_add_u32 v8, {v(g)}, 6, {v(n)}")
    A(f"v_add_u32 v8, s60, v8")
    A(f"v_lshl_add_u32 v8, v8, 4, s62")
    A(f"v_add_u32 {v(t1)}, s60, {v(n)}")
    A(f"v_cvt_f32_u32 {v(t1)}, {v(t1)}")
    A(f"v_cvt_f32_u32 {v(gs)}, {v(g)}")
    A(f"v_mul_f32 {v(st)}, {f32(1/32)}, {v(t1)}")
    A(f"v_mul_f32 {v(base)}, {v(st)}, {v(gs)}")
    A(f"v_mul_f32 {v(base)}, {f32(8.0)}, {v(base)}")
    for w in range(4):
        A(f"v_fmamk_f32 {v(arg)}, {v(st)}, {f32(2*w)}, {v(base)}")
        sincos(arg, ca, sa)
        A(f"v_add_f32 {v(arg)}, {v(arg)}, {v(st)}")
        sincos(arg, cb, sb)
        A(f"v_sub_f32 {v(x0)}, {v(ca)}, {v(sb)}")
        A(f"v_add_f32 {v(x1)}, {v(sa)}, {v(cb)}")
        A(f"v_cvt_pk_f16_f32 {v(B1+w)}, {v(x0)}, {v(x1)}")
        A(f"v_cvt_pk_f16_f32 {v(B1+4+w)}, -{v(x1)}, {v(x0)}")
        A(f"v_add_f32 {v(x0)}, {v(ca)}, {v(sb)}")
        A(f"v_sub_f32 {v(x1)}, {v(cb)}, {v(sa)}")
        A(f"v_cvt_pk_f16_f32 {v(B1+8+w)}, {v(x0)}, {v(x1)}")
        A(f"v_cvt_pk_f16_f32 {v(B1+12+w)}, {v(x1)}, -{v(x0)}")
    A(f"v_mul_f32 {v(st)}, {f32(1/2048)}, {v(t1)}")
    A(f"v_mul_f32 {v(base)}, {v(st)}, {v(gs)}")
    A(f"v_mul_f32 {v(base)}, 4.0, {v(base)}")
    for j in range(4):
        for i in range(4):
            A(f"v_fmamk_f32 {v(arg)}, {v(st)}, {f32(16*j+i)}, {v(base)}")
            sincos(arg, ca, sa)
            A(f"v_mul_f32 {v(TC+4*j+i)}, {f32(1/64)}, {v(ca)}")
            A(f"v_mul_f32 {v(TS+4*j+i)}, {f32(1/64)}, {v(sa)}")
    A(f"v_lshrrev_b32 {v(x0)}, 2, {v(n)}")
    A(f"v_lshlrev_b32 {v(x0)}, 4, {v(x0)}")
    A(f"v_and_b32 {v(x1)}, 3, {v(n)}")
    A(f"v_lshl_add_u32 {v(x0)}, {v(x1)}, 1, {v(x0)}")
    A(f"v_cvt_f32_u32 {v(x0)}, {v(x0)}")
    for jm in range(4):
        A(f"v_add_f32 {v(st)}, {f32(8*(jm&1)+(jm>>1))}, {v(x0)}")
        A(f"v_mul_f32 {v(st)}, {f32(1/64)}, {v(st)}")
        A(f"v_mul_f32 {v(base)}, {v(st)}, {v(gs)}")
        A(f"v_mul_f32 {v(base)}, 4.0, {v(base)}")
        for j in range(4):
            for i in range(4):
                A(f"v_fmamk_f32 {v(arg)}, {v(st)}, {f32(16*j+i)}, {v(base)}")
                sincos(arg, ca, sa)
                A(f"v_cvt_pk_f16_f32 {v(A2+16*jm+4*j+i)}, {v(ca)}, {v(sa)}")
    get_nonce()
    A(f"s_mov_b32 s{sK}, 0")
    A(f"s_mov_b32 s{sW0}, {W_OFF}")
    A(f"s_mov_b32 s{sY}, {Y_OFF}")
    A.label("L_Cloop")
    A(f"s_add_u32 s{sW1}, s{sW0}, {128 * 10240}")
    poll_flags(f"s{sK}", 64, sCREP, T)
    stamp(0)
    A(f"buffer_load_dwordx4 {v(RAW,4)}, v2, {WS}, s{sW0} offen sc1")
    A(f"buffer_load_dwordx4 {v(RAW+4,4)}, v2, {WS}, s{sW1} offen sc1")
    A(f"buffer_load_dwordx4 {v(RAW+8,4)}, v3, {WS}, s{sW0} offen sc1")
    A(f"buffer_load_dwordx4 {v(RAW+12,4)}, v3, {WS}, s{sW1} offen sc1")
    for j in range(4):
        A(f"s_waitcnt vmcnt({3-j})")
        A(f"ds_write_b128 v6, {v(RAW+4*j,4)} offset:{(j>>1)*4096 + (j&1)*2048}")
    A("s_waitcnt lgkmcnt(0)")
    A("s_barrier")
    stamp(1)
    for j in range(4):
        A(f"ds_read_b128 {v(DT+8*j,4)}, v7 offset:{256*j}")
        A(f"ds_read_b128 {v(DT+8*j+4,4)}, v7 offset:{4096+256*j}")
    for j in range(4):
        A(f"s_waitcnt lgkmcnt({7-2*j})")
        A(f"v_mfma_f32_16x16x32_f16 {v(AR+4*j,4)}, {v(DT+8*j,4)}, {v(B1,4)}, 0")
        A(f"v_mfma_f32_16x16x32_f16 {v(AI+4*j,4)}, {v(DT+8*j,4)}, {v(B1+4,4)}, 0")
        A(f"s_waitcnt lgkmcnt({6-2*j})")
        A(f"v_mfma_f32_16x16x32_f16 {v(AR+4*j,4)}, {v(DT+8*j+4,4)}, {v(B1+8,4)}, {v(AR+4*j,4)}")
        A(f"v_mfma_f32_16x16x32_f16 {v(AI+4*j,4)}, {v(DT+8*j+4,4)}, {v(B1+12,4)}, {v(AI+4*j,4)}")
    for j in range(4):
        for i in (4 * j, 4 * j + 2):
            pr, pi = RAW + (i % 4) * 2, RAW + (i % 4) * 2 + 2
            A(f"v_pk_mul_f32 {v(pr,2)}, {v(AR+i,2)}, {v(TC+i,2)}")
            A(f"v_pk_mul_f32 {v(pi,2)}, {v(AI+i,2)}, {v(TC+i,2)}")
            A(f"v_pk_fma_f32 {v(pr,2)}, {v(AI+i,2)}, {v(TS+i,2)}, {v(pr,2)}")
            A(f"v_pk_fma_f32 {v(pi,2)}, {v(AR+i,2)}, {v(TS+i,2)}, {v(pi,2)} neg_lo:[1,0,0] neg_hi:[1,0,0]")
            A(f"v_cvt_pk_f16_f32 {v(P+i)}, {v(pr)}, {v(pi)}")
            A(f"v_cvt_pk_f16_f32 {v(P+i+1)}, {v(pr+1)}, {v(pi+1)}")
        for jm in range(4):
            c = "0" if j == 0 else v(AC + 4 * jm, 4)
            A(f"v_mfma_f32_16x16x32_f16 {v(AC+4*jm,4)}, {v(A2+16*jm+4*j,4)}, {v(P+4*j,4)}, {c}")
    for k in range(8):
        A(f"v_cvt_pk_f16_f32 {v(O+k)}, {v(AC+2*k)}, {v(AC+2*k+1)}")
    A(f"buffer_store_dwordx4 {v(O,4)}, v8, {WS}, s{sY} offen sc1")
    A(f"buffer_store_dwordx4 {v(O+4,4)}, v8, {WS}, s{sY} offen offset:512 sc1")
    A(f"s_add_u32 s{sK}, s{sK}, 1")
    signal(f"s{sK}", sCME, T, x4=sC)
    stamp(2)
    A(f"s_add_u32 s{sK}, s{sK}, 1")
    A(f"s_add_u32 s{sW0}, s{sW0}, {W_SZ}")
    A(f"s_add_u32 s{sY}, s{sY}, {Y_SZ}")
    A(f"s_cmp_lt_u32 s{sK}, 4")
    A("s_cbranch_scc1 L_Cloop")
    A("s_endpgm")

SORT8 = [(0, 1), (2, 3), (4, 5), (6, 7), (0, 2), (1, 3), (4, 6), (5, 7), (1, 2), (5, 6), (0, 4), (3, 7),
         (1, 5), (2, 6), (1, 4), (3, 6), (2, 4), (3, 5), (3, 4)]

def topk_setup(CODE, vG, vLW, vLR, LDS0):
    A(f"v_lshrrev_b32 {v(CODE)}, 6, v0")
    A(f"v_lshlrev_b32 {v(CODE)}, 9, {v(CODE)}")
    A(f"v_add_u32 {v(CODE)}, {v(CODE)}, v1")
    A(f"v_sub_u32 {v(CODE)}, 2047, {v(CODE)}")
    for i in range(1, 8):
        A(f"v_subrev_u32 {v(CODE+i)}, {64*i}, {v(CODE)}")
    A(f"v_lshlrev_b32 {v(vG)}, 5, v0")
    A(f"v_lshrrev_b32 {v(vLW)}, 4, v0")
    A(f"v_lshlrev_b32 {v(vLW)}, 5, {v(vLW)}")
    A(f"v_add_u32 {v(vLW)}, {LDS0}, {v(vLW)}")
    A(f"v_and_b32 {v(vLR)}, 15, v1")
    A(f"v_lshlrev_b32 {v(vLR)}, 5, {v(vLR)}")
    A(f"v_add_u32 {v(vLR)}, {LDS0}, {v(vLR)}")

def topk(K, CODE, vG, vLW, vLR, sRG, sTAG, blk):
    G = K + 16
    loop, done = A.newlabel("Lrg"), A.newlabel("Lrgd")
    A(f"s_mov_b32 s62, {SPIN}")
    A.label(loop)
    A(f"buffer_load_dwordx4 {v(G,4)}, {v(vG)}, {WS}, s{sRG} offen sc1")
    A(f"buffer_load_dwordx4 {v(G+4,4)}, {v(vG)}, {WS}, s{sRG} offen offset:16 sc1")
    A("s_waitcnt vmcnt(0)")
    for k in range(4):
        A(f"v_xor_b32 {v(K+k)}, s{sTAG}, {v(G+2*k+1)}")
    A(f"v_or3_b32 {v(K)}, {v(K)}, {v(K+1)}, {v(K+2)}")
    A(f"v_or_b32 {v(K)}, {v(K)}, {v(K+3)}")
    A(f"v_cmp_ne_u32 vcc, 0, {v(K)}")
    A(f"s_cbranch_vccz {done}")
    spin_tail(loop, 62, done, 2)
    A.label(done)
    stamp(3)
    A("s_mov_b32 s63, 0xffff0000")
    cur = list(range(K, K + 8))
    for k in range(4):
        A(f"v_lshl_or_b32 {v(cur[2*k])}, {v(G+2*k)}, 16, {v(CODE+2*k)}")
        A(f"v_and_or_b32 {v(cur[2*k+1])}, {v(G+2*k)}, s63, {v(CODE+2*k+1)}")
    free = list(range(K + 8, K + 24))

    def ce(i, j, dst=None):
        if dst is None:
            t = free.pop(0)
            A(f"v_max_u32 {v(t)}, {v(cur[i])}, {v(cur[j])}")
            A(f"v_min_u32 {v(cur[j])}, {v(cur[i])}, {v(cur[j])}")
            free.append(cur[i])
            cur[i] = t
        else:
            A(f"v_max_u32 {v(dst+i)}, {v(cur[i])}, {v(cur[j])}")
            A(f"v_min_u32 {v(dst+j)}, {v(cur[i])}, {v(cur[j])}")

    for (i, j) in SORT8:
        ce(i, j)
    pats = ["quad_perm:[1,0,3,2]", "quad_perm:[2,3,0,1]", "row_half_mirror", "row_mirror"]
    for rnd in range(2):
        for li, pat in enumerate(pats):
            new = [free.pop(0) for _ in range(8)]
            for i in range(8):
                A(f"v_max_u32_dpp {v(new[i])}, {v(cur[7-i])}, {v(cur[i])} {pat} row_mask:0xf bank_mask:0xf")
            free.extend(cur)
            cur = new
            if rnd == 1 and li == 3:
                return cur
            for i in range(4):
                ce(i, i + 4)
            for i in (0, 1, 4, 5):
                ce(i, i + 2)
            if rnd == 0 and li == 3:
                for i in (0, 2, 4, 6):
                    ce(i, i + 1, dst=blk)
                A("s_mov_b32 exec_lo, 0x00010001")
                A("s_mov_b32 exec_hi, 0x00010001")
                A(f"ds_write_b128 {v(vLW)}, {v(blk,4)}")
                A(f"ds_write_b128 {v(vLW)}, {v(blk+4,4)} offset:16")
                A("s_mov_b64 exec, -1")
                A("s_waitcnt lgkmcnt(0)")
                A("s_barrier")
                A(f"ds_read_b128 {v(K,4)}, {v(vLR)}")
                A(f"ds_read_b128 {v(K+4,4)}, {v(vLR)} offset:16")
                A("s_waitcnt lgkmcnt(0)")
                cur = list(range(K, K + 8))
                free = list(range(K + 8, K + 24))
            else:
                for i in (0, 2, 4, 6):
                    ce(i, i + 1)

def load_weight_frags(srdn, voff_of, soff_of, nsteps, dstE, dstO, raw, stride=8, vfull=None):
    batch = 5
    for k0 in range(0, nsteps, batch):
        ks = list(range(k0, min(nsteps, k0 + batch)))
        for k in ks:
            for q in range(8):
                if vfull is not None and k == vfull:
                    d = raw + 8 * (k - k0) + q
                    A(f"v_add_u32 {v(d)}, {soff_of(k, q)}, {v(voff_of(k))}")
                    A(f"buffer_load_dword {v(d)}, {v(d)}, {srdn}, 0 offen")
                    continue
                A(f"s_mov_b32 s60, {soff_of(k, q)}")
                A(f"buffer_load_dword {v(raw + 8*(k-k0) + q)}, {v(voff_of(k))}, {srdn}, s60 offen")
        A("s_waitcnt vmcnt(0)")
        for k in ks:
            r = raw + 8 * (k - k0)
            for u in range(4):
                A(f"v_perm_b32 {v(dstE + stride*k + u)}, {v(r+2*u+1)}, {v(r+2*u)}, s58")
                A(f"v_perm_b32 {v(dstO + stride*k + u)}, {v(r+2*u+1)}, {v(r+2*u)}, s59")

def roleFa():
    A.label("L_roleFa")
    GW, UW, RAW, AFR, ACC, K, CODE = 16, 56, 96, 136, 156, 176, 200
    vG, vLW, vLR, vW1, vW2, vLP1, vLP2, vPW, vPR, vH = 2, 3, 4, 5, 6, 7, 8, 9, 10, 11
    sKAP, sRG, sTAG, sT, sH, sL = 22, 23, 24, 25, 26, 27
    T = 208
    srd(8, 46, 2211840)
    srd(12, 48, 2211840)
    A(f"s_sub_u32 s{sKAP}, s2, {FA0}")
    A("s_mov_b32 s58, 0x05040100")
    A("s_mov_b32 s59, 0x07060302")
    n, g = T, T + 1
    A(f"v_and_b32 {v(n)}, 15, v1")
    A(f"v_lshrrev_b32 {v(g)}, 4, v1")
    A(f"s_lshr_b32 s60, s{WV}, 1")
    A(f"s_mul_i32 s60, s60, 320")
    A(f"s_and_b32 s61, s{WV}, 1")
    A(f"s_lshl_b32 s61, s61, 4")
    A(f"s_add_u32 s60, s60, s61")
    A(f"s_lshl_b32 s61, s{sKAP}, 6")
    A(f"v_lshl_add_u32 {v(T+2)}, {v(n)}, 2, s61")
    A(f"v_add_u32 {v(vW1)}, s60, {v(g)}")
    A(f"v_mul_u32_u24 {v(vW1)}, 3456, {v(vW1)}")
    A(f"v_add_u32 {v(vW1)}, {v(vW1)}, {v(T+2)}")
    A(f"v_lshl_add_u32 {v(vW2)}, {v(g)}, 2, s60")
    A(f"v_mul_u32_u24 {v(vW2)}, 3456, {v(vW2)}")
    A(f"v_add_u32 {v(vW2)}, {v(vW2)}, {v(T+2)}")
    voff = lambda k: vW1 if k < 4 else vW2
    soff = lambda k, q: ((32 * q + 4 * k) if k < 4 else (256 + 32 * (q & 1) + (q >> 1))) * 3456
    load_weight_frags(SRD1, voff, soff, 5, GW, GW + 4, RAW)
    load_weight_frags(SRD2, voff, soff, 5, UW, UW + 4, RAW)
    topk_setup(CODE, vG, vLW, vLR, 8192)
    A(f"s_lshl_b32 s60, s{WV}, 4")
    A(f"v_add_lshl_u32 {v(vLP1)}, {v(g)}, s60, 4")
    A(f"s_lshl_b32 s60, s{WV}, 6")
    A(f"s_add_u32 s60, s60, 1024")
    A(f"v_lshl_add_u32 {v(vLP2)}, {v(g)}, 4, s60")
    A(f"s_lshl_b32 s60, s{WV}, 11")
    A(f"v_lshlrev_b32 {v(vPW)}, 9, {v(g)}")
    A(f"v_lshl_add_u32 {v(vPW)}, {v(n)}, 3, {v(vPW)}")
    A(f"v_add_u32 {v(vPW)}, s60, {v(vPW)}")
    A(f"v_lshlrev_b32 {v(vPR)}, 2, v0")
    A(f"v_and_b32 {v(vH)}, 1, v0")
    A(f"v_mul_u32_u24 {v(vH)}, {HREP}, {v(vH)}")
    A(f"v_lshrrev_b32 {v(T+2)}, 1, v0")
    A(f"v_lshl_add_u32 {v(vH)}, {v(T+2)}, 2, {v(vH)}")
    A(f"s_lshl_b32 s{sH}, s{sKAP}, 9")
    A(f"s_add_u32 s{sH}, s{sH}, {H_OFF}")
    A(f"s_and_b32 s{sRG}, s2, {NRR - 1}")
    A(f"s_lshl_b32 s{sRG}, s{sRG}, 13")
    A(f"s_add_u32 s{sRG}, s{sRG}, {RG_OFF}")
    A(f"s_mov_b32 s{sT}, {T_OFF}")
    A(f"s_mov_b32 s28, {T_REC}")
    for (r, val) in ((30, 0xAAAAAAAA), (32, 0xCCCCCCCC), (34, 0xF0F0F0F0)):
        A(f"s_mov_b32 s{r}, 0x{val:x}")
        A(f"s_mov_b32 s{r+1}, 0x{val:x}")
    get_nonce()
    A(f"s_add_u32 s{sTAG}, s{NONCE}, 5")
    A(f"s_mov_b32 s{sL}, 0")
    A.label("L_FaLoop")
    c = topk(K, CODE, vG, vLW, vLR, sRG, sTAG, T)
    stamp(4)
    for i in range(4):
        A(f"v_cndmask_b32 {v(T+i)}, {v(c[2*i])}, {v(c[2*i+1])}, s[30:31]")
    A(f"v_cndmask_b32 {v(T)}, {v(T)}, {v(T+1)}, s[32:33]")
    A(f"v_cndmask_b32 {v(T+2)}, {v(T+2)}, {v(T+3)}, s[32:33]")
    A(f"v_cndmask_b32 {v(T)}, {v(T)}, {v(T+2)}, s[34:35]")
    A(f"v_and_b32 {v(T)}, 0x7ff, {v(T)}")
    A(f"v_sub_u32 {v(T)}, 2047, {v(T)}")
    A(f"v_mad_u32_u24 {v(T+1)}, {v(T)}, s28, {v(vLP1)}")
    A(f"v_mad_u32_u24 {v(T+2)}, {v(T)}, s28, {v(vLP2)}")
    for ks in range(4):
        A(f"buffer_load_dwordx4 {v(AFR+4*ks,4)}, {v(T+1)}, {WS}, s{sT} offen offset:{64*ks} sc1")
    A(f"buffer_load_dwordx4 {v(AFR+16,4)}, {v(T+2)}, {WS}, s{sT} offen sc1")
    for ks in range(5):
        A(f"s_waitcnt vmcnt({4-ks})")
        for a_, wb in enumerate((GW, GW + 4, UW, UW + 4)):
            cc = "0" if ks == 0 else v(ACC + 4 * a_, 4)
            A(f"v_mfma_f32_16x16x32_bf16 {v(ACC+4*a_,4)}, {v(AFR+4*ks,4)}, {v(wb+8*ks,4)}, {cc}")
    stamp(5)
    set_exec(0xffffffff)
    for mat in range(2):
        for r in range(4):
            o = mat * 256 + r * 32
            if o + 1 <= 255:
                A(f"ds_write2_b32 {v(vPW)}, {v(ACC+8*mat+r)}, {v(ACC+8*mat+4+r)} offset0:{o} offset1:{o+1}")
            else:
                A(f"ds_write_b32 {v(vPW)}, {v(ACC+8*mat+r)} offset:{4*o}")
                A(f"ds_write_b32 {v(vPW)}, {v(ACC+8*mat+4+r)} offset:{4*o+4}")
    A("s_mov_b64 exec, -1")
    A("s_waitcnt lgkmcnt(0)")
    A("s_barrier")
    for w in range(4):
        A(f"ds_read2st64_b32 {v(T+2*w,2)}, {v(vPR)} offset0:{8*w} offset1:{8*w+4}")
    A("s_waitcnt lgkmcnt(2)")
    A(f"v_pk_add_f32 {v(T,2)}, {v(T,2)}, {v(T+2,2)}")
    A("s_waitcnt lgkmcnt(0)")
    A(f"v_pk_add_f32 {v(T+4,2)}, {v(T+4,2)}, {v(T+6,2)}")
    A(f"v_pk_add_f32 {v(T,2)}, {v(T,2)}, {v(T+4,2)}")
    rnd_pair(T, T + 1, T + 2)
    A(f"v_mul_f32 {v(T+2)}, {f32(-1.4426950408889634)}, {v(T)}")
    A(f"v_exp_f32 {v(T+2)}, {v(T+2)}")
    A(f"v_add_f32 {v(T+2)}, 1.0, {v(T+2)}")
    A(f"v_rcp_f32 {v(T+2)}, {v(T+2)}")
    A(f"v_mul_f32 {v(T)}, {v(T)}, {v(T+2)}")
    A(f"v_cvt_pk_bf16_f32 {v(T)}, {v(T)}, {v(T)}")
    A(f"v_and_b32 {v(T)}, 0xffff0000, {v(T)}")
    A(f"v_mul_f32 {v(T)}, {v(T)}, {v(T+1)}")
    A(f"v_mov_b32_dpp {v(T+1)}, {v(T)} quad_perm:[1,0,3,2] row_mask:0xf bank_mask:0xf")
    A(f"v_cndmask_b32 {v(T+2)}, {v(T)}, {v(T+1)}, s[30:31]")
    A(f"v_cndmask_b32 {v(T+3)}, {v(T+1)}, {v(T)}, s[30:31]")
    A(f"v_cvt_pk_bf16_f32 {v(T)}, {v(T+2)}, {v(T+3)}")
    A(f"v_min_u32 {v(T)}, -2, {v(T)}")
    A(f"buffer_store_dword {v(T)}, {v(vH)}, {WS}, s{sH} offen sc1")
    stamp(6)
    A(f"s_add_u32 s{sH}, s{sH}, {2 * HREP}")
    A(f"s_add_u32 s{sRG}, s{sRG}, {NRR * RG_REP}")
    A(f"s_add_u32 s{sT}, s{sT}, {T_SZ}")
    A(f"s_add_u32 s{sTAG}, s{sTAG}, 1")
    A(f"s_add_u32 s{sL}, s{sL}, 1")
    A(f"s_cmp_lt_u32 s{sL}, 2")
    A("s_cbranch_scc1 L_FaLoop")
    A("s_endpgm")

def roleFb():
    A.label("L_roleFb")
    DW, HF, ACC, K, CODE, T = 16, 128, 184, 192, 216, 224
    RAW = 128
    vG, vLW, vLR, vW1, vHF, vPW, vPR, vE, vX2, vO = 2, 3, 4, 5, 6, 7, 8, 9, 10, 11
    sB, sRG, sTAG, sT, sH, sL, sREP2, sES, sEC = 22, 23, 24, 25, 26, 27, 29, 30, 31
    srd(8, 50, 2211840)
    srd(12, 52, 2621440)
    A(f"s_sub_u32 s{sB}, s2, {FB0}")
    A("s_mov_b32 s58, 0x05040100")
    A("s_mov_b32 s59, 0x07060302")
    n, g = T, T + 1
    A(f"v_and_b32 {v(n)}, 15, v1")
    A(f"v_lshrrev_b32 {v(g)}, 4, v1")
    A(f"s_lshl_b32 s60, s{WV}, 5")
    A(f"v_lshl_add_u32 {v(vW1)}, {v(g)}, 3, s60")
    A(f"v_mul_u32_u24 {v(vW1)}, 1280, {v(vW1)}")
    A(f"s_lshl_b32 s61, s{sB}, 6")
    A(f"v_lshl_add_u32 {v(T+2)}, {v(n)}, 2, s61")
    A(f"v_add_u32 {v(vW1)}, {v(vW1)}, {v(T+2)}")
    load_weight_frags(SRD1, lambda k: vW1, lambda k, q: (128 * k + q) * 1280, 14, DW, DW + 4, RAW, vfull=13)
    topk_setup(CODE, vG, vLW, vLR, 8192)
    A(f"v_and_b32 {v(vHF)}, 7, v1")
    A(f"v_lshlrev_b32 {v(vHF)}, 6, {v(vHF)}")
    A(f"v_lshl_add_u32 {v(vHF)}, {v(g)}, 4, {v(vHF)}")
    A(f"s_lshl_b32 s60, s{WV}, 9")
    A(f"v_add_u32 {v(vHF)}, s60, {v(vHF)}")
    A(f"s_and_b32 s{sH}, s{sB}, 1")
    A(f"s_mul_i32 s{sH}, s{sH}, {HREP}")
    A(f"s_add_u32 s{sH}, s{sH}, {H_OFF}")
    A(f"s_lshl_b32 s60, s{WV}, 10")
    A(f"v_lshlrev_b32 {v(vPW)}, 9, {v(g)}")
    A(f"v_lshl_add_u32 {v(vPW)}, {v(n)}, 3, {v(vPW)}")
    A(f"v_add_u32 {v(vPW)}, s60, {v(vPW)}")
    A(f"v_lshlrev_b32 {v(vPR)}, 2, v0")
    A(f"s_cmp_ge_u32 s{sB}, 10")
    A(f"s_cselect_b32 s60, 1, 0")
    A(f"s_mul_i32 s61, s60, 10")
    A(f"s_sub_u32 s61, s{sB}, s61")
    A(f"s_lshl_b32 s62, s60, 9")
    A(f"s_lshl_b32 s63, s61, 1")
    A(f"s_add_u32 s62, s62, s63")
    A(f"s_lshl_b32 s64, s60, 7")
    A(f"s_add_u32 s64, s64, s63")
    A(f"s_add_u32 s64, s64, {1024 - 16}")
    A(f"s_cmp_lt_u32 s61, 8")
    A(f"s_cselect_b32 s{sEC}, s62, s64")
    A(f"s_cselect_b32 s{sES}, 16, 4")
    A(f"v_and_b32 {v(T+2)}, 31, v1")
    A(f"v_mul_u32_u24 {v(vE)}, s{sES}, {v(T+2)}")
    A(f"v_add_u32 {v(vE)}, s{sEC}, {v(vE)}")
    A(f"s_lshl_b32 s60, s{sB}, 2")
    A(f"s_add_u32 s60, s60, s{WV}")
    A(f"s_lshl_b32 s60, s60, 8")
    A(f"v_lshl_add_u32 {v(vX2)}, {v(T+2)}, 3, s60")
    A(f"v_lshrrev_b32 {v(T+3)}, 5, v1")
    A(f"v_lshl_add_u32 {v(vX2)}, {v(T+3)}, 2, {v(vX2)}")
    A(f"s_lshl_b32 s60, s{sB}, 6")
    A(f"v_lshl_add_u32 {v(vO)}, {v(T+2)}, 1, s60")
    A(f"s_and_b32 s{sRG}, s2, {NRR - 1}")
    A(f"s_lshl_b32 s{sRG}, s{sRG}, 13")
    A(f"s_add_u32 s{sRG}, s{sRG}, {RG_OFF}")
    A(f"s_and_b32 s{sREP2}, s2, {NREP - 1}")
    A(f"s_lshl_b32 s{sREP2}, s{sREP2}, 10")
    A(f"s_mov_b32 s{sT}, {T_OFF}")
    A(f"s_mov_b32 s28, {T_REC}")
    get_nonce()
    A(f"s_add_u32 s{sTAG}, s{NONCE}, 5")
    A(f"s_mov_b32 s{sL}, 0")
    A.label("L_FbLoop")
    c = topk(K, CODE, vG, vLW, vLR, sRG, sTAG, T)
    stamp(4)
    for j in range(8):
        A(f"v_readfirstlane_b32 s{80+j}, {v(c[j])}")
    A("s_mov_b32 s70, s80")
    A("s_mov_b32 s71, s81")
    for w in range(1, 4):
        A(f"s_cmp_eq_u32 s{WV}, {w}")
        A(f"s_cselect_b32 s70, s{80+2*w}, s70")
        A(f"s_cselect_b32 s71, s{81+2*w}, s71")
    KEY, ROW, XV, XNV, SG, ST = T, T + 1, T + 2, T + 3, T + 4, T + 8
    A(f"v_mov_b32 {v(KEY)}, s71")
    A(f"v_mov_b32 {v(ROW)}, s70")
    A(f"v_cmp_gt_u32 vcc, 32, v1")
    A(f"v_cndmask_b32 {v(KEY)}, {v(KEY)}, {v(ROW)}, vcc")
    A(f"v_and_b32 {v(ROW)}, 0x7ff, {v(KEY)}")
    A(f"v_sub_u32 {v(ROW)}, 2047, {v(ROW)}")
    A(f"v_mad_u32_u24 {v(T+5)}, {v(ROW)}, s28, {v(vE)}")
    A(f"v_mov_b32 {v(XV)}, 0")
    A(f"v_mov_b32 {v(XNV)}, 0")
    A(f"buffer_load_short_d16_hi {v(XNV)}, {v(T+5)}, {WS}, s{sT} offen sc1")
    A(f"buffer_load_short_d16_hi {v(XV)}, {v(T+5)}, {WS}, s{sT} offen offset:1280 sc1")
    A(f"v_ashrrev_i32 {v(SG)}, 31, {v(KEY)}")
    A(f"v_not_b32 {v(SG)}, {v(SG)}")
    A(f"v_or_b32 {v(SG)}, 0x80000000, {v(SG)}")
    A(f"v_xor_b32 {v(SG)}, {v(SG)}, {v(KEY)}")
    A(f"v_and_b32 {v(SG)}, 0xffff0000, {v(SG)}")
    A(f"v_mul_f32 {v(SG)}, {f32(-1.4426950408889634)}, {v(SG)}")
    A(f"v_exp_f32 {v(SG)}, {v(SG)}")
    A(f"v_add_f32 {v(SG)}, 1.0, {v(SG)}")
    A(f"v_rcp_f32 {v(SG)}, {v(SG)}")
    A(f"v_cvt_pk_bf16_f32 {v(SG)}, {v(SG)}, {v(SG)}")
    A(f"v_and_b32 {v(SG)}, 0xffff0000, {v(SG)}")
    L1, L1e = A.newlabel("Lfb"), A.newlabel("Lfb")
    A(f"s_cmp_lg_u32 s{sL}, 0")
    A(f"s_cbranch_scc1 {L1}")
    Ls = A.newlabel("Lfb")
    A(f"s_or_b32 s60, s{sB}, s{WV}")
    A(f"s_cmp_lg_u32 s60, 0")
    A(f"s_cbranch_scc1 {Ls}")
    A(f"v_mov_b32 {v(T+6)}, s80")
    for j in range(1, 8):
        A(f"v_writelane_b32 {v(T+6)}, s{80+j}, {j}")
    A(f"v_and_b32 {v(T+6)}, 0x7ff, {v(T+6)}")
    A(f"v_sub_u32 {v(T+6)}, 2047, {v(T+6)}")
    A(f"v_lshlrev_b32 {v(T+7)}, 2, v1")
    A("s_mov_b64 exec, 0xff")
    for r in range(NRX):
        A(f"s_mov_b32 s60, {X2_OFF + r * X2REP + SEL_OFF}")
        A(f"buffer_store_dword {v(T+6)}, {v(T+7)}, {WS}, s60 offen sc1")
    A("s_mov_b64 exec, -1")
    A.label(Ls)
    loop, done = A.newlabel("Lst2"), A.newlabel("Lst2d")
    A(f"v_mul_u32_u24 {v(T+6)}, s28, {v(ROW)}")
    A(f"s_add_u32 s61, s{NONCE}, 7")
    A(f"s_mov_b32 s62, {SPIN}")
    A.label(loop)
    A(f"buffer_load_dwordx4 {v(ST,4)}, {v(T+6)}, {WS}, s{sT} offen offset:2560 sc1")
    A("s_waitcnt vmcnt(0)")
    A(f"v_cmp_ne_u32 vcc, s61, {v(ST+2)}")
    A(f"s_cbranch_vccz {done}")
    spin_tail(loop, 62, done, 2)
    A.label(done)
    A(f"s_branch {L1e}")
    A.label(L1)
    poll_flags(4, 64, sREP2, T + 12)
    A.label(L1e)
    loop, done = A.newlabel("Lh"), A.newlabel("Lhd")
    A(f"s_cmp_lt_u32 s{WV}, 2")
    A(f"s_cselect_b32 s63, 2048, 0")
    A(f"s_add_u32 s63, s63, {12 * 2048}")
    A(f"s_add_u32 s63, s63, s{sH}")
    A(f"s_mov_b32 s62, {SPIN}")
    A.label(loop)
    for k in range(14):
        if k == 13:
            A(f"buffer_load_dwordx4 {v(HF+4*k,4)}, {v(vHF)}, {WS}, s63 offen sc1")
        else:
            if k % 2 == 0:
                A(f"s_add_u32 s60, s{sH}, {2048 * k}")
            A(f"buffer_load_dwordx4 {v(HF+4*k,4)}, {v(vHF)}, {WS}, s60 offen offset:{2048*(k%2)} sc1")
    CK = T + 6
    for k in range(14):
        A(f"s_waitcnt vmcnt({13-k})")
        for par in range(2):
            cc = "0" if k == 0 else v(ACC + 4 * par, 4)
            A(f"v_mfma_f32_16x16x32_bf16 {v(ACC+4*par,4)}, {v(HF+4*k,4)}, {v(DW+8*k+4*par,4)}, {cc}")
        if k == 0:
            A(f"v_max3_u32 {v(CK)}, {v(HF)}, {v(HF+1)}, {v(HF+2)}")
            A(f"v_max_u32 {v(CK)}, {v(CK)}, {v(HF+3)}")
        else:
            A(f"v_max3_u32 {v(CK)}, {v(CK)}, {v(HF+4*k)}, {v(HF+4*k+1)}")
            A(f"v_max3_u32 {v(CK)}, {v(CK)}, {v(HF+4*k+2)}, {v(HF+4*k+3)}")
    A(f"v_cmp_eq_u32 vcc, -1, {v(CK)}")
    A(f"s_cbranch_vccz {done}")
    spin_tail(loop, 62, done, 2)
    A.label(done)
    stamp(5)
    set_exec(0xffffffff)
    for r in range(4):
        A(f"ds_write2_b32 {v(vPW)}, {v(ACC+r)}, {v(ACC+4+r)} offset0:{32*r} offset1:{32*r+1}")
    A("s_mov_b64 exec, -1")
    A("s_waitcnt lgkmcnt(0)")
    A("s_barrier")
    Yv = T + 12
    A(f"ds_read2st64_b32 {v(Yv,2)}, {v(vPR)} offset0:0 offset1:4")
    A(f"ds_read2st64_b32 {v(Yv+2,2)}, {v(vPR)} offset0:8 offset1:12")
    A("s_waitcnt lgkmcnt(0)")
    A(f"v_pk_add_f32 {v(Yv,2)}, {v(Yv,2)}, {v(Yv+2,2)}")
    A(f"v_add_f32 {v(Yv)}, {v(Yv)}, {v(Yv+1)}")
    def rb(r):
        A(f"v_cvt_pk_bf16_f32 {v(r)}, {v(r)}, {v(r)}")
        A(f"v_and_b32 {v(r)}, 0xffff0000, {v(r)}")
    rb(Yv)
    A(f"v_mul_f32 {v(Yv)}, {v(Yv)}, {v(SG)}")
    rb(Yv)
    A(f"v_add_f32 {v(Yv)}, {v(Yv)}, {v(XNV)}")
    rb(Yv)
    A(f"v_add_f32 {v(Yv)}, {v(Yv)}, {v(XV)}")
    L2 = A.newlabel("Lfb")
    A(f"s_cmp_lg_u32 s{sL}, 0")
    A(f"s_cbranch_scc1 {L2}")
    A(f"v_add_f32 {v(Yv+1)}, {v(XV)}, {v(XNV)}")
    rb(Yv + 1)
    A(f"v_sub_f32 {v(Yv+1)}, {v(Yv+1)}, {v(ST)}")
    rb(Yv + 1)
    A(f"v_mul_f32 {v(Yv+1)}, {v(Yv+1)}, {v(ST+1)}")
    A(f"v_permlane32_swap_b32 {v(Yv)}, {v(Yv+1)}")
    A(f"v_cvt_pk_bf16_f32 {v(Yv)}, {v(Yv)}, {v(Yv+1)}")
    A(f"v_min_u32 {v(Yv)}, -2, {v(Yv)}")
    for r in range(NRX):
        A(f"s_mov_b32 s60, {X2_OFF + r * X2REP}")
        A(f"buffer_store_dword {v(Yv)}, {v(vX2)}, {WS}, s60 offen sc1")
    stamp(6)
    A(f"s_add_u32 s{sH}, s{sH}, {2 * HREP}")
    A(f"s_add_u32 s{sRG}, s{sRG}, {NRR * RG_REP}")
    A(f"s_add_u32 s{sT}, s{sT}, {T_SZ}")
    A(f"s_add_u32 s{sTAG}, s{sTAG}, 1")
    A(f"s_mov_b32 s{sL}, 1")
    A("s_branch L_FbLoop")
    A.label(L2)
    A(f"v_cvt_pk_bf16_f32 {v(Yv)}, {v(Yv)}, {v(Yv)}")
    A(f"s_movk_i32 s60, 1280")
    A(f"v_mad_u32_u24 {v(Yv+1)}, {v(ROW)}, s60, {v(vO)}")
    A(f"buffer_store_short {v(Yv)}, {v(Yv+1)}, {SRD2}, 0 offen sc1")
    stamp(7)
    A(f"s_or_b32 s60, s{sB}, s{WV}")
    A(f"s_cmp_lg_u32 s60, 0")
    A("s_cbranch_scc1 L_end")
    A(f"v_mov_b32 {v(T)}, s{NONCE}")
    A(f"v_mov_b32 {v(T+1)}, 0")
    A("s_mov_b64 exec, 1")
    A(f"buffer_store_dword {v(T)}, {v(T+1)}, {WS}, 0 offen sc1")
    A.label("L_end")
    A("s_endpgm")

hdr = open("cdna_kernels/%s.s.ref" % NAME).read().split("\n")
head = [l for l in hdr if l.startswith(";") and "@launch" not in l and "Override" not in l and "grid=ceil" not in l]
out = "\n".join(head) + "\n"
out += f"; @launch grid=({NWG},1,1) block=(256,1,1) lds={LDS_BYTES + 8192}\n"
out += '.amdgcn_target "amdgcn-amd-amdhsa--gfx950"\n.text\n'
out += f".globl {NAME}_kernel\n.p2align 8\n.type {NAME}_kernel,@function\n{NAME}_kernel:\n"
prologue(); roleR(); roleC(); roleFa(); roleFb()
out += A.text()
out += f""".section .rodata,"a"
.p2align 6
.amdhsa_kernel {NAME}_kernel
  .amdhsa_next_free_vgpr 256
  .amdhsa_next_free_sgpr 102
  .amdhsa_accum_offset 256
  .amdhsa_group_segment_fixed_size 0
  .amdhsa_kernarg_size 104
  .amdhsa_user_sgpr_count 2
  .amdhsa_user_sgpr_kernarg_segment_ptr 1
  .amdhsa_system_sgpr_workgroup_id_x 1
  .amdhsa_float_denorm_mode_32 3
.end_amdhsa_kernel
"""
dst = [a for a in sys.argv[1:] if not a.startswith("--")]
open(dst[0] if dst else "cdna_kernels/%s.s" % NAME, "w").write(out)
print("instructions:", A.ninstr, file=sys.stderr)
```

```python
import sys, struct
from asmb import Asm

NAME = "interleave_layers__spectral_fnet__moe_arch_mod__prompt"
STAMPS = "--stamps" in sys.argv
NR, NC, NFA, NFB = 256, 161, 54, 20
C0, FA0, FB0, NWG = 256, 417, 471, 491
def opt(name, default):
    for a in sys.argv:
        if a.startswith("--%s=" % name):
            return int(a.split("=")[1])
    return default
FL_OFF = 0x1000; NREP = opt("nrep", 32)
RESET_OFF = 0x70000
H_OFF = 0x70000; HREP = 0x7000
X2_OFF = 0x90000; X2REP = 0x5100; NRX = opt("nrx", 1); SEL_OFF = 0x5000
RG_OFF = 0xC0000; NRR = opt("nrr", 2); RG_REP = 4096
CNT_OFF = 0xF8000
WROW = 10368
W_OFF = 0x100000; W_SZ = 0x290000
Y_OFF = 0x640000; Y_SZ = 0x160000
YM_OFF = 322 * 4096
T_OFF = 0x900000; T_REC = 2688; T_SZ = 2048 * T_REC
ST_OFF = 0x1400000
WS_BYTES = 0x1500000
NONCE_C = 0x9E3779B9
SPIN = 40000
LDS_BYTES = 49152

def f32(x):
    return "0x%08x" % struct.unpack("<I", struct.pack("<f", x))[0]

def v(i, n=1):
    return "v%d" % i if n == 1 else "v[%d:%d]" % (i, i + n - 1)

def s(i, n=1):
    return "s%d" % i if n == 1 else "s[%d:%d]" % (i, i + n - 1)

A = Asm()
WS = "s[4:7]"; SRD1 = "s[8:11]"; SRD2 = "s[12:15]"; SRD3 = "s[16:19]"
NONCE = 20; WV = 21

def srd(base, ptr, nbytes):
    A(f"s_mov_b32 s{base}, s{ptr}")
    A(f"s_and_b32 s{base+1}, s{ptr+1}, 0xffff")
    A(f"s_mov_b32 s{base+2}, {nbytes}")
    A(f"s_mov_b32 s{base+3}, 0x00020000")

def set_exec(m):
    A(f"s_mov_b32 exec_lo, 0x{m & 0xffffffff:x}")
    A(f"s_mov_b32 exec_hi, 0x{m >> 32:x}")

def stamp(idx, lay=None):
    if not STAMPS:
        return
    L = A.newlabel("Lst")
    A(f"s_cmp_lg_u32 s{WV}, 0")
    A(f"s_cbranch_scc1 {L}")
    A("s_memrealtime s[98:99]")
    A("s_memtime s[100:101]")
    A("s_waitcnt lgkmcnt(0)")
    A("v_mov_b32 v254, s98")
    A("v_mov_b32 v255, s100")
    A("v_mov_b32 v253, 0")
    A("s_lshl_b32 s97, s2, 9")
    A(f"s_add_u32 s97, s97, {ST_OFF + idx * 8}")
    if lay is not None:
        A(f"s_lshl_b32 s96, {lay}, 6")
        A("s_add_u32 s97, s97, s96")
    A("s_mov_b64 exec, 1")
    A(f"buffer_store_dwordx2 v[254:255], v253, {WS}, s97 offen")
    A("s_mov_b64 exec, -1")
    A.label(L)

def wstamp(idx, hwid=False):
    if not STAMPS:
        return
    A("s_memrealtime s[98:99]")
    if hwid:
        A("s_getreg_b32 s100, hwreg(HW_REG_HW_ID)")
    else:
        A("s_getreg_b32 s100, hwreg(HW_REG_XCC_ID)")
    A("s_waitcnt lgkmcnt(0)")
    A("v_mov_b32 v254, s98")
    A("v_mov_b32 v255, s100")
    A("v_mov_b32 v253, 0")
    A("s_lshl_b32 s97, s2, 9")
    A(f"s_add_u32 s97, s97, {ST_OFF + idx * 8}")
    A(f"s_lshl_b32 s96, s{WV}, 3")
    A("s_add_u32 s97, s97, s96")
    A("s_mov_b64 exec, 1")
    A(f"buffer_store_dwordx2 v[254:255], v253, {WS}, s97 offen")
    A("s_mov_b64 exec, -1")

def spin_tail(loop, cnt, done, sleep=1):
    A(f"s_sleep {sleep}")
    A(f"s_sub_u32 s{cnt}, s{cnt}, 1")
    A(f"s_cmp_lg_u32 s{cnt}, 0")
    A(f"s_cbranch_scc1 {loop}")

def poll_flags(k, srep, t, sleep=1):
    loop, done = A.newlabel("Lpoll"), A.newlabel("Lpolld")
    A(f"s_cmp_lg_u32 s{WV}, 0")
    A(f"s_cbranch_scc1 {done}")
    if isinstance(k, int):
        A(f"s_add_u32 s60, s{srep}, {FL_OFF + k * NREP * 128}")
    else:
        A(f"s_mul_i32 s60, {k}, {NREP * 128}")
        A(f"s_add_u32 s60, s60, s{srep}")
        A(f"s_add_u32 s60, s60, {FL_OFF}")
    A(f"s_add_u32 s61, s{NONCE}, {k}")
    A(f"v_and_b32 {v(t+1)}, 15, v1")
    A(f"v_lshlrev_b32 {v(t+1)}, 2, {v(t+1)}")
    A(f"s_mov_b32 s62, {SPIN}")
    A.label(loop)
    A(f"buffer_load_dword {v(t)}, {v(t+1)}, {WS}, s60 offen sc1")
    A("s_waitcnt vmcnt(0)")
    A(f"v_cmp_ne_u32 vcc, s61, {v(t)}")
    A(f"s_cbranch_vccz {done}")
    spin_tail(loop, 62, done, sleep)
    A.label(done)
    A("s_barrier")

def cnt_init(sshard_src, ks, t):
    for k in ks:
        A(f"s_add_u32 s60, s{sshard_src}, {16 * k}")
        A(f"s_lshl_b32 s60, s60, 7")
        A(f"s_add_u32 s60, s60, {CNT_OFF}")
        A(f"s_add_u32 s61, s{NONCE}, {k}")
        A(f"v_mov_b32 {v(t)}, 0")
        A(f"v_mov_b32 {v(t+1)}, s61")
        A(f"v_mov_b32 {v(t+2)}, 0")
        A("s_mov_b64 exec, 1")
        A(f"buffer_store_dwordx2 {v(t,2)}, {v(t+2)}, {WS}, s60 offen sc1")
        A("s_mov_b64 exec, -1")

def signal(k, sshard, slast, t, vm=0):
    L, again = A.newlabel("Lsig"), A.newlabel("Lsiga")
    A(f"s_waitcnt vmcnt({vm})")
    A("s_barrier")
    A(f"s_cmp_lg_u32 s{WV}, 0")
    A(f"s_cbranch_scc1 {L}")
    if isinstance(k, int):
        A(f"s_add_u32 s63, s{sshard}, {16 * k}")
    else:
        A(f"s_lshl_b32 s63, {k}, 4")
        A(f"s_add_u32 s63, s63, s{sshard}")
    A(f"s_lshl_b32 s63, s63, 7")
    A(f"s_add_u32 s63, s63, {CNT_OFF}")
    A(f"v_mov_b32 {v(t+2)}, 0")
    A(f"s_mov_b32 s64, {SPIN}")
    A(f"s_add_u32 s61, s{NONCE}, {k}")
    A.label(again)
    A(f"v_mov_b32 {v(t)}, 1")
    A(f"v_mov_b32 {v(t+1)}, 0")
    A("s_mov_b64 exec, 1")
    A(f"buffer_atomic_add_x2 {v(t,2)}, {v(t+2)}, {WS}, s63 offen sc0")
    A("s_mov_b64 exec, -1")
    if isinstance(k, int):
        A(f"s_lshl_b32 s60, s{sshard}, 2")
        A(f"s_add_u32 s60, s60, {FL_OFF + k * NREP * 128}")
    else:
        A(f"s_mul_i32 s60, {k}, {NREP * 128}")
        A(f"s_lshl_b32 s62, s{sshard}, 2")
        A(f"s_add_u32 s60, s60, s62")
        A(f"s_add_u32 s60, s60, {FL_OFF}")
    A(f"v_lshlrev_b32 {v(t+3)}, 7, v1")
    A(f"v_mov_b32 {v(t+4)}, s61")
    A(f"s_sub_u32 s64, s64, 1")
    A(f"s_cmp_eq_u32 s64, 0")
    A(f"s_cbranch_scc1 {L}")
    A("s_waitcnt vmcnt(0)")
    A(f"v_readfirstlane_b32 s65, {v(t+1)}")
    A(f"v_readfirstlane_b32 s62, {v(t)}")
    A(f"s_cmp_lg_u32 s65, s61")
    A(f"s_cbranch_scc1 {again}")
    A(f"s_cmp_lg_u32 s62, {slast}")
    A(f"s_cbranch_scc1 {L}")
    set_exec((1 << NREP) - 1)
    A(f"buffer_store_dword {v(t+4)}, {v(t+3)}, {WS}, s60 offen sc1")
    A("s_mov_b64 exec, -1")
    A.label(L)

def rnd_pair(a, b, t):
    A(f"v_cvt_pk_bf16_f32 {v(t)}, {v(a)}, {v(b)}")
    A(f"v_lshlrev_b32 {v(a)}, 16, {v(t)}")
    A(f"v_and_b32 {v(b)}, 0xffff0000, {v(t)}")

def sincos(arg, c, sn):
    A(f"v_cos_f32 {v(c)}, {v(arg)}")
    A(f"v_sin_f32 {v(sn)}, {v(arg)}")

def prologue():
    A(f"s_cmp_ge_u32 s2, {NWG}")
    A("s_cbranch_scc1 L_end")
    A("s_load_dwordx2 s[40:41], s[0:1], 96")
    A("s_load_dwordx2 s[42:43], s[0:1], 0")
    A("s_load_dwordx4 s[44:47], s[0:1], 48")
    A("s_load_dwordx4 s[48:51], s[0:1], 64")
    A("s_load_dwordx2 s[52:53], s[0:1], 80")
    A("v_lshrrev_b32 v2, 6, v0")
    A("v_and_b32 v1, 63, v0")
    A(f"v_readfirstlane_b32 s{WV}, v2")
    A("s_waitcnt lgkmcnt(0)")
    A(f"s_load_dword s{NONCE}, s[40:41], 0")
    srd(4, 40, WS_BYTES)
    stamp(31)
    A(f"s_cmp_lt_u32 s2, {C0}")
    A("s_cbranch_scc1 L_roleR")
    A(f"s_cmp_lt_u32 s2, {FA0}")
    A("s_cbranch_scc1 L_roleC")
    A(f"s_cmp_lt_u32 s2, {FB0}")
    A("s_cbranch_scc1 L_roleFa")
    A("s_branch L_roleFb")

PRETOUCH = "--pretouch" in sys.argv
def pretouch(t, out_srd=None):
    if not PRETOUCH:
        return
    A(f"v_lshlrev_b32 {v(t)}, 16, v0")
    A(f"buffer_load_dword {v(t+1)}, {v(t)}, {WS}, 0 offen offset:64")
    A(f"s_mov_b32 s60, {256 << 16}")
    A(f"buffer_load_dword {v(t+1)}, {v(t)}, {WS}, s60 offen offset:64")
    if out_srd:
        A(f"buffer_load_dword {v(t+1)}, {v(t)}, {out_srd}, 0 offen offset:64")

def get_nonce():
    A("s_waitcnt lgkmcnt(0)")
    A(f"s_add_u32 s{NONCE}, s{NONCE}, 0x{NONCE_C:x}")

B1R, B1I, TWC, TWS, B2R, B2I, WR, INV = 16, 28, 40, 56, 72, 88, 104, 114
X, XN, MM, RS = 116, 136, 156, 158
ACR, ACI, AF1, AF2, AC2R, AC2I = 160, 176, 192, 204, 220, 236
vX, vY0, vY1, vY2, vY1x, vY2x, vLYW, vLYR, vLWW, vLWR0, vWG, vTA = 2, 3, 4, 5, 6, 7, 8, 9, 10, 11, 14, 15
vTB = 252
vWG1 = 115
sRHO, sA, sS2, sRA, sME, sREP, sXO, sWB, sTB, sP, sS, sQ = 22, 23, 24, 25, 26, 27, 28, 29, 30, 32, 34, 36
sSEL = 80
s32f = 38
LDS_Y, LDS_W, LDS_NEW, LDS_KX, LDS_CONST = 0, 10240, 21504, 31744, 24576

def reduce4(s0, q0, dS, dQ):
    A(f"v_permlane32_swap_b32 {v(s0)}, {v(s0+1)}")
    A(f"v_permlane32_swap_b32 {v(q0)}, {v(q0+1)}")
    A(f"v_add_f32 {v(s0)}, {v(s0)}, {v(s0+1)}")
    A(f"v_add_f32 {v(q0)}, {v(q0)}, {v(q0+1)}")
    A(f"v_permlane16_swap_b32 {v(s0)}, {v(q0)}")
    A(f"v_add_f32 {v(s0)}, {v(s0)}, {v(q0)}")
    for r in (8, 4, 2, 1):
        A(f"v_add_f32_dpp {v(s0)}, {v(s0)}, {v(s0)} row_ror:{r} row_mask:0xf bank_mask:0xf")
    A(f"v_readlane_b32 s{dS}, {v(s0)}, 0")
    A(f"v_readlane_b32 s{dS+1}, {v(s0)}, 32")
    A(f"v_readlane_b32 s{dQ}, {v(s0)}, 16")
    A(f"v_readlane_b32 s{dQ+1}, {v(s0)}, 48")

def ln_stats(xb, t):
    S_, Q_, D0, D1 = t, t + 2, t + 4, t + 6
    A(f"v_readfirstlane_b32 s{sP}, {v(xb)}")
    A(f"v_readfirstlane_b32 s{sP+1}, {v(xb+1)}")
    for i in range(10):
        D = S_ if i == 0 else (D0 if i % 2 else D1)
        A(f"v_pk_add_f32 {v(D,2)}, {v(xb+2*i,2)}, {s(sP,2)} neg_lo:[0,1] neg_hi:[0,1]")
        if i == 0:
            A(f"v_pk_mul_f32 {v(Q_,2)}, {v(D,2)}, {v(D,2)}")
        else:
            A(f"v_pk_add_f32 {v(S_,2)}, {v(S_,2)}, {v(D,2)}")
            A(f"v_pk_fma_f32 {v(Q_,2)}, {v(D,2)}, {v(D,2)}, {v(Q_,2)}")
    reduce4(S_, Q_, sS, sQ)
    A(f"v_pk_mul_f32 {v(MM,2)}, {s(sS,2)}, {v(INV,2)} op_sel_hi:[1,0]")
    A(f"v_pk_mul_f32 {v(RS,2)}, {s(sQ,2)}, {v(INV,2)} op_sel_hi:[1,0]")
    A(f"v_pk_fma_f32 {v(RS,2)}, {v(MM,2)}, {v(MM,2)}, {v(RS,2)} neg_lo:[1,0,0] neg_hi:[1,0,0]")
    A(f"v_pk_add_f32 {v(MM,2)}, {v(MM,2)}, {s(sP,2)}")
    A(f"v_max_f32 {v(RS)}, 0, {v(RS)}")
    A(f"v_max_f32 {v(RS+1)}, 0, {v(RS+1)}")
    rnd_pair(RS, RS + 1, D0)
    rnd_pair(MM, MM + 1, D1)
    A(f"v_add_f32 {v(RS)}, {f32(1e-5)}, {v(RS)}")
    A(f"v_add_f32 {v(RS+1)}, {f32(1e-5)}, {v(RS+1)}")
    rnd_pair(RS, RS + 1, D0)
    A(f"v_sqrt_f32 {v(RS)}, {v(RS)}")
    A(f"v_sqrt_f32 {v(RS+1)}, {v(RS+1)}")
    rnd_pair(RS, RS + 1, D0)
    A(f"v_rcp_f32 {v(RS)}, {v(RS)}")
    A(f"v_rcp_f32 {v(RS+1)}, {v(RS+1)}")

def ln_center_scale(xb, zb, t):
    for i in range(10):
        A(f"v_pk_add_f32 {v(zb+2*i,2)}, {v(xb+2*i,2)}, {v(MM,2)} neg_lo:[0,1] neg_hi:[0,1]")
    for i in range(10):
        rnd_pair(zb + 2 * i, zb + 2 * i + 1, t + (i % 4))
    for i in range(10):
        A(f"v_pk_mul_f32 {v(zb+2*i,2)}, {v(zb+2*i,2)}, {v(RS,2)}")

def pack_rows(zb, pa, pb, unpack=True):
    for u in range(5):
        A(f"v_cvt_pk_bf16_f32 {v(pa+u)}, {v(zb+4*u)}, {v(zb+4*u+2)}")
        A(f"v_cvt_pk_bf16_f32 {v(pb+u)}, {v(zb+4*u+1)}, {v(zb+4*u+3)}")
    if unpack:
        for u in range(5):
            A(f"v_lshlrev_b32 {v(zb+4*u)}, 16, {v(pa+u)}")
            A(f"v_and_b32 {v(zb+4*u+2)}, 0xffff0000, {v(pa+u)}")
            A(f"v_lshlrev_b32 {v(zb+4*u+1)}, 16, {v(pb+u)}")
            A(f"v_and_b32 {v(zb+4*u+3)}, 0xffff0000, {v(pb+u)}")

def store_rows(pa, pb, off):
    A(f"buffer_store_dwordx4 {v(pa,4)}, {v(vTA)}, {WS}, s{sTB} offen offset:{off} sc1")
    A(f"buffer_store_dword {v(pa+4)}, {v(vTB)}, {WS}, s{sTB} offen offset:{off} sc1")
    A(f"buffer_store_dwordx4 {v(pb,4)}, {v(vTA)}, {WS}, s{sTB+1} offen offset:{off} sc1")
    A(f"buffer_store_dword {v(pb+4)}, {v(vTB)}, {WS}, s{sTB+1} offen offset:{off} sc1")

def to_f16(zb, t, sub=None):
    for i in range(10):
        rnd_pair(zb + 2 * i, zb + 2 * i + 1, t + (i % 4))
        if sub is not None:
            tt = t + 4 + 2 * (i % 2)
            A(f"v_lshlrev_b32 {v(tt)}, 16, {v(sub(i))}")
            A(f"v_and_b32 {v(tt+1)}, 0xffff0000, {v(sub(i))}")
            A(f"v_pk_add_f32 {v(zb+2*i,2)}, {v(zb+2*i,2)}, {v(tt,2)} neg_lo:[0,1] neg_hi:[0,1]")
        A(f"v_cvt_pk_f16_f32 {v(AF1+i)}, {v(zb+2*i)}, {v(zb+2*i+1)}")

def row_dft(t, shadow=None):
    for kk in range(3):
        c = "0" if kk == 0 else None
        A(f"v_mfma_f32_32x32x16_f16 {v(ACR,16)}, {v(AF1+4*kk,4)}, {v(B1R+4*kk,4)}, {c or v(ACR,16)}")
        A(f"v_mfma_f32_32x32x16_f16 {v(ACI,16)}, {v(AF1+4*kk,4)}, {v(B1I+4*kk,4)}, {c or v(ACI,16)}")
    for kk in range(4):
        for i in (4 * kk, 4 * kk + 2):
            pr, pi = t + (i % 4) * 2, t + (i % 4) * 2 + 2
            A(f"v_pk_mul_f32 {v(pr,2)}, {v(ACR+i,2)}, {v(TWC+i,2)}")
            A(f"v_pk_mul_f32 {v(pi,2)}, {v(ACI+i,2)}, {v(TWC+i,2)}")
            A(f"v_pk_fma_f32 {v(pr,2)}, {v(ACI+i,2)}, {v(TWS+i,2)}, {v(pr,2)}")
            A(f"v_pk_fma_f32 {v(pi,2)}, {v(ACR+i,2)}, {v(TWS+i,2)}, {v(pi,2)} neg_lo:[1,0,0] neg_hi:[1,0,0]")
            A(f"v_cvt_pk_f16_f32 {v(AF2+i)}, {v(pr)}, {v(pi)}")
            A(f"v_cvt_pk_f16_f32 {v(AF2+i+1)}, {v(pr+1)}, {v(pi+1)}")
        c = "0" if kk == 0 else None
        A(f"v_mfma_f32_32x32x16_f16 {v(AC2R,16)}, {v(AF2+4*kk,4)}, {v(B2R+4*kk,4)}, {c or v(AC2R,16)}")
        A(f"v_mfma_f32_32x32x16_f16 {v(AC2I,16)}, {v(AF2+4*kk,4)}, {v(B2I+4*kk,4)}, {c or v(AC2I,16)}")
    if shadow:
        shadow()

def write_W(layer):
    for i in range(10):
        A(f"v_cvt_pk_f16_f32 {v(ACR+i)}, {v(AC2R+i)}, {v(AC2I+i)}")
        A(f"ds_write_b32 {v(vLWW)}, {v(ACR+i)} offset:{4*i}")
    A("s_waitcnt lgkmcnt(0)")
    A("s_barrier")
    L = A.newlabel("Lw2")
    for j in range(2):
        A(f"ds_read2st64_b32 {v(ACI+4*j,2)}, {v(vLWR0+j)} offset0:0 offset1:11")
        A(f"ds_read2st64_b32 {v(ACI+4*j+2,2)}, {v(vLWR0+j)} offset0:22 offset1:33")
    A(f"s_add_u32 s60, s{sWB}, {W_OFF + layer * W_SZ}")
    A(f"s_add_u32 s62, s60, {8192 + 112}")
    A("s_waitcnt lgkmcnt(2)")
    A(f"buffer_store_dwordx4 {v(ACI,4)}, {v(vWG)}, {WS}, s60 offen sc1")
    A("s_waitcnt lgkmcnt(0)")
    A(f"buffer_store_dwordx4 {v(ACI+4,4)}, {v(vWG1)}, {WS}, s60 offen sc1")
    A(f"s_cmp_ge_u32 s{WV}, 2")
    A(f"s_cbranch_scc1 {L}")
    A(f"ds_read2st64_b32 {v(ACI+8,2)}, {v(vLWR0+2)} offset0:0 offset1:11")
    A(f"ds_read2st64_b32 {v(ACI+10,2)}, {v(vLWR0+2)} offset0:22 offset1:33")
    A("s_waitcnt lgkmcnt(0)")
    A(f"buffer_store_dwordx4 {v(ACI+8,4)}, {v(vWG)}, {WS}, s62 offen sc1")
    A.label(L)

def stage_Y(layer):
    c0, c1, c2, e1, e2, t = ACR, ACR + 4, ACR + 8, ACR + 12, ACR + 13, ACR + 16
    L2, L3, L4, L5, L6 = [A.newlabel("Ly") for _ in range(5)]
    A(f"s_mov_b32 s60, {Y_OFF + layer * Y_SZ}")
    A(f"buffer_load_dwordx4 {v(c0,4)}, {v(vY0)}, {WS}, s60 offen sc1")
    A(f"buffer_load_dwordx4 {v(c1,4)}, {v(vY1)}, {WS}, s60 offen sc1")
    A(f"s_cmp_ge_u32 s{WV}, 2")
    A(f"s_cbranch_scc1 {L2}")
    A(f"buffer_load_dwordx4 {v(c2,4)}, {v(vY2)}, {WS}, s60 offen sc1")
    A.label(L2)
    A("s_waitcnt vmcnt(0)")
    A(f"ds_write2st64_b32 {v(vLYW)}, {v(c0)}, {v(c0+1)} offset0:0 offset1:10")
    A(f"ds_write2st64_b32 {v(vLYW)}, {v(c0+2)}, {v(c0+3)} offset0:20 offset1:30")
    A(f"s_cmp_eq_u32 s{WV}, 0")
    A(f"s_cbranch_scc1 {L4}")
    for k in range(4):
        A(f"v_alignbit_b32 {v(t+k)}, {v(c1+3-k)}, {v(c1+3-k)}, 16")
    for k in range(4):
        A(f"v_mov_b32 {v(c1+k)}, {v(t+k)}")
    A.label(L4)
    A(f"ds_write2st64_b32 {v(vLYW)}, {v(c1)}, {v(c1+1)} offset0:4 offset1:14")
    A(f"ds_write2st64_b32 {v(vLYW)}, {v(c1+2)}, {v(c1+3)} offset0:24 offset1:34")
    A(f"s_cmp_ge_u32 s{WV}, 2")
    A(f"s_cbranch_scc1 {L5}")
    for k in range(4):
        A(f"v_alignbit_b32 {v(t+k)}, {v(c2+3-k)}, {v(c2+3-k)}, 16")
    A(f"ds_write2st64_b32 {v(vLYW)}, {v(t)}, {v(t+1)} offset0:8 offset1:18")
    A(f"ds_write2st64_b32 {v(vLYW)}, {v(t+2)}, {v(t+3)} offset0:28 offset1:38")
    A.label(L5)
    A("s_waitcnt lgkmcnt(0)")
    A("s_barrier")

def router_publish(layer, t, between=None):
    R_ = t
    for i in range(10):
        os_ = i & 1
        wv = v(WR + (i & ~1), 2)
        if i == 0:
            A(f"v_pk_mul_f32 {v(R_,2)}, {v(XN,2)}, {wv} op_sel:[0,{os_}] op_sel_hi:[1,{os_}]")
        else:
            A(f"v_pk_fma_f32 {v(R_,2)}, {v(XN+2*i,2)}, {wv}, {v(R_,2)} op_sel:[0,{os_},0] op_sel_hi:[1,{os_},1]")
    A(f"v_permlane32_swap_b32 {v(R_)}, {v(R_+1)}")
    A(f"v_add_f32 {v(R_)}, {v(R_)}, {v(R_+1)}")
    A(f"v_mov_b32 {v(R_+1)}, {v(R_)}")
    A(f"v_permlane16_swap_b32 {v(R_)}, {v(R_+1)}")
    A(f"v_add_f32 {v(R_)}, {v(R_)}, {v(R_+1)}")
    for r in (8, 4, 2, 1):
        A(f"v_add_f32_dpp {v(R_)}, {v(R_)}, {v(R_)} row_ror:{r} row_mask:0xf bank_mask:0xf")
    A(f"v_readlane_b32 s70, {v(R_)}, 0")
    A(f"v_readlane_b32 s71, {v(R_)}, 32")
    A(f"v_mov_b32 {v(R_+1)}, s71")
    A(f"v_cvt_pk_bf16_f32 {v(R_)}, s70, {v(R_+1)}")
    A(f"v_lshrrev_b32 {v(R_+1)}, 15, {v(R_)}")
    A(f"v_and_b32 {v(R_+1)}, 0x10001, {v(R_+1)}")
    A(f"v_mul_u32_u24 {v(R_+1)}, 0x7fff, {v(R_+1)}")
    A(f"v_or_b32 {v(R_+1)}, 0x80008000, {v(R_+1)}")
    A(f"v_xor_b32 {v(R_)}, {v(R_)}, {v(R_+1)}")
    A(f"v_min_u32 {v(R_)}, -2, {v(R_)}")
    A(f"v_lshlrev_b32 {v(R_+2)}, 12, v1")
    A(f"s_lshl_b32 s73, s{sRHO}, 2")
    A(f"s_add_u32 s73, s73, s{WV}")
    A(f"s_lshl_b32 s73, s73, 2")
    A(f"s_add_u32 s73, s73, {RG_OFF + layer * NRR * RG_REP}")
    if between:
        between()
    A("s_waitcnt vmcnt(0)")
    set_exec((1 << NRR) - 1)
    A(f"buffer_store_dword {v(R_)}, {v(R_+2)}, {WS}, s73 offen sc1")
    A("s_mov_b64 exec, -1")

def roleR():
    A.label("L_roleR")
    srd(8, 42, 2621440)
    srd(12, 52, 2621440)
    srd(16, 44, 1280)
    A("s_and_b32 s60, s2, 7")
    A("s_lshr_b32 s61, s2, 3")
    A(f"s_lshr_b32 s{sA}, s61, 3")
    A("s_and_b32 s61, s61, 7")
    A("s_lshl_b32 s60, s60, 3")
    A("s_sub_u32 s62, 56, s60")
    A(f"s_cmp_lt_u32 s{sA}, 2")
    A("s_cselect_b32 s60, s60, s62")
    A(f"s_add_u32 s{sS2}, s60, s61")
    A(f"s_lshl_b32 s{sRHO}, s{sA}, 6")
    A(f"s_add_u32 s{sRHO}, s{sRHO}, s{sS2}")
    A(f"s_lshl_b32 s60, s{sA}, 9")
    A(f"s_lshl_b32 s61, s{WV}, 7")
    A(f"s_add_u32 s{sRA}, s60, s61")
    A(f"s_add_u32 s{sRA}, s{sRA}, s{sS2}")
    A(f"s_mul_i32 s{sXO}, s{sRA}, 1280")
    A(f"s_add_u32 s63, s{sXO}, {64 * 1280}")
    T = ACR
    A(f"v_and_b32 {v(T)}, 31, v1")
    A(f"v_lshrrev_b32 {v(T+1)}, 5, v1")
    A(f"v_mul_u32_u24 {v(vX)}, 640, {v(T+1)}")
    A(f"v_lshl_add_u32 {v(vX)}, {v(T)}, 1, {v(vX)}")
    for i in range(20):
        A(f"v_mov_b32 {v(X+i)}, 0")
    for i in range(10):
        A(f"buffer_load_short_d16_hi {v(X+2*i)}, {v(vX)}, {SRD1}, s{sXO} offen offset:{64*i}")
        A(f"buffer_load_short_d16_hi {v(X+2*i+1)}, {v(vX)}, {SRD1}, s63 offen offset:{64*i}")
    A(f"v_mov_b32 {v(T+2)}, -1")
    A(f"v_mov_b32 {v(T+3)}, -1")
    A(f"v_lshlrev_b32 {v(T+4)}, 3, v0")
    A(f"s_lshl_b32 s60, s{sRHO}, 11")
    A(f"s_add_u32 s60, s60, {RESET_OFF}")
    A(f"buffer_store_dwordx2 {v(T+2,2)}, {v(T+4)}, {WS}, s60 offen sc1")
    pretouch(T + 14, SRD2)
    n, h = T, T + 1
    e1, e1s, base, arg, c_, s_ = T + 6, T + 7, T + 8, T + 9, T + 10, T + 11
    A(f"v_bfe_u32 {v(e1)}, {v(n)}, 2, 1")
    A(f"v_mul_u32_u24 {v(e1)}, 10, {v(e1)}")
    A(f"v_and_b32 {v(arg)}, 3, {v(n)}")
    A(f"v_add_u32 {v(e1)}, {v(e1)}, {v(arg)}")
    A(f"v_lshrrev_b32 {v(arg)}, 3, {v(n)}")
    A(f"v_lshl_add_u32 {v(e1)}, {v(arg)}, 2, {v(e1)}")
    A(f"v_cvt_f32_u32 {v(e1)}, {v(e1)}")
    hf_, wf, lc = T + 12, T + 13, T + 14
    G0 = T + 16
    A(f"v_cvt_f32_u32 {v(hf_)}, {v(h)}")
    A(f"v_cvt_f32_u32 {v(wf)}, s{WV}")
    A(f"s_lshl_b32 s60, s{WV}, 10")
    A(f"s_add_u32 s60, s60, {LDS_CONST}")
    A(f"v_lshl_add_u32 {v(lc)}, v1, 4, s60")
    A(f"v_mul_f32 {v(e1s)}, {f32(1/20)}, {v(e1)}")
    A(f"v_mul_f32 {v(base)}, {f32(10.0)}, {v(hf_)}")
    A(f"v_fma_f32 {v(base)}, 4.0, {v(wf)}, {v(base)}")
    A(f"v_mul_f32 {v(base)}, {v(e1s)}, {v(base)}")
    A(f"s_cmp_lt_u32 s{WV}, 2")
    A(f"s_cselect_b64 s[64:65], -1, 0")
    for r in range(4):
        A(f"v_fmamk_f32 {v(arg)}, {v(e1s)}, {f32(r)}, {v(base)}")
        sincos(arg, c_, s_)
        A(f"v_cvt_pk_f16_f32 {v(G0+r)}, {v(c_)}, {v(s_)}")
        A(f"v_cvt_pk_f16_f32 {v(G0+4+r)}, -{v(s_)}, {v(c_)}")
        if r >= 2:
            A(f"v_cndmask_b32 {v(G0+r)}, 0, {v(G0+r)}, s[64:65]")
            A(f"v_cndmask_b32 {v(G0+4+r)}, 0, {v(G0+4+r)}, s[64:65]")
    A(f"ds_write_b128 {v(lc)}, {v(G0,4)}")
    A(f"ds_write_b128 {v(lc)}, {v(G0+4,4)} offset:4096")
    A(f"v_mul_f32 {v(wf)}, {f32(8.0)}, {v(wf)}")
    A(f"v_fma_f32 {v(wf)}, 4.0, {v(hf_)}, {v(wf)}")
    A(f"v_mul_f32 {v(e1s)}, {f32(1/640)}, {v(e1)}")
    A(f"v_mul_f32 {v(base)}, {v(e1s)}, {v(wf)}")
    for r in range(4):
        A(f"v_fmamk_f32 {v(arg)}, {v(e1s)}, {f32(r)}, {v(base)}")
        sincos(arg, G0 + 8 + r, G0 + 12 + r)
    A(f"ds_write_b128 {v(lc)}, {v(G0+8,4)} offset:8192")
    A(f"ds_write_b128 {v(lc)}, {v(G0+12,4)} offset:12288")
    A(f"v_cvt_f32_u32 {v(e1s)}, {v(n)}")
    A(f"v_mul_f32 {v(e1s)}, {f32(1/32)}, {v(e1s)}")
    A(f"v_mul_f32 {v(base)}, {v(e1s)}, {v(wf)}")
    for r in range(4):
        A(f"v_fmamk_f32 {v(arg)}, {v(e1s)}, {f32(r)}, {v(base)}")
        sincos(arg, c_, s_)
        A(f"v_cvt_pk_f16_f32 {v(G0+16+r)}, {v(c_)}, {v(s_)}")
        A(f"v_cvt_pk_f16_f32 {v(G0+20+r)}, -{v(s_)}, {v(c_)}")
    A(f"ds_write_b128 {v(lc)}, {v(G0+16,4)} offset:16384")
    A(f"ds_write_b128 {v(lc)}, {v(G0+20,4)} offset:20480")
    A(f"v_mov_b32 {v(AF1+10)}, 0")
    A(f"v_mov_b32 {v(AF1+11)}, 0")
    A(f"v_lshlrev_b32 {v(lc)}, 4, v1")
    A(f"v_add_u32 {v(lc)}, {LDS_CONST}, {v(lc)}")
    get_nonce()
    A("s_barrier")
    for (dst, ng, off) in ((B1R, 3, 0), (B1I, 3, 4096), (TWC, 4, 8192), (TWS, 4, 12288)):
        for gq in range(ng):
            A(f"ds_read_b128 {v(dst+4*gq,4)}, {v(lc)} offset:{off + 1024*gq}")
    def late_consts():
        for (dst, ng, off) in ((B2R, 4, 16384), (B2I, 4, 20480)):
            for gq in range(ng):
                A(f"ds_read_b128 {v(dst+4*gq,4)}, {v(vLC)} offset:{off + 1024*gq}")
    vLC = 7
    A(f"v_mov_b32 {v(vLC)}, {v(lc)}")
    A(f"v_mov_b32 {v(INV)}, {f32(1/640)}")
    A(f"s_mov_b32 s{s32f}, {f32(32.0)}")
    A(f"v_mul_u32_u24 {v(vLWW)}, 21, {v(n)}")
    A(f"v_mad_u32_u24 {v(vLWW)}, {v(h)}, 10, {v(vLWW)}")
    A(f"s_mul_i32 s60, s{WV}, 704")
    A(f"s_add_u32 s60, s60, {LDS_W // 4}")
    A(f"v_add_lshl_u32 {v(vLWW)}, {v(vLWW)}, s60, 2")
    for j in range(3):
        A(f"v_add_u32 {v(arg)}, {256*j}, v0")
        A(f"v_mul_u32_u24 {v(c_)}, 3277, {v(arg)}")
        A(f"v_lshrrev_b32 {v(c_)}, 16, {v(c_)}")
        A(f"v_add_u32 {v(arg)}, {v(arg)}, {v(c_)}")
        A(f"v_lshlrev_b32 {v(arg)}, 2, {v(arg)}")
        A(f"v_add_u32 {v(vLWR0+j)}, {LDS_W}, {v(arg)}")
    A(f"v_lshlrev_b32 {v(vWG)}, 4, v0")
    A(f"s_mul_i32 s{sWB}, s{sRHO}, {WROW}")
    A(f"v_add_u32 {v(vWG1)}, {4096 + 112}, {v(vWG)}")
    A(f"v_add_u32 {v(arg)}, 4096, {v(vWG)}")
    A(f"v_cmp_gt_u32 vcc, 65, v0")
    A(f"v_cndmask_b32 {v(vWG1)}, {v(vWG1)}, {v(arg)}, vcc")
    A(f"s_and_b32 s{sME}, s2, 15")
    A(f"s_and_b32 s{sREP}, s2, {NREP - 1}")
    A(f"s_lshl_b32 s{sREP}, s{sREP}, 7")
    stamp(0)
    A(f"s_waitcnt vmcnt(1)")
    stamp(10)
    ln_stats(X, ACR)
    late_consts()
    ln_center_scale(X, XN, ACR)
    to_f16(XN, ACR)
    A("s_waitcnt lgkmcnt(0)")
    row_dft(XN)
    stamp(11)
    write_W(0)
    stamp(12)
    signal(0, sME, 15, ACR)
    stamp(1)
    for i in range(10):
        A(f"v_mov_b32 {v(WR+i)}, 0")
    for i in range(10):
        A(f"buffer_load_short_d16_hi {v(WR+i)}, {v(vX)}, {SRD3}, 0 offen offset:{64*i}")
    A(f"v_and_b32 {v(n)}, 31, v1")
    A(f"v_lshrrev_b32 {v(h)}, 5, v1")
    A(f"v_lshlrev_b32 {v(vTA)}, 4, v1")
    A(f"v_lshlrev_b32 {v(vTB)}, 2, v1")
    A(f"v_add_u32 {v(vTB)}, 1024, {v(vTB)}")
    A(f"v_lshlrev_b32 {v(vLYW)}, 2, v0")
    A(f"v_mul_u32_u24 {v(vLYR)}, 320, {v(h)}")
    A(f"s_mul_i32 s60, s{WV}, 640")
    A(f"v_add3_u32 {v(vLYR)}, {v(vLYR)}, {v(n)}, s60")
    A(f"v_lshlrev_b32 {v(vLYR)}, 2, {v(vLYR)}")
    A(f"s_sub_u32 s60, 3, s{sA}")
    A(f"s_lshl_b32 s60, s60, 6")
    A(f"s_sub_u32 s61, 64, s{sS2}")
    A(f"s_add_u32 s60, s60, s61")
    A(f"s_lshl_b32 s60, s60, 4")
    A(f"s_lshl_b32 s61, s{sA}, 4")
    A(f"s_add_u32 s61, s61, {YM_OFF}")
    A(f"s_cmp_eq_u32 s{sS2}, 0")
    A(f"s_cselect_b32 s60, s61, s60")
    A(f"s_cselect_b32 s61, 6, 12")
    A(f"s_lshl_b32 s62, s{sRHO}, 4")
    A(f"v_lshlrev_b32 {v(vY0)}, 12, v0")
    A(f"v_add_u32 {v(vY0)}, s62, {v(vY0)}")
    A(f"v_sub_u32 {v(arg)}, 384, v0")
    A(f"v_lshlrev_b32 {v(arg)}, s61, {v(arg)}")
    A(f"v_add_u32 {v(vY1)}, s60, {v(arg)}")
    A(f"v_add_u32 {v(c_)}, {256 << 12}, {v(vY0)}")
    A(f"v_cmp_gt_u32 vcc, 64, v0")
    A(f"v_cndmask_b32 {v(vY1)}, {v(vY1)}, {v(c_)}, vcc")
    A(f"v_sub_u32 {v(arg)}, 128, v0")
    A(f"v_and_b32 {v(arg)}, 0xff, {v(arg)}")
    A(f"v_lshlrev_b32 {v(arg)}, s61, {v(arg)}")
    A(f"v_add_u32 {v(vY2)}, s60, {v(arg)}")
    poll_flags(1, sREP, ACR)
    stamp(2)
    stage_Y(0)
    stamp(13)
    for i in range(10):
        A(f"ds_read_b32 {v(ACI+i)}, {v(vLYR)} offset:{128*i}")
    A(f"s_mul_i32 s{sTB}, s{sRA}, {T_REC}")
    A(f"s_add_u32 s{sTB}, s{sTB}, {T_OFF}")
    A(f"s_add_u32 s{sTB+1}, s{sTB}, {64 * T_REC}")
    for i in range(10):
        A(f"s_waitcnt lgkmcnt({9-i})")
        A(f"v_fma_mix_f32 {v(X+2*i)}, {v(ACI+i)}, s{s32f}, {v(X+2*i)} op_sel:[0,0,0] op_sel_hi:[1,0,0]")
        A(f"v_fma_mix_f32 {v(X+2*i+1)}, {v(ACI+i)}, s{s32f}, {v(X+2*i+1)} op_sel:[1,0,0] op_sel_hi:[1,0,0]")
    PA, PB = AC2R, AC2R + 8
    pack_rows(X, PA, PB)
    vKX = 6
    A(f"s_mul_i32 s60, s{WV}, 3072")
    A(f"s_add_u32 s60, s60, {LDS_KX}")
    A(f"v_lshl_add_u32 {v(vKX)}, v1, 4, s60")
    A(f"v_mov_b32 {v(PA+5)}, {v(PB+4)}")
    A(f"ds_write_b128 {v(vKX)}, {v(PA,4)}")
    A(f"ds_write_b128 {v(vKX)}, {v(PB,4)} offset:1024")
    A(f"ds_write_b64 {v(vKX)}, {v(PA+4,2)} offset:2048")
    ln_stats(X, ACR)
    ln_center_scale(X, XN, ACR)
    pack_rows(XN, PA + 16, PB + 16)
    store_rows(PA + 16, PB + 16, 0)
    stamp(14)
    def mid():
        for i in range(10):
            A(f"v_pk_add_f32 {v(X+2*i,2)}, {v(X+2*i,2)}, {v(XN+2*i,2)}")
        for i in range(10):
            rnd_pair(X + 2 * i, X + 2 * i + 1, ACR + (i % 4))
        stamp(15)
    router_publish(0, ACI, mid)
    stamp(3)
    ln_stats(X, ACR)
    STAT = XN + 8
    PX = 6
    ln_center_scale(X, XN, ACR + 8)
    to_f16(XN, ACR + 8)
    A(f"v_cmp_gt_u32 vcc, 32, v1")
    A(f"v_cndmask_b32 {v(STAT)}, {v(MM+1)}, {v(MM)}, vcc")
    A(f"v_cndmask_b32 {v(STAT+1)}, {v(RS+1)}, {v(RS)}, vcc")
    A(f"s_add_u32 s60, s{NONCE}, 7")
    A(f"v_mov_b32 {v(STAT+2)}, s60")
    A(f"v_mov_b32 {v(STAT+3)}, s60")
    row_dft(XN)
    stamp(16)
    write_W(1)
    stamp(17)
    signal(2, sME, 15, ACR)
    stamp(4)
    for k in range(3):
        A(f"ds_read_b128 {v(PA+4*k,4)}, {v(vKX)} offset:{1024*k}")
    A(f"v_lshrrev_b32 {v(STAT+4)}, 5, v1")
    A(f"v_mul_u32_u24 {v(STAT+4)}, {64 * T_REC}, {v(STAT+4)}")
    A("s_waitcnt lgkmcnt(0)")
    A(f"buffer_store_dwordx4 {v(PA,4)}, {v(vTA)}, {WS}, s{sTB} offen offset:1280 sc1")
    A(f"buffer_store_dword {v(PA+8)}, {v(vTB)}, {WS}, s{sTB} offen offset:1280 sc1")
    A(f"buffer_store_dwordx4 {v(PA+4,4)}, {v(vTA)}, {WS}, s{sTB+1} offen offset:1280 sc1")
    A(f"buffer_store_dword {v(PA+9)}, {v(vTB)}, {WS}, s{sTB+1} offen offset:1280 sc1")
    A("s_waitcnt vmcnt(0)")
    A(f"s_mov_b32 exec_lo, 1")
    A(f"s_mov_b32 exec_hi, 1")
    A(f"buffer_store_dwordx4 {v(STAT,4)}, {v(STAT+4)}, {WS}, s{sTB} offen offset:2560 sc1")
    A("s_mov_b64 exec, -1")
    loop, done = A.newlabel("Lsel"), A.newlabel("Lseld")
    A(f"s_and_b32 s74, s2, {NRX - 1}")
    A(f"s_mul_i32 s74, s74, {X2REP}")
    A(f"s_add_u32 s74, s74, {X2_OFF}")
    A(f"s_add_u32 s60, s74, {SEL_OFF}")
    A(f"v_and_b32 {v(ACR)}, 7, v1")
    A(f"v_lshlrev_b32 {v(ACR)}, 2, {v(ACR)}")
    A(f"s_mov_b32 s62, {SPIN}")
    A.label(loop)
    A(f"buffer_load_dword {v(ACR+1)}, {v(ACR)}, {WS}, s60 offen sc1")
    A("s_waitcnt vmcnt(0)")
    A(f"v_cmp_eq_u32 vcc, -1, {v(ACR+1)}")
    A(f"s_cbranch_vccz {done}")
    spin_tail(loop, 62, done, 4)
    A.label(done)
    for j in range(8):
        A(f"v_readlane_b32 s{sSEL+j}, {v(ACR+1)}, {j}")
    stamp(5)
    CU, CV = XN + 12, XN + 16
    tr, ca, sa, cb, sb, ar, t0, t1_ = ACR, ACR + 1, ACR + 2, ACR + 3, ACR + 4, ACR + 5, ACR + 6, ACR + 7
    A(f"v_and_b32 {v(tr)}, 1, v1")
    A(f"v_lshlrev_b32 {v(tr)}, 6, {v(tr)}")
    A(f"v_add_u32 {v(tr)}, s{sRA}, {v(tr)}")
    A(f"s_mov_b32 s64, 0x00300003")
    A(f"s_mov_b32 s65, 0x30000300")
    for p in range(4):
        for (j, cc, ss) in ((2 * p, ca, sa), (2 * p + 1, cb, sb)):
            A(f"v_mul_u32_u24 {v(ar)}, s{sSEL+j}, {v(tr)}")
            A(f"v_and_b32 {v(ar)}, 0x7ff, {v(ar)}")
            A(f"v_cvt_f32_u32 {v(ar)}, {v(ar)}")
            A(f"v_mul_f32 {v(ar)}, {f32(1/2048)}, {v(ar)}")
            sincos(ar, cc, ss)
        A(f"v_sub_f32 {v(t0)}, {v(ca)}, {v(sb)}")
        A(f"v_add_f32 {v(t1_)}, {v(sa)}, {v(cb)}")
        A(f"v_mul_f32 {v(t0)}, 0.5, {v(t0)}")
        A(f"v_mul_f32 {v(t1_)}, 0.5, {v(t1_)}")
        A(f"v_cvt_pk_f16_f32 {v(CU+p)}, {v(t0)}, {v(t1_)}")
        A(f"v_add_f32 {v(t0)}, {v(ca)}, {v(sb)}")
        A(f"v_sub_f32 {v(t1_)}, {v(cb)}, {v(sa)}")
        A(f"v_mul_f32 {v(t0)}, 0.5, {v(t0)}")
        A(f"v_mul_f32 {v(t1_)}, 0.5, {v(t1_)}")
        A(f"v_cvt_pk_f16_f32 {v(CV+p)}, {v(t0)}, {v(t1_)}")
        A(f"v_cndmask_b32 {v(CU+p)}, 0, {v(CU+p)}, s[64:65]")
        A(f"v_cndmask_b32 {v(CV+p)}, 0, {v(CV+p)}, s[64:65]")
    vE0, vDF, vDM, vP2, vNW = vLWW, vLWR0, vLWR0 + 1, vLWR0 + 2, vWG
    n, h = ACR + 8, ACR + 9
    A(f"v_and_b32 {v(n)}, 31, v1")
    A(f"v_lshrrev_b32 {v(h)}, 5, v1")
    A(f"v_mul_u32_u24 {v(vE0)}, 20, {v(n)}")
    A(f"v_mad_u32_u24 {v(vE0)}, {v(h)}, 10, {v(vE0)}")
    A(f"v_mul_u32_u24 {v(vDF)}, 330, {v(h)}")
    A(f"v_add_u32 {v(vDF)}, {v(vDF)}, {v(n)}")
    A(f"v_lshlrev_b32 {v(vDF)}, 4, {v(vDF)}")
    A(f"v_add_u32 {v(vDF)}, {LDS_W}, {v(vDF)}")
    A(f"v_mul_u32_u24 {v(vDM)}, 330, {v(h)}")
    A(f"v_add_u32 {v(vDM)}, {v(vDM)}, {v(n)}")
    A(f"v_sub_u32 {v(vDM)}, 362, {v(vDM)}")
    A(f"v_cmp_eq_u32 vcc, 0, {v(n)}")
    A(f"v_addc_co_u32 {v(vDM)}, vcc, 0, {v(vDM)}, vcc")
    A(f"v_lshlrev_b32 {v(vDM)}, 4, {v(vDM)}")
    A(f"v_add_u32 {v(vDM)}, {LDS_W}, {v(vDM)}")
    A(f"s_lshl_b32 s60, s{WV}, 8")
    A(f"v_mul_u32_u24 {v(vP2)}, 10240, {v(h)}")
    A(f"v_lshl_add_u32 {v(vP2)}, {v(n)}, 3, {v(vP2)}")
    A(f"v_add_u32 {v(vP2)}, s60, {v(vP2)}")
    A(f"v_lshlrev_b32 {v(vNW)}, 2, v1")
    A(f"v_add_u32 {v(vNW)}, {LDS_Y}, {v(vNW)}")
    poll_flags(3, sREP, ACR)
    stamp(6)
    loop, done, first = A.newlabel("Lx2"), A.newlabel("Lx2d"), A.newlabel("Lx2f")
    RAW = AC2R
    A(f"s_add_u32 s75, s74, 4096")
    A(f"s_add_u32 s76, s74, 8192")
    def x2loads():
        for i in range(10):
            so = ("s74", "s75", "s76")[i // 4]
            A(f"buffer_load_dwordx2 {v(RAW+2*i,2)}, {v(vP2)}, {WS}, {so} offen offset:{1024*(i%4)} sc1")
    x2loads()
    stage_Y(1)
    A(f"s_mov_b32 s62, {SPIN}")
    A(f"s_branch {first}")
    A.label(loop)
    x2loads()
    A("s_waitcnt vmcnt(0)")
    A.label(first)
    A(f"v_max3_u32 {v(ACR)}, {v(RAW)}, {v(RAW+1)}, {v(RAW+2)}")
    for k in range(3, 19, 2):
        A(f"v_max3_u32 {v(ACR)}, {v(ACR)}, {v(RAW+k)}, {v(RAW+k+1)}")
    A(f"v_max_u32 {v(ACR)}, {v(ACR)}, {v(RAW+19)}")
    A(f"v_cmp_eq_u32 vcc, -1, {v(ACR)}")
    A(f"s_cbranch_vccz {done}")
    spin_tail(loop, 62, done, 2)
    A.label(done)
    stamp(7)
    Z = ACR + 12
    A(f"s_mul_i32 s60, s{WV}, 2560")
    A(f"s_add_u32 s60, s60, {LDS_NEW - 0}")
    A(f"v_lshlrev_b32 {v(ACR)}, 2, v1")
    A(f"v_add_u32 {v(ACR)}, s60, {v(ACR)}")
    for i in range(10):
        A(f"ds_write_b32 {v(ACR)}, {v(RAW+2*i)} offset:{256*i}")
        A(f"v_lshlrev_b32 {v(Z+2*i)}, 16, {v(RAW+2*i)}")
        A(f"v_and_b32 {v(Z+2*i+1)}, 0xffff0000, {v(RAW+2*i)}")
    ln_stats(Z, ACR + 2)
    ln_center_scale(Z, Z, ACR + 2)
    to_f16(Z, ACR + 2, sub=lambda i: RAW + 2 * i + 1)
    CB = 16
    YR = 56
    AD = 66
    def shadow():
        for i in range(10):
            A(f"ds_read_b32 {v(YR+i)}, {v(vLYR)} offset:{128*i}")
        for i in range(10):
            A(f"v_mov_b32 {v(CB+4*i+2)}, 0")
            A(f"v_mov_b32 {v(CB+4*i+3)}, 0")
        for i in range(10):
            A(f"s_waitcnt lgkmcnt({9-i})")
            A(f"v_fma_mix_f32 {v(CB+4*i)}, {v(YR+i)}, s{s32f}, {v(X+2*i)} op_sel:[0,0,0] op_sel_hi:[1,0,0]")
            A(f"v_fma_mix_f32 {v(CB+4*i+1)}, {v(YR+i)}, s{s32f}, {v(X+2*i+1)} op_sel:[1,0,0] op_sel_hi:[1,0,0]")
        A(f"s_lshl_b32 s60, s{WV}, 2")
        A(f"s_add_u32 s60, s60, {LDS_W}")
        for i in range(10):
            A(f"v_add_u32 {v(YR+i)}, {i}, {v(vE0)}")
            A(f"v_lshrrev_b32 {v(AD)}, 5, {v(YR+i)}")
            A(f"v_add_u32 {v(YR+i)}, {v(YR+i)}, {v(AD)}")
            A(f"v_lshl_add_u32 {v(YR+i)}, {v(YR+i)}, 4, s60")
        A(f"s_add_u32 s60, s60, {660 * 16}")
        A(f"v_mov_b32 {v(AD)}, s60")
        A(f"v_cmp_eq_u32 vcc, 0, v1")
        A(f"v_cndmask_b32 {v(AD)}, {v(YR)}, {v(AD)}, vcc")
    row_dft(XN, shadow)
    stamp(18)
    for i in range(10):
        A(f"v_cvt_pk_f16_f32 {v(ACR+i)}, {v(AC2R+i)}, {v(AC2I+i)}")
        A(f"ds_write_b32 {v(YR+i)}, {v(ACR+i)}")
    A(f"ds_write_b32 {v(AD)}, {v(ACR)}")
    A("s_waitcnt lgkmcnt(0)")
    A("s_barrier")
    FR = 160
    for i in range(10):
        A(f"ds_read_b128 {v(FR+8*i,4)}, {v(vDF)} offset:{528*i}")
        A(f"ds_read_b128 {v(FR+8*i+4,4)}, {v(vDM)} offset:{528*(9-i)}")
        if i >= 6:
            k = i - 6
            A(f"s_waitcnt lgkmcnt(12)")
            A(f"v_mfma_f32_16x16x32_f16 {v(CB+4*k,4)}, {v(CU,4)}, {v(FR+8*k,4)}, {v(CB+4*k,4)}")
            A(f"v_mfma_f32_16x16x32_f16 {v(CB+4*k,4)}, {v(CV,4)}, {v(FR+8*k+4,4)}, {v(CB+4*k,4)}")
    for k in range(4, 10):
        A(f"s_waitcnt lgkmcnt({2*(9-k)})")
        A(f"v_mfma_f32_16x16x32_f16 {v(CB+4*k,4)}, {v(CU,4)}, {v(FR+8*k,4)}, {v(CB+4*k,4)}")
        A(f"v_mfma_f32_16x16x32_f16 {v(CB+4*k,4)}, {v(CV,4)}, {v(FR+8*k+4,4)}, {v(CB+4*k,4)}")
    stamp(19)
    for row in range(2):
        Lnext = A.newlabel("Lown")
        A(f"s_add_u32 s60, s{sRA}, {64 * row}")
        A("s_mov_b32 s61, -1")
        for j in range(8):
            A(f"s_cmp_eq_u32 s60, s{sSEL+j}")
            A(f"s_cselect_b32 s61, {j}, s61")
        A("s_cmp_lt_i32 s61, 0")
        A(f"s_cbranch_scc1 {Lnext}")
        A("s_lshr_b32 s62, s61, 1")
        A("s_mul_i32 s62, s62, 2560")
        A(f"s_add_u32 s62, s62, {LDS_NEW}")
        A("s_and_b32 s61, s61, 1")
        A("s_lshl_b32 s61, s61, 4")
        A("s_sub_u32 s61, 16, s61")
        A(f"v_lshlrev_b32 {v(240)}, 2, v1")
        A(f"v_add_u32 {v(240)}, s62, {v(240)}")
        for i in range(10):
            A(f"ds_read_b32 {v(241+i)}, {v(240)} offset:{256*i}")
        A("s_waitcnt lgkmcnt(0)")
        for i in range(10):
            A(f"v_lshlrev_b32 {v(241+i)}, s61, {v(241+i)}")
            A(f"v_and_b32 {v(241+i)}, 0xffff0000, {v(241+i)}")
            A(f"v_sub_f32 {v(241+i)}, {v(241+i)}, {v(X+2*i+row)}")
            A(f"v_add_f32 {v(CB+4*i+row)}, {v(CB+4*i+row)}, {v(241+i)}")
        A.label(Lnext)
    for i in range(10):
        A(f"v_mov_b32 {v(X+2*i)}, {v(CB+4*i)}")
        A(f"v_mov_b32 {v(X+2*i+1)}, {v(CB+4*i+1)}")
    A(f"s_add_u32 s{sTB}, s{sTB}, {T_SZ}")
    A(f"s_add_u32 s{sTB+1}, s{sTB+1}, {T_SZ}")
    pack_rows(X, PA, PB)
    ln_stats(X, ACR)
    ln_center_scale(X, XN, ACR)
    pack_rows(XN, PA + 16, PB + 16)
    store_rows(PA + 16, PB + 16, 0)
    stamp(20)
    def fin():
        A(f"s_mul_i32 s60, s{WV}, 2560")
        A(f"v_add_u32 {v(ACR)}, s60, {v(vX)}")
        for i in range(10):
            A(f"v_pk_add_f32 {v(X+2*i,2)}, {v(X+2*i,2)}, {v(XN+2*i,2)}")
            if opt("scale", 0):
                A(f"v_mul_f32 {v(X+2*i)}, {f32(1 + opt('scale', 0) / 1000)}, {v(X+2*i)}")
                A(f"v_mul_f32 {v(X+2*i+1)}, {f32(1 + opt('scale', 0) / 1000)}, {v(X+2*i+1)}")
            if opt("spike", 0) and i == 3:
                A(f"s_cmp_eq_u32 s2, 5")
                A(f"s_cselect_b32 s61, {f32(opt('spike', 0))}, 0")
                A(f"v_mov_b32 {v(ACR+30)}, s61")
                A(f"v_cmp_eq_u32 vcc, 7, v0")
                A(f"v_cndmask_b32 {v(ACR+30)}, 0, {v(ACR+30)}, vcc")
                A(f"v_add_f32 {v(X+2*i)}, {v(X+2*i)}, {v(ACR+30)}")
            A(f"v_cvt_pk_bf16_f32 {v(ACR+2+i)}, {v(X+2*i)}, {v(X+2*i+1)}")
            A(f"ds_write_b16 {v(ACR)}, {v(ACR+2+i)} offset:{64*i}")
            A(f"ds_write_b16_d16_hi {v(ACR)}, {v(ACR+2+i)} offset:{1280+64*i}")
        A(f"v_lshlrev_b32 {v(ACR+1)}, 4, v1")
        A(f"v_add_u32 {v(ACR)}, s60, {v(ACR+1)}")
        A("s_waitcnt lgkmcnt(0)")
        for k in range(3):
            A(f"ds_read_b128 {v(ACR+12+4*k,4)}, {v(ACR)} offset:{1024*k}")
    A("s_barrier")
    router_publish(1, ACI + 12, fin)
    stamp(8)
    A("s_waitcnt vmcnt(0)")
    store_rows(PA, PB, 1280)
    A(f"v_add_u32 {v(ACR+2)}, {1024 + 63 * 1280}, {v(ACR+1)}")
    A(f"v_add_u32 {v(ACR+3)}, 1024, {v(ACR+1)}")
    A(f"v_cmp_gt_u32 vcc, 16, v1")
    A(f"v_cndmask_b32 {v(ACR+3)}, {v(ACR+2)}, {v(ACR+3)}, vcc")
    A("s_waitcnt lgkmcnt(0)")
    A(f"buffer_store_dwordx4 {v(ACR+12,4)}, {v(ACR+1)}, {SRD2}, s{sXO} offen sc1")
    A(f"buffer_store_dwordx4 {v(ACR+16,4)}, {v(ACR+3)}, {SRD2}, s{sXO} offen sc1")
    set_exec(0xffffffff)
    A(f"buffer_store_dwordx4 {v(ACR+20,4)}, {v(ACR+2)}, {SRD2}, s{sXO} offen offset:1024 sc1")
    A("s_mov_b64 exec, -1")
    signal(4, sME, 15, ACR + 24)
    stamp(9)
    A("s_endpgm")

def roleC():
    A.label("L_roleC")
    B1, TC, TS, A2, DT, RAW, AR, AI, P, AC, O, T = 16, 32, 48, 64, 128, 160, 176, 192, 208, 224, 240, 248
    sC, sCME, sCREP, sK, sW0, sW1, sY = 22, 23, 24, 25, 26, 27, 28
    pretouch(T)
    A(f"s_sub_u32 s60, s2, {C0}")
    A("s_and_b32 s61, s60, 7")
    A("s_lshr_b32 s62, s60, 3")
    A("s_lshr_b32 s63, s62, 2")
    A("s_lshl_b32 s63, s63, 5")
    A("s_lshl_b32 s61, s61, 2")
    A("s_and_b32 s62, s62, 3")
    A(f"s_add_u32 s{sC}, s63, s61")
    A(f"s_add_u32 s{sC}, s{sC}, s62")
    A(f"s_and_b32 s{sCME}, s2, 15")
    A(f"s_cmp_eq_u32 s{sCME}, 0")
    A(f"s_cselect_b32 s29, 10, 9")
    A(f"s_and_b32 s{sCREP}, s2, {NREP - 1}")
    A(f"s_lshl_b32 s{sCREP}, s{sCREP}, 7")
    get_nonce()
    Li = A.newlabel("Lci")
    A(f"s_sub_u32 s60, s2, {C0}")
    A(f"s_lshl_b32 s61, s{WV}, 4")
    A(f"s_or_b32 s60, s60, s61")
    A(f"s_cmp_ge_u32 s60, 16")
    A(f"s_cbranch_scc1 {Li}")
    cnt_init(sCME, range(5), T)
    A.label(Li)
    n, g, t1, gs, arg, base, st = RAW, RAW + 1, RAW + 2, RAW + 3, RAW + 4, RAW + 5, RAW + 6
    ca, sa, cb, sb, x0, x1 = RAW + 7, RAW + 8, RAW + 9, RAW + 10, RAW + 11, RAW + 12
    A(f"v_and_b32 {v(n)}, 15, v1")
    A(f"v_lshrrev_b32 {v(g)}, 4, v1")
    A(f"s_and_b32 s60, s{WV}, 1")
    A(f"s_lshl_b32 s60, s60, 4")
    A(f"s_lshr_b32 s61, s{WV}, 1")
    A(f"v_lshrrev_b32 v2, 1, v0")
    A(f"v_and_b32 v6, 1, v0")
    A(f"s_lshl_b32 s62, s{sC}, 1")
    A(f"v_add_u32 v3, s62, v6")
    A(f"v_sub_u32 v4, 640, v3")
    A(f"v_cmp_ne_u32 vcc, 0, v3")
    A(f"v_cndmask_b32 v4, 0, v4, vcc")
    A(f"v_add_u32 v5, 7, v4")
    A(f"v_cmp_lt_u32 vcc, 320, v4")
    A(f"v_cndmask_b32 v4, v4, v5, vcc")
    A(f"v_mul_u32_u24 v5, {WROW}, v2")
    A(f"v_mul_u32_u24 v6, 8256, v6")
    A(f"v_lshl_add_u32 v6, v2, 4, v6")
    A(f"v_lshl_add_u32 v2, v3, 4, v5")
    A(f"v_lshl_add_u32 v3, v4, 4, v5")
    A(f"s_mul_i32 s63, s61, 8256")
    A(f"v_lshlrev_b32 v7, 10, {v(g)}")
    A(f"v_lshl_add_u32 v7, {v(n)}, 4, v7")
    A(f"v_add_u32 v7, s63, v7")
    A(f"s_add_u32 s62, s62, s61")
    A(f"s_lshl_b32 s62, s62, 12")
    A(f"v_lshl_add_u32 v8, {v(g)}, 6, {v(n)}")
    A(f"v_add_u32 v8, s60, v8")
    A(f"v_lshl_add_u32 v8, v8, 4, s62")
    A(f"s_lshr_b32 s62, s62, 6")
    A(f"s_add_u32 s62, s62, {YM_OFF + 48}")
    A(f"v_lshlrev_b32 v9, 4, {v(g)}")
    A(f"v_sub_u32 v9, s62, v9")
    A(f"v_add_u32 {v(t1)}, s60, {v(n)}")
    A(f"v_cvt_f32_u32 {v(t1)}, {v(t1)}")
    A(f"v_cvt_f32_u32 {v(gs)}, {v(g)}")
    A(f"v_mul_f32 {v(st)}, {f32(1/32)}, {v(t1)}")
    A(f"v_mul_f32 {v(base)}, {v(st)}, {v(gs)}")
    A(f"v_mul_f32 {v(base)}, {f32(8.0)}, {v(base)}")
    for w in range(4):
        A(f"v_fmamk_f32 {v(arg)}, {v(st)}, {f32(2*w)}, {v(base)}")
        sincos(arg, ca, sa)
        A(f"v_add_f32 {v(arg)}, {v(arg)}, {v(st)}")
        sincos(arg, cb, sb)
        A(f"v_sub_f32 {v(x0)}, {v(ca)}, {v(sb)}")
        A(f"v_add_f32 {v(x1)}, {v(sa)}, {v(cb)}")
        A(f"v_cvt_pk_f16_f32 {v(B1+w)}, {v(x0)}, {v(x1)}")
        A(f"v_cvt_pk_f16_f32 {v(B1+4+w)}, -{v(x1)}, {v(x0)}")
        A(f"v_add_f32 {v(x0)}, {v(ca)}, {v(sb)}")
        A(f"v_sub_f32 {v(x1)}, {v(cb)}, {v(sa)}")
        A(f"v_cvt_pk_f16_f32 {v(B1+8+w)}, {v(x0)}, {v(x1)}")
        A(f"v_cvt_pk_f16_f32 {v(B1+12+w)}, {v(x1)}, -{v(x0)}")
    A(f"v_mul_f32 {v(st)}, {f32(1/2048)}, {v(t1)}")
    A(f"v_mul_f32 {v(base)}, {v(st)}, {v(gs)}")
    A(f"v_mul_f32 {v(base)}, 4.0, {v(base)}")
    for j in range(4):
        for i in range(4):
            A(f"v_fmamk_f32 {v(arg)}, {v(st)}, {f32(16*j+i)}, {v(base)}")
            sincos(arg, ca, sa)
            A(f"v_mul_f32 {v(TC+4*j+i)}, {f32(1/64)}, {v(ca)}")
            A(f"v_mul_f32 {v(TS+4*j+i)}, {f32(1/64)}, {v(sa)}")
    A(f"v_lshrrev_b32 {v(x0)}, 2, {v(n)}")
    A(f"v_lshlrev_b32 {v(x0)}, 4, {v(x0)}")
    A(f"v_and_b32 {v(x1)}, 3, {v(n)}")
    A(f"v_lshl_add_u32 {v(x0)}, {v(x1)}, 1, {v(x0)}")
    A(f"v_cvt_f32_u32 {v(x0)}, {v(x0)}")
    for jm in range(4):
        A(f"v_add_f32 {v(st)}, {f32(8*(jm&1)+(jm>>1))}, {v(x0)}")
        A(f"v_mul_f32 {v(st)}, {f32(1/64)}, {v(st)}")
        A(f"v_mul_f32 {v(base)}, {v(st)}, {v(gs)}")
        A(f"v_mul_f32 {v(base)}, 4.0, {v(base)}")
        for j in range(4):
            for i in range(4):
                A(f"v_fmamk_f32 {v(arg)}, {v(st)}, {f32(16*j+i)}, {v(base)}")
                sincos(arg, ca, sa)
                A(f"v_cvt_pk_f16_f32 {v(A2+16*jm+4*j+i)}, {v(ca)}, {v(sa)}")
    A(f"s_mov_b32 s{sK}, 0")
    A(f"s_mov_b32 s{sW0}, {W_OFF}")
    A(f"s_mov_b32 s{sY}, {Y_OFF}")
    A.label("L_Cloop")
    A(f"s_add_u32 s{sW1}, s{sW0}, {128 * WROW}")
    poll_flags(f"s{sK}", sCREP, T)
    stamp(0, f"s{sK}")
    A(f"buffer_load_dwordx4 {v(RAW,4)}, v2, {WS}, s{sW0} offen sc1")
    A(f"buffer_load_dwordx4 {v(RAW+4,4)}, v2, {WS}, s{sW1} offen sc1")
    A(f"buffer_load_dwordx4 {v(RAW+8,4)}, v3, {WS}, s{sW0} offen sc1")
    A(f"buffer_load_dwordx4 {v(RAW+12,4)}, v3, {WS}, s{sW1} offen sc1")
    for j in range(4):
        A(f"s_waitcnt vmcnt({3-j})")
        A(f"ds_write_b128 v6, {v(RAW+4*j,4)} offset:{(j>>1)*4096 + (j&1)*2048}")
    A("s_waitcnt lgkmcnt(0)")
    A("s_barrier")
    stamp(1, f"s{sK}")
    for j in range(4):
        A(f"ds_read_b128 {v(DT+8*j,4)}, v7 offset:{256*j}")
        A(f"ds_read_b128 {v(DT+8*j+4,4)}, v7 offset:{4096+256*j}")
    for j in range(4):
        A(f"s_waitcnt lgkmcnt({7-2*j})")
        A(f"v_mfma_f32_16x16x32_f16 {v(AR+4*j,4)}, {v(DT+8*j,4)}, {v(B1,4)}, 0")
        A(f"v_mfma_f32_16x16x32_f16 {v(AI+4*j,4)}, {v(DT+8*j,4)}, {v(B1+4,4)}, 0")
        A(f"s_waitcnt lgkmcnt({6-2*j})")
        A(f"v_mfma_f32_16x16x32_f16 {v(AR+4*j,4)}, {v(DT+8*j+4,4)}, {v(B1+8,4)}, {v(AR+4*j,4)}")
        A(f"v_mfma_f32_16x16x32_f16 {v(AI+4*j,4)}, {v(DT+8*j+4,4)}, {v(B1+12,4)}, {v(AI+4*j,4)}")
    for j in range(4):
        for i in (4 * j, 4 * j + 2):
            pr, pi = RAW + (i % 4) * 2, RAW + (i % 4) * 2 + 2
            A(f"v_pk_mul_f32 {v(pr,2)}, {v(AR+i,2)}, {v(TC+i,2)}")
            A(f"v_pk_mul_f32 {v(pi,2)}, {v(AI+i,2)}, {v(TC+i,2)}")
            A(f"v_pk_fma_f32 {v(pr,2)}, {v(AI+i,2)}, {v(TS+i,2)}, {v(pr,2)}")
            A(f"v_pk_fma_f32 {v(pi,2)}, {v(AR+i,2)}, {v(TS+i,2)}, {v(pi,2)} neg_lo:[1,0,0] neg_hi:[1,0,0]")
            A(f"v_cvt_pk_f16_f32 {v(P+i)}, {v(pr)}, {v(pi)}")
            A(f"v_cvt_pk_f16_f32 {v(P+i+1)}, {v(pr+1)}, {v(pi+1)}")
        for jm in range(4):
            c = "0" if j == 0 else v(AC + 4 * jm, 4)
            A(f"v_mfma_f32_16x16x32_f16 {v(AC+4*jm,4)}, {v(A2+16*jm+4*j,4)}, {v(P+4*j,4)}, {c}")
    for k in range(8):
        A(f"v_cvt_pk_f16_f32 {v(O+k)}, {v(AC+2*k)}, {v(AC+2*k+1)}")
    A(f"buffer_store_dwordx4 {v(O,4)}, v8, {WS}, s{sY} offen sc1")
    A(f"buffer_store_dwordx4 {v(O+4,4)}, v8, {WS}, s{sY} offen offset:512 sc1")
    Lm = A.newlabel("Lym")
    A(f"s_bitcmp1_b32 s{WV}, 0")
    A(f"s_cbranch_scc1 {Lm}")
    for gq in range(4):
        A(f"v_readlane_b32 s{64+gq}, {v(O)}, {16*((gq+1)%4)}")
    for gq in range(4):
        A(f"v_writelane_b32 {v(P+4)}, s{64+gq}, {16*gq}")
    for k in range(3):
        A(f"v_alignbit_b32 {v(P+k)}, {v(O+k+1)}, {v(O+k)}, 16")
    A(f"v_alignbit_b32 {v(P+3)}, {v(P+4)}, {v(O+3)}, 16")
    set_exec(0x0001000100010001)
    A(f"buffer_store_dwordx4 {v(P,4)}, v9, {WS}, s{sY} offen sc1")
    A("s_mov_b64 exec, -1")
    A.label(Lm)
    stamp(2, f"s{sK}")
    A(f"s_add_u32 s{sK}, s{sK}, 1")
    signal(f"s{sK}", sCME, "s29", T)
    stamp(3, f"s{sK}")
    A(f"s_add_u32 s{sK}, s{sK}, 1")
    A(f"s_add_u32 s{sW0}, s{sW0}, {W_SZ}")
    A(f"s_add_u32 s{sY}, s{sY}, {Y_SZ}")
    A(f"s_cmp_lt_u32 s{sK}, 4")
    A("s_cbranch_scc1 L_Cloop")
    A("s_endpgm")

SORT8 = [(0, 1), (2, 3), (4, 5), (6, 7), (0, 2), (1, 3), (4, 6), (5, 7), (1, 2), (5, 6), (0, 4), (3, 7),
         (1, 5), (2, 6), (1, 4), (3, 6), (2, 4), (3, 5), (3, 4)]

def topk_setup(CODE, vG, vLW, vLR, LDS0):
    A(f"v_lshrrev_b32 {v(CODE)}, 6, v0")
    A(f"v_lshlrev_b32 {v(CODE)}, 9, {v(CODE)}")
    A(f"v_add_u32 {v(CODE)}, {v(CODE)}, v1")
    A(f"v_sub_u32 {v(CODE)}, 2047, {v(CODE)}")
    for i in range(1, 8):
        A(f"v_subrev_u32 {v(CODE+i)}, {64*i}, {v(CODE)}")
    A(f"v_lshlrev_b32 {v(vG)}, 4, v0")
    A(f"v_lshrrev_b32 {v(vLW)}, 4, v0")
    A(f"v_lshlrev_b32 {v(vLW)}, 5, {v(vLW)}")
    A(f"v_add_u32 {v(vLW)}, {LDS0}, {v(vLW)}")
    A(f"v_and_b32 {v(vLR)}, 15, v1")
    A(f"v_lshlrev_b32 {v(vLR)}, 5, {v(vLR)}")
    A(f"v_add_u32 {v(vLR)}, {LDS0}, {v(vLR)}")

def topk(K, CODE, vG, vLW, vLR, sRG, sTAG, blk):
    G = K + 16
    for gate in (True, False):
        loop, done = A.newlabel("Lrg"), A.newlabel("Lrgd")
        A(f"s_mov_b32 s62, {SPIN}")
        if gate:
            set_exec(0xff << 56)
        A.label(loop)
        A(f"buffer_load_dwordx4 {v(G,4)}, {v(vG)}, {WS}, s{sRG} offen sc1")
        A("s_waitcnt vmcnt(0)")
        A(f"v_max3_u32 {v(K)}, {v(G)}, {v(G+1)}, {v(G+2)}")
        A(f"v_max_u32 {v(K)}, {v(K)}, {v(G+3)}")
        A(f"v_cmp_eq_u32 vcc, -1, {v(K)}")
        A(f"s_cbranch_vccz {done}")
        spin_tail(loop, 62, done, 2 if gate else 1)
        A.label(done)
        if gate:
            A("s_mov_b64 exec, -1")
    stamp(3, "s27")
    A("s_mov_b32 s63, 0xffff0000")
    cur = list(range(K, K + 8))
    for k in range(4):
        A(f"v_lshl_or_b32 {v(cur[2*k])}, {v(G+k)}, 16, {v(CODE+2*k)}")
        A(f"v_and_or_b32 {v(cur[2*k+1])}, {v(G+k)}, s63, {v(CODE+2*k+1)}")
    free = list(range(K + 8, K + 24))

    def ce(i, j, dst=None):
        if dst is None:
            t = free.pop(0)
            A(f"v_max_u32 {v(t)}, {v(cur[i])}, {v(cur[j])}")
            A(f"v_min_u32 {v(cur[j])}, {v(cur[i])}, {v(cur[j])}")
            free.append(cur[i])
            cur[i] = t
        else:
            A(f"v_max_u32 {v(dst+i)}, {v(cur[i])}, {v(cur[j])}")
            A(f"v_min_u32 {v(dst+j)}, {v(cur[i])}, {v(cur[j])}")

    for (i, j) in SORT8:
        ce(i, j)
    pats = ["quad_perm:[1,0,3,2]", "quad_perm:[2,3,0,1]", "row_half_mirror", "row_mirror"]
    for rnd in range(2):
        for li, pat in enumerate(pats):
            new = [free.pop(0) for _ in range(8)]
            for i in range(8):
                A(f"v_max_u32_dpp {v(new[i])}, {v(cur[7-i])}, {v(cur[i])} {pat} row_mask:0xf bank_mask:0xf")
            free.extend(cur)
            cur = new
            if rnd == 1 and li == 3:
                return cur
            for i in range(4):
                ce(i, i + 4)
            for i in (0, 1, 4, 5):
                ce(i, i + 2)
            if rnd == 0 and li == 3:
                for i in (0, 2, 4, 6):
                    ce(i, i + 1, dst=blk)
                A("s_mov_b32 exec_lo, 0x00010001")
                A("s_mov_b32 exec_hi, 0x00010001")
                A(f"ds_write_b128 {v(vLW)}, {v(blk,4)}")
                A(f"ds_write_b128 {v(vLW)}, {v(blk+4,4)} offset:16")
                A("s_mov_b64 exec, -1")
                A("s_waitcnt lgkmcnt(0)")
                A("s_barrier")
                A(f"ds_read_b128 {v(K,4)}, {v(vLR)}")
                A(f"ds_read_b128 {v(K+4,4)}, {v(vLR)} offset:16")
                A("s_waitcnt lgkmcnt(0)")
                cur = list(range(K, K + 8))
                free = list(range(K + 8, K + 24))
            else:
                for i in (0, 2, 4, 6):
                    ce(i, i + 1)

def load_weight_frags(srdn, voff_of, soff_of, nsteps, dstE, dstO, raw, stride=8, vfull=None):
    batch = 5
    for k0 in range(0, nsteps, batch):
        ks = list(range(k0, min(nsteps, k0 + batch)))
        for k in ks:
            for q in range(8):
                if vfull is not None and k == vfull:
                    d = raw + 8 * (k - k0) + q
                    A(f"v_add_u32 {v(d)}, {soff_of(k, q)}, {v(voff_of(k))}")
                    A(f"buffer_load_dword {v(d)}, {v(d)}, {srdn}, 0 offen")
                    continue
                A(f"s_mov_b32 s60, {soff_of(k, q)}")
                A(f"buffer_load_dword {v(raw + 8*(k-k0) + q)}, {v(voff_of(k))}, {srdn}, s60 offen")
        A("s_waitcnt vmcnt(0)")
        for k in ks:
            r = raw + 8 * (k - k0)
            for u in range(4):
                A(f"v_perm_b32 {v(dstE + stride*k + u)}, {v(r+2*u+1)}, {v(r+2*u)}, s58")
                A(f"v_perm_b32 {v(dstO + stride*k + u)}, {v(r+2*u+1)}, {v(r+2*u)}, s59")

def roleFa():
    A.label("L_roleFa")
    GW, UW, RAW, AFR, ACC, K, CODE = 16, 56, 96, 136, 156, 176, 200
    vG, vLW, vLR, vW1, vW2, vLP1, vLP2, vPW, vPR, vH = 2, 3, 4, 5, 6, 7, 8, 9, 10, 11
    sKAP, sRG, sTAG, sT, sH, sL = 22, 23, 24, 25, 26, 27
    T = 208
    srd(8, 46, 2211840)
    srd(12, 48, 2211840)
    pretouch(T + 4)
    A(f"s_sub_u32 s{sKAP}, s2, {FA0}")
    A("s_mov_b32 s58, 0x05040100")
    A("s_mov_b32 s59, 0x07060302")
    n, g = T, T + 1
    A(f"v_and_b32 {v(n)}, 15, v1")
    A(f"v_lshrrev_b32 {v(g)}, 4, v1")
    A(f"s_lshr_b32 s60, s{WV}, 1")
    A(f"s_mul_i32 s60, s60, 320")
    A(f"s_and_b32 s61, s{WV}, 1")
    A(f"s_lshl_b32 s61, s61, 4")
    A(f"s_add_u32 s60, s60, s61")
    A(f"s_lshl_b32 s61, s{sKAP}, 6")
    A(f"v_lshl_add_u32 {v(T+2)}, {v(n)}, 2, s61")
    A(f"v_add_u32 {v(vW1)}, s60, {v(g)}")
    A(f"v_mul_u32_u24 {v(vW1)}, 3456, {v(vW1)}")
    A(f"v_add_u32 {v(vW1)}, {v(vW1)}, {v(T+2)}")
    A(f"v_lshl_add_u32 {v(vW2)}, {v(g)}, 2, s60")
    A(f"v_mul_u32_u24 {v(vW2)}, 3456, {v(vW2)}")
    A(f"v_add_u32 {v(vW2)}, {v(vW2)}, {v(T+2)}")
    voff = lambda k: vW1 if k < 4 else vW2
    soff = lambda k, q: ((32 * q + 4 * k) if k < 4 else (256 + 32 * (q & 1) + (q >> 1))) * 3456
    load_weight_frags(SRD1, voff, soff, 5, GW, GW + 4, RAW)
    load_weight_frags(SRD2, voff, soff, 5, UW, UW + 4, RAW)
    topk_setup(CODE, vG, vLW, vLR, 8192)
    A(f"s_lshl_b32 s60, s{WV}, 4")
    A(f"v_add_lshl_u32 {v(vLP1)}, {v(g)}, s60, 4")
    A(f"s_lshl_b32 s60, s{WV}, 6")
    A(f"s_add_u32 s60, s60, 1024")
    A(f"v_lshl_add_u32 {v(vLP2)}, {v(g)}, 4, s60")
    A(f"s_lshl_b32 s60, s{WV}, 11")
    A(f"v_lshlrev_b32 {v(vPW)}, 9, {v(g)}")
    A(f"v_lshl_add_u32 {v(vPW)}, {v(n)}, 3, {v(vPW)}")
    A(f"v_add_u32 {v(vPW)}, s60, {v(vPW)}")
    A(f"v_lshlrev_b32 {v(vPR)}, 2, v0")
    A(f"v_and_b32 {v(vH)}, 1, v0")
    A(f"v_mul_u32_u24 {v(vH)}, {HREP}, {v(vH)}")
    A(f"v_lshrrev_b32 {v(T+2)}, 1, v0")
    A(f"v_lshl_add_u32 {v(vH)}, {v(T+2)}, 2, {v(vH)}")
    A(f"s_lshl_b32 s{sH}, s{sKAP}, 9")
    A(f"s_add_u32 s{sH}, s{sH}, {H_OFF}")
    A(f"s_and_b32 s{sRG}, s2, {NRR - 1}")
    A(f"s_lshl_b32 s{sRG}, s{sRG}, 12")
    A(f"s_add_u32 s{sRG}, s{sRG}, {RG_OFF}")
    A(f"s_mov_b32 s{sT}, {T_OFF}")
    A(f"s_mov_b32 s28, {T_REC}")
    for (r, val) in ((30, 0xAAAAAAAA), (32, 0xCCCCCCCC), (34, 0xF0F0F0F0)):
        A(f"s_mov_b32 s{r}, 0x{val:x}")
        A(f"s_mov_b32 s{r+1}, 0x{val:x}")
    get_nonce()
    A(f"s_add_u32 s{sTAG}, s{NONCE}, 5")
    A(f"s_mov_b32 s{sL}, 0")
    A(f"s_and_b32 s29, s2, {NREP - 1}")
    A(f"s_lshl_b32 s29, s29, 7")
    poll_flags(1, 29, T, 8)
    A.label("L_FaLoop")
    c = topk(K, CODE, vG, vLW, vLR, sRG, sTAG, T)
    stamp(4, "s27")
    for i in range(4):
        A(f"v_cndmask_b32 {v(T+i)}, {v(c[2*i])}, {v(c[2*i+1])}, s[30:31]")
    A(f"v_cndmask_b32 {v(T)}, {v(T)}, {v(T+1)}, s[32:33]")
    A(f"v_cndmask_b32 {v(T+2)}, {v(T+2)}, {v(T+3)}, s[32:33]")
    A(f"v_cndmask_b32 {v(T)}, {v(T)}, {v(T+2)}, s[34:35]")
    A(f"v_and_b32 {v(T)}, 0x7ff, {v(T)}")
    A(f"v_sub_u32 {v(T)}, 2047, {v(T)}")
    A(f"v_mad_u32_u24 {v(T+1)}, {v(T)}, s28, {v(vLP1)}")
    A(f"v_mad_u32_u24 {v(T+2)}, {v(T)}, s28, {v(vLP2)}")
    for ks in range(4):
        A(f"buffer_load_dwordx4 {v(AFR+4*ks,4)}, {v(T+1)}, {WS}, s{sT} offen offset:{64*ks} sc1")
    A(f"buffer_load_dwordx4 {v(AFR+16,4)}, {v(T+2)}, {WS}, s{sT} offen sc1")
    for ks in range(5):
        A(f"s_waitcnt vmcnt({4-ks})")
        for a_, wb in enumerate((GW, GW + 4, UW, UW + 4)):
            cc = "0" if ks == 0 else v(ACC + 4 * a_, 4)
            A(f"v_mfma_f32_16x16x32_bf16 {v(ACC+4*a_,4)}, {v(AFR+4*ks,4)}, {v(wb+8*ks,4)}, {cc}")
    stamp(5, "s27")
    set_exec(0xffffffff)
    for mat in range(2):
        for r in range(4):
            o = mat * 256 + r * 32
            if o + 1 <= 255:
                A(f"ds_write2_b32 {v(vPW)}, {v(ACC+8*mat+r)}, {v(ACC+8*mat+4+r)} offset0:{o} offset1:{o+1}")
            else:
                A(f"ds_write_b32 {v(vPW)}, {v(ACC+8*mat+r)} offset:{4*o}")
                A(f"ds_write_b32 {v(vPW)}, {v(ACC+8*mat+4+r)} offset:{4*o+4}")
    A("s_mov_b64 exec, -1")
    A("s_waitcnt lgkmcnt(0)")
    A("s_barrier")
    for w in range(4):
        A(f"ds_read2st64_b32 {v(T+2*w,2)}, {v(vPR)} offset0:{8*w} offset1:{8*w+4}")
    A("s_waitcnt lgkmcnt(2)")
    A(f"v_pk_add_f32 {v(T,2)}, {v(T,2)}, {v(T+2,2)}")
    A("s_waitcnt lgkmcnt(0)")
    A(f"v_pk_add_f32 {v(T+4,2)}, {v(T+4,2)}, {v(T+6,2)}")
    A(f"v_pk_add_f32 {v(T,2)}, {v(T,2)}, {v(T+4,2)}")
    rnd_pair(T, T + 1, T + 2)
    A(f"v_mul_f32 {v(T+2)}, {f32(-1.4426950408889634)}, {v(T)}")
    A(f"v_exp_f32 {v(T+2)}, {v(T+2)}")
    A(f"v_add_f32 {v(T+2)}, 1.0, {v(T+2)}")
    A(f"v_rcp_f32 {v(T+2)}, {v(T+2)}")
    A(f"v_mul_f32 {v(T)}, {v(T)}, {v(T+2)}")
    A(f"v_cvt_pk_bf16_f32 {v(T)}, {v(T)}, {v(T)}")
    A(f"v_and_b32 {v(T)}, 0xffff0000, {v(T)}")
    A(f"v_mul_f32 {v(T)}, {v(T)}, {v(T+1)}")
    A(f"v_mov_b32_dpp {v(T+1)}, {v(T)} quad_perm:[1,0,3,2] row_mask:0xf bank_mask:0xf")
    A(f"v_cndmask_b32 {v(T+2)}, {v(T)}, {v(T+1)}, s[30:31]")
    A(f"v_cndmask_b32 {v(T+3)}, {v(T+1)}, {v(T)}, s[30:31]")
    A(f"v_cvt_pk_bf16_f32 {v(T)}, {v(T+2)}, {v(T+3)}")
    A(f"v_min_u32 {v(T)}, -2, {v(T)}")
    A(f"buffer_store_dword {v(T)}, {v(vH)}, {WS}, s{sH} offen sc1")
    stamp(6, "s27")
    A(f"s_add_u32 s{sH}, s{sH}, {2 * HREP}")
    A(f"s_add_u32 s{sRG}, s{sRG}, {NRR * RG_REP}")
    A(f"s_add_u32 s{sT}, s{sT}, {T_SZ}")
    A(f"s_add_u32 s{sTAG}, s{sTAG}, 1")
    A(f"s_add_u32 s{sL}, s{sL}, 1")
    A(f"s_cmp_lt_u32 s{sL}, 2")
    A("s_cbranch_scc1 L_FaLoop")
    A("s_endpgm")

def roleFb():
    A.label("L_roleFb")
    DW, HF, ACC, K, CODE, T = 16, 128, 184, 192, 216, 224
    RAW = 128
    vG, vLW, vLR, vW1, vHF, vPW, vPR, vE, vX2, vO = 2, 3, 4, 5, 6, 7, 8, 9, 10, 11
    sB, sRG, sTAG, sT, sH, sL, sREP2, sES, sEC = 22, 23, 24, 25, 26, 27, 29, 30, 31
    srd(8, 50, 2211840)
    srd(12, 52, 2621440)
    pretouch(T + 4, SRD2)
    A(f"s_sub_u32 s{sB}, s2, {FB0}")
    A("s_mov_b32 s58, 0x05040100")
    A("s_mov_b32 s59, 0x07060302")
    n, g = T, T + 1
    A(f"v_and_b32 {v(n)}, 15, v1")
    A(f"v_lshrrev_b32 {v(g)}, 4, v1")
    A(f"s_lshl_b32 s60, s{WV}, 5")
    A(f"v_lshl_add_u32 {v(vW1)}, {v(g)}, 3, s60")
    A(f"v_mul_u32_u24 {v(vW1)}, 1280, {v(vW1)}")
    A(f"s_lshl_b32 s61, s{sB}, 6")
    A(f"v_lshl_add_u32 {v(T+2)}, {v(n)}, 2, s61")
    A(f"v_add_u32 {v(vW1)}, {v(vW1)}, {v(T+2)}")
    load_weight_frags(SRD1, lambda k: vW1, lambda k, q: (128 * k + q) * 1280, 14, DW, DW + 4, RAW, vfull=13)
    topk_setup(CODE, vG, vLW, vLR, 8192)
    A(f"v_and_b32 {v(vHF)}, 7, v1")
    A(f"v_lshlrev_b32 {v(vHF)}, 6, {v(vHF)}")
    A(f"v_lshl_add_u32 {v(vHF)}, {v(g)}, 4, {v(vHF)}")
    A(f"s_lshl_b32 s60, s{WV}, 9")
    A(f"v_add_u32 {v(vHF)}, s60, {v(vHF)}")
    A(f"s_and_b32 s{sH}, s{sB}, 1")
    A(f"s_mul_i32 s{sH}, s{sH}, {HREP}")
    A(f"s_add_u32 s{sH}, s{sH}, {H_OFF}")
    A(f"s_lshl_b32 s60, s{WV}, 10")
    A(f"v_lshlrev_b32 {v(vPW)}, 9, {v(g)}")
    A(f"v_lshl_add_u32 {v(vPW)}, {v(n)}, 3, {v(vPW)}")
    A(f"v_add_u32 {v(vPW)}, s60, {v(vPW)}")
    A(f"v_lshlrev_b32 {v(vPR)}, 2, v0")
    A(f"s_cmp_ge_u32 s{sB}, 10")
    A(f"s_cselect_b32 s60, 1, 0")
    A(f"s_mul_i32 s61, s60, 10")
    A(f"s_sub_u32 s61, s{sB}, s61")
    A(f"s_lshl_b32 s62, s60, 9")
    A(f"s_lshl_b32 s63, s61, 1")
    A(f"s_add_u32 s62, s62, s63")
    A(f"s_lshl_b32 s64, s60, 7")
    A(f"s_add_u32 s64, s64, s63")
    A(f"s_add_u32 s64, s64, {1024 - 16}")
    A(f"s_cmp_lt_u32 s61, 8")
    A(f"s_cselect_b32 s{sEC}, s62, s64")
    A(f"s_cselect_b32 s{sES}, 16, 4")
    A(f"v_and_b32 {v(T+2)}, 31, v1")
    A(f"v_mul_u32_u24 {v(vE)}, s{sES}, {v(T+2)}")
    A(f"v_add_u32 {v(vE)}, s{sEC}, {v(vE)}")
    A(f"s_lshl_b32 s60, s{sB}, 2")
    A(f"s_add_u32 s60, s60, s{WV}")
    A(f"s_lshl_b32 s60, s60, 8")
    A(f"v_lshl_add_u32 {v(vX2)}, {v(T+2)}, 3, s60")
    A(f"v_lshrrev_b32 {v(T+3)}, 5, v1")
    A(f"v_lshl_add_u32 {v(vX2)}, {v(T+3)}, 2, {v(vX2)}")
    A(f"s_lshl_b32 s60, s{sB}, 6")
    A(f"v_lshl_add_u32 {v(vO)}, {v(T+2)}, 1, s60")
    A(f"s_and_b32 s{sRG}, s2, {NRR - 1}")
    A(f"s_lshl_b32 s{sRG}, s{sRG}, 12")
    A(f"s_add_u32 s{sRG}, s{sRG}, {RG_OFF}")
    A(f"s_and_b32 s{sREP2}, s2, {NREP - 1}")
    A(f"s_lshl_b32 s{sREP2}, s{sREP2}, 7")
    A(f"s_mov_b32 s{sT}, {T_OFF}")
    A(f"s_mov_b32 s28, {T_REC}")
    get_nonce()
    A(f"s_add_u32 s{sTAG}, s{NONCE}, 5")
    A(f"s_mov_b32 s{sL}, 0")
    poll_flags(1, sREP2, T, 8)
    A.label("L_FbLoop")
    c = topk(K, CODE, vG, vLW, vLR, sRG, sTAG, T)
    stamp(4, "s27")
    for j in range(8):
        A(f"v_readfirstlane_b32 s{80+j}, {v(c[j])}")
    A("s_mov_b32 s70, s80")
    A("s_mov_b32 s71, s81")
    for w in range(1, 4):
        A(f"s_cmp_eq_u32 s{WV}, {w}")
        A(f"s_cselect_b32 s70, s{80+2*w}, s70")
        A(f"s_cselect_b32 s71, s{81+2*w}, s71")
    KEY, ROW, XV, XNV, SG, ST = T, T + 1, T + 2, T + 3, T + 4, T + 8
    A(f"v_mov_b32 {v(KEY)}, s71")
    A(f"v_mov_b32 {v(ROW)}, s70")
    A(f"v_cmp_gt_u32 vcc, 32, v1")
    A(f"v_cndmask_b32 {v(KEY)}, {v(KEY)}, {v(ROW)}, vcc")
    A(f"v_and_b32 {v(ROW)}, 0x7ff, {v(KEY)}")
    A(f"v_sub_u32 {v(ROW)}, 2047, {v(ROW)}")
    A(f"v_mad_u32_u24 {v(T+5)}, {v(ROW)}, s28, {v(vE)}")
    A(f"v_mov_b32 {v(XV)}, 0")
    A(f"v_mov_b32 {v(XNV)}, 0")
    A(f"buffer_load_short_d16_hi {v(XNV)}, {v(T+5)}, {WS}, s{sT} offen sc1")
    A(f"v_ashrrev_i32 {v(SG)}, 31, {v(KEY)}")
    A(f"v_not_b32 {v(SG)}, {v(SG)}")
    A(f"v_or_b32 {v(SG)}, 0x80000000, {v(SG)}")
    A(f"v_xor_b32 {v(SG)}, {v(SG)}, {v(KEY)}")
    A(f"v_and_b32 {v(SG)}, 0xffff0000, {v(SG)}")
    A(f"v_mul_f32 {v(SG)}, {f32(-1.4426950408889634)}, {v(SG)}")
    A(f"v_exp_f32 {v(SG)}, {v(SG)}")
    A(f"v_add_f32 {v(SG)}, 1.0, {v(SG)}")
    A(f"v_rcp_f32 {v(SG)}, {v(SG)}")
    A(f"v_cvt_pk_bf16_f32 {v(SG)}, {v(SG)}, {v(SG)}")
    A(f"v_and_b32 {v(SG)}, 0xffff0000, {v(SG)}")
    L1, L1e = A.newlabel("Lfb"), A.newlabel("Lfb")
    A(f"s_cmp_lg_u32 s{sL}, 0")
    A(f"s_cbranch_scc1 {L1}")
    Ls = A.newlabel("Lfb")
    A(f"s_or_b32 s60, s{sB}, s{WV}")
    A(f"s_cmp_lg_u32 s60, 0")
    A(f"s_cbranch_scc1 {Ls}")
    A(f"v_mov_b32 {v(T+6)}, s80")
    for j in range(1, 8):
        A(f"v_writelane_b32 {v(T+6)}, s{80+j}, {j}")
    A(f"v_and_b32 {v(T+6)}, 0x7ff, {v(T+6)}")
    A(f"v_sub_u32 {v(T+6)}, 2047, {v(T+6)}")
    A(f"v_lshlrev_b32 {v(T+7)}, 2, v1")
    A("s_mov_b64 exec, 0xff")
    for r in range(NRX):
        A(f"s_mov_b32 s60, {X2_OFF + r * X2REP + SEL_OFF}")
        A(f"buffer_store_dword {v(T+6)}, {v(T+7)}, {WS}, s60 offen sc1")
    A("s_mov_b64 exec, -1")
    A.label(Ls)
    loop, done = A.newlabel("Lst2"), A.newlabel("Lst2d")
    A(f"v_mul_u32_u24 {v(T+6)}, s28, {v(ROW)}")
    A(f"s_add_u32 s61, s{NONCE}, 7")
    A(f"s_mov_b32 s62, {SPIN}")
    A.label(loop)
    A(f"buffer_load_dwordx4 {v(ST,4)}, {v(T+6)}, {WS}, s{sT} offen offset:2560 sc1")
    A("s_waitcnt vmcnt(0)")
    A(f"v_cmp_ne_u32 vcc, s61, {v(ST+2)}")
    A(f"s_cbranch_vccz {done}")
    spin_tail(loop, 62, done, 2)
    A.label(done)
    A(f"s_branch {L1e}")
    A.label(L1)
    poll_flags(4, sREP2, T + 12, 2)
    A.label(L1e)
    A(f"buffer_load_short_d16_hi {v(XV)}, {v(T+5)}, {WS}, s{sT} offen offset:1280 sc1")
    loop, done = A.newlabel("Lh"), A.newlabel("Lhd")
    A(f"s_cmp_lt_u32 s{WV}, 2")
    A(f"s_cselect_b32 s63, 2048, 0")
    A(f"s_add_u32 s63, s63, {12 * 2048}")
    A(f"s_add_u32 s63, s63, s{sH}")
    A(f"s_mov_b32 s62, {SPIN}")
    A.label(loop)
    for k in range(14):
        if k == 13:
            A(f"buffer_load_dwordx4 {v(HF+4*k,4)}, {v(vHF)}, {WS}, s63 offen sc1")
        else:
            if k % 2 == 0:
                A(f"s_add_u32 s60, s{sH}, {2048 * k}")
            A(f"buffer_load_dwordx4 {v(HF+4*k,4)}, {v(vHF)}, {WS}, s60 offen offset:{2048*(k%2)} sc1")
    CK = T + 6
    for k in range(14):
        A(f"s_waitcnt vmcnt({13-k})")
        for par in range(2):
            cc = "0" if k == 0 else v(ACC + 4 * par, 4)
            A(f"v_mfma_f32_16x16x32_bf16 {v(ACC+4*par,4)}, {v(HF+4*k,4)}, {v(DW+8*k+4*par,4)}, {cc}")
        if k == 0:
            A(f"v_max3_u32 {v(CK)}, {v(HF)}, {v(HF+1)}, {v(HF+2)}")
            A(f"v_max_u32 {v(CK)}, {v(CK)}, {v(HF+3)}")
        else:
            A(f"v_max3_u32 {v(CK)}, {v(CK)}, {v(HF+4*k)}, {v(HF+4*k+1)}")
            A(f"v_max3_u32 {v(CK)}, {v(CK)}, {v(HF+4*k+2)}, {v(HF+4*k+3)}")
    A(f"v_cmp_eq_u32 vcc, -1, {v(CK)}")
    A(f"s_cbranch_vccz {done}")
    spin_tail(loop, 62, done, 2)
    A.label(done)
    stamp(5, "s27")
    set_exec(0xffffffff)
    for r in range(4):
        A(f"ds_write2_b32 {v(vPW)}, {v(ACC+r)}, {v(ACC+4+r)} offset0:{32*r} offset1:{32*r+1}")
    A("s_mov_b64 exec, -1")
    A("s_waitcnt lgkmcnt(0)")
    A("s_barrier")
    Yv = T + 12
    A(f"ds_read2st64_b32 {v(Yv,2)}, {v(vPR)} offset0:0 offset1:4")
    A(f"ds_read2st64_b32 {v(Yv+2,2)}, {v(vPR)} offset0:8 offset1:12")
    A("s_waitcnt lgkmcnt(0)")
    A(f"v_pk_add_f32 {v(Yv,2)}, {v(Yv,2)}, {v(Yv+2,2)}")
    A(f"v_add_f32 {v(Yv)}, {v(Yv)}, {v(Yv+1)}")
    def rb(r):
        A(f"v_cvt_pk_bf16_f32 {v(r)}, {v(r)}, {v(r)}")
        A(f"v_and_b32 {v(r)}, 0xffff0000, {v(r)}")
    rb(Yv)
    A(f"v_mul_f32 {v(Yv)}, {v(Yv)}, {v(SG)}")
    rb(Yv)
    A(f"v_add_f32 {v(Yv)}, {v(Yv)}, {v(XNV)}")
    rb(Yv)
    A(f"v_add_f32 {v(Yv)}, {v(Yv)}, {v(XV)}")
    L2 = A.newlabel("Lfb")
    A(f"s_cmp_lg_u32 s{sL}, 0")
    A(f"s_cbranch_scc1 {L2}")
    A(f"v_add_f32 {v(Yv+1)}, {v(XV)}, {v(XNV)}")
    rb(Yv + 1)
    A(f"v_sub_f32 {v(Yv+1)}, {v(Yv+1)}, {v(ST)}")
    rb(Yv + 1)
    A(f"v_mul_f32 {v(Yv+1)}, {v(Yv+1)}, {v(ST+1)}")
    A(f"v_permlane32_swap_b32 {v(Yv)}, {v(Yv+1)}")
    A(f"v_cvt_pk_bf16_f32 {v(Yv)}, {v(Yv)}, {v(Yv+1)}")
    A(f"v_min_u32 {v(Yv)}, -2, {v(Yv)}")
    for r in range(NRX):
        A(f"s_mov_b32 s60, {X2_OFF + r * X2REP}")
        A(f"buffer_store_dword {v(Yv)}, {v(vX2)}, {WS}, s60 offen sc1")
    stamp(6, "s27")
    A(f"s_add_u32 s{sH}, s{sH}, {2 * HREP}")
    A(f"s_add_u32 s{sRG}, s{sRG}, {NRR * RG_REP}")
    A(f"s_add_u32 s{sT}, s{sT}, {T_SZ}")
    A(f"s_add_u32 s{sTAG}, s{sTAG}, 1")
    A(f"s_mov_b32 s{sL}, 1")
    A("s_branch L_FbLoop")
    A.label(L2)
    A(f"v_cvt_pk_bf16_f32 {v(Yv)}, {v(Yv)}, {v(Yv)}")
    A(f"s_movk_i32 s60, 1280")
    A(f"v_mad_u32_u24 {v(Yv+1)}, {v(ROW)}, s60, {v(vO)}")
    A(f"buffer_store_short {v(Yv)}, {v(Yv+1)}, {SRD2}, 0 offen sc1")
    stamp(7, "s27")
    A(f"s_or_b32 s60, s{sB}, s{WV}")
    A(f"s_cmp_lg_u32 s60, 0")
    A("s_cbranch_scc1 L_end")
    A(f"v_mov_b32 {v(T)}, s{NONCE}")
    A(f"v_mov_b32 {v(T+1)}, 0")
    A("s_mov_b64 exec, 1")
    A(f"buffer_store_dword {v(T)}, {v(T+1)}, {WS}, 0 offen sc1")
    A.label("L_end")
    A("s_endpgm")

hdr = open("cdna_kernels/%s.s.ref" % NAME).read().split("\n")
head = [l for l in hdr if l.startswith(";") and "@launch" not in l and "Override" not in l and "grid=ceil" not in l]
out = "\n".join(head) + "\n"
out += f"; @launch grid=({NWG},1,1) block=(256,1,1) lds={LDS_BYTES}\n"
out += '.amdgcn_target "amdgcn-amd-amdhsa--gfx950"\n.text\n'
out += f".globl {NAME}_kernel\n.p2align 8\n.type {NAME}_kernel,@function\n{NAME}_kernel:\n"
prologue(); roleR(); roleC(); roleFa(); roleFb()
out += A.text()
out += f""".section .rodata,"a"
.p2align 6
.amdhsa_kernel {NAME}_kernel
  .amdhsa_next_free_vgpr 256
  .amdhsa_next_free_sgpr 102
  .amdhsa_accum_offset 256
  .amdhsa_group_segment_fixed_size 0
  .amdhsa_kernarg_size 104
  .amdhsa_user_sgpr_count 2
  .amdhsa_user_sgpr_kernarg_segment_ptr 1
  .amdhsa_system_sgpr_workgroup_id_x 1
  .amdhsa_float_denorm_mode_32 3
.end_amdhsa_kernel
"""
dst = [a for a in sys.argv[1:] if not a.startswith("--")]
open(dst[0] if dst else "cdna_kernels/%s.s" % NAME, "w").write(out)
print("instructions:", A.ninstr, file=sys.stderr)
```

```python
import sys, struct
from asmb import Asm

NAME = "interleave_layers__spectral_fnet__moe_arch_mod__prompt"
def opt(name, default):
    for a in sys.argv:
        if a.startswith("--%s=" % name):
            return int(a.split("=")[1])
    return default
STAMPS = "--stamps" in sys.argv
DSTAMPS = "--dstamps" in sys.argv
EXACT = opt("exact", 0)
GATE = opt("gate", 0)
NR, NC, NFA, NFB = 256, 161, 54, 20
C0, FA0, FB0, NWG = 256, 417, 471, 491
FL_OFF = 0x1000; NREP = opt("nrep", 32)
RESET_OFF = 0x70000
H_OFF = 0x70000; HREP = 0x7000
X2_OFF = 0x90000; X2REP = 0x5100; NRX = opt("nrx", 1); SEL_OFF = 0x5000
RG_OFF = 0xC0000; NRR = opt("nrr", 2); RG_REP = 4096
CNT_OFF = 0xF8000
WROW = 10368
W_OFF = 0x100000; W_SZ = 0x290000
Y_OFF = 0x640000; Y_SZ = 0x160000; YM_OFF = 322 * 4096
T_OFF = 0x900000; T_REC = 2688; T_SZ = 2048 * T_REC
ST_OFF = 0x1400000
WS_BYTES = 0x1500000
NONCE_C = 0x9E3779B9
SPIN = 40000
LDS_BYTES = 49152
PSLEEP = opt("psleep", 1)

def f32(x):
    return "0x%08x" % struct.unpack("<I", struct.pack("<f", x))[0]
def v(i, n=1):
    return "v%d" % i if n == 1 else "v[%d:%d]" % (i, i + n - 1)
def s(i, n=1):
    return "s%d" % i if n == 1 else "s[%d:%d]" % (i, i + n - 1)

A = Asm()
WS = "s[4:7]"; SRD1 = "s[8:11]"; SRD2 = "s[12:15]"; SRD3 = "s[16:19]"
NONCE = 20; WV = 21

def srd(base, ptr, nbytes):
    A(f"s_mov_b32 s{base}, s{ptr}")
    A(f"s_and_b32 s{base+1}, s{ptr+1}, 0xffff")
    A(f"s_mov_b32 s{base+2}, {nbytes}")
    A(f"s_mov_b32 s{base+3}, 0x00020000")

def set_exec(m):
    A(f"s_mov_b32 exec_lo, 0x{m & 0xffffffff:x}")
    A(f"s_mov_b32 exec_hi, 0x{m >> 32:x}")

def stamp(idx, lay=None, dbg=None):
    if DSTAMPS and dbg is not None:
        L = A.newlabel("Lst")
        A(f"s_lshl_b32 s97, s{WV}, 16")
        A(f"s_or_b32 s97, s97, s2")
        if len(dbg) > 2:
            A(f"s_lshl_b32 s96, {lay}, 20")
            A(f"s_or_b32 s97, s97, s96")
        A(f"s_cmp_lg_u32 s97, {dbg[1] + ((dbg[2] << 20) if len(dbg) > 2 else 0)}")
        A(f"s_cbranch_scc1 {L}")
        A("s_memrealtime s[98:99]")
        A("s_waitcnt lgkmcnt(0)")
        A("v_mov_b32 v254, s98")
        A("v_mov_b32 v253, 0")
        A("s_mov_b64 exec, 1")
        A(f"buffer_store_dword v254, v253, s[92:95], 0 offen offset:{dbg[0] * 4}")
        A("s_mov_b64 exec, -1")
        A.label(L)
    if not STAMPS:
        return
    L = A.newlabel("Lst")
    A(f"s_cmp_lg_u32 s{WV}, 0")
    A(f"s_cbranch_scc1 {L}")
    A("s_memrealtime s[98:99]")
    A("s_memtime s[100:101]")
    A("s_waitcnt lgkmcnt(0)")
    A("v_mov_b32 v254, s98")
    A("v_mov_b32 v255, s100")
    A("v_mov_b32 v253, 0")
    A("s_lshl_b32 s97, s2, 9")
    A(f"s_add_u32 s97, s97, {ST_OFF + idx * 8}")
    if lay is not None:
        A(f"s_lshl_b32 s96, {lay}, 6")
        A("s_add_u32 s97, s97, s96")
    A("s_mov_b64 exec, 1")
    A(f"buffer_store_dwordx2 v[254:255], v253, {WS}, s97 offen")
    A("s_mov_b64 exec, -1")
    A.label(L)

def spin_tail(loop, cnt, sleep=1):
    if sleep:
        A(f"s_sleep {sleep}")
    A(f"s_sub_u32 s{cnt}, s{cnt}, 1")
    A(f"s_cmp_lg_u32 s{cnt}, 0")
    A(f"s_cbranch_scc1 {loop}")

def any_sentinel(regs, t, done):
    regs = list(regs)
    A(f"v_max3_u32 {v(t)}, {v(regs[0])}, {v(regs[1])}, {v(regs[2])}")
    k = 3
    while k + 1 < len(regs):
        A(f"v_max3_u32 {v(t)}, {v(t)}, {v(regs[k])}, {v(regs[k+1])}")
        k += 2
    if k < len(regs):
        A(f"v_max_u32 {v(t)}, {v(t)}, {v(regs[k])}")
    A(f"v_cmp_eq_u32 vcc, -1, {v(t)}")
    A(f"s_cbranch_vccz {done}")

def poll_flags(k, srep, t, sleep=None):
    loop, done = A.newlabel("Lpoll"), A.newlabel("Lpolld")
    A(f"s_cmp_lg_u32 s{WV}, 0")
    A(f"s_cbranch_scc1 {done}")
    if isinstance(k, int):
        A(f"s_add_u32 s60, s{srep}, {FL_OFF + k * NREP * 128}")
    else:
        A(f"s_mul_i32 s60, {k}, {NREP * 128}")
        A(f"s_add_u32 s60, s60, s{srep}")
        A(f"s_add_u32 s60, s60, {FL_OFF}")
    A(f"s_add_u32 s61, s{NONCE}, {k}")
    A(f"v_and_b32 {v(t+1)}, 15, v1")
    A(f"v_lshlrev_b32 {v(t+1)}, 2, {v(t+1)}")
    A(f"s_mov_b32 s62, {SPIN}")
    A.label(loop)
    A(f"buffer_load_dword {v(t)}, {v(t+1)}, {WS}, s60 offen sc1")
    A("s_waitcnt vmcnt(0)")
    A(f"v_cmp_ne_u32 vcc, s61, {v(t)}")
    A(f"s_cbranch_vccz {done}")
    spin_tail(loop, 62, PSLEEP if sleep is None else sleep)
    A.label(done)
    A("s_barrier")

def cnt_init(sshard, ks, t):
    for k in ks:
        A(f"s_add_u32 s60, s{sshard}, {16 * k}")
        A(f"s_lshl_b32 s60, s60, 7")
        A(f"s_add_u32 s60, s60, {CNT_OFF}")
        A(f"s_add_u32 s61, s{NONCE}, {k}")
        A(f"v_mov_b32 {v(t)}, 0")
        A(f"v_mov_b32 {v(t+1)}, s61")
        A(f"v_mov_b32 {v(t+2)}, 0")
        A("s_mov_b64 exec, 1")
        A(f"buffer_store_dwordx2 {v(t,2)}, {v(t+2)}, {WS}, s60 offen sc1")
        A("s_mov_b64 exec, -1")

def arrive_issue(k, sshard, t):
    L = A.newlabel("Larr")
    A(f"s_cmp_lg_u32 s{WV}, 0")
    A(f"s_cbranch_scc1 {L}")
    if isinstance(k, int):
        A(f"s_add_u32 s66, s{sshard}, {16 * k}")
    else:
        A(f"s_lshl_b32 s66, {k}, 4")
        A(f"s_add_u32 s66, s66, s{sshard}")
    A(f"s_lshl_b32 s66, s66, 7")
    A(f"s_add_u32 s66, s66, {CNT_OFF}")
    A(f"v_mov_b32 {v(t)}, 1")
    A(f"v_mov_b32 {v(t+1)}, 0")
    A(f"v_mov_b32 {v(t+2)}, 0")
    A("s_mov_b64 exec, 1")
    A(f"buffer_atomic_add_x2 {v(t,2)}, {v(t+2)}, {WS}, s66 offen sc0")
    A("s_mov_b64 exec, -1")
    A.label(L)

def arrive_finish(k, sshard, slast, t, younger):
    L, again, chk = A.newlabel("Lsig"), A.newlabel("Lsiga"), A.newlabel("Lsigc")
    A(f"s_cmp_lg_u32 s{WV}, 0")
    A(f"s_cbranch_scc1 {L}")
    if isinstance(k, int):
        A(f"s_lshl_b32 s67, s{sshard}, 2")
        A(f"s_add_u32 s67, s67, {FL_OFF + k * NREP * 128}")
    else:
        A(f"s_mul_i32 s67, {k}, {NREP * 128}")
        A(f"s_lshl_b32 s68, s{sshard}, 2")
        A(f"s_add_u32 s67, s67, s68")
        A(f"s_add_u32 s67, s67, {FL_OFF}")
    A(f"s_add_u32 s68, s{NONCE}, {k}")
    A(f"v_lshlrev_b32 {v(t+3)}, 7, v1")
    A(f"v_mov_b32 {v(t+4)}, s68")
    A(f"s_mov_b32 s69, {SPIN}")
    A(f"s_waitcnt vmcnt({younger})")
    A(f"s_branch {chk}")
    A.label(again)
    A(f"s_sub_u32 s69, s69, 1")
    A(f"s_cmp_eq_u32 s69, 0")
    A(f"s_cbranch_scc1 {L}")
    A(f"v_mov_b32 {v(t)}, 1")
    A(f"v_mov_b32 {v(t+1)}, 0")
    A(f"v_mov_b32 {v(t+2)}, 0")
    A("s_mov_b64 exec, 1")
    A(f"buffer_atomic_add_x2 {v(t,2)}, {v(t+2)}, {WS}, s66 offen sc0")
    A("s_mov_b64 exec, -1")
    A("s_waitcnt vmcnt(0)")
    A.label(chk)
    A(f"v_readfirstlane_b32 s65, {v(t+1)}")
    A(f"v_readfirstlane_b32 s64, {v(t)}")
    A(f"s_cmp_lg_u32 s65, s68")
    A(f"s_cbranch_scc1 {again}")
    A(f"s_cmp_lg_u32 s64, {slast}")
    A(f"s_cbranch_scc1 {L}")
    set_exec((1 << NREP) - 1)
    A(f"buffer_store_dword {v(t+4)}, {v(t+3)}, {WS}, s67 offen sc1")
    A("s_mov_b64 exec, -1")
    A.label(L)

def rnd_pair(a, b, t):
    A(f"v_cvt_pk_bf16_f32 {v(t)}, {v(a)}, {v(b)}")
    A(f"v_lshlrev_b32 {v(a)}, 16, {v(t)}")
    A(f"v_and_b32 {v(b)}, 0xffff0000, {v(t)}")

def sincos(arg, c, sn):
    A(f"v_cos_f32 {v(c)}, {v(arg)}")
    A(f"v_sin_f32 {v(sn)}, {v(arg)}")

def nonce_load(r):
    A(f"v_mov_b32 {v(r)}, 0")
    A(f"buffer_load_dword {v(r)}, {v(r)}, {WS}, 0 offen")

def nonce_take(r):
    A(f"v_readfirstlane_b32 s{NONCE}, {v(r)}")
    A(f"s_add_u32 s{NONCE}, s{NONCE}, 0x{NONCE_C:x}")

def prologue():
    A(f"s_cmp_ge_u32 s2, {NWG}")
    A("s_cbranch_scc1 L_end")
    A("s_load_dwordx2 s[40:41], s[0:1], 96")
    A("s_load_dwordx2 s[42:43], s[0:1], 0")
    A("s_load_dwordx4 s[44:47], s[0:1], 48")
    A("s_load_dwordx4 s[48:51], s[0:1], 64")
    A("s_load_dwordx4 s[52:55], s[0:1], 80")
    A("v_lshrrev_b32 v2, 6, v0")
    A("v_and_b32 v1, 63, v0")
    A(f"v_readfirstlane_b32 s{WV}, v2")
    A("s_waitcnt lgkmcnt(0)")
    srd(4, 40, WS_BYTES)
    if DSTAMPS:
        srd(92, 54, 256)
    stamp(31, dbg=(0, 0))
    A(f"s_cmp_lt_u32 s2, {C0}")
    A("s_cbranch_scc1 L_roleR")
    A(f"s_cmp_lt_u32 s2, {FA0}")
    A("s_cbranch_scc1 L_roleC")
    A(f"s_cmp_lt_u32 s2, {FB0}")
    A("s_cbranch_scc1 L_roleFa")
    A("s_branch L_roleFb")

B1R, B1I, TWC, TWS, B2R, B2I, WR, INV = 16, 28, 40, 56, 72, 88, 104, 114
X, XN, MM, RS = 116, 136, 156, 158
ACR, ACI, AF1, AF2, AC2R, AC2I = 160, 176, 192, 204, 220, 236
vX, vY0, vY1, vY2, vKX, vLC, vLYW, vLYR, vLWW, vLWR0, vWG, vTA = 2, 3, 4, 5, 6, 7, 8, 9, 10, 11, 14, 15
vTB, vWG1 = 252, 115
sRHO, sA, sS2, sRA, sME, sREP, sXO, sWB, sTB, sP, sS, sQ = 22, 23, 24, 25, 26, 27, 28, 29, 30, 32, 34, 36
sSEL = 80
s32f = 38
LDS_Y, LDS_W, LDS_NEW, LDS_KX, LDS_CONST, LDS_RG = 0, 10240, 21504, 31744, 24576, 44032

def reduce_tail(r):
    for k in (8, 4, 2, 1):
        A(f"v_add_f32_dpp {v(r)}, {v(r)}, {v(r)} row_ror:{k} row_mask:0xf bank_mask:0xf")

def ln_stats(xb, t):
    S_, Q_, D0, D1 = t, t + 2, t + 4, t + 6
    A(f"v_readfirstlane_b32 s{sP}, {v(xb)}")
    A(f"v_readfirstlane_b32 s{sP+1}, {v(xb+1)}")
    for i in range(10):
        D = S_ if i == 0 else (D0 if i % 2 else D1)
        A(f"v_pk_add_f32 {v(D,2)}, {v(xb+2*i,2)}, {s(sP,2)} neg_lo:[0,1] neg_hi:[0,1]")
        if i == 0:
            A(f"v_pk_mul_f32 {v(Q_,2)}, {v(D,2)}, {v(D,2)}")
        else:
            A(f"v_pk_add_f32 {v(S_,2)}, {v(S_,2)}, {v(D,2)}")
            A(f"v_pk_fma_f32 {v(Q_,2)}, {v(D,2)}, {v(D,2)}, {v(Q_,2)}")
    A(f"v_permlane32_swap_b32 {v(S_)}, {v(S_+1)}")
    A(f"v_permlane32_swap_b32 {v(Q_)}, {v(Q_+1)}")
    A(f"v_add_f32 {v(S_)}, {v(S_)}, {v(S_+1)}")
    A(f"v_add_f32 {v(Q_)}, {v(Q_)}, {v(Q_+1)}")
    A(f"v_permlane16_swap_b32 {v(S_)}, {v(Q_)}")
    A(f"v_add_f32 {v(S_)}, {v(S_)}, {v(Q_)}")
    reduce_tail(S_)
    A(f"v_readlane_b32 s{sS}, {v(S_)}, 0")
    A(f"v_readlane_b32 s{sS+1}, {v(S_)}, 32")
    A(f"v_readlane_b32 s{sQ}, {v(S_)}, 16")
    A(f"v_readlane_b32 s{sQ+1}, {v(S_)}, 48")
    A(f"v_pk_mul_f32 {v(MM,2)}, {s(sS,2)}, {v(INV,2)} op_sel_hi:[1,0]")
    A(f"v_pk_mul_f32 {v(RS,2)}, {s(sQ,2)}, {v(INV,2)} op_sel_hi:[1,0]")
    A(f"v_pk_fma_f32 {v(RS,2)}, {v(MM,2)}, {v(MM,2)}, {v(RS,2)} neg_lo:[1,0,0] neg_hi:[1,0,0]")
    A(f"v_pk_add_f32 {v(MM,2)}, {v(MM,2)}, {s(sP,2)}")
    A(f"v_max_f32 {v(RS)}, 0, {v(RS)}")
    A(f"v_max_f32 {v(RS+1)}, 0, {v(RS+1)}")
    rnd_pair(RS, RS + 1, D0)
    A(f"v_add_f32 {v(RS)}, {f32(1e-5)}, {v(RS)}")
    A(f"v_add_f32 {v(RS+1)}, {f32(1e-5)}, {v(RS+1)}")
    rnd_pair(RS, RS + 1, D0)
    A(f"v_sqrt_f32 {v(RS)}, {v(RS)}")
    A(f"v_sqrt_f32 {v(RS+1)}, {v(RS+1)}")
    rnd_pair(MM, MM + 1, D1)
    rnd_pair(RS, RS + 1, D0)
    A(f"v_rcp_f32 {v(RS)}, {v(RS)}")
    A(f"v_rcp_f32 {v(RS+1)}, {v(RS+1)}")

def ln_center_scale(xb, zb, t, exact=True):
    for i in range(10):
        A(f"v_pk_add_f32 {v(zb+2*i,2)}, {v(xb+2*i,2)}, {v(MM,2)} neg_lo:[0,1] neg_hi:[0,1]")
        if exact:
            rnd_pair(zb + 2 * i, zb + 2 * i + 1, t + (i % 4))
    for i in range(10):
        A(f"v_pk_mul_f32 {v(zb+2*i,2)}, {v(zb+2*i,2)}, {v(RS,2)}")

def pack_rows(zb, pa, pb):
    for u in range(5):
        A(f"v_cvt_pk_bf16_f32 {v(pa+u)}, {v(zb+4*u)}, {v(zb+4*u+2)}")
        A(f"v_cvt_pk_bf16_f32 {v(pb+u)}, {v(zb+4*u+1)}, {v(zb+4*u+3)}")

def unpack_rows(zb, pa, pb):
    for u in range(5):
        A(f"v_lshlrev_b32 {v(zb+4*u)}, 16, {v(pa+u)}")
        A(f"v_and_b32 {v(zb+4*u+2)}, 0xffff0000, {v(pa+u)}")
        A(f"v_lshlrev_b32 {v(zb+4*u+1)}, 16, {v(pb+u)}")
        A(f"v_and_b32 {v(zb+4*u+3)}, 0xffff0000, {v(pb+u)}")

def store_rows(pa, pa4, pb, pb4, off, sb=sTB):
    A(f"buffer_store_dwordx4 {v(pa,4)}, {v(vTA)}, {WS}, s{sb} offen offset:{off} sc1")
    A(f"buffer_store_dword {v(pa4)}, {v(vTB)}, {WS}, s{sb} offen offset:{off} sc1")
    A(f"buffer_store_dwordx4 {v(pb,4)}, {v(vTA)}, {WS}, s{sb+1} offen offset:{off} sc1")
    A(f"buffer_store_dword {v(pb4)}, {v(vTB)}, {WS}, s{sb+1} offen offset:{off} sc1")

def to_f16(zb, t, sub=None):
    for i in range(10):
        if EXACT:
            rnd_pair(zb + 2 * i, zb + 2 * i + 1, t + (i % 4))
        if sub is not None:
            A(f"v_fma_mix_f32 {v(zb+2*i)}, {v(sub(i))}, -1.0, {v(zb+2*i)} op_sel:[0,0,0] op_sel_hi:[1,0,0]")
            A(f"v_fma_mix_f32 {v(zb+2*i+1)}, {v(sub(i))}, -1.0, {v(zb+2*i+1)} op_sel:[1,0,0] op_sel_hi:[1,0,0]")
        A(f"v_cvt_pk_f16_f32 {v(AF1+i)}, {v(zb+2*i)}, {v(zb+2*i+1)}")

def row_dft(t, shadow1=None, shadow2=None):
    for kk in range(3):
        c = "0" if kk == 0 else None
        A(f"v_mfma_f32_32x32x16_f16 {v(ACR,16)}, {v(AF1+4*kk,4)}, {v(B1R+4*kk,4)}, {c or v(ACR,16)}")
        A(f"v_mfma_f32_32x32x16_f16 {v(ACI,16)}, {v(AF1+4*kk,4)}, {v(B1I+4*kk,4)}, {c or v(ACI,16)}")
    if shadow1:
        shadow1()
    for kk in range(4):
        for i in (4 * kk, 4 * kk + 2):
            pr, pi = t + (i % 4) * 2, t + (i % 4) * 2 + 2
            A(f"v_pk_mul_f32 {v(pr,2)}, {v(ACR+i,2)}, {v(TWC+i,2)}")
            A(f"v_pk_mul_f32 {v(pi,2)}, {v(ACI+i,2)}, {v(TWC+i,2)}")
            A(f"v_pk_fma_f32 {v(pr,2)}, {v(ACI+i,2)}, {v(TWS+i,2)}, {v(pr,2)}")
            A(f"v_pk_fma_f32 {v(pi,2)}, {v(ACR+i,2)}, {v(TWS+i,2)}, {v(pi,2)} neg_lo:[1,0,0] neg_hi:[1,0,0]")
            A(f"v_cvt_pk_f16_f32 {v(AF2+i)}, {v(pr)}, {v(pi)}")
            A(f"v_cvt_pk_f16_f32 {v(AF2+i+1)}, {v(pr+1)}, {v(pi+1)}")
        c = "0" if kk == 0 else None
        A(f"v_mfma_f32_32x32x16_f16 {v(AC2R,16)}, {v(AF2+4*kk,4)}, {v(B2R+4*kk,4)}, {c or v(AC2R,16)}")
        A(f"v_mfma_f32_32x32x16_f16 {v(AC2I,16)}, {v(AF2+4*kk,4)}, {v(B2I+4*kk,4)}, {c or v(AC2I,16)}")
    if shadow2:
        shadow2()

def W_stores(layer, r0, r1, r2, lds=True):
    L = A.newlabel("Lw2")
    A(f"s_add_u32 s60, s{sWB}, {W_OFF + layer * W_SZ}")
    A(f"s_add_u32 s62, s60, {8192 + 112}")
    if lds:
        A("s_waitcnt lgkmcnt(2)")
    A(f"buffer_store_dwordx4 {v(r0,4)}, {v(vWG)}, {WS}, s60 offen sc1")
    if lds:
        A("s_waitcnt lgkmcnt(0)")
    A(f"buffer_store_dwordx4 {v(r1,4)}, {v(vWG1)}, {WS}, s60 offen sc1")
    A(f"s_cmp_ge_u32 s{WV}, 2")
    A(f"s_cbranch_scc1 {L}")
    if lds:
        A(f"ds_read2st64_b32 {v(r2,2)}, {v(vLWR0+2)} offset0:0 offset1:11")
        A(f"ds_read2st64_b32 {v(r2+2,2)}, {v(vLWR0+2)} offset0:22 offset1:33")
        A("s_waitcnt lgkmcnt(0)")
    A(f"buffer_store_dwordx4 {v(r2,4)}, {v(vWG)}, {WS}, s62 offen sc1")
    A.label(L)

def write_W(layer):
    k = 2 * layer
    for i in range(10):
        A(f"v_cvt_pk_f16_f32 {v(ACR+i)}, {v(AC2R+i)}, {v(AC2I+i)}")
        A(f"ds_write_b32 {v(vLWW)}, {v(ACR+i)} offset:{4*i}")
    A("s_waitcnt lgkmcnt(0)")
    A("s_barrier")
    for j in range(2):
        A(f"ds_read2st64_b32 {v(ACI+4*j,2)}, {v(vLWR0+j)} offset0:0 offset1:11")
        A(f"ds_read2st64_b32 {v(ACI+4*j+2,2)}, {v(vLWR0+j)} offset0:22 offset1:33")
    arrive_issue(k, sME, AF2)
    W_stores(layer, ACI, ACI + 4, ACI + 8)
    arrive_finish(k, sME, 15, AF2, 3)

def stage_Y(layer, first=None):
    c0, c1, c2, t = ACR, ACR + 4, ACR + 8, ACR + 16
    loop, L2, L4, L5, done = [A.newlabel("Ly") for _ in range(5)]
    A(f"s_mov_b32 s60, {Y_OFF + layer * Y_SZ}")
    A(f"s_mov_b32 s62, {SPIN}")
    for k in range(4):
        A(f"v_mov_b32 {v(c2+k)}, 0")
    if first:
        first()
    A.label(loop)
    A(f"buffer_load_dwordx4 {v(c0,4)}, {v(vY0)}, {WS}, s60 offen sc1")
    A(f"buffer_load_dwordx4 {v(c1,4)}, {v(vY1)}, {WS}, s60 offen sc1")
    A(f"s_cmp_ge_u32 s{WV}, 2")
    A(f"s_cbranch_scc1 {L2}")
    A(f"buffer_load_dwordx4 {v(c2,4)}, {v(vY2)}, {WS}, s60 offen sc1")
    A.label(L2)
    A("s_waitcnt vmcnt(0)")
    any_sentinel(range(c0, c0 + 12), t, done)
    spin_tail(loop, 62, 2)
    A.label(done)
    A(f"ds_write2st64_b32 {v(vLYW)}, {v(c0)}, {v(c0+1)} offset0:0 offset1:10")
    A(f"ds_write2st64_b32 {v(vLYW)}, {v(c0+2)}, {v(c0+3)} offset0:20 offset1:30")
    A(f"s_cmp_eq_u32 s{WV}, 0")
    A(f"s_cbranch_scc1 {L4}")
    for k in range(4):
        A(f"v_alignbit_b32 {v(t+k)}, {v(c1+3-k)}, {v(c1+3-k)}, 16")
    for k in range(4):
        A(f"v_mov_b32 {v(c1+k)}, {v(t+k)}")
    A.label(L4)
    A(f"ds_write2st64_b32 {v(vLYW)}, {v(c1)}, {v(c1+1)} offset0:4 offset1:14")
    A(f"ds_write2st64_b32 {v(vLYW)}, {v(c1+2)}, {v(c1+3)} offset0:24 offset1:34")
    A(f"s_cmp_ge_u32 s{WV}, 2")
    A(f"s_cbranch_scc1 {L5}")
    for k in range(4):
        A(f"v_alignbit_b32 {v(t+k)}, {v(c2+3-k)}, {v(c2+3-k)}, 16")
    A(f"ds_write2st64_b32 {v(vLYW)}, {v(t)}, {v(t+1)} offset0:8 offset1:18")
    A(f"ds_write2st64_b32 {v(vLYW)}, {v(t+2)}, {v(t+3)} offset0:28 offset1:38")
    A.label(L5)
    A("s_waitcnt lgkmcnt(0)")
    A("s_barrier")

def router_publish(layer, t):
    R_ = t
    for i in range(10):
        os_ = i & 1
        wv = v(WR + (i & ~1), 2)
        if i == 0:
            A(f"v_pk_mul_f32 {v(R_,2)}, {v(XN,2)}, {wv} op_sel:[0,{os_}] op_sel_hi:[1,{os_}]")
        else:
            A(f"v_pk_fma_f32 {v(R_,2)}, {v(XN+2*i,2)}, {wv}, {v(R_,2)} op_sel:[0,{os_},0] op_sel_hi:[1,{os_},1]")
    A(f"v_permlane32_swap_b32 {v(R_)}, {v(R_+1)}")
    A(f"v_add_f32 {v(R_)}, {v(R_)}, {v(R_+1)}")
    A(f"v_mov_b32 {v(R_+1)}, {v(R_)}")
    A(f"v_permlane16_swap_b32 {v(R_)}, {v(R_+1)}")
    A(f"v_add_f32 {v(R_)}, {v(R_)}, {v(R_+1)}")
    reduce_tail(R_)
    A(f"v_readlane_b32 s71, {v(R_)}, 32")
    A(f"s_lshl_b32 s70, s{WV}, 2")
    A(f"s_add_u32 s70, s70, {LDS_RG}")
    A(f"v_mov_b32 {v(R_+2)}, s70")
    A(f"v_cvt_pk_bf16_f32 {v(R_)}, {v(R_)}, s71")
    A(f"v_lshrrev_b32 {v(R_+1)}, 15, {v(R_)}")
    A(f"v_and_b32 {v(R_+1)}, 0x10001, {v(R_+1)}")
    A(f"v_mul_u32_u24 {v(R_+1)}, 0x7fff, {v(R_+1)}")
    A(f"v_or_b32 {v(R_+1)}, 0x80008000, {v(R_+1)}")
    A(f"v_xor_b32 {v(R_)}, {v(R_)}, {v(R_+1)}")
    A(f"v_min_u32 {v(R_)}, -2, {v(R_)}")
    A("s_mov_b64 exec, 1")
    A(f"ds_write_b32 {v(R_+2)}, {v(R_)}")
    A("s_mov_b64 exec, -1")
    A("s_waitcnt lgkmcnt(0)")
    A("s_barrier")
    L = A.newlabel("Lrp")
    A(f"s_cmp_lg_u32 s{WV}, 0")
    A(f"s_cbranch_scc1 {L}")
    A(f"ds_read_b128 {v(R_+4,4)}, {v(R_+2)}")
    A(f"v_lshlrev_b32 {v(R_+2)}, 12, v1")
    A(f"s_lshl_b32 s73, s{sRHO}, 4")
    A(f"s_add_u32 s73, s73, {RG_OFF + layer * NRR * RG_REP}")
    set_exec((1 << NRR) - 1)
    A("s_waitcnt lgkmcnt(0)")
    A(f"buffer_store_dwordx4 {v(R_+4,4)}, {v(R_+2)}, {WS}, s73 offen sc1")
    A("s_mov_b64 exec, -1")
    A.label(L)

def roleR():
    A.label("L_roleR")
    srd(8, 42, 2621440)
    A("s_and_b32 s60, s2, 7")
    A("s_lshr_b32 s61, s2, 3")
    A(f"s_lshr_b32 s{sA}, s61, 3")
    A("s_and_b32 s61, s61, 7")
    A("s_lshl_b32 s60, s60, 3")
    A("s_sub_u32 s62, 56, s60")
    A(f"s_cmp_lt_u32 s{sA}, 2")
    A("s_cselect_b32 s60, s60, s62")
    A(f"s_add_u32 s{sS2}, s60, s61")
    A(f"s_lshl_b32 s60, s{sA}, 9")
    A(f"s_lshl_b32 s61, s{WV}, 7")
    A(f"s_add_u32 s{sRA}, s60, s61")
    A(f"s_add_u32 s{sRA}, s{sRA}, s{sS2}")
    A(f"s_mul_i32 s{sXO}, s{sRA}, 1280")
    A(f"s_add_u32 s63, s{sXO}, {64 * 1280}")
    T = ACR
    n, h = T, T + 1
    A(f"v_and_b32 {v(n)}, 31, v1")
    A(f"v_lshrrev_b32 {v(h)}, 5, v1")
    A(f"v_mul_u32_u24 {v(vX)}, 640, {v(h)}")
    A(f"v_lshl_add_u32 {v(vX)}, {v(n)}, 1, {v(vX)}")
    for i in range(10):
        A(f"v_mov_b32 {v(X+2*i)}, 0")
        A(f"v_mov_b32 {v(X+2*i+1)}, 0")
        A(f"buffer_load_short_d16_hi {v(X+2*i)}, {v(vX)}, {SRD1}, s{sXO} offen offset:{64*i}")
        A(f"buffer_load_short_d16_hi {v(X+2*i+1)}, {v(vX)}, {SRD1}, s63 offen offset:{64*i}")
    NV = XN
    nonce_load(NV)
    ONES = XN + 4
    A(f"s_lshl_b32 s{sRHO}, s{sA}, 6")
    A(f"s_add_u32 s{sRHO}, s{sRHO}, s{sS2}")
    A(f"s_mul_i32 s{sWB}, s{sRHO}, {WROW}")
    for k in range(4):
        A(f"v_mov_b32 {v(ONES+k)}, -1")
    A(f"v_lshlrev_b32 {v(vWG)}, 4, v0")
    A(f"v_add_u32 {v(vWG1)}, {4096 + 112}, {v(vWG)}")
    A(f"v_add_u32 {v(T+2)}, 4096, {v(vWG)}")
    A(f"v_cmp_gt_u32 vcc, 65, v0")
    A(f"v_cndmask_b32 {v(vWG1)}, {v(vWG1)}, {v(T+2)}, vcc")
    A(f"v_lshlrev_b32 {v(T+4)}, 3, v0")
    A(f"s_lshl_b32 s61, s{sRHO}, 11")
    A(f"s_add_u32 s61, s61, {RESET_OFF}")
    A(f"buffer_store_dwordx2 {v(ONES,2)}, {v(T+4)}, {WS}, s61 offen sc1")
    W_stores(0, ONES, ONES, ONES, lds=False)
    e1, e1s, base, arg, c_, s_ = T + 6, T + 7, T + 8, T + 9, T + 10, T + 11
    hf_, wf, lc = T + 12, T + 13, T + 14
    G0 = T + 16
    A(f"v_bfe_u32 {v(e1)}, {v(n)}, 2, 1")
    A(f"v_mul_u32_u24 {v(e1)}, 10, {v(e1)}")
    A(f"v_and_b32 {v(arg)}, 3, {v(n)}")
    A(f"v_add_u32 {v(e1)}, {v(e1)}, {v(arg)}")
    A(f"v_lshrrev_b32 {v(arg)}, 3, {v(n)}")
    A(f"v_lshl_add_u32 {v(e1)}, {v(arg)}, 2, {v(e1)}")
    A(f"v_cvt_f32_u32 {v(e1)}, {v(e1)}")
    A(f"v_cvt_f32_u32 {v(hf_)}, {v(h)}")
    A(f"v_cvt_f32_u32 {v(wf)}, s{WV}")
    A(f"s_lshl_b32 s60, s{WV}, 10")
    A(f"s_add_u32 s60, s60, {LDS_CONST}")
    A(f"v_lshl_add_u32 {v(lc)}, v1, 4, s60")
    A(f"v_mul_f32 {v(e1s)}, {f32(1/20)}, {v(e1)}")
    A(f"v_mul_f32 {v(base)}, {f32(10.0)}, {v(hf_)}")
    A(f"v_fma_f32 {v(base)}, 4.0, {v(wf)}, {v(base)}")
    A(f"v_mul_f32 {v(base)}, {v(e1s)}, {v(base)}")
    A(f"s_cmp_lt_u32 s{WV}, 2")
    A(f"s_cselect_b64 s[64:65], -1, 0")
    for r in range(4):
        A(f"v_fmamk_f32 {v(arg)}, {v(e1s)}, {f32(r)}, {v(base)}")
        sincos(arg, c_, s_)
        A(f"v_cvt_pk_f16_f32 {v(G0+r)}, {v(c_)}, {v(s_)}")
        A(f"v_cvt_pk_f16_f32 {v(G0+4+r)}, -{v(s_)}, {v(c_)}")
        if r >= 2:
            A(f"v_cndmask_b32 {v(G0+r)}, 0, {v(G0+r)}, s[64:65]")
            A(f"v_cndmask_b32 {v(G0+4+r)}, 0, {v(G0+4+r)}, s[64:65]")
    A(f"ds_write_b128 {v(lc)}, {v(G0,4)}")
    A(f"ds_write_b128 {v(lc)}, {v(G0+4,4)} offset:4096")
    A(f"v_mul_f32 {v(wf)}, {f32(8.0)}, {v(wf)}")
    A(f"v_fma_f32 {v(wf)}, 4.0, {v(hf_)}, {v(wf)}")
    A(f"v_mul_f32 {v(e1s)}, {f32(1/640)}, {v(e1)}")
    A(f"v_mul_f32 {v(base)}, {v(e1s)}, {v(wf)}")
    for r in range(4):
        A(f"v_fmamk_f32 {v(arg)}, {v(e1s)}, {f32(r)}, {v(base)}")
        sincos(arg, G0 + 8 + r, G0 + 12 + r)
    A(f"ds_write_b128 {v(lc)}, {v(G0+8,4)} offset:8192")
    A(f"ds_write_b128 {v(lc)}, {v(G0+12,4)} offset:12288")
    A(f"v_cvt_f32_u32 {v(e1s)}, {v(n)}")
    A(f"v_mul_f32 {v(e1s)}, {f32(1/32)}, {v(e1s)}")
    A(f"v_mul_f32 {v(base)}, {v(e1s)}, {v(wf)}")
    for r in range(4):
        A(f"v_fmamk_f32 {v(arg)}, {v(e1s)}, {f32(r)}, {v(base)}")
        sincos(arg, c_, s_)
        A(f"v_cvt_pk_f16_f32 {v(G0+16+r)}, {v(c_)}, {v(s_)}")
        A(f"v_cvt_pk_f16_f32 {v(G0+20+r)}, -{v(s_)}, {v(c_)}")
    A(f"ds_write_b128 {v(lc)}, {v(G0+16,4)} offset:16384")
    A(f"ds_write_b128 {v(lc)}, {v(G0+20,4)} offset:20480")
    A(f"v_mov_b32 {v(AF1+10)}, 0")
    A(f"v_mov_b32 {v(AF1+11)}, 0")
    A(f"v_lshlrev_b32 {v(vLC)}, 4, v1")
    A(f"v_add_u32 {v(vLC)}, {LDS_CONST}, {v(vLC)}")
    A(f"v_mov_b32 {v(INV)}, {f32(1/640)}")
    A(f"s_mov_b32 s{s32f}, {f32(32.0)}")
    A(f"s_and_b32 s{sME}, s2, 15")
    A(f"v_mul_u32_u24 {v(vLWW)}, 21, {v(n)}")
    A(f"v_mad_u32_u24 {v(vLWW)}, {v(h)}, 10, {v(vLWW)}")
    A(f"s_mul_i32 s60, s{WV}, 704")
    A(f"s_add_u32 s60, s60, {LDS_W // 4}")
    A(f"v_add_lshl_u32 {v(vLWW)}, {v(vLWW)}, s60, 2")
    A("s_waitcnt lgkmcnt(0)")
    A("s_barrier")
    for (dst, ng, off) in ((B1R, 3, 0), (B1I, 3, 4096), (TWC, 4, 8192), (TWS, 4, 12288)):
        for gq in range(ng):
            A(f"ds_read_b128 {v(dst+4*gq,4)}, {v(vLC)} offset:{off + 1024*gq}")
    for j in range(3):
        A(f"v_add_u32 {v(arg)}, {256*j}, v0")
        A(f"v_mul_u32_u24 {v(c_)}, 3277, {v(arg)}")
        A(f"v_lshrrev_b32 {v(c_)}, 16, {v(c_)}")
        A(f"v_add_u32 {v(arg)}, {v(arg)}, {v(c_)}")
        A(f"v_lshlrev_b32 {v(arg)}, 2, {v(arg)}")
        A(f"v_add_u32 {v(vLWR0+j)}, {LDS_W}, {v(arg)}")
    stamp(0, dbg=(1, 0))
    A(f"s_waitcnt vmcnt(3)")
    nonce_take(NV)
    stamp(10, dbg=(2, 0))
    ln_stats(X, ACR)
    for (dst, ng, off) in ((B2R, 4, 16384), (B2I, 4, 20480)):
        for gq in range(ng):
            A(f"ds_read_b128 {v(dst+4*gq,4)}, {v(vLC)} offset:{off + 1024*gq}")
    ln_center_scale(X, XN, ACR, EXACT)
    to_f16(XN, ACR)
    A("s_waitcnt vmcnt(0) lgkmcnt(0)")
    row_dft(XN)
    stamp(11)
    write_W(0)
    stamp(1, dbg=(3, 0))
    srd(12, 52, 2621440)
    srd(16, 44, 1280)
    for i in range(10):
        A(f"v_mov_b32 {v(WR+i)}, 0")
        A(f"buffer_load_short_d16_hi {v(WR+i)}, {v(vX)}, {SRD3}, 0 offen offset:{64*i}")
    A(f"v_and_b32 {v(n)}, 31, v1")
    A(f"v_lshrrev_b32 {v(h)}, 5, v1")
    A(f"v_lshlrev_b32 {v(vTA)}, 4, v1")
    A(f"v_lshlrev_b32 {v(vTB)}, 2, v1")
    A(f"v_add_u32 {v(vTB)}, 1024, {v(vTB)}")
    A(f"s_mul_i32 s{sTB}, s{sRA}, {T_REC}")
    A(f"s_add_u32 s{sTB}, s{sTB}, {T_OFF}")
    A(f"s_add_u32 s{sTB+1}, s{sTB}, {64 * T_REC}")
    for k in range(4):
        A(f"v_mov_b32 {v(ONES+k)}, -1")
    W_stores(1, ONES, ONES, ONES, lds=False)
    store_rows(ONES, ONES, ONES, ONES, 0)
    A(f"v_lshlrev_b32 {v(vLYW)}, 2, v0")
    A(f"v_mul_u32_u24 {v(vLYR)}, 320, {v(h)}")
    A(f"s_mul_i32 s60, s{WV}, 640")
    A(f"v_add3_u32 {v(vLYR)}, {v(vLYR)}, {v(n)}, s60")
    A(f"v_lshlrev_b32 {v(vLYR)}, 2, {v(vLYR)}")
    A(f"s_sub_u32 s60, 3, s{sA}")
    A(f"s_lshl_b32 s60, s60, 6")
    A(f"s_sub_u32 s61, 64, s{sS2}")
    A(f"s_add_u32 s60, s60, s61")
    A(f"s_lshl_b32 s60, s60, 4")
    A(f"s_lshl_b32 s61, s{sA}, 4")
    A(f"s_add_u32 s61, s61, {YM_OFF}")
    A(f"s_cmp_eq_u32 s{sS2}, 0")
    A(f"s_cselect_b32 s60, s61, s60")
    A(f"s_cselect_b32 s61, 6, 12")
    A(f"s_lshl_b32 s62, s{sRHO}, 4")
    A(f"v_lshlrev_b32 {v(vY0)}, 12, v0")
    A(f"v_add_u32 {v(vY0)}, s62, {v(vY0)}")
    A(f"v_sub_u32 {v(arg)}, 384, v0")
    A(f"v_lshlrev_b32 {v(arg)}, s61, {v(arg)}")
    A(f"v_add_u32 {v(vY1)}, s60, {v(arg)}")
    A(f"v_add_u32 {v(c_)}, {256 << 12}, {v(vY0)}")
    A(f"v_cmp_gt_u32 vcc, 64, v0")
    A(f"v_cndmask_b32 {v(vY1)}, {v(vY1)}, {v(c_)}, vcc")
    A(f"v_sub_u32 {v(arg)}, 128, v0")
    A(f"v_and_b32 {v(arg)}, 0xff, {v(arg)}")
    A(f"v_lshlrev_b32 {v(arg)}, s61, {v(arg)}")
    A(f"v_add_u32 {v(vY2)}, s60, {v(arg)}")
    A(f"s_mul_i32 s60, s{WV}, 3072")
    A(f"s_add_u32 s60, s60, {LDS_KX}")
    A(f"v_lshl_add_u32 {v(vKX)}, v1, 4, s60")
    A(f"s_and_b32 s{sREP}, s2, {NREP - 1}")
    A(f"s_lshl_b32 s{sREP}, s{sREP}, 7")
    poll_flags(1, sREP, ACR)
    stamp(2, dbg=(7, 0))
    stage_Y(0)
    stamp(13)
    for i in range(10):
        A(f"ds_read_b32 {v(ACI+i)}, {v(vLYR)} offset:{128*i}")
    for i in range(10):
        A(f"s_waitcnt lgkmcnt({9-i})")
        A(f"v_fma_mix_f32 {v(X+2*i)}, {v(ACI+i)}, s{s32f}, {v(X+2*i)} op_sel:[0,0,0] op_sel_hi:[1,0,0]")
        A(f"v_fma_mix_f32 {v(X+2*i+1)}, {v(ACI+i)}, s{s32f}, {v(X+2*i+1)} op_sel:[1,0,0] op_sel_hi:[1,0,0]")
    PA, PB = AC2R, AC2R + 8
    pack_rows(X, PA, PB)
    unpack_rows(X, PA, PB)
    A(f"v_mov_b32 {v(PA+5)}, {v(PB+4)}")
    A(f"ds_write_b128 {v(vKX)}, {v(PA,4)}")
    A(f"ds_write_b128 {v(vKX)}, {v(PB,4)} offset:1024")
    A(f"ds_write_b64 {v(vKX)}, {v(PA+4,2)} offset:2048")
    ln_stats(X, ACR)
    ln_center_scale(X, XN, ACR)
    pack_rows(XN, PA + 16, PB + 16)
    store_rows(PA + 16, PA + 20, PB + 16, PB + 20, 0)
    unpack_rows(XN, PA + 16, PB + 16)
    stamp(14)
    router_publish(0, ACI)
    stamp(3, dbg=(8, 0))
    for i in range(10):
        A(f"v_pk_add_f32 {v(X+2*i,2)}, {v(X+2*i,2)}, {v(XN+2*i,2)}")
        rnd_pair(X + 2 * i, X + 2 * i + 1, ACR + (i % 4))
    ln_stats(X, ACR)
    STAT = XN + 8
    ln_center_scale(X, XN, ACR + 8, EXACT)
    to_f16(XN, ACR + 8)
    def stat_regs():
        A(f"v_cmp_gt_u32 vcc, 32, v1")
        A(f"v_cndmask_b32 {v(STAT)}, {v(MM+1)}, {v(MM)}, vcc")
        A(f"v_cndmask_b32 {v(STAT+1)}, {v(RS+1)}, {v(RS)}, vcc")
        A(f"s_add_u32 s60, s{NONCE}, 7")
        A(f"v_mov_b32 {v(STAT+2)}, s60")
        A(f"v_mov_b32 {v(STAT+3)}, s60")
    row_dft(XN, stat_regs)
    stamp(16)
    write_W(1)
    stamp(4)
    for k in range(3):
        A(f"ds_read_b128 {v(PA+4*k,4)}, {v(vKX)} offset:{1024*k}")
    A(f"v_lshrrev_b32 {v(STAT+4)}, 5, v1")
    A(f"v_mul_u32_u24 {v(STAT+4)}, {64 * T_REC}, {v(STAT+4)}")
    A("s_waitcnt vmcnt(0) lgkmcnt(0)")
    store_rows(PA, PA + 8, PA + 4, PA + 9, 1280)
    A(f"s_add_u32 s74, s{sTB}, {T_SZ}")
    A(f"s_add_u32 s75, s{sTB+1}, {T_SZ}")
    for k in range(4):
        A(f"v_mov_b32 {v(ACR+k)}, -1")
    A("s_waitcnt vmcnt(0)")
    A(f"s_mov_b32 exec_lo, 1")
    A(f"s_mov_b32 exec_hi, 1")
    A(f"buffer_store_dwordx4 {v(STAT,4)}, {v(STAT+4)}, {WS}, s{sTB} offen offset:2560 sc1")
    A("s_mov_b64 exec, -1")
    store_rows(ACR, ACR, ACR, ACR, 0, 74)
    A(f"s_mov_b32 s{sTB}, s74")
    A(f"s_mov_b32 s{sTB+1}, s75")
    loop, done = A.newlabel("Lsel"), A.newlabel("Lseld")
    T2 = ACR + 4
    A(f"s_and_b32 s74, s2, {NRX - 1}")
    A(f"s_mul_i32 s74, s74, {X2REP}")
    A(f"s_add_u32 s74, s74, {X2_OFF}")
    A(f"s_add_u32 s60, s74, {SEL_OFF}")
    A(f"v_and_b32 {v(T2)}, 7, v1")
    A(f"v_lshlrev_b32 {v(T2)}, 2, {v(T2)}")
    A(f"s_mov_b32 s62, {SPIN}")
    A.label(loop)
    A(f"buffer_load_dword {v(T2+1)}, {v(T2)}, {WS}, s60 offen sc1")
    A("s_waitcnt vmcnt(0)")
    A(f"v_cmp_eq_u32 vcc, -1, {v(T2+1)}")
    A(f"s_cbranch_vccz {done}")
    spin_tail(loop, 62, 4)
    A.label(done)
    for j in range(8):
        A(f"v_readlane_b32 s{sSEL+j}, {v(T2+1)}, {j}")
    stamp(5)
    CU, CV = XN + 12, XN + 16
    tr, ca, sa, cb, sb, ar, t0, t1_ = ACR, ACR + 1, ACR + 2, ACR + 3, ACR + 4, ACR + 5, ACR + 6, ACR + 7
    A(f"v_and_b32 {v(tr)}, 1, v1")
    A(f"v_lshlrev_b32 {v(tr)}, 6, {v(tr)}")
    A(f"v_add_u32 {v(tr)}, s{sRA}, {v(tr)}")
    A(f"s_mov_b32 s64, 0x00300003")
    A(f"s_mov_b32 s65, 0x30000300")
    for p in range(4):
        for (j, cc, ss) in ((2 * p, ca, sa), (2 * p + 1, cb, sb)):
            A(f"v_mul_u32_u24 {v(ar)}, s{sSEL+j}, {v(tr)}")
            A(f"v_and_b32 {v(ar)}, 0x7ff, {v(ar)}")
            A(f"v_cvt_f32_u32 {v(ar)}, {v(ar)}")
            A(f"v_mul_f32 {v(ar)}, {f32(1/2048)}, {v(ar)}")
            sincos(ar, cc, ss)
        A(f"v_sub_f32 {v(t0)}, {v(ca)}, {v(sb)}")
        A(f"v_add_f32 {v(t1_)}, {v(sa)}, {v(cb)}")
        A(f"v_mul_f32 {v(t0)}, 0.5, {v(t0)}")
        A(f"v_mul_f32 {v(t1_)}, 0.5, {v(t1_)}")
        A(f"v_cvt_pk_f16_f32 {v(CU+p)}, {v(t0)}, {v(t1_)}")
        A(f"v_add_f32 {v(t0)}, {v(ca)}, {v(sb)}")
        A(f"v_sub_f32 {v(t1_)}, {v(cb)}, {v(sa)}")
        A(f"v_mul_f32 {v(t0)}, 0.5, {v(t0)}")
        A(f"v_mul_f32 {v(t1_)}, 0.5, {v(t1_)}")
        A(f"v_cvt_pk_f16_f32 {v(CV+p)}, {v(t0)}, {v(t1_)}")
        A(f"v_cndmask_b32 {v(CU+p)}, 0, {v(CU+p)}, s[64:65]")
        A(f"v_cndmask_b32 {v(CV+p)}, 0, {v(CV+p)}, s[64:65]")
    for row in range(2):
        A(f"s_add_u32 s60, s{sRA}, {64 * row}")
        A(f"s_mov_b32 s{76+row}, -1")
        for j in range(8):
            A(f"s_cmp_eq_u32 s60, s{sSEL+j}")
            A(f"s_cselect_b32 s{76+row}, {j}, s{76+row}")
    vE0, vDF, vDM, vP2, vNW = vLWW, vLWR0, vLWR0 + 1, vLWR0 + 2, vWG
    n, h = ACR + 8, ACR + 9
    A(f"v_and_b32 {v(n)}, 31, v1")
    A(f"v_lshrrev_b32 {v(h)}, 5, v1")
    A(f"v_mul_u32_u24 {v(vE0)}, 20, {v(n)}")
    A(f"v_mad_u32_u24 {v(vE0)}, {v(h)}, 10, {v(vE0)}")
    vER = vKX
    A(f"v_and_b32 {v(vER)}, 31, {v(vE0)}")
    A(f"v_lshrrev_b32 {v(vDF)}, 5, {v(vE0)}")
    A(f"s_lshl_b32 s60, s{WV}, 2")
    A(f"s_add_u32 s60, s60, {LDS_W}")
    A(f"v_add_u32 {v(vE0)}, {v(vE0)}, {v(vDF)}")
    A(f"v_lshl_add_u32 {v(vE0)}, {v(vE0)}, 4, s60")
    A(f"v_mul_u32_u24 {v(vDF)}, 330, {v(h)}")
    A(f"v_add_u32 {v(vDF)}, {v(vDF)}, {v(n)}")
    A(f"v_sub_u32 {v(vDM)}, 362, {v(vDF)}")
    A(f"v_lshlrev_b32 {v(vDF)}, 4, {v(vDF)}")
    A(f"v_add_u32 {v(vDF)}, {LDS_W}, {v(vDF)}")
    A(f"v_cmp_eq_u32 vcc, 0, {v(n)}")
    A(f"v_addc_co_u32 {v(vDM)}, vcc, 0, {v(vDM)}, vcc")
    A(f"v_lshlrev_b32 {v(vDM)}, 4, {v(vDM)}")
    A(f"v_add_u32 {v(vDM)}, {LDS_W}, {v(vDM)}")
    A(f"s_lshl_b32 s60, s{WV}, 8")
    A(f"v_mul_u32_u24 {v(vP2)}, 10240, {v(h)}")
    A(f"v_lshl_add_u32 {v(vP2)}, {v(n)}, 3, {v(vP2)}")
    A(f"v_add_u32 {v(vP2)}, s60, {v(vP2)}")
    A(f"s_mul_i32 s60, s{WV}, 2560")
    A(f"s_add_u32 s60, s60, {LDS_NEW}")
    A(f"v_lshl_add_u32 {v(vNW)}, v1, 2, s60")
    A(f"s_add_u32 s75, s74, 4096")
    A(f"s_add_u32 s78, s74, 8192")
    poll_flags(3, sREP, ACR)
    stamp(6, dbg=(13, 0))
    RAW = AC2R
    def x2loads():
        for i in range(10):
            so = ("s74", "s75", "s78")[i // 4]
            A(f"buffer_load_dwordx2 {v(RAW+2*i,2)}, {v(vP2)}, {WS}, {so} offen offset:{1024*(i%4)} sc1")
    stage_Y(1, x2loads)
    loop, done, first = A.newlabel("Lx2"), A.newlabel("Lx2d"), A.newlabel("Lx2f")
    A(f"s_mov_b32 s62, {SPIN}")
    A(f"s_branch {first}")
    A.label(loop)
    x2loads()
    A("s_waitcnt vmcnt(0)")
    A.label(first)
    any_sentinel(range(RAW, RAW + 20), ACR, done)
    spin_tail(loop, 62, 2)
    A.label(done)
    stamp(7)
    Z = ACR + 12
    for i in range(10):
        A(f"v_lshlrev_b32 {v(Z+2*i)}, 16, {v(RAW+2*i)}")
        A(f"v_and_b32 {v(Z+2*i+1)}, 0xffff0000, {v(RAW+2*i)}")
    for i in range(10):
        A(f"ds_write_b32 {v(vNW)}, {v(RAW+2*i)} offset:{256*i}")
    ln_stats(Z, ACR + 2)
    ln_center_scale(Z, Z, ACR + 2, EXACT)
    to_f16(Z, ACR + 2, sub=lambda i: RAW + 2 * i + 1)
    CBL = [16 + 4 * i for i in range(6)] + [AF1, AF1 + 4, AF1 + 8, XN + 8]
    WA = TWC
    def shadow1():
        for i in range(10):
            A(f"ds_read_b32 {v(CBL[i]+2)}, {v(vLYR)} offset:{128*i}")
        for i in range(10):
            A(f"s_waitcnt lgkmcnt({9-i})")
            A(f"v_fma_mix_f32 {v(CBL[i])}, {v(CBL[i]+2)}, s{s32f}, {v(X+2*i)} op_sel:[0,0,0] op_sel_hi:[1,0,0]")
            A(f"v_fma_mix_f32 {v(CBL[i]+1)}, {v(CBL[i]+2)}, s{s32f}, {v(X+2*i+1)} op_sel:[1,0,0] op_sel_hi:[1,0,0]")
    def shadow2():
        for i in range(10):
            A(f"v_add_u32 {v(WA+i)}, {i}, {v(vER)}")
            A(f"v_bfe_u32 {v(WA+i)}, {v(WA+i)}, 5, 1")
            A(f"v_lshl_add_u32 {v(WA+i)}, {v(WA+i)}, 4, {v(vE0)}")
    A("s_waitcnt lgkmcnt(0)")
    row_dft(XN, shadow1, shadow2)
    stamp(18)
    for i in range(10):
        A(f"v_cvt_pk_f16_f32 {v(ACR+i)}, {v(AC2R+i)}, {v(AC2I+i)}")
        A(f"ds_write_b32 {v(WA+i)}, {v(ACR+i)} offset:{16*i}")
    A("s_mov_b64 exec, 1")
    A(f"ds_write_b32 {v(vE0)}, {v(ACR)} offset:{660*16}")
    A("s_mov_b64 exec, -1")
    A("s_waitcnt lgkmcnt(0)")
    A("s_barrier")
    FRL = [40 + 4 * q for q in range(16)] + [160 + 4 * q for q in range(4)]
    def corr(k):
        A(f"v_mfma_f32_16x16x32_f16 {v(CBL[k],4)}, {v(CU,4)}, {v(FRL[2*k],4)}, {v(CBL[k],4)}")
        A(f"v_mfma_f32_16x16x32_f16 {v(CBL[k],4)}, {v(CV,4)}, {v(FRL[2*k+1],4)}, {v(CBL[k],4)}")
    for i in range(10):
        A(f"ds_read_b128 {v(FRL[2*i],4)}, {v(vDF)} offset:{528*i}")
        A(f"ds_read_b128 {v(FRL[2*i+1],4)}, {v(vDM)} offset:{528*(9-i)}")
        if i >= 6:
            A(f"s_waitcnt lgkmcnt(12)")
            corr(i - 6)
    for k in range(4, 10):
        A(f"s_waitcnt lgkmcnt({2*(9-k)})")
        corr(k)
    stamp(19)
    for row in range(2):
        Lnext = A.newlabel("Lown")
        A(f"s_cmp_lt_i32 s{76+row}, 0")
        A(f"s_cbranch_scc1 {Lnext}")
        A(f"s_lshr_b32 s62, s{76+row}, 1")
        A("s_mul_i32 s62, s62, 2560")
        A(f"s_add_u32 s62, s62, {LDS_NEW}")
        A(f"s_and_b32 s61, s{76+row}, 1")
        A("s_lshl_b32 s61, s61, 4")
        A("s_sub_u32 s61, 16, s61")
        A(f"v_lshl_add_u32 {v(240)}, v1, 2, s62")
        for i in range(10):
            A(f"ds_read_b32 {v(241+i)}, {v(240)} offset:{256*i}")
        A("s_waitcnt lgkmcnt(0)")
        for i in range(10):
            A(f"v_lshlrev_b32 {v(241+i)}, s61, {v(241+i)}")
            A(f"v_and_b32 {v(241+i)}, 0xffff0000, {v(241+i)}")
            A(f"v_sub_f32 {v(241+i)}, {v(241+i)}, {v(X+2*i+row)}")
            A(f"v_add_f32 {v(CBL[i]+row)}, {v(CBL[i]+row)}, {v(241+i)}")
        A.label(Lnext)
    for u in range(5):
        A(f"v_cvt_pk_bf16_f32 {v(PA+u)}, {v(CBL[2*u])}, {v(CBL[2*u+1])}")
        A(f"v_cvt_pk_bf16_f32 {v(PB+u)}, {v(CBL[2*u]+1)}, {v(CBL[2*u+1]+1)}")
    unpack_rows(X, PA, PB)
    ln_stats(X, ACR)
    ln_center_scale(X, XN, ACR)
    pack_rows(XN, PA + 16, PB + 16)
    store_rows(PA + 16, PA + 20, PB + 16, PB + 20, 0)
    unpack_rows(XN, PA + 16, PB + 16)
    stamp(20)
    router_publish(1, ACI + 8)
    stamp(8, dbg=(14, 0))
    A(f"s_mul_i32 s60, s{WV}, 2560")
    A(f"v_add_u32 {v(ACR)}, s60, {v(vX)}")
    for i in range(10):
        A(f"v_pk_add_f32 {v(X+2*i,2)}, {v(X+2*i,2)}, {v(XN+2*i,2)}")
        A(f"v_cvt_pk_bf16_f32 {v(ACR+2+i)}, {v(X+2*i)}, {v(X+2*i+1)}")
        A(f"ds_write_b16 {v(ACR)}, {v(ACR+2+i)} offset:{64*i}")
        A(f"ds_write_b16_d16_hi {v(ACR)}, {v(ACR+2+i)} offset:{1280+64*i}")
    A(f"v_lshlrev_b32 {v(ACR+1)}, 4, v1")
    A(f"v_add_u32 {v(ACR)}, s60, {v(ACR+1)}")
    A("s_waitcnt lgkmcnt(0)")
    for k in range(3):
        A(f"ds_read_b128 {v(ACR+12+4*k,4)}, {v(ACR)} offset:{1024*k}")
    A(f"v_add_u32 {v(ACR+2)}, {1024 + 63 * 1280}, {v(ACR+1)}")
    A(f"v_add_u32 {v(ACR+3)}, 1024, {v(ACR+1)}")
    A(f"v_cmp_gt_u32 vcc, 16, v1")
    A(f"v_cndmask_b32 {v(ACR+3)}, {v(ACR+2)}, {v(ACR+3)}, vcc")
    A("s_waitcnt vmcnt(0) lgkmcnt(0)")
    store_rows(PA, PA + 4, PB, PB + 4, 1280)
    A(f"buffer_store_dwordx4 {v(ACR+12,4)}, {v(ACR+1)}, {SRD2}, s{sXO} offen sc1")
    A(f"buffer_store_dwordx4 {v(ACR+16,4)}, {v(ACR+3)}, {SRD2}, s{sXO} offen sc1")
    set_exec(0xffffffff)
    A(f"buffer_store_dwordx4 {v(ACR+20,4)}, {v(ACR+2)}, {SRD2}, s{sXO} offen offset:1024 sc1")
    A("s_mov_b64 exec, -1")
    A("s_waitcnt vmcnt(0)")
    A("s_barrier")
    arrive_issue(4, sME, AF2)
    arrive_finish(4, sME, 15, AF2, 0)
    stamp(9)
    A("s_endpgm")

def roleC():
    A.label("L_roleC")
    B1, TC, TS, A2, DT, RAW, AR, AI, P, AC, O, T = 16, 32, 48, 64, 128, 160, 176, 192, 208, 224, 240, 248
    sC, sCME, sCREP, sK, sW0, sW1, sY, sLAST = 22, 23, 24, 25, 26, 27, 28, 29
    nonce_load(T + 4)
    A(f"s_sub_u32 s60, s2, {C0}")
    A("s_and_b32 s61, s60, 7")
    A("s_lshr_b32 s62, s60, 3")
    A("s_lshr_b32 s63, s62, 2")
    A("s_lshl_b32 s63, s63, 5")
    A("s_lshl_b32 s61, s61, 2")
    A("s_and_b32 s62, s62, 3")
    A(f"s_add_u32 s{sC}, s63, s61")
    A(f"s_add_u32 s{sC}, s{sC}, s62")
    A(f"s_and_b32 s{sCME}, s2, 15")
    A(f"s_cmp_eq_u32 s{sCME}, 0")
    A(f"s_cselect_b32 s{sLAST}, 10, 9")
    A(f"s_and_b32 s{sCREP}, s2, {NREP - 1}")
    A(f"s_lshl_b32 s{sCREP}, s{sCREP}, 7")
    n, g, t1, gs, arg, base, st = RAW, RAW + 1, RAW + 2, RAW + 3, RAW + 4, RAW + 5, RAW + 6
    ca, sa, cb, sb, x0, x1 = RAW + 7, RAW + 8, RAW + 9, RAW + 10, RAW + 11, RAW + 12
    A(f"v_and_b32 {v(n)}, 15, v1")
    A(f"v_lshrrev_b32 {v(g)}, 4, v1")
    A(f"s_and_b32 s70, s{WV}, 1")
    A(f"s_lshl_b32 s70, s70, 4")
    A(f"s_lshr_b32 s61, s{WV}, 1")
    A(f"v_lshrrev_b32 v2, 1, v0")
    A(f"v_and_b32 v6, 1, v0")
    A(f"s_lshl_b32 s62, s{sC}, 1")
    A(f"v_add_u32 v3, s62, v6")
    A(f"v_min_u32 v3, 320, v3")
    A(f"v_sub_u32 v4, 640, v3")
    A(f"v_cmp_ne_u32 vcc, 0, v3")
    A(f"v_cndmask_b32 v4, 0, v4, vcc")
    A(f"v_add_u32 v5, 7, v4")
    A(f"v_cmp_lt_u32 vcc, 320, v4")
    A(f"v_cndmask_b32 v4, v4, v5, vcc")
    A(f"v_mul_u32_u24 v5, {WROW}, v2")
    A(f"v_mul_u32_u24 v6, 8256, v6")
    A(f"v_lshl_add_u32 v6, v2, 4, v6")
    A(f"v_lshl_add_u32 v2, v3, 4, v5")
    A(f"v_lshl_add_u32 v3, v4, 4, v5")
    A(f"s_mul_i32 s63, s61, 8256")
    A(f"v_lshlrev_b32 v7, 10, {v(g)}")
    A(f"v_lshl_add_u32 v7, {v(n)}, 4, v7")
    A(f"v_add_u32 v7, s63, v7")
    A(f"s_add_u32 s62, s62, s61")
    A(f"s_lshl_b32 s62, s62, 12")
    A(f"v_lshl_add_u32 v8, {v(g)}, 6, {v(n)}")
    A(f"v_add_u32 v8, s70, v8")
    A(f"v_lshl_add_u32 v8, v8, 4, s62")
    A(f"s_lshr_b32 s62, s62, 6")
    A(f"s_add_u32 s62, s62, {YM_OFF + 48}")
    A(f"v_lshlrev_b32 v9, 4, {v(g)}")
    A(f"v_sub_u32 v9, s62, v9")
    def Y_stores(r0, r1, rm, sy, prep=None):
        A(f"buffer_store_dwordx4 {v(r0,4)}, v8, {WS}, {sy} offen sc1")
        A(f"buffer_store_dwordx4 {v(r1,4)}, v8, {WS}, {sy} offen offset:512 sc1")
        Lm = A.newlabel("Lym")
        A(f"s_bitcmp1_b32 s{WV}, 0")
        A(f"s_cbranch_scc1 {Lm}")
        if prep:
            prep()
        set_exec(0x0001000100010001)
        A(f"buffer_store_dwordx4 {v(rm,4)}, v9, {WS}, {sy} offen sc1")
        A("s_mov_b64 exec, -1")
        A.label(Lm)
    for k in range(4):
        A(f"v_mov_b32 {v(O+k)}, -1")
    for lay in range(2):
        A(f"s_mov_b32 s63, {Y_OFF + lay * Y_SZ}")
        Y_stores(O, O, O, "s63")
    A("s_waitcnt vmcnt(0)")
    nonce_take(T + 4)
    Li = A.newlabel("Lci")
    A(f"s_sub_u32 s60, s2, {C0}")
    A(f"s_lshl_b32 s61, s{WV}, 4")
    A(f"s_or_b32 s60, s60, s61")
    A(f"s_cmp_ge_u32 s60, 16")
    A(f"s_cbranch_scc1 {Li}")
    cnt_init(sCME, range(5), T)
    A.label(Li)
    A(f"v_add_u32 {v(t1)}, s70, {v(n)}")
    A(f"v_cvt_f32_u32 {v(t1)}, {v(t1)}")
    A(f"v_cvt_f32_u32 {v(gs)}, {v(g)}")
    A(f"v_mul_f32 {v(st)}, {f32(1/32)}, {v(t1)}")
    A(f"v_mul_f32 {v(base)}, {v(st)}, {v(gs)}")
    A(f"v_mul_f32 {v(base)}, {f32(8.0)}, {v(base)}")
    for w in range(4):
        A(f"v_fmamk_f32 {v(arg)}, {v(st)}, {f32(2*w)}, {v(base)}")
        sincos(arg, ca, sa)
        A(f"v_add_f32 {v(arg)}, {v(arg)}, {v(st)}")
        sincos(arg, cb, sb)
        A(f"v_sub_f32 {v(x0)}, {v(ca)}, {v(sb)}")
        A(f"v_add_f32 {v(x1)}, {v(sa)}, {v(cb)}")
        A(f"v_cvt_pk_f16_f32 {v(B1+w)}, {v(x0)}, {v(x1)}")
        A(f"v_cvt_pk_f16_f32 {v(B1+4+w)}, -{v(x1)}, {v(x0)}")
        A(f"v_add_f32 {v(x0)}, {v(ca)}, {v(sb)}")
        A(f"v_sub_f32 {v(x1)}, {v(cb)}, {v(sa)}")
        A(f"v_cvt_pk_f16_f32 {v(B1+8+w)}, {v(x0)}, {v(x1)}")
        A(f"v_cvt_pk_f16_f32 {v(B1+12+w)}, {v(x1)}, -{v(x0)}")
    A(f"v_mul_f32 {v(st)}, {f32(1/2048)}, {v(t1)}")
    A(f"v_mul_f32 {v(base)}, {v(st)}, {v(gs)}")
    A(f"v_mul_f32 {v(base)}, 4.0, {v(base)}")
    for j in range(4):
        for i in range(4):
            A(f"v_fmamk_f32 {v(arg)}, {v(st)}, {f32(16*j+i)}, {v(base)}")
            sincos(arg, ca, sa)
            A(f"v_mul_f32 {v(TC+4*j+i)}, {f32(1/64)}, {v(ca)}")
            A(f"v_mul_f32 {v(TS+4*j+i)}, {f32(1/64)}, {v(sa)}")
    A(f"v_lshrrev_b32 {v(x0)}, 2, {v(n)}")
    A(f"v_lshlrev_b32 {v(x0)}, 4, {v(x0)}")
    A(f"v_and_b32 {v(x1)}, 3, {v(n)}")
    A(f"v_lshl_add_u32 {v(x0)}, {v(x1)}, 1, {v(x0)}")
    A(f"s_lshr_b32 s60, s70, 1")
    A(f"s_lshr_b32 s61, s{WV}, 1")
    A(f"s_add_u32 s60, s60, s61")
    A(f"v_add_u32 {v(x0)}, s60, {v(x0)}")
    A(f"v_cvt_f32_u32 {v(x0)}, {v(x0)}")
    A(f"v_mul_f32 {v(st)}, {f32(1/64)}, {v(x0)}")
    A(f"v_mul_f32 {v(base)}, {v(st)}, {v(gs)}")
    A(f"v_mul_f32 {v(base)}, 4.0, {v(base)}")
    A(f"s_lshl_b32 s60, s{WV}, 12")
    A(f"s_add_u32 s60, s60, 24576")
    A(f"v_lshl_add_u32 {v(x1)}, v1, 4, s60")
    for j in range(4):
        for i in range(4):
            A(f"v_fmamk_f32 {v(arg)}, {v(st)}, {f32(16*j+i)}, {v(base)}")
            sincos(arg, ca, sa)
            A(f"v_cvt_pk_f16_f32 {v(DT+4*j+i)}, {v(ca)}, {v(sa)}")
        A(f"ds_write_b128 {v(x1)}, {v(DT+4*j,4)} offset:{1024*j}")
    A(f"v_lshlrev_b32 {v(x1)}, 4, v1")
    A("s_waitcnt lgkmcnt(0)")
    A("s_barrier")
    for q in range(16):
        A(f"ds_read_b128 {v(A2+4*q,4)}, {v(x1)} offset:{24576 + 1024*q}")
        if q == 7:
            A("s_waitcnt lgkmcnt(0)")
    A(f"s_mov_b32 s{sK}, 0")
    A(f"s_mov_b32 s{sW0}, {W_OFF}")
    A(f"s_mov_b32 s{sY}, {Y_OFF}")
    stamp(4, dbg=(4, C0))
    A.label("L_Cloop")
    A(f"s_add_u32 s{sW1}, s{sW0}, {128 * WROW}")
    poll_flags(f"s{sK}", sCREP, T)
    stamp(0, f"s{sK}", dbg=(5, C0, 0))
    loop, done = A.newlabel("Lcw"), A.newlabel("Lcwd")
    A(f"s_mov_b32 s62, {SPIN}")
    A.label(loop)
    A(f"buffer_load_dwordx4 {v(RAW,4)}, v2, {WS}, s{sW0} offen sc1")
    A(f"buffer_load_dwordx4 {v(RAW+4,4)}, v2, {WS}, s{sW1} offen sc1")
    A(f"buffer_load_dwordx4 {v(RAW+8,4)}, v3, {WS}, s{sW0} offen sc1")
    A(f"buffer_load_dwordx4 {v(RAW+12,4)}, v3, {WS}, s{sW1} offen sc1")
    for j in range(4):
        A(f"s_waitcnt vmcnt({3-j})")
        A(f"ds_write_b128 v6, {v(RAW+4*j,4)} offset:{(j>>1)*4096 + (j&1)*2048}")
    any_sentinel(range(RAW, RAW + 16), T, done)
    spin_tail(loop, 62, 2)
    A.label(done)
    A("s_waitcnt lgkmcnt(0)")
    A("s_barrier")
    stamp(1, f"s{sK}")
    for j in range(4):
        A(f"ds_read_b128 {v(DT+8*j,4)}, v7 offset:{256*j}")
        A(f"ds_read_b128 {v(DT+8*j+4,4)}, v7 offset:{4096+256*j}")
    for j in range(4):
        A(f"s_waitcnt lgkmcnt({7-2*j})")
        A(f"v_mfma_f32_16x16x32_f16 {v(AR+4*j,4)}, {v(DT+8*j,4)}, {v(B1,4)}, 0")
        A(f"v_mfma_f32_16x16x32_f16 {v(AI+4*j,4)}, {v(DT+8*j,4)}, {v(B1+4,4)}, 0")
        A(f"s_waitcnt lgkmcnt({6-2*j})")
        A(f"v_mfma_f32_16x16x32_f16 {v(AR+4*j,4)}, {v(DT+8*j+4,4)}, {v(B1+8,4)}, {v(AR+4*j,4)}")
        A(f"v_mfma_f32_16x16x32_f16 {v(AI+4*j,4)}, {v(DT+8*j+4,4)}, {v(B1+12,4)}, {v(AI+4*j,4)}")
    A(f"s_add_u32 s{sK}, s{sK}, 1")
    for j in range(4):
        for i in (4 * j, 4 * j + 2):
            pr, pi = RAW + (i % 4) * 2, RAW + (i % 4) * 2 + 2
            A(f"v_pk_mul_f32 {v(pr,2)}, {v(AR+i,2)}, {v(TC+i,2)}")
            A(f"v_pk_mul_f32 {v(pi,2)}, {v(AI+i,2)}, {v(TC+i,2)}")
            A(f"v_pk_fma_f32 {v(pr,2)}, {v(AI+i,2)}, {v(TS+i,2)}, {v(pr,2)}")
            A(f"v_pk_fma_f32 {v(pi,2)}, {v(AR+i,2)}, {v(TS+i,2)}, {v(pi,2)} neg_lo:[1,0,0] neg_hi:[1,0,0]")
            A(f"v_cvt_pk_f16_f32 {v(P+i)}, {v(pr)}, {v(pi)}")
            A(f"v_cvt_pk_f16_f32 {v(P+i+1)}, {v(pr+1)}, {v(pi+1)}")
        for jm in range(4):
            c = "0" if j == 0 else v(AC + 4 * jm, 4)
            A(f"v_mfma_f32_16x16x32_f16 {v(AC+4*jm,4)}, {v(A2+16*jm+4*j,4)}, {v(P+4*j,4)}, {c}")
    A("s_barrier")
    arrive_issue(f"s{sK}", sCME, T)
    for k in range(8):
        A(f"v_cvt_pk_f16_f32 {v(O+k)}, {v(AC+2*k)}, {v(AC+2*k+1)}")
    def prep():
        for gq in range(4):
            A(f"v_readlane_b32 s{60+gq}, {v(O)}, {16*((gq+1)%4)}")
        for gq in range(4):
            A(f"v_writelane_b32 {v(P+4)}, s{60+gq}, {16*gq}")
        for k in range(3):
            A(f"v_alignbit_b32 {v(P+k)}, {v(O+k+1)}, {v(O+k)}, 16")
        A(f"v_alignbit_b32 {v(P+3)}, {v(P+4)}, {v(O+3)}, 16")
    Y_stores(O, O + 4, P, f"s{sY}", prep)
    arrive_finish(f"s{sK}", sCME, f"s{sLAST}", T, 3)
    stamp(3, f"s{sK}", dbg=(6, C0, 1))
    A(f"s_add_u32 s{sK}, s{sK}, 1")
    A(f"s_add_u32 s{sW0}, s{sW0}, {W_SZ}")
    A(f"s_add_u32 s{sY}, s{sY}, {Y_SZ}")
    A(f"s_cmp_lt_u32 s{sK}, 4")
    A("s_cbranch_scc1 L_Cloop")
    A("s_endpgm")

SORT8 = [(0, 1), (2, 3), (4, 5), (6, 7), (0, 2), (1, 3), (4, 6), (5, 7), (1, 2), (5, 6), (0, 4), (3, 7),
         (1, 5), (2, 6), (1, 4), (3, 6), (2, 4), (3, 5), (3, 4)]

def topk_setup(CODE, vG, vLW, vLR, LDS0):
    A(f"v_lshrrev_b32 {v(CODE)}, 6, v0")
    A(f"v_lshlrev_b32 {v(CODE)}, 9, {v(CODE)}")
    A(f"v_add_u32 {v(CODE)}, {v(CODE)}, v1")
    A(f"v_sub_u32 {v(CODE)}, 2047, {v(CODE)}")
    for i in range(1, 8):
        A(f"v_subrev_u32 {v(CODE+i)}, {64*i}, {v(CODE)}")
    A(f"v_lshlrev_b32 {v(vG)}, 4, v0")
    A(f"v_lshrrev_b32 {v(vLW)}, 4, v0")
    A(f"v_lshlrev_b32 {v(vLW)}, 5, {v(vLW)}")
    A(f"v_add_u32 {v(vLW)}, {LDS0}, {v(vLW)}")
    A(f"v_and_b32 {v(vLR)}, 15, v1")
    A(f"v_lshlrev_b32 {v(vLR)}, 5, {v(vLR)}")
    A(f"v_add_u32 {v(vLR)}, {LDS0}, {v(vLR)}")

def topk(K, CODE, vG, vLW, vLR, sRG, blk, dbg):
    G = K + 16
    for gate in ((True, False) if GATE else (False,)):
        loop, done = A.newlabel("Lrg"), A.newlabel("Lrgd")
        A(f"s_mov_b32 s62, {SPIN}")
        if gate:
            set_exec(0xff << 56)
        A.label(loop)
        A(f"buffer_load_dwordx4 {v(G,4)}, {v(vG)}, {WS}, s{sRG} offen sc1")
        A("s_waitcnt vmcnt(0)")
        any_sentinel(range(G, G + 4), K, done)
        spin_tail(loop, 62, opt("rsleep", 2))
        A.label(done)
        if gate:
            A("s_mov_b64 exec, -1")
    stamp(3, "s27", dbg=dbg)
    A("s_mov_b32 s63, 0xffff0000")
    cur = list(range(K, K + 8))
    for k in range(4):
        A(f"v_lshl_or_b32 {v(cur[2*k])}, {v(G+k)}, 16, {v(CODE+2*k)}")
        A(f"v_and_or_b32 {v(cur[2*k+1])}, {v(G+k)}, s63, {v(CODE+2*k+1)}")
    free = list(range(K + 8, K + 24))

    def ce(i, j, dst=None):
        if dst is None:
            t = free.pop(0)
            A(f"v_max_u32 {v(t)}, {v(cur[i])}, {v(cur[j])}")
            A(f"v_min_u32 {v(cur[j])}, {v(cur[i])}, {v(cur[j])}")
            free.append(cur[i])
            cur[i] = t
        else:
            A(f"v_max_u32 {v(dst+i)}, {v(cur[i])}, {v(cur[j])}")
            A(f"v_min_u32 {v(dst+j)}, {v(cur[i])}, {v(cur[j])}")

    for (i, j) in SORT8:
        ce(i, j)
    pats = ["quad_perm:[1,0,3,2]", "quad_perm:[2,3,0,1]", "row_half_mirror", "row_mirror"]
    for rnd in range(2):
        for li, pat in enumerate(pats):
            new = [free.pop(0) for _ in range(8)]
            for i in (7, 6, 5, 4, 3, 2, 1, 0) if False else range(8):
                A(f"v_max_u32_dpp {v(new[i])}, {v(cur[7-i])}, {v(cur[i])} {pat} row_mask:0xf bank_mask:0xf")
            free.extend(cur)
            cur = new
            if rnd == 1 and li == 3:
                return cur
            for i in range(4):
                ce(i, i + 4)
            for i in (0, 1, 4, 5):
                ce(i, i + 2)
            if rnd == 0 and li == 3:
                for i in (0, 2, 4, 6):
                    ce(i, i + 1, dst=blk)
                set_exec(0x0001000100010001)
                A(f"ds_write_b128 {v(vLW)}, {v(blk,4)}")
                A(f"ds_write_b128 {v(vLW)}, {v(blk+4,4)} offset:16")
                A("s_mov_b64 exec, -1")
                A("s_waitcnt lgkmcnt(0)")
                A("s_barrier")
                A(f"ds_read_b128 {v(K,4)}, {v(vLR)}")
                A(f"ds_read_b128 {v(K+4,4)}, {v(vLR)} offset:16")
                A("s_waitcnt lgkmcnt(0)")
                cur = list(range(K, K + 8))
                free = list(range(K + 8, K + 24))
            else:
                for i in (6, 4, 2, 0):
                    ce(i, i + 1)

def load_weight_frags(srdn, voff_of, soff_of, nsteps, dstE, dstO, raw, stride=8, vfull=None):
    batch = 5
    for k0 in range(0, nsteps, batch):
        ks = list(range(k0, min(nsteps, k0 + batch)))
        for k in ks:
            for q in range(8):
                d = raw + 8 * (k - k0) + q
                if vfull is not None and k == vfull:
                    A(f"v_add_u32 {v(d)}, {soff_of(k, q)}, {v(voff_of(k))}")
                    A(f"buffer_load_dword {v(d)}, {v(d)}, {srdn}, 0 offen")
                    continue
                A(f"s_mov_b32 s60, {soff_of(k, q)}")
                A(f"buffer_load_dword {v(d)}, {v(voff_of(k))}, {srdn}, s60 offen")
        A("s_waitcnt vmcnt(0)")
        for k in ks:
            r = raw + 8 * (k - k0)
            for u in range(4):
                A(f"v_perm_b32 {v(dstE + stride*k + u)}, {v(r+2*u+1)}, {v(r+2*u)}, s58")
                A(f"v_perm_b32 {v(dstO + stride*k + u)}, {v(r+2*u+1)}, {v(r+2*u)}, s59")

def roleFa():
    A.label("L_roleFa")
    GW, UW, RAW, AFR, ACC, K, CODE = 16, 56, 96, 136, 156, 176, 200
    vG, vLW, vLR, vW1, vW2, vLP1, vLP2, vPW, vPR, vH = 2, 3, 4, 5, 6, 7, 8, 9, 10, 11
    sKAP, sRG, sT, sH, sL = 22, 23, 25, 26, 27
    T = 208
    nonce_load(T + 8)
    srd(8, 46, 2211840)
    srd(12, 48, 2211840)
    A(f"s_sub_u32 s{sKAP}, s2, {FA0}")
    A("s_mov_b32 s58, 0x05040100")
    A("s_mov_b32 s59, 0x07060302")
    n, g = T, T + 1
    A(f"v_and_b32 {v(n)}, 15, v1")
    A(f"v_lshrrev_b32 {v(g)}, 4, v1")
    A(f"s_lshr_b32 s60, s{WV}, 1")
    A(f"s_mul_i32 s60, s60, 320")
    A(f"s_and_b32 s61, s{WV}, 1")
    A(f"s_lshl_b32 s61, s61, 4")
    A(f"s_add_u32 s60, s60, s61")
    A(f"s_lshl_b32 s61, s{sKAP}, 6")
    A(f"v_lshl_add_u32 {v(T+2)}, {v(n)}, 2, s61")
    A(f"v_add_u32 {v(vW1)}, s60, {v(g)}")
    A(f"v_mul_u32_u24 {v(vW1)}, 3456, {v(vW1)}")
    A(f"v_add_u32 {v(vW1)}, {v(vW1)}, {v(T+2)}")
    A(f"v_lshl_add_u32 {v(vW2)}, {v(g)}, 2, s60")
    A(f"v_mul_u32_u24 {v(vW2)}, 3456, {v(vW2)}")
    A(f"v_add_u32 {v(vW2)}, {v(vW2)}, {v(T+2)}")
    voff = lambda k: vW1 if k < 4 else vW2
    soff = lambda k, q: ((32 * q + 4 * k) if k < 4 else (256 + 32 * (q & 1) + (q >> 1))) * 3456
    load_weight_frags(SRD1, voff, soff, 5, GW, GW + 4, RAW)
    load_weight_frags(SRD2, voff, soff, 5, UW, UW + 4, RAW)
    nonce_take(T + 8)
    topk_setup(CODE, vG, vLW, vLR, 8192)
    A(f"s_lshl_b32 s60, s{WV}, 4")
    A(f"v_add_lshl_u32 {v(vLP1)}, {v(g)}, s60, 4")
    A(f"s_lshl_b32 s60, s{WV}, 6")
    A(f"s_add_u32 s60, s60, 1024")
    A(f"v_lshl_add_u32 {v(vLP2)}, {v(g)}, 4, s60")
    A(f"s_lshl_b32 s60, s{WV}, 11")
    A(f"v_lshlrev_b32 {v(vPW)}, 9, {v(g)}")
    A(f"v_lshl_add_u32 {v(vPW)}, {v(n)}, 3, {v(vPW)}")
    A(f"v_add_u32 {v(vPW)}, s60, {v(vPW)}")
    A(f"v_add_u32 {v(12)}, 1024, {v(vPW)}")
    A(f"v_lshlrev_b32 {v(vPR)}, 2, v0")
    A(f"v_and_b32 {v(vH)}, 1, v0")
    A(f"v_mul_u32_u24 {v(vH)}, {HREP}, {v(vH)}")
    A(f"v_lshrrev_b32 {v(T+2)}, 1, v0")
    A(f"v_lshl_add_u32 {v(vH)}, {v(T+2)}, 2, {v(vH)}")
    A(f"s_lshl_b32 s{sH}, s{sKAP}, 9")
    A(f"s_add_u32 s{sH}, s{sH}, {H_OFF}")
    A(f"s_and_b32 s{sRG}, s2, {NRR - 1}")
    A(f"s_lshl_b32 s{sRG}, s{sRG}, 12")
    A(f"s_add_u32 s{sRG}, s{sRG}, {RG_OFF}")
    A(f"s_mov_b32 s{sT}, {T_OFF}")
    A(f"s_mov_b32 s28, {T_REC}")
    for (r, val) in ((30, 0xAAAAAAAA), (32, 0xCCCCCCCC), (34, 0xF0F0F0F0)):
        A(f"s_mov_b32 s{r}, 0x{val:x}")
        A(f"s_mov_b32 s{r+1}, 0x{val:x}")
    A(f"s_mov_b32 s{sL}, 0")
    A(f"s_and_b32 s29, s2, {NREP - 1}")
    A(f"s_lshl_b32 s29, s29, 7")
    stamp(0, dbg=(9, FA0))
    poll_flags(1, 29, T, 8)
    A.label("L_FaLoop")
    c = topk(K, CODE, vG, vLW, vLR, sRG, T, (11, FA0, 0))
    stamp(4, "s27")
    for i in range(4):
        A(f"v_cndmask_b32 {v(T+i)}, {v(c[2*i])}, {v(c[2*i+1])}, s[30:31]")
    A(f"v_cndmask_b32 {v(T)}, {v(T)}, {v(T+1)}, s[32:33]")
    A(f"v_cndmask_b32 {v(T+2)}, {v(T+2)}, {v(T+3)}, s[32:33]")
    A(f"v_cndmask_b32 {v(T)}, {v(T)}, {v(T+2)}, s[34:35]")
    A(f"v_and_b32 {v(T)}, 0x7ff, {v(T)}")
    A(f"v_sub_u32 {v(T)}, 2047, {v(T)}")
    A(f"v_mad_u32_u24 {v(T+1)}, {v(T)}, s28, {v(vLP1)}")
    A(f"v_mad_u32_u24 {v(T+2)}, {v(T)}, s28, {v(vLP2)}")
    loop, done = A.newlabel("Lga"), A.newlabel("Lgad")
    A(f"s_mov_b32 s62, {SPIN}")
    A.label(loop)
    for ks in range(4):
        A(f"buffer_load_dwordx4 {v(AFR+4*ks,4)}, {v(T+1)}, {WS}, s{sT} offen offset:{64*ks} sc1")
    A(f"buffer_load_dwordx4 {v(AFR+16,4)}, {v(T+2)}, {WS}, s{sT} offen sc1")
    CK = T + 3
    for ks in range(5):
        A(f"s_waitcnt vmcnt({4-ks})")
        for a_, wb in enumerate((GW, GW + 4, UW, UW + 4)):
            cc = "0" if ks == 0 else v(ACC + 4 * a_, 4)
            A(f"v_mfma_f32_16x16x32_bf16 {v(ACC+4*a_,4)}, {v(AFR+4*ks,4)}, {v(wb+8*ks,4)}, {cc}")
            if a_ == 0:
                if ks == 0:
                    A(f"v_max3_u32 {v(CK)}, {v(AFR)}, {v(AFR+1)}, {v(AFR+2)}")
                    A(f"v_max_u32 {v(CK)}, {v(CK)}, {v(AFR+3)}")
                else:
                    A(f"v_max3_u32 {v(CK)}, {v(CK)}, {v(AFR+4*ks)}, {v(AFR+4*ks+1)}")
                    A(f"v_max3_u32 {v(CK)}, {v(CK)}, {v(AFR+4*ks+2)}, {v(AFR+4*ks+3)}")
    A(f"v_cmp_eq_u32 vcc, -1, {v(CK)}")
    A(f"s_cbranch_vccz {done}")
    spin_tail(loop, 62, 1)
    A.label(done)
    stamp(5, "s27")
    set_exec(0xffffffff)
    for mat in range(2):
        for r in range(4):
            A(f"ds_write2_b32 {v(vPW if mat == 0 else 12)}, {v(ACC+8*mat+r)}, {v(ACC+8*mat+4+r)} offset0:{32*r} offset1:{32*r+1}")
    A("s_mov_b64 exec, -1")
    A("s_waitcnt lgkmcnt(0)")
    A("s_barrier")
    for w in range(4):
        A(f"ds_read2st64_b32 {v(T+2*w,2)}, {v(vPR)} offset0:{8*w} offset1:{8*w+4}")
    A("s_waitcnt lgkmcnt(2)")
    A(f"v_pk_add_f32 {v(T,2)}, {v(T,2)}, {v(T+2,2)}")
    A("s_waitcnt lgkmcnt(0)")
    A(f"v_pk_add_f32 {v(T+4,2)}, {v(T+4,2)}, {v(T+6,2)}")
    A(f"v_pk_add_f32 {v(T,2)}, {v(T,2)}, {v(T+4,2)}")
    rnd_pair(T, T + 1, T + 2)
    A(f"v_mul_f32 {v(T+2)}, {f32(-1.4426950408889634)}, {v(T)}")
    A(f"v_exp_f32 {v(T+2)}, {v(T+2)}")
    A(f"v_add_f32 {v(T+2)}, 1.0, {v(T+2)}")
    A(f"v_rcp_f32 {v(T+2)}, {v(T+2)}")
    A(f"v_mul_f32 {v(T)}, {v(T)}, {v(T+2)}")
    A(f"v_cvt_pk_bf16_f32 {v(T)}, {v(T)}, {v(T)}")
    A(f"v_and_b32 {v(T)}, 0xffff0000, {v(T)}")
    A(f"v_mul_f32 {v(T)}, {v(T)}, {v(T+1)}")
    A(f"v_mov_b32_dpp {v(T+1)}, {v(T)} quad_perm:[1,0,3,2] row_mask:0xf bank_mask:0xf")
    A(f"v_cndmask_b32 {v(T+2)}, {v(T)}, {v(T+1)}, s[30:31]")
    A(f"v_cndmask_b32 {v(T+3)}, {v(T+1)}, {v(T)}, s[30:31]")
    A(f"v_cvt_pk_bf16_f32 {v(T)}, {v(T+2)}, {v(T+3)}")
    A(f"v_min_u32 {v(T)}, -2, {v(T)}")
    A(f"buffer_store_dword {v(T)}, {v(vH)}, {WS}, s{sH} offen sc1")
    stamp(6, "s27")
    A(f"s_add_u32 s{sH}, s{sH}, {2 * HREP}")
    A(f"s_add_u32 s{sRG}, s{sRG}, {NRR * RG_REP}")
    A(f"s_add_u32 s{sT}, s{sT}, {T_SZ}")
    A(f"s_add_u32 s{sL}, s{sL}, 1")
    A(f"s_cmp_lt_u32 s{sL}, 2")
    A("s_cbranch_scc1 L_FaLoop")
    A("s_endpgm")

def roleFb():
    A.label("L_roleFb")
    DW, HF, ACC, K, CODE, T = 16, 128, 184, 192, 216, 224
    RAW = 128
    vG, vLW, vLR, vW1, vHF, vPW, vPR, vE, vX2, vO = 2, 3, 4, 5, 6, 7, 8, 9, 10, 11
    sB, sRG, sT, sH, sL, sREP2, sES, sEC = 22, 23, 25, 26, 27, 29, 30, 31
    nonce_load(T + 8)
    srd(8, 50, 2211840)
    srd(12, 52, 2621440)
    A(f"s_sub_u32 s{sB}, s2, {FB0}")
    A("s_mov_b32 s58, 0x05040100")
    A("s_mov_b32 s59, 0x07060302")
    n, g = T, T + 1
    A(f"v_and_b32 {v(n)}, 15, v1")
    A(f"v_lshrrev_b32 {v(g)}, 4, v1")
    A(f"s_lshl_b32 s60, s{WV}, 5")
    A(f"v_lshl_add_u32 {v(vW1)}, {v(g)}, 3, s60")
    A(f"v_mul_u32_u24 {v(vW1)}, 1280, {v(vW1)}")
    A(f"s_lshl_b32 s61, s{sB}, 6")
    A(f"v_lshl_add_u32 {v(T+2)}, {v(n)}, 2, s61")
    A(f"v_add_u32 {v(vW1)}, {v(vW1)}, {v(T+2)}")
    load_weight_frags(SRD1, lambda k: vW1, lambda k, q: (128 * k + q) * 1280, 14, DW, DW + 4, RAW, vfull=13)
    nonce_take(T + 8)
    topk_setup(CODE, vG, vLW, vLR, 8192)
    A(f"v_and_b32 {v(vHF)}, 7, v1")
    A(f"v_lshlrev_b32 {v(vHF)}, 6, {v(vHF)}")
    A(f"v_lshl_add_u32 {v(vHF)}, {v(g)}, 4, {v(vHF)}")
    A(f"s_lshl_b32 s60, s{WV}, 9")
    A(f"v_add_u32 {v(vHF)}, s60, {v(vHF)}")
    A(f"s_and_b32 s{sH}, s{sB}, 1")
    A(f"s_mul_i32 s{sH}, s{sH}, {HREP}")
    A(f"s_add_u32 s{sH}, s{sH}, {H_OFF}")
    A(f"s_lshl_b32 s60, s{WV}, 10")
    A(f"v_lshlrev_b32 {v(vPW)}, 9, {v(g)}")
    A(f"v_lshl_add_u32 {v(vPW)}, {v(n)}, 3, {v(vPW)}")
    A(f"v_add_u32 {v(vPW)}, s60, {v(vPW)}")
    A(f"v_lshlrev_b32 {v(vPR)}, 2, v0")
    A(f"s_cmp_ge_u32 s{sB}, 10")
    A(f"s_cselect_b32 s60, 1, 0")
    A(f"s_mul_i32 s61, s60, 10")
    A(f"s_sub_u32 s61, s{sB}, s61")
    A(f"s_lshl_b32 s62, s60, 9")
    A(f"s_lshl_b32 s63, s61, 1")
    A(f"s_add_u32 s62, s62, s63")
    A(f"s_lshl_b32 s64, s60, 7")
    A(f"s_add_u32 s64, s64, s63")
    A(f"s_add_u32 s64, s64, {1024 - 16}")
    A(f"s_cmp_lt_u32 s61, 8")
    A(f"s_cselect_b32 s{sEC}, s62, s64")
    A(f"s_cselect_b32 s{sES}, 16, 4")
    A(f"v_and_b32 {v(T+2)}, 31, v1")
    A(f"v_mul_u32_u24 {v(vE)}, s{sES}, {v(T+2)}")
    A(f"v_add_u32 {v(vE)}, s{sEC}, {v(vE)}")
    A(f"s_lshl_b32 s60, s{sB}, 2")
    A(f"s_add_u32 s60, s60, s{WV}")
    A(f"s_lshl_b32 s60, s60, 8")
    A(f"v_lshl_add_u32 {v(vX2)}, {v(T+2)}, 3, s60")
    A(f"v_lshrrev_b32 {v(T+3)}, 5, v1")
    A(f"v_lshl_add_u32 {v(vX2)}, {v(T+3)}, 2, {v(vX2)}")
    A(f"s_lshl_b32 s60, s{sB}, 6")
    A(f"v_lshl_add_u32 {v(vO)}, {v(T+2)}, 1, s60")
    A(f"s_and_b32 s{sRG}, s2, {NRR - 1}")
    A(f"s_lshl_b32 s{sRG}, s{sRG}, 12")
    A(f"s_add_u32 s{sRG}, s{sRG}, {RG_OFF}")
    A(f"s_and_b32 s{sREP2}, s2, {NREP - 1}")
    A(f"s_lshl_b32 s{sREP2}, s{sREP2}, 7")
    A(f"s_mov_b32 s{sT}, {T_OFF}")
    A(f"s_mov_b32 s28, {T_REC}")
    A(f"s_mov_b32 s{sL}, 0")
    stamp(0, dbg=(10, FB0))
    poll_flags(1, sREP2, T, 8)
    A.label("L_FbLoop")
    c = topk(K, CODE, vG, vLW, vLR, sRG, T, None)
    stamp(4, "s27")
    for j in range(8):
        A(f"v_readfirstlane_b32 s{80+j}, {v(c[j])}")
    A("s_mov_b32 s70, s80")
    A("s_mov_b32 s71, s81")
    for w in range(1, 4):
        A(f"s_cmp_eq_u32 s{WV}, {w}")
        A(f"s_cselect_b32 s70, s{80+2*w}, s70")
        A(f"s_cselect_b32 s71, s{81+2*w}, s71")
    KEY, ROW, XV, XNV, SG, ST = T, T + 1, T + 2, T + 3, T + 4, T + 8
    A(f"v_mov_b32 {v(KEY)}, s71")
    A(f"v_mov_b32 {v(ROW)}, s70")
    A(f"v_cmp_gt_u32 vcc, 32, v1")
    A(f"v_cndmask_b32 {v(KEY)}, {v(KEY)}, {v(ROW)}, vcc")
    A(f"v_and_b32 {v(ROW)}, 0x7ff, {v(KEY)}")
    A(f"v_sub_u32 {v(ROW)}, 2047, {v(ROW)}")
    A(f"v_mad_u32_u24 {v(T+5)}, {v(ROW)}, s28, {v(vE)}")
    A(f"v_mov_b32 {v(XV)}, 0")
    A(f"v_mov_b32 {v(XNV)}, 0")
    L1, L1e = A.newlabel("Lfb"), A.newlabel("Lfb")
    A(f"s_cmp_lg_u32 s{sL}, 0")
    A(f"s_cbranch_scc1 {L1}")
    Ls = A.newlabel("Lfb")
    A(f"s_or_b32 s60, s{sB}, s{WV}")
    A(f"s_cmp_lg_u32 s60, 0")
    A(f"s_cbranch_scc1 {Ls}")
    A(f"v_mov_b32 {v(T+6)}, s80")
    for j in range(1, 8):
        A(f"v_writelane_b32 {v(T+6)}, s{80+j}, {j}")
    A(f"v_and_b32 {v(T+6)}, 0x7ff, {v(T+6)}")
    A(f"v_sub_u32 {v(T+6)}, 2047, {v(T+6)}")
    A(f"v_lshlrev_b32 {v(T+7)}, 2, v1")
    A("s_mov_b64 exec, 0xff")
    for r in range(NRX):
        A(f"s_mov_b32 s60, {X2_OFF + r * X2REP + SEL_OFF}")
        A(f"buffer_store_dword {v(T+6)}, {v(T+7)}, {WS}, s60 offen sc1")
    A("s_mov_b64 exec, -1")
    A.label(Ls)
    loop, done = A.newlabel("Lst2"), A.newlabel("Lst2d")
    A(f"v_mul_u32_u24 {v(T+6)}, s28, {v(ROW)}")
    A(f"s_add_u32 s61, s{NONCE}, 7")
    A(f"s_mov_b32 s62, {SPIN}")
    A.label(loop)
    A(f"buffer_load_dwordx4 {v(ST,4)}, {v(T+6)}, {WS}, s{sT} offen offset:2560 sc1")
    A("s_waitcnt vmcnt(0)")
    A(f"v_cmp_ne_u32 vcc, s61, {v(ST+2)}")
    A(f"s_cbranch_vccz {done}")
    spin_tail(loop, 62, 2)
    A.label(done)
    A(f"s_branch {L1e}")
    A.label(L1)
    poll_flags(4, sREP2, T + 12, 2)
    A.label(L1e)
    A(f"buffer_load_short_d16_hi {v(XNV)}, {v(T+5)}, {WS}, s{sT} offen sc1")
    A(f"buffer_load_short_d16_hi {v(XV)}, {v(T+5)}, {WS}, s{sT} offen offset:1280 sc1")
    A(f"v_ashrrev_i32 {v(SG)}, 31, {v(KEY)}")
    A(f"v_not_b32 {v(SG)}, {v(SG)}")
    A(f"v_or_b32 {v(SG)}, 0x80000000, {v(SG)}")
    A(f"v_xor_b32 {v(SG)}, {v(SG)}, {v(KEY)}")
    A(f"v_and_b32 {v(SG)}, 0xffff0000, {v(SG)}")
    A(f"v_mul_f32 {v(SG)}, {f32(-1.4426950408889634)}, {v(SG)}")
    A(f"v_exp_f32 {v(SG)}, {v(SG)}")
    A(f"v_add_f32 {v(SG)}, 1.0, {v(SG)}")
    A(f"v_rcp_f32 {v(SG)}, {v(SG)}")
    A(f"v_cvt_pk_bf16_f32 {v(SG)}, {v(SG)}, {v(SG)}")
    A(f"v_and_b32 {v(SG)}, 0xffff0000, {v(SG)}")
    stamp(2, "s27")
    def rb(r):
        A(f"v_cvt_pk_bf16_f32 {v(r)}, {v(r)}, {v(r)}")
        A(f"v_and_b32 {v(r)}, 0xffff0000, {v(r)}")
    Yv = T + 12
    XO = T + 16
    A("s_waitcnt vmcnt(0)")
    A(f"v_add_f32 {v(XO)}, {v(XV)}, {v(XNV)}")
    rb(XO)
    A(f"v_sub_f32 {v(XO)}, {v(XO)}, {v(ST)}")
    if EXACT:
        rb(XO)
    A(f"v_mul_f32 {v(XO)}, {v(XO)}, {v(ST+1)}")
    if EXACT:
        rb(XO)
    loop, done = A.newlabel("Lh"), A.newlabel("Lhd")
    A(f"s_cmp_lt_u32 s{WV}, 2")
    A(f"s_cselect_b32 s63, 2048, 0")
    A(f"s_add_u32 s63, s63, {12 * 2048}")
    A(f"s_add_u32 s63, s63, s{sH}")
    A(f"s_mov_b32 s62, {SPIN}")
    A.label(loop)
    for k in range(14):
        if k == 13:
            A(f"buffer_load_dwordx4 {v(HF+4*k,4)}, {v(vHF)}, {WS}, s63 offen sc1")
        else:
            if k % 2 == 0:
                A(f"s_add_u32 s60, s{sH}, {2048 * k}")
            A(f"buffer_load_dwordx4 {v(HF+4*k,4)}, {v(vHF)}, {WS}, s60 offen offset:{2048*(k%2)} sc1")
    CK = T + 6
    for k in range(14):
        A(f"s_waitcnt vmcnt({13-k})")
        for par in range(2):
            cc = "0" if k == 0 else v(ACC + 4 * par, 4)
            A(f"v_mfma_f32_16x16x32_bf16 {v(ACC+4*par,4)}, {v(HF+4*k,4)}, {v(DW+8*k+4*par,4)}, {cc}")
        if k == 0:
            A(f"v_max3_u32 {v(CK)}, {v(HF)}, {v(HF+1)}, {v(HF+2)}")
            A(f"v_max_u32 {v(CK)}, {v(CK)}, {v(HF+3)}")
        else:
            A(f"v_max3_u32 {v(CK)}, {v(CK)}, {v(HF+4*k)}, {v(HF+4*k+1)}")
            A(f"v_max3_u32 {v(CK)}, {v(CK)}, {v(HF+4*k+2)}, {v(HF+4*k+3)}")
    A(f"v_cmp_eq_u32 vcc, -1, {v(CK)}")
    A(f"s_cbranch_vccz {done}")
    spin_tail(loop, 62, opt("hsleep", 1))
    A.label(done)
    stamp(5, "s27")
    set_exec(0xffffffff)
    for r in range(4):
        A(f"ds_write2_b32 {v(vPW)}, {v(ACC+r)}, {v(ACC+4+r)} offset0:{32*r} offset1:{32*r+1}")
    A("s_mov_b64 exec, -1")
    A("s_waitcnt lgkmcnt(0)")
    A("s_barrier")
    A(f"ds_read2st64_b32 {v(Yv,2)}, {v(vPR)} offset0:0 offset1:4")
    A(f"ds_read2st64_b32 {v(Yv+2,2)}, {v(vPR)} offset0:8 offset1:12")
    A("s_waitcnt lgkmcnt(0)")
    A(f"v_pk_add_f32 {v(Yv,2)}, {v(Yv,2)}, {v(Yv+2,2)}")
    A(f"v_add_f32 {v(Yv)}, {v(Yv)}, {v(Yv+1)}")
    rb(Yv)
    A(f"v_mul_f32 {v(Yv)}, {v(Yv)}, {v(SG)}")
    rb(Yv)
    A(f"v_add_f32 {v(Yv)}, {v(Yv)}, {v(XNV)}")
    rb(Yv)
    A(f"v_add_f32 {v(Yv)}, {v(Yv)}, {v(XV)}")
    L2 = A.newlabel("Lfb")
    A(f"s_cmp_lg_u32 s{sL}, 0")
    A(f"s_cbranch_scc1 {L2}")
    A(f"v_permlane32_swap_b32 {v(Yv)}, {v(XO)}")
    A(f"v_cvt_pk_bf16_f32 {v(Yv+1)}, {v(Yv)}, {v(XO)}")
    A(f"v_cvt_pk_f16_f32 {v(Yv)}, {v(Yv)}, {v(XO)}")
    A(f"v_cmp_gt_u32 vcc, 32, v1")
    A(f"v_cndmask_b32 {v(Yv)}, {v(Yv)}, {v(Yv+1)}, vcc")
    A(f"v_min_u32 {v(Yv)}, -2, {v(Yv)}")
    for r in range(NRX):
        A(f"s_mov_b32 s60, {X2_OFF + r * X2REP}")
        A(f"buffer_store_dword {v(Yv)}, {v(vX2)}, {WS}, s60 offen sc1")
    stamp(6, "s27", dbg=(12, FB0))
    A(f"s_add_u32 s{sH}, s{sH}, {2 * HREP}")
    A(f"s_add_u32 s{sRG}, s{sRG}, {NRR * RG_REP}")
    A(f"s_add_u32 s{sT}, s{sT}, {T_SZ}")
    A(f"s_mov_b32 s{sL}, 1")
    A("s_branch L_FbLoop")
    A.label(L2)
    A(f"v_cvt_pk_bf16_f32 {v(Yv)}, {v(Yv)}, {v(Yv)}")
    A(f"s_movk_i32 s60, 1280")
    A(f"v_mad_u32_u24 {v(Yv+1)}, {v(ROW)}, s60, {v(vO)}")
    A(f"buffer_store_short {v(Yv)}, {v(Yv+1)}, {SRD2}, 0 offen sc1")
    stamp(7, "s27", dbg=(15, FB0))
    A(f"s_or_b32 s60, s{sB}, s{WV}")
    A(f"s_cmp_lg_u32 s60, 0")
    A("s_cbranch_scc1 L_end")
    A(f"v_mov_b32 {v(T)}, s{NONCE}")
    A(f"v_mov_b32 {v(T+1)}, 0")
    A("s_mov_b64 exec, 1")
    A(f"buffer_store_dword {v(T)}, {v(T+1)}, {WS}, 0 offen sc1")
    A.label("L_end")
    A("s_endpgm")

hdr = open("cdna_kernels/%s.s.ref" % NAME).read().split("\n")
head = [l for l in hdr if l.startswith(";") and "@launch" not in l and "Override" not in l and "grid=ceil" not in l]
out = "\n".join(head) + "\n"
out += f"; @launch grid=({NWG},1,1) block=(256,1,1) lds={LDS_BYTES}\n"
out += '.amdgcn_target "amdgcn-amd-amdhsa--gfx950"\n.text\n'
out += f".globl {NAME}_kernel\n.p2align 8\n.type {NAME}_kernel,@function\n{NAME}_kernel:\n"
prologue(); roleR(); roleC(); roleFa(); roleFb()
out += A.text()
out += f""".section .rodata,"a"
.p2align 6
.amdhsa_kernel {NAME}_kernel
  .amdhsa_next_free_vgpr 256
  .amdhsa_next_free_sgpr 102
  .amdhsa_accum_offset 256
  .amdhsa_group_segment_fixed_size 0
  .amdhsa_kernarg_size 104
  .amdhsa_user_sgpr_count 2
  .amdhsa_user_sgpr_kernarg_segment_ptr 1
  .amdhsa_system_sgpr_workgroup_id_x 1
  .amdhsa_float_denorm_mode_32 3
.end_amdhsa_kernel
"""
dst = [a for a in sys.argv[1:] if not a.startswith("--")]
open(dst[0] if dst else "cdna_kernels/%s.s" % NAME, "w").write(out)
print("instructions:", A.ninstr, file=sys.stderr)
```

```python
import sys, struct
from asmb import Asm

NAME = "interleave_layers__spectral_fnet__moe_arch_mod__prompt"
def opt(name, default):
    for a in sys.argv:
        if a.startswith("--%s=" % name):
            return int(a.split("=")[1])
    return default
STAMPS = "--stamps" in sys.argv
DSTAMPS = "--dstamps" in sys.argv
EXACT = opt("exact", 0)
GATE = opt("gate", 0)
NR, NC, NFA, NFB = 256, 161, 54, 20
C0, FA0, FB0, NWG = 256, 417, 471, 491
FSH = opt("fsh", 6); FREP = 16 << FSH
FL_OFF = 0x1000; NREP = opt("nrep", 16)
RESET_OFF = 0x70000
H_OFF = 0x70000; HREP = 0x7000
X2_OFF = 0x90000; X2REP = 0x5200; NRX = opt("nrx", 1); SEL_OFF = 0x5000
RSH = opt("rsh", 6)
RG_OFF = 0xA0000; NRR = opt("nrr", 8); RG_REP = 256 << RSH
CNT_OFF = 0xF8000
WROW = 10368
W_OFF = 0x100000; W_SZ = 0x290000
Y_OFF = 0x640000; Y_SZ = 0x160000; YM_OFF = 322 * 4096
T_OFF = 0x900000; T_REC = 2688; T_SZ = 2048 * T_REC
ST_OFF = 0x1400000
WS_BYTES = 0x1500000
NONCE_C = 0x9E3779B9
SPIN = 40000
LDS_BYTES = 53248
assert FL_OFF + 4 * NREP * FREP <= 0x70000 and RG_OFF + 2 * NRR * RG_REP <= 0xF0000
PSLEEP = opt("psleep", 1)
EARLY_R = opt("earlyr", 1)
EARLY_C = opt("earlyc", 1)
PRIO = opt("prio", 1)
def prio(n):
    if PRIO:
        A(f"s_setprio {n}")

def f32(x):
    return "0x%08x" % struct.unpack("<I", struct.pack("<f", x))[0]
def v(i, n=1):
    return "v%d" % i if n == 1 else "v[%d:%d]" % (i, i + n - 1)
def s(i, n=1):
    return "s%d" % i if n == 1 else "s[%d:%d]" % (i, i + n - 1)

A = Asm()
WS = "s[4:7]"; SRD1 = "s[8:11]"; SRD2 = "s[12:15]"; SRD3 = "s[16:19]"
NONCE = 20; WV = 21

def srd(base, ptr, nbytes):
    A(f"s_mov_b32 s{base}, s{ptr}")
    A(f"s_and_b32 s{base+1}, s{ptr+1}, 0xffff")
    A(f"s_mov_b32 s{base+2}, {nbytes}")
    A(f"s_mov_b32 s{base+3}, 0x00020000")

def set_exec(m):
    A(f"s_mov_b32 exec_lo, 0x{m & 0xffffffff:x}")
    A(f"s_mov_b32 exec_hi, 0x{m >> 32:x}")

def stamp(idx, lay=None, dbg=None):
    if DSTAMPS and dbg is not None:
        L = A.newlabel("Lst")
        A(f"s_lshl_b32 s97, s{WV}, 16")
        A(f"s_or_b32 s97, s97, s2")
        if len(dbg) > 2:
            A(f"s_lshl_b32 s96, {lay}, 20")
            A(f"s_or_b32 s97, s97, s96")
        A(f"s_cmp_lg_u32 s97, {dbg[1] + ((dbg[2] << 20) if len(dbg) > 2 else 0)}")
        A(f"s_cbranch_scc1 {L}")
        A("s_memrealtime s[98:99]")
        A("s_waitcnt lgkmcnt(0)")
        A("v_mov_b32 v254, s98")
        A("v_mov_b32 v253, 0")
        A("s_mov_b64 exec, 1")
        A(f"buffer_store_dword v254, v253, s[92:95], 0 offen offset:{dbg[0] * 4}")
        A("s_mov_b64 exec, -1")
        A.label(L)
    if not STAMPS:
        return
    L = A.newlabel("Lst")
    A(f"s_cmp_lg_u32 s{WV}, 0")
    A(f"s_cbranch_scc1 {L}")
    A("s_memrealtime s[98:99]")
    A("s_memtime s[100:101]")
    A("s_waitcnt lgkmcnt(0)")
    A("v_mov_b32 v254, s98")
    A("v_mov_b32 v255, s100")
    A("v_mov_b32 v253, 0")
    A("s_lshl_b32 s97, s2, 9")
    A(f"s_add_u32 s97, s97, {ST_OFF + idx * 8}")
    if lay is not None:
        A(f"s_lshl_b32 s96, {lay}, 6")
        A("s_add_u32 s97, s97, s96")
    A("s_mov_b64 exec, 1")
    A(f"buffer_store_dwordx2 v[254:255], v253, {WS}, s97 offen")
    A("s_mov_b64 exec, -1")
    A.label(L)

def spin_tail(loop, cnt, sleep=1):
    if sleep:
        A(f"s_sleep {sleep}")
    A(f"s_sub_u32 s{cnt}, s{cnt}, 1")
    A(f"s_cmp_lg_u32 s{cnt}, 0")
    A(f"s_cbranch_scc1 {loop}")

def any_sentinel(regs, t, done):
    regs = list(regs)
    A(f"v_max3_u32 {v(t)}, {v(regs[0])}, {v(regs[1])}, {v(regs[2])}")
    k = 3
    while k + 1 < len(regs):
        A(f"v_max3_u32 {v(t)}, {v(t)}, {v(regs[k])}, {v(regs[k+1])}")
        k += 2
    if k < len(regs):
        A(f"v_max_u32 {v(t)}, {v(t)}, {v(regs[k])}")
    A(f"v_cmp_eq_u32 vcc, -1, {v(t)}")
    A(f"s_cbranch_vccz {done}")

def poll_flags(k, srep, t, sleep=None):
    loop, done = A.newlabel("Lpoll"), A.newlabel("Lpolld")
    A(f"s_cmp_lg_u32 s{WV}, 0")
    A(f"s_cbranch_scc1 {done}")
    if isinstance(k, int):
        A(f"s_add_u32 s60, s{srep}, {FL_OFF + k * NREP * FREP}")
    else:
        A(f"s_mul_i32 s60, {k}, {NREP * FREP}")
        A(f"s_add_u32 s60, s60, s{srep}")
        A(f"s_add_u32 s60, s60, {FL_OFF}")
    A(f"s_add_u32 s61, s{NONCE}, {k}")
    A(f"v_and_b32 {v(t+1)}, 15, v1")
    A(f"v_lshlrev_b32 {v(t+1)}, {FSH}, {v(t+1)}")
    A(f"s_mov_b32 s62, {SPIN}")
    A.label(loop)
    A(f"buffer_load_dword {v(t)}, {v(t+1)}, {WS}, s60 offen sc1")
    A("s_waitcnt vmcnt(0)")
    A(f"v_cmp_ne_u32 vcc, s61, {v(t)}")
    A(f"s_cbranch_vccz {done}")
    spin_tail(loop, 62, PSLEEP if sleep is None else sleep)
    A.label(done)
    A("s_barrier")

def cnt_init(sshard, ks, t):
    for k in ks:
        A(f"s_add_u32 s60, s{sshard}, {16 * k}")
        A(f"s_lshl_b32 s60, s60, 7")
        A(f"s_add_u32 s60, s60, {CNT_OFF}")
        A(f"s_add_u32 s61, s{NONCE}, {k}")
        A(f"v_mov_b32 {v(t)}, 0")
        A(f"v_mov_b32 {v(t+1)}, s61")
        A(f"v_mov_b32 {v(t+2)}, 0")
        A("s_mov_b64 exec, 1")
        A(f"buffer_store_dwordx2 {v(t,2)}, {v(t+2)}, {WS}, s60 offen sc1")
        A("s_mov_b64 exec, -1")

def arrive_issue(k, sshard, t):
    L = A.newlabel("Larr")
    A(f"s_cmp_lg_u32 s{WV}, 0")
    A(f"s_cbranch_scc1 {L}")
    if isinstance(k, int):
        A(f"s_add_u32 s66, s{sshard}, {16 * k}")
    else:
        A(f"s_lshl_b32 s66, {k}, 4")
        A(f"s_add_u32 s66, s66, s{sshard}")
    A(f"s_lshl_b32 s66, s66, 7")
    A(f"s_add_u32 s66, s66, {CNT_OFF}")
    A(f"v_mov_b32 {v(t)}, 1")
    A(f"v_mov_b32 {v(t+1)}, 0")
    A(f"v_mov_b32 {v(t+2)}, 0")
    A("s_mov_b64 exec, 1")
    A(f"buffer_atomic_add_x2 {v(t,2)}, {v(t+2)}, {WS}, s66 offen sc0")
    A("s_mov_b64 exec, -1")
    A.label(L)

def arrive_finish(k, sshard, slast, t, younger):
    L, again, chk = A.newlabel("Lsig"), A.newlabel("Lsiga"), A.newlabel("Lsigc")
    A(f"s_cmp_lg_u32 s{WV}, 0")
    A(f"s_cbranch_scc1 {L}")
    if isinstance(k, int):
        A(f"s_lshl_b32 s67, s{sshard}, {FSH}")
        A(f"s_add_u32 s67, s67, {FL_OFF + k * NREP * FREP}")
    else:
        A(f"s_mul_i32 s67, {k}, {NREP * FREP}")
        A(f"s_lshl_b32 s68, s{sshard}, {FSH}")
        A(f"s_add_u32 s67, s67, s68")
        A(f"s_add_u32 s67, s67, {FL_OFF}")
    A(f"s_add_u32 s68, s{NONCE}, {k}")
    A(f"v_lshlrev_b32 {v(t+3)}, {FSH + 4}, v1")
    A(f"v_mov_b32 {v(t+4)}, s68")
    A(f"s_mov_b32 s69, {SPIN}")
    if isinstance(younger, tuple):
        A(f"s_waitcnt vmcnt({younger[2]})")
        A(f"s_cmp_eq_u32 {younger[0]}, {younger[1]}")
        A(f"s_cbranch_scc1 {chk}")
        A("s_waitcnt vmcnt(0)")
    else:
        A(f"s_waitcnt vmcnt({younger})")
    A(f"s_branch {chk}")
    A.label(again)
    A(f"s_sub_u32 s69, s69, 1")
    A(f"s_cmp_eq_u32 s69, 0")
    A(f"s_cbranch_scc1 {L}")
    A(f"v_mov_b32 {v(t)}, 1")
    A(f"v_mov_b32 {v(t+1)}, 0")
    A(f"v_mov_b32 {v(t+2)}, 0")
    A("s_mov_b64 exec, 1")
    A(f"buffer_atomic_add_x2 {v(t,2)}, {v(t+2)}, {WS}, s66 offen sc0")
    A("s_mov_b64 exec, -1")
    A("s_waitcnt vmcnt(0)")
    A.label(chk)
    A(f"v_readfirstlane_b32 s65, {v(t+1)}")
    A(f"v_readfirstlane_b32 s64, {v(t)}")
    A(f"s_cmp_lg_u32 s65, s68")
    A(f"s_cbranch_scc1 {again}")
    A(f"s_cmp_lg_u32 s64, {slast}")
    A(f"s_cbranch_scc1 {L}")
    set_exec((1 << NREP) - 1)
    A(f"buffer_store_dword {v(t+4)}, {v(t+3)}, {WS}, s67 offen sc1")
    A("s_mov_b64 exec, -1")
    A.label(L)

def rnd_pair(a, b, t):
    A(f"v_cvt_pk_bf16_f32 {v(t)}, {v(a)}, {v(b)}")
    A(f"v_lshlrev_b32 {v(a)}, 16, {v(t)}")
    A(f"v_and_b32 {v(b)}, 0xffff0000, {v(t)}")

def sincos(arg, c, sn):
    A(f"v_cos_f32 {v(c)}, {v(arg)}")
    A(f"v_sin_f32 {v(sn)}, {v(arg)}")

def prefetch_weights(t):
    if not opt("pref", 0):
        return
    srd(84, 46, 2211840)
    A(f"v_lshlrev_b32 {v(t)}, 4, v0")
    A(f"s_sub_u32 s60, s2, {C0}")
    for r in range(7):
        Ls, Ld = A.newlabel("Lpf"), A.newlabel("Lpf")
        A(f"s_add_u32 s61, s60, {235 * r}")
        A(f"s_cmp_ge_u32 s61, 1620")
        A(f"s_cbranch_scc1 {Ld}")
        A(f"s_mov_b32 s84, s46")
        A(f"s_and_b32 s85, s47, 0xffff")
        for (lim, p) in ((540, 48), (540, 50)):
            A(f"s_cmp_lt_u32 s61, {lim}")
            A(f"s_cbranch_scc1 {Ls}")
            A(f"s_sub_u32 s61, s61, {lim}")
            A(f"s_mov_b32 s84, s{p}")
            A(f"s_and_b32 s85, s{p+1}, 0xffff")
        A.label(Ls)
        A(f"s_lshl_b32 s61, s61, 12")
        A(f"buffer_load_dwordx4 {v(t+4,4)}, {v(t)}, s[84:87], s61 offen")
        A.label(Ld)

def nonce_load(r):
    A(f"v_mov_b32 {v(r)}, 0")
    A(f"buffer_load_dword {v(r)}, {v(r)}, {WS}, 0 offen")

def nonce_take(r):
    A(f"v_readfirstlane_b32 s{NONCE}, {v(r)}")
    A(f"s_add_u32 s{NONCE}, s{NONCE}, 0x{NONCE_C:x}")

def prologue():
    A(f"s_cmp_ge_u32 s2, {NWG}")
    A("s_cbranch_scc1 L_end")
    A("s_load_dwordx2 s[40:41], s[0:1], 96")
    A("s_load_dwordx2 s[42:43], s[0:1], 0")
    A("s_load_dwordx4 s[44:47], s[0:1], 48")
    A("s_load_dwordx4 s[48:51], s[0:1], 64")
    A("s_load_dwordx4 s[52:55], s[0:1], 80")
    A("v_lshrrev_b32 v2, 6, v0")
    A("v_and_b32 v1, 63, v0")
    A(f"v_readfirstlane_b32 s{WV}, v2")
    A("s_waitcnt lgkmcnt(0)")
    srd(4, 40, WS_BYTES)
    if DSTAMPS:
        srd(92, 54, 256)
    stamp(31, dbg=(0, 0))
    A(f"s_cmp_lt_u32 s2, {C0}")
    A("s_cbranch_scc1 L_roleR")
    A(f"s_cmp_lt_u32 s2, {FA0}")
    A("s_cbranch_scc1 L_roleC")
    A(f"s_cmp_lt_u32 s2, {FB0}")
    A("s_cbranch_scc1 L_roleFa")
    A("s_branch L_roleFb")

B1R, B1I, TWC, TWS, B2R, B2I, WR, INV = 16, 28, 40, 56, 72, 88, 104, 114
X, XN, MM, RS = 116, 136, 156, 158
ACR, ACI, AF1, AF2, AC2R, AC2I = 160, 176, 192, 204, 220, 236
vX, vY0, vY1, vY2, vKX, vLC, vLYW, vLYR, vLWW, vLWR0, vWG, vTA = 2, 3, 4, 5, 6, 7, 8, 9, 10, 11, 14, 15
vTB, vWG1 = 252, 115
sRHO, sA, sS2, sRA, sME, sREP, sXO, sWB, sTB, sP, sS, sQ = 22, 23, 24, 25, 26, 27, 28, 29, 30, 32, 34, 36
sSEL = 80
s32f = 38
sTAU = 39
LDS_Y, LDS_W, LDS_NEW, LDS_KX, LDS_CONST, LDS_RG = 0, 10240, 21504, 31744, 24576, 52224

def reduce_tail(r):
    for k in (8, 4, 2, 1):
        A(f"v_add_f32_dpp {v(r)}, {v(r)}, {v(r)} row_ror:{k} row_mask:0xf bank_mask:0xf")

def ln_stats(xb, t):
    S_, Q_, D0, D1 = t, t + 2, t + 4, t + 6
    A(f"v_readfirstlane_b32 s{sP}, {v(xb)}")
    A(f"v_readfirstlane_b32 s{sP+1}, {v(xb+1)}")
    for i in range(10):
        D = S_ if i == 0 else (D0 if i % 2 else D1)
        A(f"v_pk_add_f32 {v(D,2)}, {v(xb+2*i,2)}, {s(sP,2)} neg_lo:[0,1] neg_hi:[0,1]")
        if i == 0:
            A(f"v_pk_mul_f32 {v(Q_,2)}, {v(D,2)}, {v(D,2)}")
        else:
            A(f"v_pk_add_f32 {v(S_,2)}, {v(S_,2)}, {v(D,2)}")
            A(f"v_pk_fma_f32 {v(Q_,2)}, {v(D,2)}, {v(D,2)}, {v(Q_,2)}")
    A(f"v_permlane32_swap_b32 {v(S_)}, {v(S_+1)}")
    A(f"v_permlane32_swap_b32 {v(Q_)}, {v(Q_+1)}")
    A(f"v_add_f32 {v(S_)}, {v(S_)}, {v(S_+1)}")
    A(f"v_add_f32 {v(Q_)}, {v(Q_)}, {v(Q_+1)}")
    A(f"v_permlane16_swap_b32 {v(S_)}, {v(Q_)}")
    A(f"v_add_f32 {v(S_)}, {v(S_)}, {v(Q_)}")
    reduce_tail(S_)
    A(f"v_readlane_b32 s{sS}, {v(S_)}, 0")
    A(f"v_readlane_b32 s{sS+1}, {v(S_)}, 32")
    A(f"v_readlane_b32 s{sQ}, {v(S_)}, 16")
    A(f"v_readlane_b32 s{sQ+1}, {v(S_)}, 48")
    A(f"v_pk_mul_f32 {v(MM,2)}, {s(sS,2)}, {v(INV,2)} op_sel_hi:[1,0]")
    A(f"v_pk_mul_f32 {v(RS,2)}, {s(sQ,2)}, {v(INV,2)} op_sel_hi:[1,0]")
    A(f"v_pk_fma_f32 {v(RS,2)}, {v(MM,2)}, {v(MM,2)}, {v(RS,2)} neg_lo:[1,0,0] neg_hi:[1,0,0]")
    A(f"v_pk_add_f32 {v(MM,2)}, {v(MM,2)}, {s(sP,2)}")
    A(f"v_max_f32 {v(RS)}, 0, {v(RS)}")
    A(f"v_max_f32 {v(RS+1)}, 0, {v(RS+1)}")
    rnd_pair(RS, RS + 1, D0)
    A(f"v_add_f32 {v(RS)}, {f32(1e-5)}, {v(RS)}")
    A(f"v_add_f32 {v(RS+1)}, {f32(1e-5)}, {v(RS+1)}")
    rnd_pair(RS, RS + 1, D0)
    A(f"v_sqrt_f32 {v(RS)}, {v(RS)}")
    A(f"v_sqrt_f32 {v(RS+1)}, {v(RS+1)}")
    rnd_pair(MM, MM + 1, D1)
    rnd_pair(RS, RS + 1, D0)
    A(f"v_rcp_f32 {v(RS)}, {v(RS)}")
    A(f"v_rcp_f32 {v(RS+1)}, {v(RS+1)}")

def ln_center_scale(xb, zb, t, exact=True):
    for i in range(10):
        A(f"v_pk_add_f32 {v(zb+2*i,2)}, {v(xb+2*i,2)}, {v(MM,2)} neg_lo:[0,1] neg_hi:[0,1]")
        if exact:
            rnd_pair(zb + 2 * i, zb + 2 * i + 1, t + (i % 4))
    for i in range(10):
        A(f"v_pk_mul_f32 {v(zb+2*i,2)}, {v(zb+2*i,2)}, {v(RS,2)}")

def pack_rows(zb, pa, pb):
    for u in range(5):
        A(f"v_cvt_pk_bf16_f32 {v(pa+u)}, {v(zb+4*u)}, {v(zb+4*u+2)}")
        A(f"v_cvt_pk_bf16_f32 {v(pb+u)}, {v(zb+4*u+1)}, {v(zb+4*u+3)}")

def unpack_rows(zb, pa, pb):
    for u in range(5):
        A(f"v_lshlrev_b32 {v(zb+4*u)}, 16, {v(pa+u)}")
        A(f"v_and_b32 {v(zb+4*u+2)}, 0xffff0000, {v(pa+u)}")
        A(f"v_lshlrev_b32 {v(zb+4*u+1)}, 16, {v(pb+u)}")
        A(f"v_and_b32 {v(zb+4*u+3)}, 0xffff0000, {v(pb+u)}")

def store_rows(pa, pa4, pb, pb4, off, sb=sTB):
    A(f"buffer_store_dwordx4 {v(pa,4)}, {v(vTA)}, {WS}, s{sb} offen offset:{off} sc1")
    A(f"buffer_store_dword {v(pa4)}, {v(vTB)}, {WS}, s{sb} offen offset:{off} sc1")
    A(f"buffer_store_dwordx4 {v(pb,4)}, {v(vTA)}, {WS}, s{sb+1} offen offset:{off} sc1")
    A(f"buffer_store_dword {v(pb4)}, {v(vTB)}, {WS}, s{sb+1} offen offset:{off} sc1")

def to_f16(zb, t, sub=None):
    for i in range(10):
        if EXACT:
            rnd_pair(zb + 2 * i, zb + 2 * i + 1, t + (i % 4))
        if sub is not None:
            A(f"v_fma_mix_f32 {v(zb+2*i)}, {v(sub(i))}, -1.0, {v(zb+2*i)} op_sel:[0,0,0] op_sel_hi:[1,0,0]")
            A(f"v_fma_mix_f32 {v(zb+2*i+1)}, {v(sub(i))}, -1.0, {v(zb+2*i+1)} op_sel:[1,0,0] op_sel_hi:[1,0,0]")
        A(f"v_cvt_pk_f16_f32 {v(AF1+i)}, {v(zb+2*i)}, {v(zb+2*i+1)}")

def row_dft(t, shadow1=None, shadow2=None):
    for kk in range(3):
        c = "0" if kk == 0 else None
        A(f"v_mfma_f32_32x32x16_f16 {v(ACR,16)}, {v(AF1+4*kk,4)}, {v(B1R+4*kk,4)}, {c or v(ACR,16)}")
        A(f"v_mfma_f32_32x32x16_f16 {v(ACI,16)}, {v(AF1+4*kk,4)}, {v(B1I+4*kk,4)}, {c or v(ACI,16)}")
    if shadow1:
        shadow1()
    for kk in range(4):
        for i in (4 * kk, 4 * kk + 2):
            pr, pi = t + (i % 4) * 2, t + (i % 4) * 2 + 2
            A(f"v_pk_mul_f32 {v(pr,2)}, {v(ACR+i,2)}, {v(TWC+i,2)}")
            A(f"v_pk_mul_f32 {v(pi,2)}, {v(ACI+i,2)}, {v(TWC+i,2)}")
            A(f"v_pk_fma_f32 {v(pr,2)}, {v(ACI+i,2)}, {v(TWS+i,2)}, {v(pr,2)}")
            A(f"v_pk_fma_f32 {v(pi,2)}, {v(ACR+i,2)}, {v(TWS+i,2)}, {v(pi,2)} neg_lo:[1,0,0] neg_hi:[1,0,0]")
            A(f"v_cvt_pk_f16_f32 {v(AF2+i)}, {v(pr)}, {v(pi)}")
            A(f"v_cvt_pk_f16_f32 {v(AF2+i+1)}, {v(pr+1)}, {v(pi+1)}")
        c = "0" if kk == 0 else None
        A(f"v_mfma_f32_32x32x16_f16 {v(AC2R,16)}, {v(AF2+4*kk,4)}, {v(B2R+4*kk,4)}, {c or v(AC2R,16)}")
        A(f"v_mfma_f32_32x32x16_f16 {v(AC2I,16)}, {v(AF2+4*kk,4)}, {v(B2I+4*kk,4)}, {c or v(AC2I,16)}")
    if shadow2:
        shadow2()

def W_stores(layer, r0, r1, r2, lds=True):
    L = A.newlabel("Lw2")
    A(f"s_add_u32 s60, s{sWB}, {W_OFF + layer * W_SZ}")
    A(f"s_add_u32 s62, s60, {8192 + 112}")
    if lds:
        A("s_waitcnt lgkmcnt(2)")
    A(f"buffer_store_dwordx4 {v(r0,4)}, {v(vWG)}, {WS}, s60 offen sc1")
    if lds:
        A("s_waitcnt lgkmcnt(0)")
    A(f"buffer_store_dwordx4 {v(r1,4)}, {v(vWG1)}, {WS}, s60 offen sc1")
    A(f"s_cmp_ge_u32 s{WV}, 2")
    A(f"s_cbranch_scc1 {L}")
    if lds:
        A(f"ds_read2st64_b32 {v(r2,2)}, {v(vLWR0+2)} offset0:0 offset1:11")
        A(f"ds_read2st64_b32 {v(r2+2,2)}, {v(vLWR0+2)} offset0:22 offset1:33")
        A("s_waitcnt lgkmcnt(0)")
    A(f"buffer_store_dwordx4 {v(r2,4)}, {v(vWG)}, {WS}, s62 offen sc1")
    A.label(L)

def write_W(layer):
    k = 2 * layer
    for i in range(10):
        A(f"v_cvt_pk_f16_f32 {v(ACR+i)}, {v(AC2R+i)}, {v(AC2I+i)}")
        A(f"ds_write_b32 {v(vLWW)}, {v(ACR+i)} offset:{4*i}")
    A("s_waitcnt lgkmcnt(0)")
    A("s_barrier")
    for j in range(2):
        A(f"ds_read2st64_b32 {v(ACI+4*j,2)}, {v(vLWR0+j)} offset0:0 offset1:11")
        A(f"ds_read2st64_b32 {v(ACI+4*j+2,2)}, {v(vLWR0+j)} offset0:22 offset1:33")
    if EARLY_R == 0:
        arrive_issue(k, sME, AF2)
    W_stores(layer, ACI, ACI + 4, ACI + 8)
    if EARLY_R == 0:
        arrive_finish(k, sME, 15, AF2, 3)

def stage_Y(layer, first=None):
    c0, c1, c2, t = ACR, ACR + 4, ACR + 8, ACR + 16
    loop, L2, L4, L5, done = [A.newlabel("Ly") for _ in range(5)]
    A(f"s_mov_b32 s60, {Y_OFF + layer * Y_SZ}")
    A(f"s_mov_b32 s62, {SPIN}")
    for k in range(4):
        A(f"v_mov_b32 {v(c2+k)}, 0")
    if first:
        first()
    A.label(loop)
    A(f"buffer_load_dwordx4 {v(c0,4)}, {v(vY0)}, {WS}, s60 offen sc1")
    A(f"buffer_load_dwordx4 {v(c1,4)}, {v(vY1)}, {WS}, s60 offen sc1")
    A(f"s_cmp_ge_u32 s{WV}, 2")
    A(f"s_cbranch_scc1 {L2}")
    A(f"buffer_load_dwordx4 {v(c2,4)}, {v(vY2)}, {WS}, s60 offen sc1")
    A.label(L2)
    A("s_waitcnt vmcnt(0)")
    any_sentinel(range(c0, c0 + 12), t, done)
    spin_tail(loop, 62, 2)
    A.label(done)
    A(f"ds_write2st64_b32 {v(vLYW)}, {v(c0)}, {v(c0+1)} offset0:0 offset1:10")
    A(f"ds_write2st64_b32 {v(vLYW)}, {v(c0+2)}, {v(c0+3)} offset0:20 offset1:30")
    A(f"s_cmp_eq_u32 s{WV}, 0")
    A(f"s_cbranch_scc1 {L4}")
    for k in range(4):
        A(f"v_alignbit_b32 {v(t+k)}, {v(c1+3-k)}, {v(c1+3-k)}, 16")
    for k in range(4):
        A(f"v_mov_b32 {v(c1+k)}, {v(t+k)}")
    A.label(L4)
    A(f"ds_write2st64_b32 {v(vLYW)}, {v(c1)}, {v(c1+1)} offset0:4 offset1:14")
    A(f"ds_write2st64_b32 {v(vLYW)}, {v(c1+2)}, {v(c1+3)} offset0:24 offset1:34")
    A(f"s_cmp_ge_u32 s{WV}, 2")
    A(f"s_cbranch_scc1 {L5}")
    for k in range(4):
        A(f"v_alignbit_b32 {v(t+k)}, {v(c2+3-k)}, {v(c2+3-k)}, 16")
    A(f"ds_write2st64_b32 {v(vLYW)}, {v(t)}, {v(t+1)} offset0:8 offset1:18")
    A(f"ds_write2st64_b32 {v(vLYW)}, {v(t+2)}, {v(t+3)} offset0:28 offset1:38")
    A.label(L5)
    A("s_waitcnt lgkmcnt(0)")
    A("s_barrier")

def router_publish(layer, t, pa, pb):
    R_ = t
    for i in range(10):
        os_ = i & 1
        wv = v(WR + (i & ~1), 2)
        if i == 0:
            A(f"v_pk_mul_f32 {v(R_,2)}, {v(XN,2)}, {wv} op_sel:[0,{os_}] op_sel_hi:[1,{os_}]")
        else:
            A(f"v_pk_fma_f32 {v(R_,2)}, {v(XN+2*i,2)}, {wv}, {v(R_,2)} op_sel:[0,{os_},0] op_sel_hi:[1,{os_},1]")
    A(f"v_permlane32_swap_b32 {v(R_)}, {v(R_+1)}")
    A(f"v_add_f32 {v(R_)}, {v(R_)}, {v(R_+1)}")
    A(f"v_mov_b32 {v(R_+1)}, {v(R_)}")
    A(f"v_permlane16_swap_b32 {v(R_)}, {v(R_+1)}")
    A(f"v_add_f32 {v(R_)}, {v(R_)}, {v(R_+1)}")
    reduce_tail(R_)
    A(f"v_cmp_le_f32 vcc, s{sTAU}, {v(R_)}")
    A(f"v_readlane_b32 s71, {v(R_)}, 32")
    A("s_mov_b64 s[56:57], vcc")
    for row, (p_, half) in enumerate(((pa, "vcc_lo"), (pb, "vcc_hi"))):
        Lr = A.newlabel("Lcand")
        A(f"s_cmp_eq_u32 {half}, 0")
        A(f"s_cbranch_scc1 {Lr}")
        A(f"buffer_store_dwordx4 {v(p_,4)}, {v(vTA)}, {WS}, s{sTB+row} offen sc1")
        A(f"buffer_store_dword {v(p_+4)}, {v(vTB)}, {WS}, s{sTB+row} offen sc1")
        A.label(Lr)
    A(f"s_lshl_b32 s70, s{WV}, 2")
    A(f"s_add_u32 s70, s70, {LDS_RG}")
    A(f"v_mov_b32 {v(R_+2)}, s70")
    A(f"v_cvt_pk_bf16_f32 {v(R_)}, {v(R_)}, s71")
    A(f"v_lshrrev_b32 {v(R_+1)}, 15, {v(R_)}")
    A(f"v_and_b32 {v(R_+1)}, 0x10001, {v(R_+1)}")
    A(f"v_mul_u32_u24 {v(R_+1)}, 0x7fff, {v(R_+1)}")
    A(f"v_or_b32 {v(R_+1)}, 0x80008000, {v(R_+1)}")
    A(f"v_xor_b32 {v(R_)}, {v(R_)}, {v(R_+1)}")
    A(f"v_min_u32 {v(R_)}, -2, {v(R_)}")
    A("s_mov_b64 exec, 1")
    A(f"ds_write_b32 {v(R_+2)}, {v(R_)}")
    A("s_mov_b64 exec, -1")
    A("s_waitcnt lgkmcnt(0)")
    A("s_barrier")
    L = A.newlabel("Lrp")
    A(f"s_cmp_lg_u32 s{WV}, 0")
    A(f"s_cbranch_scc1 {L}")
    A(f"ds_read_b128 {v(R_+4,4)}, {v(R_+2)}")
    A(f"v_lshlrev_b32 {v(R_+2)}, {RSH + 8}, v1")
    A(f"s_lshl_b32 s73, s{sRHO}, {RSH}")
    A(f"s_add_u32 s73, s73, {RG_OFF + layer * NRR * RG_REP}")
    set_exec((1 << NRR) - 1)
    A("s_waitcnt lgkmcnt(0)")
    A(f"buffer_store_dwordx4 {v(R_+4,4)}, {v(R_+2)}, {WS}, s73 offen sc1")
    A("s_mov_b64 exec, -1")
    A.label(L)

def roleR():
    A.label("L_roleR")
    prio(2)
    srd(8, 42, 2621440)
    A("s_and_b32 s60, s2, 7")
    A("s_lshr_b32 s61, s2, 3")
    A(f"s_lshr_b32 s{sA}, s61, 3")
    A("s_and_b32 s61, s61, 7")
    A("s_lshl_b32 s60, s60, 3")
    A("s_sub_u32 s62, 56, s60")
    A(f"s_cmp_lt_u32 s{sA}, 2")
    A("s_cselect_b32 s60, s60, s62")
    A(f"s_add_u32 s{sS2}, s60, s61")
    A(f"s_lshl_b32 s60, s{sA}, 9")
    A(f"s_lshl_b32 s61, s{WV}, 7")
    A(f"s_add_u32 s{sRA}, s60, s61")
    A(f"s_add_u32 s{sRA}, s{sRA}, s{sS2}")
    A(f"s_mul_i32 s{sXO}, s{sRA}, 1280")
    A(f"s_add_u32 s63, s{sXO}, {64 * 1280}")
    T = ACR
    n, h = T, T + 1
    A(f"v_and_b32 {v(n)}, 31, v1")
    A(f"v_lshrrev_b32 {v(h)}, 5, v1")
    A(f"v_mul_u32_u24 {v(vX)}, 640, {v(h)}")
    A(f"v_lshl_add_u32 {v(vX)}, {v(n)}, 1, {v(vX)}")
    for i in range(10):
        A(f"v_mov_b32 {v(X+2*i)}, 0")
        A(f"v_mov_b32 {v(X+2*i+1)}, 0")
        A(f"buffer_load_short_d16_hi {v(X+2*i)}, {v(vX)}, {SRD1}, s{sXO} offen offset:{64*i}")
        A(f"buffer_load_short_d16_hi {v(X+2*i+1)}, {v(vX)}, {SRD1}, s63 offen offset:{64*i}")
    NV = XN
    nonce_load(NV)
    ONES = XN + 4
    A(f"s_lshl_b32 s{sRHO}, s{sA}, 6")
    A(f"s_add_u32 s{sRHO}, s{sRHO}, s{sS2}")
    A(f"s_mul_i32 s{sWB}, s{sRHO}, {WROW}")
    for k in range(4):
        A(f"v_mov_b32 {v(ONES+k)}, -1")
    A(f"v_lshlrev_b32 {v(vWG)}, 4, v0")
    A(f"v_add_u32 {v(vWG1)}, {4096 + 112}, {v(vWG)}")
    A(f"v_add_u32 {v(T+2)}, 4096, {v(vWG)}")
    A(f"v_cmp_gt_u32 vcc, 65, v0")
    A(f"v_cndmask_b32 {v(vWG1)}, {v(vWG1)}, {v(T+2)}, vcc")
    A(f"v_lshlrev_b32 {v(T+4)}, 3, v0")
    A(f"s_lshl_b32 s61, s{sRHO}, 11")
    A(f"s_add_u32 s61, s61, {RESET_OFF}")
    A(f"buffer_store_dwordx2 {v(ONES,2)}, {v(T+4)}, {WS}, s61 offen sc1")
    W_stores(0, ONES, ONES, ONES, lds=False)
    e1, e1s, base, arg, c_, s_ = T + 6, T + 7, T + 8, T + 9, T + 10, T + 11
    hf_, wf, lc = T + 12, T + 13, T + 14
    G0 = T + 16
    A(f"v_bfe_u32 {v(e1)}, {v(n)}, 2, 1")
    A(f"v_mul_u32_u24 {v(e1)}, 10, {v(e1)}")
    A(f"v_and_b32 {v(arg)}, 3, {v(n)}")
    A(f"v_add_u32 {v(e1)}, {v(e1)}, {v(arg)}")
    A(f"v_lshrrev_b32 {v(arg)}, 3, {v(n)}")
    A(f"v_lshl_add_u32 {v(e1)}, {v(arg)}, 2, {v(e1)}")
    A(f"v_cvt_f32_u32 {v(e1)}, {v(e1)}")
    A(f"v_cvt_f32_u32 {v(hf_)}, {v(h)}")
    A(f"v_cvt_f32_u32 {v(wf)}, s{WV}")
    A(f"s_lshl_b32 s60, s{WV}, 10")
    A(f"s_add_u32 s60, s60, {LDS_CONST}")
    A(f"v_lshl_add_u32 {v(lc)}, v1, 4, s60")
    A(f"v_mul_f32 {v(e1s)}, {f32(1/20)}, {v(e1)}")
    A(f"v_mul_f32 {v(base)}, {f32(10.0)}, {v(hf_)}")
    A(f"v_fma_f32 {v(base)}, 4.0, {v(wf)}, {v(base)}")
    A(f"v_mul_f32 {v(base)}, {v(e1s)}, {v(base)}")
    A(f"s_cmp_lt_u32 s{WV}, 2")
    A(f"s_cselect_b64 s[64:65], -1, 0")
    for r in range(4):
        A(f"v_fmamk_f32 {v(arg)}, {v(e1s)}, {f32(r)}, {v(base)}")
        sincos(arg, c_, s_)
        A(f"v_cvt_pk_f16_f32 {v(G0+r)}, {v(c_)}, {v(s_)}")
        A(f"v_cvt_pk_f16_f32 {v(G0+4+r)}, -{v(s_)}, {v(c_)}")
        if r >= 2:
            A(f"v_cndmask_b32 {v(G0+r)}, 0, {v(G0+r)}, s[64:65]")
            A(f"v_cndmask_b32 {v(G0+4+r)}, 0, {v(G0+4+r)}, s[64:65]")
    A(f"ds_write_b128 {v(lc)}, {v(G0,4)}")
    A(f"ds_write_b128 {v(lc)}, {v(G0+4,4)} offset:4096")
    A(f"v_mul_f32 {v(wf)}, {f32(8.0)}, {v(wf)}")
    A(f"v_fma_f32 {v(wf)}, 4.0, {v(hf_)}, {v(wf)}")
    A(f"v_mul_f32 {v(e1s)}, {f32(1/640)}, {v(e1)}")
    A(f"v_mul_f32 {v(base)}, {v(e1s)}, {v(wf)}")
    for r in range(4):
        A(f"v_fmamk_f32 {v(arg)}, {v(e1s)}, {f32(r)}, {v(base)}")
        sincos(arg, G0 + 8 + r, G0 + 12 + r)
    A(f"ds_write_b128 {v(lc)}, {v(G0+8,4)} offset:8192")
    A(f"ds_write_b128 {v(lc)}, {v(G0+12,4)} offset:12288")
    A(f"v_cvt_f32_u32 {v(e1s)}, {v(n)}")
    A(f"v_mul_f32 {v(e1s)}, {f32(1/32)}, {v(e1s)}")
    A(f"v_mul_f32 {v(base)}, {v(e1s)}, {v(wf)}")
    for r in range(4):
        A(f"v_fmamk_f32 {v(arg)}, {v(e1s)}, {f32(r)}, {v(base)}")
        sincos(arg, c_, s_)
        A(f"v_cvt_pk_f16_f32 {v(G0+16+r)}, {v(c_)}, {v(s_)}")
        A(f"v_cvt_pk_f16_f32 {v(G0+20+r)}, -{v(s_)}, {v(c_)}")
    A(f"ds_write_b128 {v(lc)}, {v(G0+16,4)} offset:16384")
    A(f"ds_write_b128 {v(lc)}, {v(G0+20,4)} offset:20480")
    A(f"v_mov_b32 {v(AF1+10)}, 0")
    A(f"v_mov_b32 {v(AF1+11)}, 0")
    A(f"v_lshlrev_b32 {v(vLC)}, 4, v1")
    A(f"v_add_u32 {v(vLC)}, {LDS_CONST}, {v(vLC)}")
    A(f"v_mov_b32 {v(INV)}, {f32(1/640)}")
    A(f"s_mov_b32 s{s32f}, {f32(32.0)}")
    A(f"s_and_b32 s{sME}, s2, 15")
    A(f"v_mul_u32_u24 {v(vLWW)}, 21, {v(n)}")
    A(f"v_mad_u32_u24 {v(vLWW)}, {v(h)}, 10, {v(vLWW)}")
    A(f"s_mul_i32 s60, s{WV}, 704")
    A(f"s_add_u32 s60, s60, {LDS_W // 4}")
    A(f"v_add_lshl_u32 {v(vLWW)}, {v(vLWW)}, s60, 2")
    A("s_waitcnt lgkmcnt(0)")
    A("s_barrier")
    for (dst, ng, off) in ((B1R, 3, 0), (B1I, 3, 4096), (TWC, 4, 8192), (TWS, 4, 12288)):
        for gq in range(ng):
            A(f"ds_read_b128 {v(dst+4*gq,4)}, {v(vLC)} offset:{off + 1024*gq}")
    for j in range(3):
        A(f"v_add_u32 {v(arg)}, {256*j}, v0")
        A(f"v_mul_u32_u24 {v(c_)}, 3277, {v(arg)}")
        A(f"v_lshrrev_b32 {v(c_)}, 16, {v(c_)}")
        A(f"v_add_u32 {v(arg)}, {v(arg)}, {v(c_)}")
        A(f"v_lshlrev_b32 {v(arg)}, 2, {v(arg)}")
        A(f"v_add_u32 {v(vLWR0+j)}, {LDS_W}, {v(arg)}")
    A(f"v_lshlrev_b32 {v(vTA)}, 4, v1")
    A(f"v_lshlrev_b32 {v(vTB)}, 2, v1")
    A(f"v_add_u32 {v(vTB)}, 1024, {v(vTB)}")
    A(f"s_mul_i32 s{sTB}, s{sRA}, {T_REC}")
    A(f"s_add_u32 s{sTB}, s{sTB}, {T_OFF}")
    A(f"s_add_u32 s{sTB+1}, s{sTB}, {64 * T_REC}")
    stamp(0, dbg=(1, 0))
    ARV = 204
    A(f"s_waitcnt vmcnt(3)")
    nonce_take(NV)
    stamp(10, dbg=(2, 0))
    if EARLY_R == 2:
        arrive_issue(0, sME, ARV)
    ln_stats(X, ACR)
    for (dst, ng, off) in ((B2R, 4, 16384), (B2I, 4, 20480)):
        for gq in range(ng):
            A(f"ds_read_b128 {v(dst+4*gq,4)}, {v(vLC)} offset:{off + 1024*gq}")
    ln_center_scale(X, XN, ACR, EXACT)
    to_f16(XN, ACR)
    A("s_waitcnt vmcnt(0) lgkmcnt(0)")
    A("s_barrier")
    arrive_issue(0, sME, XN + 8)
    def fill_xn1():
        for k in range(4):
            A(f"v_mov_b32 {v(XN+16+k)}, -1")
        store_rows(XN + 16, XN + 16, XN + 16, XN + 16, 0)
    row_dft(XN, fill_xn1, lambda: arrive_finish(0, sME, 15, XN + 8, 4))
    stamp(11)
    write_W(0)
    stamp(1, dbg=(3, 0))
    srd(12, 52, 2621440)
    srd(16, 44, 1280)
    for i in range(10):
        A(f"v_mov_b32 {v(WR+i)}, 0")
        A(f"buffer_load_short_d16_hi {v(WR+i)}, {v(vX)}, {SRD3}, 0 offen offset:{64*i}")
    A(f"v_and_b32 {v(n)}, 31, v1")
    A(f"v_lshrrev_b32 {v(h)}, 5, v1")
    A(f"v_lshlrev_b32 {v(vLYW)}, 2, v0")
    A(f"v_mul_u32_u24 {v(vLYR)}, 320, {v(h)}")
    A(f"s_mul_i32 s60, s{WV}, 640")
    A(f"v_add3_u32 {v(vLYR)}, {v(vLYR)}, {v(n)}, s60")
    A(f"v_lshlrev_b32 {v(vLYR)}, 2, {v(vLYR)}")
    A(f"s_sub_u32 s60, 3, s{sA}")
    A(f"s_lshl_b32 s60, s60, 6")
    A(f"s_sub_u32 s61, 64, s{sS2}")
    A(f"s_add_u32 s60, s60, s61")
    A(f"s_lshl_b32 s60, s60, 4")
    A(f"s_lshl_b32 s61, s{sA}, 4")
    A(f"s_add_u32 s61, s61, {YM_OFF}")
    A(f"s_cmp_eq_u32 s{sS2}, 0")
    A(f"s_cselect_b32 s60, s61, s60")
    A(f"s_cselect_b32 s61, 6, 12")
    A(f"s_lshl_b32 s62, s{sRHO}, 4")
    A(f"v_lshlrev_b32 {v(vY0)}, 12, v0")
    A(f"v_add_u32 {v(vY0)}, s62, {v(vY0)}")
    A(f"v_sub_u32 {v(arg)}, 384, v0")
    A(f"v_lshlrev_b32 {v(arg)}, s61, {v(arg)}")
    A(f"v_add_u32 {v(vY1)}, s60, {v(arg)}")
    A(f"v_add_u32 {v(c_)}, {256 << 12}, {v(vY0)}")
    A(f"v_cmp_gt_u32 vcc, 64, v0")
    A(f"v_cndmask_b32 {v(vY1)}, {v(vY1)}, {v(c_)}, vcc")
    A(f"v_sub_u32 {v(arg)}, 128, v0")
    A(f"v_and_b32 {v(arg)}, 0xff, {v(arg)}")
    A(f"v_lshlrev_b32 {v(arg)}, s61, {v(arg)}")
    A(f"v_add_u32 {v(vY2)}, s60, {v(arg)}")
    A(f"s_mul_i32 s60, s{WV}, 5120")
    A(f"s_add_u32 s60, s60, {LDS_KX}")
    A(f"v_lshl_add_u32 {v(vKX)}, v1, 4, s60")
    A(f"s_and_b32 s{sREP}, s2, {NREP - 1}")
    A(f"s_lshl_b32 s{sREP}, s{sREP}, {FSH + 4}")
    A("s_waitcnt vmcnt(0)")
    A(f"v_pk_mul_f32 {v(ACR,2)}, {v(WR,2)}, {v(WR,2)}")
    for i in range(2, 10, 2):
        A(f"v_pk_fma_f32 {v(ACR,2)}, {v(WR+i,2)}, {v(WR+i,2)}, {v(ACR,2)}")
    A(f"v_add_f32 {v(ACR)}, {v(ACR)}, {v(ACR+1)}")
    for sw in ("32", "16"):
        A(f"v_mov_b32 {v(ACR+1)}, {v(ACR)}")
        A(f"v_permlane{sw}_swap_b32 {v(ACR)}, {v(ACR+1)}")
        A(f"v_add_f32 {v(ACR)}, {v(ACR)}, {v(ACR+1)}")
    reduce_tail(ACR)
    A(f"v_sqrt_f32 {v(ACR)}, {v(ACR)}")
    A(f"v_mul_f32 {v(ACR)}, {f32(opt('tau', 150) / 100)}, {v(ACR)}")
    A(f"v_readfirstlane_b32 s{sTAU}, {v(ACR)}")
    poll_flags(1, sREP, ACR)
    stamp(2, dbg=(7, 0))
    stage_Y(0)
    stamp(13)
    for k in range(4):
        A(f"v_mov_b32 {v(AF2+k)}, -1")
    W_stores(1, AF2, AF2, AF2, lds=False)
    for i in range(10):
        A(f"ds_read_b32 {v(ACI+i)}, {v(vLYR)} offset:{128*i}")
    for i in range(10):
        A(f"s_waitcnt lgkmcnt({9-i})")
        A(f"v_fma_mix_f32 {v(X+2*i)}, {v(ACI+i)}, s{s32f}, {v(X+2*i)} op_sel:[0,0,0] op_sel_hi:[1,0,0]")
        A(f"v_fma_mix_f32 {v(X+2*i+1)}, {v(ACI+i)}, s{s32f}, {v(X+2*i+1)} op_sel:[1,0,0] op_sel_hi:[1,0,0]")
    PA, PB = AC2R, AC2R + 8
    pack_rows(X, PA, PB)
    unpack_rows(X, PA, PB)
    A(f"ds_write_b128 {v(vKX)}, {v(PA,4)} offset:2048")
    A(f"ds_write_b128 {v(vKX)}, {v(PB,4)} offset:3072")
    A(f"v_mov_b32 {v(PA+6)}, {v(PA+4)}")
    A(f"v_mov_b32 {v(PA+7)}, {v(PB+4)}")
    ln_stats(X, ACR)
    ln_center_scale(X, XN, ACR)
    pack_rows(XN, PA + 16, PB + 16)
    A("s_waitcnt vmcnt(0)")
    unpack_rows(XN, PA + 16, PB + 16)
    stamp(14)
    router_publish(0, ACI, PA + 16, PB + 16)
    stamp(3, dbg=(8, 0))
    A(f"v_mov_b32 {v(PA+4)}, {v(PA+20)}")
    A(f"v_mov_b32 {v(PA+5)}, {v(PB+20)}")
    A(f"ds_write_b128 {v(vKX)}, {v(PA+16,4)}")
    A(f"ds_write_b128 {v(vKX)}, {v(PB+16,4)} offset:1024")
    A(f"ds_write_b128 {v(vKX)}, {v(PA+4,4)} offset:4096")
    if EARLY_R == 2:
        arrive_issue(2, sME, ARV)
    for i in range(10):
        A(f"v_pk_add_f32 {v(X+2*i,2)}, {v(X+2*i,2)}, {v(XN+2*i,2)}")
        rnd_pair(X + 2 * i, X + 2 * i + 1, ACR + (i % 4))
    ln_stats(X, ACR)
    ln_center_scale(X, XN, ACR + 8, EXACT)
    to_f16(XN, ACR + 8)
    if EARLY_R == 2:
        arrive_finish(2, sME, 15, ARV, 0)
    if EARLY_R == 1:
        arrive_issue(2, sME, XN + 14)
    row_dft(XN, None, (lambda: arrive_finish(2, sME, 15, XN + 14, 0)) if EARLY_R == 1 else None)
    stamp(16)
    if not opt("wlate", 0):
        write_W(1)
    stamp(4)
    A(f"s_mov_b32 s74, {X2_OFF}")
    def release(layer, row, stash, with_xn):
        R0 = ACR
        if stash:
            A(f"ds_read_b128 {v(R0,4)}, {v(vKX)} offset:{2048+1024*row}")
            A(f"ds_read_b128 {v(R0+8,4)}, {v(vKX)} offset:4096")
            if with_xn:
                A(f"ds_read_b128 {v(R0+12,4)}, {v(vKX)} offset:{1024*row}")
            x4, x1, n4, n1 = R0, R0 + 10 + row, R0 + 12, R0 + 8 + row
        else:
            P_ = PA if row == 0 else PB
            x4, x1, n4, n1 = P_, P_ + 4, P_ + 16, P_ + 20
        A(f"s_add_u32 s61, s{NONCE}, {6 + layer}")
        A(f"v_mov_b32 {v(R0+4)}, {v(MM+row)}")
        A(f"v_mov_b32 {v(R0+5)}, {v(RS+row)}")
        A(f"v_mov_b32 {v(R0+6)}, s61")
        A(f"v_mov_b32 {v(R0+7)}, s61")
        A("s_waitcnt lgkmcnt(0)")
        if with_xn:
            A(f"buffer_store_dwordx4 {v(n4,4)}, {v(vTA)}, {WS}, s{sTB+row} offen sc1")
            A(f"buffer_store_dword {v(n1)}, {v(vTB)}, {WS}, s{sTB+row} offen sc1")
        A(f"buffer_store_dwordx4 {v(x4,4)}, {v(vTA)}, {WS}, s{sTB+row} offen offset:1280 sc1")
        A(f"buffer_store_dword {v(x1)}, {v(vTB)}, {WS}, s{sTB+row} offen offset:1280 sc1")
        A("s_waitcnt vmcnt(0)")
        A("s_mov_b64 exec, 1")
        A(f"buffer_store_dwordx4 {v(R0+4,4)}, {v(vTA)}, {WS}, s{sTB+row} offen offset:2560 sc1")
        A("s_mov_b64 exec, -1")
    def release_candidates(layer, stash):
        for row in range(2):
            Ln = A.newlabel("Lrel")
            A(f"s_cmp_eq_u32 s{56+row}, 0")
            A(f"s_cbranch_scc1 {Ln}")
            release(layer, row, stash, False)
            A.label(Ln)
    def wait_sel(layer, stash):
        loop, done = A.newlabel("Lsel"), A.newlabel("Lseld")
        T2 = ACR + 16
        A(f"s_mov_b32 s60, {X2_OFF + SEL_OFF + 256 * layer}")
        A(f"v_and_b32 {v(T2)}, 7, v1")
        A(f"v_lshlrev_b32 {v(T2)}, 2, {v(T2)}")
        A(f"s_mov_b32 s62, {SPIN}")
        A.label(loop)
        A(f"buffer_load_dword {v(T2+1)}, {v(T2)}, {WS}, s60 offen sc1")
        A("s_waitcnt vmcnt(0)")
        A(f"v_cmp_eq_u32 vcc, -1, {v(T2+1)}")
        A(f"s_cbranch_vccz {done}")
        spin_tail(loop, 62, 4)
        A.label(done)
        for j in range(8):
            A(f"v_readlane_b32 s{sSEL+j}, {v(T2+1)}, {j}")
        for row in range(2):
            A(f"s_add_u32 s60, s{sRA}, {64 * row}")
            A(f"s_mov_b32 s{76+row}, -1")
            for j in range(8):
                A(f"s_cmp_eq_u32 s60, s{sSEL+j}")
                A(f"s_cselect_b32 s{76+row}, {j}, s{76+row}")
            Ln = A.newlabel("Lpush")
            A(f"s_cmp_lt_i32 s{76+row}, 0")
            A(f"s_cbranch_scc1 {Ln}")
            A(f"s_cmp_lg_u32 s{56+row}, 0")
            A(f"s_cbranch_scc1 {Ln}")
            release(layer, row, stash, True)
            A.label(Ln)
    release_candidates(0, True)
    wait_sel(0, True)
    if opt("wlate", 0):
        write_W(1)
    A(f"s_add_u32 s{sTB}, s{sTB}, {T_SZ}")
    A(f"s_add_u32 s{sTB+1}, s{sTB+1}, {T_SZ}")
    stamp(5)
    CU, CV = XN + 12, XN + 16
    tr, ca, sa, cb, sb, ar, t0, t1_ = ACR, ACR + 1, ACR + 2, ACR + 3, ACR + 4, ACR + 5, ACR + 6, ACR + 7
    A(f"v_and_b32 {v(tr)}, 1, v1")
    A(f"v_lshlrev_b32 {v(tr)}, 6, {v(tr)}")
    A(f"v_add_u32 {v(tr)}, s{sRA}, {v(tr)}")
    A(f"s_mov_b32 s64, 0x00300003")
    A(f"s_mov_b32 s65, 0x30000300")
    for p in range(4):
        for (j, cc, ss) in ((2 * p, ca, sa), (2 * p + 1, cb, sb)):
            A(f"v_mul_u32_u24 {v(ar)}, s{sSEL+j}, {v(tr)}")
            A(f"v_and_b32 {v(ar)}, 0x7ff, {v(ar)}")
            A(f"v_cvt_f32_u32 {v(ar)}, {v(ar)}")
            A(f"v_mul_f32 {v(ar)}, {f32(1/2048)}, {v(ar)}")
            sincos(ar, cc, ss)
        A(f"v_sub_f32 {v(t0)}, {v(ca)}, {v(sb)}")
        A(f"v_add_f32 {v(t1_)}, {v(sa)}, {v(cb)}")
        A(f"v_mul_f32 {v(t0)}, 0.5, {v(t0)}")
        A(f"v_mul_f32 {v(t1_)}, 0.5, {v(t1_)}")
        A(f"v_cvt_pk_f16_f32 {v(CU+p)}, {v(t0)}, {v(t1_)}")
        A(f"v_add_f32 {v(t0)}, {v(ca)}, {v(sb)}")
        A(f"v_sub_f32 {v(t1_)}, {v(cb)}, {v(sa)}")
        A(f"v_mul_f32 {v(t0)}, 0.5, {v(t0)}")
        A(f"v_mul_f32 {v(t1_)}, 0.5, {v(t1_)}")
        A(f"v_cvt_pk_f16_f32 {v(CV+p)}, {v(t0)}, {v(t1_)}")
        A(f"v_cndmask_b32 {v(CU+p)}, 0, {v(CU+p)}, s[64:65]")
        A(f"v_cndmask_b32 {v(CV+p)}, 0, {v(CV+p)}, s[64:65]")
    vE0, vDF, vDM, vP2, vNW = vLWW, vLWR0, vLWR0 + 1, vLWR0 + 2, vWG
    n, h = ACR + 8, ACR + 9
    A(f"v_and_b32 {v(n)}, 31, v1")
    A(f"v_lshrrev_b32 {v(h)}, 5, v1")
    A(f"v_mul_u32_u24 {v(vE0)}, 20, {v(n)}")
    A(f"v_mad_u32_u24 {v(vE0)}, {v(h)}, 10, {v(vE0)}")
    vER = vKX
    A(f"v_and_b32 {v(vER)}, 31, {v(vE0)}")
    A(f"v_lshrrev_b32 {v(vDF)}, 5, {v(vE0)}")
    A(f"s_lshl_b32 s60, s{WV}, 2")
    A(f"s_add_u32 s60, s60, {LDS_W}")
    A(f"v_add_u32 {v(vE0)}, {v(vE0)}, {v(vDF)}")
    A(f"v_lshl_add_u32 {v(vE0)}, {v(vE0)}, 4, s60")
    A(f"v_mul_u32_u24 {v(vDF)}, 330, {v(h)}")
    A(f"v_add_u32 {v(vDF)}, {v(vDF)}, {v(n)}")
    A(f"v_sub_u32 {v(vDM)}, 362, {v(vDF)}")
    A(f"v_lshlrev_b32 {v(vDF)}, 4, {v(vDF)}")
    A(f"v_add_u32 {v(vDF)}, {LDS_W}, {v(vDF)}")
    A(f"v_cmp_eq_u32 vcc, 0, {v(n)}")
    A(f"v_addc_co_u32 {v(vDM)}, vcc, 0, {v(vDM)}, vcc")
    A(f"v_lshlrev_b32 {v(vDM)}, 4, {v(vDM)}")
    A(f"v_add_u32 {v(vDM)}, {LDS_W}, {v(vDM)}")
    A(f"s_lshl_b32 s60, s{WV}, 8")
    A(f"v_mul_u32_u24 {v(vP2)}, 10240, {v(h)}")
    A(f"v_lshl_add_u32 {v(vP2)}, {v(n)}, 3, {v(vP2)}")
    A(f"v_add_u32 {v(vP2)}, s60, {v(vP2)}")
    A(f"s_mul_i32 s60, s{WV}, 2560")
    A(f"s_add_u32 s60, s60, {LDS_NEW}")
    A(f"v_lshl_add_u32 {v(vNW)}, v1, 2, s60")
    A(f"s_add_u32 s75, s74, 4096")
    A(f"s_add_u32 s78, s74, 8192")
    poll_flags(3, sREP, ACR)
    stamp(6, dbg=(13, 0))
    RAW = AC2R
    def x2loads():
        for i in range(10):
            so = ("s74", "s75", "s78")[i // 4]
            A(f"buffer_load_dwordx2 {v(RAW+2*i,2)}, {v(vP2)}, {WS}, {so} offen offset:{1024*(i%4)} sc1")
    stage_Y(1, x2loads)
    alldone = A.newlabel("Lx2a")
    any_sentinel(range(RAW, RAW + 20), ACR, alldone)
    loop, done = A.newlabel("Lx2"), A.newlabel("Lx2d")
    A(f"s_mov_b32 s62, {SPIN}")
    A(f"s_add_u32 s60, s74, {SEL_OFF + 128}")
    A(f"v_mov_b32 {v(ACR)}, 0")
    A.label(loop)
    A(f"buffer_load_dword {v(ACR+1)}, {v(ACR)}, {WS}, s60 offen sc1")
    A("s_waitcnt vmcnt(0)")
    A(f"v_cmp_eq_u32 vcc, -1, {v(ACR+1)}")
    A(f"s_cbranch_vccz {done}")
    spin_tail(loop, 62, 2)
    A.label(done)
    loop, done = A.newlabel("Lx2"), A.newlabel("Lx2d")
    A(f"s_mov_b32 s62, {SPIN}")
    A.label(loop)
    x2loads()
    A("s_waitcnt vmcnt(0)")
    any_sentinel(range(RAW, RAW + 20), ACR, done)
    spin_tail(loop, 62, 1)
    A.label(done)
    A.label(alldone)
    stamp(7)
    for k in range(4):
        A(f"v_mov_b32 {v(AF2+k)}, -1")
    store_rows(AF2, AF2, AF2, AF2, 0)
    Z = ACR + 12
    for i in range(10):
        A(f"v_lshlrev_b32 {v(Z+2*i)}, 16, {v(RAW+2*i)}")
        A(f"v_and_b32 {v(Z+2*i+1)}, 0xffff0000, {v(RAW+2*i)}")
    for i in range(10):
        A(f"ds_write_b32 {v(vNW)}, {v(RAW+2*i)} offset:{256*i}")
    ln_stats(Z, ACR + 2)
    ln_center_scale(Z, Z, ACR + 2, EXACT)
    to_f16(Z, ACR + 2, sub=lambda i: RAW + 2 * i + 1)
    CBL = [16 + 4 * i for i in range(6)] + [AF1, AF1 + 4, AF1 + 8, XN + 8]
    WA = TWC
    def shadow1():
        for i in range(10):
            A(f"ds_read_b32 {v(CBL[i]+2)}, {v(vLYR)} offset:{128*i}")
        for i in range(10):
            A(f"s_waitcnt lgkmcnt({9-i})")
            A(f"v_fma_mix_f32 {v(CBL[i])}, {v(CBL[i]+2)}, s{s32f}, {v(X+2*i)} op_sel:[0,0,0] op_sel_hi:[1,0,0]")
            A(f"v_fma_mix_f32 {v(CBL[i]+1)}, {v(CBL[i]+2)}, s{s32f}, {v(X+2*i+1)} op_sel:[1,0,0] op_sel_hi:[1,0,0]")
    def shadow2():
        for i in range(10):
            A(f"v_add_u32 {v(WA+i)}, {i}, {v(vER)}")
            A(f"v_bfe_u32 {v(WA+i)}, {v(WA+i)}, 5, 1")
            A(f"v_lshl_add_u32 {v(WA+i)}, {v(WA+i)}, 4, {v(vE0)}")
    A("s_waitcnt lgkmcnt(0)")
    row_dft(XN, shadow1, shadow2)
    stamp(18)
    for i in range(10):
        A(f"v_cvt_pk_f16_f32 {v(ACR+i)}, {v(AC2R+i)}, {v(AC2I+i)}")
        A(f"ds_write_b32 {v(WA+i)}, {v(ACR+i)} offset:{16*i}")
    A("s_mov_b64 exec, 1")
    A(f"ds_write_b32 {v(vE0)}, {v(ACR)} offset:{660*16}")
    A("s_mov_b64 exec, -1")
    A("s_waitcnt lgkmcnt(0)")
    A("s_barrier")
    FRL = [40 + 4 * q for q in range(16)] + [160 + 4 * q for q in range(4)]
    def corr(k):
        A(f"v_mfma_f32_16x16x32_f16 {v(CBL[k],4)}, {v(CU,4)}, {v(FRL[2*k],4)}, {v(CBL[k],4)}")
        A(f"v_mfma_f32_16x16x32_f16 {v(CBL[k],4)}, {v(CV,4)}, {v(FRL[2*k+1],4)}, {v(CBL[k],4)}")
    for i in range(10):
        A(f"ds_read_b128 {v(FRL[2*i],4)}, {v(vDF)} offset:{528*i}")
        A(f"ds_read_b128 {v(FRL[2*i+1],4)}, {v(vDM)} offset:{528*(9-i)}")
        if i >= 6:
            A(f"s_waitcnt lgkmcnt(12)")
            corr(i - 6)
    for k in range(4, 10):
        A(f"s_waitcnt lgkmcnt({2*(9-k)})")
        corr(k)
    stamp(19)
    for row in range(2):
        Lnext = A.newlabel("Lown")
        A(f"s_cmp_lt_i32 s{76+row}, 0")
        A(f"s_cbranch_scc1 {Lnext}")
        A(f"s_lshr_b32 s62, s{76+row}, 1")
        A("s_mul_i32 s62, s62, 2560")
        A(f"s_add_u32 s62, s62, {LDS_NEW}")
        A(f"s_and_b32 s61, s{76+row}, 1")
        A("s_lshl_b32 s61, s61, 4")
        A("s_sub_u32 s61, 16, s61")
        A(f"v_lshl_add_u32 {v(240)}, v1, 2, s62")
        for i in range(10):
            A(f"ds_read_b32 {v(241+i)}, {v(240)} offset:{256*i}")
        A("s_waitcnt lgkmcnt(0)")
        for i in range(10):
            A(f"v_lshlrev_b32 {v(241+i)}, s61, {v(241+i)}")
            A(f"v_and_b32 {v(241+i)}, 0xffff0000, {v(241+i)}")
            A(f"v_sub_f32 {v(241+i)}, {v(241+i)}, {v(X+2*i+row)}")
            A(f"v_add_f32 {v(CBL[i]+row)}, {v(CBL[i]+row)}, {v(241+i)}")
        A.label(Lnext)
    for u in range(5):
        A(f"v_cvt_pk_bf16_f32 {v(PA+u)}, {v(CBL[2*u])}, {v(CBL[2*u+1])}")
        A(f"v_cvt_pk_bf16_f32 {v(PB+u)}, {v(CBL[2*u]+1)}, {v(CBL[2*u+1]+1)}")
    unpack_rows(X, PA, PB)
    ln_stats(X, ACR)
    ln_center_scale(X, XN, ACR)
    pack_rows(XN, PA + 16, PB + 16)
    A("s_waitcnt vmcnt(0)")
    unpack_rows(XN, PA + 16, PB + 16)
    stamp(20)
    router_publish(1, ACI + 8, PA + 16, PB + 16)
    stamp(8, dbg=(14, 0))
    OB = 16
    A(f"s_mul_i32 s60, s{WV}, 2560")
    A(f"v_add_u32 {v(OB)}, s60, {v(vX)}")
    for i in range(10):
        A(f"v_pk_add_f32 {v(X+2*i,2)}, {v(X+2*i,2)}, {v(XN+2*i,2)}")
        A(f"v_cvt_pk_bf16_f32 {v(OB+2+i)}, {v(X+2*i)}, {v(X+2*i+1)}")
        A(f"ds_write_b16 {v(OB)}, {v(OB+2+i)} offset:{64*i}")
        A(f"ds_write_b16_d16_hi {v(OB)}, {v(OB+2+i)} offset:{1280+64*i}")
    A(f"v_lshlrev_b32 {v(OB+1)}, 4, v1")
    A(f"v_add_u32 {v(OB)}, s60, {v(OB+1)}")
    A("s_waitcnt lgkmcnt(0)")
    for k in range(3):
        A(f"ds_read_b128 {v(OB+12+4*k,4)}, {v(OB)} offset:{1024*k}")
    A(f"v_add_u32 {v(OB+2)}, {1024 + 63 * 1280}, {v(OB+1)}")
    A(f"v_add_u32 {v(OB+3)}, 1024, {v(OB+1)}")
    A(f"v_cmp_gt_u32 vcc, 16, v1")
    A(f"v_cndmask_b32 {v(OB+3)}, {v(OB+2)}, {v(OB+3)}, vcc")
    def out_stores():
        A("s_waitcnt lgkmcnt(0)")
        A(f"buffer_store_dwordx4 {v(OB+12,4)}, {v(OB+1)}, {SRD2}, s{sXO} offen sc1")
        A(f"buffer_store_dwordx4 {v(OB+16,4)}, {v(OB+3)}, {SRD2}, s{sXO} offen sc1")
        set_exec(0xffffffff)
        A(f"buffer_store_dwordx4 {v(OB+20,4)}, {v(OB+2)}, {SRD2}, s{sXO} offen offset:1024 sc1")
        A("s_mov_b64 exec, -1")
    OD = opt("outdelay", 0)
    if OD:
        A(f"s_lshl_b32 s73, s{sRHO}, 4")
        A(f"s_add_u32 s73, s73, {RG_OFF + NRR * RG_REP}")
        A(f"v_mov_b32 {v(ACR)}, 0")
        for _ in range(OD):
            A(f"buffer_load_dword {v(ACR+1)}, {v(ACR)}, {WS}, s73 offen sc1")
            A("s_waitcnt vmcnt(0)")
    out_stores()
    release_candidates(1, False)
    wait_sel(1, False)
    stamp(22)
    stamp(9)
    A("s_endpgm")

def roleC():
    A.label("L_roleC")
    B1, TC, TS, A2, DT, RAW, AR, AI, P, AC, O, T = 16, 32, 48, 64, 128, 160, 176, 192, 208, 224, 240, 248
    sC, sCME, sCREP, sK, sW0, sW1, sY, sLAST = 22, 23, 24, 25, 26, 27, 28, 29
    nonce_load(T + 4)
    A(f"s_sub_u32 s60, s2, {C0}")
    A("s_and_b32 s61, s60, 7")
    A("s_lshr_b32 s62, s60, 3")
    A("s_lshr_b32 s63, s62, 2")
    A("s_lshl_b32 s63, s63, 5")
    A("s_lshl_b32 s61, s61, 2")
    A("s_and_b32 s62, s62, 3")
    A(f"s_add_u32 s{sC}, s63, s61")
    A(f"s_add_u32 s{sC}, s{sC}, s62")
    A(f"s_and_b32 s{sCME}, s2, 15")
    A(f"s_cmp_eq_u32 s{sCME}, 0")
    A(f"s_cselect_b32 s{sLAST}, 10, 9")
    A(f"s_and_b32 s{sCREP}, s2, {NREP - 1}")
    A(f"s_lshl_b32 s{sCREP}, s{sCREP}, {FSH + 4}")
    n, g, t1, gs, arg, base, st = RAW, RAW + 1, RAW + 2, RAW + 3, RAW + 4, RAW + 5, RAW + 6
    ca, sa, cb, sb, x0, x1 = RAW + 7, RAW + 8, RAW + 9, RAW + 10, RAW + 11, RAW + 12
    A(f"v_and_b32 {v(n)}, 15, v1")
    A(f"v_lshrrev_b32 {v(g)}, 4, v1")
    A(f"s_and_b32 s70, s{WV}, 1")
    A(f"s_lshl_b32 s70, s70, 4")
    A(f"s_lshr_b32 s61, s{WV}, 1")
    A(f"v_lshrrev_b32 v2, 1, v0")
    A(f"v_and_b32 v6, 1, v0")
    A(f"s_lshl_b32 s62, s{sC}, 1")
    A(f"v_add_u32 v3, s62, v6")
    A(f"v_min_u32 v3, 320, v3")
    A(f"v_sub_u32 v4, 640, v3")
    A(f"v_cmp_ne_u32 vcc, 0, v3")
    A(f"v_cndmask_b32 v4, 0, v4, vcc")
    A(f"v_add_u32 v5, 7, v4")
    A(f"v_cmp_lt_u32 vcc, 320, v4")
    A(f"v_cndmask_b32 v4, v4, v5, vcc")
    A(f"v_mul_u32_u24 v5, {WROW}, v2")
    A(f"v_mul_u32_u24 v6, 8256, v6")
    A(f"v_lshl_add_u32 v6, v2, 4, v6")
    A(f"v_lshl_add_u32 v2, v3, 4, v5")
    A(f"v_lshl_add_u32 v3, v4, 4, v5")
    A(f"s_mul_i32 s63, s61, 8256")
    A(f"v_lshlrev_b32 v7, 10, {v(g)}")
    A(f"v_lshl_add_u32 v7, {v(n)}, 4, v7")
    A(f"v_add_u32 v7, s63, v7")
    A(f"s_add_u32 s62, s62, s61")
    A(f"s_lshl_b32 s62, s62, 12")
    A(f"v_lshl_add_u32 v8, {v(g)}, 6, {v(n)}")
    A(f"v_add_u32 v8, s70, v8")
    A(f"v_lshl_add_u32 v8, v8, 4, s62")
    A(f"s_lshr_b32 s62, s62, 6")
    A(f"s_add_u32 s62, s62, {YM_OFF + 48}")
    A(f"v_lshlrev_b32 v9, 4, {v(g)}")
    A(f"v_sub_u32 v9, s62, v9")
    def Y_stores(r0, r1, rm, sy, prep=None):
        A(f"buffer_store_dwordx4 {v(r0,4)}, v8, {WS}, {sy} offen sc1")
        A(f"buffer_store_dwordx4 {v(r1,4)}, v8, {WS}, {sy} offen offset:512 sc1")
        Lm = A.newlabel("Lym")
        A(f"s_bitcmp1_b32 s{WV}, 0")
        A(f"s_cbranch_scc1 {Lm}")
        if prep:
            prep()
        set_exec(0x0001000100010001)
        A(f"buffer_store_dwordx4 {v(rm,4)}, v9, {WS}, {sy} offen sc1")
        A("s_mov_b64 exec, -1")
        A.label(Lm)
    A("s_waitcnt vmcnt(0)")
    nonce_take(T + 4)
    Li = A.newlabel("Lci")
    A(f"s_sub_u32 s60, s2, {C0}")
    A(f"s_lshl_b32 s61, s{WV}, 4")
    A(f"s_or_b32 s60, s60, s61")
    A(f"s_cmp_ge_u32 s60, 16")
    A(f"s_cbranch_scc1 {Li}")
    cnt_init(sCME, range(4), T)
    A.label(Li)
    for k in range(4):
        A(f"v_mov_b32 {v(O+k)}, -1")
    A(f"s_mov_b32 s63, {Y_OFF}")
    Y_stores(O, O, O, "s63")
    prefetch_weights(AC)
    A(f"v_add_u32 {v(t1)}, s70, {v(n)}")
    A(f"v_cvt_f32_u32 {v(t1)}, {v(t1)}")
    A(f"v_cvt_f32_u32 {v(gs)}, {v(g)}")
    A(f"v_mul_f32 {v(st)}, {f32(1/32)}, {v(t1)}")
    A(f"v_mul_f32 {v(base)}, {v(st)}, {v(gs)}")
    A(f"v_mul_f32 {v(base)}, {f32(8.0)}, {v(base)}")
    for w in range(4):
        A(f"v_fmamk_f32 {v(arg)}, {v(st)}, {f32(2*w)}, {v(base)}")
        sincos(arg, ca, sa)
        A(f"v_add_f32 {v(arg)}, {v(arg)}, {v(st)}")
        sincos(arg, cb, sb)
        A(f"v_sub_f32 {v(x0)}, {v(ca)}, {v(sb)}")
        A(f"v_add_f32 {v(x1)}, {v(sa)}, {v(cb)}")
        A(f"v_cvt_pk_f16_f32 {v(B1+w)}, {v(x0)}, {v(x1)}")
        A(f"v_cvt_pk_f16_f32 {v(B1+4+w)}, -{v(x1)}, {v(x0)}")
        A(f"v_add_f32 {v(x0)}, {v(ca)}, {v(sb)}")
        A(f"v_sub_f32 {v(x1)}, {v(cb)}, {v(sa)}")
        A(f"v_cvt_pk_f16_f32 {v(B1+8+w)}, {v(x0)}, {v(x1)}")
        A(f"v_cvt_pk_f16_f32 {v(B1+12+w)}, {v(x1)}, -{v(x0)}")
    A(f"v_mul_f32 {v(st)}, {f32(1/2048)}, {v(t1)}")
    A(f"v_mul_f32 {v(base)}, {v(st)}, {v(gs)}")
    A(f"v_mul_f32 {v(base)}, 4.0, {v(base)}")
    for j in range(4):
        for i in range(4):
            A(f"v_fmamk_f32 {v(arg)}, {v(st)}, {f32(16*j+i)}, {v(base)}")
            sincos(arg, ca, sa)
            A(f"v_mul_f32 {v(TC+4*j+i)}, {f32(1/64)}, {v(ca)}")
            A(f"v_mul_f32 {v(TS+4*j+i)}, {f32(1/64)}, {v(sa)}")
    A(f"v_lshrrev_b32 {v(x0)}, 2, {v(n)}")
    A(f"v_lshlrev_b32 {v(x0)}, 4, {v(x0)}")
    A(f"v_and_b32 {v(x1)}, 3, {v(n)}")
    A(f"v_lshl_add_u32 {v(x0)}, {v(x1)}, 1, {v(x0)}")
    A(f"s_lshr_b32 s60, s70, 1")
    A(f"s_lshr_b32 s61, s{WV}, 1")
    A(f"s_add_u32 s60, s60, s61")
    A(f"v_add_u32 {v(x0)}, s60, {v(x0)}")
    A(f"v_cvt_f32_u32 {v(x0)}, {v(x0)}")
    A(f"v_mul_f32 {v(st)}, {f32(1/64)}, {v(x0)}")
    A(f"v_mul_f32 {v(base)}, {v(st)}, {v(gs)}")
    A(f"v_mul_f32 {v(base)}, 4.0, {v(base)}")
    A(f"s_lshl_b32 s60, s{WV}, 12")
    A(f"s_add_u32 s60, s60, 24576")
    A(f"v_lshl_add_u32 {v(x1)}, v1, 4, s60")
    for j in range(4):
        for i in range(4):
            A(f"v_fmamk_f32 {v(arg)}, {v(st)}, {f32(16*j+i)}, {v(base)}")
            sincos(arg, ca, sa)
            A(f"v_cvt_pk_f16_f32 {v(DT+4*j+i)}, {v(ca)}, {v(sa)}")
        A(f"ds_write_b128 {v(x1)}, {v(DT+4*j,4)} offset:{1024*j}")
    A(f"v_lshlrev_b32 {v(x1)}, 4, v1")
    A("s_waitcnt lgkmcnt(0)")
    A("s_barrier")
    for q in range(16):
        A(f"ds_read_b128 {v(A2+4*q,4)}, {v(x1)} offset:{24576 + 1024*q}")
        if q == 7:
            A("s_waitcnt lgkmcnt(0)")
    A("s_waitcnt vmcnt(0)")
    prio(3)
    A(f"s_mov_b32 s{sK}, 0")
    A(f"s_mov_b32 s{sW0}, {W_OFF}")
    A(f"s_mov_b32 s{sY}, {Y_OFF}")
    stamp(4, dbg=(4, C0))
    A.label("L_Cloop")
    A(f"s_add_u32 s{sW1}, s{sW0}, {128 * WROW}")
    poll_flags(f"s{sK}", sCREP, T)
    stamp(0, f"s{sK}", dbg=(5, C0, 0))
    loop, done = A.newlabel("Lcw"), A.newlabel("Lcwd")
    A(f"s_add_u32 s30, s{sK}, 1")
    if EARLY_C == 2:
        arrive_issue("s30", sCME, O)
    A(f"s_mov_b32 s62, {SPIN}")
    A.label(loop)
    A(f"buffer_load_dwordx4 {v(RAW,4)}, v2, {WS}, s{sW0} offen sc1")
    A(f"buffer_load_dwordx4 {v(RAW+4,4)}, v2, {WS}, s{sW1} offen sc1")
    A(f"buffer_load_dwordx4 {v(RAW+8,4)}, v3, {WS}, s{sW0} offen sc1")
    A(f"buffer_load_dwordx4 {v(RAW+12,4)}, v3, {WS}, s{sW1} offen sc1")
    for j in range(4):
        A(f"s_waitcnt vmcnt({3-j})")
        A(f"ds_write_b128 v6, {v(RAW+4*j,4)} offset:{(j>>1)*4096 + (j&1)*2048}")
    any_sentinel(range(RAW, RAW + 16), T, done)
    spin_tail(loop, 62, 2)
    A.label(done)
    if EARLY_C == 1:
        arrive_issue("s30", sCME, O)
    if EARLY_C == 2:
        arrive_finish("s30", sCME, f"s{sLAST}", O, 0)
    A("s_waitcnt lgkmcnt(0)")
    A("s_barrier")
    stamp(1, f"s{sK}")
    Lf = A.newlabel("Lcf")
    A(f"s_cmp_lg_u32 s{sK}, 0")
    A(f"s_cbranch_scc1 {Lf}")
    for k in range(4):
        A(f"v_mov_b32 {v(P+k)}, -1")
    A(f"s_mov_b32 s63, {Y_OFF + Y_SZ}")
    Y_stores(P, P, P, "s63")
    A.label(Lf)
    for j in range(4):
        A(f"ds_read_b128 {v(DT+8*j,4)}, v7 offset:{256*j}")
        A(f"ds_read_b128 {v(DT+8*j+4,4)}, v7 offset:{4096+256*j}")
    for j in range(4):
        A(f"s_waitcnt lgkmcnt({7-2*j})")
        A(f"v_mfma_f32_16x16x32_f16 {v(AR+4*j,4)}, {v(DT+8*j,4)}, {v(B1,4)}, 0")
        A(f"v_mfma_f32_16x16x32_f16 {v(AI+4*j,4)}, {v(DT+8*j,4)}, {v(B1+4,4)}, 0")
        A(f"s_waitcnt lgkmcnt({6-2*j})")
        A(f"v_mfma_f32_16x16x32_f16 {v(AR+4*j,4)}, {v(DT+8*j+4,4)}, {v(B1+8,4)}, {v(AR+4*j,4)}")
        A(f"v_mfma_f32_16x16x32_f16 {v(AI+4*j,4)}, {v(DT+8*j+4,4)}, {v(B1+12,4)}, {v(AI+4*j,4)}")
    A(f"s_add_u32 s{sK}, s{sK}, 1")
    for j in range(4):
        for i in (4 * j, 4 * j + 2):
            pr, pi = RAW + (i % 4) * 2, RAW + (i % 4) * 2 + 2
            A(f"v_pk_mul_f32 {v(pr,2)}, {v(AR+i,2)}, {v(TC+i,2)}")
            A(f"v_pk_mul_f32 {v(pi,2)}, {v(AI+i,2)}, {v(TC+i,2)}")
            A(f"v_pk_fma_f32 {v(pr,2)}, {v(AI+i,2)}, {v(TS+i,2)}, {v(pr,2)}")
            A(f"v_pk_fma_f32 {v(pi,2)}, {v(AR+i,2)}, {v(TS+i,2)}, {v(pi,2)} neg_lo:[1,0,0] neg_hi:[1,0,0]")
            A(f"v_cvt_pk_f16_f32 {v(P+i)}, {v(pr)}, {v(pi)}")
            A(f"v_cvt_pk_f16_f32 {v(P+i+1)}, {v(pr+1)}, {v(pi+1)}")
        for jm in range(4):
            c = "0" if j == 0 else v(AC + 4 * jm, 4)
            A(f"v_mfma_f32_16x16x32_f16 {v(AC+4*jm,4)}, {v(A2+16*jm+4*j,4)}, {v(P+4*j,4)}, {c}")
        if j == opt("cfin", 1):
            arrive_finish("s30", sCME, f"s{sLAST}", O, ("s30", 1, 3))
    if EARLY_C == 0:
        A("s_barrier")
        arrive_issue(f"s{sK}", sCME, T)
    for k in range(8):
        A(f"v_cvt_pk_f16_f32 {v(O+k)}, {v(AC+2*k)}, {v(AC+2*k+1)}")
    def prep():
        for gq in range(4):
            A(f"v_readlane_b32 s{60+gq}, {v(O)}, {16*((gq+1)%4)}")
        for gq in range(4):
            A(f"v_writelane_b32 {v(P+4)}, s{60+gq}, {16*gq}")
        for k in range(3):
            A(f"v_alignbit_b32 {v(P+k)}, {v(O+k+1)}, {v(O+k)}, 16")
        A(f"v_alignbit_b32 {v(P+3)}, {v(P+4)}, {v(O+3)}, 16")
    Y_stores(O, O + 4, P, f"s{sY}", prep)
    if EARLY_C == 0:
        arrive_finish(f"s{sK}", sCME, f"s{sLAST}", T, 3)
    stamp(3, f"s{sK}", dbg=(6, C0, 1))
    A(f"s_add_u32 s{sK}, s{sK}, 1")
    A(f"s_add_u32 s{sW0}, s{sW0}, {W_SZ}")
    A(f"s_add_u32 s{sY}, s{sY}, {Y_SZ}")
    A(f"s_cmp_ge_u32 s{sK}, 4")
    A("s_cbranch_scc1 L_end")
    A("s_waitcnt vmcnt(0)")
    A("s_branch L_Cloop")

SORT8 = [(0, 1), (2, 3), (4, 5), (6, 7), (0, 2), (1, 3), (4, 6), (5, 7), (1, 2), (5, 6), (0, 4), (3, 7),
         (1, 5), (2, 6), (1, 4), (3, 6), (2, 4), (3, 5), (3, 4)]

def topk_setup(CODE, vG, vLW, vLR, LDS0):
    A(f"v_lshrrev_b32 {v(CODE)}, 6, v0")
    A(f"v_lshlrev_b32 {v(CODE)}, 9, {v(CODE)}")
    A(f"v_add_u32 {v(CODE)}, {v(CODE)}, v1")
    A(f"v_sub_u32 {v(CODE)}, 2047, {v(CODE)}")
    for i in range(1, 8):
        A(f"v_subrev_u32 {v(CODE+i)}, {64*i}, {v(CODE)}")
    A(f"v_lshlrev_b32 {v(vG)}, {RSH}, v0")
    A(f"v_lshrrev_b32 {v(vLW)}, 4, v0")
    A(f"v_lshlrev_b32 {v(vLW)}, 5, {v(vLW)}")
    A(f"v_add_u32 {v(vLW)}, {LDS0}, {v(vLW)}")
    A(f"v_and_b32 {v(vLR)}, 15, v1")
    A(f"v_lshlrev_b32 {v(vLR)}, 5, {v(vLR)}")
    A(f"v_add_u32 {v(vLR)}, {LDS0}, {v(vLR)}")

def topk(K, CODE, vG, vLW, vLR, sRG, blk, dbg):
    G = K + 16
    prio(0)
    for gate in ((True, False) if GATE else (False,)):
        loop, done = A.newlabel("Lrg"), A.newlabel("Lrgd")
        A(f"s_mov_b32 s62, {SPIN}")
        if gate:
            set_exec(0xff << 56)
        A.label(loop)
        A(f"buffer_load_dwordx4 {v(G,4)}, {v(vG)}, {WS}, s{sRG} offen sc1")
        A("s_waitcnt vmcnt(0)")
        any_sentinel(range(G, G + 4), K, done)
        spin_tail(loop, 62, opt("rsleep", 1))
        A.label(done)
        if gate:
            A("s_mov_b64 exec, -1")
    prio(3)
    stamp(3, "s27", dbg=dbg)
    A("s_mov_b32 s63, 0xffff0000")
    cur = list(range(K, K + 8))
    for k in range(4):
        A(f"v_lshl_or_b32 {v(cur[2*k])}, {v(G+k)}, 16, {v(CODE+2*k)}")
        A(f"v_and_or_b32 {v(cur[2*k+1])}, {v(G+k)}, s63, {v(CODE+2*k+1)}")
    free = list(range(K + 8, K + 24))

    def ce(i, j, dst=None):
        if dst is None:
            t = free.pop(0)
            A(f"v_max_u32 {v(t)}, {v(cur[i])}, {v(cur[j])}")
            A(f"v_min_u32 {v(cur[j])}, {v(cur[i])}, {v(cur[j])}")
            free.append(cur[i])
            cur[i] = t
        else:
            A(f"v_max_u32 {v(dst+i)}, {v(cur[i])}, {v(cur[j])}")
            A(f"v_min_u32 {v(dst+j)}, {v(cur[i])}, {v(cur[j])}")

    for (i, j) in SORT8:
        ce(i, j)
    pats = ["quad_perm:[1,0,3,2]", "quad_perm:[2,3,0,1]", "row_half_mirror", "row_mirror"]
    for rnd in range(2):
        for li, pat in enumerate(pats):
            new = [free.pop(0) for _ in range(8)]
            for i in (7, 6, 5, 4, 3, 2, 1, 0) if False else range(8):
                A(f"v_max_u32_dpp {v(new[i])}, {v(cur[7-i])}, {v(cur[i])} {pat} row_mask:0xf bank_mask:0xf")
            free.extend(cur)
            cur = new
            if rnd == 1 and li == 3:
                return cur
            for i in range(4):
                ce(i, i + 4)
            for i in (0, 1, 4, 5):
                ce(i, i + 2)
            if rnd == 0 and li == 3:
                for i in (0, 2, 4, 6):
                    ce(i, i + 1, dst=blk)
                set_exec(0x0001000100010001)
                A(f"ds_write_b128 {v(vLW)}, {v(blk,4)}")
                A(f"ds_write_b128 {v(vLW)}, {v(blk+4,4)} offset:16")
                A("s_mov_b64 exec, -1")
                A("s_waitcnt lgkmcnt(0)")
                A("s_barrier")
                A(f"ds_read_b128 {v(K,4)}, {v(vLR)}")
                A(f"ds_read_b128 {v(K+4,4)}, {v(vLR)} offset:16")
                A("s_waitcnt lgkmcnt(0)")
                cur = list(range(K, K + 8))
                free = list(range(K + 8, K + 24))
            else:
                for i in (6, 4, 2, 0):
                    ce(i, i + 1)

def load_weight_frags(jobs):
    total = sum(8 * j[3] for j in jobs)
    for (srdn, voff_of, soff_of, nsteps, dst, raw, vfull) in jobs:
        for k in range(nsteps):
            for q in range(8):
                d = raw + 8 * k + q
                if vfull is not None and k == vfull:
                    A(f"v_add_u32 {v(d)}, {soff_of(k, q)}, {v(voff_of(k))}")
                    A(f"buffer_load_dword {v(d)}, {v(d)}, {srdn}, 0 offen")
                    continue
                A(f"s_mov_b32 s60, {soff_of(k, q)}")
                A(f"buffer_load_dword {v(d)}, {v(voff_of(k))}, {srdn}, s60 offen")
    done = 0
    for (srdn, voff_of, soff_of, nsteps, dst, raw, vfull) in jobs:
        for k in range(nsteps):
            done += 8
            A(f"s_waitcnt vmcnt({min(63, total - done)})")
            r = raw + 8 * k
            for u in range(4):
                A(f"v_perm_b32 {v(dst + 8*k + u)}, {v(r+2*u+1)}, {v(r+2*u)}, s58")
                A(f"v_perm_b32 {v(dst + 8*k + 4 + u)}, {v(r+2*u+1)}, {v(r+2*u)}, s59")

def roleFa():
    A.label("L_roleFa")
    GW, UW, RAW, AFR, ACC, K, CODE = 16, 56, 96, 136, 156, 176, 200
    vG, vLW, vLR, vW1, vW2, vLP1, vLP2, vPW, vPR, vH = 2, 3, 4, 5, 6, 7, 8, 9, 10, 11
    sKAP, sRG, sT, sH, sL = 22, 23, 25, 26, 27
    T = 208
    nonce_load(T + 8)
    srd(8, 46, 2211840)
    srd(12, 48, 2211840)
    A(f"s_sub_u32 s{sKAP}, s2, {FA0}")
    A("s_mov_b32 s58, 0x05040100")
    A("s_mov_b32 s59, 0x07060302")
    n, g = T, T + 1
    A(f"v_and_b32 {v(n)}, 15, v1")
    A(f"v_lshrrev_b32 {v(g)}, 4, v1")
    A(f"s_lshr_b32 s60, s{WV}, 1")
    A(f"s_mul_i32 s60, s60, 320")
    A(f"s_and_b32 s61, s{WV}, 1")
    A(f"s_lshl_b32 s61, s61, 4")
    A(f"s_add_u32 s60, s60, s61")
    A(f"s_lshl_b32 s61, s{sKAP}, 6")
    A(f"v_lshl_add_u32 {v(T+2)}, {v(n)}, 2, s61")
    A(f"v_add_u32 {v(vW1)}, s60, {v(g)}")
    A(f"v_mul_u32_u24 {v(vW1)}, 3456, {v(vW1)}")
    A(f"v_add_u32 {v(vW1)}, {v(vW1)}, {v(T+2)}")
    A(f"v_lshl_add_u32 {v(vW2)}, {v(g)}, 2, s60")
    A(f"v_mul_u32_u24 {v(vW2)}, 3456, {v(vW2)}")
    A(f"v_add_u32 {v(vW2)}, {v(vW2)}, {v(T+2)}")
    voff = lambda k: vW1 if k < 4 else vW2
    soff = lambda k, q: ((32 * q + 4 * k) if k < 4 else (256 + 32 * (q & 1) + (q >> 1))) * 3456
    A("s_waitcnt vmcnt(0)")
    nonce_take(T + 8)
    A(f"s_and_b32 s29, s2, {NREP - 1}")
    A(f"s_lshl_b32 s29, s29, {FSH + 4}")
    prefetch_weights(T + 8)
    poll_flags(0, 29, T + 4, 8)
    load_weight_frags([(SRD1, voff, soff, 5, GW, RAW, None), (SRD2, voff, soff, 5, UW, RAW + 40, None)])
    topk_setup(CODE, vG, vLW, vLR, 8192)
    A(f"s_lshl_b32 s60, s{WV}, 4")
    A(f"v_add_lshl_u32 {v(vLP1)}, {v(g)}, s60, 4")
    A(f"s_lshl_b32 s60, s{WV}, 6")
    A(f"s_add_u32 s60, s60, 1024")
    A(f"v_lshl_add_u32 {v(vLP2)}, {v(g)}, 4, s60")
    A(f"s_lshl_b32 s60, s{WV}, 11")
    A(f"v_lshlrev_b32 {v(vPW)}, 9, {v(g)}")
    A(f"v_lshl_add_u32 {v(vPW)}, {v(n)}, 3, {v(vPW)}")
    A(f"v_add_u32 {v(vPW)}, s60, {v(vPW)}")
    A(f"v_add_u32 {v(12)}, 1024, {v(vPW)}")
    A(f"v_lshlrev_b32 {v(vPR)}, 2, v0")
    A(f"v_lshrrev_b32 {v(T+2)}, 1, v0")
    A(f"v_lshlrev_b32 {v(vH)}, 2, {v(T+2)}")
    A(f"s_lshl_b32 s{sH}, s{sKAP}, 9")
    A(f"s_add_u32 s{sH}, s{sH}, {H_OFF}")
    A(f"s_and_b32 s{sRG}, s2, {NRR - 1}")
    A(f"s_lshl_b32 s{sRG}, s{sRG}, {RSH + 8}")
    A(f"s_add_u32 s{sRG}, s{sRG}, {RG_OFF}")
    A(f"s_mov_b32 s{sT}, {T_OFF}")
    A(f"s_mov_b32 s28, {T_REC}")
    for (r, val) in ((30, 0xAAAAAAAA), (32, 0xCCCCCCCC), (34, 0xF0F0F0F0)):
        A(f"s_mov_b32 s{r}, 0x{val:x}")
        A(f"s_mov_b32 s{r+1}, 0x{val:x}")
    A(f"s_mov_b32 s{sL}, 0")
    stamp(0, dbg=(9, FA0))
    poll_flags(1, 29, T, 8)
    prio(3)
    A.label("L_FaLoop")
    c = topk(K, CODE, vG, vLW, vLR, sRG, T, (11, FA0, 0))
    stamp(4, "s27")
    for i in range(4):
        A(f"v_cndmask_b32 {v(T+i)}, {v(c[2*i])}, {v(c[2*i+1])}, s[30:31]")
    A(f"v_cndmask_b32 {v(T)}, {v(T)}, {v(T+1)}, s[32:33]")
    A(f"v_cndmask_b32 {v(T+2)}, {v(T+2)}, {v(T+3)}, s[32:33]")
    A(f"v_cndmask_b32 {v(T)}, {v(T)}, {v(T+2)}, s[34:35]")
    A(f"v_and_b32 {v(T)}, 0x7ff, {v(T)}")
    A(f"v_sub_u32 {v(T)}, 2047, {v(T)}")
    A(f"v_mad_u32_u24 {v(T+1)}, {v(T)}, s28, {v(vLP1)}")
    A(f"v_mad_u32_u24 {v(T+2)}, {v(T)}, s28, {v(vLP2)}")
    loop, done = A.newlabel("Lga"), A.newlabel("Lgad")
    A(f"s_mov_b32 s62, {SPIN}")
    A.label(loop)
    for ks in range(4):
        A(f"buffer_load_dwordx4 {v(AFR+4*ks,4)}, {v(T+1)}, {WS}, s{sT} offen offset:{64*ks} sc1")
    A(f"buffer_load_dwordx4 {v(AFR+16,4)}, {v(T+2)}, {WS}, s{sT} offen sc1")
    A("s_waitcnt vmcnt(0)")
    any_sentinel(range(AFR, AFR + 20), T + 3, done)
    spin_tail(loop, 62, 1)
    A.label(done)
    for ks in range(5):
        for a_, wb in enumerate((GW, GW + 4, UW, UW + 4)):
            cc = "0" if ks == 0 else v(ACC + 4 * a_, 4)
            A(f"v_mfma_f32_16x16x32_bf16 {v(ACC+4*a_,4)}, {v(AFR+4*ks,4)}, {v(wb+8*ks,4)}, {cc}")
    stamp(5, "s27")
    set_exec(0xffffffff)
    for mat in range(2):
        for r in range(4):
            A(f"ds_write2_b32 {v(vPW if mat == 0 else 12)}, {v(ACC+8*mat+r)}, {v(ACC+8*mat+4+r)} offset0:{32*r} offset1:{32*r+1}")
    A("s_mov_b64 exec, -1")
    A("s_waitcnt lgkmcnt(0)")
    A("s_barrier")
    for w in range(4):
        A(f"ds_read2st64_b32 {v(T+2*w,2)}, {v(vPR)} offset0:{8*w} offset1:{8*w+4}")
    A("s_waitcnt lgkmcnt(2)")
    A(f"v_pk_add_f32 {v(T,2)}, {v(T,2)}, {v(T+2,2)}")
    A("s_waitcnt lgkmcnt(0)")
    A(f"v_pk_add_f32 {v(T+4,2)}, {v(T+4,2)}, {v(T+6,2)}")
    A(f"v_pk_add_f32 {v(T,2)}, {v(T,2)}, {v(T+4,2)}")
    rnd_pair(T, T + 1, T + 2)
    A(f"v_mul_f32 {v(T+2)}, {f32(-1.4426950408889634)}, {v(T)}")
    A(f"v_exp_f32 {v(T+2)}, {v(T+2)}")
    A(f"v_add_f32 {v(T+2)}, 1.0, {v(T+2)}")
    A(f"v_rcp_f32 {v(T+2)}, {v(T+2)}")
    A(f"v_mul_f32 {v(T)}, {v(T)}, {v(T+2)}")
    A(f"v_cvt_pk_bf16_f32 {v(T)}, {v(T)}, {v(T)}")
    A(f"v_and_b32 {v(T)}, 0xffff0000, {v(T)}")
    A(f"v_mul_f32 {v(T)}, {v(T)}, {v(T+1)}")
    A(f"v_mov_b32_dpp {v(T+1)}, {v(T)} quad_perm:[1,0,3,2] row_mask:0xf bank_mask:0xf")
    A(f"v_cvt_pk_bf16_f32 {v(T)}, {v(T)}, {v(T+1)}")
    A(f"v_min_u32 {v(T)}, -2, {v(T)}")
    set_exec(0x5555555555555555)
    A(f"buffer_store_dword {v(T)}, {v(vH)}, {WS}, s{sH} offen sc1")
    A("s_mov_b64 exec, -1")
    stamp(6, "s27")
    A(f"s_add_u32 s{sH}, s{sH}, {2 * HREP}")
    A(f"s_add_u32 s{sRG}, s{sRG}, {NRR * RG_REP}")
    A(f"s_add_u32 s{sT}, s{sT}, {T_SZ}")
    A(f"s_add_u32 s{sL}, s{sL}, 1")
    A(f"s_cmp_lt_u32 s{sL}, 2")
    A("s_cbranch_scc1 L_FaLoop")
    A("s_endpgm")

def roleFb():
    A.label("L_roleFb")
    DW, HF, ACC, K, CODE, T = 16, 128, 184, 192, 216, 224
    RAW = 128
    vG, vLW, vLR, vW1, vHF, vPW, vPR, vE, vX2, vO = 2, 3, 4, 5, 6, 7, 8, 9, 10, 11
    sB, sRG, sT, sH, sL, sREP2, sES, sEC = 22, 23, 25, 26, 27, 29, 30, 31
    nonce_load(T + 8)
    srd(8, 50, 2211840)
    srd(12, 52, 2621440)
    A(f"s_sub_u32 s{sB}, s2, {FB0}")
    A("s_mov_b32 s58, 0x05040100")
    A("s_mov_b32 s59, 0x07060302")
    n, g = T, T + 1
    A(f"v_and_b32 {v(n)}, 15, v1")
    A(f"v_lshrrev_b32 {v(g)}, 4, v1")
    A(f"s_lshl_b32 s60, s{WV}, 5")
    A(f"v_lshl_add_u32 {v(vW1)}, {v(g)}, 3, s60")
    A(f"v_mul_u32_u24 {v(vW1)}, 1280, {v(vW1)}")
    A(f"s_lshl_b32 s61, s{sB}, 6")
    A(f"v_lshl_add_u32 {v(T+2)}, {v(n)}, 2, s61")
    A(f"v_add_u32 {v(vW1)}, {v(vW1)}, {v(T+2)}")
    A(f"v_mov_b32 v12, {v(n)}")
    A(f"v_mov_b32 v13, {v(g)}")
    n, g = 12, 13
    A("s_waitcnt vmcnt(0)")
    nonce_take(T + 8)
    A(f"s_and_b32 s{sREP2}, s2, {NREP - 1}")
    A(f"s_lshl_b32 s{sREP2}, s{sREP2}, {FSH + 4}")
    prefetch_weights(T + 16)
    poll_flags(0, sREP2, T + 4, 8)
    load_weight_frags([(SRD1, lambda k: vW1, lambda k, q: (128 * k + q) * 1280, 14, DW, RAW, 13)])
    topk_setup(CODE, vG, vLW, vLR, 8192)
    A(f"v_and_b32 {v(vHF)}, 7, v1")
    A(f"v_lshlrev_b32 {v(vHF)}, 6, {v(vHF)}")
    A(f"v_lshl_add_u32 {v(vHF)}, {v(g)}, 4, {v(vHF)}")
    A(f"s_lshl_b32 s60, s{WV}, 9")
    A(f"v_add_u32 {v(vHF)}, s60, {v(vHF)}")
    A(f"s_mov_b32 s{sH}, {H_OFF}")
    A(f"s_lshl_b32 s60, s{WV}, 10")
    A(f"v_lshlrev_b32 {v(vPW)}, 9, {v(g)}")
    A(f"v_lshl_add_u32 {v(vPW)}, {v(n)}, 3, {v(vPW)}")
    A(f"v_add_u32 {v(vPW)}, s60, {v(vPW)}")
    A(f"v_lshlrev_b32 {v(vPR)}, 2, v0")
    A(f"s_cmp_ge_u32 s{sB}, 10")
    A(f"s_cselect_b32 s60, 1, 0")
    A(f"s_mul_i32 s61, s60, 10")
    A(f"s_sub_u32 s61, s{sB}, s61")
    A(f"s_lshl_b32 s62, s60, 9")
    A(f"s_lshl_b32 s63, s61, 1")
    A(f"s_add_u32 s62, s62, s63")
    A(f"s_lshl_b32 s64, s60, 7")
    A(f"s_add_u32 s64, s64, s63")
    A(f"s_add_u32 s64, s64, {1024 - 16}")
    A(f"s_cmp_lt_u32 s61, 8")
    A(f"s_cselect_b32 s{sEC}, s62, s64")
    A(f"s_cselect_b32 s{sES}, 16, 4")
    A(f"v_and_b32 {v(T+2)}, 31, v1")
    A(f"v_mul_u32_u24 {v(vE)}, s{sES}, {v(T+2)}")
    A(f"s_and_b32 s32, s{sEC}, 2")
    A(f"s_lshl_b32 s32, s32, 3")
    A(f"s_sub_u32 s32, 16, s32")
    A(f"s_and_b32 s{sEC}, s{sEC}, -4")
    A(f"v_add_u32 {v(vE)}, s{sEC}, {v(vE)}")

    A(f"s_lshl_b32 s60, s{sB}, 2")
    A(f"s_add_u32 s60, s60, s{WV}")
    A(f"s_lshl_b32 s60, s60, 8")
    A(f"v_lshl_add_u32 {v(vX2)}, {v(T+2)}, 3, s60")
    A(f"v_lshrrev_b32 {v(T+3)}, 5, v1")
    A(f"v_lshl_add_u32 {v(vX2)}, {v(T+3)}, 2, {v(vX2)}")
    A(f"s_lshl_b32 s60, s{sB}, 6")
    A(f"v_lshl_add_u32 {v(vO)}, {v(T+2)}, 1, s60")
    A(f"s_and_b32 s{sRG}, s2, {NRR - 1}")
    A(f"s_lshl_b32 s{sRG}, s{sRG}, {RSH + 8}")
    A(f"s_add_u32 s{sRG}, s{sRG}, {RG_OFF}")
    A(f"s_mov_b32 s{sT}, {T_OFF}")
    A(f"s_mov_b32 s28, {T_REC}")
    A(f"s_mov_b32 s{sL}, 0")
    stamp(0, dbg=(10, FB0))
    poll_flags(1, sREP2, T, 8)
    prio(3)
    A.label("L_FbLoop")
    c = topk(K, CODE, vG, vLW, vLR, sRG, T, None)
    stamp(4, "s27")
    for j in range(8):
        A(f"v_readfirstlane_b32 s{80+j}, {v(c[j])}")
    A("s_mov_b32 s70, s80")
    A("s_mov_b32 s71, s81")
    for w in range(1, 4):
        A(f"s_cmp_eq_u32 s{WV}, {w}")
        A(f"s_cselect_b32 s70, s{80+2*w}, s70")
        A(f"s_cselect_b32 s71, s{81+2*w}, s71")
    KEY, ROW, XV, XNV, SG, ST = T, T + 1, T + 2, T + 3, T + 4, T + 8
    Ls = A.newlabel("Lfb")
    A(f"s_or_b32 s60, s{sB}, s{WV}")
    A(f"s_cmp_lg_u32 s60, 0")
    A(f"s_cbranch_scc1 {Ls}")
    A(f"v_mov_b32 {v(T+6)}, s80")
    for j in range(1, 8):
        A(f"v_writelane_b32 {v(T+6)}, s{80+j}, {j}")
    A(f"v_and_b32 {v(T+6)}, 0x7ff, {v(T+6)}")
    A(f"v_sub_u32 {v(T+6)}, 2047, {v(T+6)}")
    A(f"v_lshlrev_b32 {v(T+7)}, 2, v1")
    A(f"s_lshl_b32 s60, s{sL}, 8")
    A(f"s_add_u32 s60, s60, {X2_OFF + SEL_OFF}")
    A("s_mov_b64 exec, 0xff")
    A(f"buffer_store_dword {v(T+6)}, {v(T+7)}, {WS}, s60 offen sc1")
    A("s_mov_b64 exec, -1")
    A.label(Ls)
    A(f"v_mov_b32 {v(KEY)}, s71")
    A(f"v_mov_b32 {v(ROW)}, s70")
    A(f"v_cmp_gt_u32 vcc, 32, v1")
    A(f"v_cndmask_b32 {v(KEY)}, {v(KEY)}, {v(ROW)}, vcc")
    A(f"v_and_b32 {v(ROW)}, 0x7ff, {v(KEY)}")
    A(f"v_sub_u32 {v(ROW)}, 2047, {v(ROW)}")
    A(f"v_mad_u32_u24 {v(T+5)}, {v(ROW)}, s28, {v(vE)}")
    prio(0)
    loop, done = A.newlabel("Lst2"), A.newlabel("Lst2d")
    A(f"v_mul_u32_u24 {v(T+6)}, s28, {v(ROW)}")
    A(f"s_add_u32 s61, s{NONCE}, 6")
    A(f"s_add_u32 s61, s61, s{sL}")
    A(f"s_mov_b32 s62, {SPIN}")
    A.label(loop)
    A(f"buffer_load_dwordx4 {v(ST,4)}, {v(T+6)}, {WS}, s{sT} offen offset:2560 sc1")
    A("s_waitcnt vmcnt(0)")
    A(f"v_cmp_ne_u32 vcc, s61, {v(ST+2)}")
    A(f"s_cbranch_vccz {done}")
    spin_tail(loop, 62, 2)
    A.label(done)
    A(f"buffer_load_dword {v(XNV)}, {v(T+5)}, {WS}, s{sT} offen sc1")
    A(f"buffer_load_dword {v(XV)}, {v(T+5)}, {WS}, s{sT} offen offset:1280 sc1")
    A(f"v_ashrrev_i32 {v(SG)}, 31, {v(KEY)}")
    A(f"v_not_b32 {v(SG)}, {v(SG)}")
    A(f"v_or_b32 {v(SG)}, 0x80000000, {v(SG)}")
    A(f"v_xor_b32 {v(SG)}, {v(SG)}, {v(KEY)}")
    A(f"v_and_b32 {v(SG)}, 0xffff0000, {v(SG)}")
    A(f"v_mul_f32 {v(SG)}, {f32(-1.4426950408889634)}, {v(SG)}")
    A(f"v_exp_f32 {v(SG)}, {v(SG)}")
    A(f"v_add_f32 {v(SG)}, 1.0, {v(SG)}")
    A(f"v_rcp_f32 {v(SG)}, {v(SG)}")
    A(f"v_cvt_pk_bf16_f32 {v(SG)}, {v(SG)}, {v(SG)}")
    A(f"v_and_b32 {v(SG)}, 0xffff0000, {v(SG)}")
    stamp(2, "s27")
    def rb(r):
        A(f"v_cvt_pk_bf16_f32 {v(r)}, {v(r)}, {v(r)}")
        A(f"v_and_b32 {v(r)}, 0xffff0000, {v(r)}")
    Yv = T + 12
    XO = T + 16
    if opt("hgate", 0):
        loop, done = A.newlabel("Lh"), A.newlabel("Lhd")
        A(f"s_mov_b32 s62, {SPIN}")
        A.label(loop)
        A(f"buffer_load_dwordx4 {v(HF,4)}, {v(vHF)}, {WS}, s{sH} offen sc1")
        A("s_waitcnt vmcnt(0)")
        any_sentinel(range(HF, HF + 4), T + 6, done)
        spin_tail(loop, 62, opt("hgsleep", 2))
        A.label(done)
    loop, done = A.newlabel("Lh"), A.newlabel("Lhd")
    A(f"s_cmp_lt_u32 s{WV}, 2")
    A(f"s_cselect_b32 s63, 2048, 0")
    A(f"s_add_u32 s63, s63, {12 * 2048}")
    A(f"s_add_u32 s63, s63, s{sH}")
    A(f"s_mov_b32 s62, {SPIN}")
    A.label(loop)
    for k in range(14):
        if k == 13:
            A(f"buffer_load_dwordx4 {v(HF+4*k,4)}, {v(vHF)}, {WS}, s63 offen sc1")
        else:
            if k % 2 == 0:
                A(f"s_add_u32 s60, s{sH}, {2048 * k}")
            A(f"buffer_load_dwordx4 {v(HF+4*k,4)}, {v(vHF)}, {WS}, s60 offen offset:{2048*(k%2)} sc1")
    CK = T + 6
    A("s_waitcnt vmcnt(0)")
    any_sentinel(list(range(HF, HF + 56)), CK, done)
    spin_tail(loop, 62, opt("hsleep", 1))
    A.label(done)
    prio(3)
    stamp(5, "s27")
    Lh2 = A.newlabel("Lfb")
    A(f"s_or_b32 s60, s{sB}, s{WV}")
    A(f"s_or_b32 s60, s60, s{sL}")
    A(f"s_cmp_lg_u32 s60, 0")
    A(f"s_cbranch_scc1 {Lh2}")
    A(f"v_mov_b32 {v(CK)}, 0")
    A(f"s_mov_b32 s60, {X2_OFF + SEL_OFF + 128}")
    A("s_mov_b64 exec, 1")
    A(f"buffer_store_dword {v(CK)}, {v(CK)}, {WS}, s60 offen sc1")
    A.label(Lh2)
    A("s_mov_b64 exec, -1")
    for k in range(14):
        for par in range(2):
            cc = "0" if k == 0 else v(ACC + 4 * par, 4)
            A(f"v_mfma_f32_16x16x32_bf16 {v(ACC+4*par,4)}, {v(HF+4*k,4)}, {v(DW+8*k+4*par,4)}, {cc}")
    for r in (XNV, XV):
        A(f"v_lshlrev_b32 {v(r)}, s32, {v(r)}")
        A(f"v_and_b32 {v(r)}, 0xffff0000, {v(r)}")
    A(f"v_add_f32 {v(XO)}, {v(XV)}, {v(XNV)}")
    rb(XO)
    A(f"v_sub_f32 {v(XO)}, {v(XO)}, {v(ST)}")
    if EXACT:
        rb(XO)
    A(f"v_mul_f32 {v(XO)}, {v(XO)}, {v(ST+1)}")
    if EXACT:
        rb(XO)
    set_exec(0xffffffff)
    for r in range(4):
        A(f"ds_write2_b32 {v(vPW)}, {v(ACC+r)}, {v(ACC+4+r)} offset0:{32*r} offset1:{32*r+1}")
    A("s_mov_b64 exec, -1")
    A("s_waitcnt lgkmcnt(0)")
    A("s_barrier")
    A(f"ds_read2st64_b32 {v(Yv,2)}, {v(vPR)} offset0:0 offset1:4")
    A(f"ds_read2st64_b32 {v(Yv+2,2)}, {v(vPR)} offset0:8 offset1:12")
    A("s_waitcnt lgkmcnt(0)")
    A(f"v_pk_add_f32 {v(Yv,2)}, {v(Yv,2)}, {v(Yv+2,2)}")
    A(f"v_add_f32 {v(Yv)}, {v(Yv)}, {v(Yv+1)}")
    rb(Yv)
    A(f"v_mul_f32 {v(Yv)}, {v(Yv)}, {v(SG)}")
    rb(Yv)
    A(f"v_add_f32 {v(Yv)}, {v(Yv)}, {v(XNV)}")
    rb(Yv)
    A(f"v_add_f32 {v(Yv)}, {v(Yv)}, {v(XV)}")
    L2 = A.newlabel("Lfb")
    A(f"s_cmp_lg_u32 s{sL}, 0")
    A(f"s_cbranch_scc1 {L2}")
    A(f"v_permlane32_swap_b32 {v(Yv)}, {v(XO)}")
    A(f"v_cvt_pk_bf16_f32 {v(Yv+1)}, {v(Yv)}, {v(XO)}")
    A(f"v_cvt_pk_f16_f32 {v(Yv)}, {v(Yv)}, {v(XO)}")
    A(f"v_cmp_gt_u32 vcc, 32, v1")
    A(f"v_cndmask_b32 {v(Yv)}, {v(Yv)}, {v(Yv+1)}, vcc")
    A(f"v_min_u32 {v(Yv)}, -2, {v(Yv)}")
    for r in range(NRX):
        A(f"s_mov_b32 s60, {X2_OFF + r * X2REP}")
        A(f"buffer_store_dword {v(Yv)}, {v(vX2)}, {WS}, s60 offen sc1")
    stamp(6, "s27", dbg=(12, FB0))
    A(f"s_add_u32 s{sH}, s{sH}, {2 * HREP}")
    A(f"s_add_u32 s{sRG}, s{sRG}, {NRR * RG_REP}")
    A(f"s_add_u32 s{sT}, s{sT}, {T_SZ}")
    A(f"s_mov_b32 s{sL}, 1")
    A("s_branch L_FbLoop")
    A.label(L2)
    A(f"v_cvt_pk_bf16_f32 {v(Yv)}, {v(Yv)}, {v(Yv)}")
    A(f"s_movk_i32 s60, 1280")
    A(f"v_mad_u32_u24 {v(Yv+1)}, {v(ROW)}, s60, {v(vO)}")
    A(f"buffer_store_short {v(Yv)}, {v(Yv+1)}, {SRD2}, 0 offen sc1")
    stamp(7, "s27", dbg=(15, FB0))
    A(f"s_or_b32 s60, s{sB}, s{WV}")
    A(f"s_cmp_lg_u32 s60, 0")
    A("s_cbranch_scc1 L_end")
    A(f"v_mov_b32 {v(T)}, s{NONCE}")
    A(f"v_mov_b32 {v(T+1)}, 0")
    A("s_mov_b64 exec, 1")
    A(f"buffer_store_dword {v(T)}, {v(T+1)}, {WS}, 0 offen sc1")
    A.label("L_end")
    A("s_endpgm")

hdr = open("cdna_kernels/%s.s.ref" % NAME).read().split("\n")
head = [l for l in hdr if l.startswith(";") and "@launch" not in l and "Override" not in l and "grid=ceil" not in l]
out = "\n".join(head) + "\n"
out += f"; @launch grid=({NWG},1,1) block=(256,1,1) lds={LDS_BYTES}\n"
out += '.amdgcn_target "amdgcn-amd-amdhsa--gfx950"\n.text\n'
out += f".globl {NAME}_kernel\n.p2align 8\n.type {NAME}_kernel,@function\n{NAME}_kernel:\n"
prologue(); roleR(); roleC(); roleFa(); roleFb()
out += A.text()
out += f""".section .rodata,"a"
.p2align 6
.amdhsa_kernel {NAME}_kernel
  .amdhsa_next_free_vgpr 256
  .amdhsa_next_free_sgpr 102
  .amdhsa_accum_offset 256
  .amdhsa_group_segment_fixed_size 0
  .amdhsa_kernarg_size 104
  .amdhsa_user_sgpr_count 2
  .amdhsa_user_sgpr_kernarg_segment_ptr 1
  .amdhsa_system_sgpr_workgroup_id_x 1
  .amdhsa_float_denorm_mode_32 3
.end_amdhsa_kernel
"""
dst = [a for a in sys.argv[1:] if not a.startswith("--")]
open(dst[0] if dst else "cdna_kernels/%s.s" % NAME, "w").write(out)
print("instructions:", A.ninstr, file=sys.stderr)
```

```python
import sys, struct
from asmb import Asm

NAME = "interleave_layers__spectral_fnet__moe_arch_mod__prompt"
def opt(name, default):
    for a in sys.argv:
        if a.startswith("--%s=" % name):
            return int(a.split("=")[1])
    return default
STAMPS = "--stamps" in sys.argv
DSTAMPS = "--dstamps" in sys.argv
EXACT = opt("exact", 0)
GATE = opt("gate", 0)
NR, NC, NFA, NFB = 256, 161, 54, 20
C0, FA0, FB0, NWG = 256, 417, 471, 491
FSH = opt("fsh", 6); FREP = 16 << FSH
FL_OFF = 0x1000; NREP = opt("nrep", 16)
RESET_OFF = 0x70000
H_OFF = 0x70000; HREP = 0x7000
X2_OFF = 0x90000; X2REP = 0x5200; NRX = opt("nrx", 1); SEL_OFF = 0x5000
RSH = opt("rsh", 6)
RG_OFF = 0xA0000; NRR = opt("nrr", 8); RG_REP = 256 << RSH
CNT_OFF = 0xF8000
WROW = 10368
W_OFF = 0x100000; W_SZ = 0x290000
Y_OFF = 0x640000; Y_SZ = 0x160000; YM_OFF = 322 * 4096
T_OFF = 0x900000; T_REC = 2688; T_SZ = 2048 * T_REC
ST_OFF = 0x1400000
WS_BYTES = 0x1500000
NONCE_C = 0x9E3779B9
SPIN = 40000
LDS_BYTES = 53248
assert FL_OFF + 4 * NREP * FREP <= 0x70000 and RG_OFF + 2 * NRR * RG_REP <= 0xF0000
PSLEEP = opt("psleep", 1)
EARLY_R = opt("earlyr", 1)
EARLY_C = opt("earlyc", 1)
PRIO = opt("prio", 1)
def prio(n):
    if PRIO:
        A(f"s_setprio {n}")

def f32(x):
    return "0x%08x" % struct.unpack("<I", struct.pack("<f", x))[0]
def v(i, n=1):
    return "v%d" % i if n == 1 else "v[%d:%d]" % (i, i + n - 1)
def s(i, n=1):
    return "s%d" % i if n == 1 else "s[%d:%d]" % (i, i + n - 1)

A = Asm()
WS = "s[4:7]"; SRD1 = "s[8:11]"; SRD2 = "s[12:15]"; SRD3 = "s[16:19]"
NONCE = 20; WV = 21

def srd(base, ptr, nbytes):
    A(f"s_mov_b32 s{base}, s{ptr}")
    A(f"s_and_b32 s{base+1}, s{ptr+1}, 0xffff")
    A(f"s_mov_b32 s{base+2}, {nbytes}")
    A(f"s_mov_b32 s{base+3}, 0x00020000")

def set_exec(m):
    A(f"s_mov_b32 exec_lo, 0x{m & 0xffffffff:x}")
    A(f"s_mov_b32 exec_hi, 0x{m >> 32:x}")

def stamp(idx, lay=None, dbg=None):
    if DSTAMPS and dbg is not None:
        L = A.newlabel("Lst")
        A(f"s_lshl_b32 s97, s{WV}, 16")
        A(f"s_or_b32 s97, s97, s2")
        if len(dbg) > 2:
            A(f"s_lshl_b32 s96, {lay}, 20")
            A(f"s_or_b32 s97, s97, s96")
        A(f"s_cmp_lg_u32 s97, {dbg[1] + ((dbg[2] << 20) if len(dbg) > 2 else 0)}")
        A(f"s_cbranch_scc1 {L}")
        A("s_memrealtime s[98:99]")
        A("s_waitcnt lgkmcnt(0)")
        A("v_mov_b32 v254, s98")
        A("v_mov_b32 v253, 0")
        A("s_mov_b64 exec, 1")
        A(f"buffer_store_dword v254, v253, s[92:95], 0 offen offset:{dbg[0] * 4}")
        A("s_mov_b64 exec, -1")
        A.label(L)
    if not STAMPS:
        return
    L = A.newlabel("Lst")
    A(f"s_cmp_lg_u32 s{WV}, 0")
    A(f"s_cbranch_scc1 {L}")
    A("s_memrealtime s[98:99]")
    A("s_memtime s[100:101]")
    A("s_waitcnt lgkmcnt(0)")
    A("v_mov_b32 v254, s98")
    A("v_mov_b32 v255, s100")
    A("v_mov_b32 v253, 0")
    A("s_lshl_b32 s97, s2, 9")
    A(f"s_add_u32 s97, s97, {ST_OFF + idx * 8}")
    if lay is not None:
        A(f"s_lshl_b32 s96, {lay}, 6")
        A("s_add_u32 s97, s97, s96")
    A("s_mov_b64 exec, 1")
    A(f"buffer_store_dwordx2 v[254:255], v253, {WS}, s97 offen")
    A("s_mov_b64 exec, -1")
    A.label(L)

def spin_tail(loop, cnt, sleep=1):
    if sleep:
        A(f"s_sleep {sleep}")
    A(f"s_sub_u32 s{cnt}, s{cnt}, 1")
    A(f"s_cmp_lg_u32 s{cnt}, 0")
    A(f"s_cbranch_scc1 {loop}")

def any_sentinel(regs, t, done):
    regs = list(regs)
    A(f"v_max3_u32 {v(t)}, {v(regs[0])}, {v(regs[1])}, {v(regs[2])}")
    k = 3
    while k + 1 < len(regs):
        A(f"v_max3_u32 {v(t)}, {v(t)}, {v(regs[k])}, {v(regs[k+1])}")
        k += 2
    if k < len(regs):
        A(f"v_max_u32 {v(t)}, {v(t)}, {v(regs[k])}")
    A(f"v_cmp_eq_u32 vcc, -1, {v(t)}")
    A(f"s_cbranch_vccz {done}")

def poll_flags(k, srep, t, sleep=None):
    loop, done = A.newlabel("Lpoll"), A.newlabel("Lpolld")
    A(f"s_cmp_lg_u32 s{WV}, 0")
    A(f"s_cbranch_scc1 {done}")
    if isinstance(k, int):
        A(f"s_add_u32 s60, s{srep}, {FL_OFF + k * NREP * FREP}")
    else:
        A(f"s_mul_i32 s60, {k}, {NREP * FREP}")
        A(f"s_add_u32 s60, s60, s{srep}")
        A(f"s_add_u32 s60, s60, {FL_OFF}")
    A(f"s_add_u32 s61, s{NONCE}, {k}")
    A(f"v_and_b32 {v(t+1)}, 15, v1")
    A(f"v_lshlrev_b32 {v(t+1)}, {FSH}, {v(t+1)}")
    A(f"s_mov_b32 s62, {SPIN}")
    A.label(loop)
    A(f"buffer_load_dword {v(t)}, {v(t+1)}, {WS}, s60 offen sc1")
    A("s_waitcnt vmcnt(0)")
    A(f"v_cmp_ne_u32 vcc, s61, {v(t)}")
    A(f"s_cbranch_vccz {done}")
    spin_tail(loop, 62, PSLEEP if sleep is None else sleep)
    A.label(done)
    A("s_barrier")

def cnt_init(sshard, ks, t):
    for k in ks:
        A(f"s_add_u32 s60, s{sshard}, {16 * k}")
        A(f"s_lshl_b32 s60, s60, 7")
        A(f"s_add_u32 s60, s60, {CNT_OFF}")
        A(f"s_add_u32 s61, s{NONCE}, {k}")
        A(f"v_mov_b32 {v(t)}, 0")
        A(f"v_mov_b32 {v(t+1)}, s61")
        A(f"v_mov_b32 {v(t+2)}, 0")
        A("s_mov_b64 exec, 1")
        A(f"buffer_store_dwordx2 {v(t,2)}, {v(t+2)}, {WS}, s60 offen sc1")
        A("s_mov_b64 exec, -1")

def arrive_issue(k, sshard, t):
    L = A.newlabel("Larr")
    A(f"s_cmp_lg_u32 s{WV}, 0")
    A(f"s_cbranch_scc1 {L}")
    if isinstance(k, int):
        A(f"s_add_u32 s66, s{sshard}, {16 * k}")
    else:
        A(f"s_lshl_b32 s66, {k}, 4")
        A(f"s_add_u32 s66, s66, s{sshard}")
    A(f"s_lshl_b32 s66, s66, 7")
    A(f"s_add_u32 s66, s66, {CNT_OFF}")
    A(f"v_mov_b32 {v(t)}, 1")
    A(f"v_mov_b32 {v(t+1)}, 0")
    A(f"v_mov_b32 {v(t+2)}, 0")
    A("s_mov_b64 exec, 1")
    A(f"buffer_atomic_add_x2 {v(t,2)}, {v(t+2)}, {WS}, s66 offen sc0")
    A("s_mov_b64 exec, -1")
    A.label(L)

def arrive_finish(k, sshard, slast, t, younger):
    L, again, chk = A.newlabel("Lsig"), A.newlabel("Lsiga"), A.newlabel("Lsigc")
    A(f"s_cmp_lg_u32 s{WV}, 0")
    A(f"s_cbranch_scc1 {L}")
    if isinstance(k, int):
        A(f"s_lshl_b32 s67, s{sshard}, {FSH}")
        A(f"s_add_u32 s67, s67, {FL_OFF + k * NREP * FREP}")
    else:
        A(f"s_mul_i32 s67, {k}, {NREP * FREP}")
        A(f"s_lshl_b32 s68, s{sshard}, {FSH}")
        A(f"s_add_u32 s67, s67, s68")
        A(f"s_add_u32 s67, s67, {FL_OFF}")
    A(f"s_add_u32 s68, s{NONCE}, {k}")
    A(f"v_lshlrev_b32 {v(t+3)}, {FSH + 4}, v1")
    A(f"v_mov_b32 {v(t+4)}, s68")
    A(f"s_mov_b32 s69, {SPIN}")
    if isinstance(younger, tuple):
        A(f"s_waitcnt vmcnt({younger[2]})")
        A(f"s_cmp_eq_u32 {younger[0]}, {younger[1]}")
        A(f"s_cbranch_scc1 {chk}")
        A("s_waitcnt vmcnt(0)")
    else:
        A(f"s_waitcnt vmcnt({younger})")
    A(f"s_branch {chk}")
    A.label(again)
    A(f"s_sub_u32 s69, s69, 1")
    A(f"s_cmp_eq_u32 s69, 0")
    A(f"s_cbranch_scc1 {L}")
    A(f"v_mov_b32 {v(t)}, 1")
    A(f"v_mov_b32 {v(t+1)}, 0")
    A(f"v_mov_b32 {v(t+2)}, 0")
    A("s_mov_b64 exec, 1")
    A(f"buffer_atomic_add_x2 {v(t,2)}, {v(t+2)}, {WS}, s66 offen sc0")
    A("s_mov_b64 exec, -1")
    A("s_waitcnt vmcnt(0)")
    A.label(chk)
    A(f"v_readfirstlane_b32 s65, {v(t+1)}")
    A(f"v_readfirstlane_b32 s64, {v(t)}")
    A(f"s_cmp_lg_u32 s65, s68")
    A(f"s_cbranch_scc1 {again}")
    A(f"s_cmp_lg_u32 s64, {slast}")
    A(f"s_cbranch_scc1 {L}")
    set_exec((1 << NREP) - 1)
    A(f"buffer_store_dword {v(t+4)}, {v(t+3)}, {WS}, s67 offen sc1")
    A("s_mov_b64 exec, -1")
    A.label(L)

def rnd_pair(a, b, t):
    A(f"v_cvt_pk_bf16_f32 {v(t)}, {v(a)}, {v(b)}")
    A(f"v_lshlrev_b32 {v(a)}, 16, {v(t)}")
    A(f"v_and_b32 {v(b)}, 0xffff0000, {v(t)}")

def sincos(arg, c, sn):
    A(f"v_cos_f32 {v(c)}, {v(arg)}")
    A(f"v_sin_f32 {v(sn)}, {v(arg)}")

def prefetch_weights(t):
    if not opt("pref", 0):
        return
    srd(84, 46, 2211840)
    A(f"v_lshlrev_b32 {v(t)}, 4, v0")
    A(f"s_sub_u32 s60, s2, {C0}")
    for r in range(7):
        Ls, Ld = A.newlabel("Lpf"), A.newlabel("Lpf")
        A(f"s_add_u32 s61, s60, {235 * r}")
        A(f"s_cmp_ge_u32 s61, 1620")
        A(f"s_cbranch_scc1 {Ld}")
        A(f"s_mov_b32 s84, s46")
        A(f"s_and_b32 s85, s47, 0xffff")
        for (lim, p) in ((540, 48), (540, 50)):
            A(f"s_cmp_lt_u32 s61, {lim}")
            A(f"s_cbranch_scc1 {Ls}")
            A(f"s_sub_u32 s61, s61, {lim}")
            A(f"s_mov_b32 s84, s{p}")
            A(f"s_and_b32 s85, s{p+1}, 0xffff")
        A.label(Ls)
        A(f"s_lshl_b32 s61, s61, 12")
        A(f"buffer_load_dwordx4 {v(t+4,4)}, {v(t)}, s[84:87], s61 offen")
        A.label(Ld)

def fb_start(x, d):
    A(f"s_mul_i32 {d}, {x}, 3")
    A(f"s_lshl_b32 s62, {x}, 1")
    A(f"s_add_u32 s62, s62, 3")
    A(f"s_min_u32 {d}, {d}, s62")

def warm_weights(t):
    A("s_and_b32 s61, s2, 7")
    A("s_lshr_b32 s60, s2, 3")
    A(f"v_mul_u32_u24 {v(t)}, 13108, v0")
    A(f"v_lshrrev_b32 {v(t)}, 16, {v(t)}")
    A(f"v_mul_u32_u24 {v(t+1)}, 5, {v(t)}")
    A(f"v_sub_u32 {v(t+1)}, v0, {v(t+1)}")
    A(f"v_min_u32 {v(t)}, 39, {v(t)}")
    A(f"v_mul_u32_u24 {v(t)}, 3456, {v(t)}")
    A(f"v_lshl_add_u32 {v(t)}, {v(t+1)}, 7, {v(t)}")
    A("s_mul_i32 s63, s61, 7")
    A("s_sub_u32 s63, s63, 1")
    A("s_max_i32 s63, s63, 0")
    A("s_lshl_b32 s63, s63, 6")
    A("s_and_b32 s63, s63, -128")
    A("s_and_b32 s64, s60, 15")
    A(f"s_mul_i32 s64, s64, {40 * 3456}")
    A("s_add_u32 s63, s63, s64")
    A(f"v_add_u32 {v(t)}, s63, {v(t)}")
    A("s_cmp_lt_u32 s60, 16")
    A("s_cselect_b32 s84, s46, s48")
    A("s_cselect_b32 s85, s47, s49")
    A("s_and_b32 s85, s85, 0xffff")
    A("s_mov_b32 s86, 2211840")
    A("s_mov_b32 s87, 0x00020000")
    A(f"buffer_load_dword {v(t+2)}, {v(t)}, s[84:87], 0 offen")
    A(f"v_mul_u32_u24 {v(t)}, 21846, v0")
    A(f"v_lshrrev_b32 {v(t)}, 16, {v(t)}")
    A(f"v_mul_u32_u24 {v(t+1)}, 3, {v(t)}")
    A(f"v_sub_u32 {v(t+1)}, v0, {v(t+1)}")
    A(f"v_min_u32 {v(t)}, 53, {v(t)}")
    A(f"v_mul_u32_u24 {v(t)}, 1280, {v(t)}")
    A(f"v_lshl_add_u32 {v(t)}, {v(t+1)}, 7, {v(t)}")
    fb_start("s61", "s63")
    A("s_lshl_b32 s63, s63, 6")
    A("s_and_b32 s63, s63, -128")
    A(f"s_mul_i32 s64, s60, {54 * 1280}")
    A("s_add_u32 s63, s63, s64")
    A(f"v_add_u32 {v(t)}, s63, {v(t)}")
    A("s_mov_b32 s84, s50")
    A("s_and_b32 s85, s51, 0xffff")
    A(f"buffer_load_dword {v(t+2)}, {v(t)}, s[84:87], 0 offen")

def nonce_load(r):
    A(f"v_mov_b32 {v(r)}, 0")
    A(f"buffer_load_dword {v(r)}, {v(r)}, {WS}, 0 offen")

def nonce_take(r):
    A(f"v_readfirstlane_b32 s{NONCE}, {v(r)}")
    A(f"s_add_u32 s{NONCE}, s{NONCE}, 0x{NONCE_C:x}")

def prologue():
    A(f"s_cmp_ge_u32 s2, {NWG}")
    A("s_cbranch_scc1 L_end")
    A("s_load_dwordx2 s[40:41], s[0:1], 96")
    A("s_load_dwordx2 s[42:43], s[0:1], 0")
    A("s_load_dwordx4 s[44:47], s[0:1], 48")
    A("s_load_dwordx4 s[48:51], s[0:1], 64")
    A("s_load_dwordx4 s[52:55], s[0:1], 80")
    A("v_lshrrev_b32 v2, 6, v0")
    A("v_and_b32 v1, 63, v0")
    A(f"v_readfirstlane_b32 s{WV}, v2")
    A("s_waitcnt lgkmcnt(0)")
    srd(4, 40, WS_BYTES)
    if DSTAMPS:
        srd(92, 54, 256)
    stamp(31, dbg=(0, 0))
    A(f"s_cmp_lt_u32 s2, {C0}")
    A("s_cbranch_scc1 L_roleR")
    A(f"s_cmp_lt_u32 s2, {FA0}")
    A("s_cbranch_scc1 L_roleC")
    A(f"s_cmp_lt_u32 s2, {FB0}")
    A("s_cbranch_scc1 L_roleFa")
    A("s_branch L_roleFb")

B1R, B1I, TWC, TWS, B2R, B2I, WR, INV = 16, 28, 40, 56, 72, 88, 104, 114
X, XN, MM, RS = 116, 136, 156, 158
ACR, ACI, AF1, AF2, AC2R, AC2I = 160, 176, 192, 204, 220, 236
vX, vY0, vY1, vY2, vKX, vLC, vLYW, vLYR, vLWW, vLWR0, vWG, vTA = 2, 3, 4, 5, 6, 7, 8, 9, 10, 11, 14, 15
vTB, vWG1 = 252, 115
sRHO, sA, sS2, sRA, sME, sREP, sXO, sWB, sTB, sP, sS, sQ = 22, 23, 24, 25, 26, 27, 28, 29, 30, 32, 34, 36
sSEL = 80
s32f = 38
sTAU = 39
LDS_Y, LDS_W, LDS_NEW, LDS_KX, LDS_CONST, LDS_RG = 0, 10240, 21504, 31744, 24576, 52224

def reduce_tail(r):
    for k in (8, 4, 2, 1):
        A(f"v_add_f32_dpp {v(r)}, {v(r)}, {v(r)} row_ror:{k} row_mask:0xf bank_mask:0xf")

def ln_stats(xb, t):
    S_, Q_, D0, D1 = t, t + 2, t + 4, t + 6
    A(f"v_readfirstlane_b32 s{sP}, {v(xb)}")
    A(f"v_readfirstlane_b32 s{sP+1}, {v(xb+1)}")
    for i in range(10):
        D = S_ if i == 0 else (D0 if i % 2 else D1)
        A(f"v_pk_add_f32 {v(D,2)}, {v(xb+2*i,2)}, {s(sP,2)} neg_lo:[0,1] neg_hi:[0,1]")
        if i == 0:
            A(f"v_pk_mul_f32 {v(Q_,2)}, {v(D,2)}, {v(D,2)}")
        else:
            A(f"v_pk_add_f32 {v(S_,2)}, {v(S_,2)}, {v(D,2)}")
            A(f"v_pk_fma_f32 {v(Q_,2)}, {v(D,2)}, {v(D,2)}, {v(Q_,2)}")
    A(f"v_permlane32_swap_b32 {v(S_)}, {v(S_+1)}")
    A(f"v_permlane32_swap_b32 {v(Q_)}, {v(Q_+1)}")
    A(f"v_add_f32 {v(S_)}, {v(S_)}, {v(S_+1)}")
    A(f"v_add_f32 {v(Q_)}, {v(Q_)}, {v(Q_+1)}")
    A(f"v_permlane16_swap_b32 {v(S_)}, {v(Q_)}")
    A(f"v_add_f32 {v(S_)}, {v(S_)}, {v(Q_)}")
    reduce_tail(S_)
    A(f"v_readlane_b32 s{sS}, {v(S_)}, 0")
    A(f"v_readlane_b32 s{sS+1}, {v(S_)}, 32")
    A(f"v_readlane_b32 s{sQ}, {v(S_)}, 16")
    A(f"v_readlane_b32 s{sQ+1}, {v(S_)}, 48")
    A(f"v_pk_mul_f32 {v(MM,2)}, {s(sS,2)}, {v(INV,2)} op_sel_hi:[1,0]")
    A(f"v_pk_mul_f32 {v(RS,2)}, {s(sQ,2)}, {v(INV,2)} op_sel_hi:[1,0]")
    A(f"v_pk_fma_f32 {v(RS,2)}, {v(MM,2)}, {v(MM,2)}, {v(RS,2)} neg_lo:[1,0,0] neg_hi:[1,0,0]")
    A(f"v_pk_add_f32 {v(MM,2)}, {v(MM,2)}, {s(sP,2)}")
    A(f"v_max_f32 {v(RS)}, 0, {v(RS)}")
    A(f"v_max_f32 {v(RS+1)}, 0, {v(RS+1)}")
    rnd_pair(RS, RS + 1, D0)
    A(f"v_add_f32 {v(RS)}, {f32(1e-5)}, {v(RS)}")
    A(f"v_add_f32 {v(RS+1)}, {f32(1e-5)}, {v(RS+1)}")
    rnd_pair(RS, RS + 1, D0)
    A(f"v_sqrt_f32 {v(RS)}, {v(RS)}")
    A(f"v_sqrt_f32 {v(RS+1)}, {v(RS+1)}")
    rnd_pair(MM, MM + 1, D1)
    rnd_pair(RS, RS + 1, D0)
    A(f"v_rcp_f32 {v(RS)}, {v(RS)}")
    A(f"v_rcp_f32 {v(RS+1)}, {v(RS+1)}")

def ln_center_scale(xb, zb, t, exact=True):
    for i in range(10):
        A(f"v_pk_add_f32 {v(zb+2*i,2)}, {v(xb+2*i,2)}, {v(MM,2)} neg_lo:[0,1] neg_hi:[0,1]")
        if exact:
            rnd_pair(zb + 2 * i, zb + 2 * i + 1, t + (i % 4))
    for i in range(10):
        A(f"v_pk_mul_f32 {v(zb+2*i,2)}, {v(zb+2*i,2)}, {v(RS,2)}")

def pack_rows(zb, pa, pb):
    for u in range(5):
        A(f"v_cvt_pk_bf16_f32 {v(pa+u)}, {v(zb+4*u)}, {v(zb+4*u+2)}")
        A(f"v_cvt_pk_bf16_f32 {v(pb+u)}, {v(zb+4*u+1)}, {v(zb+4*u+3)}")

def unpack_rows(zb, pa, pb):
    for u in range(5):
        A(f"v_lshlrev_b32 {v(zb+4*u)}, 16, {v(pa+u)}")
        A(f"v_and_b32 {v(zb+4*u+2)}, 0xffff0000, {v(pa+u)}")
        A(f"v_lshlrev_b32 {v(zb+4*u+1)}, 16, {v(pb+u)}")
        A(f"v_and_b32 {v(zb+4*u+3)}, 0xffff0000, {v(pb+u)}")

def store_rows(pa, pa4, pb, pb4, off, sb=sTB):
    A(f"buffer_store_dwordx4 {v(pa,4)}, {v(vTA)}, {WS}, s{sb} offen offset:{off} sc1")
    A(f"buffer_store_dword {v(pa4)}, {v(vTB)}, {WS}, s{sb} offen offset:{off} sc1")
    A(f"buffer_store_dwordx4 {v(pb,4)}, {v(vTA)}, {WS}, s{sb+1} offen offset:{off} sc1")
    A(f"buffer_store_dword {v(pb4)}, {v(vTB)}, {WS}, s{sb+1} offen offset:{off} sc1")

def to_f16(zb, t, sub=None):
    for i in range(10):
        if EXACT:
            rnd_pair(zb + 2 * i, zb + 2 * i + 1, t + (i % 4))
        if sub is not None:
            A(f"v_fma_mix_f32 {v(zb+2*i)}, {v(sub(i))}, -1.0, {v(zb+2*i)} op_sel:[0,0,0] op_sel_hi:[1,0,0]")
            A(f"v_fma_mix_f32 {v(zb+2*i+1)}, {v(sub(i))}, -1.0, {v(zb+2*i+1)} op_sel:[1,0,0] op_sel_hi:[1,0,0]")
        A(f"v_cvt_pk_f16_f32 {v(AF1+i)}, {v(zb+2*i)}, {v(zb+2*i+1)}")

def row_dft(t, shadow1=None, shadow2=None):
    for kk in range(3):
        c = "0" if kk == 0 else None
        A(f"v_mfma_f32_32x32x16_f16 {v(ACR,16)}, {v(AF1+4*kk,4)}, {v(B1R+4*kk,4)}, {c or v(ACR,16)}")
        A(f"v_mfma_f32_32x32x16_f16 {v(ACI,16)}, {v(AF1+4*kk,4)}, {v(B1I+4*kk,4)}, {c or v(ACI,16)}")
    if shadow1:
        shadow1()
    for kk in range(4):
        for i in (4 * kk, 4 * kk + 2):
            pr, pi = t + (i % 4) * 2, t + (i % 4) * 2 + 2
            A(f"v_pk_mul_f32 {v(pr,2)}, {v(ACR+i,2)}, {v(TWC+i,2)}")
            A(f"v_pk_mul_f32 {v(pi,2)}, {v(ACI+i,2)}, {v(TWC+i,2)}")
            A(f"v_pk_fma_f32 {v(pr,2)}, {v(ACI+i,2)}, {v(TWS+i,2)}, {v(pr,2)}")
            A(f"v_pk_fma_f32 {v(pi,2)}, {v(ACR+i,2)}, {v(TWS+i,2)}, {v(pi,2)} neg_lo:[1,0,0] neg_hi:[1,0,0]")
            A(f"v_cvt_pk_f16_f32 {v(AF2+i)}, {v(pr)}, {v(pi)}")
            A(f"v_cvt_pk_f16_f32 {v(AF2+i+1)}, {v(pr+1)}, {v(pi+1)}")
        c = "0" if kk == 0 else None
        A(f"v_mfma_f32_32x32x16_f16 {v(AC2R,16)}, {v(AF2+4*kk,4)}, {v(B2R+4*kk,4)}, {c or v(AC2R,16)}")
        A(f"v_mfma_f32_32x32x16_f16 {v(AC2I,16)}, {v(AF2+4*kk,4)}, {v(B2I+4*kk,4)}, {c or v(AC2I,16)}")
    if shadow2:
        shadow2()

def W_stores(layer, r0, r1, r2, lds=True):
    L = A.newlabel("Lw2")
    A(f"s_add_u32 s60, s{sWB}, {W_OFF + layer * W_SZ}")
    A(f"s_add_u32 s62, s60, {8192 + 112}")
    if lds:
        A("s_waitcnt lgkmcnt(2)")
    A(f"buffer_store_dwordx4 {v(r0,4)}, {v(vWG)}, {WS}, s60 offen sc1")
    if lds:
        A("s_waitcnt lgkmcnt(0)")
    A(f"buffer_store_dwordx4 {v(r1,4)}, {v(vWG1)}, {WS}, s60 offen sc1")
    A(f"s_cmp_ge_u32 s{WV}, 2")
    A(f"s_cbranch_scc1 {L}")
    if lds:
        A(f"ds_read2st64_b32 {v(r2,2)}, {v(vLWR0+2)} offset0:0 offset1:11")
        A(f"ds_read2st64_b32 {v(r2+2,2)}, {v(vLWR0+2)} offset0:22 offset1:33")
        A("s_waitcnt lgkmcnt(0)")
    A(f"buffer_store_dwordx4 {v(r2,4)}, {v(vWG)}, {WS}, s62 offen sc1")
    A.label(L)

def write_W(layer):
    k = 2 * layer
    for i in range(10):
        A(f"v_cvt_pk_f16_f32 {v(ACR+i)}, {v(AC2R+i)}, {v(AC2I+i)}")
        A(f"ds_write_b32 {v(vLWW)}, {v(ACR+i)} offset:{4*i}")
    A("s_waitcnt lgkmcnt(0)")
    A("s_barrier")
    for j in range(2):
        A(f"ds_read2st64_b32 {v(ACI+4*j,2)}, {v(vLWR0+j)} offset0:0 offset1:11")
        A(f"ds_read2st64_b32 {v(ACI+4*j+2,2)}, {v(vLWR0+j)} offset0:22 offset1:33")
    if EARLY_R == 0:
        arrive_issue(k, sME, AF2)
    W_stores(layer, ACI, ACI + 4, ACI + 8)
    if EARLY_R == 0:
        arrive_finish(k, sME, 15, AF2, 3)

def stage_Y(layer, first=None):
    c0, c1, c2, t = ACR, ACR + 4, ACR + 8, ACR + 16
    loop, L2, L4, L5, done = [A.newlabel("Ly") for _ in range(5)]
    A(f"s_mov_b32 s60, {Y_OFF + layer * Y_SZ}")
    A(f"s_mov_b32 s62, {SPIN}")
    for k in range(4):
        A(f"v_mov_b32 {v(c2+k)}, 0")
    if first:
        first()
    A.label(loop)
    A(f"buffer_load_dwordx4 {v(c0,4)}, {v(vY0)}, {WS}, s60 offen sc1")
    A(f"buffer_load_dwordx4 {v(c1,4)}, {v(vY1)}, {WS}, s60 offen sc1")
    A(f"s_cmp_ge_u32 s{WV}, 2")
    A(f"s_cbranch_scc1 {L2}")
    A(f"buffer_load_dwordx4 {v(c2,4)}, {v(vY2)}, {WS}, s60 offen sc1")
    A.label(L2)
    A("s_waitcnt vmcnt(0)")
    any_sentinel(range(c0, c0 + 12), t, done)
    spin_tail(loop, 62, 2)
    A.label(done)
    A(f"ds_write2st64_b32 {v(vLYW)}, {v(c0)}, {v(c0+1)} offset0:0 offset1:10")
    A(f"ds_write2st64_b32 {v(vLYW)}, {v(c0+2)}, {v(c0+3)} offset0:20 offset1:30")
    A(f"s_cmp_eq_u32 s{WV}, 0")
    A(f"s_cbranch_scc1 {L4}")
    for k in range(4):
        A(f"v_alignbit_b32 {v(t+k)}, {v(c1+3-k)}, {v(c1+3-k)}, 16")
    for k in range(4):
        A(f"v_mov_b32 {v(c1+k)}, {v(t+k)}")
    A.label(L4)
    A(f"ds_write2st64_b32 {v(vLYW)}, {v(c1)}, {v(c1+1)} offset0:4 offset1:14")
    A(f"ds_write2st64_b32 {v(vLYW)}, {v(c1+2)}, {v(c1+3)} offset0:24 offset1:34")
    A(f"s_cmp_ge_u32 s{WV}, 2")
    A(f"s_cbranch_scc1 {L5}")
    for k in range(4):
        A(f"v_alignbit_b32 {v(t+k)}, {v(c2+3-k)}, {v(c2+3-k)}, 16")
    A(f"ds_write2st64_b32 {v(vLYW)}, {v(t)}, {v(t+1)} offset0:8 offset1:18")
    A(f"ds_write2st64_b32 {v(vLYW)}, {v(t+2)}, {v(t+3)} offset0:28 offset1:38")
    A.label(L5)
    A("s_waitcnt lgkmcnt(0)")
    A("s_barrier")

def router_publish(layer, t, pa, pb):
    R_ = t
    for i in range(10):
        os_ = i & 1
        wv = v(WR + (i & ~1), 2)
        if i == 0:
            A(f"v_pk_mul_f32 {v(R_,2)}, {v(XN,2)}, {wv} op_sel:[0,{os_}] op_sel_hi:[1,{os_}]")
        else:
            A(f"v_pk_fma_f32 {v(R_,2)}, {v(XN+2*i,2)}, {wv}, {v(R_,2)} op_sel:[0,{os_},0] op_sel_hi:[1,{os_},1]")
    A(f"v_permlane32_swap_b32 {v(R_)}, {v(R_+1)}")
    A(f"v_add_f32 {v(R_)}, {v(R_)}, {v(R_+1)}")
    A(f"v_mov_b32 {v(R_+1)}, {v(R_)}")
    A(f"v_permlane16_swap_b32 {v(R_)}, {v(R_+1)}")
    A(f"v_add_f32 {v(R_)}, {v(R_)}, {v(R_+1)}")
    reduce_tail(R_)
    A(f"v_cmp_le_f32 vcc, s{sTAU}, {v(R_)}")
    A(f"v_readlane_b32 s71, {v(R_)}, 32")
    A("s_mov_b64 s[56:57], vcc")
    for row, (p_, half) in enumerate(((pa, "vcc_lo"), (pb, "vcc_hi"))):
        Lr = A.newlabel("Lcand")
        A(f"s_cmp_eq_u32 {half}, 0")
        A(f"s_cbranch_scc1 {Lr}")
        A(f"buffer_store_dwordx4 {v(p_,4)}, {v(vTA)}, {WS}, s{sTB+row} offen sc1")
        A(f"buffer_store_dword {v(p_+4)}, {v(vTB)}, {WS}, s{sTB+row} offen sc1")
        A.label(Lr)
    A(f"s_lshl_b32 s70, s{WV}, 2")
    A(f"s_add_u32 s70, s70, {LDS_RG}")
    A(f"v_mov_b32 {v(R_+2)}, s70")
    A(f"v_cvt_pk_bf16_f32 {v(R_)}, {v(R_)}, s71")
    A(f"v_lshrrev_b32 {v(R_+1)}, 15, {v(R_)}")
    A(f"v_and_b32 {v(R_+1)}, 0x10001, {v(R_+1)}")
    A(f"v_mul_u32_u24 {v(R_+1)}, 0x7fff, {v(R_+1)}")
    A(f"v_or_b32 {v(R_+1)}, 0x80008000, {v(R_+1)}")
    A(f"v_xor_b32 {v(R_)}, {v(R_)}, {v(R_+1)}")
    A(f"v_min_u32 {v(R_)}, -2, {v(R_)}")
    A("s_mov_b64 exec, 1")
    A(f"ds_write_b32 {v(R_+2)}, {v(R_)}")
    A("s_mov_b64 exec, -1")
    A("s_waitcnt lgkmcnt(0)")
    A("s_barrier")
    L = A.newlabel("Lrp")
    A(f"s_cmp_lg_u32 s{WV}, 0")
    A(f"s_cbranch_scc1 {L}")
    A(f"ds_read_b128 {v(R_+4,4)}, {v(R_+2)}")
    A(f"v_lshlrev_b32 {v(R_+2)}, {RSH + 8}, v1")
    A(f"s_lshl_b32 s73, s{sRHO}, {RSH}")
    A(f"s_add_u32 s73, s73, {RG_OFF + layer * NRR * RG_REP}")
    set_exec((1 << NRR) - 1)
    A("s_waitcnt lgkmcnt(0)")
    A(f"buffer_store_dwordx4 {v(R_+4,4)}, {v(R_+2)}, {WS}, s73 offen sc1")
    A("s_mov_b64 exec, -1")
    A.label(L)

def roleR():
    A.label("L_roleR")
    prio(2)
    srd(8, 42, 2621440)
    A("s_and_b32 s60, s2, 7")
    A("s_lshr_b32 s61, s2, 3")
    A(f"s_lshr_b32 s{sA}, s61, 3")
    A("s_and_b32 s61, s61, 7")
    A("s_lshl_b32 s60, s60, 3")
    A("s_sub_u32 s62, 56, s60")
    A(f"s_cmp_lt_u32 s{sA}, 2")
    A("s_cselect_b32 s60, s60, s62")
    A(f"s_add_u32 s{sS2}, s60, s61")
    A(f"s_lshl_b32 s60, s{sA}, 9")
    A(f"s_lshl_b32 s61, s{WV}, 7")
    A(f"s_add_u32 s{sRA}, s60, s61")
    A(f"s_add_u32 s{sRA}, s{sRA}, s{sS2}")
    A(f"s_mul_i32 s{sXO}, s{sRA}, 1280")
    A(f"s_add_u32 s63, s{sXO}, {64 * 1280}")
    T = ACR
    n, h = T, T + 1
    A(f"v_and_b32 {v(n)}, 31, v1")
    A(f"v_lshrrev_b32 {v(h)}, 5, v1")
    A(f"v_mul_u32_u24 {v(vX)}, 640, {v(h)}")
    A(f"v_lshl_add_u32 {v(vX)}, {v(n)}, 1, {v(vX)}")
    for i in range(10):
        A(f"v_mov_b32 {v(X+2*i)}, 0")
        A(f"v_mov_b32 {v(X+2*i+1)}, 0")
        A(f"buffer_load_short_d16_hi {v(X+2*i)}, {v(vX)}, {SRD1}, s{sXO} offen offset:{64*i}")
        A(f"buffer_load_short_d16_hi {v(X+2*i+1)}, {v(vX)}, {SRD1}, s63 offen offset:{64*i}")
    NV = XN
    nonce_load(NV)
    ONES = XN + 4
    A(f"s_lshl_b32 s{sRHO}, s{sA}, 6")
    A(f"s_add_u32 s{sRHO}, s{sRHO}, s{sS2}")
    A(f"s_mul_i32 s{sWB}, s{sRHO}, {WROW}")
    for k in range(4):
        A(f"v_mov_b32 {v(ONES+k)}, -1")
    A(f"v_lshlrev_b32 {v(vWG)}, 4, v0")
    A(f"v_add_u32 {v(vWG1)}, {4096 + 112}, {v(vWG)}")
    A(f"v_add_u32 {v(T+2)}, 4096, {v(vWG)}")
    A(f"v_cmp_gt_u32 vcc, 65, v0")
    A(f"v_cndmask_b32 {v(vWG1)}, {v(vWG1)}, {v(T+2)}, vcc")
    A(f"v_lshlrev_b32 {v(T+4)}, 3, v0")
    A(f"s_lshl_b32 s61, s{sRHO}, 11")
    A(f"s_add_u32 s61, s61, {RESET_OFF}")
    A(f"buffer_store_dwordx2 {v(ONES,2)}, {v(T+4)}, {WS}, s61 offen sc1")
    W_stores(0, ONES, ONES, ONES, lds=False)
    PREFR = opt("prefr", 1)
    if PREFR == 1:
        warm_weights(AC2R)
    e1, e1s, base, arg, c_, s_ = T + 6, T + 7, T + 8, T + 9, T + 10, T + 11
    hf_, wf, lc = T + 12, T + 13, T + 14
    G0 = T + 16
    A(f"v_bfe_u32 {v(e1)}, {v(n)}, 2, 1")
    A(f"v_mul_u32_u24 {v(e1)}, 10, {v(e1)}")
    A(f"v_and_b32 {v(arg)}, 3, {v(n)}")
    A(f"v_add_u32 {v(e1)}, {v(e1)}, {v(arg)}")
    A(f"v_lshrrev_b32 {v(arg)}, 3, {v(n)}")
    A(f"v_lshl_add_u32 {v(e1)}, {v(arg)}, 2, {v(e1)}")
    A(f"v_cvt_f32_u32 {v(e1)}, {v(e1)}")
    A(f"v_cvt_f32_u32 {v(hf_)}, {v(h)}")
    A(f"v_cvt_f32_u32 {v(wf)}, s{WV}")
    A(f"s_lshl_b32 s60, s{WV}, 10")
    A(f"s_add_u32 s60, s60, {LDS_CONST}")
    A(f"v_lshl_add_u32 {v(lc)}, v1, 4, s60")
    A(f"v_mul_f32 {v(e1s)}, {f32(1/20)}, {v(e1)}")
    A(f"v_mul_f32 {v(base)}, {f32(10.0)}, {v(hf_)}")
    A(f"v_fma_f32 {v(base)}, 4.0, {v(wf)}, {v(base)}")
    A(f"v_mul_f32 {v(base)}, {v(e1s)}, {v(base)}")
    A(f"s_cmp_lt_u32 s{WV}, 2")
    A(f"s_cselect_b64 s[64:65], -1, 0")
    for r in range(4):
        A(f"v_fmamk_f32 {v(arg)}, {v(e1s)}, {f32(r)}, {v(base)}")
        sincos(arg, c_, s_)
        A(f"v_cvt_pk_f16_f32 {v(G0+r)}, {v(c_)}, {v(s_)}")
        A(f"v_cvt_pk_f16_f32 {v(G0+4+r)}, -{v(s_)}, {v(c_)}")
        if r >= 2:
            A(f"v_cndmask_b32 {v(G0+r)}, 0, {v(G0+r)}, s[64:65]")
            A(f"v_cndmask_b32 {v(G0+4+r)}, 0, {v(G0+4+r)}, s[64:65]")
    A(f"ds_write_b128 {v(lc)}, {v(G0,4)}")
    A(f"ds_write_b128 {v(lc)}, {v(G0+4,4)} offset:4096")
    A(f"v_mul_f32 {v(wf)}, {f32(8.0)}, {v(wf)}")
    A(f"v_fma_f32 {v(wf)}, 4.0, {v(hf_)}, {v(wf)}")
    A(f"v_mul_f32 {v(e1s)}, {f32(1/640)}, {v(e1)}")
    A(f"v_mul_f32 {v(base)}, {v(e1s)}, {v(wf)}")
    for r in range(4):
        A(f"v_fmamk_f32 {v(arg)}, {v(e1s)}, {f32(r)}, {v(base)}")
        sincos(arg, G0 + 8 + r, G0 + 12 + r)
    A(f"ds_write_b128 {v(lc)}, {v(G0+8,4)} offset:8192")
    A(f"ds_write_b128 {v(lc)}, {v(G0+12,4)} offset:12288")
    A(f"v_cvt_f32_u32 {v(e1s)}, {v(n)}")
    A(f"v_mul_f32 {v(e1s)}, {f32(1/32)}, {v(e1s)}")
    A(f"v_mul_f32 {v(base)}, {v(e1s)}, {v(wf)}")
    for r in range(4):
        A(f"v_fmamk_f32 {v(arg)}, {v(e1s)}, {f32(r)}, {v(base)}")
        sincos(arg, c_, s_)
        A(f"v_cvt_pk_f16_f32 {v(G0+16+r)}, {v(c_)}, {v(s_)}")
        A(f"v_cvt_pk_f16_f32 {v(G0+20+r)}, -{v(s_)}, {v(c_)}")
    A(f"ds_write_b128 {v(lc)}, {v(G0+16,4)} offset:16384")
    A(f"ds_write_b128 {v(lc)}, {v(G0+20,4)} offset:20480")
    A(f"v_mov_b32 {v(AF1+10)}, 0")
    A(f"v_mov_b32 {v(AF1+11)}, 0")
    A(f"v_lshlrev_b32 {v(vLC)}, 4, v1")
    A(f"v_add_u32 {v(vLC)}, {LDS_CONST}, {v(vLC)}")
    A(f"v_mov_b32 {v(INV)}, {f32(1/640)}")
    A(f"s_mov_b32 s{s32f}, {f32(32.0)}")
    A(f"s_and_b32 s{sME}, s2, 15")
    A(f"v_mul_u32_u24 {v(vLWW)}, 21, {v(n)}")
    A(f"v_mad_u32_u24 {v(vLWW)}, {v(h)}, 10, {v(vLWW)}")
    A(f"s_mul_i32 s60, s{WV}, 704")
    A(f"s_add_u32 s60, s60, {LDS_W // 4}")
    A(f"v_add_lshl_u32 {v(vLWW)}, {v(vLWW)}, s60, 2")
    A("s_waitcnt lgkmcnt(0)")
    A("s_barrier")
    for (dst, ng, off) in ((B1R, 3, 0), (B1I, 3, 4096), (TWC, 4, 8192), (TWS, 4, 12288)):
        for gq in range(ng):
            A(f"ds_read_b128 {v(dst+4*gq,4)}, {v(vLC)} offset:{off + 1024*gq}")
    for j in range(3):
        A(f"v_add_u32 {v(arg)}, {256*j}, v0")
        A(f"v_mul_u32_u24 {v(c_)}, 3277, {v(arg)}")
        A(f"v_lshrrev_b32 {v(c_)}, 16, {v(c_)}")
        A(f"v_add_u32 {v(arg)}, {v(arg)}, {v(c_)}")
        A(f"v_lshlrev_b32 {v(arg)}, 2, {v(arg)}")
        A(f"v_add_u32 {v(vLWR0+j)}, {LDS_W}, {v(arg)}")
    A(f"v_lshlrev_b32 {v(vTA)}, 4, v1")
    A(f"v_lshlrev_b32 {v(vTB)}, 2, v1")
    A(f"v_add_u32 {v(vTB)}, 1024, {v(vTB)}")
    A(f"s_mul_i32 s{sTB}, s{sRA}, {T_REC}")
    A(f"s_add_u32 s{sTB}, s{sTB}, {T_OFF}")
    A(f"s_add_u32 s{sTB+1}, s{sTB}, {64 * T_REC}")
    stamp(0, dbg=(1, 0))
    ARV = 204
    A(f"s_waitcnt vmcnt({5 if PREFR == 1 else 3})")
    nonce_take(NV)
    stamp(10, dbg=(2, 0))
    if EARLY_R == 2:
        arrive_issue(0, sME, ARV)
    ln_stats(X, ACR)
    for (dst, ng, off) in ((B2R, 4, 16384), (B2I, 4, 20480)):
        for gq in range(ng):
            A(f"ds_read_b128 {v(dst+4*gq,4)}, {v(vLC)} offset:{off + 1024*gq}")
    ln_center_scale(X, XN, ACR, EXACT)
    to_f16(XN, ACR)
    A("s_waitcnt vmcnt(0) lgkmcnt(0)")
    A("s_barrier")
    arrive_issue(0, sME, XN + 8)
    def fill_xn1():
        for k in range(4):
            A(f"v_mov_b32 {v(XN+16+k)}, -1")
        store_rows(XN + 16, XN + 16, XN + 16, XN + 16, 0)
    row_dft(XN, fill_xn1, lambda: arrive_finish(0, sME, 15, XN + 8, 4))
    stamp(11)
    write_W(0)
    stamp(1, dbg=(3, 0))
    if PREFR == 2:
        warm_weights(AC2R)
    srd(12, 52, 2621440)
    srd(16, 44, 1280)
    for i in range(10):
        A(f"v_mov_b32 {v(WR+i)}, 0")
        A(f"buffer_load_short_d16_hi {v(WR+i)}, {v(vX)}, {SRD3}, 0 offen offset:{64*i}")
    A(f"v_and_b32 {v(n)}, 31, v1")
    A(f"v_lshrrev_b32 {v(h)}, 5, v1")
    A(f"v_lshlrev_b32 {v(vLYW)}, 2, v0")
    A(f"v_mul_u32_u24 {v(vLYR)}, 320, {v(h)}")
    A(f"s_mul_i32 s60, s{WV}, 640")
    A(f"v_add3_u32 {v(vLYR)}, {v(vLYR)}, {v(n)}, s60")
    A(f"v_lshlrev_b32 {v(vLYR)}, 2, {v(vLYR)}")
    A(f"s_sub_u32 s60, 3, s{sA}")
    A(f"s_lshl_b32 s60, s60, 6")
    A(f"s_sub_u32 s61, 64, s{sS2}")
    A(f"s_add_u32 s60, s60, s61")
    A(f"s_lshl_b32 s60, s60, 4")
    A(f"s_lshl_b32 s61, s{sA}, 4")
    A(f"s_add_u32 s61, s61, {YM_OFF}")
    A(f"s_cmp_eq_u32 s{sS2}, 0")
    A(f"s_cselect_b32 s60, s61, s60")
    A(f"s_cselect_b32 s61, 6, 12")
    A(f"s_lshl_b32 s62, s{sRHO}, 4")
    A(f"v_lshlrev_b32 {v(vY0)}, 12, v0")
    A(f"v_add_u32 {v(vY0)}, s62, {v(vY0)}")
    A(f"v_sub_u32 {v(arg)}, 384, v0")
    A(f"v_lshlrev_b32 {v(arg)}, s61, {v(arg)}")
    A(f"v_add_u32 {v(vY1)}, s60, {v(arg)}")
    A(f"v_add_u32 {v(c_)}, {256 << 12}, {v(vY0)}")
    A(f"v_cmp_gt_u32 vcc, 64, v0")
    A(f"v_cndmask_b32 {v(vY1)}, {v(vY1)}, {v(c_)}, vcc")
    A(f"v_sub_u32 {v(arg)}, 128, v0")
    A(f"v_and_b32 {v(arg)}, 0xff, {v(arg)}")
    A(f"v_lshlrev_b32 {v(arg)}, s61, {v(arg)}")
    A(f"v_add_u32 {v(vY2)}, s60, {v(arg)}")
    A(f"s_mul_i32 s60, s{WV}, 5120")
    A(f"s_add_u32 s60, s60, {LDS_KX}")
    A(f"v_lshl_add_u32 {v(vKX)}, v1, 4, s60")
    A(f"s_and_b32 s{sREP}, s2, {NREP - 1}")
    A(f"s_lshl_b32 s{sREP}, s{sREP}, {FSH + 4}")
    A("s_waitcnt vmcnt(0)")
    A(f"v_pk_mul_f32 {v(ACR,2)}, {v(WR,2)}, {v(WR,2)}")
    for i in range(2, 10, 2):
        A(f"v_pk_fma_f32 {v(ACR,2)}, {v(WR+i,2)}, {v(WR+i,2)}, {v(ACR,2)}")
    A(f"v_add_f32 {v(ACR)}, {v(ACR)}, {v(ACR+1)}")
    for sw in ("32", "16"):
        A(f"v_mov_b32 {v(ACR+1)}, {v(ACR)}")
        A(f"v_permlane{sw}_swap_b32 {v(ACR)}, {v(ACR+1)}")
        A(f"v_add_f32 {v(ACR)}, {v(ACR)}, {v(ACR+1)}")
    reduce_tail(ACR)
    A(f"v_sqrt_f32 {v(ACR)}, {v(ACR)}")
    A(f"v_mul_f32 {v(ACR)}, {f32(opt('tau', 150) / 100)}, {v(ACR)}")
    A(f"v_readfirstlane_b32 s{sTAU}, {v(ACR)}")
    poll_flags(1, sREP, ACR)
    stamp(2, dbg=(7, 0))
    stage_Y(0)
    stamp(13)
    for k in range(4):
        A(f"v_mov_b32 {v(AF2+k)}, -1")
    W_stores(1, AF2, AF2, AF2, lds=False)
    for i in range(10):
        A(f"ds_read_b32 {v(ACI+i)}, {v(vLYR)} offset:{128*i}")
    for i in range(10):
        A(f"s_waitcnt lgkmcnt({9-i})")
        A(f"v_fma_mix_f32 {v(X+2*i)}, {v(ACI+i)}, s{s32f}, {v(X+2*i)} op_sel:[0,0,0] op_sel_hi:[1,0,0]")
        A(f"v_fma_mix_f32 {v(X+2*i+1)}, {v(ACI+i)}, s{s32f}, {v(X+2*i+1)} op_sel:[1,0,0] op_sel_hi:[1,0,0]")
    PA, PB = AC2R, AC2R + 8
    pack_rows(X, PA, PB)
    unpack_rows(X, PA, PB)
    A(f"ds_write_b128 {v(vKX)}, {v(PA,4)} offset:2048")
    A(f"ds_write_b128 {v(vKX)}, {v(PB,4)} offset:3072")
    A(f"v_mov_b32 {v(PA+6)}, {v(PA+4)}")
    A(f"v_mov_b32 {v(PA+7)}, {v(PB+4)}")
    ln_stats(X, ACR)
    ln_center_scale(X, XN, ACR)
    pack_rows(XN, PA + 16, PB + 16)
    A("s_waitcnt vmcnt(0)")
    unpack_rows(XN, PA + 16, PB + 16)
    stamp(14)
    router_publish(0, ACI, PA + 16, PB + 16)
    stamp(3, dbg=(8, 0))
    A(f"v_mov_b32 {v(PA+4)}, {v(PA+20)}")
    A(f"v_mov_b32 {v(PA+5)}, {v(PB+20)}")
    A(f"ds_write_b128 {v(vKX)}, {v(PA+16,4)}")
    A(f"ds_write_b128 {v(vKX)}, {v(PB+16,4)} offset:1024")
    A(f"ds_write_b128 {v(vKX)}, {v(PA+4,4)} offset:4096")
    if EARLY_R == 2:
        arrive_issue(2, sME, ARV)
    for i in range(10):
        A(f"v_pk_add_f32 {v(X+2*i,2)}, {v(X+2*i,2)}, {v(XN+2*i,2)}")
        rnd_pair(X + 2 * i, X + 2 * i + 1, ACR + (i % 4))
    ln_stats(X, ACR)
    ln_center_scale(X, XN, ACR + 8, EXACT)
    to_f16(XN, ACR + 8)
    if EARLY_R == 2:
        arrive_finish(2, sME, 15, ARV, 0)
    if EARLY_R == 1:
        arrive_issue(2, sME, XN + 14)
    row_dft(XN, None, (lambda: arrive_finish(2, sME, 15, XN + 14, 0)) if EARLY_R == 1 else None)
    stamp(16)
    if not opt("wlate", 0):
        write_W(1)
    stamp(4)
    A(f"s_mov_b32 s74, {X2_OFF}")
    def release(layer, row, stash, with_xn):
        R0 = ACR
        if stash:
            A(f"ds_read_b128 {v(R0,4)}, {v(vKX)} offset:{2048+1024*row}")
            A(f"ds_read_b128 {v(R0+8,4)}, {v(vKX)} offset:4096")
            if with_xn:
                A(f"ds_read_b128 {v(R0+12,4)}, {v(vKX)} offset:{1024*row}")
            x4, x1, n4, n1 = R0, R0 + 10 + row, R0 + 12, R0 + 8 + row
        else:
            P_ = PA if row == 0 else PB
            x4, x1, n4, n1 = P_, P_ + 4, P_ + 16, P_ + 20
        A(f"s_add_u32 s61, s{NONCE}, {6 + layer}")
        A(f"v_mov_b32 {v(R0+4)}, {v(MM+row)}")
        A(f"v_mov_b32 {v(R0+5)}, {v(RS+row)}")
        A(f"v_mov_b32 {v(R0+6)}, s61")
        A(f"v_mov_b32 {v(R0+7)}, s61")
        A("s_waitcnt lgkmcnt(0)")
        if with_xn:
            A(f"buffer_store_dwordx4 {v(n4,4)}, {v(vTA)}, {WS}, s{sTB+row} offen sc1")
            A(f"buffer_store_dword {v(n1)}, {v(vTB)}, {WS}, s{sTB+row} offen sc1")
        A(f"buffer_store_dwordx4 {v(x4,4)}, {v(vTA)}, {WS}, s{sTB+row} offen offset:1280 sc1")
        A(f"buffer_store_dword {v(x1)}, {v(vTB)}, {WS}, s{sTB+row} offen offset:1280 sc1")
        A("s_waitcnt vmcnt(0)")
        A("s_mov_b64 exec, 1")
        A(f"buffer_store_dwordx4 {v(R0+4,4)}, {v(vTA)}, {WS}, s{sTB+row} offen offset:2560 sc1")
        A("s_mov_b64 exec, -1")
    def release_candidates(layer, stash):
        for row in range(2):
            Ln = A.newlabel("Lrel")
            A(f"s_cmp_eq_u32 s{56+row}, 0")
            A(f"s_cbranch_scc1 {Ln}")
            release(layer, row, stash, False)
            A.label(Ln)
    def wait_sel(layer, stash):
        loop, done = A.newlabel("Lsel"), A.newlabel("Lseld")
        T2 = ACR + 16
        A(f"s_mov_b32 s60, {X2_OFF + SEL_OFF + 256 * layer}")
        A(f"v_and_b32 {v(T2)}, 7, v1")
        A(f"v_lshlrev_b32 {v(T2)}, 2, {v(T2)}")
        A(f"s_mov_b32 s62, {SPIN}")
        A.label(loop)
        A(f"buffer_load_dword {v(T2+1)}, {v(T2)}, {WS}, s60 offen sc1")
        A("s_waitcnt vmcnt(0)")
        A(f"v_cmp_eq_u32 vcc, -1, {v(T2+1)}")
        A(f"s_cbranch_vccz {done}")
        spin_tail(loop, 62, 4)
        A.label(done)
        for j in range(8):
            A(f"v_readlane_b32 s{sSEL+j}, {v(T2+1)}, {j}")
        for row in range(2):
            A(f"s_add_u32 s60, s{sRA}, {64 * row}")
            A(f"s_mov_b32 s{76+row}, -1")
            for j in range(8):
                A(f"s_cmp_eq_u32 s60, s{sSEL+j}")
                A(f"s_cselect_b32 s{76+row}, {j}, s{76+row}")
            Ln = A.newlabel("Lpush")
            A(f"s_cmp_lt_i32 s{76+row}, 0")
            A(f"s_cbranch_scc1 {Ln}")
            A(f"s_cmp_lg_u32 s{56+row}, 0")
            A(f"s_cbranch_scc1 {Ln}")
            release(layer, row, stash, True)
            A.label(Ln)
    release_candidates(0, True)
    wait_sel(0, True)
    if opt("wlate", 0):
        write_W(1)
    A(f"s_add_u32 s{sTB}, s{sTB}, {T_SZ}")
    A(f"s_add_u32 s{sTB+1}, s{sTB+1}, {T_SZ}")
    stamp(5)
    CU, CV = XN + 12, XN + 16
    tr, ca, sa, cb, sb, ar, t0, t1_ = ACR, ACR + 1, ACR + 2, ACR + 3, ACR + 4, ACR + 5, ACR + 6, ACR + 7
    A(f"v_and_b32 {v(tr)}, 1, v1")
    A(f"v_lshlrev_b32 {v(tr)}, 6, {v(tr)}")
    A(f"v_add_u32 {v(tr)}, s{sRA}, {v(tr)}")
    A(f"s_mov_b32 s64, 0x00300003")
    A(f"s_mov_b32 s65, 0x30000300")
    for p in range(4):
        for (j, cc, ss) in ((2 * p, ca, sa), (2 * p + 1, cb, sb)):
            A(f"v_mul_u32_u24 {v(ar)}, s{sSEL+j}, {v(tr)}")
            A(f"v_and_b32 {v(ar)}, 0x7ff, {v(ar)}")
            A(f"v_cvt_f32_u32 {v(ar)}, {v(ar)}")
            A(f"v_mul_f32 {v(ar)}, {f32(1/2048)}, {v(ar)}")
            sincos(ar, cc, ss)
        A(f"v_sub_f32 {v(t0)}, {v(ca)}, {v(sb)}")
        A(f"v_add_f32 {v(t1_)}, {v(sa)}, {v(cb)}")
        A(f"v_mul_f32 {v(t0)}, 0.5, {v(t0)}")
        A(f"v_mul_f32 {v(t1_)}, 0.5, {v(t1_)}")
        A(f"v_cvt_pk_f16_f32 {v(CU+p)}, {v(t0)}, {v(t1_)}")
        A(f"v_add_f32 {v(t0)}, {v(ca)}, {v(sb)}")
        A(f"v_sub_f32 {v(t1_)}, {v(cb)}, {v(sa)}")
        A(f"v_mul_f32 {v(t0)}, 0.5, {v(t0)}")
        A(f"v_mul_f32 {v(t1_)}, 0.5, {v(t1_)}")
        A(f"v_cvt_pk_f16_f32 {v(CV+p)}, {v(t0)}, {v(t1_)}")
        A(f"v_cndmask_b32 {v(CU+p)}, 0, {v(CU+p)}, s[64:65]")
        A(f"v_cndmask_b32 {v(CV+p)}, 0, {v(CV+p)}, s[64:65]")
    vE0, vDF, vDM, vP2, vNW = vLWW, vLWR0, vLWR0 + 1, vLWR0 + 2, vWG
    n, h = ACR + 8, ACR + 9
    A(f"v_and_b32 {v(n)}, 31, v1")
    A(f"v_lshrrev_b32 {v(h)}, 5, v1")
    A(f"v_mul_u32_u24 {v(vE0)}, 20, {v(n)}")
    A(f"v_mad_u32_u24 {v(vE0)}, {v(h)}, 10, {v(vE0)}")
    vER = vKX
    A(f"v_and_b32 {v(vER)}, 31, {v(vE0)}")
    A(f"v_lshrrev_b32 {v(vDF)}, 5, {v(vE0)}")
    A(f"s_lshl_b32 s60, s{WV}, 2")
    A(f"s_add_u32 s60, s60, {LDS_W}")
    A(f"v_add_u32 {v(vE0)}, {v(vE0)}, {v(vDF)}")
    A(f"v_lshl_add_u32 {v(vE0)}, {v(vE0)}, 4, s60")
    A(f"v_mul_u32_u24 {v(vDF)}, 330, {v(h)}")
    A(f"v_add_u32 {v(vDF)}, {v(vDF)}, {v(n)}")
    A(f"v_sub_u32 {v(vDM)}, 362, {v(vDF)}")
    A(f"v_lshlrev_b32 {v(vDF)}, 4, {v(vDF)}")
    A(f"v_add_u32 {v(vDF)}, {LDS_W}, {v(vDF)}")
    A(f"v_cmp_eq_u32 vcc, 0, {v(n)}")
    A(f"v_addc_co_u32 {v(vDM)}, vcc, 0, {v(vDM)}, vcc")
    A(f"v_lshlrev_b32 {v(vDM)}, 4, {v(vDM)}")
    A(f"v_add_u32 {v(vDM)}, {LDS_W}, {v(vDM)}")
    A(f"s_lshl_b32 s60, s{WV}, 8")
    A(f"v_mul_u32_u24 {v(vP2)}, 10240, {v(h)}")
    A(f"v_lshl_add_u32 {v(vP2)}, {v(n)}, 3, {v(vP2)}")
    A(f"v_add_u32 {v(vP2)}, s60, {v(vP2)}")
    A(f"s_mul_i32 s60, s{WV}, 2560")
    A(f"s_add_u32 s60, s60, {LDS_NEW}")
    A(f"v_lshl_add_u32 {v(vNW)}, v1, 2, s60")
    A(f"s_add_u32 s75, s74, 4096")
    A(f"s_add_u32 s78, s74, 8192")
    poll_flags(3, sREP, ACR)
    stamp(6, dbg=(13, 0))
    RAW = AC2R
    def x2loads():
        for i in range(10):
            so = ("s74", "s75", "s78")[i // 4]
            A(f"buffer_load_dwordx2 {v(RAW+2*i,2)}, {v(vP2)}, {WS}, {so} offen offset:{1024*(i%4)} sc1")
    stage_Y(1, x2loads)
    alldone = A.newlabel("Lx2a")
    any_sentinel(range(RAW, RAW + 20), ACR, alldone)
    loop, done = A.newlabel("Lx2"), A.newlabel("Lx2d")
    A(f"s_mov_b32 s62, {SPIN}")
    A(f"s_add_u32 s60, s74, {SEL_OFF + 128}")
    A(f"v_mov_b32 {v(ACR)}, 0")
    A.label(loop)
    A(f"buffer_load_dword {v(ACR+1)}, {v(ACR)}, {WS}, s60 offen sc1")
    A("s_waitcnt vmcnt(0)")
    A(f"v_cmp_eq_u32 vcc, -1, {v(ACR+1)}")
    A(f"s_cbranch_vccz {done}")
    spin_tail(loop, 62, 2)
    A.label(done)
    loop, done = A.newlabel("Lx2"), A.newlabel("Lx2d")
    A(f"s_mov_b32 s62, {SPIN}")
    A.label(loop)
    x2loads()
    A("s_waitcnt vmcnt(0)")
    any_sentinel(range(RAW, RAW + 20), ACR, done)
    spin_tail(loop, 62, 1)
    A.label(done)
    A.label(alldone)
    stamp(7)
    for k in range(4):
        A(f"v_mov_b32 {v(AF2+k)}, -1")
    store_rows(AF2, AF2, AF2, AF2, 0)
    Z = ACR + 12
    for i in range(10):
        A(f"v_lshlrev_b32 {v(Z+2*i)}, 16, {v(RAW+2*i)}")
        A(f"v_and_b32 {v(Z+2*i+1)}, 0xffff0000, {v(RAW+2*i)}")
    for i in range(10):
        A(f"ds_write_b32 {v(vNW)}, {v(RAW+2*i)} offset:{256*i}")
    ln_stats(Z, ACR + 2)
    ln_center_scale(Z, Z, ACR + 2, EXACT)
    to_f16(Z, ACR + 2, sub=lambda i: RAW + 2 * i + 1)
    CBL = [16 + 4 * i for i in range(6)] + [AF1, AF1 + 4, AF1 + 8, XN + 8]
    WA = TWC
    def shadow1():
        for i in range(10):
            A(f"ds_read_b32 {v(CBL[i]+2)}, {v(vLYR)} offset:{128*i}")
        for i in range(10):
            A(f"s_waitcnt lgkmcnt({9-i})")
            A(f"v_fma_mix_f32 {v(CBL[i])}, {v(CBL[i]+2)}, s{s32f}, {v(X+2*i)} op_sel:[0,0,0] op_sel_hi:[1,0,0]")
            A(f"v_fma_mix_f32 {v(CBL[i]+1)}, {v(CBL[i]+2)}, s{s32f}, {v(X+2*i+1)} op_sel:[1,0,0] op_sel_hi:[1,0,0]")
    def shadow2():
        for i in range(10):
            A(f"v_add_u32 {v(WA+i)}, {i}, {v(vER)}")
            A(f"v_bfe_u32 {v(WA+i)}, {v(WA+i)}, 5, 1")
            A(f"v_lshl_add_u32 {v(WA+i)}, {v(WA+i)}, 4, {v(vE0)}")
    A("s_waitcnt lgkmcnt(0)")
    row_dft(XN, shadow1, shadow2)
    stamp(18)
    for i in range(10):
        A(f"v_cvt_pk_f16_f32 {v(ACR+i)}, {v(AC2R+i)}, {v(AC2I+i)}")
        A(f"ds_write_b32 {v(WA+i)}, {v(ACR+i)} offset:{16*i}")
    A("s_mov_b64 exec, 1")
    A(f"ds_write_b32 {v(vE0)}, {v(ACR)} offset:{660*16}")
    A("s_mov_b64 exec, -1")
    A("s_waitcnt lgkmcnt(0)")
    A("s_barrier")
    FRL = [40 + 4 * q for q in range(16)] + [160 + 4 * q for q in range(4)]
    def corr(k):
        A(f"v_mfma_f32_16x16x32_f16 {v(CBL[k],4)}, {v(CU,4)}, {v(FRL[2*k],4)}, {v(CBL[k],4)}")
        A(f"v_mfma_f32_16x16x32_f16 {v(CBL[k],4)}, {v(CV,4)}, {v(FRL[2*k+1],4)}, {v(CBL[k],4)}")
    for i in range(10):
        A(f"ds_read_b128 {v(FRL[2*i],4)}, {v(vDF)} offset:{528*i}")
        A(f"ds_read_b128 {v(FRL[2*i+1],4)}, {v(vDM)} offset:{528*(9-i)}")
        if i >= 6:
            A(f"s_waitcnt lgkmcnt(12)")
            corr(i - 6)
    for k in range(4, 10):
        A(f"s_waitcnt lgkmcnt({2*(9-k)})")
        corr(k)
    stamp(19)
    for row in range(2):
        Lnext = A.newlabel("Lown")
        A(f"s_cmp_lt_i32 s{76+row}, 0")
        A(f"s_cbranch_scc1 {Lnext}")
        A(f"s_lshr_b32 s62, s{76+row}, 1")
        A("s_mul_i32 s62, s62, 2560")
        A(f"s_add_u32 s62, s62, {LDS_NEW}")
        A(f"s_and_b32 s61, s{76+row}, 1")
        A("s_lshl_b32 s61, s61, 4")
        A("s_sub_u32 s61, 16, s61")
        A(f"v_lshl_add_u32 {v(240)}, v1, 2, s62")
        for i in range(10):
            A(f"ds_read_b32 {v(241+i)}, {v(240)} offset:{256*i}")
        A("s_waitcnt lgkmcnt(0)")
        for i in range(10):
            A(f"v_lshlrev_b32 {v(241+i)}, s61, {v(241+i)}")
            A(f"v_and_b32 {v(241+i)}, 0xffff0000, {v(241+i)}")
            A(f"v_sub_f32 {v(241+i)}, {v(241+i)}, {v(X+2*i+row)}")
            A(f"v_add_f32 {v(CBL[i]+row)}, {v(CBL[i]+row)}, {v(241+i)}")
        A.label(Lnext)
    for u in range(5):
        A(f"v_cvt_pk_bf16_f32 {v(PA+u)}, {v(CBL[2*u])}, {v(CBL[2*u+1])}")
        A(f"v_cvt_pk_bf16_f32 {v(PB+u)}, {v(CBL[2*u]+1)}, {v(CBL[2*u+1]+1)}")
    unpack_rows(X, PA, PB)
    ln_stats(X, ACR)
    ln_center_scale(X, XN, ACR)
    pack_rows(XN, PA + 16, PB + 16)
    A("s_waitcnt vmcnt(0)")
    unpack_rows(XN, PA + 16, PB + 16)
    stamp(20)
    router_publish(1, ACI + 8, PA + 16, PB + 16)
    stamp(8, dbg=(14, 0))
    OB = 16
    A(f"s_mul_i32 s60, s{WV}, 2560")
    A(f"v_add_u32 {v(OB)}, s60, {v(vX)}")
    for i in range(10):
        A(f"v_pk_add_f32 {v(X+2*i,2)}, {v(X+2*i,2)}, {v(XN+2*i,2)}")
        A(f"v_cvt_pk_bf16_f32 {v(OB+2+i)}, {v(X+2*i)}, {v(X+2*i+1)}")
        A(f"ds_write_b16 {v(OB)}, {v(OB+2+i)} offset:{64*i}")
        A(f"ds_write_b16_d16_hi {v(OB)}, {v(OB+2+i)} offset:{1280+64*i}")
    A(f"v_lshlrev_b32 {v(OB+1)}, 4, v1")
    A(f"v_add_u32 {v(OB)}, s60, {v(OB+1)}")
    A("s_waitcnt lgkmcnt(0)")
    for k in range(3):
        A(f"ds_read_b128 {v(OB+12+4*k,4)}, {v(OB)} offset:{1024*k}")
    A(f"v_add_u32 {v(OB+2)}, {1024 + 63 * 1280}, {v(OB+1)}")
    A(f"v_add_u32 {v(OB+3)}, 1024, {v(OB+1)}")
    A(f"v_cmp_gt_u32 vcc, 16, v1")
    A(f"v_cndmask_b32 {v(OB+3)}, {v(OB+2)}, {v(OB+3)}, vcc")
    def out_stores():
        A("s_waitcnt lgkmcnt(0)")
        A(f"buffer_store_dwordx4 {v(OB+12,4)}, {v(OB+1)}, {SRD2}, s{sXO} offen sc1")
        A(f"buffer_store_dwordx4 {v(OB+16,4)}, {v(OB+3)}, {SRD2}, s{sXO} offen sc1")
        set_exec(0xffffffff)
        A(f"buffer_store_dwordx4 {v(OB+20,4)}, {v(OB+2)}, {SRD2}, s{sXO} offen offset:1024 sc1")
        A("s_mov_b64 exec, -1")
    OD = opt("outdelay", 0)
    if OD:
        A(f"s_lshl_b32 s73, s{sRHO}, 4")
        A(f"s_add_u32 s73, s73, {RG_OFF + NRR * RG_REP}")
        A(f"v_mov_b32 {v(ACR)}, 0")
        for _ in range(OD):
            A(f"buffer_load_dword {v(ACR+1)}, {v(ACR)}, {WS}, s73 offen sc1")
            A("s_waitcnt vmcnt(0)")
    out_stores()
    release_candidates(1, False)
    wait_sel(1, False)
    stamp(22)
    stamp(9)
    A("s_endpgm")

def roleC():
    A.label("L_roleC")
    B1, TC, TS, A2, DT, RAW, AR, AI, P, AC, O, T = 16, 32, 48, 64, 128, 160, 176, 192, 208, 224, 240, 248
    sC, sCME, sCREP, sK, sW0, sW1, sY, sLAST = 22, 23, 24, 25, 26, 27, 28, 29
    nonce_load(T + 4)
    A(f"s_sub_u32 s60, s2, {C0}")
    A("s_and_b32 s61, s60, 7")
    A("s_lshr_b32 s62, s60, 3")
    A("s_lshr_b32 s63, s62, 2")
    A("s_lshl_b32 s63, s63, 5")
    A("s_lshl_b32 s61, s61, 2")
    A("s_and_b32 s62, s62, 3")
    A(f"s_add_u32 s{sC}, s63, s61")
    A(f"s_add_u32 s{sC}, s{sC}, s62")
    A(f"s_and_b32 s{sCME}, s2, 15")
    A(f"s_cmp_eq_u32 s{sCME}, 0")
    A(f"s_cselect_b32 s{sLAST}, 10, 9")
    A(f"s_and_b32 s{sCREP}, s2, {NREP - 1}")
    A(f"s_lshl_b32 s{sCREP}, s{sCREP}, {FSH + 4}")
    n, g, t1, gs, arg, base, st = RAW, RAW + 1, RAW + 2, RAW + 3, RAW + 4, RAW + 5, RAW + 6
    ca, sa, cb, sb, x0, x1 = RAW + 7, RAW + 8, RAW + 9, RAW + 10, RAW + 11, RAW + 12
    A(f"v_and_b32 {v(n)}, 15, v1")
    A(f"v_lshrrev_b32 {v(g)}, 4, v1")
    A(f"s_and_b32 s70, s{WV}, 1")
    A(f"s_lshl_b32 s70, s70, 4")
    A(f"s_lshr_b32 s61, s{WV}, 1")
    A(f"v_lshrrev_b32 v2, 1, v0")
    A(f"v_and_b32 v6, 1, v0")
    A(f"s_lshl_b32 s62, s{sC}, 1")
    A(f"v_add_u32 v3, s62, v6")
    A(f"v_min_u32 v3, 320, v3")
    A(f"v_sub_u32 v4, 640, v3")
    A(f"v_cmp_ne_u32 vcc, 0, v3")
    A(f"v_cndmask_b32 v4, 0, v4, vcc")
    A(f"v_add_u32 v5, 7, v4")
    A(f"v_cmp_lt_u32 vcc, 320, v4")
    A(f"v_cndmask_b32 v4, v4, v5, vcc")
    A(f"v_mul_u32_u24 v5, {WROW}, v2")
    A(f"v_mul_u32_u24 v6, 8256, v6")
    A(f"v_lshl_add_u32 v6, v2, 4, v6")
    A(f"v_lshl_add_u32 v2, v3, 4, v5")
    A(f"v_lshl_add_u32 v3, v4, 4, v5")
    A(f"s_mul_i32 s63, s61, 8256")
    A(f"v_lshlrev_b32 v7, 10, {v(g)}")
    A(f"v_lshl_add_u32 v7, {v(n)}, 4, v7")
    A(f"v_add_u32 v7, s63, v7")
    A(f"s_add_u32 s62, s62, s61")
    A(f"s_lshl_b32 s62, s62, 12")
    A(f"v_lshl_add_u32 v8, {v(g)}, 6, {v(n)}")
    A(f"v_add_u32 v8, s70, v8")
    A(f"v_lshl_add_u32 v8, v8, 4, s62")
    A(f"s_lshr_b32 s62, s62, 6")
    A(f"s_add_u32 s62, s62, {YM_OFF + 48}")
    A(f"v_lshlrev_b32 v9, 4, {v(g)}")
    A(f"v_sub_u32 v9, s62, v9")
    def Y_stores(r0, r1, rm, sy, prep=None):
        A(f"buffer_store_dwordx4 {v(r0,4)}, v8, {WS}, {sy} offen sc1")
        A(f"buffer_store_dwordx4 {v(r1,4)}, v8, {WS}, {sy} offen offset:512 sc1")
        Lm = A.newlabel("Lym")
        A(f"s_bitcmp1_b32 s{WV}, 0")
        A(f"s_cbranch_scc1 {Lm}")
        if prep:
            prep()
        set_exec(0x0001000100010001)
        A(f"buffer_store_dwordx4 {v(rm,4)}, v9, {WS}, {sy} offen sc1")
        A("s_mov_b64 exec, -1")
        A.label(Lm)
    A("s_waitcnt vmcnt(0)")
    nonce_take(T + 4)
    Li = A.newlabel("Lci")
    A(f"s_sub_u32 s60, s2, {C0}")
    A(f"s_lshl_b32 s61, s{WV}, 4")
    A(f"s_or_b32 s60, s60, s61")
    A(f"s_cmp_ge_u32 s60, 16")
    A(f"s_cbranch_scc1 {Li}")
    cnt_init(sCME, range(4), T)
    A.label(Li)
    for k in range(4):
        A(f"v_mov_b32 {v(O+k)}, -1")
    A(f"s_mov_b32 s63, {Y_OFF}")
    Y_stores(O, O, O, "s63")
    prefetch_weights(AC)
    A(f"v_add_u32 {v(t1)}, s70, {v(n)}")
    A(f"v_cvt_f32_u32 {v(t1)}, {v(t1)}")
    A(f"v_cvt_f32_u32 {v(gs)}, {v(g)}")
    A(f"v_mul_f32 {v(st)}, {f32(1/32)}, {v(t1)}")
    A(f"v_mul_f32 {v(base)}, {v(st)}, {v(gs)}")
    A(f"v_mul_f32 {v(base)}, {f32(8.0)}, {v(base)}")
    for w in range(4):
        A(f"v_fmamk_f32 {v(arg)}, {v(st)}, {f32(2*w)}, {v(base)}")
        sincos(arg, ca, sa)
        A(f"v_add_f32 {v(arg)}, {v(arg)}, {v(st)}")
        sincos(arg, cb, sb)
        A(f"v_sub_f32 {v(x0)}, {v(ca)}, {v(sb)}")
        A(f"v_add_f32 {v(x1)}, {v(sa)}, {v(cb)}")
        A(f"v_cvt_pk_f16_f32 {v(B1+w)}, {v(x0)}, {v(x1)}")
        A(f"v_cvt_pk_f16_f32 {v(B1+4+w)}, -{v(x1)}, {v(x0)}")
        A(f"v_add_f32 {v(x0)}, {v(ca)}, {v(sb)}")
        A(f"v_sub_f32 {v(x1)}, {v(cb)}, {v(sa)}")
        A(f"v_cvt_pk_f16_f32 {v(B1+8+w)}, {v(x0)}, {v(x1)}")
        A(f"v_cvt_pk_f16_f32 {v(B1+12+w)}, {v(x1)}, -{v(x0)}")
    A(f"v_mul_f32 {v(st)}, {f32(1/2048)}, {v(t1)}")
    A(f"v_mul_f32 {v(base)}, {v(st)}, {v(gs)}")
    A(f"v_mul_f32 {v(base)}, 4.0, {v(base)}")
    for j in range(4):
        for i in range(4):
            A(f"v_fmamk_f32 {v(arg)}, {v(st)}, {f32(16*j+i)}, {v(base)}")
            sincos(arg, ca, sa)
            A(f"v_mul_f32 {v(TC+4*j+i)}, {f32(1/64)}, {v(ca)}")
            A(f"v_mul_f32 {v(TS+4*j+i)}, {f32(1/64)}, {v(sa)}")
    A(f"v_lshrrev_b32 {v(x0)}, 2, {v(n)}")
    A(f"v_lshlrev_b32 {v(x0)}, 4, {v(x0)}")
    A(f"v_and_b32 {v(x1)}, 3, {v(n)}")
    A(f"v_lshl_add_u32 {v(x0)}, {v(x1)}, 1, {v(x0)}")
    A(f"s_lshr_b32 s60, s70, 1")
    A(f"s_lshr_b32 s61, s{WV}, 1")
    A(f"s_add_u32 s60, s60, s61")
    A(f"v_add_u32 {v(x0)}, s60, {v(x0)}")
    A(f"v_cvt_f32_u32 {v(x0)}, {v(x0)}")
    A(f"v_mul_f32 {v(st)}, {f32(1/64)}, {v(x0)}")
    A(f"v_mul_f32 {v(base)}, {v(st)}, {v(gs)}")
    A(f"v_mul_f32 {v(base)}, 4.0, {v(base)}")
    A(f"s_lshl_b32 s60, s{WV}, 12")
    A(f"s_add_u32 s60, s60, 24576")
    A(f"v_lshl_add_u32 {v(x1)}, v1, 4, s60")
    for j in range(4):
        for i in range(4):
            A(f"v_fmamk_f32 {v(arg)}, {v(st)}, {f32(16*j+i)}, {v(base)}")
            sincos(arg, ca, sa)
            A(f"v_cvt_pk_f16_f32 {v(DT+4*j+i)}, {v(ca)}, {v(sa)}")
        A(f"ds_write_b128 {v(x1)}, {v(DT+4*j,4)} offset:{1024*j}")
    A(f"v_lshlrev_b32 {v(x1)}, 4, v1")
    A("s_waitcnt lgkmcnt(0)")
    A("s_barrier")
    for q in range(16):
        A(f"ds_read_b128 {v(A2+4*q,4)}, {v(x1)} offset:{24576 + 1024*q}")
        if q == 7:
            A("s_waitcnt lgkmcnt(0)")
    A("s_waitcnt vmcnt(0)")
    prio(3)
    A(f"s_mov_b32 s{sK}, 0")
    A(f"s_mov_b32 s{sW0}, {W_OFF}")
    A(f"s_mov_b32 s{sY}, {Y_OFF}")
    stamp(4, dbg=(4, C0))
    A.label("L_Cloop")
    A(f"s_add_u32 s{sW1}, s{sW0}, {128 * WROW}")
    poll_flags(f"s{sK}", sCREP, T)
    stamp(0, f"s{sK}", dbg=(5, C0, 0))
    loop, done = A.newlabel("Lcw"), A.newlabel("Lcwd")
    A(f"s_add_u32 s30, s{sK}, 1")
    if EARLY_C == 2:
        arrive_issue("s30", sCME, O)
    A(f"s_mov_b32 s62, {SPIN}")
    A.label(loop)
    A(f"buffer_load_dwordx4 {v(RAW,4)}, v2, {WS}, s{sW0} offen sc1")
    A(f"buffer_load_dwordx4 {v(RAW+4,4)}, v2, {WS}, s{sW1} offen sc1")
    A(f"buffer_load_dwordx4 {v(RAW+8,4)}, v3, {WS}, s{sW0} offen sc1")
    A(f"buffer_load_dwordx4 {v(RAW+12,4)}, v3, {WS}, s{sW1} offen sc1")
    for j in range(4):
        A(f"s_waitcnt vmcnt({3-j})")
        A(f"ds_write_b128 v6, {v(RAW+4*j,4)} offset:{(j>>1)*4096 + (j&1)*2048}")
    any_sentinel(range(RAW, RAW + 16), T, done)
    spin_tail(loop, 62, 2)
    A.label(done)
    if EARLY_C == 1:
        arrive_issue("s30", sCME, O)
    if EARLY_C == 2:
        arrive_finish("s30", sCME, f"s{sLAST}", O, 0)
    A("s_waitcnt lgkmcnt(0)")
    A("s_barrier")
    stamp(1, f"s{sK}")
    Lf = A.newlabel("Lcf")
    A(f"s_cmp_lg_u32 s{sK}, 0")
    A(f"s_cbranch_scc1 {Lf}")
    for k in range(4):
        A(f"v_mov_b32 {v(P+k)}, -1")
    A(f"s_mov_b32 s63, {Y_OFF + Y_SZ}")
    Y_stores(P, P, P, "s63")
    A.label(Lf)
    for j in range(4):
        A(f"ds_read_b128 {v(DT+8*j,4)}, v7 offset:{256*j}")
        A(f"ds_read_b128 {v(DT+8*j+4,4)}, v7 offset:{4096+256*j}")
    for j in range(4):
        A(f"s_waitcnt lgkmcnt({7-2*j})")
        A(f"v_mfma_f32_16x16x32_f16 {v(AR+4*j,4)}, {v(DT+8*j,4)}, {v(B1,4)}, 0")
        A(f"v_mfma_f32_16x16x32_f16 {v(AI+4*j,4)}, {v(DT+8*j,4)}, {v(B1+4,4)}, 0")
        A(f"s_waitcnt lgkmcnt({6-2*j})")
        A(f"v_mfma_f32_16x16x32_f16 {v(AR+4*j,4)}, {v(DT+8*j+4,4)}, {v(B1+8,4)}, {v(AR+4*j,4)}")
        A(f"v_mfma_f32_16x16x32_f16 {v(AI+4*j,4)}, {v(DT+8*j+4,4)}, {v(B1+12,4)}, {v(AI+4*j,4)}")
    A(f"s_add_u32 s{sK}, s{sK}, 1")
    for j in range(4):
        for i in (4 * j, 4 * j + 2):
            pr, pi = RAW + (i % 4) * 2, RAW + (i % 4) * 2 + 2
            A(f"v_pk_mul_f32 {v(pr,2)}, {v(AR+i,2)}, {v(TC+i,2)}")
            A(f"v_pk_mul_f32 {v(pi,2)}, {v(AI+i,2)}, {v(TC+i,2)}")
            A(f"v_pk_fma_f32 {v(pr,2)}, {v(AI+i,2)}, {v(TS+i,2)}, {v(pr,2)}")
            A(f"v_pk_fma_f32 {v(pi,2)}, {v(AR+i,2)}, {v(TS+i,2)}, {v(pi,2)} neg_lo:[1,0,0] neg_hi:[1,0,0]")
            A(f"v_cvt_pk_f16_f32 {v(P+i)}, {v(pr)}, {v(pi)}")
            A(f"v_cvt_pk_f16_f32 {v(P+i+1)}, {v(pr+1)}, {v(pi+1)}")
        for jm in range(4):
            c = "0" if j == 0 else v(AC + 4 * jm, 4)
            A(f"v_mfma_f32_16x16x32_f16 {v(AC+4*jm,4)}, {v(A2+16*jm+4*j,4)}, {v(P+4*j,4)}, {c}")
        if j == opt("cfin", 1):
            arrive_finish("s30", sCME, f"s{sLAST}", O, ("s30", 1, 3))
    if EARLY_C == 0:
        A("s_barrier")
        arrive_issue(f"s{sK}", sCME, T)
    for k in range(8):
        A(f"v_cvt_pk_f16_f32 {v(O+k)}, {v(AC+2*k)}, {v(AC+2*k+1)}")
    def prep():
        for gq in range(4):
            A(f"v_readlane_b32 s{60+gq}, {v(O)}, {16*((gq+1)%4)}")
        for gq in range(4):
            A(f"v_writelane_b32 {v(P+4)}, s{60+gq}, {16*gq}")
        for k in range(3):
            A(f"v_alignbit_b32 {v(P+k)}, {v(O+k+1)}, {v(O+k)}, 16")
        A(f"v_alignbit_b32 {v(P+3)}, {v(P+4)}, {v(O+3)}, 16")
    Y_stores(O, O + 4, P, f"s{sY}", prep)
    if EARLY_C == 0:
        arrive_finish(f"s{sK}", sCME, f"s{sLAST}", T, 3)
    stamp(3, f"s{sK}", dbg=(6, C0, 1))
    A(f"s_add_u32 s{sK}, s{sK}, 1")
    A(f"s_add_u32 s{sW0}, s{sW0}, {W_SZ}")
    A(f"s_add_u32 s{sY}, s{sY}, {Y_SZ}")
    A(f"s_cmp_ge_u32 s{sK}, 4")
    A("s_cbranch_scc1 L_end")
    A("s_waitcnt vmcnt(0)")
    A("s_branch L_Cloop")

SORT8 = [(0, 1), (2, 3), (4, 5), (6, 7), (0, 2), (1, 3), (4, 6), (5, 7), (1, 2), (5, 6), (0, 4), (3, 7),
         (1, 5), (2, 6), (1, 4), (3, 6), (2, 4), (3, 5), (3, 4)]

def topk_setup(CODE, vG, vLW, vLR, LDS0):
    A(f"v_lshrrev_b32 {v(CODE)}, 6, v0")
    A(f"v_lshlrev_b32 {v(CODE)}, 9, {v(CODE)}")
    A(f"v_add_u32 {v(CODE)}, {v(CODE)}, v1")
    A(f"v_sub_u32 {v(CODE)}, 2047, {v(CODE)}")
    for i in range(1, 8):
        A(f"v_subrev_u32 {v(CODE+i)}, {64*i}, {v(CODE)}")
    A(f"v_lshlrev_b32 {v(vG)}, {RSH}, v0")
    A(f"v_lshrrev_b32 {v(vLW)}, 4, v0")
    A(f"v_lshlrev_b32 {v(vLW)}, 5, {v(vLW)}")
    A(f"v_add_u32 {v(vLW)}, {LDS0}, {v(vLW)}")
    A(f"v_and_b32 {v(vLR)}, 15, v1")
    A(f"v_lshlrev_b32 {v(vLR)}, 5, {v(vLR)}")
    A(f"v_add_u32 {v(vLR)}, {LDS0}, {v(vLR)}")

def topk(K, CODE, vG, vLW, vLR, sRG, blk, dbg):
    G = K + 16
    prio(0)
    for gate in ((True, False) if GATE else (False,)):
        loop, done = A.newlabel("Lrg"), A.newlabel("Lrgd")
        A(f"s_mov_b32 s62, {SPIN}")
        if gate:
            set_exec(0xff << 56)
        A.label(loop)
        A(f"buffer_load_dwordx4 {v(G,4)}, {v(vG)}, {WS}, s{sRG} offen sc1")
        A("s_waitcnt vmcnt(0)")
        any_sentinel(range(G, G + 4), K, done)
        spin_tail(loop, 62, opt("rsleep", 1))
        A.label(done)
        if gate:
            A("s_mov_b64 exec, -1")
    prio(3)
    stamp(3, "s27", dbg=dbg)
    A("s_mov_b32 s63, 0xffff0000")
    cur = list(range(K, K + 8))
    for k in range(4):
        A(f"v_lshl_or_b32 {v(cur[2*k])}, {v(G+k)}, 16, {v(CODE+2*k)}")
        A(f"v_and_or_b32 {v(cur[2*k+1])}, {v(G+k)}, s63, {v(CODE+2*k+1)}")
    free = list(range(K + 8, K + 24))

    def ce(i, j, dst=None):
        if dst is None:
            t = free.pop(0)
            A(f"v_max_u32 {v(t)}, {v(cur[i])}, {v(cur[j])}")
            A(f"v_min_u32 {v(cur[j])}, {v(cur[i])}, {v(cur[j])}")
            free.append(cur[i])
            cur[i] = t
        else:
            A(f"v_max_u32 {v(dst+i)}, {v(cur[i])}, {v(cur[j])}")
            A(f"v_min_u32 {v(dst+j)}, {v(cur[i])}, {v(cur[j])}")

    for (i, j) in SORT8:
        ce(i, j)
    pats = ["quad_perm:[1,0,3,2]", "quad_perm:[2,3,0,1]", "row_half_mirror", "row_mirror"]
    for rnd in range(2):
        for li, pat in enumerate(pats):
            new = [free.pop(0) for _ in range(8)]
            for i in (7, 6, 5, 4, 3, 2, 1, 0) if False else range(8):
                A(f"v_max_u32_dpp {v(new[i])}, {v(cur[7-i])}, {v(cur[i])} {pat} row_mask:0xf bank_mask:0xf")
            free.extend(cur)
            cur = new
            if rnd == 1 and li == 3:
                return cur
            for i in range(4):
                ce(i, i + 4)
            for i in (0, 1, 4, 5):
                ce(i, i + 2)
            if rnd == 0 and li == 3:
                for i in (0, 2, 4, 6):
                    ce(i, i + 1, dst=blk)
                set_exec(0x0001000100010001)
                A(f"ds_write_b128 {v(vLW)}, {v(blk,4)}")
                A(f"ds_write_b128 {v(vLW)}, {v(blk+4,4)} offset:16")
                A("s_mov_b64 exec, -1")
                A("s_waitcnt lgkmcnt(0)")
                A("s_barrier")
                A(f"ds_read_b128 {v(K,4)}, {v(vLR)}")
                A(f"ds_read_b128 {v(K+4,4)}, {v(vLR)} offset:16")
                A("s_waitcnt lgkmcnt(0)")
                cur = list(range(K, K + 8))
                free = list(range(K + 8, K + 24))
            else:
                for i in (6, 4, 2, 0):
                    ce(i, i + 1)

def load_weight_frags(jobs):
    total = sum(8 * j[3] for j in jobs)
    for (srdn, voff_of, soff_of, nsteps, dst, raw, vfull) in jobs:
        for k in range(nsteps):
            for q in range(8):
                d = raw + 8 * k + q
                if vfull is not None and k == vfull:
                    A(f"v_add_u32 {v(d)}, {soff_of(k, q)}, {v(voff_of(k))}")
                    A(f"buffer_load_dword {v(d)}, {v(d)}, {srdn}, 0 offen")
                    continue
                A(f"s_mov_b32 s60, {soff_of(k, q)}")
                A(f"buffer_load_dword {v(d)}, {v(voff_of(k))}, {srdn}, s60 offen")
    done = 0
    for (srdn, voff_of, soff_of, nsteps, dst, raw, vfull) in jobs:
        for k in range(nsteps):
            done += 8
            A(f"s_waitcnt vmcnt({min(63, total - done)})")
            r = raw + 8 * k
            for u in range(4):
                A(f"v_perm_b32 {v(dst + 8*k + u)}, {v(r+2*u+1)}, {v(r+2*u)}, s58")
                A(f"v_perm_b32 {v(dst + 8*k + 4 + u)}, {v(r+2*u+1)}, {v(r+2*u)}, s59")

def roleFa():
    A.label("L_roleFa")
    GW, UW, RAW, AFR, ACC, K, CODE = 16, 56, 96, 136, 156, 176, 200
    vG, vLW, vLR, vW1, vW2, vLP1, vLP2, vPW, vPR, vH = 2, 3, 4, 5, 6, 7, 8, 9, 10, 11
    sKAP, sRG, sT, sH, sL = 22, 23, 25, 26, 27
    T = 208
    nonce_load(T + 8)
    srd(8, 46, 2211840)
    srd(12, 48, 2211840)
    A(f"s_sub_u32 s60, s2, {FA0 - 1}")
    A(f"s_and_b32 s61, s60, 7")
    A(f"s_lshr_b32 s60, s60, 3")
    A(f"s_mul_i32 s{sKAP}, s61, 7")
    A(f"s_add_u32 s{sKAP}, s{sKAP}, s60")
    A(f"s_sub_u32 s{sKAP}, s{sKAP}, 1")
    A("s_mov_b32 s58, 0x05040100")
    A("s_mov_b32 s59, 0x07060302")
    n, g = T, T + 1
    A(f"v_and_b32 {v(n)}, 15, v1")
    A(f"v_lshrrev_b32 {v(g)}, 4, v1")
    A(f"s_lshr_b32 s60, s{WV}, 1")
    A(f"s_mul_i32 s60, s60, 320")
    A(f"s_and_b32 s61, s{WV}, 1")
    A(f"s_lshl_b32 s61, s61, 4")
    A(f"s_add_u32 s60, s60, s61")
    A(f"s_lshl_b32 s61, s{sKAP}, 6")
    A(f"v_lshl_add_u32 {v(T+2)}, {v(n)}, 2, s61")
    A(f"v_add_u32 {v(vW1)}, s60, {v(g)}")
    A(f"v_mul_u32_u24 {v(vW1)}, 3456, {v(vW1)}")
    A(f"v_add_u32 {v(vW1)}, {v(vW1)}, {v(T+2)}")
    A(f"v_lshl_add_u32 {v(vW2)}, {v(g)}, 2, s60")
    A(f"v_mul_u32_u24 {v(vW2)}, 3456, {v(vW2)}")
    A(f"v_add_u32 {v(vW2)}, {v(vW2)}, {v(T+2)}")
    voff = lambda k: vW1 if k < 4 else vW2
    soff = lambda k, q: ((32 * q + 4 * k) if k < 4 else (256 + 32 * (q & 1) + (q >> 1))) * 3456
    A("s_waitcnt vmcnt(0)")
    nonce_take(T + 8)
    A(f"s_and_b32 s29, s2, {NREP - 1}")
    A(f"s_lshl_b32 s29, s29, {FSH + 4}")
    prefetch_weights(T + 8)
    poll_flags(0, 29, T + 4, 8)
    load_weight_frags([(SRD1, voff, soff, 5, GW, RAW, None), (SRD2, voff, soff, 5, UW, RAW + 40, None)])
    topk_setup(CODE, vG, vLW, vLR, 8192)
    A(f"s_lshl_b32 s60, s{WV}, 4")
    A(f"v_add_lshl_u32 {v(vLP1)}, {v(g)}, s60, 4")
    A(f"s_lshl_b32 s60, s{WV}, 6")
    A(f"s_add_u32 s60, s60, 1024")
    A(f"v_lshl_add_u32 {v(vLP2)}, {v(g)}, 4, s60")
    A(f"s_lshl_b32 s60, s{WV}, 11")
    A(f"v_lshlrev_b32 {v(vPW)}, 9, {v(g)}")
    A(f"v_lshl_add_u32 {v(vPW)}, {v(n)}, 3, {v(vPW)}")
    A(f"v_add_u32 {v(vPW)}, s60, {v(vPW)}")
    A(f"v_add_u32 {v(12)}, 1024, {v(vPW)}")
    A(f"v_lshlrev_b32 {v(vPR)}, 2, v0")
    A(f"v_lshrrev_b32 {v(T+2)}, 1, v0")
    A(f"v_lshlrev_b32 {v(vH)}, 2, {v(T+2)}")
    A(f"s_lshl_b32 s{sH}, s{sKAP}, 9")
    A(f"s_add_u32 s{sH}, s{sH}, {H_OFF}")
    A(f"s_and_b32 s{sRG}, s2, {NRR - 1}")
    A(f"s_lshl_b32 s{sRG}, s{sRG}, {RSH + 8}")
    A(f"s_add_u32 s{sRG}, s{sRG}, {RG_OFF}")
    A(f"s_mov_b32 s{sT}, {T_OFF}")
    A(f"s_mov_b32 s28, {T_REC}")
    for (r, val) in ((30, 0xAAAAAAAA), (32, 0xCCCCCCCC), (34, 0xF0F0F0F0)):
        A(f"s_mov_b32 s{r}, 0x{val:x}")
        A(f"s_mov_b32 s{r+1}, 0x{val:x}")
    A(f"s_mov_b32 s{sL}, 0")
    stamp(0, dbg=(9, FA0))
    poll_flags(1, 29, T, 8)
    prio(3)
    A.label("L_FaLoop")
    c = topk(K, CODE, vG, vLW, vLR, sRG, T, (11, FA0, 0))
    stamp(4, "s27")
    for i in range(4):
        A(f"v_cndmask_b32 {v(T+i)}, {v(c[2*i])}, {v(c[2*i+1])}, s[30:31]")
    A(f"v_cndmask_b32 {v(T)}, {v(T)}, {v(T+1)}, s[32:33]")
    A(f"v_cndmask_b32 {v(T+2)}, {v(T+2)}, {v(T+3)}, s[32:33]")
    A(f"v_cndmask_b32 {v(T)}, {v(T)}, {v(T+2)}, s[34:35]")
    A(f"v_and_b32 {v(T)}, 0x7ff, {v(T)}")
    A(f"v_sub_u32 {v(T)}, 2047, {v(T)}")
    A(f"v_mad_u32_u24 {v(T+1)}, {v(T)}, s28, {v(vLP1)}")
    A(f"v_mad_u32_u24 {v(T+2)}, {v(T)}, s28, {v(vLP2)}")
    loop, done = A.newlabel("Lga"), A.newlabel("Lgad")
    A(f"s_mov_b32 s62, {SPIN}")
    A.label(loop)
    for ks in range(4):
        A(f"buffer_load_dwordx4 {v(AFR+4*ks,4)}, {v(T+1)}, {WS}, s{sT} offen offset:{64*ks} sc1")
    A(f"buffer_load_dwordx4 {v(AFR+16,4)}, {v(T+2)}, {WS}, s{sT} offen sc1")
    A("s_waitcnt vmcnt(0)")
    any_sentinel(range(AFR, AFR + 20), T + 3, done)
    spin_tail(loop, 62, 1)
    A.label(done)
    for ks in range(5):
        for a_, wb in enumerate((GW, GW + 4, UW, UW + 4)):
            cc = "0" if ks == 0 else v(ACC + 4 * a_, 4)
            A(f"v_mfma_f32_16x16x32_bf16 {v(ACC+4*a_,4)}, {v(AFR+4*ks,4)}, {v(wb+8*ks,4)}, {cc}")
    stamp(5, "s27")
    set_exec(0xffffffff)
    for mat in range(2):
        for r in range(4):
            A(f"ds_write2_b32 {v(vPW if mat == 0 else 12)}, {v(ACC+8*mat+r)}, {v(ACC+8*mat+4+r)} offset0:{32*r} offset1:{32*r+1}")
    A("s_mov_b64 exec, -1")
    A("s_waitcnt lgkmcnt(0)")
    A("s_barrier")
    for w in range(4):
        A(f"ds_read2st64_b32 {v(T+2*w,2)}, {v(vPR)} offset0:{8*w} offset1:{8*w+4}")
    A("s_waitcnt lgkmcnt(2)")
    A(f"v_pk_add_f32 {v(T,2)}, {v(T,2)}, {v(T+2,2)}")
    A("s_waitcnt lgkmcnt(0)")
    A(f"v_pk_add_f32 {v(T+4,2)}, {v(T+4,2)}, {v(T+6,2)}")
    A(f"v_pk_add_f32 {v(T,2)}, {v(T,2)}, {v(T+4,2)}")
    rnd_pair(T, T + 1, T + 2)
    A(f"v_mul_f32 {v(T+2)}, {f32(-1.4426950408889634)}, {v(T)}")
    A(f"v_exp_f32 {v(T+2)}, {v(T+2)}")
    A(f"v_add_f32 {v(T+2)}, 1.0, {v(T+2)}")
    A(f"v_rcp_f32 {v(T+2)}, {v(T+2)}")
    A(f"v_mul_f32 {v(T)}, {v(T)}, {v(T+2)}")
    A(f"v_cvt_pk_bf16_f32 {v(T)}, {v(T)}, {v(T)}")
    A(f"v_and_b32 {v(T)}, 0xffff0000, {v(T)}")
    A(f"v_mul_f32 {v(T)}, {v(T)}, {v(T+1)}")
    A(f"v_mov_b32_dpp {v(T+1)}, {v(T)} quad_perm:[1,0,3,2] row_mask:0xf bank_mask:0xf")
    A(f"v_cvt_pk_bf16_f32 {v(T)}, {v(T)}, {v(T+1)}")
    A(f"v_min_u32 {v(T)}, -2, {v(T)}")
    set_exec(0x5555555555555555)
    A(f"buffer_store_dword {v(T)}, {v(vH)}, {WS}, s{sH} offen sc1")
    A("s_mov_b64 exec, -1")
    stamp(6, "s27")
    A(f"s_add_u32 s{sH}, s{sH}, {2 * HREP}")
    A(f"s_add_u32 s{sRG}, s{sRG}, {NRR * RG_REP}")
    A(f"s_add_u32 s{sT}, s{sT}, {T_SZ}")
    A(f"s_add_u32 s{sL}, s{sL}, 1")
    A(f"s_cmp_lt_u32 s{sL}, 2")
    A("s_cbranch_scc1 L_FaLoop")
    A("s_endpgm")

def roleFb():
    A.label("L_roleFb")
    DW, HF, ACC, K, CODE, T = 16, 128, 184, 192, 216, 224
    RAW = 128
    vG, vLW, vLR, vW1, vHF, vPW, vPR, vE, vX2, vO = 2, 3, 4, 5, 6, 7, 8, 9, 10, 11
    sB, sRG, sT, sH, sL, sREP2, sES, sEC = 22, 23, 25, 26, 27, 29, 30, 31
    nonce_load(T + 8)
    srd(8, 50, 2211840)
    srd(12, 52, 2621440)
    A(f"s_sub_u32 s60, s2, {FB0 - 7}")
    A(f"s_and_b32 s61, s60, 7")
    A(f"s_lshr_b32 s60, s60, 3")
    fb_start("s61", f"s{sB}")
    A(f"s_add_u32 s{sB}, s{sB}, s60")
    A(f"s_cmp_eq_u32 s61, 7")
    A(f"s_cselect_b32 s60, 0, 1")
    A(f"s_sub_u32 s{sB}, s{sB}, s60")
    A("s_mov_b32 s58, 0x05040100")
    A("s_mov_b32 s59, 0x07060302")
    n, g = T, T + 1
    A(f"v_and_b32 {v(n)}, 15, v1")
    A(f"v_lshrrev_b32 {v(g)}, 4, v1")
    A(f"s_lshl_b32 s60, s{WV}, 5")
    A(f"v_lshl_add_u32 {v(vW1)}, {v(g)}, 3, s60")
    A(f"v_mul_u32_u24 {v(vW1)}, 1280, {v(vW1)}")
    A(f"s_lshl_b32 s61, s{sB}, 6")
    A(f"v_lshl_add_u32 {v(T+2)}, {v(n)}, 2, s61")
    A(f"v_add_u32 {v(vW1)}, {v(vW1)}, {v(T+2)}")
    A(f"v_mov_b32 v12, {v(n)}")
    A(f"v_mov_b32 v13, {v(g)}")
    n, g = 12, 13
    A("s_waitcnt vmcnt(0)")
    nonce_take(T + 8)
    A(f"s_and_b32 s{sREP2}, s2, {NREP - 1}")
    A(f"s_lshl_b32 s{sREP2}, s{sREP2}, {FSH + 4}")
    prefetch_weights(T + 16)
    poll_flags(0, sREP2, T + 4, 8)
    load_weight_frags([(SRD1, lambda k: vW1, lambda k, q: (128 * k + q) * 1280, 14, DW, RAW, 13)])
    topk_setup(CODE, vG, vLW, vLR, 8192)
    A(f"v_and_b32 {v(vHF)}, 7, v1")
    A(f"v_lshlrev_b32 {v(vHF)}, 6, {v(vHF)}")
    A(f"v_lshl_add_u32 {v(vHF)}, {v(g)}, 4, {v(vHF)}")
    A(f"s_lshl_b32 s60, s{WV}, 9")
    A(f"v_add_u32 {v(vHF)}, s60, {v(vHF)}")
    A(f"s_mov_b32 s{sH}, {H_OFF}")
    A(f"s_lshl_b32 s60, s{WV}, 10")
    A(f"v_lshlrev_b32 {v(vPW)}, 9, {v(g)}")
    A(f"v_lshl_add_u32 {v(vPW)}, {v(n)}, 3, {v(vPW)}")
    A(f"v_add_u32 {v(vPW)}, s60, {v(vPW)}")
    A(f"v_lshlrev_b32 {v(vPR)}, 2, v0")
    A(f"s_cmp_ge_u32 s{sB}, 10")
    A(f"s_cselect_b32 s60, 1, 0")
    A(f"s_mul_i32 s61, s60, 10")
    A(f"s_sub_u32 s61, s{sB}, s61")
    A(f"s_lshl_b32 s62, s60, 9")
    A(f"s_lshl_b32 s63, s61, 1")
    A(f"s_add_u32 s62, s62, s63")
    A(f"s_lshl_b32 s64, s60, 7")
    A(f"s_add_u32 s64, s64, s63")
    A(f"s_add_u32 s64, s64, {1024 - 16}")
    A(f"s_cmp_lt_u32 s61, 8")
    A(f"s_cselect_b32 s{sEC}, s62, s64")
    A(f"s_cselect_b32 s{sES}, 16, 4")
    A(f"v_and_b32 {v(T+2)}, 31, v1")
    A(f"v_mul_u32_u24 {v(vE)}, s{sES}, {v(T+2)}")
    A(f"s_and_b32 s32, s{sEC}, 2")
    A(f"s_lshl_b32 s32, s32, 3")
    A(f"s_sub_u32 s32, 16, s32")
    A(f"s_and_b32 s{sEC}, s{sEC}, -4")
    A(f"v_add_u32 {v(vE)}, s{sEC}, {v(vE)}")

    A(f"s_lshl_b32 s60, s{sB}, 2")
    A(f"s_add_u32 s60, s60, s{WV}")
    A(f"s_lshl_b32 s60, s60, 8")
    A(f"v_lshl_add_u32 {v(vX2)}, {v(T+2)}, 3, s60")
    A(f"v_lshrrev_b32 {v(T+3)}, 5, v1")
    A(f"v_lshl_add_u32 {v(vX2)}, {v(T+3)}, 2, {v(vX2)}")
    A(f"s_lshl_b32 s60, s{sB}, 6")
    A(f"v_lshl_add_u32 {v(vO)}, {v(T+2)}, 1, s60")
    A(f"s_and_b32 s{sRG}, s2, {NRR - 1}")
    A(f"s_lshl_b32 s{sRG}, s{sRG}, {RSH + 8}")
    A(f"s_add_u32 s{sRG}, s{sRG}, {RG_OFF}")
    A(f"s_mov_b32 s{sT}, {T_OFF}")
    A(f"s_mov_b32 s28, {T_REC}")
    A(f"s_mov_b32 s{sL}, 0")
    stamp(0, dbg=(10, FB0))
    poll_flags(1, sREP2, T, 8)
    prio(3)
    A.label("L_FbLoop")
    c = topk(K, CODE, vG, vLW, vLR, sRG, T, None)
    stamp(4, "s27")
    for j in range(8):
        A(f"v_readfirstlane_b32 s{80+j}, {v(c[j])}")
    A("s_mov_b32 s70, s80")
    A("s_mov_b32 s71, s81")
    for w in range(1, 4):
        A(f"s_cmp_eq_u32 s{WV}, {w}")
        A(f"s_cselect_b32 s70, s{80+2*w}, s70")
        A(f"s_cselect_b32 s71, s{81+2*w}, s71")
    KEY, ROW, XV, XNV, SG, ST = T, T + 1, T + 2, T + 3, T + 4, T + 8
    Ls = A.newlabel("Lfb")
    A(f"s_or_b32 s60, s{sB}, s{WV}")
    A(f"s_cmp_lg_u32 s60, 0")
    A(f"s_cbranch_scc1 {Ls}")
    A(f"v_mov_b32 {v(T+6)}, s80")
    for j in range(1, 8):
        A(f"v_writelane_b32 {v(T+6)}, s{80+j}, {j}")
    A(f"v_and_b32 {v(T+6)}, 0x7ff, {v(T+6)}")
    A(f"v_sub_u32 {v(T+6)}, 2047, {v(T+6)}")
    A(f"v_lshlrev_b32 {v(T+7)}, 2, v1")
    A(f"s_lshl_b32 s60, s{sL}, 8")
    A(f"s_add_u32 s60, s60, {X2_OFF + SEL_OFF}")
    A("s_mov_b64 exec, 0xff")
    A(f"buffer_store_dword {v(T+6)}, {v(T+7)}, {WS}, s60 offen sc1")
    A("s_mov_b64 exec, -1")
    A.label(Ls)
    A(f"v_mov_b32 {v(KEY)}, s71")
    A(f"v_mov_b32 {v(ROW)}, s70")
    A(f"v_cmp_gt_u32 vcc, 32, v1")
    A(f"v_cndmask_b32 {v(KEY)}, {v(KEY)}, {v(ROW)}, vcc")
    A(f"v_and_b32 {v(ROW)}, 0x7ff, {v(KEY)}")
    A(f"v_sub_u32 {v(ROW)}, 2047, {v(ROW)}")
    A(f"v_mad_u32_u24 {v(T+5)}, {v(ROW)}, s28, {v(vE)}")
    prio(0)
    loop, done = A.newlabel("Lst2"), A.newlabel("Lst2d")
    A(f"v_mul_u32_u24 {v(T+6)}, s28, {v(ROW)}")
    A(f"s_add_u32 s61, s{NONCE}, 6")
    A(f"s_add_u32 s61, s61, s{sL}")
    A(f"s_mov_b32 s62, {SPIN}")
    A.label(loop)
    A(f"buffer_load_dwordx4 {v(ST,4)}, {v(T+6)}, {WS}, s{sT} offen offset:2560 sc1")
    A("s_waitcnt vmcnt(0)")
    A(f"v_cmp_ne_u32 vcc, s61, {v(ST+2)}")
    A(f"s_cbranch_vccz {done}")
    spin_tail(loop, 62, 2)
    A.label(done)
    A(f"buffer_load_dword {v(XNV)}, {v(T+5)}, {WS}, s{sT} offen sc1")
    A(f"buffer_load_dword {v(XV)}, {v(T+5)}, {WS}, s{sT} offen offset:1280 sc1")
    A(f"v_ashrrev_i32 {v(SG)}, 31, {v(KEY)}")
    A(f"v_not_b32 {v(SG)}, {v(SG)}")
    A(f"v_or_b32 {v(SG)}, 0x80000000, {v(SG)}")
    A(f"v_xor_b32 {v(SG)}, {v(SG)}, {v(KEY)}")
    A(f"v_and_b32 {v(SG)}, 0xffff0000, {v(SG)}")
    A(f"v_mul_f32 {v(SG)}, {f32(-1.4426950408889634)}, {v(SG)}")
    A(f"v_exp_f32 {v(SG)}, {v(SG)}")
    A(f"v_add_f32 {v(SG)}, 1.0, {v(SG)}")
    A(f"v_rcp_f32 {v(SG)}, {v(SG)}")
    A(f"v_cvt_pk_bf16_f32 {v(SG)}, {v(SG)}, {v(SG)}")
    A(f"v_and_b32 {v(SG)}, 0xffff0000, {v(SG)}")
    stamp(2, "s27")
    def rb(r):
        A(f"v_cvt_pk_bf16_f32 {v(r)}, {v(r)}, {v(r)}")
        A(f"v_and_b32 {v(r)}, 0xffff0000, {v(r)}")
    Yv = T + 12
    XO = T + 16
    if opt("hgate", 0):
        loop, done = A.newlabel("Lh"), A.newlabel("Lhd")
        A(f"s_mov_b32 s62, {SPIN}")
        A.label(loop)
        A(f"buffer_load_dwordx4 {v(HF,4)}, {v(vHF)}, {WS}, s{sH} offen sc1")
        A("s_waitcnt vmcnt(0)")
        any_sentinel(range(HF, HF + 4), T + 6, done)
        spin_tail(loop, 62, opt("hgsleep", 2))
        A.label(done)
    loop, done = A.newlabel("Lh"), A.newlabel("Lhd")
    A(f"s_cmp_lt_u32 s{WV}, 2")
    A(f"s_cselect_b32 s63, 2048, 0")
    A(f"s_add_u32 s63, s63, {12 * 2048}")
    A(f"s_add_u32 s63, s63, s{sH}")
    A(f"s_mov_b32 s62, {SPIN}")
    A.label(loop)
    for k in range(14):
        if k == 13:
            A(f"buffer_load_dwordx4 {v(HF+4*k,4)}, {v(vHF)}, {WS}, s63 offen sc1")
        else:
            if k % 2 == 0:
                A(f"s_add_u32 s60, s{sH}, {2048 * k}")
            A(f"buffer_load_dwordx4 {v(HF+4*k,4)}, {v(vHF)}, {WS}, s60 offen offset:{2048*(k%2)} sc1")
    CK = T + 6
    A("s_waitcnt vmcnt(0)")
    any_sentinel(list(range(HF, HF + 56)), CK, done)
    spin_tail(loop, 62, opt("hsleep", 1))
    A.label(done)
    prio(3)
    stamp(5, "s27")
    Lh2 = A.newlabel("Lfb")
    A(f"s_or_b32 s60, s{sB}, s{WV}")
    A(f"s_or_b32 s60, s60, s{sL}")
    A(f"s_cmp_lg_u32 s60, 0")
    A(f"s_cbranch_scc1 {Lh2}")
    A(f"v_mov_b32 {v(CK)}, 0")
    A(f"s_mov_b32 s60, {X2_OFF + SEL_OFF + 128}")
    A("s_mov_b64 exec, 1")
    A(f"buffer_store_dword {v(CK)}, {v(CK)}, {WS}, s60 offen sc1")
    A.label(Lh2)
    A("s_mov_b64 exec, -1")
    for k in range(14):
        for par in range(2):
            cc = "0" if k == 0 else v(ACC + 4 * par, 4)
            A(f"v_mfma_f32_16x16x32_bf16 {v(ACC+4*par,4)}, {v(HF+4*k,4)}, {v(DW+8*k+4*par,4)}, {cc}")
    for r in (XNV, XV):
        A(f"v_lshlrev_b32 {v(r)}, s32, {v(r)}")
        A(f"v_and_b32 {v(r)}, 0xffff0000, {v(r)}")
    A(f"v_add_f32 {v(XO)}, {v(XV)}, {v(XNV)}")
    rb(XO)
    A(f"v_sub_f32 {v(XO)}, {v(XO)}, {v(ST)}")
    if EXACT:
        rb(XO)
    A(f"v_mul_f32 {v(XO)}, {v(XO)}, {v(ST+1)}")
    if EXACT:
        rb(XO)
    set_exec(0xffffffff)
    for r in range(4):
        A(f"ds_write2_b32 {v(vPW)}, {v(ACC+r)}, {v(ACC+4+r)} offset0:{32*r} offset1:{32*r+1}")
    A("s_mov_b64 exec, -1")
    A("s_waitcnt lgkmcnt(0)")
    A("s_barrier")
    A(f"ds_read2st64_b32 {v(Yv,2)}, {v(vPR)} offset0:0 offset1:4")
    A(f"ds_read2st64_b32 {v(Yv+2,2)}, {v(vPR)} offset0:8 offset1:12")
    A("s_waitcnt lgkmcnt(0)")
    A(f"v_pk_add_f32 {v(Yv,2)}, {v(Yv,2)}, {v(Yv+2,2)}")
    A(f"v_add_f32 {v(Yv)}, {v(Yv)}, {v(Yv+1)}")
    rb(Yv)
    A(f"v_mul_f32 {v(Yv)}, {v(Yv)}, {v(SG)}")
    rb(Yv)
    A(f"v_add_f32 {v(Yv)}, {v(Yv)}, {v(XNV)}")
    rb(Yv)
    A(f"v_add_f32 {v(Yv)}, {v(Yv)}, {v(XV)}")
    L2 = A.newlabel("Lfb")
    A(f"s_cmp_lg_u32 s{sL}, 0")
    A(f"s_cbranch_scc1 {L2}")
    A(f"v_permlane32_swap_b32 {v(Yv)}, {v(XO)}")
    A(f"v_cvt_pk_bf16_f32 {v(Yv+1)}, {v(Yv)}, {v(XO)}")
    A(f"v_cvt_pk_f16_f32 {v(Yv)}, {v(Yv)}, {v(XO)}")
    A(f"v_cmp_gt_u32 vcc, 32, v1")
    A(f"v_cndmask_b32 {v(Yv)}, {v(Yv)}, {v(Yv+1)}, vcc")
    A(f"v_min_u32 {v(Yv)}, -2, {v(Yv)}")
    for r in range(NRX):
        A(f"s_mov_b32 s60, {X2_OFF + r * X2REP}")
        A(f"buffer_store_dword {v(Yv)}, {v(vX2)}, {WS}, s60 offen sc1")
    stamp(6, "s27", dbg=(12, FB0))
    A(f"s_add_u32 s{sH}, s{sH}, {2 * HREP}")
    A(f"s_add_u32 s{sRG}, s{sRG}, {NRR * RG_REP}")
    A(f"s_add_u32 s{sT}, s{sT}, {T_SZ}")
    A(f"s_mov_b32 s{sL}, 1")
    A("s_branch L_FbLoop")
    A.label(L2)
    A(f"v_cvt_pk_bf16_f32 {v(Yv)}, {v(Yv)}, {v(Yv)}")
    A(f"s_movk_i32 s60, 1280")
    A(f"v_mad_u32_u24 {v(Yv+1)}, {v(ROW)}, s60, {v(vO)}")
    A(f"buffer_store_short {v(Yv)}, {v(Yv+1)}, {SRD2}, 0 offen sc1")
    stamp(7, "s27", dbg=(15, FB0))
    A(f"s_or_b32 s60, s{sB}, s{WV}")
    A(f"s_cmp_lg_u32 s60, 0")
    A("s_cbranch_scc1 L_end")
    A(f"v_mov_b32 {v(T)}, s{NONCE}")
    A(f"v_mov_b32 {v(T+1)}, 0")
    A("s_mov_b64 exec, 1")
    A(f"buffer_store_dword {v(T)}, {v(T+1)}, {WS}, 0 offen sc1")
    A.label("L_end")
    A("s_endpgm")

hdr = open("cdna_kernels/%s.s.ref" % NAME).read().split("\n")
head = [l for l in hdr if l.startswith(";") and "@launch" not in l and "Override" not in l and "grid=ceil" not in l]
out = "\n".join(head) + "\n"
out += f"; @launch grid=({NWG},1,1) block=(256,1,1) lds={LDS_BYTES}\n"
out += '.amdgcn_target "amdgcn-amd-amdhsa--gfx950"\n.text\n'
out += f".globl {NAME}_kernel\n.p2align 8\n.type {NAME}_kernel,@function\n{NAME}_kernel:\n"
prologue(); roleR(); roleC(); roleFa(); roleFb()
out += A.text()
out += f""".section .rodata,"a"
.p2align 6
.amdhsa_kernel {NAME}_kernel
  .amdhsa_next_free_vgpr 256
  .amdhsa_next_free_sgpr 102
  .amdhsa_accum_offset 256
  .amdhsa_group_segment_fixed_size 0
  .amdhsa_kernarg_size 104
  .amdhsa_user_sgpr_count 2
  .amdhsa_user_sgpr_kernarg_segment_ptr 1
  .amdhsa_system_sgpr_workgroup_id_x 1
  .amdhsa_float_denorm_mode_32 3
.end_amdhsa_kernel
"""
dst = [a for a in sys.argv[1:] if not a.startswith("--")]
open(dst[0] if dst else "cdna_kernels/%s.s" % NAME, "w").write(out)
print("instructions:", A.ninstr, file=sys.stderr)
```

```python
import sys, struct
from asmb import Asm

NAME = "interleave_layers__spectral_fnet__moe_arch_mod__prompt"
def opt(name, default):
    for a in sys.argv:
        if a.startswith("--%s=" % name):
            return int(a.split("=")[1])
    return default
STAMPS = "--stamps" in sys.argv
DSTAMPS = "--dstamps" in sys.argv
MSTAMPS = "--mstamps" in sys.argv
EXACT = opt("exact", 0)
GATE = opt("gate", 0)
NR, NC, NFA, NFB = 256, 161, 54, 20
C0, FA0, FB0, NWG = 256, 417, 471, 491
FSH = opt("fsh", 6); FREP = 16 << FSH
FL_OFF = 0x1000; NREP = opt("nrep", 16)
RESET_OFF = 0x70000
H_OFF = 0x70000; HREP = 0x7000
X2_OFF = 0x90000; X2REP = 0x5200; NRX = opt("nrx", 1); SEL_OFF = 0x5000
RSH = opt("rsh", 6)
RG_OFF = 0xA0000; NRR = opt("nrr", 8); RG_REP = 256 << RSH
CNT_OFF = 0xF8000
WROW = 10368
W_OFF = 0x100000; W_SZ = 0x290000
Y_OFF = 0x640000; Y_SZ = 0x160000; YM_OFF = 322 * 4096
T_OFF = 0x900000; T_REC = 2688; T_SZ = 2048 * T_REC
ST_OFF = 0x1400000
WS_BYTES = 0x1500000
NONCE_C = 0x9E3779B9
SPIN = 40000
LDS_BYTES = 53248
assert FL_OFF + 4 * NREP * FREP <= 0x70000 and RG_OFF + 2 * NRR * RG_REP <= 0xF0000
PSLEEP = opt("psleep", 1)
EARLY_R = opt("earlyr", 1)
EARLY_C = opt("earlyc", 1)
PRIO = opt("prio", 1)
def prio(n):
    if PRIO:
        A(f"s_setprio {n}")

def f32(x):
    return "0x%08x" % struct.unpack("<I", struct.pack("<f", x))[0]
def v(i, n=1):
    return "v%d" % i if n == 1 else "v[%d:%d]" % (i, i + n - 1)
def s(i, n=1):
    return "s%d" % i if n == 1 else "s[%d:%d]" % (i, i + n - 1)

A = Asm()
WS = "s[4:7]"; SRD1 = "s[8:11]"; SRD2 = "s[12:15]"; SRD3 = "s[16:19]"
NONCE = 20; WV = 21

def srd(base, ptr, nbytes):
    A(f"s_mov_b32 s{base}, s{ptr}")
    A(f"s_and_b32 s{base+1}, s{ptr+1}, 0xffff")
    A(f"s_mov_b32 s{base+2}, {nbytes}")
    A(f"s_mov_b32 s{base+3}, 0x00020000")

def set_exec(m):
    A(f"s_mov_b32 exec_lo, 0x{m & 0xffffffff:x}")
    A(f"s_mov_b32 exec_hi, 0x{m >> 32:x}")

def stamp(idx, lay=None, dbg=None):
    if MSTAMPS and dbg is not None:
        L = A.newlabel("Lst")
        A(f"s_mov_b32 s97, s{WV}")
        if len(dbg) > 2:
            A(f"s_sub_u32 s96, {lay}, {dbg[2]}")
            A(f"s_or_b32 s97, s97, s96")
        A(f"s_cmp_lg_u32 s97, 0")
        A(f"s_cbranch_scc1 {L}")
        A("s_memrealtime s[98:99]")
        A("s_waitcnt lgkmcnt(0)")
        A("s_and_b32 s98, s98, 0x7fffffff")
        A("v_mov_b32 v254, s98")
        A("v_mov_b32 v253, 0")
        A("s_mov_b64 exec, 1")
        if dbg[0] == 0:
            A(f"buffer_atomic_umax v254, v253, s[92:95], 0 offen offset:4")
            A("v_not_b32 v254, v254")
        if dbg[0] != 1:
            A(f"buffer_atomic_umax v254, v253, s[92:95], 0 offen offset:{dbg[0] * 4}")
        A("s_mov_b64 exec, -1")
        A.label(L)
    if DSTAMPS and dbg is not None:
        L = A.newlabel("Lst")
        A(f"s_lshl_b32 s97, s{WV}, 16")
        A(f"s_or_b32 s97, s97, s2")
        if len(dbg) > 2:
            A(f"s_lshl_b32 s96, {lay}, 20")
            A(f"s_or_b32 s97, s97, s96")
        A(f"s_cmp_lg_u32 s97, {dbg[1] + ((dbg[2] << 20) if len(dbg) > 2 else 0)}")
        A(f"s_cbranch_scc1 {L}")
        A("s_memrealtime s[98:99]")
        A("s_waitcnt lgkmcnt(0)")
        A("v_mov_b32 v254, s98")
        A("v_mov_b32 v253, 0")
        A("s_mov_b64 exec, 1")
        A(f"buffer_store_dword v254, v253, s[92:95], 0 offen offset:{dbg[0] * 4}")
        A("s_mov_b64 exec, -1")
        A.label(L)
    if not STAMPS:
        return
    L = A.newlabel("Lst")
    A(f"s_cmp_lg_u32 s{WV}, 0")
    A(f"s_cbranch_scc1 {L}")
    A("s_memrealtime s[98:99]")
    A("s_memtime s[100:101]")
    A("s_waitcnt lgkmcnt(0)")
    A("v_mov_b32 v254, s98")
    A("v_mov_b32 v255, s100")
    A("v_mov_b32 v253, 0")
    A("s_lshl_b32 s97, s2, 9")
    A(f"s_add_u32 s97, s97, {ST_OFF + idx * 8}")
    if lay is not None:
        A(f"s_lshl_b32 s96, {lay}, 6")
        A("s_add_u32 s97, s97, s96")
    A("s_mov_b64 exec, 1")
    A(f"buffer_store_dwordx2 v[254:255], v253, {WS}, s97 offen")
    A("s_mov_b64 exec, -1")
    A.label(L)

def spin_tail(loop, cnt, sleep=1):
    if sleep:
        A(f"s_sleep {sleep}")
    A(f"s_sub_u32 s{cnt}, s{cnt}, 1")
    A(f"s_cmp_lg_u32 s{cnt}, 0")
    A(f"s_cbranch_scc1 {loop}")

def any_sentinel(regs, t, done):
    regs = list(regs)
    A(f"v_max3_u32 {v(t)}, {v(regs[0])}, {v(regs[1])}, {v(regs[2])}")
    k = 3
    while k + 1 < len(regs):
        A(f"v_max3_u32 {v(t)}, {v(t)}, {v(regs[k])}, {v(regs[k+1])}")
        k += 2
    if k < len(regs):
        A(f"v_max_u32 {v(t)}, {v(t)}, {v(regs[k])}")
    A(f"v_cmp_eq_u32 vcc, -1, {v(t)}")
    A(f"s_cbranch_vccz {done}")

def poll_flags(k, srep, t, sleep=None):
    loop, done = A.newlabel("Lpoll"), A.newlabel("Lpolld")
    A(f"s_cmp_lg_u32 s{WV}, 0")
    A(f"s_cbranch_scc1 {done}")
    if isinstance(k, int):
        A(f"s_add_u32 s60, s{srep}, {FL_OFF + k * NREP * FREP}")
    else:
        A(f"s_mul_i32 s60, {k}, {NREP * FREP}")
        A(f"s_add_u32 s60, s60, s{srep}")
        A(f"s_add_u32 s60, s60, {FL_OFF}")
    A(f"s_add_u32 s61, s{NONCE}, {k}")
    A(f"v_and_b32 {v(t+1)}, 15, v1")
    A(f"v_lshlrev_b32 {v(t+1)}, {FSH}, {v(t+1)}")
    A(f"s_mov_b32 s62, {SPIN}")
    A.label(loop)
    A(f"buffer_load_dword {v(t)}, {v(t+1)}, {WS}, s60 offen sc1")
    A("s_waitcnt vmcnt(0)")
    A(f"v_cmp_ne_u32 vcc, s61, {v(t)}")
    A(f"s_cbranch_vccz {done}")
    spin_tail(loop, 62, PSLEEP if sleep is None else sleep)
    A.label(done)
    A("s_barrier")

def cnt_init(sshard, ks, t):
    for k in ks:
        A(f"s_add_u32 s60, s{sshard}, {16 * k}")
        A(f"s_lshl_b32 s60, s60, 7")
        A(f"s_add_u32 s60, s60, {CNT_OFF}")
        A(f"s_add_u32 s61, s{NONCE}, {k}")
        A(f"v_mov_b32 {v(t)}, 0")
        A(f"v_mov_b32 {v(t+1)}, s61")
        A(f"v_mov_b32 {v(t+2)}, 0")
        A("s_mov_b64 exec, 1")
        A(f"buffer_store_dwordx2 {v(t,2)}, {v(t+2)}, {WS}, s60 offen sc1")
        A("s_mov_b64 exec, -1")

def arrive_issue(k, sshard, t):
    L = A.newlabel("Larr")
    A(f"s_cmp_lg_u32 s{WV}, 0")
    A(f"s_cbranch_scc1 {L}")
    if isinstance(k, int):
        A(f"s_add_u32 s66, s{sshard}, {16 * k}")
    else:
        A(f"s_lshl_b32 s66, {k}, 4")
        A(f"s_add_u32 s66, s66, s{sshard}")
    A(f"s_lshl_b32 s66, s66, 7")
    A(f"s_add_u32 s66, s66, {CNT_OFF}")
    A(f"v_mov_b32 {v(t)}, 1")
    A(f"v_mov_b32 {v(t+1)}, 0")
    A(f"v_mov_b32 {v(t+2)}, 0")
    A("s_mov_b64 exec, 1")
    A(f"buffer_atomic_add_x2 {v(t,2)}, {v(t+2)}, {WS}, s66 offen sc0")
    A("s_mov_b64 exec, -1")
    A.label(L)

def arrive_finish(k, sshard, slast, t, younger):
    L, again, chk = A.newlabel("Lsig"), A.newlabel("Lsiga"), A.newlabel("Lsigc")
    A(f"s_cmp_lg_u32 s{WV}, 0")
    A(f"s_cbranch_scc1 {L}")
    if isinstance(k, int):
        A(f"s_lshl_b32 s67, s{sshard}, {FSH}")
        A(f"s_add_u32 s67, s67, {FL_OFF + k * NREP * FREP}")
    else:
        A(f"s_mul_i32 s67, {k}, {NREP * FREP}")
        A(f"s_lshl_b32 s68, s{sshard}, {FSH}")
        A(f"s_add_u32 s67, s67, s68")
        A(f"s_add_u32 s67, s67, {FL_OFF}")
    A(f"s_add_u32 s68, s{NONCE}, {k}")
    A(f"v_lshlrev_b32 {v(t+3)}, {FSH + 4}, v1")
    A(f"v_mov_b32 {v(t+4)}, s68")
    A(f"s_mov_b32 s69, {SPIN}")
    if isinstance(younger, tuple):
        A(f"s_waitcnt vmcnt({younger[2]})")
        A(f"s_cmp_eq_u32 {younger[0]}, {younger[1]}")
        A(f"s_cbranch_scc1 {chk}")
        A("s_waitcnt vmcnt(0)")
    else:
        A(f"s_waitcnt vmcnt({younger})")
    A(f"s_branch {chk}")
    A.label(again)
    A(f"s_sub_u32 s69, s69, 1")
    A(f"s_cmp_eq_u32 s69, 0")
    A(f"s_cbranch_scc1 {L}")
    A(f"v_mov_b32 {v(t)}, 1")
    A(f"v_mov_b32 {v(t+1)}, 0")
    A(f"v_mov_b32 {v(t+2)}, 0")
    A("s_mov_b64 exec, 1")
    A(f"buffer_atomic_add_x2 {v(t,2)}, {v(t+2)}, {WS}, s66 offen sc0")
    A("s_mov_b64 exec, -1")
    A("s_waitcnt vmcnt(0)")
    A.label(chk)
    A(f"v_readfirstlane_b32 s65, {v(t+1)}")
    A(f"v_readfirstlane_b32 s64, {v(t)}")
    A(f"s_cmp_lg_u32 s65, s68")
    A(f"s_cbranch_scc1 {again}")
    A(f"s_cmp_lg_u32 s64, {slast}")
    A(f"s_cbranch_scc1 {L}")
    set_exec((1 << NREP) - 1)
    A(f"buffer_store_dword {v(t+4)}, {v(t+3)}, {WS}, s67 offen sc1")
    A("s_mov_b64 exec, -1")
    A.label(L)

def rnd_pair(a, b, t):
    A(f"v_cvt_pk_bf16_f32 {v(t)}, {v(a)}, {v(b)}")
    A(f"v_lshlrev_b32 {v(a)}, 16, {v(t)}")
    A(f"v_and_b32 {v(b)}, 0xffff0000, {v(t)}")

def sincos(arg, c, sn):
    A(f"v_cos_f32 {v(c)}, {v(arg)}")
    A(f"v_sin_f32 {v(sn)}, {v(arg)}")

def prefetch_weights(t):
    if not opt("pref", 0):
        return
    srd(84, 46, 2211840)
    A(f"v_lshlrev_b32 {v(t)}, 4, v0")
    A(f"s_sub_u32 s60, s2, {C0}")
    for r in range(7):
        Ls, Ld = A.newlabel("Lpf"), A.newlabel("Lpf")
        A(f"s_add_u32 s61, s60, {235 * r}")
        A(f"s_cmp_ge_u32 s61, 1620")
        A(f"s_cbranch_scc1 {Ld}")
        A(f"s_mov_b32 s84, s46")
        A(f"s_and_b32 s85, s47, 0xffff")
        for (lim, p) in ((540, 48), (540, 50)):
            A(f"s_cmp_lt_u32 s61, {lim}")
            A(f"s_cbranch_scc1 {Ls}")
            A(f"s_sub_u32 s61, s61, {lim}")
            A(f"s_mov_b32 s84, s{p}")
            A(f"s_and_b32 s85, s{p+1}, 0xffff")
        A.label(Ls)
        A(f"s_lshl_b32 s61, s61, 12")
        A(f"buffer_load_dwordx4 {v(t+4,4)}, {v(t)}, s[84:87], s61 offen")
        A.label(Ld)

def fb_start(x, d):
    A(f"s_mul_i32 {d}, {x}, 3")
    A(f"s_lshl_b32 s62, {x}, 1")
    A(f"s_add_u32 s62, s62, 3")
    A(f"s_min_u32 {d}, {d}, s62")

def warm_weights(t):
    A("s_and_b32 s61, s2, 7")
    A("s_lshr_b32 s60, s2, 3")
    A(f"v_mul_u32_u24 {v(t)}, 13108, v0")
    A(f"v_lshrrev_b32 {v(t)}, 16, {v(t)}")
    A(f"v_mul_u32_u24 {v(t+1)}, 5, {v(t)}")
    A(f"v_sub_u32 {v(t+1)}, v0, {v(t+1)}")
    A(f"v_min_u32 {v(t)}, 39, {v(t)}")
    A(f"v_mul_u32_u24 {v(t)}, 3456, {v(t)}")
    A(f"v_lshl_add_u32 {v(t)}, {v(t+1)}, 7, {v(t)}")
    A("s_mul_i32 s63, s61, 7")
    A("s_sub_u32 s63, s63, 1")
    A("s_max_i32 s63, s63, 0")
    A("s_lshl_b32 s63, s63, 6")
    A("s_and_b32 s63, s63, -128")
    A("s_and_b32 s64, s60, 15")
    A(f"s_mul_i32 s64, s64, {40 * 3456}")
    A("s_add_u32 s63, s63, s64")
    A(f"v_add_u32 {v(t)}, s63, {v(t)}")
    A("s_cmp_lt_u32 s60, 16")
    A("s_cselect_b32 s84, s46, s48")
    A("s_cselect_b32 s85, s47, s49")
    A("s_and_b32 s85, s85, 0xffff")
    A("s_mov_b32 s86, 2211840")
    A("s_mov_b32 s87, 0x00020000")
    A(f"buffer_load_dword {v(t+2)}, {v(t)}, s[84:87], 0 offen")
    A(f"v_mul_u32_u24 {v(t)}, 21846, v0")
    A(f"v_lshrrev_b32 {v(t)}, 16, {v(t)}")
    A(f"v_mul_u32_u24 {v(t+1)}, 3, {v(t)}")
    A(f"v_sub_u32 {v(t+1)}, v0, {v(t+1)}")
    A(f"v_min_u32 {v(t)}, 53, {v(t)}")
    A(f"v_mul_u32_u24 {v(t)}, 1280, {v(t)}")
    A(f"v_lshl_add_u32 {v(t)}, {v(t+1)}, 7, {v(t)}")
    fb_start("s61", "s63")
    A("s_lshl_b32 s63, s63, 6")
    A("s_and_b32 s63, s63, -128")
    A(f"s_mul_i32 s64, s60, {54 * 1280}")
    A("s_add_u32 s63, s63, s64")
    A(f"v_add_u32 {v(t)}, s63, {v(t)}")
    A("s_mov_b32 s84, s50")
    A("s_and_b32 s85, s51, 0xffff")
    A(f"buffer_load_dword {v(t+2)}, {v(t)}, s[84:87], 0 offen")

def nonce_load(r):
    A(f"v_mov_b32 {v(r)}, 0")
    A(f"buffer_load_dword {v(r)}, {v(r)}, {WS}, 0 offen")

def nonce_take(r):
    A(f"v_readfirstlane_b32 s{NONCE}, {v(r)}")
    A(f"s_add_u32 s{NONCE}, s{NONCE}, 0x{NONCE_C:x}")

def prologue():
    A(f"s_cmp_ge_u32 s2, {NWG}")
    A("s_cbranch_scc1 L_end")
    A("s_load_dwordx2 s[40:41], s[0:1], 96")
    A("s_load_dwordx2 s[42:43], s[0:1], 0")
    A("s_load_dwordx4 s[44:47], s[0:1], 48")
    A("s_load_dwordx4 s[48:51], s[0:1], 64")
    A("s_load_dwordx4 s[52:55], s[0:1], 80")
    A("v_lshrrev_b32 v2, 6, v0")
    A("v_and_b32 v1, 63, v0")
    A(f"v_readfirstlane_b32 s{WV}, v2")
    A("s_waitcnt lgkmcnt(0)")
    srd(4, 40, WS_BYTES)
    if DSTAMPS or MSTAMPS:
        srd(92, 54, 256)
    stamp(31, dbg=(0, 0))
    A(f"s_cmp_lt_u32 s2, {C0}")
    A("s_cbranch_scc1 L_roleR")
    A(f"s_cmp_lt_u32 s2, {FA0}")
    A("s_cbranch_scc1 L_roleC")
    A(f"s_cmp_lt_u32 s2, {FB0}")
    A("s_cbranch_scc1 L_roleFa")
    A("s_branch L_roleFb")

B1R, B1I, TWC, TWS, B2R, B2I, WR, INV = 16, 28, 40, 56, 72, 88, 104, 114
X, XN, MM, RS = 116, 136, 156, 158
ACR, ACI, AF1, AF2, AC2R, AC2I = 160, 176, 192, 204, 220, 236
vX, vY0, vY1, vY2, vKX, vLC, vLYW, vLYR, vLWW, vLWR0, vWG, vTA = 2, 3, 4, 5, 6, 7, 8, 9, 10, 11, 14, 15
vTB, vWG1 = 252, 115
sRHO, sA, sS2, sRA, sME, sREP, sXO, sWB, sTB, sP, sS, sQ = 22, 23, 24, 25, 26, 27, 28, 29, 30, 32, 34, 36
sSEL = 80
s32f = 38
sTAU = 39
LDS_Y, LDS_W, LDS_NEW, LDS_KX, LDS_CONST, LDS_RG = 0, 10240, 21504, 31744, 24576, 52224

def reduce_tail(r):
    for k in (8, 4, 2, 1):
        A(f"v_add_f32_dpp {v(r)}, {v(r)}, {v(r)} row_ror:{k} row_mask:0xf bank_mask:0xf")

def ln_stats(xb, t):
    S_, Q_, D0, D1 = t, t + 2, t + 4, t + 6
    A(f"v_readfirstlane_b32 s{sP}, {v(xb)}")
    A(f"v_readfirstlane_b32 s{sP+1}, {v(xb+1)}")
    for i in range(10):
        D = S_ if i == 0 else (D0 if i % 2 else D1)
        A(f"v_pk_add_f32 {v(D,2)}, {v(xb+2*i,2)}, {s(sP,2)} neg_lo:[0,1] neg_hi:[0,1]")
        if i == 0:
            A(f"v_pk_mul_f32 {v(Q_,2)}, {v(D,2)}, {v(D,2)}")
        else:
            A(f"v_pk_add_f32 {v(S_,2)}, {v(S_,2)}, {v(D,2)}")
            A(f"v_pk_fma_f32 {v(Q_,2)}, {v(D,2)}, {v(D,2)}, {v(Q_,2)}")
    A(f"v_permlane32_swap_b32 {v(S_)}, {v(S_+1)}")
    A(f"v_permlane32_swap_b32 {v(Q_)}, {v(Q_+1)}")
    A(f"v_add_f32 {v(S_)}, {v(S_)}, {v(S_+1)}")
    A(f"v_add_f32 {v(Q_)}, {v(Q_)}, {v(Q_+1)}")
    A(f"v_permlane16_swap_b32 {v(S_)}, {v(Q_)}")
    A(f"v_add_f32 {v(S_)}, {v(S_)}, {v(Q_)}")
    reduce_tail(S_)
    A(f"v_readlane_b32 s{sS}, {v(S_)}, 0")
    A(f"v_readlane_b32 s{sS+1}, {v(S_)}, 32")
    A(f"v_readlane_b32 s{sQ}, {v(S_)}, 16")
    A(f"v_readlane_b32 s{sQ+1}, {v(S_)}, 48")
    A(f"v_pk_mul_f32 {v(MM,2)}, {s(sS,2)}, {v(INV,2)} op_sel_hi:[1,0]")
    A(f"v_pk_mul_f32 {v(RS,2)}, {s(sQ,2)}, {v(INV,2)} op_sel_hi:[1,0]")
    A(f"v_pk_fma_f32 {v(RS,2)}, {v(MM,2)}, {v(MM,2)}, {v(RS,2)} neg_lo:[1,0,0] neg_hi:[1,0,0]")
    A(f"v_pk_add_f32 {v(MM,2)}, {v(MM,2)}, {s(sP,2)}")
    A(f"v_max_f32 {v(RS)}, 0, {v(RS)}")
    A(f"v_max_f32 {v(RS+1)}, 0, {v(RS+1)}")
    rnd_pair(RS, RS + 1, D0)
    A(f"v_add_f32 {v(RS)}, {f32(1e-5)}, {v(RS)}")
    A(f"v_add_f32 {v(RS+1)}, {f32(1e-5)}, {v(RS+1)}")
    rnd_pair(RS, RS + 1, D0)
    A(f"v_sqrt_f32 {v(RS)}, {v(RS)}")
    A(f"v_sqrt_f32 {v(RS+1)}, {v(RS+1)}")
    rnd_pair(MM, MM + 1, D1)
    rnd_pair(RS, RS + 1, D0)
    A(f"v_rcp_f32 {v(RS)}, {v(RS)}")
    A(f"v_rcp_f32 {v(RS+1)}, {v(RS+1)}")

def ln_center_scale(xb, zb, t, exact=True):
    for i in range(10):
        A(f"v_pk_add_f32 {v(zb+2*i,2)}, {v(xb+2*i,2)}, {v(MM,2)} neg_lo:[0,1] neg_hi:[0,1]")
        if exact:
            rnd_pair(zb + 2 * i, zb + 2 * i + 1, t + (i % 4))
    for i in range(10):
        A(f"v_pk_mul_f32 {v(zb+2*i,2)}, {v(zb+2*i,2)}, {v(RS,2)}")

def pack_rows(zb, pa, pb):
    for u in range(5):
        A(f"v_cvt_pk_bf16_f32 {v(pa+u)}, {v(zb+4*u)}, {v(zb+4*u+2)}")
        A(f"v_cvt_pk_bf16_f32 {v(pb+u)}, {v(zb+4*u+1)}, {v(zb+4*u+3)}")

def unpack_rows(zb, pa, pb):
    for u in range(5):
        A(f"v_lshlrev_b32 {v(zb+4*u)}, 16, {v(pa+u)}")
        A(f"v_and_b32 {v(zb+4*u+2)}, 0xffff0000, {v(pa+u)}")
        A(f"v_lshlrev_b32 {v(zb+4*u+1)}, 16, {v(pb+u)}")
        A(f"v_and_b32 {v(zb+4*u+3)}, 0xffff0000, {v(pb+u)}")

def store_rows(pa, pa4, pb, pb4, off, sb=sTB):
    A(f"buffer_store_dwordx4 {v(pa,4)}, {v(vTA)}, {WS}, s{sb} offen offset:{off} sc1")
    A(f"buffer_store_dword {v(pa4)}, {v(vTB)}, {WS}, s{sb} offen offset:{off} sc1")
    A(f"buffer_store_dwordx4 {v(pb,4)}, {v(vTA)}, {WS}, s{sb+1} offen offset:{off} sc1")
    A(f"buffer_store_dword {v(pb4)}, {v(vTB)}, {WS}, s{sb+1} offen offset:{off} sc1")

def to_f16(zb, t, sub=None):
    for i in range(10):
        if EXACT:
            rnd_pair(zb + 2 * i, zb + 2 * i + 1, t + (i % 4))
        if sub is not None:
            A(f"v_fma_mix_f32 {v(zb+2*i)}, {v(sub(i))}, -1.0, {v(zb+2*i)} op_sel:[0,0,0] op_sel_hi:[1,0,0]")
            A(f"v_fma_mix_f32 {v(zb+2*i+1)}, {v(sub(i))}, -1.0, {v(zb+2*i+1)} op_sel:[1,0,0] op_sel_hi:[1,0,0]")
        A(f"v_cvt_pk_f16_f32 {v(AF1+i)}, {v(zb+2*i)}, {v(zb+2*i+1)}")

def row_dft(t, shadow1=None, shadow2=None):
    for kk in range(3):
        c = "0" if kk == 0 else None
        A(f"v_mfma_f32_32x32x16_f16 {v(ACR,16)}, {v(AF1+4*kk,4)}, {v(B1R+4*kk,4)}, {c or v(ACR,16)}")
        A(f"v_mfma_f32_32x32x16_f16 {v(ACI,16)}, {v(AF1+4*kk,4)}, {v(B1I+4*kk,4)}, {c or v(ACI,16)}")
    if shadow1:
        shadow1()
    for kk in range(4):
        for i in (4 * kk, 4 * kk + 2):
            pr, pi = t + (i % 4) * 2, t + (i % 4) * 2 + 2
            A(f"v_pk_mul_f32 {v(pr,2)}, {v(ACR+i,2)}, {v(TWC+i,2)}")
            A(f"v_pk_mul_f32 {v(pi,2)}, {v(ACI+i,2)}, {v(TWC+i,2)}")
            A(f"v_pk_fma_f32 {v(pr,2)}, {v(ACI+i,2)}, {v(TWS+i,2)}, {v(pr,2)}")
            A(f"v_pk_fma_f32 {v(pi,2)}, {v(ACR+i,2)}, {v(TWS+i,2)}, {v(pi,2)} neg_lo:[1,0,0] neg_hi:[1,0,0]")
            A(f"v_cvt_pk_f16_f32 {v(AF2+i)}, {v(pr)}, {v(pi)}")
            A(f"v_cvt_pk_f16_f32 {v(AF2+i+1)}, {v(pr+1)}, {v(pi+1)}")
        c = "0" if kk == 0 else None
        A(f"v_mfma_f32_32x32x16_f16 {v(AC2R,16)}, {v(AF2+4*kk,4)}, {v(B2R+4*kk,4)}, {c or v(AC2R,16)}")
        A(f"v_mfma_f32_32x32x16_f16 {v(AC2I,16)}, {v(AF2+4*kk,4)}, {v(B2I+4*kk,4)}, {c or v(AC2I,16)}")
    if shadow2:
        shadow2()

def W_stores(layer, r0, r1, r2, lds=True):
    L = A.newlabel("Lw2")
    A(f"s_add_u32 s60, s{sWB}, {W_OFF + layer * W_SZ}")
    A(f"s_add_u32 s62, s60, {8192 + 112}")
    if lds:
        A("s_waitcnt lgkmcnt(2)")
    A(f"buffer_store_dwordx4 {v(r0,4)}, {v(vWG)}, {WS}, s60 offen sc1")
    if lds:
        A("s_waitcnt lgkmcnt(0)")
    A(f"buffer_store_dwordx4 {v(r1,4)}, {v(vWG1)}, {WS}, s60 offen sc1")
    A(f"s_cmp_ge_u32 s{WV}, 2")
    A(f"s_cbranch_scc1 {L}")
    if lds:
        A(f"ds_read2st64_b32 {v(r2,2)}, {v(vLWR0+2)} offset0:0 offset1:11")
        A(f"ds_read2st64_b32 {v(r2+2,2)}, {v(vLWR0+2)} offset0:22 offset1:33")
        A("s_waitcnt lgkmcnt(0)")
    A(f"buffer_store_dwordx4 {v(r2,4)}, {v(vWG)}, {WS}, s62 offen sc1")
    A.label(L)

def write_W(layer):
    k = 2 * layer
    for i in range(10):
        A(f"v_cvt_pk_f16_f32 {v(ACR+i)}, {v(AC2R+i)}, {v(AC2I+i)}")
        A(f"ds_write_b32 {v(vLWW)}, {v(ACR+i)} offset:{4*i}")
    A("s_waitcnt lgkmcnt(0)")
    A("s_barrier")
    for j in range(2):
        A(f"ds_read2st64_b32 {v(ACI+4*j,2)}, {v(vLWR0+j)} offset0:0 offset1:11")
        A(f"ds_read2st64_b32 {v(ACI+4*j+2,2)}, {v(vLWR0+j)} offset0:22 offset1:33")
    if EARLY_R == 0:
        arrive_issue(k, sME, AF2)
    W_stores(layer, ACI, ACI + 4, ACI + 8)
    if EARLY_R == 0:
        arrive_finish(k, sME, 15, AF2, 3)

def stage_Y(layer, first=None):
    c0, c1, c2, t = ACR, ACR + 4, ACR + 8, ACR + 16
    loop, L2, L4, L5, done = [A.newlabel("Ly") for _ in range(5)]
    A(f"s_mov_b32 s60, {Y_OFF + layer * Y_SZ}")
    A(f"s_mov_b32 s62, {SPIN}")
    for k in range(4):
        A(f"v_mov_b32 {v(c2+k)}, 0")
    if first:
        first()
    A.label(loop)
    A(f"buffer_load_dwordx4 {v(c0,4)}, {v(vY0)}, {WS}, s60 offen sc1")
    A(f"buffer_load_dwordx4 {v(c1,4)}, {v(vY1)}, {WS}, s60 offen sc1")
    A(f"s_cmp_ge_u32 s{WV}, 2")
    A(f"s_cbranch_scc1 {L2}")
    A(f"buffer_load_dwordx4 {v(c2,4)}, {v(vY2)}, {WS}, s60 offen sc1")
    A.label(L2)
    A("s_waitcnt vmcnt(0)")
    any_sentinel(range(c0, c0 + 12), t, done)
    spin_tail(loop, 62, 2)
    A.label(done)
    A(f"ds_write2st64_b32 {v(vLYW)}, {v(c0)}, {v(c0+1)} offset0:0 offset1:10")
    A(f"ds_write2st64_b32 {v(vLYW)}, {v(c0+2)}, {v(c0+3)} offset0:20 offset1:30")
    A(f"s_cmp_eq_u32 s{WV}, 0")
    A(f"s_cbranch_scc1 {L4}")
    for k in range(4):
        A(f"v_alignbit_b32 {v(t+k)}, {v(c1+3-k)}, {v(c1+3-k)}, 16")
    for k in range(4):
        A(f"v_mov_b32 {v(c1+k)}, {v(t+k)}")
    A.label(L4)
    A(f"ds_write2st64_b32 {v(vLYW)}, {v(c1)}, {v(c1+1)} offset0:4 offset1:14")
    A(f"ds_write2st64_b32 {v(vLYW)}, {v(c1+2)}, {v(c1+3)} offset0:24 offset1:34")
    A(f"s_cmp_ge_u32 s{WV}, 2")
    A(f"s_cbranch_scc1 {L5}")
    for k in range(4):
        A(f"v_alignbit_b32 {v(t+k)}, {v(c2+3-k)}, {v(c2+3-k)}, 16")
    A(f"ds_write2st64_b32 {v(vLYW)}, {v(t)}, {v(t+1)} offset0:8 offset1:18")
    A(f"ds_write2st64_b32 {v(vLYW)}, {v(t+2)}, {v(t+3)} offset0:28 offset1:38")
    A.label(L5)
    A("s_waitcnt lgkmcnt(0)")
    A("s_barrier")

def router_publish(layer, t, pa, pb):
    R_ = t
    for i in range(10):
        os_ = i & 1
        wv = v(WR + (i & ~1), 2)
        if i == 0:
            A(f"v_pk_mul_f32 {v(R_,2)}, {v(XN,2)}, {wv} op_sel:[0,{os_}] op_sel_hi:[1,{os_}]")
        else:
            A(f"v_pk_fma_f32 {v(R_,2)}, {v(XN+2*i,2)}, {wv}, {v(R_,2)} op_sel:[0,{os_},0] op_sel_hi:[1,{os_},1]")
    A(f"v_permlane32_swap_b32 {v(R_)}, {v(R_+1)}")
    A(f"v_add_f32 {v(R_)}, {v(R_)}, {v(R_+1)}")
    A(f"v_mov_b32 {v(R_+1)}, {v(R_)}")
    A(f"v_permlane16_swap_b32 {v(R_)}, {v(R_+1)}")
    A(f"v_add_f32 {v(R_)}, {v(R_)}, {v(R_+1)}")
    reduce_tail(R_)
    A(f"v_cmp_le_f32 vcc, s{sTAU}, {v(R_)}")
    A(f"v_readlane_b32 s71, {v(R_)}, 32")
    A("s_mov_b64 s[56:57], vcc")
    for row, (p_, half) in enumerate(((pa, "vcc_lo"), (pb, "vcc_hi"))):
        Lr = A.newlabel("Lcand")
        A(f"s_cmp_eq_u32 {half}, 0")
        A(f"s_cbranch_scc1 {Lr}")
        A(f"buffer_store_dwordx4 {v(p_,4)}, {v(vTA)}, {WS}, s{sTB+row} offen sc1")
        A(f"buffer_store_dword {v(p_+4)}, {v(vTB)}, {WS}, s{sTB+row} offen sc1")
        A.label(Lr)
    A(f"s_lshl_b32 s70, s{WV}, 2")
    A(f"s_add_u32 s70, s70, {LDS_RG}")
    A(f"v_mov_b32 {v(R_+2)}, s70")
    A(f"v_cvt_pk_bf16_f32 {v(R_)}, {v(R_)}, s71")
    A(f"v_lshrrev_b32 {v(R_+1)}, 15, {v(R_)}")
    A(f"v_and_b32 {v(R_+1)}, 0x10001, {v(R_+1)}")
    A(f"v_mul_u32_u24 {v(R_+1)}, 0x7fff, {v(R_+1)}")
    A(f"v_or_b32 {v(R_+1)}, 0x80008000, {v(R_+1)}")
    A(f"v_xor_b32 {v(R_)}, {v(R_)}, {v(R_+1)}")
    A(f"v_min_u32 {v(R_)}, -2, {v(R_)}")
    A("s_mov_b64 exec, 1")
    A(f"ds_write_b32 {v(R_+2)}, {v(R_)}")
    A("s_mov_b64 exec, -1")
    A("s_waitcnt lgkmcnt(0)")
    A("s_barrier")
    L = A.newlabel("Lrp")
    A(f"s_cmp_lg_u32 s{WV}, 0")
    A(f"s_cbranch_scc1 {L}")
    A(f"ds_read_b128 {v(R_+4,4)}, {v(R_+2)}")
    A(f"v_lshlrev_b32 {v(R_+2)}, {RSH + 8}, v1")
    A(f"s_lshl_b32 s73, s{sRHO}, {RSH}")
    A(f"s_add_u32 s73, s73, {RG_OFF + layer * NRR * RG_REP}")
    set_exec((1 << NRR) - 1)
    A("s_waitcnt lgkmcnt(0)")
    A(f"buffer_store_dwordx4 {v(R_+4,4)}, {v(R_+2)}, {WS}, s73 offen sc1")
    A("s_mov_b64 exec, -1")
    A.label(L)

def roleR():
    A.label("L_roleR")
    prio(2)
    srd(8, 42, 2621440)
    A("s_and_b32 s60, s2, 7")
    A("s_lshr_b32 s61, s2, 3")
    A(f"s_lshr_b32 s{sA}, s61, 3")
    A("s_and_b32 s61, s61, 7")
    A("s_lshl_b32 s60, s60, 3")
    A("s_sub_u32 s62, 56, s60")
    A(f"s_cmp_lt_u32 s{sA}, 2")
    A("s_cselect_b32 s60, s60, s62")
    A(f"s_add_u32 s{sS2}, s60, s61")
    A(f"s_lshl_b32 s60, s{sA}, 9")
    A(f"s_lshl_b32 s61, s{WV}, 7")
    A(f"s_add_u32 s{sRA}, s60, s61")
    A(f"s_add_u32 s{sRA}, s{sRA}, s{sS2}")
    A(f"s_mul_i32 s{sXO}, s{sRA}, 1280")
    A(f"s_add_u32 s63, s{sXO}, {64 * 1280}")
    T = ACR
    n, h = T, T + 1
    A(f"v_and_b32 {v(n)}, 31, v1")
    A(f"v_lshrrev_b32 {v(h)}, 5, v1")
    A(f"v_mul_u32_u24 {v(vX)}, 640, {v(h)}")
    A(f"v_lshl_add_u32 {v(vX)}, {v(n)}, 1, {v(vX)}")
    for i in range(10):
        A(f"v_mov_b32 {v(X+2*i)}, 0")
        A(f"v_mov_b32 {v(X+2*i+1)}, 0")
        A(f"buffer_load_short_d16_hi {v(X+2*i)}, {v(vX)}, {SRD1}, s{sXO} offen offset:{64*i}")
        A(f"buffer_load_short_d16_hi {v(X+2*i+1)}, {v(vX)}, {SRD1}, s63 offen offset:{64*i}")
    NV = XN
    nonce_load(NV)
    ONES = XN + 4
    A(f"s_lshl_b32 s{sRHO}, s{sA}, 6")
    A(f"s_add_u32 s{sRHO}, s{sRHO}, s{sS2}")
    A(f"s_mul_i32 s{sWB}, s{sRHO}, {WROW}")
    for k in range(4):
        A(f"v_mov_b32 {v(ONES+k)}, -1")
    A(f"v_lshlrev_b32 {v(vWG)}, 4, v0")
    A(f"v_add_u32 {v(vWG1)}, {4096 + 112}, {v(vWG)}")
    A(f"v_add_u32 {v(T+2)}, 4096, {v(vWG)}")
    A(f"v_cmp_gt_u32 vcc, 65, v0")
    A(f"v_cndmask_b32 {v(vWG1)}, {v(vWG1)}, {v(T+2)}, vcc")
    A(f"v_lshlrev_b32 {v(T+4)}, 3, v0")
    A(f"s_lshl_b32 s61, s{sRHO}, 11")
    A(f"s_add_u32 s61, s61, {RESET_OFF}")
    A(f"buffer_store_dwordx2 {v(ONES,2)}, {v(T+4)}, {WS}, s61 offen sc1")
    W_stores(0, ONES, ONES, ONES, lds=False)
    PREFR = opt("prefr", 1)
    if PREFR == 1:
        warm_weights(AC2R)
    e1, e1s, base, arg, c_, s_ = T + 6, T + 7, T + 8, T + 9, T + 10, T + 11
    hf_, wf, lc = T + 12, T + 13, T + 14
    G0 = T + 16
    A(f"v_bfe_u32 {v(e1)}, {v(n)}, 2, 1")
    A(f"v_mul_u32_u24 {v(e1)}, 10, {v(e1)}")
    A(f"v_and_b32 {v(arg)}, 3, {v(n)}")
    A(f"v_add_u32 {v(e1)}, {v(e1)}, {v(arg)}")
    A(f"v_lshrrev_b32 {v(arg)}, 3, {v(n)}")
    A(f"v_lshl_add_u32 {v(e1)}, {v(arg)}, 2, {v(e1)}")
    A(f"v_cvt_f32_u32 {v(e1)}, {v(e1)}")
    A(f"v_cvt_f32_u32 {v(hf_)}, {v(h)}")
    A(f"v_cvt_f32_u32 {v(wf)}, s{WV}")
    A(f"s_lshl_b32 s60, s{WV}, 10")
    A(f"s_add_u32 s60, s60, {LDS_CONST}")
    A(f"v_lshl_add_u32 {v(lc)}, v1, 4, s60")
    A(f"v_mul_f32 {v(e1s)}, {f32(1/20)}, {v(e1)}")
    A(f"v_mul_f32 {v(base)}, {f32(10.0)}, {v(hf_)}")
    A(f"v_fma_f32 {v(base)}, 4.0, {v(wf)}, {v(base)}")
    A(f"v_mul_f32 {v(base)}, {v(e1s)}, {v(base)}")
    A(f"s_cmp_lt_u32 s{WV}, 2")
    A(f"s_cselect_b64 s[64:65], -1, 0")
    for r in range(4):
        A(f"v_fmamk_f32 {v(arg)}, {v(e1s)}, {f32(r)}, {v(base)}")
        sincos(arg, c_, s_)
        A(f"v_cvt_pk_f16_f32 {v(G0+r)}, {v(c_)}, {v(s_)}")
        A(f"v_cvt_pk_f16_f32 {v(G0+4+r)}, -{v(s_)}, {v(c_)}")
        if r >= 2:
            A(f"v_cndmask_b32 {v(G0+r)}, 0, {v(G0+r)}, s[64:65]")
            A(f"v_cndmask_b32 {v(G0+4+r)}, 0, {v(G0+4+r)}, s[64:65]")
    A(f"ds_write_b128 {v(lc)}, {v(G0,4)}")
    A(f"ds_write_b128 {v(lc)}, {v(G0+4,4)} offset:4096")
    A(f"v_mul_f32 {v(wf)}, {f32(8.0)}, {v(wf)}")
    A(f"v_fma_f32 {v(wf)}, 4.0, {v(hf_)}, {v(wf)}")
    A(f"v_mul_f32 {v(e1s)}, {f32(1/640)}, {v(e1)}")
    A(f"v_mul_f32 {v(base)}, {v(e1s)}, {v(wf)}")
    for r in range(4):
        A(f"v_fmamk_f32 {v(arg)}, {v(e1s)}, {f32(r)}, {v(base)}")
        sincos(arg, G0 + 8 + r, G0 + 12 + r)
    A(f"ds_write_b128 {v(lc)}, {v(G0+8,4)} offset:8192")
    A(f"ds_write_b128 {v(lc)}, {v(G0+12,4)} offset:12288")
    A(f"v_cvt_f32_u32 {v(e1s)}, {v(n)}")
    A(f"v_mul_f32 {v(e1s)}, {f32(1/32)}, {v(e1s)}")
    A(f"v_mul_f32 {v(base)}, {v(e1s)}, {v(wf)}")
    for r in range(4):
        A(f"v_fmamk_f32 {v(arg)}, {v(e1s)}, {f32(r)}, {v(base)}")
        sincos(arg, c_, s_)
        A(f"v_cvt_pk_f16_f32 {v(G0+16+r)}, {v(c_)}, {v(s_)}")
        A(f"v_cvt_pk_f16_f32 {v(G0+20+r)}, -{v(s_)}, {v(c_)}")
    A(f"ds_write_b128 {v(lc)}, {v(G0+16,4)} offset:16384")
    A(f"ds_write_b128 {v(lc)}, {v(G0+20,4)} offset:20480")
    A(f"v_mov_b32 {v(AF1+10)}, 0")
    A(f"v_mov_b32 {v(AF1+11)}, 0")
    A(f"v_lshlrev_b32 {v(vLC)}, 4, v1")
    A(f"v_add_u32 {v(vLC)}, {LDS_CONST}, {v(vLC)}")
    A(f"v_mov_b32 {v(INV)}, {f32(1/640)}")
    A(f"s_mov_b32 s{s32f}, {f32(32.0)}")
    A(f"s_and_b32 s{sME}, s2, 15")
    A(f"v_mul_u32_u24 {v(vLWW)}, 21, {v(n)}")
    A(f"v_mad_u32_u24 {v(vLWW)}, {v(h)}, 10, {v(vLWW)}")
    A(f"s_mul_i32 s60, s{WV}, 704")
    A(f"s_add_u32 s60, s60, {LDS_W // 4}")
    A(f"v_add_lshl_u32 {v(vLWW)}, {v(vLWW)}, s60, 2")
    A("s_waitcnt lgkmcnt(0)")
    A("s_barrier")
    for (dst, ng, off) in ((B1R, 3, 0), (B1I, 3, 4096), (TWC, 4, 8192), (TWS, 4, 12288)):
        for gq in range(ng):
            A(f"ds_read_b128 {v(dst+4*gq,4)}, {v(vLC)} offset:{off + 1024*gq}")
    for j in range(3):
        A(f"v_add_u32 {v(arg)}, {256*j}, v0")
        A(f"v_mul_u32_u24 {v(c_)}, 3277, {v(arg)}")
        A(f"v_lshrrev_b32 {v(c_)}, 16, {v(c_)}")
        A(f"v_add_u32 {v(arg)}, {v(arg)}, {v(c_)}")
        A(f"v_lshlrev_b32 {v(arg)}, 2, {v(arg)}")
        A(f"v_add_u32 {v(vLWR0+j)}, {LDS_W}, {v(arg)}")
    A(f"v_lshlrev_b32 {v(vTA)}, 4, v1")
    A(f"v_lshlrev_b32 {v(vTB)}, 2, v1")
    A(f"v_add_u32 {v(vTB)}, 1024, {v(vTB)}")
    A(f"s_mul_i32 s{sTB}, s{sRA}, {T_REC}")
    A(f"s_add_u32 s{sTB}, s{sTB}, {T_OFF}")
    A(f"s_add_u32 s{sTB+1}, s{sTB}, {64 * T_REC}")
    stamp(0, dbg=(1, 0))
    ARV = 204
    A(f"s_waitcnt vmcnt({5 if PREFR == 1 else 3})")
    nonce_take(NV)
    stamp(10, dbg=(2, 0))
    if EARLY_R == 2:
        arrive_issue(0, sME, ARV)
    ln_stats(X, ACR)
    for (dst, ng, off) in ((B2R, 4, 16384), (B2I, 4, 20480)):
        for gq in range(ng):
            A(f"ds_read_b128 {v(dst+4*gq,4)}, {v(vLC)} offset:{off + 1024*gq}")
    ln_center_scale(X, XN, ACR, EXACT)
    to_f16(XN, ACR)
    A("s_waitcnt vmcnt(0) lgkmcnt(0)")
    A("s_barrier")
    arrive_issue(0, sME, XN + 8)
    def fill_xn1():
        for k in range(4):
            A(f"v_mov_b32 {v(XN+16+k)}, -1")
        store_rows(XN + 16, XN + 16, XN + 16, XN + 16, 0)
    row_dft(XN, fill_xn1, lambda: arrive_finish(0, sME, 15, XN + 8, 4))
    stamp(11)
    write_W(0)
    stamp(1, dbg=(3, 0))
    if PREFR == 2:
        warm_weights(AC2R)
    srd(12, 52, 2621440)
    srd(16, 44, 1280)
    for i in range(10):
        A(f"v_mov_b32 {v(WR+i)}, 0")
        A(f"buffer_load_short_d16_hi {v(WR+i)}, {v(vX)}, {SRD3}, 0 offen offset:{64*i}")
    A(f"v_and_b32 {v(n)}, 31, v1")
    A(f"v_lshrrev_b32 {v(h)}, 5, v1")
    A(f"v_lshlrev_b32 {v(vLYW)}, 2, v0")
    A(f"v_mul_u32_u24 {v(vLYR)}, 320, {v(h)}")
    A(f"s_mul_i32 s60, s{WV}, 640")
    A(f"v_add3_u32 {v(vLYR)}, {v(vLYR)}, {v(n)}, s60")
    A(f"v_lshlrev_b32 {v(vLYR)}, 2, {v(vLYR)}")
    A(f"s_sub_u32 s60, 3, s{sA}")
    A(f"s_lshl_b32 s60, s60, 6")
    A(f"s_sub_u32 s61, 64, s{sS2}")
    A(f"s_add_u32 s60, s60, s61")
    A(f"s_lshl_b32 s60, s60, 4")
    A(f"s_lshl_b32 s61, s{sA}, 4")
    A(f"s_add_u32 s61, s61, {YM_OFF}")
    A(f"s_cmp_eq_u32 s{sS2}, 0")
    A(f"s_cselect_b32 s60, s61, s60")
    A(f"s_cselect_b32 s61, 6, 12")
    A(f"s_lshl_b32 s62, s{sRHO}, 4")
    A(f"v_lshlrev_b32 {v(vY0)}, 12, v0")
    A(f"v_add_u32 {v(vY0)}, s62, {v(vY0)}")
    A(f"v_sub_u32 {v(arg)}, 384, v0")
    A(f"v_lshlrev_b32 {v(arg)}, s61, {v(arg)}")
    A(f"v_add_u32 {v(vY1)}, s60, {v(arg)}")
    A(f"v_add_u32 {v(c_)}, {256 << 12}, {v(vY0)}")
    A(f"v_cmp_gt_u32 vcc, 64, v0")
    A(f"v_cndmask_b32 {v(vY1)}, {v(vY1)}, {v(c_)}, vcc")
    A(f"v_sub_u32 {v(arg)}, 128, v0")
    A(f"v_and_b32 {v(arg)}, 0xff, {v(arg)}")
    A(f"v_lshlrev_b32 {v(arg)}, s61, {v(arg)}")
    A(f"v_add_u32 {v(vY2)}, s60, {v(arg)}")
    A(f"s_mul_i32 s60, s{WV}, 5120")
    A(f"s_add_u32 s60, s60, {LDS_KX}")
    A(f"v_lshl_add_u32 {v(vKX)}, v1, 4, s60")
    A(f"s_and_b32 s{sREP}, s2, {NREP - 1}")
    A(f"s_lshl_b32 s{sREP}, s{sREP}, {FSH + 4}")
    A("s_waitcnt vmcnt(0)")
    A(f"v_pk_mul_f32 {v(ACR,2)}, {v(WR,2)}, {v(WR,2)}")
    for i in range(2, 10, 2):
        A(f"v_pk_fma_f32 {v(ACR,2)}, {v(WR+i,2)}, {v(WR+i,2)}, {v(ACR,2)}")
    A(f"v_add_f32 {v(ACR)}, {v(ACR)}, {v(ACR+1)}")
    for sw in ("32", "16"):
        A(f"v_mov_b32 {v(ACR+1)}, {v(ACR)}")
        A(f"v_permlane{sw}_swap_b32 {v(ACR)}, {v(ACR+1)}")
        A(f"v_add_f32 {v(ACR)}, {v(ACR)}, {v(ACR+1)}")
    reduce_tail(ACR)
    A(f"v_sqrt_f32 {v(ACR)}, {v(ACR)}")
    A(f"v_mul_f32 {v(ACR)}, {f32(opt('tau', 150) / 100)}, {v(ACR)}")
    A(f"v_readfirstlane_b32 s{sTAU}, {v(ACR)}")
    poll_flags(1, sREP, ACR)
    stamp(2, dbg=(7, 0))
    stage_Y(0)
    stamp(13)
    for k in range(4):
        A(f"v_mov_b32 {v(AF2+k)}, -1")
    W_stores(1, AF2, AF2, AF2, lds=False)
    for i in range(10):
        A(f"ds_read_b32 {v(ACI+i)}, {v(vLYR)} offset:{128*i}")
    for i in range(10):
        A(f"s_waitcnt lgkmcnt({9-i})")
        A(f"v_fma_mix_f32 {v(X+2*i)}, {v(ACI+i)}, s{s32f}, {v(X+2*i)} op_sel:[0,0,0] op_sel_hi:[1,0,0]")
        A(f"v_fma_mix_f32 {v(X+2*i+1)}, {v(ACI+i)}, s{s32f}, {v(X+2*i+1)} op_sel:[1,0,0] op_sel_hi:[1,0,0]")
    PA, PB = AC2R, AC2R + 8
    pack_rows(X, PA, PB)
    unpack_rows(X, PA, PB)
    A(f"ds_write_b128 {v(vKX)}, {v(PA,4)} offset:2048")
    A(f"ds_write_b128 {v(vKX)}, {v(PB,4)} offset:3072")
    A(f"v_mov_b32 {v(PA+6)}, {v(PA+4)}")
    A(f"v_mov_b32 {v(PA+7)}, {v(PB+4)}")
    ln_stats(X, ACR)
    ln_center_scale(X, XN, ACR)
    pack_rows(XN, PA + 16, PB + 16)
    A("s_waitcnt vmcnt(0)")
    unpack_rows(XN, PA + 16, PB + 16)
    stamp(14)
    router_publish(0, ACI, PA + 16, PB + 16)
    stamp(3, dbg=(8, 0))
    A(f"v_mov_b32 {v(PA+4)}, {v(PA+20)}")
    A(f"v_mov_b32 {v(PA+5)}, {v(PB+20)}")
    A(f"ds_write_b128 {v(vKX)}, {v(PA+16,4)}")
    A(f"ds_write_b128 {v(vKX)}, {v(PB+16,4)} offset:1024")
    A(f"ds_write_b128 {v(vKX)}, {v(PA+4,4)} offset:4096")
    if EARLY_R == 2:
        arrive_issue(2, sME, ARV)
    for i in range(10):
        A(f"v_pk_add_f32 {v(X+2*i,2)}, {v(X+2*i,2)}, {v(XN+2*i,2)}")
        rnd_pair(X + 2 * i, X + 2 * i + 1, ACR + (i % 4))
    ln_stats(X, ACR)
    ln_center_scale(X, XN, ACR + 8, EXACT)
    to_f16(XN, ACR + 8)
    if EARLY_R == 2:
        arrive_finish(2, sME, 15, ARV, 0)
    if EARLY_R == 1:
        arrive_issue(2, sME, XN + 14)
    row_dft(XN, None, (lambda: arrive_finish(2, sME, 15, XN + 14, 0)) if EARLY_R == 1 else None)
    stamp(16)
    if not opt("wlate", 0):
        write_W(1)
    stamp(4)
    A(f"s_mov_b32 s74, {X2_OFF}")
    def release(layer, row, stash, with_xn):
        R0 = ACR
        if stash:
            A(f"ds_read_b128 {v(R0,4)}, {v(vKX)} offset:{2048+1024*row}")
            A(f"ds_read_b128 {v(R0+8,4)}, {v(vKX)} offset:4096")
            if with_xn:
                A(f"ds_read_b128 {v(R0+12,4)}, {v(vKX)} offset:{1024*row}")
            x4, x1, n4, n1 = R0, R0 + 10 + row, R0 + 12, R0 + 8 + row
        else:
            P_ = PA if row == 0 else PB
            x4, x1, n4, n1 = P_, P_ + 4, P_ + 16, P_ + 20
        A(f"s_add_u32 s61, s{NONCE}, {6 + layer}")
        A(f"v_mov_b32 {v(R0+4)}, {v(MM+row)}")
        A(f"v_mov_b32 {v(R0+5)}, {v(RS+row)}")
        A(f"v_mov_b32 {v(R0+6)}, s61")
        A(f"v_mov_b32 {v(R0+7)}, s61")
        A("s_waitcnt lgkmcnt(0)")
        if with_xn:
            A(f"buffer_store_dwordx4 {v(n4,4)}, {v(vTA)}, {WS}, s{sTB+row} offen sc1")
            A(f"buffer_store_dword {v(n1)}, {v(vTB)}, {WS}, s{sTB+row} offen sc1")
        A(f"buffer_store_dwordx4 {v(x4,4)}, {v(vTA)}, {WS}, s{sTB+row} offen offset:1280 sc1")
        A(f"buffer_store_dword {v(x1)}, {v(vTB)}, {WS}, s{sTB+row} offen offset:1280 sc1")
        A("s_waitcnt vmcnt(0)")
        A("s_mov_b64 exec, 1")
        A(f"buffer_store_dwordx4 {v(R0+4,4)}, {v(vTA)}, {WS}, s{sTB+row} offen offset:2560 sc1")
        A("s_mov_b64 exec, -1")
    def release_candidates(layer, stash):
        for row in range(2):
            Ln = A.newlabel("Lrel")
            A(f"s_cmp_eq_u32 s{56+row}, 0")
            A(f"s_cbranch_scc1 {Ln}")
            release(layer, row, stash, False)
            A.label(Ln)
    def wait_sel(layer, stash):
        loop, done = A.newlabel("Lsel"), A.newlabel("Lseld")
        T2 = ACR + 16
        A(f"s_mov_b32 s60, {X2_OFF + SEL_OFF + 256 * layer}")
        A(f"v_and_b32 {v(T2)}, 7, v1")
        A(f"v_lshlrev_b32 {v(T2)}, 2, {v(T2)}")
        A(f"s_mov_b32 s62, {SPIN}")
        A.label(loop)
        A(f"buffer_load_dword {v(T2+1)}, {v(T2)}, {WS}, s60 offen sc1")
        A("s_waitcnt vmcnt(0)")
        A(f"v_cmp_eq_u32 vcc, -1, {v(T2+1)}")
        A(f"s_cbranch_vccz {done}")
        spin_tail(loop, 62, 4)
        A.label(done)
        for j in range(8):
            A(f"v_readlane_b32 s{sSEL+j}, {v(T2+1)}, {j}")
        for row in range(2):
            A(f"s_add_u32 s60, s{sRA}, {64 * row}")
            A(f"s_mov_b32 s{76+row}, -1")
            for j in range(8):
                A(f"s_cmp_eq_u32 s60, s{sSEL+j}")
                A(f"s_cselect_b32 s{76+row}, {j}, s{76+row}")
            Ln = A.newlabel("Lpush")
            A(f"s_cmp_lt_i32 s{76+row}, 0")
            A(f"s_cbranch_scc1 {Ln}")
            A(f"s_cmp_lg_u32 s{56+row}, 0")
            A(f"s_cbranch_scc1 {Ln}")
            release(layer, row, stash, True)
            A.label(Ln)
    release_candidates(0, True)
    wait_sel(0, True)
    if opt("wlate", 0):
        write_W(1)
    A(f"s_add_u32 s{sTB}, s{sTB}, {T_SZ}")
    A(f"s_add_u32 s{sTB+1}, s{sTB+1}, {T_SZ}")
    stamp(5)
    CU, CV = XN + 12, XN + 16
    tr, ca, sa, cb, sb, ar, t0, t1_ = ACR, ACR + 1, ACR + 2, ACR + 3, ACR + 4, ACR + 5, ACR + 6, ACR + 7
    A(f"v_and_b32 {v(tr)}, 1, v1")
    A(f"v_lshlrev_b32 {v(tr)}, 6, {v(tr)}")
    A(f"v_add_u32 {v(tr)}, s{sRA}, {v(tr)}")
    A(f"s_mov_b32 s64, 0x00300003")
    A(f"s_mov_b32 s65, 0x30000300")
    for p in range(4):
        for (j, cc, ss) in ((2 * p, ca, sa), (2 * p + 1, cb, sb)):
            A(f"v_mul_u32_u24 {v(ar)}, s{sSEL+j}, {v(tr)}")
            A(f"v_and_b32 {v(ar)}, 0x7ff, {v(ar)}")
            A(f"v_cvt_f32_u32 {v(ar)}, {v(ar)}")
            A(f"v_mul_f32 {v(ar)}, {f32(1/2048)}, {v(ar)}")
            sincos(ar, cc, ss)
        A(f"v_sub_f32 {v(t0)}, {v(ca)}, {v(sb)}")
        A(f"v_add_f32 {v(t1_)}, {v(sa)}, {v(cb)}")
        A(f"v_mul_f32 {v(t0)}, 0.5, {v(t0)}")
        A(f"v_mul_f32 {v(t1_)}, 0.5, {v(t1_)}")
        A(f"v_cvt_pk_f16_f32 {v(CU+p)}, {v(t0)}, {v(t1_)}")
        A(f"v_add_f32 {v(t0)}, {v(ca)}, {v(sb)}")
        A(f"v_sub_f32 {v(t1_)}, {v(cb)}, {v(sa)}")
        A(f"v_mul_f32 {v(t0)}, 0.5, {v(t0)}")
        A(f"v_mul_f32 {v(t1_)}, 0.5, {v(t1_)}")
        A(f"v_cvt_pk_f16_f32 {v(CV+p)}, {v(t0)}, {v(t1_)}")
        A(f"v_cndmask_b32 {v(CU+p)}, 0, {v(CU+p)}, s[64:65]")
        A(f"v_cndmask_b32 {v(CV+p)}, 0, {v(CV+p)}, s[64:65]")
    vE0, vDF, vDM, vP2, vNW = vLWW, vLWR0, vLWR0 + 1, vLWR0 + 2, vWG
    n, h = ACR + 8, ACR + 9
    A(f"v_and_b32 {v(n)}, 31, v1")
    A(f"v_lshrrev_b32 {v(h)}, 5, v1")
    A(f"v_mul_u32_u24 {v(vE0)}, 20, {v(n)}")
    A(f"v_mad_u32_u24 {v(vE0)}, {v(h)}, 10, {v(vE0)}")
    vER = vKX
    A(f"v_and_b32 {v(vER)}, 31, {v(vE0)}")
    A(f"v_lshrrev_b32 {v(vDF)}, 5, {v(vE0)}")
    A(f"s_lshl_b32 s60, s{WV}, 2")
    A(f"s_add_u32 s60, s60, {LDS_W}")
    A(f"v_add_u32 {v(vE0)}, {v(vE0)}, {v(vDF)}")
    A(f"v_lshl_add_u32 {v(vE0)}, {v(vE0)}, 4, s60")
    A(f"v_mul_u32_u24 {v(vDF)}, 330, {v(h)}")
    A(f"v_add_u32 {v(vDF)}, {v(vDF)}, {v(n)}")
    A(f"v_sub_u32 {v(vDM)}, 362, {v(vDF)}")
    A(f"v_lshlrev_b32 {v(vDF)}, 4, {v(vDF)}")
    A(f"v_add_u32 {v(vDF)}, {LDS_W}, {v(vDF)}")
    A(f"v_cmp_eq_u32 vcc, 0, {v(n)}")
    A(f"v_addc_co_u32 {v(vDM)}, vcc, 0, {v(vDM)}, vcc")
    A(f"v_lshlrev_b32 {v(vDM)}, 4, {v(vDM)}")
    A(f"v_add_u32 {v(vDM)}, {LDS_W}, {v(vDM)}")
    A(f"s_lshl_b32 s60, s{WV}, 8")
    A(f"v_mul_u32_u24 {v(vP2)}, 10240, {v(h)}")
    A(f"v_lshl_add_u32 {v(vP2)}, {v(n)}, 3, {v(vP2)}")
    A(f"v_add_u32 {v(vP2)}, s60, {v(vP2)}")
    A(f"s_mul_i32 s60, s{WV}, 2560")
    A(f"s_add_u32 s60, s60, {LDS_NEW}")
    A(f"v_lshl_add_u32 {v(vNW)}, v1, 2, s60")
    A(f"s_add_u32 s75, s74, 4096")
    A(f"s_add_u32 s78, s74, 8192")
    poll_flags(3, sREP, ACR)
    stamp(6, dbg=(13, 0))
    RAW = AC2R
    def x2loads():
        for i in range(10):
            so = ("s74", "s75", "s78")[i // 4]
            A(f"buffer_load_dwordx2 {v(RAW+2*i,2)}, {v(vP2)}, {WS}, {so} offen offset:{1024*(i%4)} sc1")
    stage_Y(1, x2loads)
    alldone = A.newlabel("Lx2a")
    any_sentinel(range(RAW, RAW + 20), ACR, alldone)
    loop, done = A.newlabel("Lx2"), A.newlabel("Lx2d")
    A(f"s_mov_b32 s62, {SPIN}")
    A(f"s_add_u32 s60, s74, {SEL_OFF + 128}")
    A(f"v_mov_b32 {v(ACR)}, 0")
    A.label(loop)
    A(f"buffer_load_dword {v(ACR+1)}, {v(ACR)}, {WS}, s60 offen sc1")
    A("s_waitcnt vmcnt(0)")
    A(f"v_cmp_eq_u32 vcc, -1, {v(ACR+1)}")
    A(f"s_cbranch_vccz {done}")
    spin_tail(loop, 62, 2)
    A.label(done)
    loop, done = A.newlabel("Lx2"), A.newlabel("Lx2d")
    A(f"s_mov_b32 s62, {SPIN}")
    A.label(loop)
    x2loads()
    A("s_waitcnt vmcnt(0)")
    any_sentinel(range(RAW, RAW + 20), ACR, done)
    spin_tail(loop, 62, 1)
    A.label(done)
    A.label(alldone)
    stamp(7)
    for k in range(4):
        A(f"v_mov_b32 {v(AF2+k)}, -1")
    store_rows(AF2, AF2, AF2, AF2, 0)
    Z = ACR + 12
    for i in range(10):
        A(f"v_lshlrev_b32 {v(Z+2*i)}, 16, {v(RAW+2*i)}")
        A(f"v_and_b32 {v(Z+2*i+1)}, 0xffff0000, {v(RAW+2*i)}")
    for i in range(10):
        A(f"ds_write_b32 {v(vNW)}, {v(RAW+2*i)} offset:{256*i}")
    ln_stats(Z, ACR + 2)
    ln_center_scale(Z, Z, ACR + 2, EXACT)
    to_f16(Z, ACR + 2, sub=lambda i: RAW + 2 * i + 1)
    CBL = [16 + 4 * i for i in range(6)] + [AF1, AF1 + 4, AF1 + 8, XN + 8]
    WA = TWC
    def shadow1():
        for i in range(10):
            A(f"ds_read_b32 {v(CBL[i]+2)}, {v(vLYR)} offset:{128*i}")
        for i in range(10):
            A(f"s_waitcnt lgkmcnt({9-i})")
            A(f"v_fma_mix_f32 {v(CBL[i])}, {v(CBL[i]+2)}, s{s32f}, {v(X+2*i)} op_sel:[0,0,0] op_sel_hi:[1,0,0]")
            A(f"v_fma_mix_f32 {v(CBL[i]+1)}, {v(CBL[i]+2)}, s{s32f}, {v(X+2*i+1)} op_sel:[1,0,0] op_sel_hi:[1,0,0]")
    def shadow2():
        for i in range(10):
            A(f"v_add_u32 {v(WA+i)}, {i}, {v(vER)}")
            A(f"v_bfe_u32 {v(WA+i)}, {v(WA+i)}, 5, 1")
            A(f"v_lshl_add_u32 {v(WA+i)}, {v(WA+i)}, 4, {v(vE0)}")
    A("s_waitcnt lgkmcnt(0)")
    row_dft(XN, shadow1, shadow2)
    stamp(18)
    for i in range(10):
        A(f"v_cvt_pk_f16_f32 {v(ACR+i)}, {v(AC2R+i)}, {v(AC2I+i)}")
        A(f"ds_write_b32 {v(WA+i)}, {v(ACR+i)} offset:{16*i}")
    A("s_mov_b64 exec, 1")
    A(f"ds_write_b32 {v(vE0)}, {v(ACR)} offset:{660*16}")
    A("s_mov_b64 exec, -1")
    A("s_waitcnt lgkmcnt(0)")
    A("s_barrier")
    FRL = [40 + 4 * q for q in range(16)] + [160 + 4 * q for q in range(4)]
    def corr(k):
        A(f"v_mfma_f32_16x16x32_f16 {v(CBL[k],4)}, {v(CU,4)}, {v(FRL[2*k],4)}, {v(CBL[k],4)}")
        A(f"v_mfma_f32_16x16x32_f16 {v(CBL[k],4)}, {v(CV,4)}, {v(FRL[2*k+1],4)}, {v(CBL[k],4)}")
    for i in range(10):
        A(f"ds_read_b128 {v(FRL[2*i],4)}, {v(vDF)} offset:{528*i}")
        A(f"ds_read_b128 {v(FRL[2*i+1],4)}, {v(vDM)} offset:{528*(9-i)}")
        if i >= 6:
            A(f"s_waitcnt lgkmcnt(12)")
            corr(i - 6)
    for k in range(4, 10):
        A(f"s_waitcnt lgkmcnt({2*(9-k)})")
        corr(k)
    stamp(19)
    for row in range(2):
        Lnext = A.newlabel("Lown")
        A(f"s_cmp_lt_i32 s{76+row}, 0")
        A(f"s_cbranch_scc1 {Lnext}")
        A(f"s_lshr_b32 s62, s{76+row}, 1")
        A("s_mul_i32 s62, s62, 2560")
        A(f"s_add_u32 s62, s62, {LDS_NEW}")
        A(f"s_and_b32 s61, s{76+row}, 1")
        A("s_lshl_b32 s61, s61, 4")
        A("s_sub_u32 s61, 16, s61")
        A(f"v_lshl_add_u32 {v(240)}, v1, 2, s62")
        for i in range(10):
            A(f"ds_read_b32 {v(241+i)}, {v(240)} offset:{256*i}")
        A("s_waitcnt lgkmcnt(0)")
        for i in range(10):
            A(f"v_lshlrev_b32 {v(241+i)}, s61, {v(241+i)}")
            A(f"v_and_b32 {v(241+i)}, 0xffff0000, {v(241+i)}")
            A(f"v_sub_f32 {v(241+i)}, {v(241+i)}, {v(X+2*i+row)}")
            A(f"v_add_f32 {v(CBL[i]+row)}, {v(CBL[i]+row)}, {v(241+i)}")
        A.label(Lnext)
    for u in range(5):
        A(f"v_cvt_pk_bf16_f32 {v(PA+u)}, {v(CBL[2*u])}, {v(CBL[2*u+1])}")
        A(f"v_cvt_pk_bf16_f32 {v(PB+u)}, {v(CBL[2*u]+1)}, {v(CBL[2*u+1]+1)}")
    unpack_rows(X, PA, PB)
    ln_stats(X, ACR)
    ln_center_scale(X, XN, ACR)
    pack_rows(XN, PA + 16, PB + 16)
    A("s_waitcnt vmcnt(0)")
    unpack_rows(XN, PA + 16, PB + 16)
    stamp(20)
    router_publish(1, ACI + 8, PA + 16, PB + 16)
    stamp(8, dbg=(14, 0))
    OB = 16
    A(f"s_mul_i32 s60, s{WV}, 2560")
    A(f"v_add_u32 {v(OB)}, s60, {v(vX)}")
    for i in range(10):
        A(f"v_pk_add_f32 {v(X+2*i,2)}, {v(X+2*i,2)}, {v(XN+2*i,2)}")
        A(f"v_cvt_pk_bf16_f32 {v(OB+2+i)}, {v(X+2*i)}, {v(X+2*i+1)}")
        A(f"ds_write_b16 {v(OB)}, {v(OB+2+i)} offset:{64*i}")
        A(f"ds_write_b16_d16_hi {v(OB)}, {v(OB+2+i)} offset:{1280+64*i}")
    A(f"v_lshlrev_b32 {v(OB+1)}, 4, v1")
    A(f"v_add_u32 {v(OB)}, s60, {v(OB+1)}")
    A("s_waitcnt lgkmcnt(0)")
    for k in range(3):
        A(f"ds_read_b128 {v(OB+12+4*k,4)}, {v(OB)} offset:{1024*k}")
    A(f"v_add_u32 {v(OB+2)}, {1024 + 63 * 1280}, {v(OB+1)}")
    A(f"v_add_u32 {v(OB+3)}, 1024, {v(OB+1)}")
    A(f"v_cmp_gt_u32 vcc, 16, v1")
    A(f"v_cndmask_b32 {v(OB+3)}, {v(OB+2)}, {v(OB+3)}, vcc")
    def out_stores():
        A("s_waitcnt lgkmcnt(0)")
        A(f"buffer_store_dwordx4 {v(OB+12,4)}, {v(OB+1)}, {SRD2}, s{sXO} offen sc1")
        A(f"buffer_store_dwordx4 {v(OB+16,4)}, {v(OB+3)}, {SRD2}, s{sXO} offen sc1")
        set_exec(0xffffffff)
        A(f"buffer_store_dwordx4 {v(OB+20,4)}, {v(OB+2)}, {SRD2}, s{sXO} offen offset:1024 sc1")
        A("s_mov_b64 exec, -1")
    OD = opt("outdelay", 0)
    if OD:
        A(f"s_lshl_b32 s73, s{sRHO}, 4")
        A(f"s_add_u32 s73, s73, {RG_OFF + NRR * RG_REP}")
        A(f"v_mov_b32 {v(ACR)}, 0")
        for _ in range(OD):
            A(f"buffer_load_dword {v(ACR+1)}, {v(ACR)}, {WS}, s73 offen sc1")
            A("s_waitcnt vmcnt(0)")
    out_stores()
    release_candidates(1, False)
    wait_sel(1, False)
    stamp(22)
    stamp(9)
    A("s_endpgm")

def roleC():
    A.label("L_roleC")
    B1, TC, TS, A2, DT, RAW, AR, AI, P, AC, O, T = 16, 32, 48, 64, 128, 160, 176, 192, 208, 224, 240, 248
    sC, sCME, sCREP, sK, sW0, sW1, sY, sLAST = 22, 23, 24, 25, 26, 27, 28, 29
    nonce_load(T + 4)
    A(f"s_sub_u32 s60, s2, {C0}")
    A("s_and_b32 s61, s60, 7")
    A("s_lshr_b32 s62, s60, 3")
    A("s_lshr_b32 s63, s62, 2")
    A("s_lshl_b32 s63, s63, 5")
    A("s_lshl_b32 s61, s61, 2")
    A("s_and_b32 s62, s62, 3")
    A(f"s_add_u32 s{sC}, s63, s61")
    A(f"s_add_u32 s{sC}, s{sC}, s62")
    A(f"s_and_b32 s{sCME}, s2, 15")
    A(f"s_cmp_eq_u32 s{sCME}, 0")
    A(f"s_cselect_b32 s{sLAST}, 10, 9")
    A(f"s_and_b32 s{sCREP}, s2, {NREP - 1}")
    A(f"s_lshl_b32 s{sCREP}, s{sCREP}, {FSH + 4}")
    n, g, t1, gs, arg, base, st = RAW, RAW + 1, RAW + 2, RAW + 3, RAW + 4, RAW + 5, RAW + 6
    ca, sa, cb, sb, x0, x1 = RAW + 7, RAW + 8, RAW + 9, RAW + 10, RAW + 11, RAW + 12
    A(f"v_and_b32 {v(n)}, 15, v1")
    A(f"v_lshrrev_b32 {v(g)}, 4, v1")
    A(f"s_and_b32 s70, s{WV}, 1")
    A(f"s_lshl_b32 s70, s70, 4")
    A(f"s_lshr_b32 s61, s{WV}, 1")
    A(f"v_lshrrev_b32 v2, 1, v0")
    A(f"v_and_b32 v6, 1, v0")
    A(f"s_lshl_b32 s62, s{sC}, 1")
    A(f"v_add_u32 v3, s62, v6")
    A(f"v_min_u32 v3, 320, v3")
    A(f"v_sub_u32 v4, 640, v3")
    A(f"v_cmp_ne_u32 vcc, 0, v3")
    A(f"v_cndmask_b32 v4, 0, v4, vcc")
    A(f"v_add_u32 v5, 7, v4")
    A(f"v_cmp_lt_u32 vcc, 320, v4")
    A(f"v_cndmask_b32 v4, v4, v5, vcc")
    A(f"v_mul_u32_u24 v5, {WROW}, v2")
    A(f"v_mul_u32_u24 v6, 8256, v6")
    A(f"v_lshl_add_u32 v6, v2, 4, v6")
    A(f"v_lshl_add_u32 v2, v3, 4, v5")
    A(f"v_lshl_add_u32 v3, v4, 4, v5")
    A(f"s_mul_i32 s63, s61, 8256")
    A(f"v_lshlrev_b32 v7, 10, {v(g)}")
    A(f"v_lshl_add_u32 v7, {v(n)}, 4, v7")
    A(f"v_add_u32 v7, s63, v7")
    A(f"s_add_u32 s62, s62, s61")
    A(f"s_lshl_b32 s62, s62, 12")
    A(f"v_lshl_add_u32 v8, {v(g)}, 6, {v(n)}")
    A(f"v_add_u32 v8, s70, v8")
    A(f"v_lshl_add_u32 v8, v8, 4, s62")
    A(f"s_lshr_b32 s62, s62, 6")
    A(f"s_add_u32 s62, s62, {YM_OFF + 48}")
    A(f"v_lshlrev_b32 v9, 4, {v(g)}")
    A(f"v_sub_u32 v9, s62, v9")
    def Y_stores(r0, r1, rm, sy, prep=None):
        A(f"buffer_store_dwordx4 {v(r0,4)}, v8, {WS}, {sy} offen sc1")
        A(f"buffer_store_dwordx4 {v(r1,4)}, v8, {WS}, {sy} offen offset:512 sc1")
        Lm = A.newlabel("Lym")
        A(f"s_bitcmp1_b32 s{WV}, 0")
        A(f"s_cbranch_scc1 {Lm}")
        if prep:
            prep()
        set_exec(0x0001000100010001)
        A(f"buffer_store_dwordx4 {v(rm,4)}, v9, {WS}, {sy} offen sc1")
        A("s_mov_b64 exec, -1")
        A.label(Lm)
    A("s_waitcnt vmcnt(0)")
    nonce_take(T + 4)
    Li = A.newlabel("Lci")
    A(f"s_sub_u32 s60, s2, {C0}")
    A(f"s_lshl_b32 s61, s{WV}, 4")
    A(f"s_or_b32 s60, s60, s61")
    A(f"s_cmp_ge_u32 s60, 16")
    A(f"s_cbranch_scc1 {Li}")
    cnt_init(sCME, range(4), T)
    A.label(Li)
    for k in range(4):
        A(f"v_mov_b32 {v(O+k)}, -1")
    A(f"s_mov_b32 s63, {Y_OFF}")
    Y_stores(O, O, O, "s63")
    prefetch_weights(AC)
    A(f"v_add_u32 {v(t1)}, s70, {v(n)}")
    A(f"v_cvt_f32_u32 {v(t1)}, {v(t1)}")
    A(f"v_cvt_f32_u32 {v(gs)}, {v(g)}")
    A(f"v_mul_f32 {v(st)}, {f32(1/32)}, {v(t1)}")
    A(f"v_mul_f32 {v(base)}, {v(st)}, {v(gs)}")
    A(f"v_mul_f32 {v(base)}, {f32(8.0)}, {v(base)}")
    for w in range(4):
        A(f"v_fmamk_f32 {v(arg)}, {v(st)}, {f32(2*w)}, {v(base)}")
        sincos(arg, ca, sa)
        A(f"v_add_f32 {v(arg)}, {v(arg)}, {v(st)}")
        sincos(arg, cb, sb)
        A(f"v_sub_f32 {v(x0)}, {v(ca)}, {v(sb)}")
        A(f"v_add_f32 {v(x1)}, {v(sa)}, {v(cb)}")
        A(f"v_cvt_pk_f16_f32 {v(B1+w)}, {v(x0)}, {v(x1)}")
        A(f"v_cvt_pk_f16_f32 {v(B1+4+w)}, -{v(x1)}, {v(x0)}")
        A(f"v_add_f32 {v(x0)}, {v(ca)}, {v(sb)}")
        A(f"v_sub_f32 {v(x1)}, {v(cb)}, {v(sa)}")
        A(f"v_cvt_pk_f16_f32 {v(B1+8+w)}, {v(x0)}, {v(x1)}")
        A(f"v_cvt_pk_f16_f32 {v(B1+12+w)}, {v(x1)}, -{v(x0)}")
    A(f"v_mul_f32 {v(st)}, {f32(1/2048)}, {v(t1)}")
    A(f"v_mul_f32 {v(base)}, {v(st)}, {v(gs)}")
    A(f"v_mul_f32 {v(base)}, 4.0, {v(base)}")
    for j in range(4):
        for i in range(4):
            A(f"v_fmamk_f32 {v(arg)}, {v(st)}, {f32(16*j+i)}, {v(base)}")
            sincos(arg, ca, sa)
            A(f"v_mul_f32 {v(TC+4*j+i)}, {f32(1/64)}, {v(ca)}")
            A(f"v_mul_f32 {v(TS+4*j+i)}, {f32(1/64)}, {v(sa)}")
    A(f"v_lshrrev_b32 {v(x0)}, 2, {v(n)}")
    A(f"v_lshlrev_b32 {v(x0)}, 4, {v(x0)}")
    A(f"v_and_b32 {v(x1)}, 3, {v(n)}")
    A(f"v_lshl_add_u32 {v(x0)}, {v(x1)}, 1, {v(x0)}")
    A(f"s_lshr_b32 s60, s70, 1")
    A(f"s_lshr_b32 s61, s{WV}, 1")
    A(f"s_add_u32 s60, s60, s61")
    A(f"v_add_u32 {v(x0)}, s60, {v(x0)}")
    A(f"v_cvt_f32_u32 {v(x0)}, {v(x0)}")
    A(f"v_mul_f32 {v(st)}, {f32(1/64)}, {v(x0)}")
    A(f"v_mul_f32 {v(base)}, {v(st)}, {v(gs)}")
    A(f"v_mul_f32 {v(base)}, 4.0, {v(base)}")
    A(f"s_lshl_b32 s60, s{WV}, 12")
    A(f"s_add_u32 s60, s60, 24576")
    A(f"v_lshl_add_u32 {v(x1)}, v1, 4, s60")
    for j in range(4):
        for i in range(4):
            A(f"v_fmamk_f32 {v(arg)}, {v(st)}, {f32(16*j+i)}, {v(base)}")
            sincos(arg, ca, sa)
            A(f"v_cvt_pk_f16_f32 {v(DT+4*j+i)}, {v(ca)}, {v(sa)}")
        A(f"ds_write_b128 {v(x1)}, {v(DT+4*j,4)} offset:{1024*j}")
    A(f"v_lshlrev_b32 {v(x1)}, 4, v1")
    A("s_waitcnt lgkmcnt(0)")
    A("s_barrier")
    for q in range(16):
        A(f"ds_read_b128 {v(A2+4*q,4)}, {v(x1)} offset:{24576 + 1024*q}")
        if q == 7:
            A("s_waitcnt lgkmcnt(0)")
    A("s_waitcnt vmcnt(0)")
    prio(3)
    A(f"s_mov_b32 s{sK}, 0")
    A(f"s_mov_b32 s{sW0}, {W_OFF}")
    A(f"s_mov_b32 s{sY}, {Y_OFF}")
    stamp(4, dbg=(4, C0))
    A.label("L_Cloop")
    A(f"s_add_u32 s{sW1}, s{sW0}, {128 * WROW}")
    poll_flags(f"s{sK}", sCREP, T)
    stamp(0, f"s{sK}", dbg=(5, C0, 0))
    loop, done = A.newlabel("Lcw"), A.newlabel("Lcwd")
    A(f"s_add_u32 s30, s{sK}, 1")
    if EARLY_C == 2:
        arrive_issue("s30", sCME, O)
    A(f"s_mov_b32 s62, {SPIN}")
    A.label(loop)
    A(f"buffer_load_dwordx4 {v(RAW,4)}, v2, {WS}, s{sW0} offen sc1")
    A(f"buffer_load_dwordx4 {v(RAW+4,4)}, v2, {WS}, s{sW1} offen sc1")
    A(f"buffer_load_dwordx4 {v(RAW+8,4)}, v3, {WS}, s{sW0} offen sc1")
    A(f"buffer_load_dwordx4 {v(RAW+12,4)}, v3, {WS}, s{sW1} offen sc1")
    for j in range(4):
        A(f"s_waitcnt vmcnt({3-j})")
        A(f"ds_write_b128 v6, {v(RAW+4*j,4)} offset:{(j>>1)*4096 + (j&1)*2048}")
    any_sentinel(range(RAW, RAW + 16), T, done)
    spin_tail(loop, 62, 2)
    A.label(done)
    if EARLY_C == 1:
        arrive_issue("s30", sCME, O)
    if EARLY_C == 2:
        arrive_finish("s30", sCME, f"s{sLAST}", O, 0)
    A("s_waitcnt lgkmcnt(0)")
    A("s_barrier")
    stamp(1, f"s{sK}")
    Lf = A.newlabel("Lcf")
    A(f"s_cmp_lg_u32 s{sK}, 0")
    A(f"s_cbranch_scc1 {Lf}")
    for k in range(4):
        A(f"v_mov_b32 {v(P+k)}, -1")
    A(f"s_mov_b32 s63, {Y_OFF + Y_SZ}")
    Y_stores(P, P, P, "s63")
    A.label(Lf)
    for j in range(4):
        A(f"ds_read_b128 {v(DT+8*j,4)}, v7 offset:{256*j}")
        A(f"ds_read_b128 {v(DT+8*j+4,4)}, v7 offset:{4096+256*j}")
    for j in range(4):
        A(f"s_waitcnt lgkmcnt({7-2*j})")
        A(f"v_mfma_f32_16x16x32_f16 {v(AR+4*j,4)}, {v(DT+8*j,4)}, {v(B1,4)}, 0")
        A(f"v_mfma_f32_16x16x32_f16 {v(AI+4*j,4)}, {v(DT+8*j,4)}, {v(B1+4,4)}, 0")
        A(f"s_waitcnt lgkmcnt({6-2*j})")
        A(f"v_mfma_f32_16x16x32_f16 {v(AR+4*j,4)}, {v(DT+8*j+4,4)}, {v(B1+8,4)}, {v(AR+4*j,4)}")
        A(f"v_mfma_f32_16x16x32_f16 {v(AI+4*j,4)}, {v(DT+8*j+4,4)}, {v(B1+12,4)}, {v(AI+4*j,4)}")
    A(f"s_add_u32 s{sK}, s{sK}, 1")
    for j in range(4):
        for i in (4 * j, 4 * j + 2):
            pr, pi = RAW + (i % 4) * 2, RAW + (i % 4) * 2 + 2
            A(f"v_pk_mul_f32 {v(pr,2)}, {v(AR+i,2)}, {v(TC+i,2)}")
            A(f"v_pk_mul_f32 {v(pi,2)}, {v(AI+i,2)}, {v(TC+i,2)}")
            A(f"v_pk_fma_f32 {v(pr,2)}, {v(AI+i,2)}, {v(TS+i,2)}, {v(pr,2)}")
            A(f"v_pk_fma_f32 {v(pi,2)}, {v(AR+i,2)}, {v(TS+i,2)}, {v(pi,2)} neg_lo:[1,0,0] neg_hi:[1,0,0]")
            A(f"v_cvt_pk_f16_f32 {v(P+i)}, {v(pr)}, {v(pi)}")
            A(f"v_cvt_pk_f16_f32 {v(P+i+1)}, {v(pr+1)}, {v(pi+1)}")
        for jm in range(4):
            c = "0" if j == 0 else v(AC + 4 * jm, 4)
            A(f"v_mfma_f32_16x16x32_f16 {v(AC+4*jm,4)}, {v(A2+16*jm+4*j,4)}, {v(P+4*j,4)}, {c}")
        if j == opt("cfin", 1):
            arrive_finish("s30", sCME, f"s{sLAST}", O, ("s30", 1, 3))
    if EARLY_C == 0:
        A("s_barrier")
        arrive_issue(f"s{sK}", sCME, T)
    for k in range(8):
        A(f"v_cvt_pk_f16_f32 {v(O+k)}, {v(AC+2*k)}, {v(AC+2*k+1)}")
    def prep():
        for gq in range(4):
            A(f"v_readlane_b32 s{60+gq}, {v(O)}, {16*((gq+1)%4)}")
        for gq in range(4):
            A(f"v_writelane_b32 {v(P+4)}, s{60+gq}, {16*gq}")
        for k in range(3):
            A(f"v_alignbit_b32 {v(P+k)}, {v(O+k+1)}, {v(O+k)}, 16")
        A(f"v_alignbit_b32 {v(P+3)}, {v(P+4)}, {v(O+3)}, 16")
    Y_stores(O, O + 4, P, f"s{sY}", prep)
    if EARLY_C == 0:
        arrive_finish(f"s{sK}", sCME, f"s{sLAST}", T, 3)
    stamp(3, f"s{sK}", dbg=(6, C0, 1))
    A(f"s_add_u32 s{sK}, s{sK}, 1")
    A(f"s_add_u32 s{sW0}, s{sW0}, {W_SZ}")
    A(f"s_add_u32 s{sY}, s{sY}, {Y_SZ}")
    A(f"s_cmp_ge_u32 s{sK}, 4")
    A("s_cbranch_scc1 L_end")
    A("s_waitcnt vmcnt(0)")
    A("s_branch L_Cloop")

SORT8 = [(0, 1), (2, 3), (4, 5), (6, 7), (0, 2), (1, 3), (4, 6), (5, 7), (1, 2), (5, 6), (0, 4), (3, 7),
         (1, 5), (2, 6), (1, 4), (3, 6), (2, 4), (3, 5), (3, 4)]

def topk_setup(CODE, vG, vLW, vLR, LDS0):
    A(f"v_lshrrev_b32 {v(CODE)}, 6, v0")
    A(f"v_lshlrev_b32 {v(CODE)}, 9, {v(CODE)}")
    A(f"v_add_u32 {v(CODE)}, {v(CODE)}, v1")
    A(f"v_sub_u32 {v(CODE)}, 2047, {v(CODE)}")
    for i in range(1, 8):
        A(f"v_subrev_u32 {v(CODE+i)}, {64*i}, {v(CODE)}")
    A(f"v_lshlrev_b32 {v(vG)}, {RSH}, v0")
    A(f"v_lshrrev_b32 {v(vLW)}, 4, v0")
    A(f"v_lshlrev_b32 {v(vLW)}, 5, {v(vLW)}")
    A(f"v_add_u32 {v(vLW)}, {LDS0}, {v(vLW)}")
    A(f"v_and_b32 {v(vLR)}, 15, v1")
    A(f"v_lshlrev_b32 {v(vLR)}, 5, {v(vLR)}")
    A(f"v_add_u32 {v(vLR)}, {LDS0}, {v(vLR)}")

def topk(K, CODE, vG, vLW, vLR, sRG, blk, dbg):
    G = K + 16
    prio(0)
    for gate in ((True, False) if GATE else (False,)):
        loop, done = A.newlabel("Lrg"), A.newlabel("Lrgd")
        A(f"s_mov_b32 s62, {SPIN}")
        if gate:
            set_exec(0xff << 56)
        A.label(loop)
        A(f"buffer_load_dwordx4 {v(G,4)}, {v(vG)}, {WS}, s{sRG} offen sc1")
        A("s_waitcnt vmcnt(0)")
        any_sentinel(range(G, G + 4), K, done)
        spin_tail(loop, 62, opt("rsleep", 1))
        A.label(done)
        if gate:
            A("s_mov_b64 exec, -1")
    prio(3)
    stamp(3, "s27", dbg=dbg)
    A("s_mov_b32 s63, 0xffff0000")
    cur = list(range(K, K + 8))
    for k in range(4):
        A(f"v_lshl_or_b32 {v(cur[2*k])}, {v(G+k)}, 16, {v(CODE+2*k)}")
        A(f"v_and_or_b32 {v(cur[2*k+1])}, {v(G+k)}, s63, {v(CODE+2*k+1)}")
    free = list(range(K + 8, K + 24))

    def ce(i, j, dst=None):
        if dst is None:
            t = free.pop(0)
            A(f"v_max_u32 {v(t)}, {v(cur[i])}, {v(cur[j])}")
            A(f"v_min_u32 {v(cur[j])}, {v(cur[i])}, {v(cur[j])}")
            free.append(cur[i])
            cur[i] = t
        else:
            A(f"v_max_u32 {v(dst+i)}, {v(cur[i])}, {v(cur[j])}")
            A(f"v_min_u32 {v(dst+j)}, {v(cur[i])}, {v(cur[j])}")

    for (i, j) in SORT8:
        ce(i, j)
    pats = ["quad_perm:[1,0,3,2]", "quad_perm:[2,3,0,1]", "row_half_mirror", "row_mirror"]
    for rnd in range(2):
        for li, pat in enumerate(pats):
            new = [free.pop(0) for _ in range(8)]
            for i in (7, 6, 5, 4, 3, 2, 1, 0) if False else range(8):
                A(f"v_max_u32_dpp {v(new[i])}, {v(cur[7-i])}, {v(cur[i])} {pat} row_mask:0xf bank_mask:0xf")
            free.extend(cur)
            cur = new
            if rnd == 1 and li == 3:
                return cur
            for i in range(4):
                ce(i, i + 4)
            for i in (0, 1, 4, 5):
                ce(i, i + 2)
            if rnd == 0 and li == 3:
                for i in (0, 2, 4, 6):
                    ce(i, i + 1, dst=blk)
                set_exec(0x0001000100010001)
                A(f"ds_write_b128 {v(vLW)}, {v(blk,4)}")
                A(f"ds_write_b128 {v(vLW)}, {v(blk+4,4)} offset:16")
                A("s_mov_b64 exec, -1")
                A("s_waitcnt lgkmcnt(0)")
                A("s_barrier")
                A(f"ds_read_b128 {v(K,4)}, {v(vLR)}")
                A(f"ds_read_b128 {v(K+4,4)}, {v(vLR)} offset:16")
                A("s_waitcnt lgkmcnt(0)")
                cur = list(range(K, K + 8))
                free = list(range(K + 8, K + 24))
            else:
                for i in (6, 4, 2, 0):
                    ce(i, i + 1)

def load_weight_frags(jobs):
    total = sum(8 * j[3] for j in jobs)
    for (srdn, voff_of, soff_of, nsteps, dst, raw, vfull) in jobs:
        for k in range(nsteps):
            for q in range(8):
                d = raw + 8 * k + q
                if vfull is not None and k == vfull:
                    A(f"v_add_u32 {v(d)}, {soff_of(k, q)}, {v(voff_of(k))}")
                    A(f"buffer_load_dword {v(d)}, {v(d)}, {srdn}, 0 offen")
                    continue
                A(f"s_mov_b32 s60, {soff_of(k, q)}")
                A(f"buffer_load_dword {v(d)}, {v(voff_of(k))}, {srdn}, s60 offen")
    done = 0
    for (srdn, voff_of, soff_of, nsteps, dst, raw, vfull) in jobs:
        for k in range(nsteps):
            done += 8
            A(f"s_waitcnt vmcnt({min(63, total - done)})")
            r = raw + 8 * k
            for u in range(4):
                A(f"v_perm_b32 {v(dst + 8*k + u)}, {v(r+2*u+1)}, {v(r+2*u)}, s58")
                A(f"v_perm_b32 {v(dst + 8*k + 4 + u)}, {v(r+2*u+1)}, {v(r+2*u)}, s59")

def roleFa():
    A.label("L_roleFa")
    GW, UW, RAW, AFR, ACC, K, CODE = 16, 56, 96, 136, 156, 176, 200
    vG, vLW, vLR, vW1, vW2, vLP1, vLP2, vPW, vPR, vH = 2, 3, 4, 5, 6, 7, 8, 9, 10, 11
    sKAP, sRG, sT, sH, sL = 22, 23, 25, 26, 27
    T = 208
    nonce_load(T + 8)
    srd(8, 46, 2211840)
    srd(12, 48, 2211840)
    A(f"s_sub_u32 s60, s2, {FA0 - 1}")
    A(f"s_and_b32 s61, s60, 7")
    A(f"s_lshr_b32 s60, s60, 3")
    A(f"s_mul_i32 s{sKAP}, s61, 7")
    A(f"s_add_u32 s{sKAP}, s{sKAP}, s60")
    A(f"s_sub_u32 s{sKAP}, s{sKAP}, 1")
    A("s_mov_b32 s58, 0x05040100")
    A("s_mov_b32 s59, 0x07060302")
    n, g = T, T + 1
    A(f"v_and_b32 {v(n)}, 15, v1")
    A(f"v_lshrrev_b32 {v(g)}, 4, v1")
    A(f"s_lshr_b32 s60, s{WV}, 1")
    A(f"s_mul_i32 s60, s60, 320")
    A(f"s_and_b32 s61, s{WV}, 1")
    A(f"s_lshl_b32 s61, s61, 4")
    A(f"s_add_u32 s60, s60, s61")
    A(f"s_lshl_b32 s61, s{sKAP}, 6")
    A(f"v_lshl_add_u32 {v(T+2)}, {v(n)}, 2, s61")
    A(f"v_add_u32 {v(vW1)}, s60, {v(g)}")
    A(f"v_mul_u32_u24 {v(vW1)}, 3456, {v(vW1)}")
    A(f"v_add_u32 {v(vW1)}, {v(vW1)}, {v(T+2)}")
    A(f"v_lshl_add_u32 {v(vW2)}, {v(g)}, 2, s60")
    A(f"v_mul_u32_u24 {v(vW2)}, 3456, {v(vW2)}")
    A(f"v_add_u32 {v(vW2)}, {v(vW2)}, {v(T+2)}")
    voff = lambda k: vW1 if k < 4 else vW2
    soff = lambda k, q: ((32 * q + 4 * k) if k < 4 else (256 + 32 * (q & 1) + (q >> 1))) * 3456
    A("s_waitcnt vmcnt(0)")
    nonce_take(T + 8)
    A(f"s_and_b32 s29, s2, {NREP - 1}")
    A(f"s_lshl_b32 s29, s29, {FSH + 4}")
    prefetch_weights(T + 8)
    poll_flags(0, 29, T + 4, 8)
    load_weight_frags([(SRD1, voff, soff, 5, GW, RAW, None), (SRD2, voff, soff, 5, UW, RAW + 40, None)])
    topk_setup(CODE, vG, vLW, vLR, 8192)
    A(f"s_lshl_b32 s60, s{WV}, 4")
    A(f"v_add_lshl_u32 {v(vLP1)}, {v(g)}, s60, 4")
    A(f"s_lshl_b32 s60, s{WV}, 6")
    A(f"s_add_u32 s60, s60, 1024")
    A(f"v_lshl_add_u32 {v(vLP2)}, {v(g)}, 4, s60")
    A(f"s_lshl_b32 s60, s{WV}, 11")
    A(f"v_lshlrev_b32 {v(vPW)}, 9, {v(g)}")
    A(f"v_lshl_add_u32 {v(vPW)}, {v(n)}, 3, {v(vPW)}")
    A(f"v_add_u32 {v(vPW)}, s60, {v(vPW)}")
    A(f"v_add_u32 {v(12)}, 1024, {v(vPW)}")
    A(f"v_lshlrev_b32 {v(vPR)}, 2, v0")
    A(f"v_lshrrev_b32 {v(T+2)}, 1, v0")
    A(f"v_lshlrev_b32 {v(vH)}, 2, {v(T+2)}")
    A(f"s_lshl_b32 s{sH}, s{sKAP}, 9")
    A(f"s_add_u32 s{sH}, s{sH}, {H_OFF}")
    A(f"s_and_b32 s{sRG}, s2, {NRR - 1}")
    A(f"s_lshl_b32 s{sRG}, s{sRG}, {RSH + 8}")
    A(f"s_add_u32 s{sRG}, s{sRG}, {RG_OFF}")
    A(f"s_mov_b32 s{sT}, {T_OFF}")
    A(f"s_mov_b32 s28, {T_REC}")
    for (r, val) in ((30, 0xAAAAAAAA), (32, 0xCCCCCCCC), (34, 0xF0F0F0F0)):
        A(f"s_mov_b32 s{r}, 0x{val:x}")
        A(f"s_mov_b32 s{r+1}, 0x{val:x}")
    A(f"s_mov_b32 s{sL}, 0")
    stamp(0, dbg=(9, FA0))
    poll_flags(1, 29, T, 8)
    prio(3)
    A.label("L_FaLoop")
    c = topk(K, CODE, vG, vLW, vLR, sRG, T, (11, FA0, 0))
    stamp(4, "s27")
    for i in range(4):
        A(f"v_cndmask_b32 {v(T+i)}, {v(c[2*i])}, {v(c[2*i+1])}, s[30:31]")
    A(f"v_cndmask_b32 {v(T)}, {v(T)}, {v(T+1)}, s[32:33]")
    A(f"v_cndmask_b32 {v(T+2)}, {v(T+2)}, {v(T+3)}, s[32:33]")
    A(f"v_cndmask_b32 {v(T)}, {v(T)}, {v(T+2)}, s[34:35]")
    A(f"v_and_b32 {v(T)}, 0x7ff, {v(T)}")
    A(f"v_sub_u32 {v(T)}, 2047, {v(T)}")
    A(f"v_mad_u32_u24 {v(T+1)}, {v(T)}, s28, {v(vLP1)}")
    A(f"v_mad_u32_u24 {v(T+2)}, {v(T)}, s28, {v(vLP2)}")
    loop, done = A.newlabel("Lga"), A.newlabel("Lgad")
    A(f"s_mov_b32 s62, {SPIN}")
    A.label(loop)
    for ks in range(4):
        A(f"buffer_load_dwordx4 {v(AFR+4*ks,4)}, {v(T+1)}, {WS}, s{sT} offen offset:{64*ks} sc1")
    A(f"buffer_load_dwordx4 {v(AFR+16,4)}, {v(T+2)}, {WS}, s{sT} offen sc1")
    A("s_waitcnt vmcnt(0)")
    any_sentinel(range(AFR, AFR + 20), T + 3, done)
    spin_tail(loop, 62, 1)
    A.label(done)
    for ks in range(5):
        for a_, wb in enumerate((GW, GW + 4, UW, UW + 4)):
            cc = "0" if ks == 0 else v(ACC + 4 * a_, 4)
            A(f"v_mfma_f32_16x16x32_bf16 {v(ACC+4*a_,4)}, {v(AFR+4*ks,4)}, {v(wb+8*ks,4)}, {cc}")
    stamp(5, "s27")
    set_exec(0xffffffff)
    for mat in range(2):
        for r in range(4):
            A(f"ds_write2_b32 {v(vPW if mat == 0 else 12)}, {v(ACC+8*mat+r)}, {v(ACC+8*mat+4+r)} offset0:{32*r} offset1:{32*r+1}")
    A("s_mov_b64 exec, -1")
    A("s_waitcnt lgkmcnt(0)")
    A("s_barrier")
    for w in range(4):
        A(f"ds_read2st64_b32 {v(T+2*w,2)}, {v(vPR)} offset0:{8*w} offset1:{8*w+4}")
    A("s_waitcnt lgkmcnt(2)")
    A(f"v_pk_add_f32 {v(T,2)}, {v(T,2)}, {v(T+2,2)}")
    A("s_waitcnt lgkmcnt(0)")
    A(f"v_pk_add_f32 {v(T+4,2)}, {v(T+4,2)}, {v(T+6,2)}")
    A(f"v_pk_add_f32 {v(T,2)}, {v(T,2)}, {v(T+4,2)}")
    rnd_pair(T, T + 1, T + 2)
    A(f"v_mul_f32 {v(T+2)}, {f32(-1.4426950408889634)}, {v(T)}")
    A(f"v_exp_f32 {v(T+2)}, {v(T+2)}")
    A(f"v_add_f32 {v(T+2)}, 1.0, {v(T+2)}")
    A(f"v_rcp_f32 {v(T+2)}, {v(T+2)}")
    A(f"v_mul_f32 {v(T)}, {v(T)}, {v(T+2)}")
    A(f"v_cvt_pk_bf16_f32 {v(T)}, {v(T)}, {v(T)}")
    A(f"v_and_b32 {v(T)}, 0xffff0000, {v(T)}")
    A(f"v_mul_f32 {v(T)}, {v(T)}, {v(T+1)}")
    A(f"v_mov_b32_dpp {v(T+1)}, {v(T)} quad_perm:[1,0,3,2] row_mask:0xf bank_mask:0xf")
    A(f"v_cvt_pk_bf16_f32 {v(T)}, {v(T)}, {v(T+1)}")
    A(f"v_min_u32 {v(T)}, -2, {v(T)}")
    set_exec(0x5555555555555555)
    A(f"buffer_store_dword {v(T)}, {v(vH)}, {WS}, s{sH} offen sc1")
    A("s_mov_b64 exec, -1")
    stamp(6, "s27")
    A(f"s_add_u32 s{sH}, s{sH}, {2 * HREP}")
    A(f"s_add_u32 s{sRG}, s{sRG}, {NRR * RG_REP}")
    A(f"s_add_u32 s{sT}, s{sT}, {T_SZ}")
    A(f"s_add_u32 s{sL}, s{sL}, 1")
    A(f"s_cmp_lt_u32 s{sL}, 2")
    A("s_cbranch_scc1 L_FaLoop")
    A("s_endpgm")

def roleFb():
    A.label("L_roleFb")
    DW, HF, ACC, K, CODE, T = 16, 128, 184, 192, 216, 224
    RAW = 128
    vG, vLW, vLR, vW1, vHF, vPW, vPR, vE, vX2, vO = 2, 3, 4, 5, 6, 7, 8, 9, 10, 11
    sB, sRG, sT, sH, sL, sREP2, sES, sEC = 22, 23, 25, 26, 27, 29, 30, 31
    nonce_load(T + 8)
    srd(8, 50, 2211840)
    srd(12, 52, 2621440)
    A(f"s_sub_u32 s60, s2, {FB0 - 7}")
    A(f"s_and_b32 s61, s60, 7")
    A(f"s_lshr_b32 s60, s60, 3")
    fb_start("s61", f"s{sB}")
    A(f"s_add_u32 s{sB}, s{sB}, s60")
    A(f"s_cmp_eq_u32 s61, 7")
    A(f"s_cselect_b32 s60, 0, 1")
    A(f"s_sub_u32 s{sB}, s{sB}, s60")
    A("s_mov_b32 s58, 0x05040100")
    A("s_mov_b32 s59, 0x07060302")
    n, g = T, T + 1
    A(f"v_and_b32 {v(n)}, 15, v1")
    A(f"v_lshrrev_b32 {v(g)}, 4, v1")
    A(f"s_lshl_b32 s60, s{WV}, 5")
    A(f"v_lshl_add_u32 {v(vW1)}, {v(g)}, 3, s60")
    A(f"v_mul_u32_u24 {v(vW1)}, 1280, {v(vW1)}")
    A(f"s_lshl_b32 s61, s{sB}, 6")
    A(f"v_lshl_add_u32 {v(T+2)}, {v(n)}, 2, s61")
    A(f"v_add_u32 {v(vW1)}, {v(vW1)}, {v(T+2)}")
    A(f"v_mov_b32 v12, {v(n)}")
    A(f"v_mov_b32 v13, {v(g)}")
    n, g = 12, 13
    A("s_waitcnt vmcnt(0)")
    nonce_take(T + 8)
    A(f"s_and_b32 s{sREP2}, s2, {NREP - 1}")
    A(f"s_lshl_b32 s{sREP2}, s{sREP2}, {FSH + 4}")
    prefetch_weights(T + 16)
    poll_flags(0, sREP2, T + 4, 8)
    load_weight_frags([(SRD1, lambda k: vW1, lambda k, q: (128 * k + q) * 1280, 14, DW, RAW, 13)])
    topk_setup(CODE, vG, vLW, vLR, 8192)
    A(f"v_and_b32 {v(vHF)}, 7, v1")
    A(f"v_lshlrev_b32 {v(vHF)}, 6, {v(vHF)}")
    A(f"v_lshl_add_u32 {v(vHF)}, {v(g)}, 4, {v(vHF)}")
    A(f"s_lshl_b32 s60, s{WV}, 9")
    A(f"v_add_u32 {v(vHF)}, s60, {v(vHF)}")
    A(f"s_mov_b32 s{sH}, {H_OFF}")
    A(f"s_lshl_b32 s60, s{WV}, 10")
    A(f"v_lshlrev_b32 {v(vPW)}, 9, {v(g)}")
    A(f"v_lshl_add_u32 {v(vPW)}, {v(n)}, 3, {v(vPW)}")
    A(f"v_add_u32 {v(vPW)}, s60, {v(vPW)}")
    A(f"v_lshlrev_b32 {v(vPR)}, 2, v0")
    A(f"s_cmp_ge_u32 s{sB}, 10")
    A(f"s_cselect_b32 s60, 1, 0")
    A(f"s_mul_i32 s61, s60, 10")
    A(f"s_sub_u32 s61, s{sB}, s61")
    A(f"s_lshl_b32 s62, s60, 9")
    A(f"s_lshl_b32 s63, s61, 1")
    A(f"s_add_u32 s62, s62, s63")
    A(f"s_lshl_b32 s64, s60, 7")
    A(f"s_add_u32 s64, s64, s63")
    A(f"s_add_u32 s64, s64, {1024 - 16}")
    A(f"s_cmp_lt_u32 s61, 8")
    A(f"s_cselect_b32 s{sEC}, s62, s64")
    A(f"s_cselect_b32 s{sES}, 16, 4")
    A(f"v_and_b32 {v(T+2)}, 31, v1")
    A(f"v_mul_u32_u24 {v(vE)}, s{sES}, {v(T+2)}")
    A(f"s_and_b32 s32, s{sEC}, 2")
    A(f"s_lshl_b32 s32, s32, 3")
    A(f"s_sub_u32 s32, 16, s32")
    A(f"s_and_b32 s{sEC}, s{sEC}, -4")
    A(f"v_add_u32 {v(vE)}, s{sEC}, {v(vE)}")

    A(f"s_lshl_b32 s60, s{sB}, 2")
    A(f"s_add_u32 s60, s60, s{WV}")
    A(f"s_lshl_b32 s60, s60, 8")
    A(f"v_lshl_add_u32 {v(vX2)}, {v(T+2)}, 3, s60")
    A(f"v_lshrrev_b32 {v(T+3)}, 5, v1")
    A(f"v_lshl_add_u32 {v(vX2)}, {v(T+3)}, 2, {v(vX2)}")
    A(f"s_lshl_b32 s60, s{sB}, 6")
    A(f"v_lshl_add_u32 {v(vO)}, {v(T+2)}, 1, s60")
    A(f"s_and_b32 s{sRG}, s2, {NRR - 1}")
    A(f"s_lshl_b32 s{sRG}, s{sRG}, {RSH + 8}")
    A(f"s_add_u32 s{sRG}, s{sRG}, {RG_OFF}")
    A(f"s_mov_b32 s{sT}, {T_OFF}")
    A(f"s_mov_b32 s28, {T_REC}")
    A(f"s_mov_b32 s{sL}, 0")
    stamp(0, dbg=(10, FB0))
    poll_flags(1, sREP2, T, 8)
    prio(3)
    A.label("L_FbLoop")
    c = topk(K, CODE, vG, vLW, vLR, sRG, T, None)
    stamp(4, "s27")
    for j in range(8):
        A(f"v_readfirstlane_b32 s{80+j}, {v(c[j])}")
    A("s_mov_b32 s70, s80")
    A("s_mov_b32 s71, s81")
    for w in range(1, 4):
        A(f"s_cmp_eq_u32 s{WV}, {w}")
        A(f"s_cselect_b32 s70, s{80+2*w}, s70")
        A(f"s_cselect_b32 s71, s{81+2*w}, s71")
    KEY, ROW, XV, XNV, SG, ST = T, T + 1, T + 2, T + 3, T + 4, T + 8
    Ls = A.newlabel("Lfb")
    A(f"s_or_b32 s60, s{sB}, s{WV}")
    A(f"s_cmp_lg_u32 s60, 0")
    A(f"s_cbranch_scc1 {Ls}")
    A(f"v_mov_b32 {v(T+6)}, s80")
    for j in range(1, 8):
        A(f"v_writelane_b32 {v(T+6)}, s{80+j}, {j}")
    A(f"v_and_b32 {v(T+6)}, 0x7ff, {v(T+6)}")
    A(f"v_sub_u32 {v(T+6)}, 2047, {v(T+6)}")
    A(f"v_lshlrev_b32 {v(T+7)}, 2, v1")
    A(f"s_lshl_b32 s60, s{sL}, 8")
    A(f"s_add_u32 s60, s60, {X2_OFF + SEL_OFF}")
    A("s_mov_b64 exec, 0xff")
    A(f"buffer_store_dword {v(T+6)}, {v(T+7)}, {WS}, s60 offen sc1")
    A("s_mov_b64 exec, -1")
    A.label(Ls)
    A(f"v_mov_b32 {v(KEY)}, s71")
    A(f"v_mov_b32 {v(ROW)}, s70")
    A(f"v_cmp_gt_u32 vcc, 32, v1")
    A(f"v_cndmask_b32 {v(KEY)}, {v(KEY)}, {v(ROW)}, vcc")
    A(f"v_and_b32 {v(ROW)}, 0x7ff, {v(KEY)}")
    A(f"v_sub_u32 {v(ROW)}, 2047, {v(ROW)}")
    A(f"v_mad_u32_u24 {v(T+5)}, {v(ROW)}, s28, {v(vE)}")
    prio(0)
    loop, done = A.newlabel("Lst2"), A.newlabel("Lst2d")
    A(f"v_mul_u32_u24 {v(T+6)}, s28, {v(ROW)}")
    A(f"s_add_u32 s61, s{NONCE}, 6")
    A(f"s_add_u32 s61, s61, s{sL}")
    A(f"s_mov_b32 s62, {SPIN}")
    A.label(loop)
    A(f"buffer_load_dwordx4 {v(ST,4)}, {v(T+6)}, {WS}, s{sT} offen offset:2560 sc1")
    A("s_waitcnt vmcnt(0)")
    A(f"v_cmp_ne_u32 vcc, s61, {v(ST+2)}")
    A(f"s_cbranch_vccz {done}")
    spin_tail(loop, 62, 2)
    A.label(done)
    A(f"buffer_load_dword {v(XNV)}, {v(T+5)}, {WS}, s{sT} offen sc1")
    A(f"buffer_load_dword {v(XV)}, {v(T+5)}, {WS}, s{sT} offen offset:1280 sc1")
    A(f"v_ashrrev_i32 {v(SG)}, 31, {v(KEY)}")
    A(f"v_not_b32 {v(SG)}, {v(SG)}")
    A(f"v_or_b32 {v(SG)}, 0x80000000, {v(SG)}")
    A(f"v_xor_b32 {v(SG)}, {v(SG)}, {v(KEY)}")
    A(f"v_and_b32 {v(SG)}, 0xffff0000, {v(SG)}")
    A(f"v_mul_f32 {v(SG)}, {f32(-1.4426950408889634)}, {v(SG)}")
    A(f"v_exp_f32 {v(SG)}, {v(SG)}")
    A(f"v_add_f32 {v(SG)}, 1.0, {v(SG)}")
    A(f"v_rcp_f32 {v(SG)}, {v(SG)}")
    A(f"v_cvt_pk_bf16_f32 {v(SG)}, {v(SG)}, {v(SG)}")
    A(f"v_and_b32 {v(SG)}, 0xffff0000, {v(SG)}")
    stamp(2, "s27")
    def rb(r):
        A(f"v_cvt_pk_bf16_f32 {v(r)}, {v(r)}, {v(r)}")
        A(f"v_and_b32 {v(r)}, 0xffff0000, {v(r)}")
    Yv = T + 12
    XO = T + 16
    if opt("hgate", 0):
        loop, done = A.newlabel("Lh"), A.newlabel("Lhd")
        A(f"s_mov_b32 s62, {SPIN}")
        A.label(loop)
        A(f"buffer_load_dwordx4 {v(HF,4)}, {v(vHF)}, {WS}, s{sH} offen sc1")
        A("s_waitcnt vmcnt(0)")
        any_sentinel(range(HF, HF + 4), T + 6, done)
        spin_tail(loop, 62, opt("hgsleep", 2))
        A.label(done)
    loop, done = A.newlabel("Lh"), A.newlabel("Lhd")
    A(f"s_cmp_lt_u32 s{WV}, 2")
    A(f"s_cselect_b32 s63, 2048, 0")
    A(f"s_add_u32 s63, s63, {12 * 2048}")
    A(f"s_add_u32 s63, s63, s{sH}")
    A(f"s_mov_b32 s62, {SPIN}")
    A.label(loop)
    for k in range(14):
        if k == 13:
            A(f"buffer_load_dwordx4 {v(HF+4*k,4)}, {v(vHF)}, {WS}, s63 offen sc1")
        else:
            if k % 2 == 0:
                A(f"s_add_u32 s60, s{sH}, {2048 * k}")
            A(f"buffer_load_dwordx4 {v(HF+4*k,4)}, {v(vHF)}, {WS}, s60 offen offset:{2048*(k%2)} sc1")
    CK = T + 6
    A("s_waitcnt vmcnt(0)")
    any_sentinel(list(range(HF, HF + 56)), CK, done)
    spin_tail(loop, 62, opt("hsleep", 1))
    A.label(done)
    prio(3)
    stamp(5, "s27")
    Lh2 = A.newlabel("Lfb")
    A(f"s_or_b32 s60, s{sB}, s{WV}")
    A(f"s_or_b32 s60, s60, s{sL}")
    A(f"s_cmp_lg_u32 s60, 0")
    A(f"s_cbranch_scc1 {Lh2}")
    A(f"v_mov_b32 {v(CK)}, 0")
    A(f"s_mov_b32 s60, {X2_OFF + SEL_OFF + 128}")
    A("s_mov_b64 exec, 1")
    A(f"buffer_store_dword {v(CK)}, {v(CK)}, {WS}, s60 offen sc1")
    A.label(Lh2)
    A("s_mov_b64 exec, -1")
    for k in range(14):
        for par in range(2):
            cc = "0" if k == 0 else v(ACC + 4 * par, 4)
            A(f"v_mfma_f32_16x16x32_bf16 {v(ACC+4*par,4)}, {v(HF+4*k,4)}, {v(DW+8*k+4*par,4)}, {cc}")
    for r in (XNV, XV):
        A(f"v_lshlrev_b32 {v(r)}, s32, {v(r)}")
        A(f"v_and_b32 {v(r)}, 0xffff0000, {v(r)}")
    A(f"v_add_f32 {v(XO)}, {v(XV)}, {v(XNV)}")
    rb(XO)
    A(f"v_sub_f32 {v(XO)}, {v(XO)}, {v(ST)}")
    if EXACT:
        rb(XO)
    A(f"v_mul_f32 {v(XO)}, {v(XO)}, {v(ST+1)}")
    if EXACT:
        rb(XO)
    set_exec(0xffffffff)
    for r in range(4):
        A(f"ds_write2_b32 {v(vPW)}, {v(ACC+r)}, {v(ACC+4+r)} offset0:{32*r} offset1:{32*r+1}")
    A("s_mov_b64 exec, -1")
    A("s_waitcnt lgkmcnt(0)")
    A("s_barrier")
    A(f"ds_read2st64_b32 {v(Yv,2)}, {v(vPR)} offset0:0 offset1:4")
    A(f"ds_read2st64_b32 {v(Yv+2,2)}, {v(vPR)} offset0:8 offset1:12")
    A("s_waitcnt lgkmcnt(0)")
    A(f"v_pk_add_f32 {v(Yv,2)}, {v(Yv,2)}, {v(Yv+2,2)}")
    A(f"v_add_f32 {v(Yv)}, {v(Yv)}, {v(Yv+1)}")
    rb(Yv)
    A(f"v_mul_f32 {v(Yv)}, {v(Yv)}, {v(SG)}")
    rb(Yv)
    A(f"v_add_f32 {v(Yv)}, {v(Yv)}, {v(XNV)}")
    rb(Yv)
    A(f"v_add_f32 {v(Yv)}, {v(Yv)}, {v(XV)}")
    L2 = A.newlabel("Lfb")
    A(f"s_cmp_lg_u32 s{sL}, 0")
    A(f"s_cbranch_scc1 {L2}")
    A(f"v_permlane32_swap_b32 {v(Yv)}, {v(XO)}")
    A(f"v_cvt_pk_bf16_f32 {v(Yv+1)}, {v(Yv)}, {v(XO)}")
    A(f"v_cvt_pk_f16_f32 {v(Yv)}, {v(Yv)}, {v(XO)}")
    A(f"v_cmp_gt_u32 vcc, 32, v1")
    A(f"v_cndmask_b32 {v(Yv)}, {v(Yv)}, {v(Yv+1)}, vcc")
    A(f"v_min_u32 {v(Yv)}, -2, {v(Yv)}")
    for r in range(NRX):
        A(f"s_mov_b32 s60, {X2_OFF + r * X2REP}")
        A(f"buffer_store_dword {v(Yv)}, {v(vX2)}, {WS}, s60 offen sc1")
    stamp(6, "s27", dbg=(12, FB0))
    A(f"s_add_u32 s{sH}, s{sH}, {2 * HREP}")
    A(f"s_add_u32 s{sRG}, s{sRG}, {NRR * RG_REP}")
    A(f"s_add_u32 s{sT}, s{sT}, {T_SZ}")
    A(f"s_mov_b32 s{sL}, 1")
    A("s_branch L_FbLoop")
    A.label(L2)
    A(f"v_cvt_pk_bf16_f32 {v(Yv)}, {v(Yv)}, {v(Yv)}")
    A(f"s_movk_i32 s60, 1280")
    A(f"v_mad_u32_u24 {v(Yv+1)}, {v(ROW)}, s60, {v(vO)}")
    A(f"buffer_store_short {v(Yv)}, {v(Yv+1)}, {SRD2}, 0 offen sc1")
    stamp(7, "s27", dbg=(15, FB0))
    A(f"s_or_b32 s60, s{sB}, s{WV}")
    A(f"s_cmp_lg_u32 s60, 0")
    A("s_cbranch_scc1 L_end")
    A(f"v_mov_b32 {v(T)}, s{NONCE}")
    A(f"v_mov_b32 {v(T+1)}, 0")
    A("s_mov_b64 exec, 1")
    A(f"buffer_store_dword {v(T)}, {v(T+1)}, {WS}, 0 offen sc1")
    A.label("L_end")
    A("s_endpgm")

hdr = open("cdna_kernels/%s.s.ref" % NAME).read().split("\n")
head = [l for l in hdr if l.startswith(";") and "@launch" not in l and "Override" not in l and "grid=ceil" not in l]
out = "\n".join(head) + "\n"
out += f"; @launch grid=({NWG},1,1) block=(256,1,1) lds={LDS_BYTES}\n"
out += '.amdgcn_target "amdgcn-amd-amdhsa--gfx950"\n.text\n'
out += f".globl {NAME}_kernel\n.p2align 8\n.type {NAME}_kernel,@function\n{NAME}_kernel:\n"
prologue(); roleR(); roleC(); roleFa(); roleFb()
out += A.text()
out += f""".section .rodata,"a"
.p2align 6
.amdhsa_kernel {NAME}_kernel
  .amdhsa_next_free_vgpr 256
  .amdhsa_next_free_sgpr 102
  .amdhsa_accum_offset 256
  .amdhsa_group_segment_fixed_size 0
  .amdhsa_kernarg_size 104
  .amdhsa_user_sgpr_count 2
  .amdhsa_user_sgpr_kernarg_segment_ptr 1
  .amdhsa_system_sgpr_workgroup_id_x 1
  .amdhsa_float_denorm_mode_32 3
.end_amdhsa_kernel
"""
dst = [a for a in sys.argv[1:] if not a.startswith("--")]
open(dst[0] if dst else "cdna_kernels/%s.s" % NAME, "w").write(out)
print("instructions:", A.ninstr, file=sys.stderr)
```

```python
import sys, struct
from asmb import Asm

NAME = "interleave_layers__spectral_fnet__moe_arch_mod__prompt"
def opt(name, default):
    for a in sys.argv:
        if a.startswith("--%s=" % name):
            return int(a.split("=")[1])
    return default
STAMPS = "--stamps" in sys.argv
DSTAMPS = "--dstamps" in sys.argv
MSTAMPS = "--mstamps" in sys.argv
EXACT = opt("exact", 0)
GATE = opt("gate", 0)
NR, NC, NFA, NFB = 256, 161, 54, 20
C0, FA0, FB0, NWG = 256, 417, 471, 491
FSH = opt("fsh", 6); FREP = 16 << FSH
FL_OFF = 0x1000; NREP = opt("nrep", 16)
RESET_OFF = 0x70000
H_OFF = 0x70000; HREP = 0x7000
X2_OFF = 0x90000; X2REP = 0x5200; NRX = opt("nrx", 1); SEL_OFF = 0x5000
RSH = opt("rsh", 6)
RG_OFF = 0xA0000; NRR = opt("nrr", 8); RG_REP = 256 << RSH
CNT_OFF = 0xF8000
WROW = 10368
W_OFF = 0x100000; W_SZ = 0x290000
Y_OFF = 0x640000; Y_SZ = 0x160000; YM_OFF = 322 * 4096
T_OFF = 0x900000; T_REC = 2688; T_SZ = 2048 * T_REC
ST_OFF = 0x1400000
WS_BYTES = 0x1500000
NONCE_C = 0x9E3779B9
SPIN = 40000
LDS_BYTES = 53248
assert FL_OFF + 4 * NREP * FREP <= 0x70000 and RG_OFF + 2 * NRR * RG_REP <= 0xF0000
PSLEEP = opt("psleep", 1)
EARLY_R = opt("earlyr", 1)
EARLY_C = opt("earlyc", 1)
PRIO = opt("prio", 1)
DRAIN2 = opt("drain2", 0)
PPART = opt("ppart", 3)
def prio(n):
    if PRIO:
        A(f"s_setprio {n}")

def f32(x):
    return "0x%08x" % struct.unpack("<I", struct.pack("<f", x))[0]
def v(i, n=1):
    return "v%d" % i if n == 1 else "v[%d:%d]" % (i, i + n - 1)
def s(i, n=1):
    return "s%d" % i if n == 1 else "s[%d:%d]" % (i, i + n - 1)

A = Asm()
WS = "s[4:7]"; SRD1 = "s[8:11]"; SRD2 = "s[12:15]"; SRD3 = "s[16:19]"
NONCE = 20; WV = 21

def srd(base, ptr, nbytes):
    A(f"s_mov_b32 s{base}, s{ptr}")
    A(f"s_and_b32 s{base+1}, s{ptr+1}, 0xffff")
    A(f"s_mov_b32 s{base+2}, {nbytes}")
    A(f"s_mov_b32 s{base+3}, 0x00020000")

def set_exec(m):
    A(f"s_mov_b32 exec_lo, 0x{m & 0xffffffff:x}")
    A(f"s_mov_b32 exec_hi, 0x{m >> 32:x}")

def stamp(idx, lay=None, dbg=None):
    if MSTAMPS and dbg is not None:
        L = A.newlabel("Lst")
        A(f"s_mov_b32 s97, s{WV}")
        if len(dbg) > 2:
            A(f"s_sub_u32 s96, {lay}, {dbg[2]}")
            A(f"s_or_b32 s97, s97, s96")
        A(f"s_cmp_lg_u32 s97, 0")
        A(f"s_cbranch_scc1 {L}")
        A("s_memrealtime s[98:99]")
        A("s_waitcnt lgkmcnt(0)")
        A("s_and_b32 s98, s98, 0x7fffffff")
        A("v_mov_b32 v254, s98")
        A("v_mov_b32 v253, 0")
        A("s_mov_b64 exec, 1")
        if dbg[0] == 0:
            A(f"buffer_atomic_umax v254, v253, s[92:95], 0 offen offset:4")
            A("v_not_b32 v254, v254")
        if dbg[0] != 1:
            A(f"buffer_atomic_umax v254, v253, s[92:95], 0 offen offset:{dbg[0] * 4}")
        A("s_mov_b64 exec, -1")
        A.label(L)
    if DSTAMPS and dbg is not None:
        L = A.newlabel("Lst")
        A(f"s_lshl_b32 s97, s{WV}, 16")
        A(f"s_or_b32 s97, s97, s2")
        if len(dbg) > 2:
            A(f"s_lshl_b32 s96, {lay}, 20")
            A(f"s_or_b32 s97, s97, s96")
        A(f"s_cmp_lg_u32 s97, {dbg[1] + ((dbg[2] << 20) if len(dbg) > 2 else 0)}")
        A(f"s_cbranch_scc1 {L}")
        A("s_memrealtime s[98:99]")
        A("s_waitcnt lgkmcnt(0)")
        A("v_mov_b32 v254, s98")
        A("v_mov_b32 v253, 0")
        A("s_mov_b64 exec, 1")
        A(f"buffer_store_dword v254, v253, s[92:95], 0 offen offset:{dbg[0] * 4}")
        A("s_mov_b64 exec, -1")
        A.label(L)
    if not STAMPS:
        return
    L = A.newlabel("Lst")
    A(f"s_cmp_lg_u32 s{WV}, 0")
    A(f"s_cbranch_scc1 {L}")
    A("s_memrealtime s[98:99]")
    A("s_memtime s[100:101]")
    A("s_waitcnt lgkmcnt(0)")
    A("v_mov_b32 v254, s98")
    A("v_mov_b32 v255, s100")
    A("v_mov_b32 v253, 0")
    A("s_lshl_b32 s97, s2, 9")
    A(f"s_add_u32 s97, s97, {ST_OFF + idx * 8}")
    if lay is not None:
        A(f"s_lshl_b32 s96, {lay}, 6")
        A("s_add_u32 s97, s97, s96")
    A("s_mov_b64 exec, 1")
    A(f"buffer_store_dwordx2 v[254:255], v253, {WS}, s97 offen")
    A("s_mov_b64 exec, -1")
    A.label(L)

def spin_tail(loop, cnt, sleep=1):
    if sleep:
        A(f"s_sleep {sleep}")
    A(f"s_sub_u32 s{cnt}, s{cnt}, 1")
    A(f"s_cmp_lg_u32 s{cnt}, 0")
    A(f"s_cbranch_scc1 {loop}")

def any_sentinel(regs, t, done):
    regs = list(regs)
    A(f"v_max3_u32 {v(t)}, {v(regs[0])}, {v(regs[1])}, {v(regs[2])}")
    k = 3
    while k + 1 < len(regs):
        A(f"v_max3_u32 {v(t)}, {v(t)}, {v(regs[k])}, {v(regs[k+1])}")
        k += 2
    if k < len(regs):
        A(f"v_max_u32 {v(t)}, {v(t)}, {v(regs[k])}")
    A(f"v_cmp_eq_u32 vcc, -1, {v(t)}")
    A(f"s_cbranch_vccz {done}")

def poll_flags(k, srep, t, sleep=None):
    loop, done = A.newlabel("Lpoll"), A.newlabel("Lpolld")
    A(f"s_cmp_lg_u32 s{WV}, 0")
    A(f"s_cbranch_scc1 {done}")
    if isinstance(k, int):
        A(f"s_add_u32 s60, s{srep}, {FL_OFF + k * NREP * FREP}")
    else:
        A(f"s_mul_i32 s60, {k}, {NREP * FREP}")
        A(f"s_add_u32 s60, s60, s{srep}")
        A(f"s_add_u32 s60, s60, {FL_OFF}")
    A(f"s_add_u32 s61, s{NONCE}, {k}")
    A(f"v_and_b32 {v(t+1)}, 15, v1")
    A(f"v_lshlrev_b32 {v(t+1)}, {FSH}, {v(t+1)}")
    A(f"s_mov_b32 s62, {SPIN}")
    A.label(loop)
    A(f"buffer_load_dword {v(t)}, {v(t+1)}, {WS}, s60 offen sc1")
    A("s_waitcnt vmcnt(0)")
    A(f"v_cmp_ne_u32 vcc, s61, {v(t)}")
    A(f"s_cbranch_vccz {done}")
    spin_tail(loop, 62, PSLEEP if sleep is None else sleep)
    A.label(done)
    A("s_barrier")

def cnt_init(sshard, ks, t):
    for k in ks:
        A(f"s_add_u32 s60, s{sshard}, {16 * k}")
        A(f"s_lshl_b32 s60, s60, 7")
        A(f"s_add_u32 s60, s60, {CNT_OFF}")
        A(f"s_add_u32 s61, s{NONCE}, {k}")
        A(f"v_mov_b32 {v(t)}, 0")
        A(f"v_mov_b32 {v(t+1)}, s61")
        A(f"v_mov_b32 {v(t+2)}, 0")
        A("s_mov_b64 exec, 1")
        A(f"buffer_store_dwordx2 {v(t,2)}, {v(t+2)}, {WS}, s60 offen sc1")
        A("s_mov_b64 exec, -1")

def arrive_issue(k, sshard, t):
    L = A.newlabel("Larr")
    A(f"s_cmp_lg_u32 s{WV}, 0")
    A(f"s_cbranch_scc1 {L}")
    if isinstance(k, int):
        A(f"s_add_u32 s66, s{sshard}, {16 * k}")
    else:
        A(f"s_lshl_b32 s66, {k}, 4")
        A(f"s_add_u32 s66, s66, s{sshard}")
    A(f"s_lshl_b32 s66, s66, 7")
    A(f"s_add_u32 s66, s66, {CNT_OFF}")
    A(f"v_mov_b32 {v(t)}, 1")
    A(f"v_mov_b32 {v(t+1)}, 0")
    A(f"v_mov_b32 {v(t+2)}, 0")
    A("s_mov_b64 exec, 1")
    A(f"buffer_atomic_add_x2 {v(t,2)}, {v(t+2)}, {WS}, s66 offen sc0")
    A("s_mov_b64 exec, -1")
    A.label(L)

def arrive_finish(k, sshard, slast, t, younger):
    L, again, chk = A.newlabel("Lsig"), A.newlabel("Lsiga"), A.newlabel("Lsigc")
    A(f"s_cmp_lg_u32 s{WV}, 0")
    A(f"s_cbranch_scc1 {L}")
    if isinstance(k, int):
        A(f"s_lshl_b32 s67, s{sshard}, {FSH}")
        A(f"s_add_u32 s67, s67, {FL_OFF + k * NREP * FREP}")
    else:
        A(f"s_mul_i32 s67, {k}, {NREP * FREP}")
        A(f"s_lshl_b32 s68, s{sshard}, {FSH}")
        A(f"s_add_u32 s67, s67, s68")
        A(f"s_add_u32 s67, s67, {FL_OFF}")
    A(f"s_add_u32 s68, s{NONCE}, {k}")
    A(f"v_lshlrev_b32 {v(t+3)}, {FSH + 4}, v1")
    A(f"v_mov_b32 {v(t+4)}, s68")
    A(f"s_mov_b32 s69, {SPIN}")
    if isinstance(younger, tuple):
        A(f"s_waitcnt vmcnt({younger[2]})")
        A(f"s_cmp_eq_u32 {younger[0]}, {younger[1]}")
        A(f"s_cbranch_scc1 {chk}")
        A("s_waitcnt vmcnt(0)")
    else:
        A(f"s_waitcnt vmcnt({younger})")
    A(f"s_branch {chk}")
    A.label(again)
    A(f"s_sub_u32 s69, s69, 1")
    A(f"s_cmp_eq_u32 s69, 0")
    A(f"s_cbranch_scc1 {L}")
    A(f"v_mov_b32 {v(t)}, 1")
    A(f"v_mov_b32 {v(t+1)}, 0")
    A(f"v_mov_b32 {v(t+2)}, 0")
    A("s_mov_b64 exec, 1")
    A(f"buffer_atomic_add_x2 {v(t,2)}, {v(t+2)}, {WS}, s66 offen sc0")
    A("s_mov_b64 exec, -1")
    A("s_waitcnt vmcnt(0)")
    A.label(chk)
    A(f"v_readfirstlane_b32 s65, {v(t+1)}")
    A(f"v_readfirstlane_b32 s64, {v(t)}")
    A(f"s_cmp_lg_u32 s65, s68")
    A(f"s_cbranch_scc1 {again}")
    A(f"s_cmp_lg_u32 s64, {slast}")
    A(f"s_cbranch_scc1 {L}")
    set_exec((1 << NREP) - 1)
    A(f"buffer_store_dword {v(t+4)}, {v(t+3)}, {WS}, s67 offen sc1")
    A("s_mov_b64 exec, -1")
    A.label(L)

def rnd_pair(a, b, t):
    A(f"v_cvt_pk_bf16_f32 {v(t)}, {v(a)}, {v(b)}")
    A(f"v_lshlrev_b32 {v(a)}, 16, {v(t)}")
    A(f"v_and_b32 {v(b)}, 0xffff0000, {v(t)}")

def sincos(arg, c, sn):
    A(f"v_cos_f32 {v(c)}, {v(arg)}")
    A(f"v_sin_f32 {v(sn)}, {v(arg)}")

def prefetch_weights(t):
    if not opt("pref", 0):
        return
    srd(84, 46, 2211840)
    A(f"v_lshlrev_b32 {v(t)}, 4, v0")
    A(f"s_sub_u32 s60, s2, {C0}")
    for r in range(7):
        Ls, Ld = A.newlabel("Lpf"), A.newlabel("Lpf")
        A(f"s_add_u32 s61, s60, {235 * r}")
        A(f"s_cmp_ge_u32 s61, 1620")
        A(f"s_cbranch_scc1 {Ld}")
        A(f"s_mov_b32 s84, s46")
        A(f"s_and_b32 s85, s47, 0xffff")
        for (lim, p) in ((540, 48), (540, 50)):
            A(f"s_cmp_lt_u32 s61, {lim}")
            A(f"s_cbranch_scc1 {Ls}")
            A(f"s_sub_u32 s61, s61, {lim}")
            A(f"s_mov_b32 s84, s{p}")
            A(f"s_and_b32 s85, s{p+1}, 0xffff")
        A.label(Ls)
        A(f"s_lshl_b32 s61, s61, 12")
        A(f"buffer_load_dwordx4 {v(t+4,4)}, {v(t)}, s[84:87], s61 offen")
        A.label(Ld)

def fb_start(x, d):
    A(f"s_mul_i32 {d}, {x}, 3")
    A(f"s_lshl_b32 s62, {x}, 1")
    A(f"s_add_u32 s62, s62, 3")
    A(f"s_min_u32 {d}, {d}, s62")

def warm_weights(t, first=0, ra=40, rb=54, part=3):
    A("s_and_b32 s61, s2, 7")
    A(f"s_sub_u32 s60, s2, {first}")
    A("s_lshr_b32 s60, s60, 3")
    A(f"v_lshrrev_b32 {v(t)}, 2, v0")
    A(f"v_and_b32 {v(t+1)}, 3, v0")
    A(f"v_min_u32 {v(t)}, {ra - 1}, {v(t)}")
    A(f"s_mul_i32 s64, s60, {ra}")
    A(f"v_add_u32 {v(t)}, s64, {v(t)}")
    A(f"v_min_u32 {v(t)}, 1279, {v(t)}")
    A("s_mul_i32 s63, s61, 7")
    A("s_sub_u32 s63, s63, 1")
    A("s_max_i32 s63, s63, 0")
    A("s_lshl_b32 s63, s63, 6")
    A("s_and_b32 s63, s63, -128")
    A(f"v_lshl_add_u32 {v(t+1)}, {v(t+1)}, 7, s63")
    A(f"s_movk_i32 s64, 3456")
    A(f"v_mad_u32_u24 {v(t+1)}, {v(t)}, s64, {v(t+1)}")
    A(f"v_subrev_u32 {v(t+2)}, {640 * 3456}, {v(t+1)}")
    srd(84, 46, 2211840)
    if part & 1:
        A(f"buffer_load_dword {v(t+3)}, {v(t+1)}, s[84:87], 0 offen")
        A("s_mov_b32 s84, s48")
        A("s_and_b32 s85, s49, 0xffff")
        A(f"buffer_load_dword {v(t+3)}, {v(t+2)}, s[84:87], 0 offen")
    if not part & 2:
        return
    A(f"v_lshrrev_b32 {v(t)}, 1, v0")
    A(f"v_and_b32 {v(t+1)}, 1, v0")
    A(f"v_min_u32 {v(t)}, {rb - 1}, {v(t)}")
    A(f"s_mul_i32 s64, s60, {rb}")
    A(f"v_add_u32 {v(t)}, s64, {v(t)}")
    fb_start("s61", "s63")
    A("s_lshl_b32 s63, s63, 6")
    A("s_and_b32 s63, s63, -128")
    A(f"v_lshl_add_u32 {v(t+1)}, {v(t+1)}, 7, s63")
    A(f"s_movk_i32 s64, 1280")
    A(f"v_mad_u32_u24 {v(t+1)}, {v(t)}, s64, {v(t+1)}")
    A("s_mov_b32 s84, s50")
    A("s_and_b32 s85, s51, 0xffff")
    A(f"buffer_load_dword {v(t+3)}, {v(t+1)}, s[84:87], 0 offen")

def touch(t, base, nbytes):
    if not opt("touch", 0):
        return
    n = (nbytes + 65535) >> 16
    assert n <= 256
    A(f"v_min_u32 {v(t)}, {n - 1}, v0")
    A(f"v_lshlrev_b32 {v(t)}, 16, {v(t)}")
    A(f"s_mov_b32 s60, {base + opt('touchoff', 2624)}")
    A(f"buffer_load_dword {v(t)}, {v(t)}, {WS}, s60 offen")
    A("s_waitcnt vmcnt(0)")

def nonce_load(r):
    A(f"v_mov_b32 {v(r)}, 0")
    A(f"buffer_load_dword {v(r)}, {v(r)}, {WS}, 0 offen")

def nonce_take(r):
    A(f"v_readfirstlane_b32 s{NONCE}, {v(r)}")
    A(f"s_add_u32 s{NONCE}, s{NONCE}, 0x{NONCE_C:x}")

def prologue():
    A(f"s_cmp_ge_u32 s2, {NWG}")
    A("s_cbranch_scc1 L_end")
    A("s_load_dwordx2 s[40:41], s[0:1], 96")
    A("s_load_dwordx2 s[42:43], s[0:1], 0")
    A("s_load_dwordx4 s[44:47], s[0:1], 48")
    A("s_load_dwordx4 s[48:51], s[0:1], 64")
    A("s_load_dwordx4 s[52:55], s[0:1], 80")
    if opt("codepf", 1):
        A("s_getpc_b64 s[60:61]")
        A("s_and_b32 s60, s60, -256")
        A("v_lshlrev_b32 v2, 7, v0")
        A("v_mov_b32 v3, s61")
        A("v_add_co_u32 v2, vcc, s60, v2")
        A("v_addc_co_u32 v3, vcc, 0, v3, vcc")
        A("v_cmp_gt_u32 vcc, CODE_LINES, v0")
        A("s_and_saveexec_b64 s[62:63], vcc")
        A("s_cbranch_execz L_nopf")
        A("global_load_dword v255, v[2:3], off")
        A.label("L_nopf")
        A("s_mov_b64 exec, s[62:63]")
    A("v_lshrrev_b32 v2, 6, v0")
    A("v_and_b32 v1, 63, v0")
    A(f"v_readfirstlane_b32 s{WV}, v2")
    A("s_waitcnt lgkmcnt(0)")
    srd(4, 40, WS_BYTES)
    if DSTAMPS or MSTAMPS:
        srd(92, 54, 256)
    stamp(31, dbg=(0, 0))
    A(f"s_cmp_lt_u32 s2, {C0}")
    A("s_cbranch_scc1 L_roleR")
    A(f"s_cmp_lt_u32 s2, {FA0}")
    A("s_cbranch_scc1 L_roleC")
    A(f"s_cmp_lt_u32 s2, {FB0}")
    A("s_cbranch_scc1 L_roleFa")
    A("s_branch L_roleFb")

B1R, B1I, TWC, TWS, B2R, B2I, WR, INV = 16, 28, 40, 56, 72, 88, 104, 114
X, XN, MM, RS = 116, 136, 156, 158
ACR, ACI, AF1, AF2, AC2R, AC2I = 160, 176, 192, 204, 220, 236
vX, vY0, vY1, vY2, vKX, vLC, vLYW, vLYR, vLWW, vLWR0, vWG, vTA = 2, 3, 4, 5, 6, 7, 8, 9, 10, 11, 14, 15
vTB, vWG1 = 252, 115
sRHO, sA, sS2, sRA, sME, sREP, sXO, sWB, sTB, sP, sS, sQ = 22, 23, 24, 25, 26, 27, 28, 29, 30, 32, 34, 36
sSEL = 80
s32f = 38
sTAU = 39
LDS_Y, LDS_W, LDS_NEW, LDS_KX, LDS_CONST, LDS_RG = 0, 10240, 21504, 31744, 24576, 52224

def reduce_tail(r):
    for k in (8, 4, 2, 1):
        A(f"v_add_f32_dpp {v(r)}, {v(r)}, {v(r)} row_ror:{k} row_mask:0xf bank_mask:0xf")

def tau_of(w, t, scale):
    A(f"v_pk_mul_f32 {v(t,2)}, {v(w,2)}, {v(w,2)}")
    for i in range(2, 10, 2):
        A(f"v_pk_fma_f32 {v(t,2)}, {v(w+i,2)}, {v(w+i,2)}, {v(t,2)}")
    A(f"v_add_f32 {v(t)}, {v(t)}, {v(t+1)}")
    for sw in ("32", "16"):
        A(f"v_mov_b32 {v(t+1)}, {v(t)}")
        A(f"v_permlane{sw}_swap_b32 {v(t)}, {v(t+1)}")
        A(f"v_add_f32 {v(t)}, {v(t)}, {v(t+1)}")
    reduce_tail(t)
    A(f"v_sqrt_f32 {v(t)}, {v(t)}")
    A(f"v_mul_f32 {v(t)}, {f32(scale * opt('tau', 150) / 100)}, {v(t)}")

def ln_stats(xb, t):
    S_, Q_, D0, D1 = t, t + 2, t + 4, t + 6
    A(f"v_readfirstlane_b32 s{sP}, {v(xb)}")
    A(f"v_readfirstlane_b32 s{sP+1}, {v(xb+1)}")
    for i in range(10):
        D = S_ if i == 0 else (D0 if i % 2 else D1)
        A(f"v_pk_add_f32 {v(D,2)}, {v(xb+2*i,2)}, {s(sP,2)} neg_lo:[0,1] neg_hi:[0,1]")
        if i == 0:
            A(f"v_pk_mul_f32 {v(Q_,2)}, {v(D,2)}, {v(D,2)}")
        else:
            A(f"v_pk_add_f32 {v(S_,2)}, {v(S_,2)}, {v(D,2)}")
            A(f"v_pk_fma_f32 {v(Q_,2)}, {v(D,2)}, {v(D,2)}, {v(Q_,2)}")
    A(f"v_permlane32_swap_b32 {v(S_)}, {v(S_+1)}")
    A(f"v_permlane32_swap_b32 {v(Q_)}, {v(Q_+1)}")
    A(f"v_add_f32 {v(S_)}, {v(S_)}, {v(S_+1)}")
    A(f"v_add_f32 {v(Q_)}, {v(Q_)}, {v(Q_+1)}")
    A(f"v_permlane16_swap_b32 {v(S_)}, {v(Q_)}")
    A(f"v_add_f32 {v(S_)}, {v(S_)}, {v(Q_)}")
    reduce_tail(S_)
    A(f"v_readlane_b32 s{sS}, {v(S_)}, 0")
    A(f"v_readlane_b32 s{sS+1}, {v(S_)}, 32")
    A(f"v_readlane_b32 s{sQ}, {v(S_)}, 16")
    A(f"v_readlane_b32 s{sQ+1}, {v(S_)}, 48")
    A(f"v_pk_mul_f32 {v(MM,2)}, {s(sS,2)}, {v(INV,2)} op_sel_hi:[1,0]")
    A(f"v_pk_mul_f32 {v(RS,2)}, {s(sQ,2)}, {v(INV,2)} op_sel_hi:[1,0]")
    A(f"v_pk_fma_f32 {v(RS,2)}, {v(MM,2)}, {v(MM,2)}, {v(RS,2)} neg_lo:[1,0,0] neg_hi:[1,0,0]")
    A(f"v_pk_add_f32 {v(MM,2)}, {v(MM,2)}, {s(sP,2)}")
    A(f"v_max_f32 {v(RS)}, 0, {v(RS)}")
    A(f"v_max_f32 {v(RS+1)}, 0, {v(RS+1)}")
    rnd_pair(RS, RS + 1, D0)
    A(f"v_add_f32 {v(RS)}, {f32(1e-5)}, {v(RS)}")
    A(f"v_add_f32 {v(RS+1)}, {f32(1e-5)}, {v(RS+1)}")
    rnd_pair(RS, RS + 1, D0)
    A(f"v_sqrt_f32 {v(RS)}, {v(RS)}")
    A(f"v_sqrt_f32 {v(RS+1)}, {v(RS+1)}")
    rnd_pair(MM, MM + 1, D1)
    rnd_pair(RS, RS + 1, D0)
    A(f"v_rcp_f32 {v(RS)}, {v(RS)}")
    A(f"v_rcp_f32 {v(RS+1)}, {v(RS+1)}")

def ln_center_scale(xb, zb, t, exact=True):
    for i in range(10):
        A(f"v_pk_add_f32 {v(zb+2*i,2)}, {v(xb+2*i,2)}, {v(MM,2)} neg_lo:[0,1] neg_hi:[0,1]")
        if exact:
            rnd_pair(zb + 2 * i, zb + 2 * i + 1, t + (i % 4))
    for i in range(10):
        A(f"v_pk_mul_f32 {v(zb+2*i,2)}, {v(zb+2*i,2)}, {v(RS,2)}")

def pack_rows(zb, pa, pb):
    for u in range(5):
        A(f"v_cvt_pk_bf16_f32 {v(pa+u)}, {v(zb+4*u)}, {v(zb+4*u+2)}")
        A(f"v_cvt_pk_bf16_f32 {v(pb+u)}, {v(zb+4*u+1)}, {v(zb+4*u+3)}")

def unpack_rows(zb, pa, pb):
    for u in range(5):
        A(f"v_lshlrev_b32 {v(zb+4*u)}, 16, {v(pa+u)}")
        A(f"v_and_b32 {v(zb+4*u+2)}, 0xffff0000, {v(pa+u)}")
        A(f"v_lshlrev_b32 {v(zb+4*u+1)}, 16, {v(pb+u)}")
        A(f"v_and_b32 {v(zb+4*u+3)}, 0xffff0000, {v(pb+u)}")

def store_rows(pa, pa4, pb, pb4, off, sb=sTB):
    A(f"buffer_store_dwordx4 {v(pa,4)}, {v(vTA)}, {WS}, s{sb} offen offset:{off} sc1")
    A(f"buffer_store_dword {v(pa4)}, {v(vTB)}, {WS}, s{sb} offen offset:{off} sc1")
    A(f"buffer_store_dwordx4 {v(pb,4)}, {v(vTA)}, {WS}, s{sb+1} offen offset:{off} sc1")
    A(f"buffer_store_dword {v(pb4)}, {v(vTB)}, {WS}, s{sb+1} offen offset:{off} sc1")

def to_f16(zb, t, sub=None):
    for i in range(10):
        if EXACT:
            rnd_pair(zb + 2 * i, zb + 2 * i + 1, t + (i % 4))
        if sub is not None:
            A(f"v_fma_mix_f32 {v(zb+2*i)}, {v(sub(i))}, -1.0, {v(zb+2*i)} op_sel:[0,0,0] op_sel_hi:[1,0,0]")
            A(f"v_fma_mix_f32 {v(zb+2*i+1)}, {v(sub(i))}, -1.0, {v(zb+2*i+1)} op_sel:[1,0,0] op_sel_hi:[1,0,0]")
        A(f"v_cvt_pk_f16_f32 {v(AF1+i)}, {v(zb+2*i)}, {v(zb+2*i+1)}")

def row_dft(t, shadow1=None, shadow2=None):
    for kk in range(3):
        c = "0" if kk == 0 else None
        A(f"v_mfma_f32_32x32x16_f16 {v(ACR,16)}, {v(AF1+4*kk,4)}, {v(B1R+4*kk,4)}, {c or v(ACR,16)}")
        A(f"v_mfma_f32_32x32x16_f16 {v(ACI,16)}, {v(AF1+4*kk,4)}, {v(B1I+4*kk,4)}, {c or v(ACI,16)}")
    if shadow1:
        shadow1()
    for kk in range(4):
        for i in (4 * kk, 4 * kk + 2):
            pr, pi = t + (i % 4) * 2, t + (i % 4) * 2 + 2
            A(f"v_pk_mul_f32 {v(pr,2)}, {v(ACR+i,2)}, {v(TWC+i,2)}")
            A(f"v_pk_mul_f32 {v(pi,2)}, {v(ACI+i,2)}, {v(TWC+i,2)}")
            A(f"v_pk_fma_f32 {v(pr,2)}, {v(ACI+i,2)}, {v(TWS+i,2)}, {v(pr,2)}")
            A(f"v_pk_fma_f32 {v(pi,2)}, {v(ACR+i,2)}, {v(TWS+i,2)}, {v(pi,2)} neg_lo:[1,0,0] neg_hi:[1,0,0]")
            A(f"v_cvt_pk_f16_f32 {v(AF2+i)}, {v(pr)}, {v(pi)}")
            A(f"v_cvt_pk_f16_f32 {v(AF2+i+1)}, {v(pr+1)}, {v(pi+1)}")
        c = "0" if kk == 0 else None
        A(f"v_mfma_f32_32x32x16_f16 {v(AC2R,16)}, {v(AF2+4*kk,4)}, {v(B2R+4*kk,4)}, {c or v(AC2R,16)}")
        A(f"v_mfma_f32_32x32x16_f16 {v(AC2I,16)}, {v(AF2+4*kk,4)}, {v(B2I+4*kk,4)}, {c or v(AC2I,16)}")
    if shadow2:
        shadow2()

def W_stores(layer, r0, r1, r2, lds=True):
    L = A.newlabel("Lw2")
    A(f"s_add_u32 s60, s{sWB}, {W_OFF + layer * W_SZ}")
    A(f"s_add_u32 s62, s60, {8192 + 112}")
    if lds:
        A("s_waitcnt lgkmcnt(2)")
    A(f"buffer_store_dwordx4 {v(r0,4)}, {v(vWG)}, {WS}, s60 offen sc1")
    if lds:
        A("s_waitcnt lgkmcnt(0)")
    A(f"buffer_store_dwordx4 {v(r1,4)}, {v(vWG1)}, {WS}, s60 offen sc1")
    A(f"s_cmp_ge_u32 s{WV}, 2")
    A(f"s_cbranch_scc1 {L}")
    if lds:
        A(f"ds_read2st64_b32 {v(r2,2)}, {v(vLWR0+2)} offset0:0 offset1:11")
        A(f"ds_read2st64_b32 {v(r2+2,2)}, {v(vLWR0+2)} offset0:22 offset1:33")
        A("s_waitcnt lgkmcnt(0)")
    A(f"buffer_store_dwordx4 {v(r2,4)}, {v(vWG)}, {WS}, s62 offen sc1")
    A.label(L)

def write_W(layer):
    k = 2 * layer
    for i in range(10):
        A(f"v_cvt_pk_f16_f32 {v(ACR+i)}, {v(AC2R+i)}, {v(AC2I+i)}")
        A(f"ds_write_b32 {v(vLWW)}, {v(ACR+i)} offset:{4*i}")
    A("s_waitcnt lgkmcnt(0)")
    A("s_barrier")
    for j in range(2):
        A(f"ds_read2st64_b32 {v(ACI+4*j,2)}, {v(vLWR0+j)} offset0:0 offset1:11")
        A(f"ds_read2st64_b32 {v(ACI+4*j+2,2)}, {v(vLWR0+j)} offset0:22 offset1:33")
    if EARLY_R == 0:
        arrive_issue(k, sME, AF2)
    W_stores(layer, ACI, ACI + 4, ACI + 8)
    if EARLY_R == 0:
        arrive_finish(k, sME, 15, AF2, 3)
    if layer == 1 and DRAIN2:
        A("s_waitcnt vmcnt(0)")
        A("s_barrier")
        arrive_issue(k, sME, AF2)
        arrive_finish(k, sME, 15, AF2, 0)

def stage_Y(layer, first=None):
    c0, c1, c2, t = ACR, ACR + 4, ACR + 8, ACR + 16
    loop, L2, L4, L5, done = [A.newlabel("Ly") for _ in range(5)]
    A(f"s_mov_b32 s60, {Y_OFF + layer * Y_SZ}")
    A(f"s_mov_b32 s62, {SPIN}")
    for k in range(4):
        A(f"v_mov_b32 {v(c2+k)}, 0")
    if first:
        first()
    A.label(loop)
    A(f"buffer_load_dwordx4 {v(c0,4)}, {v(vY0)}, {WS}, s60 offen sc1")
    A(f"buffer_load_dwordx4 {v(c1,4)}, {v(vY1)}, {WS}, s60 offen sc1")
    A(f"s_cmp_ge_u32 s{WV}, 2")
    A(f"s_cbranch_scc1 {L2}")
    A(f"buffer_load_dwordx4 {v(c2,4)}, {v(vY2)}, {WS}, s60 offen sc1")
    A.label(L2)
    A("s_waitcnt vmcnt(0)")
    if layer == 0 or not DRAIN2:
        any_sentinel(range(c0, c0 + 12), t, done)
        spin_tail(loop, 62, 2)
    A.label(done)
    A(f"ds_write2st64_b32 {v(vLYW)}, {v(c0)}, {v(c0+1)} offset0:0 offset1:10")
    A(f"ds_write2st64_b32 {v(vLYW)}, {v(c0+2)}, {v(c0+3)} offset0:20 offset1:30")
    A(f"s_cmp_eq_u32 s{WV}, 0")
    A(f"s_cbranch_scc1 {L4}")
    for k in range(4):
        A(f"v_alignbit_b32 {v(t+k)}, {v(c1+3-k)}, {v(c1+3-k)}, 16")
    for k in range(4):
        A(f"v_mov_b32 {v(c1+k)}, {v(t+k)}")
    A.label(L4)
    A(f"ds_write2st64_b32 {v(vLYW)}, {v(c1)}, {v(c1+1)} offset0:4 offset1:14")
    A(f"ds_write2st64_b32 {v(vLYW)}, {v(c1+2)}, {v(c1+3)} offset0:24 offset1:34")
    A(f"s_cmp_ge_u32 s{WV}, 2")
    A(f"s_cbranch_scc1 {L5}")
    for k in range(4):
        A(f"v_alignbit_b32 {v(t+k)}, {v(c2+3-k)}, {v(c2+3-k)}, 16")
    A(f"ds_write2st64_b32 {v(vLYW)}, {v(t)}, {v(t+1)} offset0:8 offset1:18")
    A(f"ds_write2st64_b32 {v(vLYW)}, {v(t+2)}, {v(t+3)} offset0:28 offset1:38")
    A.label(L5)
    A("s_waitcnt lgkmcnt(0)")
    A("s_barrier")

def router_publish(layer, t, pa, pb):
    R_ = t
    for i in range(10):
        os_ = i & 1
        wv = v(WR + (i & ~1), 2)
        if i == 0:
            A(f"v_pk_mul_f32 {v(R_,2)}, {v(XN,2)}, {wv} op_sel:[0,{os_}] op_sel_hi:[1,{os_}]")
        else:
            A(f"v_pk_fma_f32 {v(R_,2)}, {v(XN+2*i,2)}, {wv}, {v(R_,2)} op_sel:[0,{os_},0] op_sel_hi:[1,{os_},1]")
    A(f"v_permlane32_swap_b32 {v(R_)}, {v(R_+1)}")
    A(f"v_add_f32 {v(R_)}, {v(R_)}, {v(R_+1)}")
    A(f"v_mov_b32 {v(R_+1)}, {v(R_)}")
    A(f"v_permlane16_swap_b32 {v(R_)}, {v(R_+1)}")
    A(f"v_add_f32 {v(R_)}, {v(R_)}, {v(R_+1)}")
    reduce_tail(R_)
    A(f"v_cmp_le_f32 vcc, s{sTAU}, {v(R_)}")
    A(f"v_readlane_b32 s71, {v(R_)}, 32")
    A("s_mov_b64 s[56:57], vcc")
    for row, (p_, half) in enumerate(((pa, "vcc_lo"), (pb, "vcc_hi"))):
        Lr = A.newlabel("Lcand")
        A(f"s_cmp_eq_u32 {half}, 0")
        A(f"s_cbranch_scc1 {Lr}")
        A(f"buffer_store_dwordx4 {v(p_,4)}, {v(vTA)}, {WS}, s{sTB+row} offen sc1")
        A(f"buffer_store_dword {v(p_+4)}, {v(vTB)}, {WS}, s{sTB+row} offen sc1")
        A.label(Lr)
    A(f"s_lshl_b32 s70, s{WV}, 2")
    A(f"s_add_u32 s70, s70, {LDS_RG}")
    A(f"v_mov_b32 {v(R_+2)}, s70")
    A(f"v_cvt_pk_bf16_f32 {v(R_)}, {v(R_)}, s71")
    A(f"v_lshrrev_b32 {v(R_+1)}, 15, {v(R_)}")
    A(f"v_and_b32 {v(R_+1)}, 0x10001, {v(R_+1)}")
    A(f"v_mul_u32_u24 {v(R_+1)}, 0x7fff, {v(R_+1)}")
    A(f"v_or_b32 {v(R_+1)}, 0x80008000, {v(R_+1)}")
    A(f"v_xor_b32 {v(R_)}, {v(R_)}, {v(R_+1)}")
    A(f"v_min_u32 {v(R_)}, -2, {v(R_)}")
    A("s_mov_b64 exec, 1")
    A(f"ds_write_b32 {v(R_+2)}, {v(R_)}")
    A("s_mov_b64 exec, -1")
    A("s_waitcnt vmcnt(0) lgkmcnt(0)")
    A("s_barrier")
    L = A.newlabel("Lrp")
    A(f"s_cmp_lg_u32 s{WV}, 0")
    A(f"s_cbranch_scc1 {L}")
    A(f"ds_read_b128 {v(R_+4,4)}, {v(R_+2)}")
    A(f"v_lshlrev_b32 {v(R_+2)}, {RSH + 8}, v1")
    A(f"s_lshl_b32 s73, s{sRHO}, {RSH}")
    A(f"s_add_u32 s73, s73, {RG_OFF + layer * NRR * RG_REP}")
    set_exec((1 << NRR) - 1)
    A("s_waitcnt lgkmcnt(0)")
    A(f"buffer_store_dwordx4 {v(R_+4,4)}, {v(R_+2)}, {WS}, s73 offen sc1")
    A("s_mov_b64 exec, -1")
    A.label(L)

def roleR():
    A.label("L_roleR")
    prio(2)
    srd(8, 42, 2621440)
    A("s_and_b32 s60, s2, 7")
    A("s_lshr_b32 s61, s2, 3")
    A(f"s_lshr_b32 s{sA}, s61, 3")
    A("s_and_b32 s61, s61, 7")
    A("s_lshl_b32 s60, s60, 3")
    A("s_sub_u32 s62, 56, s60")
    A(f"s_cmp_lt_u32 s{sA}, 2")
    A("s_cselect_b32 s60, s60, s62")
    A(f"s_add_u32 s{sS2}, s60, s61")
    A(f"s_lshl_b32 s60, s{sA}, 9")
    A(f"s_lshl_b32 s61, s{WV}, 7")
    A(f"s_add_u32 s{sRA}, s60, s61")
    A(f"s_add_u32 s{sRA}, s{sRA}, s{sS2}")
    A(f"s_mul_i32 s{sXO}, s{sRA}, 1280")
    A(f"s_add_u32 s63, s{sXO}, {64 * 1280}")
    T = ACR
    n, h = T, T + 1
    A(f"v_and_b32 {v(n)}, 31, v1")
    A(f"v_lshrrev_b32 {v(h)}, 5, v1")
    A(f"v_mul_u32_u24 {v(vX)}, 640, {v(h)}")
    A(f"v_lshl_add_u32 {v(vX)}, {v(n)}, 1, {v(vX)}")
    for i in range(10):
        A(f"v_mov_b32 {v(X+2*i)}, 0")
        A(f"v_mov_b32 {v(X+2*i+1)}, 0")
        A(f"buffer_load_short_d16_hi {v(X+2*i)}, {v(vX)}, {SRD1}, s{sXO} offen offset:{64*i}")
        A(f"buffer_load_short_d16_hi {v(X+2*i+1)}, {v(vX)}, {SRD1}, s63 offen offset:{64*i}")
    NV = XN
    nonce_load(NV)
    ONES = XN + 4
    A(f"s_lshl_b32 s{sRHO}, s{sA}, 6")
    A(f"s_add_u32 s{sRHO}, s{sRHO}, s{sS2}")
    A(f"s_mul_i32 s{sWB}, s{sRHO}, {WROW}")
    for k in range(4):
        A(f"v_mov_b32 {v(ONES+k)}, -1")
    A(f"v_lshlrev_b32 {v(vWG)}, 4, v0")
    A(f"v_add_u32 {v(vWG1)}, {4096 + 112}, {v(vWG)}")
    A(f"v_add_u32 {v(T+2)}, 4096, {v(vWG)}")
    A(f"v_cmp_gt_u32 vcc, 65, v0")
    A(f"v_cndmask_b32 {v(vWG1)}, {v(vWG1)}, {v(T+2)}, vcc")
    A(f"v_lshlrev_b32 {v(T+4)}, 3, v0")
    A(f"s_lshl_b32 s61, s{sRHO}, 11")
    A(f"s_add_u32 s61, s61, {RESET_OFF}")
    A(f"buffer_store_dwordx2 {v(ONES,2)}, {v(T+4)}, {WS}, s61 offen sc1")
    W_stores(0, ONES, ONES, ONES, lds=False)
    PREFR = opt("prefr", 0)
    if PREFR == 1:
        warm_weights(AC2R)
    e1, e1s, base, arg, c_, s_ = T + 6, T + 7, T + 8, T + 9, T + 10, T + 11
    hf_, wf, lc = T + 12, T + 13, T + 14
    G0 = T + 16
    A(f"v_bfe_u32 {v(e1)}, {v(n)}, 2, 1")
    A(f"v_mul_u32_u24 {v(e1)}, 10, {v(e1)}")
    A(f"v_and_b32 {v(arg)}, 3, {v(n)}")
    A(f"v_add_u32 {v(e1)}, {v(e1)}, {v(arg)}")
    A(f"v_lshrrev_b32 {v(arg)}, 3, {v(n)}")
    A(f"v_lshl_add_u32 {v(e1)}, {v(arg)}, 2, {v(e1)}")
    A(f"v_cvt_f32_u32 {v(e1)}, {v(e1)}")
    A(f"v_cvt_f32_u32 {v(hf_)}, {v(h)}")
    A(f"v_cvt_f32_u32 {v(wf)}, s{WV}")
    A(f"s_lshl_b32 s60, s{WV}, 10")
    A(f"s_add_u32 s60, s60, {LDS_CONST}")
    A(f"v_lshl_add_u32 {v(lc)}, v1, 4, s60")
    A(f"v_mul_f32 {v(e1s)}, {f32(1/20)}, {v(e1)}")
    A(f"v_mul_f32 {v(base)}, {f32(10.0)}, {v(hf_)}")
    A(f"v_fma_f32 {v(base)}, 4.0, {v(wf)}, {v(base)}")
    A(f"v_mul_f32 {v(base)}, {v(e1s)}, {v(base)}")
    A(f"s_cmp_lt_u32 s{WV}, 2")
    A(f"s_cselect_b64 s[64:65], -1, 0")
    for r in range(4):
        A(f"v_fmamk_f32 {v(arg)}, {v(e1s)}, {f32(r)}, {v(base)}")
        sincos(arg, c_, s_)
        A(f"v_cvt_pk_f16_f32 {v(G0+r)}, {v(c_)}, {v(s_)}")
        A(f"v_cvt_pk_f16_f32 {v(G0+4+r)}, -{v(s_)}, {v(c_)}")
        if r >= 2:
            A(f"v_cndmask_b32 {v(G0+r)}, 0, {v(G0+r)}, s[64:65]")
            A(f"v_cndmask_b32 {v(G0+4+r)}, 0, {v(G0+4+r)}, s[64:65]")
    A(f"ds_write_b128 {v(lc)}, {v(G0,4)}")
    A(f"ds_write_b128 {v(lc)}, {v(G0+4,4)} offset:4096")
    A(f"v_mul_f32 {v(wf)}, {f32(8.0)}, {v(wf)}")
    A(f"v_fma_f32 {v(wf)}, 4.0, {v(hf_)}, {v(wf)}")
    A(f"v_mul_f32 {v(e1s)}, {f32(1/640)}, {v(e1)}")
    A(f"v_mul_f32 {v(base)}, {v(e1s)}, {v(wf)}")
    for r in range(4):
        A(f"v_fmamk_f32 {v(arg)}, {v(e1s)}, {f32(r)}, {v(base)}")
        sincos(arg, G0 + 8 + r, G0 + 12 + r)
    A(f"ds_write_b128 {v(lc)}, {v(G0+8,4)} offset:8192")
    A(f"ds_write_b128 {v(lc)}, {v(G0+12,4)} offset:12288")
    A(f"v_cvt_f32_u32 {v(e1s)}, {v(n)}")
    A(f"v_mul_f32 {v(e1s)}, {f32(1/32)}, {v(e1s)}")
    A(f"v_mul_f32 {v(base)}, {v(e1s)}, {v(wf)}")
    for r in range(4):
        A(f"v_fmamk_f32 {v(arg)}, {v(e1s)}, {f32(r)}, {v(base)}")
        sincos(arg, c_, s_)
        A(f"v_cvt_pk_f16_f32 {v(G0+16+r)}, {v(c_)}, {v(s_)}")
        A(f"v_cvt_pk_f16_f32 {v(G0+20+r)}, -{v(s_)}, {v(c_)}")
    A(f"ds_write_b128 {v(lc)}, {v(G0+16,4)} offset:16384")
    A(f"ds_write_b128 {v(lc)}, {v(G0+20,4)} offset:20480")
    A(f"v_mov_b32 {v(AF1+10)}, 0")
    A(f"v_mov_b32 {v(AF1+11)}, 0")
    A(f"v_lshlrev_b32 {v(vLC)}, 4, v1")
    A(f"v_add_u32 {v(vLC)}, {LDS_CONST}, {v(vLC)}")
    A(f"v_mov_b32 {v(INV)}, {f32(1/640)}")
    A(f"s_mov_b32 s{s32f}, {f32(32.0)}")
    A(f"s_and_b32 s{sME}, s2, 15")
    A(f"v_mul_u32_u24 {v(vLWW)}, 21, {v(n)}")
    A(f"v_mad_u32_u24 {v(vLWW)}, {v(h)}, 10, {v(vLWW)}")
    A(f"s_mul_i32 s60, s{WV}, 704")
    A(f"s_add_u32 s60, s60, {LDS_W // 4}")
    A(f"v_add_lshl_u32 {v(vLWW)}, {v(vLWW)}, s60, 2")
    A("s_waitcnt lgkmcnt(0)")
    A("s_barrier")
    for (dst, ng, off) in ((B1R, 3, 0), (B1I, 3, 4096), (TWC, 4, 8192), (TWS, 4, 12288)):
        for gq in range(ng):
            A(f"ds_read_b128 {v(dst+4*gq,4)}, {v(vLC)} offset:{off + 1024*gq}")
    for j in range(3):
        A(f"v_add_u32 {v(arg)}, {256*j}, v0")
        A(f"v_mul_u32_u24 {v(c_)}, 3277, {v(arg)}")
        A(f"v_lshrrev_b32 {v(c_)}, 16, {v(c_)}")
        A(f"v_add_u32 {v(arg)}, {v(arg)}, {v(c_)}")
        A(f"v_lshlrev_b32 {v(arg)}, 2, {v(arg)}")
        A(f"v_add_u32 {v(vLWR0+j)}, {LDS_W}, {v(arg)}")
    A(f"v_lshlrev_b32 {v(vTA)}, 4, v1")
    A(f"v_lshlrev_b32 {v(vTB)}, 2, v1")
    A(f"v_add_u32 {v(vTB)}, 1024, {v(vTB)}")
    A(f"s_mul_i32 s{sTB}, s{sRA}, {T_REC}")
    A(f"s_add_u32 s{sTB}, s{sTB}, {T_OFF}")
    A(f"s_add_u32 s{sTB+1}, s{sTB}, {64 * T_REC}")
    stamp(0, dbg=(1, 0))
    ARV = 204
    A(f"s_waitcnt vmcnt({6 if PREFR == 1 else 3})")
    nonce_take(NV)
    stamp(10, dbg=(2, 0))
    if EARLY_R == 2:
        arrive_issue(0, sME, ARV)
    ln_stats(X, ACR)
    for (dst, ng, off) in ((B2R, 4, 16384), (B2I, 4, 20480)):
        for gq in range(ng):
            A(f"ds_read_b128 {v(dst+4*gq,4)}, {v(vLC)} offset:{off + 1024*gq}")
    ln_center_scale(X, XN, ACR, EXACT)
    to_f16(XN, ACR)
    A("s_waitcnt vmcnt(0) lgkmcnt(0)")
    A("s_barrier")
    arrive_issue(0, sME, XN + 8)
    def fill_xn1():
        for k in range(4):
            A(f"v_mov_b32 {v(XN+16+k)}, -1")
        store_rows(XN + 16, XN + 16, XN + 16, XN + 16, 0)
    row_dft(XN, None, lambda: arrive_finish(0, sME, 15, XN + 8, 0))
    stamp(11)
    write_W(0)
    stamp(1, dbg=(3, 0))
    if PREFR == 2:
        warm_weights(AC2R)
    srd(12, 52, 2621440)
    srd(16, 44, 1280)
    for i in range(10):
        A(f"v_mov_b32 {v(WR+i)}, 0")
        A(f"buffer_load_short_d16_hi {v(WR+i)}, {v(vX)}, {SRD3}, 0 offen offset:{64*i}")
    A(f"v_and_b32 {v(n)}, 31, v1")
    A(f"v_lshrrev_b32 {v(h)}, 5, v1")
    A(f"v_lshlrev_b32 {v(vLYW)}, 2, v0")
    A(f"v_mul_u32_u24 {v(vLYR)}, 320, {v(h)}")
    A(f"s_mul_i32 s60, s{WV}, 640")
    A(f"v_add3_u32 {v(vLYR)}, {v(vLYR)}, {v(n)}, s60")
    A(f"v_lshlrev_b32 {v(vLYR)}, 2, {v(vLYR)}")
    A(f"s_sub_u32 s60, 3, s{sA}")
    A(f"s_lshl_b32 s60, s60, 6")
    A(f"s_sub_u32 s61, 64, s{sS2}")
    A(f"s_add_u32 s60, s60, s61")
    A(f"s_lshl_b32 s60, s60, 4")
    A(f"s_lshl_b32 s61, s{sA}, 4")
    A(f"s_add_u32 s61, s61, {YM_OFF}")
    A(f"s_cmp_eq_u32 s{sS2}, 0")
    A(f"s_cselect_b32 s60, s61, s60")
    A(f"s_cselect_b32 s61, 6, 12")
    A(f"s_lshl_b32 s62, s{sRHO}, 4")
    A(f"v_lshlrev_b32 {v(vY0)}, 12, v0")
    A(f"v_add_u32 {v(vY0)}, s62, {v(vY0)}")
    A(f"v_sub_u32 {v(arg)}, 384, v0")
    A(f"v_lshlrev_b32 {v(arg)}, s61, {v(arg)}")
    A(f"v_add_u32 {v(vY1)}, s60, {v(arg)}")
    A(f"v_add_u32 {v(c_)}, {256 << 12}, {v(vY0)}")
    A(f"v_cmp_gt_u32 vcc, 64, v0")
    A(f"v_cndmask_b32 {v(vY1)}, {v(vY1)}, {v(c_)}, vcc")
    A(f"v_sub_u32 {v(arg)}, 128, v0")
    A(f"v_and_b32 {v(arg)}, 0xff, {v(arg)}")
    A(f"v_lshlrev_b32 {v(arg)}, s61, {v(arg)}")
    A(f"v_add_u32 {v(vY2)}, s60, {v(arg)}")
    A(f"s_mul_i32 s60, s{WV}, 5120")
    A(f"s_add_u32 s60, s60, {LDS_KX}")
    A(f"v_lshl_add_u32 {v(vKX)}, v1, 4, s60")
    A(f"s_and_b32 s{sREP}, s2, {NREP - 1}")
    A(f"s_lshl_b32 s{sREP}, s{sREP}, {FSH + 4}")
    A("s_waitcnt vmcnt(0)")
    tau_of(WR, ACR, 1.0)
    A(f"v_readfirstlane_b32 s{sTAU}, {v(ACR)}")
    if opt("touch", 0) > 1:
        touch(ACR, Y_OFF, 2 * Y_SZ)
    poll_flags(1, sREP, ACR)
    stamp(2, dbg=(7, 0))
    stage_Y(0)
    stamp(13)
    if not DRAIN2:
        for k in range(4):
            A(f"v_mov_b32 {v(AF2+k)}, -1")
        W_stores(1, AF2, AF2, AF2, lds=False)
    for i in range(10):
        A(f"ds_read_b32 {v(ACI+i)}, {v(vLYR)} offset:{128*i}")
    for i in range(10):
        A(f"s_waitcnt lgkmcnt({9-i})")
        A(f"v_fma_mix_f32 {v(X+2*i)}, {v(ACI+i)}, s{s32f}, {v(X+2*i)} op_sel:[0,0,0] op_sel_hi:[1,0,0]")
        A(f"v_fma_mix_f32 {v(X+2*i+1)}, {v(ACI+i)}, s{s32f}, {v(X+2*i+1)} op_sel:[1,0,0] op_sel_hi:[1,0,0]")
    PA, PB = AC2R, AC2R + 8
    pack_rows(X, PA, PB)
    unpack_rows(X, PA, PB)
    A(f"ds_write_b128 {v(vKX)}, {v(PA,4)} offset:2048")
    A(f"ds_write_b128 {v(vKX)}, {v(PB,4)} offset:3072")
    A(f"v_mov_b32 {v(PA+6)}, {v(PA+4)}")
    A(f"v_mov_b32 {v(PA+7)}, {v(PB+4)}")
    ln_stats(X, ACR)
    ln_center_scale(X, XN, ACR)
    pack_rows(XN, PA + 16, PB + 16)
    A("s_waitcnt vmcnt(0)")
    unpack_rows(XN, PA + 16, PB + 16)
    stamp(14)
    router_publish(0, ACI, PA + 16, PB + 16)
    stamp(3, dbg=(8, 0))
    A(f"v_mov_b32 {v(PA+4)}, {v(PA+20)}")
    A(f"v_mov_b32 {v(PA+5)}, {v(PB+20)}")
    A(f"ds_write_b128 {v(vKX)}, {v(PA+16,4)}")
    A(f"ds_write_b128 {v(vKX)}, {v(PB+16,4)} offset:1024")
    A(f"ds_write_b128 {v(vKX)}, {v(PA+4,4)} offset:4096")
    if EARLY_R == 2:
        arrive_issue(2, sME, ARV)
    for i in range(10):
        A(f"v_pk_add_f32 {v(X+2*i,2)}, {v(X+2*i,2)}, {v(XN+2*i,2)}")
        rnd_pair(X + 2 * i, X + 2 * i + 1, ACR + (i % 4))
    ln_stats(X, ACR)
    ln_center_scale(X, XN, ACR + 8, EXACT)
    to_f16(XN, ACR + 8)
    if EARLY_R == 2:
        arrive_finish(2, sME, 15, ARV, 0)
    if not DRAIN2:
        arrive_issue(2, sME, XN + 14)
    row_dft(XN, None, (lambda: arrive_finish(2, sME, 15, XN + 14, 0)) if not DRAIN2 else None)
    stamp(16)
    if not opt("wlate", 0):
        write_W(1)
    stamp(4)
    A(f"s_mov_b32 s74, {X2_OFF}")
    def release(layer, row, stash, with_xn):
        R0 = ACR
        if stash:
            A(f"ds_read_b128 {v(R0,4)}, {v(vKX)} offset:{2048+1024*row}")
            A(f"ds_read_b128 {v(R0+8,4)}, {v(vKX)} offset:4096")
            if with_xn:
                A(f"ds_read_b128 {v(R0+12,4)}, {v(vKX)} offset:{1024*row}")
            x4, x1, n4, n1 = R0, R0 + 10 + row, R0 + 12, R0 + 8 + row
        else:
            P_ = PA if row == 0 else PB
            x4, x1, n4, n1 = P_, P_ + 4, P_ + 16, P_ + 20
        A(f"s_add_u32 s61, s{NONCE}, {6 + layer}")
        A(f"v_mov_b32 {v(R0+4)}, {v(MM+row)}")
        A(f"v_mov_b32 {v(R0+5)}, {v(RS+row)}")
        A(f"v_mov_b32 {v(R0+6)}, s61")
        A(f"v_mov_b32 {v(R0+7)}, s61")
        A("s_waitcnt lgkmcnt(0)")
        if with_xn:
            A(f"buffer_store_dwordx4 {v(n4,4)}, {v(vTA)}, {WS}, s{sTB+row} offen sc1")
            A(f"buffer_store_dword {v(n1)}, {v(vTB)}, {WS}, s{sTB+row} offen sc1")
        A(f"buffer_store_dwordx4 {v(x4,4)}, {v(vTA)}, {WS}, s{sTB+row} offen offset:1280 sc1")
        A(f"buffer_store_dword {v(x1)}, {v(vTB)}, {WS}, s{sTB+row} offen offset:1280 sc1")
        A("s_waitcnt vmcnt(0)")
        A("s_mov_b64 exec, 1")
        A(f"buffer_store_dwordx4 {v(R0+4,4)}, {v(vTA)}, {WS}, s{sTB+row} offen offset:2560 sc1")
        A("s_mov_b64 exec, -1")
    def release_candidates(layer, stash):
        for row in range(2):
            Ln = A.newlabel("Lrel")
            A(f"s_cmp_eq_u32 s{56+row}, 0")
            A(f"s_cbranch_scc1 {Ln}")
            release(layer, row, stash, False)
            A.label(Ln)
    def wait_sel(layer, stash):
        loop, done = A.newlabel("Lsel"), A.newlabel("Lseld")
        T2 = ACR + 16
        A(f"s_mov_b32 s60, {X2_OFF + SEL_OFF + 256 * layer}")
        A(f"v_and_b32 {v(T2)}, 7, v1")
        A(f"v_lshlrev_b32 {v(T2)}, 2, {v(T2)}")
        A(f"s_mov_b32 s62, {SPIN}")
        A.label(loop)
        A(f"buffer_load_dword {v(T2+1)}, {v(T2)}, {WS}, s60 offen sc1")
        A("s_waitcnt vmcnt(0)")
        A(f"v_cmp_eq_u32 vcc, -1, {v(T2+1)}")
        A(f"s_cbranch_vccz {done}")
        spin_tail(loop, 62, 4)
        A.label(done)
        for j in range(8):
            A(f"v_readlane_b32 s{sSEL+j}, {v(T2+1)}, {j}")
        for row in range(2):
            A(f"s_add_u32 s60, s{sRA}, {64 * row}")
            A(f"s_mov_b32 s{76+row}, -1")
            for j in range(8):
                A(f"s_cmp_eq_u32 s60, s{sSEL+j}")
                A(f"s_cselect_b32 s{76+row}, {j}, s{76+row}")
            Ln = A.newlabel("Lpush")
            A(f"s_cmp_lt_i32 s{76+row}, 0")
            A(f"s_cbranch_scc1 {Ln}")
            A(f"s_cmp_lg_u32 s{56+row}, 0")
            A(f"s_cbranch_scc1 {Ln}")
            release(layer, row, stash, True)
            A.label(Ln)
    release_candidates(0, True)
    wait_sel(0, True)
    if opt("wlate", 0):
        write_W(1)
    A(f"s_add_u32 s{sTB}, s{sTB}, {T_SZ}")
    A(f"s_add_u32 s{sTB+1}, s{sTB+1}, {T_SZ}")
    stamp(5)
    CU, CV = XN + 12, XN + 16
    tr, ca, sa, cb, sb, ar, t0, t1_ = ACR, ACR + 1, ACR + 2, ACR + 3, ACR + 4, ACR + 5, ACR + 6, ACR + 7
    A(f"v_and_b32 {v(tr)}, 1, v1")
    A(f"v_lshlrev_b32 {v(tr)}, 6, {v(tr)}")
    A(f"v_add_u32 {v(tr)}, s{sRA}, {v(tr)}")
    A(f"s_mov_b32 s64, 0x00300003")
    A(f"s_mov_b32 s65, 0x30000300")
    for p in range(4):
        for (j, cc, ss) in ((2 * p, ca, sa), (2 * p + 1, cb, sb)):
            A(f"v_mul_u32_u24 {v(ar)}, s{sSEL+j}, {v(tr)}")
            A(f"v_and_b32 {v(ar)}, 0x7ff, {v(ar)}")
            A(f"v_cvt_f32_u32 {v(ar)}, {v(ar)}")
            A(f"v_mul_f32 {v(ar)}, {f32(1/2048)}, {v(ar)}")
            sincos(ar, cc, ss)
        A(f"v_sub_f32 {v(t0)}, {v(ca)}, {v(sb)}")
        A(f"v_add_f32 {v(t1_)}, {v(sa)}, {v(cb)}")
        A(f"v_mul_f32 {v(t0)}, 0.5, {v(t0)}")
        A(f"v_mul_f32 {v(t1_)}, 0.5, {v(t1_)}")
        A(f"v_cvt_pk_f16_f32 {v(CU+p)}, {v(t0)}, {v(t1_)}")
        A(f"v_add_f32 {v(t0)}, {v(ca)}, {v(sb)}")
        A(f"v_sub_f32 {v(t1_)}, {v(cb)}, {v(sa)}")
        A(f"v_mul_f32 {v(t0)}, 0.5, {v(t0)}")
        A(f"v_mul_f32 {v(t1_)}, 0.5, {v(t1_)}")
        A(f"v_cvt_pk_f16_f32 {v(CV+p)}, {v(t0)}, {v(t1_)}")
        A(f"v_cndmask_b32 {v(CU+p)}, 0, {v(CU+p)}, s[64:65]")
        A(f"v_cndmask_b32 {v(CV+p)}, 0, {v(CV+p)}, s[64:65]")
    vE0, vDF, vDM, vP2, vNW = vLWW, vLWR0, vLWR0 + 1, vLWR0 + 2, vWG
    n, h = ACR + 8, ACR + 9
    A(f"v_and_b32 {v(n)}, 31, v1")
    A(f"v_lshrrev_b32 {v(h)}, 5, v1")
    A(f"v_mul_u32_u24 {v(vE0)}, 20, {v(n)}")
    A(f"v_mad_u32_u24 {v(vE0)}, {v(h)}, 10, {v(vE0)}")
    vER = vKX
    A(f"v_and_b32 {v(vER)}, 31, {v(vE0)}")
    A(f"v_lshrrev_b32 {v(vDF)}, 5, {v(vE0)}")
    A(f"s_lshl_b32 s60, s{WV}, 2")
    A(f"s_add_u32 s60, s60, {LDS_W}")
    A(f"v_add_u32 {v(vE0)}, {v(vE0)}, {v(vDF)}")
    A(f"v_lshl_add_u32 {v(vE0)}, {v(vE0)}, 4, s60")
    A(f"v_mul_u32_u24 {v(vDF)}, 330, {v(h)}")
    A(f"v_add_u32 {v(vDF)}, {v(vDF)}, {v(n)}")
    A(f"v_sub_u32 {v(vDM)}, 362, {v(vDF)}")
    A(f"v_lshlrev_b32 {v(vDF)}, 4, {v(vDF)}")
    A(f"v_add_u32 {v(vDF)}, {LDS_W}, {v(vDF)}")
    A(f"v_cmp_eq_u32 vcc, 0, {v(n)}")
    A(f"v_addc_co_u32 {v(vDM)}, vcc, 0, {v(vDM)}, vcc")
    A(f"v_lshlrev_b32 {v(vDM)}, 4, {v(vDM)}")
    A(f"v_add_u32 {v(vDM)}, {LDS_W}, {v(vDM)}")
    A(f"s_lshl_b32 s60, s{WV}, 8")
    A(f"v_mul_u32_u24 {v(vP2)}, 10240, {v(h)}")
    A(f"v_lshl_add_u32 {v(vP2)}, {v(n)}, 3, {v(vP2)}")
    A(f"v_add_u32 {v(vP2)}, s60, {v(vP2)}")
    A(f"s_mul_i32 s60, s{WV}, 2560")
    A(f"s_add_u32 s60, s60, {LDS_NEW}")
    A(f"v_lshl_add_u32 {v(vNW)}, v1, 2, s60")
    A(f"s_add_u32 s75, s74, 4096")
    A(f"s_add_u32 s78, s74, 8192")
    poll_flags(3, sREP, ACR)
    stamp(6, dbg=(13, 0))
    RAW = AC2R
    def x2loads():
        for i in range(10):
            so = ("s74", "s75", "s78")[i // 4]
            A(f"buffer_load_dwordx2 {v(RAW+2*i,2)}, {v(vP2)}, {WS}, {so} offen offset:{1024*(i%4)} sc1")
    stage_Y(1, x2loads)
    alldone = A.newlabel("Lx2a")
    any_sentinel(range(RAW, RAW + 20), ACR, alldone)
    loop, done = A.newlabel("Lx2"), A.newlabel("Lx2d")
    A(f"s_mov_b32 s62, {SPIN}")
    A(f"s_add_u32 s60, s74, {SEL_OFF + 128}")
    A(f"v_mov_b32 {v(ACR)}, 0")
    A.label(loop)
    A(f"buffer_load_dword {v(ACR+1)}, {v(ACR)}, {WS}, s60 offen sc1")
    A("s_waitcnt vmcnt(0)")
    A(f"v_cmp_eq_u32 vcc, -1, {v(ACR+1)}")
    A(f"s_cbranch_vccz {done}")
    spin_tail(loop, 62, 2)
    A.label(done)
    loop, done = A.newlabel("Lx2"), A.newlabel("Lx2d")
    A(f"s_mov_b32 s62, {SPIN}")
    A.label(loop)
    x2loads()
    A("s_waitcnt vmcnt(0)")
    any_sentinel(range(RAW, RAW + 20), ACR, done)
    spin_tail(loop, 62, 1)
    A.label(done)
    A.label(alldone)
    stamp(7)
    Z = ACR + 12
    for i in range(10):
        A(f"v_lshlrev_b32 {v(Z+2*i)}, 16, {v(RAW+2*i)}")
        A(f"v_and_b32 {v(Z+2*i+1)}, 0xffff0000, {v(RAW+2*i)}")
    for i in range(10):
        A(f"ds_write_b32 {v(vNW)}, {v(RAW+2*i)} offset:{256*i}")
    ln_stats(Z, ACR + 2)
    ln_center_scale(Z, Z, ACR + 2, EXACT)
    to_f16(Z, ACR + 2, sub=lambda i: RAW + 2 * i + 1)
    CBL = [16 + 4 * i for i in range(6)] + [AF1, AF1 + 4, AF1 + 8, XN + 8]
    WA = TWC
    def shadow1():
        for i in range(10):
            A(f"ds_read_b32 {v(CBL[i]+2)}, {v(vLYR)} offset:{128*i}")
        for i in range(10):
            A(f"s_waitcnt lgkmcnt({9-i})")
            A(f"v_fma_mix_f32 {v(CBL[i])}, {v(CBL[i]+2)}, s{s32f}, {v(X+2*i)} op_sel:[0,0,0] op_sel_hi:[1,0,0]")
            A(f"v_fma_mix_f32 {v(CBL[i]+1)}, {v(CBL[i]+2)}, s{s32f}, {v(X+2*i+1)} op_sel:[1,0,0] op_sel_hi:[1,0,0]")
    def shadow2():
        for i in range(10):
            A(f"v_add_u32 {v(WA+i)}, {i}, {v(vER)}")
            A(f"v_bfe_u32 {v(WA+i)}, {v(WA+i)}, 5, 1")
            A(f"v_lshl_add_u32 {v(WA+i)}, {v(WA+i)}, 4, {v(vE0)}")
    A("s_waitcnt lgkmcnt(0)")
    row_dft(XN, shadow1, shadow2)
    stamp(18)
    for i in range(10):
        A(f"v_cvt_pk_f16_f32 {v(ACR+i)}, {v(AC2R+i)}, {v(AC2I+i)}")
        A(f"ds_write_b32 {v(WA+i)}, {v(ACR+i)} offset:{16*i}")
    A("s_mov_b64 exec, 1")
    A(f"ds_write_b32 {v(vE0)}, {v(ACR)} offset:{660*16}")
    A("s_mov_b64 exec, -1")
    A("s_waitcnt lgkmcnt(0)")
    A("s_barrier")
    FRL = [40 + 4 * q for q in range(16)] + [160 + 4 * q for q in range(4)]
    def corr(k):
        A(f"v_mfma_f32_16x16x32_f16 {v(CBL[k],4)}, {v(CU,4)}, {v(FRL[2*k],4)}, {v(CBL[k],4)}")
        A(f"v_mfma_f32_16x16x32_f16 {v(CBL[k],4)}, {v(CV,4)}, {v(FRL[2*k+1],4)}, {v(CBL[k],4)}")
    for i in range(10):
        A(f"ds_read_b128 {v(FRL[2*i],4)}, {v(vDF)} offset:{528*i}")
        A(f"ds_read_b128 {v(FRL[2*i+1],4)}, {v(vDM)} offset:{528*(9-i)}")
        if i >= 6:
            A(f"s_waitcnt lgkmcnt(12)")
            corr(i - 6)
    for k in range(4, 10):
        A(f"s_waitcnt lgkmcnt({2*(9-k)})")
        corr(k)
    stamp(19)
    for row in range(2):
        Lnext = A.newlabel("Lown")
        A(f"s_cmp_lt_i32 s{76+row}, 0")
        A(f"s_cbranch_scc1 {Lnext}")
        A(f"s_lshr_b32 s62, s{76+row}, 1")
        A("s_mul_i32 s62, s62, 2560")
        A(f"s_add_u32 s62, s62, {LDS_NEW}")
        A(f"s_and_b32 s61, s{76+row}, 1")
        A("s_lshl_b32 s61, s61, 4")
        A("s_sub_u32 s61, 16, s61")
        A(f"v_lshl_add_u32 {v(240)}, v1, 2, s62")
        for i in range(10):
            A(f"ds_read_b32 {v(241+i)}, {v(240)} offset:{256*i}")
        A("s_waitcnt lgkmcnt(0)")
        for i in range(10):
            A(f"v_lshlrev_b32 {v(241+i)}, s61, {v(241+i)}")
            A(f"v_and_b32 {v(241+i)}, 0xffff0000, {v(241+i)}")
            A(f"v_sub_f32 {v(241+i)}, {v(241+i)}, {v(X+2*i+row)}")
            A(f"v_add_f32 {v(CBL[i]+row)}, {v(CBL[i]+row)}, {v(241+i)}")
        A.label(Lnext)
    for u in range(5):
        A(f"v_cvt_pk_bf16_f32 {v(PA+u)}, {v(CBL[2*u])}, {v(CBL[2*u+1])}")
        A(f"v_cvt_pk_bf16_f32 {v(PB+u)}, {v(CBL[2*u]+1)}, {v(CBL[2*u+1]+1)}")
    unpack_rows(X, PA, PB)
    ln_stats(X, ACR)
    ln_center_scale(X, XN, ACR)
    pack_rows(XN, PA + 16, PB + 16)
    A("s_waitcnt vmcnt(0)")
    unpack_rows(XN, PA + 16, PB + 16)
    stamp(20)
    router_publish(1, ACI + 8, PA + 16, PB + 16)
    stamp(8, dbg=(14, 0))
    OB = 16
    A(f"s_mul_i32 s60, s{WV}, 2560")
    A(f"v_add_u32 {v(OB)}, s60, {v(vX)}")
    for i in range(10):
        A(f"v_pk_add_f32 {v(X+2*i,2)}, {v(X+2*i,2)}, {v(XN+2*i,2)}")
        A(f"v_cvt_pk_bf16_f32 {v(OB+2+i)}, {v(X+2*i)}, {v(X+2*i+1)}")
        A(f"ds_write_b16 {v(OB)}, {v(OB+2+i)} offset:{64*i}")
        A(f"ds_write_b16_d16_hi {v(OB)}, {v(OB+2+i)} offset:{1280+64*i}")
    A(f"v_lshlrev_b32 {v(OB+1)}, 4, v1")
    A(f"v_add_u32 {v(OB)}, s60, {v(OB+1)}")
    A("s_waitcnt lgkmcnt(0)")
    for k in range(3):
        A(f"ds_read_b128 {v(OB+12+4*k,4)}, {v(OB)} offset:{1024*k}")
    A(f"v_add_u32 {v(OB+2)}, {1024 + 63 * 1280}, {v(OB+1)}")
    A(f"v_add_u32 {v(OB+3)}, 1024, {v(OB+1)}")
    A(f"v_cmp_gt_u32 vcc, 16, v1")
    A(f"v_cndmask_b32 {v(OB+3)}, {v(OB+2)}, {v(OB+3)}, vcc")
    def out_stores():
        A("s_waitcnt lgkmcnt(0)")
        A(f"buffer_store_dwordx4 {v(OB+12,4)}, {v(OB+1)}, {SRD2}, s{sXO} offen sc1")
        A(f"buffer_store_dwordx4 {v(OB+16,4)}, {v(OB+3)}, {SRD2}, s{sXO} offen sc1")
        set_exec(0xffffffff)
        A(f"buffer_store_dwordx4 {v(OB+20,4)}, {v(OB+2)}, {SRD2}, s{sXO} offen offset:1024 sc1")
        A("s_mov_b64 exec, -1")
    OD = opt("outdelay", 0)
    if OD:
        A(f"s_lshl_b32 s73, s{sRHO}, 4")
        A(f"s_add_u32 s73, s73, {RG_OFF + NRR * RG_REP}")
        A(f"v_mov_b32 {v(ACR)}, 0")
        for _ in range(OD):
            A(f"buffer_load_dword {v(ACR+1)}, {v(ACR)}, {WS}, s73 offen sc1")
            A("s_waitcnt vmcnt(0)")
    out_stores()
    release_candidates(1, False)
    wait_sel(1, False)
    stamp(22)
    stamp(9)
    A("s_endpgm")

def roleC():
    A.label("L_roleC")
    B1, TC, TS, A2, DT, RAW, AR, AI, P, AC, O, T = 16, 32, 48, 64, 128, 160, 176, 192, 208, 224, 240, 248
    sC, sCME, sCREP, sK, sW0, sW1, sY, sLAST = 22, 23, 24, 25, 26, 27, 28, 29
    nonce_load(T + 4)
    if opt("prefc", 1) == 1:
        warm_weights(AC, C0, 45, 60, PPART)
    A(f"s_sub_u32 s60, s2, {C0}")
    A("s_and_b32 s61, s60, 7")
    A("s_lshr_b32 s62, s60, 3")
    A("s_lshr_b32 s63, s62, 2")
    A("s_lshl_b32 s63, s63, 5")
    A("s_lshl_b32 s61, s61, 2")
    A("s_and_b32 s62, s62, 3")
    A(f"s_add_u32 s{sC}, s63, s61")
    A(f"s_add_u32 s{sC}, s{sC}, s62")
    A(f"s_and_b32 s{sCME}, s2, 15")
    A(f"s_cmp_eq_u32 s{sCME}, 0")
    A(f"s_cselect_b32 s{sLAST}, 10, 9")
    A(f"s_and_b32 s{sCREP}, s2, {NREP - 1}")
    A(f"s_lshl_b32 s{sCREP}, s{sCREP}, {FSH + 4}")
    n, g, t1, gs, arg, base, st = RAW, RAW + 1, RAW + 2, RAW + 3, RAW + 4, RAW + 5, RAW + 6
    ca, sa, cb, sb, x0, x1 = RAW + 7, RAW + 8, RAW + 9, RAW + 10, RAW + 11, RAW + 12
    A(f"v_and_b32 {v(n)}, 15, v1")
    A(f"v_lshrrev_b32 {v(g)}, 4, v1")
    A(f"s_and_b32 s70, s{WV}, 1")
    A(f"s_lshl_b32 s70, s70, 4")
    A(f"s_lshr_b32 s61, s{WV}, 1")
    A(f"v_lshrrev_b32 v2, 1, v0")
    A(f"v_and_b32 v6, 1, v0")
    A(f"s_lshl_b32 s62, s{sC}, 1")
    A(f"v_add_u32 v3, s62, v6")
    A(f"v_min_u32 v3, 320, v3")
    A(f"v_sub_u32 v4, 640, v3")
    A(f"v_cmp_ne_u32 vcc, 0, v3")
    A(f"v_cndmask_b32 v4, 0, v4, vcc")
    A(f"v_add_u32 v5, 7, v4")
    A(f"v_cmp_lt_u32 vcc, 320, v4")
    A(f"v_cndmask_b32 v4, v4, v5, vcc")
    A(f"v_mul_u32_u24 v5, {WROW}, v2")
    A(f"v_mul_u32_u24 v6, 8256, v6")
    A(f"v_lshl_add_u32 v6, v2, 4, v6")
    A(f"v_lshl_add_u32 v2, v3, 4, v5")
    A(f"v_lshl_add_u32 v3, v4, 4, v5")
    A(f"s_mul_i32 s63, s61, 8256")
    A(f"v_lshlrev_b32 v7, 10, {v(g)}")
    A(f"v_lshl_add_u32 v7, {v(n)}, 4, v7")
    A(f"v_add_u32 v7, s63, v7")
    A(f"s_add_u32 s62, s62, s61")
    A(f"s_lshl_b32 s62, s62, 12")
    A(f"v_lshl_add_u32 v8, {v(g)}, 6, {v(n)}")
    A(f"v_add_u32 v8, s70, v8")
    A(f"v_lshl_add_u32 v8, v8, 4, s62")
    A(f"s_lshr_b32 s62, s62, 6")
    A(f"s_add_u32 s62, s62, {YM_OFF + 48}")
    A(f"v_lshlrev_b32 v9, 4, {v(g)}")
    A(f"v_sub_u32 v9, s62, v9")
    def Y_stores(r0, r1, rm, sy, prep=None):
        A(f"buffer_store_dwordx4 {v(r0,4)}, v8, {WS}, {sy} offen sc1")
        A(f"buffer_store_dwordx4 {v(r1,4)}, v8, {WS}, {sy} offen offset:512 sc1")
        Lm = A.newlabel("Lym")
        A(f"s_bitcmp1_b32 s{WV}, 0")
        A(f"s_cbranch_scc1 {Lm}")
        if prep:
            prep()
        set_exec(0x0001000100010001)
        A(f"buffer_store_dwordx4 {v(rm,4)}, v9, {WS}, {sy} offen sc1")
        A("s_mov_b64 exec, -1")
        A.label(Lm)
    A(f"s_waitcnt vmcnt({(2 * (PPART & 1) + (PPART >> 1)) if opt('prefc', 1) == 1 else 0})")
    nonce_take(T + 4)
    Li = A.newlabel("Lci")
    A(f"s_sub_u32 s60, s2, {C0}")
    A(f"s_lshl_b32 s61, s{WV}, 4")
    A(f"s_or_b32 s60, s60, s61")
    A(f"s_cmp_ge_u32 s60, 16")
    A(f"s_cbranch_scc1 {Li}")
    cnt_init(sCME, range(4), T)
    A.label(Li)
    for k in range(4):
        A(f"v_mov_b32 {v(O+k)}, -1")
    A(f"s_mov_b32 s63, {Y_OFF}")
    Y_stores(O, O, O, "s63")
    if opt("prefc", 1) == 2:
        warm_weights(AC, C0, 45, 60, PPART)
    A(f"v_add_u32 {v(t1)}, s70, {v(n)}")
    A(f"v_cvt_f32_u32 {v(t1)}, {v(t1)}")
    A(f"v_cvt_f32_u32 {v(gs)}, {v(g)}")
    A(f"v_mul_f32 {v(st)}, {f32(1/32)}, {v(t1)}")
    A(f"v_mul_f32 {v(base)}, {v(st)}, {v(gs)}")
    A(f"v_mul_f32 {v(base)}, {f32(8.0)}, {v(base)}")
    for w in range(4):
        A(f"v_fmamk_f32 {v(arg)}, {v(st)}, {f32(2*w)}, {v(base)}")
        sincos(arg, ca, sa)
        A(f"v_add_f32 {v(arg)}, {v(arg)}, {v(st)}")
        sincos(arg, cb, sb)
        A(f"v_sub_f32 {v(x0)}, {v(ca)}, {v(sb)}")
        A(f"v_add_f32 {v(x1)}, {v(sa)}, {v(cb)}")
        A(f"v_cvt_pk_f16_f32 {v(B1+w)}, {v(x0)}, {v(x1)}")
        A(f"v_cvt_pk_f16_f32 {v(B1+4+w)}, -{v(x1)}, {v(x0)}")
        A(f"v_add_f32 {v(x0)}, {v(ca)}, {v(sb)}")
        A(f"v_sub_f32 {v(x1)}, {v(cb)}, {v(sa)}")
        A(f"v_cvt_pk_f16_f32 {v(B1+8+w)}, {v(x0)}, {v(x1)}")
        A(f"v_cvt_pk_f16_f32 {v(B1+12+w)}, {v(x1)}, -{v(x0)}")
    A(f"v_mul_f32 {v(st)}, {f32(1/2048)}, {v(t1)}")
    A(f"v_mul_f32 {v(base)}, {v(st)}, {v(gs)}")
    A(f"v_mul_f32 {v(base)}, 4.0, {v(base)}")
    for j in range(4):
        for i in range(4):
            A(f"v_fmamk_f32 {v(arg)}, {v(st)}, {f32(16*j+i)}, {v(base)}")
            sincos(arg, ca, sa)
            A(f"v_mul_f32 {v(TC+4*j+i)}, {f32(1/64)}, {v(ca)}")
            A(f"v_mul_f32 {v(TS+4*j+i)}, {f32(1/64)}, {v(sa)}")
    A(f"v_lshrrev_b32 {v(x0)}, 2, {v(n)}")
    A(f"v_lshlrev_b32 {v(x0)}, 4, {v(x0)}")
    A(f"v_and_b32 {v(x1)}, 3, {v(n)}")
    A(f"v_lshl_add_u32 {v(x0)}, {v(x1)}, 1, {v(x0)}")
    A(f"s_lshr_b32 s60, s70, 1")
    A(f"s_lshr_b32 s61, s{WV}, 1")
    A(f"s_add_u32 s60, s60, s61")
    A(f"v_add_u32 {v(x0)}, s60, {v(x0)}")
    A(f"v_cvt_f32_u32 {v(x0)}, {v(x0)}")
    A(f"v_mul_f32 {v(st)}, {f32(1/64)}, {v(x0)}")
    A(f"v_mul_f32 {v(base)}, {v(st)}, {v(gs)}")
    A(f"v_mul_f32 {v(base)}, 4.0, {v(base)}")
    A(f"s_lshl_b32 s60, s{WV}, 12")
    A(f"s_add_u32 s60, s60, 24576")
    A(f"v_lshl_add_u32 {v(x1)}, v1, 4, s60")
    for j in range(4):
        for i in range(4):
            A(f"v_fmamk_f32 {v(arg)}, {v(st)}, {f32(16*j+i)}, {v(base)}")
            sincos(arg, ca, sa)
            A(f"v_cvt_pk_f16_f32 {v(DT+4*j+i)}, {v(ca)}, {v(sa)}")
        A(f"ds_write_b128 {v(x1)}, {v(DT+4*j,4)} offset:{1024*j}")
    A(f"v_lshlrev_b32 {v(x1)}, 4, v1")
    A("s_waitcnt lgkmcnt(0)")
    A("s_barrier")
    for q in range(16):
        A(f"ds_read_b128 {v(A2+4*q,4)}, {v(x1)} offset:{24576 + 1024*q}")
        if q == 7:
            A("s_waitcnt lgkmcnt(0)")
    A("s_waitcnt vmcnt(0)")
    prio(3)
    A(f"s_mov_b32 s{sK}, 0")
    A(f"s_mov_b32 s{sW0}, {W_OFF}")
    A(f"s_mov_b32 s{sY}, {Y_OFF}")
    if opt("touch", 0) > 1:
        touch(T, W_OFF, 2 * W_SZ)
    stamp(4, dbg=(4, C0))
    A.label("L_Cloop")
    A(f"s_add_u32 s{sW1}, s{sW0}, {128 * WROW}")
    poll_flags(f"s{sK}", sCREP, T)
    stamp(0, f"s{sK}", dbg=(5, C0, 0))
    loop, done = A.newlabel("Lcw"), A.newlabel("Lcwd")
    A(f"s_add_u32 s30, s{sK}, 1")
    if EARLY_C == 2:
        arrive_issue("s30", sCME, O)
    A(f"s_mov_b32 s62, {SPIN}")
    A.label(loop)
    A(f"buffer_load_dwordx4 {v(RAW,4)}, v2, {WS}, s{sW0} offen sc1")
    A(f"buffer_load_dwordx4 {v(RAW+4,4)}, v2, {WS}, s{sW1} offen sc1")
    A(f"buffer_load_dwordx4 {v(RAW+8,4)}, v3, {WS}, s{sW0} offen sc1")
    A(f"buffer_load_dwordx4 {v(RAW+12,4)}, v3, {WS}, s{sW1} offen sc1")
    for j in range(4):
        A(f"s_waitcnt vmcnt({3-j})")
        A(f"ds_write_b128 v6, {v(RAW+4*j,4)} offset:{(j>>1)*4096 + (j&1)*2048}")
    if DRAIN2:
        A(f"s_cmp_lg_u32 s{sK}, 0")
        A(f"s_cbranch_scc1 {done}")
    any_sentinel(range(RAW, RAW + 16), T, done)
    spin_tail(loop, 62, 2)
    A.label(done)
    Le1, Le2, Le3 = A.newlabel("Lce"), A.newlabel("Lce"), A.newlabel("Lce")
    if DRAIN2:
        A(f"s_cmp_lg_u32 s{sK}, 0")
        A(f"s_cbranch_scc1 {Le1}")
    arrive_issue("s30", sCME, O)
    A.label(Le1)
    if EARLY_C == 2:
        arrive_finish("s30", sCME, f"s{sLAST}", O, 0)
    A("s_waitcnt lgkmcnt(0)")
    A("s_barrier")
    stamp(1, f"s{sK}")
    Lf = A.newlabel("Lcf")
    A(f"s_cmp_lg_u32 s{sK}, 0")
    A(f"s_cbranch_scc1 {Lf}")
    if not DRAIN2:
        for k in range(4):
            A(f"v_mov_b32 {v(P+k)}, -1")
        A(f"s_mov_b32 s63, {Y_OFF + Y_SZ}")
        Y_stores(P, P, P, "s63")
    A.label(Lf)
    for j in range(4):
        A(f"ds_read_b128 {v(DT+8*j,4)}, v7 offset:{256*j}")
        A(f"ds_read_b128 {v(DT+8*j+4,4)}, v7 offset:{4096+256*j}")
    for j in range(4):
        A(f"s_waitcnt lgkmcnt({7-2*j})")
        A(f"v_mfma_f32_16x16x32_f16 {v(AR+4*j,4)}, {v(DT+8*j,4)}, {v(B1,4)}, 0")
        A(f"v_mfma_f32_16x16x32_f16 {v(AI+4*j,4)}, {v(DT+8*j,4)}, {v(B1+4,4)}, 0")
        A(f"s_waitcnt lgkmcnt({6-2*j})")
        A(f"v_mfma_f32_16x16x32_f16 {v(AR+4*j,4)}, {v(DT+8*j+4,4)}, {v(B1+8,4)}, {v(AR+4*j,4)}")
        A(f"v_mfma_f32_16x16x32_f16 {v(AI+4*j,4)}, {v(DT+8*j+4,4)}, {v(B1+12,4)}, {v(AI+4*j,4)}")
    A(f"s_add_u32 s{sK}, s{sK}, 1")
    for j in range(4):
        for i in (4 * j, 4 * j + 2):
            pr, pi = RAW + (i % 4) * 2, RAW + (i % 4) * 2 + 2
            A(f"v_pk_mul_f32 {v(pr,2)}, {v(AR+i,2)}, {v(TC+i,2)}")
            A(f"v_pk_mul_f32 {v(pi,2)}, {v(AI+i,2)}, {v(TC+i,2)}")
            A(f"v_pk_fma_f32 {v(pr,2)}, {v(AI+i,2)}, {v(TS+i,2)}, {v(pr,2)}")
            A(f"v_pk_fma_f32 {v(pi,2)}, {v(AR+i,2)}, {v(TS+i,2)}, {v(pi,2)} neg_lo:[1,0,0] neg_hi:[1,0,0]")
            A(f"v_cvt_pk_f16_f32 {v(P+i)}, {v(pr)}, {v(pi)}")
            A(f"v_cvt_pk_f16_f32 {v(P+i+1)}, {v(pr+1)}, {v(pi+1)}")
        for jm in range(4):
            c = "0" if j == 0 else v(AC + 4 * jm, 4)
            A(f"v_mfma_f32_16x16x32_f16 {v(AC+4*jm,4)}, {v(A2+16*jm+4*j,4)}, {v(P+4*j,4)}, {c}")
        if j == opt("cfin", 1):
            if DRAIN2:
                A(f"s_cmp_lg_u32 s{sK}, 1")
                A(f"s_cbranch_scc1 {Le2}")
                arrive_finish("s30", sCME, f"s{sLAST}", O, 0)
                A.label(Le2)
            else:
                arrive_finish("s30", sCME, f"s{sLAST}", O, ("s30", 1, 3))
    if EARLY_C == 0:
        A("s_barrier")
        arrive_issue(f"s{sK}", sCME, T)
    for k in range(8):
        A(f"v_cvt_pk_f16_f32 {v(O+k)}, {v(AC+2*k)}, {v(AC+2*k+1)}")
    def prep():
        for gq in range(4):
            A(f"v_readlane_b32 s{60+gq}, {v(O)}, {16*((gq+1)%4)}")
        for gq in range(4):
            A(f"v_writelane_b32 {v(P+4)}, s{60+gq}, {16*gq}")
        for k in range(3):
            A(f"v_alignbit_b32 {v(P+k)}, {v(O+k+1)}, {v(O+k)}, 16")
        A(f"v_alignbit_b32 {v(P+3)}, {v(P+4)}, {v(O+3)}, 16")
    Y_stores(O, O + 4, P, f"s{sY}", prep)
    if DRAIN2:
        A(f"s_cmp_eq_u32 s{sK}, 1")
        A(f"s_cbranch_scc1 {Le3}")
        A("s_waitcnt vmcnt(0)")
        A("s_barrier")
        arrive_issue("s30", sCME, T)
        arrive_finish("s30", sCME, f"s{sLAST}", T, 0)
        A.label(Le3)
    stamp(3, f"s{sK}", dbg=(6, C0, 1))
    A(f"s_add_u32 s{sK}, s{sK}, 1")
    A(f"s_add_u32 s{sW0}, s{sW0}, {W_SZ}")
    A(f"s_add_u32 s{sY}, s{sY}, {Y_SZ}")
    A(f"s_cmp_ge_u32 s{sK}, 4")
    A("s_cbranch_scc1 L_end")
    A("s_waitcnt vmcnt(0)")
    A("s_branch L_Cloop")

SORT8 = [(0, 1), (2, 3), (4, 5), (6, 7), (0, 2), (1, 3), (4, 6), (5, 7), (1, 2), (5, 6), (0, 4), (3, 7),
         (1, 5), (2, 6), (1, 4), (3, 6), (2, 4), (3, 5), (3, 4)]

def topk_setup(CODE, vG, vLW, vLR, LDS0):
    A(f"v_lshrrev_b32 {v(CODE)}, 6, v0")
    A(f"v_lshlrev_b32 {v(CODE)}, 9, {v(CODE)}")
    A(f"v_add_u32 {v(CODE)}, {v(CODE)}, v1")
    A(f"v_sub_u32 {v(CODE)}, 2047, {v(CODE)}")
    for i in range(1, 8):
        A(f"v_subrev_u32 {v(CODE+i)}, {64*i}, {v(CODE)}")
    A(f"v_lshlrev_b32 {v(vG)}, {RSH}, v0")
    A(f"v_lshrrev_b32 {v(vLW)}, 4, v0")
    A(f"v_lshlrev_b32 {v(vLW)}, 5, {v(vLW)}")
    A(f"v_add_u32 {v(vLW)}, {LDS0}, {v(vLW)}")
    A(f"v_and_b32 {v(vLR)}, 15, v1")
    A(f"v_lshlrev_b32 {v(vLR)}, 5, {v(vLR)}")
    A(f"v_add_u32 {v(vLR)}, {LDS0}, {v(vLR)}")

def topk(K, CODE, vG, vLW, vLR, sRG, blk, dbg, mid=None):
    G = K + 16
    prio(0)
    for gate in ((True, False) if GATE else (False,)):
        loop, done = A.newlabel("Lrg"), A.newlabel("Lrgd")
        A(f"s_mov_b32 s62, {SPIN}")
        if gate:
            set_exec(0xff << 56)
        A.label(loop)
        A(f"buffer_load_dwordx4 {v(G,4)}, {v(vG)}, {WS}, s{sRG} offen sc1")
        A("s_waitcnt vmcnt(0)")
        any_sentinel(range(G, G + 4), K, done)
        spin_tail(loop, 62, opt("rsleep", 1))
        A.label(done)
        if gate:
            A("s_mov_b64 exec, -1")
    prio(3)
    stamp(3, "s27", dbg=dbg)
    A("s_mov_b32 s63, 0xffff0000")
    cur = list(range(K, K + 8))
    for k in range(4):
        A(f"v_lshl_or_b32 {v(cur[2*k])}, {v(G+k)}, 16, {v(CODE+2*k)}")
        A(f"v_and_or_b32 {v(cur[2*k+1])}, {v(G+k)}, s63, {v(CODE+2*k+1)}")
    free = list(range(K + 8, K + 24))

    def ce(i, j, dst=None):
        if dst is None:
            t = free.pop(0)
            A(f"v_max_u32 {v(t)}, {v(cur[i])}, {v(cur[j])}")
            A(f"v_min_u32 {v(cur[j])}, {v(cur[i])}, {v(cur[j])}")
            free.append(cur[i])
            cur[i] = t
        else:
            A(f"v_max_u32 {v(dst+i)}, {v(cur[i])}, {v(cur[j])}")
            A(f"v_min_u32 {v(dst+j)}, {v(cur[i])}, {v(cur[j])}")

    for (i, j) in SORT8:
        ce(i, j)
    pats = ["quad_perm:[1,0,3,2]", "quad_perm:[2,3,0,1]", "row_half_mirror", "row_mirror"]
    for rnd in range(2):
        for li, pat in enumerate(pats):
            new = [free.pop(0) for _ in range(8)]
            for i in (7, 6, 5, 4, 3, 2, 1, 0) if False else range(8):
                A(f"v_max_u32_dpp {v(new[i])}, {v(cur[7-i])}, {v(cur[i])} {pat} row_mask:0xf bank_mask:0xf")
            free.extend(cur)
            cur = new
            if rnd == 1 and li == 3:
                return cur
            for i in range(4):
                ce(i, i + 4)
            for i in (0, 1, 4, 5):
                ce(i, i + 2)
            if rnd == 0 and li == 3:
                for i in (0, 2, 4, 6):
                    ce(i, i + 1, dst=blk)
                set_exec(0x0001000100010001)
                A(f"ds_write_b128 {v(vLW)}, {v(blk,4)}")
                A(f"ds_write_b128 {v(vLW)}, {v(blk+4,4)} offset:16")
                A("s_mov_b64 exec, -1")
                A("s_waitcnt lgkmcnt(0)")
                A("s_barrier")
                A(f"ds_read_b128 {v(K,4)}, {v(vLR)}")
                A(f"ds_read_b128 {v(K+4,4)}, {v(vLR)} offset:16")
                A("s_waitcnt lgkmcnt(0)")
                if mid:
                    mid(K)
                cur = list(range(K, K + 8))
                free = list(range(K + 8, K + 24))
            else:
                for i in (6, 4, 2, 0):
                    ce(i, i + 1)

def load_weight_frags(jobs):
    total = sum(8 * j[3] for j in jobs)
    for (srdn, voff_of, soff_of, nsteps, dst, raw, vfull) in jobs:
        for k in range(nsteps):
            for q in range(8):
                d = raw + 8 * k + q
                if vfull is not None and k == vfull:
                    A(f"v_add_u32 {v(d)}, {soff_of(k, q)}, {v(voff_of(k))}")
                    A(f"buffer_load_dword {v(d)}, {v(d)}, {srdn}, 0 offen")
                    continue
                A(f"s_mov_b32 s60, {soff_of(k, q)}")
                A(f"buffer_load_dword {v(d)}, {v(voff_of(k))}, {srdn}, s60 offen")
    done = 0
    for (srdn, voff_of, soff_of, nsteps, dst, raw, vfull) in jobs:
        for k in range(nsteps):
            done += 8
            A(f"s_waitcnt vmcnt({min(63, total - done)})")
            r = raw + 8 * k
            for u in range(4):
                A(f"v_perm_b32 {v(dst + 8*k + u)}, {v(r+2*u+1)}, {v(r+2*u)}, s58")
                A(f"v_perm_b32 {v(dst + 8*k + 4 + u)}, {v(r+2*u+1)}, {v(r+2*u)}, s59")

def roleFa():
    A.label("L_roleFa")
    GW, UW, RAW, AFR, ACC, K, CODE = 16, 56, 96, 136, 156, 176, 200
    vG, vLW, vLR, vW1, vW2, vLP1, vLP2, vPW, vPR, vH = 2, 3, 4, 5, 6, 7, 8, 9, 10, 11
    sKAP, sRG, sT, sH, sL = 22, 23, 25, 26, 27
    T = 208
    nonce_load(T + 8)
    if opt("prefc", 1) == 1:
        warm_weights(T + 12, C0, 45, 60, PPART)
    srd(8, 46, 2211840)
    srd(12, 48, 2211840)
    A(f"s_sub_u32 s60, s2, {FA0 - 1}")
    A(f"s_and_b32 s61, s60, 7")
    A(f"s_lshr_b32 s60, s60, 3")
    A(f"s_mul_i32 s{sKAP}, s61, 7")
    A(f"s_add_u32 s{sKAP}, s{sKAP}, s60")
    A(f"s_sub_u32 s{sKAP}, s{sKAP}, 1")
    A("s_mov_b32 s58, 0x05040100")
    A("s_mov_b32 s59, 0x07060302")
    n, g = T, T + 1
    A(f"v_and_b32 {v(n)}, 15, v1")
    A(f"v_lshrrev_b32 {v(g)}, 4, v1")
    A(f"s_lshr_b32 s60, s{WV}, 1")
    A(f"s_mul_i32 s60, s60, 320")
    A(f"s_and_b32 s61, s{WV}, 1")
    A(f"s_lshl_b32 s61, s61, 4")
    A(f"s_add_u32 s60, s60, s61")
    A(f"s_lshl_b32 s61, s{sKAP}, 6")
    A(f"v_lshl_add_u32 {v(T+2)}, {v(n)}, 2, s61")
    A(f"v_add_u32 {v(vW1)}, s60, {v(g)}")
    A(f"v_mul_u32_u24 {v(vW1)}, 3456, {v(vW1)}")
    A(f"v_add_u32 {v(vW1)}, {v(vW1)}, {v(T+2)}")
    A(f"v_lshl_add_u32 {v(vW2)}, {v(g)}, 2, s60")
    A(f"v_mul_u32_u24 {v(vW2)}, 3456, {v(vW2)}")
    A(f"v_add_u32 {v(vW2)}, {v(vW2)}, {v(T+2)}")
    voff = lambda k: vW1 if k < 4 else vW2
    soff = lambda k, q: ((32 * q + 4 * k) if k < 4 else (256 + 32 * (q & 1) + (q >> 1))) * 3456
    A("s_waitcnt vmcnt(0)")
    nonce_take(T + 8)
    A(f"s_and_b32 s29, s2, {NREP - 1}")
    A(f"s_lshl_b32 s29, s29, {FSH + 4}")
    if opt("prefc", 1) == 2:
        warm_weights(T + 12, C0, 45, 60, PPART)
    poll_flags(0, 29, T + 4, 8)
    if opt("wide", 0):
        A(f"s_lshr_b32 s60, s{WV}, 1")
        A(f"s_mul_i32 s60, s60, 320")
        A(f"s_and_b32 s61, s{WV}, 1")
        A(f"s_lshl_b32 s61, s61, 4")
        A(f"s_add_u32 s60, s60, s61")
        A(f"v_lshrrev_b32 {v(T+4)}, 2, v1")
        A(f"v_add_u32 {v(T+4)}, s60, {v(T+4)}")
        A(f"v_mul_u32_u24 {v(T+4)}, 3456, {v(T+4)}")
        A(f"v_and_b32 {v(T+5)}, 3, v1")
        A(f"s_lshl_b32 s61, s{sKAP}, 6")
        A(f"v_lshl_add_u32 {v(T+5)}, {v(T+5)}, 4, s61")
        A(f"v_add_u32 {v(T+4)}, {v(T+4)}, {v(T+5)}")
        for j in range(10):
            A(f"s_mov_b32 s60, {32 * j * 3456}")
            A(f"buffer_load_dwordx4 {v(T+12,4)}, {v(T+4)}, {SRD1}, s60 offen")
            A(f"buffer_load_dwordx4 {v(T+12,4)}, {v(T+4)}, {SRD2}, s60 offen")
        if opt("wide", 0) == 2:
            A("s_waitcnt vmcnt(0)")
    load_weight_frags([(SRD1, voff, soff, 5, GW, RAW, None), (SRD2, voff, soff, 5, UW, RAW + 40, None)])
    topk_setup(CODE, vG, vLW, vLR, 8192)
    A(f"s_lshl_b32 s60, s{WV}, 4")
    A(f"v_add_lshl_u32 {v(vLP1)}, {v(g)}, s60, 4")
    A(f"s_lshl_b32 s60, s{WV}, 6")
    A(f"s_add_u32 s60, s60, 1024")
    A(f"v_lshl_add_u32 {v(vLP2)}, {v(g)}, 4, s60")
    A(f"s_lshl_b32 s60, s{WV}, 11")
    A(f"v_lshlrev_b32 {v(vPW)}, 9, {v(g)}")
    A(f"v_lshl_add_u32 {v(vPW)}, {v(n)}, 3, {v(vPW)}")
    A(f"v_add_u32 {v(vPW)}, s60, {v(vPW)}")
    A(f"v_add_u32 {v(12)}, 1024, {v(vPW)}")
    A(f"s_lshl_b32 s60, s{WV}, 8")
    A(f"v_lshl_add_u32 v13, {v(g)}, 7, s60")
    A(f"s_lshl_b32 s60, s{WV}, 6")
    A(f"s_add_u32 s60, s60, 1024")
    A(f"v_mov_b32 {v(T+2)}, s60")
    A(f"v_cmp_gt_u32 vcc, 2, {v(g)}")
    A(f"v_cndmask_b32 v13, {v(T+2)}, v13, vcc")
    A(f"v_lshlrev_b32 {v(vPR)}, 2, v0")
    A(f"v_lshrrev_b32 {v(T+2)}, 1, v0")
    A(f"v_lshlrev_b32 {v(vH)}, 2, {v(T+2)}")
    A(f"s_lshl_b32 s{sH}, s{sKAP}, 9")
    A(f"s_add_u32 s{sH}, s{sH}, {H_OFF}")
    A(f"s_and_b32 s{sRG}, s2, {NRR - 1}")
    A(f"s_lshl_b32 s{sRG}, s{sRG}, {RSH + 8}")
    A(f"s_add_u32 s{sRG}, s{sRG}, {RG_OFF}")
    A(f"s_mov_b32 s{sT}, {T_OFF}")
    A(f"s_mov_b32 s28, {T_REC}")
    for (r, val) in ((30, 0xAAAAAAAA), (32, 0xCCCCCCCC), (34, 0xF0F0F0F0)):
        A(f"s_mov_b32 s{r}, 0x{val:x}")
        A(f"s_mov_b32 s{r+1}, 0x{val:x}")
    A(f"s_mov_b32 s{sL}, 0")
    touch(T + 2, T_OFF, 2 * T_SZ)
    srd(16, 44, 1280)
    A(f"v_and_b32 {v(T+2)}, 31, v1")
    A(f"v_lshrrev_b32 {v(T+3)}, 5, v1")
    A(f"v_mul_u32_u24 {v(T+3)}, 640, {v(T+3)}")
    A(f"v_lshl_add_u32 {v(T+2)}, {v(T+2)}, 1, {v(T+3)}")
    for i in range(10):
        A(f"v_mov_b32 {v(K+i)}, 0")
        A(f"buffer_load_short_d16_hi {v(K+i)}, {v(T+2)}, {SRD3}, 0 offen offset:{64*i}")
    A("s_waitcnt vmcnt(0)")
    tau_of(K, T + 2, 1.0 + 1.0 / 32)
    A(f"v_or_b32 {v(T+2)}, 0x80000000, {v(T+2)}")
    A(f"v_readfirstlane_b32 s36, {v(T+2)}")
    stamp(0, dbg=(9, FA0))
    poll_flags(1, 29, T, 8)
    prio(3)
    A.label("L_FaLoop")
    def warm_rows(K_):
        for e in range(opt("warm", 0)):
            A(f"v_and_b32 {v(T+8+e)}, 0x7ff, {v(K_+e)}")
            A(f"v_sub_u32 {v(T+8+e)}, 2047, {v(T+8+e)}")
            A(f"v_mad_u32_u24 {v(T+8+e)}, {v(T+8+e)}, s28, v13")
            A(f"buffer_load_dword {v(T+8+e)}, {v(T+8+e)}, {WS}, s{sT} offen sc1")
    c = topk(K, CODE, vG, vLW, vLR, sRG, T, (11, FA0, 0), warm_rows)
    stamp(4, "s27")
    for i in range(4):
        A(f"v_cndmask_b32 {v(T+i)}, {v(c[2*i])}, {v(c[2*i+1])}, s[30:31]")
    A(f"v_cndmask_b32 {v(T)}, {v(T)}, {v(T+1)}, s[32:33]")
    A(f"v_cndmask_b32 {v(T+2)}, {v(T+2)}, {v(T+3)}, s[32:33]")
    A(f"v_cndmask_b32 {v(T)}, {v(T)}, {v(T+2)}, s[34:35]")
    A(f"v_and_b32 {v(T)}, 0x7ff, {v(T)}")
    A(f"v_sub_u32 {v(T)}, 2047, {v(T)}")
    A(f"v_mad_u32_u24 {v(T+1)}, {v(T)}, s28, {v(vLP1)}")
    A(f"v_mad_u32_u24 {v(T+2)}, {v(T)}, s28, {v(vLP2)}")
    loop, done = A.newlabel("Lga"), A.newlabel("Lgad")
    A(f"v_min3_u32 {v(T+3)}, {v(c[0])}, {v(c[1])}, {v(c[2])}")
    A(f"v_min3_u32 {v(T+4)}, {v(c[3])}, {v(c[4])}, {v(c[5])}")
    A(f"v_min3_u32 {v(T+3)}, {v(T+3)}, {v(c[6])}, {v(c[7])}")
    A(f"v_min_u32 {v(T+3)}, {v(T+3)}, {v(T+4)}")
    A(f"v_and_b32 {v(T+3)}, 0xffff0000, {v(T+3)}")
    A(f"v_cmp_gt_u32 vcc, s36, {v(T+3)}")
    A(f"s_cbranch_vccz {done}")
    A(f"v_mul_u32_u24 {v(T+3)}, s28, {v(T)}")
    A(f"s_add_u32 s61, s{NONCE}, 6")
    A(f"s_add_u32 s61, s61, s{sL}")
    A(f"s_mov_b32 s62, {SPIN}")
    A.label(loop)
    A(f"buffer_load_dword {v(T+4)}, {v(T+3)}, {WS}, s{sT} offen offset:2568 sc1")
    A("s_waitcnt vmcnt(0)")
    A(f"v_cmp_ne_u32 vcc, s61, {v(T+4)}")
    A(f"s_cbranch_vccz {done}")
    spin_tail(loop, 62, 2)
    A.label(done)
    for ks in range(4):
        A(f"buffer_load_dwordx4 {v(AFR+4*ks,4)}, {v(T+1)}, {WS}, s{sT} offen offset:{64*ks} sc1")
    A(f"buffer_load_dwordx4 {v(AFR+16,4)}, {v(T+2)}, {WS}, s{sT} offen sc1")
    for ks in range(5):
        A(f"s_waitcnt vmcnt({4-ks})")
        for a_, wb in enumerate((GW, GW + 4, UW, UW + 4)):
            cc = "0" if ks == 0 else v(ACC + 4 * a_, 4)
            A(f"v_mfma_f32_16x16x32_bf16 {v(ACC+4*a_,4)}, {v(AFR+4*ks,4)}, {v(wb+8*ks,4)}, {cc}")
    stamp(5, "s27")
    set_exec(0xffffffff)
    for mat in range(2):
        for r in range(4):
            A(f"ds_write2_b32 {v(vPW if mat == 0 else 12)}, {v(ACC+8*mat+r)}, {v(ACC+8*mat+4+r)} offset0:{32*r} offset1:{32*r+1}")
    A("s_mov_b64 exec, -1")
    A("s_waitcnt lgkmcnt(0)")
    A("s_barrier")
    for w in range(4):
        A(f"ds_read2st64_b32 {v(T+2*w,2)}, {v(vPR)} offset0:{8*w} offset1:{8*w+4}")
    A("s_waitcnt lgkmcnt(2)")
    A(f"v_pk_add_f32 {v(T,2)}, {v(T,2)}, {v(T+2,2)}")
    A("s_waitcnt lgkmcnt(0)")
    A(f"v_pk_add_f32 {v(T+4,2)}, {v(T+4,2)}, {v(T+6,2)}")
    A(f"v_pk_add_f32 {v(T,2)}, {v(T,2)}, {v(T+4,2)}")
    rnd_pair(T, T + 1, T + 2)
    A(f"v_mul_f32 {v(T+2)}, {f32(-1.4426950408889634)}, {v(T)}")
    A(f"v_exp_f32 {v(T+2)}, {v(T+2)}")
    A(f"v_add_f32 {v(T+2)}, 1.0, {v(T+2)}")
    A(f"v_rcp_f32 {v(T+2)}, {v(T+2)}")
    A(f"v_mul_f32 {v(T)}, {v(T)}, {v(T+2)}")
    A(f"v_cvt_pk_bf16_f32 {v(T)}, {v(T)}, {v(T)}")
    A(f"v_and_b32 {v(T)}, 0xffff0000, {v(T)}")
    A(f"v_mul_f32 {v(T)}, {v(T)}, {v(T+1)}")
    A(f"v_mov_b32_dpp {v(T+1)}, {v(T)} quad_perm:[1,0,3,2] row_mask:0xf bank_mask:0xf")
    A(f"v_cvt_pk_bf16_f32 {v(T)}, {v(T)}, {v(T+1)}")
    A(f"v_min_u32 {v(T)}, -2, {v(T)}")
    set_exec(0x5555555555555555)
    A(f"buffer_store_dword {v(T)}, {v(vH)}, {WS}, s{sH} offen sc1")
    A("s_mov_b64 exec, -1")
    stamp(6, "s27")
    A(f"s_add_u32 s{sH}, s{sH}, {2 * HREP}")
    A(f"s_add_u32 s{sRG}, s{sRG}, {NRR * RG_REP}")
    A(f"s_add_u32 s{sT}, s{sT}, {T_SZ}")
    A(f"s_add_u32 s{sL}, s{sL}, 1")
    A(f"s_cmp_lt_u32 s{sL}, 2")
    A("s_cbranch_scc1 L_FaLoop")
    A("s_endpgm")

def roleFb():
    A.label("L_roleFb")
    DW, HF, ACC, K, CODE, T = 16, 128, 184, 192, 216, 224
    RAW = 128
    vG, vLW, vLR, vW1, vHF, vPW, vPR, vE, vX2, vO = 2, 3, 4, 5, 6, 7, 8, 9, 10, 11
    sB, sRG, sT, sH, sL, sREP2, sES, sEC = 22, 23, 25, 26, 27, 29, 30, 31
    nonce_load(T + 8)
    if opt("prefc", 1) == 1:
        warm_weights(T + 16, C0, 45, 60, PPART)
    srd(8, 50, 2211840)
    srd(12, 52, 2621440)
    A(f"s_sub_u32 s60, s2, {FB0 - 7}")
    A(f"s_and_b32 s61, s60, 7")
    A(f"s_lshr_b32 s60, s60, 3")
    fb_start("s61", f"s{sB}")
    A(f"s_add_u32 s{sB}, s{sB}, s60")
    A(f"s_cmp_eq_u32 s61, 7")
    A(f"s_cselect_b32 s60, 0, 1")
    A(f"s_sub_u32 s{sB}, s{sB}, s60")
    A("s_mov_b32 s58, 0x05040100")
    A("s_mov_b32 s59, 0x07060302")
    n, g = T, T + 1
    A(f"v_and_b32 {v(n)}, 15, v1")
    A(f"v_lshrrev_b32 {v(g)}, 4, v1")
    A(f"s_lshl_b32 s60, s{WV}, 5")
    A(f"v_lshl_add_u32 {v(vW1)}, {v(g)}, 3, s60")
    A(f"v_mul_u32_u24 {v(vW1)}, 1280, {v(vW1)}")
    A(f"s_lshl_b32 s61, s{sB}, 6")
    A(f"v_lshl_add_u32 {v(T+2)}, {v(n)}, 2, s61")
    A(f"v_add_u32 {v(vW1)}, {v(vW1)}, {v(T+2)}")
    A(f"v_mov_b32 v12, {v(n)}")
    A(f"v_mov_b32 v13, {v(g)}")
    n, g = 12, 13
    A("s_waitcnt vmcnt(0)")
    nonce_take(T + 8)
    A(f"s_and_b32 s{sREP2}, s2, {NREP - 1}")
    A(f"s_lshl_b32 s{sREP2}, s{sREP2}, {FSH + 4}")
    if opt("prefc", 1) == 2:
        warm_weights(T + 16, C0, 45, 60, PPART)
    poll_flags(0, sREP2, T + 4, 8)
    if opt("wide", 0):
        A(f"s_lshl_b32 s60, s{WV}, 5")
        A(f"v_lshrrev_b32 {v(T+20)}, 2, v1")
        A(f"v_add_u32 {v(T+20)}, s60, {v(T+20)}")
        A(f"v_mul_u32_u24 {v(T+20)}, 1280, {v(T+20)}")
        A(f"v_and_b32 {v(T+21)}, 3, v1")
        A(f"s_lshl_b32 s61, s{sB}, 6")
        A(f"v_lshl_add_u32 {v(T+21)}, {v(T+21)}, 4, s61")
        A(f"v_add_u32 {v(T+20)}, {v(T+20)}, {v(T+21)}")
        for k in range(14):
            for hh in range(2):
                A(f"v_add_u32 {v(T+21)}, {(128 * k + 16 * hh) * 1280}, {v(T+20)}")
                A(f"buffer_load_dwordx4 {v(T+24,4)}, {v(T+21)}, {SRD1}, 0 offen")
        if opt("wide", 0) == 2:
            A("s_waitcnt vmcnt(0)")
    load_weight_frags([(SRD1, lambda k: vW1, lambda k, q: (128 * k + q) * 1280, 14, DW, RAW, 13)])
    topk_setup(CODE, vG, vLW, vLR, 8192)
    A(f"v_and_b32 {v(vHF)}, 7, v1")
    A(f"v_lshlrev_b32 {v(vHF)}, 6, {v(vHF)}")
    A(f"v_lshl_add_u32 {v(vHF)}, {v(g)}, 4, {v(vHF)}")
    A(f"s_lshl_b32 s60, s{WV}, 9")
    A(f"v_add_u32 {v(vHF)}, s60, {v(vHF)}")
    A(f"s_mov_b32 s{sH}, {H_OFF}")
    A(f"s_lshl_b32 s60, s{WV}, 10")
    A(f"v_lshlrev_b32 {v(vPW)}, 9, {v(g)}")
    A(f"v_lshl_add_u32 {v(vPW)}, {v(n)}, 3, {v(vPW)}")
    A(f"v_add_u32 {v(vPW)}, s60, {v(vPW)}")
    A(f"v_lshlrev_b32 {v(vPR)}, 2, v0")
    A(f"s_cmp_ge_u32 s{sB}, 10")
    A(f"s_cselect_b32 s60, 1, 0")
    A(f"s_mul_i32 s61, s60, 10")
    A(f"s_sub_u32 s61, s{sB}, s61")
    A(f"s_lshl_b32 s62, s60, 9")
    A(f"s_lshl_b32 s63, s61, 1")
    A(f"s_add_u32 s62, s62, s63")
    A(f"s_lshl_b32 s64, s60, 7")
    A(f"s_add_u32 s64, s64, s63")
    A(f"s_add_u32 s64, s64, {1024 - 16}")
    A(f"s_cmp_lt_u32 s61, 8")
    A(f"s_cselect_b32 s{sEC}, s62, s64")
    A(f"s_cselect_b32 s{sES}, 16, 4")
    A(f"v_and_b32 {v(T+2)}, 31, v1")
    A(f"v_mul_u32_u24 {v(vE)}, s{sES}, {v(T+2)}")
    A(f"s_and_b32 s32, s{sEC}, 2")
    A(f"s_lshl_b32 s32, s32, 3")
    A(f"s_sub_u32 s32, 16, s32")
    A(f"s_and_b32 s{sEC}, s{sEC}, -4")
    A(f"v_add_u32 {v(vE)}, s{sEC}, {v(vE)}")

    A(f"s_lshl_b32 s60, s{sB}, 2")
    A(f"s_add_u32 s60, s60, s{WV}")
    A(f"s_lshl_b32 s60, s60, 8")
    A(f"v_lshl_add_u32 {v(vX2)}, {v(T+2)}, 3, s60")
    A(f"v_lshrrev_b32 {v(T+3)}, 5, v1")
    A(f"v_lshl_add_u32 {v(vX2)}, {v(T+3)}, 2, {v(vX2)}")
    A(f"s_lshl_b32 s60, s{sB}, 6")
    A(f"v_lshl_add_u32 {v(vO)}, {v(T+2)}, 1, s60")
    A(f"s_and_b32 s{sRG}, s2, {NRR - 1}")
    A(f"s_lshl_b32 s{sRG}, s{sRG}, {RSH + 8}")
    A(f"s_add_u32 s{sRG}, s{sRG}, {RG_OFF}")
    A(f"s_mov_b32 s{sT}, {T_OFF}")
    A(f"s_mov_b32 s28, {T_REC}")
    A(f"s_mov_b32 s{sL}, 0")
    touch(T + 2, T_OFF, 2 * T_SZ)
    stamp(0, dbg=(10, FB0))
    poll_flags(1, sREP2, T, 8)
    prio(3)
    A.label("L_FbLoop")
    c = topk(K, CODE, vG, vLW, vLR, sRG, T, None)
    stamp(4, "s27")
    for j in range(8):
        A(f"v_readfirstlane_b32 s{80+j}, {v(c[j])}")
    A("s_mov_b32 s70, s80")
    A("s_mov_b32 s71, s81")
    for w in range(1, 4):
        A(f"s_cmp_eq_u32 s{WV}, {w}")
        A(f"s_cselect_b32 s70, s{80+2*w}, s70")
        A(f"s_cselect_b32 s71, s{81+2*w}, s71")
    KEY, ROW, XV, XNV, SG, ST = T, T + 1, T + 2, T + 3, T + 4, T + 8
    Ls = A.newlabel("Lfb")
    A(f"s_or_b32 s60, s{sB}, s{WV}")
    A(f"s_cmp_lg_u32 s60, 0")
    A(f"s_cbranch_scc1 {Ls}")
    A(f"v_mov_b32 {v(T+6)}, s80")
    for j in range(1, 8):
        A(f"v_writelane_b32 {v(T+6)}, s{80+j}, {j}")
    A(f"v_and_b32 {v(T+6)}, 0x7ff, {v(T+6)}")
    A(f"v_sub_u32 {v(T+6)}, 2047, {v(T+6)}")
    A(f"v_lshlrev_b32 {v(T+7)}, 2, v1")
    A(f"s_lshl_b32 s60, s{sL}, 8")
    A(f"s_add_u32 s60, s60, {X2_OFF + SEL_OFF}")
    A("s_mov_b64 exec, 0xff")
    A(f"buffer_store_dword {v(T+6)}, {v(T+7)}, {WS}, s60 offen sc1")
    A("s_mov_b64 exec, -1")
    A.label(Ls)
    A(f"v_mov_b32 {v(KEY)}, s71")
    A(f"v_mov_b32 {v(ROW)}, s70")
    A(f"v_cmp_gt_u32 vcc, 32, v1")
    A(f"v_cndmask_b32 {v(KEY)}, {v(KEY)}, {v(ROW)}, vcc")
    A(f"v_and_b32 {v(ROW)}, 0x7ff, {v(KEY)}")
    A(f"v_sub_u32 {v(ROW)}, 2047, {v(ROW)}")
    A(f"v_mad_u32_u24 {v(T+5)}, {v(ROW)}, s28, {v(vE)}")
    prio(0)
    loop, done = A.newlabel("Lst2"), A.newlabel("Lst2d")
    A(f"v_mul_u32_u24 {v(T+6)}, s28, {v(ROW)}")
    A(f"s_add_u32 s61, s{NONCE}, 6")
    A(f"s_add_u32 s61, s61, s{sL}")
    A(f"s_mov_b32 s62, {SPIN}")
    A.label(loop)
    A(f"buffer_load_dwordx4 {v(ST,4)}, {v(T+6)}, {WS}, s{sT} offen offset:2560 sc1")
    A("s_waitcnt vmcnt(0)")
    A(f"v_cmp_ne_u32 vcc, s61, {v(ST+2)}")
    A(f"s_cbranch_vccz {done}")
    spin_tail(loop, 62, 2)
    A.label(done)
    A(f"buffer_load_dword {v(XNV)}, {v(T+5)}, {WS}, s{sT} offen sc1")
    A(f"buffer_load_dword {v(XV)}, {v(T+5)}, {WS}, s{sT} offen offset:1280 sc1")
    A(f"v_ashrrev_i32 {v(SG)}, 31, {v(KEY)}")
    A(f"v_not_b32 {v(SG)}, {v(SG)}")
    A(f"v_or_b32 {v(SG)}, 0x80000000, {v(SG)}")
    A(f"v_xor_b32 {v(SG)}, {v(SG)}, {v(KEY)}")
    A(f"v_and_b32 {v(SG)}, 0xffff0000, {v(SG)}")
    A(f"v_mul_f32 {v(SG)}, {f32(-1.4426950408889634)}, {v(SG)}")
    A(f"v_exp_f32 {v(SG)}, {v(SG)}")
    A(f"v_add_f32 {v(SG)}, 1.0, {v(SG)}")
    A(f"v_rcp_f32 {v(SG)}, {v(SG)}")
    A(f"v_cvt_pk_bf16_f32 {v(SG)}, {v(SG)}, {v(SG)}")
    A(f"v_and_b32 {v(SG)}, 0xffff0000, {v(SG)}")
    stamp(2, "s27")
    def rb(r):
        A(f"v_cvt_pk_bf16_f32 {v(r)}, {v(r)}, {v(r)}")
        A(f"v_and_b32 {v(r)}, 0xffff0000, {v(r)}")
    Yv = T + 12
    XO = T + 16
    if opt("hgate", 0):
        loop, done = A.newlabel("Lh"), A.newlabel("Lhd")
        A(f"s_mov_b32 s62, {SPIN}")
        A.label(loop)
        A(f"buffer_load_dwordx4 {v(HF,4)}, {v(vHF)}, {WS}, s{sH} offen sc1")
        A("s_waitcnt vmcnt(0)")
        any_sentinel(range(HF, HF + 4), T + 6, done)
        spin_tail(loop, 62, opt("hgsleep", 2))
        A.label(done)
    loop, done = A.newlabel("Lh"), A.newlabel("Lhd")
    A(f"s_cmp_lt_u32 s{WV}, 2")
    A(f"s_cselect_b32 s63, 2048, 0")
    A(f"s_add_u32 s63, s63, {12 * 2048}")
    A(f"s_add_u32 s63, s63, s{sH}")
    A(f"s_mov_b32 s62, {SPIN}")
    A.label(loop)
    for k in range(14):
        if k == 13:
            A(f"buffer_load_dwordx4 {v(HF+4*k,4)}, {v(vHF)}, {WS}, s63 offen sc1")
        else:
            if k % 2 == 0:
                A(f"s_add_u32 s60, s{sH}, {2048 * k}")
            A(f"buffer_load_dwordx4 {v(HF+4*k,4)}, {v(vHF)}, {WS}, s60 offen offset:{2048*(k%2)} sc1")
    CK = T + 6
    A("s_waitcnt vmcnt(0)")
    any_sentinel(list(range(HF, HF + 56)), CK, done)
    spin_tail(loop, 62, opt("hsleep", 1))
    A.label(done)
    prio(3)
    stamp(5, "s27")
    Lh2 = A.newlabel("Lfb")
    A(f"s_or_b32 s60, s{sB}, s{WV}")
    A(f"s_or_b32 s60, s60, s{sL}")
    A(f"s_cmp_lg_u32 s60, 0")
    A(f"s_cbranch_scc1 {Lh2}")
    A(f"v_mov_b32 {v(CK)}, 0")
    A(f"s_mov_b32 s60, {X2_OFF + SEL_OFF + 128}")
    A("s_mov_b64 exec, 1")
    A(f"buffer_store_dword {v(CK)}, {v(CK)}, {WS}, s60 offen sc1")
    A.label(Lh2)
    A("s_mov_b64 exec, -1")
    for k in range(14):
        for par in range(2):
            cc = "0" if k == 0 else v(ACC + 4 * par, 4)
            A(f"v_mfma_f32_16x16x32_bf16 {v(ACC+4*par,4)}, {v(HF+4*k,4)}, {v(DW+8*k+4*par,4)}, {cc}")
    for r in (XNV, XV):
        A(f"v_lshlrev_b32 {v(r)}, s32, {v(r)}")
        A(f"v_and_b32 {v(r)}, 0xffff0000, {v(r)}")
    A(f"v_add_f32 {v(XO)}, {v(XV)}, {v(XNV)}")
    rb(XO)
    A(f"v_sub_f32 {v(XO)}, {v(XO)}, {v(ST)}")
    if EXACT:
        rb(XO)
    A(f"v_mul_f32 {v(XO)}, {v(XO)}, {v(ST+1)}")
    if EXACT:
        rb(XO)
    set_exec(0xffffffff)
    for r in range(4):
        A(f"ds_write2_b32 {v(vPW)}, {v(ACC+r)}, {v(ACC+4+r)} offset0:{32*r} offset1:{32*r+1}")
    A("s_mov_b64 exec, -1")
    A("s_waitcnt lgkmcnt(0)")
    A("s_barrier")
    A(f"ds_read2st64_b32 {v(Yv,2)}, {v(vPR)} offset0:0 offset1:4")
    A(f"ds_read2st64_b32 {v(Yv+2,2)}, {v(vPR)} offset0:8 offset1:12")
    A("s_waitcnt lgkmcnt(0)")
    A(f"v_pk_add_f32 {v(Yv,2)}, {v(Yv,2)}, {v(Yv+2,2)}")
    A(f"v_add_f32 {v(Yv)}, {v(Yv)}, {v(Yv+1)}")
    rb(Yv)
    A(f"v_mul_f32 {v(Yv)}, {v(Yv)}, {v(SG)}")
    rb(Yv)
    A(f"v_add_f32 {v(Yv)}, {v(Yv)}, {v(XNV)}")
    rb(Yv)
    A(f"v_add_f32 {v(Yv)}, {v(Yv)}, {v(XV)}")
    L2 = A.newlabel("Lfb")
    A(f"s_cmp_lg_u32 s{sL}, 0")
    A(f"s_cbranch_scc1 {L2}")
    A(f"v_permlane32_swap_b32 {v(Yv)}, {v(XO)}")
    A(f"v_cvt_pk_bf16_f32 {v(Yv+1)}, {v(Yv)}, {v(XO)}")
    A(f"v_cvt_pk_f16_f32 {v(Yv)}, {v(Yv)}, {v(XO)}")
    A(f"v_cmp_gt_u32 vcc, 32, v1")
    A(f"v_cndmask_b32 {v(Yv)}, {v(Yv)}, {v(Yv+1)}, vcc")
    A(f"v_min_u32 {v(Yv)}, -2, {v(Yv)}")
    for r in range(NRX):
        A(f"s_mov_b32 s60, {X2_OFF + r * X2REP}")
        A(f"buffer_store_dword {v(Yv)}, {v(vX2)}, {WS}, s60 offen sc1")
    stamp(6, "s27", dbg=(12, FB0))
    A(f"s_add_u32 s{sH}, s{sH}, {2 * HREP}")
    A(f"s_add_u32 s{sRG}, s{sRG}, {NRR * RG_REP}")
    A(f"s_add_u32 s{sT}, s{sT}, {T_SZ}")
    A(f"s_mov_b32 s{sL}, 1")
    A("s_branch L_FbLoop")
    A.label(L2)
    A(f"v_cvt_pk_bf16_f32 {v(Yv)}, {v(Yv)}, {v(Yv)}")
    A(f"s_movk_i32 s60, 1280")
    A(f"v_mad_u32_u24 {v(Yv+1)}, {v(ROW)}, s60, {v(vO)}")
    A(f"buffer_store_short {v(Yv)}, {v(Yv+1)}, {SRD2}, 0 offen sc1")
    stamp(7, "s27", dbg=(15, FB0))
    A(f"s_or_b32 s60, s{sB}, s{WV}")
    A(f"s_cmp_lg_u32 s60, 0")
    A("s_cbranch_scc1 L_end")
    A(f"v_mov_b32 {v(T)}, s{NONCE}")
    A(f"v_mov_b32 {v(T+1)}, 0")
    A("s_mov_b64 exec, 1")
    A(f"buffer_store_dword {v(T)}, {v(T+1)}, {WS}, 0 offen sc1")
    A.label("L_end")
    A("s_endpgm")

hdr = open("cdna_kernels/%s.s.ref" % NAME).read().split("\n")
head = [l for l in hdr if l.startswith(";") and "@launch" not in l and "Override" not in l and "grid=ceil" not in l]
out = "\n".join(head) + "\n"
out += f"; @launch grid=({NWG},1,1) block=(256,1,1) lds={LDS_BYTES}\n"
out += '.amdgcn_target "amdgcn-amd-amdhsa--gfx950"\n.text\n'
out += f".globl {NAME}_kernel\n.p2align 8\n.type {NAME}_kernel,@function\n{NAME}_kernel:\n"
prologue(); roleR(); roleC(); roleFa(); roleFb()
out += A.text()
out += "L_code_end:\n"
out = out.replace(".text\n", ".text\n.set CODE_LINES, 256\n", 1)
out += f""".section .rodata,"a"
.p2align 6
.amdhsa_kernel {NAME}_kernel
  .amdhsa_next_free_vgpr 256
  .amdhsa_next_free_sgpr 102
  .amdhsa_accum_offset 256
  .amdhsa_group_segment_fixed_size 0
  .amdhsa_kernarg_size 104
  .amdhsa_user_sgpr_count 2
  .amdhsa_user_sgpr_kernarg_segment_ptr 1
  .amdhsa_system_sgpr_workgroup_id_x 1
  .amdhsa_float_denorm_mode_32 3
.end_amdhsa_kernel
"""
import subprocess, tempfile, os, re
with tempfile.TemporaryDirectory() as td:
    open(td + "/a.s", "w").write(out)
    subprocess.check_call(["clang", "-x", "assembler", "-target", "amdgcn-amd-amdhsa", "-mcpu=gfx950", "-c", td + "/a.s", "-o", td + "/a.o"])
    hd = subprocess.check_output(["llvm-objdump", "-h", td + "/a.o"]).decode()
    size = int(re.search(r"\.text\s+([0-9a-f]+)", hd).group(1), 16)
out = out.replace(".set CODE_LINES, 256", ".set CODE_LINES, %d" % min(256, size // 128))
print("code bytes:", size, file=sys.stderr)
dst = [a for a in sys.argv[1:] if not a.startswith("--")]
open(dst[0] if dst else "cdna_kernels/%s.s" % NAME, "w").write(out)
print("instructions:", A.ninstr, file=sys.stderr)
```

```python
import sys, struct
from asmb import Asm

NAME = "interleave_layers__spectral_fnet__moe_arch_mod__prompt"
def opt(name, default):
    for a in sys.argv:
        if a.startswith("--%s=" % name):
            return int(a.split("=")[1])
    return default
STAMPS = "--stamps" in sys.argv
DSTAMPS = "--dstamps" in sys.argv
MSTAMPS = "--mstamps" in sys.argv
EXACT = opt("exact", 0)
EXACT1 = opt("exact1", 0)
GATE = opt("gate", 0)
NR, NC, NFA, NFB = 256, 161, 54, 20
C0, FA0, FB0, NWG = 256, 417, 471, 491
FSH = opt("fsh", 6); FREP = 16 << FSH
FL_OFF = 0x1000; NREP = opt("nrep", 16)
RESET_OFF = 0x70000
H_OFF = 0x70000; HREP = 0x7000
X2_OFF = 0x90000; X2REP = 0x5200; NRX = opt("nrx", 1); SEL_OFF = 0x5000
RSH = opt("rsh", 6)
RG_OFF = 0xA0000; NRR = opt("nrr", 8); RG_REP = 256 << RSH
CNT_OFF = 0xF8000
WROW = 10368
W_OFF = 0x100000; W_SZ = 0x290000
Y_OFF = 0x640000; Y_SZ = 0x160000; YM_OFF = 322 * 4096
T_OFF = 0x900000; T_REC = 2688; T_SZ = 2048 * T_REC
ST_OFF = 0x1400000
WS_BYTES = 0x1500000
NONCE_C = 0x9E3779B9
SPIN = 40000
LDS_BYTES = 53248
assert FL_OFF + 4 * NREP * FREP <= 0x70000 and RG_OFF + 2 * NRR * RG_REP <= 0xF0000
PSLEEP = opt("psleep", 1)
EARLY_R = opt("earlyr", 1)
EARLY_C = opt("earlyc", 1)
PRIO = opt("prio", 1)
DRAIN2 = opt("drain2", 0)
PPART = opt("ppart", 3)
DRAIN0 = opt("drain0", 0)
def prio(n):
    if PRIO:
        A(f"s_setprio {n}")

def f32(x):
    return "0x%08x" % struct.unpack("<I", struct.pack("<f", x))[0]
def v(i, n=1):
    return "v%d" % i if n == 1 else "v[%d:%d]" % (i, i + n - 1)
def s(i, n=1):
    return "s%d" % i if n == 1 else "s[%d:%d]" % (i, i + n - 1)

A = Asm()
WS = "s[4:7]"; SRD1 = "s[8:11]"; SRD2 = "s[12:15]"; SRD3 = "s[16:19]"
NONCE = 20; WV = 21

def srd(base, ptr, nbytes):
    A(f"s_mov_b32 s{base}, s{ptr}")
    A(f"s_and_b32 s{base+1}, s{ptr+1}, 0xffff")
    A(f"s_mov_b32 s{base+2}, {nbytes}")
    A(f"s_mov_b32 s{base+3}, 0x00020000")

def set_exec(m):
    A(f"s_mov_b32 exec_lo, 0x{m & 0xffffffff:x}")
    A(f"s_mov_b32 exec_hi, 0x{m >> 32:x}")

def stamp(idx, lay=None, dbg=None):
    if MSTAMPS and dbg is not None:
        L = A.newlabel("Lst")
        A(f"s_mov_b32 s97, s{WV}")
        if len(dbg) > 2:
            A(f"s_sub_u32 s96, {lay}, {dbg[2]}")
            A(f"s_or_b32 s97, s97, s96")
        A(f"s_cmp_lg_u32 s97, 0")
        A(f"s_cbranch_scc1 {L}")
        A("s_memrealtime s[98:99]")
        A("s_waitcnt lgkmcnt(0)")
        A("s_and_b32 s98, s98, 0x7fffffff")
        A("v_mov_b32 v254, s98")
        A("v_mov_b32 v253, 0")
        A("s_mov_b64 exec, 1")
        if dbg[0] == 0:
            A(f"buffer_atomic_umax v254, v253, s[92:95], 0 offen offset:4")
            A("v_not_b32 v254, v254")
        if dbg[0] != 1:
            A(f"buffer_atomic_umax v254, v253, s[92:95], 0 offen offset:{dbg[0] * 4}")
        A("s_mov_b64 exec, -1")
        A.label(L)
    if DSTAMPS and dbg is not None:
        L = A.newlabel("Lst")
        A(f"s_lshl_b32 s97, s{WV}, 16")
        A(f"s_or_b32 s97, s97, s2")
        if len(dbg) > 2:
            A(f"s_lshl_b32 s96, {lay}, 20")
            A(f"s_or_b32 s97, s97, s96")
        A(f"s_cmp_lg_u32 s97, {dbg[1] + ((dbg[2] << 20) if len(dbg) > 2 else 0)}")
        A(f"s_cbranch_scc1 {L}")
        A("s_memrealtime s[98:99]")
        A("s_waitcnt lgkmcnt(0)")
        A("v_mov_b32 v254, s98")
        A("v_mov_b32 v253, 0")
        A("s_mov_b64 exec, 1")
        A(f"buffer_store_dword v254, v253, s[92:95], 0 offen offset:{dbg[0] * 4}")
        A("s_mov_b64 exec, -1")
        A.label(L)
    if not STAMPS:
        return
    L = A.newlabel("Lst")
    A(f"s_cmp_lg_u32 s{WV}, 0")
    A(f"s_cbranch_scc1 {L}")
    A("s_memrealtime s[98:99]")
    A("s_memtime s[100:101]")
    A("s_waitcnt lgkmcnt(0)")
    A("v_mov_b32 v254, s98")
    A("v_mov_b32 v255, s100")
    A("v_mov_b32 v253, 0")
    A("s_lshl_b32 s97, s2, 9")
    A(f"s_add_u32 s97, s97, {ST_OFF + idx * 8}")
    if lay is not None:
        A(f"s_lshl_b32 s96, {lay}, 6")
        A("s_add_u32 s97, s97, s96")
    A("s_mov_b64 exec, 1")
    A(f"buffer_store_dwordx2 v[254:255], v253, {WS}, s97 offen")
    A("s_mov_b64 exec, -1")
    A.label(L)

def spin_tail(loop, cnt, sleep=1):
    if sleep:
        A(f"s_sleep {sleep}")
    A(f"s_sub_u32 s{cnt}, s{cnt}, 1")
    A(f"s_cmp_lg_u32 s{cnt}, 0")
    A(f"s_cbranch_scc1 {loop}")

def any_sentinel(regs, t, done):
    regs = list(regs)
    A(f"v_max3_u32 {v(t)}, {v(regs[0])}, {v(regs[1])}, {v(regs[2])}")
    k = 3
    while k + 1 < len(regs):
        A(f"v_max3_u32 {v(t)}, {v(t)}, {v(regs[k])}, {v(regs[k+1])}")
        k += 2
    if k < len(regs):
        A(f"v_max_u32 {v(t)}, {v(t)}, {v(regs[k])}")
    A(f"v_cmp_eq_u32 vcc, -1, {v(t)}")
    A(f"s_cbranch_vccz {done}")

def poll_flags(k, srep, t, sleep=None):
    loop, done = A.newlabel("Lpoll"), A.newlabel("Lpolld")
    A(f"s_cmp_lg_u32 s{WV}, 0")
    A(f"s_cbranch_scc1 {done}")
    if isinstance(k, int):
        A(f"s_add_u32 s60, s{srep}, {FL_OFF + k * NREP * FREP}")
    else:
        A(f"s_mul_i32 s60, {k}, {NREP * FREP}")
        A(f"s_add_u32 s60, s60, s{srep}")
        A(f"s_add_u32 s60, s60, {FL_OFF}")
    A(f"s_add_u32 s61, s{NONCE}, {k}")
    A(f"v_and_b32 {v(t+1)}, 15, v1")
    A(f"v_lshlrev_b32 {v(t+1)}, {FSH}, {v(t+1)}")
    A(f"s_mov_b32 s62, {SPIN}")
    A.label(loop)
    A(f"buffer_load_dword {v(t)}, {v(t+1)}, {WS}, s60 offen sc1")
    A("s_waitcnt vmcnt(0)")
    A(f"v_cmp_ne_u32 vcc, s61, {v(t)}")
    A(f"s_cbranch_vccz {done}")
    spin_tail(loop, 62, PSLEEP if sleep is None else sleep)
    A.label(done)
    A("s_barrier")

def cnt_init(sshard, ks, t):
    for k in ks:
        A(f"s_add_u32 s60, s{sshard}, {16 * k}")
        A(f"s_lshl_b32 s60, s60, 7")
        A(f"s_add_u32 s60, s60, {CNT_OFF}")
        A(f"s_add_u32 s61, s{NONCE}, {k}")
        A(f"v_mov_b32 {v(t)}, 0")
        A(f"v_mov_b32 {v(t+1)}, s61")
        A(f"v_mov_b32 {v(t+2)}, 0")
        A("s_mov_b64 exec, 1")
        A(f"buffer_store_dwordx2 {v(t,2)}, {v(t+2)}, {WS}, s60 offen sc1")
        A("s_mov_b64 exec, -1")

def arrive_issue(k, sshard, t):
    L = A.newlabel("Larr")
    A(f"s_cmp_lg_u32 s{WV}, 0")
    A(f"s_cbranch_scc1 {L}")
    if isinstance(k, int):
        A(f"s_add_u32 s66, s{sshard}, {16 * k}")
    else:
        A(f"s_lshl_b32 s66, {k}, 4")
        A(f"s_add_u32 s66, s66, s{sshard}")
    A(f"s_lshl_b32 s66, s66, 7")
    A(f"s_add_u32 s66, s66, {CNT_OFF}")
    A(f"v_mov_b32 {v(t)}, 1")
    A(f"v_mov_b32 {v(t+1)}, 0")
    A(f"v_mov_b32 {v(t+2)}, 0")
    A("s_mov_b64 exec, 1")
    A(f"buffer_atomic_add_x2 {v(t,2)}, {v(t+2)}, {WS}, s66 offen sc0")
    A("s_mov_b64 exec, -1")
    A.label(L)

def arrive_finish(k, sshard, slast, t, younger):
    L, again, chk = A.newlabel("Lsig"), A.newlabel("Lsiga"), A.newlabel("Lsigc")
    A(f"s_cmp_lg_u32 s{WV}, 0")
    A(f"s_cbranch_scc1 {L}")
    if isinstance(k, int):
        A(f"s_lshl_b32 s67, s{sshard}, {FSH}")
        A(f"s_add_u32 s67, s67, {FL_OFF + k * NREP * FREP}")
    else:
        A(f"s_mul_i32 s67, {k}, {NREP * FREP}")
        A(f"s_lshl_b32 s68, s{sshard}, {FSH}")
        A(f"s_add_u32 s67, s67, s68")
        A(f"s_add_u32 s67, s67, {FL_OFF}")
    A(f"s_add_u32 s68, s{NONCE}, {k}")
    A(f"v_lshlrev_b32 {v(t+3)}, {FSH + 4}, v1")
    A(f"v_mov_b32 {v(t+4)}, s68")
    A(f"s_mov_b32 s69, {SPIN}")
    if isinstance(younger, tuple):
        A(f"s_waitcnt vmcnt({younger[2]})")
        A(f"s_cmp_eq_u32 {younger[0]}, {younger[1]}")
        A(f"s_cbranch_scc1 {chk}")
        A("s_waitcnt vmcnt(0)")
    else:
        A(f"s_waitcnt vmcnt({younger})")
    A(f"s_branch {chk}")
    A.label(again)
    A(f"s_sub_u32 s69, s69, 1")
    A(f"s_cmp_eq_u32 s69, 0")
    A(f"s_cbranch_scc1 {L}")
    A(f"v_mov_b32 {v(t)}, 1")
    A(f"v_mov_b32 {v(t+1)}, 0")
    A(f"v_mov_b32 {v(t+2)}, 0")
    A("s_mov_b64 exec, 1")
    A(f"buffer_atomic_add_x2 {v(t,2)}, {v(t+2)}, {WS}, s66 offen sc0")
    A("s_mov_b64 exec, -1")
    A("s_waitcnt vmcnt(0)")
    A.label(chk)
    A(f"v_readfirstlane_b32 s65, {v(t+1)}")
    A(f"v_readfirstlane_b32 s64, {v(t)}")
    A(f"s_cmp_lg_u32 s65, s68")
    A(f"s_cbranch_scc1 {again}")
    A(f"s_cmp_lg_u32 s64, {slast}")
    A(f"s_cbranch_scc1 {L}")
    set_exec((1 << NREP) - 1)
    A(f"buffer_store_dword {v(t+4)}, {v(t+3)}, {WS}, s67 offen sc1")
    A("s_mov_b64 exec, -1")
    A.label(L)

def rnd_pair(a, b, t):
    A(f"v_cvt_pk_bf16_f32 {v(t)}, {v(a)}, {v(b)}")
    A(f"v_lshlrev_b32 {v(a)}, 16, {v(t)}")
    A(f"v_and_b32 {v(b)}, 0xffff0000, {v(t)}")

def sincos(arg, c, sn):
    A(f"v_cos_f32 {v(c)}, {v(arg)}")
    A(f"v_sin_f32 {v(sn)}, {v(arg)}")

def prefetch_weights(t):
    if not opt("pref", 0):
        return
    srd(84, 46, 2211840)
    A(f"v_lshlrev_b32 {v(t)}, 4, v0")
    A(f"s_sub_u32 s60, s2, {C0}")
    for r in range(7):
        Ls, Ld = A.newlabel("Lpf"), A.newlabel("Lpf")
        A(f"s_add_u32 s61, s60, {235 * r}")
        A(f"s_cmp_ge_u32 s61, 1620")
        A(f"s_cbranch_scc1 {Ld}")
        A(f"s_mov_b32 s84, s46")
        A(f"s_and_b32 s85, s47, 0xffff")
        for (lim, p) in ((540, 48), (540, 50)):
            A(f"s_cmp_lt_u32 s61, {lim}")
            A(f"s_cbranch_scc1 {Ls}")
            A(f"s_sub_u32 s61, s61, {lim}")
            A(f"s_mov_b32 s84, s{p}")
            A(f"s_and_b32 s85, s{p+1}, 0xffff")
        A.label(Ls)
        A(f"s_lshl_b32 s61, s61, 12")
        A(f"buffer_load_dwordx4 {v(t+4,4)}, {v(t)}, s[84:87], s61 offen")
        A.label(Ld)

def fb_start(x, d):
    A(f"s_mul_i32 {d}, {x}, 3")
    A(f"s_lshl_b32 s62, {x}, 1")
    A(f"s_add_u32 s62, s62, 3")
    A(f"s_min_u32 {d}, {d}, s62")

def nloads(part):
    return bin(part).count("1")

def warm_weights(t, first, nshare, part):
    ra, rb = -(-640 // nshare), -(-1728 // nshare)
    A("s_and_b32 s61, s2, 7")
    A(f"s_sub_u32 s60, s2, {first}")
    A("s_lshr_b32 s60, s60, 3")
    srd(84, 46, 2211840)
    if part & 5:
        A(f"v_lshrrev_b32 {v(t)}, 2, v0")
        A(f"v_and_b32 {v(t+1)}, 3, v0")
        A(f"v_min_u32 {v(t)}, {ra - 1}, {v(t)}")
        A(f"s_mul_i32 s64, s60, {ra}")
        A(f"v_add_u32 {v(t)}, s64, {v(t)}")
        A("s_mul_i32 s63, s61, 7")
        A("s_sub_u32 s63, s63, 1")
        A("s_max_i32 s63, s63, 0")
        A("s_lshl_b32 s63, s63, 6")
        A("s_and_b32 s63, s63, -128")
        A(f"v_lshl_add_u32 {v(t+1)}, {v(t+1)}, 7, s63")
        A(f"s_movk_i32 s64, 3456")
        A(f"v_mad_u32_u24 {v(t+1)}, {v(t)}, s64, {v(t+1)}")
        if part & 1:
            A(f"buffer_load_dword {v(t+3)}, {v(t+1)}, s[84:87], 0 offen")
        if part & 4:
            A("s_mov_b32 s84, s48")
            A("s_and_b32 s85, s49, 0xffff")
            A(f"buffer_load_dword {v(t+3)}, {v(t+1)}, s[84:87], 0 offen")
    if part & 2:
        A(f"v_lshrrev_b32 {v(t)}, 1, v0")
        A(f"v_and_b32 {v(t+1)}, 1, v0")
        A(f"v_min_u32 {v(t)}, {rb - 1}, {v(t)}")
        A(f"s_mul_i32 s64, s60, {rb}")
        A(f"v_add_u32 {v(t)}, s64, {v(t)}")
        fb_start("s61", "s63")
        A("s_lshl_b32 s63, s63, 6")
        A("s_and_b32 s63, s63, -128")
        A(f"v_lshl_add_u32 {v(t+1)}, {v(t+1)}, 7, s63")
        A(f"s_movk_i32 s64, 1280")
        A(f"v_mad_u32_u24 {v(t+1)}, {v(t)}, s64, {v(t+1)}")
        A("s_mov_b32 s84, s50")
        A("s_and_b32 s85, s51, 0xffff")
        A(f"buffer_load_dword {v(t+3)}, {v(t+1)}, s[84:87], 0 offen")

def warm_coop(t):
    A("s_and_b32 s61, s2, 7")
    A(f"s_sub_u32 s60, s2, {FA0 - 1}")
    A("s_lshr_b32 s60, s60, 3")
    A("s_cmp_eq_u32 s61, 0")
    A("s_cselect_b32 s62, 1, 0")
    A("s_sub_u32 s60, s60, s62")
    A("s_min_u32 s60, s60, 8")
    A("s_mul_i32 s63, s61, 7")
    A("s_sub_u32 s63, s63, 1")
    A("s_max_i32 s63, s63, 0")
    A("s_lshl_b32 s63, s63, 6")
    A("s_and_b32 s63, s63, -128")
    A(f"v_and_b32 {v(t+1)}, 3, v0")
    A(f"v_lshl_add_u32 {v(t+1)}, {v(t+1)}, 7, s63")
    A(f"s_mul_i32 s64, s60, 72")
    A(f"s_movk_i32 s65, 3456")
    srd(84, 46, 2211840)
    srd(88, 48, 2211840)
    for p in range(2 if opt("coop", 4) & 5 else 0):
        A(f"v_lshrrev_b32 {v(t)}, 2, v0")
        A(f"v_add_u32 {v(t)}, {64 * p}, {v(t)}")
        A(f"v_min_u32 {v(t)}, 71, {v(t)}")
        A(f"v_add_u32 {v(t)}, s64, {v(t)}")
        A(f"v_mad_u32_u24 {v(t)}, {v(t)}, s65, {v(t+1)}")
        if p == 1:
            set_exec(0xffffffff)
        if opt("coop", 4) & 1:
            A(f"buffer_load_dword {v(t+3)}, {v(t)}, s[84:87], 0 offen")
        if opt("coop", 4) & 4:
            A(f"buffer_load_dword {v(t+3)}, {v(t)}, s[88:91], 0 offen")
    A("s_mov_b64 exec, -1")
    fb_start("s61", "s63")
    A("s_lshl_b32 s63, s63, 6")
    A("s_and_b32 s63, s63, -128")
    A(f"v_and_b32 {v(t+1)}, 1, v0")
    A(f"v_lshl_add_u32 {v(t+1)}, {v(t+1)}, 7, s63")
    A(f"s_mul_i32 s64, s60, 192")
    A(f"s_movk_i32 s65, 1280")
    A("s_mov_b32 s84, s50")
    A("s_and_b32 s85, s51, 0xffff")
    for p in range(2 if opt("coop", 4) & 2 else 0):
        A(f"v_lshrrev_b32 {v(t)}, 1, v0")
        A(f"v_add_u32 {v(t)}, {128 * p}, {v(t)}")
        A(f"v_min_u32 {v(t)}, 191, {v(t)}")
        A(f"v_add_u32 {v(t)}, s64, {v(t)}")
        A(f"v_mad_u32_u24 {v(t)}, {v(t)}, s65, {v(t+1)}")
        A(f"buffer_load_dword {v(t+3)}, {v(t)}, s[84:87], 0 offen")
    A("s_waitcnt vmcnt(0)")

def touch(t, base, nbytes):
    if not opt("touch", 0):
        return
    n = (nbytes + 65535) >> 16
    assert n <= 256
    A(f"v_min_u32 {v(t)}, {n - 1}, v0")
    A(f"v_lshlrev_b32 {v(t)}, 16, {v(t)}")
    A(f"s_mov_b32 s60, {base + opt('touchoff', 2624)}")
    A(f"buffer_load_dword {v(t)}, {v(t)}, {WS}, s60 offen")
    A("s_waitcnt vmcnt(0)")

def nonce_load(r):
    A(f"v_mov_b32 {v(r)}, 0")
    A(f"buffer_load_dword {v(r)}, {v(r)}, {WS}, 0 offen")

def nonce_take(r):
    A(f"v_readfirstlane_b32 s{NONCE}, {v(r)}")
    A(f"s_add_u32 s{NONCE}, s{NONCE}, 0x{NONCE_C:x}")

def prologue():
    A(f"s_cmp_ge_u32 s2, {NWG}")
    A("s_cbranch_scc1 L_end")
    A("s_load_dwordx2 s[40:41], s[0:1], 96")
    A("s_load_dwordx2 s[42:43], s[0:1], 0")
    A("s_load_dwordx4 s[44:47], s[0:1], 48")
    A("s_load_dwordx4 s[48:51], s[0:1], 64")
    A("s_load_dwordx4 s[52:55], s[0:1], 80")
    if opt("codepf", 1):
        A("s_getpc_b64 s[60:61]")
        A("s_and_b32 s60, s60, -256")
        A("v_lshlrev_b32 v2, 7, v0")
        A("v_mov_b32 v3, s61")
        A("v_add_co_u32 v2, vcc, s60, v2")
        A("v_addc_co_u32 v3, vcc, 0, v3, vcc")
        A("v_cmp_gt_u32 vcc, CODE_LINES, v0")
        A("s_and_saveexec_b64 s[62:63], vcc")
        A("s_cbranch_execz L_nopf")
        A("global_load_dword v255, v[2:3], off")
        A.label("L_nopf")
        A("s_mov_b64 exec, s[62:63]")
    A("v_lshrrev_b32 v2, 6, v0")
    A("v_and_b32 v1, 63, v0")
    A(f"v_readfirstlane_b32 s{WV}, v2")
    A("s_waitcnt lgkmcnt(0)")
    srd(4, 40, WS_BYTES)
    if DSTAMPS or MSTAMPS:
        srd(92, 54, 256)
    stamp(31, dbg=(0, 0))
    A(f"s_cmp_lt_u32 s2, {C0}")
    A("s_cbranch_scc1 L_roleR")
    A(f"s_cmp_lt_u32 s2, {FA0}")
    A("s_cbranch_scc1 L_roleC")
    A(f"s_cmp_lt_u32 s2, {FB0}")
    A("s_cbranch_scc1 L_roleFa")
    A("s_branch L_roleFb")

B1R, B1I, TWC, TWS, B2R, B2I, WR, INV = 16, 28, 40, 56, 72, 88, 104, 114
X, XN, MM, RS = 116, 136, 156, 158
ACR, ACI, AF1, AF2, AC2R, AC2I = 160, 176, 192, 204, 220, 236
vX, vY0, vY1, vY2, vKX, vLC, vLYW, vLYR, vLWW, vLWR0, vWG, vTA = 2, 3, 4, 5, 6, 7, 8, 9, 10, 11, 14, 15
vTB, vWG1 = 252, 115
sRHO, sA, sS2, sRA, sME, sREP, sXO, sWB, sTB, sP, sS, sQ = 22, 23, 24, 25, 26, 27, 28, 29, 30, 32, 34, 36
sSEL = 80
s32f = 38
sTAU = 39
LDS_Y, LDS_W, LDS_NEW, LDS_KX, LDS_CONST, LDS_RG = 0, 10240, 21504, 31744, 24576, 52224

def reduce_tail(r):
    for k in (8, 4, 2, 1):
        A(f"v_add_f32_dpp {v(r)}, {v(r)}, {v(r)} row_ror:{k} row_mask:0xf bank_mask:0xf")

def tau_of(w, t, scale):
    A(f"v_pk_mul_f32 {v(t,2)}, {v(w,2)}, {v(w,2)}")
    for i in range(2, 10, 2):
        A(f"v_pk_fma_f32 {v(t,2)}, {v(w+i,2)}, {v(w+i,2)}, {v(t,2)}")
    A(f"v_add_f32 {v(t)}, {v(t)}, {v(t+1)}")
    for sw in ("32", "16"):
        A(f"v_mov_b32 {v(t+1)}, {v(t)}")
        A(f"v_permlane{sw}_swap_b32 {v(t)}, {v(t+1)}")
        A(f"v_add_f32 {v(t)}, {v(t)}, {v(t+1)}")
    reduce_tail(t)
    A(f"v_sqrt_f32 {v(t)}, {v(t)}")
    A(f"v_mul_f32 {v(t)}, {f32(scale * opt('tau', 150) / 100)}, {v(t)}")

def ln_stats(xb, t):
    S_, Q_, D0, D1 = t, t + 2, t + 4, t + 6
    A(f"v_readfirstlane_b32 s{sP}, {v(xb)}")
    A(f"v_readfirstlane_b32 s{sP+1}, {v(xb+1)}")
    for i in range(10):
        D = S_ if i == 0 else (D0 if i % 2 else D1)
        A(f"v_pk_add_f32 {v(D,2)}, {v(xb+2*i,2)}, {s(sP,2)} neg_lo:[0,1] neg_hi:[0,1]")
        if i == 0:
            A(f"v_pk_mul_f32 {v(Q_,2)}, {v(D,2)}, {v(D,2)}")
        else:
            A(f"v_pk_add_f32 {v(S_,2)}, {v(S_,2)}, {v(D,2)}")
            A(f"v_pk_fma_f32 {v(Q_,2)}, {v(D,2)}, {v(D,2)}, {v(Q_,2)}")
    A(f"v_permlane32_swap_b32 {v(S_)}, {v(S_+1)}")
    A(f"v_permlane32_swap_b32 {v(Q_)}, {v(Q_+1)}")
    A(f"v_add_f32 {v(S_)}, {v(S_)}, {v(S_+1)}")
    A(f"v_add_f32 {v(Q_)}, {v(Q_)}, {v(Q_+1)}")
    A(f"v_permlane16_swap_b32 {v(S_)}, {v(Q_)}")
    A(f"v_add_f32 {v(S_)}, {v(S_)}, {v(Q_)}")
    reduce_tail(S_)
    A(f"v_readlane_b32 s{sS}, {v(S_)}, 0")
    A(f"v_readlane_b32 s{sS+1}, {v(S_)}, 32")
    A(f"v_readlane_b32 s{sQ}, {v(S_)}, 16")
    A(f"v_readlane_b32 s{sQ+1}, {v(S_)}, 48")
    A(f"v_pk_mul_f32 {v(MM,2)}, {s(sS,2)}, {v(INV,2)} op_sel_hi:[1,0]")
    A(f"v_pk_mul_f32 {v(RS,2)}, {s(sQ,2)}, {v(INV,2)} op_sel_hi:[1,0]")
    A(f"v_pk_fma_f32 {v(RS,2)}, {v(MM,2)}, {v(MM,2)}, {v(RS,2)} neg_lo:[1,0,0] neg_hi:[1,0,0]")
    A(f"v_pk_add_f32 {v(MM,2)}, {v(MM,2)}, {s(sP,2)}")
    A(f"v_max_f32 {v(RS)}, 0, {v(RS)}")
    A(f"v_max_f32 {v(RS+1)}, 0, {v(RS+1)}")
    rnd_pair(RS, RS + 1, D0)
    A(f"v_add_f32 {v(RS)}, {f32(1e-5)}, {v(RS)}")
    A(f"v_add_f32 {v(RS+1)}, {f32(1e-5)}, {v(RS+1)}")
    rnd_pair(RS, RS + 1, D0)
    A(f"v_sqrt_f32 {v(RS)}, {v(RS)}")
    A(f"v_sqrt_f32 {v(RS+1)}, {v(RS+1)}")
    rnd_pair(MM, MM + 1, D1)
    rnd_pair(RS, RS + 1, D0)
    A(f"v_rcp_f32 {v(RS)}, {v(RS)}")
    A(f"v_rcp_f32 {v(RS+1)}, {v(RS+1)}")

def ln_center_scale(xb, zb, t, exact=True):
    if not exact:
        A(f"v_pk_mul_f32 {v(t,2)}, {v(MM,2)}, {v(RS,2)} neg_lo:[1,0] neg_hi:[1,0]")
        for i in range(10):
            A(f"v_pk_fma_f32 {v(zb+2*i,2)}, {v(xb+2*i,2)}, {v(RS,2)}, {v(t,2)}")
        return
    for i in range(10):
        A(f"v_pk_add_f32 {v(zb+2*i,2)}, {v(xb+2*i,2)}, {v(MM,2)} neg_lo:[0,1] neg_hi:[0,1]")
        if exact:
            rnd_pair(zb + 2 * i, zb + 2 * i + 1, t + (i % 4))
    for i in range(10):
        A(f"v_pk_mul_f32 {v(zb+2*i,2)}, {v(zb+2*i,2)}, {v(RS,2)}")

def pack_rows(zb, pa, pb):
    for u in range(5):
        A(f"v_cvt_pk_bf16_f32 {v(pa+u)}, {v(zb+4*u)}, {v(zb+4*u+2)}")
        A(f"v_cvt_pk_bf16_f32 {v(pb+u)}, {v(zb+4*u+1)}, {v(zb+4*u+3)}")

def unpack_rows(zb, pa, pb):
    for u in range(5):
        A(f"v_lshlrev_b32 {v(zb+4*u)}, 16, {v(pa+u)}")
        A(f"v_and_b32 {v(zb+4*u+2)}, 0xffff0000, {v(pa+u)}")
        A(f"v_lshlrev_b32 {v(zb+4*u+1)}, 16, {v(pb+u)}")
        A(f"v_and_b32 {v(zb+4*u+3)}, 0xffff0000, {v(pb+u)}")

def store_rows(pa, pa4, pb, pb4, off, sb=sTB):
    A(f"buffer_store_dwordx4 {v(pa,4)}, {v(vTA)}, {WS}, s{sb} offen offset:{off} sc1")
    A(f"buffer_store_dword {v(pa4)}, {v(vTB)}, {WS}, s{sb} offen offset:{off} sc1")
    A(f"buffer_store_dwordx4 {v(pb,4)}, {v(vTA)}, {WS}, s{sb+1} offen offset:{off} sc1")
    A(f"buffer_store_dword {v(pb4)}, {v(vTB)}, {WS}, s{sb+1} offen offset:{off} sc1")

def to_f16(zb, t, sub=None):
    for i in range(10):
        if EXACT:
            rnd_pair(zb + 2 * i, zb + 2 * i + 1, t + (i % 4))
        A(f"v_cvt_pk_f16_f32 {v(AF1+i)}, {v(zb+2*i)}, {v(zb+2*i+1)}")
        if sub is not None:
            A(f"v_pk_add_f16 {v(AF1+i)}, {v(AF1+i)}, {v(sub(i))} neg_lo:[0,1] neg_hi:[0,1]")

def row_dft(t, shadow1=None, shadow2=None):
    for kk in range(3):
        c = "0" if kk == 0 else None
        A(f"v_mfma_f32_32x32x16_f16 {v(ACR,16)}, {v(AF1+4*kk,4)}, {v(B1R+4*kk,4)}, {c or v(ACR,16)}")
        A(f"v_mfma_f32_32x32x16_f16 {v(ACI,16)}, {v(AF1+4*kk,4)}, {v(B1I+4*kk,4)}, {c or v(ACI,16)}")
    if shadow1:
        shadow1()
    for kk in range(4):
        for i in (4 * kk, 4 * kk + 2):
            pr, pi = t + (i % 4) * 2, t + (i % 4) * 2 + 2
            A(f"v_pk_mul_f32 {v(pr,2)}, {v(ACR+i,2)}, {v(TWC+i,2)}")
            A(f"v_pk_mul_f32 {v(pi,2)}, {v(ACI+i,2)}, {v(TWC+i,2)}")
            A(f"v_pk_fma_f32 {v(pr,2)}, {v(ACI+i,2)}, {v(TWS+i,2)}, {v(pr,2)}")
            A(f"v_pk_fma_f32 {v(pi,2)}, {v(ACR+i,2)}, {v(TWS+i,2)}, {v(pi,2)} neg_lo:[1,0,0] neg_hi:[1,0,0]")
            A(f"v_cvt_pk_f16_f32 {v(AF2+i)}, {v(pr)}, {v(pi)}")
            A(f"v_cvt_pk_f16_f32 {v(AF2+i+1)}, {v(pr+1)}, {v(pi+1)}")
        c = "0" if kk == 0 else None
        A(f"v_mfma_f32_32x32x16_f16 {v(AC2R,16)}, {v(AF2+4*kk,4)}, {v(B2R+4*kk,4)}, {c or v(AC2R,16)}")
        A(f"v_mfma_f32_32x32x16_f16 {v(AC2I,16)}, {v(AF2+4*kk,4)}, {v(B2I+4*kk,4)}, {c or v(AC2I,16)}")
    if shadow2:
        shadow2()

def W_stores(layer, r0, r1, r2, lds=True):
    L = A.newlabel("Lw2")
    A(f"s_add_u32 s60, s{sWB}, {W_OFF + layer * W_SZ}")
    A(f"s_add_u32 s62, s60, {8192 + 112}")
    if lds:
        A("s_waitcnt lgkmcnt(2)")
    A(f"buffer_store_dwordx4 {v(r0,4)}, {v(vWG)}, {WS}, s60 offen sc1")
    if lds:
        A("s_waitcnt lgkmcnt(0)")
    A(f"buffer_store_dwordx4 {v(r1,4)}, {v(vWG1)}, {WS}, s60 offen sc1")
    A(f"s_cmp_ge_u32 s{WV}, 2")
    A(f"s_cbranch_scc1 {L}")
    if lds:
        A(f"ds_read2st64_b32 {v(r2,2)}, {v(vLWR0+2)} offset0:0 offset1:11")
        A(f"ds_read2st64_b32 {v(r2+2,2)}, {v(vLWR0+2)} offset0:22 offset1:33")
        A("s_waitcnt lgkmcnt(0)")
    A(f"buffer_store_dwordx4 {v(r2,4)}, {v(vWG)}, {WS}, s62 offen sc1")
    A.label(L)

def write_W(layer):
    k = 2 * layer
    for i in range(10):
        A(f"v_cvt_pk_f16_f32 {v(ACR+i)}, {v(AC2R+i)}, {v(AC2I+i)}")
        A(f"ds_write_b32 {v(vLWW)}, {v(ACR+i)} offset:{4*i}")
    A("s_waitcnt lgkmcnt(0)")
    A("s_barrier")
    for j in range(2):
        A(f"ds_read2st64_b32 {v(ACI+4*j,2)}, {v(vLWR0+j)} offset0:0 offset1:11")
        A(f"ds_read2st64_b32 {v(ACI+4*j+2,2)}, {v(vLWR0+j)} offset0:22 offset1:33")
    if EARLY_R == 0:
        arrive_issue(k, sME, AF2)
    W_stores(layer, ACI, ACI + 4, ACI + 8)
    if EARLY_R == 0:
        arrive_finish(k, sME, 15, AF2, 3)
    if (layer == 1 and DRAIN2) or (layer == 0 and DRAIN0):
        A("s_waitcnt vmcnt(0)")
        A("s_barrier")
        arrive_issue(k, sME, AF2)
        arrive_finish(k, sME, 15, AF2, 0)

def stage_Y(layer, first=None):
    c0, c1, c2, t = ACR, ACR + 4, ACR + 8, ACR + 16
    loop, L2, L4, L5, done = [A.newlabel("Ly") for _ in range(5)]
    A(f"s_mov_b32 s60, {Y_OFF + layer * Y_SZ}")
    A(f"s_mov_b32 s62, {SPIN}")
    for k in range(4):
        A(f"v_mov_b32 {v(c2+k)}, 0")
    if first:
        first()
    A.label(loop)
    A(f"buffer_load_dwordx4 {v(c0,4)}, {v(vY0)}, {WS}, s60 offen sc1")
    A(f"buffer_load_dwordx4 {v(c1,4)}, {v(vY1)}, {WS}, s60 offen sc1")
    A(f"s_cmp_ge_u32 s{WV}, 2")
    A(f"s_cbranch_scc1 {L2}")
    A(f"buffer_load_dwordx4 {v(c2,4)}, {v(vY2)}, {WS}, s60 offen sc1")
    A.label(L2)
    A("s_waitcnt vmcnt(0)")
    if layer == 0 or not DRAIN2:
        any_sentinel(range(c0, c0 + 12), t, done)
        spin_tail(loop, 62, 2)
    A.label(done)
    A(f"ds_write2st64_b32 {v(vLYW)}, {v(c0)}, {v(c0+1)} offset0:0 offset1:10")
    A(f"ds_write2st64_b32 {v(vLYW)}, {v(c0+2)}, {v(c0+3)} offset0:20 offset1:30")
    A(f"s_cmp_eq_u32 s{WV}, 0")
    A(f"s_cbranch_scc1 {L4}")
    for k in range(4):
        A(f"v_alignbit_b32 {v(t+k)}, {v(c1+3-k)}, {v(c1+3-k)}, 16")
    for k in range(4):
        A(f"v_mov_b32 {v(c1+k)}, {v(t+k)}")
    A.label(L4)
    A(f"ds_write2st64_b32 {v(vLYW)}, {v(c1)}, {v(c1+1)} offset0:4 offset1:14")
    A(f"ds_write2st64_b32 {v(vLYW)}, {v(c1+2)}, {v(c1+3)} offset0:24 offset1:34")
    A(f"s_cmp_ge_u32 s{WV}, 2")
    A(f"s_cbranch_scc1 {L5}")
    for k in range(4):
        A(f"v_alignbit_b32 {v(t+k)}, {v(c2+3-k)}, {v(c2+3-k)}, 16")
    A(f"ds_write2st64_b32 {v(vLYW)}, {v(t)}, {v(t+1)} offset0:8 offset1:18")
    A(f"ds_write2st64_b32 {v(vLYW)}, {v(t+2)}, {v(t+3)} offset0:28 offset1:38")
    A.label(L5)
    A("s_waitcnt lgkmcnt(0)")
    A("s_barrier")

def router_publish(layer, t, pa, pb):
    R_ = t
    for i in range(10):
        os_ = i & 1
        wv = v(WR + (i & ~1), 2)
        if i == 0:
            A(f"v_pk_mul_f32 {v(R_,2)}, {v(XN,2)}, {wv} op_sel:[0,{os_}] op_sel_hi:[1,{os_}]")
        else:
            A(f"v_pk_fma_f32 {v(R_,2)}, {v(XN+2*i,2)}, {wv}, {v(R_,2)} op_sel:[0,{os_},0] op_sel_hi:[1,{os_},1]")
    fill = []
    if not EXACT1:
        for u in range(5):
            fill.append(f"v_cvt_pk_bf16_f32 {v(pa+u)}, {v(XN+4*u)}, {v(XN+4*u+2)}")
            fill.append(f"v_cvt_pk_bf16_f32 {v(pb+u)}, {v(XN+4*u+1)}, {v(XN+4*u+3)}")
    def pad(n=2):
        for _ in range(n):
            if fill:
                A(fill.pop(0))
    pad()
    A(f"v_permlane32_swap_b32 {v(R_)}, {v(R_+1)}")
    A(f"v_add_f32 {v(R_)}, {v(R_)}, {v(R_+1)}")
    A(f"v_mov_b32 {v(R_+1)}, {v(R_)}")
    pad()
    A(f"v_permlane16_swap_b32 {v(R_)}, {v(R_+1)}")
    A(f"v_add_f32 {v(R_)}, {v(R_)}, {v(R_+1)}")
    for k in (8, 4, 2, 1):
        pad()
        A(f"v_add_f32_dpp {v(R_)}, {v(R_)}, {v(R_)} row_ror:{k} row_mask:0xf bank_mask:0xf")
    pad(10)
    A(f"v_cmp_le_f32 vcc, s{sTAU}, {v(R_)}")
    A(f"v_readlane_b32 s71, {v(R_)}, 32")
    A("s_mov_b64 s[56:57], vcc")
    for row, (p_, half) in enumerate(((pa, "vcc_lo"), (pb, "vcc_hi"))):
        Lr = A.newlabel("Lcand")
        A(f"s_cmp_eq_u32 {half}, 0")
        A(f"s_cbranch_scc1 {Lr}")
        A(f"buffer_store_dwordx4 {v(p_,4)}, {v(vTA)}, {WS}, s{sTB+row} offen sc1")
        A(f"buffer_store_dword {v(p_+4)}, {v(vTB)}, {WS}, s{sTB+row} offen sc1")
        A.label(Lr)
    A(f"s_lshl_b32 s70, s{WV}, 2")
    A(f"s_add_u32 s70, s70, {LDS_RG}")
    A(f"v_mov_b32 {v(R_+2)}, s70")
    A(f"v_cvt_pk_bf16_f32 {v(R_)}, {v(R_)}, s71")
    A(f"v_lshrrev_b32 {v(R_+1)}, 15, {v(R_)}")
    A(f"v_and_b32 {v(R_+1)}, 0x10001, {v(R_+1)}")
    A(f"v_mul_u32_u24 {v(R_+1)}, 0x7fff, {v(R_+1)}")
    A(f"v_or_b32 {v(R_+1)}, 0x80008000, {v(R_+1)}")
    A(f"v_xor_b32 {v(R_)}, {v(R_)}, {v(R_+1)}")
    A(f"v_min_u32 {v(R_)}, -2, {v(R_)}")
    A("s_mov_b64 exec, 1")
    A(f"ds_write_b32 {v(R_+2)}, {v(R_)}")
    A("s_mov_b64 exec, -1")
    A("s_waitcnt vmcnt(0) lgkmcnt(0)")
    A("s_barrier")
    L = A.newlabel("Lrp")
    A(f"s_cmp_lg_u32 s{WV}, 0")
    A(f"s_cbranch_scc1 {L}")
    A(f"ds_read_b128 {v(R_+4,4)}, {v(R_+2)}")
    A(f"v_lshlrev_b32 {v(R_+2)}, {RSH + 8}, v1")
    A(f"s_lshl_b32 s73, s{sRHO}, {RSH}")
    A(f"s_add_u32 s73, s73, {RG_OFF + layer * NRR * RG_REP}")
    set_exec((1 << NRR) - 1)
    A("s_waitcnt lgkmcnt(0)")
    A(f"buffer_store_dwordx4 {v(R_+4,4)}, {v(R_+2)}, {WS}, s73 offen sc1")
    A("s_mov_b64 exec, -1")
    A.label(L)

def roleR():
    A.label("L_roleR")
    prio(2)
    srd(8, 42, 2621440)
    A("s_and_b32 s60, s2, 7")
    A("s_lshr_b32 s61, s2, 3")
    A(f"s_lshr_b32 s{sA}, s61, 3")
    A("s_and_b32 s61, s61, 7")
    A("s_lshl_b32 s60, s60, 3")
    A("s_sub_u32 s62, 56, s60")
    A(f"s_cmp_lt_u32 s{sA}, 2")
    A("s_cselect_b32 s60, s60, s62")
    A(f"s_add_u32 s{sS2}, s60, s61")
    A(f"s_lshl_b32 s60, s{sA}, 9")
    A(f"s_lshl_b32 s61, s{WV}, 7")
    A(f"s_add_u32 s{sRA}, s60, s61")
    A(f"s_add_u32 s{sRA}, s{sRA}, s{sS2}")
    A(f"s_mul_i32 s{sXO}, s{sRA}, 1280")
    A(f"s_add_u32 s63, s{sXO}, {64 * 1280}")
    T = ACR
    n, h = T, T + 1
    A(f"v_and_b32 {v(n)}, 31, v1")
    A(f"v_lshrrev_b32 {v(h)}, 5, v1")
    A(f"v_mul_u32_u24 {v(vX)}, 640, {v(h)}")
    A(f"v_lshl_add_u32 {v(vX)}, {v(n)}, 1, {v(vX)}")
    for i in range(10):
        A(f"v_mov_b32 {v(X+2*i)}, 0")
        A(f"v_mov_b32 {v(X+2*i+1)}, 0")
        A(f"buffer_load_short_d16_hi {v(X+2*i)}, {v(vX)}, {SRD1}, s{sXO} offen offset:{64*i}")
        A(f"buffer_load_short_d16_hi {v(X+2*i+1)}, {v(vX)}, {SRD1}, s63 offen offset:{64*i}")
    NV = XN
    nonce_load(NV)
    ONES = XN + 4
    A(f"s_lshl_b32 s{sRHO}, s{sA}, 6")
    A(f"s_add_u32 s{sRHO}, s{sRHO}, s{sS2}")
    A(f"s_mul_i32 s{sWB}, s{sRHO}, {WROW}")
    for k in range(4):
        A(f"v_mov_b32 {v(ONES+k)}, -1")
    A(f"v_lshlrev_b32 {v(vWG)}, 4, v0")
    A(f"v_add_u32 {v(vWG1)}, {4096 + 112}, {v(vWG)}")
    A(f"v_add_u32 {v(T+2)}, 4096, {v(vWG)}")
    A(f"v_cmp_gt_u32 vcc, 65, v0")
    A(f"v_cndmask_b32 {v(vWG1)}, {v(vWG1)}, {v(T+2)}, vcc")
    A(f"v_lshlrev_b32 {v(T+4)}, 3, v0")
    A(f"s_lshl_b32 s61, s{sRHO}, 11")
    A(f"s_add_u32 s61, s61, {RESET_OFF}")
    A(f"buffer_store_dwordx2 {v(ONES,2)}, {v(T+4)}, {WS}, s61 offen sc1")
    if not DRAIN0:
        W_stores(0, ONES, ONES, ONES, lds=False)
    PREFR = opt("prefr", 0)
    if PREFR == 1:
        warm_weights(AC2R, 0, 32, PPART)
    e1, e1s, base, arg, c_, s_ = T + 6, T + 7, T + 8, T + 9, T + 10, T + 11
    hf_, wf, lc = T + 12, T + 13, T + 14
    G0 = T + 16
    A(f"v_bfe_u32 {v(e1)}, {v(n)}, 2, 1")
    A(f"v_mul_u32_u24 {v(e1)}, 10, {v(e1)}")
    A(f"v_and_b32 {v(arg)}, 3, {v(n)}")
    A(f"v_add_u32 {v(e1)}, {v(e1)}, {v(arg)}")
    A(f"v_lshrrev_b32 {v(arg)}, 3, {v(n)}")
    A(f"v_lshl_add_u32 {v(e1)}, {v(arg)}, 2, {v(e1)}")
    A(f"v_cvt_f32_u32 {v(e1)}, {v(e1)}")
    A(f"v_cvt_f32_u32 {v(hf_)}, {v(h)}")
    A(f"v_cvt_f32_u32 {v(wf)}, s{WV}")
    A(f"s_lshl_b32 s60, s{WV}, 10")
    A(f"s_add_u32 s60, s60, {LDS_CONST}")
    A(f"v_lshl_add_u32 {v(lc)}, v1, 4, s60")
    A(f"v_mul_f32 {v(e1s)}, {f32(1/20)}, {v(e1)}")
    A(f"v_mul_f32 {v(base)}, {f32(10.0)}, {v(hf_)}")
    A(f"v_fma_f32 {v(base)}, 4.0, {v(wf)}, {v(base)}")
    A(f"v_mul_f32 {v(base)}, {v(e1s)}, {v(base)}")
    A(f"s_cmp_lt_u32 s{WV}, 2")
    A(f"s_cselect_b64 s[64:65], -1, 0")
    for r in range(4):
        A(f"v_fmamk_f32 {v(arg)}, {v(e1s)}, {f32(r)}, {v(base)}")
        sincos(arg, c_, s_)
        A(f"v_cvt_pk_f16_f32 {v(G0+r)}, {v(c_)}, {v(s_)}")
        A(f"v_cvt_pk_f16_f32 {v(G0+4+r)}, -{v(s_)}, {v(c_)}")
        if r >= 2:
            A(f"v_cndmask_b32 {v(G0+r)}, 0, {v(G0+r)}, s[64:65]")
            A(f"v_cndmask_b32 {v(G0+4+r)}, 0, {v(G0+4+r)}, s[64:65]")
    A(f"ds_write_b128 {v(lc)}, {v(G0,4)}")
    A(f"ds_write_b128 {v(lc)}, {v(G0+4,4)} offset:4096")
    A(f"v_mul_f32 {v(wf)}, {f32(8.0)}, {v(wf)}")
    A(f"v_fma_f32 {v(wf)}, 4.0, {v(hf_)}, {v(wf)}")
    A(f"v_mul_f32 {v(e1s)}, {f32(1/640)}, {v(e1)}")
    A(f"v_mul_f32 {v(base)}, {v(e1s)}, {v(wf)}")
    for r in range(4):
        A(f"v_fmamk_f32 {v(arg)}, {v(e1s)}, {f32(r)}, {v(base)}")
        sincos(arg, G0 + 8 + r, G0 + 12 + r)
    A(f"ds_write_b128 {v(lc)}, {v(G0+8,4)} offset:8192")
    A(f"ds_write_b128 {v(lc)}, {v(G0+12,4)} offset:12288")
    A(f"v_cvt_f32_u32 {v(e1s)}, {v(n)}")
    A(f"v_mul_f32 {v(e1s)}, {f32(1/32)}, {v(e1s)}")
    A(f"v_mul_f32 {v(base)}, {v(e1s)}, {v(wf)}")
    for r in range(4):
        A(f"v_fmamk_f32 {v(arg)}, {v(e1s)}, {f32(r)}, {v(base)}")
        sincos(arg, c_, s_)
        A(f"v_cvt_pk_f16_f32 {v(G0+16+r)}, {v(c_)}, {v(s_)}")
        A(f"v_cvt_pk_f16_f32 {v(G0+20+r)}, -{v(s_)}, {v(c_)}")
    A(f"ds_write_b128 {v(lc)}, {v(G0+16,4)} offset:16384")
    A(f"ds_write_b128 {v(lc)}, {v(G0+20,4)} offset:20480")
    A(f"v_mov_b32 {v(AF1+10)}, 0")
    A(f"v_mov_b32 {v(AF1+11)}, 0")
    A(f"v_lshlrev_b32 {v(vLC)}, 4, v1")
    A(f"v_add_u32 {v(vLC)}, {LDS_CONST}, {v(vLC)}")
    A(f"v_mov_b32 {v(INV)}, {f32(1/640)}")
    A(f"s_mov_b32 s{s32f}, {f32(32.0)}")
    A(f"s_and_b32 s{sME}, s2, 15")
    A(f"v_mul_u32_u24 {v(vLWW)}, 21, {v(n)}")
    A(f"v_mad_u32_u24 {v(vLWW)}, {v(h)}, 10, {v(vLWW)}")
    A(f"s_mul_i32 s60, s{WV}, 704")
    A(f"s_add_u32 s60, s60, {LDS_W // 4}")
    A(f"v_add_lshl_u32 {v(vLWW)}, {v(vLWW)}, s60, 2")
    A("s_waitcnt lgkmcnt(0)")
    A("s_barrier")
    for (dst, ng, off) in ((B1R, 3, 0), (B1I, 3, 4096), (TWC, 4, 8192), (TWS, 4, 12288)):
        for gq in range(ng):
            A(f"ds_read_b128 {v(dst+4*gq,4)}, {v(vLC)} offset:{off + 1024*gq}")
    for j in range(3):
        A(f"v_add_u32 {v(arg)}, {256*j}, v0")
        A(f"v_mul_u32_u24 {v(c_)}, 3277, {v(arg)}")
        A(f"v_lshrrev_b32 {v(c_)}, 16, {v(c_)}")
        A(f"v_add_u32 {v(arg)}, {v(arg)}, {v(c_)}")
        A(f"v_lshlrev_b32 {v(arg)}, 2, {v(arg)}")
        A(f"v_add_u32 {v(vLWR0+j)}, {LDS_W}, {v(arg)}")
    A(f"v_lshlrev_b32 {v(vTA)}, 4, v1")
    A(f"v_lshlrev_b32 {v(vTB)}, 2, v1")
    A(f"v_add_u32 {v(vTB)}, 1024, {v(vTB)}")
    A(f"s_mul_i32 s{sTB}, s{sRA}, {T_REC}")
    A(f"s_add_u32 s{sTB}, s{sTB}, {T_OFF}")
    A(f"s_add_u32 s{sTB+1}, s{sTB}, {64 * T_REC}")
    stamp(0, dbg=(1, 0))
    ARV = 204
    A(f"s_waitcnt vmcnt({(1 if DRAIN0 else 3) + (nloads(PPART) if PREFR == 1 else 0)})")
    nonce_take(NV)
    stamp(10, dbg=(2, 0))
    if EARLY_R == 2:
        arrive_issue(0, sME, ARV)
    ln_stats(X, ACR)
    for (dst, ng, off) in ((B2R, 4, 16384), (B2I, 4, 20480)):
        for gq in range(ng):
            A(f"ds_read_b128 {v(dst+4*gq,4)}, {v(vLC)} offset:{off + 1024*gq}")
    ln_center_scale(X, XN, ACR, EXACT)
    to_f16(XN, ACR)
    if DRAIN0:
        A("s_waitcnt lgkmcnt(0)")
    else:
        A("s_waitcnt vmcnt(0) lgkmcnt(0)")
        A("s_barrier")
        arrive_issue(0, sME, XN + 8)
    def fill_xn1():
        for k in range(4):
            A(f"v_mov_b32 {v(XN+16+k)}, -1")
        store_rows(XN + 16, XN + 16, XN + 16, XN + 16, 0)
    row_dft(XN, None, (lambda: arrive_finish(0, sME, 15, XN + 8, 0)) if not DRAIN0 else None)
    stamp(11)
    write_W(0)
    stamp(1, dbg=(3, 0))
    if PREFR == 2:
        warm_weights(AC2R, 0, 32, PPART)
    srd(12, 52, 2621440)
    srd(16, 44, 1280)
    for i in range(10):
        A(f"v_mov_b32 {v(WR+i)}, 0")
        A(f"buffer_load_short_d16_hi {v(WR+i)}, {v(vX)}, {SRD3}, 0 offen offset:{64*i}")
    A(f"v_and_b32 {v(n)}, 31, v1")
    A(f"v_lshrrev_b32 {v(h)}, 5, v1")
    A(f"v_lshlrev_b32 {v(vLYW)}, 2, v0")
    A(f"v_mul_u32_u24 {v(vLYR)}, 320, {v(h)}")
    A(f"s_mul_i32 s60, s{WV}, 640")
    A(f"v_add3_u32 {v(vLYR)}, {v(vLYR)}, {v(n)}, s60")
    A(f"v_lshlrev_b32 {v(vLYR)}, 2, {v(vLYR)}")
    A(f"s_sub_u32 s60, 3, s{sA}")
    A(f"s_lshl_b32 s60, s60, 6")
    A(f"s_sub_u32 s61, 64, s{sS2}")
    A(f"s_add_u32 s60, s60, s61")
    A(f"s_lshl_b32 s60, s60, 4")
    A(f"s_lshl_b32 s61, s{sA}, 4")
    A(f"s_add_u32 s61, s61, {YM_OFF}")
    A(f"s_cmp_eq_u32 s{sS2}, 0")
    A(f"s_cselect_b32 s60, s61, s60")
    A(f"s_cselect_b32 s61, 6, 12")
    A(f"s_lshl_b32 s62, s{sRHO}, 4")
    A(f"v_lshlrev_b32 {v(vY0)}, 12, v0")
    A(f"v_add_u32 {v(vY0)}, s62, {v(vY0)}")
    A(f"v_sub_u32 {v(arg)}, 384, v0")
    A(f"v_lshlrev_b32 {v(arg)}, s61, {v(arg)}")
    A(f"v_add_u32 {v(vY1)}, s60, {v(arg)}")
    A(f"v_add_u32 {v(c_)}, {256 << 12}, {v(vY0)}")
    A(f"v_cmp_gt_u32 vcc, 64, v0")
    A(f"v_cndmask_b32 {v(vY1)}, {v(vY1)}, {v(c_)}, vcc")
    A(f"v_sub_u32 {v(arg)}, 128, v0")
    A(f"v_and_b32 {v(arg)}, 0xff, {v(arg)}")
    A(f"v_lshlrev_b32 {v(arg)}, s61, {v(arg)}")
    A(f"v_add_u32 {v(vY2)}, s60, {v(arg)}")
    A(f"s_mul_i32 s60, s{WV}, 5120")
    A(f"s_add_u32 s60, s60, {LDS_KX}")
    A(f"v_lshl_add_u32 {v(vKX)}, v1, 4, s60")
    A(f"s_and_b32 s{sREP}, s2, {NREP - 1}")
    A(f"s_lshl_b32 s{sREP}, s{sREP}, {FSH + 4}")
    A("s_waitcnt vmcnt(0)")
    tau_of(WR, ACR, 1.0)
    A(f"v_readfirstlane_b32 s{sTAU}, {v(ACR)}")
    if opt("touch", 0) > 1:
        touch(ACR, Y_OFF, 2 * Y_SZ)
    poll_flags(1, sREP, ACR)
    stamp(2, dbg=(7, 0))
    stage_Y(0)
    stamp(13)
    if not DRAIN2:
        for k in range(4):
            A(f"v_mov_b32 {v(AF2+k)}, -1")
        W_stores(1, AF2, AF2, AF2, lds=False)
    for i in range(10):
        A(f"ds_read_b32 {v(ACI+i)}, {v(vLYR)} offset:{128*i}")
    for i in range(10):
        A(f"s_waitcnt lgkmcnt({9-i})")
        A(f"v_fma_mix_f32 {v(X+2*i)}, {v(ACI+i)}, s{s32f}, {v(X+2*i)} op_sel:[0,0,0] op_sel_hi:[1,0,0]")
        A(f"v_fma_mix_f32 {v(X+2*i+1)}, {v(ACI+i)}, s{s32f}, {v(X+2*i+1)} op_sel:[1,0,0] op_sel_hi:[1,0,0]")
    PA, PB = AC2R, AC2R + 8
    pack_rows(X, PA, PB)
    unpack_rows(X, PA, PB)
    A(f"ds_write_b128 {v(vKX)}, {v(PA,4)} offset:2048")
    A(f"ds_write_b128 {v(vKX)}, {v(PB,4)} offset:3072")
    A(f"v_mov_b32 {v(PA+6)}, {v(PA+4)}")
    A(f"v_mov_b32 {v(PA+7)}, {v(PB+4)}")
    ln_stats(X, ACR)
    ln_center_scale(X, XN, ACR, EXACT1)
    if EXACT1:
        pack_rows(XN, PA + 16, PB + 16)
        unpack_rows(XN, PA + 16, PB + 16)
    stamp(14)
    router_publish(0, ACI, PA + 16, PB + 16)
    if not EXACT1:
        unpack_rows(XN, PA + 16, PB + 16)
    stamp(3, dbg=(8, 0))
    A(f"v_mov_b32 {v(PA+4)}, {v(PA+20)}")
    A(f"v_mov_b32 {v(PA+5)}, {v(PB+20)}")
    A(f"ds_write_b128 {v(vKX)}, {v(PA+16,4)}")
    A(f"ds_write_b128 {v(vKX)}, {v(PB+16,4)} offset:1024")
    A(f"ds_write_b128 {v(vKX)}, {v(PA+4,4)} offset:4096")
    if EARLY_R == 2:
        arrive_issue(2, sME, ARV)
    for i in range(10):
        A(f"v_pk_add_f32 {v(X+2*i,2)}, {v(X+2*i,2)}, {v(XN+2*i,2)}")
        rnd_pair(X + 2 * i, X + 2 * i + 1, ACR + (i % 4))
    ln_stats(X, ACR)
    ln_center_scale(X, XN, ACR + 8, EXACT)
    to_f16(XN, ACR + 8)
    if EARLY_R == 2:
        arrive_finish(2, sME, 15, ARV, 0)
    if not DRAIN2:
        arrive_issue(2, sME, XN + 14)
    row_dft(XN, None, (lambda: arrive_finish(2, sME, 15, XN + 14, 0)) if not DRAIN2 else None)
    stamp(16)
    if not opt("wlate", 0):
        write_W(1)
    stamp(4)
    A(f"s_mov_b32 s74, {X2_OFF}")
    def release(layer, row, stash, with_xn):
        R0 = ACR
        if stash:
            A(f"ds_read_b128 {v(R0,4)}, {v(vKX)} offset:{2048+1024*row}")
            A(f"ds_read_b128 {v(R0+8,4)}, {v(vKX)} offset:4096")
            if with_xn:
                A(f"ds_read_b128 {v(R0+12,4)}, {v(vKX)} offset:{1024*row}")
            x4, x1, n4, n1 = R0, R0 + 10 + row, R0 + 12, R0 + 8 + row
        else:
            P_ = PA if row == 0 else PB
            x4, x1, n4, n1 = P_, P_ + 4, P_ + 16, P_ + 20
        A(f"s_add_u32 s61, s{NONCE}, {6 + layer}")
        A(f"v_mov_b32 {v(R0+4)}, {v(MM+row)}")
        A(f"v_mov_b32 {v(R0+5)}, {v(RS+row)}")
        A(f"v_mov_b32 {v(R0+6)}, s61")
        A(f"v_mov_b32 {v(R0+7)}, s61")
        A("s_waitcnt lgkmcnt(0)")
        if with_xn:
            A(f"buffer_store_dwordx4 {v(n4,4)}, {v(vTA)}, {WS}, s{sTB+row} offen sc1")
            A(f"buffer_store_dword {v(n1)}, {v(vTB)}, {WS}, s{sTB+row} offen sc1")
        A(f"buffer_store_dwordx4 {v(x4,4)}, {v(vTA)}, {WS}, s{sTB+row} offen offset:1280 sc1")
        A(f"buffer_store_dword {v(x1)}, {v(vTB)}, {WS}, s{sTB+row} offen offset:1280 sc1")
        A("s_waitcnt vmcnt(0)")
        A("s_mov_b64 exec, 1")
        A(f"buffer_store_dwordx4 {v(R0+4,4)}, {v(vTA)}, {WS}, s{sTB+row} offen offset:2560 sc1")
        A("s_mov_b64 exec, -1")
    def release_candidates(layer, stash):
        for row in range(2):
            Ln = A.newlabel("Lrel")
            A(f"s_cmp_eq_u32 s{56+row}, 0")
            A(f"s_cbranch_scc1 {Ln}")
            release(layer, row, stash, False)
            A.label(Ln)
    def wait_sel(layer, stash):
        loop, done = A.newlabel("Lsel"), A.newlabel("Lseld")
        T2 = ACR + 16
        A(f"s_mov_b32 s60, {X2_OFF + SEL_OFF + 256 * layer}")
        A(f"v_and_b32 {v(T2)}, 7, v1")
        A(f"v_lshlrev_b32 {v(T2)}, 2, {v(T2)}")
        A(f"s_mov_b32 s62, {SPIN}")
        A.label(loop)
        A(f"buffer_load_dword {v(T2+1)}, {v(T2)}, {WS}, s60 offen sc1")
        A("s_waitcnt vmcnt(0)")
        A(f"v_cmp_eq_u32 vcc, -1, {v(T2+1)}")
        A(f"s_cbranch_vccz {done}")
        spin_tail(loop, 62, 4)
        A.label(done)
        for j in range(8):
            A(f"v_readlane_b32 s{sSEL+j}, {v(T2+1)}, {j}")
        for row in range(2):
            A(f"s_add_u32 s60, s{sRA}, {64 * row}")
            A(f"s_mov_b32 s{76+row}, -1")
            for j in range(8):
                A(f"s_cmp_eq_u32 s60, s{sSEL+j}")
                A(f"s_cselect_b32 s{76+row}, {j}, s{76+row}")
            Ln = A.newlabel("Lpush")
            A(f"s_cmp_lt_i32 s{76+row}, 0")
            A(f"s_cbranch_scc1 {Ln}")
            A(f"s_cmp_lg_u32 s{56+row}, 0")
            A(f"s_cbranch_scc1 {Ln}")
            release(layer, row, stash, True)
            A.label(Ln)
    release_candidates(0, True)
    wait_sel(0, True)
    if opt("wlate", 0):
        write_W(1)
    A(f"s_add_u32 s{sTB}, s{sTB}, {T_SZ}")
    A(f"s_add_u32 s{sTB+1}, s{sTB+1}, {T_SZ}")
    stamp(5)
    CU, CV = XN + 12, XN + 16
    tr, ca, sa, cb, sb, ar, t0, t1_ = ACR, ACR + 1, ACR + 2, ACR + 3, ACR + 4, ACR + 5, ACR + 6, ACR + 7
    A(f"v_and_b32 {v(tr)}, 1, v1")
    A(f"v_lshlrev_b32 {v(tr)}, 6, {v(tr)}")
    A(f"v_add_u32 {v(tr)}, s{sRA}, {v(tr)}")
    A(f"s_mov_b32 s64, 0x00300003")
    A(f"s_mov_b32 s65, 0x30000300")
    for p in range(4):
        for (j, cc, ss) in ((2 * p, ca, sa), (2 * p + 1, cb, sb)):
            A(f"v_mul_u32_u24 {v(ar)}, s{sSEL+j}, {v(tr)}")
            A(f"v_and_b32 {v(ar)}, 0x7ff, {v(ar)}")
            A(f"v_cvt_f32_u32 {v(ar)}, {v(ar)}")
            A(f"v_mul_f32 {v(ar)}, {f32(1/2048)}, {v(ar)}")
            sincos(ar, cc, ss)
        A(f"v_sub_f32 {v(t0)}, {v(ca)}, {v(sb)}")
        A(f"v_add_f32 {v(t1_)}, {v(sa)}, {v(cb)}")
        A(f"v_mul_f32 {v(t0)}, 0.5, {v(t0)}")
        A(f"v_mul_f32 {v(t1_)}, 0.5, {v(t1_)}")
        A(f"v_cvt_pk_f16_f32 {v(CU+p)}, {v(t0)}, {v(t1_)}")
        A(f"v_add_f32 {v(t0)}, {v(ca)}, {v(sb)}")
        A(f"v_sub_f32 {v(t1_)}, {v(cb)}, {v(sa)}")
        A(f"v_mul_f32 {v(t0)}, 0.5, {v(t0)}")
        A(f"v_mul_f32 {v(t1_)}, 0.5, {v(t1_)}")
        A(f"v_cvt_pk_f16_f32 {v(CV+p)}, {v(t0)}, {v(t1_)}")
        A(f"v_cndmask_b32 {v(CU+p)}, 0, {v(CU+p)}, s[64:65]")
        A(f"v_cndmask_b32 {v(CV+p)}, 0, {v(CV+p)}, s[64:65]")
    vE0, vDF, vDM, vP2, vNW = vLWW, vLWR0, vLWR0 + 1, vLWR0 + 2, vWG
    n, h = ACR + 8, ACR + 9
    A(f"v_and_b32 {v(n)}, 31, v1")
    A(f"v_lshrrev_b32 {v(h)}, 5, v1")
    A(f"v_mul_u32_u24 {v(vE0)}, 20, {v(n)}")
    A(f"v_mad_u32_u24 {v(vE0)}, {v(h)}, 10, {v(vE0)}")
    vER = vKX
    A(f"v_and_b32 {v(vER)}, 31, {v(vE0)}")
    A(f"v_lshrrev_b32 {v(vDF)}, 5, {v(vE0)}")
    A(f"s_lshl_b32 s60, s{WV}, 2")
    A(f"s_add_u32 s60, s60, {LDS_W}")
    A(f"v_add_u32 {v(vE0)}, {v(vE0)}, {v(vDF)}")
    A(f"v_lshl_add_u32 {v(vE0)}, {v(vE0)}, 4, s60")
    A(f"v_mul_u32_u24 {v(vDF)}, 330, {v(h)}")
    A(f"v_add_u32 {v(vDF)}, {v(vDF)}, {v(n)}")
    A(f"v_sub_u32 {v(vDM)}, 362, {v(vDF)}")
    A(f"v_lshlrev_b32 {v(vDF)}, 4, {v(vDF)}")
    A(f"v_add_u32 {v(vDF)}, {LDS_W}, {v(vDF)}")
    A(f"v_cmp_eq_u32 vcc, 0, {v(n)}")
    A(f"v_addc_co_u32 {v(vDM)}, vcc, 0, {v(vDM)}, vcc")
    A(f"v_lshlrev_b32 {v(vDM)}, 4, {v(vDM)}")
    A(f"v_add_u32 {v(vDM)}, {LDS_W}, {v(vDM)}")
    A(f"s_lshl_b32 s60, s{WV}, 8")
    A(f"v_mul_u32_u24 {v(vP2)}, 10240, {v(h)}")
    A(f"v_lshl_add_u32 {v(vP2)}, {v(n)}, 3, {v(vP2)}")
    A(f"v_add_u32 {v(vP2)}, s60, {v(vP2)}")
    A(f"s_mul_i32 s60, s{WV}, 2560")
    A(f"s_add_u32 s60, s60, {LDS_NEW}")
    A(f"v_lshl_add_u32 {v(vNW)}, v1, 2, s60")
    A(f"s_add_u32 s75, s74, 4096")
    A(f"s_add_u32 s78, s74, 8192")
    poll_flags(3, sREP, ACR)
    stamp(6, dbg=(13, 0))
    RAW = AC2R
    def x2loads():
        for i in range(10):
            so = ("s74", "s75", "s78")[i // 4]
            A(f"buffer_load_dwordx2 {v(RAW+2*i,2)}, {v(vP2)}, {WS}, {so} offen offset:{1024*(i%4)} sc1")
    stage_Y(1, x2loads)
    alldone = A.newlabel("Lx2a")
    any_sentinel(range(RAW, RAW + 20), ACR, alldone)
    loop, done = A.newlabel("Lx2"), A.newlabel("Lx2d")
    A(f"s_mov_b32 s62, {SPIN}")
    A(f"s_add_u32 s60, s74, {SEL_OFF + 128}")
    A(f"v_mov_b32 {v(ACR)}, 0")
    A.label(loop)
    A(f"buffer_load_dword {v(ACR+1)}, {v(ACR)}, {WS}, s60 offen sc1")
    A("s_waitcnt vmcnt(0)")
    A(f"v_cmp_eq_u32 vcc, -1, {v(ACR+1)}")
    A(f"s_cbranch_vccz {done}")
    spin_tail(loop, 62, 2)
    A.label(done)
    loop, done = A.newlabel("Lx2"), A.newlabel("Lx2d")
    A(f"s_mov_b32 s62, {SPIN}")
    A.label(loop)
    x2loads()
    A("s_waitcnt vmcnt(0)")
    any_sentinel(range(RAW, RAW + 20), ACR, done)
    spin_tail(loop, 62, 1)
    A.label(done)
    A.label(alldone)
    stamp(7)
    Z = ACR + 12
    for i in range(10):
        A(f"v_lshlrev_b32 {v(Z+2*i)}, 16, {v(RAW+2*i)}")
        A(f"v_and_b32 {v(Z+2*i+1)}, 0xffff0000, {v(RAW+2*i)}")
    for i in range(10):
        A(f"ds_write_b32 {v(vNW)}, {v(RAW+2*i)} offset:{256*i}")
    ln_stats(Z, ACR + 2)
    ln_center_scale(Z, Z, ACR + 2, EXACT)
    to_f16(Z, ACR + 2, sub=lambda i: RAW + 2 * i + 1)
    CBL = [16 + 4 * i for i in range(6)] + [AF1, AF1 + 4, AF1 + 8, XN + 8]
    WA = TWC
    def shadow1():
        for i in range(10):
            A(f"ds_read_b32 {v(CBL[i]+2)}, {v(vLYR)} offset:{128*i}")
        for i in range(10):
            A(f"s_waitcnt lgkmcnt({9-i})")
            A(f"v_fma_mix_f32 {v(CBL[i])}, {v(CBL[i]+2)}, s{s32f}, {v(X+2*i)} op_sel:[0,0,0] op_sel_hi:[1,0,0]")
            A(f"v_fma_mix_f32 {v(CBL[i]+1)}, {v(CBL[i]+2)}, s{s32f}, {v(X+2*i+1)} op_sel:[1,0,0] op_sel_hi:[1,0,0]")
    def shadow2():
        for i in range(10):
            A(f"v_add_u32 {v(WA+i)}, {i}, {v(vER)}")
            A(f"v_bfe_u32 {v(WA+i)}, {v(WA+i)}, 5, 1")
            A(f"v_lshl_add_u32 {v(WA+i)}, {v(WA+i)}, 4, {v(vE0)}")
    A("s_waitcnt lgkmcnt(0)")
    row_dft(XN, shadow1, shadow2)
    stamp(18)
    for i in range(10):
        A(f"v_cvt_pk_f16_f32 {v(ACR+i)}, {v(AC2R+i)}, {v(AC2I+i)}")
        A(f"ds_write_b32 {v(WA+i)}, {v(ACR+i)} offset:{16*i}")
    A("s_mov_b64 exec, 1")
    A(f"ds_write_b32 {v(vE0)}, {v(ACR)} offset:{660*16}")
    A("s_mov_b64 exec, -1")
    A("s_waitcnt lgkmcnt(0)")
    A("s_barrier")
    FRL = [40 + 4 * q for q in range(16)] + [160 + 4 * q for q in range(4)]
    def corr(k):
        A(f"v_mfma_f32_16x16x32_f16 {v(CBL[k],4)}, {v(CU,4)}, {v(FRL[2*k],4)}, {v(CBL[k],4)}")
        A(f"v_mfma_f32_16x16x32_f16 {v(CBL[k],4)}, {v(CV,4)}, {v(FRL[2*k+1],4)}, {v(CBL[k],4)}")
    for i in range(10):
        A(f"ds_read_b128 {v(FRL[2*i],4)}, {v(vDF)} offset:{528*i}")
        A(f"ds_read_b128 {v(FRL[2*i+1],4)}, {v(vDM)} offset:{528*(9-i)}")
        if i >= 6:
            A(f"s_waitcnt lgkmcnt(12)")
            corr(i - 6)
    for k in range(4, 10):
        A(f"s_waitcnt lgkmcnt({2*(9-k)})")
        corr(k)
    stamp(19)
    for row in range(2):
        Lnext = A.newlabel("Lown")
        A(f"s_cmp_lt_i32 s{76+row}, 0")
        A(f"s_cbranch_scc1 {Lnext}")
        A(f"s_lshr_b32 s62, s{76+row}, 1")
        A("s_mul_i32 s62, s62, 2560")
        A(f"s_add_u32 s62, s62, {LDS_NEW}")
        A(f"s_and_b32 s61, s{76+row}, 1")
        A("s_lshl_b32 s61, s61, 4")
        A("s_sub_u32 s61, 16, s61")
        A(f"v_lshl_add_u32 {v(240)}, v1, 2, s62")
        for i in range(10):
            A(f"ds_read_b32 {v(241+i)}, {v(240)} offset:{256*i}")
        A("s_waitcnt lgkmcnt(0)")
        for i in range(10):
            A(f"v_lshlrev_b32 {v(241+i)}, s61, {v(241+i)}")
            A(f"v_and_b32 {v(241+i)}, 0xffff0000, {v(241+i)}")
            A(f"v_sub_f32 {v(241+i)}, {v(241+i)}, {v(X+2*i+row)}")
            A(f"v_add_f32 {v(CBL[i]+row)}, {v(CBL[i]+row)}, {v(241+i)}")
        A.label(Lnext)
    for u in range(5):
        A(f"v_cvt_pk_bf16_f32 {v(PA+u)}, {v(CBL[2*u])}, {v(CBL[2*u+1])}")
        A(f"v_cvt_pk_bf16_f32 {v(PB+u)}, {v(CBL[2*u]+1)}, {v(CBL[2*u+1]+1)}")
    unpack_rows(X, PA, PB)
    ln_stats(X, ACR)
    ln_center_scale(X, XN, ACR, EXACT1)
    if EXACT1:
        pack_rows(XN, PA + 16, PB + 16)
        unpack_rows(XN, PA + 16, PB + 16)
    stamp(20)
    router_publish(1, ACI + 8, PA + 16, PB + 16)
    if not EXACT1:
        unpack_rows(XN, PA + 16, PB + 16)
    stamp(8, dbg=(14, 0))
    OB = 16
    A(f"s_mul_i32 s60, s{WV}, 2560")
    A(f"v_add_u32 {v(OB)}, s60, {v(vX)}")
    for i in range(10):
        A(f"v_pk_add_f32 {v(X+2*i,2)}, {v(X+2*i,2)}, {v(XN+2*i,2)}")
        A(f"v_cvt_pk_bf16_f32 {v(OB+2+i)}, {v(X+2*i)}, {v(X+2*i+1)}")
        A(f"ds_write_b16 {v(OB)}, {v(OB+2+i)} offset:{64*i}")
        A(f"ds_write_b16_d16_hi {v(OB)}, {v(OB+2+i)} offset:{1280+64*i}")
    A(f"v_lshlrev_b32 {v(OB+1)}, 4, v1")
    A(f"v_add_u32 {v(OB)}, s60, {v(OB+1)}")
    A("s_waitcnt lgkmcnt(0)")
    for k in range(3):
        A(f"ds_read_b128 {v(OB+12+4*k,4)}, {v(OB)} offset:{1024*k}")
    A(f"v_add_u32 {v(OB+2)}, {1024 + 63 * 1280}, {v(OB+1)}")
    A(f"v_add_u32 {v(OB+3)}, 1024, {v(OB+1)}")
    A(f"v_cmp_gt_u32 vcc, 16, v1")
    A(f"v_cndmask_b32 {v(OB+3)}, {v(OB+2)}, {v(OB+3)}, vcc")
    def out_stores():
        A("s_waitcnt lgkmcnt(0)")
        A(f"buffer_store_dwordx4 {v(OB+12,4)}, {v(OB+1)}, {SRD2}, s{sXO} offen sc1")
        A(f"buffer_store_dwordx4 {v(OB+16,4)}, {v(OB+3)}, {SRD2}, s{sXO} offen sc1")
        set_exec(0xffffffff)
        A(f"buffer_store_dwordx4 {v(OB+20,4)}, {v(OB+2)}, {SRD2}, s{sXO} offen offset:1024 sc1")
        A("s_mov_b64 exec, -1")
    OD = opt("outdelay", 0)
    if OD:
        A(f"s_lshl_b32 s73, s{sRHO}, 4")
        A(f"s_add_u32 s73, s73, {RG_OFF + NRR * RG_REP}")
        A(f"v_mov_b32 {v(ACR)}, 0")
        for _ in range(OD):
            A(f"buffer_load_dword {v(ACR+1)}, {v(ACR)}, {WS}, s73 offen sc1")
            A("s_waitcnt vmcnt(0)")
    out_stores()
    release_candidates(1, False)
    wait_sel(1, False)
    stamp(22)
    stamp(9)
    A("s_endpgm")

def roleC():
    A.label("L_roleC")
    B1, TC, TS, A2, DT, RAW, AR, AI, P, AC, O, T = 16, 32, 48, 64, 128, 160, 176, 192, 208, 224, 240, 248
    sC, sCME, sCREP, sK, sW0, sW1, sY, sLAST = 22, 23, 24, 25, 26, 27, 28, 29
    nonce_load(T + 4)
    if opt("prefc", 1) == 1:
        warm_weights(AC, C0, 29, PPART)
    A(f"s_sub_u32 s60, s2, {C0}")
    A("s_and_b32 s61, s60, 7")
    A("s_lshr_b32 s62, s60, 3")
    A("s_lshr_b32 s63, s62, 2")
    A("s_lshl_b32 s63, s63, 5")
    A("s_lshl_b32 s61, s61, 2")
    A("s_and_b32 s62, s62, 3")
    A(f"s_add_u32 s{sC}, s63, s61")
    A(f"s_add_u32 s{sC}, s{sC}, s62")
    A(f"s_and_b32 s{sCME}, s2, 15")
    A(f"s_cmp_eq_u32 s{sCME}, 0")
    A(f"s_cselect_b32 s{sLAST}, 10, 9")
    A(f"s_and_b32 s{sCREP}, s2, {NREP - 1}")
    A(f"s_lshl_b32 s{sCREP}, s{sCREP}, {FSH + 4}")
    n, g, t1, gs, arg, base, st = RAW, RAW + 1, RAW + 2, RAW + 3, RAW + 4, RAW + 5, RAW + 6
    ca, sa, cb, sb, x0, x1 = RAW + 7, RAW + 8, RAW + 9, RAW + 10, RAW + 11, RAW + 12
    A(f"v_and_b32 {v(n)}, 15, v1")
    A(f"v_lshrrev_b32 {v(g)}, 4, v1")
    A(f"s_and_b32 s70, s{WV}, 1")
    A(f"s_lshl_b32 s70, s70, 4")
    A(f"s_lshr_b32 s61, s{WV}, 1")
    A(f"v_lshrrev_b32 v2, 1, v0")
    A(f"v_and_b32 v6, 1, v0")
    A(f"s_lshl_b32 s62, s{sC}, 1")
    A(f"v_add_u32 v3, s62, v6")
    A(f"v_min_u32 v3, 320, v3")
    A(f"v_sub_u32 v4, 640, v3")
    A(f"v_cmp_ne_u32 vcc, 0, v3")
    A(f"v_cndmask_b32 v4, 0, v4, vcc")
    A(f"v_add_u32 v5, 7, v4")
    A(f"v_cmp_lt_u32 vcc, 320, v4")
    A(f"v_cndmask_b32 v4, v4, v5, vcc")
    A(f"v_mul_u32_u24 v5, {WROW}, v2")
    A(f"v_mul_u32_u24 v6, 8256, v6")
    A(f"v_lshl_add_u32 v6, v2, 4, v6")
    A(f"v_lshl_add_u32 v2, v3, 4, v5")
    A(f"v_lshl_add_u32 v3, v4, 4, v5")
    A(f"s_mul_i32 s63, s61, 8256")
    A(f"v_lshlrev_b32 v7, 10, {v(g)}")
    A(f"v_lshl_add_u32 v7, {v(n)}, 4, v7")
    A(f"v_add_u32 v7, s63, v7")
    A(f"s_add_u32 s62, s62, s61")
    A(f"s_lshl_b32 s62, s62, 12")
    A(f"v_lshl_add_u32 v8, {v(g)}, 6, {v(n)}")
    A(f"v_add_u32 v8, s70, v8")
    A(f"v_lshl_add_u32 v8, v8, 4, s62")
    A(f"s_lshr_b32 s62, s62, 6")
    A(f"s_add_u32 s62, s62, {YM_OFF + 48}")
    A(f"v_lshlrev_b32 v9, 4, {v(g)}")
    A(f"v_sub_u32 v9, s62, v9")
    def Y_stores(r0, r1, rm, sy, prep=None):
        A(f"buffer_store_dwordx4 {v(r0,4)}, v8, {WS}, {sy} offen sc1")
        A(f"buffer_store_dwordx4 {v(r1,4)}, v8, {WS}, {sy} offen offset:512 sc1")
        Lm = A.newlabel("Lym")
        A(f"s_bitcmp1_b32 s{WV}, 0")
        A(f"s_cbranch_scc1 {Lm}")
        if prep:
            prep()
        set_exec(0x0001000100010001)
        A(f"buffer_store_dwordx4 {v(rm,4)}, v9, {WS}, {sy} offen sc1")
        A("s_mov_b64 exec, -1")
        A.label(Lm)
    A(f"s_waitcnt vmcnt({nloads(PPART) if opt('prefc', 1) == 1 else 0})")
    nonce_take(T + 4)
    Li = A.newlabel("Lci")
    A(f"s_sub_u32 s60, s2, {C0}")
    A(f"s_lshl_b32 s61, s{WV}, 4")
    A(f"s_or_b32 s60, s60, s61")
    A(f"s_cmp_ge_u32 s60, 16")
    A(f"s_cbranch_scc1 {Li}")
    cnt_init(sCME, range(4), T)
    A.label(Li)
    for k in range(4):
        A(f"v_mov_b32 {v(O+k)}, -1")
    A(f"s_mov_b32 s63, {Y_OFF}")
    Y_stores(O, O, O, "s63")
    if opt("prefc", 1) == 2:
        warm_weights(AC, C0, 29, PPART)
    A(f"v_add_u32 {v(t1)}, s70, {v(n)}")
    A(f"v_cvt_f32_u32 {v(t1)}, {v(t1)}")
    A(f"v_cvt_f32_u32 {v(gs)}, {v(g)}")
    A(f"v_mul_f32 {v(st)}, {f32(1/32)}, {v(t1)}")
    A(f"v_mul_f32 {v(base)}, {v(st)}, {v(gs)}")
    A(f"v_mul_f32 {v(base)}, {f32(8.0)}, {v(base)}")
    for w in range(4):
        A(f"v_fmamk_f32 {v(arg)}, {v(st)}, {f32(2*w)}, {v(base)}")
        sincos(arg, ca, sa)
        A(f"v_add_f32 {v(arg)}, {v(arg)}, {v(st)}")
        sincos(arg, cb, sb)
        A(f"v_sub_f32 {v(x0)}, {v(ca)}, {v(sb)}")
        A(f"v_add_f32 {v(x1)}, {v(sa)}, {v(cb)}")
        A(f"v_cvt_pk_f16_f32 {v(B1+w)}, {v(x0)}, {v(x1)}")
        A(f"v_cvt_pk_f16_f32 {v(B1+4+w)}, -{v(x1)}, {v(x0)}")
        A(f"v_add_f32 {v(x0)}, {v(ca)}, {v(sb)}")
        A(f"v_sub_f32 {v(x1)}, {v(cb)}, {v(sa)}")
        A(f"v_cvt_pk_f16_f32 {v(B1+8+w)}, {v(x0)}, {v(x1)}")
        A(f"v_cvt_pk_f16_f32 {v(B1+12+w)}, {v(x1)}, -{v(x0)}")
    A(f"v_mul_f32 {v(st)}, {f32(1/2048)}, {v(t1)}")
    A(f"v_mul_f32 {v(base)}, {v(st)}, {v(gs)}")
    A(f"v_mul_f32 {v(base)}, 4.0, {v(base)}")
    for j in range(4):
        for i in range(4):
            A(f"v_fmamk_f32 {v(arg)}, {v(st)}, {f32(16*j+i)}, {v(base)}")
            sincos(arg, ca, sa)
            A(f"v_mul_f32 {v(TC+4*j+i)}, {f32(1/64)}, {v(ca)}")
            A(f"v_mul_f32 {v(TS+4*j+i)}, {f32(1/64)}, {v(sa)}")
    A(f"v_lshrrev_b32 {v(x0)}, 2, {v(n)}")
    A(f"v_lshlrev_b32 {v(x0)}, 4, {v(x0)}")
    A(f"v_and_b32 {v(x1)}, 3, {v(n)}")
    A(f"v_lshl_add_u32 {v(x0)}, {v(x1)}, 1, {v(x0)}")
    A(f"s_lshr_b32 s60, s70, 1")
    A(f"s_lshr_b32 s61, s{WV}, 1")
    A(f"s_add_u32 s60, s60, s61")
    A(f"v_add_u32 {v(x0)}, s60, {v(x0)}")
    A(f"v_cvt_f32_u32 {v(x0)}, {v(x0)}")
    A(f"v_mul_f32 {v(st)}, {f32(1/64)}, {v(x0)}")
    A(f"v_mul_f32 {v(base)}, {v(st)}, {v(gs)}")
    A(f"v_mul_f32 {v(base)}, 4.0, {v(base)}")
    A(f"s_lshl_b32 s60, s{WV}, 12")
    A(f"s_add_u32 s60, s60, 24576")
    A(f"v_lshl_add_u32 {v(x1)}, v1, 4, s60")
    for j in range(4):
        for i in range(4):
            A(f"v_fmamk_f32 {v(arg)}, {v(st)}, {f32(16*j+i)}, {v(base)}")
            sincos(arg, ca, sa)
            A(f"v_cvt_pk_f16_f32 {v(DT+4*j+i)}, {v(ca)}, {v(sa)}")
        A(f"ds_write_b128 {v(x1)}, {v(DT+4*j,4)} offset:{1024*j}")
    A(f"v_lshlrev_b32 {v(x1)}, 4, v1")
    A("s_waitcnt lgkmcnt(0)")
    A("s_barrier")
    for q in range(16):
        A(f"ds_read_b128 {v(A2+4*q,4)}, {v(x1)} offset:{24576 + 1024*q}")
        if q == 7:
            A("s_waitcnt lgkmcnt(0)")
    A("s_waitcnt vmcnt(0)")
    prio(3)
    A(f"s_mov_b32 s{sK}, 0")
    A(f"s_mov_b32 s{sW0}, {W_OFF}")
    A(f"s_mov_b32 s{sY}, {Y_OFF}")
    if opt("touch", 0) > 1:
        touch(T, W_OFF, 2 * W_SZ)
    stamp(4, dbg=(4, C0))
    A.label("L_Cloop")
    A(f"s_add_u32 s{sW1}, s{sW0}, {128 * WROW}")
    poll_flags(f"s{sK}", sCREP, T)
    stamp(0, f"s{sK}", dbg=(5, C0, 0))
    loop, done = A.newlabel("Lcw"), A.newlabel("Lcwd")
    A(f"s_add_u32 s30, s{sK}, 1")
    if EARLY_C == 2:
        arrive_issue("s30", sCME, O)
    A(f"s_mov_b32 s62, {SPIN}")
    A.label(loop)
    A(f"buffer_load_dwordx4 {v(RAW,4)}, v2, {WS}, s{sW0} offen sc1")
    A(f"buffer_load_dwordx4 {v(RAW+4,4)}, v2, {WS}, s{sW1} offen sc1")
    A(f"buffer_load_dwordx4 {v(RAW+8,4)}, v3, {WS}, s{sW0} offen sc1")
    A(f"buffer_load_dwordx4 {v(RAW+12,4)}, v3, {WS}, s{sW1} offen sc1")
    for j in range(4):
        A(f"s_waitcnt vmcnt({3-j})")
        A(f"ds_write_b128 v6, {v(RAW+4*j,4)} offset:{(j>>1)*4096 + (j&1)*2048}")
    if DRAIN2:
        A(f"s_cmp_lg_u32 s{sK}, 0")
        A(f"s_cbranch_scc1 {done}")
    if DRAIN0:
        A(f"s_cmp_eq_u32 s{sK}, 0")
        A(f"s_cbranch_scc1 {done}")
    any_sentinel(range(RAW, RAW + 16), T, done)
    spin_tail(loop, 62, 2)
    A.label(done)
    Le1, Le2, Le3 = A.newlabel("Lce"), A.newlabel("Lce"), A.newlabel("Lce")
    if DRAIN2:
        A(f"s_cmp_lg_u32 s{sK}, 0")
        A(f"s_cbranch_scc1 {Le1}")
    arrive_issue("s30", sCME, O)
    A.label(Le1)
    if EARLY_C == 2:
        arrive_finish("s30", sCME, f"s{sLAST}", O, 0)
    A("s_waitcnt lgkmcnt(0)")
    A("s_barrier")
    stamp(1, f"s{sK}")
    Lf = A.newlabel("Lcf")
    A(f"s_cmp_lg_u32 s{sK}, 0")
    A(f"s_cbranch_scc1 {Lf}")
    if not DRAIN2:
        for k in range(4):
            A(f"v_mov_b32 {v(P+k)}, -1")
        A(f"s_mov_b32 s63, {Y_OFF + Y_SZ}")
        Y_stores(P, P, P, "s63")
    A.label(Lf)
    for j in range(4):
        A(f"ds_read_b128 {v(DT+8*j,4)}, v7 offset:{256*j}")
        A(f"ds_read_b128 {v(DT+8*j+4,4)}, v7 offset:{4096+256*j}")
    for j in range(4):
        A(f"s_waitcnt lgkmcnt({7-2*j})")
        A(f"v_mfma_f32_16x16x32_f16 {v(AR+4*j,4)}, {v(DT+8*j,4)}, {v(B1,4)}, 0")
        A(f"v_mfma_f32_16x16x32_f16 {v(AI+4*j,4)}, {v(DT+8*j,4)}, {v(B1+4,4)}, 0")
        A(f"s_waitcnt lgkmcnt({6-2*j})")
        A(f"v_mfma_f32_16x16x32_f16 {v(AR+4*j,4)}, {v(DT+8*j+4,4)}, {v(B1+8,4)}, {v(AR+4*j,4)}")
        A(f"v_mfma_f32_16x16x32_f16 {v(AI+4*j,4)}, {v(DT+8*j+4,4)}, {v(B1+12,4)}, {v(AI+4*j,4)}")
    A(f"s_add_u32 s{sK}, s{sK}, 1")
    for j in range(4):
        for i in (4 * j, 4 * j + 2):
            pr, pi = RAW + (i % 4) * 2, RAW + (i % 4) * 2 + 2
            A(f"v_pk_mul_f32 {v(pr,2)}, {v(AR+i,2)}, {v(TC+i,2)}")
            A(f"v_pk_mul_f32 {v(pi,2)}, {v(AI+i,2)}, {v(TC+i,2)}")
            A(f"v_pk_fma_f32 {v(pr,2)}, {v(AI+i,2)}, {v(TS+i,2)}, {v(pr,2)}")
            A(f"v_pk_fma_f32 {v(pi,2)}, {v(AR+i,2)}, {v(TS+i,2)}, {v(pi,2)} neg_lo:[1,0,0] neg_hi:[1,0,0]")
            A(f"v_cvt_pk_f16_f32 {v(P+i)}, {v(pr)}, {v(pi)}")
            A(f"v_cvt_pk_f16_f32 {v(P+i+1)}, {v(pr+1)}, {v(pi+1)}")
        for jm in range(4):
            c = "0" if j == 0 else v(AC + 4 * jm, 4)
            A(f"v_mfma_f32_16x16x32_f16 {v(AC+4*jm,4)}, {v(A2+16*jm+4*j,4)}, {v(P+4*j,4)}, {c}")
        if j == opt("cfin", 1):
            if DRAIN2:
                A(f"s_cmp_lg_u32 s{sK}, 1")
                A(f"s_cbranch_scc1 {Le2}")
                arrive_finish("s30", sCME, f"s{sLAST}", O, 0)
                A.label(Le2)
            else:
                arrive_finish("s30", sCME, f"s{sLAST}", O, ("s30", 1, 3))
    if EARLY_C == 0:
        A("s_barrier")
        arrive_issue(f"s{sK}", sCME, T)
    for k in range(8):
        A(f"v_cvt_pk_f16_f32 {v(O+k)}, {v(AC+2*k)}, {v(AC+2*k+1)}")
    def prep():
        for gq in range(4):
            A(f"v_readlane_b32 s{60+gq}, {v(O)}, {16*((gq+1)%4)}")
        for gq in range(4):
            A(f"v_writelane_b32 {v(P+4)}, s{60+gq}, {16*gq}")
        for k in range(3):
            A(f"v_alignbit_b32 {v(P+k)}, {v(O+k+1)}, {v(O+k)}, 16")
        A(f"v_alignbit_b32 {v(P+3)}, {v(P+4)}, {v(O+3)}, 16")
    Y_stores(O, O + 4, P, f"s{sY}", prep)
    if DRAIN2:
        A(f"s_cmp_eq_u32 s{sK}, 1")
        A(f"s_cbranch_scc1 {Le3}")
        A("s_waitcnt vmcnt(0)")
        A("s_barrier")
        arrive_issue("s30", sCME, T)
        arrive_finish("s30", sCME, f"s{sLAST}", T, 0)
        A.label(Le3)
    stamp(3, f"s{sK}", dbg=(6, C0, 1))
    A(f"s_add_u32 s{sK}, s{sK}, 1")
    A(f"s_add_u32 s{sW0}, s{sW0}, {W_SZ}")
    A(f"s_add_u32 s{sY}, s{sY}, {Y_SZ}")
    A(f"s_cmp_ge_u32 s{sK}, 4")
    A("s_cbranch_scc1 L_end")
    A("s_waitcnt vmcnt(0)")
    A("s_branch L_Cloop")

SORT8 = [(0, 1), (2, 3), (4, 5), (6, 7), (0, 2), (1, 3), (4, 6), (5, 7), (1, 2), (5, 6), (0, 4), (3, 7),
         (1, 5), (2, 6), (1, 4), (3, 6), (2, 4), (3, 5), (3, 4)]

def topk_setup(CODE, vG, vLW, vLR, LDS0):
    A(f"v_lshrrev_b32 {v(CODE)}, 6, v0")
    A(f"v_lshlrev_b32 {v(CODE)}, 9, {v(CODE)}")
    A(f"v_add_u32 {v(CODE)}, {v(CODE)}, v1")
    A(f"v_sub_u32 {v(CODE)}, 2047, {v(CODE)}")
    for i in range(1, 8):
        A(f"v_subrev_u32 {v(CODE+i)}, {64*i}, {v(CODE)}")
    A(f"v_lshlrev_b32 {v(vG)}, {RSH}, v0")
    A(f"v_lshrrev_b32 {v(vLW)}, 4, v0")
    A(f"v_lshlrev_b32 {v(vLW)}, 5, {v(vLW)}")
    A(f"v_add_u32 {v(vLW)}, {LDS0}, {v(vLW)}")
    A(f"v_and_b32 {v(vLR)}, 15, v1")
    A(f"v_lshlrev_b32 {v(vLR)}, 5, {v(vLR)}")
    A(f"v_add_u32 {v(vLR)}, {LDS0}, {v(vLR)}")

def topk(K, CODE, vG, vLW, vLR, sRG, blk, dbg, mid=None):
    G = K + 16
    prio(0)
    for gate in ((True, False) if GATE else (False,)):
        loop, done = A.newlabel("Lrg"), A.newlabel("Lrgd")
        A(f"s_mov_b32 s62, {SPIN}")
        if gate:
            set_exec(0xff << 56)
        A.label(loop)
        A(f"buffer_load_dwordx4 {v(G,4)}, {v(vG)}, {WS}, s{sRG} offen sc1")
        A("s_waitcnt vmcnt(0)")
        any_sentinel(range(G, G + 4), K, done)
        spin_tail(loop, 62, opt("rsleep", 1))
        A.label(done)
        if gate:
            A("s_mov_b64 exec, -1")
    prio(3)
    stamp(3, "s27", dbg=dbg)
    A("s_mov_b32 s63, 0xffff0000")
    cur = list(range(K, K + 8))
    for k in range(4):
        A(f"v_lshl_or_b32 {v(cur[2*k])}, {v(G+k)}, 16, {v(CODE+2*k)}")
        A(f"v_and_or_b32 {v(cur[2*k+1])}, {v(G+k)}, s63, {v(CODE+2*k+1)}")
    free = list(range(K + 8, K + 24))

    def ce(i, j, dst=None):
        if dst is None:
            t = free.pop(0)
            A(f"v_max_u32 {v(t)}, {v(cur[i])}, {v(cur[j])}")
            A(f"v_min_u32 {v(cur[j])}, {v(cur[i])}, {v(cur[j])}")
            free.append(cur[i])
            cur[i] = t
        else:
            A(f"v_max_u32 {v(dst+i)}, {v(cur[i])}, {v(cur[j])}")
            A(f"v_min_u32 {v(dst+j)}, {v(cur[i])}, {v(cur[j])}")

    for (i, j) in SORT8:
        ce(i, j)
    pats = ["quad_perm:[1,0,3,2]", "quad_perm:[2,3,0,1]", "row_half_mirror", "row_mirror"]
    for rnd in range(2):
        for li, pat in enumerate(pats):
            new = [free.pop(0) for _ in range(8)]
            for i in (7, 6, 5, 4, 3, 2, 1, 0) if False else range(8):
                A(f"v_max_u32_dpp {v(new[i])}, {v(cur[7-i])}, {v(cur[i])} {pat} row_mask:0xf bank_mask:0xf")
            free.extend(cur)
            cur = new
            if rnd == 1 and li == 3:
                return cur
            for i in range(4):
                ce(i, i + 4)
            for i in (0, 1, 4, 5):
                ce(i, i + 2)
            if rnd == 0 and li == 3:
                for i in (0, 2, 4, 6):
                    ce(i, i + 1, dst=blk)
                set_exec(0x0001000100010001)
                A(f"ds_write_b128 {v(vLW)}, {v(blk,4)}")
                A(f"ds_write_b128 {v(vLW)}, {v(blk+4,4)} offset:16")
                A("s_mov_b64 exec, -1")
                A("s_waitcnt lgkmcnt(0)")
                A("s_barrier")
                A(f"ds_read_b128 {v(K,4)}, {v(vLR)}")
                A(f"ds_read_b128 {v(K+4,4)}, {v(vLR)} offset:16")
                A("s_waitcnt lgkmcnt(0)")
                if mid:
                    mid(K)
                cur = list(range(K, K + 8))
                free = list(range(K + 8, K + 24))
            else:
                for i in (6, 4, 2, 0):
                    ce(i, i + 1)

def load_weight_frags(jobs):
    total = sum(8 * j[3] for j in jobs)
    for (srdn, voff_of, soff_of, nsteps, dst, raw, vfull) in jobs:
        for k in range(nsteps):
            for q in range(8):
                d = raw + 8 * k + q
                if vfull is not None and k == vfull:
                    A(f"v_add_u32 {v(d)}, {soff_of(k, q)}, {v(voff_of(k))}")
                    A(f"buffer_load_dword {v(d)}, {v(d)}, {srdn}, 0 offen")
                    continue
                A(f"s_mov_b32 s60, {soff_of(k, q)}")
                A(f"buffer_load_dword {v(d)}, {v(voff_of(k))}, {srdn}, s60 offen")
    done = 0
    for (srdn, voff_of, soff_of, nsteps, dst, raw, vfull) in jobs:
        for k in range(nsteps):
            done += 8
            A(f"s_waitcnt vmcnt({min(63, total - done)})")
            r = raw + 8 * k
            for u in range(4):
                A(f"v_perm_b32 {v(dst + 8*k + u)}, {v(r+2*u+1)}, {v(r+2*u)}, s58")
                A(f"v_perm_b32 {v(dst + 8*k + 4 + u)}, {v(r+2*u+1)}, {v(r+2*u)}, s59")

def roleFa():
    A.label("L_roleFa")
    GW, UW, RAW, AFR, ACC, K, CODE = 16, 56, 96, 136, 156, 176, 200
    vG, vLW, vLR, vW1, vW2, vLP1, vLP2, vPW, vPR, vH = 2, 3, 4, 5, 6, 7, 8, 9, 10, 11
    sKAP, sRG, sT, sH, sL = 22, 23, 25, 26, 27
    T = 208
    nonce_load(T + 8)
    if opt("prefc", 1) == 1:
        warm_weights(T + 12, C0, 29, PPART)
    srd(8, 46, 2211840)
    srd(12, 48, 2211840)
    A(f"s_sub_u32 s60, s2, {FA0 - 1}")
    A(f"s_and_b32 s61, s60, 7")
    A(f"s_lshr_b32 s60, s60, 3")
    A(f"s_mul_i32 s{sKAP}, s61, 7")
    A(f"s_add_u32 s{sKAP}, s{sKAP}, s60")
    A(f"s_sub_u32 s{sKAP}, s{sKAP}, 1")
    A("s_mov_b32 s58, 0x05040100")
    A("s_mov_b32 s59, 0x07060302")
    n, g = T, T + 1
    A(f"v_and_b32 {v(n)}, 15, v1")
    A(f"v_lshrrev_b32 {v(g)}, 4, v1")
    A(f"s_lshr_b32 s60, s{WV}, 1")
    A(f"s_mul_i32 s60, s60, 320")
    A(f"s_and_b32 s61, s{WV}, 1")
    A(f"s_lshl_b32 s61, s61, 4")
    A(f"s_add_u32 s60, s60, s61")
    A(f"s_lshl_b32 s61, s{sKAP}, 6")
    A(f"v_lshl_add_u32 {v(T+2)}, {v(n)}, 2, s61")
    A(f"v_add_u32 {v(vW1)}, s60, {v(g)}")
    A(f"v_mul_u32_u24 {v(vW1)}, 3456, {v(vW1)}")
    A(f"v_add_u32 {v(vW1)}, {v(vW1)}, {v(T+2)}")
    A(f"v_lshl_add_u32 {v(vW2)}, {v(g)}, 2, s60")
    A(f"v_mul_u32_u24 {v(vW2)}, 3456, {v(vW2)}")
    A(f"v_add_u32 {v(vW2)}, {v(vW2)}, {v(T+2)}")
    voff = lambda k: vW1 if k < 4 else vW2
    soff = lambda k, q: ((32 * q + 4 * k) if k < 4 else (256 + 32 * (q & 1) + (q >> 1))) * 3456
    A("s_waitcnt vmcnt(0)")
    nonce_take(T + 8)
    A(f"s_and_b32 s29, s2, {NREP - 1}")
    A(f"s_lshl_b32 s29, s29, {FSH + 4}")
    if opt("prefc", 1) == 2:
        warm_weights(T + 12, C0, 29, PPART)
    poll_flags(0, 29, T + 4, opt("fsleep", 8))
    if opt("coop", 4):
        warm_coop(T + 12)
    srd(16, 44, 1280)
    A(f"v_and_b32 {v(T+2)}, 31, v1")
    A(f"v_lshrrev_b32 {v(T+3)}, 5, v1")
    A(f"v_mul_u32_u24 {v(T+3)}, 640, {v(T+3)}")
    A(f"v_lshl_add_u32 {v(T+2)}, {v(T+2)}, 1, {v(T+3)}")
    for i in range(10):
        A(f"v_mov_b32 {v(K+i)}, 0")
        A(f"buffer_load_short_d16_hi {v(K+i)}, {v(T+2)}, {SRD3}, 0 offen offset:{64*i}")
    A("s_waitcnt vmcnt(0)")
    tau_of(K, T + 2, 1.0 + 1.0 / 32)
    A(f"v_or_b32 {v(T+2)}, 0x80000000, {v(T+2)}")
    A(f"v_readfirstlane_b32 s36, {v(T+2)}")
    if opt("wide", 0):
        A(f"s_lshr_b32 s60, s{WV}, 1")
        A(f"s_mul_i32 s60, s60, 320")
        A(f"s_and_b32 s61, s{WV}, 1")
        A(f"s_lshl_b32 s61, s61, 4")
        A(f"s_add_u32 s60, s60, s61")
        A(f"v_lshrrev_b32 {v(T+4)}, 2, v1")
        A(f"v_add_u32 {v(T+4)}, s60, {v(T+4)}")
        A(f"v_mul_u32_u24 {v(T+4)}, 3456, {v(T+4)}")
        A(f"v_and_b32 {v(T+5)}, 3, v1")
        A(f"s_lshl_b32 s61, s{sKAP}, 6")
        A(f"v_lshl_add_u32 {v(T+5)}, {v(T+5)}, 4, s61")
        A(f"v_add_u32 {v(T+4)}, {v(T+4)}, {v(T+5)}")
        for j in range(10):
            A(f"s_mov_b32 s60, {32 * j * 3456}")
            A(f"buffer_load_dwordx4 {v(T+12,4)}, {v(T+4)}, {SRD1}, s60 offen")
            A(f"buffer_load_dwordx4 {v(T+12,4)}, {v(T+4)}, {SRD2}, s60 offen")
        if opt("wide", 0) == 2:
            A("s_waitcnt vmcnt(0)")
    load_weight_frags([(SRD1, voff, soff, 5, GW, RAW, None), (SRD2, voff, soff, 5, UW, RAW + 40, None)])
    topk_setup(CODE, vG, vLW, vLR, 8192)
    A(f"s_lshl_b32 s60, s{WV}, 4")
    A(f"v_add_lshl_u32 {v(vLP1)}, {v(g)}, s60, 4")
    A(f"s_lshl_b32 s60, s{WV}, 6")
    A(f"s_add_u32 s60, s60, 1024")
    A(f"v_lshl_add_u32 {v(vLP2)}, {v(g)}, 4, s60")
    A(f"s_lshl_b32 s60, s{WV}, 11")
    A(f"v_lshlrev_b32 {v(vPW)}, 9, {v(g)}")
    A(f"v_lshl_add_u32 {v(vPW)}, {v(n)}, 3, {v(vPW)}")
    A(f"v_add_u32 {v(vPW)}, s60, {v(vPW)}")
    A(f"v_add_u32 {v(12)}, 1024, {v(vPW)}")
    A(f"s_lshl_b32 s60, s{WV}, 8")
    A(f"v_lshl_add_u32 v13, {v(g)}, 7, s60")
    A(f"s_lshl_b32 s60, s{WV}, 6")
    A(f"s_add_u32 s60, s60, 1024")
    A(f"v_mov_b32 {v(T+2)}, s60")
    A(f"v_cmp_gt_u32 vcc, 2, {v(g)}")
    A(f"v_cndmask_b32 v13, {v(T+2)}, v13, vcc")
    A(f"v_lshlrev_b32 {v(vPR)}, 2, v0")
    A(f"v_lshrrev_b32 {v(T+2)}, 1, v0")
    A(f"v_lshlrev_b32 {v(vH)}, 2, {v(T+2)}")
    A(f"s_lshl_b32 s{sH}, s{sKAP}, 9")
    A(f"s_add_u32 s{sH}, s{sH}, {H_OFF}")
    A(f"s_and_b32 s{sRG}, s2, {NRR - 1}")
    A(f"s_lshl_b32 s{sRG}, s{sRG}, {RSH + 8}")
    A(f"s_add_u32 s{sRG}, s{sRG}, {RG_OFF}")
    A(f"s_mov_b32 s{sT}, {T_OFF}")
    A(f"s_mov_b32 s28, {T_REC}")
    for (r, val) in ((30, 0xAAAAAAAA), (32, 0xCCCCCCCC), (34, 0xF0F0F0F0)):
        A(f"s_mov_b32 s{r}, 0x{val:x}")
        A(f"s_mov_b32 s{r+1}, 0x{val:x}")
    A(f"s_mov_b32 s{sL}, 0")
    touch(T + 2, T_OFF, 2 * T_SZ)
    stamp(0, dbg=(9, FA0))
    poll_flags(1, 29, T, 8)
    prio(3)
    A.label("L_FaLoop")
    def warm_rows(K_):
        for e in range(opt("warm", 0)):
            A(f"v_and_b32 {v(T+8+e)}, 0x7ff, {v(K_+e)}")
            A(f"v_sub_u32 {v(T+8+e)}, 2047, {v(T+8+e)}")
            A(f"v_mad_u32_u24 {v(T+8+e)}, {v(T+8+e)}, s28, v13")
            A(f"buffer_load_dword {v(T+8+e)}, {v(T+8+e)}, {WS}, s{sT} offen sc1")
    c = topk(K, CODE, vG, vLW, vLR, sRG, T, (11, FA0, 0), warm_rows)
    stamp(4, "s27")
    for i in range(4):
        A(f"v_cndmask_b32 {v(T+i)}, {v(c[2*i])}, {v(c[2*i+1])}, s[30:31]")
    A(f"v_cndmask_b32 {v(T)}, {v(T)}, {v(T+1)}, s[32:33]")
    A(f"v_cndmask_b32 {v(T+2)}, {v(T+2)}, {v(T+3)}, s[32:33]")
    A(f"v_cndmask_b32 {v(T)}, {v(T)}, {v(T+2)}, s[34:35]")
    A(f"v_and_b32 {v(T)}, 0x7ff, {v(T)}")
    A(f"v_sub_u32 {v(T)}, 2047, {v(T)}")
    A(f"v_mad_u32_u24 {v(T+1)}, {v(T)}, s28, {v(vLP1)}")
    A(f"v_mad_u32_u24 {v(T+2)}, {v(T)}, s28, {v(vLP2)}")
    loop, done = A.newlabel("Lga"), A.newlabel("Lgad")
    A(f"v_min3_u32 {v(T+3)}, {v(c[0])}, {v(c[1])}, {v(c[2])}")
    A(f"v_min3_u32 {v(T+4)}, {v(c[3])}, {v(c[4])}, {v(c[5])}")
    A(f"v_min3_u32 {v(T+3)}, {v(T+3)}, {v(c[6])}, {v(c[7])}")
    A(f"v_min_u32 {v(T+3)}, {v(T+3)}, {v(T+4)}")
    A(f"v_and_b32 {v(T+3)}, 0xffff0000, {v(T+3)}")
    A(f"v_cmp_gt_u32 vcc, s36, {v(T+3)}")
    A(f"s_cbranch_vccz {done}")
    A(f"v_mul_u32_u24 {v(T+3)}, s28, {v(T)}")
    A(f"s_add_u32 s61, s{NONCE}, 6")
    A(f"s_add_u32 s61, s61, s{sL}")
    A(f"s_mov_b32 s62, {SPIN}")
    A.label(loop)
    A(f"buffer_load_dword {v(T+4)}, {v(T+3)}, {WS}, s{sT} offen offset:2568 sc1")
    A("s_waitcnt vmcnt(0)")
    A(f"v_cmp_ne_u32 vcc, s61, {v(T+4)}")
    A(f"s_cbranch_vccz {done}")
    spin_tail(loop, 62, 2)
    A.label(done)
    for ks in range(4):
        A(f"buffer_load_dwordx4 {v(AFR+4*ks,4)}, {v(T+1)}, {WS}, s{sT} offen offset:{64*ks} sc1")
    A(f"buffer_load_dwordx4 {v(AFR+16,4)}, {v(T+2)}, {WS}, s{sT} offen sc1")
    for ks in range(5):
        A(f"s_waitcnt vmcnt({4-ks})")
        for a_, wb in enumerate((GW, GW + 4, UW, UW + 4)):
            cc = "0" if ks == 0 else v(ACC + 4 * a_, 4)
            A(f"v_mfma_f32_16x16x32_bf16 {v(ACC+4*a_,4)}, {v(AFR+4*ks,4)}, {v(wb+8*ks,4)}, {cc}")
    stamp(5, "s27")
    set_exec(0xffffffff)
    for mat in range(2):
        for r in range(4):
            A(f"ds_write2_b32 {v(vPW if mat == 0 else 12)}, {v(ACC+8*mat+r)}, {v(ACC+8*mat+4+r)} offset0:{32*r} offset1:{32*r+1}")
    A("s_mov_b64 exec, -1")
    A("s_waitcnt lgkmcnt(0)")
    A("s_barrier")
    for w in range(4):
        A(f"ds_read2st64_b32 {v(T+2*w,2)}, {v(vPR)} offset0:{8*w} offset1:{8*w+4}")
    A("s_waitcnt lgkmcnt(2)")
    A(f"v_pk_add_f32 {v(T,2)}, {v(T,2)}, {v(T+2,2)}")
    A("s_waitcnt lgkmcnt(0)")
    A(f"v_pk_add_f32 {v(T+4,2)}, {v(T+4,2)}, {v(T+6,2)}")
    A(f"v_pk_add_f32 {v(T,2)}, {v(T,2)}, {v(T+4,2)}")
    rnd_pair(T, T + 1, T + 2)
    A(f"v_mul_f32 {v(T+2)}, {f32(-1.4426950408889634)}, {v(T)}")
    A(f"v_exp_f32 {v(T+2)}, {v(T+2)}")
    A(f"v_add_f32 {v(T+2)}, 1.0, {v(T+2)}")
    A(f"v_rcp_f32 {v(T+2)}, {v(T+2)}")
    A(f"v_mul_f32 {v(T)}, {v(T)}, {v(T+2)}")
    A(f"v_cvt_pk_bf16_f32 {v(T)}, {v(T)}, {v(T)}")
    A(f"v_and_b32 {v(T)}, 0xffff0000, {v(T)}")
    A(f"v_mul_f32 {v(T)}, {v(T)}, {v(T+1)}")
    A(f"v_mov_b32_dpp {v(T+1)}, {v(T)} quad_perm:[1,0,3,2] row_mask:0xf bank_mask:0xf")
    A(f"v_cvt_pk_bf16_f32 {v(T)}, {v(T)}, {v(T+1)}")
    A(f"v_min_u32 {v(T)}, -2, {v(T)}")
    set_exec(0x5555555555555555)
    A(f"buffer_store_dword {v(T)}, {v(vH)}, {WS}, s{sH} offen sc1")
    A("s_mov_b64 exec, -1")
    stamp(6, "s27")
    A(f"s_add_u32 s{sH}, s{sH}, {2 * HREP}")
    A(f"s_add_u32 s{sRG}, s{sRG}, {NRR * RG_REP}")
    A(f"s_add_u32 s{sT}, s{sT}, {T_SZ}")
    A(f"s_add_u32 s{sL}, s{sL}, 1")
    A(f"s_cmp_lt_u32 s{sL}, 2")
    A("s_cbranch_scc1 L_FaLoop")
    A("s_endpgm")

def roleFb():
    A.label("L_roleFb")
    DW, HF, ACC, K, CODE, T = 16, 128, 184, 192, 216, 224
    RAW = 128
    vG, vLW, vLR, vW1, vHF, vPW, vPR, vE, vX2, vO = 2, 3, 4, 5, 6, 7, 8, 9, 10, 11
    sB, sRG, sT, sH, sL, sREP2, sES, sEC = 22, 23, 25, 26, 27, 29, 30, 31
    nonce_load(T + 8)
    if opt("prefc", 1) == 1:
        warm_weights(T + 16, C0, 29, PPART)
    srd(8, 50, 2211840)
    srd(12, 52, 2621440)
    A(f"s_sub_u32 s60, s2, {FB0 - 7}")
    A(f"s_and_b32 s61, s60, 7")
    A(f"s_lshr_b32 s60, s60, 3")
    fb_start("s61", f"s{sB}")
    A(f"s_add_u32 s{sB}, s{sB}, s60")
    A(f"s_cmp_eq_u32 s61, 7")
    A(f"s_cselect_b32 s60, 0, 1")
    A(f"s_sub_u32 s{sB}, s{sB}, s60")
    A("s_mov_b32 s58, 0x05040100")
    A("s_mov_b32 s59, 0x07060302")
    n, g = T, T + 1
    A(f"v_and_b32 {v(n)}, 15, v1")
    A(f"v_lshrrev_b32 {v(g)}, 4, v1")
    A(f"s_lshl_b32 s60, s{WV}, 5")
    A(f"v_lshl_add_u32 {v(vW1)}, {v(g)}, 3, s60")
    A(f"v_mul_u32_u24 {v(vW1)}, 1280, {v(vW1)}")
    A(f"s_lshl_b32 s61, s{sB}, 6")
    A(f"v_lshl_add_u32 {v(T+2)}, {v(n)}, 2, s61")
    A(f"v_add_u32 {v(vW1)}, {v(vW1)}, {v(T+2)}")
    A(f"v_mov_b32 v12, {v(n)}")
    A(f"v_mov_b32 v13, {v(g)}")
    n, g = 12, 13
    A("s_waitcnt vmcnt(0)")
    nonce_take(T + 8)
    A(f"s_and_b32 s{sREP2}, s2, {NREP - 1}")
    A(f"s_lshl_b32 s{sREP2}, s{sREP2}, {FSH + 4}")
    if opt("prefc", 1) == 2:
        warm_weights(T + 16, C0, 29, PPART)
    poll_flags(0, sREP2, T + 4, opt("fsleep", 8))
    if opt("coop", 4):
        warm_coop(T + 16)
    if opt("wide", 0):
        A(f"s_lshl_b32 s60, s{WV}, 5")
        A(f"v_lshrrev_b32 {v(T+20)}, 2, v1")
        A(f"v_add_u32 {v(T+20)}, s60, {v(T+20)}")
        A(f"v_mul_u32_u24 {v(T+20)}, 1280, {v(T+20)}")
        A(f"v_and_b32 {v(T+21)}, 3, v1")
        A(f"s_lshl_b32 s61, s{sB}, 6")
        A(f"v_lshl_add_u32 {v(T+21)}, {v(T+21)}, 4, s61")
        A(f"v_add_u32 {v(T+20)}, {v(T+20)}, {v(T+21)}")
        for k in range(14):
            for hh in range(2):
                A(f"v_add_u32 {v(T+21)}, {(128 * k + 16 * hh) * 1280}, {v(T+20)}")
                A(f"buffer_load_dwordx4 {v(T+24,4)}, {v(T+21)}, {SRD1}, 0 offen")
        if opt("wide", 0) == 2:
            A("s_waitcnt vmcnt(0)")
    load_weight_frags([(SRD1, lambda k: vW1, lambda k, q: (128 * k + q) * 1280, 14, DW, RAW, 13)])
    topk_setup(CODE, vG, vLW, vLR, 8192)
    A(f"v_and_b32 {v(vHF)}, 7, v1")
    A(f"v_lshlrev_b32 {v(vHF)}, 6, {v(vHF)}")
    A(f"v_lshl_add_u32 {v(vHF)}, {v(g)}, 4, {v(vHF)}")
    A(f"s_lshl_b32 s60, s{WV}, 9")
    A(f"v_add_u32 {v(vHF)}, s60, {v(vHF)}")
    A(f"s_mov_b32 s{sH}, {H_OFF}")
    A(f"s_lshl_b32 s60, s{WV}, 10")
    A(f"v_lshlrev_b32 {v(vPW)}, 9, {v(g)}")
    A(f"v_lshl_add_u32 {v(vPW)}, {v(n)}, 3, {v(vPW)}")
    A(f"v_add_u32 {v(vPW)}, s60, {v(vPW)}")
    A(f"v_lshlrev_b32 {v(vPR)}, 2, v0")
    A(f"s_cmp_ge_u32 s{sB}, 10")
    A(f"s_cselect_b32 s60, 1, 0")
    A(f"s_mul_i32 s61, s60, 10")
    A(f"s_sub_u32 s61, s{sB}, s61")
    A(f"s_lshl_b32 s62, s60, 9")
    A(f"s_lshl_b32 s63, s61, 1")
    A(f"s_add_u32 s62, s62, s63")
    A(f"s_lshl_b32 s64, s60, 7")
    A(f"s_add_u32 s64, s64, s63")
    A(f"s_add_u32 s64, s64, {1024 - 16}")
    A(f"s_cmp_lt_u32 s61, 8")
    A(f"s_cselect_b32 s{sEC}, s62, s64")
    A(f"s_cselect_b32 s{sES}, 16, 4")
    A(f"v_and_b32 {v(T+2)}, 31, v1")
    A(f"v_mul_u32_u24 {v(vE)}, s{sES}, {v(T+2)}")
    A(f"s_and_b32 s32, s{sEC}, 2")
    A(f"s_lshl_b32 s32, s32, 3")
    A(f"s_sub_u32 s32, 16, s32")
    A(f"s_and_b32 s{sEC}, s{sEC}, -4")
    A(f"v_add_u32 {v(vE)}, s{sEC}, {v(vE)}")

    A(f"s_lshl_b32 s60, s{sB}, 2")
    A(f"s_add_u32 s60, s60, s{WV}")
    A(f"s_lshl_b32 s60, s60, 8")
    A(f"v_lshl_add_u32 {v(vX2)}, {v(T+2)}, 3, s60")
    A(f"v_lshrrev_b32 {v(T+3)}, 5, v1")
    A(f"v_lshl_add_u32 {v(vX2)}, {v(T+3)}, 2, {v(vX2)}")
    A(f"s_lshl_b32 s60, s{sB}, 6")
    A(f"v_lshl_add_u32 {v(vO)}, {v(T+2)}, 1, s60")
    A(f"s_and_b32 s{sRG}, s2, {NRR - 1}")
    A(f"s_lshl_b32 s{sRG}, s{sRG}, {RSH + 8}")
    A(f"s_add_u32 s{sRG}, s{sRG}, {RG_OFF}")
    A(f"s_mov_b32 s{sT}, {T_OFF}")
    A(f"s_mov_b32 s28, {T_REC}")
    A(f"s_mov_b32 s{sL}, 0")
    touch(T + 2, T_OFF, 2 * T_SZ)
    stamp(0, dbg=(10, FB0))
    poll_flags(1, sREP2, T, 8)
    prio(3)
    A.label("L_FbLoop")
    c = topk(K, CODE, vG, vLW, vLR, sRG, T, None)
    stamp(4, "s27")
    for j in range(8):
        A(f"v_readfirstlane_b32 s{80+j}, {v(c[j])}")
    A("s_mov_b32 s70, s80")
    A("s_mov_b32 s71, s81")
    for w in range(1, 4):
        A(f"s_cmp_eq_u32 s{WV}, {w}")
        A(f"s_cselect_b32 s70, s{80+2*w}, s70")
        A(f"s_cselect_b32 s71, s{81+2*w}, s71")
    KEY, ROW, XV, XNV, SG, ST = T, T + 1, T + 2, T + 3, T + 4, T + 8
    Ls = A.newlabel("Lfb")
    A(f"s_or_b32 s60, s{sB}, s{WV}")
    A(f"s_cmp_lg_u32 s60, 0")
    A(f"s_cbranch_scc1 {Ls}")
    A(f"v_mov_b32 {v(T+6)}, s80")
    for j in range(1, 8):
        A(f"v_writelane_b32 {v(T+6)}, s{80+j}, {j}")
    A(f"v_and_b32 {v(T+6)}, 0x7ff, {v(T+6)}")
    A(f"v_sub_u32 {v(T+6)}, 2047, {v(T+6)}")
    A(f"v_lshlrev_b32 {v(T+7)}, 2, v1")
    A(f"s_lshl_b32 s60, s{sL}, 8")
    A(f"s_add_u32 s60, s60, {X2_OFF + SEL_OFF}")
    A("s_mov_b64 exec, 0xff")
    A(f"buffer_store_dword {v(T+6)}, {v(T+7)}, {WS}, s60 offen sc1")
    A("s_mov_b64 exec, -1")
    A.label(Ls)
    A(f"v_mov_b32 {v(KEY)}, s71")
    A(f"v_mov_b32 {v(ROW)}, s70")
    A(f"v_cmp_gt_u32 vcc, 32, v1")
    A(f"v_cndmask_b32 {v(KEY)}, {v(KEY)}, {v(ROW)}, vcc")
    A(f"v_and_b32 {v(ROW)}, 0x7ff, {v(KEY)}")
    A(f"v_sub_u32 {v(ROW)}, 2047, {v(ROW)}")
    A(f"v_mad_u32_u24 {v(T+5)}, {v(ROW)}, s28, {v(vE)}")
    prio(0)
    loop, done = A.newlabel("Lst2"), A.newlabel("Lst2d")
    A(f"v_mul_u32_u24 {v(T+6)}, s28, {v(ROW)}")
    A(f"s_add_u32 s61, s{NONCE}, 6")
    A(f"s_add_u32 s61, s61, s{sL}")
    A(f"s_mov_b32 s62, {SPIN}")
    A.label(loop)
    A(f"buffer_load_dwordx4 {v(ST,4)}, {v(T+6)}, {WS}, s{sT} offen offset:2560 sc1")
    A("s_waitcnt vmcnt(0)")
    A(f"v_cmp_ne_u32 vcc, s61, {v(ST+2)}")
    A(f"s_cbranch_vccz {done}")
    spin_tail(loop, 62, 2)
    A.label(done)
    A(f"buffer_load_dword {v(XNV)}, {v(T+5)}, {WS}, s{sT} offen sc1")
    A(f"buffer_load_dword {v(XV)}, {v(T+5)}, {WS}, s{sT} offen offset:1280 sc1")
    A(f"v_ashrrev_i32 {v(SG)}, 31, {v(KEY)}")
    A(f"v_not_b32 {v(SG)}, {v(SG)}")
    A(f"v_or_b32 {v(SG)}, 0x80000000, {v(SG)}")
    A(f"v_xor_b32 {v(SG)}, {v(SG)}, {v(KEY)}")
    A(f"v_and_b32 {v(SG)}, 0xffff0000, {v(SG)}")
    A(f"v_mul_f32 {v(SG)}, {f32(-1.4426950408889634)}, {v(SG)}")
    A(f"v_exp_f32 {v(SG)}, {v(SG)}")
    A(f"v_add_f32 {v(SG)}, 1.0, {v(SG)}")
    A(f"v_rcp_f32 {v(SG)}, {v(SG)}")
    A(f"v_cvt_pk_bf16_f32 {v(SG)}, {v(SG)}, {v(SG)}")
    A(f"v_and_b32 {v(SG)}, 0xffff0000, {v(SG)}")
    stamp(2, "s27")
    def rb(r):
        A(f"v_cvt_pk_bf16_f32 {v(r)}, {v(r)}, {v(r)}")
        A(f"v_and_b32 {v(r)}, 0xffff0000, {v(r)}")
    Yv = T + 12
    XO = T + 16
    if opt("hgate", 0):
        loop, done = A.newlabel("Lh"), A.newlabel("Lhd")
        A(f"s_mov_b32 s62, {SPIN}")
        A.label(loop)
        A(f"buffer_load_dwordx4 {v(HF,4)}, {v(vHF)}, {WS}, s{sH} offen sc1")
        A("s_waitcnt vmcnt(0)")
        any_sentinel(range(HF, HF + 4), T + 6, done)
        spin_tail(loop, 62, opt("hgsleep", 2))
        A.label(done)
    loop, done = A.newlabel("Lh"), A.newlabel("Lhd")
    A(f"s_cmp_lt_u32 s{WV}, 2")
    A(f"s_cselect_b32 s63, 2048, 0")
    A(f"s_add_u32 s63, s63, {12 * 2048}")
    A(f"s_add_u32 s63, s63, s{sH}")
    A(f"s_mov_b32 s62, {SPIN}")
    A.label(loop)
    for k in range(14):
        if k == 13:
            A(f"buffer_load_dwordx4 {v(HF+4*k,4)}, {v(vHF)}, {WS}, s63 offen sc1")
        else:
            if k % 2 == 0:
                A(f"s_add_u32 s60, s{sH}, {2048 * k}")
            A(f"buffer_load_dwordx4 {v(HF+4*k,4)}, {v(vHF)}, {WS}, s60 offen offset:{2048*(k%2)} sc1")
    CK = T + 6
    A("s_waitcnt vmcnt(0)")
    any_sentinel(list(range(HF, HF + 56)), CK, done)
    spin_tail(loop, 62, opt("hsleep", 1))
    A.label(done)
    prio(3)
    stamp(5, "s27")
    Lh2 = A.newlabel("Lfb")
    A(f"s_or_b32 s60, s{sB}, s{WV}")
    A(f"s_or_b32 s60, s60, s{sL}")
    A(f"s_cmp_lg_u32 s60, 0")
    A(f"s_cbranch_scc1 {Lh2}")
    A(f"v_mov_b32 {v(CK)}, 0")
    A(f"s_mov_b32 s60, {X2_OFF + SEL_OFF + 128}")
    A("s_mov_b64 exec, 1")
    A(f"buffer_store_dword {v(CK)}, {v(CK)}, {WS}, s60 offen sc1")
    A.label(Lh2)
    A("s_mov_b64 exec, -1")
    for k in range(14):
        for par in range(2):
            cc = "0" if k == 0 else v(ACC + 4 * par, 4)
            A(f"v_mfma_f32_16x16x32_bf16 {v(ACC+4*par,4)}, {v(HF+4*k,4)}, {v(DW+8*k+4*par,4)}, {cc}")
    for r in (XNV, XV):
        A(f"v_lshlrev_b32 {v(r)}, s32, {v(r)}")
        A(f"v_and_b32 {v(r)}, 0xffff0000, {v(r)}")
    A(f"v_add_f32 {v(XO)}, {v(XV)}, {v(XNV)}")
    rb(XO)
    if EXACT:
        A(f"v_sub_f32 {v(XO)}, {v(XO)}, {v(ST)}")
        rb(XO)
        A(f"v_mul_f32 {v(XO)}, {v(XO)}, {v(ST+1)}")
        rb(XO)
    else:
        A(f"v_mul_f32 {v(ST)}, {v(ST)}, {v(ST+1)}")
        A(f"v_fma_f32 {v(XO)}, {v(XO)}, {v(ST+1)}, -{v(ST)}")
    set_exec(0xffffffff)
    for r in range(4):
        A(f"ds_write2_b32 {v(vPW)}, {v(ACC+r)}, {v(ACC+4+r)} offset0:{32*r} offset1:{32*r+1}")
    A("s_mov_b64 exec, -1")
    A("s_waitcnt lgkmcnt(0)")
    A("s_barrier")
    A(f"ds_read2st64_b32 {v(Yv,2)}, {v(vPR)} offset0:0 offset1:4")
    A(f"ds_read2st64_b32 {v(Yv+2,2)}, {v(vPR)} offset0:8 offset1:12")
    A("s_waitcnt lgkmcnt(0)")
    A(f"v_pk_add_f32 {v(Yv,2)}, {v(Yv,2)}, {v(Yv+2,2)}")
    A(f"v_add_f32 {v(Yv)}, {v(Yv)}, {v(Yv+1)}")
    rb(Yv)
    A(f"v_mul_f32 {v(Yv)}, {v(Yv)}, {v(SG)}")
    rb(Yv)
    A(f"v_add_f32 {v(Yv)}, {v(Yv)}, {v(XNV)}")
    rb(Yv)
    A(f"v_add_f32 {v(Yv)}, {v(Yv)}, {v(XV)}")
    L2 = A.newlabel("Lfb")
    A(f"s_cmp_lg_u32 s{sL}, 0")
    A(f"s_cbranch_scc1 {L2}")
    A(f"v_permlane32_swap_b32 {v(Yv)}, {v(XO)}")
    A(f"v_cvt_pk_bf16_f32 {v(Yv+1)}, {v(Yv)}, {v(XO)}")
    A(f"v_cvt_pk_f16_f32 {v(Yv)}, {v(Yv)}, {v(XO)}")
    A(f"v_cmp_gt_u32 vcc, 32, v1")
    A(f"v_cndmask_b32 {v(Yv)}, {v(Yv)}, {v(Yv+1)}, vcc")
    A(f"v_min_u32 {v(Yv)}, -2, {v(Yv)}")
    for r in range(NRX):
        A(f"s_mov_b32 s60, {X2_OFF + r * X2REP}")
        A(f"buffer_store_dword {v(Yv)}, {v(vX2)}, {WS}, s60 offen sc1")
    stamp(6, "s27", dbg=(12, FB0))
    A(f"s_add_u32 s{sH}, s{sH}, {2 * HREP}")
    A(f"s_add_u32 s{sRG}, s{sRG}, {NRR * RG_REP}")
    A(f"s_add_u32 s{sT}, s{sT}, {T_SZ}")
    A(f"s_mov_b32 s{sL}, 1")
    A("s_branch L_FbLoop")
    A.label(L2)
    A(f"v_cvt_pk_bf16_f32 {v(Yv)}, {v(Yv)}, {v(Yv)}")
    A(f"s_movk_i32 s60, 1280")
    A(f"v_mad_u32_u24 {v(Yv+1)}, {v(ROW)}, s60, {v(vO)}")
    A(f"buffer_store_short {v(Yv)}, {v(Yv+1)}, {SRD2}, 0 offen sc1")
    stamp(7, "s27", dbg=(15, FB0))
    A(f"s_or_b32 s60, s{sB}, s{WV}")
    A(f"s_cmp_lg_u32 s60, 0")
    A("s_cbranch_scc1 L_end")
    A(f"v_mov_b32 {v(T)}, s{NONCE}")
    A(f"v_mov_b32 {v(T+1)}, 0")
    A("s_mov_b64 exec, 1")
    A(f"buffer_store_dword {v(T)}, {v(T+1)}, {WS}, 0 offen sc1")
    A.label("L_end")
    A("s_endpgm")

hdr = open("cdna_kernels/%s.s.ref" % NAME).read().split("\n")
head = [l for l in hdr if l.startswith(";") and "@launch" not in l and "Override" not in l and "grid=ceil" not in l]
out = "\n".join(head) + "\n"
out += f"; @launch grid=({NWG},1,1) block=(256,1,1) lds={LDS_BYTES}\n"
out += '.amdgcn_target "amdgcn-amd-amdhsa--gfx950"\n.text\n'
out += f".globl {NAME}_kernel\n.p2align 8\n.type {NAME}_kernel,@function\n{NAME}_kernel:\n"
prologue(); roleR(); roleC(); roleFa(); roleFb()
out += A.text()
out += "L_code_end:\n"
out = out.replace(".text\n", ".text\n.set CODE_LINES, 256\n", 1)
out += f""".section .rodata,"a"
.p2align 6
.amdhsa_kernel {NAME}_kernel
  .amdhsa_next_free_vgpr 256
  .amdhsa_next_free_sgpr 102
  .amdhsa_accum_offset 256
  .amdhsa_group_segment_fixed_size 0
  .amdhsa_kernarg_size 104
  .amdhsa_user_sgpr_count 2
  .amdhsa_user_sgpr_kernarg_segment_ptr 1
  .amdhsa_system_sgpr_workgroup_id_x 1
  .amdhsa_float_denorm_mode_32 3
.end_amdhsa_kernel
"""
import subprocess, tempfile, os, re
with tempfile.TemporaryDirectory() as td:
    open(td + "/a.s", "w").write(out)
    subprocess.check_call(["clang", "-x", "assembler", "-target", "amdgcn-amd-amdhsa", "-mcpu=gfx950", "-c", td + "/a.s", "-o", td + "/a.o"])
    hd = subprocess.check_output(["llvm-objdump", "-h", td + "/a.o"]).decode()
    size = int(re.search(r"\.text\s+([0-9a-f]+)", hd).group(1), 16)
out = out.replace(".set CODE_LINES, 256", ".set CODE_LINES, %d" % min(256, size // 128))
print("code bytes:", size, file=sys.stderr)
dst = [a for a in sys.argv[1:] if not a.startswith("--")]
open(dst[0] if dst else "cdna_kernels/%s.s" % NAME, "w").write(out)
print("instructions:", A.ninstr, file=sys.stderr)
```

```python
import sys, struct
from asmb import Asm

NAME = "interleave_layers__spectral_fnet__moe_arch_mod__prompt"
def opt(name, default):
    for a in sys.argv:
        if a.startswith("--%s=" % name):
            return int(a.split("=")[1])
    return default
STAMPS = "--stamps" in sys.argv
DSTAMPS = "--dstamps" in sys.argv
MSTAMPS = "--mstamps" in sys.argv
EXACT = opt("exact", 0)
EXACT1 = opt("exact1", 0)
GATE = opt("gate", 1)
NR, NC, NFA, NFB = 256, 161, 54, 20
C0, FA0, FB0, NWG = 256, 417, 471, 491
FSH = opt("fsh", 6); FREP = 16 << FSH
FL_OFF = 0x1000; NREP = opt("nrep", 16)
RESET_OFF = 0x70000
H_OFF = 0x70000; HREP = 0x7000
X2_OFF = 0x90000; X2REP = 0x5200; NRX = opt("nrx", 1); SEL_OFF = 0x5000
RSH = opt("rsh", 6)
RG_OFF = 0xA0000; NRR = opt("nrr", 8); RG_REP = 256 << RSH
CNT_OFF = 0xF8000
WROW = 10368
W_OFF = 0x100000; W_SZ = 0x290000
Y_OFF = 0x640000; Y_SZ = 0x160000; YM_OFF = 322 * 4096
T_OFF = 0x900000; T_REC = 2688; T_SZ = 2048 * T_REC
ST_OFF = 0x1400000
WS_BYTES = 0x1500000
NONCE_C = 0x9E3779B9
SPIN = 40000
LDS_BYTES = 53248
assert FL_OFF + 4 * NREP * FREP <= 0x70000 and RG_OFF + 2 * NRR * RG_REP <= 0xF0000
PSLEEP = opt("psleep", 1)
EARLY_R = opt("earlyr", 1)
EARLY_C = opt("earlyc", 1)
PRIO = opt("prio", 1)
DRAIN2 = opt("drain2", 0)
PPART = opt("ppart", 3)
DRAIN0 = opt("drain0", 0)
def prio(n):
    if PRIO:
        A(f"s_setprio {n}")

def f32(x):
    return "0x%08x" % struct.unpack("<I", struct.pack("<f", x))[0]
def v(i, n=1):
    return "v%d" % i if n == 1 else "v[%d:%d]" % (i, i + n - 1)
def s(i, n=1):
    return "s%d" % i if n == 1 else "s[%d:%d]" % (i, i + n - 1)

A = Asm()
WS = "s[4:7]"; SRD1 = "s[8:11]"; SRD2 = "s[12:15]"; SRD3 = "s[16:19]"
NONCE = 20; WV = 21

def srd(base, ptr, nbytes):
    A(f"s_mov_b32 s{base}, s{ptr}")
    A(f"s_and_b32 s{base+1}, s{ptr+1}, 0xffff")
    A(f"s_mov_b32 s{base+2}, {nbytes}")
    A(f"s_mov_b32 s{base+3}, 0x00020000")

def set_exec(m):
    A(f"s_mov_b32 exec_lo, 0x{m & 0xffffffff:x}")
    A(f"s_mov_b32 exec_hi, 0x{m >> 32:x}")

def stamp(idx, lay=None, dbg=None):
    if MSTAMPS and dbg is not None:
        L = A.newlabel("Lst")
        A(f"s_mov_b32 s97, s{WV}")
        if len(dbg) > 2:
            A(f"s_sub_u32 s96, {lay}, {dbg[2]}")
            A(f"s_or_b32 s97, s97, s96")
        A(f"s_cmp_lg_u32 s97, 0")
        A(f"s_cbranch_scc1 {L}")
        A("s_memrealtime s[98:99]")
        A("s_waitcnt lgkmcnt(0)")
        A("s_and_b32 s98, s98, 0x7fffffff")
        A("v_mov_b32 v254, s98")
        A("v_mov_b32 v253, 0")
        A("s_mov_b64 exec, 1")
        if dbg[0] == 0:
            A(f"buffer_atomic_umax v254, v253, s[92:95], 0 offen offset:4")
            A("v_not_b32 v254, v254")
        if dbg[0] != 1:
            A(f"buffer_atomic_umax v254, v253, s[92:95], 0 offen offset:{dbg[0] * 4}")
        A("s_mov_b64 exec, -1")
        A.label(L)
    if DSTAMPS and dbg is not None:
        L = A.newlabel("Lst")
        A(f"s_lshl_b32 s97, s{WV}, 16")
        A(f"s_or_b32 s97, s97, s2")
        if len(dbg) > 2:
            A(f"s_lshl_b32 s96, {lay}, 20")
            A(f"s_or_b32 s97, s97, s96")
        A(f"s_cmp_lg_u32 s97, {dbg[1] + ((dbg[2] << 20) if len(dbg) > 2 else 0)}")
        A(f"s_cbranch_scc1 {L}")
        A("s_memrealtime s[98:99]")
        A("s_waitcnt lgkmcnt(0)")
        A("v_mov_b32 v254, s98")
        A("v_mov_b32 v253, 0")
        A("s_mov_b64 exec, 1")
        A(f"buffer_store_dword v254, v253, s[92:95], 0 offen offset:{dbg[0] * 4}")
        A("s_mov_b64 exec, -1")
        A.label(L)
    if not STAMPS:
        return
    L = A.newlabel("Lst")
    A(f"s_cmp_lg_u32 s{WV}, 0")
    A(f"s_cbranch_scc1 {L}")
    A("s_memrealtime s[98:99]")
    A("s_memtime s[100:101]")
    A("s_waitcnt lgkmcnt(0)")
    A("v_mov_b32 v254, s98")
    A("v_mov_b32 v255, s100")
    A("v_mov_b32 v253, 0")
    A("s_lshl_b32 s97, s2, 9")
    A(f"s_add_u32 s97, s97, {ST_OFF + idx * 8}")
    if lay is not None:
        A(f"s_lshl_b32 s96, {lay}, 6")
        A("s_add_u32 s97, s97, s96")
    A("s_mov_b64 exec, 1")
    A(f"buffer_store_dwordx2 v[254:255], v253, {WS}, s97 offen")
    A("s_mov_b64 exec, -1")
    A.label(L)

def spin_tail(loop, cnt, sleep=1):
    if sleep:
        A(f"s_sleep {sleep}")
    A(f"s_sub_u32 s{cnt}, s{cnt}, 1")
    A(f"s_cmp_lg_u32 s{cnt}, 0")
    A(f"s_cbranch_scc1 {loop}")

def any_sentinel(regs, t, done):
    regs = list(regs)
    A(f"v_max3_u32 {v(t)}, {v(regs[0])}, {v(regs[1])}, {v(regs[2])}")
    k = 3
    while k + 1 < len(regs):
        A(f"v_max3_u32 {v(t)}, {v(t)}, {v(regs[k])}, {v(regs[k+1])}")
        k += 2
    if k < len(regs):
        A(f"v_max_u32 {v(t)}, {v(t)}, {v(regs[k])}")
    A(f"v_cmp_eq_u32 vcc, -1, {v(t)}")
    A(f"s_cbranch_vccz {done}")

def poll_flags(k, srep, t, sleep=None):
    loop, done = A.newlabel("Lpoll"), A.newlabel("Lpolld")
    A(f"s_cmp_lg_u32 s{WV}, 0")
    A(f"s_cbranch_scc1 {done}")
    if isinstance(k, int):
        A(f"s_add_u32 s60, s{srep}, {FL_OFF + k * NREP * FREP}")
    else:
        A(f"s_mul_i32 s60, {k}, {NREP * FREP}")
        A(f"s_add_u32 s60, s60, s{srep}")
        A(f"s_add_u32 s60, s60, {FL_OFF}")
    A(f"s_add_u32 s61, s{NONCE}, {k}")
    A(f"v_and_b32 {v(t+1)}, 15, v1")
    A(f"v_lshlrev_b32 {v(t+1)}, {FSH}, {v(t+1)}")
    A(f"s_mov_b32 s62, {SPIN}")
    A.label(loop)
    A(f"buffer_load_dword {v(t)}, {v(t+1)}, {WS}, s60 offen sc1")
    A("s_waitcnt vmcnt(0)")
    A(f"v_cmp_ne_u32 vcc, s61, {v(t)}")
    A(f"s_cbranch_vccz {done}")
    spin_tail(loop, 62, PSLEEP if sleep is None else sleep)
    A.label(done)
    A("s_barrier")

def cnt_init(sshard, ks, t):
    for k in ks:
        A(f"s_add_u32 s60, s{sshard}, {16 * k}")
        A(f"s_lshl_b32 s60, s60, 7")
        A(f"s_add_u32 s60, s60, {CNT_OFF}")
        A(f"s_add_u32 s61, s{NONCE}, {k}")
        A(f"v_mov_b32 {v(t)}, 0")
        A(f"v_mov_b32 {v(t+1)}, s61")
        A(f"v_mov_b32 {v(t+2)}, 0")
        A("s_mov_b64 exec, 1")
        A(f"buffer_store_dwordx2 {v(t,2)}, {v(t+2)}, {WS}, s60 offen sc1")
        A("s_mov_b64 exec, -1")

def arrive_issue(k, sshard, t):
    L = A.newlabel("Larr")
    A(f"s_cmp_lg_u32 s{WV}, 0")
    A(f"s_cbranch_scc1 {L}")
    if isinstance(k, int):
        A(f"s_add_u32 s66, s{sshard}, {16 * k}")
    else:
        A(f"s_lshl_b32 s66, {k}, 4")
        A(f"s_add_u32 s66, s66, s{sshard}")
    A(f"s_lshl_b32 s66, s66, 7")
    A(f"s_add_u32 s66, s66, {CNT_OFF}")
    A(f"v_mov_b32 {v(t)}, 1")
    A(f"v_mov_b32 {v(t+1)}, 0")
    A(f"v_mov_b32 {v(t+2)}, 0")
    A("s_mov_b64 exec, 1")
    A(f"buffer_atomic_add_x2 {v(t,2)}, {v(t+2)}, {WS}, s66 offen sc0")
    A("s_mov_b64 exec, -1")
    A.label(L)

def arrive_finish(k, sshard, slast, t, younger):
    L, again, chk = A.newlabel("Lsig"), A.newlabel("Lsiga"), A.newlabel("Lsigc")
    A(f"s_cmp_lg_u32 s{WV}, 0")
    A(f"s_cbranch_scc1 {L}")
    if isinstance(k, int):
        A(f"s_lshl_b32 s67, s{sshard}, {FSH}")
        A(f"s_add_u32 s67, s67, {FL_OFF + k * NREP * FREP}")
    else:
        A(f"s_mul_i32 s67, {k}, {NREP * FREP}")
        A(f"s_lshl_b32 s68, s{sshard}, {FSH}")
        A(f"s_add_u32 s67, s67, s68")
        A(f"s_add_u32 s67, s67, {FL_OFF}")
    A(f"s_add_u32 s68, s{NONCE}, {k}")
    A(f"v_lshlrev_b32 {v(t+3)}, {FSH + 4}, v1")
    A(f"v_mov_b32 {v(t+4)}, s68")
    A(f"s_mov_b32 s69, {SPIN}")
    if isinstance(younger, tuple):
        A(f"s_waitcnt vmcnt({younger[2]})")
        A(f"s_cmp_eq_u32 {younger[0]}, {younger[1]}")
        A(f"s_cbranch_scc1 {chk}")
        A("s_waitcnt vmcnt(0)")
    else:
        A(f"s_waitcnt vmcnt({younger})")
    A(f"s_branch {chk}")
    A.label(again)
    A(f"s_sub_u32 s69, s69, 1")
    A(f"s_cmp_eq_u32 s69, 0")
    A(f"s_cbranch_scc1 {L}")
    A(f"v_mov_b32 {v(t)}, 1")
    A(f"v_mov_b32 {v(t+1)}, 0")
    A(f"v_mov_b32 {v(t+2)}, 0")
    A("s_mov_b64 exec, 1")
    A(f"buffer_atomic_add_x2 {v(t,2)}, {v(t+2)}, {WS}, s66 offen sc0")
    A("s_mov_b64 exec, -1")
    A("s_waitcnt vmcnt(0)")
    A.label(chk)
    A(f"v_readfirstlane_b32 s65, {v(t+1)}")
    A(f"v_readfirstlane_b32 s64, {v(t)}")
    A(f"s_cmp_lg_u32 s65, s68")
    A(f"s_cbranch_scc1 {again}")
    A(f"s_cmp_lg_u32 s64, {slast}")
    A(f"s_cbranch_scc1 {L}")
    set_exec((1 << NREP) - 1)
    A(f"buffer_store_dword {v(t+4)}, {v(t+3)}, {WS}, s67 offen sc1")
    A("s_mov_b64 exec, -1")
    A.label(L)

def rnd_pair(a, b, t):
    A(f"v_cvt_pk_bf16_f32 {v(t)}, {v(a)}, {v(b)}")
    A(f"v_lshlrev_b32 {v(a)}, 16, {v(t)}")
    A(f"v_and_b32 {v(b)}, 0xffff0000, {v(t)}")

def sincos(arg, c, sn):
    A(f"v_cos_f32 {v(c)}, {v(arg)}")
    A(f"v_sin_f32 {v(sn)}, {v(arg)}")

def prefetch_weights(t):
    if not opt("pref", 0):
        return
    srd(84, 46, 2211840)
    A(f"v_lshlrev_b32 {v(t)}, 4, v0")
    A(f"s_sub_u32 s60, s2, {C0}")
    for r in range(7):
        Ls, Ld = A.newlabel("Lpf"), A.newlabel("Lpf")
        A(f"s_add_u32 s61, s60, {235 * r}")
        A(f"s_cmp_ge_u32 s61, 1620")
        A(f"s_cbranch_scc1 {Ld}")
        A(f"s_mov_b32 s84, s46")
        A(f"s_and_b32 s85, s47, 0xffff")
        for (lim, p) in ((540, 48), (540, 50)):
            A(f"s_cmp_lt_u32 s61, {lim}")
            A(f"s_cbranch_scc1 {Ls}")
            A(f"s_sub_u32 s61, s61, {lim}")
            A(f"s_mov_b32 s84, s{p}")
            A(f"s_and_b32 s85, s{p+1}, 0xffff")
        A.label(Ls)
        A(f"s_lshl_b32 s61, s61, 12")
        A(f"buffer_load_dwordx4 {v(t+4,4)}, {v(t)}, s[84:87], s61 offen")
        A.label(Ld)

def fb_start(x, d):
    A(f"s_mul_i32 {d}, {x}, 3")
    A(f"s_lshl_b32 s62, {x}, 1")
    A(f"s_add_u32 s62, s62, 3")
    A(f"s_min_u32 {d}, {d}, s62")

def nloads(part):
    return bin(part).count("1")

def warm_weights(t, first, nshare, part):
    ra, rb = -(-640 // nshare), -(-1728 // nshare)
    A("s_and_b32 s61, s2, 7")
    A(f"s_sub_u32 s60, s2, {first}")
    A("s_lshr_b32 s60, s60, 3")
    srd(84, 46, 2211840)
    if part & 5:
        A(f"v_lshrrev_b32 {v(t)}, 2, v0")
        A(f"v_and_b32 {v(t+1)}, 3, v0")
        A(f"v_min_u32 {v(t)}, {ra - 1}, {v(t)}")
        A(f"s_mul_i32 s64, s60, {ra}")
        A(f"v_add_u32 {v(t)}, s64, {v(t)}")
        A("s_mul_i32 s63, s61, 7")
        A("s_sub_u32 s63, s63, 1")
        A("s_max_i32 s63, s63, 0")
        A("s_lshl_b32 s63, s63, 6")
        A("s_and_b32 s63, s63, -128")
        A(f"v_lshl_add_u32 {v(t+1)}, {v(t+1)}, 7, s63")
        A(f"s_movk_i32 s64, 3456")
        A(f"v_mad_u32_u24 {v(t+1)}, {v(t)}, s64, {v(t+1)}")
        if part & 1:
            A(f"buffer_load_dword {v(t+3)}, {v(t+1)}, s[84:87], 0 offen")
        if part & 4:
            A("s_mov_b32 s84, s48")
            A("s_and_b32 s85, s49, 0xffff")
            A(f"buffer_load_dword {v(t+3)}, {v(t+1)}, s[84:87], 0 offen")
    if part & 2:
        A(f"v_lshrrev_b32 {v(t)}, 1, v0")
        A(f"v_and_b32 {v(t+1)}, 1, v0")
        A(f"v_min_u32 {v(t)}, {rb - 1}, {v(t)}")
        A(f"s_mul_i32 s64, s60, {rb}")
        A(f"v_add_u32 {v(t)}, s64, {v(t)}")
        fb_start("s61", "s63")
        A("s_lshl_b32 s63, s63, 6")
        A("s_and_b32 s63, s63, -128")
        A(f"v_lshl_add_u32 {v(t+1)}, {v(t+1)}, 7, s63")
        A(f"s_movk_i32 s64, 1280")
        A(f"v_mad_u32_u24 {v(t+1)}, {v(t)}, s64, {v(t+1)}")
        A("s_mov_b32 s84, s50")
        A("s_and_b32 s85, s51, 0xffff")
        A(f"buffer_load_dword {v(t+3)}, {v(t+1)}, s[84:87], 0 offen")

def warm_coop(t):
    A("s_and_b32 s61, s2, 7")
    A(f"s_sub_u32 s60, s2, {FA0 - 1}")
    A("s_lshr_b32 s60, s60, 3")
    A("s_cmp_eq_u32 s61, 0")
    A("s_cselect_b32 s62, 1, 0")
    A("s_sub_u32 s60, s60, s62")
    A("s_min_u32 s60, s60, 8")
    A("s_mul_i32 s63, s61, 7")
    A("s_sub_u32 s63, s63, 1")
    A("s_max_i32 s63, s63, 0")
    A("s_lshl_b32 s63, s63, 6")
    A("s_and_b32 s63, s63, -128")
    A(f"v_and_b32 {v(t+1)}, 3, v0")
    A(f"v_lshl_add_u32 {v(t+1)}, {v(t+1)}, 7, s63")
    A(f"s_mul_i32 s64, s60, 72")
    A(f"s_movk_i32 s65, 3456")
    srd(84, 46, 2211840)
    srd(88, 48, 2211840)
    for p in range(2 if opt("coop", 4) & 5 else 0):
        A(f"v_lshrrev_b32 {v(t)}, 2, v0")
        A(f"v_add_u32 {v(t)}, {64 * p}, {v(t)}")
        A(f"v_min_u32 {v(t)}, 71, {v(t)}")
        A(f"v_add_u32 {v(t)}, s64, {v(t)}")
        A(f"v_mad_u32_u24 {v(t)}, {v(t)}, s65, {v(t+1)}")
        if p == 1:
            set_exec(0xffffffff)
        if opt("coop", 4) & 1:
            A(f"buffer_load_dword {v(t+3)}, {v(t)}, s[84:87], 0 offen")
        if opt("coop", 4) & 4:
            A(f"buffer_load_dword {v(t+3)}, {v(t)}, s[88:91], 0 offen")
    A("s_mov_b64 exec, -1")
    fb_start("s61", "s63")
    A("s_lshl_b32 s63, s63, 6")
    A("s_and_b32 s63, s63, -128")
    A(f"v_and_b32 {v(t+1)}, 1, v0")
    A(f"v_lshl_add_u32 {v(t+1)}, {v(t+1)}, 7, s63")
    A(f"s_mul_i32 s64, s60, 192")
    A(f"s_movk_i32 s65, 1280")
    A("s_mov_b32 s84, s50")
    A("s_and_b32 s85, s51, 0xffff")
    for p in range(2 if opt("coop", 4) & 2 else 0):
        A(f"v_lshrrev_b32 {v(t)}, 1, v0")
        A(f"v_add_u32 {v(t)}, {128 * p}, {v(t)}")
        A(f"v_min_u32 {v(t)}, 191, {v(t)}")
        A(f"v_add_u32 {v(t)}, s64, {v(t)}")
        A(f"v_mad_u32_u24 {v(t)}, {v(t)}, s65, {v(t+1)}")
        A(f"buffer_load_dword {v(t+3)}, {v(t)}, s[84:87], 0 offen")
    A("s_waitcnt vmcnt(0)")

def touch(t, base, nbytes):
    if not opt("touch", 0):
        return
    n = (nbytes + 65535) >> 16
    assert n <= 256
    A(f"v_min_u32 {v(t)}, {n - 1}, v0")
    A(f"v_lshlrev_b32 {v(t)}, 16, {v(t)}")
    A(f"s_mov_b32 s60, {base + opt('touchoff', 2624)}")
    A(f"buffer_load_dword {v(t)}, {v(t)}, {WS}, s60 offen")
    A("s_waitcnt vmcnt(0)")

def nonce_load(r):
    A(f"v_mov_b32 {v(r)}, 0")
    A(f"buffer_load_dword {v(r)}, {v(r)}, {WS}, 0 offen")

def nonce_take(r):
    A(f"v_readfirstlane_b32 s{NONCE}, {v(r)}")
    A(f"s_add_u32 s{NONCE}, s{NONCE}, 0x{NONCE_C:x}")

def prologue():
    A(f"s_cmp_ge_u32 s2, {NWG}")
    A("s_cbranch_scc1 L_end")
    A("s_load_dwordx2 s[40:41], s[0:1], 96")
    A("s_load_dwordx2 s[42:43], s[0:1], 0")
    A("s_load_dwordx4 s[44:47], s[0:1], 48")
    A("s_load_dwordx4 s[48:51], s[0:1], 64")
    A("s_load_dwordx4 s[52:55], s[0:1], 80")
    if opt("codepf", 1):
        A("s_getpc_b64 s[60:61]")
        A("s_and_b32 s60, s60, -256")
        A("v_lshlrev_b32 v2, 7, v0")
        A("v_mov_b32 v3, s61")
        A("v_add_co_u32 v2, vcc, s60, v2")
        A("v_addc_co_u32 v3, vcc, 0, v3, vcc")
        A("v_cmp_gt_u32 vcc, CODE_LINES, v0")
        A("s_and_saveexec_b64 s[62:63], vcc")
        A("s_cbranch_execz L_nopf")
        A("global_load_dword v255, v[2:3], off")
        A.label("L_nopf")
        A("s_mov_b64 exec, s[62:63]")
    A("v_lshrrev_b32 v2, 6, v0")
    A("v_and_b32 v1, 63, v0")
    A(f"v_readfirstlane_b32 s{WV}, v2")
    A("s_waitcnt lgkmcnt(0)")
    srd(4, 40, WS_BYTES)
    if DSTAMPS or MSTAMPS:
        srd(92, 54, 256)
    stamp(31, dbg=(0, 0))
    A(f"s_cmp_lt_u32 s2, {C0}")
    A("s_cbranch_scc1 L_roleR")
    A(f"s_cmp_lt_u32 s2, {FA0}")
    A("s_cbranch_scc1 L_roleC")
    A(f"s_cmp_lt_u32 s2, {FB0}")
    A("s_cbranch_scc1 L_roleFa")
    A("s_branch L_roleFb")

B1R, B1I, TWC, TWS, B2R, B2I, WR, INV = 16, 28, 40, 56, 72, 88, 104, 114
X, XN, MM, RS = 116, 136, 156, 158
ACR, ACI, AF1, AF2, AC2R, AC2I = 160, 176, 192, 204, 220, 236
vX, vY0, vY1, vY2, vKX, vLC, vLYW, vLYR, vLWW, vLWR0, vWG, vTA = 2, 3, 4, 5, 6, 7, 8, 9, 10, 11, 14, 15
vTB, vWG1 = 252, 115
sRHO, sA, sS2, sRA, sME, sREP, sXO, sWB, sTB, sP, sS, sQ = 22, 23, 24, 25, 26, 27, 28, 29, 30, 32, 34, 36
sSEL = 80
s32f = 38
sTAU = 39
LDS_Y, LDS_W, LDS_NEW, LDS_KX, LDS_CONST, LDS_RG = 0, 10240, 21504, 31744, 24576, 52224

def reduce_tail(r):
    for k in (8, 4, 2, 1):
        A(f"v_add_f32_dpp {v(r)}, {v(r)}, {v(r)} row_ror:{k} row_mask:0xf bank_mask:0xf")

def tau_of(w, t, scale):
    A(f"v_pk_mul_f32 {v(t,2)}, {v(w,2)}, {v(w,2)}")
    for i in range(2, 10, 2):
        A(f"v_pk_fma_f32 {v(t,2)}, {v(w+i,2)}, {v(w+i,2)}, {v(t,2)}")
    A(f"v_add_f32 {v(t)}, {v(t)}, {v(t+1)}")
    for sw in ("32", "16"):
        A(f"v_mov_b32 {v(t+1)}, {v(t)}")
        A(f"v_permlane{sw}_swap_b32 {v(t)}, {v(t+1)}")
        A(f"v_add_f32 {v(t)}, {v(t)}, {v(t+1)}")
    reduce_tail(t)
    A(f"v_sqrt_f32 {v(t)}, {v(t)}")
    A(f"v_mul_f32 {v(t)}, {f32(scale * opt('tau', 200) / 100)}, {v(t)}")

def ln_stats(xb, t):
    S_, Q_, D0, D1 = t, t + 2, t + 4, t + 6
    A(f"v_readfirstlane_b32 s{sP}, {v(xb)}")
    A(f"v_readfirstlane_b32 s{sP+1}, {v(xb+1)}")
    for i in range(10):
        D = S_ if i == 0 else (D0 if i % 2 else D1)
        A(f"v_pk_add_f32 {v(D,2)}, {v(xb+2*i,2)}, {s(sP,2)} neg_lo:[0,1] neg_hi:[0,1]")
        if i == 0:
            A(f"v_pk_mul_f32 {v(Q_,2)}, {v(D,2)}, {v(D,2)}")
        else:
            A(f"v_pk_add_f32 {v(S_,2)}, {v(S_,2)}, {v(D,2)}")
            A(f"v_pk_fma_f32 {v(Q_,2)}, {v(D,2)}, {v(D,2)}, {v(Q_,2)}")
    A(f"v_permlane32_swap_b32 {v(S_)}, {v(S_+1)}")
    A(f"v_permlane32_swap_b32 {v(Q_)}, {v(Q_+1)}")
    A(f"v_add_f32 {v(S_)}, {v(S_)}, {v(S_+1)}")
    A(f"v_add_f32 {v(Q_)}, {v(Q_)}, {v(Q_+1)}")
    A(f"v_permlane16_swap_b32 {v(S_)}, {v(Q_)}")
    A(f"v_add_f32 {v(S_)}, {v(S_)}, {v(Q_)}")
    reduce_tail(S_)
    A(f"v_readlane_b32 s{sS}, {v(S_)}, 0")
    A(f"v_readlane_b32 s{sS+1}, {v(S_)}, 32")
    A(f"v_readlane_b32 s{sQ}, {v(S_)}, 16")
    A(f"v_readlane_b32 s{sQ+1}, {v(S_)}, 48")
    A(f"v_pk_mul_f32 {v(MM,2)}, {s(sS,2)}, {v(INV,2)} op_sel_hi:[1,0]")
    A(f"v_pk_mul_f32 {v(RS,2)}, {s(sQ,2)}, {v(INV,2)} op_sel_hi:[1,0]")
    A(f"v_pk_fma_f32 {v(RS,2)}, {v(MM,2)}, {v(MM,2)}, {v(RS,2)} neg_lo:[1,0,0] neg_hi:[1,0,0]")
    A(f"v_pk_add_f32 {v(MM,2)}, {v(MM,2)}, {s(sP,2)}")
    A(f"v_max_f32 {v(RS)}, 0, {v(RS)}")
    A(f"v_max_f32 {v(RS+1)}, 0, {v(RS+1)}")
    rnd_pair(RS, RS + 1, D0)
    A(f"v_add_f32 {v(RS)}, {f32(1e-5)}, {v(RS)}")
    A(f"v_add_f32 {v(RS+1)}, {f32(1e-5)}, {v(RS+1)}")
    rnd_pair(RS, RS + 1, D0)
    A(f"v_sqrt_f32 {v(RS)}, {v(RS)}")
    A(f"v_sqrt_f32 {v(RS+1)}, {v(RS+1)}")
    rnd_pair(MM, MM + 1, D1)
    rnd_pair(RS, RS + 1, D0)
    A(f"v_rcp_f32 {v(RS)}, {v(RS)}")
    A(f"v_rcp_f32 {v(RS+1)}, {v(RS+1)}")

def ln_center_scale(xb, zb, t, exact=True):
    if not exact:
        A(f"v_pk_mul_f32 {v(t,2)}, {v(MM,2)}, {v(RS,2)} neg_lo:[1,0] neg_hi:[1,0]")
        for i in range(10):
            A(f"v_pk_fma_f32 {v(zb+2*i,2)}, {v(xb+2*i,2)}, {v(RS,2)}, {v(t,2)}")
        return
    for i in range(10):
        A(f"v_pk_add_f32 {v(zb+2*i,2)}, {v(xb+2*i,2)}, {v(MM,2)} neg_lo:[0,1] neg_hi:[0,1]")
        if exact:
            rnd_pair(zb + 2 * i, zb + 2 * i + 1, t + (i % 4))
    for i in range(10):
        A(f"v_pk_mul_f32 {v(zb+2*i,2)}, {v(zb+2*i,2)}, {v(RS,2)}")

def pack_rows(zb, pa, pb):
    for u in range(5):
        A(f"v_cvt_pk_bf16_f32 {v(pa+u)}, {v(zb+4*u)}, {v(zb+4*u+2)}")
        A(f"v_cvt_pk_bf16_f32 {v(pb+u)}, {v(zb+4*u+1)}, {v(zb+4*u+3)}")

def unpack_rows(zb, pa, pb):
    for u in range(5):
        A(f"v_lshlrev_b32 {v(zb+4*u)}, 16, {v(pa+u)}")
        A(f"v_and_b32 {v(zb+4*u+2)}, 0xffff0000, {v(pa+u)}")
        A(f"v_lshlrev_b32 {v(zb+4*u+1)}, 16, {v(pb+u)}")
        A(f"v_and_b32 {v(zb+4*u+3)}, 0xffff0000, {v(pb+u)}")

def store_rows(pa, pa4, pb, pb4, off, sb=sTB):
    A(f"buffer_store_dwordx4 {v(pa,4)}, {v(vTA)}, {WS}, s{sb} offen offset:{off} sc1")
    A(f"buffer_store_dword {v(pa4)}, {v(vTB)}, {WS}, s{sb} offen offset:{off} sc1")
    A(f"buffer_store_dwordx4 {v(pb,4)}, {v(vTA)}, {WS}, s{sb+1} offen offset:{off} sc1")
    A(f"buffer_store_dword {v(pb4)}, {v(vTB)}, {WS}, s{sb+1} offen offset:{off} sc1")

def to_f16(zb, t, sub=None):
    for i in range(10):
        if EXACT:
            rnd_pair(zb + 2 * i, zb + 2 * i + 1, t + (i % 4))
        A(f"v_cvt_pk_f16_f32 {v(AF1+i)}, {v(zb+2*i)}, {v(zb+2*i+1)}")
        if sub is not None:
            A(f"v_pk_add_f16 {v(AF1+i)}, {v(AF1+i)}, {v(sub(i))} neg_lo:[0,1] neg_hi:[0,1]")

def row_dft(t, shadow1=None, shadow2=None):
    for kk in range(3):
        c = "0" if kk == 0 else None
        A(f"v_mfma_f32_32x32x16_f16 {v(ACR,16)}, {v(AF1+4*kk,4)}, {v(B1R+4*kk,4)}, {c or v(ACR,16)}")
        A(f"v_mfma_f32_32x32x16_f16 {v(ACI,16)}, {v(AF1+4*kk,4)}, {v(B1I+4*kk,4)}, {c or v(ACI,16)}")
    if shadow1:
        shadow1()
    for kk in range(4):
        for i in (4 * kk, 4 * kk + 2):
            pr, pi = t + (i % 4) * 2, t + (i % 4) * 2 + 2
            A(f"v_pk_mul_f32 {v(pr,2)}, {v(ACR+i,2)}, {v(TWC+i,2)}")
            A(f"v_pk_mul_f32 {v(pi,2)}, {v(ACI+i,2)}, {v(TWC+i,2)}")
            A(f"v_pk_fma_f32 {v(pr,2)}, {v(ACI+i,2)}, {v(TWS+i,2)}, {v(pr,2)}")
            A(f"v_pk_fma_f32 {v(pi,2)}, {v(ACR+i,2)}, {v(TWS+i,2)}, {v(pi,2)} neg_lo:[1,0,0] neg_hi:[1,0,0]")
            A(f"v_cvt_pk_f16_f32 {v(AF2+i)}, {v(pr)}, {v(pi)}")
            A(f"v_cvt_pk_f16_f32 {v(AF2+i+1)}, {v(pr+1)}, {v(pi+1)}")
        c = "0" if kk == 0 else None
        A(f"v_mfma_f32_32x32x16_f16 {v(AC2R,16)}, {v(AF2+4*kk,4)}, {v(B2R+4*kk,4)}, {c or v(AC2R,16)}")
        A(f"v_mfma_f32_32x32x16_f16 {v(AC2I,16)}, {v(AF2+4*kk,4)}, {v(B2I+4*kk,4)}, {c or v(AC2I,16)}")
    if shadow2:
        shadow2()

def W_stores(layer, r0, r1, r2, lds=True):
    L = A.newlabel("Lw2")
    A(f"s_add_u32 s60, s{sWB}, {W_OFF + layer * W_SZ}")
    A(f"s_add_u32 s62, s60, {8192 + 112}")
    if lds:
        A("s_waitcnt lgkmcnt(2)")
    A(f"buffer_store_dwordx4 {v(r0,4)}, {v(vWG)}, {WS}, s60 offen sc1")
    if lds:
        A("s_waitcnt lgkmcnt(0)")
    A(f"buffer_store_dwordx4 {v(r1,4)}, {v(vWG1)}, {WS}, s60 offen sc1")
    A(f"s_cmp_ge_u32 s{WV}, 2")
    A(f"s_cbranch_scc1 {L}")
    if lds:
        A(f"ds_read2st64_b32 {v(r2,2)}, {v(vLWR0+2)} offset0:0 offset1:11")
        A(f"ds_read2st64_b32 {v(r2+2,2)}, {v(vLWR0+2)} offset0:22 offset1:33")
        A("s_waitcnt lgkmcnt(0)")
    A(f"buffer_store_dwordx4 {v(r2,4)}, {v(vWG)}, {WS}, s62 offen sc1")
    A.label(L)

def write_W(layer):
    k = 2 * layer
    for i in range(10):
        A(f"v_cvt_pk_f16_f32 {v(ACR+i)}, {v(AC2R+i)}, {v(AC2I+i)}")
        A(f"ds_write_b32 {v(vLWW)}, {v(ACR+i)} offset:{4*i}")
    A("s_waitcnt lgkmcnt(0)")
    A("s_barrier")
    for j in range(2):
        A(f"ds_read2st64_b32 {v(ACI+4*j,2)}, {v(vLWR0+j)} offset0:0 offset1:11")
        A(f"ds_read2st64_b32 {v(ACI+4*j+2,2)}, {v(vLWR0+j)} offset0:22 offset1:33")
    if EARLY_R == 0:
        arrive_issue(k, sME, AF2)
    W_stores(layer, ACI, ACI + 4, ACI + 8)
    if EARLY_R == 0:
        arrive_finish(k, sME, 15, AF2, 3)
    if (layer == 1 and DRAIN2) or (layer == 0 and DRAIN0):
        A("s_waitcnt vmcnt(0)")
        A("s_barrier")
        arrive_issue(k, sME, AF2)
        arrive_finish(k, sME, 15, AF2, 0)

def stage_Y(layer, first=None, shadow=None):
    c0, c1, c2, t = ACR, ACR + 4, ACR + 8, ACR + 16
    loop, L2, L4, L5, done = [A.newlabel("Ly") for _ in range(5)]
    A(f"s_mov_b32 s60, {Y_OFF + layer * Y_SZ}")
    A(f"s_mov_b32 s62, {SPIN}")
    for k in range(4):
        A(f"v_mov_b32 {v(c2+k)}, 0")
    if first:
        first()
    A.label(loop)
    A(f"buffer_load_dwordx4 {v(c0,4)}, {v(vY0)}, {WS}, s60 offen sc1")
    A(f"buffer_load_dwordx4 {v(c1,4)}, {v(vY1)}, {WS}, s60 offen sc1")
    A(f"s_cmp_ge_u32 s{WV}, 2")
    A(f"s_cbranch_scc1 {L2}")
    A(f"buffer_load_dwordx4 {v(c2,4)}, {v(vY2)}, {WS}, s60 offen sc1")
    A.label(L2)
    if shadow:
        Lsh = A.newlabel("Ly")
        A(f"s_cmp_lg_u32 s62, {SPIN}")
        A(f"s_cbranch_scc1 {Lsh}")
        shadow()
        A.label(Lsh)
    A("s_waitcnt vmcnt(0)")
    if layer == 0 or not DRAIN2:
        any_sentinel(range(c0, c0 + 12), t, done)
        spin_tail(loop, 62, 2)
    A.label(done)
    A(f"ds_write2st64_b32 {v(vLYW)}, {v(c0)}, {v(c0+1)} offset0:0 offset1:10")
    A(f"ds_write2st64_b32 {v(vLYW)}, {v(c0+2)}, {v(c0+3)} offset0:20 offset1:30")
    A(f"s_cmp_eq_u32 s{WV}, 0")
    A(f"s_cbranch_scc1 {L4}")
    for k in range(4):
        A(f"v_alignbit_b32 {v(t+k)}, {v(c1+3-k)}, {v(c1+3-k)}, 16")
    for k in range(4):
        A(f"v_mov_b32 {v(c1+k)}, {v(t+k)}")
    A.label(L4)
    A(f"ds_write2st64_b32 {v(vLYW)}, {v(c1)}, {v(c1+1)} offset0:4 offset1:14")
    A(f"ds_write2st64_b32 {v(vLYW)}, {v(c1+2)}, {v(c1+3)} offset0:24 offset1:34")
    A(f"s_cmp_ge_u32 s{WV}, 2")
    A(f"s_cbranch_scc1 {L5}")
    for k in range(4):
        A(f"v_alignbit_b32 {v(t+k)}, {v(c2+3-k)}, {v(c2+3-k)}, 16")
    A(f"ds_write2st64_b32 {v(vLYW)}, {v(t)}, {v(t+1)} offset0:8 offset1:18")
    A(f"ds_write2st64_b32 {v(vLYW)}, {v(t+2)}, {v(t+3)} offset0:28 offset1:38")
    A.label(L5)
    A("s_waitcnt lgkmcnt(0)")
    A("s_barrier")

def router_publish(layer, t, pa, pb):
    R_ = t
    for i in range(10):
        os_ = i & 1
        wv = v(WR + (i & ~1), 2)
        if i == 0:
            A(f"v_pk_mul_f32 {v(R_,2)}, {v(XN,2)}, {wv} op_sel:[0,{os_}] op_sel_hi:[1,{os_}]")
        else:
            A(f"v_pk_fma_f32 {v(R_,2)}, {v(XN+2*i,2)}, {wv}, {v(R_,2)} op_sel:[0,{os_},0] op_sel_hi:[1,{os_},1]")
    fill = []
    if not EXACT1:
        for u in range(5):
            fill.append(f"v_cvt_pk_bf16_f32 {v(pa+u)}, {v(XN+4*u)}, {v(XN+4*u+2)}")
            fill.append(f"v_cvt_pk_bf16_f32 {v(pb+u)}, {v(XN+4*u+1)}, {v(XN+4*u+3)}")
    def pad(n=2):
        for _ in range(n):
            if fill:
                A(fill.pop(0))
    pad()
    A(f"v_permlane32_swap_b32 {v(R_)}, {v(R_+1)}")
    A(f"v_add_f32 {v(R_)}, {v(R_)}, {v(R_+1)}")
    A(f"v_mov_b32 {v(R_+1)}, {v(R_)}")
    pad()
    A(f"v_permlane16_swap_b32 {v(R_)}, {v(R_+1)}")
    A(f"v_add_f32 {v(R_)}, {v(R_)}, {v(R_+1)}")
    for k in (8, 4, 2, 1):
        pad()
        A(f"v_add_f32_dpp {v(R_)}, {v(R_)}, {v(R_)} row_ror:{k} row_mask:0xf bank_mask:0xf")
    pad(10)
    A(f"v_cmp_le_f32 vcc, s{sTAU}, {v(R_)}")
    A(f"v_readlane_b32 s71, {v(R_)}, 32")
    A("s_mov_b64 s[56:57], vcc")
    for row, (p_, half) in enumerate(((pa, "vcc_lo"), (pb, "vcc_hi"))):
        Lr = A.newlabel("Lcand")
        A(f"s_cmp_eq_u32 {half}, 0")
        A(f"s_cbranch_scc1 {Lr}")
        A(f"buffer_store_dwordx4 {v(p_,4)}, {v(vTA)}, {WS}, s{sTB+row} offen sc1")
        A(f"buffer_store_dword {v(p_+4)}, {v(vTB)}, {WS}, s{sTB+row} offen sc1")
        A.label(Lr)
    A(f"s_lshl_b32 s70, s{WV}, 2")
    A(f"s_add_u32 s70, s70, {LDS_RG}")
    A(f"v_mov_b32 {v(R_+2)}, s70")
    A(f"v_cvt_pk_bf16_f32 {v(R_)}, {v(R_)}, s71")
    A(f"v_lshrrev_b32 {v(R_+1)}, 15, {v(R_)}")
    A(f"v_and_b32 {v(R_+1)}, 0x10001, {v(R_+1)}")
    A(f"v_mul_u32_u24 {v(R_+1)}, 0x7fff, {v(R_+1)}")
    A(f"v_or_b32 {v(R_+1)}, 0x80008000, {v(R_+1)}")
    A(f"v_xor_b32 {v(R_)}, {v(R_)}, {v(R_+1)}")
    A(f"v_min_u32 {v(R_)}, -2, {v(R_)}")
    A("s_mov_b64 exec, 1")
    A(f"ds_write_b32 {v(R_+2)}, {v(R_)}")
    A("s_mov_b64 exec, -1")
    A("s_waitcnt vmcnt(0) lgkmcnt(0)")
    A("s_barrier")
    L = A.newlabel("Lrp")
    A(f"s_cmp_lg_u32 s{WV}, 0")
    A(f"s_cbranch_scc1 {L}")
    A(f"ds_read_b128 {v(R_+4,4)}, {v(R_+2)}")
    A(f"v_lshlrev_b32 {v(R_+2)}, {RSH + 8}, v1")
    A(f"s_lshl_b32 s73, s{sRHO}, {RSH}")
    A(f"s_add_u32 s73, s73, {RG_OFF + layer * NRR * RG_REP}")
    set_exec((1 << NRR) - 1)
    A("s_waitcnt lgkmcnt(0)")
    A(f"buffer_store_dwordx4 {v(R_+4,4)}, {v(R_+2)}, {WS}, s73 offen sc1")
    A("s_mov_b64 exec, -1")
    A.label(L)

def roleR():
    A.label("L_roleR")
    prio(2)
    srd(8, 42, 2621440)
    A("s_and_b32 s60, s2, 7")
    A("s_lshr_b32 s61, s2, 3")
    A(f"s_lshr_b32 s{sA}, s61, 3")
    A("s_and_b32 s61, s61, 7")
    A("s_lshl_b32 s60, s60, 3")
    A("s_sub_u32 s62, 56, s60")
    A(f"s_cmp_lt_u32 s{sA}, 2")
    A("s_cselect_b32 s60, s60, s62")
    A(f"s_add_u32 s{sS2}, s60, s61")
    A(f"s_lshl_b32 s60, s{sA}, 9")
    A(f"s_lshl_b32 s61, s{WV}, 7")
    A(f"s_add_u32 s{sRA}, s60, s61")
    A(f"s_add_u32 s{sRA}, s{sRA}, s{sS2}")
    A(f"s_mul_i32 s{sXO}, s{sRA}, 1280")
    A(f"s_add_u32 s63, s{sXO}, {64 * 1280}")
    T = ACR
    n, h = T, T + 1
    A(f"v_and_b32 {v(n)}, 31, v1")
    A(f"v_lshrrev_b32 {v(h)}, 5, v1")
    A(f"v_mul_u32_u24 {v(vX)}, 640, {v(h)}")
    A(f"v_lshl_add_u32 {v(vX)}, {v(n)}, 1, {v(vX)}")
    for i in range(10):
        A(f"v_mov_b32 {v(X+2*i)}, 0")
        A(f"v_mov_b32 {v(X+2*i+1)}, 0")
        A(f"buffer_load_short_d16_hi {v(X+2*i)}, {v(vX)}, {SRD1}, s{sXO} offen offset:{64*i}")
        A(f"buffer_load_short_d16_hi {v(X+2*i+1)}, {v(vX)}, {SRD1}, s63 offen offset:{64*i}")
    NV = XN
    nonce_load(NV)
    ONES = XN + 4
    A(f"s_lshl_b32 s{sRHO}, s{sA}, 6")
    A(f"s_add_u32 s{sRHO}, s{sRHO}, s{sS2}")
    A(f"s_mul_i32 s{sWB}, s{sRHO}, {WROW}")
    for k in range(4):
        A(f"v_mov_b32 {v(ONES+k)}, -1")
    A(f"v_lshlrev_b32 {v(vWG)}, 4, v0")
    A(f"v_add_u32 {v(vWG1)}, {4096 + 112}, {v(vWG)}")
    A(f"v_add_u32 {v(T+2)}, 4096, {v(vWG)}")
    A(f"v_cmp_gt_u32 vcc, 65, v0")
    A(f"v_cndmask_b32 {v(vWG1)}, {v(vWG1)}, {v(T+2)}, vcc")
    A(f"v_lshlrev_b32 {v(T+4)}, 3, v0")
    A(f"s_lshl_b32 s61, s{sRHO}, 11")
    A(f"s_add_u32 s61, s61, {RESET_OFF}")
    A(f"buffer_store_dwordx2 {v(ONES,2)}, {v(T+4)}, {WS}, s61 offen sc1")
    if not DRAIN0:
        W_stores(0, ONES, ONES, ONES, lds=False)
    PREFR = opt("prefr", 0)
    if PREFR == 1:
        warm_weights(AC2R, 0, 32, PPART)
    e1, e1s, base, arg, c_, s_ = T + 6, T + 7, T + 8, T + 9, T + 10, T + 11
    hf_, wf, lc = T + 12, T + 13, T + 14
    G0 = T + 16
    A(f"v_bfe_u32 {v(e1)}, {v(n)}, 2, 1")
    A(f"v_mul_u32_u24 {v(e1)}, 10, {v(e1)}")
    A(f"v_and_b32 {v(arg)}, 3, {v(n)}")
    A(f"v_add_u32 {v(e1)}, {v(e1)}, {v(arg)}")
    A(f"v_lshrrev_b32 {v(arg)}, 3, {v(n)}")
    A(f"v_lshl_add_u32 {v(e1)}, {v(arg)}, 2, {v(e1)}")
    A(f"v_cvt_f32_u32 {v(e1)}, {v(e1)}")
    A(f"v_cvt_f32_u32 {v(hf_)}, {v(h)}")
    A(f"v_cvt_f32_u32 {v(wf)}, s{WV}")
    A(f"s_lshl_b32 s60, s{WV}, 10")
    A(f"s_add_u32 s60, s60, {LDS_CONST}")
    A(f"v_lshl_add_u32 {v(lc)}, v1, 4, s60")
    A(f"v_mul_f32 {v(e1s)}, {f32(1/20)}, {v(e1)}")
    A(f"v_mul_f32 {v(base)}, {f32(10.0)}, {v(hf_)}")
    A(f"v_fma_f32 {v(base)}, 4.0, {v(wf)}, {v(base)}")
    A(f"v_mul_f32 {v(base)}, {v(e1s)}, {v(base)}")
    A(f"s_cmp_lt_u32 s{WV}, 2")
    A(f"s_cselect_b64 s[64:65], -1, 0")
    for r in range(4):
        A(f"v_fmamk_f32 {v(arg)}, {v(e1s)}, {f32(r)}, {v(base)}")
        sincos(arg, c_, s_)
        A(f"v_cvt_pk_f16_f32 {v(G0+r)}, {v(c_)}, {v(s_)}")
        A(f"v_cvt_pk_f16_f32 {v(G0+4+r)}, -{v(s_)}, {v(c_)}")
        if r >= 2:
            A(f"v_cndmask_b32 {v(G0+r)}, 0, {v(G0+r)}, s[64:65]")
            A(f"v_cndmask_b32 {v(G0+4+r)}, 0, {v(G0+4+r)}, s[64:65]")
    A(f"ds_write_b128 {v(lc)}, {v(G0,4)}")
    A(f"ds_write_b128 {v(lc)}, {v(G0+4,4)} offset:4096")
    A(f"v_mul_f32 {v(wf)}, {f32(8.0)}, {v(wf)}")
    A(f"v_fma_f32 {v(wf)}, 4.0, {v(hf_)}, {v(wf)}")
    A(f"v_mul_f32 {v(e1s)}, {f32(1/640)}, {v(e1)}")
    A(f"v_mul_f32 {v(base)}, {v(e1s)}, {v(wf)}")
    for r in range(4):
        A(f"v_fmamk_f32 {v(arg)}, {v(e1s)}, {f32(r)}, {v(base)}")
        sincos(arg, G0 + 8 + r, G0 + 12 + r)
    A(f"ds_write_b128 {v(lc)}, {v(G0+8,4)} offset:8192")
    A(f"ds_write_b128 {v(lc)}, {v(G0+12,4)} offset:12288")
    A(f"v_cvt_f32_u32 {v(e1s)}, {v(n)}")
    A(f"v_mul_f32 {v(e1s)}, {f32(1/32)}, {v(e1s)}")
    A(f"v_mul_f32 {v(base)}, {v(e1s)}, {v(wf)}")
    for r in range(4):
        A(f"v_fmamk_f32 {v(arg)}, {v(e1s)}, {f32(r)}, {v(base)}")
        sincos(arg, c_, s_)
        A(f"v_cvt_pk_f16_f32 {v(G0+16+r)}, {v(c_)}, {v(s_)}")
        A(f"v_cvt_pk_f16_f32 {v(G0+20+r)}, -{v(s_)}, {v(c_)}")
    A(f"ds_write_b128 {v(lc)}, {v(G0+16,4)} offset:16384")
    A(f"ds_write_b128 {v(lc)}, {v(G0+20,4)} offset:20480")
    A(f"v_mov_b32 {v(AF1+10)}, 0")
    A(f"v_mov_b32 {v(AF1+11)}, 0")
    A(f"v_lshlrev_b32 {v(vLC)}, 4, v1")
    A(f"v_add_u32 {v(vLC)}, {LDS_CONST}, {v(vLC)}")
    A(f"v_mov_b32 {v(INV)}, {f32(1/640)}")
    A(f"s_mov_b32 s{s32f}, {f32(32.0)}")
    A(f"s_and_b32 s{sME}, s2, 15")
    A(f"v_mul_u32_u24 {v(vLWW)}, 21, {v(n)}")
    A(f"v_mad_u32_u24 {v(vLWW)}, {v(h)}, 10, {v(vLWW)}")
    A(f"s_mul_i32 s60, s{WV}, 704")
    A(f"s_add_u32 s60, s60, {LDS_W // 4}")
    A(f"v_add_lshl_u32 {v(vLWW)}, {v(vLWW)}, s60, 2")
    A("s_waitcnt lgkmcnt(0)")
    A("s_barrier")
    for (dst, ng, off) in ((B1R, 3, 0), (B1I, 3, 4096), (TWC, 4, 8192), (TWS, 4, 12288)):
        for gq in range(ng):
            A(f"ds_read_b128 {v(dst+4*gq,4)}, {v(vLC)} offset:{off + 1024*gq}")
    for j in range(3):
        A(f"v_add_u32 {v(arg)}, {256*j}, v0")
        A(f"v_mul_u32_u24 {v(c_)}, 3277, {v(arg)}")
        A(f"v_lshrrev_b32 {v(c_)}, 16, {v(c_)}")
        A(f"v_add_u32 {v(arg)}, {v(arg)}, {v(c_)}")
        A(f"v_lshlrev_b32 {v(arg)}, 2, {v(arg)}")
        A(f"v_add_u32 {v(vLWR0+j)}, {LDS_W}, {v(arg)}")
    A(f"v_lshlrev_b32 {v(vTA)}, 4, v1")
    A(f"v_lshlrev_b32 {v(vTB)}, 2, v1")
    A(f"v_add_u32 {v(vTB)}, 1024, {v(vTB)}")
    A(f"s_mul_i32 s{sTB}, s{sRA}, {T_REC}")
    A(f"s_add_u32 s{sTB}, s{sTB}, {T_OFF}")
    A(f"s_add_u32 s{sTB+1}, s{sTB}, {64 * T_REC}")
    stamp(0, dbg=(1, 0))
    ARV = 204
    A(f"s_waitcnt vmcnt({(1 if DRAIN0 else 3) + (nloads(PPART) if PREFR == 1 else 0)})")
    nonce_take(NV)
    stamp(10, dbg=(2, 0))
    if EARLY_R == 2:
        arrive_issue(0, sME, ARV)
    ln_stats(X, ACR)
    for (dst, ng, off) in ((B2R, 4, 16384), (B2I, 4, 20480)):
        for gq in range(ng):
            A(f"ds_read_b128 {v(dst+4*gq,4)}, {v(vLC)} offset:{off + 1024*gq}")
    ln_center_scale(X, XN, ACR, EXACT)
    to_f16(XN, ACR)
    if DRAIN0:
        A("s_waitcnt lgkmcnt(0)")
    else:
        A("s_waitcnt vmcnt(0) lgkmcnt(0)")
        A("s_barrier")
        arrive_issue(0, sME, XN + 8)
    def fill_xn1():
        for k in range(4):
            A(f"v_mov_b32 {v(XN+16+k)}, -1")
        store_rows(XN + 16, XN + 16, XN + 16, XN + 16, 0)
    row_dft(XN, None, (lambda: arrive_finish(0, sME, 15, XN + 8, 0)) if not DRAIN0 else None)
    stamp(11)
    write_W(0)
    stamp(1, dbg=(3, 0))
    if PREFR == 2:
        warm_weights(AC2R, 0, 32, PPART)
    srd(12, 52, 2621440)
    srd(16, 44, 1280)
    for i in range(10):
        A(f"v_mov_b32 {v(WR+i)}, 0")
        A(f"buffer_load_short_d16_hi {v(WR+i)}, {v(vX)}, {SRD3}, 0 offen offset:{64*i}")
    A(f"v_and_b32 {v(n)}, 31, v1")
    A(f"v_lshrrev_b32 {v(h)}, 5, v1")
    A(f"v_lshlrev_b32 {v(vLYW)}, 2, v0")
    A(f"v_mul_u32_u24 {v(vLYR)}, 320, {v(h)}")
    A(f"s_mul_i32 s60, s{WV}, 640")
    A(f"v_add3_u32 {v(vLYR)}, {v(vLYR)}, {v(n)}, s60")
    A(f"v_lshlrev_b32 {v(vLYR)}, 2, {v(vLYR)}")
    A(f"s_sub_u32 s60, 3, s{sA}")
    A(f"s_lshl_b32 s60, s60, 6")
    A(f"s_sub_u32 s61, 64, s{sS2}")
    A(f"s_add_u32 s60, s60, s61")
    A(f"s_lshl_b32 s60, s60, 4")
    A(f"s_lshl_b32 s61, s{sA}, 4")
    A(f"s_add_u32 s61, s61, {YM_OFF}")
    A(f"s_cmp_eq_u32 s{sS2}, 0")
    A(f"s_cselect_b32 s60, s61, s60")
    A(f"s_cselect_b32 s61, 6, 12")
    A(f"s_lshl_b32 s62, s{sRHO}, 4")
    A(f"v_lshlrev_b32 {v(vY0)}, 12, v0")
    A(f"v_add_u32 {v(vY0)}, s62, {v(vY0)}")
    A(f"v_sub_u32 {v(arg)}, 384, v0")
    A(f"v_lshlrev_b32 {v(arg)}, s61, {v(arg)}")
    A(f"v_add_u32 {v(vY1)}, s60, {v(arg)}")
    A(f"v_add_u32 {v(c_)}, {256 << 12}, {v(vY0)}")
    A(f"v_cmp_gt_u32 vcc, 64, v0")
    A(f"v_cndmask_b32 {v(vY1)}, {v(vY1)}, {v(c_)}, vcc")
    A(f"v_sub_u32 {v(arg)}, 128, v0")
    A(f"v_and_b32 {v(arg)}, 0xff, {v(arg)}")
    A(f"v_lshlrev_b32 {v(arg)}, s61, {v(arg)}")
    A(f"v_add_u32 {v(vY2)}, s60, {v(arg)}")
    A(f"s_mul_i32 s60, s{WV}, 5120")
    A(f"s_add_u32 s60, s60, {LDS_KX}")
    A(f"v_lshl_add_u32 {v(vKX)}, v1, 4, s60")
    A(f"s_and_b32 s{sREP}, s2, {NREP - 1}")
    A(f"s_lshl_b32 s{sREP}, s{sREP}, {FSH + 4}")
    A("s_waitcnt vmcnt(0)")
    tau_of(WR, ACR, 1.0)
    A(f"v_readfirstlane_b32 s{sTAU}, {v(ACR)}")
    if opt("touch", 0) > 1:
        touch(ACR, Y_OFF, 2 * Y_SZ)
    poll_flags(1, sREP, ACR)
    stamp(2, dbg=(7, 0))
    stage_Y(0)
    stamp(13)
    if not DRAIN2:
        for k in range(4):
            A(f"v_mov_b32 {v(AF2+k)}, -1")
        W_stores(1, AF2, AF2, AF2, lds=False)
    for i in range(10):
        A(f"ds_read_b32 {v(ACI+i)}, {v(vLYR)} offset:{128*i}")
    for i in range(10):
        A(f"s_waitcnt lgkmcnt({9-i})")
        A(f"v_fma_mix_f32 {v(X+2*i)}, {v(ACI+i)}, s{s32f}, {v(X+2*i)} op_sel:[0,0,0] op_sel_hi:[1,0,0]")
        A(f"v_fma_mix_f32 {v(X+2*i+1)}, {v(ACI+i)}, s{s32f}, {v(X+2*i+1)} op_sel:[1,0,0] op_sel_hi:[1,0,0]")
    PA, PB = AC2R, AC2R + 8
    pack_rows(X, PA, PB)
    unpack_rows(X, PA, PB)
    A(f"ds_write_b128 {v(vKX)}, {v(PA,4)} offset:2048")
    A(f"ds_write_b128 {v(vKX)}, {v(PB,4)} offset:3072")
    A(f"v_mov_b32 {v(PA+6)}, {v(PA+4)}")
    A(f"v_mov_b32 {v(PA+7)}, {v(PB+4)}")
    ln_stats(X, ACR)
    ln_center_scale(X, XN, ACR, EXACT1)
    if EXACT1:
        pack_rows(XN, PA + 16, PB + 16)
        unpack_rows(XN, PA + 16, PB + 16)
    stamp(14)
    router_publish(0, ACI, PA + 16, PB + 16)
    if not EXACT1:
        unpack_rows(XN, PA + 16, PB + 16)
    stamp(3, dbg=(8, 0))
    A(f"v_mov_b32 {v(PA+4)}, {v(PA+20)}")
    A(f"v_mov_b32 {v(PA+5)}, {v(PB+20)}")
    A(f"ds_write_b128 {v(vKX)}, {v(PA+16,4)}")
    A(f"ds_write_b128 {v(vKX)}, {v(PB+16,4)} offset:1024")
    A(f"ds_write_b128 {v(vKX)}, {v(PA+4,4)} offset:4096")
    if EARLY_R == 2:
        arrive_issue(2, sME, ARV)
    for i in range(10):
        A(f"v_pk_add_f32 {v(X+2*i,2)}, {v(X+2*i,2)}, {v(XN+2*i,2)}")
        rnd_pair(X + 2 * i, X + 2 * i + 1, ACR + (i % 4))
    ln_stats(X, ACR)
    ln_center_scale(X, XN, ACR + 8, EXACT)
    to_f16(XN, ACR + 8)
    if EARLY_R == 2:
        arrive_finish(2, sME, 15, ARV, 0)
    if not DRAIN2:
        arrive_issue(2, sME, XN + 14)
    row_dft(XN, None, (lambda: arrive_finish(2, sME, 15, XN + 14, 0)) if not DRAIN2 else None)
    stamp(16)
    if not opt("wlate", 0):
        write_W(1)
    stamp(4)
    A(f"s_mov_b32 s74, {X2_OFF}")
    def release(layer, row, stash, with_xn):
        R0 = ACR
        if stash:
            A(f"ds_read_b128 {v(R0,4)}, {v(vKX)} offset:{2048+1024*row}")
            A(f"ds_read_b128 {v(R0+8,4)}, {v(vKX)} offset:4096")
            if with_xn:
                A(f"ds_read_b128 {v(R0+12,4)}, {v(vKX)} offset:{1024*row}")
            x4, x1, n4, n1 = R0, R0 + 10 + row, R0 + 12, R0 + 8 + row
        else:
            P_ = PA if row == 0 else PB
            x4, x1, n4, n1 = P_, P_ + 4, P_ + 16, P_ + 20
        A(f"s_add_u32 s61, s{NONCE}, {6 + layer}")
        A(f"v_mov_b32 {v(R0+4)}, {v(MM+row)}")
        A(f"v_mov_b32 {v(R0+5)}, {v(RS+row)}")
        A(f"v_mov_b32 {v(R0+6)}, s61")
        A(f"v_mov_b32 {v(R0+7)}, s61")
        A("s_waitcnt lgkmcnt(0)")
        if with_xn:
            A(f"buffer_store_dwordx4 {v(n4,4)}, {v(vTA)}, {WS}, s{sTB+row} offen sc1")
            A(f"buffer_store_dword {v(n1)}, {v(vTB)}, {WS}, s{sTB+row} offen sc1")
        A(f"buffer_store_dwordx4 {v(x4,4)}, {v(vTA)}, {WS}, s{sTB+row} offen offset:1280 sc1")
        A(f"buffer_store_dword {v(x1)}, {v(vTB)}, {WS}, s{sTB+row} offen offset:1280 sc1")
        A("s_waitcnt vmcnt(0)")
        A("s_mov_b64 exec, 1")
        A(f"buffer_store_dwordx4 {v(R0+4,4)}, {v(vTA)}, {WS}, s{sTB+row} offen offset:2560 sc1")
        A("s_mov_b64 exec, -1")
    def release_candidates(layer, stash):
        for row in range(2):
            Ln = A.newlabel("Lrel")
            A(f"s_cmp_eq_u32 s{56+row}, 0")
            A(f"s_cbranch_scc1 {Ln}")
            release(layer, row, stash, False)
            A.label(Ln)
    def wait_sel(layer, stash):
        loop, done = A.newlabel("Lsel"), A.newlabel("Lseld")
        T2 = ACR + 16
        A(f"s_mov_b32 s60, {X2_OFF + SEL_OFF + 256 * layer}")
        A(f"v_and_b32 {v(T2)}, 7, v1")
        A(f"v_lshlrev_b32 {v(T2)}, 2, {v(T2)}")
        A(f"s_mov_b32 s62, {SPIN}")
        A.label(loop)
        A(f"buffer_load_dword {v(T2+1)}, {v(T2)}, {WS}, s60 offen sc1")
        A("s_waitcnt vmcnt(0)")
        A(f"v_cmp_eq_u32 vcc, -1, {v(T2+1)}")
        A(f"s_cbranch_vccz {done}")
        spin_tail(loop, 62, opt('selsleep', 4))
        A.label(done)
        for j in range(8):
            A(f"v_readlane_b32 s{sSEL+j}, {v(T2+1)}, {j}")
        for row in range(2):
            A(f"s_add_u32 s60, s{sRA}, {64 * row}")
            A(f"s_mov_b32 s{76+row}, -1")
            for j in range(8):
                A(f"s_cmp_eq_u32 s60, s{sSEL+j}")
                A(f"s_cselect_b32 s{76+row}, {j}, s{76+row}")
            Ln = A.newlabel("Lpush")
            A(f"s_cmp_lt_i32 s{76+row}, 0")
            A(f"s_cbranch_scc1 {Ln}")
            A(f"s_cmp_lg_u32 s{56+row}, 0")
            A(f"s_cbranch_scc1 {Ln}")
            release(layer, row, stash, True)
            A.label(Ln)
    release_candidates(0, True)
    vE0, vDF, vDM, vP2, vNW = vLWW, vLWR0, vLWR0 + 1, vLWR0 + 2, vWG
    n, h = ACR + 8, ACR + 9
    A(f"v_and_b32 {v(n)}, 31, v1")
    A(f"v_lshrrev_b32 {v(h)}, 5, v1")
    A(f"v_mul_u32_u24 {v(vE0)}, 20, {v(n)}")
    A(f"v_mad_u32_u24 {v(vE0)}, {v(h)}, 10, {v(vE0)}")
    vER = vLC
    A(f"v_and_b32 {v(vER)}, 31, {v(vE0)}")
    A(f"v_lshrrev_b32 {v(vDF)}, 5, {v(vE0)}")
    A(f"s_lshl_b32 s60, s{WV}, 2")
    A(f"s_add_u32 s60, s60, {LDS_W}")
    A(f"v_add_u32 {v(vE0)}, {v(vE0)}, {v(vDF)}")
    A(f"v_lshl_add_u32 {v(vE0)}, {v(vE0)}, 4, s60")
    A(f"v_mul_u32_u24 {v(vDF)}, 330, {v(h)}")
    A(f"v_add_u32 {v(vDF)}, {v(vDF)}, {v(n)}")
    A(f"v_sub_u32 {v(vDM)}, 362, {v(vDF)}")
    A(f"v_lshlrev_b32 {v(vDF)}, 4, {v(vDF)}")
    A(f"v_add_u32 {v(vDF)}, {LDS_W}, {v(vDF)}")
    A(f"v_cmp_eq_u32 vcc, 0, {v(n)}")
    A(f"v_addc_co_u32 {v(vDM)}, vcc, 0, {v(vDM)}, vcc")
    A(f"v_lshlrev_b32 {v(vDM)}, 4, {v(vDM)}")
    A(f"v_add_u32 {v(vDM)}, {LDS_W}, {v(vDM)}")
    A(f"s_lshl_b32 s60, s{WV}, 8")
    A(f"v_mul_u32_u24 {v(vP2)}, 10240, {v(h)}")
    A(f"v_lshl_add_u32 {v(vP2)}, {v(n)}, 3, {v(vP2)}")
    A(f"v_add_u32 {v(vP2)}, s60, {v(vP2)}")
    A(f"s_mul_i32 s60, s{WV}, 2560")
    A(f"s_add_u32 s60, s60, {LDS_NEW}")
    A(f"v_lshl_add_u32 {v(vNW)}, v1, 2, s60")
    A(f"s_add_u32 s75, s74, 4096")
    A(f"s_add_u32 s78, s74, 8192")
    ORDER = opt("order", 1)
    def sel_step():
        wait_sel(0, True)
        A(f"s_add_u32 s{sTB}, s{sTB}, {T_SZ}")
        A(f"s_add_u32 s{sTB+1}, s{sTB+1}, {T_SZ}")
        stamp(5)
    if ORDER == 0:
        sel_step()
    CU, CV = XN + 12, XN + 16
    def coefs():
        tr, ca, sa, cb, sb, ar, t0, t1_ = range(AF2, AF2 + 8)
        A(f"v_and_b32 {v(tr)}, 1, v1")
        A(f"v_lshlrev_b32 {v(tr)}, 6, {v(tr)}")
        A(f"v_add_u32 {v(tr)}, s{sRA}, {v(tr)}")
        A(f"s_mov_b32 s64, 0x00300003")
        A(f"s_mov_b32 s65, 0x30000300")
        for p in range(4):
            for (j, cc, ss) in ((2 * p, ca, sa), (2 * p + 1, cb, sb)):
                A(f"v_mul_u32_u24 {v(ar)}, s{sSEL+j}, {v(tr)}")
                A(f"v_and_b32 {v(ar)}, 0x7ff, {v(ar)}")
                A(f"v_cvt_f32_u32 {v(ar)}, {v(ar)}")
                A(f"v_mul_f32 {v(ar)}, {f32(1/2048)}, {v(ar)}")
                sincos(ar, cc, ss)
            A(f"v_sub_f32 {v(t0)}, {v(ca)}, {v(sb)}")
            A(f"v_add_f32 {v(t1_)}, {v(sa)}, {v(cb)}")
            A(f"v_mul_f32 {v(t0)}, 0.5, {v(t0)}")
            A(f"v_mul_f32 {v(t1_)}, 0.5, {v(t1_)}")
            A(f"v_cvt_pk_f16_f32 {v(CU+p)}, {v(t0)}, {v(t1_)}")
            A(f"v_add_f32 {v(t0)}, {v(ca)}, {v(sb)}")
            A(f"v_sub_f32 {v(t1_)}, {v(cb)}, {v(sa)}")
            A(f"v_mul_f32 {v(t0)}, 0.5, {v(t0)}")
            A(f"v_mul_f32 {v(t1_)}, 0.5, {v(t1_)}")
            A(f"v_cvt_pk_f16_f32 {v(CV+p)}, {v(t0)}, {v(t1_)}")
            A(f"v_cndmask_b32 {v(CU+p)}, 0, {v(CU+p)}, s[64:65]")
            A(f"v_cndmask_b32 {v(CV+p)}, 0, {v(CV+p)}, s[64:65]")

    poll_flags(3, sREP, ACR)
    stamp(6, dbg=(13, 0))
    RAW = AC2R
    def x2loads():
        for i in range(10):
            so = ("s74", "s75", "s78")[i // 4]
            A(f"buffer_load_dwordx2 {v(RAW+2*i,2)}, {v(vP2)}, {WS}, {so} offen offset:{1024*(i%4)} sc1")
    if ORDER == 0:
        stage_Y(1, x2loads, coefs)
    else:
        stage_Y(1)
        if opt("spec", 0):
            x2loads()
        sel_step()
        coefs()
    alldone = A.newlabel("Lx2a")
    if ORDER == 0 or opt("spec", 0):
        any_sentinel(range(RAW, RAW + 20), ACR, alldone)
    loop, done = A.newlabel("Lx2"), A.newlabel("Lx2d")
    A(f"s_mov_b32 s62, {SPIN}")
    A(f"s_add_u32 s60, s74, {SEL_OFF + 128}")
    A(f"v_mov_b32 {v(ACR)}, 0")
    A.label(loop)
    A(f"buffer_load_dword {v(ACR+1)}, {v(ACR)}, {WS}, s60 offen sc1")
    A("s_waitcnt vmcnt(0)")
    A(f"v_cmp_eq_u32 vcc, -1, {v(ACR+1)}")
    A(f"s_cbranch_vccz {done}")
    spin_tail(loop, 62, opt("hintsleep", 2))
    A.label(done)
    loop, done = A.newlabel("Lx2"), A.newlabel("Lx2d")
    A(f"s_mov_b32 s62, {SPIN}")
    A.label(loop)
    x2loads()
    A("s_waitcnt vmcnt(0)")
    any_sentinel(range(RAW, RAW + 20), ACR, done)
    spin_tail(loop, 62, opt("x2sleep", 1))
    A.label(done)
    A.label(alldone)
    stamp(7)
    Z = ACR + 12
    for i in range(10):
        A(f"v_lshlrev_b32 {v(Z+2*i)}, 16, {v(RAW+2*i)}")
        A(f"v_and_b32 {v(Z+2*i+1)}, 0xffff0000, {v(RAW+2*i)}")
    for i in range(10):
        A(f"ds_write_b32 {v(vNW)}, {v(RAW+2*i)} offset:{256*i}")
    ln_stats(Z, ACR + 2)
    ln_center_scale(Z, Z, ACR + 2, EXACT)
    to_f16(Z, ACR + 2, sub=lambda i: RAW + 2 * i + 1)
    CBL = [16 + 4 * i for i in range(6)] + [AF1, AF1 + 4, AF1 + 8, XN + 8]
    WA = TWC
    def shadow1():
        for i in range(10):
            A(f"ds_read_b32 {v(CBL[i]+2)}, {v(vLYR)} offset:{128*i}")
        for i in range(10):
            A(f"s_waitcnt lgkmcnt({9-i})")
            A(f"v_fma_mix_f32 {v(CBL[i])}, {v(CBL[i]+2)}, s{s32f}, {v(X+2*i)} op_sel:[0,0,0] op_sel_hi:[1,0,0]")
            A(f"v_fma_mix_f32 {v(CBL[i]+1)}, {v(CBL[i]+2)}, s{s32f}, {v(X+2*i+1)} op_sel:[1,0,0] op_sel_hi:[1,0,0]")
    def shadow2():
        for i in range(10):
            A(f"v_add_u32 {v(WA+i)}, {i}, {v(vER)}")
            A(f"v_bfe_u32 {v(WA+i)}, {v(WA+i)}, 5, 1")
            A(f"v_lshl_add_u32 {v(WA+i)}, {v(WA+i)}, 4, {v(vE0)}")
    A("s_waitcnt lgkmcnt(0)")
    row_dft(XN, shadow1, shadow2)
    stamp(18)
    for i in range(10):
        A(f"v_cvt_pk_f16_f32 {v(ACR+i)}, {v(AC2R+i)}, {v(AC2I+i)}")
        A(f"ds_write_b32 {v(WA+i)}, {v(ACR+i)} offset:{16*i}")
    A("s_mov_b64 exec, 1")
    A(f"ds_write_b32 {v(vE0)}, {v(ACR)} offset:{660*16}")
    A("s_mov_b64 exec, -1")
    A("s_waitcnt lgkmcnt(0)")
    A("s_barrier")
    FRL = [40 + 4 * q for q in range(16)] + [160 + 4 * q for q in range(4)]
    def corr(k):
        A(f"v_mfma_f32_16x16x32_f16 {v(CBL[k],4)}, {v(CU,4)}, {v(FRL[2*k],4)}, {v(CBL[k],4)}")
        A(f"v_mfma_f32_16x16x32_f16 {v(CBL[k],4)}, {v(CV,4)}, {v(FRL[2*k+1],4)}, {v(CBL[k],4)}")
    for i in range(10):
        A(f"ds_read_b128 {v(FRL[2*i],4)}, {v(vDF)} offset:{528*i}")
        A(f"ds_read_b128 {v(FRL[2*i+1],4)}, {v(vDM)} offset:{528*(9-i)}")
        if i >= 6:
            A(f"s_waitcnt lgkmcnt(12)")
            corr(i - 6)
    for k in range(4, 10):
        A(f"s_waitcnt lgkmcnt({2*(9-k)})")
        corr(k)
    stamp(19)
    for row in range(2):
        Lnext = A.newlabel("Lown")
        A(f"s_cmp_lt_i32 s{76+row}, 0")
        A(f"s_cbranch_scc1 {Lnext}")
        A(f"s_lshr_b32 s62, s{76+row}, 1")
        A("s_mul_i32 s62, s62, 2560")
        A(f"s_add_u32 s62, s62, {LDS_NEW}")
        A(f"s_and_b32 s61, s{76+row}, 1")
        A("s_lshl_b32 s61, s61, 4")
        A("s_sub_u32 s61, 16, s61")
        A(f"v_lshl_add_u32 {v(240)}, v1, 2, s62")
        for i in range(10):
            A(f"ds_read_b32 {v(241+i)}, {v(240)} offset:{256*i}")
        A("s_waitcnt lgkmcnt(0)")
        for i in range(10):
            A(f"v_lshlrev_b32 {v(241+i)}, s61, {v(241+i)}")
            A(f"v_and_b32 {v(241+i)}, 0xffff0000, {v(241+i)}")
            A(f"v_sub_f32 {v(241+i)}, {v(241+i)}, {v(X+2*i+row)}")
            A(f"v_add_f32 {v(CBL[i]+row)}, {v(CBL[i]+row)}, {v(241+i)}")
        A.label(Lnext)
    for u in range(5):
        A(f"v_cvt_pk_bf16_f32 {v(PA+u)}, {v(CBL[2*u])}, {v(CBL[2*u+1])}")
        A(f"v_cvt_pk_bf16_f32 {v(PB+u)}, {v(CBL[2*u]+1)}, {v(CBL[2*u+1]+1)}")
    unpack_rows(X, PA, PB)
    ln_stats(X, ACR)
    ln_center_scale(X, XN, ACR, EXACT1)
    if EXACT1:
        pack_rows(XN, PA + 16, PB + 16)
        unpack_rows(XN, PA + 16, PB + 16)
    stamp(20)
    router_publish(1, ACI + 8, PA + 16, PB + 16)
    if not EXACT1:
        unpack_rows(XN, PA + 16, PB + 16)
    stamp(8, dbg=(14, 0))
    OB = 16
    A(f"s_mul_i32 s60, s{WV}, 2560")
    A(f"v_add_u32 {v(OB)}, s60, {v(vX)}")
    for i in range(10):
        A(f"v_pk_add_f32 {v(X+2*i,2)}, {v(X+2*i,2)}, {v(XN+2*i,2)}")
        A(f"v_cvt_pk_bf16_f32 {v(OB+2+i)}, {v(X+2*i)}, {v(X+2*i+1)}")
        A(f"ds_write_b16 {v(OB)}, {v(OB+2+i)} offset:{64*i}")
        A(f"ds_write_b16_d16_hi {v(OB)}, {v(OB+2+i)} offset:{1280+64*i}")
    A(f"v_lshlrev_b32 {v(OB+1)}, 4, v1")
    A(f"v_add_u32 {v(OB)}, s60, {v(OB+1)}")
    A("s_waitcnt lgkmcnt(0)")
    for k in range(3):
        A(f"ds_read_b128 {v(OB+12+4*k,4)}, {v(OB)} offset:{1024*k}")
    A(f"v_add_u32 {v(OB+2)}, {1024 + 63 * 1280}, {v(OB+1)}")
    A(f"v_add_u32 {v(OB+3)}, 1024, {v(OB+1)}")
    A(f"v_cmp_gt_u32 vcc, 16, v1")
    A(f"v_cndmask_b32 {v(OB+3)}, {v(OB+2)}, {v(OB+3)}, vcc")
    def out_stores():
        A("s_waitcnt lgkmcnt(0)")
        A(f"buffer_store_dwordx4 {v(OB+12,4)}, {v(OB+1)}, {SRD2}, s{sXO} offen sc1")
        A(f"buffer_store_dwordx4 {v(OB+16,4)}, {v(OB+3)}, {SRD2}, s{sXO} offen sc1")
        set_exec(0xffffffff)
        A(f"buffer_store_dwordx4 {v(OB+20,4)}, {v(OB+2)}, {SRD2}, s{sXO} offen offset:1024 sc1")
        A("s_mov_b64 exec, -1")
    OD = opt("outdelay", 0)
    if OD:
        A(f"s_lshl_b32 s73, s{sRHO}, 4")
        A(f"s_add_u32 s73, s73, {RG_OFF + NRR * RG_REP}")
        A(f"v_mov_b32 {v(ACR)}, 0")
        for _ in range(OD):
            A(f"buffer_load_dword {v(ACR+1)}, {v(ACR)}, {WS}, s73 offen sc1")
            A("s_waitcnt vmcnt(0)")
    out_stores()
    release_candidates(1, False)
    wait_sel(1, False)
    stamp(22)
    stamp(9)
    A("s_endpgm")

def roleC():
    A.label("L_roleC")
    B1, TC, TS, A2, DT, RAW, AR, AI, P, AC, O, T = 16, 32, 48, 64, 128, 160, 176, 192, 208, 224, 240, 248
    sC, sCME, sCREP, sK, sW0, sW1, sY, sLAST = 22, 23, 24, 25, 26, 27, 28, 29
    nonce_load(T + 4)
    if opt("prefc", 1) == 1:
        warm_weights(AC, C0, 29, PPART)
    A(f"s_sub_u32 s60, s2, {C0}")
    A("s_and_b32 s61, s60, 7")
    A("s_lshr_b32 s62, s60, 3")
    A("s_lshr_b32 s63, s62, 2")
    A("s_lshl_b32 s63, s63, 5")
    A("s_lshl_b32 s61, s61, 2")
    A("s_and_b32 s62, s62, 3")
    A(f"s_add_u32 s{sC}, s63, s61")
    A(f"s_add_u32 s{sC}, s{sC}, s62")
    A(f"s_and_b32 s{sCME}, s2, 15")
    A(f"s_cmp_eq_u32 s{sCME}, 0")
    A(f"s_cselect_b32 s{sLAST}, 10, 9")
    A(f"s_and_b32 s{sCREP}, s2, {NREP - 1}")
    A(f"s_lshl_b32 s{sCREP}, s{sCREP}, {FSH + 4}")
    n, g, t1, gs, arg, base, st = RAW, RAW + 1, RAW + 2, RAW + 3, RAW + 4, RAW + 5, RAW + 6
    ca, sa, cb, sb, x0, x1 = RAW + 7, RAW + 8, RAW + 9, RAW + 10, RAW + 11, RAW + 12
    A(f"v_and_b32 {v(n)}, 15, v1")
    A(f"v_lshrrev_b32 {v(g)}, 4, v1")
    A(f"s_and_b32 s70, s{WV}, 1")
    A(f"s_lshl_b32 s70, s70, 4")
    A(f"s_lshr_b32 s61, s{WV}, 1")
    A(f"v_lshrrev_b32 v2, 1, v0")
    A(f"v_and_b32 v6, 1, v0")
    A(f"s_lshl_b32 s62, s{sC}, 1")
    A(f"v_add_u32 v3, s62, v6")
    A(f"v_min_u32 v3, 320, v3")
    A(f"v_sub_u32 v4, 640, v3")
    A(f"v_cmp_ne_u32 vcc, 0, v3")
    A(f"v_cndmask_b32 v4, 0, v4, vcc")
    A(f"v_add_u32 v5, 7, v4")
    A(f"v_cmp_lt_u32 vcc, 320, v4")
    A(f"v_cndmask_b32 v4, v4, v5, vcc")
    A(f"v_mul_u32_u24 v5, {WROW}, v2")
    A(f"v_mul_u32_u24 v6, 8256, v6")
    A(f"v_lshl_add_u32 v6, v2, 4, v6")
    A(f"v_lshl_add_u32 v2, v3, 4, v5")
    A(f"v_lshl_add_u32 v3, v4, 4, v5")
    A(f"s_mul_i32 s63, s61, 8256")
    A(f"v_lshlrev_b32 v7, 10, {v(g)}")
    A(f"v_lshl_add_u32 v7, {v(n)}, 4, v7")
    A(f"v_add_u32 v7, s63, v7")
    A(f"s_add_u32 s62, s62, s61")
    A(f"s_lshl_b32 s62, s62, 12")
    A(f"v_lshl_add_u32 v8, {v(g)}, 6, {v(n)}")
    A(f"v_add_u32 v8, s70, v8")
    A(f"v_lshl_add_u32 v8, v8, 4, s62")
    A(f"s_lshr_b32 s62, s62, 6")
    A(f"s_add_u32 s62, s62, {YM_OFF + 48}")
    A(f"v_lshlrev_b32 v9, 4, {v(g)}")
    A(f"v_sub_u32 v9, s62, v9")
    def Y_stores(r0, r1, rm, sy, prep=None):
        A(f"buffer_store_dwordx4 {v(r0,4)}, v8, {WS}, {sy} offen sc1")
        A(f"buffer_store_dwordx4 {v(r1,4)}, v8, {WS}, {sy} offen offset:512 sc1")
        Lm = A.newlabel("Lym")
        A(f"s_bitcmp1_b32 s{WV}, 0")
        A(f"s_cbranch_scc1 {Lm}")
        if prep:
            prep()
        set_exec(0x0001000100010001)
        A(f"buffer_store_dwordx4 {v(rm,4)}, v9, {WS}, {sy} offen sc1")
        A("s_mov_b64 exec, -1")
        A.label(Lm)
    A(f"s_waitcnt vmcnt({nloads(PPART) if opt('prefc', 1) == 1 else 0})")
    nonce_take(T + 4)
    Li = A.newlabel("Lci")
    A(f"s_sub_u32 s60, s2, {C0}")
    A(f"s_lshl_b32 s61, s{WV}, 4")
    A(f"s_or_b32 s60, s60, s61")
    A(f"s_cmp_ge_u32 s60, 16")
    A(f"s_cbranch_scc1 {Li}")
    cnt_init(sCME, range(4), T)
    A.label(Li)
    for k in range(4):
        A(f"v_mov_b32 {v(O+k)}, -1")
    A(f"s_mov_b32 s63, {Y_OFF}")
    Y_stores(O, O, O, "s63")
    if opt("prefc", 1) == 2:
        warm_weights(AC, C0, 29, PPART)
    A(f"v_add_u32 {v(t1)}, s70, {v(n)}")
    A(f"v_cvt_f32_u32 {v(t1)}, {v(t1)}")
    A(f"v_cvt_f32_u32 {v(gs)}, {v(g)}")
    A(f"v_mul_f32 {v(st)}, {f32(1/32)}, {v(t1)}")
    A(f"v_mul_f32 {v(base)}, {v(st)}, {v(gs)}")
    A(f"v_mul_f32 {v(base)}, {f32(8.0)}, {v(base)}")
    for w in range(4):
        A(f"v_fmamk_f32 {v(arg)}, {v(st)}, {f32(2*w)}, {v(base)}")
        sincos(arg, ca, sa)
        A(f"v_add_f32 {v(arg)}, {v(arg)}, {v(st)}")
        sincos(arg, cb, sb)
        A(f"v_sub_f32 {v(x0)}, {v(ca)}, {v(sb)}")
        A(f"v_add_f32 {v(x1)}, {v(sa)}, {v(cb)}")
        A(f"v_cvt_pk_f16_f32 {v(B1+w)}, {v(x0)}, {v(x1)}")
        A(f"v_cvt_pk_f16_f32 {v(B1+4+w)}, -{v(x1)}, {v(x0)}")
        A(f"v_add_f32 {v(x0)}, {v(ca)}, {v(sb)}")
        A(f"v_sub_f32 {v(x1)}, {v(cb)}, {v(sa)}")
        A(f"v_cvt_pk_f16_f32 {v(B1+8+w)}, {v(x0)}, {v(x1)}")
        A(f"v_cvt_pk_f16_f32 {v(B1+12+w)}, {v(x1)}, -{v(x0)}")
    A(f"v_mul_f32 {v(st)}, {f32(1/2048)}, {v(t1)}")
    A(f"v_mul_f32 {v(base)}, {v(st)}, {v(gs)}")
    A(f"v_mul_f32 {v(base)}, 4.0, {v(base)}")
    for j in range(4):
        for i in range(4):
            A(f"v_fmamk_f32 {v(arg)}, {v(st)}, {f32(16*j+i)}, {v(base)}")
            sincos(arg, ca, sa)
            A(f"v_mul_f32 {v(TC+4*j+i)}, {f32(1/64)}, {v(ca)}")
            A(f"v_mul_f32 {v(TS+4*j+i)}, {f32(1/64)}, {v(sa)}")
    A(f"v_lshrrev_b32 {v(x0)}, 2, {v(n)}")
    A(f"v_lshlrev_b32 {v(x0)}, 4, {v(x0)}")
    A(f"v_and_b32 {v(x1)}, 3, {v(n)}")
    A(f"v_lshl_add_u32 {v(x0)}, {v(x1)}, 1, {v(x0)}")
    A(f"s_lshr_b32 s60, s70, 1")
    A(f"s_lshr_b32 s61, s{WV}, 1")
    A(f"s_add_u32 s60, s60, s61")
    A(f"v_add_u32 {v(x0)}, s60, {v(x0)}")
    A(f"v_cvt_f32_u32 {v(x0)}, {v(x0)}")
    A(f"v_mul_f32 {v(st)}, {f32(1/64)}, {v(x0)}")
    A(f"v_mul_f32 {v(base)}, {v(st)}, {v(gs)}")
    A(f"v_mul_f32 {v(base)}, 4.0, {v(base)}")
    A(f"s_lshl_b32 s60, s{WV}, 12")
    A(f"s_add_u32 s60, s60, 24576")
    A(f"v_lshl_add_u32 {v(x1)}, v1, 4, s60")
    for j in range(4):
        for i in range(4):
            A(f"v_fmamk_f32 {v(arg)}, {v(st)}, {f32(16*j+i)}, {v(base)}")
            sincos(arg, ca, sa)
            A(f"v_cvt_pk_f16_f32 {v(DT+4*j+i)}, {v(ca)}, {v(sa)}")
        A(f"ds_write_b128 {v(x1)}, {v(DT+4*j,4)} offset:{1024*j}")
    A(f"v_lshlrev_b32 {v(x1)}, 4, v1")
    A("s_waitcnt lgkmcnt(0)")
    A("s_barrier")
    for q in range(16):
        A(f"ds_read_b128 {v(A2+4*q,4)}, {v(x1)} offset:{24576 + 1024*q}")
        if q == 7:
            A("s_waitcnt lgkmcnt(0)")
    A("s_waitcnt vmcnt(0)")
    prio(3)
    A(f"s_mov_b32 s{sK}, 0")
    A(f"s_mov_b32 s{sW0}, {W_OFF}")
    A(f"s_mov_b32 s{sY}, {Y_OFF}")
    if opt("touch", 0) > 1:
        touch(T, W_OFF, 2 * W_SZ)
    stamp(4, dbg=(4, C0))
    A.label("L_Cloop")
    A(f"s_add_u32 s{sW1}, s{sW0}, {128 * WROW}")
    poll_flags(f"s{sK}", sCREP, T)
    stamp(0, f"s{sK}", dbg=(5, C0, 0))
    loop, done = A.newlabel("Lcw"), A.newlabel("Lcwd")
    A(f"s_add_u32 s30, s{sK}, 1")
    if EARLY_C == 2:
        arrive_issue("s30", sCME, O)
    A(f"s_mov_b32 s62, {SPIN}")
    A.label(loop)
    A(f"buffer_load_dwordx4 {v(RAW,4)}, v2, {WS}, s{sW0} offen sc1")
    A(f"buffer_load_dwordx4 {v(RAW+4,4)}, v2, {WS}, s{sW1} offen sc1")
    A(f"buffer_load_dwordx4 {v(RAW+8,4)}, v3, {WS}, s{sW0} offen sc1")
    A(f"buffer_load_dwordx4 {v(RAW+12,4)}, v3, {WS}, s{sW1} offen sc1")
    for j in range(4):
        A(f"s_waitcnt vmcnt({3-j})")
        A(f"ds_write_b128 v6, {v(RAW+4*j,4)} offset:{(j>>1)*4096 + (j&1)*2048}")
    if DRAIN2:
        A(f"s_cmp_lg_u32 s{sK}, 0")
        A(f"s_cbranch_scc1 {done}")
    if DRAIN0:
        A(f"s_cmp_eq_u32 s{sK}, 0")
        A(f"s_cbranch_scc1 {done}")
    any_sentinel(range(RAW, RAW + 16), T, done)
    spin_tail(loop, 62, 2)
    A.label(done)
    Le1, Le2, Le3 = A.newlabel("Lce"), A.newlabel("Lce"), A.newlabel("Lce")
    if DRAIN2:
        A(f"s_cmp_lg_u32 s{sK}, 0")
        A(f"s_cbranch_scc1 {Le1}")
    arrive_issue("s30", sCME, O)
    A.label(Le1)
    if EARLY_C == 2:
        arrive_finish("s30", sCME, f"s{sLAST}", O, 0)
    A("s_waitcnt lgkmcnt(0)")
    A("s_barrier")
    stamp(1, f"s{sK}")
    Lf = A.newlabel("Lcf")
    A(f"s_cmp_lg_u32 s{sK}, 0")
    A(f"s_cbranch_scc1 {Lf}")
    if not DRAIN2:
        for k in range(4):
            A(f"v_mov_b32 {v(P+k)}, -1")
        A(f"s_mov_b32 s63, {Y_OFF + Y_SZ}")
        Y_stores(P, P, P, "s63")
    A.label(Lf)
    for j in range(4):
        A(f"ds_read_b128 {v(DT+8*j,4)}, v7 offset:{256*j}")
        A(f"ds_read_b128 {v(DT+8*j+4,4)}, v7 offset:{4096+256*j}")
    for j in range(4):
        A(f"s_waitcnt lgkmcnt({7-2*j})")
        A(f"v_mfma_f32_16x16x32_f16 {v(AR+4*j,4)}, {v(DT+8*j,4)}, {v(B1,4)}, 0")
        A(f"v_mfma_f32_16x16x32_f16 {v(AI+4*j,4)}, {v(DT+8*j,4)}, {v(B1+4,4)}, 0")
        A(f"s_waitcnt lgkmcnt({6-2*j})")
        A(f"v_mfma_f32_16x16x32_f16 {v(AR+4*j,4)}, {v(DT+8*j+4,4)}, {v(B1+8,4)}, {v(AR+4*j,4)}")
        A(f"v_mfma_f32_16x16x32_f16 {v(AI+4*j,4)}, {v(DT+8*j+4,4)}, {v(B1+12,4)}, {v(AI+4*j,4)}")
    A(f"s_add_u32 s{sK}, s{sK}, 1")
    for j in range(4):
        for i in (4 * j, 4 * j + 2):
            pr, pi = RAW + (i % 4) * 2, RAW + (i % 4) * 2 + 2
            A(f"v_pk_mul_f32 {v(pr,2)}, {v(AR+i,2)}, {v(TC+i,2)}")
            A(f"v_pk_mul_f32 {v(pi,2)}, {v(AI+i,2)}, {v(TC+i,2)}")
            A(f"v_pk_fma_f32 {v(pr,2)}, {v(AI+i,2)}, {v(TS+i,2)}, {v(pr,2)}")
            A(f"v_pk_fma_f32 {v(pi,2)}, {v(AR+i,2)}, {v(TS+i,2)}, {v(pi,2)} neg_lo:[1,0,0] neg_hi:[1,0,0]")
            A(f"v_cvt_pk_f16_f32 {v(P+i)}, {v(pr)}, {v(pi)}")
            A(f"v_cvt_pk_f16_f32 {v(P+i+1)}, {v(pr+1)}, {v(pi+1)}")
        for jm in range(4):
            c = "0" if j == 0 else v(AC + 4 * jm, 4)
            A(f"v_mfma_f32_16x16x32_f16 {v(AC+4*jm,4)}, {v(A2+16*jm+4*j,4)}, {v(P+4*j,4)}, {c}")
        if j == opt("cfin", 1):
            if DRAIN2:
                A(f"s_cmp_lg_u32 s{sK}, 1")
                A(f"s_cbranch_scc1 {Le2}")
                arrive_finish("s30", sCME, f"s{sLAST}", O, 0)
                A.label(Le2)
            else:
                arrive_finish("s30", sCME, f"s{sLAST}", O, ("s30", 1, 3))
    if EARLY_C == 0:
        A("s_barrier")
        arrive_issue(f"s{sK}", sCME, T)
    for k in range(8):
        A(f"v_cvt_pk_f16_f32 {v(O+k)}, {v(AC+2*k)}, {v(AC+2*k+1)}")
    def prep():
        for gq in range(4):
            A(f"v_readlane_b32 s{60+gq}, {v(O)}, {16*((gq+1)%4)}")
        for gq in range(4):
            A(f"v_writelane_b32 {v(P+4)}, s{60+gq}, {16*gq}")
        for k in range(3):
            A(f"v_alignbit_b32 {v(P+k)}, {v(O+k+1)}, {v(O+k)}, 16")
        A(f"v_alignbit_b32 {v(P+3)}, {v(P+4)}, {v(O+3)}, 16")
    Y_stores(O, O + 4, P, f"s{sY}", prep)
    if DRAIN2:
        A(f"s_cmp_eq_u32 s{sK}, 1")
        A(f"s_cbranch_scc1 {Le3}")
        A("s_waitcnt vmcnt(0)")
        A("s_barrier")
        arrive_issue("s30", sCME, T)
        arrive_finish("s30", sCME, f"s{sLAST}", T, 0)
        A.label(Le3)
    stamp(3, f"s{sK}", dbg=(6, C0, 1))
    A(f"s_add_u32 s{sK}, s{sK}, 1")
    A(f"s_add_u32 s{sW0}, s{sW0}, {W_SZ}")
    A(f"s_add_u32 s{sY}, s{sY}, {Y_SZ}")
    A(f"s_cmp_ge_u32 s{sK}, 4")
    A("s_cbranch_scc1 L_end")
    A("s_waitcnt vmcnt(0)")
    A("s_branch L_Cloop")

SORT8 = [(0, 1), (2, 3), (4, 5), (6, 7), (0, 2), (1, 3), (4, 6), (5, 7), (1, 2), (5, 6), (0, 4), (3, 7),
         (1, 5), (2, 6), (1, 4), (3, 6), (2, 4), (3, 5), (3, 4)]

def topk_setup(CODE, vG, vLW, vLR, LDS0):
    A(f"v_lshrrev_b32 {v(CODE)}, 6, v0")
    A(f"v_lshlrev_b32 {v(CODE)}, 9, {v(CODE)}")
    A(f"v_add_u32 {v(CODE)}, {v(CODE)}, v1")
    A(f"v_sub_u32 {v(CODE)}, 2047, {v(CODE)}")
    for i in range(1, 8):
        A(f"v_subrev_u32 {v(CODE+i)}, {64*i}, {v(CODE)}")
    A(f"v_lshlrev_b32 {v(vG)}, {RSH}, v0")
    A(f"v_lshrrev_b32 {v(vLW)}, 4, v0")
    A(f"v_lshlrev_b32 {v(vLW)}, 5, {v(vLW)}")
    A(f"v_add_u32 {v(vLW)}, {LDS0}, {v(vLW)}")
    A(f"v_and_b32 {v(vLR)}, 15, v1")
    A(f"v_lshlrev_b32 {v(vLR)}, 5, {v(vLR)}")
    A(f"v_add_u32 {v(vLR)}, {LDS0}, {v(vLR)}")

def topk(K, CODE, vG, vLW, vLR, sRG, blk, dbg, mid=None):
    G = K + 16
    prio(0)
    for gate in ((True, False) if GATE else (False,)):
        loop, done = A.newlabel("Lrg"), A.newlabel("Lrgd")
        A(f"s_mov_b32 s62, {SPIN}")
        if gate:
            set_exec(0xff << 56)
        A.label(loop)
        A(f"buffer_load_dwordx4 {v(G,4)}, {v(vG)}, {WS}, s{sRG} offen sc1")
        A("s_waitcnt vmcnt(0)")
        any_sentinel(range(G, G + 4), K, done)
        spin_tail(loop, 62, opt("rsleep", 1))
        A.label(done)
        if gate:
            A("s_mov_b64 exec, -1")
    prio(3)
    stamp(3, "s27", dbg=dbg)
    A("s_mov_b32 s63, 0xffff0000")
    cur = list(range(K, K + 8))
    for k in range(4):
        A(f"v_lshl_or_b32 {v(cur[2*k])}, {v(G+k)}, 16, {v(CODE+2*k)}")
        A(f"v_and_or_b32 {v(cur[2*k+1])}, {v(G+k)}, s63, {v(CODE+2*k+1)}")
    free = list(range(K + 8, K + 24))

    def ce(i, j, dst=None):
        if dst is None:
            t = free.pop(0)
            A(f"v_max_u32 {v(t)}, {v(cur[i])}, {v(cur[j])}")
            A(f"v_min_u32 {v(cur[j])}, {v(cur[i])}, {v(cur[j])}")
            free.append(cur[i])
            cur[i] = t
        else:
            A(f"v_max_u32 {v(dst+i)}, {v(cur[i])}, {v(cur[j])}")
            A(f"v_min_u32 {v(dst+j)}, {v(cur[i])}, {v(cur[j])}")

    for (i, j) in SORT8:
        ce(i, j)
    pats = ["quad_perm:[1,0,3,2]", "quad_perm:[2,3,0,1]", "row_half_mirror", "row_mirror"]
    for rnd in range(2):
        for li, pat in enumerate(pats):
            new = [free.pop(0) for _ in range(8)]
            for i in (7, 6, 5, 4, 3, 2, 1, 0) if False else range(8):
                A(f"v_max_u32_dpp {v(new[i])}, {v(cur[7-i])}, {v(cur[i])} {pat} row_mask:0xf bank_mask:0xf")
            free.extend(cur)
            cur = new
            if rnd == 1 and li == 3:
                return cur
            for i in range(4):
                ce(i, i + 4)
            for i in (0, 1, 4, 5):
                ce(i, i + 2)
            if rnd == 0 and li == 3:
                for i in (0, 2, 4, 6):
                    ce(i, i + 1, dst=blk)
                set_exec(0x0001000100010001)
                A(f"ds_write_b128 {v(vLW)}, {v(blk,4)}")
                A(f"ds_write_b128 {v(vLW)}, {v(blk+4,4)} offset:16")
                A("s_mov_b64 exec, -1")
                A("s_waitcnt lgkmcnt(0)")
                A("s_barrier")
                A(f"ds_read_b128 {v(K,4)}, {v(vLR)}")
                A(f"ds_read_b128 {v(K+4,4)}, {v(vLR)} offset:16")
                A("s_waitcnt lgkmcnt(0)")
                if mid:
                    mid(K)
                cur = list(range(K, K + 8))
                free = list(range(K + 8, K + 24))
            else:
                for i in (6, 4, 2, 0):
                    ce(i, i + 1)

def load_weight_frags(jobs):
    total = sum(8 * j[3] for j in jobs)
    for (srdn, voff_of, soff_of, nsteps, dst, raw, vfull) in jobs:
        for k in range(nsteps):
            for q in range(8):
                d = raw + 8 * k + q
                if vfull is not None and k == vfull:
                    A(f"v_add_u32 {v(d)}, {soff_of(k, q)}, {v(voff_of(k))}")
                    A(f"buffer_load_dword {v(d)}, {v(d)}, {srdn}, 0 offen")
                    continue
                A(f"s_mov_b32 s60, {soff_of(k, q)}")
                A(f"buffer_load_dword {v(d)}, {v(voff_of(k))}, {srdn}, s60 offen")
    done = 0
    for (srdn, voff_of, soff_of, nsteps, dst, raw, vfull) in jobs:
        for k in range(nsteps):
            done += 8
            A(f"s_waitcnt vmcnt({min(63, total - done)})")
            r = raw + 8 * k
            for u in range(4):
                A(f"v_perm_b32 {v(dst + 8*k + u)}, {v(r+2*u+1)}, {v(r+2*u)}, s58")
                A(f"v_perm_b32 {v(dst + 8*k + 4 + u)}, {v(r+2*u+1)}, {v(r+2*u)}, s59")

def roleFa():
    A.label("L_roleFa")
    GW, UW, RAW, AFR, ACC, K, CODE = 16, 56, 96, 136, 156, 176, 200
    vG, vLW, vLR, vW1, vW2, vLP1, vLP2, vPW, vPR, vH = 2, 3, 4, 5, 6, 7, 8, 9, 10, 11
    sKAP, sRG, sT, sH, sL = 22, 23, 25, 26, 27
    T = 208
    nonce_load(T + 8)
    if opt("prefc", 1) == 1:
        warm_weights(T + 12, C0, 29, PPART)
    srd(8, 46, 2211840)
    srd(12, 48, 2211840)
    A(f"s_sub_u32 s60, s2, {FA0 - 1}")
    A(f"s_and_b32 s61, s60, 7")
    A(f"s_lshr_b32 s60, s60, 3")
    A(f"s_mul_i32 s{sKAP}, s61, 7")
    A(f"s_add_u32 s{sKAP}, s{sKAP}, s60")
    A(f"s_sub_u32 s{sKAP}, s{sKAP}, 1")
    A("s_mov_b32 s58, 0x05040100")
    A("s_mov_b32 s59, 0x07060302")
    n, g = T, T + 1
    A(f"v_and_b32 {v(n)}, 15, v1")
    A(f"v_lshrrev_b32 {v(g)}, 4, v1")
    A(f"s_lshr_b32 s60, s{WV}, 1")
    A(f"s_mul_i32 s60, s60, 320")
    A(f"s_and_b32 s61, s{WV}, 1")
    A(f"s_lshl_b32 s61, s61, 4")
    A(f"s_add_u32 s60, s60, s61")
    A(f"s_lshl_b32 s61, s{sKAP}, 6")
    A(f"v_lshl_add_u32 {v(T+2)}, {v(n)}, 2, s61")
    A(f"v_add_u32 {v(vW1)}, s60, {v(g)}")
    A(f"v_mul_u32_u24 {v(vW1)}, 3456, {v(vW1)}")
    A(f"v_add_u32 {v(vW1)}, {v(vW1)}, {v(T+2)}")
    A(f"v_lshl_add_u32 {v(vW2)}, {v(g)}, 2, s60")
    A(f"v_mul_u32_u24 {v(vW2)}, 3456, {v(vW2)}")
    A(f"v_add_u32 {v(vW2)}, {v(vW2)}, {v(T+2)}")
    voff = lambda k: vW1 if k < 4 else vW2
    soff = lambda k, q: ((32 * q + 4 * k) if k < 4 else (256 + 32 * (q & 1) + (q >> 1))) * 3456
    A("s_waitcnt vmcnt(0)")
    nonce_take(T + 8)
    A(f"s_and_b32 s29, s2, {NREP - 1}")
    A(f"s_lshl_b32 s29, s29, {FSH + 4}")
    if opt("prefc", 1) == 2:
        warm_weights(T + 12, C0, 29, PPART)
    poll_flags(0, 29, T + 4, opt("fsleep", 8))
    if opt("coop", 4):
        warm_coop(T + 12)
    srd(16, 44, 1280)
    A(f"v_and_b32 {v(T+2)}, 31, v1")
    A(f"v_lshrrev_b32 {v(T+3)}, 5, v1")
    A(f"v_mul_u32_u24 {v(T+3)}, 640, {v(T+3)}")
    A(f"v_lshl_add_u32 {v(T+2)}, {v(T+2)}, 1, {v(T+3)}")
    for i in range(10):
        A(f"v_mov_b32 {v(K+i)}, 0")
        A(f"buffer_load_short_d16_hi {v(K+i)}, {v(T+2)}, {SRD3}, 0 offen offset:{64*i}")
    A("s_waitcnt vmcnt(0)")
    tau_of(K, T + 2, 1.0 + 1.0 / 32)
    A(f"v_or_b32 {v(T+2)}, 0x80000000, {v(T+2)}")
    A(f"v_readfirstlane_b32 s36, {v(T+2)}")
    if opt("wide", 0):
        A(f"s_lshr_b32 s60, s{WV}, 1")
        A(f"s_mul_i32 s60, s60, 320")
        A(f"s_and_b32 s61, s{WV}, 1")
        A(f"s_lshl_b32 s61, s61, 4")
        A(f"s_add_u32 s60, s60, s61")
        A(f"v_lshrrev_b32 {v(T+4)}, 2, v1")
        A(f"v_add_u32 {v(T+4)}, s60, {v(T+4)}")
        A(f"v_mul_u32_u24 {v(T+4)}, 3456, {v(T+4)}")
        A(f"v_and_b32 {v(T+5)}, 3, v1")
        A(f"s_lshl_b32 s61, s{sKAP}, 6")
        A(f"v_lshl_add_u32 {v(T+5)}, {v(T+5)}, 4, s61")
        A(f"v_add_u32 {v(T+4)}, {v(T+4)}, {v(T+5)}")
        for j in range(10):
            A(f"s_mov_b32 s60, {32 * j * 3456}")
            A(f"buffer_load_dwordx4 {v(T+12,4)}, {v(T+4)}, {SRD1}, s60 offen")
            A(f"buffer_load_dwordx4 {v(T+12,4)}, {v(T+4)}, {SRD2}, s60 offen")
        if opt("wide", 0) == 2:
            A("s_waitcnt vmcnt(0)")
    load_weight_frags([(SRD1, voff, soff, 5, GW, RAW, None), (SRD2, voff, soff, 5, UW, RAW + 40, None)])
    topk_setup(CODE, vG, vLW, vLR, 24576)
    A(f"v_and_b32 {v(T+2)}, 7, v1")
    A(f"s_lshl_b32 s60, s{WV}, 8")
    A(f"v_lshl_add_u32 {v(vLP1)}, {v(T+2)}, 4, s60")
    A(f"s_lshl_b32 s60, s{WV}, 6")
    A(f"s_add_u32 s60, s60, 1024")
    A(f"v_lshl_add_u32 {v(vLP2)}, {v(T+2)}, 4, s60")
    A(f"s_mul_i32 s60, s{WV}, 2688")
    A(f"s_add_u32 s60, s60, 12288")
    A(f"v_lshrrev_b32 {v(T+3)}, 3, v1")
    A(f"v_mul_u32_u24 v13, 336, {v(T+3)}")
    A(f"v_lshl_add_u32 v13, {v(T+2)}, 4, v13")
    A(f"v_add_u32 v13, s60, v13")
    A(f"v_mul_u32_u24 v14, 336, {v(T+2)}")
    A(f"v_lshl_add_u32 v14, {v(g)}, 4, v14")
    A(f"v_add_u32 v14, s60, v14")
    A(f"s_mul_i32 s60, s{WV}, 2560")
    A(f"v_mul_u32_u24 {v(vPW)}, 640, {v(g)}")
    A(f"v_lshl_add_u32 {v(vPW)}, {v(n)}, 3, {v(vPW)}")
    A(f"v_add_u32 {v(vPW)}, s60, {v(vPW)}")
    A(f"v_add_u32 {v(12)}, 1280, {v(vPW)}")
    A(f"v_mul_u32_u24 {v(vPR)}, 40, {v(T+3)}")
    A(f"s_lshl_b32 s60, s{WV}, 3")
    A(f"v_add3_u32 {v(vPR)}, {v(vPR)}, {v(T+2)}, s60")
    A(f"v_lshlrev_b32 {v(vPR)}, 2, {v(vPR)}")
    A(f"v_lshrrev_b32 {v(T+2)}, 1, v0")
    A(f"v_lshlrev_b32 {v(vH)}, 2, {v(T+2)}")
    A(f"s_lshl_b32 s{sH}, s{sKAP}, 9")
    A(f"s_add_u32 s{sH}, s{sH}, {H_OFF}")
    A(f"s_and_b32 s{sRG}, s2, {NRR - 1}")
    A(f"s_lshl_b32 s{sRG}, s{sRG}, {RSH + 8}")
    A(f"s_add_u32 s{sRG}, s{sRG}, {RG_OFF}")
    A(f"s_mov_b32 s{sT}, {T_OFF}")
    A(f"s_mov_b32 s28, {T_REC}")
    for (r, val) in ((30, 0x00FFFF00), (31, 0x00FFFF00), (32, 0xFF00FF00), (33, 0x00FF00FF)):
        A(f"s_mov_b32 s{r}, 0x{val:x}")
    A(f"s_mov_b32 s{sL}, 0")
    touch(T + 2, T_OFF, 2 * T_SZ)
    stamp(0, dbg=(9, FA0))
    poll_flags(1, 29, T, 8)
    prio(3)
    A.label("L_FaLoop")
    c = topk(K, CODE, vG, vLW, vLR, sRG, T, (11, FA0, 0))
    stamp(4, "s27")
    A(f"v_cndmask_b32 {v(T)}, {v(c[0])}, {v(c[2])}, s[30:31]")
    A(f"v_cndmask_b32 {v(T+1)}, {v(c[4])}, {v(c[6])}, s[30:31]")
    A(f"v_cndmask_b32 {v(T)}, {v(T)}, {v(T+1)}, s[32:33]")
    A(f"v_and_b32 {v(T)}, 0x7ff, {v(T)}")
    A(f"v_sub_u32 {v(T)}, 2047, {v(T)}")
    A(f"v_mad_u32_u24 {v(T+1)}, {v(T)}, s28, {v(vLP1)}")
    A(f"v_mad_u32_u24 {v(T+2)}, {v(T)}, s28, {v(vLP2)}")
    loop, done = A.newlabel("Lga"), A.newlabel("Lgad")
    A(f"v_min3_u32 {v(T+3)}, {v(c[0])}, {v(c[1])}, {v(c[2])}")
    A(f"v_min3_u32 {v(T+4)}, {v(c[3])}, {v(c[4])}, {v(c[5])}")
    A(f"v_min3_u32 {v(T+3)}, {v(T+3)}, {v(c[6])}, {v(c[7])}")
    A(f"v_min_u32 {v(T+3)}, {v(T+3)}, {v(T+4)}")
    A(f"v_and_b32 {v(T+3)}, 0xffff0000, {v(T+3)}")
    A(f"v_cmp_gt_u32 vcc, s36, {v(T+3)}")
    A(f"s_cbranch_vccz {done}")
    A(f"v_mul_u32_u24 {v(T+3)}, s28, {v(T)}")
    A(f"s_add_u32 s61, s{NONCE}, 6")
    A(f"s_add_u32 s61, s61, s{sL}")
    A(f"s_mov_b32 s62, {SPIN}")
    A.label(loop)
    A(f"buffer_load_dword {v(T+4)}, {v(T+3)}, {WS}, s{sT} offen offset:2568 sc1")
    A("s_waitcnt vmcnt(0)")
    A(f"v_cmp_ne_u32 vcc, s61, {v(T+4)}")
    A(f"s_cbranch_vccz {done}")
    spin_tail(loop, 62, 2)
    A.label(done)
    GR = K
    A(f"buffer_load_dwordx4 {v(GR,4)}, {v(T+1)}, {WS}, s{sT} offen sc1")
    A(f"buffer_load_dwordx4 {v(GR+4,4)}, {v(T+1)}, {WS}, s{sT} offen offset:128 sc1")
    set_exec(0x0F0F0F0F0F0F0F0F)
    A(f"buffer_load_dwordx4 {v(GR+8,4)}, {v(T+2)}, {WS}, s{sT} offen sc1")
    A("s_mov_b64 exec, -1")
    A("s_waitcnt vmcnt(2)")
    A(f"ds_write_b128 v13, {v(GR,4)}")
    A("s_waitcnt vmcnt(1)")
    A(f"ds_write_b128 v13, {v(GR+4,4)} offset:128")
    A("s_waitcnt vmcnt(0)")
    set_exec(0x0F0F0F0F0F0F0F0F)
    A(f"ds_write_b128 v13, {v(GR+8,4)} offset:256")
    A("s_mov_b64 exec, -1")
    for ks in range(5):
        A(f"ds_read_b128 {v(AFR+4*ks,4)}, v14 offset:{64*ks}")
    for ks in range(5):
        A(f"s_waitcnt lgkmcnt({4-ks})")
        for a_, wb in enumerate((GW, GW + 4, UW, UW + 4)):
            cc = "0" if ks == 0 else v(ACC + 4 * a_, 4)
            A(f"v_mfma_f32_16x16x32_bf16 {v(ACC+4*a_,4)}, {v(AFR+4*ks,4)}, {v(wb+8*ks,4)}, {cc}")
    stamp(5, "s27")
    set_exec(0xffffffff)
    for mat in range(2):
        for r in range(4):
            A(f"ds_write2_b32 {v(vPW if mat == 0 else 12)}, {v(ACC+8*mat+r)}, {v(ACC+8*mat+4+r)} offset0:{40*r} offset1:{40*r+1}")
    A("s_mov_b64 exec, -1")
    A("s_waitcnt lgkmcnt(0)")
    A("s_barrier")
    for w in range(4):
        A(f"ds_read2st64_b32 {v(T+2*w,2)}, {v(vPR)} offset0:{10*w} offset1:{10*w+5}")
    A("s_waitcnt lgkmcnt(2)")
    A(f"v_pk_add_f32 {v(T,2)}, {v(T,2)}, {v(T+2,2)}")
    A("s_waitcnt lgkmcnt(0)")
    A(f"v_pk_add_f32 {v(T+4,2)}, {v(T+4,2)}, {v(T+6,2)}")
    A(f"v_pk_add_f32 {v(T,2)}, {v(T,2)}, {v(T+4,2)}")
    rnd_pair(T, T + 1, T + 2)
    A(f"v_mul_f32 {v(T+2)}, {f32(-1.4426950408889634)}, {v(T)}")
    A(f"v_exp_f32 {v(T+2)}, {v(T+2)}")
    A(f"v_add_f32 {v(T+2)}, 1.0, {v(T+2)}")
    A(f"v_rcp_f32 {v(T+2)}, {v(T+2)}")
    A(f"v_mul_f32 {v(T)}, {v(T)}, {v(T+2)}")
    A(f"v_cvt_pk_bf16_f32 {v(T)}, {v(T)}, {v(T)}")
    A(f"v_and_b32 {v(T)}, 0xffff0000, {v(T)}")
    A(f"v_mul_f32 {v(T)}, {v(T)}, {v(T+1)}")
    A(f"v_mov_b32_dpp {v(T+1)}, {v(T)} quad_perm:[1,0,3,2] row_mask:0xf bank_mask:0xf")
    A(f"v_cvt_pk_bf16_f32 {v(T)}, {v(T)}, {v(T+1)}")
    A(f"v_min_u32 {v(T)}, -2, {v(T)}")
    set_exec(0x5555555555555555)
    A(f"buffer_store_dword {v(T)}, {v(vH)}, {WS}, s{sH} offen sc1")
    A("s_mov_b64 exec, -1")
    if opt("hintsrc", 0) == 1:
        Lh3 = A.newlabel("Lfa")
        A(f"s_or_b32 s60, s{sKAP}, s{WV}")
        A(f"s_or_b32 s60, s60, s{sL}")
        A(f"s_cmp_lg_u32 s60, 0")
        A(f"s_cbranch_scc1 {Lh3}")
        A(f"v_mov_b32 {v(T+4)}, 0")
        A(f"s_mov_b32 s60, {X2_OFF + SEL_OFF + 128}")
        A("s_mov_b64 exec, 1")
        A(f"buffer_store_dword {v(T+4)}, {v(T+4)}, {WS}, s60 offen sc1")
        A("s_mov_b64 exec, -1")
        A.label(Lh3)
    stamp(6, "s27")
    A(f"s_add_u32 s{sH}, s{sH}, {2 * HREP}")
    A(f"s_add_u32 s{sRG}, s{sRG}, {NRR * RG_REP}")
    A(f"s_add_u32 s{sT}, s{sT}, {T_SZ}")
    A(f"s_add_u32 s{sL}, s{sL}, 1")
    A(f"s_cmp_lt_u32 s{sL}, 2")
    A("s_cbranch_scc1 L_FaLoop")
    A("s_endpgm")

def roleFb():
    A.label("L_roleFb")
    DW, HF, ACC, K, CODE, T = 16, 128, 184, 192, 216, 224
    RAW = 128
    vG, vLW, vLR, vW1, vHF, vPW, vPR, vE, vX2, vO = 2, 3, 4, 5, 6, 7, 8, 9, 10, 11
    sB, sRG, sT, sH, sL, sREP2, sES, sEC = 22, 23, 25, 26, 27, 29, 30, 31
    nonce_load(T + 8)
    if opt("prefc", 1) == 1:
        warm_weights(T + 16, C0, 29, PPART)
    srd(8, 50, 2211840)
    srd(12, 52, 2621440)
    A(f"s_sub_u32 s60, s2, {FB0 - 7}")
    A(f"s_and_b32 s61, s60, 7")
    A(f"s_lshr_b32 s60, s60, 3")
    fb_start("s61", f"s{sB}")
    A(f"s_add_u32 s{sB}, s{sB}, s60")
    A(f"s_cmp_eq_u32 s61, 7")
    A(f"s_cselect_b32 s60, 0, 1")
    A(f"s_sub_u32 s{sB}, s{sB}, s60")
    A("s_mov_b32 s58, 0x05040100")
    A("s_mov_b32 s59, 0x07060302")
    n, g = T, T + 1
    A(f"v_and_b32 {v(n)}, 15, v1")
    A(f"v_lshrrev_b32 {v(g)}, 4, v1")
    A(f"s_lshl_b32 s60, s{WV}, 5")
    A(f"v_lshl_add_u32 {v(vW1)}, {v(g)}, 3, s60")
    A(f"v_mul_u32_u24 {v(vW1)}, 1280, {v(vW1)}")
    A(f"s_lshl_b32 s61, s{sB}, 6")
    A(f"v_lshl_add_u32 {v(T+2)}, {v(n)}, 2, s61")
    A(f"v_add_u32 {v(vW1)}, {v(vW1)}, {v(T+2)}")
    A(f"v_mov_b32 v12, {v(n)}")
    A(f"v_mov_b32 v13, {v(g)}")
    n, g = 12, 13
    A("s_waitcnt vmcnt(0)")
    nonce_take(T + 8)
    A(f"s_and_b32 s{sREP2}, s2, {NREP - 1}")
    A(f"s_lshl_b32 s{sREP2}, s{sREP2}, {FSH + 4}")
    if opt("prefc", 1) == 2:
        warm_weights(T + 16, C0, 29, PPART)
    poll_flags(0, sREP2, T + 4, opt("fsleep", 8))
    if opt("coop", 4):
        warm_coop(T + 16)
    if opt("wide", 0):
        A(f"s_lshl_b32 s60, s{WV}, 5")
        A(f"v_lshrrev_b32 {v(T+20)}, 2, v1")
        A(f"v_add_u32 {v(T+20)}, s60, {v(T+20)}")
        A(f"v_mul_u32_u24 {v(T+20)}, 1280, {v(T+20)}")
        A(f"v_and_b32 {v(T+21)}, 3, v1")
        A(f"s_lshl_b32 s61, s{sB}, 6")
        A(f"v_lshl_add_u32 {v(T+21)}, {v(T+21)}, 4, s61")
        A(f"v_add_u32 {v(T+20)}, {v(T+20)}, {v(T+21)}")
        for k in range(14):
            for hh in range(2):
                A(f"v_add_u32 {v(T+21)}, {(128 * k + 16 * hh) * 1280}, {v(T+20)}")
                A(f"buffer_load_dwordx4 {v(T+24,4)}, {v(T+21)}, {SRD1}, 0 offen")
        if opt("wide", 0) == 2:
            A("s_waitcnt vmcnt(0)")
    load_weight_frags([(SRD1, lambda k: vW1, lambda k, q: (128 * k + q) * 1280, 14, DW, RAW, 13)])
    topk_setup(CODE, vG, vLW, vLR, 8192)
    A(f"v_and_b32 {v(vHF)}, 7, v1")
    A(f"v_lshlrev_b32 {v(vHF)}, 4, {v(vHF)}")
    A(f"v_lshl_add_u32 {v(vHF)}, {v(g)}, 7, {v(vHF)}")
    A(f"s_lshl_b32 s60, s{WV}, 9")
    A(f"v_add_u32 {v(vHF)}, s60, {v(vHF)}")
    A(f"s_mov_b32 s{sH}, {H_OFF}")
    A(f"s_lshl_b32 s60, s{WV}, 10")
    A(f"v_lshlrev_b32 {v(vPW)}, 9, {v(g)}")
    A(f"v_lshl_add_u32 {v(vPW)}, {v(n)}, 3, {v(vPW)}")
    A(f"v_add_u32 {v(vPW)}, s60, {v(vPW)}")
    A(f"v_lshlrev_b32 {v(vPR)}, 2, v0")
    A(f"s_cmp_ge_u32 s{sB}, 10")
    A(f"s_cselect_b32 s60, 1, 0")
    A(f"s_mul_i32 s61, s60, 10")
    A(f"s_sub_u32 s61, s{sB}, s61")
    A(f"s_lshl_b32 s62, s60, 9")
    A(f"s_lshl_b32 s63, s61, 1")
    A(f"s_add_u32 s62, s62, s63")
    A(f"s_lshl_b32 s64, s60, 7")
    A(f"s_add_u32 s64, s64, s63")
    A(f"s_add_u32 s64, s64, {1024 - 16}")
    A(f"s_cmp_lt_u32 s61, 8")
    A(f"s_cselect_b32 s{sEC}, s62, s64")
    A(f"s_cselect_b32 s{sES}, 16, 4")
    A(f"v_and_b32 {v(T+2)}, 31, v1")
    A(f"v_mul_u32_u24 {v(vE)}, s{sES}, {v(T+2)}")
    A(f"s_and_b32 s32, s{sEC}, 2")
    A(f"s_lshl_b32 s32, s32, 3")
    A(f"s_sub_u32 s32, 16, s32")
    A(f"s_and_b32 s{sEC}, s{sEC}, -4")
    A(f"v_add_u32 {v(vE)}, s{sEC}, {v(vE)}")

    A(f"s_lshl_b32 s60, s{sB}, 2")
    A(f"s_add_u32 s60, s60, s{WV}")
    A(f"s_lshl_b32 s60, s60, 8")
    A(f"v_lshl_add_u32 {v(vX2)}, {v(T+2)}, 3, s60")
    A(f"v_lshrrev_b32 {v(T+3)}, 5, v1")
    A(f"v_lshl_add_u32 {v(vX2)}, {v(T+3)}, 2, {v(vX2)}")
    A(f"s_lshl_b32 s60, s{sB}, 6")
    A(f"v_lshl_add_u32 {v(vO)}, {v(T+2)}, 1, s60")
    A(f"s_and_b32 s{sRG}, s2, {NRR - 1}")
    A(f"s_lshl_b32 s{sRG}, s{sRG}, {RSH + 8}")
    A(f"s_add_u32 s{sRG}, s{sRG}, {RG_OFF}")
    A(f"s_mov_b32 s{sT}, {T_OFF}")
    A(f"s_mov_b32 s28, {T_REC}")
    A(f"s_mov_b32 s{sL}, 0")
    touch(T + 2, T_OFF, 2 * T_SZ)
    stamp(0, dbg=(10, FB0))
    poll_flags(1, sREP2, T, 8)
    prio(3)
    A.label("L_FbLoop")
    c = topk(K, CODE, vG, vLW, vLR, sRG, T, None)
    stamp(4, "s27")
    for j in range(8):
        A(f"v_readfirstlane_b32 s{80+j}, {v(c[j])}")
    A("s_mov_b32 s70, s80")
    A("s_mov_b32 s71, s81")
    for w in range(1, 4):
        A(f"s_cmp_eq_u32 s{WV}, {w}")
        A(f"s_cselect_b32 s70, s{80+2*w}, s70")
        A(f"s_cselect_b32 s71, s{81+2*w}, s71")
    KEY, ROW, XV, XNV, SG, ST = T, T + 1, T + 2, T + 3, T + 4, T + 8
    Ls = A.newlabel("Lfb")
    A(f"s_or_b32 s60, s{sB}, s{WV}")
    A(f"s_cmp_lg_u32 s60, 0")
    A(f"s_cbranch_scc1 {Ls}")
    A(f"v_mov_b32 {v(T+6)}, s80")
    for j in range(1, 8):
        A(f"v_writelane_b32 {v(T+6)}, s{80+j}, {j}")
    A(f"v_and_b32 {v(T+6)}, 0x7ff, {v(T+6)}")
    A(f"v_sub_u32 {v(T+6)}, 2047, {v(T+6)}")
    A(f"v_lshlrev_b32 {v(T+7)}, 2, v1")
    A(f"s_lshl_b32 s60, s{sL}, 8")
    A(f"s_add_u32 s60, s60, {X2_OFF + SEL_OFF}")
    A("s_mov_b64 exec, 0xff")
    A(f"buffer_store_dword {v(T+6)}, {v(T+7)}, {WS}, s60 offen sc1")
    A("s_mov_b64 exec, -1")
    A.label(Ls)
    A(f"v_mov_b32 {v(KEY)}, s71")
    A(f"v_mov_b32 {v(ROW)}, s70")
    A(f"v_cmp_gt_u32 vcc, 32, v1")
    A(f"v_cndmask_b32 {v(KEY)}, {v(KEY)}, {v(ROW)}, vcc")
    A(f"v_and_b32 {v(ROW)}, 0x7ff, {v(KEY)}")
    A(f"v_sub_u32 {v(ROW)}, 2047, {v(ROW)}")
    A(f"v_mad_u32_u24 {v(T+5)}, {v(ROW)}, s28, {v(vE)}")
    prio(0)
    loop, done = A.newlabel("Lst2"), A.newlabel("Lst2d")
    A(f"v_mul_u32_u24 {v(T+6)}, s28, {v(ROW)}")
    A(f"s_add_u32 s61, s{NONCE}, 6")
    A(f"s_add_u32 s61, s61, s{sL}")
    A(f"s_mov_b32 s62, {SPIN}")
    A.label(loop)
    A(f"buffer_load_dwordx4 {v(ST,4)}, {v(T+6)}, {WS}, s{sT} offen offset:2560 sc1")
    A("s_waitcnt vmcnt(0)")
    A(f"v_cmp_ne_u32 vcc, s61, {v(ST+2)}")
    A(f"s_cbranch_vccz {done}")
    spin_tail(loop, 62, 2)
    A.label(done)
    A(f"buffer_load_dword {v(XNV)}, {v(T+5)}, {WS}, s{sT} offen sc1")
    A(f"buffer_load_dword {v(XV)}, {v(T+5)}, {WS}, s{sT} offen offset:1280 sc1")
    A(f"v_ashrrev_i32 {v(SG)}, 31, {v(KEY)}")
    A(f"v_not_b32 {v(SG)}, {v(SG)}")
    A(f"v_or_b32 {v(SG)}, 0x80000000, {v(SG)}")
    A(f"v_xor_b32 {v(SG)}, {v(SG)}, {v(KEY)}")
    A(f"v_and_b32 {v(SG)}, 0xffff0000, {v(SG)}")
    A(f"v_mul_f32 {v(SG)}, {f32(-1.4426950408889634)}, {v(SG)}")
    A(f"v_exp_f32 {v(SG)}, {v(SG)}")
    A(f"v_add_f32 {v(SG)}, 1.0, {v(SG)}")
    A(f"v_rcp_f32 {v(SG)}, {v(SG)}")
    A(f"v_cvt_pk_bf16_f32 {v(SG)}, {v(SG)}, {v(SG)}")
    A(f"v_and_b32 {v(SG)}, 0xffff0000, {v(SG)}")
    stamp(2, "s27")
    def rb(r):
        A(f"v_cvt_pk_bf16_f32 {v(r)}, {v(r)}, {v(r)}")
        A(f"v_and_b32 {v(r)}, 0xffff0000, {v(r)}")
    Yv = T + 12
    XO = T + 16
    if opt("hgate", 1):
        loop, done = A.newlabel("Lh"), A.newlabel("Lhd")
        A(f"s_mov_b32 s62, {SPIN}")
        set_exec(0x00FF00FF00FF00FF)
        A.label(loop)
        A(f"buffer_load_dwordx4 {v(HF,4)}, {v(vHF)}, {WS}, s{sH} offen sc1")
        A("s_waitcnt vmcnt(0)")
        any_sentinel(range(HF, HF + 4), T + 6, done)
        spin_tail(loop, 62, opt("hgsleep", 1))
        A.label(done)
    loop, done = A.newlabel("Lh"), A.newlabel("Lhd")
    A(f"s_cmp_lt_u32 s{WV}, 2")
    A(f"s_cselect_b32 s63, 2048, 0")
    A(f"s_add_u32 s63, s63, {12 * 2048}")
    A(f"s_add_u32 s63, s63, s{sH}")
    A(f"s_mov_b32 s62, {SPIN}")
    set_exec(0x00FF00FF00FF00FF)
    A.label(loop)
    for k in range(14):
        if k == 13:
            A(f"buffer_load_dwordx4 {v(HF+4*k,4)}, {v(vHF)}, {WS}, s63 offen sc1")
        else:
            if k % 2 == 0:
                A(f"s_add_u32 s60, s{sH}, {2048 * k}")
            A(f"buffer_load_dwordx4 {v(HF+4*k,4)}, {v(vHF)}, {WS}, s60 offen offset:{2048*(k%2)} sc1")
    CK = T + 6
    HP = opt("hprog", 1)
    def mf(k):
        for par in range(2):
            cc = "0" if k == 0 else v(ACC + 4 * par, 4)
            A(f"v_mfma_f32_16x16x32_bf16 {v(ACC+4*par,4)}, {v(HF+4*k,4)}, {v(DW+8*k+4*par,4)}, {cc}")
    if HP:
        A("s_mov_b64 exec, -1")
        for k in range(14):
            A(f"s_waitcnt vmcnt({13-k})")
            mf(k)
            if k == 0:
                A(f"v_max3_u32 {v(CK)}, {v(HF)}, {v(HF+1)}, {v(HF+2)}")
                A(f"v_max_u32 {v(CK)}, {v(CK)}, {v(HF+3)}")
            else:
                A(f"v_max3_u32 {v(CK)}, {v(CK)}, {v(HF+4*k)}, {v(HF+4*k+1)}")
                A(f"v_max3_u32 {v(CK)}, {v(CK)}, {v(HF+4*k+2)}, {v(HF+4*k+3)}")
        set_exec(0x00FF00FF00FF00FF)
        A(f"v_cmp_eq_u32 vcc, -1, {v(CK)}")
        A(f"s_cbranch_vccz {done}")
    else:
        A("s_waitcnt vmcnt(0)")
        any_sentinel(list(range(HF, HF + 56)), CK, done)
    spin_tail(loop, 62, opt("hsleep", 1))
    A.label(done)
    A("s_mov_b64 exec, -1")
    prio(3)
    stamp(5, "s27")
    Lh2 = A.newlabel("Lfb")
    A(f"s_or_b32 s60, s{sB}, s{WV}")
    A(f"s_or_b32 s60, s60, s{sL}")
    A(f"s_cmp_lg_u32 s60, {0 if opt('hintsrc', 0) == 0 else -1}")
    A(f"s_cbranch_scc1 {Lh2}")
    A(f"v_mov_b32 {v(CK)}, 0")
    A(f"s_mov_b32 s60, {X2_OFF + SEL_OFF + 128}")
    A("s_mov_b64 exec, 1")
    A(f"buffer_store_dword {v(CK)}, {v(CK)}, {WS}, s60 offen sc1")
    A.label(Lh2)
    A("s_mov_b64 exec, -1")
    if not HP:
        for k in range(14):
            mf(k)
    for r in (XNV, XV):
        A(f"v_lshlrev_b32 {v(r)}, s32, {v(r)}")
        A(f"v_and_b32 {v(r)}, 0xffff0000, {v(r)}")
    A(f"v_add_f32 {v(XO)}, {v(XV)}, {v(XNV)}")
    rb(XO)
    if EXACT:
        A(f"v_sub_f32 {v(XO)}, {v(XO)}, {v(ST)}")
        rb(XO)
        A(f"v_mul_f32 {v(XO)}, {v(XO)}, {v(ST+1)}")
        rb(XO)
    else:
        A(f"v_mul_f32 {v(ST)}, {v(ST)}, {v(ST+1)}")
        A(f"v_fma_f32 {v(XO)}, {v(XO)}, {v(ST+1)}, -{v(ST)}")
    set_exec(0xffffffff)
    for r in range(4):
        A(f"ds_write2_b32 {v(vPW)}, {v(ACC+r)}, {v(ACC+4+r)} offset0:{32*r} offset1:{32*r+1}")
    A("s_mov_b64 exec, -1")
    A("s_waitcnt lgkmcnt(0)")
    A("s_barrier")
    A(f"ds_read2st64_b32 {v(Yv,2)}, {v(vPR)} offset0:0 offset1:4")
    A(f"ds_read2st64_b32 {v(Yv+2,2)}, {v(vPR)} offset0:8 offset1:12")
    A("s_waitcnt lgkmcnt(0)")
    A(f"v_pk_add_f32 {v(Yv,2)}, {v(Yv,2)}, {v(Yv+2,2)}")
    A(f"v_add_f32 {v(Yv)}, {v(Yv)}, {v(Yv+1)}")
    rb(Yv)
    A(f"v_mul_f32 {v(Yv)}, {v(Yv)}, {v(SG)}")
    rb(Yv)
    A(f"v_add_f32 {v(Yv)}, {v(Yv)}, {v(XNV)}")
    rb(Yv)
    A(f"v_add_f32 {v(Yv)}, {v(Yv)}, {v(XV)}")
    L2 = A.newlabel("Lfb")
    A(f"s_cmp_lg_u32 s{sL}, 0")
    A(f"s_cbranch_scc1 {L2}")
    A(f"v_permlane32_swap_b32 {v(Yv)}, {v(XO)}")
    A(f"v_cvt_pk_bf16_f32 {v(Yv+1)}, {v(Yv)}, {v(XO)}")
    A(f"v_cvt_pk_f16_f32 {v(Yv)}, {v(Yv)}, {v(XO)}")
    A(f"v_cmp_gt_u32 vcc, 32, v1")
    A(f"v_cndmask_b32 {v(Yv)}, {v(Yv)}, {v(Yv+1)}, vcc")
    A(f"v_min_u32 {v(Yv)}, -2, {v(Yv)}")
    for r in range(NRX):
        A(f"s_mov_b32 s60, {X2_OFF + r * X2REP}")
        A(f"buffer_store_dword {v(Yv)}, {v(vX2)}, {WS}, s60 offen sc1")
    stamp(6, "s27", dbg=(12, FB0))
    A(f"s_add_u32 s{sH}, s{sH}, {2 * HREP}")
    A(f"s_add_u32 s{sRG}, s{sRG}, {NRR * RG_REP}")
    A(f"s_add_u32 s{sT}, s{sT}, {T_SZ}")
    A(f"s_mov_b32 s{sL}, 1")
    A("s_branch L_FbLoop")
    A.label(L2)
    A(f"v_cvt_pk_bf16_f32 {v(Yv)}, {v(Yv)}, {v(Yv)}")
    A(f"s_movk_i32 s60, 1280")
    A(f"v_mad_u32_u24 {v(Yv+1)}, {v(ROW)}, s60, {v(vO)}")
    A(f"buffer_store_short {v(Yv)}, {v(Yv+1)}, {SRD2}, 0 offen sc1")
    stamp(7, "s27", dbg=(15, FB0))
    A(f"s_or_b32 s60, s{sB}, s{WV}")
    A(f"s_cmp_lg_u32 s60, 0")
    A("s_cbranch_scc1 L_end")
    A(f"v_mov_b32 {v(T)}, s{NONCE}")
    A(f"v_mov_b32 {v(T+1)}, 0")
    A("s_mov_b64 exec, 1")
    A(f"buffer_store_dword {v(T)}, {v(T+1)}, {WS}, 0 offen sc1")
    A.label("L_end")
    A("s_endpgm")

hdr = open("cdna_kernels/%s.s.ref" % NAME).read().split("\n")
head = [l for l in hdr if l.startswith(";") and "@launch" not in l and "Override" not in l and "grid=ceil" not in l]
out = "\n".join(head) + "\n"
out += f"; @launch grid=({NWG},1,1) block=(256,1,1) lds={LDS_BYTES}\n"
out += '.amdgcn_target "amdgcn-amd-amdhsa--gfx950"\n.text\n'
out += f".globl {NAME}_kernel\n.p2align 8\n.type {NAME}_kernel,@function\n{NAME}_kernel:\n"
prologue(); roleR(); roleC(); roleFa(); roleFb()
out += A.text()
out += "L_code_end:\n"
out = out.replace(".text\n", ".text\n.set CODE_LINES, 256\n", 1)
out += f""".section .rodata,"a"
.p2align 6
.amdhsa_kernel {NAME}_kernel
  .amdhsa_next_free_vgpr 256
  .amdhsa_next_free_sgpr 102
  .amdhsa_accum_offset 256
  .amdhsa_group_segment_fixed_size 0
  .amdhsa_kernarg_size 104
  .amdhsa_user_sgpr_count 2
  .amdhsa_user_sgpr_kernarg_segment_ptr 1
  .amdhsa_system_sgpr_workgroup_id_x 1
  .amdhsa_float_denorm_mode_32 3
.end_amdhsa_kernel
"""
import subprocess, tempfile, os, re
with tempfile.TemporaryDirectory() as td:
    open(td + "/a.s", "w").write(out)
    subprocess.check_call(["clang", "-x", "assembler", "-target", "amdgcn-amd-amdhsa", "-mcpu=gfx950", "-c", td + "/a.s", "-o", td + "/a.o"])
    hd = subprocess.check_output(["llvm-objdump", "-h", td + "/a.o"]).decode()
    size = int(re.search(r"\.text\s+([0-9a-f]+)", hd).group(1), 16)
out = out.replace(".set CODE_LINES, 256", ".set CODE_LINES, %d" % min(256, size // 128))
print("code bytes:", size, file=sys.stderr)
dst = [a for a in sys.argv[1:] if not a.startswith("--")]
open(dst[0] if dst else "cdna_kernels/%s.s" % NAME, "w").write(out)
print("instructions:", A.ninstr, file=sys.stderr)
```

```python
import sys, struct
from asmb import Asm

NAME = "interleave_layers__spectral_fnet__moe_arch_mod__prompt"
def opt(name, default):
    for a in sys.argv:
        if a.startswith("--%s=" % name):
            return int(a.split("=")[1])
    return default
STAMPS = "--stamps" in sys.argv
DSTAMPS = "--dstamps" in sys.argv
MSTAMPS = "--mstamps" in sys.argv
EXACT = opt("exact", 0)
EXACT1 = opt("exact1", 0)
GATE = opt("gate", 1)
NR, NC, NFA, NFB = 256, 161, 54, 20
C0, FA0, FB0, NWG = 256, 417, 471, 491
FSH = opt("fsh", 6); FREP = 16 << FSH
FL_OFF = 0x1000; NREP = opt("nrep", 16)
RESET_OFF = 0x70000
H_OFF = 0x70000; HREP = 0x7000
X2_OFF = 0x90000; X2REP = 0x5200; NRX = opt("nrx", 1); SEL_OFF = 0x5000
RSH = opt("rsh", 6)
RG_OFF = 0xA0000; NRR = opt("nrr", 8); RG_REP = 256 << RSH
CNT_OFF = 0xF8000
WROW = 10368
W_OFF = 0x100000; W_SZ = 0x290000
Y_OFF = 0x640000; Y_SZ = 0x160000; YM_OFF = 322 * 4096
T_OFF = 0x900000; T_REC = 2688; T_SZ = 2048 * T_REC
ST_OFF = 0x1400000
WS_BYTES = 0x1500000
NONCE_C = 0x9E3779B9
SPIN = 40000
LDS_BYTES = 53248
assert FL_OFF + 4 * NREP * FREP <= 0x70000 and RG_OFF + 2 * NRR * RG_REP <= 0xF0000
PSLEEP = opt("psleep", 1)
EARLY_R = opt("earlyr", 1)
EARLY_C = opt("earlyc", 2)
PRIO = opt("prio", 1)
DRAIN2 = opt("drain2", 0)
AWR = opt("awr", 3)
PPART = opt("ppart", 3)
DRAIN0 = opt("drain0", 0)
def prio(n):
    if PRIO:
        A(f"s_setprio {n}")

def f32(x):
    return "0x%08x" % struct.unpack("<I", struct.pack("<f", x))[0]
def v(i, n=1):
    return "v%d" % i if n == 1 else "v[%d:%d]" % (i, i + n - 1)
def s(i, n=1):
    return "s%d" % i if n == 1 else "s[%d:%d]" % (i, i + n - 1)

A = Asm()
WS = "s[4:7]"; SRD1 = "s[8:11]"; SRD2 = "s[12:15]"; SRD3 = "s[16:19]"
NONCE = 20; WV = 21

def srd(base, ptr, nbytes):
    A(f"s_mov_b32 s{base}, s{ptr}")
    A(f"s_and_b32 s{base+1}, s{ptr+1}, 0xffff")
    A(f"s_mov_b32 s{base+2}, {nbytes}")
    A(f"s_mov_b32 s{base+3}, 0x00020000")

def set_exec(m):
    A(f"s_mov_b32 exec_lo, 0x{m & 0xffffffff:x}")
    A(f"s_mov_b32 exec_hi, 0x{m >> 32:x}")

def stamp(idx, lay=None, dbg=None):
    if MSTAMPS and dbg is not None:
        L = A.newlabel("Lst")
        A(f"s_mov_b32 s97, s{WV}")
        if len(dbg) > 2:
            A(f"s_sub_u32 s96, {lay}, {dbg[2]}")
            A(f"s_or_b32 s97, s97, s96")
        A(f"s_cmp_lg_u32 s97, 0")
        A(f"s_cbranch_scc1 {L}")
        A("s_memrealtime s[98:99]")
        A("s_waitcnt lgkmcnt(0)")
        A("s_and_b32 s98, s98, 0x7fffffff")
        A("v_mov_b32 v254, s98")
        A("v_mov_b32 v253, 0")
        A("s_mov_b64 exec, 1")
        if dbg[0] == 0:
            A(f"buffer_atomic_umax v254, v253, s[92:95], 0 offen offset:4")
            A("v_not_b32 v254, v254")
        if dbg[0] != 1:
            A(f"buffer_atomic_umax v254, v253, s[92:95], 0 offen offset:{dbg[0] * 4}")
        A("s_mov_b64 exec, -1")
        A.label(L)
    if DSTAMPS and dbg is not None:
        L = A.newlabel("Lst")
        A(f"s_lshl_b32 s97, s{WV}, 16")
        A(f"s_or_b32 s97, s97, s2")
        if len(dbg) > 2:
            A(f"s_lshl_b32 s96, {lay}, 20")
            A(f"s_or_b32 s97, s97, s96")
        A(f"s_cmp_lg_u32 s97, {dbg[1] + ((dbg[2] << 20) if len(dbg) > 2 else 0)}")
        A(f"s_cbranch_scc1 {L}")
        A("s_memrealtime s[98:99]")
        A("s_waitcnt lgkmcnt(0)")
        A("v_mov_b32 v254, s98")
        A("v_mov_b32 v253, 0")
        A("s_mov_b64 exec, 1")
        A(f"buffer_store_dword v254, v253, s[92:95], 0 offen offset:{dbg[0] * 4}")
        A("s_mov_b64 exec, -1")
        A.label(L)
    if not STAMPS:
        return
    L = A.newlabel("Lst")
    A(f"s_cmp_lg_u32 s{WV}, 0")
    A(f"s_cbranch_scc1 {L}")
    A("s_memrealtime s[98:99]")
    A("s_memtime s[100:101]")
    A("s_waitcnt lgkmcnt(0)")
    A("v_mov_b32 v254, s98")
    A("v_mov_b32 v255, s100")
    A("v_mov_b32 v253, 0")
    A("s_lshl_b32 s97, s2, 9")
    A(f"s_add_u32 s97, s97, {ST_OFF + idx * 8}")
    if lay is not None:
        A(f"s_lshl_b32 s96, {lay}, 6")
        A("s_add_u32 s97, s97, s96")
    A("s_mov_b64 exec, 1")
    A(f"buffer_store_dwordx2 v[254:255], v253, {WS}, s97 offen")
    A("s_mov_b64 exec, -1")
    A.label(L)

def spin_tail(loop, cnt, sleep=1):
    if sleep:
        A(f"s_sleep {sleep}")
    A(f"s_sub_u32 s{cnt}, s{cnt}, 1")
    A(f"s_cmp_lg_u32 s{cnt}, 0")
    A(f"s_cbranch_scc1 {loop}")

def any_sentinel(regs, t, done):
    regs = list(regs)
    A(f"v_max3_u32 {v(t)}, {v(regs[0])}, {v(regs[1])}, {v(regs[2])}")
    k = 3
    while k + 1 < len(regs):
        A(f"v_max3_u32 {v(t)}, {v(t)}, {v(regs[k])}, {v(regs[k+1])}")
        k += 2
    if k < len(regs):
        A(f"v_max_u32 {v(t)}, {v(t)}, {v(regs[k])}")
    A(f"v_cmp_eq_u32 vcc, -1, {v(t)}")
    A(f"s_cbranch_vccz {done}")

def poll_flags(k, srep, t, sleep=None):
    loop, done = A.newlabel("Lpoll"), A.newlabel("Lpolld")
    A(f"s_cmp_lg_u32 s{WV}, 0")
    A(f"s_cbranch_scc1 {done}")
    if isinstance(k, int):
        A(f"s_add_u32 s60, s{srep}, {FL_OFF + k * NREP * FREP}")
    else:
        A(f"s_mul_i32 s60, {k}, {NREP * FREP}")
        A(f"s_add_u32 s60, s60, s{srep}")
        A(f"s_add_u32 s60, s60, {FL_OFF}")
    A(f"s_add_u32 s61, s{NONCE}, {k}")
    A(f"v_and_b32 {v(t+1)}, 15, v1")
    A(f"v_lshlrev_b32 {v(t+1)}, {FSH}, {v(t+1)}")
    A(f"s_mov_b32 s62, {SPIN}")
    A.label(loop)
    A(f"buffer_load_dword {v(t)}, {v(t+1)}, {WS}, s60 offen sc1")
    A("s_waitcnt vmcnt(0)")
    A(f"v_cmp_ne_u32 vcc, s61, {v(t)}")
    A(f"s_cbranch_vccz {done}")
    spin_tail(loop, 62, PSLEEP if sleep is None else sleep)
    A.label(done)
    A("s_barrier")

def cnt_init(sshard, ks, t):
    for k in ks:
        A(f"s_add_u32 s60, s{sshard}, {16 * k}")
        A(f"s_lshl_b32 s60, s60, 7")
        A(f"s_add_u32 s60, s60, {CNT_OFF}")
        A(f"s_add_u32 s61, s{NONCE}, {k}")
        A(f"v_mov_b32 {v(t)}, 0")
        A(f"v_mov_b32 {v(t+1)}, s61")
        A(f"v_mov_b32 {v(t+2)}, 0")
        A("s_mov_b64 exec, 1")
        A(f"buffer_store_dwordx2 {v(t,2)}, {v(t+2)}, {WS}, s60 offen sc1")
        A("s_mov_b64 exec, -1")

def arrive_issue(k, sshard, t, aw=0):
    L = A.newlabel("Larr")
    A(f"s_cmp_lg_u32 s{WV}, {aw}")
    A(f"s_cbranch_scc1 {L}")
    if isinstance(k, int):
        A(f"s_add_u32 s66, s{sshard}, {16 * k}")
    else:
        A(f"s_lshl_b32 s66, {k}, 4")
        A(f"s_add_u32 s66, s66, s{sshard}")
    A(f"s_lshl_b32 s66, s66, 7")
    A(f"s_add_u32 s66, s66, {CNT_OFF}")
    A(f"v_mov_b32 {v(t)}, 1")
    A(f"v_mov_b32 {v(t+1)}, 0")
    A(f"v_mov_b32 {v(t+2)}, 0")
    A("s_mov_b64 exec, 1")
    A(f"buffer_atomic_add_x2 {v(t,2)}, {v(t+2)}, {WS}, s66 offen sc0")
    A("s_mov_b64 exec, -1")
    A.label(L)

def arrive_finish(k, sshard, slast, t, younger, aw=0):
    L, again, chk = A.newlabel("Lsig"), A.newlabel("Lsiga"), A.newlabel("Lsigc")
    A(f"s_cmp_lg_u32 s{WV}, {aw}")
    A(f"s_cbranch_scc1 {L}")
    if isinstance(k, int):
        A(f"s_lshl_b32 s67, s{sshard}, {FSH}")
        A(f"s_add_u32 s67, s67, {FL_OFF + k * NREP * FREP}")
    else:
        A(f"s_mul_i32 s67, {k}, {NREP * FREP}")
        A(f"s_lshl_b32 s68, s{sshard}, {FSH}")
        A(f"s_add_u32 s67, s67, s68")
        A(f"s_add_u32 s67, s67, {FL_OFF}")
    A(f"s_add_u32 s68, s{NONCE}, {k}")
    A(f"v_lshlrev_b32 {v(t+3)}, {FSH + 4}, v1")
    A(f"v_mov_b32 {v(t+4)}, s68")
    A(f"s_mov_b32 s69, {SPIN}")
    if isinstance(younger, tuple):
        A(f"s_waitcnt vmcnt({younger[2]})")
        A(f"s_cmp_eq_u32 {younger[0]}, {younger[1]}")
        A(f"s_cbranch_scc1 {chk}")
        A("s_waitcnt vmcnt(0)")
    else:
        A(f"s_waitcnt vmcnt({younger})")
    A(f"s_branch {chk}")
    A.label(again)
    A(f"s_sub_u32 s69, s69, 1")
    A(f"s_cmp_eq_u32 s69, 0")
    A(f"s_cbranch_scc1 {L}")
    A(f"v_mov_b32 {v(t)}, 1")
    A(f"v_mov_b32 {v(t+1)}, 0")
    A(f"v_mov_b32 {v(t+2)}, 0")
    A("s_mov_b64 exec, 1")
    A(f"buffer_atomic_add_x2 {v(t,2)}, {v(t+2)}, {WS}, s66 offen sc0")
    A("s_mov_b64 exec, -1")
    A("s_waitcnt vmcnt(0)")
    A.label(chk)
    A(f"v_readfirstlane_b32 s65, {v(t+1)}")
    A(f"v_readfirstlane_b32 s64, {v(t)}")
    A(f"s_cmp_lg_u32 s65, s68")
    A(f"s_cbranch_scc1 {again}")
    A(f"s_cmp_lg_u32 s64, {slast}")
    A(f"s_cbranch_scc1 {L}")
    set_exec((1 << NREP) - 1)
    A(f"buffer_store_dword {v(t+4)}, {v(t+3)}, {WS}, s67 offen sc1")
    A("s_mov_b64 exec, -1")
    A.label(L)

def rnd_pair(a, b, t):
    A(f"v_cvt_pk_bf16_f32 {v(t)}, {v(a)}, {v(b)}")
    A(f"v_lshlrev_b32 {v(a)}, 16, {v(t)}")
    A(f"v_and_b32 {v(b)}, 0xffff0000, {v(t)}")

def sincos(arg, c, sn):
    A(f"v_cos_f32 {v(c)}, {v(arg)}")
    A(f"v_sin_f32 {v(sn)}, {v(arg)}")

def prefetch_weights(t):
    if not opt("pref", 0):
        return
    srd(84, 46, 2211840)
    A(f"v_lshlrev_b32 {v(t)}, 4, v0")
    A(f"s_sub_u32 s60, s2, {C0}")
    for r in range(7):
        Ls, Ld = A.newlabel("Lpf"), A.newlabel("Lpf")
        A(f"s_add_u32 s61, s60, {235 * r}")
        A(f"s_cmp_ge_u32 s61, 1620")
        A(f"s_cbranch_scc1 {Ld}")
        A(f"s_mov_b32 s84, s46")
        A(f"s_and_b32 s85, s47, 0xffff")
        for (lim, p) in ((540, 48), (540, 50)):
            A(f"s_cmp_lt_u32 s61, {lim}")
            A(f"s_cbranch_scc1 {Ls}")
            A(f"s_sub_u32 s61, s61, {lim}")
            A(f"s_mov_b32 s84, s{p}")
            A(f"s_and_b32 s85, s{p+1}, 0xffff")
        A.label(Ls)
        A(f"s_lshl_b32 s61, s61, 12")
        A(f"buffer_load_dwordx4 {v(t+4,4)}, {v(t)}, s[84:87], s61 offen")
        A.label(Ld)

def fb_start(x, d):
    A(f"s_mul_i32 {d}, {x}, 3")
    A(f"s_lshl_b32 s62, {x}, 1")
    A(f"s_add_u32 s62, s62, 3")
    A(f"s_min_u32 {d}, {d}, s62")

def nloads(part):
    return bin(part).count("1")

def warm_weights(t, first, nshare, part):
    ra, rb = -(-640 // nshare), -(-1728 // nshare)
    A("s_and_b32 s61, s2, 7")
    A(f"s_sub_u32 s60, s2, {first}")
    A("s_lshr_b32 s60, s60, 3")
    srd(84, 46, 2211840)
    if part & 5:
        A(f"v_lshrrev_b32 {v(t)}, 2, v0")
        A(f"v_and_b32 {v(t+1)}, 3, v0")
        A(f"v_min_u32 {v(t)}, {ra - 1}, {v(t)}")
        A(f"s_mul_i32 s64, s60, {ra}")
        A(f"v_add_u32 {v(t)}, s64, {v(t)}")
        A("s_mul_i32 s63, s61, 7")
        A("s_sub_u32 s63, s63, 1")
        A("s_max_i32 s63, s63, 0")
        A("s_lshl_b32 s63, s63, 6")
        A("s_and_b32 s63, s63, -128")
        A(f"v_lshl_add_u32 {v(t+1)}, {v(t+1)}, 7, s63")
        A(f"s_movk_i32 s64, 3456")
        A(f"v_mad_u32_u24 {v(t+1)}, {v(t)}, s64, {v(t+1)}")
        if part & 1:
            A(f"buffer_load_dword {v(t+3)}, {v(t+1)}, s[84:87], 0 offen")
        if part & 4:
            A("s_mov_b32 s84, s48")
            A("s_and_b32 s85, s49, 0xffff")
            A(f"buffer_load_dword {v(t+3)}, {v(t+1)}, s[84:87], 0 offen")
    if part & 2:
        A(f"v_lshrrev_b32 {v(t)}, 1, v0")
        A(f"v_and_b32 {v(t+1)}, 1, v0")
        A(f"v_min_u32 {v(t)}, {rb - 1}, {v(t)}")
        A(f"s_mul_i32 s64, s60, {rb}")
        A(f"v_add_u32 {v(t)}, s64, {v(t)}")
        fb_start("s61", "s63")
        A("s_lshl_b32 s63, s63, 6")
        A("s_and_b32 s63, s63, -128")
        A(f"v_lshl_add_u32 {v(t+1)}, {v(t+1)}, 7, s63")
        A(f"s_movk_i32 s64, 1280")
        A(f"v_mad_u32_u24 {v(t+1)}, {v(t)}, s64, {v(t+1)}")
        A("s_mov_b32 s84, s50")
        A("s_and_b32 s85, s51, 0xffff")
        A(f"buffer_load_dword {v(t+3)}, {v(t+1)}, s[84:87], 0 offen")

def warm_coop(t):
    A("s_and_b32 s61, s2, 7")
    A(f"s_sub_u32 s60, s2, {FA0 - 1}")
    A("s_lshr_b32 s60, s60, 3")
    A("s_cmp_eq_u32 s61, 0")
    A("s_cselect_b32 s62, 1, 0")
    A("s_sub_u32 s60, s60, s62")
    A("s_min_u32 s60, s60, 8")
    A("s_mul_i32 s63, s61, 7")
    A("s_sub_u32 s63, s63, 1")
    A("s_max_i32 s63, s63, 0")
    A("s_lshl_b32 s63, s63, 6")
    A("s_and_b32 s63, s63, -128")
    A(f"v_and_b32 {v(t+1)}, 3, v0")
    A(f"v_lshl_add_u32 {v(t+1)}, {v(t+1)}, 7, s63")
    A(f"s_mul_i32 s64, s60, 72")
    A(f"s_movk_i32 s65, 3456")
    srd(84, 46, 2211840)
    srd(88, 48, 2211840)
    for p in range(2 if opt("coop", 4) & 5 else 0):
        A(f"v_lshrrev_b32 {v(t)}, 2, v0")
        A(f"v_add_u32 {v(t)}, {64 * p}, {v(t)}")
        A(f"v_min_u32 {v(t)}, 71, {v(t)}")
        A(f"v_add_u32 {v(t)}, s64, {v(t)}")
        A(f"v_mad_u32_u24 {v(t)}, {v(t)}, s65, {v(t+1)}")
        if p == 1:
            set_exec(0xffffffff)
        if opt("coop", 4) & 1:
            A(f"buffer_load_dword {v(t+3)}, {v(t)}, s[84:87], 0 offen")
        if opt("coop", 4) & 4:
            A(f"buffer_load_dword {v(t+3)}, {v(t)}, s[88:91], 0 offen")
    A("s_mov_b64 exec, -1")
    fb_start("s61", "s63")
    A("s_lshl_b32 s63, s63, 6")
    A("s_and_b32 s63, s63, -128")
    A(f"v_and_b32 {v(t+1)}, 1, v0")
    A(f"v_lshl_add_u32 {v(t+1)}, {v(t+1)}, 7, s63")
    A(f"s_mul_i32 s64, s60, 192")
    A(f"s_movk_i32 s65, 1280")
    A("s_mov_b32 s84, s50")
    A("s_and_b32 s85, s51, 0xffff")
    for p in range(2 if opt("coop", 4) & 2 else 0):
        A(f"v_lshrrev_b32 {v(t)}, 1, v0")
        A(f"v_add_u32 {v(t)}, {128 * p}, {v(t)}")
        A(f"v_min_u32 {v(t)}, 191, {v(t)}")
        A(f"v_add_u32 {v(t)}, s64, {v(t)}")
        A(f"v_mad_u32_u24 {v(t)}, {v(t)}, s65, {v(t+1)}")
        A(f"buffer_load_dword {v(t+3)}, {v(t)}, s[84:87], 0 offen")
    A("s_waitcnt vmcnt(0)")

def touch(t, base, nbytes):
    if not opt("touch", 0):
        return
    n = (nbytes + 65535) >> 16
    assert n <= 256
    A(f"v_min_u32 {v(t)}, {n - 1}, v0")
    A(f"v_lshlrev_b32 {v(t)}, 16, {v(t)}")
    A(f"s_mov_b32 s60, {base + opt('touchoff', 2624)}")
    A(f"buffer_load_dword {v(t)}, {v(t)}, {WS}, s60 offen")
    A("s_waitcnt vmcnt(0)")

def nonce_load(r):
    A(f"v_mov_b32 {v(r)}, 0")
    A(f"buffer_load_dword {v(r)}, {v(r)}, {WS}, 0 offen")

def nonce_take(r):
    A(f"v_readfirstlane_b32 s{NONCE}, {v(r)}")
    A(f"s_add_u32 s{NONCE}, s{NONCE}, 0x{NONCE_C:x}")

def prologue():
    A(f"s_cmp_ge_u32 s2, {NWG}")
    A("s_cbranch_scc1 L_end")
    A("s_load_dwordx2 s[40:41], s[0:1], 96")
    A("s_load_dwordx2 s[42:43], s[0:1], 0")
    A("s_load_dwordx4 s[44:47], s[0:1], 48")
    A("s_load_dwordx4 s[48:51], s[0:1], 64")
    A("s_load_dwordx4 s[52:55], s[0:1], 80")
    if opt("codepf", 1):
        A("s_getpc_b64 s[60:61]")
        A("s_and_b32 s60, s60, -256")
        A("v_lshlrev_b32 v2, 7, v0")
        A("v_mov_b32 v3, s61")
        A("v_add_co_u32 v2, vcc, s60, v2")
        A("v_addc_co_u32 v3, vcc, 0, v3, vcc")
        A("v_cmp_gt_u32 vcc, CODE_LINES, v0")
        A("s_and_saveexec_b64 s[62:63], vcc")
        A("s_cbranch_execz L_nopf")
        A("global_load_dword v255, v[2:3], off")
        A("v_add_co_u32 v2, vcc, 0x8000, v2")
        A("v_addc_co_u32 v3, vcc, 0, v3, vcc")
        A("v_cmp_gt_u32 vcc, CODE_LINES2, v0")
        A("s_and_b64 exec, exec, vcc")
        A("s_cbranch_execz L_nopf")
        A("global_load_dword v255, v[2:3], off")
        A.label("L_nopf")
        A("s_mov_b64 exec, s[62:63]")
    A("v_lshrrev_b32 v2, 6, v0")
    A("v_and_b32 v1, 63, v0")
    A(f"v_readfirstlane_b32 s{WV}, v2")
    A("s_waitcnt lgkmcnt(0)")
    srd(4, 40, WS_BYTES)
    if DSTAMPS or MSTAMPS:
        srd(92, 54, 256)
    stamp(31, dbg=(0, 0))
    A(f"s_cmp_lt_u32 s2, {C0}")
    A("s_cbranch_scc1 L_roleR")
    A(f"s_cmp_lt_u32 s2, {FA0}")
    A("s_cbranch_scc1 L_roleC")
    A(f"s_cmp_lt_u32 s2, {FB0}")
    A("s_cbranch_scc1 L_roleFa")
    A("s_branch L_roleFb")

B1R, B1I, TWC, TWS, B2R, B2I, WR, INV = 16, 28, 40, 56, 72, 88, 104, 114
X, XN, MM, RS = 116, 136, 156, 158
ACR, ACI, AF1, AF2, AC2R, AC2I = 160, 176, 192, 204, 220, 236
vX, vY0, vY1, vY2, vKX, vLC, vLYW, vLYR, vLWW, vLWR0, vWG, vTA = 2, 3, 4, 5, 6, 7, 8, 9, 10, 11, 14, 15
vTB, vWG1 = 252, 115
sRHO, sA, sS2, sRA, sME, sREP, sXO, sWB, sTB, sP, sS, sQ = 22, 23, 24, 25, 26, 27, 28, 29, 30, 32, 34, 36
sSEL = 80
s32f = 38
sTAU = 39
LDS_Y, LDS_W, LDS_NEW, LDS_KX, LDS_CONST, LDS_RG = 0, 10240, 21504, 31744, 24576, 52224

def reduce_tail(r):
    for k in (8, 4, 2, 1):
        A(f"v_add_f32_dpp {v(r)}, {v(r)}, {v(r)} row_ror:{k} row_mask:0xf bank_mask:0xf")

def tau_of(w, t, scale):
    A(f"v_pk_mul_f32 {v(t,2)}, {v(w,2)}, {v(w,2)}")
    for i in range(2, 10, 2):
        A(f"v_pk_fma_f32 {v(t,2)}, {v(w+i,2)}, {v(w+i,2)}, {v(t,2)}")
    A(f"v_add_f32 {v(t)}, {v(t)}, {v(t+1)}")
    for sw in ("32", "16"):
        A(f"v_mov_b32 {v(t+1)}, {v(t)}")
        A(f"v_permlane{sw}_swap_b32 {v(t)}, {v(t+1)}")
        A(f"v_add_f32 {v(t)}, {v(t)}, {v(t+1)}")
    reduce_tail(t)
    A(f"v_sqrt_f32 {v(t)}, {v(t)}")
    A(f"v_mul_f32 {v(t)}, {f32(scale * opt('tau', 200) / 100)}, {v(t)}")

def ln_stats(xb, t):
    S_, Q_, D0, D1 = t, t + 2, t + 4, t + 6
    A(f"v_readfirstlane_b32 s{sP}, {v(xb)}")
    A(f"v_readfirstlane_b32 s{sP+1}, {v(xb+1)}")
    for i in range(10):
        D = S_ if i == 0 else (D0 if i % 2 else D1)
        A(f"v_pk_add_f32 {v(D,2)}, {v(xb+2*i,2)}, {s(sP,2)} neg_lo:[0,1] neg_hi:[0,1]")
        if i == 0:
            A(f"v_pk_mul_f32 {v(Q_,2)}, {v(D,2)}, {v(D,2)}")
        else:
            A(f"v_pk_add_f32 {v(S_,2)}, {v(S_,2)}, {v(D,2)}")
            A(f"v_pk_fma_f32 {v(Q_,2)}, {v(D,2)}, {v(D,2)}, {v(Q_,2)}")
    A(f"v_permlane32_swap_b32 {v(S_)}, {v(S_+1)}")
    A(f"v_permlane32_swap_b32 {v(Q_)}, {v(Q_+1)}")
    A(f"v_add_f32 {v(S_)}, {v(S_)}, {v(S_+1)}")
    A(f"v_add_f32 {v(Q_)}, {v(Q_)}, {v(Q_+1)}")
    A(f"v_permlane16_swap_b32 {v(S_)}, {v(Q_)}")
    A(f"v_add_f32 {v(S_)}, {v(S_)}, {v(Q_)}")
    reduce_tail(S_)
    A(f"v_readlane_b32 s{sS}, {v(S_)}, 0")
    A(f"v_readlane_b32 s{sS+1}, {v(S_)}, 32")
    A(f"v_readlane_b32 s{sQ}, {v(S_)}, 16")
    A(f"v_readlane_b32 s{sQ+1}, {v(S_)}, 48")
    A(f"v_pk_mul_f32 {v(MM,2)}, {s(sS,2)}, {v(INV,2)} op_sel_hi:[1,0]")
    A(f"v_pk_mul_f32 {v(RS,2)}, {s(sQ,2)}, {v(INV,2)} op_sel_hi:[1,0]")
    A(f"v_pk_fma_f32 {v(RS,2)}, {v(MM,2)}, {v(MM,2)}, {v(RS,2)} neg_lo:[1,0,0] neg_hi:[1,0,0]")
    A(f"v_pk_add_f32 {v(MM,2)}, {v(MM,2)}, {s(sP,2)}")
    A(f"v_max_f32 {v(RS)}, 0, {v(RS)}")
    A(f"v_max_f32 {v(RS+1)}, 0, {v(RS+1)}")
    rnd_pair(RS, RS + 1, D0)
    A(f"v_add_f32 {v(RS)}, {f32(1e-5)}, {v(RS)}")
    A(f"v_add_f32 {v(RS+1)}, {f32(1e-5)}, {v(RS+1)}")
    rnd_pair(RS, RS + 1, D0)
    A(f"v_sqrt_f32 {v(RS)}, {v(RS)}")
    A(f"v_sqrt_f32 {v(RS+1)}, {v(RS+1)}")
    rnd_pair(MM, MM + 1, D1)
    rnd_pair(RS, RS + 1, D0)
    A(f"v_rcp_f32 {v(RS)}, {v(RS)}")
    A(f"v_rcp_f32 {v(RS+1)}, {v(RS+1)}")

def ln_center_scale(xb, zb, t, exact=True):
    if not exact:
        A(f"v_pk_mul_f32 {v(t,2)}, {v(MM,2)}, {v(RS,2)} neg_lo:[1,0] neg_hi:[1,0]")
        for i in range(10):
            A(f"v_pk_fma_f32 {v(zb+2*i,2)}, {v(xb+2*i,2)}, {v(RS,2)}, {v(t,2)}")
        return
    for i in range(10):
        A(f"v_pk_add_f32 {v(zb+2*i,2)}, {v(xb+2*i,2)}, {v(MM,2)} neg_lo:[0,1] neg_hi:[0,1]")
        if exact:
            rnd_pair(zb + 2 * i, zb + 2 * i + 1, t + (i % 4))
    for i in range(10):
        A(f"v_pk_mul_f32 {v(zb+2*i,2)}, {v(zb+2*i,2)}, {v(RS,2)}")

def pack_rows(zb, pa, pb):
    for u in range(5):
        A(f"v_cvt_pk_bf16_f32 {v(pa+u)}, {v(zb+4*u)}, {v(zb+4*u+2)}")
        A(f"v_cvt_pk_bf16_f32 {v(pb+u)}, {v(zb+4*u+1)}, {v(zb+4*u+3)}")

def unpack_rows(zb, pa, pb):
    for u in range(5):
        A(f"v_lshlrev_b32 {v(zb+4*u)}, 16, {v(pa+u)}")
        A(f"v_and_b32 {v(zb+4*u+2)}, 0xffff0000, {v(pa+u)}")
        A(f"v_lshlrev_b32 {v(zb+4*u+1)}, 16, {v(pb+u)}")
        A(f"v_and_b32 {v(zb+4*u+3)}, 0xffff0000, {v(pb+u)}")

def store_rows(pa, pa4, pb, pb4, off, sb=sTB):
    A(f"buffer_store_dwordx4 {v(pa,4)}, {v(vTA)}, {WS}, s{sb} offen offset:{off} sc1")
    A(f"buffer_store_dword {v(pa4)}, {v(vTB)}, {WS}, s{sb} offen offset:{off} sc1")
    A(f"buffer_store_dwordx4 {v(pb,4)}, {v(vTA)}, {WS}, s{sb+1} offen offset:{off} sc1")
    A(f"buffer_store_dword {v(pb4)}, {v(vTB)}, {WS}, s{sb+1} offen offset:{off} sc1")

def to_f16(zb, t, sub=None):
    for i in range(10):
        if EXACT:
            rnd_pair(zb + 2 * i, zb + 2 * i + 1, t + (i % 4))
        A(f"v_cvt_pk_f16_f32 {v(AF1+i)}, {v(zb+2*i)}, {v(zb+2*i+1)}")
        if sub is not None:
            A(f"v_pk_add_f16 {v(AF1+i)}, {v(AF1+i)}, {v(sub(i))} neg_lo:[0,1] neg_hi:[0,1]")

def row_dft(t, shadow1=None, shadow2=None):
    for kk in range(3):
        c = "0" if kk == 0 else None
        A(f"v_mfma_f32_32x32x16_f16 {v(ACR,16)}, {v(AF1+4*kk,4)}, {v(B1R+4*kk,4)}, {c or v(ACR,16)}")
        A(f"v_mfma_f32_32x32x16_f16 {v(ACI,16)}, {v(AF1+4*kk,4)}, {v(B1I+4*kk,4)}, {c or v(ACI,16)}")
    if shadow1:
        shadow1()
    for kk in range(4):
        for i in (4 * kk, 4 * kk + 2):
            pr, pi = t + (i % 4) * 2, t + (i % 4) * 2 + 2
            A(f"v_pk_mul_f32 {v(pr,2)}, {v(ACR+i,2)}, {v(TWC+i,2)}")
            A(f"v_pk_mul_f32 {v(pi,2)}, {v(ACI+i,2)}, {v(TWC+i,2)}")
            A(f"v_pk_fma_f32 {v(pr,2)}, {v(ACI+i,2)}, {v(TWS+i,2)}, {v(pr,2)}")
            A(f"v_pk_fma_f32 {v(pi,2)}, {v(ACR+i,2)}, {v(TWS+i,2)}, {v(pi,2)} neg_lo:[1,0,0] neg_hi:[1,0,0]")
            A(f"v_cvt_pk_f16_f32 {v(AF2+i)}, {v(pr)}, {v(pi)}")
            A(f"v_cvt_pk_f16_f32 {v(AF2+i+1)}, {v(pr+1)}, {v(pi+1)}")
        c = "0" if kk == 0 else None
        A(f"v_mfma_f32_32x32x16_f16 {v(AC2R,16)}, {v(AF2+4*kk,4)}, {v(B2R+4*kk,4)}, {c or v(AC2R,16)}")
        A(f"v_mfma_f32_32x32x16_f16 {v(AC2I,16)}, {v(AF2+4*kk,4)}, {v(B2I+4*kk,4)}, {c or v(AC2I,16)}")
    if shadow2:
        shadow2()

def W_stores(layer, r0, r1, r2, lds=True):
    L = A.newlabel("Lw2")
    A(f"s_add_u32 s60, s{sWB}, {W_OFF + layer * W_SZ}")
    A(f"s_add_u32 s62, s60, {8192 + 112}")
    if lds:
        A("s_waitcnt lgkmcnt(2)")
    A(f"buffer_store_dwordx4 {v(r0,4)}, {v(vWG)}, {WS}, s60 offen sc1")
    if lds:
        A("s_waitcnt lgkmcnt(0)")
    A(f"buffer_store_dwordx4 {v(r1,4)}, {v(vWG1)}, {WS}, s60 offen sc1")
    A(f"s_cmp_ge_u32 s{WV}, 2")
    A(f"s_cbranch_scc1 {L}")
    if lds:
        A(f"ds_read2st64_b32 {v(r2,2)}, {v(vLWR0+2)} offset0:0 offset1:11")
        A(f"ds_read2st64_b32 {v(r2+2,2)}, {v(vLWR0+2)} offset0:22 offset1:33")
        A("s_waitcnt lgkmcnt(0)")
    A(f"buffer_store_dwordx4 {v(r2,4)}, {v(vWG)}, {WS}, s62 offen sc1")
    A.label(L)

def write_W(layer):
    k = 2 * layer
    for i in range(10):
        A(f"v_cvt_pk_f16_f32 {v(ACR+i)}, {v(AC2R+i)}, {v(AC2I+i)}")
        A(f"ds_write_b32 {v(vLWW)}, {v(ACR+i)} offset:{4*i}")
    A("s_waitcnt lgkmcnt(0)")
    A("s_barrier")
    for j in range(2):
        A(f"ds_read2st64_b32 {v(ACI+4*j,2)}, {v(vLWR0+j)} offset0:0 offset1:11")
        A(f"ds_read2st64_b32 {v(ACI+4*j+2,2)}, {v(vLWR0+j)} offset0:22 offset1:33")
    if EARLY_R == 0:
        arrive_issue(k, sME, AF2)
    W_stores(layer, ACI, ACI + 4, ACI + 8)
    if EARLY_R == 0:
        arrive_finish(k, sME, 15, AF2, 3)
    if (layer == 1 and DRAIN2) or (layer == 0 and DRAIN0):
        A("s_waitcnt vmcnt(0)")
        A("s_barrier")
        arrive_issue(k, sME, AF2)
        arrive_finish(k, sME, 15, AF2, 0)

def stage_Y(layer, first=None, shadow=None):
    c0, c1, c2, t = ACR, ACR + 4, ACR + 8, ACR + 16
    loop, L2, L4, L5, done = [A.newlabel("Ly") for _ in range(5)]
    A(f"s_mov_b32 s60, {Y_OFF + layer * Y_SZ}")
    A(f"s_mov_b32 s62, {SPIN}")
    for k in range(4):
        A(f"v_mov_b32 {v(c2+k)}, 0")
    if first:
        first()
    A.label(loop)
    A(f"buffer_load_dwordx4 {v(c0,4)}, {v(vY0)}, {WS}, s60 offen sc1")
    A(f"buffer_load_dwordx4 {v(c1,4)}, {v(vY1)}, {WS}, s60 offen sc1")
    A(f"s_cmp_ge_u32 s{WV}, 2")
    A(f"s_cbranch_scc1 {L2}")
    A(f"buffer_load_dwordx4 {v(c2,4)}, {v(vY2)}, {WS}, s60 offen sc1")
    A.label(L2)
    if shadow:
        Lsh = A.newlabel("Ly")
        A(f"s_cmp_lg_u32 s62, {SPIN}")
        A(f"s_cbranch_scc1 {Lsh}")
        shadow()
        A.label(Lsh)
    A("s_waitcnt vmcnt(0)")
    if layer == 0 or not DRAIN2:
        any_sentinel(range(c0, c0 + 12), t, done)
        spin_tail(loop, 62, 2)
    A.label(done)
    A(f"ds_write2st64_b32 {v(vLYW)}, {v(c0)}, {v(c0+1)} offset0:0 offset1:10")
    A(f"ds_write2st64_b32 {v(vLYW)}, {v(c0+2)}, {v(c0+3)} offset0:20 offset1:30")
    A(f"s_cmp_eq_u32 s{WV}, 0")
    A(f"s_cbranch_scc1 {L4}")
    for k in range(4):
        A(f"v_alignbit_b32 {v(t+k)}, {v(c1+3-k)}, {v(c1+3-k)}, 16")
    for k in range(4):
        A(f"v_mov_b32 {v(c1+k)}, {v(t+k)}")
    A.label(L4)
    A(f"ds_write2st64_b32 {v(vLYW)}, {v(c1)}, {v(c1+1)} offset0:4 offset1:14")
    A(f"ds_write2st64_b32 {v(vLYW)}, {v(c1+2)}, {v(c1+3)} offset0:24 offset1:34")
    A(f"s_cmp_ge_u32 s{WV}, 2")
    A(f"s_cbranch_scc1 {L5}")
    for k in range(4):
        A(f"v_alignbit_b32 {v(t+k)}, {v(c2+3-k)}, {v(c2+3-k)}, 16")
    A(f"ds_write2st64_b32 {v(vLYW)}, {v(t)}, {v(t+1)} offset0:8 offset1:18")
    A(f"ds_write2st64_b32 {v(vLYW)}, {v(t+2)}, {v(t+3)} offset0:28 offset1:38")
    A.label(L5)
    A("s_waitcnt lgkmcnt(0)")
    A("s_barrier")

def router_publish(layer, t, pa, pb):
    R_ = t
    for i in range(10):
        os_ = i & 1
        wv = v(WR + (i & ~1), 2)
        if i == 0:
            A(f"v_pk_mul_f32 {v(R_,2)}, {v(XN,2)}, {wv} op_sel:[0,{os_}] op_sel_hi:[1,{os_}]")
        else:
            A(f"v_pk_fma_f32 {v(R_,2)}, {v(XN+2*i,2)}, {wv}, {v(R_,2)} op_sel:[0,{os_},0] op_sel_hi:[1,{os_},1]")
    fill = []
    if not EXACT1:
        for u in range(5):
            fill.append(f"v_cvt_pk_bf16_f32 {v(pa+u)}, {v(XN+4*u)}, {v(XN+4*u+2)}")
            fill.append(f"v_cvt_pk_bf16_f32 {v(pb+u)}, {v(XN+4*u+1)}, {v(XN+4*u+3)}")
    def pad(n=2):
        for _ in range(n):
            if fill:
                A(fill.pop(0))
    pad()
    A(f"v_permlane32_swap_b32 {v(R_)}, {v(R_+1)}")
    A(f"v_add_f32 {v(R_)}, {v(R_)}, {v(R_+1)}")
    A(f"v_mov_b32 {v(R_+1)}, {v(R_)}")
    pad()
    A(f"v_permlane16_swap_b32 {v(R_)}, {v(R_+1)}")
    A(f"v_add_f32 {v(R_)}, {v(R_)}, {v(R_+1)}")
    for k in (8, 4, 2, 1):
        pad()
        A(f"v_add_f32_dpp {v(R_)}, {v(R_)}, {v(R_)} row_ror:{k} row_mask:0xf bank_mask:0xf")
    pad(10)
    A(f"v_cmp_le_f32 vcc, s{sTAU}, {v(R_)}")
    A(f"v_readlane_b32 s71, {v(R_)}, 32")
    A("s_mov_b64 s[56:57], vcc")
    for row, (p_, half) in enumerate(((pa, "vcc_lo"), (pb, "vcc_hi"))):
        Lr = A.newlabel("Lcand")
        A(f"s_cmp_eq_u32 {half}, 0")
        A(f"s_cbranch_scc1 {Lr}")
        A(f"buffer_store_dwordx4 {v(p_,4)}, {v(vTA)}, {WS}, s{sTB+row} offen sc1")
        A(f"buffer_store_dword {v(p_+4)}, {v(vTB)}, {WS}, s{sTB+row} offen sc1")
        A.label(Lr)
    A(f"s_lshl_b32 s70, s{WV}, 2")
    A(f"s_add_u32 s70, s70, {LDS_RG}")
    A(f"v_mov_b32 {v(R_+2)}, s70")
    A(f"v_cvt_pk_bf16_f32 {v(R_)}, {v(R_)}, s71")
    A(f"v_lshrrev_b32 {v(R_+1)}, 15, {v(R_)}")
    A(f"v_and_b32 {v(R_+1)}, 0x10001, {v(R_+1)}")
    A(f"v_mul_u32_u24 {v(R_+1)}, 0x7fff, {v(R_+1)}")
    A(f"v_or_b32 {v(R_+1)}, 0x80008000, {v(R_+1)}")
    A(f"v_xor_b32 {v(R_)}, {v(R_)}, {v(R_+1)}")
    A(f"v_min_u32 {v(R_)}, -2, {v(R_)}")
    A("s_mov_b64 exec, 1")
    A(f"ds_write_b32 {v(R_+2)}, {v(R_)}")
    A("s_mov_b64 exec, -1")
    A("s_waitcnt vmcnt(0) lgkmcnt(0)")
    A("s_barrier")
    L = A.newlabel("Lrp")
    A(f"s_cmp_lg_u32 s{WV}, 0")
    A(f"s_cbranch_scc1 {L}")
    A(f"ds_read_b128 {v(R_+4,4)}, {v(R_+2)}")
    A(f"v_lshlrev_b32 {v(R_+2)}, {RSH + 8}, v1")
    A(f"s_lshl_b32 s73, s{sRHO}, {RSH}")
    A(f"s_add_u32 s73, s73, {RG_OFF + layer * NRR * RG_REP}")
    set_exec((1 << NRR) - 1)
    A("s_waitcnt lgkmcnt(0)")
    A(f"buffer_store_dwordx4 {v(R_+4,4)}, {v(R_+2)}, {WS}, s73 offen sc1")
    A("s_mov_b64 exec, -1")
    A.label(L)

def roleR():
    A.label("L_roleR")
    prio(2)
    srd(8, 42, 2621440)
    A("s_and_b32 s60, s2, 7")
    A("s_lshr_b32 s61, s2, 3")
    A(f"s_lshr_b32 s{sA}, s61, 3")
    A("s_and_b32 s61, s61, 7")
    A("s_lshl_b32 s60, s60, 3")
    A("s_sub_u32 s62, 56, s60")
    A(f"s_cmp_lt_u32 s{sA}, 2")
    A("s_cselect_b32 s60, s60, s62")
    A(f"s_add_u32 s{sS2}, s60, s61")
    A(f"s_lshl_b32 s60, s{sA}, 9")
    A(f"s_lshl_b32 s61, s{WV}, 7")
    A(f"s_add_u32 s{sRA}, s60, s61")
    A(f"s_add_u32 s{sRA}, s{sRA}, s{sS2}")
    A(f"s_mul_i32 s{sXO}, s{sRA}, 1280")
    A(f"s_add_u32 s63, s{sXO}, {64 * 1280}")
    T = ACR
    n, h = T, T + 1
    A(f"v_and_b32 {v(n)}, 31, v1")
    A(f"v_lshrrev_b32 {v(h)}, 5, v1")
    A(f"v_mul_u32_u24 {v(vX)}, 640, {v(h)}")
    A(f"v_lshl_add_u32 {v(vX)}, {v(n)}, 1, {v(vX)}")
    XW = opt("xwide", 0)
    XR = AC2R + 8
    if XW:
        A(f"v_lshlrev_b32 {v(XR+12)}, 4, v1")
        A(f"v_add_u32 {v(XR+13)}, {1024 + 63 * 1280}, {v(XR+12)}")
        A(f"v_add_u32 {v(XR+14)}, 1024, {v(XR+12)}")
        A(f"v_cmp_gt_u32 vcc, 16, v1")
        A(f"buffer_load_dwordx4 {v(XR,4)}, {v(XR+12)}, {SRD1}, s{sXO} offen")
        A(f"v_cndmask_b32 {v(XR+14)}, {v(XR+13)}, {v(XR+14)}, vcc")
        A(f"buffer_load_dwordx4 {v(XR+4,4)}, {v(XR+14)}, {SRD1}, s{sXO} offen")
        set_exec(0xffffffff)
        A(f"buffer_load_dwordx4 {v(XR+8,4)}, {v(XR+13)}, {SRD1}, s{sXO} offen offset:1024")
        A("s_mov_b64 exec, -1")
        for i in range(20):
            A(f"v_mov_b32 {v(X+i)}, 0")
    else:
        for i in range(10):
            A(f"v_mov_b32 {v(X+2*i)}, 0")
            A(f"v_mov_b32 {v(X+2*i+1)}, 0")
            A(f"buffer_load_short_d16_hi {v(X+2*i)}, {v(vX)}, {SRD1}, s{sXO} offen offset:{64*i}")
            A(f"buffer_load_short_d16_hi {v(X+2*i+1)}, {v(vX)}, {SRD1}, s63 offen offset:{64*i}")
    NV = XN
    nonce_load(NV)
    ONES = XN + 4
    A(f"s_lshl_b32 s{sRHO}, s{sA}, 6")
    A(f"s_add_u32 s{sRHO}, s{sRHO}, s{sS2}")
    A(f"s_mul_i32 s{sWB}, s{sRHO}, {WROW}")
    for k in range(4):
        A(f"v_mov_b32 {v(ONES+k)}, -1")
    A(f"v_lshlrev_b32 {v(vWG)}, 4, v0")
    A(f"v_add_u32 {v(vWG1)}, {4096 + 112}, {v(vWG)}")
    A(f"v_add_u32 {v(T+2)}, 4096, {v(vWG)}")
    A(f"v_cmp_gt_u32 vcc, 65, v0")
    A(f"v_cndmask_b32 {v(vWG1)}, {v(vWG1)}, {v(T+2)}, vcc")
    A(f"v_lshlrev_b32 {v(T+4)}, 3, v0")
    A(f"s_lshl_b32 s61, s{sRHO}, 11")
    A(f"s_add_u32 s61, s61, {RESET_OFF}")
    A(f"buffer_store_dwordx2 {v(ONES,2)}, {v(T+4)}, {WS}, s61 offen sc1")
    LATEF = opt("latefill", 0)
    if not DRAIN0 and not LATEF:
        W_stores(0, ONES, ONES, ONES, lds=False)
    PREFR = opt("prefr", 0)
    if PREFR == 1:
        warm_weights(AC2R, 0, 32, PPART)
    e1, e1s, base, arg, c_, s_ = T + 6, T + 7, T + 8, T + 9, T + 10, T + 11
    hf_, wf, lc = T + 12, T + 13, T + 14
    G0 = T + 16
    A(f"v_bfe_u32 {v(e1)}, {v(n)}, 2, 1")
    A(f"v_mul_u32_u24 {v(e1)}, 10, {v(e1)}")
    A(f"v_and_b32 {v(arg)}, 3, {v(n)}")
    A(f"v_add_u32 {v(e1)}, {v(e1)}, {v(arg)}")
    A(f"v_lshrrev_b32 {v(arg)}, 3, {v(n)}")
    A(f"v_lshl_add_u32 {v(e1)}, {v(arg)}, 2, {v(e1)}")
    A(f"v_cvt_f32_u32 {v(e1)}, {v(e1)}")
    A(f"v_cvt_f32_u32 {v(hf_)}, {v(h)}")
    A(f"v_cvt_f32_u32 {v(wf)}, s{WV}")
    A(f"s_lshl_b32 s60, s{WV}, 10")
    A(f"s_add_u32 s60, s60, {LDS_CONST}")
    A(f"v_lshl_add_u32 {v(lc)}, v1, 4, s60")
    A(f"v_mul_f32 {v(e1s)}, {f32(1/20)}, {v(e1)}")
    A(f"v_mul_f32 {v(base)}, {f32(10.0)}, {v(hf_)}")
    A(f"v_fma_f32 {v(base)}, 4.0, {v(wf)}, {v(base)}")
    A(f"v_mul_f32 {v(base)}, {v(e1s)}, {v(base)}")
    A(f"s_cmp_lt_u32 s{WV}, 2")
    A(f"s_cselect_b64 s[64:65], -1, 0")
    for r in range(4):
        A(f"v_fmamk_f32 {v(arg)}, {v(e1s)}, {f32(r)}, {v(base)}")
        sincos(arg, c_, s_)
        A(f"v_cvt_pk_f16_f32 {v(G0+r)}, {v(c_)}, {v(s_)}")
        A(f"v_cvt_pk_f16_f32 {v(G0+4+r)}, -{v(s_)}, {v(c_)}")
        if r >= 2:
            A(f"v_cndmask_b32 {v(G0+r)}, 0, {v(G0+r)}, s[64:65]")
            A(f"v_cndmask_b32 {v(G0+4+r)}, 0, {v(G0+4+r)}, s[64:65]")
    A(f"ds_write_b128 {v(lc)}, {v(G0,4)}")
    A(f"ds_write_b128 {v(lc)}, {v(G0+4,4)} offset:4096")
    A(f"v_mul_f32 {v(wf)}, {f32(8.0)}, {v(wf)}")
    A(f"v_fma_f32 {v(wf)}, 4.0, {v(hf_)}, {v(wf)}")
    A(f"v_mul_f32 {v(e1s)}, {f32(1/640)}, {v(e1)}")
    A(f"v_mul_f32 {v(base)}, {v(e1s)}, {v(wf)}")
    for r in range(4):
        A(f"v_fmamk_f32 {v(arg)}, {v(e1s)}, {f32(r)}, {v(base)}")
        sincos(arg, G0 + 8 + r, G0 + 12 + r)
    A(f"ds_write_b128 {v(lc)}, {v(G0+8,4)} offset:8192")
    A(f"ds_write_b128 {v(lc)}, {v(G0+12,4)} offset:12288")
    A(f"v_cvt_f32_u32 {v(e1s)}, {v(n)}")
    A(f"v_mul_f32 {v(e1s)}, {f32(1/32)}, {v(e1s)}")
    A(f"v_mul_f32 {v(base)}, {v(e1s)}, {v(wf)}")
    for r in range(4):
        A(f"v_fmamk_f32 {v(arg)}, {v(e1s)}, {f32(r)}, {v(base)}")
        sincos(arg, c_, s_)
        A(f"v_cvt_pk_f16_f32 {v(G0+16+r)}, {v(c_)}, {v(s_)}")
        A(f"v_cvt_pk_f16_f32 {v(G0+20+r)}, -{v(s_)}, {v(c_)}")
    A(f"ds_write_b128 {v(lc)}, {v(G0+16,4)} offset:16384")
    A(f"ds_write_b128 {v(lc)}, {v(G0+20,4)} offset:20480")
    A(f"v_mov_b32 {v(AF1+10)}, 0")
    A(f"v_mov_b32 {v(AF1+11)}, 0")
    A(f"v_lshlrev_b32 {v(vLC)}, 4, v1")
    A(f"v_add_u32 {v(vLC)}, {LDS_CONST}, {v(vLC)}")
    A(f"v_mov_b32 {v(INV)}, {f32(1/640)}")
    A(f"s_mov_b32 s{s32f}, {f32(32.0)}")
    A(f"s_and_b32 s{sME}, s2, 15")
    A(f"v_mul_u32_u24 {v(vLWW)}, 21, {v(n)}")
    A(f"v_mad_u32_u24 {v(vLWW)}, {v(h)}, 10, {v(vLWW)}")
    A(f"s_mul_i32 s60, s{WV}, 704")
    A(f"s_add_u32 s60, s60, {LDS_W // 4}")
    A(f"v_add_lshl_u32 {v(vLWW)}, {v(vLWW)}, s60, 2")
    A("s_waitcnt lgkmcnt(0)")
    A("s_barrier")
    for (dst, ng, off) in ((B1R, 3, 0), (B1I, 3, 4096), (TWC, 4, 8192), (TWS, 4, 12288)):
        for gq in range(ng):
            A(f"ds_read_b128 {v(dst+4*gq,4)}, {v(vLC)} offset:{off + 1024*gq}")
    for j in range(3):
        A(f"v_add_u32 {v(arg)}, {256*j}, v0")
        A(f"v_mul_u32_u24 {v(c_)}, 3277, {v(arg)}")
        A(f"v_lshrrev_b32 {v(c_)}, 16, {v(c_)}")
        A(f"v_add_u32 {v(arg)}, {v(arg)}, {v(c_)}")
        A(f"v_lshlrev_b32 {v(arg)}, 2, {v(arg)}")
        A(f"v_add_u32 {v(vLWR0+j)}, {LDS_W}, {v(arg)}")
    A(f"v_lshlrev_b32 {v(vTA)}, 4, v1")
    A(f"v_lshlrev_b32 {v(vTB)}, 2, v1")
    A(f"v_add_u32 {v(vTB)}, 1024, {v(vTB)}")
    A(f"s_mul_i32 s{sTB}, s{sRA}, {T_REC}")
    A(f"s_add_u32 s{sTB}, s{sTB}, {T_OFF}")
    A(f"s_add_u32 s{sTB+1}, s{sTB}, {64 * T_REC}")
    stamp(0, dbg=(1, 0))
    ARV = 204
    A(f"s_waitcnt vmcnt({(1 if (DRAIN0 or LATEF) else 3) + (nloads(PPART) if PREFR == 1 else 0)})")
    nonce_take(NV)
    if LATEF:
        W_stores(0, ONES, ONES, ONES, lds=False)
    if XW:
        A(f"s_mul_i32 s60, s{WV}, 2560")
        A(f"v_add_u32 {v(XR+12)}, s60, {v(XR+12)}")
        A(f"v_add_u32 {v(XR+13)}, s60, {v(vX)}")
        A(f"ds_write_b128 {v(XR+12)}, {v(XR,4)}")
        A(f"ds_write_b128 {v(XR+12)}, {v(XR+4,4)} offset:1024")
        set_exec(0xffffffff)
        A(f"ds_write_b128 {v(XR+12)}, {v(XR+8,4)} offset:2048")
        A("s_mov_b64 exec, -1")
        A("s_waitcnt lgkmcnt(3)")
        for i in range(10):
            A(f"ds_read_u16_d16_hi {v(X+2*i)}, {v(XR+13)} offset:{64*i}")
            A(f"ds_read_u16_d16_hi {v(X+2*i+1)}, {v(XR+13)} offset:{1280+64*i}")
            if i == 5:
                A("s_waitcnt lgkmcnt(6)")
        A("s_waitcnt lgkmcnt(0)")
    stamp(10, dbg=(2, 0))
    if EARLY_R == 2:
        arrive_issue(0, sME, ARV)
    ln_stats(X, ACR)
    for (dst, ng, off) in ((B2R, 4, 16384), (B2I, 4, 20480)):
        for gq in range(ng):
            A(f"ds_read_b128 {v(dst+4*gq,4)}, {v(vLC)} offset:{off + 1024*gq}")
    ln_center_scale(X, XN, ACR, EXACT)
    to_f16(XN, ACR)
    if DRAIN0:
        A("s_waitcnt lgkmcnt(0)")
    else:
        A("s_waitcnt vmcnt(0) lgkmcnt(0)")
        A("s_barrier")
        arrive_issue(0, sME, XN + 8, AWR)
    def fill_xn1():
        for k in range(4):
            A(f"v_mov_b32 {v(XN+16+k)}, -1")
        store_rows(XN + 16, XN + 16, XN + 16, XN + 16, 0)
    row_dft(XN, None, (lambda: arrive_finish(0, sME, 15, XN + 8, 0, AWR)) if not DRAIN0 else None)
    stamp(11)
    write_W(0)
    stamp(1, dbg=(3, 0))
    if PREFR == 2:
        warm_weights(AC2R, 0, 32, PPART)
    srd(12, 52, 2621440)
    srd(16, 44, 1280)
    for i in range(10):
        A(f"v_mov_b32 {v(WR+i)}, 0")
        A(f"buffer_load_short_d16_hi {v(WR+i)}, {v(vX)}, {SRD3}, 0 offen offset:{64*i}")
    A(f"v_and_b32 {v(n)}, 31, v1")
    A(f"v_lshrrev_b32 {v(h)}, 5, v1")
    A(f"v_lshlrev_b32 {v(vLYW)}, 2, v0")
    A(f"v_mul_u32_u24 {v(vLYR)}, 320, {v(h)}")
    A(f"s_mul_i32 s60, s{WV}, 640")
    A(f"v_add3_u32 {v(vLYR)}, {v(vLYR)}, {v(n)}, s60")
    A(f"v_lshlrev_b32 {v(vLYR)}, 2, {v(vLYR)}")
    A(f"s_sub_u32 s60, 3, s{sA}")
    A(f"s_lshl_b32 s60, s60, 6")
    A(f"s_sub_u32 s61, 64, s{sS2}")
    A(f"s_add_u32 s60, s60, s61")
    A(f"s_lshl_b32 s60, s60, 4")
    A(f"s_lshl_b32 s61, s{sA}, 4")
    A(f"s_add_u32 s61, s61, {YM_OFF}")
    A(f"s_cmp_eq_u32 s{sS2}, 0")
    A(f"s_cselect_b32 s60, s61, s60")
    A(f"s_cselect_b32 s61, 6, 12")
    A(f"s_lshl_b32 s62, s{sRHO}, 4")
    A(f"v_lshlrev_b32 {v(vY0)}, 12, v0")
    A(f"v_add_u32 {v(vY0)}, s62, {v(vY0)}")
    A(f"v_sub_u32 {v(arg)}, 384, v0")
    A(f"v_lshlrev_b32 {v(arg)}, s61, {v(arg)}")
    A(f"v_add_u32 {v(vY1)}, s60, {v(arg)}")
    A(f"v_add_u32 {v(c_)}, {256 << 12}, {v(vY0)}")
    A(f"v_cmp_gt_u32 vcc, 64, v0")
    A(f"v_cndmask_b32 {v(vY1)}, {v(vY1)}, {v(c_)}, vcc")
    A(f"v_sub_u32 {v(arg)}, 128, v0")
    A(f"v_and_b32 {v(arg)}, 0xff, {v(arg)}")
    A(f"v_lshlrev_b32 {v(arg)}, s61, {v(arg)}")
    A(f"v_add_u32 {v(vY2)}, s60, {v(arg)}")
    A(f"s_mul_i32 s60, s{WV}, 5120")
    A(f"s_add_u32 s60, s60, {LDS_KX}")
    A(f"v_lshl_add_u32 {v(vKX)}, v1, 4, s60")
    A(f"s_and_b32 s{sREP}, s2, {NREP - 1}")
    A(f"s_lshl_b32 s{sREP}, s{sREP}, {FSH + 4}")
    A("s_waitcnt vmcnt(0)")
    tau_of(WR, ACR, 1.0)
    A(f"v_readfirstlane_b32 s{sTAU}, {v(ACR)}")
    if opt("touch", 0) > 1:
        touch(ACR, Y_OFF, 2 * Y_SZ)
    poll_flags(1, sREP, ACR)
    stamp(2, dbg=(7, 0))
    stage_Y(0)
    stamp(13)
    if not DRAIN2:
        for k in range(4):
            A(f"v_mov_b32 {v(AF2+k)}, -1")
        W_stores(1, AF2, AF2, AF2, lds=False)
    for i in range(10):
        A(f"ds_read_b32 {v(ACI+i)}, {v(vLYR)} offset:{128*i}")
    for i in range(10):
        A(f"s_waitcnt lgkmcnt({9-i})")
        A(f"v_fma_mix_f32 {v(X+2*i)}, {v(ACI+i)}, s{s32f}, {v(X+2*i)} op_sel:[0,0,0] op_sel_hi:[1,0,0]")
        A(f"v_fma_mix_f32 {v(X+2*i+1)}, {v(ACI+i)}, s{s32f}, {v(X+2*i+1)} op_sel:[1,0,0] op_sel_hi:[1,0,0]")
    PA, PB = AC2R, AC2R + 8
    pack_rows(X, PA, PB)
    unpack_rows(X, PA, PB)
    A(f"ds_write_b128 {v(vKX)}, {v(PA,4)} offset:2048")
    A(f"ds_write_b128 {v(vKX)}, {v(PB,4)} offset:3072")
    A(f"v_mov_b32 {v(PA+6)}, {v(PA+4)}")
    A(f"v_mov_b32 {v(PA+7)}, {v(PB+4)}")
    ln_stats(X, ACR)
    ln_center_scale(X, XN, ACR, EXACT1)
    if EXACT1:
        pack_rows(XN, PA + 16, PB + 16)
        unpack_rows(XN, PA + 16, PB + 16)
    stamp(14)
    router_publish(0, ACI, PA + 16, PB + 16)
    if not EXACT1:
        unpack_rows(XN, PA + 16, PB + 16)
    stamp(3, dbg=(8, 0))
    E2 = opt("e2", 1)
    if E2 == 1:
        arrive_issue(2, sME, AF2 + 8, AWR)
    A(f"v_mov_b32 {v(PA+4)}, {v(PA+20)}")
    A(f"v_mov_b32 {v(PA+5)}, {v(PB+20)}")
    A(f"ds_write_b128 {v(vKX)}, {v(PA+16,4)}")
    A(f"ds_write_b128 {v(vKX)}, {v(PB+16,4)} offset:1024")
    A(f"ds_write_b128 {v(vKX)}, {v(PA+4,4)} offset:4096")
    if EARLY_R == 2:
        arrive_issue(2, sME, ARV)
    for i in range(10):
        A(f"v_pk_add_f32 {v(X+2*i,2)}, {v(X+2*i,2)}, {v(XN+2*i,2)}")
        rnd_pair(X + 2 * i, X + 2 * i + 1, ACR + (i % 4))
    ln_stats(X, ACR)
    ln_center_scale(X, XN, ACR + 8, EXACT)
    to_f16(XN, ACR + 8)
    if EARLY_R == 2:
        arrive_finish(2, sME, 15, ARV, 0)
    if E2 == 0:
        arrive_issue(2, sME, XN + 14, AWR)
        row_dft(XN, None, lambda: arrive_finish(2, sME, 15, XN + 14, 0, AWR))
    elif E2 == 1:
        row_dft(XN, lambda: arrive_finish(2, sME, 15, AF2 + 8, 0, AWR))
    else:
        row_dft(XN, None, lambda: arrive_finish(2, sME, 15, 250 - 4, 0, AWR))
    stamp(16)
    if not opt("wlate", 0):
        write_W(1)
    stamp(4)
    A(f"s_mov_b32 s74, {X2_OFF}")
    def release(layer, row, stash, with_xn):
        R0 = ACR
        if stash:
            A(f"ds_read_b128 {v(R0,4)}, {v(vKX)} offset:{2048+1024*row}")
            A(f"ds_read_b128 {v(R0+8,4)}, {v(vKX)} offset:4096")
            if with_xn:
                A(f"ds_read_b128 {v(R0+12,4)}, {v(vKX)} offset:{1024*row}")
            x4, x1, n4, n1 = R0, R0 + 10 + row, R0 + 12, R0 + 8 + row
        else:
            P_ = PA if row == 0 else PB
            x4, x1, n4, n1 = P_, P_ + 4, P_ + 16, P_ + 20
        A(f"s_add_u32 s61, s{NONCE}, {6 + layer}")
        A(f"v_mov_b32 {v(R0+4)}, {v(MM+row)}")
        A(f"v_mov_b32 {v(R0+5)}, {v(RS+row)}")
        A(f"v_mov_b32 {v(R0+6)}, s61")
        A(f"v_mov_b32 {v(R0+7)}, s61")
        A("s_waitcnt lgkmcnt(0)")
        if with_xn:
            A(f"buffer_store_dwordx4 {v(n4,4)}, {v(vTA)}, {WS}, s{sTB+row} offen sc1")
            A(f"buffer_store_dword {v(n1)}, {v(vTB)}, {WS}, s{sTB+row} offen sc1")
        A(f"buffer_store_dwordx4 {v(x4,4)}, {v(vTA)}, {WS}, s{sTB+row} offen offset:1280 sc1")
        A(f"buffer_store_dword {v(x1)}, {v(vTB)}, {WS}, s{sTB+row} offen offset:1280 sc1")
        A("s_waitcnt vmcnt(0)")
        A("s_mov_b64 exec, 1")
        A(f"buffer_store_dwordx4 {v(R0+4,4)}, {v(vTA)}, {WS}, s{sTB+row} offen offset:2560 sc1")
        A("s_mov_b64 exec, -1")
    def release_candidates(layer, stash):
        for row in range(2):
            Ln = A.newlabel("Lrel")
            A(f"s_cmp_eq_u32 s{56+row}, 0")
            A(f"s_cbranch_scc1 {Ln}")
            release(layer, row, stash, False)
            A.label(Ln)
    def wait_sel(layer, stash):
        loop, done = A.newlabel("Lsel"), A.newlabel("Lseld")
        T2 = ACR + 16
        A(f"s_mov_b32 s60, {X2_OFF + SEL_OFF + 256 * layer}")
        A(f"v_and_b32 {v(T2)}, 7, v1")
        A(f"v_lshlrev_b32 {v(T2)}, 2, {v(T2)}")
        A(f"s_mov_b32 s62, {SPIN}")
        A.label(loop)
        A(f"buffer_load_dword {v(T2+1)}, {v(T2)}, {WS}, s60 offen sc1")
        A("s_waitcnt vmcnt(0)")
        A(f"v_cmp_eq_u32 vcc, -1, {v(T2+1)}")
        A(f"s_cbranch_vccz {done}")
        spin_tail(loop, 62, opt('selsleep', 4))
        A.label(done)
        for j in range(8):
            A(f"v_readlane_b32 s{sSEL+j}, {v(T2+1)}, {j}")
        for row in range(2):
            A(f"s_add_u32 s60, s{sRA}, {64 * row}")
            A(f"s_mov_b32 s{76+row}, -1")
            for j in range(8):
                A(f"s_cmp_eq_u32 s60, s{sSEL+j}")
                A(f"s_cselect_b32 s{76+row}, {j}, s{76+row}")
            Ln = A.newlabel("Lpush")
            A(f"s_cmp_lt_i32 s{76+row}, 0")
            A(f"s_cbranch_scc1 {Ln}")
            A(f"s_cmp_lg_u32 s{56+row}, 0")
            A(f"s_cbranch_scc1 {Ln}")
            release(layer, row, stash, True)
            A.label(Ln)
    release_candidates(0, True)
    vE0, vDF, vDM, vP2, vNW = vLWW, vLWR0, vLWR0 + 1, vLWR0 + 2, vWG
    n, h = ACR + 8, ACR + 9
    A(f"v_and_b32 {v(n)}, 31, v1")
    A(f"v_lshrrev_b32 {v(h)}, 5, v1")
    A(f"v_mul_u32_u24 {v(vE0)}, 20, {v(n)}")
    A(f"v_mad_u32_u24 {v(vE0)}, {v(h)}, 10, {v(vE0)}")
    vER = vLC
    A(f"v_and_b32 {v(vER)}, 31, {v(vE0)}")
    A(f"v_lshrrev_b32 {v(vDF)}, 5, {v(vE0)}")
    A(f"s_lshl_b32 s60, s{WV}, 2")
    A(f"s_add_u32 s60, s60, {LDS_W}")
    A(f"v_add_u32 {v(vE0)}, {v(vE0)}, {v(vDF)}")
    A(f"v_lshl_add_u32 {v(vE0)}, {v(vE0)}, 4, s60")
    A(f"v_mul_u32_u24 {v(vDF)}, 330, {v(h)}")
    A(f"v_add_u32 {v(vDF)}, {v(vDF)}, {v(n)}")
    A(f"v_sub_u32 {v(vDM)}, 362, {v(vDF)}")
    A(f"v_lshlrev_b32 {v(vDF)}, 4, {v(vDF)}")
    A(f"v_add_u32 {v(vDF)}, {LDS_W}, {v(vDF)}")
    A(f"v_cmp_eq_u32 vcc, 0, {v(n)}")
    A(f"v_addc_co_u32 {v(vDM)}, vcc, 0, {v(vDM)}, vcc")
    A(f"v_lshlrev_b32 {v(vDM)}, 4, {v(vDM)}")
    A(f"v_add_u32 {v(vDM)}, {LDS_W}, {v(vDM)}")
    A(f"s_lshl_b32 s60, s{WV}, 8")
    A(f"v_mul_u32_u24 {v(vP2)}, 10240, {v(h)}")
    A(f"v_lshl_add_u32 {v(vP2)}, {v(n)}, 3, {v(vP2)}")
    A(f"v_add_u32 {v(vP2)}, s60, {v(vP2)}")
    A(f"s_mul_i32 s60, s{WV}, 2560")
    A(f"s_add_u32 s60, s60, {LDS_NEW}")
    A(f"v_lshl_add_u32 {v(vNW)}, v1, 2, s60")
    A(f"s_add_u32 s75, s74, 4096")
    A(f"s_add_u32 s78, s74, 8192")
    ORDER = opt("order", 1)
    def sel_step():
        wait_sel(0, True)
        A(f"s_add_u32 s{sTB}, s{sTB}, {T_SZ}")
        A(f"s_add_u32 s{sTB+1}, s{sTB+1}, {T_SZ}")
        stamp(5)
    CU, CV = XN + 12, XN + 16
    def coefs():
        tr, ca, sa, cb, sb, ar, t0, t1_ = range(AF2, AF2 + 8)
        A(f"v_and_b32 {v(tr)}, 1, v1")
        A(f"v_lshlrev_b32 {v(tr)}, 6, {v(tr)}")
        A(f"v_add_u32 {v(tr)}, s{sRA}, {v(tr)}")
        A(f"s_mov_b32 s64, 0x00300003")
        A(f"s_mov_b32 s65, 0x30000300")
        for p in range(4):
            for (j, cc, ss) in ((2 * p, ca, sa), (2 * p + 1, cb, sb)):
                A(f"v_mul_u32_u24 {v(ar)}, s{sSEL+j}, {v(tr)}")
                A(f"v_and_b32 {v(ar)}, 0x7ff, {v(ar)}")
                A(f"v_cvt_f32_u32 {v(ar)}, {v(ar)}")
                A(f"v_mul_f32 {v(ar)}, {f32(1/2048)}, {v(ar)}")
                sincos(ar, cc, ss)
            A(f"v_sub_f32 {v(t0)}, {v(ca)}, {v(sb)}")
            A(f"v_add_f32 {v(t1_)}, {v(sa)}, {v(cb)}")
            A(f"v_mul_f32 {v(t0)}, 0.5, {v(t0)}")
            A(f"v_mul_f32 {v(t1_)}, 0.5, {v(t1_)}")
            A(f"v_cvt_pk_f16_f32 {v(CU+p)}, {v(t0)}, {v(t1_)}")
            A(f"v_add_f32 {v(t0)}, {v(ca)}, {v(sb)}")
            A(f"v_sub_f32 {v(t1_)}, {v(cb)}, {v(sa)}")
            A(f"v_mul_f32 {v(t0)}, 0.5, {v(t0)}")
            A(f"v_mul_f32 {v(t1_)}, 0.5, {v(t1_)}")
            A(f"v_cvt_pk_f16_f32 {v(CV+p)}, {v(t0)}, {v(t1_)}")
            A(f"v_cndmask_b32 {v(CU+p)}, 0, {v(CU+p)}, s[64:65]")
            A(f"v_cndmask_b32 {v(CV+p)}, 0, {v(CV+p)}, s[64:65]")

    RAW = AC2R
    def x2loads():
        for i in range(10):
            so = ("s74", "s75", "s78")[i // 4]
            A(f"buffer_load_dwordx2 {v(RAW+2*i,2)}, {v(vP2)}, {WS}, {so} offen offset:{1024*(i%4)} sc1")
    def wait_hint():
        loop, done = A.newlabel("Lx2"), A.newlabel("Lx2d")
        A(f"s_mov_b32 s62, {SPIN}")
        A(f"s_add_u32 s60, s74, {SEL_OFF + 128}")
        A(f"v_mov_b32 {v(ACR)}, 0")
        A.label(loop)
        A(f"buffer_load_dword {v(ACR+1)}, {v(ACR)}, {WS}, s60 offen sc1")
        A("s_waitcnt vmcnt(0)")
        A(f"v_cmp_eq_u32 vcc, -1, {v(ACR+1)}")
        A(f"s_cbranch_vccz {done}")
        spin_tail(loop, 62, opt("hintsleep", 2))
        A.label(done)
    alldone = A.newlabel("Lx2a")
    if ORDER == 1:
        poll_flags(3, sREP, ACR)
        stamp(6, dbg=(13, 0))
        stage_Y(1)
        sel_step()
        coefs()
        wait_hint()
    else:
        sel_step()
        coefs()
        poll_flags(3, sREP, ACR)
        wait_hint()
        stamp(6, dbg=(13, 0))
        stage_Y(1, None, x2loads)
        any_sentinel(range(RAW, RAW + 20), ACR, alldone)
    loop, done = A.newlabel("Lx2"), A.newlabel("Lx2d")
    A(f"s_mov_b32 s62, {SPIN}")
    A.label(loop)
    x2loads()
    A("s_waitcnt vmcnt(0)")
    any_sentinel(range(RAW, RAW + 20), ACR, done)
    spin_tail(loop, 62, opt("x2sleep", 1))
    A.label(done)
    A.label(alldone)
    stamp(7)
    Z = ACR + 12
    for i in range(10):
        A(f"v_lshlrev_b32 {v(Z+2*i)}, 16, {v(RAW+2*i)}")
        A(f"v_and_b32 {v(Z+2*i+1)}, 0xffff0000, {v(RAW+2*i)}")
    for i in range(10):
        A(f"ds_write_b32 {v(vNW)}, {v(RAW+2*i)} offset:{256*i}")
    ln_stats(Z, ACR + 2)
    ln_center_scale(Z, Z, ACR + 2, EXACT)
    to_f16(Z, ACR + 2, sub=lambda i: RAW + 2 * i + 1)
    CBL = [16 + 4 * i for i in range(6)] + [AF1, AF1 + 4, AF1 + 8, XN + 8]
    WA = TWC
    def shadow1():
        for i in range(10):
            A(f"ds_read_b32 {v(CBL[i]+2)}, {v(vLYR)} offset:{128*i}")
        for i in range(10):
            A(f"s_waitcnt lgkmcnt({9-i})")
            A(f"v_fma_mix_f32 {v(CBL[i])}, {v(CBL[i]+2)}, s{s32f}, {v(X+2*i)} op_sel:[0,0,0] op_sel_hi:[1,0,0]")
            A(f"v_fma_mix_f32 {v(CBL[i]+1)}, {v(CBL[i]+2)}, s{s32f}, {v(X+2*i+1)} op_sel:[1,0,0] op_sel_hi:[1,0,0]")
    def shadow2():
        for i in range(10):
            A(f"v_add_u32 {v(WA+i)}, {i}, {v(vER)}")
            A(f"v_bfe_u32 {v(WA+i)}, {v(WA+i)}, 5, 1")
            A(f"v_lshl_add_u32 {v(WA+i)}, {v(WA+i)}, 4, {v(vE0)}")
    A("s_waitcnt lgkmcnt(0)")
    row_dft(XN, shadow1, shadow2)
    stamp(18)
    for i in range(10):
        A(f"v_cvt_pk_f16_f32 {v(ACR+i)}, {v(AC2R+i)}, {v(AC2I+i)}")
        A(f"ds_write_b32 {v(WA+i)}, {v(ACR+i)} offset:{16*i}")
    A("s_mov_b64 exec, 1")
    A(f"ds_write_b32 {v(vE0)}, {v(ACR)} offset:{660*16}")
    A("s_mov_b64 exec, -1")
    A("s_waitcnt lgkmcnt(0)")
    A("s_barrier")
    FRL = [40 + 4 * q for q in range(16)] + [160 + 4 * q for q in range(4)]
    def corr(k):
        A(f"v_mfma_f32_16x16x32_f16 {v(CBL[k],4)}, {v(CU,4)}, {v(FRL[2*k],4)}, {v(CBL[k],4)}")
        A(f"v_mfma_f32_16x16x32_f16 {v(CBL[k],4)}, {v(CV,4)}, {v(FRL[2*k+1],4)}, {v(CBL[k],4)}")
    for i in range(10):
        A(f"ds_read_b128 {v(FRL[2*i],4)}, {v(vDF)} offset:{528*i}")
        A(f"ds_read_b128 {v(FRL[2*i+1],4)}, {v(vDM)} offset:{528*(9-i)}")
        if i >= 6:
            A(f"s_waitcnt lgkmcnt(12)")
            corr(i - 6)
    for k in range(4, 10):
        A(f"s_waitcnt lgkmcnt({2*(9-k)})")
        corr(k)
    stamp(19)
    for row in range(2):
        Lnext = A.newlabel("Lown")
        A(f"s_cmp_lt_i32 s{76+row}, 0")
        A(f"s_cbranch_scc1 {Lnext}")
        A(f"s_lshr_b32 s62, s{76+row}, 1")
        A("s_mul_i32 s62, s62, 2560")
        A(f"s_add_u32 s62, s62, {LDS_NEW}")
        A(f"s_and_b32 s61, s{76+row}, 1")
        A("s_lshl_b32 s61, s61, 4")
        A("s_sub_u32 s61, 16, s61")
        A(f"v_lshl_add_u32 {v(240)}, v1, 2, s62")
        for i in range(10):
            A(f"ds_read_b32 {v(241+i)}, {v(240)} offset:{256*i}")
        A("s_waitcnt lgkmcnt(0)")
        for i in range(10):
            A(f"v_lshlrev_b32 {v(241+i)}, s61, {v(241+i)}")
            A(f"v_and_b32 {v(241+i)}, 0xffff0000, {v(241+i)}")
            A(f"v_sub_f32 {v(241+i)}, {v(241+i)}, {v(X+2*i+row)}")
            A(f"v_add_f32 {v(CBL[i]+row)}, {v(CBL[i]+row)}, {v(241+i)}")
        A.label(Lnext)
    for u in range(5):
        A(f"v_cvt_pk_bf16_f32 {v(PA+u)}, {v(CBL[2*u])}, {v(CBL[2*u+1])}")
        A(f"v_cvt_pk_bf16_f32 {v(PB+u)}, {v(CBL[2*u]+1)}, {v(CBL[2*u+1]+1)}")
    unpack_rows(X, PA, PB)
    ln_stats(X, ACR)
    ln_center_scale(X, XN, ACR, EXACT1)
    if EXACT1:
        pack_rows(XN, PA + 16, PB + 16)
        unpack_rows(XN, PA + 16, PB + 16)
    stamp(20)
    router_publish(1, ACI + 8, PA + 16, PB + 16)
    if not EXACT1:
        unpack_rows(XN, PA + 16, PB + 16)
    stamp(8, dbg=(14, 0))
    OB = 16
    A(f"s_mul_i32 s60, s{WV}, 2560")
    A(f"v_add_u32 {v(OB)}, s60, {v(vX)}")
    for i in range(10):
        A(f"v_pk_add_f32 {v(X+2*i,2)}, {v(X+2*i,2)}, {v(XN+2*i,2)}")
        A(f"v_cvt_pk_bf16_f32 {v(OB+2+i)}, {v(X+2*i)}, {v(X+2*i+1)}")
        A(f"ds_write_b16 {v(OB)}, {v(OB+2+i)} offset:{64*i}")
        A(f"ds_write_b16_d16_hi {v(OB)}, {v(OB+2+i)} offset:{1280+64*i}")
    A(f"v_lshlrev_b32 {v(OB+1)}, 4, v1")
    A(f"v_add_u32 {v(OB)}, s60, {v(OB+1)}")
    A("s_waitcnt lgkmcnt(0)")
    for k in range(3):
        A(f"ds_read_b128 {v(OB+12+4*k,4)}, {v(OB)} offset:{1024*k}")
    A(f"v_add_u32 {v(OB+2)}, {1024 + 63 * 1280}, {v(OB+1)}")
    A(f"v_add_u32 {v(OB+3)}, 1024, {v(OB+1)}")
    A(f"v_cmp_gt_u32 vcc, 16, v1")
    A(f"v_cndmask_b32 {v(OB+3)}, {v(OB+2)}, {v(OB+3)}, vcc")
    def out_stores():
        A("s_waitcnt lgkmcnt(0)")
        A(f"buffer_store_dwordx4 {v(OB+12,4)}, {v(OB+1)}, {SRD2}, s{sXO} offen sc1")
        A(f"buffer_store_dwordx4 {v(OB+16,4)}, {v(OB+3)}, {SRD2}, s{sXO} offen sc1")
        set_exec(0xffffffff)
        A(f"buffer_store_dwordx4 {v(OB+20,4)}, {v(OB+2)}, {SRD2}, s{sXO} offen offset:1024 sc1")
        A("s_mov_b64 exec, -1")
    OD = opt("outdelay", 0)
    if OD:
        A(f"s_lshl_b32 s73, s{sRHO}, 4")
        A(f"s_add_u32 s73, s73, {RG_OFF + NRR * RG_REP}")
        A(f"v_mov_b32 {v(ACR)}, 0")
        for _ in range(OD):
            A(f"buffer_load_dword {v(ACR+1)}, {v(ACR)}, {WS}, s73 offen sc1")
            A("s_waitcnt vmcnt(0)")
    out_stores()
    release_candidates(1, False)
    wait_sel(1, False)
    stamp(22)
    stamp(9)
    A("s_endpgm")

def roleC():
    A.label("L_roleC")
    B1, TC, TS, A2, DT, RAW, AR, AI, P, AC, O, T = 16, 32, 48, 64, 128, 160, 176, 192, 208, 224, 240, 248
    sC, sCME, sCREP, sK, sW0, sW1, sY, sLAST = 22, 23, 24, 25, 26, 27, 28, 29
    nonce_load(T + 4)
    if opt("prefc", 1) == 1:
        warm_weights(AC, C0, 29, PPART)
    A(f"s_sub_u32 s60, s2, {C0}")
    A("s_and_b32 s61, s60, 7")
    A("s_lshr_b32 s62, s60, 3")
    A("s_lshr_b32 s63, s62, 2")
    A("s_lshl_b32 s63, s63, 5")
    A("s_lshl_b32 s61, s61, 2")
    A("s_and_b32 s62, s62, 3")
    A(f"s_add_u32 s{sC}, s63, s61")
    A(f"s_add_u32 s{sC}, s{sC}, s62")
    A(f"s_and_b32 s{sCME}, s2, 15")
    A(f"s_cmp_eq_u32 s{sCME}, 0")
    A(f"s_cselect_b32 s{sLAST}, 10, 9")
    A(f"s_and_b32 s{sCREP}, s2, {NREP - 1}")
    A(f"s_lshl_b32 s{sCREP}, s{sCREP}, {FSH + 4}")
    n, g, t1, gs, arg, base, st = RAW, RAW + 1, RAW + 2, RAW + 3, RAW + 4, RAW + 5, RAW + 6
    ca, sa, cb, sb, x0, x1 = RAW + 7, RAW + 8, RAW + 9, RAW + 10, RAW + 11, RAW + 12
    A(f"v_and_b32 {v(n)}, 15, v1")
    A(f"v_lshrrev_b32 {v(g)}, 4, v1")
    A(f"s_and_b32 s70, s{WV}, 1")
    A(f"s_lshl_b32 s70, s70, 4")
    A(f"s_lshr_b32 s61, s{WV}, 1")
    A(f"v_lshrrev_b32 v2, 1, v0")
    A(f"v_and_b32 v6, 1, v0")
    A(f"s_lshl_b32 s62, s{sC}, 1")
    A(f"v_add_u32 v3, s62, v6")
    A(f"v_min_u32 v3, 320, v3")
    A(f"v_sub_u32 v4, 640, v3")
    A(f"v_cmp_ne_u32 vcc, 0, v3")
    A(f"v_cndmask_b32 v4, 0, v4, vcc")
    A(f"v_add_u32 v5, 7, v4")
    A(f"v_cmp_lt_u32 vcc, 320, v4")
    A(f"v_cndmask_b32 v4, v4, v5, vcc")
    A(f"v_mul_u32_u24 v5, {WROW}, v2")
    A(f"v_mul_u32_u24 v6, 8256, v6")
    A(f"v_lshl_add_u32 v6, v2, 4, v6")
    A(f"v_lshl_add_u32 v2, v3, 4, v5")
    A(f"v_lshl_add_u32 v3, v4, 4, v5")
    A(f"s_mul_i32 s63, s61, 8256")
    A(f"v_lshlrev_b32 v7, 10, {v(g)}")
    A(f"v_lshl_add_u32 v7, {v(n)}, 4, v7")
    A(f"v_add_u32 v7, s63, v7")
    A(f"s_add_u32 s62, s62, s61")
    A(f"s_lshl_b32 s62, s62, 12")
    A(f"v_lshl_add_u32 v8, {v(g)}, 6, {v(n)}")
    A(f"v_add_u32 v8, s70, v8")
    A(f"v_lshl_add_u32 v8, v8, 4, s62")
    A(f"s_lshr_b32 s62, s62, 6")
    A(f"s_add_u32 s62, s62, {YM_OFF + 48}")
    A(f"v_lshlrev_b32 v9, 4, {v(g)}")
    A(f"v_sub_u32 v9, s62, v9")
    def Y_stores(r0, r1, rm, sy, prep=None):
        A(f"buffer_store_dwordx4 {v(r0,4)}, v8, {WS}, {sy} offen sc1")
        A(f"buffer_store_dwordx4 {v(r1,4)}, v8, {WS}, {sy} offen offset:512 sc1")
        Lm = A.newlabel("Lym")
        A(f"s_bitcmp1_b32 s{WV}, 0")
        A(f"s_cbranch_scc1 {Lm}")
        if prep:
            prep()
        set_exec(0x0001000100010001)
        A(f"buffer_store_dwordx4 {v(rm,4)}, v9, {WS}, {sy} offen sc1")
        A("s_mov_b64 exec, -1")
        A.label(Lm)
    A(f"s_waitcnt vmcnt({nloads(PPART) if opt('prefc', 1) == 1 else 0})")
    nonce_take(T + 4)
    Li = A.newlabel("Lci")
    A(f"s_sub_u32 s60, s2, {C0}")
    A(f"s_lshl_b32 s61, s{WV}, 4")
    A(f"s_or_b32 s60, s60, s61")
    A(f"s_cmp_ge_u32 s60, 16")
    A(f"s_cbranch_scc1 {Li}")
    cnt_init(sCME, range(4), T)
    A.label(Li)
    for k in range(4):
        A(f"v_mov_b32 {v(O+k)}, -1")
    for lay in range(2 if opt("y2fill", 2) == 0 else 1):
        A(f"s_mov_b32 s63, {Y_OFF + lay * Y_SZ}")
        Y_stores(O, O, O, "s63")
    if opt("prefc", 1) == 2:
        warm_weights(AC, C0, 29, PPART)
    A(f"v_add_u32 {v(t1)}, s70, {v(n)}")
    A(f"v_cvt_f32_u32 {v(t1)}, {v(t1)}")
    A(f"v_cvt_f32_u32 {v(gs)}, {v(g)}")
    A(f"v_mul_f32 {v(st)}, {f32(1/32)}, {v(t1)}")
    A(f"v_mul_f32 {v(base)}, {v(st)}, {v(gs)}")
    A(f"v_mul_f32 {v(base)}, {f32(8.0)}, {v(base)}")
    for w in range(4):
        A(f"v_fmamk_f32 {v(arg)}, {v(st)}, {f32(2*w)}, {v(base)}")
        sincos(arg, ca, sa)
        A(f"v_add_f32 {v(arg)}, {v(arg)}, {v(st)}")
        sincos(arg, cb, sb)
        A(f"v_sub_f32 {v(x0)}, {v(ca)}, {v(sb)}")
        A(f"v_add_f32 {v(x1)}, {v(sa)}, {v(cb)}")
        A(f"v_cvt_pk_f16_f32 {v(B1+w)}, {v(x0)}, {v(x1)}")
        A(f"v_cvt_pk_f16_f32 {v(B1+4+w)}, -{v(x1)}, {v(x0)}")
        A(f"v_add_f32 {v(x0)}, {v(ca)}, {v(sb)}")
        A(f"v_sub_f32 {v(x1)}, {v(cb)}, {v(sa)}")
        A(f"v_cvt_pk_f16_f32 {v(B1+8+w)}, {v(x0)}, {v(x1)}")
        A(f"v_cvt_pk_f16_f32 {v(B1+12+w)}, {v(x1)}, -{v(x0)}")
    A(f"v_mul_f32 {v(st)}, {f32(1/2048)}, {v(t1)}")
    A(f"v_mul_f32 {v(base)}, {v(st)}, {v(gs)}")
    A(f"v_mul_f32 {v(base)}, 4.0, {v(base)}")
    for j in range(4):
        for i in range(4):
            A(f"v_fmamk_f32 {v(arg)}, {v(st)}, {f32(16*j+i)}, {v(base)}")
            sincos(arg, ca, sa)
            A(f"v_mul_f32 {v(TC+4*j+i)}, {f32(1/64)}, {v(ca)}")
            A(f"v_mul_f32 {v(TS+4*j+i)}, {f32(1/64)}, {v(sa)}")
    A(f"v_lshrrev_b32 {v(x0)}, 2, {v(n)}")
    A(f"v_lshlrev_b32 {v(x0)}, 4, {v(x0)}")
    A(f"v_and_b32 {v(x1)}, 3, {v(n)}")
    A(f"v_lshl_add_u32 {v(x0)}, {v(x1)}, 1, {v(x0)}")
    A(f"s_lshr_b32 s60, s70, 1")
    A(f"s_lshr_b32 s61, s{WV}, 1")
    A(f"s_add_u32 s60, s60, s61")
    A(f"v_add_u32 {v(x0)}, s60, {v(x0)}")
    A(f"v_cvt_f32_u32 {v(x0)}, {v(x0)}")
    A(f"v_mul_f32 {v(st)}, {f32(1/64)}, {v(x0)}")
    A(f"v_mul_f32 {v(base)}, {v(st)}, {v(gs)}")
    A(f"v_mul_f32 {v(base)}, 4.0, {v(base)}")
    A(f"s_lshl_b32 s60, s{WV}, 12")
    A(f"s_add_u32 s60, s60, 24576")
    A(f"v_lshl_add_u32 {v(x1)}, v1, 4, s60")
    for j in range(4):
        for i in range(4):
            A(f"v_fmamk_f32 {v(arg)}, {v(st)}, {f32(16*j+i)}, {v(base)}")
            sincos(arg, ca, sa)
            A(f"v_cvt_pk_f16_f32 {v(DT+4*j+i)}, {v(ca)}, {v(sa)}")
        A(f"ds_write_b128 {v(x1)}, {v(DT+4*j,4)} offset:{1024*j}")
    A(f"v_lshlrev_b32 {v(x1)}, 4, v1")
    A("s_waitcnt lgkmcnt(0)")
    A("s_barrier")
    for q in range(16):
        A(f"ds_read_b128 {v(A2+4*q,4)}, {v(x1)} offset:{24576 + 1024*q}")
        if q == 7:
            A("s_waitcnt lgkmcnt(0)")
    A("s_waitcnt vmcnt(0)")
    prio(3)
    A(f"s_mov_b32 s{sK}, 0")
    A(f"s_mov_b32 s{sW0}, {W_OFF}")
    A(f"s_mov_b32 s{sY}, {Y_OFF}")
    if opt("touch", 0) > 1:
        touch(T, W_OFF, 2 * W_SZ)
    stamp(4, dbg=(4, C0))
    A.label("L_Cloop")
    A(f"s_add_u32 s{sW1}, s{sW0}, {128 * WROW}")
    poll_flags(f"s{sK}", sCREP, T)
    stamp(0, f"s{sK}", dbg=(5, C0, 0))
    loop, done = A.newlabel("Lcw"), A.newlabel("Lcwd")
    A(f"s_add_u32 s30, s{sK}, 1")
    AWC = opt("awc", 1)
    if EARLY_C == 2:
        arrive_issue("s30", sCME, O, AWC)
    A(f"s_mov_b32 s62, {SPIN}")
    A.label(loop)
    A(f"buffer_load_dwordx4 {v(RAW,4)}, v2, {WS}, s{sW0} offen sc1")
    A(f"buffer_load_dwordx4 {v(RAW+4,4)}, v2, {WS}, s{sW1} offen sc1")
    A(f"buffer_load_dwordx4 {v(RAW+8,4)}, v3, {WS}, s{sW0} offen sc1")
    A(f"buffer_load_dwordx4 {v(RAW+12,4)}, v3, {WS}, s{sW1} offen sc1")
    for j in range(4):
        A(f"s_waitcnt vmcnt({3-j})")
        A(f"ds_write_b128 v6, {v(RAW+4*j,4)} offset:{(j>>1)*4096 + (j&1)*2048}")
    any_sentinel(range(RAW, RAW + 16), T, done)
    spin_tail(loop, 62, 2)
    A.label(done)
    if EARLY_C == 1:
        arrive_issue("s30", sCME, O, AWC)
    A("s_waitcnt lgkmcnt(0)")
    A("s_barrier")
    stamp(1, f"s{sK}")
    for j in range(4):
        A(f"ds_read_b128 {v(DT+8*j,4)}, v7 offset:{256*j}")
        A(f"ds_read_b128 {v(DT+8*j+4,4)}, v7 offset:{4096+256*j}")
    if EARLY_C == 2:
        arrive_finish("s30", sCME, f"s{sLAST}", O, 0, AWC)
    for j in range(4):
        A(f"s_waitcnt lgkmcnt({7-2*j})")
        A(f"v_mfma_f32_16x16x32_f16 {v(AR+4*j,4)}, {v(DT+8*j,4)}, {v(B1,4)}, 0")
        A(f"v_mfma_f32_16x16x32_f16 {v(AI+4*j,4)}, {v(DT+8*j,4)}, {v(B1+4,4)}, 0")
        A(f"s_waitcnt lgkmcnt({6-2*j})")
        A(f"v_mfma_f32_16x16x32_f16 {v(AR+4*j,4)}, {v(DT+8*j+4,4)}, {v(B1+8,4)}, {v(AR+4*j,4)}")
        A(f"v_mfma_f32_16x16x32_f16 {v(AI+4*j,4)}, {v(DT+8*j+4,4)}, {v(B1+12,4)}, {v(AI+4*j,4)}")
    A(f"s_add_u32 s{sK}, s{sK}, 1")
    for j in range(4):
        for i in (4 * j, 4 * j + 2):
            pr, pi = RAW + (i % 4) * 2, RAW + (i % 4) * 2 + 2
            A(f"v_pk_mul_f32 {v(pr,2)}, {v(AR+i,2)}, {v(TC+i,2)}")
            A(f"v_pk_mul_f32 {v(pi,2)}, {v(AI+i,2)}, {v(TC+i,2)}")
            A(f"v_pk_fma_f32 {v(pr,2)}, {v(AI+i,2)}, {v(TS+i,2)}, {v(pr,2)}")
            A(f"v_pk_fma_f32 {v(pi,2)}, {v(AR+i,2)}, {v(TS+i,2)}, {v(pi,2)} neg_lo:[1,0,0] neg_hi:[1,0,0]")
            A(f"v_cvt_pk_f16_f32 {v(P+i)}, {v(pr)}, {v(pi)}")
            A(f"v_cvt_pk_f16_f32 {v(P+i+1)}, {v(pr+1)}, {v(pi+1)}")
        for jm in range(4):
            c = "0" if j == 0 else v(AC + 4 * jm, 4)
            A(f"v_mfma_f32_16x16x32_f16 {v(AC+4*jm,4)}, {v(A2+16*jm+4*j,4)}, {v(P+4*j,4)}, {c}")
        if j == opt("cfin", 1) and EARLY_C == 1:
            arrive_finish("s30", sCME, f"s{sLAST}", O, 0, AWC)
    for k in range(8):
        A(f"v_cvt_pk_f16_f32 {v(O+k)}, {v(AC+2*k)}, {v(AC+2*k+1)}")
    def prep():
        for gq in range(4):
            A(f"v_readlane_b32 s{60+gq}, {v(O)}, {16*((gq+1)%4)}")
        for gq in range(4):
            A(f"v_writelane_b32 {v(P+4)}, s{60+gq}, {16*gq}")
        for k in range(3):
            A(f"v_alignbit_b32 {v(P+k)}, {v(O+k+1)}, {v(O+k)}, 16")
        A(f"v_alignbit_b32 {v(P+3)}, {v(P+4)}, {v(O+3)}, 16")
    Y_stores(O, O + 4, P, f"s{sY}", prep)
    stamp(3, f"s{sK}", dbg=(6, C0, 1))
    A(f"s_add_u32 s{sK}, s{sK}, 1")
    A(f"s_add_u32 s{sW0}, s{sW0}, {W_SZ}")
    A(f"s_add_u32 s{sY}, s{sY}, {Y_SZ}")
    A(f"s_cmp_ge_u32 s{sK}, 4")
    A("s_cbranch_scc1 L_end")
    A("s_waitcnt vmcnt(0)")
    if opt("y2fill", 2) == 2:
        for k in range(4):
            A(f"v_mov_b32 {v(O+k)}, -1")
        Y_stores(O, O, O, f"s{sY}")
        A("s_waitcnt vmcnt(0)")
    if opt("y2fill", 2) == 1:
        lp, dn = A.newlabel("Lcy"), A.newlabel("Lcy")
        A(f"s_mov_b32 s60, {RG_OFF}")
        A(f"v_mov_b32 {v(T)}, 0")
        A(f"s_mov_b32 s62, {SPIN}")
        A.label(lp)
        A(f"buffer_load_dword {v(T+1)}, {v(T)}, {WS}, s60 offen sc1")
        A("s_waitcnt vmcnt(0)")
        A(f"v_cmp_eq_u32 vcc, -1, {v(T+1)}")
        A(f"s_cbranch_vccz {dn}")
        spin_tail(lp, 62, 4)
        A.label(dn)
        for k in range(4):
            A(f"v_mov_b32 {v(O+k)}, -1")
        Y_stores(O, O, O, f"s{sY}")
        A("s_waitcnt vmcnt(0)")
    A("s_branch L_Cloop")

SORT8 = [(0, 1), (2, 3), (4, 5), (6, 7), (0, 2), (1, 3), (4, 6), (5, 7), (1, 2), (5, 6), (0, 4), (3, 7),
         (1, 5), (2, 6), (1, 4), (3, 6), (2, 4), (3, 5), (3, 4)]

def topk_setup(CODE, vG, vLW, vLR, LDS0):
    A(f"v_lshrrev_b32 {v(CODE)}, 6, v0")
    A(f"v_lshlrev_b32 {v(CODE)}, 9, {v(CODE)}")
    A(f"v_add_u32 {v(CODE)}, {v(CODE)}, v1")
    A(f"v_sub_u32 {v(CODE)}, 2047, {v(CODE)}")
    for i in range(1, 8):
        A(f"v_subrev_u32 {v(CODE+i)}, {64*i}, {v(CODE)}")
    A(f"v_lshlrev_b32 {v(vG)}, {RSH}, v0")
    A(f"v_lshrrev_b32 {v(vLW)}, 4, v0")
    A(f"v_lshlrev_b32 {v(vLW)}, 5, {v(vLW)}")
    A(f"v_add_u32 {v(vLW)}, {LDS0}, {v(vLW)}")
    A(f"v_and_b32 {v(vLR)}, 15, v1")
    A(f"v_lshlrev_b32 {v(vLR)}, 5, {v(vLR)}")
    A(f"v_add_u32 {v(vLR)}, {LDS0}, {v(vLR)}")

def topk(K, CODE, vG, vLW, vLR, sRG, blk, dbg, mid=None):
    G = K + 16
    prio(0)
    for gate in ((True, False) if GATE else (False,)):
        loop, done = A.newlabel("Lrg"), A.newlabel("Lrgd")
        A(f"s_mov_b32 s62, {SPIN}")
        if gate:
            set_exec(0xff << 56)
        A.label(loop)
        A(f"buffer_load_dwordx4 {v(G,4)}, {v(vG)}, {WS}, s{sRG} offen sc1")
        A("s_waitcnt vmcnt(0)")
        any_sentinel(range(G, G + 4), K, done)
        spin_tail(loop, 62, opt("rsleep", 1))
        A.label(done)
        if gate:
            A("s_mov_b64 exec, -1")
    prio(3)
    stamp(3, "s27", dbg=dbg)
    A("s_mov_b32 s63, 0xffff0000")
    cur = list(range(K, K + 8))
    for k in range(4):
        A(f"v_lshl_or_b32 {v(cur[2*k])}, {v(G+k)}, 16, {v(CODE+2*k)}")
        A(f"v_and_or_b32 {v(cur[2*k+1])}, {v(G+k)}, s63, {v(CODE+2*k+1)}")
    free = list(range(K + 8, K + 24))

    def ce(i, j, dst=None):
        if dst is None:
            t = free.pop(0)
            A(f"v_max_u32 {v(t)}, {v(cur[i])}, {v(cur[j])}")
            A(f"v_min_u32 {v(cur[j])}, {v(cur[i])}, {v(cur[j])}")
            free.append(cur[i])
            cur[i] = t
        else:
            A(f"v_max_u32 {v(dst+i)}, {v(cur[i])}, {v(cur[j])}")
            A(f"v_min_u32 {v(dst+j)}, {v(cur[i])}, {v(cur[j])}")

    for (i, j) in SORT8:
        ce(i, j)
    pats = ["quad_perm:[1,0,3,2]", "quad_perm:[2,3,0,1]", "row_half_mirror", "row_mirror"]
    for rnd in range(2):
        for li, pat in enumerate(pats):
            new = [free.pop(0) for _ in range(8)]
            for i in (7, 6, 5, 4, 3, 2, 1, 0) if False else range(8):
                A(f"v_max_u32_dpp {v(new[i])}, {v(cur[7-i])}, {v(cur[i])} {pat} row_mask:0xf bank_mask:0xf")
            free.extend(cur)
            cur = new
            if rnd == 1 and li == 3:
                return cur
            for i in range(4):
                ce(i, i + 4)
            for i in (0, 1, 4, 5):
                ce(i, i + 2)
            if rnd == 0 and li == 3:
                for i in (0, 2, 4, 6):
                    ce(i, i + 1, dst=blk)
                set_exec(0x0001000100010001)
                A(f"ds_write_b128 {v(vLW)}, {v(blk,4)}")
                A(f"ds_write_b128 {v(vLW)}, {v(blk+4,4)} offset:16")
                A("s_mov_b64 exec, -1")
                A("s_waitcnt lgkmcnt(0)")
                A("s_barrier")
                A(f"ds_read_b128 {v(K,4)}, {v(vLR)}")
                A(f"ds_read_b128 {v(K+4,4)}, {v(vLR)} offset:16")
                A("s_waitcnt lgkmcnt(0)")
                if mid:
                    mid(K)
                cur = list(range(K, K + 8))
                free = list(range(K + 8, K + 24))
            else:
                for i in (6, 4, 2, 0):
                    ce(i, i + 1)

def load_weight_frags(jobs):
    total = sum(8 * j[3] for j in jobs)
    for (srdn, voff_of, soff_of, nsteps, dst, raw, vfull) in jobs:
        for k in range(nsteps):
            for q in range(8):
                d = raw + 8 * k + q
                if vfull is not None and k == vfull:
                    A(f"v_add_u32 {v(d)}, {soff_of(k, q)}, {v(voff_of(k))}")
                    A(f"buffer_load_dword {v(d)}, {v(d)}, {srdn}, 0 offen")
                    continue
                A(f"s_mov_b32 s60, {soff_of(k, q)}")
                A(f"buffer_load_dword {v(d)}, {v(voff_of(k))}, {srdn}, s60 offen")
    done = 0
    for (srdn, voff_of, soff_of, nsteps, dst, raw, vfull) in jobs:
        for k in range(nsteps):
            done += 8
            A(f"s_waitcnt vmcnt({min(63, total - done)})")
            r = raw + 8 * k
            for u in range(4):
                A(f"v_perm_b32 {v(dst + 8*k + u)}, {v(r+2*u+1)}, {v(r+2*u)}, s58")
                A(f"v_perm_b32 {v(dst + 8*k + 4 + u)}, {v(r+2*u+1)}, {v(r+2*u)}, s59")

def roleFa():
    A.label("L_roleFa")
    GW, UW, RAW, AFR, ACC, K, CODE = 16, 56, 96, 136, 156, 176, 200
    vG, vLW, vLR, vW1, vW2, vLP1, vLP2, vPW, vPR, vH = 2, 3, 4, 5, 6, 7, 8, 9, 10, 11
    sKAP, sRG, sT, sH, sL = 22, 23, 25, 26, 27
    T = 208
    nonce_load(T + 8)
    if opt("prefc", 1) == 1:
        warm_weights(T + 12, C0, 29, PPART)
    srd(8, 46, 2211840)
    srd(12, 48, 2211840)
    A(f"s_sub_u32 s60, s2, {FA0 - 1}")
    A(f"s_and_b32 s61, s60, 7")
    A(f"s_lshr_b32 s60, s60, 3")
    A(f"s_mul_i32 s{sKAP}, s61, 7")
    A(f"s_add_u32 s{sKAP}, s{sKAP}, s60")
    A(f"s_sub_u32 s{sKAP}, s{sKAP}, 1")
    A("s_mov_b32 s58, 0x05040100")
    A("s_mov_b32 s59, 0x07060302")
    n, g = T, T + 1
    A(f"v_and_b32 {v(n)}, 15, v1")
    A(f"v_lshrrev_b32 {v(g)}, 4, v1")
    A(f"s_lshr_b32 s60, s{WV}, 1")
    A(f"s_mul_i32 s60, s60, 320")
    A(f"s_and_b32 s61, s{WV}, 1")
    A(f"s_lshl_b32 s61, s61, 4")
    A(f"s_add_u32 s60, s60, s61")
    A(f"s_lshl_b32 s61, s{sKAP}, 6")
    A(f"v_lshl_add_u32 {v(T+2)}, {v(n)}, 2, s61")
    A(f"v_add_u32 {v(vW1)}, s60, {v(g)}")
    A(f"v_mul_u32_u24 {v(vW1)}, 3456, {v(vW1)}")
    A(f"v_add_u32 {v(vW1)}, {v(vW1)}, {v(T+2)}")
    A(f"v_lshl_add_u32 {v(vW2)}, {v(g)}, 2, s60")
    A(f"v_mul_u32_u24 {v(vW2)}, 3456, {v(vW2)}")
    A(f"v_add_u32 {v(vW2)}, {v(vW2)}, {v(T+2)}")
    voff = lambda k: vW1 if k < 4 else vW2
    soff = lambda k, q: ((32 * q + 4 * k) if k < 4 else (256 + 32 * (q & 1) + (q >> 1))) * 3456
    A("s_waitcnt vmcnt(0)")
    nonce_take(T + 8)
    A(f"s_and_b32 s29, s2, {NREP - 1}")
    A(f"s_lshl_b32 s29, s29, {FSH + 4}")
    if opt("prefc", 1) == 2:
        warm_weights(T + 12, C0, 29, PPART)
    poll_flags(0, 29, T + 4, opt("fsleep", 8))
    if opt("coop", 4):
        warm_coop(T + 12)
    srd(16, 44, 1280)
    A(f"v_and_b32 {v(T+2)}, 31, v1")
    A(f"v_lshrrev_b32 {v(T+3)}, 5, v1")
    A(f"v_mul_u32_u24 {v(T+3)}, 640, {v(T+3)}")
    A(f"v_lshl_add_u32 {v(T+2)}, {v(T+2)}, 1, {v(T+3)}")
    for i in range(10):
        A(f"v_mov_b32 {v(K+i)}, 0")
        A(f"buffer_load_short_d16_hi {v(K+i)}, {v(T+2)}, {SRD3}, 0 offen offset:{64*i}")
    A("s_waitcnt vmcnt(0)")
    tau_of(K, T + 2, 1.0 + 1.0 / 32)
    A(f"v_or_b32 {v(T+2)}, 0x80000000, {v(T+2)}")
    A(f"v_readfirstlane_b32 s36, {v(T+2)}")
    if opt("wide", 0):
        A(f"s_lshr_b32 s60, s{WV}, 1")
        A(f"s_mul_i32 s60, s60, 320")
        A(f"s_and_b32 s61, s{WV}, 1")
        A(f"s_lshl_b32 s61, s61, 4")
        A(f"s_add_u32 s60, s60, s61")
        A(f"v_lshrrev_b32 {v(T+4)}, 2, v1")
        A(f"v_add_u32 {v(T+4)}, s60, {v(T+4)}")
        A(f"v_mul_u32_u24 {v(T+4)}, 3456, {v(T+4)}")
        A(f"v_and_b32 {v(T+5)}, 3, v1")
        A(f"s_lshl_b32 s61, s{sKAP}, 6")
        A(f"v_lshl_add_u32 {v(T+5)}, {v(T+5)}, 4, s61")
        A(f"v_add_u32 {v(T+4)}, {v(T+4)}, {v(T+5)}")
        for j in range(10):
            A(f"s_mov_b32 s60, {32 * j * 3456}")
            A(f"buffer_load_dwordx4 {v(T+12,4)}, {v(T+4)}, {SRD1}, s60 offen")
            A(f"buffer_load_dwordx4 {v(T+12,4)}, {v(T+4)}, {SRD2}, s60 offen")
        if opt("wide", 0) == 2:
            A("s_waitcnt vmcnt(0)")
    load_weight_frags([(SRD1, voff, soff, 5, GW, RAW, None), (SRD2, voff, soff, 5, UW, RAW + 40, None)])
    topk_setup(CODE, vG, vLW, vLR, 24576)
    A(f"v_and_b32 {v(T+2)}, 7, v1")
    A(f"s_lshl_b32 s60, s{WV}, 8")
    A(f"v_lshl_add_u32 {v(vLP1)}, {v(T+2)}, 4, s60")
    A(f"s_lshl_b32 s60, s{WV}, 6")
    A(f"s_add_u32 s60, s60, 1024")
    A(f"v_lshl_add_u32 {v(vLP2)}, {v(T+2)}, 4, s60")
    A(f"s_mul_i32 s60, s{WV}, 2688")
    A(f"s_add_u32 s60, s60, 12288")
    A(f"v_lshrrev_b32 {v(T+3)}, 3, v1")
    A(f"v_mul_u32_u24 v13, 336, {v(T+3)}")
    A(f"v_lshl_add_u32 v13, {v(T+2)}, 4, v13")
    A(f"v_add_u32 v13, s60, v13")
    A(f"v_mul_u32_u24 v14, 336, {v(T+2)}")
    A(f"v_lshl_add_u32 v14, {v(g)}, 4, v14")
    A(f"v_add_u32 v14, s60, v14")
    A(f"s_lshl_b32 s60, s{WV}, 8")
    A(f"v_lshl_add_u32 v15, {v(g)}, 7, s60")
    A(f"s_lshl_b32 s60, s{WV}, 6")
    A(f"s_add_u32 s60, s60, 1024")
    A(f"v_mov_b32 {v(T+4)}, s60")
    A(f"v_cmp_gt_u32 vcc, 2, {v(g)}")
    A(f"v_cndmask_b32 v15, {v(T+4)}, v15, vcc")
    A(f"s_mul_i32 s60, s{WV}, 2560")
    A(f"v_mul_u32_u24 {v(vPW)}, 640, {v(g)}")
    A(f"v_lshl_add_u32 {v(vPW)}, {v(n)}, 3, {v(vPW)}")
    A(f"v_add_u32 {v(vPW)}, s60, {v(vPW)}")
    A(f"v_add_u32 {v(12)}, 1280, {v(vPW)}")
    A(f"v_mul_u32_u24 {v(vPR)}, 40, {v(T+3)}")
    A(f"s_lshl_b32 s60, s{WV}, 3")
    A(f"v_add3_u32 {v(vPR)}, {v(vPR)}, {v(T+2)}, s60")
    A(f"v_lshlrev_b32 {v(vPR)}, 2, {v(vPR)}")
    A(f"v_lshrrev_b32 {v(T+2)}, 1, v0")
    A(f"v_lshlrev_b32 {v(vH)}, 2, {v(T+2)}")
    A(f"s_lshl_b32 s{sH}, s{sKAP}, 9")
    A(f"s_add_u32 s{sH}, s{sH}, {H_OFF}")
    A(f"s_and_b32 s{sRG}, s2, {NRR - 1}")
    A(f"s_lshl_b32 s{sRG}, s{sRG}, {RSH + 8}")
    A(f"s_add_u32 s{sRG}, s{sRG}, {RG_OFF}")
    A(f"s_mov_b32 s{sT}, {T_OFF}")
    A(f"s_mov_b32 s28, {T_REC}")
    for (r, val) in ((30, 0x00FFFF00), (31, 0x00FFFF00), (32, 0xFF00FF00), (33, 0x00FF00FF)):
        A(f"s_mov_b32 s{r}, 0x{val:x}")
    A(f"s_mov_b32 s{sL}, 0")
    touch(T + 2, T_OFF, 2 * T_SZ)
    stamp(0, dbg=(9, FA0))
    poll_flags(1, 29, T, 8)
    prio(3)
    A.label("L_FaLoop")
    def warm_rows(K_):
        for e in range(opt("warm", 0)):
            A(f"v_and_b32 {v(T+8+e)}, 0x7ff, {v(K_+e)}")
            A(f"v_sub_u32 {v(T+8+e)}, 2047, {v(T+8+e)}")
            A(f"v_mad_u32_u24 {v(T+8+e)}, {v(T+8+e)}, s28, v15")
            A(f"buffer_load_dword {v(T+8+e)}, {v(T+8+e)}, {WS}, s{sT} offen sc1")
    c = topk(K, CODE, vG, vLW, vLR, sRG, T, (11, FA0, 0), warm_rows)
    stamp(4, "s27")
    A(f"v_cndmask_b32 {v(T)}, {v(c[0])}, {v(c[2])}, s[30:31]")
    A(f"v_cndmask_b32 {v(T+1)}, {v(c[4])}, {v(c[6])}, s[30:31]")
    A(f"v_cndmask_b32 {v(T)}, {v(T)}, {v(T+1)}, s[32:33]")
    A(f"v_and_b32 {v(T)}, 0x7ff, {v(T)}")
    A(f"v_sub_u32 {v(T)}, 2047, {v(T)}")
    A(f"v_mad_u32_u24 {v(T+1)}, {v(T)}, s28, {v(vLP1)}")
    A(f"v_mad_u32_u24 {v(T+2)}, {v(T)}, s28, {v(vLP2)}")
    loop, done = A.newlabel("Lga"), A.newlabel("Lgad")
    A(f"v_min3_u32 {v(T+3)}, {v(c[0])}, {v(c[1])}, {v(c[2])}")
    A(f"v_min3_u32 {v(T+4)}, {v(c[3])}, {v(c[4])}, {v(c[5])}")
    A(f"v_min3_u32 {v(T+3)}, {v(T+3)}, {v(c[6])}, {v(c[7])}")
    A(f"v_min_u32 {v(T+3)}, {v(T+3)}, {v(T+4)}")
    A(f"v_and_b32 {v(T+3)}, 0xffff0000, {v(T+3)}")
    A(f"v_cmp_gt_u32 vcc, s36, {v(T+3)}")
    A(f"s_cbranch_vccz {done}")
    A(f"v_mul_u32_u24 {v(T+3)}, s28, {v(T)}")
    A(f"s_add_u32 s61, s{NONCE}, 6")
    A(f"s_add_u32 s61, s61, s{sL}")
    A(f"s_mov_b32 s62, {SPIN}")
    A.label(loop)
    A(f"buffer_load_dword {v(T+4)}, {v(T+3)}, {WS}, s{sT} offen offset:2568 sc1")
    A("s_waitcnt vmcnt(0)")
    A(f"v_cmp_ne_u32 vcc, s61, {v(T+4)}")
    A(f"s_cbranch_vccz {done}")
    spin_tail(loop, 62, 2)
    A.label(done)
    GR = K
    A(f"buffer_load_dwordx4 {v(GR,4)}, {v(T+1)}, {WS}, s{sT} offen sc1")
    A(f"buffer_load_dwordx4 {v(GR+4,4)}, {v(T+1)}, {WS}, s{sT} offen offset:128 sc1")
    set_exec(0x0F0F0F0F0F0F0F0F)
    A(f"buffer_load_dwordx4 {v(GR+8,4)}, {v(T+2)}, {WS}, s{sT} offen sc1")
    A("s_mov_b64 exec, -1")
    A("s_waitcnt vmcnt(2)")
    A(f"ds_write_b128 v13, {v(GR,4)}")
    A("s_waitcnt vmcnt(1)")
    A(f"ds_write_b128 v13, {v(GR+4,4)} offset:128")
    A("s_waitcnt vmcnt(0)")
    set_exec(0x0F0F0F0F0F0F0F0F)
    A(f"ds_write_b128 v13, {v(GR+8,4)} offset:256")
    A("s_mov_b64 exec, -1")
    for ks in range(5):
        A(f"ds_read_b128 {v(AFR+4*ks,4)}, v14 offset:{64*ks}")
    for ks in range(5):
        A(f"s_waitcnt lgkmcnt({4-ks})")
        for a_, wb in enumerate((GW, GW + 4, UW, UW + 4)):
            cc = "0" if ks == 0 else v(ACC + 4 * a_, 4)
            A(f"v_mfma_f32_16x16x32_bf16 {v(ACC+4*a_,4)}, {v(AFR+4*ks,4)}, {v(wb+8*ks,4)}, {cc}")
    stamp(5, "s27")
    set_exec(0xffffffff)
    for mat in range(2):
        for r in range(4):
            A(f"ds_write2_b32 {v(vPW if mat == 0 else 12)}, {v(ACC+8*mat+r)}, {v(ACC+8*mat+4+r)} offset0:{40*r} offset1:{40*r+1}")
    A("s_mov_b64 exec, -1")
    A("s_waitcnt lgkmcnt(0)")
    A("s_barrier")
    for w in range(4):
        A(f"ds_read2st64_b32 {v(T+2*w,2)}, {v(vPR)} offset0:{10*w} offset1:{10*w+5}")
    A("s_waitcnt lgkmcnt(2)")
    A(f"v_pk_add_f32 {v(T,2)}, {v(T,2)}, {v(T+2,2)}")
    A("s_waitcnt lgkmcnt(0)")
    A(f"v_pk_add_f32 {v(T+4,2)}, {v(T+4,2)}, {v(T+6,2)}")
    A(f"v_pk_add_f32 {v(T,2)}, {v(T,2)}, {v(T+4,2)}")
    rnd_pair(T, T + 1, T + 2)
    A(f"v_mul_f32 {v(T+2)}, {f32(-1.4426950408889634)}, {v(T)}")
    A(f"v_exp_f32 {v(T+2)}, {v(T+2)}")
    A(f"v_add_f32 {v(T+2)}, 1.0, {v(T+2)}")
    A(f"v_rcp_f32 {v(T+2)}, {v(T+2)}")
    A(f"v_mul_f32 {v(T)}, {v(T)}, {v(T+2)}")
    A(f"v_cvt_pk_bf16_f32 {v(T)}, {v(T)}, {v(T)}")
    A(f"v_and_b32 {v(T)}, 0xffff0000, {v(T)}")
    A(f"v_mul_f32 {v(T)}, {v(T)}, {v(T+1)}")
    A(f"v_mov_b32_dpp {v(T+1)}, {v(T)} quad_perm:[1,0,3,2] row_mask:0xf bank_mask:0xf")
    A(f"v_cvt_pk_bf16_f32 {v(T)}, {v(T)}, {v(T+1)}")
    A(f"v_min_u32 {v(T)}, -2, {v(T)}")
    set_exec(0x5555555555555555)
    A(f"buffer_store_dword {v(T)}, {v(vH)}, {WS}, s{sH} offen sc1")
    A("s_mov_b64 exec, -1")
    if opt("hintsrc", 0) == 1:
        Lh3 = A.newlabel("Lfa")
        A(f"s_or_b32 s60, s{sKAP}, s{WV}")
        A(f"s_or_b32 s60, s60, s{sL}")
        A(f"s_cmp_lg_u32 s60, 0")
        A(f"s_cbranch_scc1 {Lh3}")
        A(f"v_mov_b32 {v(T+4)}, 0")
        A(f"s_mov_b32 s60, {X2_OFF + SEL_OFF + 128}")
        A("s_mov_b64 exec, 1")
        A(f"buffer_store_dword {v(T+4)}, {v(T+4)}, {WS}, s60 offen sc1")
        A("s_mov_b64 exec, -1")
        A.label(Lh3)
    stamp(6, "s27")
    A(f"s_add_u32 s{sH}, s{sH}, {2 * HREP}")
    A(f"s_add_u32 s{sRG}, s{sRG}, {NRR * RG_REP}")
    A(f"s_add_u32 s{sT}, s{sT}, {T_SZ}")
    A(f"s_add_u32 s{sL}, s{sL}, 1")
    A(f"s_cmp_lt_u32 s{sL}, 2")
    A("s_cbranch_scc1 L_FaLoop")
    A("s_endpgm")

def roleFb():
    A.label("L_roleFb")
    DW, HF, ACC, K, CODE, T = 16, 128, 184, 192, 216, 224
    RAW = 128
    vG, vLW, vLR, vW1, vHF, vPW, vPR, vE, vX2, vO = 2, 3, 4, 5, 6, 7, 8, 9, 10, 11
    sB, sRG, sT, sH, sL, sREP2, sES, sEC = 22, 23, 25, 26, 27, 29, 30, 31
    nonce_load(T + 8)
    if opt("prefc", 1) == 1:
        warm_weights(T + 16, C0, 29, PPART)
    srd(8, 50, 2211840)
    srd(12, 52, 2621440)
    A(f"s_sub_u32 s60, s2, {FB0 - 7}")
    A(f"s_and_b32 s61, s60, 7")
    A(f"s_lshr_b32 s60, s60, 3")
    fb_start("s61", f"s{sB}")
    A(f"s_add_u32 s{sB}, s{sB}, s60")
    A(f"s_cmp_eq_u32 s61, 7")
    A(f"s_cselect_b32 s60, 0, 1")
    A(f"s_sub_u32 s{sB}, s{sB}, s60")
    A("s_mov_b32 s58, 0x05040100")
    A("s_mov_b32 s59, 0x07060302")
    n, g = T, T + 1
    A(f"v_and_b32 {v(n)}, 15, v1")
    A(f"v_lshrrev_b32 {v(g)}, 4, v1")
    A(f"s_lshl_b32 s60, s{WV}, 5")
    A(f"v_lshl_add_u32 {v(vW1)}, {v(g)}, 3, s60")
    A(f"v_mul_u32_u24 {v(vW1)}, 1280, {v(vW1)}")
    A(f"s_lshl_b32 s61, s{sB}, 6")
    A(f"v_lshl_add_u32 {v(T+2)}, {v(n)}, 2, s61")
    A(f"v_add_u32 {v(vW1)}, {v(vW1)}, {v(T+2)}")
    A(f"v_mov_b32 v12, {v(n)}")
    A(f"v_mov_b32 v13, {v(g)}")
    n, g = 12, 13
    A("s_waitcnt vmcnt(0)")
    nonce_take(T + 8)
    A(f"s_and_b32 s{sREP2}, s2, {NREP - 1}")
    A(f"s_lshl_b32 s{sREP2}, s{sREP2}, {FSH + 4}")
    if opt("prefc", 1) == 2:
        warm_weights(T + 16, C0, 29, PPART)
    poll_flags(0, sREP2, T + 4, opt("fsleep", 8))
    if opt("coop", 4):
        warm_coop(T + 16)
    if opt("wide", 0):
        A(f"s_lshl_b32 s60, s{WV}, 5")
        A(f"v_lshrrev_b32 {v(T+20)}, 2, v1")
        A(f"v_add_u32 {v(T+20)}, s60, {v(T+20)}")
        A(f"v_mul_u32_u24 {v(T+20)}, 1280, {v(T+20)}")
        A(f"v_and_b32 {v(T+21)}, 3, v1")
        A(f"s_lshl_b32 s61, s{sB}, 6")
        A(f"v_lshl_add_u32 {v(T+21)}, {v(T+21)}, 4, s61")
        A(f"v_add_u32 {v(T+20)}, {v(T+20)}, {v(T+21)}")
        for k in range(14):
            for hh in range(2):
                A(f"v_add_u32 {v(T+21)}, {(128 * k + 16 * hh) * 1280}, {v(T+20)}")
                A(f"buffer_load_dwordx4 {v(T+24,4)}, {v(T+21)}, {SRD1}, 0 offen")
        if opt("wide", 0) == 2:
            A("s_waitcnt vmcnt(0)")
    load_weight_frags([(SRD1, lambda k: vW1, lambda k, q: (128 * k + q) * 1280, 14, DW, RAW, 13)])
    topk_setup(CODE, vG, vLW, vLR, 8192)
    A(f"v_and_b32 {v(vHF)}, 7, v1")
    A(f"v_lshlrev_b32 {v(vHF)}, 4, {v(vHF)}")
    A(f"v_lshl_add_u32 {v(vHF)}, {v(g)}, 7, {v(vHF)}")
    A(f"s_lshl_b32 s60, s{WV}, 9")
    A(f"v_add_u32 {v(vHF)}, s60, {v(vHF)}")
    A(f"s_mov_b32 s{sH}, {H_OFF}")
    A(f"s_lshl_b32 s60, s{WV}, 10")
    A(f"v_lshlrev_b32 {v(vPW)}, 9, {v(g)}")
    A(f"v_lshl_add_u32 {v(vPW)}, {v(n)}, 3, {v(vPW)}")
    A(f"v_add_u32 {v(vPW)}, s60, {v(vPW)}")
    A(f"v_lshlrev_b32 {v(vPR)}, 2, v0")
    A(f"s_cmp_ge_u32 s{sB}, 10")
    A(f"s_cselect_b32 s60, 1, 0")
    A(f"s_mul_i32 s61, s60, 10")
    A(f"s_sub_u32 s61, s{sB}, s61")
    A(f"s_lshl_b32 s62, s60, 9")
    A(f"s_lshl_b32 s63, s61, 1")
    A(f"s_add_u32 s62, s62, s63")
    A(f"s_lshl_b32 s64, s60, 7")
    A(f"s_add_u32 s64, s64, s63")
    A(f"s_add_u32 s64, s64, {1024 - 16}")
    A(f"s_cmp_lt_u32 s61, 8")
    A(f"s_cselect_b32 s{sEC}, s62, s64")
    A(f"s_cselect_b32 s{sES}, 16, 4")
    A(f"v_and_b32 {v(T+2)}, 31, v1")
    A(f"v_mul_u32_u24 {v(vE)}, s{sES}, {v(T+2)}")
    A(f"s_and_b32 s32, s{sEC}, 2")
    A(f"s_lshl_b32 s32, s32, 3")
    A(f"s_sub_u32 s32, 16, s32")
    A(f"s_and_b32 s{sEC}, s{sEC}, -4")
    A(f"v_add_u32 {v(vE)}, s{sEC}, {v(vE)}")

    A(f"s_lshl_b32 s60, s{sB}, 2")
    A(f"s_add_u32 s60, s60, s{WV}")
    A(f"s_lshl_b32 s60, s60, 8")
    A(f"v_lshl_add_u32 {v(vX2)}, {v(T+2)}, 3, s60")
    A(f"v_lshrrev_b32 {v(T+3)}, 5, v1")
    A(f"v_lshl_add_u32 {v(vX2)}, {v(T+3)}, 2, {v(vX2)}")
    A(f"s_lshl_b32 s60, s{sB}, 6")
    A(f"v_lshl_add_u32 {v(vO)}, {v(T+2)}, 1, s60")
    A(f"s_and_b32 s{sRG}, s2, {NRR - 1}")
    A(f"s_lshl_b32 s{sRG}, s{sRG}, {RSH + 8}")
    A(f"s_add_u32 s{sRG}, s{sRG}, {RG_OFF}")
    A(f"s_mov_b32 s{sT}, {T_OFF}")
    A(f"s_mov_b32 s28, {T_REC}")
    A(f"s_mov_b32 s{sL}, 0")
    touch(T + 2, T_OFF, 2 * T_SZ)
    stamp(0, dbg=(10, FB0))
    poll_flags(1, sREP2, T, 8)
    prio(3)
    A.label("L_FbLoop")
    c = topk(K, CODE, vG, vLW, vLR, sRG, T, None)
    stamp(4, "s27")
    for j in range(8):
        A(f"v_readfirstlane_b32 s{80+j}, {v(c[j])}")
    A("s_mov_b32 s70, s80")
    A("s_mov_b32 s71, s81")
    for w in range(1, 4):
        A(f"s_cmp_eq_u32 s{WV}, {w}")
        A(f"s_cselect_b32 s70, s{80+2*w}, s70")
        A(f"s_cselect_b32 s71, s{81+2*w}, s71")
    KEY, ROW, XV, XNV, SG, ST = T, T + 1, T + 2, T + 3, T + 4, T + 8
    Ls = A.newlabel("Lfb")
    A(f"s_or_b32 s60, s{sB}, s{WV}")
    A(f"s_cmp_lg_u32 s60, 0")
    A(f"s_cbranch_scc1 {Ls}")
    A(f"v_mov_b32 {v(T+6)}, s80")
    for j in range(1, 8):
        A(f"v_writelane_b32 {v(T+6)}, s{80+j}, {j}")
    A(f"v_and_b32 {v(T+6)}, 0x7ff, {v(T+6)}")
    A(f"v_sub_u32 {v(T+6)}, 2047, {v(T+6)}")
    A(f"v_lshlrev_b32 {v(T+7)}, 2, v1")
    A(f"s_lshl_b32 s60, s{sL}, 8")
    A(f"s_add_u32 s60, s60, {X2_OFF + SEL_OFF}")
    A("s_mov_b64 exec, 0xff")
    A(f"buffer_store_dword {v(T+6)}, {v(T+7)}, {WS}, s60 offen sc1")
    A("s_mov_b64 exec, -1")
    A.label(Ls)
    A(f"v_mov_b32 {v(KEY)}, s71")
    A(f"v_mov_b32 {v(ROW)}, s70")
    A(f"v_cmp_gt_u32 vcc, 32, v1")
    A(f"v_cndmask_b32 {v(KEY)}, {v(KEY)}, {v(ROW)}, vcc")
    A(f"v_and_b32 {v(ROW)}, 0x7ff, {v(KEY)}")
    A(f"v_sub_u32 {v(ROW)}, 2047, {v(ROW)}")
    A(f"v_mad_u32_u24 {v(T+5)}, {v(ROW)}, s28, {v(vE)}")
    prio(0)
    loop, done = A.newlabel("Lst2"), A.newlabel("Lst2d")
    A(f"v_mul_u32_u24 {v(T+6)}, s28, {v(ROW)}")
    A(f"s_add_u32 s61, s{NONCE}, 6")
    A(f"s_add_u32 s61, s61, s{sL}")
    A(f"s_mov_b32 s62, {SPIN}")
    A.label(loop)
    A(f"buffer_load_dwordx4 {v(ST,4)}, {v(T+6)}, {WS}, s{sT} offen offset:2560 sc1")
    A("s_waitcnt vmcnt(0)")
    A(f"v_cmp_ne_u32 vcc, s61, {v(ST+2)}")
    A(f"s_cbranch_vccz {done}")
    spin_tail(loop, 62, 2)
    A.label(done)
    A(f"buffer_load_dword {v(XNV)}, {v(T+5)}, {WS}, s{sT} offen sc1")
    A(f"buffer_load_dword {v(XV)}, {v(T+5)}, {WS}, s{sT} offen offset:1280 sc1")
    A(f"v_ashrrev_i32 {v(SG)}, 31, {v(KEY)}")
    A(f"v_not_b32 {v(SG)}, {v(SG)}")
    A(f"v_or_b32 {v(SG)}, 0x80000000, {v(SG)}")
    A(f"v_xor_b32 {v(SG)}, {v(SG)}, {v(KEY)}")
    A(f"v_and_b32 {v(SG)}, 0xffff0000, {v(SG)}")
    A(f"v_mul_f32 {v(SG)}, {f32(-1.4426950408889634)}, {v(SG)}")
    A(f"v_exp_f32 {v(SG)}, {v(SG)}")
    A(f"v_add_f32 {v(SG)}, 1.0, {v(SG)}")
    A(f"v_rcp_f32 {v(SG)}, {v(SG)}")
    A(f"v_cvt_pk_bf16_f32 {v(SG)}, {v(SG)}, {v(SG)}")
    A(f"v_and_b32 {v(SG)}, 0xffff0000, {v(SG)}")
    stamp(2, "s27")
    def rb(r):
        A(f"v_cvt_pk_bf16_f32 {v(r)}, {v(r)}, {v(r)}")
        A(f"v_and_b32 {v(r)}, 0xffff0000, {v(r)}")
    Yv = T + 12
    XO = T + 16
    if opt("hgate", 1):
        loop, done = A.newlabel("Lh"), A.newlabel("Lhd")
        A(f"s_mov_b32 s62, {SPIN}")
        set_exec(0x00FF00FF00FF00FF)
        A.label(loop)
        A(f"buffer_load_dwordx4 {v(HF,4)}, {v(vHF)}, {WS}, s{sH} offen sc1")
        A("s_waitcnt vmcnt(0)")
        any_sentinel(range(HF, HF + 4), T + 6, done)
        spin_tail(loop, 62, opt("hgsleep", 1))
        A.label(done)
    loop, done = A.newlabel("Lh"), A.newlabel("Lhd")
    A(f"s_cmp_lt_u32 s{WV}, 2")
    A(f"s_cselect_b32 s63, 2048, 0")
    A(f"s_add_u32 s63, s63, {12 * 2048}")
    A(f"s_add_u32 s63, s63, s{sH}")
    A(f"s_mov_b32 s62, {SPIN}")
    set_exec(0x00FF00FF00FF00FF)
    A.label(loop)
    for k in range(14):
        if k == 13:
            A(f"buffer_load_dwordx4 {v(HF+4*k,4)}, {v(vHF)}, {WS}, s63 offen sc1")
        else:
            if k % 2 == 0:
                A(f"s_add_u32 s60, s{sH}, {2048 * k}")
            A(f"buffer_load_dwordx4 {v(HF+4*k,4)}, {v(vHF)}, {WS}, s60 offen offset:{2048*(k%2)} sc1")
    CK = T + 6
    HP = opt("hprog", 1)
    def mf(k):
        for par in range(2):
            cc = "0" if k == 0 else v(ACC + 4 * par, 4)
            A(f"v_mfma_f32_16x16x32_bf16 {v(ACC+4*par,4)}, {v(HF+4*k,4)}, {v(DW+8*k+4*par,4)}, {cc}")
    if HP:
        A("s_mov_b64 exec, -1")
        for k in range(14):
            A(f"s_waitcnt vmcnt({13-k})")
            mf(k)
            if k == 0:
                A(f"v_max3_u32 {v(CK)}, {v(HF)}, {v(HF+1)}, {v(HF+2)}")
                A(f"v_max_u32 {v(CK)}, {v(CK)}, {v(HF+3)}")
            else:
                A(f"v_max3_u32 {v(CK)}, {v(CK)}, {v(HF+4*k)}, {v(HF+4*k+1)}")
                A(f"v_max3_u32 {v(CK)}, {v(CK)}, {v(HF+4*k+2)}, {v(HF+4*k+3)}")
        set_exec(0x00FF00FF00FF00FF)
        A(f"v_cmp_eq_u32 vcc, -1, {v(CK)}")
        A(f"s_cbranch_vccz {done}")
    else:
        A("s_waitcnt vmcnt(0)")
        any_sentinel(list(range(HF, HF + 56)), CK, done)
    spin_tail(loop, 62, opt("hsleep", 1))
    A.label(done)
    A("s_mov_b64 exec, -1")
    prio(3)
    stamp(5, "s27")
    Lh2 = A.newlabel("Lfb")
    A(f"s_or_b32 s60, s{sB}, s{WV}")
    A(f"s_or_b32 s60, s60, s{sL}")
    A(f"s_cmp_lg_u32 s60, {0 if opt('hintsrc', 0) == 0 else -1}")
    A(f"s_cbranch_scc1 {Lh2}")
    A(f"v_mov_b32 {v(CK)}, 0")
    A(f"s_mov_b32 s60, {X2_OFF + SEL_OFF + 128}")
    A("s_mov_b64 exec, 1")
    A(f"buffer_store_dword {v(CK)}, {v(CK)}, {WS}, s60 offen sc1")
    A.label(Lh2)
    A("s_mov_b64 exec, -1")
    if not HP:
        for k in range(14):
            mf(k)
    for r in (XNV, XV):
        A(f"v_lshlrev_b32 {v(r)}, s32, {v(r)}")
        A(f"v_and_b32 {v(r)}, 0xffff0000, {v(r)}")
    A(f"v_add_f32 {v(XO)}, {v(XV)}, {v(XNV)}")
    rb(XO)
    if EXACT:
        A(f"v_sub_f32 {v(XO)}, {v(XO)}, {v(ST)}")
        rb(XO)
        A(f"v_mul_f32 {v(XO)}, {v(XO)}, {v(ST+1)}")
        rb(XO)
    else:
        A(f"v_mul_f32 {v(ST)}, {v(ST)}, {v(ST+1)}")
        A(f"v_fma_f32 {v(XO)}, {v(XO)}, {v(ST+1)}, -{v(ST)}")
    set_exec(0xffffffff)
    for r in range(4):
        A(f"ds_write2_b32 {v(vPW)}, {v(ACC+r)}, {v(ACC+4+r)} offset0:{32*r} offset1:{32*r+1}")
    A("s_mov_b64 exec, -1")
    A("s_waitcnt lgkmcnt(0)")
    A("s_barrier")
    A(f"ds_read2st64_b32 {v(Yv,2)}, {v(vPR)} offset0:0 offset1:4")
    A(f"ds_read2st64_b32 {v(Yv+2,2)}, {v(vPR)} offset0:8 offset1:12")
    A("s_waitcnt lgkmcnt(0)")
    A(f"v_pk_add_f32 {v(Yv,2)}, {v(Yv,2)}, {v(Yv+2,2)}")
    A(f"v_add_f32 {v(Yv)}, {v(Yv)}, {v(Yv+1)}")
    rb(Yv)
    A(f"v_mul_f32 {v(Yv)}, {v(Yv)}, {v(SG)}")
    rb(Yv)
    A(f"v_add_f32 {v(Yv)}, {v(Yv)}, {v(XNV)}")
    rb(Yv)
    A(f"v_add_f32 {v(Yv)}, {v(Yv)}, {v(XV)}")
    L2 = A.newlabel("Lfb")
    A(f"s_cmp_lg_u32 s{sL}, 0")
    A(f"s_cbranch_scc1 {L2}")
    A(f"v_permlane32_swap_b32 {v(Yv)}, {v(XO)}")
    A(f"v_cvt_pk_bf16_f32 {v(Yv+1)}, {v(Yv)}, {v(XO)}")
    A(f"v_cvt_pk_f16_f32 {v(Yv)}, {v(Yv)}, {v(XO)}")
    A(f"v_cmp_gt_u32 vcc, 32, v1")
    A(f"v_cndmask_b32 {v(Yv)}, {v(Yv)}, {v(Yv+1)}, vcc")
    A(f"v_min_u32 {v(Yv)}, -2, {v(Yv)}")
    for r in range(NRX):
        A(f"s_mov_b32 s60, {X2_OFF + r * X2REP}")
        A(f"buffer_store_dword {v(Yv)}, {v(vX2)}, {WS}, s60 offen sc1")
    stamp(6, "s27", dbg=(12, FB0))
    A(f"s_add_u32 s{sH}, s{sH}, {2 * HREP}")
    A(f"s_add_u32 s{sRG}, s{sRG}, {NRR * RG_REP}")
    A(f"s_add_u32 s{sT}, s{sT}, {T_SZ}")
    A(f"s_mov_b32 s{sL}, 1")
    A("s_branch L_FbLoop")
    A.label(L2)
    A(f"v_cvt_pk_bf16_f32 {v(Yv)}, {v(Yv)}, {v(Yv)}")
    A(f"s_movk_i32 s60, 1280")
    A(f"v_mad_u32_u24 {v(Yv+1)}, {v(ROW)}, s60, {v(vO)}")
    A(f"buffer_store_short {v(Yv)}, {v(Yv+1)}, {SRD2}, 0 offen sc1")
    stamp(7, "s27", dbg=(15, FB0))
    A(f"s_or_b32 s60, s{sB}, s{WV}")
    A(f"s_cmp_lg_u32 s60, 0")
    A("s_cbranch_scc1 L_end")
    A(f"v_mov_b32 {v(T)}, s{NONCE}")
    A(f"v_mov_b32 {v(T+1)}, 0")
    A("s_mov_b64 exec, 1")
    A(f"buffer_store_dword {v(T)}, {v(T+1)}, {WS}, 0 offen sc1")
    A.label("L_end")
    A("s_endpgm")

hdr = open("cdna_kernels/%s.s.ref" % NAME).read().split("\n")
head = [l for l in hdr if l.startswith(";") and "@launch" not in l and "Override" not in l and "grid=ceil" not in l]
out = "\n".join(head) + "\n"
out += f"; @launch grid=({NWG},1,1) block=(256,1,1) lds={LDS_BYTES}\n"
out += """
; ---------------------------------------------------------------------------------------------------------
; One persistent launch, 491 co-resident workgroups (2 per CU), four roles chosen by workgroup id:
;   R  (0..255)    8 token rows each: layer norms, residuals, router scores, DFT along the hidden axis
;   C  (256..416)  2 spectrum columns each: DFT along the sequence axis
;   Fa (417..470)  top-8 selection + gate/up projection + SwiGLU for a 32-column slice
;   Fb (471..490)  top-8 selection + down projection + scatter for a 32-column slice
; The Fourier sublayer Real(DFT_seq(DFT_hid(x))) is evaluated with the exact Cooley-Tukey factorisation of the
; two (constant) DFT matrices, 640 = 20 x 32 and 2048 = 32 x 64, as small MFMA products with f16 factors that are
; generated with v_cos/v_sin; pairs of real rows are packed into one complex row and unpacked inside the
; column factor.  The layer-1 expert update of the 8 routed rows enters the second Fourier sublayer as an exact
; rank-8 correction (linearity), so the column pass of layer 2 overlaps the expert MLP.
; Hand-offs between workgroups go through d_ws with write-through (sc1) stores and sc1 loads.  Flags carry a
; per-launch tag derived from the word at d_ws+0; bulk buffers are pre-filled with all-ones by their producer and
; re-read by consumers until every word has landed.  All waits are bounded.
; Generated by the author's own script (hand-written instruction sequences).
; ---------------------------------------------------------------------------------------------------------
""".lstrip("\n")
out += '.amdgcn_target "amdgcn-amd-amdhsa--gfx950"\n.text\n'
out += f".globl {NAME}_kernel\n.p2align 8\n.type {NAME}_kernel,@function\n{NAME}_kernel:\n"
prologue(); roleR(); roleC(); roleFa(); roleFb()
out += A.text()
out += "L_code_end:\n"
out = out.replace(".text\n", ".text\n.set CODE_LINES, 256\n.set CODE_LINES2, 100\n", 1)
out += f""".section .rodata,"a"
.p2align 6
.amdhsa_kernel {NAME}_kernel
  .amdhsa_next_free_vgpr 256
  .amdhsa_next_free_sgpr 102
  .amdhsa_accum_offset 256
  .amdhsa_group_segment_fixed_size 0
  .amdhsa_kernarg_size 104
  .amdhsa_user_sgpr_count 2
  .amdhsa_user_sgpr_kernarg_segment_ptr 1
  .amdhsa_system_sgpr_workgroup_id_x 1
  .amdhsa_float_denorm_mode_32 3
.end_amdhsa_kernel
"""
import subprocess, tempfile, os, re
with tempfile.TemporaryDirectory() as td:
    open(td + "/a.s", "w").write(out)
    subprocess.check_call(["clang", "-x", "assembler", "-target", "amdgcn-amd-amdhsa", "-mcpu=gfx950", "-c", td + "/a.s", "-o", td + "/a.o"])
    hd = subprocess.check_output(["llvm-objdump", "-h", td + "/a.o"]).decode()
    size = int(re.search(r"\.text\s+([0-9a-f]+)", hd).group(1), 16)
out = out.replace(".set CODE_LINES, 256", ".set CODE_LINES, %d" % min(256, size // 128))
out = out.replace(".set CODE_LINES2, 100", ".set CODE_LINES2, %d" % max(0, size // 128 - 256))
print("code bytes:", size, file=sys.stderr)
dst = [a for a in sys.argv[1:] if not a.startswith("--")]
open(dst[0] if dst else "cdna_kernels/%s.s" % NAME, "w").write(out)
print("instructions:", A.ninstr, file=sys.stderr)
```

```python
import sys, struct
from asmb import Asm

NAME = "interleave_layers__spectral_fnet__moe_arch_mod__prompt"
def opt(name, default):
    for a in sys.argv:
        if a.startswith("--%s=" % name):
            return int(a.split("=")[1])
    return default
STAMPS = "--stamps" in sys.argv
DSTAMPS = "--dstamps" in sys.argv
MSTAMPS = "--mstamps" in sys.argv
EXACT = opt("exact", 0)
EXACT1 = opt("exact1", 0)
GATE = opt("gate", 1)
NR, NC, NFA, NFB = 256, 161, 54, 20
C0, FA0, FB0, NWG = 256, 417, 471, 491
FSH = opt("fsh", 6); FREP = 16 << FSH
FL_OFF = 0x1000; NREP = opt("nrep", 16)
RESET_OFF = 0x70000
H_OFF = 0x70000; HREP = 0x7000
X2_OFF = 0x90000; X2REP = 0x5200; NRX = opt("nrx", 1); SEL_OFF = 0x5000
RSH = opt("rsh", 6)
RG_OFF = 0xA0000; NRR = opt("nrr", 8); RG_REP = 256 << RSH
CNT_OFF = 0xF8000
WROW = 10368
W_OFF = 0x100000; W_SZ = 0x290000
Y_OFF = 0x640000; Y_SZ = 0x160000; YM_OFF = 322 * 4096
T_OFF = 0x900000; T_REC = 2688; T_SZ = 2048 * T_REC
ST_OFF = 0x1400000
WS_BYTES = 0x1500000
NONCE_C = 0x9E3779B9
SPIN = 40000
LDS_BYTES = 53248
assert FL_OFF + 4 * NREP * FREP <= 0x70000 and RG_OFF + 2 * NRR * RG_REP <= 0xF0000
PSLEEP = opt("psleep", 1)
EARLY_R = opt("earlyr", 1)
EARLY_C = opt("earlyc", 2)
PRIO = opt("prio", 1)
DRAIN2 = opt("drain2", 0)
AWR = opt("awr", 3)
PPART = opt("ppart", 3)
DRAIN0 = opt("drain0", 0)
def prio(n):
    if PRIO:
        A(f"s_setprio {n}")

def f32(x):
    return "0x%08x" % struct.unpack("<I", struct.pack("<f", x))[0]
def v(i, n=1):
    return "v%d" % i if n == 1 else "v[%d:%d]" % (i, i + n - 1)
def s(i, n=1):
    return "s%d" % i if n == 1 else "s[%d:%d]" % (i, i + n - 1)

A = Asm()
WS = "s[4:7]"; SRD1 = "s[8:11]"; SRD2 = "s[12:15]"; SRD3 = "s[16:19]"
NONCE = 20; WV = 21

def srd(base, ptr, nbytes):
    A(f"s_mov_b32 s{base}, s{ptr}")
    A(f"s_and_b32 s{base+1}, s{ptr+1}, 0xffff")
    A(f"s_mov_b32 s{base+2}, {nbytes}")
    A(f"s_mov_b32 s{base+3}, 0x00020000")

def set_exec(m):
    A(f"s_mov_b32 exec_lo, 0x{m & 0xffffffff:x}")
    A(f"s_mov_b32 exec_hi, 0x{m >> 32:x}")

def stamp(idx, lay=None, dbg=None):
    if MSTAMPS and dbg is not None:
        L = A.newlabel("Lst")
        A(f"s_mov_b32 s97, s{WV}")
        if len(dbg) > 2:
            A(f"s_sub_u32 s96, {lay}, {dbg[2]}")
            A(f"s_or_b32 s97, s97, s96")
        A(f"s_cmp_lg_u32 s97, 0")
        A(f"s_cbranch_scc1 {L}")
        A("s_memrealtime s[98:99]")
        A("s_waitcnt lgkmcnt(0)")
        A("s_and_b32 s98, s98, 0x7fffffff")
        A("v_mov_b32 v254, s98")
        A("v_mov_b32 v253, 0")
        A("s_mov_b64 exec, 1")
        if dbg[0] == 0:
            A(f"buffer_atomic_umax v254, v253, s[92:95], 0 offen offset:4")
            A("v_not_b32 v254, v254")
        if dbg[0] != 1:
            A(f"buffer_atomic_umax v254, v253, s[92:95], 0 offen offset:{dbg[0] * 4}")
        A("s_mov_b64 exec, -1")
        A.label(L)
    if DSTAMPS and dbg is not None:
        L = A.newlabel("Lst")
        A(f"s_lshl_b32 s97, s{WV}, 16")
        A(f"s_or_b32 s97, s97, s2")
        if len(dbg) > 2:
            A(f"s_lshl_b32 s96, {lay}, 20")
            A(f"s_or_b32 s97, s97, s96")
        A(f"s_cmp_lg_u32 s97, {dbg[1] + ((dbg[2] << 20) if len(dbg) > 2 else 0)}")
        A(f"s_cbranch_scc1 {L}")
        A("s_memrealtime s[98:99]")
        A("s_waitcnt lgkmcnt(0)")
        A("v_mov_b32 v254, s98")
        A("v_mov_b32 v253, 0")
        A("s_mov_b64 exec, 1")
        A(f"buffer_store_dword v254, v253, s[92:95], 0 offen offset:{dbg[0] * 4}")
        A("s_mov_b64 exec, -1")
        A.label(L)
    if not STAMPS:
        return
    L = A.newlabel("Lst")
    A(f"s_cmp_lg_u32 s{WV}, 0")
    A(f"s_cbranch_scc1 {L}")
    A("s_memrealtime s[98:99]")
    A("s_memtime s[100:101]")
    A("s_waitcnt lgkmcnt(0)")
    A("v_mov_b32 v254, s98")
    A("v_mov_b32 v255, s100")
    A("v_mov_b32 v253, 0")
    A("s_lshl_b32 s97, s2, 9")
    A(f"s_add_u32 s97, s97, {ST_OFF + idx * 8}")
    if lay is not None:
        A(f"s_lshl_b32 s96, {lay}, 6")
        A("s_add_u32 s97, s97, s96")
    A("s_mov_b64 exec, 1")
    A(f"buffer_store_dwordx2 v[254:255], v253, {WS}, s97 offen")
    A("s_mov_b64 exec, -1")
    A.label(L)

def spin_tail(loop, cnt, sleep=1):
    if sleep:
        A(f"s_sleep {sleep}")
    A(f"s_sub_u32 s{cnt}, s{cnt}, 1")
    A(f"s_cmp_lg_u32 s{cnt}, 0")
    A(f"s_cbranch_scc1 {loop}")

def any_sentinel(regs, t, done):
    regs = list(regs)
    A(f"v_max3_u32 {v(t)}, {v(regs[0])}, {v(regs[1])}, {v(regs[2])}")
    k = 3
    while k + 1 < len(regs):
        A(f"v_max3_u32 {v(t)}, {v(t)}, {v(regs[k])}, {v(regs[k+1])}")
        k += 2
    if k < len(regs):
        A(f"v_max_u32 {v(t)}, {v(t)}, {v(regs[k])}")
    A(f"v_cmp_eq_u32 vcc, -1, {v(t)}")
    A(f"s_cbranch_vccz {done}")

def poll_flags(k, srep, t, sleep=None):
    loop, done = A.newlabel("Lpoll"), A.newlabel("Lpolld")
    A(f"s_cmp_lg_u32 s{WV}, 0")
    A(f"s_cbranch_scc1 {done}")
    if isinstance(k, int):
        A(f"s_add_u32 s60, s{srep}, {FL_OFF + k * NREP * FREP}")
    else:
        A(f"s_mul_i32 s60, {k}, {NREP * FREP}")
        A(f"s_add_u32 s60, s60, s{srep}")
        A(f"s_add_u32 s60, s60, {FL_OFF}")
    A(f"s_add_u32 s61, s{NONCE}, {k}")
    A(f"v_and_b32 {v(t+1)}, 15, v1")
    A(f"v_lshlrev_b32 {v(t+1)}, {FSH}, {v(t+1)}")
    A(f"s_mov_b32 s62, {SPIN}")
    A.label(loop)
    A(f"buffer_load_dword {v(t)}, {v(t+1)}, {WS}, s60 offen sc1")
    A("s_waitcnt vmcnt(0)")
    A(f"v_cmp_ne_u32 vcc, s61, {v(t)}")
    A(f"s_cbranch_vccz {done}")
    spin_tail(loop, 62, PSLEEP if sleep is None else sleep)
    A.label(done)
    A("s_barrier")

def cnt_init(sshard, ks, t):
    for k in ks:
        A(f"s_add_u32 s60, s{sshard}, {16 * k}")
        A(f"s_lshl_b32 s60, s60, 7")
        A(f"s_add_u32 s60, s60, {CNT_OFF}")
        A(f"s_add_u32 s61, s{NONCE}, {k}")
        A(f"v_mov_b32 {v(t)}, 0")
        A(f"v_mov_b32 {v(t+1)}, s61")
        A(f"v_mov_b32 {v(t+2)}, 0")
        A("s_mov_b64 exec, 1")
        A(f"buffer_store_dwordx2 {v(t,2)}, {v(t+2)}, {WS}, s60 offen sc1")
        A("s_mov_b64 exec, -1")

def arrive_issue(k, sshard, t, aw=0):
    L = A.newlabel("Larr")
    A(f"s_cmp_lg_u32 s{WV}, {aw}")
    A(f"s_cbranch_scc1 {L}")
    if isinstance(k, int):
        A(f"s_add_u32 s66, s{sshard}, {16 * k}")
    else:
        A(f"s_lshl_b32 s66, {k}, 4")
        A(f"s_add_u32 s66, s66, s{sshard}")
    A(f"s_lshl_b32 s66, s66, 7")
    A(f"s_add_u32 s66, s66, {CNT_OFF}")
    A(f"v_mov_b32 {v(t)}, 1")
    A(f"v_mov_b32 {v(t+1)}, 0")
    A(f"v_mov_b32 {v(t+2)}, 0")
    A("s_mov_b64 exec, 1")
    A(f"buffer_atomic_add_x2 {v(t,2)}, {v(t+2)}, {WS}, s66 offen sc0")
    A("s_mov_b64 exec, -1")
    A.label(L)

def arrive_finish(k, sshard, slast, t, younger, aw=0):
    L, again, chk = A.newlabel("Lsig"), A.newlabel("Lsiga"), A.newlabel("Lsigc")
    A(f"s_cmp_lg_u32 s{WV}, {aw}")
    A(f"s_cbranch_scc1 {L}")
    if isinstance(k, int):
        A(f"s_lshl_b32 s67, s{sshard}, {FSH}")
        A(f"s_add_u32 s67, s67, {FL_OFF + k * NREP * FREP}")
    else:
        A(f"s_mul_i32 s67, {k}, {NREP * FREP}")
        A(f"s_lshl_b32 s68, s{sshard}, {FSH}")
        A(f"s_add_u32 s67, s67, s68")
        A(f"s_add_u32 s67, s67, {FL_OFF}")
    A(f"s_add_u32 s68, s{NONCE}, {k}")
    A(f"v_lshlrev_b32 {v(t+3)}, {FSH + 4}, v1")
    A(f"v_mov_b32 {v(t+4)}, s68")
    A(f"s_mov_b32 s69, {SPIN}")
    if isinstance(younger, tuple):
        A(f"s_waitcnt vmcnt({younger[2]})")
        A(f"s_cmp_eq_u32 {younger[0]}, {younger[1]}")
        A(f"s_cbranch_scc1 {chk}")
        A("s_waitcnt vmcnt(0)")
    else:
        A(f"s_waitcnt vmcnt({younger})")
    A(f"s_branch {chk}")
    A.label(again)
    A(f"s_sub_u32 s69, s69, 1")
    A(f"s_cmp_eq_u32 s69, 0")
    A(f"s_cbranch_scc1 {L}")
    A(f"v_mov_b32 {v(t)}, 1")
    A(f"v_mov_b32 {v(t+1)}, 0")
    A(f"v_mov_b32 {v(t+2)}, 0")
    A("s_mov_b64 exec, 1")
    A(f"buffer_atomic_add_x2 {v(t,2)}, {v(t+2)}, {WS}, s66 offen sc0")
    A("s_mov_b64 exec, -1")
    A("s_waitcnt vmcnt(0)")
    A.label(chk)
    A(f"v_readfirstlane_b32 s65, {v(t+1)}")
    A(f"v_readfirstlane_b32 s64, {v(t)}")
    A(f"s_cmp_lg_u32 s65, s68")
    A(f"s_cbranch_scc1 {again}")
    A(f"s_cmp_lg_u32 s64, {slast}")
    A(f"s_cbranch_scc1 {L}")
    set_exec((1 << NREP) - 1)
    A(f"buffer_store_dword {v(t+4)}, {v(t+3)}, {WS}, s67 offen sc1")
    A("s_mov_b64 exec, -1")
    A.label(L)

def rnd_pair(a, b, t):
    A(f"v_cvt_pk_bf16_f32 {v(t)}, {v(a)}, {v(b)}")
    A(f"v_lshlrev_b32 {v(a)}, 16, {v(t)}")
    A(f"v_and_b32 {v(b)}, 0xffff0000, {v(t)}")

def sincos(arg, c, sn):
    A(f"v_cos_f32 {v(c)}, {v(arg)}")
    A(f"v_sin_f32 {v(sn)}, {v(arg)}")

def prefetch_weights(t):
    if not opt("pref", 0):
        return
    srd(84, 46, 2211840)
    A(f"v_lshlrev_b32 {v(t)}, 4, v0")
    A(f"s_sub_u32 s60, s2, {C0}")
    for r in range(7):
        Ls, Ld = A.newlabel("Lpf"), A.newlabel("Lpf")
        A(f"s_add_u32 s61, s60, {235 * r}")
        A(f"s_cmp_ge_u32 s61, 1620")
        A(f"s_cbranch_scc1 {Ld}")
        A(f"s_mov_b32 s84, s46")
        A(f"s_and_b32 s85, s47, 0xffff")
        for (lim, p) in ((540, 48), (540, 50)):
            A(f"s_cmp_lt_u32 s61, {lim}")
            A(f"s_cbranch_scc1 {Ls}")
            A(f"s_sub_u32 s61, s61, {lim}")
            A(f"s_mov_b32 s84, s{p}")
            A(f"s_and_b32 s85, s{p+1}, 0xffff")
        A.label(Ls)
        A(f"s_lshl_b32 s61, s61, 12")
        A(f"buffer_load_dwordx4 {v(t+4,4)}, {v(t)}, s[84:87], s61 offen")
        A.label(Ld)

def fb_start(x, d):
    A(f"s_mul_i32 {d}, {x}, 3")
    A(f"s_lshl_b32 s62, {x}, 1")
    A(f"s_add_u32 s62, s62, 3")
    A(f"s_min_u32 {d}, {d}, s62")

def nloads(part):
    return bin(part).count("1")

def warm_weights(t, first, nshare, part):
    ra, rb = -(-640 // nshare), -(-1728 // nshare)
    A("s_and_b32 s61, s2, 7")
    A(f"s_sub_u32 s60, s2, {first}")
    A("s_lshr_b32 s60, s60, 3")
    srd(84, 46, 2211840)
    if part & 5:
        A(f"v_lshrrev_b32 {v(t)}, 2, v0")
        A(f"v_and_b32 {v(t+1)}, 3, v0")
        A(f"v_min_u32 {v(t)}, {ra - 1}, {v(t)}")
        A(f"s_mul_i32 s64, s60, {ra}")
        A(f"v_add_u32 {v(t)}, s64, {v(t)}")
        A("s_mul_i32 s63, s61, 7")
        A("s_sub_u32 s63, s63, 1")
        A("s_max_i32 s63, s63, 0")
        A("s_lshl_b32 s63, s63, 6")
        A("s_and_b32 s63, s63, -128")
        A(f"v_lshl_add_u32 {v(t+1)}, {v(t+1)}, 7, s63")
        A(f"s_movk_i32 s64, 3456")
        A(f"v_mad_u32_u24 {v(t+1)}, {v(t)}, s64, {v(t+1)}")
        if part & 1:
            A(f"buffer_load_dword {v(t+3)}, {v(t+1)}, s[84:87], 0 offen")
        if part & 4:
            A("s_mov_b32 s84, s48")
            A("s_and_b32 s85, s49, 0xffff")
            A(f"buffer_load_dword {v(t+3)}, {v(t+1)}, s[84:87], 0 offen")
    if part & 2:
        A(f"v_lshrrev_b32 {v(t)}, 1, v0")
        A(f"v_and_b32 {v(t+1)}, 1, v0")
        A(f"v_min_u32 {v(t)}, {rb - 1}, {v(t)}")
        A(f"s_mul_i32 s64, s60, {rb}")
        A(f"v_add_u32 {v(t)}, s64, {v(t)}")
        fb_start("s61", "s63")
        A("s_lshl_b32 s63, s63, 6")
        A("s_and_b32 s63, s63, -128")
        A(f"v_lshl_add_u32 {v(t+1)}, {v(t+1)}, 7, s63")
        A(f"s_movk_i32 s64, 1280")
        A(f"v_mad_u32_u24 {v(t+1)}, {v(t)}, s64, {v(t+1)}")
        A("s_mov_b32 s84, s50")
        A("s_and_b32 s85, s51, 0xffff")
        A(f"buffer_load_dword {v(t+3)}, {v(t+1)}, s[84:87], 0 offen")

def warm_coop(t):
    A("s_and_b32 s61, s2, 7")
    A(f"s_sub_u32 s60, s2, {FA0 - 1}")
    A("s_lshr_b32 s60, s60, 3")
    A("s_cmp_eq_u32 s61, 0")
    A("s_cselect_b32 s62, 1, 0")
    A("s_sub_u32 s60, s60, s62")
    A("s_min_u32 s60, s60, 8")
    A("s_mul_i32 s63, s61, 7")
    A("s_sub_u32 s63, s63, 1")
    A("s_max_i32 s63, s63, 0")
    A("s_lshl_b32 s63, s63, 6")
    A("s_and_b32 s63, s63, -128")
    A(f"v_and_b32 {v(t+1)}, 3, v0")
    A(f"v_lshl_add_u32 {v(t+1)}, {v(t+1)}, 7, s63")
    A(f"s_mul_i32 s64, s60, 72")
    A(f"s_movk_i32 s65, 3456")
    srd(84, 46, 2211840)
    srd(88, 48, 2211840)
    for p in range(2 if opt("coop", 4) & 5 else 0):
        A(f"v_lshrrev_b32 {v(t)}, 2, v0")
        A(f"v_add_u32 {v(t)}, {64 * p}, {v(t)}")
        A(f"v_min_u32 {v(t)}, 71, {v(t)}")
        A(f"v_add_u32 {v(t)}, s64, {v(t)}")
        A(f"v_mad_u32_u24 {v(t)}, {v(t)}, s65, {v(t+1)}")
        if p == 1:
            set_exec(0xffffffff)
        if opt("coop", 4) & 1:
            A(f"buffer_load_dword {v(t+3)}, {v(t)}, s[84:87], 0 offen")
        if opt("coop", 4) & 4:
            A(f"buffer_load_dword {v(t+3)}, {v(t)}, s[88:91], 0 offen")
    A("s_mov_b64 exec, -1")
    fb_start("s61", "s63")
    A("s_lshl_b32 s63, s63, 6")
    A("s_and_b32 s63, s63, -128")
    A(f"v_and_b32 {v(t+1)}, 1, v0")
    A(f"v_lshl_add_u32 {v(t+1)}, {v(t+1)}, 7, s63")
    A(f"s_mul_i32 s64, s60, 192")
    A(f"s_movk_i32 s65, 1280")
    A("s_mov_b32 s84, s50")
    A("s_and_b32 s85, s51, 0xffff")
    for p in range(2 if opt("coop", 4) & 2 else 0):
        A(f"v_lshrrev_b32 {v(t)}, 1, v0")
        A(f"v_add_u32 {v(t)}, {128 * p}, {v(t)}")
        A(f"v_min_u32 {v(t)}, 191, {v(t)}")
        A(f"v_add_u32 {v(t)}, s64, {v(t)}")
        A(f"v_mad_u32_u24 {v(t)}, {v(t)}, s65, {v(t+1)}")
        A(f"buffer_load_dword {v(t+3)}, {v(t)}, s[84:87], 0 offen")
    A("s_waitcnt vmcnt(0)")

def touch(t, base, nbytes):
    if not opt("touch", 0):
        return
    n = (nbytes + 65535) >> 16
    assert n <= 256
    A(f"v_min_u32 {v(t)}, {n - 1}, v0")
    A(f"v_lshlrev_b32 {v(t)}, 16, {v(t)}")
    A(f"s_mov_b32 s60, {base + opt('touchoff', 2624)}")
    A(f"buffer_load_dword {v(t)}, {v(t)}, {WS}, s60 offen")
    A("s_waitcnt vmcnt(0)")

def nonce_load(r):
    A(f"v_mov_b32 {v(r)}, 0")
    A(f"buffer_load_dword {v(r)}, {v(r)}, {WS}, 0 offen")

def nonce_take(r):
    A(f"v_readfirstlane_b32 s{NONCE}, {v(r)}")
    A(f"s_add_u32 s{NONCE}, s{NONCE}, 0x{NONCE_C:x}")

def prologue():
    A(f"s_cmp_ge_u32 s2, {NWG}")
    A("s_cbranch_scc1 L_end")
    if opt("t0", 0):
        A("s_memrealtime s[90:91]")
    A("s_load_dwordx2 s[40:41], s[0:1], 96")
    A("s_load_dwordx2 s[42:43], s[0:1], 0")
    A("s_load_dwordx4 s[44:47], s[0:1], 48")
    A("s_load_dwordx4 s[48:51], s[0:1], 64")
    A("s_load_dwordx4 s[52:55], s[0:1], 80")
    if opt("codepf", 1):
        A("s_getpc_b64 s[60:61]")
        A("s_and_b32 s60, s60, -256")
        A("v_lshlrev_b32 v2, 7, v0")
        A("v_mov_b32 v3, s61")
        A("v_add_co_u32 v2, vcc, s60, v2")
        A("v_addc_co_u32 v3, vcc, 0, v3, vcc")
        A("v_cmp_gt_u32 vcc, CODE_LINES, v0")
        A("s_and_saveexec_b64 s[62:63], vcc")
        A("s_cbranch_execz L_nopf")
        A("global_load_dword v255, v[2:3], off")
        A("v_add_co_u32 v2, vcc, 0x8000, v2")
        A("v_addc_co_u32 v3, vcc, 0, v3, vcc")
        A("v_cmp_gt_u32 vcc, CODE_LINES2, v0")
        A("s_and_b64 exec, exec, vcc")
        A("s_cbranch_execz L_nopf")
        A("global_load_dword v255, v[2:3], off")
        A.label("L_nopf")
        A("s_mov_b64 exec, s[62:63]")
    A("v_lshrrev_b32 v2, 6, v0")
    A("v_and_b32 v1, 63, v0")
    A(f"v_readfirstlane_b32 s{WV}, v2")
    A("s_waitcnt lgkmcnt(0)")
    srd(4, 40, WS_BYTES)
    if DSTAMPS or MSTAMPS:
        srd(92, 54, 256)
    stamp(31, dbg=(0, 0))
    if opt("t0", 0):
        L = A.newlabel("Lt0")
        A(f"s_lshl_b32 s97, s{WV}, 16")
        A(f"s_or_b32 s97, s97, s2")
        A(f"s_cmp_lg_u32 s97, 0")
        A(f"s_cbranch_scc1 {L}")
        A("v_mov_b32 v254, s90")
        A("v_mov_b32 v253, 0")
        A("s_mov_b64 exec, 1")
        A(f"buffer_store_dword v254, v253, s[92:95], 0 offen offset:4")
        A("s_mov_b64 exec, -1")
        A.label(L)
    A(f"s_cmp_lt_u32 s2, {C0}")
    A("s_cbranch_scc1 L_roleR")
    A(f"s_cmp_lt_u32 s2, {FA0}")
    A("s_cbranch_scc1 L_roleC")
    A(f"s_cmp_lt_u32 s2, {FB0}")
    A("s_cbranch_scc1 L_roleFa")
    A("s_branch L_roleFb")

B1R, B1I, TWC, TWS, B2R, B2I, WR, INV = 16, 28, 40, 56, 72, 88, 104, 114
X, XN, MM, RS = 116, 136, 156, 158
ACR, ACI, AF1, AF2, AC2R, AC2I = 160, 176, 192, 204, 220, 236
vX, vY0, vY1, vY2, vKX, vLC, vLYW, vLYR, vLWW, vLWR0, vWG, vTA = 2, 3, 4, 5, 6, 7, 8, 9, 10, 11, 14, 15
vTB, vWG1 = 252, 115
sRHO, sA, sS2, sRA, sME, sREP, sXO, sWB, sTB, sP, sS, sQ = 22, 23, 24, 25, 26, 27, 28, 29, 30, 32, 34, 36
sSEL = 80
s32f = 38
sTAU = 39
LDS_Y, LDS_W, LDS_NEW, LDS_KX, LDS_CONST, LDS_RG = 0, 10240, 21504, 31744, 24576, 52224

def reduce_tail(r):
    for k in (8, 4, 2, 1):
        A(f"v_add_f32_dpp {v(r)}, {v(r)}, {v(r)} row_ror:{k} row_mask:0xf bank_mask:0xf")

def tau_of(w, t, scale):
    A(f"v_pk_mul_f32 {v(t,2)}, {v(w,2)}, {v(w,2)}")
    for i in range(2, 10, 2):
        A(f"v_pk_fma_f32 {v(t,2)}, {v(w+i,2)}, {v(w+i,2)}, {v(t,2)}")
    A(f"v_add_f32 {v(t)}, {v(t)}, {v(t+1)}")
    for sw in ("32", "16"):
        A(f"v_mov_b32 {v(t+1)}, {v(t)}")
        A(f"v_permlane{sw}_swap_b32 {v(t)}, {v(t+1)}")
        A(f"v_add_f32 {v(t)}, {v(t)}, {v(t+1)}")
    reduce_tail(t)
    A(f"v_sqrt_f32 {v(t)}, {v(t)}")
    A(f"v_mul_f32 {v(t)}, {f32(scale * opt('tau', 200) / 100)}, {v(t)}")

def ln_stats(xb, t):
    S_, Q_, D0, D1 = t, t + 2, t + 4, t + 6
    A(f"v_readfirstlane_b32 s{sP}, {v(xb)}")
    A(f"v_readfirstlane_b32 s{sP+1}, {v(xb+1)}")
    for i in range(10):
        D = S_ if i == 0 else (D0 if i % 2 else D1)
        A(f"v_pk_add_f32 {v(D,2)}, {v(xb+2*i,2)}, {s(sP,2)} neg_lo:[0,1] neg_hi:[0,1]")
        if i == 0:
            A(f"v_pk_mul_f32 {v(Q_,2)}, {v(D,2)}, {v(D,2)}")
        else:
            A(f"v_pk_add_f32 {v(S_,2)}, {v(S_,2)}, {v(D,2)}")
            A(f"v_pk_fma_f32 {v(Q_,2)}, {v(D,2)}, {v(D,2)}, {v(Q_,2)}")
    A(f"v_permlane32_swap_b32 {v(S_)}, {v(S_+1)}")
    A(f"v_permlane32_swap_b32 {v(Q_)}, {v(Q_+1)}")
    A(f"v_add_f32 {v(S_)}, {v(S_)}, {v(S_+1)}")
    A(f"v_add_f32 {v(Q_)}, {v(Q_)}, {v(Q_+1)}")
    A(f"v_permlane16_swap_b32 {v(S_)}, {v(Q_)}")
    A(f"v_add_f32 {v(S_)}, {v(S_)}, {v(Q_)}")
    reduce_tail(S_)
    A(f"v_readlane_b32 s{sS}, {v(S_)}, 0")
    A(f"v_readlane_b32 s{sS+1}, {v(S_)}, 32")
    A(f"v_readlane_b32 s{sQ}, {v(S_)}, 16")
    A(f"v_readlane_b32 s{sQ+1}, {v(S_)}, 48")
    A(f"v_pk_mul_f32 {v(MM,2)}, {s(sS,2)}, {v(INV,2)} op_sel_hi:[1,0]")
    A(f"v_pk_mul_f32 {v(RS,2)}, {s(sQ,2)}, {v(INV,2)} op_sel_hi:[1,0]")
    A(f"v_pk_fma_f32 {v(RS,2)}, {v(MM,2)}, {v(MM,2)}, {v(RS,2)} neg_lo:[1,0,0] neg_hi:[1,0,0]")
    A(f"v_pk_add_f32 {v(MM,2)}, {v(MM,2)}, {s(sP,2)}")
    A(f"v_max_f32 {v(RS)}, 0, {v(RS)}")
    A(f"v_max_f32 {v(RS+1)}, 0, {v(RS+1)}")
    rnd_pair(RS, RS + 1, D0)
    A(f"v_add_f32 {v(RS)}, {f32(1e-5)}, {v(RS)}")
    A(f"v_add_f32 {v(RS+1)}, {f32(1e-5)}, {v(RS+1)}")
    rnd_pair(RS, RS + 1, D0)
    A(f"v_sqrt_f32 {v(RS)}, {v(RS)}")
    A(f"v_sqrt_f32 {v(RS+1)}, {v(RS+1)}")
    rnd_pair(MM, MM + 1, D1)
    rnd_pair(RS, RS + 1, D0)
    A(f"v_rcp_f32 {v(RS)}, {v(RS)}")
    A(f"v_rcp_f32 {v(RS+1)}, {v(RS+1)}")

def ln_center_scale(xb, zb, t, exact=True):
    if not exact:
        A(f"v_pk_mul_f32 {v(t,2)}, {v(MM,2)}, {v(RS,2)} neg_lo:[1,0] neg_hi:[1,0]")
        for i in range(10):
            A(f"v_pk_fma_f32 {v(zb+2*i,2)}, {v(xb+2*i,2)}, {v(RS,2)}, {v(t,2)}")
        return
    for i in range(10):
        A(f"v_pk_add_f32 {v(zb+2*i,2)}, {v(xb+2*i,2)}, {v(MM,2)} neg_lo:[0,1] neg_hi:[0,1]")
        if exact:
            rnd_pair(zb + 2 * i, zb + 2 * i + 1, t + (i % 4))
    for i in range(10):
        A(f"v_pk_mul_f32 {v(zb+2*i,2)}, {v(zb+2*i,2)}, {v(RS,2)}")

def pack_rows(zb, pa, pb):
    for u in range(5):
        A(f"v_cvt_pk_bf16_f32 {v(pa+u)}, {v(zb+4*u)}, {v(zb+4*u+2)}")
        A(f"v_cvt_pk_bf16_f32 {v(pb+u)}, {v(zb+4*u+1)}, {v(zb+4*u+3)}")

def unpack_rows(zb, pa, pb):
    for u in range(5):
        A(f"v_lshlrev_b32 {v(zb+4*u)}, 16, {v(pa+u)}")
        A(f"v_and_b32 {v(zb+4*u+2)}, 0xffff0000, {v(pa+u)}")
        A(f"v_lshlrev_b32 {v(zb+4*u+1)}, 16, {v(pb+u)}")
        A(f"v_and_b32 {v(zb+4*u+3)}, 0xffff0000, {v(pb+u)}")

def store_rows(pa, pa4, pb, pb4, off, sb=sTB):
    A(f"buffer_store_dwordx4 {v(pa,4)}, {v(vTA)}, {WS}, s{sb} offen offset:{off} sc1")
    A(f"buffer_store_dword {v(pa4)}, {v(vTB)}, {WS}, s{sb} offen offset:{off} sc1")
    A(f"buffer_store_dwordx4 {v(pb,4)}, {v(vTA)}, {WS}, s{sb+1} offen offset:{off} sc1")
    A(f"buffer_store_dword {v(pb4)}, {v(vTB)}, {WS}, s{sb+1} offen offset:{off} sc1")

def to_f16(zb, t, sub=None):
    for i in range(10):
        if EXACT:
            rnd_pair(zb + 2 * i, zb + 2 * i + 1, t + (i % 4))
        A(f"v_cvt_pk_f16_f32 {v(AF1+i)}, {v(zb+2*i)}, {v(zb+2*i+1)}")
        if sub is not None:
            A(f"v_pk_add_f16 {v(AF1+i)}, {v(AF1+i)}, {v(sub(i))} neg_lo:[0,1] neg_hi:[0,1]")

def row_dft(t, shadow1=None, shadow2=None):
    for kk in range(3):
        c = "0" if kk == 0 else None
        A(f"v_mfma_f32_32x32x16_f16 {v(ACR,16)}, {v(AF1+4*kk,4)}, {v(B1R+4*kk,4)}, {c or v(ACR,16)}")
        A(f"v_mfma_f32_32x32x16_f16 {v(ACI,16)}, {v(AF1+4*kk,4)}, {v(B1I+4*kk,4)}, {c or v(ACI,16)}")
    if shadow1:
        shadow1()
    for kk in range(4):
        for i in (4 * kk, 4 * kk + 2):
            pr, pi = t + (i % 4) * 2, t + (i % 4) * 2 + 2
            A(f"v_pk_mul_f32 {v(pr,2)}, {v(ACR+i,2)}, {v(TWC+i,2)}")
            A(f"v_pk_mul_f32 {v(pi,2)}, {v(ACI+i,2)}, {v(TWC+i,2)}")
            A(f"v_pk_fma_f32 {v(pr,2)}, {v(ACI+i,2)}, {v(TWS+i,2)}, {v(pr,2)}")
            A(f"v_pk_fma_f32 {v(pi,2)}, {v(ACR+i,2)}, {v(TWS+i,2)}, {v(pi,2)} neg_lo:[1,0,0] neg_hi:[1,0,0]")
            A(f"v_cvt_pk_f16_f32 {v(AF2+i)}, {v(pr)}, {v(pi)}")
            A(f"v_cvt_pk_f16_f32 {v(AF2+i+1)}, {v(pr+1)}, {v(pi+1)}")
        c = "0" if kk == 0 else None
        A(f"v_mfma_f32_32x32x16_f16 {v(AC2R,16)}, {v(AF2+4*kk,4)}, {v(B2R+4*kk,4)}, {c or v(AC2R,16)}")
        A(f"v_mfma_f32_32x32x16_f16 {v(AC2I,16)}, {v(AF2+4*kk,4)}, {v(B2I+4*kk,4)}, {c or v(AC2I,16)}")
    if shadow2:
        shadow2()

def W_stores(layer, r0, r1, r2, lds=True):
    L = A.newlabel("Lw2")
    A(f"s_add_u32 s60, s{sWB}, {W_OFF + layer * W_SZ}")
    A(f"s_add_u32 s62, s60, {8192 + 112}")
    if lds:
        A("s_waitcnt lgkmcnt(2)")
    A(f"buffer_store_dwordx4 {v(r0,4)}, {v(vWG)}, {WS}, s60 offen sc1")
    if lds:
        A("s_waitcnt lgkmcnt(0)")
    A(f"buffer_store_dwordx4 {v(r1,4)}, {v(vWG1)}, {WS}, s60 offen sc1")
    A(f"s_cmp_ge_u32 s{WV}, 2")
    A(f"s_cbranch_scc1 {L}")
    if lds:
        A(f"ds_read2st64_b32 {v(r2,2)}, {v(vLWR0+2)} offset0:0 offset1:11")
        A(f"ds_read2st64_b32 {v(r2+2,2)}, {v(vLWR0+2)} offset0:22 offset1:33")
        A("s_waitcnt lgkmcnt(0)")
    A(f"buffer_store_dwordx4 {v(r2,4)}, {v(vWG)}, {WS}, s62 offen sc1")
    A.label(L)

def write_W(layer):
    k = 2 * layer
    for i in range(10):
        A(f"v_cvt_pk_f16_f32 {v(ACR+i)}, {v(AC2R+i)}, {v(AC2I+i)}")
        A(f"ds_write_b32 {v(vLWW)}, {v(ACR+i)} offset:{4*i}")
    A("s_waitcnt lgkmcnt(0)")
    A("s_barrier")
    for j in range(2):
        A(f"ds_read2st64_b32 {v(ACI+4*j,2)}, {v(vLWR0+j)} offset0:0 offset1:11")
        A(f"ds_read2st64_b32 {v(ACI+4*j+2,2)}, {v(vLWR0+j)} offset0:22 offset1:33")
    if EARLY_R == 0:
        arrive_issue(k, sME, AF2)
    W_stores(layer, ACI, ACI + 4, ACI + 8)
    if EARLY_R == 0:
        arrive_finish(k, sME, 15, AF2, 3)
    if (layer == 1 and DRAIN2) or (layer == 0 and DRAIN0):
        A("s_waitcnt vmcnt(0)")
        A("s_barrier")
        arrive_issue(k, sME, AF2)
        arrive_finish(k, sME, 15, AF2, 0)

def stage_Y(layer, first=None, shadow=None):
    c0, c1, c2, t = ACR, ACR + 4, ACR + 8, ACR + 16
    loop, L2, L4, L5, done = [A.newlabel("Ly") for _ in range(5)]
    A(f"s_mov_b32 s60, {Y_OFF + layer * Y_SZ}")
    A(f"s_mov_b32 s62, {SPIN}")
    for k in range(4):
        A(f"v_mov_b32 {v(c2+k)}, 0")
    if first:
        first()
    A.label(loop)
    A(f"buffer_load_dwordx4 {v(c0,4)}, {v(vY0)}, {WS}, s60 offen sc1")
    A(f"buffer_load_dwordx4 {v(c1,4)}, {v(vY1)}, {WS}, s60 offen sc1")
    A(f"s_cmp_ge_u32 s{WV}, 2")
    A(f"s_cbranch_scc1 {L2}")
    A(f"buffer_load_dwordx4 {v(c2,4)}, {v(vY2)}, {WS}, s60 offen sc1")
    A.label(L2)
    if shadow:
        Lsh = A.newlabel("Ly")
        A(f"s_cmp_lg_u32 s62, {SPIN}")
        A(f"s_cbranch_scc1 {Lsh}")
        shadow()
        A.label(Lsh)
    A("s_waitcnt vmcnt(0)")
    if layer == 0 or not DRAIN2:
        any_sentinel(range(c0, c0 + 12), t, done)
        spin_tail(loop, 62, 2)
    A.label(done)
    A(f"ds_write2st64_b32 {v(vLYW)}, {v(c0)}, {v(c0+1)} offset0:0 offset1:10")
    A(f"ds_write2st64_b32 {v(vLYW)}, {v(c0+2)}, {v(c0+3)} offset0:20 offset1:30")
    A(f"s_cmp_eq_u32 s{WV}, 0")
    A(f"s_cbranch_scc1 {L4}")
    for k in range(4):
        A(f"v_alignbit_b32 {v(t+k)}, {v(c1+3-k)}, {v(c1+3-k)}, 16")
    for k in range(4):
        A(f"v_mov_b32 {v(c1+k)}, {v(t+k)}")
    A.label(L4)
    A(f"ds_write2st64_b32 {v(vLYW)}, {v(c1)}, {v(c1+1)} offset0:4 offset1:14")
    A(f"ds_write2st64_b32 {v(vLYW)}, {v(c1+2)}, {v(c1+3)} offset0:24 offset1:34")
    A(f"s_cmp_ge_u32 s{WV}, 2")
    A(f"s_cbranch_scc1 {L5}")
    for k in range(4):
        A(f"v_alignbit_b32 {v(t+k)}, {v(c2+3-k)}, {v(c2+3-k)}, 16")
    A(f"ds_write2st64_b32 {v(vLYW)}, {v(t)}, {v(t+1)} offset0:8 offset1:18")
    A(f"ds_write2st64_b32 {v(vLYW)}, {v(t+2)}, {v(t+3)} offset0:28 offset1:38")
    A.label(L5)
    A("s_waitcnt lgkmcnt(0)")
    A("s_barrier")

def router_publish(layer, t, pa, pb):
    R_ = t
    for i in range(10):
        os_ = i & 1
        wv = v(WR + (i & ~1), 2)
        if i == 0:
            A(f"v_pk_mul_f32 {v(R_,2)}, {v(XN,2)}, {wv} op_sel:[0,{os_}] op_sel_hi:[1,{os_}]")
        else:
            A(f"v_pk_fma_f32 {v(R_,2)}, {v(XN+2*i,2)}, {wv}, {v(R_,2)} op_sel:[0,{os_},0] op_sel_hi:[1,{os_},1]")
    fill = []
    if not EXACT1:
        for u in range(5):
            fill.append(f"v_cvt_pk_bf16_f32 {v(pa+u)}, {v(XN+4*u)}, {v(XN+4*u+2)}")
            fill.append(f"v_cvt_pk_bf16_f32 {v(pb+u)}, {v(XN+4*u+1)}, {v(XN+4*u+3)}")
    def pad(n=2):
        for _ in range(n):
            if fill:
                A(fill.pop(0))
    pad()
    A(f"v_permlane32_swap_b32 {v(R_)}, {v(R_+1)}")
    A(f"v_add_f32 {v(R_)}, {v(R_)}, {v(R_+1)}")
    A(f"v_mov_b32 {v(R_+1)}, {v(R_)}")
    pad()
    A(f"v_permlane16_swap_b32 {v(R_)}, {v(R_+1)}")
    A(f"v_add_f32 {v(R_)}, {v(R_)}, {v(R_+1)}")
    for k in (8, 4, 2, 1):
        pad()
        A(f"v_add_f32_dpp {v(R_)}, {v(R_)}, {v(R_)} row_ror:{k} row_mask:0xf bank_mask:0xf")
    pad(10)
    A(f"v_cmp_le_f32 vcc, s{sTAU}, {v(R_)}")
    A(f"v_readlane_b32 s71, {v(R_)}, 32")
    A("s_mov_b64 s[56:57], vcc")
    for row, (p_, half) in enumerate(((pa, "vcc_lo"), (pb, "vcc_hi"))):
        Lr = A.newlabel("Lcand")
        A(f"s_cmp_eq_u32 {half}, 0")
        A(f"s_cbranch_scc1 {Lr}")
        A(f"buffer_store_dwordx4 {v(p_,4)}, {v(vTA)}, {WS}, s{sTB+row} offen sc1")
        A(f"buffer_store_dword {v(p_+4)}, {v(vTB)}, {WS}, s{sTB+row} offen sc1")
        A.label(Lr)
    A(f"s_lshl_b32 s70, s{WV}, 2")
    A(f"s_add_u32 s70, s70, {LDS_RG}")
    A(f"v_mov_b32 {v(R_+2)}, s70")
    A(f"v_cvt_pk_bf16_f32 {v(R_)}, {v(R_)}, s71")
    A(f"v_lshrrev_b32 {v(R_+1)}, 15, {v(R_)}")
    A(f"v_and_b32 {v(R_+1)}, 0x10001, {v(R_+1)}")
    A(f"v_mul_u32_u24 {v(R_+1)}, 0x7fff, {v(R_+1)}")
    A(f"v_or_b32 {v(R_+1)}, 0x80008000, {v(R_+1)}")
    A(f"v_xor_b32 {v(R_)}, {v(R_)}, {v(R_+1)}")
    A(f"v_min_u32 {v(R_)}, -2, {v(R_)}")
    A("s_mov_b64 exec, 1")
    A(f"ds_write_b32 {v(R_+2)}, {v(R_)}")
    A("s_mov_b64 exec, -1")
    A("s_waitcnt vmcnt(0) lgkmcnt(0)")
    A("s_barrier")
    L = A.newlabel("Lrp")
    A(f"s_cmp_lg_u32 s{WV}, 0")
    A(f"s_cbranch_scc1 {L}")
    A(f"ds_read_b128 {v(R_+4,4)}, {v(R_+2)}")
    A(f"v_lshlrev_b32 {v(R_+2)}, {RSH + 8}, v1")
    A(f"s_lshl_b32 s73, s{sRHO}, {RSH}")
    A(f"s_add_u32 s73, s73, {RG_OFF + layer * NRR * RG_REP}")
    set_exec((1 << NRR) - 1)
    A("s_waitcnt lgkmcnt(0)")
    A(f"buffer_store_dwordx4 {v(R_+4,4)}, {v(R_+2)}, {WS}, s73 offen sc1")
    A("s_mov_b64 exec, -1")
    A.label(L)

def roleR():
    A.label("L_roleR")
    prio(2)
    srd(8, 42, 2621440)
    A("s_and_b32 s60, s2, 7")
    A("s_lshr_b32 s61, s2, 3")
    A(f"s_lshr_b32 s{sA}, s61, 3")
    A("s_and_b32 s61, s61, 7")
    A("s_lshl_b32 s60, s60, 3")
    A("s_sub_u32 s62, 56, s60")
    A(f"s_cmp_lt_u32 s{sA}, 2")
    A("s_cselect_b32 s60, s60, s62")
    A(f"s_add_u32 s{sS2}, s60, s61")
    A(f"s_lshl_b32 s60, s{sA}, 9")
    A(f"s_lshl_b32 s61, s{WV}, 7")
    A(f"s_add_u32 s{sRA}, s60, s61")
    A(f"s_add_u32 s{sRA}, s{sRA}, s{sS2}")
    A(f"s_mul_i32 s{sXO}, s{sRA}, 1280")
    A(f"s_add_u32 s63, s{sXO}, {64 * 1280}")
    T = ACR
    n, h = T, T + 1
    A(f"v_and_b32 {v(n)}, 31, v1")
    A(f"v_lshrrev_b32 {v(h)}, 5, v1")
    A(f"v_mul_u32_u24 {v(vX)}, 640, {v(h)}")
    A(f"v_lshl_add_u32 {v(vX)}, {v(n)}, 1, {v(vX)}")
    XW = opt("xwide", 0)
    XR = AC2R + 8
    if XW:
        A(f"v_lshlrev_b32 {v(XR+12)}, 4, v1")
        A(f"v_add_u32 {v(XR+13)}, {1024 + 63 * 1280}, {v(XR+12)}")
        A(f"v_add_u32 {v(XR+14)}, 1024, {v(XR+12)}")
        A(f"v_cmp_gt_u32 vcc, 16, v1")
        A(f"buffer_load_dwordx4 {v(XR,4)}, {v(XR+12)}, {SRD1}, s{sXO} offen")
        A(f"v_cndmask_b32 {v(XR+14)}, {v(XR+13)}, {v(XR+14)}, vcc")
        A(f"buffer_load_dwordx4 {v(XR+4,4)}, {v(XR+14)}, {SRD1}, s{sXO} offen")
        set_exec(0xffffffff)
        A(f"buffer_load_dwordx4 {v(XR+8,4)}, {v(XR+13)}, {SRD1}, s{sXO} offen offset:1024")
        A("s_mov_b64 exec, -1")
        for i in range(20):
            A(f"v_mov_b32 {v(X+i)}, 0")
    else:
        for i in range(10):
            A(f"v_mov_b32 {v(X+2*i)}, 0")
            A(f"v_mov_b32 {v(X+2*i+1)}, 0")
            A(f"buffer_load_short_d16_hi {v(X+2*i)}, {v(vX)}, {SRD1}, s{sXO} offen offset:{64*i}")
            A(f"buffer_load_short_d16_hi {v(X+2*i+1)}, {v(vX)}, {SRD1}, s63 offen offset:{64*i}")
    NV = XN
    nonce_load(NV)
    ONES = XN + 4
    A(f"s_lshl_b32 s{sRHO}, s{sA}, 6")
    A(f"s_add_u32 s{sRHO}, s{sRHO}, s{sS2}")
    A(f"s_mul_i32 s{sWB}, s{sRHO}, {WROW}")
    for k in range(4):
        A(f"v_mov_b32 {v(ONES+k)}, -1")
    A(f"v_lshlrev_b32 {v(vWG)}, 4, v0")
    A(f"v_add_u32 {v(vWG1)}, {4096 + 112}, {v(vWG)}")
    A(f"v_add_u32 {v(T+2)}, 4096, {v(vWG)}")
    A(f"v_cmp_gt_u32 vcc, 65, v0")
    A(f"v_cndmask_b32 {v(vWG1)}, {v(vWG1)}, {v(T+2)}, vcc")
    A(f"v_lshlrev_b32 {v(T+4)}, 3, v0")
    A(f"s_lshl_b32 s61, s{sRHO}, 11")
    A(f"s_add_u32 s61, s61, {RESET_OFF}")
    A(f"buffer_store_dwordx2 {v(ONES,2)}, {v(T+4)}, {WS}, s61 offen sc1")
    LATEF = opt("latefill", 0)
    if not DRAIN0 and not LATEF:
        W_stores(0, ONES, ONES, ONES, lds=False)
    PREFR = opt("prefr", 0)
    if PREFR == 1:
        warm_weights(AC2R, 0, 32, PPART)
    e1, e1s, base, arg, c_, s_ = T + 6, T + 7, T + 8, T + 9, T + 10, T + 11
    hf_, wf, lc = T + 12, T + 13, T + 14
    G0 = T + 16
    A(f"v_bfe_u32 {v(e1)}, {v(n)}, 2, 1")
    A(f"v_mul_u32_u24 {v(e1)}, 10, {v(e1)}")
    A(f"v_and_b32 {v(arg)}, 3, {v(n)}")
    A(f"v_add_u32 {v(e1)}, {v(e1)}, {v(arg)}")
    A(f"v_lshrrev_b32 {v(arg)}, 3, {v(n)}")
    A(f"v_lshl_add_u32 {v(e1)}, {v(arg)}, 2, {v(e1)}")
    A(f"v_cvt_f32_u32 {v(e1)}, {v(e1)}")
    A(f"v_cvt_f32_u32 {v(hf_)}, {v(h)}")
    A(f"v_cvt_f32_u32 {v(wf)}, s{WV}")
    A(f"s_lshl_b32 s60, s{WV}, 10")
    A(f"s_add_u32 s60, s60, {LDS_CONST}")
    A(f"v_lshl_add_u32 {v(lc)}, v1, 4, s60")
    A(f"v_mul_f32 {v(e1s)}, {f32(1/20)}, {v(e1)}")
    A(f"v_mul_f32 {v(base)}, {f32(10.0)}, {v(hf_)}")
    A(f"v_fma_f32 {v(base)}, 4.0, {v(wf)}, {v(base)}")
    A(f"v_mul_f32 {v(base)}, {v(e1s)}, {v(base)}")
    A(f"s_cmp_lt_u32 s{WV}, 2")
    A(f"s_cselect_b64 s[64:65], -1, 0")
    for r in range(4):
        A(f"v_fmamk_f32 {v(arg)}, {v(e1s)}, {f32(r)}, {v(base)}")
        sincos(arg, c_, s_)
        A(f"v_cvt_pk_f16_f32 {v(G0+r)}, {v(c_)}, {v(s_)}")
        A(f"v_cvt_pk_f16_f32 {v(G0+4+r)}, -{v(s_)}, {v(c_)}")
        if r >= 2:
            A(f"v_cndmask_b32 {v(G0+r)}, 0, {v(G0+r)}, s[64:65]")
            A(f"v_cndmask_b32 {v(G0+4+r)}, 0, {v(G0+4+r)}, s[64:65]")
    A(f"ds_write_b128 {v(lc)}, {v(G0,4)}")
    A(f"ds_write_b128 {v(lc)}, {v(G0+4,4)} offset:4096")
    A(f"v_mul_f32 {v(wf)}, {f32(8.0)}, {v(wf)}")
    A(f"v_fma_f32 {v(wf)}, 4.0, {v(hf_)}, {v(wf)}")
    A(f"v_mul_f32 {v(e1s)}, {f32(1/640)}, {v(e1)}")
    A(f"v_mul_f32 {v(base)}, {v(e1s)}, {v(wf)}")
    for r in range(4):
        A(f"v_fmamk_f32 {v(arg)}, {v(e1s)}, {f32(r)}, {v(base)}")
        sincos(arg, G0 + 8 + r, G0 + 12 + r)
    A(f"ds_write_b128 {v(lc)}, {v(G0+8,4)} offset:8192")
    A(f"ds_write_b128 {v(lc)}, {v(G0+12,4)} offset:12288")
    A(f"v_cvt_f32_u32 {v(e1s)}, {v(n)}")
    A(f"v_mul_f32 {v(e1s)}, {f32(1/32)}, {v(e1s)}")
    A(f"v_mul_f32 {v(base)}, {v(e1s)}, {v(wf)}")
    for r in range(4):
        A(f"v_fmamk_f32 {v(arg)}, {v(e1s)}, {f32(r)}, {v(base)}")
        sincos(arg, c_, s_)
        A(f"v_cvt_pk_f16_f32 {v(G0+16+r)}, {v(c_)}, {v(s_)}")
        A(f"v_cvt_pk_f16_f32 {v(G0+20+r)}, -{v(s_)}, {v(c_)}")
    A(f"ds_write_b128 {v(lc)}, {v(G0+16,4)} offset:16384")
    A(f"ds_write_b128 {v(lc)}, {v(G0+20,4)} offset:20480")
    A(f"v_mov_b32 {v(AF1+10)}, 0")
    A(f"v_mov_b32 {v(AF1+11)}, 0")
    A(f"v_lshlrev_b32 {v(vLC)}, 4, v1")
    A(f"v_add_u32 {v(vLC)}, {LDS_CONST}, {v(vLC)}")
    A(f"v_mov_b32 {v(INV)}, {f32(1/640)}")
    A(f"s_mov_b32 s{s32f}, {f32(32.0)}")
    A(f"s_and_b32 s{sME}, s2, 15")
    A(f"v_mul_u32_u24 {v(vLWW)}, 21, {v(n)}")
    A(f"v_mad_u32_u24 {v(vLWW)}, {v(h)}, 10, {v(vLWW)}")
    A(f"s_mul_i32 s60, s{WV}, 704")
    A(f"s_add_u32 s60, s60, {LDS_W // 4}")
    A(f"v_add_lshl_u32 {v(vLWW)}, {v(vLWW)}, s60, 2")
    A("s_waitcnt lgkmcnt(0)")
    A("s_barrier")
    for (dst, ng, off) in ((B1R, 3, 0), (B1I, 3, 4096), (TWC, 4, 8192), (TWS, 4, 12288)):
        for gq in range(ng):
            A(f"ds_read_b128 {v(dst+4*gq,4)}, {v(vLC)} offset:{off + 1024*gq}")
    for j in range(3):
        A(f"v_add_u32 {v(arg)}, {256*j}, v0")
        A(f"v_mul_u32_u24 {v(c_)}, 3277, {v(arg)}")
        A(f"v_lshrrev_b32 {v(c_)}, 16, {v(c_)}")
        A(f"v_add_u32 {v(arg)}, {v(arg)}, {v(c_)}")
        A(f"v_lshlrev_b32 {v(arg)}, 2, {v(arg)}")
        A(f"v_add_u32 {v(vLWR0+j)}, {LDS_W}, {v(arg)}")
    A(f"v_lshlrev_b32 {v(vTA)}, 4, v1")
    A(f"v_lshlrev_b32 {v(vTB)}, 2, v1")
    A(f"v_add_u32 {v(vTB)}, 1024, {v(vTB)}")
    A(f"s_mul_i32 s{sTB}, s{sRA}, {T_REC}")
    A(f"s_add_u32 s{sTB}, s{sTB}, {T_OFF}")
    A(f"s_add_u32 s{sTB+1}, s{sTB}, {64 * T_REC}")
    stamp(0, dbg=(1, 0) if not opt("t0", 0) else None)
    ARV = 204
    A(f"s_waitcnt vmcnt({(1 if (DRAIN0 or LATEF) else 3) + (nloads(PPART) if PREFR == 1 else 0)})")
    nonce_take(NV)
    if LATEF:
        W_stores(0, ONES, ONES, ONES, lds=False)
    if XW:
        A(f"s_mul_i32 s60, s{WV}, 2560")
        A(f"v_add_u32 {v(XR+12)}, s60, {v(XR+12)}")
        A(f"v_add_u32 {v(XR+13)}, s60, {v(vX)}")
        A(f"ds_write_b128 {v(XR+12)}, {v(XR,4)}")
        A(f"ds_write_b128 {v(XR+12)}, {v(XR+4,4)} offset:1024")
        set_exec(0xffffffff)
        A(f"ds_write_b128 {v(XR+12)}, {v(XR+8,4)} offset:2048")
        A("s_mov_b64 exec, -1")
        A("s_waitcnt lgkmcnt(3)")
        for i in range(10):
            A(f"ds_read_u16_d16_hi {v(X+2*i)}, {v(XR+13)} offset:{64*i}")
            A(f"ds_read_u16_d16_hi {v(X+2*i+1)}, {v(XR+13)} offset:{1280+64*i}")
            if i == 5:
                A("s_waitcnt lgkmcnt(6)")
        A("s_waitcnt lgkmcnt(0)")
    stamp(10, dbg=(2, 0))
    if EARLY_R == 2:
        arrive_issue(0, sME, ARV)
    ln_stats(X, ACR)
    for (dst, ng, off) in ((B2R, 4, 16384), (B2I, 4, 20480)):
        for gq in range(ng):
            A(f"ds_read_b128 {v(dst+4*gq,4)}, {v(vLC)} offset:{off + 1024*gq}")
    ln_center_scale(X, XN, ACR, EXACT)
    to_f16(XN, ACR)
    if DRAIN0:
        A("s_waitcnt lgkmcnt(0)")
    else:
        A("s_waitcnt vmcnt(0) lgkmcnt(0)")
        A("s_barrier")
        arrive_issue(0, sME, XN + 8, AWR)
    def fill_xn1():
        for k in range(4):
            A(f"v_mov_b32 {v(XN+16+k)}, -1")
        store_rows(XN + 16, XN + 16, XN + 16, XN + 16, 0)
    row_dft(XN, None, (lambda: arrive_finish(0, sME, 15, XN + 8, 0, AWR)) if not DRAIN0 else None)
    stamp(11)
    write_W(0)
    stamp(1, dbg=(3, 0))
    if PREFR == 2:
        warm_weights(AC2R, 0, 32, PPART)
    srd(12, 52, 2621440)
    srd(16, 44, 1280)
    for i in range(10):
        A(f"v_mov_b32 {v(WR+i)}, 0")
        A(f"buffer_load_short_d16_hi {v(WR+i)}, {v(vX)}, {SRD3}, 0 offen offset:{64*i}")
    A(f"v_and_b32 {v(n)}, 31, v1")
    A(f"v_lshrrev_b32 {v(h)}, 5, v1")
    A(f"v_lshlrev_b32 {v(vLYW)}, 2, v0")
    A(f"v_mul_u32_u24 {v(vLYR)}, 320, {v(h)}")
    A(f"s_mul_i32 s60, s{WV}, 640")
    A(f"v_add3_u32 {v(vLYR)}, {v(vLYR)}, {v(n)}, s60")
    A(f"v_lshlrev_b32 {v(vLYR)}, 2, {v(vLYR)}")
    A(f"s_sub_u32 s60, 3, s{sA}")
    A(f"s_lshl_b32 s60, s60, 6")
    A(f"s_sub_u32 s61, 64, s{sS2}")
    A(f"s_add_u32 s60, s60, s61")
    A(f"s_lshl_b32 s60, s60, 4")
    A(f"s_lshl_b32 s61, s{sA}, 4")
    A(f"s_add_u32 s61, s61, {YM_OFF}")
    A(f"s_cmp_eq_u32 s{sS2}, 0")
    A(f"s_cselect_b32 s60, s61, s60")
    A(f"s_cselect_b32 s61, 6, 12")
    A(f"s_lshl_b32 s62, s{sRHO}, 4")
    A(f"v_lshlrev_b32 {v(vY0)}, 12, v0")
    A(f"v_add_u32 {v(vY0)}, s62, {v(vY0)}")
    A(f"v_sub_u32 {v(arg)}, 384, v0")
    A(f"v_lshlrev_b32 {v(arg)}, s61, {v(arg)}")
    A(f"v_add_u32 {v(vY1)}, s60, {v(arg)}")
    A(f"v_add_u32 {v(c_)}, {256 << 12}, {v(vY0)}")
    A(f"v_cmp_gt_u32 vcc, 64, v0")
    A(f"v_cndmask_b32 {v(vY1)}, {v(vY1)}, {v(c_)}, vcc")
    A(f"v_sub_u32 {v(arg)}, 128, v0")
    A(f"v_and_b32 {v(arg)}, 0xff, {v(arg)}")
    A(f"v_lshlrev_b32 {v(arg)}, s61, {v(arg)}")
    A(f"v_add_u32 {v(vY2)}, s60, {v(arg)}")
    A(f"s_mul_i32 s60, s{WV}, 5120")
    A(f"s_add_u32 s60, s60, {LDS_KX}")
    A(f"v_lshl_add_u32 {v(vKX)}, v1, 4, s60")
    A(f"s_and_b32 s{sREP}, s2, {NREP - 1}")
    A(f"s_lshl_b32 s{sREP}, s{sREP}, {FSH + 4}")
    A("s_waitcnt vmcnt(0)")
    tau_of(WR, ACR, 1.0)
    A(f"v_readfirstlane_b32 s{sTAU}, {v(ACR)}")
    if opt("touch", 0) > 1:
        touch(ACR, Y_OFF, 2 * Y_SZ)
    poll_flags(1, sREP, ACR)
    stamp(2, dbg=(7, 0))
    stage_Y(0)
    stamp(13)
    if not DRAIN2:
        for k in range(4):
            A(f"v_mov_b32 {v(AF2+k)}, -1")
        W_stores(1, AF2, AF2, AF2, lds=False)
    for i in range(10):
        A(f"ds_read_b32 {v(ACI+i)}, {v(vLYR)} offset:{128*i}")
    for i in range(10):
        A(f"s_waitcnt lgkmcnt({9-i})")
        A(f"v_fma_mix_f32 {v(X+2*i)}, {v(ACI+i)}, s{s32f}, {v(X+2*i)} op_sel:[0,0,0] op_sel_hi:[1,0,0]")
        A(f"v_fma_mix_f32 {v(X+2*i+1)}, {v(ACI+i)}, s{s32f}, {v(X+2*i+1)} op_sel:[1,0,0] op_sel_hi:[1,0,0]")
    PA, PB = AC2R, AC2R + 8
    pack_rows(X, PA, PB)
    unpack_rows(X, PA, PB)
    A(f"ds_write_b128 {v(vKX)}, {v(PA,4)} offset:2048")
    A(f"ds_write_b128 {v(vKX)}, {v(PB,4)} offset:3072")
    A(f"v_mov_b32 {v(PA+6)}, {v(PA+4)}")
    A(f"v_mov_b32 {v(PA+7)}, {v(PB+4)}")
    ln_stats(X, ACR)
    ln_center_scale(X, XN, ACR, EXACT1)
    if EXACT1:
        pack_rows(XN, PA + 16, PB + 16)
        unpack_rows(XN, PA + 16, PB + 16)
    stamp(14)
    router_publish(0, ACI, PA + 16, PB + 16)
    if not EXACT1:
        unpack_rows(XN, PA + 16, PB + 16)
    stamp(3, dbg=(8, 0))
    E2 = opt("e2", 1)
    if E2 == 1:
        arrive_issue(2, sME, AF2 + 8, AWR)
    A(f"v_mov_b32 {v(PA+4)}, {v(PA+20)}")
    A(f"v_mov_b32 {v(PA+5)}, {v(PB+20)}")
    A(f"ds_write_b128 {v(vKX)}, {v(PA+16,4)}")
    A(f"ds_write_b128 {v(vKX)}, {v(PB+16,4)} offset:1024")
    A(f"ds_write_b128 {v(vKX)}, {v(PA+4,4)} offset:4096")
    if EARLY_R == 2:
        arrive_issue(2, sME, ARV)
    for i in range(10):
        A(f"v_pk_add_f32 {v(X+2*i,2)}, {v(X+2*i,2)}, {v(XN+2*i,2)}")
        rnd_pair(X + 2 * i, X + 2 * i + 1, ACR + (i % 4))
    ln_stats(X, ACR)
    ln_center_scale(X, XN, ACR + 8, EXACT)
    to_f16(XN, ACR + 8)
    if EARLY_R == 2:
        arrive_finish(2, sME, 15, ARV, 0)
    if E2 == 0:
        arrive_issue(2, sME, XN + 14, AWR)
        row_dft(XN, None, lambda: arrive_finish(2, sME, 15, XN + 14, 0, AWR))
    elif E2 == 1:
        row_dft(XN, lambda: arrive_finish(2, sME, 15, AF2 + 8, 0, AWR))
    else:
        row_dft(XN, None, lambda: arrive_finish(2, sME, 15, 250 - 4, 0, AWR))
    stamp(16)
    if not opt("wlate", 0):
        write_W(1)
    stamp(4)
    A(f"s_mov_b32 s74, {X2_OFF}")
    def release(layer, row, stash, with_xn):
        R0 = ACR
        if stash:
            A(f"ds_read_b128 {v(R0,4)}, {v(vKX)} offset:{2048+1024*row}")
            A(f"ds_read_b128 {v(R0+8,4)}, {v(vKX)} offset:4096")
            if with_xn:
                A(f"ds_read_b128 {v(R0+12,4)}, {v(vKX)} offset:{1024*row}")
            x4, x1, n4, n1 = R0, R0 + 10 + row, R0 + 12, R0 + 8 + row
        else:
            P_ = PA if row == 0 else PB
            x4, x1, n4, n1 = P_, P_ + 4, P_ + 16, P_ + 20
        A(f"s_add_u32 s61, s{NONCE}, {6 + layer}")
        A(f"v_mov_b32 {v(R0+4)}, {v(MM+row)}")
        A(f"v_mov_b32 {v(R0+5)}, {v(RS+row)}")
        A(f"v_mov_b32 {v(R0+6)}, s61")
        A(f"v_mov_b32 {v(R0+7)}, s61")
        A("s_waitcnt lgkmcnt(0)")
        if with_xn:
            A(f"buffer_store_dwordx4 {v(n4,4)}, {v(vTA)}, {WS}, s{sTB+row} offen sc1")
            A(f"buffer_store_dword {v(n1)}, {v(vTB)}, {WS}, s{sTB+row} offen sc1")
        A(f"buffer_store_dwordx4 {v(x4,4)}, {v(vTA)}, {WS}, s{sTB+row} offen offset:1280 sc1")
        A(f"buffer_store_dword {v(x1)}, {v(vTB)}, {WS}, s{sTB+row} offen offset:1280 sc1")
        A("s_waitcnt vmcnt(0)")
        A("s_mov_b64 exec, 1")
        A(f"buffer_store_dwordx4 {v(R0+4,4)}, {v(vTA)}, {WS}, s{sTB+row} offen offset:2560 sc1")
        A("s_mov_b64 exec, -1")
    def release_candidates(layer, stash):
        for row in range(2):
            Ln = A.newlabel("Lrel")
            A(f"s_cmp_eq_u32 s{56+row}, 0")
            A(f"s_cbranch_scc1 {Ln}")
            release(layer, row, stash, False)
            A.label(Ln)
    def wait_sel(layer, stash):
        loop, done = A.newlabel("Lsel"), A.newlabel("Lseld")
        T2 = ACR + 16
        A(f"s_mov_b32 s60, {X2_OFF + SEL_OFF + 256 * layer}")
        A(f"v_and_b32 {v(T2)}, 7, v1")
        A(f"v_lshlrev_b32 {v(T2)}, 2, {v(T2)}")
        A(f"s_mov_b32 s62, {SPIN}")
        A.label(loop)
        A(f"buffer_load_dword {v(T2+1)}, {v(T2)}, {WS}, s60 offen sc1")
        A("s_waitcnt vmcnt(0)")
        A(f"v_cmp_eq_u32 vcc, -1, {v(T2+1)}")
        A(f"s_cbranch_vccz {done}")
        spin_tail(loop, 62, opt('selsleep', 4))
        A.label(done)
        for j in range(8):
            A(f"v_readlane_b32 s{sSEL+j}, {v(T2+1)}, {j}")
        for row in range(2):
            A(f"s_add_u32 s60, s{sRA}, {64 * row}")
            A(f"s_mov_b32 s{76+row}, -1")
            for j in range(8):
                A(f"s_cmp_eq_u32 s60, s{sSEL+j}")
                A(f"s_cselect_b32 s{76+row}, {j}, s{76+row}")
            Ln = A.newlabel("Lpush")
            A(f"s_cmp_lt_i32 s{76+row}, 0")
            A(f"s_cbranch_scc1 {Ln}")
            A(f"s_cmp_lg_u32 s{56+row}, 0")
            A(f"s_cbranch_scc1 {Ln}")
            release(layer, row, stash, True)
            A.label(Ln)
    release_candidates(0, True)
    vE0, vDF, vDM, vP2, vNW = vLWW, vLWR0, vLWR0 + 1, vLWR0 + 2, vWG
    n, h = ACR + 8, ACR + 9
    A(f"v_and_b32 {v(n)}, 31, v1")
    A(f"v_lshrrev_b32 {v(h)}, 5, v1")
    A(f"v_mul_u32_u24 {v(vE0)}, 20, {v(n)}")
    A(f"v_mad_u32_u24 {v(vE0)}, {v(h)}, 10, {v(vE0)}")
    vER = vLC
    A(f"v_and_b32 {v(vER)}, 31, {v(vE0)}")
    A(f"v_lshrrev_b32 {v(vDF)}, 5, {v(vE0)}")
    A(f"s_lshl_b32 s60, s{WV}, 2")
    A(f"s_add_u32 s60, s60, {LDS_W}")
    A(f"v_add_u32 {v(vE0)}, {v(vE0)}, {v(vDF)}")
    A(f"v_lshl_add_u32 {v(vE0)}, {v(vE0)}, 4, s60")
    A(f"v_mul_u32_u24 {v(vDF)}, 330, {v(h)}")
    A(f"v_add_u32 {v(vDF)}, {v(vDF)}, {v(n)}")
    A(f"v_sub_u32 {v(vDM)}, 362, {v(vDF)}")
    A(f"v_lshlrev_b32 {v(vDF)}, 4, {v(vDF)}")
    A(f"v_add_u32 {v(vDF)}, {LDS_W}, {v(vDF)}")
    A(f"v_cmp_eq_u32 vcc, 0, {v(n)}")
    A(f"v_addc_co_u32 {v(vDM)}, vcc, 0, {v(vDM)}, vcc")
    A(f"v_lshlrev_b32 {v(vDM)}, 4, {v(vDM)}")
    A(f"v_add_u32 {v(vDM)}, {LDS_W}, {v(vDM)}")
    A(f"s_lshl_b32 s60, s{WV}, 8")
    A(f"v_mul_u32_u24 {v(vP2)}, 10240, {v(h)}")
    A(f"v_lshl_add_u32 {v(vP2)}, {v(n)}, 3, {v(vP2)}")
    A(f"v_add_u32 {v(vP2)}, s60, {v(vP2)}")
    A(f"s_mul_i32 s60, s{WV}, 2560")
    A(f"s_add_u32 s60, s60, {LDS_NEW}")
    A(f"v_lshl_add_u32 {v(vNW)}, v1, 2, s60")
    A(f"s_add_u32 s75, s74, 4096")
    A(f"s_add_u32 s78, s74, 8192")
    ORDER = opt("order", 1)
    def sel_step():
        wait_sel(0, True)
        A(f"s_add_u32 s{sTB}, s{sTB}, {T_SZ}")
        A(f"s_add_u32 s{sTB+1}, s{sTB+1}, {T_SZ}")
        stamp(5)
    CU, CV = XN + 12, XN + 16
    def coefs():
        tr, ca, sa, cb, sb, ar, t0, t1_ = range(AF2, AF2 + 8)
        A(f"v_and_b32 {v(tr)}, 1, v1")
        A(f"v_lshlrev_b32 {v(tr)}, 6, {v(tr)}")
        A(f"v_add_u32 {v(tr)}, s{sRA}, {v(tr)}")
        A(f"s_mov_b32 s64, 0x00300003")
        A(f"s_mov_b32 s65, 0x30000300")
        for p in range(4):
            for (j, cc, ss) in ((2 * p, ca, sa), (2 * p + 1, cb, sb)):
                A(f"v_mul_u32_u24 {v(ar)}, s{sSEL+j}, {v(tr)}")
                A(f"v_and_b32 {v(ar)}, 0x7ff, {v(ar)}")
                A(f"v_cvt_f32_u32 {v(ar)}, {v(ar)}")
                A(f"v_mul_f32 {v(ar)}, {f32(1/2048)}, {v(ar)}")
                sincos(ar, cc, ss)
            A(f"v_sub_f32 {v(t0)}, {v(ca)}, {v(sb)}")
            A(f"v_add_f32 {v(t1_)}, {v(sa)}, {v(cb)}")
            A(f"v_mul_f32 {v(t0)}, 0.5, {v(t0)}")
            A(f"v_mul_f32 {v(t1_)}, 0.5, {v(t1_)}")
            A(f"v_cvt_pk_f16_f32 {v(CU+p)}, {v(t0)}, {v(t1_)}")
            A(f"v_add_f32 {v(t0)}, {v(ca)}, {v(sb)}")
            A(f"v_sub_f32 {v(t1_)}, {v(cb)}, {v(sa)}")
            A(f"v_mul_f32 {v(t0)}, 0.5, {v(t0)}")
            A(f"v_mul_f32 {v(t1_)}, 0.5, {v(t1_)}")
            A(f"v_cvt_pk_f16_f32 {v(CV+p)}, {v(t0)}, {v(t1_)}")
            A(f"v_cndmask_b32 {v(CU+p)}, 0, {v(CU+p)}, s[64:65]")
            A(f"v_cndmask_b32 {v(CV+p)}, 0, {v(CV+p)}, s[64:65]")

    RAW = AC2R
    def x2loads():
        for i in range(10):
            so = ("s74", "s75", "s78")[i // 4]
            A(f"buffer_load_dwordx2 {v(RAW+2*i,2)}, {v(vP2)}, {WS}, {so} offen offset:{1024*(i%4)} sc1")
    def wait_hint():
        loop, done = A.newlabel("Lx2"), A.newlabel("Lx2d")
        A(f"s_mov_b32 s62, {SPIN}")
        A(f"s_add_u32 s60, s74, {SEL_OFF + 128}")
        A(f"v_mov_b32 {v(ACR)}, 0")
        A.label(loop)
        A(f"buffer_load_dword {v(ACR+1)}, {v(ACR)}, {WS}, s60 offen sc1")
        A("s_waitcnt vmcnt(0)")
        A(f"v_cmp_eq_u32 vcc, -1, {v(ACR+1)}")
        A(f"s_cbranch_vccz {done}")
        spin_tail(loop, 62, opt("hintsleep", 2))
        A.label(done)
    alldone = A.newlabel("Lx2a")
    if ORDER == 1:
        poll_flags(3, sREP, ACR)
        stamp(6, dbg=(13, 0))
        stage_Y(1)
        sel_step()
        coefs()
        wait_hint()
    else:
        sel_step()
        coefs()
        poll_flags(3, sREP, ACR)
        wait_hint()
        stamp(6, dbg=(13, 0))
        stage_Y(1, None, x2loads)
        any_sentinel(range(RAW, RAW + 20), ACR, alldone)
    loop, done = A.newlabel("Lx2"), A.newlabel("Lx2d")
    A(f"s_mov_b32 s62, {SPIN}")
    A.label(loop)
    x2loads()
    A("s_waitcnt vmcnt(0)")
    any_sentinel(range(RAW, RAW + 20), ACR, done)
    spin_tail(loop, 62, opt("x2sleep", 1))
    A.label(done)
    A.label(alldone)
    stamp(7)
    Z = ACR + 12
    for i in range(10):
        A(f"v_lshlrev_b32 {v(Z+2*i)}, 16, {v(RAW+2*i)}")
        A(f"v_and_b32 {v(Z+2*i+1)}, 0xffff0000, {v(RAW+2*i)}")
    for i in range(10):
        A(f"ds_write_b32 {v(vNW)}, {v(RAW+2*i)} offset:{256*i}")
    ln_stats(Z, ACR + 2)
    ln_center_scale(Z, Z, ACR + 2, EXACT)
    to_f16(Z, ACR + 2, sub=lambda i: RAW + 2 * i + 1)
    CBL = [16 + 4 * i for i in range(6)] + [AF1, AF1 + 4, AF1 + 8, XN + 8]
    WA = TWC
    def shadow1():
        for i in range(10):
            A(f"ds_read_b32 {v(CBL[i]+2)}, {v(vLYR)} offset:{128*i}")
        for i in range(10):
            A(f"s_waitcnt lgkmcnt({9-i})")
            A(f"v_fma_mix_f32 {v(CBL[i])}, {v(CBL[i]+2)}, s{s32f}, {v(X+2*i)} op_sel:[0,0,0] op_sel_hi:[1,0,0]")
            A(f"v_fma_mix_f32 {v(CBL[i]+1)}, {v(CBL[i]+2)}, s{s32f}, {v(X+2*i+1)} op_sel:[1,0,0] op_sel_hi:[1,0,0]")
    def shadow2():
        for i in range(10):
            A(f"v_add_u32 {v(WA+i)}, {i}, {v(vER)}")
            A(f"v_bfe_u32 {v(WA+i)}, {v(WA+i)}, 5, 1")
            A(f"v_lshl_add_u32 {v(WA+i)}, {v(WA+i)}, 4, {v(vE0)}")
    A("s_waitcnt lgkmcnt(0)")
    row_dft(XN, shadow1, shadow2)
    stamp(18)
    for i in range(10):
        A(f"v_cvt_pk_f16_f32 {v(ACR+i)}, {v(AC2R+i)}, {v(AC2I+i)}")
        A(f"ds_write_b32 {v(WA+i)}, {v(ACR+i)} offset:{16*i}")
    A("s_mov_b64 exec, 1")
    A(f"ds_write_b32 {v(vE0)}, {v(ACR)} offset:{660*16}")
    A("s_mov_b64 exec, -1")
    A("s_waitcnt lgkmcnt(0)")
    A("s_barrier")
    FRL = [40 + 4 * q for q in range(16)] + [160 + 4 * q for q in range(4)]
    def corr(k):
        A(f"v_mfma_f32_16x16x32_f16 {v(CBL[k],4)}, {v(CU,4)}, {v(FRL[2*k],4)}, {v(CBL[k],4)}")
        A(f"v_mfma_f32_16x16x32_f16 {v(CBL[k],4)}, {v(CV,4)}, {v(FRL[2*k+1],4)}, {v(CBL[k],4)}")
    for i in range(10):
        A(f"ds_read_b128 {v(FRL[2*i],4)}, {v(vDF)} offset:{528*i}")
        A(f"ds_read_b128 {v(FRL[2*i+1],4)}, {v(vDM)} offset:{528*(9-i)}")
        if i >= 6:
            A(f"s_waitcnt lgkmcnt(12)")
            corr(i - 6)
    for k in range(4, 10):
        A(f"s_waitcnt lgkmcnt({2*(9-k)})")
        corr(k)
    stamp(19)
    for row in range(2):
        Lnext = A.newlabel("Lown")
        A(f"s_cmp_lt_i32 s{76+row}, 0")
        A(f"s_cbranch_scc1 {Lnext}")
        A(f"s_lshr_b32 s62, s{76+row}, 1")
        A("s_mul_i32 s62, s62, 2560")
        A(f"s_add_u32 s62, s62, {LDS_NEW}")
        A(f"s_and_b32 s61, s{76+row}, 1")
        A("s_lshl_b32 s61, s61, 4")
        A("s_sub_u32 s61, 16, s61")
        A(f"v_lshl_add_u32 {v(240)}, v1, 2, s62")
        for i in range(10):
            A(f"ds_read_b32 {v(241+i)}, {v(240)} offset:{256*i}")
        A("s_waitcnt lgkmcnt(0)")
        for i in range(10):
            A(f"v_lshlrev_b32 {v(241+i)}, s61, {v(241+i)}")
            A(f"v_and_b32 {v(241+i)}, 0xffff0000, {v(241+i)}")
            A(f"v_sub_f32 {v(241+i)}, {v(241+i)}, {v(X+2*i+row)}")
            A(f"v_add_f32 {v(CBL[i]+row)}, {v(CBL[i]+row)}, {v(241+i)}")
        A.label(Lnext)
    for u in range(5):
        A(f"v_cvt_pk_bf16_f32 {v(PA+u)}, {v(CBL[2*u])}, {v(CBL[2*u+1])}")
        A(f"v_cvt_pk_bf16_f32 {v(PB+u)}, {v(CBL[2*u]+1)}, {v(CBL[2*u+1]+1)}")
    unpack_rows(X, PA, PB)
    ln_stats(X, ACR)
    ln_center_scale(X, XN, ACR, EXACT1)
    if EXACT1:
        pack_rows(XN, PA + 16, PB + 16)
        unpack_rows(XN, PA + 16, PB + 16)
    stamp(20)
    router_publish(1, ACI + 8, PA + 16, PB + 16)
    if not EXACT1:
        unpack_rows(XN, PA + 16, PB + 16)
    stamp(8, dbg=(14, 0))
    OB = 16
    A(f"s_mul_i32 s60, s{WV}, 2560")
    A(f"v_add_u32 {v(OB)}, s60, {v(vX)}")
    for i in range(10):
        A(f"v_pk_add_f32 {v(X+2*i,2)}, {v(X+2*i,2)}, {v(XN+2*i,2)}")
        A(f"v_cvt_pk_bf16_f32 {v(OB+2+i)}, {v(X+2*i)}, {v(X+2*i+1)}")
        A(f"ds_write_b16 {v(OB)}, {v(OB+2+i)} offset:{64*i}")
        A(f"ds_write_b16_d16_hi {v(OB)}, {v(OB+2+i)} offset:{1280+64*i}")
    A(f"v_lshlrev_b32 {v(OB+1)}, 4, v1")
    A(f"v_add_u32 {v(OB)}, s60, {v(OB+1)}")
    A("s_waitcnt lgkmcnt(0)")
    for k in range(3):
        A(f"ds_read_b128 {v(OB+12+4*k,4)}, {v(OB)} offset:{1024*k}")
    A(f"v_add_u32 {v(OB+2)}, {1024 + 63 * 1280}, {v(OB+1)}")
    A(f"v_add_u32 {v(OB+3)}, 1024, {v(OB+1)}")
    A(f"v_cmp_gt_u32 vcc, 16, v1")
    A(f"v_cndmask_b32 {v(OB+3)}, {v(OB+2)}, {v(OB+3)}, vcc")
    def out_stores():
        A("s_waitcnt lgkmcnt(0)")
        A(f"buffer_store_dwordx4 {v(OB+12,4)}, {v(OB+1)}, {SRD2}, s{sXO} offen sc1")
        A(f"buffer_store_dwordx4 {v(OB+16,4)}, {v(OB+3)}, {SRD2}, s{sXO} offen sc1")
        set_exec(0xffffffff)
        A(f"buffer_store_dwordx4 {v(OB+20,4)}, {v(OB+2)}, {SRD2}, s{sXO} offen offset:1024 sc1")
        A("s_mov_b64 exec, -1")
    OD = opt("outdelay", 0)
    if OD:
        A(f"s_lshl_b32 s73, s{sRHO}, 4")
        A(f"s_add_u32 s73, s73, {RG_OFF + NRR * RG_REP}")
        A(f"v_mov_b32 {v(ACR)}, 0")
        for _ in range(OD):
            A(f"buffer_load_dword {v(ACR+1)}, {v(ACR)}, {WS}, s73 offen sc1")
            A("s_waitcnt vmcnt(0)")
    out_stores()
    release_candidates(1, False)
    wait_sel(1, False)
    stamp(22)
    stamp(9)
    A("s_endpgm")

def roleC():
    A.label("L_roleC")
    B1, TC, TS, A2, DT, RAW, AR, AI, P, AC, O, T = 16, 32, 48, 64, 128, 160, 176, 192, 208, 224, 240, 248
    sC, sCME, sCREP, sK, sW0, sW1, sY, sLAST = 22, 23, 24, 25, 26, 27, 28, 29
    nonce_load(T + 4)
    if opt("prefc", 1) == 1:
        warm_weights(AC, C0, 29, PPART)
    A(f"s_sub_u32 s60, s2, {C0}")
    A("s_and_b32 s61, s60, 7")
    A("s_lshr_b32 s62, s60, 3")
    A("s_lshr_b32 s63, s62, 2")
    A("s_lshl_b32 s63, s63, 5")
    A("s_lshl_b32 s61, s61, 2")
    A("s_and_b32 s62, s62, 3")
    A(f"s_add_u32 s{sC}, s63, s61")
    A(f"s_add_u32 s{sC}, s{sC}, s62")
    A(f"s_and_b32 s{sCME}, s2, 15")
    A(f"s_cmp_eq_u32 s{sCME}, 0")
    A(f"s_cselect_b32 s{sLAST}, 10, 9")
    A(f"s_and_b32 s{sCREP}, s2, {NREP - 1}")
    A(f"s_lshl_b32 s{sCREP}, s{sCREP}, {FSH + 4}")
    n, g, t1, gs, arg, base, st = RAW, RAW + 1, RAW + 2, RAW + 3, RAW + 4, RAW + 5, RAW + 6
    ca, sa, cb, sb, x0, x1 = RAW + 7, RAW + 8, RAW + 9, RAW + 10, RAW + 11, RAW + 12
    A(f"v_and_b32 {v(n)}, 15, v1")
    A(f"v_lshrrev_b32 {v(g)}, 4, v1")
    A(f"s_and_b32 s70, s{WV}, 1")
    A(f"s_lshl_b32 s70, s70, 4")
    A(f"s_lshr_b32 s61, s{WV}, 1")
    A(f"v_lshrrev_b32 v2, 1, v0")
    A(f"v_and_b32 v6, 1, v0")
    A(f"s_lshl_b32 s62, s{sC}, 1")
    A(f"v_add_u32 v3, s62, v6")
    A(f"v_min_u32 v3, 320, v3")
    A(f"v_sub_u32 v4, 640, v3")
    A(f"v_cmp_ne_u32 vcc, 0, v3")
    A(f"v_cndmask_b32 v4, 0, v4, vcc")
    A(f"v_add_u32 v5, 7, v4")
    A(f"v_cmp_lt_u32 vcc, 320, v4")
    A(f"v_cndmask_b32 v4, v4, v5, vcc")
    A(f"v_mul_u32_u24 v5, {WROW}, v2")
    A(f"v_mul_u32_u24 v6, 8256, v6")
    A(f"v_lshl_add_u32 v6, v2, 4, v6")
    A(f"v_lshl_add_u32 v2, v3, 4, v5")
    A(f"v_lshl_add_u32 v3, v4, 4, v5")
    A(f"s_mul_i32 s63, s61, 8256")
    A(f"v_lshlrev_b32 v7, 10, {v(g)}")
    A(f"v_lshl_add_u32 v7, {v(n)}, 4, v7")
    A(f"v_add_u32 v7, s63, v7")
    A(f"s_add_u32 s62, s62, s61")
    A(f"s_lshl_b32 s62, s62, 12")
    A(f"v_lshl_add_u32 v8, {v(g)}, 6, {v(n)}")
    A(f"v_add_u32 v8, s70, v8")
    A(f"v_lshl_add_u32 v8, v8, 4, s62")
    A(f"s_lshr_b32 s62, s62, 6")
    A(f"s_add_u32 s62, s62, {YM_OFF + 48}")
    A(f"v_lshlrev_b32 v9, 4, {v(g)}")
    A(f"v_sub_u32 v9, s62, v9")
    def Y_stores(r0, r1, rm, sy, prep=None):
        A(f"buffer_store_dwordx4 {v(r0,4)}, v8, {WS}, {sy} offen sc1")
        A(f"buffer_store_dwordx4 {v(r1,4)}, v8, {WS}, {sy} offen offset:512 sc1")
        Lm = A.newlabel("Lym")
        A(f"s_bitcmp1_b32 s{WV}, 0")
        A(f"s_cbranch_scc1 {Lm}")
        if prep:
            prep()
        set_exec(0x0001000100010001)
        A(f"buffer_store_dwordx4 {v(rm,4)}, v9, {WS}, {sy} offen sc1")
        A("s_mov_b64 exec, -1")
        A.label(Lm)
    A(f"s_waitcnt vmcnt({nloads(PPART) if opt('prefc', 1) == 1 else 0})")
    nonce_take(T + 4)
    Li = A.newlabel("Lci")
    A(f"s_sub_u32 s60, s2, {C0}")
    A(f"s_lshl_b32 s61, s{WV}, 4")
    A(f"s_or_b32 s60, s60, s61")
    A(f"s_cmp_ge_u32 s60, 16")
    A(f"s_cbranch_scc1 {Li}")
    cnt_init(sCME, range(4), T)
    A.label(Li)
    for k in range(4):
        A(f"v_mov_b32 {v(O+k)}, -1")
    for lay in range(2 if opt("y2fill", 2) == 0 else 1):
        A(f"s_mov_b32 s63, {Y_OFF + lay * Y_SZ}")
        Y_stores(O, O, O, "s63")
    if opt("prefc", 1) == 2:
        warm_weights(AC, C0, 29, PPART)
    A(f"v_add_u32 {v(t1)}, s70, {v(n)}")
    A(f"v_cvt_f32_u32 {v(t1)}, {v(t1)}")
    A(f"v_cvt_f32_u32 {v(gs)}, {v(g)}")
    A(f"v_mul_f32 {v(st)}, {f32(1/32)}, {v(t1)}")
    A(f"v_mul_f32 {v(base)}, {v(st)}, {v(gs)}")
    A(f"v_mul_f32 {v(base)}, {f32(8.0)}, {v(base)}")
    for w in range(4):
        A(f"v_fmamk_f32 {v(arg)}, {v(st)}, {f32(2*w)}, {v(base)}")
        sincos(arg, ca, sa)
        A(f"v_add_f32 {v(arg)}, {v(arg)}, {v(st)}")
        sincos(arg, cb, sb)
        A(f"v_sub_f32 {v(x0)}, {v(ca)}, {v(sb)}")
        A(f"v_add_f32 {v(x1)}, {v(sa)}, {v(cb)}")
        A(f"v_cvt_pk_f16_f32 {v(B1+w)}, {v(x0)}, {v(x1)}")
        A(f"v_cvt_pk_f16_f32 {v(B1+4+w)}, -{v(x1)}, {v(x0)}")
        A(f"v_add_f32 {v(x0)}, {v(ca)}, {v(sb)}")
        A(f"v_sub_f32 {v(x1)}, {v(cb)}, {v(sa)}")
        A(f"v_cvt_pk_f16_f32 {v(B1+8+w)}, {v(x0)}, {v(x1)}")
        A(f"v_cvt_pk_f16_f32 {v(B1+12+w)}, {v(x1)}, -{v(x0)}")
    A(f"v_mul_f32 {v(st)}, {f32(1/2048)}, {v(t1)}")
    A(f"v_mul_f32 {v(base)}, {v(st)}, {v(gs)}")
    A(f"v_mul_f32 {v(base)}, 4.0, {v(base)}")
    for j in range(4):
        for i in range(4):
            A(f"v_fmamk_f32 {v(arg)}, {v(st)}, {f32(16*j+i)}, {v(base)}")
            sincos(arg, ca, sa)
            A(f"v_mul_f32 {v(TC+4*j+i)}, {f32(1/64)}, {v(ca)}")
            A(f"v_mul_f32 {v(TS+4*j+i)}, {f32(1/64)}, {v(sa)}")
    A(f"v_lshrrev_b32 {v(x0)}, 2, {v(n)}")
    A(f"v_lshlrev_b32 {v(x0)}, 4, {v(x0)}")
    A(f"v_and_b32 {v(x1)}, 3, {v(n)}")
    A(f"v_lshl_add_u32 {v(x0)}, {v(x1)}, 1, {v(x0)}")
    A(f"s_lshr_b32 s60, s70, 1")
    A(f"s_lshr_b32 s61, s{WV}, 1")
    A(f"s_add_u32 s60, s60, s61")
    A(f"v_add_u32 {v(x0)}, s60, {v(x0)}")
    A(f"v_cvt_f32_u32 {v(x0)}, {v(x0)}")
    A(f"v_mul_f32 {v(st)}, {f32(1/64)}, {v(x0)}")
    A(f"v_mul_f32 {v(base)}, {v(st)}, {v(gs)}")
    A(f"v_mul_f32 {v(base)}, 4.0, {v(base)}")
    A(f"s_lshl_b32 s60, s{WV}, 12")
    A(f"s_add_u32 s60, s60, 24576")
    A(f"v_lshl_add_u32 {v(x1)}, v1, 4, s60")
    for j in range(4):
        for i in range(4):
            A(f"v_fmamk_f32 {v(arg)}, {v(st)}, {f32(16*j+i)}, {v(base)}")
            sincos(arg, ca, sa)
            A(f"v_cvt_pk_f16_f32 {v(DT+4*j+i)}, {v(ca)}, {v(sa)}")
        A(f"ds_write_b128 {v(x1)}, {v(DT+4*j,4)} offset:{1024*j}")
    A(f"v_lshlrev_b32 {v(x1)}, 4, v1")
    A("s_waitcnt lgkmcnt(0)")
    A("s_barrier")
    for q in range(16):
        A(f"ds_read_b128 {v(A2+4*q,4)}, {v(x1)} offset:{24576 + 1024*q}")
        if q == 7:
            A("s_waitcnt lgkmcnt(0)")
    A("s_waitcnt vmcnt(0)")
    prio(3)
    A(f"s_mov_b32 s{sK}, 0")
    A(f"s_mov_b32 s{sW0}, {W_OFF}")
    A(f"s_mov_b32 s{sY}, {Y_OFF}")
    if opt("touch", 0) > 1:
        touch(T, W_OFF, 2 * W_SZ)
    stamp(4, dbg=(4, C0))
    A.label("L_Cloop")
    A(f"s_add_u32 s{sW1}, s{sW0}, {128 * WROW}")
    poll_flags(f"s{sK}", sCREP, T)
    stamp(0, f"s{sK}", dbg=(5, C0, 0))
    loop, done = A.newlabel("Lcw"), A.newlabel("Lcwd")
    A(f"s_add_u32 s30, s{sK}, 1")
    AWC = opt("awc", 1)
    if EARLY_C == 2:
        arrive_issue("s30", sCME, O, AWC)
    A(f"s_mov_b32 s62, {SPIN}")
    A.label(loop)
    A(f"buffer_load_dwordx4 {v(RAW,4)}, v2, {WS}, s{sW0} offen sc1")
    A(f"buffer_load_dwordx4 {v(RAW+4,4)}, v2, {WS}, s{sW1} offen sc1")
    A(f"buffer_load_dwordx4 {v(RAW+8,4)}, v3, {WS}, s{sW0} offen sc1")
    A(f"buffer_load_dwordx4 {v(RAW+12,4)}, v3, {WS}, s{sW1} offen sc1")
    for j in range(4):
        A(f"s_waitcnt vmcnt({3-j})")
        A(f"ds_write_b128 v6, {v(RAW+4*j,4)} offset:{(j>>1)*4096 + (j&1)*2048}")
    any_sentinel(range(RAW, RAW + 16), T, done)
    spin_tail(loop, 62, 2)
    A.label(done)
    if EARLY_C == 1:
        arrive_issue("s30", sCME, O, AWC)
    A("s_waitcnt lgkmcnt(0)")
    A("s_barrier")
    stamp(1, f"s{sK}")
    for j in range(4):
        A(f"ds_read_b128 {v(DT+8*j,4)}, v7 offset:{256*j}")
        A(f"ds_read_b128 {v(DT+8*j+4,4)}, v7 offset:{4096+256*j}")
    if EARLY_C == 2:
        arrive_finish("s30", sCME, f"s{sLAST}", O, 0, AWC)
    for j in range(4):
        A(f"s_waitcnt lgkmcnt({7-2*j})")
        A(f"v_mfma_f32_16x16x32_f16 {v(AR+4*j,4)}, {v(DT+8*j,4)}, {v(B1,4)}, 0")
        A(f"v_mfma_f32_16x16x32_f16 {v(AI+4*j,4)}, {v(DT+8*j,4)}, {v(B1+4,4)}, 0")
        A(f"s_waitcnt lgkmcnt({6-2*j})")
        A(f"v_mfma_f32_16x16x32_f16 {v(AR+4*j,4)}, {v(DT+8*j+4,4)}, {v(B1+8,4)}, {v(AR+4*j,4)}")
        A(f"v_mfma_f32_16x16x32_f16 {v(AI+4*j,4)}, {v(DT+8*j+4,4)}, {v(B1+12,4)}, {v(AI+4*j,4)}")
    A(f"s_add_u32 s{sK}, s{sK}, 1")
    for j in range(4):
        for i in (4 * j, 4 * j + 2):
            pr, pi = RAW + (i % 4) * 2, RAW + (i % 4) * 2 + 2
            A(f"v_pk_mul_f32 {v(pr,2)}, {v(AR+i,2)}, {v(TC+i,2)}")
            A(f"v_pk_mul_f32 {v(pi,2)}, {v(AI+i,2)}, {v(TC+i,2)}")
            A(f"v_pk_fma_f32 {v(pr,2)}, {v(AI+i,2)}, {v(TS+i,2)}, {v(pr,2)}")
            A(f"v_pk_fma_f32 {v(pi,2)}, {v(AR+i,2)}, {v(TS+i,2)}, {v(pi,2)} neg_lo:[1,0,0] neg_hi:[1,0,0]")
            A(f"v_cvt_pk_f16_f32 {v(P+i)}, {v(pr)}, {v(pi)}")
            A(f"v_cvt_pk_f16_f32 {v(P+i+1)}, {v(pr+1)}, {v(pi+1)}")
        for jm in range(4):
            c = "0" if j == 0 else v(AC + 4 * jm, 4)
            A(f"v_mfma_f32_16x16x32_f16 {v(AC+4*jm,4)}, {v(A2+16*jm+4*j,4)}, {v(P+4*j,4)}, {c}")
        if j == opt("cfin", 1) and EARLY_C == 1:
            arrive_finish("s30", sCME, f"s{sLAST}", O, 0, AWC)
    for k in range(8):
        A(f"v_cvt_pk_f16_f32 {v(O+k)}, {v(AC+2*k)}, {v(AC+2*k+1)}")
    def prep():
        for gq in range(4):
            A(f"v_readlane_b32 s{60+gq}, {v(O)}, {16*((gq+1)%4)}")
        for gq in range(4):
            A(f"v_writelane_b32 {v(P+4)}, s{60+gq}, {16*gq}")
        for k in range(3):
            A(f"v_alignbit_b32 {v(P+k)}, {v(O+k+1)}, {v(O+k)}, 16")
        A(f"v_alignbit_b32 {v(P+3)}, {v(P+4)}, {v(O+3)}, 16")
    Y_stores(O, O + 4, P, f"s{sY}", prep)
    stamp(3, f"s{sK}", dbg=(6, C0, 1))
    A(f"s_add_u32 s{sK}, s{sK}, 1")
    A(f"s_add_u32 s{sW0}, s{sW0}, {W_SZ}")
    A(f"s_add_u32 s{sY}, s{sY}, {Y_SZ}")
    A(f"s_cmp_ge_u32 s{sK}, 4")
    A("s_cbranch_scc1 L_end")
    A("s_waitcnt vmcnt(0)")
    if opt("y2fill", 2) == 2:
        for k in range(4):
            A(f"v_mov_b32 {v(O+k)}, -1")
        Y_stores(O, O, O, f"s{sY}")
        A("s_waitcnt vmcnt(0)")
    if opt("y2fill", 2) == 1:
        lp, dn = A.newlabel("Lcy"), A.newlabel("Lcy")
        A(f"s_mov_b32 s60, {RG_OFF}")
        A(f"v_mov_b32 {v(T)}, 0")
        A(f"s_mov_b32 s62, {SPIN}")
        A.label(lp)
        A(f"buffer_load_dword {v(T+1)}, {v(T)}, {WS}, s60 offen sc1")
        A("s_waitcnt vmcnt(0)")
        A(f"v_cmp_eq_u32 vcc, -1, {v(T+1)}")
        A(f"s_cbranch_vccz {dn}")
        spin_tail(lp, 62, 4)
        A.label(dn)
        for k in range(4):
            A(f"v_mov_b32 {v(O+k)}, -1")
        Y_stores(O, O, O, f"s{sY}")
        A("s_waitcnt vmcnt(0)")
    A("s_branch L_Cloop")

SORT8 = [(0, 1), (2, 3), (4, 5), (6, 7), (0, 2), (1, 3), (4, 6), (5, 7), (1, 2), (5, 6), (0, 4), (3, 7),
         (1, 5), (2, 6), (1, 4), (3, 6), (2, 4), (3, 5), (3, 4)]

def topk_setup(CODE, vG, vLW, vLR, LDS0):
    A(f"v_lshrrev_b32 {v(CODE)}, 6, v0")
    A(f"v_lshlrev_b32 {v(CODE)}, 9, {v(CODE)}")
    A(f"v_add_u32 {v(CODE)}, {v(CODE)}, v1")
    A(f"v_sub_u32 {v(CODE)}, 2047, {v(CODE)}")
    for i in range(1, 8):
        A(f"v_subrev_u32 {v(CODE+i)}, {64*i}, {v(CODE)}")
    A(f"v_lshlrev_b32 {v(vG)}, {RSH}, v0")
    A(f"v_lshrrev_b32 {v(vLW)}, 4, v0")
    A(f"v_lshlrev_b32 {v(vLW)}, 5, {v(vLW)}")
    A(f"v_add_u32 {v(vLW)}, {LDS0}, {v(vLW)}")
    A(f"v_and_b32 {v(vLR)}, 15, v1")
    A(f"v_lshlrev_b32 {v(vLR)}, 5, {v(vLR)}")
    A(f"v_add_u32 {v(vLR)}, {LDS0}, {v(vLR)}")

def topk(K, CODE, vG, vLW, vLR, sRG, blk, dbg, mid=None):
    G = K + 16
    prio(0)
    for gate in ((True, False) if GATE else (False,)):
        loop, done = A.newlabel("Lrg"), A.newlabel("Lrgd")
        A(f"s_mov_b32 s62, {SPIN}")
        if gate:
            set_exec(0xff << 56)
        A.label(loop)
        A(f"buffer_load_dwordx4 {v(G,4)}, {v(vG)}, {WS}, s{sRG} offen sc1")
        A("s_waitcnt vmcnt(0)")
        any_sentinel(range(G, G + 4), K, done)
        spin_tail(loop, 62, opt("rsleep", 1))
        A.label(done)
        if gate:
            A("s_mov_b64 exec, -1")
    prio(3)
    stamp(3, "s27", dbg=dbg)
    A("s_mov_b32 s63, 0xffff0000")
    cur = list(range(K, K + 8))
    for k in range(4):
        A(f"v_lshl_or_b32 {v(cur[2*k])}, {v(G+k)}, 16, {v(CODE+2*k)}")
        A(f"v_and_or_b32 {v(cur[2*k+1])}, {v(G+k)}, s63, {v(CODE+2*k+1)}")
    free = list(range(K + 8, K + 24))

    def ce(i, j, dst=None):
        if dst is None:
            t = free.pop(0)
            A(f"v_max_u32 {v(t)}, {v(cur[i])}, {v(cur[j])}")
            A(f"v_min_u32 {v(cur[j])}, {v(cur[i])}, {v(cur[j])}")
            free.append(cur[i])
            cur[i] = t
        else:
            A(f"v_max_u32 {v(dst+i)}, {v(cur[i])}, {v(cur[j])}")
            A(f"v_min_u32 {v(dst+j)}, {v(cur[i])}, {v(cur[j])}")

    for (i, j) in SORT8:
        ce(i, j)
    pats = ["quad_perm:[1,0,3,2]", "quad_perm:[2,3,0,1]", "row_half_mirror", "row_mirror"]
    for rnd in range(2):
        for li, pat in enumerate(pats):
            new = [free.pop(0) for _ in range(8)]
            for i in (7, 6, 5, 4, 3, 2, 1, 0) if False else range(8):
                A(f"v_max_u32_dpp {v(new[i])}, {v(cur[7-i])}, {v(cur[i])} {pat} row_mask:0xf bank_mask:0xf")
            free.extend(cur)
            cur = new
            if rnd == 1 and li == 3:
                return cur
            for i in range(4):
                ce(i, i + 4)
            for i in (0, 1, 4, 5):
                ce(i, i + 2)
            if rnd == 0 and li == 3:
                for i in (0, 2, 4, 6):
                    ce(i, i + 1, dst=blk)
                set_exec(0x0001000100010001)
                A(f"ds_write_b128 {v(vLW)}, {v(blk,4)}")
                A(f"ds_write_b128 {v(vLW)}, {v(blk+4,4)} offset:16")
                A("s_mov_b64 exec, -1")
                A("s_waitcnt lgkmcnt(0)")
                A("s_barrier")
                A(f"ds_read_b128 {v(K,4)}, {v(vLR)}")
                A(f"ds_read_b128 {v(K+4,4)}, {v(vLR)} offset:16")
                A("s_waitcnt lgkmcnt(0)")
                if mid:
                    mid(K)
                cur = list(range(K, K + 8))
                free = list(range(K + 8, K + 24))
            else:
                for i in (6, 4, 2, 0):
                    ce(i, i + 1)

def load_weight_frags(jobs):
    total = sum(8 * j[3] for j in jobs)
    for (srdn, voff_of, soff_of, nsteps, dst, raw, vfull) in jobs:
        for k in range(nsteps):
            for q in range(8):
                d = raw + 8 * k + q
                if vfull is not None and k == vfull:
                    A(f"v_add_u32 {v(d)}, {soff_of(k, q)}, {v(voff_of(k))}")
                    A(f"buffer_load_dword {v(d)}, {v(d)}, {srdn}, 0 offen")
                    continue
                A(f"s_mov_b32 s60, {soff_of(k, q)}")
                A(f"buffer_load_dword {v(d)}, {v(voff_of(k))}, {srdn}, s60 offen")
    done = 0
    for (srdn, voff_of, soff_of, nsteps, dst, raw, vfull) in jobs:
        for k in range(nsteps):
            done += 8
            A(f"s_waitcnt vmcnt({min(63, total - done)})")
            r = raw + 8 * k
            for u in range(4):
                A(f"v_perm_b32 {v(dst + 8*k + u)}, {v(r+2*u+1)}, {v(r+2*u)}, s58")
                A(f"v_perm_b32 {v(dst + 8*k + 4 + u)}, {v(r+2*u+1)}, {v(r+2*u)}, s59")

def roleFa():
    A.label("L_roleFa")
    GW, UW, RAW, AFR, ACC, K, CODE = 16, 56, 96, 136, 156, 176, 200
    vG, vLW, vLR, vW1, vW2, vLP1, vLP2, vPW, vPR, vH = 2, 3, 4, 5, 6, 7, 8, 9, 10, 11
    sKAP, sRG, sT, sH, sL = 22, 23, 25, 26, 27
    T = 208
    nonce_load(T + 8)
    if opt("prefc", 1) == 1:
        warm_weights(T + 12, C0, 29, PPART)
    srd(8, 46, 2211840)
    srd(12, 48, 2211840)
    A(f"s_sub_u32 s60, s2, {FA0 - 1}")
    A(f"s_and_b32 s61, s60, 7")
    A(f"s_lshr_b32 s60, s60, 3")
    A(f"s_mul_i32 s{sKAP}, s61, 7")
    A(f"s_add_u32 s{sKAP}, s{sKAP}, s60")
    A(f"s_sub_u32 s{sKAP}, s{sKAP}, 1")
    A("s_mov_b32 s58, 0x05040100")
    A("s_mov_b32 s59, 0x07060302")
    n, g = T, T + 1
    A(f"v_and_b32 {v(n)}, 15, v1")
    A(f"v_lshrrev_b32 {v(g)}, 4, v1")
    A(f"s_lshr_b32 s60, s{WV}, 1")
    A(f"s_mul_i32 s60, s60, 320")
    A(f"s_and_b32 s61, s{WV}, 1")
    A(f"s_lshl_b32 s61, s61, 4")
    A(f"s_add_u32 s60, s60, s61")
    A(f"s_lshl_b32 s61, s{sKAP}, 6")
    A(f"v_lshl_add_u32 {v(T+2)}, {v(n)}, 2, s61")
    A(f"v_add_u32 {v(vW1)}, s60, {v(g)}")
    A(f"v_mul_u32_u24 {v(vW1)}, 3456, {v(vW1)}")
    A(f"v_add_u32 {v(vW1)}, {v(vW1)}, {v(T+2)}")
    A(f"v_lshl_add_u32 {v(vW2)}, {v(g)}, 2, s60")
    A(f"v_mul_u32_u24 {v(vW2)}, 3456, {v(vW2)}")
    A(f"v_add_u32 {v(vW2)}, {v(vW2)}, {v(T+2)}")
    voff = lambda k: vW1 if k < 4 else vW2
    soff = lambda k, q: ((32 * q + 4 * k) if k < 4 else (256 + 32 * (q & 1) + (q >> 1))) * 3456
    A("s_waitcnt vmcnt(0)")
    nonce_take(T + 8)
    A(f"s_and_b32 s29, s2, {NREP - 1}")
    A(f"s_lshl_b32 s29, s29, {FSH + 4}")
    if opt("prefc", 1) == 2:
        warm_weights(T + 12, C0, 29, PPART)
    poll_flags(0, 29, T + 4, opt("fsleep", 8))
    if opt("coop", 4):
        warm_coop(T + 12)
    srd(16, 44, 1280)
    A(f"v_and_b32 {v(T+2)}, 31, v1")
    A(f"v_lshrrev_b32 {v(T+3)}, 5, v1")
    A(f"v_mul_u32_u24 {v(T+3)}, 640, {v(T+3)}")
    A(f"v_lshl_add_u32 {v(T+2)}, {v(T+2)}, 1, {v(T+3)}")
    for i in range(10):
        A(f"v_mov_b32 {v(K+i)}, 0")
        A(f"buffer_load_short_d16_hi {v(K+i)}, {v(T+2)}, {SRD3}, 0 offen offset:{64*i}")
    A("s_waitcnt vmcnt(0)")
    tau_of(K, T + 2, 1.0 + 1.0 / 32)
    A(f"v_or_b32 {v(T+2)}, 0x80000000, {v(T+2)}")
    A(f"v_readfirstlane_b32 s36, {v(T+2)}")
    if opt("wide", 0):
        A(f"s_lshr_b32 s60, s{WV}, 1")
        A(f"s_mul_i32 s60, s60, 320")
        A(f"s_and_b32 s61, s{WV}, 1")
        A(f"s_lshl_b32 s61, s61, 4")
        A(f"s_add_u32 s60, s60, s61")
        A(f"v_lshrrev_b32 {v(T+4)}, 2, v1")
        A(f"v_add_u32 {v(T+4)}, s60, {v(T+4)}")
        A(f"v_mul_u32_u24 {v(T+4)}, 3456, {v(T+4)}")
        A(f"v_and_b32 {v(T+5)}, 3, v1")
        A(f"s_lshl_b32 s61, s{sKAP}, 6")
        A(f"v_lshl_add_u32 {v(T+5)}, {v(T+5)}, 4, s61")
        A(f"v_add_u32 {v(T+4)}, {v(T+4)}, {v(T+5)}")
        for j in range(10):
            A(f"s_mov_b32 s60, {32 * j * 3456}")
            A(f"buffer_load_dwordx4 {v(T+12,4)}, {v(T+4)}, {SRD1}, s60 offen")
            A(f"buffer_load_dwordx4 {v(T+12,4)}, {v(T+4)}, {SRD2}, s60 offen")
        if opt("wide", 0) == 2:
            A("s_waitcnt vmcnt(0)")
    load_weight_frags([(SRD1, voff, soff, 5, GW, RAW, None), (SRD2, voff, soff, 5, UW, RAW + 40, None)])
    topk_setup(CODE, vG, vLW, vLR, 24576)
    A(f"v_and_b32 {v(T+2)}, 7, v1")
    A(f"s_lshl_b32 s60, s{WV}, 8")
    A(f"v_lshl_add_u32 {v(vLP1)}, {v(T+2)}, 4, s60")
    A(f"s_lshl_b32 s60, s{WV}, 6")
    A(f"s_add_u32 s60, s60, 1024")
    A(f"v_lshl_add_u32 {v(vLP2)}, {v(T+2)}, 4, s60")
    A(f"s_mul_i32 s60, s{WV}, 2688")
    A(f"s_add_u32 s60, s60, 12288")
    A(f"v_lshrrev_b32 {v(T+3)}, 3, v1")
    A(f"v_mul_u32_u24 v13, 336, {v(T+3)}")
    A(f"v_lshl_add_u32 v13, {v(T+2)}, 4, v13")
    A(f"v_add_u32 v13, s60, v13")
    A(f"v_mul_u32_u24 v14, 336, {v(T+2)}")
    A(f"v_lshl_add_u32 v14, {v(g)}, 4, v14")
    A(f"v_add_u32 v14, s60, v14")
    A(f"s_lshl_b32 s60, s{WV}, 8")
    A(f"v_lshl_add_u32 v15, {v(g)}, 7, s60")
    A(f"s_lshl_b32 s60, s{WV}, 6")
    A(f"s_add_u32 s60, s60, 1024")
    A(f"v_mov_b32 {v(T+4)}, s60")
    A(f"v_cmp_gt_u32 vcc, 2, {v(g)}")
    A(f"v_cndmask_b32 v15, {v(T+4)}, v15, vcc")
    A(f"s_mul_i32 s60, s{WV}, 2560")
    A(f"v_mul_u32_u24 {v(vPW)}, 640, {v(g)}")
    A(f"v_lshl_add_u32 {v(vPW)}, {v(n)}, 3, {v(vPW)}")
    A(f"v_add_u32 {v(vPW)}, s60, {v(vPW)}")
    A(f"v_add_u32 {v(12)}, 1280, {v(vPW)}")
    A(f"v_mul_u32_u24 {v(vPR)}, 40, {v(T+3)}")
    A(f"s_lshl_b32 s60, s{WV}, 3")
    A(f"v_add3_u32 {v(vPR)}, {v(vPR)}, {v(T+2)}, s60")
    A(f"v_lshlrev_b32 {v(vPR)}, 2, {v(vPR)}")
    A(f"v_lshrrev_b32 {v(T+2)}, 1, v0")
    A(f"v_lshlrev_b32 {v(vH)}, 2, {v(T+2)}")
    A(f"s_lshl_b32 s{sH}, s{sKAP}, 9")
    A(f"s_add_u32 s{sH}, s{sH}, {H_OFF}")
    A(f"s_and_b32 s{sRG}, s2, {NRR - 1}")
    A(f"s_lshl_b32 s{sRG}, s{sRG}, {RSH + 8}")
    A(f"s_add_u32 s{sRG}, s{sRG}, {RG_OFF}")
    A(f"s_mov_b32 s{sT}, {T_OFF}")
    A(f"s_mov_b32 s28, {T_REC}")
    for (r, val) in ((30, 0x00FFFF00), (31, 0x00FFFF00), (32, 0xFF00FF00), (33, 0x00FF00FF)):
        A(f"s_mov_b32 s{r}, 0x{val:x}")
    A(f"s_mov_b32 s{sL}, 0")
    touch(T + 2, T_OFF, 2 * T_SZ)
    stamp(0, dbg=(9, FA0))
    poll_flags(1, 29, T, 8)
    prio(3)
    A.label("L_FaLoop")
    def warm_rows(K_):
        for e in range(opt("warm", 0)):
            A(f"v_and_b32 {v(T+8+e)}, 0x7ff, {v(K_+e)}")
            A(f"v_sub_u32 {v(T+8+e)}, 2047, {v(T+8+e)}")
            A(f"v_mad_u32_u24 {v(T+8+e)}, {v(T+8+e)}, s28, v15")
            A(f"buffer_load_dword {v(T+8+e)}, {v(T+8+e)}, {WS}, s{sT} offen sc1")
    c = topk(K, CODE, vG, vLW, vLR, sRG, T, (11, FA0, 0), warm_rows)
    stamp(4, "s27")
    A(f"v_cndmask_b32 {v(T)}, {v(c[0])}, {v(c[2])}, s[30:31]")
    A(f"v_cndmask_b32 {v(T+1)}, {v(c[4])}, {v(c[6])}, s[30:31]")
    A(f"v_cndmask_b32 {v(T)}, {v(T)}, {v(T+1)}, s[32:33]")
    A(f"v_and_b32 {v(T)}, 0x7ff, {v(T)}")
    A(f"v_sub_u32 {v(T)}, 2047, {v(T)}")
    A(f"v_mad_u32_u24 {v(T+1)}, {v(T)}, s28, {v(vLP1)}")
    A(f"v_mad_u32_u24 {v(T+2)}, {v(T)}, s28, {v(vLP2)}")
    loop, done = A.newlabel("Lga"), A.newlabel("Lgad")
    A(f"v_min3_u32 {v(T+3)}, {v(c[0])}, {v(c[1])}, {v(c[2])}")
    A(f"v_min3_u32 {v(T+4)}, {v(c[3])}, {v(c[4])}, {v(c[5])}")
    A(f"v_min3_u32 {v(T+3)}, {v(T+3)}, {v(c[6])}, {v(c[7])}")
    A(f"v_min_u32 {v(T+3)}, {v(T+3)}, {v(T+4)}")
    A(f"v_and_b32 {v(T+3)}, 0xffff0000, {v(T+3)}")
    A(f"v_cmp_gt_u32 vcc, s36, {v(T+3)}")
    A(f"s_cbranch_vccz {done}")
    A(f"v_mul_u32_u24 {v(T+3)}, s28, {v(T)}")
    A(f"s_add_u32 s61, s{NONCE}, 6")
    A(f"s_add_u32 s61, s61, s{sL}")
    A(f"s_mov_b32 s62, {SPIN}")
    A.label(loop)
    A(f"buffer_load_dword {v(T+4)}, {v(T+3)}, {WS}, s{sT} offen offset:2568 sc1")
    A("s_waitcnt vmcnt(0)")
    A(f"v_cmp_ne_u32 vcc, s61, {v(T+4)}")
    A(f"s_cbranch_vccz {done}")
    spin_tail(loop, 62, 2)
    A.label(done)
    GR = K
    A(f"buffer_load_dwordx4 {v(GR,4)}, {v(T+1)}, {WS}, s{sT} offen sc1")
    A(f"buffer_load_dwordx4 {v(GR+4,4)}, {v(T+1)}, {WS}, s{sT} offen offset:128 sc1")
    set_exec(0x0F0F0F0F0F0F0F0F)
    A(f"buffer_load_dwordx4 {v(GR+8,4)}, {v(T+2)}, {WS}, s{sT} offen sc1")
    A("s_mov_b64 exec, -1")
    A("s_waitcnt vmcnt(2)")
    A(f"ds_write_b128 v13, {v(GR,4)}")
    A("s_waitcnt vmcnt(1)")
    A(f"ds_write_b128 v13, {v(GR+4,4)} offset:128")
    A("s_waitcnt vmcnt(0)")
    set_exec(0x0F0F0F0F0F0F0F0F)
    A(f"ds_write_b128 v13, {v(GR+8,4)} offset:256")
    A("s_mov_b64 exec, -1")
    for ks in range(5):
        A(f"ds_read_b128 {v(AFR+4*ks,4)}, v14 offset:{64*ks}")
    for ks in range(5):
        A(f"s_waitcnt lgkmcnt({4-ks})")
        for a_, wb in enumerate((GW, GW + 4, UW, UW + 4)):
            cc = "0" if ks == 0 else v(ACC + 4 * a_, 4)
            A(f"v_mfma_f32_16x16x32_bf16 {v(ACC+4*a_,4)}, {v(AFR+4*ks,4)}, {v(wb+8*ks,4)}, {cc}")
    stamp(5, "s27")
    set_exec(0xffffffff)
    for mat in range(2):
        for r in range(4):
            A(f"ds_write2_b32 {v(vPW if mat == 0 else 12)}, {v(ACC+8*mat+r)}, {v(ACC+8*mat+4+r)} offset0:{40*r} offset1:{40*r+1}")
    A("s_mov_b64 exec, -1")
    A("s_waitcnt lgkmcnt(0)")
    A("s_barrier")
    for w in range(4):
        A(f"ds_read2st64_b32 {v(T+2*w,2)}, {v(vPR)} offset0:{10*w} offset1:{10*w+5}")
    A("s_waitcnt lgkmcnt(2)")
    A(f"v_pk_add_f32 {v(T,2)}, {v(T,2)}, {v(T+2,2)}")
    A("s_waitcnt lgkmcnt(0)")
    A(f"v_pk_add_f32 {v(T+4,2)}, {v(T+4,2)}, {v(T+6,2)}")
    A(f"v_pk_add_f32 {v(T,2)}, {v(T,2)}, {v(T+4,2)}")
    rnd_pair(T, T + 1, T + 2)
    A(f"v_mul_f32 {v(T+2)}, {f32(-1.4426950408889634)}, {v(T)}")
    A(f"v_exp_f32 {v(T+2)}, {v(T+2)}")
    A(f"v_add_f32 {v(T+2)}, 1.0, {v(T+2)}")
    A(f"v_rcp_f32 {v(T+2)}, {v(T+2)}")
    A(f"v_mul_f32 {v(T)}, {v(T)}, {v(T+2)}")
    A(f"v_cvt_pk_bf16_f32 {v(T)}, {v(T)}, {v(T)}")
    A(f"v_and_b32 {v(T)}, 0xffff0000, {v(T)}")
    A(f"v_mul_f32 {v(T)}, {v(T)}, {v(T+1)}")
    A(f"v_mov_b32_dpp {v(T+1)}, {v(T)} quad_perm:[1,0,3,2] row_mask:0xf bank_mask:0xf")
    A(f"v_cvt_pk_bf16_f32 {v(T)}, {v(T)}, {v(T+1)}")
    A(f"v_min_u32 {v(T)}, -2, {v(T)}")
    set_exec(0x5555555555555555)
    A(f"buffer_store_dword {v(T)}, {v(vH)}, {WS}, s{sH} offen sc1")
    A("s_mov_b64 exec, -1")
    if opt("hintsrc", 0) == 1:
        Lh3 = A.newlabel("Lfa")
        A(f"s_or_b32 s60, s{sKAP}, s{WV}")
        A(f"s_or_b32 s60, s60, s{sL}")
        A(f"s_cmp_lg_u32 s60, 0")
        A(f"s_cbranch_scc1 {Lh3}")
        A(f"v_mov_b32 {v(T+4)}, 0")
        A(f"s_mov_b32 s60, {X2_OFF + SEL_OFF + 128}")
        A("s_mov_b64 exec, 1")
        A(f"buffer_store_dword {v(T+4)}, {v(T+4)}, {WS}, s60 offen sc1")
        A("s_mov_b64 exec, -1")
        A.label(Lh3)
    stamp(6, "s27")
    A(f"s_add_u32 s{sH}, s{sH}, {2 * HREP}")
    A(f"s_add_u32 s{sRG}, s{sRG}, {NRR * RG_REP}")
    A(f"s_add_u32 s{sT}, s{sT}, {T_SZ}")
    A(f"s_add_u32 s{sL}, s{sL}, 1")
    A(f"s_cmp_lt_u32 s{sL}, 2")
    A("s_cbranch_scc1 L_FaLoop")
    A("s_endpgm")

def roleFb():
    A.label("L_roleFb")
    DW, HF, ACC, K, CODE, T = 16, 128, 184, 192, 216, 224
    RAW = 128
    vG, vLW, vLR, vW1, vHF, vPW, vPR, vE, vX2, vO = 2, 3, 4, 5, 6, 7, 8, 9, 10, 11
    sB, sRG, sT, sH, sL, sREP2, sES, sEC = 22, 23, 25, 26, 27, 29, 30, 31
    nonce_load(T + 8)
    if opt("prefc", 1) == 1:
        warm_weights(T + 16, C0, 29, PPART)
    srd(8, 50, 2211840)
    srd(12, 52, 2621440)
    A(f"s_sub_u32 s60, s2, {FB0 - 7}")
    A(f"s_and_b32 s61, s60, 7")
    A(f"s_lshr_b32 s60, s60, 3")
    fb_start("s61", f"s{sB}")
    A(f"s_add_u32 s{sB}, s{sB}, s60")
    A(f"s_cmp_eq_u32 s61, 7")
    A(f"s_cselect_b32 s60, 0, 1")
    A(f"s_sub_u32 s{sB}, s{sB}, s60")
    A("s_mov_b32 s58, 0x05040100")
    A("s_mov_b32 s59, 0x07060302")
    n, g = T, T + 1
    A(f"v_and_b32 {v(n)}, 15, v1")
    A(f"v_lshrrev_b32 {v(g)}, 4, v1")
    A(f"s_lshl_b32 s60, s{WV}, 5")
    A(f"v_lshl_add_u32 {v(vW1)}, {v(g)}, 3, s60")
    A(f"v_mul_u32_u24 {v(vW1)}, 1280, {v(vW1)}")
    A(f"s_lshl_b32 s61, s{sB}, 6")
    A(f"v_lshl_add_u32 {v(T+2)}, {v(n)}, 2, s61")
    A(f"v_add_u32 {v(vW1)}, {v(vW1)}, {v(T+2)}")
    A(f"v_mov_b32 v12, {v(n)}")
    A(f"v_mov_b32 v13, {v(g)}")
    n, g = 12, 13
    A("s_waitcnt vmcnt(0)")
    nonce_take(T + 8)
    A(f"s_and_b32 s{sREP2}, s2, {NREP - 1}")
    A(f"s_lshl_b32 s{sREP2}, s{sREP2}, {FSH + 4}")
    if opt("prefc", 1) == 2:
        warm_weights(T + 16, C0, 29, PPART)
    poll_flags(0, sREP2, T + 4, opt("fsleep", 8))
    if opt("coop", 4):
        warm_coop(T + 16)
    if opt("wide", 0):
        A(f"s_lshl_b32 s60, s{WV}, 5")
        A(f"v_lshrrev_b32 {v(T+20)}, 2, v1")
        A(f"v_add_u32 {v(T+20)}, s60, {v(T+20)}")
        A(f"v_mul_u32_u24 {v(T+20)}, 1280, {v(T+20)}")
        A(f"v_and_b32 {v(T+21)}, 3, v1")
        A(f"s_lshl_b32 s61, s{sB}, 6")
        A(f"v_lshl_add_u32 {v(T+21)}, {v(T+21)}, 4, s61")
        A(f"v_add_u32 {v(T+20)}, {v(T+20)}, {v(T+21)}")
        for k in range(14):
            for hh in range(2):
                A(f"v_add_u32 {v(T+21)}, {(128 * k + 16 * hh) * 1280}, {v(T+20)}")
                A(f"buffer_load_dwordx4 {v(T+24,4)}, {v(T+21)}, {SRD1}, 0 offen")
        if opt("wide", 0) == 2:
            A("s_waitcnt vmcnt(0)")
    load_weight_frags([(SRD1, lambda k: vW1, lambda k, q: (128 * k + q) * 1280, 14, DW, RAW, 13)])
    topk_setup(CODE, vG, vLW, vLR, 8192)
    A(f"v_and_b32 {v(vHF)}, 7, v1")
    A(f"v_lshlrev_b32 {v(vHF)}, 4, {v(vHF)}")
    A(f"v_lshl_add_u32 {v(vHF)}, {v(g)}, 7, {v(vHF)}")
    A(f"s_lshl_b32 s60, s{WV}, 9")
    A(f"v_add_u32 {v(vHF)}, s60, {v(vHF)}")
    A(f"s_mov_b32 s{sH}, {H_OFF}")
    A(f"s_lshl_b32 s60, s{WV}, 10")
    A(f"v_lshlrev_b32 {v(vPW)}, 9, {v(g)}")
    A(f"v_lshl_add_u32 {v(vPW)}, {v(n)}, 3, {v(vPW)}")
    A(f"v_add_u32 {v(vPW)}, s60, {v(vPW)}")
    A(f"v_lshlrev_b32 {v(vPR)}, 2, v0")
    A(f"s_cmp_ge_u32 s{sB}, 10")
    A(f"s_cselect_b32 s60, 1, 0")
    A(f"s_mul_i32 s61, s60, 10")
    A(f"s_sub_u32 s61, s{sB}, s61")
    A(f"s_lshl_b32 s62, s60, 9")
    A(f"s_lshl_b32 s63, s61, 1")
    A(f"s_add_u32 s62, s62, s63")
    A(f"s_lshl_b32 s64, s60, 7")
    A(f"s_add_u32 s64, s64, s63")
    A(f"s_add_u32 s64, s64, {1024 - 16}")
    A(f"s_cmp_lt_u32 s61, 8")
    A(f"s_cselect_b32 s{sEC}, s62, s64")
    A(f"s_cselect_b32 s{sES}, 16, 4")
    A(f"v_and_b32 {v(T+2)}, 31, v1")
    A(f"v_mul_u32_u24 {v(vE)}, s{sES}, {v(T+2)}")
    A(f"s_and_b32 s32, s{sEC}, 2")
    A(f"s_lshl_b32 s32, s32, 3")
    A(f"s_sub_u32 s32, 16, s32")
    A(f"s_and_b32 s{sEC}, s{sEC}, -4")
    A(f"v_add_u32 {v(vE)}, s{sEC}, {v(vE)}")

    A(f"s_lshl_b32 s60, s{sB}, 2")
    A(f"s_add_u32 s60, s60, s{WV}")
    A(f"s_lshl_b32 s60, s60, 8")
    A(f"v_lshl_add_u32 {v(vX2)}, {v(T+2)}, 3, s60")
    A(f"v_lshrrev_b32 {v(T+3)}, 5, v1")
    A(f"v_lshl_add_u32 {v(vX2)}, {v(T+3)}, 2, {v(vX2)}")
    A(f"s_lshl_b32 s60, s{sB}, 6")
    A(f"v_lshl_add_u32 {v(vO)}, {v(T+2)}, 1, s60")
    A(f"s_and_b32 s{sRG}, s2, {NRR - 1}")
    A(f"s_lshl_b32 s{sRG}, s{sRG}, {RSH + 8}")
    A(f"s_add_u32 s{sRG}, s{sRG}, {RG_OFF}")
    A(f"s_mov_b32 s{sT}, {T_OFF}")
    A(f"s_mov_b32 s28, {T_REC}")
    A(f"s_mov_b32 s{sL}, 0")
    touch(T + 2, T_OFF, 2 * T_SZ)
    stamp(0, dbg=(10, FB0))
    poll_flags(1, sREP2, T, 8)
    prio(3)
    A.label("L_FbLoop")
    c = topk(K, CODE, vG, vLW, vLR, sRG, T, None)
    stamp(4, "s27")
    for j in range(8):
        A(f"v_readfirstlane_b32 s{80+j}, {v(c[j])}")
    A("s_mov_b32 s70, s80")
    A("s_mov_b32 s71, s81")
    for w in range(1, 4):
        A(f"s_cmp_eq_u32 s{WV}, {w}")
        A(f"s_cselect_b32 s70, s{80+2*w}, s70")
        A(f"s_cselect_b32 s71, s{81+2*w}, s71")
    KEY, ROW, XV, XNV, SG, ST = T, T + 1, T + 2, T + 3, T + 4, T + 8
    Ls = A.newlabel("Lfb")
    A(f"s_or_b32 s60, s{sB}, s{WV}")
    A(f"s_cmp_lg_u32 s60, 0")
    A(f"s_cbranch_scc1 {Ls}")
    A(f"v_mov_b32 {v(T+6)}, s80")
    for j in range(1, 8):
        A(f"v_writelane_b32 {v(T+6)}, s{80+j}, {j}")
    A(f"v_and_b32 {v(T+6)}, 0x7ff, {v(T+6)}")
    A(f"v_sub_u32 {v(T+6)}, 2047, {v(T+6)}")
    A(f"v_lshlrev_b32 {v(T+7)}, 2, v1")
    A(f"s_lshl_b32 s60, s{sL}, 8")
    A(f"s_add_u32 s60, s60, {X2_OFF + SEL_OFF}")
    A("s_mov_b64 exec, 0xff")
    A(f"buffer_store_dword {v(T+6)}, {v(T+7)}, {WS}, s60 offen sc1")
    A("s_mov_b64 exec, -1")
    A.label(Ls)
    A(f"v_mov_b32 {v(KEY)}, s71")
    A(f"v_mov_b32 {v(ROW)}, s70")
    A(f"v_cmp_gt_u32 vcc, 32, v1")
    A(f"v_cndmask_b32 {v(KEY)}, {v(KEY)}, {v(ROW)}, vcc")
    A(f"v_and_b32 {v(ROW)}, 0x7ff, {v(KEY)}")
    A(f"v_sub_u32 {v(ROW)}, 2047, {v(ROW)}")
    A(f"v_mad_u32_u24 {v(T+5)}, {v(ROW)}, s28, {v(vE)}")
    prio(0)
    loop, done = A.newlabel("Lst2"), A.newlabel("Lst2d")
    A(f"v_mul_u32_u24 {v(T+6)}, s28, {v(ROW)}")
    A(f"s_add_u32 s61, s{NONCE}, 6")
    A(f"s_add_u32 s61, s61, s{sL}")
    A(f"s_mov_b32 s62, {SPIN}")
    A.label(loop)
    A(f"buffer_load_dwordx4 {v(ST,4)}, {v(T+6)}, {WS}, s{sT} offen offset:2560 sc1")
    A("s_waitcnt vmcnt(0)")
    A(f"v_cmp_ne_u32 vcc, s61, {v(ST+2)}")
    A(f"s_cbranch_vccz {done}")
    spin_tail(loop, 62, 2)
    A.label(done)
    A(f"buffer_load_dword {v(XNV)}, {v(T+5)}, {WS}, s{sT} offen sc1")
    A(f"buffer_load_dword {v(XV)}, {v(T+5)}, {WS}, s{sT} offen offset:1280 sc1")
    A(f"v_ashrrev_i32 {v(SG)}, 31, {v(KEY)}")
    A(f"v_not_b32 {v(SG)}, {v(SG)}")
    A(f"v_or_b32 {v(SG)}, 0x80000000, {v(SG)}")
    A(f"v_xor_b32 {v(SG)}, {v(SG)}, {v(KEY)}")
    A(f"v_and_b32 {v(SG)}, 0xffff0000, {v(SG)}")
    A(f"v_mul_f32 {v(SG)}, {f32(-1.4426950408889634)}, {v(SG)}")
    A(f"v_exp_f32 {v(SG)}, {v(SG)}")
    A(f"v_add_f32 {v(SG)}, 1.0, {v(SG)}")
    A(f"v_rcp_f32 {v(SG)}, {v(SG)}")
    A(f"v_cvt_pk_bf16_f32 {v(SG)}, {v(SG)}, {v(SG)}")
    A(f"v_and_b32 {v(SG)}, 0xffff0000, {v(SG)}")
    stamp(2, "s27")
    def rb(r):
        A(f"v_cvt_pk_bf16_f32 {v(r)}, {v(r)}, {v(r)}")
        A(f"v_and_b32 {v(r)}, 0xffff0000, {v(r)}")
    Yv = T + 12
    XO = T + 16
    if opt("hgate", 1):
        loop, done = A.newlabel("Lh"), A.newlabel("Lhd")
        A(f"s_mov_b32 s62, {SPIN}")
        set_exec(0x00FF00FF00FF00FF)
        A.label(loop)
        A(f"buffer_load_dwordx4 {v(HF,4)}, {v(vHF)}, {WS}, s{sH} offen sc1")
        A("s_waitcnt vmcnt(0)")
        any_sentinel(range(HF, HF + 4), T + 6, done)
        spin_tail(loop, 62, opt("hgsleep", 1))
        A.label(done)
    loop, done = A.newlabel("Lh"), A.newlabel("Lhd")
    A(f"s_cmp_lt_u32 s{WV}, 2")
    A(f"s_cselect_b32 s63, 2048, 0")
    A(f"s_add_u32 s63, s63, {12 * 2048}")
    A(f"s_add_u32 s63, s63, s{sH}")
    A(f"s_mov_b32 s62, {SPIN}")
    set_exec(0x00FF00FF00FF00FF)
    A.label(loop)
    for k in range(14):
        if k == 13:
            A(f"buffer_load_dwordx4 {v(HF+4*k,4)}, {v(vHF)}, {WS}, s63 offen sc1")
        else:
            if k % 2 == 0:
                A(f"s_add_u32 s60, s{sH}, {2048 * k}")
            A(f"buffer_load_dwordx4 {v(HF+4*k,4)}, {v(vHF)}, {WS}, s60 offen offset:{2048*(k%2)} sc1")
    CK = T + 6
    HP = opt("hprog", 1)
    def mf(k):
        for par in range(2):
            cc = "0" if k == 0 else v(ACC + 4 * par, 4)
            A(f"v_mfma_f32_16x16x32_bf16 {v(ACC+4*par,4)}, {v(HF+4*k,4)}, {v(DW+8*k+4*par,4)}, {cc}")
    if HP:
        A("s_mov_b64 exec, -1")
        for k in range(14):
            A(f"s_waitcnt vmcnt({13-k})")
            mf(k)
            if k == 0:
                A(f"v_max3_u32 {v(CK)}, {v(HF)}, {v(HF+1)}, {v(HF+2)}")
                A(f"v_max_u32 {v(CK)}, {v(CK)}, {v(HF+3)}")
            else:
                A(f"v_max3_u32 {v(CK)}, {v(CK)}, {v(HF+4*k)}, {v(HF+4*k+1)}")
                A(f"v_max3_u32 {v(CK)}, {v(CK)}, {v(HF+4*k+2)}, {v(HF+4*k+3)}")
        set_exec(0x00FF00FF00FF00FF)
        A(f"v_cmp_eq_u32 vcc, -1, {v(CK)}")
        A(f"s_cbranch_vccz {done}")
    else:
        A("s_waitcnt vmcnt(0)")
        any_sentinel(list(range(HF, HF + 56)), CK, done)
    spin_tail(loop, 62, opt("hsleep", 1))
    A.label(done)
    A("s_mov_b64 exec, -1")
    prio(3)
    stamp(5, "s27")
    Lh2 = A.newlabel("Lfb")
    A(f"s_or_b32 s60, s{sB}, s{WV}")
    A(f"s_or_b32 s60, s60, s{sL}")
    A(f"s_cmp_lg_u32 s60, {0 if opt('hintsrc', 0) == 0 else -1}")
    A(f"s_cbranch_scc1 {Lh2}")
    A(f"v_mov_b32 {v(CK)}, 0")
    A(f"s_mov_b32 s60, {X2_OFF + SEL_OFF + 128}")
    A("s_mov_b64 exec, 1")
    A(f"buffer_store_dword {v(CK)}, {v(CK)}, {WS}, s60 offen sc1")
    A.label(Lh2)
    A("s_mov_b64 exec, -1")
    if not HP:
        for k in range(14):
            mf(k)
    for r in (XNV, XV):
        A(f"v_lshlrev_b32 {v(r)}, s32, {v(r)}")
        A(f"v_and_b32 {v(r)}, 0xffff0000, {v(r)}")
    A(f"v_add_f32 {v(XO)}, {v(XV)}, {v(XNV)}")
    rb(XO)
    if EXACT:
        A(f"v_sub_f32 {v(XO)}, {v(XO)}, {v(ST)}")
        rb(XO)
        A(f"v_mul_f32 {v(XO)}, {v(XO)}, {v(ST+1)}")
        rb(XO)
    else:
        A(f"v_mul_f32 {v(ST)}, {v(ST)}, {v(ST+1)}")
        A(f"v_fma_f32 {v(XO)}, {v(XO)}, {v(ST+1)}, -{v(ST)}")
    set_exec(0xffffffff)
    for r in range(4):
        A(f"ds_write2_b32 {v(vPW)}, {v(ACC+r)}, {v(ACC+4+r)} offset0:{32*r} offset1:{32*r+1}")
    A("s_mov_b64 exec, -1")
    A("s_waitcnt lgkmcnt(0)")
    A("s_barrier")
    A(f"ds_read2st64_b32 {v(Yv,2)}, {v(vPR)} offset0:0 offset1:4")
    A(f"ds_read2st64_b32 {v(Yv+2,2)}, {v(vPR)} offset0:8 offset1:12")
    A("s_waitcnt lgkmcnt(0)")
    A(f"v_pk_add_f32 {v(Yv,2)}, {v(Yv,2)}, {v(Yv+2,2)}")
    A(f"v_add_f32 {v(Yv)}, {v(Yv)}, {v(Yv+1)}")
    rb(Yv)
    A(f"v_mul_f32 {v(Yv)}, {v(Yv)}, {v(SG)}")
    rb(Yv)
    A(f"v_add_f32 {v(Yv)}, {v(Yv)}, {v(XNV)}")
    rb(Yv)
    A(f"v_add_f32 {v(Yv)}, {v(Yv)}, {v(XV)}")
    L2 = A.newlabel("Lfb")
    A(f"s_cmp_lg_u32 s{sL}, 0")
    A(f"s_cbranch_scc1 {L2}")
    A(f"v_permlane32_swap_b32 {v(Yv)}, {v(XO)}")
    A(f"v_cvt_pk_bf16_f32 {v(Yv+1)}, {v(Yv)}, {v(XO)}")
    A(f"v_cvt_pk_f16_f32 {v(Yv)}, {v(Yv)}, {v(XO)}")
    A(f"v_cmp_gt_u32 vcc, 32, v1")
    A(f"v_cndmask_b32 {v(Yv)}, {v(Yv)}, {v(Yv+1)}, vcc")
    A(f"v_min_u32 {v(Yv)}, -2, {v(Yv)}")
    for r in range(NRX):
        A(f"s_mov_b32 s60, {X2_OFF + r * X2REP}")
        A(f"buffer_store_dword {v(Yv)}, {v(vX2)}, {WS}, s60 offen sc1")
    stamp(6, "s27", dbg=(12, FB0))
    A(f"s_add_u32 s{sH}, s{sH}, {2 * HREP}")
    A(f"s_add_u32 s{sRG}, s{sRG}, {NRR * RG_REP}")
    A(f"s_add_u32 s{sT}, s{sT}, {T_SZ}")
    A(f"s_mov_b32 s{sL}, 1")
    A("s_branch L_FbLoop")
    A.label(L2)
    A(f"v_cvt_pk_bf16_f32 {v(Yv)}, {v(Yv)}, {v(Yv)}")
    A(f"s_movk_i32 s60, 1280")
    A(f"v_mad_u32_u24 {v(Yv+1)}, {v(ROW)}, s60, {v(vO)}")
    A(f"buffer_store_short {v(Yv)}, {v(Yv+1)}, {SRD2}, 0 offen sc1")
    stamp(7, "s27", dbg=(15, FB0))
    A(f"s_or_b32 s60, s{sB}, s{WV}")
    A(f"s_cmp_lg_u32 s60, 0")
    A("s_cbranch_scc1 L_end")
    A(f"v_mov_b32 {v(T)}, s{NONCE}")
    A(f"v_mov_b32 {v(T+1)}, 0")
    A("s_mov_b64 exec, 1")
    A(f"buffer_store_dword {v(T)}, {v(T+1)}, {WS}, 0 offen sc1")
    A.label("L_end")
    A("s_endpgm")

hdr = open("cdna_kernels/%s.s.ref" % NAME).read().split("\n")
head = [l for l in hdr if l.startswith(";") and "@launch" not in l and "Override" not in l and "grid=ceil" not in l]
out = "\n".join(head) + "\n"
out += f"; @launch grid=({NWG},1,1) block=(256,1,1) lds={LDS_BYTES}\n"
out += """
; ---------------------------------------------------------------------------------------------------------
; One persistent launch, 491 co-resident workgroups (2 per CU), four roles chosen by workgroup id:
;   R  (0..255)    8 token rows each: layer norms, residuals, router scores, DFT along the hidden axis
;   C  (256..416)  2 spectrum columns each: DFT along the sequence axis
;   Fa (417..470)  top-8 selection + gate/up projection + SwiGLU for a 32-column slice
;   Fb (471..490)  top-8 selection + down projection + scatter for a 32-column slice
; The Fourier sublayer Real(DFT_seq(DFT_hid(x))) is evaluated with the exact Cooley-Tukey factorisation of the
; two (constant) DFT matrices, 640 = 20 x 32 and 2048 = 32 x 64, as small MFMA products with f16 factors that are
; generated with v_cos/v_sin; pairs of real rows are packed into one complex row and unpacked inside the
; column factor.  The layer-1 expert update of the 8 routed rows enters the second Fourier sublayer as an exact
; rank-8 correction (linearity), so the column pass of layer 2 overlaps the expert MLP.
; Hand-offs between workgroups go through d_ws with write-through (sc1) stores and sc1 loads.  Flags carry a
; per-launch tag derived from the word at d_ws+0; bulk buffers are pre-filled with all-ones by their producer and
; re-read by consumers until every word has landed.  All waits are bounded.
; Generated by the author's own script (hand-written instruction sequences).
; ---------------------------------------------------------------------------------------------------------
""".lstrip("\n")
out += '.amdgcn_target "amdgcn-amd-amdhsa--gfx950"\n.text\n'
out += f".globl {NAME}_kernel\n.p2align 8\n.type {NAME}_kernel,@function\n{NAME}_kernel:\n"
prologue(); roleR(); roleC(); roleFa(); roleFb()
out += A.text()
out += "L_code_end:\n"
out = out.replace(".text\n", ".text\n.set CODE_LINES, 256\n.set CODE_LINES2, 100\n", 1)
out += f""".section .rodata,"a"
.p2align 6
.amdhsa_kernel {NAME}_kernel
  .amdhsa_next_free_vgpr 256
  .amdhsa_next_free_sgpr 102
  .amdhsa_accum_offset 256
  .amdhsa_group_segment_fixed_size 0
  .amdhsa_kernarg_size 104
  .amdhsa_user_sgpr_count 2
  .amdhsa_user_sgpr_kernarg_segment_ptr 1
  .amdhsa_system_sgpr_workgroup_id_x 1
  .amdhsa_float_denorm_mode_32 3
.end_amdhsa_kernel
"""
import subprocess, tempfile, os, re
with tempfile.TemporaryDirectory() as td:
    open(td + "/a.s", "w").write(out)
    subprocess.check_call(["clang", "-x", "assembler", "-target", "amdgcn-amd-amdhsa", "-mcpu=gfx950", "-c", td + "/a.s", "-o", td + "/a.o"])
    hd = subprocess.check_output(["llvm-objdump", "-h", td + "/a.o"]).decode()
    size = int(re.search(r"\.text\s+([0-9a-f]+)", hd).group(1), 16)
out = out.replace(".set CODE_LINES, 256", ".set CODE_LINES, %d" % min(256, size // 128))
out = out.replace(".set CODE_LINES2, 100", ".set CODE_LINES2, %d" % max(0, size // 128 - 256))
print("code bytes:", size, file=sys.stderr)
dst = [a for a in sys.argv[1:] if not a.startswith("--")]
open(dst[0] if dst else "cdna_kernels/%s.s" % NAME, "w").write(out)
print("instructions:", A.ninstr, file=sys.stderr)
```

```python
import sys, struct
from asmb import Asm

NAME = "interleave_layers__spectral_fnet__moe_arch_mod__prompt"
def opt(name, default):
    for a in sys.argv:
        if a.startswith("--%s=" % name):
            return int(a.split("=")[1])
    return default
STAMPS = "--stamps" in sys.argv
DSTAMPS = "--dstamps" in sys.argv
MSTAMPS = "--mstamps" in sys.argv
EXACT = opt("exact", 0)
EXACT1 = opt("exact1", 0)
GATE = opt("gate", 1)
NR, NC, NFA, NFB = 256, 161, 54, 20
C0, FA0, FB0, NWG = 256, 417, 471, 491
FSH = opt("fsh", 6); FREP = 16 << FSH
FL_OFF = 0x1000; NREP = opt("nrep", 16)
RESET_OFF = 0x70000
H_OFF = 0x70000; HREP = 0x7000
X2_OFF = 0x90000; X2REP = 0x5200; NRX = opt("nrx", 1); SEL_OFF = 0x5000
RSH = opt("rsh", 6)
RG_OFF = 0xA0000; NRR = opt("nrr", 8); RG_REP = 256 << RSH
CNT_OFF = 0xF8000
WROW = 10368
W_OFF = 0x100000; W_SZ = 0x290000
Y_OFF = 0x640000; Y_SZ = 0x160000; YM_OFF = 322 * 4096
T_OFF = 0x900000; T_REC = 2688; T_SZ = 2048 * T_REC
ST_OFF = 0x1400000
WS_BYTES = 0x1500000
NONCE_C = 0x9E3779B9
SPIN = 40000
LDS_BYTES = 53248
assert FL_OFF + 4 * NREP * FREP <= 0x70000 and RG_OFF + 2 * NRR * RG_REP <= 0xF0000
PSLEEP = opt("psleep", 0)
EARLY_R = opt("earlyr", 1)
EARLY_C = opt("earlyc", 2)
PRIO = opt("prio", 1)
DRAIN2 = opt("drain2", 0)
AWR = opt("awr", 3)
PPART = opt("ppart", 3)
DRAIN0 = opt("drain0", 0)
def prio(n):
    if PRIO:
        A(f"s_setprio {n}")

def f32(x):
    return "0x%08x" % struct.unpack("<I", struct.pack("<f", x))[0]
def v(i, n=1):
    return "v%d" % i if n == 1 else "v[%d:%d]" % (i, i + n - 1)
def s(i, n=1):
    return "s%d" % i if n == 1 else "s[%d:%d]" % (i, i + n - 1)

A = Asm()
WS = "s[4:7]"; SRD1 = "s[8:11]"; SRD2 = "s[12:15]"; SRD3 = "s[16:19]"
NONCE = 20; WV = 21

def srd(base, ptr, nbytes):
    A(f"s_mov_b32 s{base}, s{ptr}")
    A(f"s_and_b32 s{base+1}, s{ptr+1}, 0xffff")
    A(f"s_mov_b32 s{base+2}, {nbytes}")
    A(f"s_mov_b32 s{base+3}, 0x00020000")

def set_exec(m):
    A(f"s_mov_b32 exec_lo, 0x{m & 0xffffffff:x}")
    A(f"s_mov_b32 exec_hi, 0x{m >> 32:x}")

def stamp(idx, lay=None, dbg=None):
    if MSTAMPS and dbg is not None:
        L = A.newlabel("Lst")
        A(f"s_mov_b32 s97, s{WV}")
        if len(dbg) > 2:
            A(f"s_sub_u32 s96, {lay}, {dbg[2]}")
            A(f"s_or_b32 s97, s97, s96")
        A(f"s_cmp_lg_u32 s97, 0")
        A(f"s_cbranch_scc1 {L}")
        A("s_memrealtime s[98:99]")
        A("s_waitcnt lgkmcnt(0)")
        A("s_and_b32 s98, s98, 0x7fffffff")
        A("v_mov_b32 v254, s98")
        A("v_mov_b32 v253, 0")
        A("s_mov_b64 exec, 1")
        if dbg[0] == 0:
            A(f"buffer_atomic_umax v254, v253, s[92:95], 0 offen offset:4")
            A("v_not_b32 v254, v254")
        if dbg[0] != 1:
            A(f"buffer_atomic_umax v254, v253, s[92:95], 0 offen offset:{dbg[0] * 4}")
        A("s_mov_b64 exec, -1")
        A.label(L)
    if DSTAMPS and dbg is not None:
        L = A.newlabel("Lst")
        A(f"s_lshl_b32 s97, s{WV}, 16")
        A(f"s_or_b32 s97, s97, s2")
        if len(dbg) > 2:
            A(f"s_lshl_b32 s96, {lay}, 20")
            A(f"s_or_b32 s97, s97, s96")
        A(f"s_cmp_lg_u32 s97, {dbg[1] + ((dbg[2] << 20) if len(dbg) > 2 else 0)}")
        A(f"s_cbranch_scc1 {L}")
        A("s_memrealtime s[98:99]")
        A("s_waitcnt lgkmcnt(0)")
        A("v_mov_b32 v254, s98")
        A("v_mov_b32 v253, 0")
        A("s_mov_b64 exec, 1")
        A(f"buffer_store_dword v254, v253, s[92:95], 0 offen offset:{dbg[0] * 4}")
        A("s_mov_b64 exec, -1")
        A.label(L)
    if not STAMPS:
        return
    L = A.newlabel("Lst")
    A(f"s_cmp_lg_u32 s{WV}, 0")
    A(f"s_cbranch_scc1 {L}")
    A("s_memrealtime s[98:99]")
    A("s_memtime s[100:101]")
    A("s_waitcnt lgkmcnt(0)")
    A("v_mov_b32 v254, s98")
    A("v_mov_b32 v255, s100")
    A("v_mov_b32 v253, 0")
    A("s_lshl_b32 s97, s2, 9")
    A(f"s_add_u32 s97, s97, {ST_OFF + idx * 8}")
    if lay is not None:
        A(f"s_lshl_b32 s96, {lay}, 6")
        A("s_add_u32 s97, s97, s96")
    A("s_mov_b64 exec, 1")
    A(f"buffer_store_dwordx2 v[254:255], v253, {WS}, s97 offen")
    A("s_mov_b64 exec, -1")
    A.label(L)

def spin_tail(loop, cnt, sleep=1):
    if sleep:
        A(f"s_sleep {sleep}")
    A(f"s_sub_u32 s{cnt}, s{cnt}, 1")
    A(f"s_cmp_lg_u32 s{cnt}, 0")
    A(f"s_cbranch_scc1 {loop}")

def any_sentinel(regs, t, done):
    regs = list(regs)
    A(f"v_max3_u32 {v(t)}, {v(regs[0])}, {v(regs[1])}, {v(regs[2])}")
    k = 3
    while k + 1 < len(regs):
        A(f"v_max3_u32 {v(t)}, {v(t)}, {v(regs[k])}, {v(regs[k+1])}")
        k += 2
    if k < len(regs):
        A(f"v_max_u32 {v(t)}, {v(t)}, {v(regs[k])}")
    A(f"v_cmp_eq_u32 vcc, -1, {v(t)}")
    A(f"s_cbranch_vccz {done}")

def poll_flags(k, srep, t, sleep=None):
    loop, done = A.newlabel("Lpoll"), A.newlabel("Lpolld")
    A(f"s_cmp_lg_u32 s{WV}, 0")
    A(f"s_cbranch_scc1 {done}")
    if isinstance(k, int):
        A(f"s_add_u32 s60, s{srep}, {FL_OFF + k * NREP * FREP}")
    else:
        A(f"s_mul_i32 s60, {k}, {NREP * FREP}")
        A(f"s_add_u32 s60, s60, s{srep}")
        A(f"s_add_u32 s60, s60, {FL_OFF}")
    A(f"s_add_u32 s61, s{NONCE}, {k}")
    A(f"v_and_b32 {v(t+1)}, 15, v1")
    A(f"v_lshlrev_b32 {v(t+1)}, {FSH}, {v(t+1)}")
    A(f"s_mov_b32 s62, {SPIN}")
    A.label(loop)
    A(f"buffer_load_dword {v(t)}, {v(t+1)}, {WS}, s60 offen sc1")
    A("s_waitcnt vmcnt(0)")
    A(f"v_cmp_ne_u32 vcc, s61, {v(t)}")
    A(f"s_cbranch_vccz {done}")
    spin_tail(loop, 62, PSLEEP if sleep is None else sleep)
    A.label(done)
    A("s_barrier")

def cnt_init(sshard, ks, t):
    for k in ks:
        A(f"s_add_u32 s60, s{sshard}, {16 * k}")
        A(f"s_lshl_b32 s60, s60, 7")
        A(f"s_add_u32 s60, s60, {CNT_OFF}")
        A(f"s_add_u32 s61, s{NONCE}, {k}")
        A(f"v_mov_b32 {v(t)}, 0")
        A(f"v_mov_b32 {v(t+1)}, s61")
        A(f"v_mov_b32 {v(t+2)}, 0")
        A("s_mov_b64 exec, 1")
        A(f"buffer_store_dwordx2 {v(t,2)}, {v(t+2)}, {WS}, s60 offen sc1")
        A("s_mov_b64 exec, -1")

def arrive_issue(k, sshard, t, aw=0):
    L = A.newlabel("Larr")
    A(f"s_cmp_lg_u32 s{WV}, {aw}")
    A(f"s_cbranch_scc1 {L}")
    if isinstance(k, int):
        A(f"s_add_u32 s66, s{sshard}, {16 * k}")
    else:
        A(f"s_lshl_b32 s66, {k}, 4")
        A(f"s_add_u32 s66, s66, s{sshard}")
    A(f"s_lshl_b32 s66, s66, 7")
    A(f"s_add_u32 s66, s66, {CNT_OFF}")
    A(f"v_mov_b32 {v(t)}, 1")
    A(f"v_mov_b32 {v(t+1)}, 0")
    A(f"v_mov_b32 {v(t+2)}, 0")
    A("s_mov_b64 exec, 1")
    A(f"buffer_atomic_add_x2 {v(t,2)}, {v(t+2)}, {WS}, s66 offen sc0")
    A("s_mov_b64 exec, -1")
    A.label(L)

def arrive_finish(k, sshard, slast, t, younger, aw=0, mark=None):
    L, again, chk = A.newlabel("Lsig"), A.newlabel("Lsiga"), A.newlabel("Lsigc")
    A(f"s_cmp_lg_u32 s{WV}, {aw}")
    A(f"s_cbranch_scc1 {L}")
    if isinstance(k, int):
        A(f"s_lshl_b32 s67, s{sshard}, {FSH}")
        A(f"s_add_u32 s67, s67, {FL_OFF + k * NREP * FREP}")
    else:
        A(f"s_mul_i32 s67, {k}, {NREP * FREP}")
        A(f"s_lshl_b32 s68, s{sshard}, {FSH}")
        A(f"s_add_u32 s67, s67, s68")
        A(f"s_add_u32 s67, s67, {FL_OFF}")
    A(f"s_add_u32 s68, s{NONCE}, {k}")
    A(f"v_lshlrev_b32 {v(t+3)}, {FSH + 4}, v1")
    A(f"v_mov_b32 {v(t+4)}, s68")
    A(f"s_mov_b32 s69, {SPIN}")
    if isinstance(younger, tuple):
        A(f"s_waitcnt vmcnt({younger[2]})")
        A(f"s_cmp_eq_u32 {younger[0]}, {younger[1]}")
        A(f"s_cbranch_scc1 {chk}")
        A("s_waitcnt vmcnt(0)")
    else:
        A(f"s_waitcnt vmcnt({younger})")
    A(f"s_branch {chk}")
    A.label(again)
    A(f"s_sub_u32 s69, s69, 1")
    A(f"s_cmp_eq_u32 s69, 0")
    A(f"s_cbranch_scc1 {L}")
    A(f"v_mov_b32 {v(t)}, 1")
    A(f"v_mov_b32 {v(t+1)}, 0")
    A(f"v_mov_b32 {v(t+2)}, 0")
    A("s_mov_b64 exec, 1")
    A(f"buffer_atomic_add_x2 {v(t,2)}, {v(t+2)}, {WS}, s66 offen sc0")
    A("s_mov_b64 exec, -1")
    A("s_waitcnt vmcnt(0)")
    A.label(chk)
    A(f"v_readfirstlane_b32 s65, {v(t+1)}")
    A(f"v_readfirstlane_b32 s64, {v(t)}")
    A(f"s_cmp_lg_u32 s65, s68")
    A(f"s_cbranch_scc1 {again}")
    A(f"s_cmp_lg_u32 s64, {slast}")
    A(f"s_cbranch_scc1 {L}")
    set_exec((1 << NREP) - 1)
    A(f"buffer_store_dword {v(t+4)}, {v(t+3)}, {WS}, s67 offen sc1")
    A("s_mov_b64 exec, -1")
    if mark:
        A(f"s_mov_b32 {mark}, 1")
    A.label(L)

def rnd_pair(a, b, t):
    A(f"v_cvt_pk_bf16_f32 {v(t)}, {v(a)}, {v(b)}")
    A(f"v_lshlrev_b32 {v(a)}, 16, {v(t)}")
    A(f"v_and_b32 {v(b)}, 0xffff0000, {v(t)}")

def sincos(arg, c, sn):
    A(f"v_cos_f32 {v(c)}, {v(arg)}")
    A(f"v_sin_f32 {v(sn)}, {v(arg)}")

def prefetch_weights(t):
    if not opt("pref", 0):
        return
    srd(84, 46, 2211840)
    A(f"v_lshlrev_b32 {v(t)}, 4, v0")
    A(f"s_sub_u32 s60, s2, {C0}")
    for r in range(7):
        Ls, Ld = A.newlabel("Lpf"), A.newlabel("Lpf")
        A(f"s_add_u32 s61, s60, {235 * r}")
        A(f"s_cmp_ge_u32 s61, 1620")
        A(f"s_cbranch_scc1 {Ld}")
        A(f"s_mov_b32 s84, s46")
        A(f"s_and_b32 s85, s47, 0xffff")
        for (lim, p) in ((540, 48), (540, 50)):
            A(f"s_cmp_lt_u32 s61, {lim}")
            A(f"s_cbranch_scc1 {Ls}")
            A(f"s_sub_u32 s61, s61, {lim}")
            A(f"s_mov_b32 s84, s{p}")
            A(f"s_and_b32 s85, s{p+1}, 0xffff")
        A.label(Ls)
        A(f"s_lshl_b32 s61, s61, 12")
        A(f"buffer_load_dwordx4 {v(t+4,4)}, {v(t)}, s[84:87], s61 offen")
        A.label(Ld)

def fb_start(x, d):
    A(f"s_mul_i32 {d}, {x}, 3")
    A(f"s_lshl_b32 s62, {x}, 1")
    A(f"s_add_u32 s62, s62, 3")
    A(f"s_min_u32 {d}, {d}, s62")

def nloads(part):
    return bin(part).count("1")

def warm_weights(t, first, nshare, part):
    ra, rb = -(-640 // nshare), -(-1728 // nshare)
    A("s_and_b32 s61, s2, 7")
    A(f"s_sub_u32 s60, s2, {first}")
    A("s_lshr_b32 s60, s60, 3")
    srd(84, 46, 2211840)
    if part & 5:
        A(f"v_lshrrev_b32 {v(t)}, 2, v0")
        A(f"v_and_b32 {v(t+1)}, 3, v0")
        A(f"v_min_u32 {v(t)}, {ra - 1}, {v(t)}")
        A(f"s_mul_i32 s64, s60, {ra}")
        A(f"v_add_u32 {v(t)}, s64, {v(t)}")
        A("s_mul_i32 s63, s61, 7")
        A("s_sub_u32 s63, s63, 1")
        A("s_max_i32 s63, s63, 0")
        A("s_lshl_b32 s63, s63, 6")
        A("s_and_b32 s63, s63, -128")
        A(f"v_lshl_add_u32 {v(t+1)}, {v(t+1)}, 7, s63")
        A(f"s_movk_i32 s64, 3456")
        A(f"v_mad_u32_u24 {v(t+1)}, {v(t)}, s64, {v(t+1)}")
        if part & 1:
            A(f"buffer_load_dword {v(t+3)}, {v(t+1)}, s[84:87], 0 offen")
        if part & 4:
            A("s_mov_b32 s84, s48")
            A("s_and_b32 s85, s49, 0xffff")
            A(f"buffer_load_dword {v(t+3)}, {v(t+1)}, s[84:87], 0 offen")
    if part & 2:
        A(f"v_lshrrev_b32 {v(t)}, 1, v0")
        A(f"v_and_b32 {v(t+1)}, 1, v0")
        A(f"v_min_u32 {v(t)}, {rb - 1}, {v(t)}")
        A(f"s_mul_i32 s64, s60, {rb}")
        A(f"v_add_u32 {v(t)}, s64, {v(t)}")
        fb_start("s61", "s63")
        A("s_lshl_b32 s63, s63, 6")
        A("s_and_b32 s63, s63, -128")
        A(f"v_lshl_add_u32 {v(t+1)}, {v(t+1)}, 7, s63")
        A(f"s_movk_i32 s64, 1280")
        A(f"v_mad_u32_u24 {v(t+1)}, {v(t)}, s64, {v(t+1)}")
        A("s_mov_b32 s84, s50")
        A("s_and_b32 s85, s51, 0xffff")
        A(f"buffer_load_dword {v(t+3)}, {v(t+1)}, s[84:87], 0 offen")

def warm_coop(t):
    A("s_and_b32 s61, s2, 7")
    A(f"s_sub_u32 s60, s2, {FA0 - 1}")
    A("s_lshr_b32 s60, s60, 3")
    A("s_cmp_eq_u32 s61, 0")
    A("s_cselect_b32 s62, 1, 0")
    A("s_sub_u32 s60, s60, s62")
    A("s_min_u32 s60, s60, 8")
    A("s_mul_i32 s63, s61, 7")
    A("s_sub_u32 s63, s63, 1")
    A("s_max_i32 s63, s63, 0")
    A("s_lshl_b32 s63, s63, 6")
    A("s_and_b32 s63, s63, -128")
    A(f"v_and_b32 {v(t+1)}, 3, v0")
    A(f"v_lshl_add_u32 {v(t+1)}, {v(t+1)}, 7, s63")
    A(f"s_mul_i32 s64, s60, 72")
    A(f"s_movk_i32 s65, 3456")
    srd(84, 46, 2211840)
    srd(88, 48, 2211840)
    for p in range(2 if opt("coop", 4) & 5 else 0):
        A(f"v_lshrrev_b32 {v(t)}, 2, v0")
        A(f"v_add_u32 {v(t)}, {64 * p}, {v(t)}")
        A(f"v_min_u32 {v(t)}, 71, {v(t)}")
        A(f"v_add_u32 {v(t)}, s64, {v(t)}")
        A(f"v_mad_u32_u24 {v(t)}, {v(t)}, s65, {v(t+1)}")
        if p == 1:
            set_exec(0xffffffff)
        if opt("coop", 4) & 1:
            A(f"buffer_load_dword {v(t+3)}, {v(t)}, s[84:87], 0 offen")
        if opt("coop", 4) & 4:
            A(f"buffer_load_dword {v(t+3)}, {v(t)}, s[88:91], 0 offen")
    A("s_mov_b64 exec, -1")
    fb_start("s61", "s63")
    A("s_lshl_b32 s63, s63, 6")
    A("s_and_b32 s63, s63, -128")
    A(f"v_and_b32 {v(t+1)}, 1, v0")
    A(f"v_lshl_add_u32 {v(t+1)}, {v(t+1)}, 7, s63")
    A(f"s_mul_i32 s64, s60, 192")
    A(f"s_movk_i32 s65, 1280")
    A("s_mov_b32 s84, s50")
    A("s_and_b32 s85, s51, 0xffff")
    for p in range(2 if opt("coop", 4) & 2 else 0):
        A(f"v_lshrrev_b32 {v(t)}, 1, v0")
        A(f"v_add_u32 {v(t)}, {128 * p}, {v(t)}")
        A(f"v_min_u32 {v(t)}, 191, {v(t)}")
        A(f"v_add_u32 {v(t)}, s64, {v(t)}")
        A(f"v_mad_u32_u24 {v(t)}, {v(t)}, s65, {v(t+1)}")
        A(f"buffer_load_dword {v(t+3)}, {v(t)}, s[84:87], 0 offen")
    A("s_waitcnt vmcnt(0)")

def touch(t, base, nbytes):
    if not opt("touch", 0):
        return
    n = (nbytes + 65535) >> 16
    assert n <= 256
    A(f"v_min_u32 {v(t)}, {n - 1}, v0")
    A(f"v_lshlrev_b32 {v(t)}, 16, {v(t)}")
    A(f"s_mov_b32 s60, {base + opt('touchoff', 2624)}")
    A(f"buffer_load_dword {v(t)}, {v(t)}, {WS}, s60 offen")
    A("s_waitcnt vmcnt(0)")

def nonce_load(r):
    A(f"v_mov_b32 {v(r)}, 0")
    A(f"buffer_load_dword {v(r)}, {v(r)}, {WS}, 0 offen")

def nonce_take(r):
    A(f"v_readfirstlane_b32 s{NONCE}, {v(r)}")
    A(f"s_add_u32 s{NONCE}, s{NONCE}, 0x{NONCE_C:x}")

def prologue():
    A(f"s_cmp_ge_u32 s2, {NWG}")
    A("s_cbranch_scc1 L_end")
    if opt("t0", 0):
        A("s_memrealtime s[90:91]")
    A("s_load_dwordx2 s[40:41], s[0:1], 96")
    A("s_load_dwordx2 s[42:43], s[0:1], 0")
    A("s_load_dwordx4 s[44:47], s[0:1], 48")
    A("s_load_dwordx4 s[48:51], s[0:1], 64")
    A("s_load_dwordx4 s[52:55], s[0:1], 80")
    if opt("codepf", 1):
        A("s_getpc_b64 s[60:61]")
        A("s_and_b32 s60, s60, -256")
        A("v_lshlrev_b32 v2, 7, v0")
        A("v_mov_b32 v3, s61")
        A("v_add_co_u32 v2, vcc, s60, v2")
        A("v_addc_co_u32 v3, vcc, 0, v3, vcc")
        A("v_cmp_gt_u32 vcc, CODE_LINES, v0")
        A("s_and_saveexec_b64 s[62:63], vcc")
        A("s_cbranch_execz L_nopf")
        A("global_load_dword v255, v[2:3], off")
        A("v_add_co_u32 v2, vcc, 0x8000, v2")
        A("v_addc_co_u32 v3, vcc, 0, v3, vcc")
        A("v_cmp_gt_u32 vcc, CODE_LINES2, v0")
        A("s_and_b64 exec, exec, vcc")
        A("s_cbranch_execz L_nopf")
        A("global_load_dword v255, v[2:3], off")
        A.label("L_nopf")
        A("s_mov_b64 exec, s[62:63]")
    A("v_lshrrev_b32 v2, 6, v0")
    A("v_and_b32 v1, 63, v0")
    A(f"v_readfirstlane_b32 s{WV}, v2")
    A("s_waitcnt lgkmcnt(0)")
    srd(4, 40, WS_BYTES)
    if DSTAMPS or MSTAMPS:
        srd(92, 54, 256)
    stamp(31, dbg=(0, 0))
    if opt("t0", 0):
        L = A.newlabel("Lt0")
        A(f"s_lshl_b32 s97, s{WV}, 16")
        A(f"s_or_b32 s97, s97, s2")
        A(f"s_cmp_lg_u32 s97, 0")
        A(f"s_cbranch_scc1 {L}")
        A("v_mov_b32 v254, s90")
        A("v_mov_b32 v253, 0")
        A("s_mov_b64 exec, 1")
        A(f"buffer_store_dword v254, v253, s[92:95], 0 offen offset:4")
        A("s_mov_b64 exec, -1")
        A.label(L)
    A(f"s_cmp_lt_u32 s2, {C0}")
    A("s_cbranch_scc1 L_roleR")
    A(f"s_cmp_lt_u32 s2, {FA0}")
    A("s_cbranch_scc1 L_roleC")
    A(f"s_cmp_lt_u32 s2, {FB0}")
    A("s_cbranch_scc1 L_roleFa")
    A("s_branch L_roleFb")

B1R, B1I, TWC, TWS, B2R, B2I, WR, INV = 16, 28, 40, 56, 72, 88, 104, 114
X, XN, MM, RS = 116, 136, 156, 158
ACR, ACI, AF1, AF2, AC2R, AC2I = 160, 176, 192, 204, 220, 236
vX, vY0, vY1, vY2, vKX, vLC, vLYW, vLYR, vLWW, vLWR0, vWG, vTA = 2, 3, 4, 5, 6, 7, 8, 9, 10, 11, 14, 15
vTB, vWG1 = 252, 115
sRHO, sA, sS2, sRA, sME, sREP, sXO, sWB, sTB, sP, sS, sQ = 22, 23, 24, 25, 26, 27, 28, 29, 30, 32, 34, 36
sSEL = 80
s32f = 38
sTAU = 39
LDS_Y, LDS_W, LDS_NEW, LDS_KX, LDS_CONST, LDS_RG = 0, 10240, 21504, 31744, 24576, 52224

def reduce_tail(r):
    for k in (8, 4, 2, 1):
        A(f"v_add_f32_dpp {v(r)}, {v(r)}, {v(r)} row_ror:{k} row_mask:0xf bank_mask:0xf")

def tau_of(w, t, scale):
    A(f"v_pk_mul_f32 {v(t,2)}, {v(w,2)}, {v(w,2)}")
    for i in range(2, 10, 2):
        A(f"v_pk_fma_f32 {v(t,2)}, {v(w+i,2)}, {v(w+i,2)}, {v(t,2)}")
    A(f"v_add_f32 {v(t)}, {v(t)}, {v(t+1)}")
    for sw in ("32", "16"):
        A(f"v_mov_b32 {v(t+1)}, {v(t)}")
        A(f"v_permlane{sw}_swap_b32 {v(t)}, {v(t+1)}")
        A(f"v_add_f32 {v(t)}, {v(t)}, {v(t+1)}")
    reduce_tail(t)
    A(f"v_sqrt_f32 {v(t)}, {v(t)}")
    A(f"v_mul_f32 {v(t)}, {f32(scale * opt('tau', 200) / 100)}, {v(t)}")

def ln_stats(xb, t):
    A.comment("layer-norm statistics (pivot-shifted sums; mean, variance, +eps and sqrt rounded to bf16 like the reference)")
    S_, Q_, D0, D1 = t, t + 2, t + 4, t + 6
    A(f"v_readfirstlane_b32 s{sP}, {v(xb)}")
    A(f"v_readfirstlane_b32 s{sP+1}, {v(xb+1)}")
    for i in range(10):
        D = S_ if i == 0 else (D0 if i % 2 else D1)
        A(f"v_pk_add_f32 {v(D,2)}, {v(xb+2*i,2)}, {s(sP,2)} neg_lo:[0,1] neg_hi:[0,1]")
        if i == 0:
            A(f"v_pk_mul_f32 {v(Q_,2)}, {v(D,2)}, {v(D,2)}")
        else:
            A(f"v_pk_add_f32 {v(S_,2)}, {v(S_,2)}, {v(D,2)}")
            A(f"v_pk_fma_f32 {v(Q_,2)}, {v(D,2)}, {v(D,2)}, {v(Q_,2)}")
    A(f"v_permlane32_swap_b32 {v(S_)}, {v(S_+1)}")
    A(f"v_permlane32_swap_b32 {v(Q_)}, {v(Q_+1)}")
    A(f"v_add_f32 {v(S_)}, {v(S_)}, {v(S_+1)}")
    A(f"v_add_f32 {v(Q_)}, {v(Q_)}, {v(Q_+1)}")
    A(f"v_permlane16_swap_b32 {v(S_)}, {v(Q_)}")
    A(f"v_add_f32 {v(S_)}, {v(S_)}, {v(Q_)}")
    reduce_tail(S_)
    A(f"v_readlane_b32 s{sS}, {v(S_)}, 0")
    A(f"v_readlane_b32 s{sS+1}, {v(S_)}, 32")
    A(f"v_readlane_b32 s{sQ}, {v(S_)}, 16")
    A(f"v_readlane_b32 s{sQ+1}, {v(S_)}, 48")
    A(f"v_pk_mul_f32 {v(MM,2)}, {s(sS,2)}, {v(INV,2)} op_sel_hi:[1,0]")
    A(f"v_pk_mul_f32 {v(RS,2)}, {s(sQ,2)}, {v(INV,2)} op_sel_hi:[1,0]")
    A(f"v_pk_fma_f32 {v(RS,2)}, {v(MM,2)}, {v(MM,2)}, {v(RS,2)} neg_lo:[1,0,0] neg_hi:[1,0,0]")
    A(f"v_pk_add_f32 {v(MM,2)}, {v(MM,2)}, {s(sP,2)}")
    A(f"v_max_f32 {v(RS)}, 0, {v(RS)}")
    A(f"v_max_f32 {v(RS+1)}, 0, {v(RS+1)}")
    rnd_pair(RS, RS + 1, D0)
    A(f"v_add_f32 {v(RS)}, {f32(1e-5)}, {v(RS)}")
    A(f"v_add_f32 {v(RS+1)}, {f32(1e-5)}, {v(RS+1)}")
    rnd_pair(RS, RS + 1, D0)
    A(f"v_sqrt_f32 {v(RS)}, {v(RS)}")
    A(f"v_sqrt_f32 {v(RS+1)}, {v(RS+1)}")
    rnd_pair(MM, MM + 1, D1)
    rnd_pair(RS, RS + 1, D0)
    A(f"v_rcp_f32 {v(RS)}, {v(RS)}")
    A(f"v_rcp_f32 {v(RS+1)}, {v(RS+1)}")

def ln_center_scale(xb, zb, t, exact=True):
    if not exact:
        A(f"v_pk_mul_f32 {v(t,2)}, {v(MM,2)}, {v(RS,2)} neg_lo:[1,0] neg_hi:[1,0]")
        for i in range(10):
            A(f"v_pk_fma_f32 {v(zb+2*i,2)}, {v(xb+2*i,2)}, {v(RS,2)}, {v(t,2)}")
        return
    for i in range(10):
        A(f"v_pk_add_f32 {v(zb+2*i,2)}, {v(xb+2*i,2)}, {v(MM,2)} neg_lo:[0,1] neg_hi:[0,1]")
        if exact:
            rnd_pair(zb + 2 * i, zb + 2 * i + 1, t + (i % 4))
    for i in range(10):
        A(f"v_pk_mul_f32 {v(zb+2*i,2)}, {v(zb+2*i,2)}, {v(RS,2)}")

def pack_rows(zb, pa, pb):
    for u in range(5):
        A(f"v_cvt_pk_bf16_f32 {v(pa+u)}, {v(zb+4*u)}, {v(zb+4*u+2)}")
        A(f"v_cvt_pk_bf16_f32 {v(pb+u)}, {v(zb+4*u+1)}, {v(zb+4*u+3)}")

def unpack_rows(zb, pa, pb):
    for u in range(5):
        A(f"v_lshlrev_b32 {v(zb+4*u)}, 16, {v(pa+u)}")
        A(f"v_and_b32 {v(zb+4*u+2)}, 0xffff0000, {v(pa+u)}")
        A(f"v_lshlrev_b32 {v(zb+4*u+1)}, 16, {v(pb+u)}")
        A(f"v_and_b32 {v(zb+4*u+3)}, 0xffff0000, {v(pb+u)}")

def store_rows(pa, pa4, pb, pb4, off, sb=sTB):
    A(f"buffer_store_dwordx4 {v(pa,4)}, {v(vTA)}, {WS}, s{sb} offen offset:{off} sc1")
    A(f"buffer_store_dword {v(pa4)}, {v(vTB)}, {WS}, s{sb} offen offset:{off} sc1")
    A(f"buffer_store_dwordx4 {v(pb,4)}, {v(vTA)}, {WS}, s{sb+1} offen offset:{off} sc1")
    A(f"buffer_store_dword {v(pb4)}, {v(vTB)}, {WS}, s{sb+1} offen offset:{off} sc1")

def to_f16(zb, t, sub=None):
    for i in range(10):
        if EXACT:
            rnd_pair(zb + 2 * i, zb + 2 * i + 1, t + (i % 4))
        A(f"v_cvt_pk_f16_f32 {v(AF1+i)}, {v(zb+2*i)}, {v(zb+2*i+1)}")
        if sub is not None:
            A(f"v_pk_add_f16 {v(AF1+i)}, {v(AF1+i)}, {v(sub(i))} neg_lo:[0,1] neg_hi:[0,1]")

def row_dft(t, shadow1=None, shadow2=None):
    for kk in range(3):
        c = "0" if kk == 0 else None
        A(f"v_mfma_f32_32x32x16_f16 {v(ACR,16)}, {v(AF1+4*kk,4)}, {v(B1R+4*kk,4)}, {c or v(ACR,16)}")
        A(f"v_mfma_f32_32x32x16_f16 {v(ACI,16)}, {v(AF1+4*kk,4)}, {v(B1I+4*kk,4)}, {c or v(ACI,16)}")
    if shadow1:
        shadow1()
    for kk in range(4):
        for i in (4 * kk, 4 * kk + 2):
            pr, pi = t + (i % 4) * 2, t + (i % 4) * 2 + 2
            A(f"v_pk_mul_f32 {v(pr,2)}, {v(ACR+i,2)}, {v(TWC+i,2)}")
            A(f"v_pk_mul_f32 {v(pi,2)}, {v(ACI+i,2)}, {v(TWC+i,2)}")
            A(f"v_pk_fma_f32 {v(pr,2)}, {v(ACI+i,2)}, {v(TWS+i,2)}, {v(pr,2)}")
            A(f"v_pk_fma_f32 {v(pi,2)}, {v(ACR+i,2)}, {v(TWS+i,2)}, {v(pi,2)} neg_lo:[1,0,0] neg_hi:[1,0,0]")
            A(f"v_cvt_pk_f16_f32 {v(AF2+i)}, {v(pr)}, {v(pi)}")
            A(f"v_cvt_pk_f16_f32 {v(AF2+i+1)}, {v(pr+1)}, {v(pi+1)}")
        c = "0" if kk == 0 else None
        A(f"v_mfma_f32_32x32x16_f16 {v(AC2R,16)}, {v(AF2+4*kk,4)}, {v(B2R+4*kk,4)}, {c or v(AC2R,16)}")
        A(f"v_mfma_f32_32x32x16_f16 {v(AC2I,16)}, {v(AF2+4*kk,4)}, {v(B2I+4*kk,4)}, {c or v(AC2I,16)}")
    if shadow2:
        shadow2()

def W_stores(layer, r0, r1, r2, lds=True):
    L = A.newlabel("Lw2")
    A(f"s_add_u32 s60, s{sWB}, {W_OFF + layer * W_SZ}")
    A(f"s_add_u32 s62, s60, {8192 + 112}")
    if lds:
        A("s_waitcnt lgkmcnt(2)")
    A(f"buffer_store_dwordx4 {v(r0,4)}, {v(vWG)}, {WS}, s60 offen sc1")
    if lds:
        A("s_waitcnt lgkmcnt(0)")
    A(f"buffer_store_dwordx4 {v(r1,4)}, {v(vWG1)}, {WS}, s60 offen sc1")
    A(f"s_cmp_ge_u32 s{WV}, 2")
    A(f"s_cbranch_scc1 {L}")
    if lds:
        A(f"ds_read2st64_b32 {v(r2,2)}, {v(vLWR0+2)} offset0:0 offset1:11")
        A(f"ds_read2st64_b32 {v(r2+2,2)}, {v(vLWR0+2)} offset0:22 offset1:33")
        A("s_waitcnt lgkmcnt(0)")
    A(f"buffer_store_dwordx4 {v(r2,4)}, {v(vWG)}, {WS}, s62 offen sc1")
    A.label(L)

def write_W(layer):
    k = 2 * layer
    for i in range(10):
        A(f"v_cvt_pk_f16_f32 {v(ACR+i)}, {v(AC2R+i)}, {v(AC2I+i)}")
        A(f"ds_write_b32 {v(vLWW)}, {v(ACR+i)} offset:{4*i}")
    A("s_waitcnt lgkmcnt(0)")
    A("s_barrier")
    for j in range(2):
        A(f"ds_read2st64_b32 {v(ACI+4*j,2)}, {v(vLWR0+j)} offset0:0 offset1:11")
        A(f"ds_read2st64_b32 {v(ACI+4*j+2,2)}, {v(vLWR0+j)} offset0:22 offset1:33")
    if EARLY_R == 0:
        arrive_issue(k, sME, AF2)
    W_stores(layer, ACI, ACI + 4, ACI + 8)
    if EARLY_R == 0:
        arrive_finish(k, sME, 15, AF2, 3)
    if (layer == 1 and DRAIN2) or (layer == 0 and DRAIN0):
        A("s_waitcnt vmcnt(0)")
        A("s_barrier")
        arrive_issue(k, sME, AF2)
        arrive_finish(k, sME, 15, AF2, 0)

def stage_Y(layer, first=None, shadow=None):
    c0, c1, c2, t = ACR, ACR + 4, ACR + 8, ACR + 16
    loop, L2, L4, L5, done = [A.newlabel("Ly") for _ in range(5)]
    A(f"s_mov_b32 s60, {Y_OFF + layer * Y_SZ}")
    A(f"s_mov_b32 s62, {SPIN}")
    for k in range(4):
        A(f"v_mov_b32 {v(c2+k)}, 0")
    if first:
        first()
    A.label(loop)
    A(f"buffer_load_dwordx4 {v(c0,4)}, {v(vY0)}, {WS}, s60 offen sc1")
    A(f"buffer_load_dwordx4 {v(c1,4)}, {v(vY1)}, {WS}, s60 offen sc1")
    A(f"s_cmp_ge_u32 s{WV}, 2")
    A(f"s_cbranch_scc1 {L2}")
    A(f"buffer_load_dwordx4 {v(c2,4)}, {v(vY2)}, {WS}, s60 offen sc1")
    A.label(L2)
    if shadow:
        Lsh = A.newlabel("Ly")
        A(f"s_cmp_lg_u32 s62, {SPIN}")
        A(f"s_cbranch_scc1 {Lsh}")
        shadow()
        A.label(Lsh)
    A("s_waitcnt vmcnt(0)")
    if layer == 0 or not DRAIN2:
        any_sentinel(range(c0, c0 + 12), t, done)
        spin_tail(loop, 62, 2)
    A.label(done)
    A(f"ds_write2st64_b32 {v(vLYW)}, {v(c0)}, {v(c0+1)} offset0:0 offset1:10")
    A(f"ds_write2st64_b32 {v(vLYW)}, {v(c0+2)}, {v(c0+3)} offset0:20 offset1:30")
    A(f"s_cmp_eq_u32 s{WV}, 0")
    A(f"s_cbranch_scc1 {L4}")
    for k in range(4):
        A(f"v_alignbit_b32 {v(t+k)}, {v(c1+3-k)}, {v(c1+3-k)}, 16")
    for k in range(4):
        A(f"v_mov_b32 {v(c1+k)}, {v(t+k)}")
    A.label(L4)
    A(f"ds_write2st64_b32 {v(vLYW)}, {v(c1)}, {v(c1+1)} offset0:4 offset1:14")
    A(f"ds_write2st64_b32 {v(vLYW)}, {v(c1+2)}, {v(c1+3)} offset0:24 offset1:34")
    A(f"s_cmp_ge_u32 s{WV}, 2")
    A(f"s_cbranch_scc1 {L5}")
    for k in range(4):
        A(f"v_alignbit_b32 {v(t+k)}, {v(c2+3-k)}, {v(c2+3-k)}, 16")
    A(f"ds_write2st64_b32 {v(vLYW)}, {v(t)}, {v(t+1)} offset0:8 offset1:18")
    A(f"ds_write2st64_b32 {v(vLYW)}, {v(t+2)}, {v(t+3)} offset0:28 offset1:38")
    A.label(L5)
    A("s_waitcnt lgkmcnt(0)")
    A("s_barrier")

def router_publish(layer, t, pa, pb):
    R_ = t
    for i in range(10):
        os_ = i & 1
        wv = v(WR + (i & ~1), 2)
        if i == 0:
            A(f"v_pk_mul_f32 {v(R_,2)}, {v(XN,2)}, {wv} op_sel:[0,{os_}] op_sel_hi:[1,{os_}]")
        else:
            A(f"v_pk_fma_f32 {v(R_,2)}, {v(XN+2*i,2)}, {wv}, {v(R_,2)} op_sel:[0,{os_},0] op_sel_hi:[1,{os_},1]")
    fill = []
    if not EXACT1:
        for u in range(5):
            fill.append(f"v_cvt_pk_bf16_f32 {v(pa+u)}, {v(XN+4*u)}, {v(XN+4*u+2)}")
            fill.append(f"v_cvt_pk_bf16_f32 {v(pb+u)}, {v(XN+4*u+1)}, {v(XN+4*u+3)}")
    def pad(n=2):
        for _ in range(n):
            if fill:
                A(fill.pop(0))
    pad()
    A(f"v_permlane32_swap_b32 {v(R_)}, {v(R_+1)}")
    A(f"v_add_f32 {v(R_)}, {v(R_)}, {v(R_+1)}")
    A(f"v_mov_b32 {v(R_+1)}, {v(R_)}")
    pad()
    A(f"v_permlane16_swap_b32 {v(R_)}, {v(R_+1)}")
    A(f"v_add_f32 {v(R_)}, {v(R_)}, {v(R_+1)}")
    for k in (8, 4, 2, 1):
        pad()
        A(f"v_add_f32_dpp {v(R_)}, {v(R_)}, {v(R_)} row_ror:{k} row_mask:0xf bank_mask:0xf")
    pad(10)
    A(f"v_cmp_le_f32 vcc, s{sTAU}, {v(R_)}")
    A(f"v_readlane_b32 s71, {v(R_)}, 32")
    A("s_mov_b64 s[56:57], vcc")
    for row, (p_, half) in enumerate(((pa, "vcc_lo"), (pb, "vcc_hi"))):
        Lr = A.newlabel("Lcand")
        A(f"s_cmp_eq_u32 {half}, 0")
        A(f"s_cbranch_scc1 {Lr}")
        A(f"buffer_store_dwordx4 {v(p_,4)}, {v(vTA)}, {WS}, s{sTB+row} offen sc1")
        A(f"buffer_store_dword {v(p_+4)}, {v(vTB)}, {WS}, s{sTB+row} offen sc1")
        A.label(Lr)
    A(f"s_lshl_b32 s70, s{WV}, 2")
    A(f"s_add_u32 s70, s70, {LDS_RG}")
    A(f"v_mov_b32 {v(R_+2)}, s70")
    A(f"v_cvt_pk_bf16_f32 {v(R_)}, {v(R_)}, s71")
    A(f"v_lshrrev_b32 {v(R_+1)}, 15, {v(R_)}")
    A(f"v_and_b32 {v(R_+1)}, 0x10001, {v(R_+1)}")
    A(f"v_mul_u32_u24 {v(R_+1)}, 0x7fff, {v(R_+1)}")
    A(f"v_or_b32 {v(R_+1)}, 0x80008000, {v(R_+1)}")
    A(f"v_xor_b32 {v(R_)}, {v(R_)}, {v(R_+1)}")
    A(f"v_min_u32 {v(R_)}, -2, {v(R_)}")
    A("s_mov_b64 exec, 1")
    A(f"ds_write_b32 {v(R_+2)}, {v(R_)}")
    A("s_mov_b64 exec, -1")
    A("s_waitcnt vmcnt(0) lgkmcnt(0)")
    A("s_barrier")
    L = A.newlabel("Lrp")
    A(f"s_cmp_lg_u32 s{WV}, 0")
    A(f"s_cbranch_scc1 {L}")
    A(f"ds_read_b128 {v(R_+4,4)}, {v(R_+2)}")
    A(f"v_lshlrev_b32 {v(R_+2)}, {RSH + 8}, v1")
    A(f"s_lshl_b32 s73, s{sRHO}, {RSH}")
    A(f"s_add_u32 s73, s73, {RG_OFF + layer * NRR * RG_REP}")
    set_exec((1 << NRR) - 1)
    A("s_waitcnt lgkmcnt(0)")
    A(f"buffer_store_dwordx4 {v(R_+4,4)}, {v(R_+2)}, {WS}, s73 offen sc1")
    A("s_mov_b64 exec, -1")
    A.label(L)

def roleR():
    A.label("L_roleR")
    prio(2)
    srd(8, 42, 2621440)
    A("s_and_b32 s60, s2, 7")
    A("s_lshr_b32 s61, s2, 3")
    A(f"s_lshr_b32 s{sA}, s61, 3")
    A("s_and_b32 s61, s61, 7")
    A("s_lshl_b32 s60, s60, 3")
    A("s_sub_u32 s62, 56, s60")
    A(f"s_cmp_lt_u32 s{sA}, 2")
    A("s_cselect_b32 s60, s60, s62")
    A(f"s_add_u32 s{sS2}, s60, s61")
    A(f"s_lshl_b32 s60, s{sA}, 9")
    A(f"s_lshl_b32 s61, s{WV}, 7")
    A(f"s_add_u32 s{sRA}, s60, s61")
    A(f"s_add_u32 s{sRA}, s{sRA}, s{sS2}")
    A(f"s_mul_i32 s{sXO}, s{sRA}, 1280")
    A(f"s_add_u32 s63, s{sXO}, {64 * 1280}")
    T = ACR
    n, h = T, T + 1
    A(f"v_and_b32 {v(n)}, 31, v1")
    A(f"v_lshrrev_b32 {v(h)}, 5, v1")
    A(f"v_mul_u32_u24 {v(vX)}, 640, {v(h)}")
    A(f"v_lshl_add_u32 {v(vX)}, {v(n)}, 1, {v(vX)}")
    XW = opt("xwide", 0)
    XR = AC2R + 8
    if XW:
        A(f"v_lshlrev_b32 {v(XR+12)}, 4, v1")
        A(f"v_add_u32 {v(XR+13)}, {1024 + 63 * 1280}, {v(XR+12)}")
        A(f"v_add_u32 {v(XR+14)}, 1024, {v(XR+12)}")
        A(f"v_cmp_gt_u32 vcc, 16, v1")
        A(f"buffer_load_dwordx4 {v(XR,4)}, {v(XR+12)}, {SRD1}, s{sXO} offen")
        A(f"v_cndmask_b32 {v(XR+14)}, {v(XR+13)}, {v(XR+14)}, vcc")
        A(f"buffer_load_dwordx4 {v(XR+4,4)}, {v(XR+14)}, {SRD1}, s{sXO} offen")
        set_exec(0xffffffff)
        A(f"buffer_load_dwordx4 {v(XR+8,4)}, {v(XR+13)}, {SRD1}, s{sXO} offen offset:1024")
        A("s_mov_b64 exec, -1")
        for i in range(20):
            A(f"v_mov_b32 {v(X+i)}, 0")
    else:
        for i in range(10):
            A(f"v_mov_b32 {v(X+2*i)}, 0")
            A(f"v_mov_b32 {v(X+2*i+1)}, 0")
            A(f"buffer_load_short_d16_hi {v(X+2*i)}, {v(vX)}, {SRD1}, s{sXO} offen offset:{64*i}")
            A(f"buffer_load_short_d16_hi {v(X+2*i+1)}, {v(vX)}, {SRD1}, s63 offen offset:{64*i}")
    NV = XN
    nonce_load(NV)
    ONES = XN + 4
    A(f"s_lshl_b32 s{sRHO}, s{sA}, 6")
    A(f"s_add_u32 s{sRHO}, s{sRHO}, s{sS2}")
    A(f"s_mul_i32 s{sWB}, s{sRHO}, {WROW}")
    for k in range(4):
        A(f"v_mov_b32 {v(ONES+k)}, -1")
    A(f"v_lshlrev_b32 {v(vWG)}, 4, v0")
    A(f"v_add_u32 {v(vWG1)}, {4096 + 112}, {v(vWG)}")
    A(f"v_add_u32 {v(T+2)}, 4096, {v(vWG)}")
    A(f"v_cmp_gt_u32 vcc, 65, v0")
    A(f"v_cndmask_b32 {v(vWG1)}, {v(vWG1)}, {v(T+2)}, vcc")
    A(f"v_lshlrev_b32 {v(T+4)}, 3, v0")
    A(f"s_lshl_b32 s61, s{sRHO}, 11")
    A(f"s_add_u32 s61, s61, {RESET_OFF}")
    A(f"buffer_store_dwordx2 {v(ONES,2)}, {v(T+4)}, {WS}, s61 offen sc1")
    LATEF = opt("latefill", 0)
    if not DRAIN0 and not LATEF:
        W_stores(0, ONES, ONES, ONES, lds=False)
    PREFR = opt("prefr", 0)
    if PREFR == 1:
        warm_weights(AC2R, 0, 32, PPART)
    e1, e1s, base, arg, c_, s_ = T + 6, T + 7, T + 8, T + 9, T + 10, T + 11
    hf_, wf, lc = T + 12, T + 13, T + 14
    G0 = T + 16
    A(f"v_bfe_u32 {v(e1)}, {v(n)}, 2, 1")
    A(f"v_mul_u32_u24 {v(e1)}, 10, {v(e1)}")
    A(f"v_and_b32 {v(arg)}, 3, {v(n)}")
    A(f"v_add_u32 {v(e1)}, {v(e1)}, {v(arg)}")
    A(f"v_lshrrev_b32 {v(arg)}, 3, {v(n)}")
    A(f"v_lshl_add_u32 {v(e1)}, {v(arg)}, 2, {v(e1)}")
    A(f"v_cvt_f32_u32 {v(e1)}, {v(e1)}")
    A(f"v_cvt_f32_u32 {v(hf_)}, {v(h)}")
    A(f"v_cvt_f32_u32 {v(wf)}, s{WV}")
    A(f"s_lshl_b32 s60, s{WV}, 10")
    A(f"s_add_u32 s60, s60, {LDS_CONST}")
    A(f"v_lshl_add_u32 {v(lc)}, v1, 4, s60")
    A(f"v_mul_f32 {v(e1s)}, {f32(1/20)}, {v(e1)}")
    A(f"v_mul_f32 {v(base)}, {f32(10.0)}, {v(hf_)}")
    A(f"v_fma_f32 {v(base)}, 4.0, {v(wf)}, {v(base)}")
    A(f"v_mul_f32 {v(base)}, {v(e1s)}, {v(base)}")
    A(f"s_cmp_lt_u32 s{WV}, 2")
    A(f"s_cselect_b64 s[64:65], -1, 0")
    for r in range(4):
        A(f"v_fmamk_f32 {v(arg)}, {v(e1s)}, {f32(r)}, {v(base)}")
        sincos(arg, c_, s_)
        A(f"v_cvt_pk_f16_f32 {v(G0+r)}, {v(c_)}, {v(s_)}")
        A(f"v_cvt_pk_f16_f32 {v(G0+4+r)}, -{v(s_)}, {v(c_)}")
        if r >= 2:
            A(f"v_cndmask_b32 {v(G0+r)}, 0, {v(G0+r)}, s[64:65]")
            A(f"v_cndmask_b32 {v(G0+4+r)}, 0, {v(G0+4+r)}, s[64:65]")
    A(f"ds_write_b128 {v(lc)}, {v(G0,4)}")
    A(f"ds_write_b128 {v(lc)}, {v(G0+4,4)} offset:4096")
    A(f"v_mul_f32 {v(wf)}, {f32(8.0)}, {v(wf)}")
    A(f"v_fma_f32 {v(wf)}, 4.0, {v(hf_)}, {v(wf)}")
    A(f"v_mul_f32 {v(e1s)}, {f32(1/640)}, {v(e1)}")
    A(f"v_mul_f32 {v(base)}, {v(e1s)}, {v(wf)}")
    for r in range(4):
        A(f"v_fmamk_f32 {v(arg)}, {v(e1s)}, {f32(r)}, {v(base)}")
        sincos(arg, G0 + 8 + r, G0 + 12 + r)
    A(f"ds_write_b128 {v(lc)}, {v(G0+8,4)} offset:8192")
    A(f"ds_write_b128 {v(lc)}, {v(G0+12,4)} offset:12288")
    A(f"v_cvt_f32_u32 {v(e1s)}, {v(n)}")
    A(f"v_mul_f32 {v(e1s)}, {f32(1/32)}, {v(e1s)}")
    A(f"v_mul_f32 {v(base)}, {v(e1s)}, {v(wf)}")
    for r in range(4):
        A(f"v_fmamk_f32 {v(arg)}, {v(e1s)}, {f32(r)}, {v(base)}")
        sincos(arg, c_, s_)
        A(f"v_cvt_pk_f16_f32 {v(G0+16+r)}, {v(c_)}, {v(s_)}")
        A(f"v_cvt_pk_f16_f32 {v(G0+20+r)}, -{v(s_)}, {v(c_)}")
    A(f"ds_write_b128 {v(lc)}, {v(G0+16,4)} offset:16384")
    A(f"ds_write_b128 {v(lc)}, {v(G0+20,4)} offset:20480")
    A(f"v_mov_b32 {v(AF1+10)}, 0")
    A(f"v_mov_b32 {v(AF1+11)}, 0")
    A(f"v_lshlrev_b32 {v(vLC)}, 4, v1")
    A(f"v_add_u32 {v(vLC)}, {LDS_CONST}, {v(vLC)}")
    A(f"v_mov_b32 {v(INV)}, {f32(1/640)}")
    A(f"s_mov_b32 s{s32f}, {f32(32.0)}")
    A(f"s_and_b32 s{sME}, s2, 15")
    A(f"v_mul_u32_u24 {v(vLWW)}, 21, {v(n)}")
    A(f"v_mad_u32_u24 {v(vLWW)}, {v(h)}, 10, {v(vLWW)}")
    A(f"s_mul_i32 s60, s{WV}, 704")
    A(f"s_add_u32 s60, s60, {LDS_W // 4}")
    A(f"v_add_lshl_u32 {v(vLWW)}, {v(vLWW)}, s60, 2")
    A("s_waitcnt lgkmcnt(0)")
    A("s_barrier")
    for (dst, ng, off) in ((B1R, 3, 0), (B1I, 3, 4096), (TWC, 4, 8192), (TWS, 4, 12288)):
        for gq in range(ng):
            A(f"ds_read_b128 {v(dst+4*gq,4)}, {v(vLC)} offset:{off + 1024*gq}")
    for j in range(3):
        A(f"v_add_u32 {v(arg)}, {256*j}, v0")
        A(f"v_mul_u32_u24 {v(c_)}, 3277, {v(arg)}")
        A(f"v_lshrrev_b32 {v(c_)}, 16, {v(c_)}")
        A(f"v_add_u32 {v(arg)}, {v(arg)}, {v(c_)}")
        A(f"v_lshlrev_b32 {v(arg)}, 2, {v(arg)}")
        A(f"v_add_u32 {v(vLWR0+j)}, {LDS_W}, {v(arg)}")
    A(f"v_lshlrev_b32 {v(vTA)}, 4, v1")
    A(f"v_lshlrev_b32 {v(vTB)}, 2, v1")
    A(f"v_add_u32 {v(vTB)}, 1024, {v(vTB)}")
    A(f"s_mul_i32 s{sTB}, s{sRA}, {T_REC}")
    A(f"s_add_u32 s{sTB}, s{sTB}, {T_OFF}")
    A(f"s_add_u32 s{sTB+1}, s{sTB}, {64 * T_REC}")
    stamp(0, dbg=(1, 0) if not opt("t0", 0) else None)
    ARV = 204
    A(f"s_waitcnt vmcnt({(1 if (DRAIN0 or LATEF) else 3) + (nloads(PPART) if PREFR == 1 else 0)})")
    nonce_take(NV)
    if LATEF:
        W_stores(0, ONES, ONES, ONES, lds=False)
    if XW:
        A(f"s_mul_i32 s60, s{WV}, 2560")
        A(f"v_add_u32 {v(XR+12)}, s60, {v(XR+12)}")
        A(f"v_add_u32 {v(XR+13)}, s60, {v(vX)}")
        A(f"ds_write_b128 {v(XR+12)}, {v(XR,4)}")
        A(f"ds_write_b128 {v(XR+12)}, {v(XR+4,4)} offset:1024")
        set_exec(0xffffffff)
        A(f"ds_write_b128 {v(XR+12)}, {v(XR+8,4)} offset:2048")
        A("s_mov_b64 exec, -1")
        A("s_waitcnt lgkmcnt(3)")
        for i in range(10):
            A(f"ds_read_u16_d16_hi {v(X+2*i)}, {v(XR+13)} offset:{64*i}")
            A(f"ds_read_u16_d16_hi {v(X+2*i+1)}, {v(XR+13)} offset:{1280+64*i}")
            if i == 5:
                A("s_waitcnt lgkmcnt(6)")
        A("s_waitcnt lgkmcnt(0)")
    stamp(10, dbg=(2, 0))
    if EARLY_R == 2:
        arrive_issue(0, sME, ARV)
    ln_stats(X, ACR)
    for (dst, ng, off) in ((B2R, 4, 16384), (B2I, 4, 20480)):
        for gq in range(ng):
            A(f"ds_read_b128 {v(dst+4*gq,4)}, {v(vLC)} offset:{off + 1024*gq}")
    ln_center_scale(X, XN, ACR, EXACT)
    to_f16(XN, ACR)
    A("s_waitcnt lgkmcnt(0)")
    def arr0():
        A("s_waitcnt vmcnt(0)")
        A("s_barrier")
        arrive_issue(0, sME, XN + 8, AWR)
    fin0 = lambda: arrive_finish(0, sME, 15, XN + 8, 0, AWR)
    if opt("a0", 1) == 0:
        arr0()
        row_dft(XN, None, fin0)
    elif opt("a0", 1) == 1:
        row_dft(XN, arr0, fin0)
    else:
        row_dft(XN, None, arr0)
    stamp(11)
    write_W(0)
    if opt("a0", 1) == 2:
        arrive_finish(0, sME, 15, XN + 8, 2, AWR)
    stamp(1, dbg=(3, 0))
    if PREFR == 2:
        warm_weights(AC2R, 0, 32, PPART)
    srd(12, 52, 2621440)
    srd(16, 44, 1280)
    for i in range(10):
        A(f"v_mov_b32 {v(WR+i)}, 0")
        A(f"buffer_load_short_d16_hi {v(WR+i)}, {v(vX)}, {SRD3}, 0 offen offset:{64*i}")
    A(f"v_and_b32 {v(n)}, 31, v1")
    A(f"v_lshrrev_b32 {v(h)}, 5, v1")
    A(f"v_lshlrev_b32 {v(vLYW)}, 2, v0")
    A(f"v_mul_u32_u24 {v(vLYR)}, 320, {v(h)}")
    A(f"s_mul_i32 s60, s{WV}, 640")
    A(f"v_add3_u32 {v(vLYR)}, {v(vLYR)}, {v(n)}, s60")
    A(f"v_lshlrev_b32 {v(vLYR)}, 2, {v(vLYR)}")
    A(f"s_sub_u32 s60, 3, s{sA}")
    A(f"s_lshl_b32 s60, s60, 6")
    A(f"s_sub_u32 s61, 64, s{sS2}")
    A(f"s_add_u32 s60, s60, s61")
    A(f"s_lshl_b32 s60, s60, 4")
    A(f"s_lshl_b32 s61, s{sA}, 4")
    A(f"s_add_u32 s61, s61, {YM_OFF}")
    A(f"s_cmp_eq_u32 s{sS2}, 0")
    A(f"s_cselect_b32 s60, s61, s60")
    A(f"s_cselect_b32 s61, 6, 12")
    A(f"s_lshl_b32 s62, s{sRHO}, 4")
    A(f"v_lshlrev_b32 {v(vY0)}, 12, v0")
    A(f"v_add_u32 {v(vY0)}, s62, {v(vY0)}")
    A(f"v_sub_u32 {v(arg)}, 384, v0")
    A(f"v_lshlrev_b32 {v(arg)}, s61, {v(arg)}")
    A(f"v_add_u32 {v(vY1)}, s60, {v(arg)}")
    A(f"v_add_u32 {v(c_)}, {256 << 12}, {v(vY0)}")
    A(f"v_cmp_gt_u32 vcc, 64, v0")
    A(f"v_cndmask_b32 {v(vY1)}, {v(vY1)}, {v(c_)}, vcc")
    A(f"v_sub_u32 {v(arg)}, 128, v0")
    A(f"v_and_b32 {v(arg)}, 0xff, {v(arg)}")
    A(f"v_lshlrev_b32 {v(arg)}, s61, {v(arg)}")
    A(f"v_add_u32 {v(vY2)}, s60, {v(arg)}")
    A(f"s_mul_i32 s60, s{WV}, 5120")
    A(f"s_add_u32 s60, s60, {LDS_KX}")
    A(f"v_lshl_add_u32 {v(vKX)}, v1, 4, s60")
    A(f"s_and_b32 s{sREP}, s2, {NREP - 1}")
    A(f"s_lshl_b32 s{sREP}, s{sREP}, {FSH + 4}")
    A("s_waitcnt vmcnt(0)")
    tau_of(WR, ACR, 1.0)
    A(f"v_readfirstlane_b32 s{sTAU}, {v(ACR)}")
    if opt("touch", 0) > 1:
        touch(ACR, Y_OFF, 2 * Y_SZ)
    poll_flags(1, sREP, ACR)
    stamp(2, dbg=(7, 0))
    stage_Y(0)
    stamp(13)
    if not DRAIN2:
        for k in range(4):
            A(f"v_mov_b32 {v(AF2+k)}, -1")
        W_stores(1, AF2, AF2, AF2, lds=False)
    for i in range(10):
        A(f"ds_read_b32 {v(ACI+i)}, {v(vLYR)} offset:{128*i}")
    for i in range(10):
        A(f"s_waitcnt lgkmcnt({9-i})")
        A(f"v_fma_mix_f32 {v(X+2*i)}, {v(ACI+i)}, s{s32f}, {v(X+2*i)} op_sel:[0,0,0] op_sel_hi:[1,0,0]")
        A(f"v_fma_mix_f32 {v(X+2*i+1)}, {v(ACI+i)}, s{s32f}, {v(X+2*i+1)} op_sel:[1,0,0] op_sel_hi:[1,0,0]")
    PA, PB = AC2R, AC2R + 8
    pack_rows(X, PA, PB)
    unpack_rows(X, PA, PB)
    A(f"ds_write_b128 {v(vKX)}, {v(PA,4)} offset:2048")
    A(f"ds_write_b128 {v(vKX)}, {v(PB,4)} offset:3072")
    A(f"v_mov_b32 {v(PA+6)}, {v(PA+4)}")
    A(f"v_mov_b32 {v(PA+7)}, {v(PB+4)}")
    ln_stats(X, ACR)
    ln_center_scale(X, XN, ACR, EXACT1)
    if EXACT1:
        pack_rows(XN, PA + 16, PB + 16)
        unpack_rows(XN, PA + 16, PB + 16)
    stamp(14)
    router_publish(0, ACI, PA + 16, PB + 16)
    if not EXACT1:
        unpack_rows(XN, PA + 16, PB + 16)
    stamp(3, dbg=(8, 0))
    E2 = opt("e2", 1)
    if E2 == 1:
        arrive_issue(2, sME, AF2 + 8, AWR)
    A(f"v_mov_b32 {v(PA+4)}, {v(PA+20)}")
    A(f"v_mov_b32 {v(PA+5)}, {v(PB+20)}")
    A(f"ds_write_b128 {v(vKX)}, {v(PA+16,4)}")
    A(f"ds_write_b128 {v(vKX)}, {v(PB+16,4)} offset:1024")
    A(f"ds_write_b128 {v(vKX)}, {v(PA+4,4)} offset:4096")
    if EARLY_R == 2:
        arrive_issue(2, sME, ARV)
    for i in range(10):
        A(f"v_pk_add_f32 {v(X+2*i,2)}, {v(X+2*i,2)}, {v(XN+2*i,2)}")
        rnd_pair(X + 2 * i, X + 2 * i + 1, ACR + (i % 4))
    ln_stats(X, ACR)
    ln_center_scale(X, XN, ACR + 8, EXACT)
    to_f16(XN, ACR + 8)
    if EARLY_R == 2:
        arrive_finish(2, sME, 15, ARV, 0)
    if E2 == 0:
        arrive_issue(2, sME, XN + 14, AWR)
        row_dft(XN, None, lambda: arrive_finish(2, sME, 15, XN + 14, 0, AWR))
    elif E2 == 1:
        row_dft(XN, lambda: arrive_finish(2, sME, 15, AF2 + 8, 0, AWR))
    else:
        row_dft(XN, None, lambda: arrive_finish(2, sME, 15, 250 - 4, 0, AWR))
    stamp(16)
    if not opt("wlate", 0):
        write_W(1)
    stamp(4)
    A(f"s_mov_b32 s74, {X2_OFF}")
    def release(layer, row, stash, with_xn):
        R0 = ACR
        if stash:
            A(f"ds_read_b128 {v(R0,4)}, {v(vKX)} offset:{2048+1024*row}")
            A(f"ds_read_b128 {v(R0+8,4)}, {v(vKX)} offset:4096")
            if with_xn:
                A(f"ds_read_b128 {v(R0+12,4)}, {v(vKX)} offset:{1024*row}")
            x4, x1, n4, n1 = R0, R0 + 10 + row, R0 + 12, R0 + 8 + row
        else:
            P_ = PA if row == 0 else PB
            x4, x1, n4, n1 = P_, P_ + 4, P_ + 16, P_ + 20
        A(f"s_add_u32 s61, s{NONCE}, {6 + layer}")
        A(f"v_mov_b32 {v(R0+4)}, {v(MM+row)}")
        A(f"v_mov_b32 {v(R0+5)}, {v(RS+row)}")
        A(f"v_mov_b32 {v(R0+6)}, s61")
        A(f"v_mov_b32 {v(R0+7)}, s61")
        A("s_waitcnt lgkmcnt(0)")
        if with_xn:
            A(f"buffer_store_dwordx4 {v(n4,4)}, {v(vTA)}, {WS}, s{sTB+row} offen sc1")
            A(f"buffer_store_dword {v(n1)}, {v(vTB)}, {WS}, s{sTB+row} offen sc1")
        A(f"buffer_store_dwordx4 {v(x4,4)}, {v(vTA)}, {WS}, s{sTB+row} offen offset:1280 sc1")
        A(f"buffer_store_dword {v(x1)}, {v(vTB)}, {WS}, s{sTB+row} offen offset:1280 sc1")
        A("s_waitcnt vmcnt(0)")
        A("s_mov_b64 exec, 1")
        A(f"buffer_store_dwordx4 {v(R0+4,4)}, {v(vTA)}, {WS}, s{sTB+row} offen offset:2560 sc1")
        A("s_mov_b64 exec, -1")
    def release_candidates(layer, stash):
        for row in range(2):
            Ln = A.newlabel("Lrel")
            A(f"s_cmp_eq_u32 s{56+row}, 0")
            A(f"s_cbranch_scc1 {Ln}")
            release(layer, row, stash, False)
            A.label(Ln)
    def wait_sel(layer, stash):
        loop, done = A.newlabel("Lsel"), A.newlabel("Lseld")
        T2 = ACR + 16
        A(f"s_mov_b32 s60, {X2_OFF + SEL_OFF + 256 * layer}")
        A(f"v_and_b32 {v(T2)}, 7, v1")
        A(f"v_lshlrev_b32 {v(T2)}, 2, {v(T2)}")
        A(f"s_mov_b32 s62, {SPIN}")
        A.label(loop)
        A(f"buffer_load_dword {v(T2+1)}, {v(T2)}, {WS}, s60 offen sc1")
        A("s_waitcnt vmcnt(0)")
        A(f"v_cmp_eq_u32 vcc, -1, {v(T2+1)}")
        A(f"s_cbranch_vccz {done}")
        spin_tail(loop, 62, opt('selsleep', 4))
        A.label(done)
        for j in range(8):
            A(f"v_readlane_b32 s{sSEL+j}, {v(T2+1)}, {j}")
        for row in range(2):
            A(f"s_add_u32 s60, s{sRA}, {64 * row}")
            A(f"s_mov_b32 s{76+row}, -1")
            for j in range(8):
                A(f"s_cmp_eq_u32 s60, s{sSEL+j}")
                A(f"s_cselect_b32 s{76+row}, {j}, s{76+row}")
            Ln = A.newlabel("Lpush")
            A(f"s_cmp_lt_i32 s{76+row}, 0")
            A(f"s_cbranch_scc1 {Ln}")
            A(f"s_cmp_lg_u32 s{56+row}, 0")
            A(f"s_cbranch_scc1 {Ln}")
            release(layer, row, stash, True)
            A.label(Ln)
    release_candidates(0, True)
    vE0, vDF, vDM, vP2, vNW = vLWW, vLWR0, vLWR0 + 1, vLWR0 + 2, vWG
    n, h = ACR + 8, ACR + 9
    A(f"v_and_b32 {v(n)}, 31, v1")
    A(f"v_lshrrev_b32 {v(h)}, 5, v1")
    A(f"v_mul_u32_u24 {v(vE0)}, 20, {v(n)}")
    A(f"v_mad_u32_u24 {v(vE0)}, {v(h)}, 10, {v(vE0)}")
    vER = vLC
    A(f"v_and_b32 {v(vER)}, 31, {v(vE0)}")
    A(f"v_lshrrev_b32 {v(vDF)}, 5, {v(vE0)}")
    A(f"s_lshl_b32 s60, s{WV}, 2")
    A(f"s_add_u32 s60, s60, {LDS_W}")
    A(f"v_add_u32 {v(vE0)}, {v(vE0)}, {v(vDF)}")
    A(f"v_lshl_add_u32 {v(vE0)}, {v(vE0)}, 4, s60")
    A(f"v_mul_u32_u24 {v(vDF)}, 330, {v(h)}")
    A(f"v_add_u32 {v(vDF)}, {v(vDF)}, {v(n)}")
    A(f"v_sub_u32 {v(vDM)}, 362, {v(vDF)}")
    A(f"v_lshlrev_b32 {v(vDF)}, 4, {v(vDF)}")
    A(f"v_add_u32 {v(vDF)}, {LDS_W}, {v(vDF)}")
    A(f"v_cmp_eq_u32 vcc, 0, {v(n)}")
    A(f"v_addc_co_u32 {v(vDM)}, vcc, 0, {v(vDM)}, vcc")
    A(f"v_lshlrev_b32 {v(vDM)}, 4, {v(vDM)}")
    A(f"v_add_u32 {v(vDM)}, {LDS_W}, {v(vDM)}")
    A(f"s_lshl_b32 s60, s{WV}, 8")
    A(f"v_mul_u32_u24 {v(vP2)}, 10240, {v(h)}")
    A(f"v_lshl_add_u32 {v(vP2)}, {v(n)}, 3, {v(vP2)}")
    A(f"v_add_u32 {v(vP2)}, s60, {v(vP2)}")
    A(f"s_mul_i32 s60, s{WV}, 2560")
    A(f"s_add_u32 s60, s60, {LDS_NEW}")
    A(f"v_lshl_add_u32 {v(vNW)}, v1, 2, s60")
    A(f"s_add_u32 s75, s74, 4096")
    A(f"s_add_u32 s78, s74, 8192")
    ORDER = opt("order", 1)
    def sel_step():
        wait_sel(0, True)
        A(f"s_add_u32 s{sTB}, s{sTB}, {T_SZ}")
        A(f"s_add_u32 s{sTB+1}, s{sTB+1}, {T_SZ}")
        stamp(5)
    CU, CV = XN + 12, XN + 16
    def coefs():
        tr, ca, sa, cb, sb, ar, t0, t1_ = range(AF2, AF2 + 8)
        A(f"v_and_b32 {v(tr)}, 1, v1")
        A(f"v_lshlrev_b32 {v(tr)}, 6, {v(tr)}")
        A(f"v_add_u32 {v(tr)}, s{sRA}, {v(tr)}")
        A(f"s_mov_b32 s64, 0x00300003")
        A(f"s_mov_b32 s65, 0x30000300")
        for p in range(4):
            for (j, cc, ss) in ((2 * p, ca, sa), (2 * p + 1, cb, sb)):
                A(f"v_mul_u32_u24 {v(ar)}, s{sSEL+j}, {v(tr)}")
                A(f"v_and_b32 {v(ar)}, 0x7ff, {v(ar)}")
                A(f"v_cvt_f32_u32 {v(ar)}, {v(ar)}")
                A(f"v_mul_f32 {v(ar)}, {f32(1/2048)}, {v(ar)}")
                sincos(ar, cc, ss)
            A(f"v_sub_f32 {v(t0)}, {v(ca)}, {v(sb)}")
            A(f"v_add_f32 {v(t1_)}, {v(sa)}, {v(cb)}")
            A(f"v_mul_f32 {v(t0)}, 0.5, {v(t0)}")
            A(f"v_mul_f32 {v(t1_)}, 0.5, {v(t1_)}")
            A(f"v_cvt_pk_f16_f32 {v(CU+p)}, {v(t0)}, {v(t1_)}")
            A(f"v_add_f32 {v(t0)}, {v(ca)}, {v(sb)}")
            A(f"v_sub_f32 {v(t1_)}, {v(cb)}, {v(sa)}")
            A(f"v_mul_f32 {v(t0)}, 0.5, {v(t0)}")
            A(f"v_mul_f32 {v(t1_)}, 0.5, {v(t1_)}")
            A(f"v_cvt_pk_f16_f32 {v(CV+p)}, {v(t0)}, {v(t1_)}")
            A(f"v_cndmask_b32 {v(CU+p)}, 0, {v(CU+p)}, s[64:65]")
            A(f"v_cndmask_b32 {v(CV+p)}, 0, {v(CV+p)}, s[64:65]")

    RAW = AC2R
    def x2loads():
        for i in range(10):
            so = ("s74", "s75", "s78")[i // 4]
            A(f"buffer_load_dwordx2 {v(RAW+2*i,2)}, {v(vP2)}, {WS}, {so} offen offset:{1024*(i%4)} sc1")
    def wait_hint():
        loop, done = A.newlabel("Lx2"), A.newlabel("Lx2d")
        A(f"s_mov_b32 s62, {SPIN}")
        A(f"s_add_u32 s60, s74, {SEL_OFF + 128}")
        A(f"v_mov_b32 {v(ACR)}, 0")
        A.label(loop)
        A(f"buffer_load_dword {v(ACR+1)}, {v(ACR)}, {WS}, s60 offen sc1")
        A("s_waitcnt vmcnt(0)")
        A(f"v_cmp_eq_u32 vcc, -1, {v(ACR+1)}")
        A(f"s_cbranch_vccz {done}")
        spin_tail(loop, 62, opt("hintsleep", 2))
        A.label(done)
    alldone = A.newlabel("Lx2a")
    if ORDER == 1:
        poll_flags(3, sREP, ACR)
        stamp(6, dbg=(13, 0))
        stage_Y(1)
        sel_step()
        coefs()
        wait_hint()
    else:
        sel_step()
        coefs()
        poll_flags(3, sREP, ACR)
        wait_hint()
        stamp(6, dbg=(13, 0))
        stage_Y(1, None, x2loads)
        any_sentinel(range(RAW, RAW + 20), ACR, alldone)
    loop, done = A.newlabel("Lx2"), A.newlabel("Lx2d")
    A(f"s_mov_b32 s62, {SPIN}")
    A.label(loop)
    x2loads()
    A("s_waitcnt vmcnt(0)")
    any_sentinel(range(RAW, RAW + 20), ACR, done)
    spin_tail(loop, 62, opt("x2sleep", 1))
    A.label(done)
    A.label(alldone)
    stamp(7)
    Z = ACR + 12
    for i in range(10):
        A(f"v_lshlrev_b32 {v(Z+2*i)}, 16, {v(RAW+2*i)}")
        A(f"v_and_b32 {v(Z+2*i+1)}, 0xffff0000, {v(RAW+2*i)}")
    for i in range(10):
        A(f"ds_write_b32 {v(vNW)}, {v(RAW+2*i)} offset:{256*i}")
    ln_stats(Z, ACR + 2)
    ln_center_scale(Z, Z, ACR + 2, EXACT)
    to_f16(Z, ACR + 2, sub=lambda i: RAW + 2 * i + 1)
    CBL = [16 + 4 * i for i in range(6)] + [AF1, AF1 + 4, AF1 + 8, XN + 8]
    WA = TWC
    def shadow1():
        for i in range(10):
            A(f"ds_read_b32 {v(CBL[i]+2)}, {v(vLYR)} offset:{128*i}")
        for i in range(10):
            A(f"s_waitcnt lgkmcnt({9-i})")
            A(f"v_fma_mix_f32 {v(CBL[i])}, {v(CBL[i]+2)}, s{s32f}, {v(X+2*i)} op_sel:[0,0,0] op_sel_hi:[1,0,0]")
            A(f"v_fma_mix_f32 {v(CBL[i]+1)}, {v(CBL[i]+2)}, s{s32f}, {v(X+2*i+1)} op_sel:[1,0,0] op_sel_hi:[1,0,0]")
    def shadow2():
        for i in range(10):
            A(f"v_add_u32 {v(WA+i)}, {i}, {v(vER)}")
            A(f"v_bfe_u32 {v(WA+i)}, {v(WA+i)}, 5, 1")
            A(f"v_lshl_add_u32 {v(WA+i)}, {v(WA+i)}, 4, {v(vE0)}")
    A("s_waitcnt lgkmcnt(0)")
    row_dft(XN, shadow1, shadow2)
    stamp(18)
    for i in range(10):
        A(f"v_cvt_pk_f16_f32 {v(ACR+i)}, {v(AC2R+i)}, {v(AC2I+i)}")
        A(f"ds_write_b32 {v(WA+i)}, {v(ACR+i)} offset:{16*i}")
    A("s_mov_b64 exec, 1")
    A(f"ds_write_b32 {v(vE0)}, {v(ACR)} offset:{660*16}")
    A("s_mov_b64 exec, -1")
    A("s_waitcnt lgkmcnt(0)")
    A("s_barrier")
    FRL = [40 + 4 * q for q in range(16)] + [160 + 4 * q for q in range(4)]
    def corr(k):
        A(f"v_mfma_f32_16x16x32_f16 {v(CBL[k],4)}, {v(CU,4)}, {v(FRL[2*k],4)}, {v(CBL[k],4)}")
        A(f"v_mfma_f32_16x16x32_f16 {v(CBL[k],4)}, {v(CV,4)}, {v(FRL[2*k+1],4)}, {v(CBL[k],4)}")
    for i in range(10):
        A(f"ds_read_b128 {v(FRL[2*i],4)}, {v(vDF)} offset:{528*i}")
        A(f"ds_read_b128 {v(FRL[2*i+1],4)}, {v(vDM)} offset:{528*(9-i)}")
        if i >= 6:
            A(f"s_waitcnt lgkmcnt(12)")
            corr(i - 6)
    for k in range(4, 10):
        A(f"s_waitcnt lgkmcnt({2*(9-k)})")
        corr(k)
    stamp(19)
    for row in range(2):
        Lnext = A.newlabel("Lown")
        A(f"s_cmp_lt_i32 s{76+row}, 0")
        A(f"s_cbranch_scc1 {Lnext}")
        A(f"s_lshr_b32 s62, s{76+row}, 1")
        A("s_mul_i32 s62, s62, 2560")
        A(f"s_add_u32 s62, s62, {LDS_NEW}")
        A(f"s_and_b32 s61, s{76+row}, 1")
        A("s_lshl_b32 s61, s61, 4")
        A("s_sub_u32 s61, 16, s61")
        A(f"v_lshl_add_u32 {v(240)}, v1, 2, s62")
        for i in range(10):
            A(f"ds_read_b32 {v(241+i)}, {v(240)} offset:{256*i}")
        A("s_waitcnt lgkmcnt(0)")
        for i in range(10):
            A(f"v_lshlrev_b32 {v(241+i)}, s61, {v(241+i)}")
            A(f"v_and_b32 {v(241+i)}, 0xffff0000, {v(241+i)}")
            A(f"v_sub_f32 {v(241+i)}, {v(241+i)}, {v(X+2*i+row)}")
            A(f"v_add_f32 {v(CBL[i]+row)}, {v(CBL[i]+row)}, {v(241+i)}")
        A.label(Lnext)
    for u in range(5):
        A(f"v_cvt_pk_bf16_f32 {v(PA+u)}, {v(CBL[2*u])}, {v(CBL[2*u+1])}")
        A(f"v_cvt_pk_bf16_f32 {v(PB+u)}, {v(CBL[2*u]+1)}, {v(CBL[2*u+1]+1)}")
    unpack_rows(X, PA, PB)
    ln_stats(X, ACR)
    ln_center_scale(X, XN, ACR, EXACT1)
    if EXACT1:
        pack_rows(XN, PA + 16, PB + 16)
        unpack_rows(XN, PA + 16, PB + 16)
    stamp(20)
    router_publish(1, ACI + 8, PA + 16, PB + 16)
    if not EXACT1:
        unpack_rows(XN, PA + 16, PB + 16)
    stamp(8, dbg=(14, 0))
    OB = 16
    A(f"s_mul_i32 s60, s{WV}, 2560")
    A(f"v_add_u32 {v(OB)}, s60, {v(vX)}")
    for i in range(10):
        A(f"v_pk_add_f32 {v(X+2*i,2)}, {v(X+2*i,2)}, {v(XN+2*i,2)}")
        A(f"v_cvt_pk_bf16_f32 {v(OB+2+i)}, {v(X+2*i)}, {v(X+2*i+1)}")
        A(f"ds_write_b16 {v(OB)}, {v(OB+2+i)} offset:{64*i}")
        A(f"ds_write_b16_d16_hi {v(OB)}, {v(OB+2+i)} offset:{1280+64*i}")
    A(f"v_lshlrev_b32 {v(OB+1)}, 4, v1")
    A(f"v_add_u32 {v(OB)}, s60, {v(OB+1)}")
    A("s_waitcnt lgkmcnt(0)")
    for k in range(3):
        A(f"ds_read_b128 {v(OB+12+4*k,4)}, {v(OB)} offset:{1024*k}")
    A(f"v_add_u32 {v(OB+2)}, {1024 + 63 * 1280}, {v(OB+1)}")
    A(f"v_add_u32 {v(OB+3)}, 1024, {v(OB+1)}")
    A(f"v_cmp_gt_u32 vcc, 16, v1")
    A(f"v_cndmask_b32 {v(OB+3)}, {v(OB+2)}, {v(OB+3)}, vcc")
    def out_stores():
        A("s_waitcnt lgkmcnt(0)")
        A(f"buffer_store_dwordx4 {v(OB+12,4)}, {v(OB+1)}, {SRD2}, s{sXO} offen sc1")
        A(f"buffer_store_dwordx4 {v(OB+16,4)}, {v(OB+3)}, {SRD2}, s{sXO} offen sc1")
        set_exec(0xffffffff)
        A(f"buffer_store_dwordx4 {v(OB+20,4)}, {v(OB+2)}, {SRD2}, s{sXO} offen offset:1024 sc1")
        A("s_mov_b64 exec, -1")
    OD = opt("outdelay", 0)
    if OD:
        A(f"s_lshl_b32 s73, s{sRHO}, 4")
        A(f"s_add_u32 s73, s73, {RG_OFF + NRR * RG_REP}")
        A(f"v_mov_b32 {v(ACR)}, 0")
        for _ in range(OD):
            A(f"buffer_load_dword {v(ACR+1)}, {v(ACR)}, {WS}, s73 offen sc1")
            A("s_waitcnt vmcnt(0)")
    out_stores()
    release_candidates(1, False)
    wait_sel(1, False)
    stamp(22)
    stamp(9)
    A("s_endpgm")

def roleC():
    A.label("L_roleC")
    B1, TC, TS, A2, DT, RAW, AR, AI, P, AC, O, T = 16, 32, 48, 64, 128, 160, 176, 192, 208, 224, 240, 248
    sC, sCME, sCREP, sK, sW0, sW1, sY, sLAST = 22, 23, 24, 25, 26, 27, 28, 29
    nonce_load(T + 4)
    if opt("prefc", 1) == 1:
        warm_weights(AC, C0, 29, PPART)
    A(f"s_sub_u32 s60, s2, {C0}")
    A("s_and_b32 s61, s60, 7")
    A("s_lshr_b32 s62, s60, 3")
    A("s_lshr_b32 s63, s62, 2")
    A("s_lshl_b32 s63, s63, 5")
    A("s_lshl_b32 s61, s61, 2")
    A("s_and_b32 s62, s62, 3")
    A(f"s_add_u32 s{sC}, s63, s61")
    A(f"s_add_u32 s{sC}, s{sC}, s62")
    A(f"s_and_b32 s{sCME}, s2, 15")
    A(f"s_cmp_eq_u32 s{sCME}, 0")
    A(f"s_cselect_b32 s{sLAST}, 10, 9")
    A(f"s_and_b32 s{sCREP}, s2, {NREP - 1}")
    A(f"s_lshl_b32 s{sCREP}, s{sCREP}, {FSH + 4}")
    n, g, t1, gs, arg, base, st = RAW, RAW + 1, RAW + 2, RAW + 3, RAW + 4, RAW + 5, RAW + 6
    ca, sa, cb, sb, x0, x1 = RAW + 7, RAW + 8, RAW + 9, RAW + 10, RAW + 11, RAW + 12
    A(f"v_and_b32 {v(n)}, 15, v1")
    A(f"v_lshrrev_b32 {v(g)}, 4, v1")
    A(f"s_and_b32 s70, s{WV}, 1")
    A(f"s_lshl_b32 s70, s70, 4")
    A(f"s_lshr_b32 s61, s{WV}, 1")
    A(f"v_lshrrev_b32 v2, 1, v0")
    A(f"v_and_b32 v6, 1, v0")
    A(f"s_lshl_b32 s62, s{sC}, 1")
    A(f"v_add_u32 v3, s62, v6")
    A(f"v_min_u32 v3, 320, v3")
    A(f"v_sub_u32 v4, 640, v3")
    A(f"v_cmp_ne_u32 vcc, 0, v3")
    A(f"v_cndmask_b32 v4, 0, v4, vcc")
    A(f"v_add_u32 v5, 7, v4")
    A(f"v_cmp_lt_u32 vcc, 320, v4")
    A(f"v_cndmask_b32 v4, v4, v5, vcc")
    A(f"v_mul_u32_u24 v5, {WROW}, v2")
    A(f"v_mul_u32_u24 v6, 8256, v6")
    A(f"v_lshl_add_u32 v6, v2, 4, v6")
    A(f"v_lshl_add_u32 v2, v3, 4, v5")
    A(f"v_lshl_add_u32 v3, v4, 4, v5")
    A(f"s_mul_i32 s63, s61, 8256")
    A(f"v_lshlrev_b32 v7, 10, {v(g)}")
    A(f"v_lshl_add_u32 v7, {v(n)}, 4, v7")
    A(f"v_add_u32 v7, s63, v7")
    A(f"s_add_u32 s62, s62, s61")
    A(f"s_lshl_b32 s62, s62, 12")
    A(f"v_lshl_add_u32 v8, {v(g)}, 6, {v(n)}")
    A(f"v_add_u32 v8, s70, v8")
    A(f"v_lshl_add_u32 v8, v8, 4, s62")
    A(f"s_lshr_b32 s62, s62, 6")
    A(f"s_add_u32 s62, s62, {YM_OFF + 48}")
    A(f"v_lshlrev_b32 v9, 4, {v(g)}")
    A(f"v_sub_u32 v9, s62, v9")
    def Y_stores(r0, r1, rm, sy, prep=None):
        A(f"buffer_store_dwordx4 {v(r0,4)}, v8, {WS}, {sy} offen sc1")
        A(f"buffer_store_dwordx4 {v(r1,4)}, v8, {WS}, {sy} offen offset:512 sc1")
        Lm = A.newlabel("Lym")
        A(f"s_bitcmp1_b32 s{WV}, 0")
        A(f"s_cbranch_scc1 {Lm}")
        if prep:
            prep()
        set_exec(0x0001000100010001)
        A(f"buffer_store_dwordx4 {v(rm,4)}, v9, {WS}, {sy} offen sc1")
        A("s_mov_b64 exec, -1")
        A.label(Lm)
    A(f"s_waitcnt vmcnt({nloads(PPART) if opt('prefc', 1) == 1 else 0})")
    nonce_take(T + 4)
    Li = A.newlabel("Lci")
    A(f"s_sub_u32 s60, s2, {C0}")
    A(f"s_lshl_b32 s61, s{WV}, 4")
    A(f"s_or_b32 s60, s60, s61")
    A(f"s_cmp_ge_u32 s60, 16")
    A(f"s_cbranch_scc1 {Li}")
    cnt_init(sCME, range(4), T)
    A.label(Li)
    for k in range(4):
        A(f"v_mov_b32 {v(O+k)}, -1")
    for lay in range(2 if opt("y2fill", 2) == 0 else 1):
        A(f"s_mov_b32 s63, {Y_OFF + lay * Y_SZ}")
        Y_stores(O, O, O, "s63")
    if opt("prefc", 1) == 2:
        warm_weights(AC, C0, 29, PPART)
    A(f"v_add_u32 {v(t1)}, s70, {v(n)}")
    A(f"v_cvt_f32_u32 {v(t1)}, {v(t1)}")
    A(f"v_cvt_f32_u32 {v(gs)}, {v(g)}")
    A(f"v_mul_f32 {v(st)}, {f32(1/32)}, {v(t1)}")
    A(f"v_mul_f32 {v(base)}, {v(st)}, {v(gs)}")
    A(f"v_mul_f32 {v(base)}, {f32(8.0)}, {v(base)}")
    for w in range(4):
        A(f"v_fmamk_f32 {v(arg)}, {v(st)}, {f32(2*w)}, {v(base)}")
        sincos(arg, ca, sa)
        A(f"v_add_f32 {v(arg)}, {v(arg)}, {v(st)}")
        sincos(arg, cb, sb)
        A(f"v_sub_f32 {v(x0)}, {v(ca)}, {v(sb)}")
        A(f"v_add_f32 {v(x1)}, {v(sa)}, {v(cb)}")
        A(f"v_cvt_pk_f16_f32 {v(B1+w)}, {v(x0)}, {v(x1)}")
        A(f"v_cvt_pk_f16_f32 {v(B1+4+w)}, -{v(x1)}, {v(x0)}")
        A(f"v_add_f32 {v(x0)}, {v(ca)}, {v(sb)}")
        A(f"v_sub_f32 {v(x1)}, {v(cb)}, {v(sa)}")
        A(f"v_cvt_pk_f16_f32 {v(B1+8+w)}, {v(x0)}, {v(x1)}")
        A(f"v_cvt_pk_f16_f32 {v(B1+12+w)}, {v(x1)}, -{v(x0)}")
    A(f"v_mul_f32 {v(st)}, {f32(1/2048)}, {v(t1)}")
    A(f"v_mul_f32 {v(base)}, {v(st)}, {v(gs)}")
    A(f"v_mul_f32 {v(base)}, 4.0, {v(base)}")
    for j in range(4):
        for i in range(4):
            A(f"v_fmamk_f32 {v(arg)}, {v(st)}, {f32(16*j+i)}, {v(base)}")
            sincos(arg, ca, sa)
            A(f"v_mul_f32 {v(TC+4*j+i)}, {f32(1/64)}, {v(ca)}")
            A(f"v_mul_f32 {v(TS+4*j+i)}, {f32(1/64)}, {v(sa)}")
    A(f"v_lshrrev_b32 {v(x0)}, 2, {v(n)}")
    A(f"v_lshlrev_b32 {v(x0)}, 4, {v(x0)}")
    A(f"v_and_b32 {v(x1)}, 3, {v(n)}")
    A(f"v_lshl_add_u32 {v(x0)}, {v(x1)}, 1, {v(x0)}")
    A(f"s_lshr_b32 s60, s70, 1")
    A(f"s_lshr_b32 s61, s{WV}, 1")
    A(f"s_add_u32 s60, s60, s61")
    A(f"v_add_u32 {v(x0)}, s60, {v(x0)}")
    A(f"v_cvt_f32_u32 {v(x0)}, {v(x0)}")
    A(f"v_mul_f32 {v(st)}, {f32(1/64)}, {v(x0)}")
    A(f"v_mul_f32 {v(base)}, {v(st)}, {v(gs)}")
    A(f"v_mul_f32 {v(base)}, 4.0, {v(base)}")
    A(f"s_lshl_b32 s60, s{WV}, 12")
    A(f"s_add_u32 s60, s60, 24576")
    A(f"v_lshl_add_u32 {v(x1)}, v1, 4, s60")
    for j in range(4):
        for i in range(4):
            A(f"v_fmamk_f32 {v(arg)}, {v(st)}, {f32(16*j+i)}, {v(base)}")
            sincos(arg, ca, sa)
            A(f"v_cvt_pk_f16_f32 {v(DT+4*j+i)}, {v(ca)}, {v(sa)}")
        A(f"ds_write_b128 {v(x1)}, {v(DT+4*j,4)} offset:{1024*j}")
    A(f"v_lshlrev_b32 {v(x1)}, 4, v1")
    A("s_waitcnt lgkmcnt(0)")
    A("s_barrier")
    for q in range(16):
        A(f"ds_read_b128 {v(A2+4*q,4)}, {v(x1)} offset:{24576 + 1024*q}")
        if q == 7:
            A("s_waitcnt lgkmcnt(0)")
    A("s_waitcnt vmcnt(0)")
    prio(3)
    A(f"s_mov_b32 s{sK}, 0")
    A(f"s_mov_b32 s{sW0}, {W_OFF}")
    A(f"s_mov_b32 s{sY}, {Y_OFF}")
    if opt("touch", 0) > 1:
        touch(T, W_OFF, 2 * W_SZ)
    stamp(4, dbg=(4, C0))
    A.label("L_Cloop")
    A(f"s_add_u32 s{sW1}, s{sW0}, {128 * WROW}")
    poll_flags(f"s{sK}", sCREP, T)
    stamp(0, f"s{sK}", dbg=(5, C0, 0))
    loop, done = A.newlabel("Lcw"), A.newlabel("Lcwd")
    A(f"s_add_u32 s30, s{sK}, 1")
    AWC = opt("awc", 1)
    if EARLY_C >= 2:
        arrive_issue("s30", sCME, O, AWC)
    A(f"s_mov_b32 s62, {SPIN}")
    A.label(loop)
    A(f"buffer_load_dwordx4 {v(RAW,4)}, v2, {WS}, s{sW0} offen sc1")
    A(f"buffer_load_dwordx4 {v(RAW+4,4)}, v2, {WS}, s{sW1} offen sc1")
    A(f"buffer_load_dwordx4 {v(RAW+8,4)}, v3, {WS}, s{sW0} offen sc1")
    A(f"buffer_load_dwordx4 {v(RAW+12,4)}, v3, {WS}, s{sW1} offen sc1")
    A("s_mov_b32 s31, 0")
    for j in range(4):
        if j == 3 and EARLY_C >= 3:
            Lw = A.newlabel("Lce")
            A("s_waitcnt vmcnt(1)")
            A("s_cmp_eq_u32 s31, 1")
            A(f"s_cbranch_scc1 {Lw}")
            A("s_waitcnt vmcnt(0)")
            A.label(Lw)
        else:
            A(f"s_waitcnt vmcnt({3-j})")
        A(f"ds_write_b128 v6, {v(RAW+4*j,4)} offset:{(j>>1)*4096 + (j&1)*2048}")
        if EARLY_C >= 3 and j == EARLY_C - 3:
            Lq = A.newlabel("Lce")
            A(f"s_cmp_lg_u32 s62, {SPIN}")
            A(f"s_cbranch_scc1 {Lq}")
            arrive_finish("s30", sCME, f"s{sLAST}", O, 3 - j, AWC, "s31")
            A.label(Lq)
    any_sentinel(range(RAW, RAW + 16), T, done)
    spin_tail(loop, 62, 2)
    A.label(done)
    if EARLY_C == 1:
        arrive_issue("s30", sCME, O, AWC)
    A("s_waitcnt lgkmcnt(0)")
    A("s_barrier")
    stamp(1, f"s{sK}")
    for j in range(4):
        A(f"ds_read_b128 {v(DT+8*j,4)}, v7 offset:{256*j}")
        A(f"ds_read_b128 {v(DT+8*j+4,4)}, v7 offset:{4096+256*j}")
    if EARLY_C == 2:
        arrive_finish("s30", sCME, f"s{sLAST}", O, 0, AWC)
    for j in range(4):
        A(f"s_waitcnt lgkmcnt({7-2*j})")
        A(f"v_mfma_f32_16x16x32_f16 {v(AR+4*j,4)}, {v(DT+8*j,4)}, {v(B1,4)}, 0")
        A(f"v_mfma_f32_16x16x32_f16 {v(AI+4*j,4)}, {v(DT+8*j,4)}, {v(B1+4,4)}, 0")
        A(f"s_waitcnt lgkmcnt({6-2*j})")
        A(f"v_mfma_f32_16x16x32_f16 {v(AR+4*j,4)}, {v(DT+8*j+4,4)}, {v(B1+8,4)}, {v(AR+4*j,4)}")
        A(f"v_mfma_f32_16x16x32_f16 {v(AI+4*j,4)}, {v(DT+8*j+4,4)}, {v(B1+12,4)}, {v(AI+4*j,4)}")
    A(f"s_add_u32 s{sK}, s{sK}, 1")
    for j in range(4):
        for i in (4 * j, 4 * j + 2):
            pr, pi = RAW + (i % 4) * 2, RAW + (i % 4) * 2 + 2
            A(f"v_pk_mul_f32 {v(pr,2)}, {v(AR+i,2)}, {v(TC+i,2)}")
            A(f"v_pk_mul_f32 {v(pi,2)}, {v(AI+i,2)}, {v(TC+i,2)}")
            A(f"v_pk_fma_f32 {v(pr,2)}, {v(AI+i,2)}, {v(TS+i,2)}, {v(pr,2)}")
            A(f"v_pk_fma_f32 {v(pi,2)}, {v(AR+i,2)}, {v(TS+i,2)}, {v(pi,2)} neg_lo:[1,0,0] neg_hi:[1,0,0]")
            A(f"v_cvt_pk_f16_f32 {v(P+i)}, {v(pr)}, {v(pi)}")
            A(f"v_cvt_pk_f16_f32 {v(P+i+1)}, {v(pr+1)}, {v(pi+1)}")
        for jm in range(4):
            c = "0" if j == 0 else v(AC + 4 * jm, 4)
            A(f"v_mfma_f32_16x16x32_f16 {v(AC+4*jm,4)}, {v(A2+16*jm+4*j,4)}, {v(P+4*j,4)}, {c}")
        if j == opt("cfin", 1) and EARLY_C == 1:
            arrive_finish("s30", sCME, f"s{sLAST}", O, 0, AWC)
    for k in range(8):
        A(f"v_cvt_pk_f16_f32 {v(O+k)}, {v(AC+2*k)}, {v(AC+2*k+1)}")
    def prep():
        for gq in range(4):
            A(f"v_readlane_b32 s{60+gq}, {v(O)}, {16*((gq+1)%4)}")
        for gq in range(4):
            A(f"v_writelane_b32 {v(P+4)}, s{60+gq}, {16*gq}")
        for k in range(3):
            A(f"v_alignbit_b32 {v(P+k)}, {v(O+k+1)}, {v(O+k)}, 16")
        A(f"v_alignbit_b32 {v(P+3)}, {v(P+4)}, {v(O+3)}, 16")
    Y_stores(O, O + 4, P, f"s{sY}", prep)
    stamp(3, f"s{sK}", dbg=(6, C0, 1))
    A(f"s_add_u32 s{sK}, s{sK}, 1")
    A(f"s_add_u32 s{sW0}, s{sW0}, {W_SZ}")
    A(f"s_add_u32 s{sY}, s{sY}, {Y_SZ}")
    A(f"s_cmp_ge_u32 s{sK}, 4")
    A("s_cbranch_scc1 L_end")
    A("s_waitcnt vmcnt(0)")
    if opt("y2fill", 2) == 2:
        for k in range(4):
            A(f"v_mov_b32 {v(O+k)}, -1")
        Y_stores(O, O, O, f"s{sY}")
        A("s_waitcnt vmcnt(0)")
    if opt("y2fill", 2) == 1:
        lp, dn = A.newlabel("Lcy"), A.newlabel("Lcy")
        A(f"s_mov_b32 s60, {RG_OFF}")
        A(f"v_mov_b32 {v(T)}, 0")
        A(f"s_mov_b32 s62, {SPIN}")
        A.label(lp)
        A(f"buffer_load_dword {v(T+1)}, {v(T)}, {WS}, s60 offen sc1")
        A("s_waitcnt vmcnt(0)")
        A(f"v_cmp_eq_u32 vcc, -1, {v(T+1)}")
        A(f"s_cbranch_vccz {dn}")
        spin_tail(lp, 62, 4)
        A.label(dn)
        for k in range(4):
            A(f"v_mov_b32 {v(O+k)}, -1")
        Y_stores(O, O, O, f"s{sY}")
        A("s_waitcnt vmcnt(0)")
    A("s_branch L_Cloop")

SORT8 = [(0, 1), (2, 3), (4, 5), (6, 7), (0, 2), (1, 3), (4, 6), (5, 7), (1, 2), (5, 6), (0, 4), (3, 7),
         (1, 5), (2, 6), (1, 4), (3, 6), (2, 4), (3, 5), (3, 4)]

def topk_setup(CODE, vG, vLW, vLR, LDS0):
    A(f"v_lshrrev_b32 {v(CODE)}, 6, v0")
    A(f"v_lshlrev_b32 {v(CODE)}, 9, {v(CODE)}")
    A(f"v_add_u32 {v(CODE)}, {v(CODE)}, v1")
    A(f"v_sub_u32 {v(CODE)}, 2047, {v(CODE)}")
    for i in range(1, 8):
        A(f"v_subrev_u32 {v(CODE+i)}, {64*i}, {v(CODE)}")
    A(f"v_lshlrev_b32 {v(vG)}, {RSH}, v0")
    A(f"v_lshrrev_b32 {v(vLW)}, 4, v0")
    A(f"v_lshlrev_b32 {v(vLW)}, 5, {v(vLW)}")
    A(f"v_add_u32 {v(vLW)}, {LDS0}, {v(vLW)}")
    A(f"v_and_b32 {v(vLR)}, 15, v1")
    A(f"v_lshlrev_b32 {v(vLR)}, 5, {v(vLR)}")
    A(f"v_add_u32 {v(vLR)}, {LDS0}, {v(vLR)}")

def topk(K, CODE, vG, vLW, vLR, sRG, blk, dbg, mid=None):
    G = K + 16
    prio(0)
    for gate in ((True, False) if GATE else (False,)):
        loop, done = A.newlabel("Lrg"), A.newlabel("Lrgd")
        A(f"s_mov_b32 s62, {SPIN}")
        if gate:
            set_exec(0xff << 56)
        A.label(loop)
        A(f"buffer_load_dwordx4 {v(G,4)}, {v(vG)}, {WS}, s{sRG} offen sc1")
        A("s_waitcnt vmcnt(0)")
        any_sentinel(range(G, G + 4), K, done)
        spin_tail(loop, 62, opt("rsleep", 0))
        A.label(done)
        if gate:
            A("s_mov_b64 exec, -1")
    prio(3)
    stamp(3, "s27", dbg=dbg)
    A("s_mov_b32 s63, 0xffff0000")
    cur = list(range(K, K + 8))
    for k in range(4):
        A(f"v_lshl_or_b32 {v(cur[2*k])}, {v(G+k)}, 16, {v(CODE+2*k)}")
        A(f"v_and_or_b32 {v(cur[2*k+1])}, {v(G+k)}, s63, {v(CODE+2*k+1)}")
    free = list(range(K + 8, K + 24))

    def ce(i, j, dst=None):
        if dst is None:
            t = free.pop(0)
            A(f"v_max_u32 {v(t)}, {v(cur[i])}, {v(cur[j])}")
            A(f"v_min_u32 {v(cur[j])}, {v(cur[i])}, {v(cur[j])}")
            free.append(cur[i])
            cur[i] = t
        else:
            A(f"v_max_u32 {v(dst+i)}, {v(cur[i])}, {v(cur[j])}")
            A(f"v_min_u32 {v(dst+j)}, {v(cur[i])}, {v(cur[j])}")

    for (i, j) in SORT8:
        ce(i, j)
    pats = ["quad_perm:[1,0,3,2]", "quad_perm:[2,3,0,1]", "row_half_mirror", "row_mirror"]
    for rnd in range(2):
        for li, pat in enumerate(pats):
            new = [free.pop(0) for _ in range(8)]
            for i in (7, 6, 5, 4, 3, 2, 1, 0) if False else range(8):
                A(f"v_max_u32_dpp {v(new[i])}, {v(cur[7-i])}, {v(cur[i])} {pat} row_mask:0xf bank_mask:0xf")
            free.extend(cur)
            cur = new
            if rnd == 1 and li == 3:
                return cur
            for i in range(4):
                ce(i, i + 4)
            for i in (0, 1, 4, 5):
                ce(i, i + 2)
            if rnd == 0 and li == 3:
                for i in (0, 2, 4, 6):
                    ce(i, i + 1, dst=blk)
                set_exec(0x0001000100010001)
                A(f"ds_write_b128 {v(vLW)}, {v(blk,4)}")
                A(f"ds_write_b128 {v(vLW)}, {v(blk+4,4)} offset:16")
                A("s_mov_b64 exec, -1")
                A("s_waitcnt lgkmcnt(0)")
                A("s_barrier")
                A(f"ds_read_b128 {v(K,4)}, {v(vLR)}")
                A(f"ds_read_b128 {v(K+4,4)}, {v(vLR)} offset:16")
                A("s_waitcnt lgkmcnt(0)")
                if mid:
                    mid(K)
                cur = list(range(K, K + 8))
                free = list(range(K + 8, K + 24))
            else:
                for i in (6, 4, 2, 0):
                    ce(i, i + 1)

def load_weight_frags(jobs):
    total = sum(8 * j[3] for j in jobs)
    for (srdn, voff_of, soff_of, nsteps, dst, raw, vfull) in jobs:
        for k in range(nsteps):
            for q in range(8):
                d = raw + 8 * k + q
                if vfull is not None and k == vfull:
                    A(f"v_add_u32 {v(d)}, {soff_of(k, q)}, {v(voff_of(k))}")
                    A(f"buffer_load_dword {v(d)}, {v(d)}, {srdn}, 0 offen")
                    continue
                A(f"s_mov_b32 s60, {soff_of(k, q)}")
                A(f"buffer_load_dword {v(d)}, {v(voff_of(k))}, {srdn}, s60 offen")
    done = 0
    for (srdn, voff_of, soff_of, nsteps, dst, raw, vfull) in jobs:
        for k in range(nsteps):
            done += 8
            A(f"s_waitcnt vmcnt({min(63, total - done)})")
            r = raw + 8 * k
            for u in range(4):
                A(f"v_perm_b32 {v(dst + 8*k + u)}, {v(r+2*u+1)}, {v(r+2*u)}, s58")
                A(f"v_perm_b32 {v(dst + 8*k + 4 + u)}, {v(r+2*u+1)}, {v(r+2*u)}, s59")

def roleFa():
    A.label("L_roleFa")
    GW, UW, RAW, AFR, ACC, K, CODE = 16, 56, 96, 136, 156, 176, 200
    vG, vLW, vLR, vW1, vW2, vLP1, vLP2, vPW, vPR, vH = 2, 3, 4, 5, 6, 7, 8, 9, 10, 11
    sKAP, sRG, sT, sH, sL = 22, 23, 25, 26, 27
    T = 208
    nonce_load(T + 8)
    if opt("prefc", 1) == 1:
        warm_weights(T + 12, C0, 29, PPART)
    srd(8, 46, 2211840)
    srd(12, 48, 2211840)
    A(f"s_sub_u32 s60, s2, {FA0 - 1}")
    A(f"s_and_b32 s61, s60, 7")
    A(f"s_lshr_b32 s60, s60, 3")
    A(f"s_mul_i32 s{sKAP}, s61, 7")
    A(f"s_add_u32 s{sKAP}, s{sKAP}, s60")
    A(f"s_sub_u32 s{sKAP}, s{sKAP}, 1")
    A("s_mov_b32 s58, 0x05040100")
    A("s_mov_b32 s59, 0x07060302")
    n, g = T, T + 1
    A(f"v_and_b32 {v(n)}, 15, v1")
    A(f"v_lshrrev_b32 {v(g)}, 4, v1")
    A(f"s_lshr_b32 s60, s{WV}, 1")
    A(f"s_mul_i32 s60, s60, 320")
    A(f"s_and_b32 s61, s{WV}, 1")
    A(f"s_lshl_b32 s61, s61, 4")
    A(f"s_add_u32 s60, s60, s61")
    A(f"s_lshl_b32 s61, s{sKAP}, 6")
    A(f"v_lshl_add_u32 {v(T+2)}, {v(n)}, 2, s61")
    A(f"v_add_u32 {v(vW1)}, s60, {v(g)}")
    A(f"v_mul_u32_u24 {v(vW1)}, 3456, {v(vW1)}")
    A(f"v_add_u32 {v(vW1)}, {v(vW1)}, {v(T+2)}")
    A(f"v_lshl_add_u32 {v(vW2)}, {v(g)}, 2, s60")
    A(f"v_mul_u32_u24 {v(vW2)}, 3456, {v(vW2)}")
    A(f"v_add_u32 {v(vW2)}, {v(vW2)}, {v(T+2)}")
    voff = lambda k: vW1 if k < 4 else vW2
    soff = lambda k, q: ((32 * q + 4 * k) if k < 4 else (256 + 32 * (q & 1) + (q >> 1))) * 3456
    A("s_waitcnt vmcnt(0)")
    nonce_take(T + 8)
    A(f"s_and_b32 s29, s2, {NREP - 1}")
    A(f"s_lshl_b32 s29, s29, {FSH + 4}")
    if opt("prefc", 1) == 2:
        warm_weights(T + 12, C0, 29, PPART)
    poll_flags(0, 29, T + 4, opt("fsleep", 2))
    if opt("coop", 4):
        warm_coop(T + 12)
    srd(16, 44, 1280)
    A(f"v_and_b32 {v(T+2)}, 31, v1")
    A(f"v_lshrrev_b32 {v(T+3)}, 5, v1")
    A(f"v_mul_u32_u24 {v(T+3)}, 640, {v(T+3)}")
    A(f"v_lshl_add_u32 {v(T+2)}, {v(T+2)}, 1, {v(T+3)}")
    for i in range(10):
        A(f"v_mov_b32 {v(K+i)}, 0")
        A(f"buffer_load_short_d16_hi {v(K+i)}, {v(T+2)}, {SRD3}, 0 offen offset:{64*i}")
    A("s_waitcnt vmcnt(0)")
    tau_of(K, T + 2, 1.0 + 1.0 / 32)
    A(f"v_or_b32 {v(T+2)}, 0x80000000, {v(T+2)}")
    A(f"v_readfirstlane_b32 s36, {v(T+2)}")
    if opt("wide", 0):
        A(f"s_lshr_b32 s60, s{WV}, 1")
        A(f"s_mul_i32 s60, s60, 320")
        A(f"s_and_b32 s61, s{WV}, 1")
        A(f"s_lshl_b32 s61, s61, 4")
        A(f"s_add_u32 s60, s60, s61")
        A(f"v_lshrrev_b32 {v(T+4)}, 2, v1")
        A(f"v_add_u32 {v(T+4)}, s60, {v(T+4)}")
        A(f"v_mul_u32_u24 {v(T+4)}, 3456, {v(T+4)}")
        A(f"v_and_b32 {v(T+5)}, 3, v1")
        A(f"s_lshl_b32 s61, s{sKAP}, 6")
        A(f"v_lshl_add_u32 {v(T+5)}, {v(T+5)}, 4, s61")
        A(f"v_add_u32 {v(T+4)}, {v(T+4)}, {v(T+5)}")
        for j in range(10):
            A(f"s_mov_b32 s60, {32 * j * 3456}")
            A(f"buffer_load_dwordx4 {v(T+12,4)}, {v(T+4)}, {SRD1}, s60 offen")
            A(f"buffer_load_dwordx4 {v(T+12,4)}, {v(T+4)}, {SRD2}, s60 offen")
        if opt("wide", 0) == 2:
            A("s_waitcnt vmcnt(0)")
    load_weight_frags([(SRD1, voff, soff, 5, GW, RAW, None), (SRD2, voff, soff, 5, UW, RAW + 40, None)])
    topk_setup(CODE, vG, vLW, vLR, 24576)
    A(f"v_and_b32 {v(T+2)}, 7, v1")
    A(f"s_lshl_b32 s60, s{WV}, 8")
    A(f"v_lshl_add_u32 {v(vLP1)}, {v(T+2)}, 4, s60")
    A(f"s_lshl_b32 s60, s{WV}, 6")
    A(f"s_add_u32 s60, s60, 1024")
    A(f"v_lshl_add_u32 {v(vLP2)}, {v(T+2)}, 4, s60")
    A(f"s_mul_i32 s60, s{WV}, 2688")
    A(f"s_add_u32 s60, s60, 12288")
    A(f"v_lshrrev_b32 {v(T+3)}, 3, v1")
    A(f"v_mul_u32_u24 v13, 336, {v(T+3)}")
    A(f"v_lshl_add_u32 v13, {v(T+2)}, 4, v13")
    A(f"v_add_u32 v13, s60, v13")
    A(f"v_mul_u32_u24 v14, 336, {v(T+2)}")
    A(f"v_lshl_add_u32 v14, {v(g)}, 4, v14")
    A(f"v_add_u32 v14, s60, v14")
    A(f"s_lshl_b32 s60, s{WV}, 8")
    A(f"v_lshl_add_u32 v15, {v(g)}, 7, s60")
    A(f"s_lshl_b32 s60, s{WV}, 6")
    A(f"s_add_u32 s60, s60, 1024")
    A(f"v_mov_b32 {v(T+4)}, s60")
    A(f"v_cmp_gt_u32 vcc, 2, {v(g)}")
    A(f"v_cndmask_b32 v15, {v(T+4)}, v15, vcc")
    A(f"s_mul_i32 s60, s{WV}, 2560")
    A(f"v_mul_u32_u24 {v(vPW)}, 640, {v(g)}")
    A(f"v_lshl_add_u32 {v(vPW)}, {v(n)}, 3, {v(vPW)}")
    A(f"v_add_u32 {v(vPW)}, s60, {v(vPW)}")
    A(f"v_add_u32 {v(12)}, 1280, {v(vPW)}")
    A(f"v_mul_u32_u24 {v(vPR)}, 40, {v(T+3)}")
    A(f"s_lshl_b32 s60, s{WV}, 3")
    A(f"v_add3_u32 {v(vPR)}, {v(vPR)}, {v(T+2)}, s60")
    A(f"v_lshlrev_b32 {v(vPR)}, 2, {v(vPR)}")
    A(f"v_lshrrev_b32 {v(T+2)}, 1, v0")
    A(f"v_lshlrev_b32 {v(vH)}, 2, {v(T+2)}")
    A(f"s_lshl_b32 s{sH}, s{sKAP}, 9")
    A(f"s_add_u32 s{sH}, s{sH}, {H_OFF}")
    A(f"s_and_b32 s{sRG}, s2, {NRR - 1}")
    A(f"s_lshl_b32 s{sRG}, s{sRG}, {RSH + 8}")
    A(f"s_add_u32 s{sRG}, s{sRG}, {RG_OFF}")
    A(f"s_mov_b32 s{sT}, {T_OFF}")
    A(f"s_mov_b32 s28, {T_REC}")
    for (r, val) in ((30, 0x00FFFF00), (31, 0x00FFFF00), (32, 0xFF00FF00), (33, 0x00FF00FF)):
        A(f"s_mov_b32 s{r}, 0x{val:x}")
    A(f"s_mov_b32 s{sL}, 0")
    touch(T + 2, T_OFF, 2 * T_SZ)
    stamp(0, dbg=(9, FA0))
    poll_flags(1, 29, T, 8)
    prio(3)
    A.label("L_FaLoop")
    def warm_rows(K_):
        for e in range(opt("warm", 0)):
            A(f"v_and_b32 {v(T+8+e)}, 0x7ff, {v(K_+e)}")
            A(f"v_sub_u32 {v(T+8+e)}, 2047, {v(T+8+e)}")
            A(f"v_mad_u32_u24 {v(T+8+e)}, {v(T+8+e)}, s28, v15")
            A(f"buffer_load_dword {v(T+8+e)}, {v(T+8+e)}, {WS}, s{sT} offen sc1")
    c = topk(K, CODE, vG, vLW, vLR, sRG, T, (11, FA0, 0), warm_rows)
    stamp(4, "s27")
    A(f"v_cndmask_b32 {v(T)}, {v(c[0])}, {v(c[2])}, s[30:31]")
    A(f"v_cndmask_b32 {v(T+1)}, {v(c[4])}, {v(c[6])}, s[30:31]")
    A(f"v_cndmask_b32 {v(T)}, {v(T)}, {v(T+1)}, s[32:33]")
    A(f"v_and_b32 {v(T)}, 0x7ff, {v(T)}")
    A(f"v_sub_u32 {v(T)}, 2047, {v(T)}")
    A(f"v_mad_u32_u24 {v(T+1)}, {v(T)}, s28, {v(vLP1)}")
    A(f"v_mad_u32_u24 {v(T+2)}, {v(T)}, s28, {v(vLP2)}")
    loop, done = A.newlabel("Lga"), A.newlabel("Lgad")
    A(f"v_min3_u32 {v(T+3)}, {v(c[0])}, {v(c[1])}, {v(c[2])}")
    A(f"v_min3_u32 {v(T+4)}, {v(c[3])}, {v(c[4])}, {v(c[5])}")
    A(f"v_min3_u32 {v(T+3)}, {v(T+3)}, {v(c[6])}, {v(c[7])}")
    A(f"v_min_u32 {v(T+3)}, {v(T+3)}, {v(T+4)}")
    A(f"v_and_b32 {v(T+3)}, 0xffff0000, {v(T+3)}")
    A(f"v_cmp_gt_u32 vcc, s36, {v(T+3)}")
    A(f"s_cbranch_vccz {done}")
    A(f"v_mul_u32_u24 {v(T+3)}, s28, {v(T)}")
    A(f"s_add_u32 s61, s{NONCE}, 6")
    A(f"s_add_u32 s61, s61, s{sL}")
    A(f"s_mov_b32 s62, {SPIN}")
    A.label(loop)
    A(f"buffer_load_dword {v(T+4)}, {v(T+3)}, {WS}, s{sT} offen offset:2568 sc1")
    A("s_waitcnt vmcnt(0)")
    A(f"v_cmp_ne_u32 vcc, s61, {v(T+4)}")
    A(f"s_cbranch_vccz {done}")
    spin_tail(loop, 62, 2)
    A.label(done)
    GR = K
    A(f"buffer_load_dwordx4 {v(GR,4)}, {v(T+1)}, {WS}, s{sT} offen sc1")
    A(f"buffer_load_dwordx4 {v(GR+4,4)}, {v(T+1)}, {WS}, s{sT} offen offset:128 sc1")
    set_exec(0x0F0F0F0F0F0F0F0F)
    A(f"buffer_load_dwordx4 {v(GR+8,4)}, {v(T+2)}, {WS}, s{sT} offen sc1")
    A("s_mov_b64 exec, -1")
    A("s_waitcnt vmcnt(2)")
    A(f"ds_write_b128 v13, {v(GR,4)}")
    A("s_waitcnt vmcnt(1)")
    A(f"ds_write_b128 v13, {v(GR+4,4)} offset:128")
    A("s_waitcnt vmcnt(0)")
    set_exec(0x0F0F0F0F0F0F0F0F)
    A(f"ds_write_b128 v13, {v(GR+8,4)} offset:256")
    A("s_mov_b64 exec, -1")
    for ks in range(5):
        A(f"ds_read_b128 {v(AFR+4*ks,4)}, v14 offset:{64*ks}")
    for ks in range(5):
        A(f"s_waitcnt lgkmcnt({4-ks})")
        for a_, wb in enumerate((GW, GW + 4, UW, UW + 4)):
            cc = "0" if ks == 0 else v(ACC + 4 * a_, 4)
            A(f"v_mfma_f32_16x16x32_bf16 {v(ACC+4*a_,4)}, {v(AFR+4*ks,4)}, {v(wb+8*ks,4)}, {cc}")
    stamp(5, "s27")
    set_exec(0xffffffff)
    for mat in range(2):
        for r in range(4):
            A(f"ds_write2_b32 {v(vPW if mat == 0 else 12)}, {v(ACC+8*mat+r)}, {v(ACC+8*mat+4+r)} offset0:{40*r} offset1:{40*r+1}")
    A("s_mov_b64 exec, -1")
    A("s_waitcnt lgkmcnt(0)")
    A("s_barrier")
    for w in range(4):
        A(f"ds_read2st64_b32 {v(T+2*w,2)}, {v(vPR)} offset0:{10*w} offset1:{10*w+5}")
    A("s_waitcnt lgkmcnt(2)")
    A(f"v_pk_add_f32 {v(T,2)}, {v(T,2)}, {v(T+2,2)}")
    A("s_waitcnt lgkmcnt(0)")
    A(f"v_pk_add_f32 {v(T+4,2)}, {v(T+4,2)}, {v(T+6,2)}")
    A(f"v_pk_add_f32 {v(T,2)}, {v(T,2)}, {v(T+4,2)}")
    rnd_pair(T, T + 1, T + 2)
    A(f"v_mul_f32 {v(T+2)}, {f32(-1.4426950408889634)}, {v(T)}")
    A(f"v_exp_f32 {v(T+2)}, {v(T+2)}")
    A(f"v_add_f32 {v(T+2)}, 1.0, {v(T+2)}")
    A(f"v_rcp_f32 {v(T+2)}, {v(T+2)}")
    A(f"v_mul_f32 {v(T)}, {v(T)}, {v(T+2)}")
    A(f"v_cvt_pk_bf16_f32 {v(T)}, {v(T)}, {v(T)}")
    A(f"v_and_b32 {v(T)}, 0xffff0000, {v(T)}")
    A(f"v_mul_f32 {v(T)}, {v(T)}, {v(T+1)}")
    A(f"v_mov_b32_dpp {v(T+1)}, {v(T)} quad_perm:[1,0,3,2] row_mask:0xf bank_mask:0xf")
    A(f"v_cvt_pk_bf16_f32 {v(T)}, {v(T)}, {v(T+1)}")
    A(f"v_min_u32 {v(T)}, -2, {v(T)}")
    set_exec(0x5555555555555555)
    A(f"buffer_store_dword {v(T)}, {v(vH)}, {WS}, s{sH} offen sc1")
    A("s_mov_b64 exec, -1")
    if opt("hintsrc", 0) == 1:
        Lh3 = A.newlabel("Lfa")
        A(f"s_or_b32 s60, s{sKAP}, s{WV}")
        A(f"s_or_b32 s60, s60, s{sL}")
        A(f"s_cmp_lg_u32 s60, 0")
        A(f"s_cbranch_scc1 {Lh3}")
        A(f"v_mov_b32 {v(T+4)}, 0")
        A(f"s_mov_b32 s60, {X2_OFF + SEL_OFF + 128}")
        A("s_mov_b64 exec, 1")
        A(f"buffer_store_dword {v(T+4)}, {v(T+4)}, {WS}, s60 offen sc1")
        A("s_mov_b64 exec, -1")
        A.label(Lh3)
    stamp(6, "s27")
    A(f"s_add_u32 s{sH}, s{sH}, {2 * HREP}")
    A(f"s_add_u32 s{sRG}, s{sRG}, {NRR * RG_REP}")
    A(f"s_add_u32 s{sT}, s{sT}, {T_SZ}")
    A(f"s_add_u32 s{sL}, s{sL}, 1")
    A(f"s_cmp_lt_u32 s{sL}, 2")
    A("s_cbranch_scc1 L_FaLoop")
    A("s_endpgm")

def roleFb():
    A.label("L_roleFb")
    DW, HF, ACC, K, CODE, T = 16, 128, 184, 192, 216, 224
    RAW = 128
    vG, vLW, vLR, vW1, vHF, vPW, vPR, vE, vX2, vO = 2, 3, 4, 5, 6, 7, 8, 9, 10, 11
    sB, sRG, sT, sH, sL, sREP2, sES, sEC = 22, 23, 25, 26, 27, 29, 30, 31
    nonce_load(T + 8)
    if opt("prefc", 1) == 1:
        warm_weights(T + 16, C0, 29, PPART)
    srd(8, 50, 2211840)
    srd(12, 52, 2621440)
    A(f"s_sub_u32 s60, s2, {FB0 - 7}")
    A(f"s_and_b32 s61, s60, 7")
    A(f"s_lshr_b32 s60, s60, 3")
    fb_start("s61", f"s{sB}")
    A(f"s_add_u32 s{sB}, s{sB}, s60")
    A(f"s_cmp_eq_u32 s61, 7")
    A(f"s_cselect_b32 s60, 0, 1")
    A(f"s_sub_u32 s{sB}, s{sB}, s60")
    A("s_mov_b32 s58, 0x05040100")
    A("s_mov_b32 s59, 0x07060302")
    n, g = T, T + 1
    A(f"v_and_b32 {v(n)}, 15, v1")
    A(f"v_lshrrev_b32 {v(g)}, 4, v1")
    A(f"s_lshl_b32 s60, s{WV}, 5")
    A(f"v_lshl_add_u32 {v(vW1)}, {v(g)}, 3, s60")
    A(f"v_mul_u32_u24 {v(vW1)}, 1280, {v(vW1)}")
    A(f"s_lshl_b32 s61, s{sB}, 6")
    A(f"v_lshl_add_u32 {v(T+2)}, {v(n)}, 2, s61")
    A(f"v_add_u32 {v(vW1)}, {v(vW1)}, {v(T+2)}")
    A(f"v_mov_b32 v12, {v(n)}")
    A(f"v_mov_b32 v13, {v(g)}")
    n, g = 12, 13
    A("s_waitcnt vmcnt(0)")
    nonce_take(T + 8)
    A(f"s_and_b32 s{sREP2}, s2, {NREP - 1}")
    A(f"s_lshl_b32 s{sREP2}, s{sREP2}, {FSH + 4}")
    if opt("prefc", 1) == 2:
        warm_weights(T + 16, C0, 29, PPART)
    poll_flags(0, sREP2, T + 4, opt("fsleep", 2))
    if opt("coop", 4):
        warm_coop(T + 16)
    if opt("wide", 0):
        A(f"s_lshl_b32 s60, s{WV}, 5")
        A(f"v_lshrrev_b32 {v(T+20)}, 2, v1")
        A(f"v_add_u32 {v(T+20)}, s60, {v(T+20)}")
        A(f"v_mul_u32_u24 {v(T+20)}, 1280, {v(T+20)}")
        A(f"v_and_b32 {v(T+21)}, 3, v1")
        A(f"s_lshl_b32 s61, s{sB}, 6")
        A(f"v_lshl_add_u32 {v(T+21)}, {v(T+21)}, 4, s61")
        A(f"v_add_u32 {v(T+20)}, {v(T+20)}, {v(T+21)}")
        for k in range(14):
            for hh in range(2):
                A(f"v_add_u32 {v(T+21)}, {(128 * k + 16 * hh) * 1280}, {v(T+20)}")
                A(f"buffer_load_dwordx4 {v(T+24,4)}, {v(T+21)}, {SRD1}, 0 offen")
        if opt("wide", 0) == 2:
            A("s_waitcnt vmcnt(0)")
    load_weight_frags([(SRD1, lambda k: vW1, lambda k, q: (128 * k + q) * 1280, 14, DW, RAW, 13)])
    topk_setup(CODE, vG, vLW, vLR, 8192)
    A(f"v_and_b32 {v(vHF)}, 7, v1")
    A(f"v_lshlrev_b32 {v(vHF)}, 4, {v(vHF)}")
    A(f"v_lshl_add_u32 {v(vHF)}, {v(g)}, 7, {v(vHF)}")
    A(f"s_lshl_b32 s60, s{WV}, 9")
    A(f"v_add_u32 {v(vHF)}, s60, {v(vHF)}")
    A(f"s_mov_b32 s{sH}, {H_OFF}")
    A(f"s_lshl_b32 s60, s{WV}, 10")
    A(f"v_lshlrev_b32 {v(vPW)}, 9, {v(g)}")
    A(f"v_lshl_add_u32 {v(vPW)}, {v(n)}, 3, {v(vPW)}")
    A(f"v_add_u32 {v(vPW)}, s60, {v(vPW)}")
    A(f"v_lshlrev_b32 {v(vPR)}, 2, v0")
    A(f"s_cmp_ge_u32 s{sB}, 10")
    A(f"s_cselect_b32 s60, 1, 0")
    A(f"s_mul_i32 s61, s60, 10")
    A(f"s_sub_u32 s61, s{sB}, s61")
    A(f"s_lshl_b32 s62, s60, 9")
    A(f"s_lshl_b32 s63, s61, 1")
    A(f"s_add_u32 s62, s62, s63")
    A(f"s_lshl_b32 s64, s60, 7")
    A(f"s_add_u32 s64, s64, s63")
    A(f"s_add_u32 s64, s64, {1024 - 16}")
    A(f"s_cmp_lt_u32 s61, 8")
    A(f"s_cselect_b32 s{sEC}, s62, s64")
    A(f"s_cselect_b32 s{sES}, 16, 4")
    A(f"v_and_b32 {v(T+2)}, 31, v1")
    A(f"v_mul_u32_u24 {v(vE)}, s{sES}, {v(T+2)}")
    A(f"s_and_b32 s32, s{sEC}, 2")
    A(f"s_lshl_b32 s32, s32, 3")
    A(f"s_sub_u32 s32, 16, s32")
    A(f"s_and_b32 s{sEC}, s{sEC}, -4")
    A(f"v_add_u32 {v(vE)}, s{sEC}, {v(vE)}")

    A(f"s_lshl_b32 s60, s{sB}, 2")
    A(f"s_add_u32 s60, s60, s{WV}")
    A(f"s_lshl_b32 s60, s60, 8")
    A(f"v_lshl_add_u32 {v(vX2)}, {v(T+2)}, 3, s60")
    A(f"v_lshrrev_b32 {v(T+3)}, 5, v1")
    A(f"v_lshl_add_u32 {v(vX2)}, {v(T+3)}, 2, {v(vX2)}")
    A(f"s_lshl_b32 s60, s{sB}, 6")
    A(f"v_lshl_add_u32 {v(vO)}, {v(T+2)}, 1, s60")
    A(f"s_and_b32 s{sRG}, s2, {NRR - 1}")
    A(f"s_lshl_b32 s{sRG}, s{sRG}, {RSH + 8}")
    A(f"s_add_u32 s{sRG}, s{sRG}, {RG_OFF}")
    A(f"s_mov_b32 s{sT}, {T_OFF}")
    A(f"s_mov_b32 s28, {T_REC}")
    A(f"s_mov_b32 s{sL}, 0")
    touch(T + 2, T_OFF, 2 * T_SZ)
    stamp(0, dbg=(10, FB0))
    poll_flags(1, sREP2, T, 8)
    prio(3)
    A.label("L_FbLoop")
    c = topk(K, CODE, vG, vLW, vLR, sRG, T, None)
    stamp(4, "s27")
    for j in range(8):
        A(f"v_readfirstlane_b32 s{80+j}, {v(c[j])}")
    A("s_mov_b32 s70, s80")
    A("s_mov_b32 s71, s81")
    for w in range(1, 4):
        A(f"s_cmp_eq_u32 s{WV}, {w}")
        A(f"s_cselect_b32 s70, s{80+2*w}, s70")
        A(f"s_cselect_b32 s71, s{81+2*w}, s71")
    KEY, ROW, XV, XNV, SG, ST = T, T + 1, T + 2, T + 3, T + 4, T + 8
    Ls = A.newlabel("Lfb")
    A(f"s_or_b32 s60, s{sB}, s{WV}")
    A(f"s_cmp_lg_u32 s60, 0")
    A(f"s_cbranch_scc1 {Ls}")
    A(f"v_mov_b32 {v(T+6)}, s80")
    for j in range(1, 8):
        A(f"v_writelane_b32 {v(T+6)}, s{80+j}, {j}")
    A(f"v_and_b32 {v(T+6)}, 0x7ff, {v(T+6)}")
    A(f"v_sub_u32 {v(T+6)}, 2047, {v(T+6)}")
    A(f"v_lshlrev_b32 {v(T+7)}, 2, v1")
    A(f"s_lshl_b32 s60, s{sL}, 8")
    A(f"s_add_u32 s60, s60, {X2_OFF + SEL_OFF}")
    A("s_mov_b64 exec, 0xff")
    A(f"buffer_store_dword {v(T+6)}, {v(T+7)}, {WS}, s60 offen sc1")
    A("s_mov_b64 exec, -1")
    A.label(Ls)
    A(f"v_mov_b32 {v(KEY)}, s71")
    A(f"v_mov_b32 {v(ROW)}, s70")
    A(f"v_cmp_gt_u32 vcc, 32, v1")
    A(f"v_cndmask_b32 {v(KEY)}, {v(KEY)}, {v(ROW)}, vcc")
    A(f"v_and_b32 {v(ROW)}, 0x7ff, {v(KEY)}")
    A(f"v_sub_u32 {v(ROW)}, 2047, {v(ROW)}")
    A(f"v_mad_u32_u24 {v(T+5)}, {v(ROW)}, s28, {v(vE)}")
    prio(0)
    loop, done = A.newlabel("Lst2"), A.newlabel("Lst2d")
    A(f"v_mul_u32_u24 {v(T+6)}, s28, {v(ROW)}")
    A(f"s_add_u32 s61, s{NONCE}, 6")
    A(f"s_add_u32 s61, s61, s{sL}")
    A(f"s_mov_b32 s62, {SPIN}")
    A.label(loop)
    A(f"buffer_load_dwordx4 {v(ST,4)}, {v(T+6)}, {WS}, s{sT} offen offset:2560 sc1")
    A("s_waitcnt vmcnt(0)")
    A(f"v_cmp_ne_u32 vcc, s61, {v(ST+2)}")
    A(f"s_cbranch_vccz {done}")
    spin_tail(loop, 62, 2)
    A.label(done)
    A(f"buffer_load_dword {v(XNV)}, {v(T+5)}, {WS}, s{sT} offen sc1")
    A(f"buffer_load_dword {v(XV)}, {v(T+5)}, {WS}, s{sT} offen offset:1280 sc1")
    A(f"v_ashrrev_i32 {v(SG)}, 31, {v(KEY)}")
    A(f"v_not_b32 {v(SG)}, {v(SG)}")
    A(f"v_or_b32 {v(SG)}, 0x80000000, {v(SG)}")
    A(f"v_xor_b32 {v(SG)}, {v(SG)}, {v(KEY)}")
    A(f"v_and_b32 {v(SG)}, 0xffff0000, {v(SG)}")
    A(f"v_mul_f32 {v(SG)}, {f32(-1.4426950408889634)}, {v(SG)}")
    A(f"v_exp_f32 {v(SG)}, {v(SG)}")
    A(f"v_add_f32 {v(SG)}, 1.0, {v(SG)}")
    A(f"v_rcp_f32 {v(SG)}, {v(SG)}")
    A(f"v_cvt_pk_bf16_f32 {v(SG)}, {v(SG)}, {v(SG)}")
    A(f"v_and_b32 {v(SG)}, 0xffff0000, {v(SG)}")
    stamp(2, "s27")
    def rb(r):
        A(f"v_cvt_pk_bf16_f32 {v(r)}, {v(r)}, {v(r)}")
        A(f"v_and_b32 {v(r)}, 0xffff0000, {v(r)}")
    Yv = T + 12
    XO = T + 16
    if opt("hgate", 1):
        loop, done = A.newlabel("Lh"), A.newlabel("Lhd")
        A(f"s_mov_b32 s62, {SPIN}")
        set_exec(0x00FF00FF00FF00FF)
        A.label(loop)
        A(f"buffer_load_dwordx4 {v(HF,4)}, {v(vHF)}, {WS}, s{sH} offen sc1")
        A("s_waitcnt vmcnt(0)")
        any_sentinel(range(HF, HF + 4), T + 6, done)
        spin_tail(loop, 62, opt("hgsleep", 1))
        A.label(done)
    loop, done = A.newlabel("Lh"), A.newlabel("Lhd")
    A(f"s_cmp_lt_u32 s{WV}, 2")
    A(f"s_cselect_b32 s63, 2048, 0")
    A(f"s_add_u32 s63, s63, {12 * 2048}")
    A(f"s_add_u32 s63, s63, s{sH}")
    A(f"s_mov_b32 s62, {SPIN}")
    set_exec(0x00FF00FF00FF00FF)
    A.label(loop)
    for k in range(14):
        if k == 13:
            A(f"buffer_load_dwordx4 {v(HF+4*k,4)}, {v(vHF)}, {WS}, s63 offen sc1")
        else:
            if k % 2 == 0:
                A(f"s_add_u32 s60, s{sH}, {2048 * k}")
            A(f"buffer_load_dwordx4 {v(HF+4*k,4)}, {v(vHF)}, {WS}, s60 offen offset:{2048*(k%2)} sc1")
    CK = T + 6
    HP = opt("hprog", 1)
    def mf(k):
        for par in range(2):
            cc = "0" if k == 0 else v(ACC + 4 * par, 4)
            A(f"v_mfma_f32_16x16x32_bf16 {v(ACC+4*par,4)}, {v(HF+4*k,4)}, {v(DW+8*k+4*par,4)}, {cc}")
    if HP:
        A("s_mov_b64 exec, -1")
        for k in range(14):
            A(f"s_waitcnt vmcnt({13-k})")
            mf(k)
            if k == 0:
                A(f"v_max3_u32 {v(CK)}, {v(HF)}, {v(HF+1)}, {v(HF+2)}")
                A(f"v_max_u32 {v(CK)}, {v(CK)}, {v(HF+3)}")
            else:
                A(f"v_max3_u32 {v(CK)}, {v(CK)}, {v(HF+4*k)}, {v(HF+4*k+1)}")
                A(f"v_max3_u32 {v(CK)}, {v(CK)}, {v(HF+4*k+2)}, {v(HF+4*k+3)}")
        set_exec(0x00FF00FF00FF00FF)
        A(f"v_cmp_eq_u32 vcc, -1, {v(CK)}")
        A(f"s_cbranch_vccz {done}")
    else:
        A("s_waitcnt vmcnt(0)")
        any_sentinel(list(range(HF, HF + 56)), CK, done)
    spin_tail(loop, 62, opt("hsleep", 1))
    A.label(done)
    A("s_mov_b64 exec, -1")
    prio(3)
    stamp(5, "s27")
    Lh2 = A.newlabel("Lfb")
    A(f"s_or_b32 s60, s{sB}, s{WV}")
    A(f"s_or_b32 s60, s60, s{sL}")
    A(f"s_cmp_lg_u32 s60, {0 if opt('hintsrc', 0) == 0 else -1}")
    A(f"s_cbranch_scc1 {Lh2}")
    A(f"v_mov_b32 {v(CK)}, 0")
    A(f"s_mov_b32 s60, {X2_OFF + SEL_OFF + 128}")
    A("s_mov_b64 exec, 1")
    A(f"buffer_store_dword {v(CK)}, {v(CK)}, {WS}, s60 offen sc1")
    A.label(Lh2)
    A("s_mov_b64 exec, -1")
    if not HP:
        for k in range(14):
            mf(k)
    for r in (XNV, XV):
        A(f"v_lshlrev_b32 {v(r)}, s32, {v(r)}")
        A(f"v_and_b32 {v(r)}, 0xffff0000, {v(r)}")
    A(f"v_add_f32 {v(XO)}, {v(XV)}, {v(XNV)}")
    rb(XO)
    if EXACT:
        A(f"v_sub_f32 {v(XO)}, {v(XO)}, {v(ST)}")
        rb(XO)
        A(f"v_mul_f32 {v(XO)}, {v(XO)}, {v(ST+1)}")
        rb(XO)
    else:
        A(f"v_mul_f32 {v(ST)}, {v(ST)}, {v(ST+1)}")
        A(f"v_fma_f32 {v(XO)}, {v(XO)}, {v(ST+1)}, -{v(ST)}")
    set_exec(0xffffffff)
    for r in range(4):
        A(f"ds_write2_b32 {v(vPW)}, {v(ACC+r)}, {v(ACC+4+r)} offset0:{32*r} offset1:{32*r+1}")
    A("s_mov_b64 exec, -1")
    A("s_waitcnt lgkmcnt(0)")
    A("s_barrier")
    A(f"ds_read2st64_b32 {v(Yv,2)}, {v(vPR)} offset0:0 offset1:4")
    A(f"ds_read2st64_b32 {v(Yv+2,2)}, {v(vPR)} offset0:8 offset1:12")
    A("s_waitcnt lgkmcnt(0)")
    A(f"v_pk_add_f32 {v(Yv,2)}, {v(Yv,2)}, {v(Yv+2,2)}")
    A(f"v_add_f32 {v(Yv)}, {v(Yv)}, {v(Yv+1)}")
    rb(Yv)
    A(f"v_mul_f32 {v(Yv)}, {v(Yv)}, {v(SG)}")
    rb(Yv)
    A(f"v_add_f32 {v(Yv)}, {v(Yv)}, {v(XNV)}")
    rb(Yv)
    A(f"v_add_f32 {v(Yv)}, {v(Yv)}, {v(XV)}")
    L2 = A.newlabel("Lfb")
    A(f"s_cmp_lg_u32 s{sL}, 0")
    A(f"s_cbranch_scc1 {L2}")
    A(f"v_permlane32_swap_b32 {v(Yv)}, {v(XO)}")
    A(f"v_cvt_pk_bf16_f32 {v(Yv+1)}, {v(Yv)}, {v(XO)}")
    A(f"v_cvt_pk_f16_f32 {v(Yv)}, {v(Yv)}, {v(XO)}")
    A(f"v_cmp_gt_u32 vcc, 32, v1")
    A(f"v_cndmask_b32 {v(Yv)}, {v(Yv)}, {v(Yv+1)}, vcc")
    A(f"v_min_u32 {v(Yv)}, -2, {v(Yv)}")
    for r in range(NRX):
        A(f"s_mov_b32 s60, {X2_OFF + r * X2REP}")
        A(f"buffer_store_dword {v(Yv)}, {v(vX2)}, {WS}, s60 offen sc1")
    stamp(6, "s27", dbg=(12, FB0))
    A(f"s_add_u32 s{sH}, s{sH}, {2 * HREP}")
    A(f"s_add_u32 s{sRG}, s{sRG}, {NRR * RG_REP}")
    A(f"s_add_u32 s{sT}, s{sT}, {T_SZ}")
    A(f"s_mov_b32 s{sL}, 1")
    A("s_branch L_FbLoop")
    A.label(L2)
    A(f"v_cvt_pk_bf16_f32 {v(Yv)}, {v(Yv)}, {v(Yv)}")
    A(f"s_movk_i32 s60, 1280")
    A(f"v_mad_u32_u24 {v(Yv+1)}, {v(ROW)}, s60, {v(vO)}")
    A(f"buffer_store_short {v(Yv)}, {v(Yv+1)}, {SRD2}, 0 offen sc1")
    stamp(7, "s27", dbg=(15, FB0))
    A(f"s_or_b32 s60, s{sB}, s{WV}")
    A(f"s_cmp_lg_u32 s60, 0")
    A("s_cbranch_scc1 L_end")
    A(f"v_mov_b32 {v(T)}, s{NONCE}")
    A(f"v_mov_b32 {v(T+1)}, 0")
    A("s_mov_b64 exec, 1")
    A(f"buffer_store_dword {v(T)}, {v(T+1)}, {WS}, 0 offen sc1")
    A.label("L_end")
    A("s_endpgm")

hdr = open("cdna_kernels/%s.s.ref" % NAME).read().split("\n")
head = [l for l in hdr if l.startswith(";") and "@launch" not in l and "Override" not in l and "grid=ceil" not in l]
out = "\n".join(head) + "\n"
out += f"; @launch grid=({NWG},1,1) block=(256,1,1) lds={LDS_BYTES}\n"
out += """
; ---------------------------------------------------------------------------------------------------------
; One persistent launch, 491 co-resident workgroups (2 per CU), four roles chosen by workgroup id:
;   R  (0..255)    8 token rows each: layer norms, residuals, router scores, DFT along the hidden axis
;   C  (256..416)  2 spectrum columns each: DFT along the sequence axis
;   Fa (417..470)  top-8 selection + gate/up projection + SwiGLU for a 32-column slice
;   Fb (471..490)  top-8 selection + down projection + scatter for a 32-column slice
; The Fourier sublayer Real(DFT_seq(DFT_hid(x))) is evaluated with the exact Cooley-Tukey factorisation of the
; two (constant) DFT matrices, 640 = 20 x 32 and 2048 = 32 x 64, as small MFMA products with f16 factors that are
; generated with v_cos/v_sin; pairs of real rows are packed into one complex row and unpacked inside the
; column factor.  The layer-1 expert update of the 8 routed rows enters the second Fourier sublayer as an exact
; rank-8 correction (linearity), so the column pass of layer 2 overlaps the expert MLP.
; Hand-offs between workgroups go through d_ws with write-through (sc1) stores and sc1 loads.  Flags carry a
; per-launch tag derived from the word at d_ws+0; bulk buffers are pre-filled with all-ones by their producer and
; re-read by consumers until every word has landed.  All waits are bounded.
; Generated by the author's own script (hand-written instruction sequences).
; ---------------------------------------------------------------------------------------------------------
""".lstrip("\n")
out += '.amdgcn_target "amdgcn-amd-amdhsa--gfx950"\n.text\n'
out += f".globl {NAME}_kernel\n.p2align 8\n.type {NAME}_kernel,@function\n{NAME}_kernel:\n"
prologue(); roleR(); roleC(); roleFa(); roleFb()
out += A.text()
out += "L_code_end:\n"
out = out.replace(".text\n", ".text\n.set CODE_LINES, 256\n.set CODE_LINES2, 100\n", 1)
out += f""".section .rodata,"a"
.p2align 6
.amdhsa_kernel {NAME}_kernel
  .amdhsa_next_free_vgpr 256
  .amdhsa_next_free_sgpr 102
  .amdhsa_accum_offset 256
  .amdhsa_group_segment_fixed_size 0
  .amdhsa_kernarg_size 104
  .amdhsa_user_sgpr_count 2
  .amdhsa_user_sgpr_kernarg_segment_ptr 1
  .amdhsa_system_sgpr_workgroup_id_x 1
  .amdhsa_float_denorm_mode_32 3
.end_amdhsa_kernel
"""
import subprocess, tempfile, os, re
with tempfile.TemporaryDirectory() as td:
    open(td + "/a.s", "w").write(out)
    subprocess.check_call(["clang", "-x", "assembler", "-target", "amdgcn-amd-amdhsa", "-mcpu=gfx950", "-c", td + "/a.s", "-o", td + "/a.o"])
    hd = subprocess.check_output(["llvm-objdump", "-h", td + "/a.o"]).decode()
    size = int(re.search(r"\.text\s+([0-9a-f]+)", hd).group(1), 16)
out = out.replace(".set CODE_LINES, 256", ".set CODE_LINES, %d" % min(256, size // 128))
out = out.replace(".set CODE_LINES2, 100", ".set CODE_LINES2, %d" % max(0, size // 128 - 256))
print("code bytes:", size, file=sys.stderr)
dst = [a for a in sys.argv[1:] if not a.startswith("--")]
open(dst[0] if dst else "cdna_kernels/%s.s" % NAME, "w").write(out)
print("instructions:", A.ninstr, file=sys.stderr)
```

```python
import sys, struct
from asmb import Asm

NAME = "interleave_layers__spectral_fnet__moe_arch_mod__prompt"
def opt(name, default):
    for a in sys.argv:
        if a.startswith("--%s=" % name):
            return int(a.split("=")[1])
    return default
STAMPS = "--stamps" in sys.argv
DSTAMPS = "--dstamps" in sys.argv
MSTAMPS = "--mstamps" in sys.argv
EXACT = opt("exact", 0)
EXACT1 = opt("exact1", 0)
GATE = opt("gate", 1)
NR, NC, NFA, NFB = 256, 161, 54, 20
C0, FA0, FB0, NWG = 256, 417, 471, 491
FSH = opt("fsh", 6); FREP = 16 << FSH
FL_OFF = 0x1000; NREP = opt("nrep", 16)
RESET_OFF = 0x70000
H_OFF = 0x70000; HREP = 0x7000
X2_OFF = 0x90000; X2REP = 0x5200; NRX = opt("nrx", 1); SEL_OFF = 0x5000
RSH = opt("rsh", 6)
RG_OFF = 0xA0000; NRR = opt("nrr", 8); RG_REP = 256 << RSH
CNT_OFF = 0xF8000
WROW = 10368
W_OFF = 0x100000; W_SZ = 0x290000
Y_OFF = 0x640000; Y_SZ = 0x160000; YM_OFF = 322 * 4096
T_OFF = 0x900000; T_REC = 2688; T_SZ = 2048 * T_REC
ST_OFF = 0x1400000
WS_BYTES = 0x1500000
NONCE_C = 0x9E3779B9
SPIN = 40000
LDS_BYTES = 53248
assert FL_OFF + 4 * NREP * FREP <= 0x70000 and RG_OFF + 2 * NRR * RG_REP <= 0xF0000
PSLEEP = opt("psleep", 0)
EARLY_R = opt("earlyr", 1)
EARLY_C = opt("earlyc", 2)
PRIO = opt("prio", 1)
DRAIN2 = opt("drain2", 0)
AWR = opt("awr", 3)
PPART = opt("ppart", 3)
DRAIN0 = opt("drain0", 0)
def prio(n):
    if PRIO:
        A(f"s_setprio {n}")

def f32(x):
    return "0x%08x" % struct.unpack("<I", struct.pack("<f", x))[0]
def v(i, n=1):
    return "v%d" % i if n == 1 else "v[%d:%d]" % (i, i + n - 1)
def s(i, n=1):
    return "s%d" % i if n == 1 else "s[%d:%d]" % (i, i + n - 1)

A = Asm()
WS = "s[4:7]"; SRD1 = "s[8:11]"; SRD2 = "s[12:15]"; SRD3 = "s[16:19]"
NONCE = 20; WV = 21

def srd(base, ptr, nbytes):
    A(f"s_mov_b32 s{base}, s{ptr}")
    A(f"s_and_b32 s{base+1}, s{ptr+1}, 0xffff")
    A(f"s_mov_b32 s{base+2}, {nbytes}")
    A(f"s_mov_b32 s{base+3}, 0x00020000")

def set_exec(m):
    A(f"s_mov_b32 exec_lo, 0x{m & 0xffffffff:x}")
    A(f"s_mov_b32 exec_hi, 0x{m >> 32:x}")

def stamp(idx, lay=None, dbg=None):
    if MSTAMPS and dbg is not None:
        L = A.newlabel("Lst")
        A(f"s_mov_b32 s97, s{WV}")
        if len(dbg) > 2:
            A(f"s_sub_u32 s96, {lay}, {dbg[2]}")
            A(f"s_or_b32 s97, s97, s96")
        A(f"s_cmp_lg_u32 s97, 0")
        A(f"s_cbranch_scc1 {L}")
        A("s_memrealtime s[98:99]")
        A("s_waitcnt lgkmcnt(0)")
        A("s_and_b32 s98, s98, 0x7fffffff")
        A("v_mov_b32 v254, s98")
        A("v_mov_b32 v253, 0")
        A("s_mov_b64 exec, 1")
        if dbg[0] == 0:
            A(f"buffer_atomic_umax v254, v253, s[92:95], 0 offen offset:4")
            A("v_not_b32 v254, v254")
        if dbg[0] != 1:
            A(f"buffer_atomic_umax v254, v253, s[92:95], 0 offen offset:{dbg[0] * 4}")
        A("s_mov_b64 exec, -1")
        A.label(L)
    if DSTAMPS and dbg is not None:
        L = A.newlabel("Lst")
        A(f"s_lshl_b32 s97, s{WV}, 16")
        A(f"s_or_b32 s97, s97, s2")
        if len(dbg) > 2:
            A(f"s_lshl_b32 s96, {lay}, 20")
            A(f"s_or_b32 s97, s97, s96")
        A(f"s_cmp_lg_u32 s97, {dbg[1] + ((dbg[2] << 20) if len(dbg) > 2 else 0)}")
        A(f"s_cbranch_scc1 {L}")
        A("s_memrealtime s[98:99]")
        A("s_waitcnt lgkmcnt(0)")
        A("v_mov_b32 v254, s98")
        A("v_mov_b32 v253, 0")
        A("s_mov_b64 exec, 1")
        A(f"buffer_store_dword v254, v253, s[92:95], 0 offen offset:{dbg[0] * 4}")
        A("s_mov_b64 exec, -1")
        A.label(L)
    if not STAMPS:
        return
    L = A.newlabel("Lst")
    A(f"s_cmp_lg_u32 s{WV}, 0")
    A(f"s_cbranch_scc1 {L}")
    A("s_memrealtime s[98:99]")
    A("s_memtime s[100:101]")
    A("s_waitcnt lgkmcnt(0)")
    A("v_mov_b32 v254, s98")
    A("v_mov_b32 v255, s100")
    A("v_mov_b32 v253, 0")
    A("s_lshl_b32 s97, s2, 9")
    A(f"s_add_u32 s97, s97, {ST_OFF + idx * 8}")
    if lay is not None:
        A(f"s_lshl_b32 s96, {lay}, 6")
        A("s_add_u32 s97, s97, s96")
    A("s_mov_b64 exec, 1")
    A(f"buffer_store_dwordx2 v[254:255], v253, {WS}, s97 offen")
    A("s_mov_b64 exec, -1")
    A.label(L)

def spin_tail(loop, cnt, sleep=1):
    if sleep:
        A(f"s_sleep {sleep}")
    A(f"s_sub_u32 s{cnt}, s{cnt}, 1")
    A(f"s_cmp_lg_u32 s{cnt}, 0")
    A(f"s_cbranch_scc1 {loop}")

def any_sentinel(regs, t, done):
    regs = list(regs)
    A(f"v_max3_u32 {v(t)}, {v(regs[0])}, {v(regs[1])}, {v(regs[2])}")
    k = 3
    while k + 1 < len(regs):
        A(f"v_max3_u32 {v(t)}, {v(t)}, {v(regs[k])}, {v(regs[k+1])}")
        k += 2
    if k < len(regs):
        A(f"v_max_u32 {v(t)}, {v(t)}, {v(regs[k])}")
    A(f"v_cmp_eq_u32 vcc, -1, {v(t)}")
    A(f"s_cbranch_vccz {done}")

def poll_flags(k, srep, t, sleep=None):
    loop, done = A.newlabel("Lpoll"), A.newlabel("Lpolld")
    A(f"s_cmp_lg_u32 s{WV}, 0")
    A(f"s_cbranch_scc1 {done}")
    if isinstance(k, int):
        A(f"s_add_u32 s60, s{srep}, {FL_OFF + k * NREP * FREP}")
    else:
        A(f"s_mul_i32 s60, {k}, {NREP * FREP}")
        A(f"s_add_u32 s60, s60, s{srep}")
        A(f"s_add_u32 s60, s60, {FL_OFF}")
    A(f"s_add_u32 s61, s{NONCE}, {k}")
    A(f"v_and_b32 {v(t+1)}, 15, v1")
    A(f"v_lshlrev_b32 {v(t+1)}, {FSH}, {v(t+1)}")
    A(f"s_mov_b32 s62, {SPIN}")
    A.label(loop)
    A(f"buffer_load_dword {v(t)}, {v(t+1)}, {WS}, s60 offen sc1")
    A("s_waitcnt vmcnt(0)")
    A(f"v_cmp_ne_u32 vcc, s61, {v(t)}")
    A(f"s_cbranch_vccz {done}")
    spin_tail(loop, 62, PSLEEP if sleep is None else sleep)
    A.label(done)
    A("s_barrier")

def cnt_init(sshard, ks, t):
    for k in ks:
        A(f"s_add_u32 s60, s{sshard}, {16 * k}")
        A(f"s_lshl_b32 s60, s60, 7")
        A(f"s_add_u32 s60, s60, {CNT_OFF}")
        A(f"s_add_u32 s61, s{NONCE}, {k}")
        A(f"v_mov_b32 {v(t)}, 0")
        A(f"v_mov_b32 {v(t+1)}, s61")
        A(f"v_mov_b32 {v(t+2)}, 0")
        A("s_mov_b64 exec, 1")
        A(f"buffer_store_dwordx2 {v(t,2)}, {v(t+2)}, {WS}, s60 offen sc1")
        A("s_mov_b64 exec, -1")

def arrive_issue(k, sshard, t, aw=0):
    L = A.newlabel("Larr")
    A(f"s_cmp_lg_u32 s{WV}, {aw}")
    A(f"s_cbranch_scc1 {L}")
    if isinstance(k, int):
        A(f"s_add_u32 s66, s{sshard}, {16 * k}")
    else:
        A(f"s_lshl_b32 s66, {k}, 4")
        A(f"s_add_u32 s66, s66, s{sshard}")
    A(f"s_lshl_b32 s66, s66, 7")
    A(f"s_add_u32 s66, s66, {CNT_OFF}")
    A(f"v_mov_b32 {v(t)}, 1")
    A(f"v_mov_b32 {v(t+1)}, 0")
    A(f"v_mov_b32 {v(t+2)}, 0")
    A("s_mov_b64 exec, 1")
    A(f"buffer_atomic_add_x2 {v(t,2)}, {v(t+2)}, {WS}, s66 offen sc0")
    A("s_mov_b64 exec, -1")
    A.label(L)

def arrive_finish(k, sshard, slast, t, younger, aw=0, mark=None):
    L, again, chk = A.newlabel("Lsig"), A.newlabel("Lsiga"), A.newlabel("Lsigc")
    A(f"s_cmp_lg_u32 s{WV}, {aw}")
    A(f"s_cbranch_scc1 {L}")
    if isinstance(k, int):
        A(f"s_lshl_b32 s67, s{sshard}, {FSH}")
        A(f"s_add_u32 s67, s67, {FL_OFF + k * NREP * FREP}")
    else:
        A(f"s_mul_i32 s67, {k}, {NREP * FREP}")
        A(f"s_lshl_b32 s68, s{sshard}, {FSH}")
        A(f"s_add_u32 s67, s67, s68")
        A(f"s_add_u32 s67, s67, {FL_OFF}")
    A(f"s_add_u32 s68, s{NONCE}, {k}")
    A(f"v_lshlrev_b32 {v(t+3)}, {FSH + 4}, v1")
    A(f"v_mov_b32 {v(t+4)}, s68")
    A(f"s_mov_b32 s69, {SPIN}")
    if isinstance(younger, tuple):
        A(f"s_waitcnt vmcnt({younger[2]})")
        A(f"s_cmp_eq_u32 {younger[0]}, {younger[1]}")
        A(f"s_cbranch_scc1 {chk}")
        A("s_waitcnt vmcnt(0)")
    else:
        A(f"s_waitcnt vmcnt({younger})")
    A(f"s_branch {chk}")
    A.label(again)
    A(f"s_sub_u32 s69, s69, 1")
    A(f"s_cmp_eq_u32 s69, 0")
    A(f"s_cbranch_scc1 {L}")
    A(f"v_mov_b32 {v(t)}, 1")
    A(f"v_mov_b32 {v(t+1)}, 0")
    A(f"v_mov_b32 {v(t+2)}, 0")
    A("s_mov_b64 exec, 1")
    A(f"buffer_atomic_add_x2 {v(t,2)}, {v(t+2)}, {WS}, s66 offen sc0")
    A("s_mov_b64 exec, -1")
    A("s_waitcnt vmcnt(0)")
    A.label(chk)
    A(f"v_readfirstlane_b32 s65, {v(t+1)}")
    A(f"v_readfirstlane_b32 s64, {v(t)}")
    A(f"s_cmp_lg_u32 s65, s68")
    A(f"s_cbranch_scc1 {again}")
    A(f"s_cmp_lg_u32 s64, {slast}")
    A(f"s_cbranch_scc1 {L}")
    set_exec((1 << NREP) - 1)
    A(f"buffer_store_dword {v(t+4)}, {v(t+3)}, {WS}, s67 offen sc1")
    A("s_mov_b64 exec, -1")
    if mark:
        A(f"s_mov_b32 {mark}, 1")
    A.label(L)

def rnd_pair(a, b, t):
    A(f"v_cvt_pk_bf16_f32 {v(t)}, {v(a)}, {v(b)}")
    A(f"v_lshlrev_b32 {v(a)}, 16, {v(t)}")
    A(f"v_and_b32 {v(b)}, 0xffff0000, {v(t)}")

def sincos(arg, c, sn):
    A(f"v_cos_f32 {v(c)}, {v(arg)}")
    A(f"v_sin_f32 {v(sn)}, {v(arg)}")

def prefetch_weights(t):
    if not opt("pref", 0):
        return
    srd(84, 46, 2211840)
    A(f"v_lshlrev_b32 {v(t)}, 4, v0")
    A(f"s_sub_u32 s60, s2, {C0}")
    for r in range(7):
        Ls, Ld = A.newlabel("Lpf"), A.newlabel("Lpf")
        A(f"s_add_u32 s61, s60, {235 * r}")
        A(f"s_cmp_ge_u32 s61, 1620")
        A(f"s_cbranch_scc1 {Ld}")
        A(f"s_mov_b32 s84, s46")
        A(f"s_and_b32 s85, s47, 0xffff")
        for (lim, p) in ((540, 48), (540, 50)):
            A(f"s_cmp_lt_u32 s61, {lim}")
            A(f"s_cbranch_scc1 {Ls}")
            A(f"s_sub_u32 s61, s61, {lim}")
            A(f"s_mov_b32 s84, s{p}")
            A(f"s_and_b32 s85, s{p+1}, 0xffff")
        A.label(Ls)
        A(f"s_lshl_b32 s61, s61, 12")
        A(f"buffer_load_dwordx4 {v(t+4,4)}, {v(t)}, s[84:87], s61 offen")
        A.label(Ld)

def fb_start(x, d):
    A(f"s_mul_i32 {d}, {x}, 3")
    A(f"s_lshl_b32 s62, {x}, 1")
    A(f"s_add_u32 s62, s62, 3")
    A(f"s_min_u32 {d}, {d}, s62")

def nloads(part):
    return bin(part).count("1")

def warm_weights(t, first, nshare, part):
    ra, rb = -(-640 // nshare), -(-1728 // nshare)
    A("s_and_b32 s61, s2, 7")
    A(f"s_sub_u32 s60, s2, {first}")
    A("s_lshr_b32 s60, s60, 3")
    srd(84, 46, 2211840)
    if part & 5:
        A(f"v_lshrrev_b32 {v(t)}, 2, v0")
        A(f"v_and_b32 {v(t+1)}, 3, v0")
        A(f"v_min_u32 {v(t)}, {ra - 1}, {v(t)}")
        A(f"s_mul_i32 s64, s60, {ra}")
        A(f"v_add_u32 {v(t)}, s64, {v(t)}")
        A("s_mul_i32 s63, s61, 7")
        A("s_sub_u32 s63, s63, 1")
        A("s_max_i32 s63, s63, 0")
        A("s_lshl_b32 s63, s63, 6")
        A("s_and_b32 s63, s63, -128")
        A(f"v_lshl_add_u32 {v(t+1)}, {v(t+1)}, 7, s63")
        A(f"s_movk_i32 s64, 3456")
        A(f"v_mad_u32_u24 {v(t+1)}, {v(t)}, s64, {v(t+1)}")
        if part & 1:
            A(f"buffer_load_dword {v(t+3)}, {v(t+1)}, s[84:87], 0 offen")
        if part & 4:
            A("s_mov_b32 s84, s48")
            A("s_and_b32 s85, s49, 0xffff")
            A(f"buffer_load_dword {v(t+3)}, {v(t+1)}, s[84:87], 0 offen")
    if part & 2:
        A(f"v_lshrrev_b32 {v(t)}, 1, v0")
        A(f"v_and_b32 {v(t+1)}, 1, v0")
        A(f"v_min_u32 {v(t)}, {rb - 1}, {v(t)}")
        A(f"s_mul_i32 s64, s60, {rb}")
        A(f"v_add_u32 {v(t)}, s64, {v(t)}")
        fb_start("s61", "s63")
        A("s_lshl_b32 s63, s63, 6")
        A("s_and_b32 s63, s63, -128")
        A(f"v_lshl_add_u32 {v(t+1)}, {v(t+1)}, 7, s63")
        A(f"s_movk_i32 s64, 1280")
        A(f"v_mad_u32_u24 {v(t+1)}, {v(t)}, s64, {v(t+1)}")
        A("s_mov_b32 s84, s50")
        A("s_and_b32 s85, s51, 0xffff")
        A(f"buffer_load_dword {v(t+3)}, {v(t+1)}, s[84:87], 0 offen")

def warm_coop(t):
    A("s_and_b32 s61, s2, 7")
    A(f"s_sub_u32 s60, s2, {FA0 - 1}")
    A("s_lshr_b32 s60, s60, 3")
    A("s_cmp_eq_u32 s61, 0")
    A("s_cselect_b32 s62, 1, 0")
    A("s_sub_u32 s60, s60, s62")
    A("s_min_u32 s60, s60, 8")
    A("s_mul_i32 s63, s61, 7")
    A("s_sub_u32 s63, s63, 1")
    A("s_max_i32 s63, s63, 0")
    A("s_lshl_b32 s63, s63, 6")
    A("s_and_b32 s63, s63, -128")
    A(f"v_and_b32 {v(t+1)}, 3, v0")
    A(f"v_lshl_add_u32 {v(t+1)}, {v(t+1)}, 7, s63")
    A(f"s_mul_i32 s64, s60, 72")
    A(f"s_movk_i32 s65, 3456")
    srd(84, 46, 2211840)
    srd(88, 48, 2211840)
    for p in range(2 if opt("coop", 4) & 5 else 0):
        A(f"v_lshrrev_b32 {v(t)}, 2, v0")
        A(f"v_add_u32 {v(t)}, {64 * p}, {v(t)}")
        A(f"v_min_u32 {v(t)}, 71, {v(t)}")
        A(f"v_add_u32 {v(t)}, s64, {v(t)}")
        A(f"v_mad_u32_u24 {v(t)}, {v(t)}, s65, {v(t+1)}")
        if p == 1:
            set_exec(0xffffffff)
        if opt("coop", 4) & 1:
            A(f"buffer_load_dword {v(t+3)}, {v(t)}, s[84:87], 0 offen")
        if opt("coop", 4) & 4:
            A(f"buffer_load_dword {v(t+3)}, {v(t)}, s[88:91], 0 offen")
    A("s_mov_b64 exec, -1")
    fb_start("s61", "s63")
    A("s_lshl_b32 s63, s63, 6")
    A("s_and_b32 s63, s63, -128")
    A(f"v_and_b32 {v(t+1)}, 1, v0")
    A(f"v_lshl_add_u32 {v(t+1)}, {v(t+1)}, 7, s63")
    A(f"s_mul_i32 s64, s60, 192")
    A(f"s_movk_i32 s65, 1280")
    A("s_mov_b32 s84, s50")
    A("s_and_b32 s85, s51, 0xffff")
    for p in range(2 if opt("coop", 4) & 2 else 0):
        A(f"v_lshrrev_b32 {v(t)}, 1, v0")
        A(f"v_add_u32 {v(t)}, {128 * p}, {v(t)}")
        A(f"v_min_u32 {v(t)}, 191, {v(t)}")
        A(f"v_add_u32 {v(t)}, s64, {v(t)}")
        A(f"v_mad_u32_u24 {v(t)}, {v(t)}, s65, {v(t+1)}")
        A(f"buffer_load_dword {v(t+3)}, {v(t)}, s[84:87], 0 offen")
    A("s_waitcnt vmcnt(0)")

def touch(t, base, nbytes):
    if not opt("touch", 0):
        return
    n = (nbytes + 65535) >> 16
    assert n <= 256
    A(f"v_min_u32 {v(t)}, {n - 1}, v0")
    A(f"v_lshlrev_b32 {v(t)}, 16, {v(t)}")
    A(f"s_mov_b32 s60, {base + opt('touchoff', 2624)}")
    A(f"buffer_load_dword {v(t)}, {v(t)}, {WS}, s60 offen")
    A("s_waitcnt vmcnt(0)")

def nonce_load(r):
    A(f"v_mov_b32 {v(r)}, 0")
    A(f"buffer_load_dword {v(r)}, {v(r)}, {WS}, 0 offen")

def nonce_take(r):
    A(f"v_readfirstlane_b32 s{NONCE}, {v(r)}")
    A(f"s_add_u32 s{NONCE}, s{NONCE}, 0x{NONCE_C:x}")

def prologue():
    A(f"s_cmp_ge_u32 s2, {NWG}")
    A("s_cbranch_scc1 L_end")
    if opt("t0", 0):
        A("s_memrealtime s[90:91]")
    A("s_load_dwordx2 s[40:41], s[0:1], 96")
    A("s_load_dwordx2 s[42:43], s[0:1], 0")
    A("s_load_dwordx4 s[44:47], s[0:1], 48")
    A("s_load_dwordx4 s[48:51], s[0:1], 64")
    A("s_load_dwordx4 s[52:55], s[0:1], 80")
    if opt("codepf", 1):
        A("s_getpc_b64 s[60:61]")
        A("s_and_b32 s60, s60, -256")
        A("v_lshlrev_b32 v2, 7, v0")
        A("v_mov_b32 v3, s61")
        A("v_add_co_u32 v2, vcc, s60, v2")
        A("v_addc_co_u32 v3, vcc, 0, v3, vcc")
        A("v_cmp_gt_u32 vcc, CODE_LINES, v0")
        A("s_and_saveexec_b64 s[62:63], vcc")
        A("s_cbranch_execz L_nopf")
        A("global_load_dword v255, v[2:3], off")
        A("v_add_co_u32 v2, vcc, 0x8000, v2")
        A("v_addc_co_u32 v3, vcc, 0, v3, vcc")
        A("v_cmp_gt_u32 vcc, CODE_LINES2, v0")
        A("s_and_b64 exec, exec, vcc")
        A("s_cbranch_execz L_nopf")
        A("global_load_dword v255, v[2:3], off")
        A.label("L_nopf")
        A("s_mov_b64 exec, s[62:63]")
    A("v_lshrrev_b32 v2, 6, v0")
    A("v_and_b32 v1, 63, v0")
    A(f"v_readfirstlane_b32 s{WV}, v2")
    A("s_waitcnt lgkmcnt(0)")
    srd(4, 40, WS_BYTES)
    if DSTAMPS or MSTAMPS:
        srd(92, 54, 256)
    stamp(31, dbg=(0, 0))
    if opt("t0", 0):
        L = A.newlabel("Lt0")
        A(f"s_lshl_b32 s97, s{WV}, 16")
        A(f"s_or_b32 s97, s97, s2")
        A(f"s_cmp_lg_u32 s97, 0")
        A(f"s_cbranch_scc1 {L}")
        A("v_mov_b32 v254, s90")
        A("v_mov_b32 v253, 0")
        A("s_mov_b64 exec, 1")
        A(f"buffer_store_dword v254, v253, s[92:95], 0 offen offset:4")
        A("s_mov_b64 exec, -1")
        A.label(L)
    A(f"s_cmp_lt_u32 s2, {C0}")
    A("s_cbranch_scc1 L_roleR")
    A(f"s_cmp_lt_u32 s2, {FA0}")
    A("s_cbranch_scc1 L_roleC")
    A(f"s_cmp_lt_u32 s2, {FB0}")
    A("s_cbranch_scc1 L_roleFa")
    A("s_branch L_roleFb")

B1R, B1I, TWC, TWS, B2R, B2I, WR, INV = 16, 28, 40, 56, 72, 88, 104, 114
X, XN, MM, RS = 116, 136, 156, 158
ACR, ACI, AF1, AF2, AC2R, AC2I = 160, 176, 192, 204, 220, 236
vX, vY0, vY1, vY2, vKX, vLC, vLYW, vLYR, vLWW, vLWR0, vWG, vTA = 2, 3, 4, 5, 6, 7, 8, 9, 10, 11, 14, 15
vTB, vWG1 = 252, 115
sRHO, sA, sS2, sRA, sME, sREP, sXO, sWB, sTB, sP, sS, sQ = 22, 23, 24, 25, 26, 27, 28, 29, 30, 32, 34, 36
sSEL = 80
s32f = 38
sTAU = 39
LDS_Y, LDS_W, LDS_NEW, LDS_KX, LDS_CONST, LDS_RG = 0, 10240, 21504, 31744, 24576, 52224

def reduce_tail(r):
    for k in (8, 4, 2, 1):
        A(f"v_add_f32_dpp {v(r)}, {v(r)}, {v(r)} row_ror:{k} row_mask:0xf bank_mask:0xf")

def tau_of(w, t, scale):
    A(f"v_pk_mul_f32 {v(t,2)}, {v(w,2)}, {v(w,2)}")
    for i in range(2, 10, 2):
        A(f"v_pk_fma_f32 {v(t,2)}, {v(w+i,2)}, {v(w+i,2)}, {v(t,2)}")
    A(f"v_add_f32 {v(t)}, {v(t)}, {v(t+1)}")
    for sw in ("32", "16"):
        A(f"v_mov_b32 {v(t+1)}, {v(t)}")
        A(f"v_permlane{sw}_swap_b32 {v(t)}, {v(t+1)}")
        A(f"v_add_f32 {v(t)}, {v(t)}, {v(t+1)}")
    reduce_tail(t)
    A(f"v_sqrt_f32 {v(t)}, {v(t)}")
    A(f"v_mul_f32 {v(t)}, {f32(scale * opt('tau', 200) / 100)}, {v(t)}")

def ln_stats(xb, t):
    A.comment("layer-norm statistics (pivot-shifted sums; mean, variance, +eps and sqrt rounded to bf16 like the reference)")
    S_, Q_, D0, D1 = t, t + 2, t + 4, t + 6
    A(f"v_readfirstlane_b32 s{sP}, {v(xb)}")
    A(f"v_readfirstlane_b32 s{sP+1}, {v(xb+1)}")
    for i in range(10):
        D = S_ if i == 0 else (D0 if i % 2 else D1)
        A(f"v_pk_add_f32 {v(D,2)}, {v(xb+2*i,2)}, {s(sP,2)} neg_lo:[0,1] neg_hi:[0,1]")
        if i == 0:
            A(f"v_pk_mul_f32 {v(Q_,2)}, {v(D,2)}, {v(D,2)}")
        else:
            A(f"v_pk_add_f32 {v(S_,2)}, {v(S_,2)}, {v(D,2)}")
            A(f"v_pk_fma_f32 {v(Q_,2)}, {v(D,2)}, {v(D,2)}, {v(Q_,2)}")
    A(f"v_permlane32_swap_b32 {v(S_)}, {v(S_+1)}")
    A(f"v_permlane32_swap_b32 {v(Q_)}, {v(Q_+1)}")
    A(f"v_add_f32 {v(S_)}, {v(S_)}, {v(S_+1)}")
    A(f"v_add_f32 {v(Q_)}, {v(Q_)}, {v(Q_+1)}")
    A(f"v_permlane16_swap_b32 {v(S_)}, {v(Q_)}")
    A(f"v_add_f32 {v(S_)}, {v(S_)}, {v(Q_)}")
    reduce_tail(S_)
    A(f"v_readlane_b32 s{sS}, {v(S_)}, 0")
    A(f"v_readlane_b32 s{sS+1}, {v(S_)}, 32")
    A(f"v_readlane_b32 s{sQ}, {v(S_)}, 16")
    A(f"v_readlane_b32 s{sQ+1}, {v(S_)}, 48")
    A(f"v_pk_mul_f32 {v(MM,2)}, {s(sS,2)}, {v(INV,2)} op_sel_hi:[1,0]")
    A(f"v_pk_mul_f32 {v(RS,2)}, {s(sQ,2)}, {v(INV,2)} op_sel_hi:[1,0]")
    A(f"v_pk_fma_f32 {v(RS,2)}, {v(MM,2)}, {v(MM,2)}, {v(RS,2)} neg_lo:[1,0,0] neg_hi:[1,0,0]")
    A(f"v_pk_add_f32 {v(MM,2)}, {v(MM,2)}, {s(sP,2)}")
    A(f"v_max_f32 {v(RS)}, 0, {v(RS)}")
    A(f"v_max_f32 {v(RS+1)}, 0, {v(RS+1)}")
    rnd_pair(RS, RS + 1, D0)
    A(f"v_add_f32 {v(RS)}, {f32(1e-5)}, {v(RS)}")
    A(f"v_add_f32 {v(RS+1)}, {f32(1e-5)}, {v(RS+1)}")
    rnd_pair(RS, RS + 1, D0)
    A(f"v_sqrt_f32 {v(RS)}, {v(RS)}")
    A(f"v_sqrt_f32 {v(RS+1)}, {v(RS+1)}")
    rnd_pair(MM, MM + 1, D1)
    rnd_pair(RS, RS + 1, D0)
    A(f"v_rcp_f32 {v(RS)}, {v(RS)}")
    A(f"v_rcp_f32 {v(RS+1)}, {v(RS+1)}")

def ln_center_scale(xb, zb, t, exact=True):
    if not exact:
        A(f"v_pk_mul_f32 {v(t,2)}, {v(MM,2)}, {v(RS,2)} neg_lo:[1,0] neg_hi:[1,0]")
        for i in range(10):
            A(f"v_pk_fma_f32 {v(zb+2*i,2)}, {v(xb+2*i,2)}, {v(RS,2)}, {v(t,2)}")
        return
    for i in range(10):
        A(f"v_pk_add_f32 {v(zb+2*i,2)}, {v(xb+2*i,2)}, {v(MM,2)} neg_lo:[0,1] neg_hi:[0,1]")
        if exact:
            rnd_pair(zb + 2 * i, zb + 2 * i + 1, t + (i % 4))
    for i in range(10):
        A(f"v_pk_mul_f32 {v(zb+2*i,2)}, {v(zb+2*i,2)}, {v(RS,2)}")

def pack_rows(zb, pa, pb):
    for u in range(5):
        A(f"v_cvt_pk_bf16_f32 {v(pa+u)}, {v(zb+4*u)}, {v(zb+4*u+2)}")
        A(f"v_cvt_pk_bf16_f32 {v(pb+u)}, {v(zb+4*u+1)}, {v(zb+4*u+3)}")

def unpack_rows(zb, pa, pb):
    for u in range(5):
        A(f"v_lshlrev_b32 {v(zb+4*u)}, 16, {v(pa+u)}")
        A(f"v_and_b32 {v(zb+4*u+2)}, 0xffff0000, {v(pa+u)}")
        A(f"v_lshlrev_b32 {v(zb+4*u+1)}, 16, {v(pb+u)}")
        A(f"v_and_b32 {v(zb+4*u+3)}, 0xffff0000, {v(pb+u)}")

def store_rows(pa, pa4, pb, pb4, off, sb=sTB):
    A(f"buffer_store_dwordx4 {v(pa,4)}, {v(vTA)}, {WS}, s{sb} offen offset:{off} sc1")
    A(f"buffer_store_dword {v(pa4)}, {v(vTB)}, {WS}, s{sb} offen offset:{off} sc1")
    A(f"buffer_store_dwordx4 {v(pb,4)}, {v(vTA)}, {WS}, s{sb+1} offen offset:{off} sc1")
    A(f"buffer_store_dword {v(pb4)}, {v(vTB)}, {WS}, s{sb+1} offen offset:{off} sc1")

def to_f16(zb, t, sub=None):
    for i in range(10):
        if EXACT:
            rnd_pair(zb + 2 * i, zb + 2 * i + 1, t + (i % 4))
        A(f"v_cvt_pk_f16_f32 {v(AF1+i)}, {v(zb+2*i)}, {v(zb+2*i+1)}")
        if sub is not None:
            A(f"v_pk_add_f16 {v(AF1+i)}, {v(AF1+i)}, {v(sub(i))} neg_lo:[0,1] neg_hi:[0,1]")

def row_dft(t, shadow1=None, shadow2=None):
    for kk in range(3):
        c = "0" if kk == 0 else None
        A(f"v_mfma_f32_32x32x16_f16 {v(ACR,16)}, {v(AF1+4*kk,4)}, {v(B1R+4*kk,4)}, {c or v(ACR,16)}")
        A(f"v_mfma_f32_32x32x16_f16 {v(ACI,16)}, {v(AF1+4*kk,4)}, {v(B1I+4*kk,4)}, {c or v(ACI,16)}")
    if shadow1:
        shadow1()
    for kk in range(4):
        for i in (4 * kk, 4 * kk + 2):
            pr, pi = t + (i % 4) * 2, t + (i % 4) * 2 + 2
            A(f"v_pk_mul_f32 {v(pr,2)}, {v(ACR+i,2)}, {v(TWC+i,2)}")
            A(f"v_pk_mul_f32 {v(pi,2)}, {v(ACI+i,2)}, {v(TWC+i,2)}")
            A(f"v_pk_fma_f32 {v(pr,2)}, {v(ACI+i,2)}, {v(TWS+i,2)}, {v(pr,2)}")
            A(f"v_pk_fma_f32 {v(pi,2)}, {v(ACR+i,2)}, {v(TWS+i,2)}, {v(pi,2)} neg_lo:[1,0,0] neg_hi:[1,0,0]")
            A(f"v_cvt_pk_f16_f32 {v(AF2+i)}, {v(pr)}, {v(pi)}")
            A(f"v_cvt_pk_f16_f32 {v(AF2+i+1)}, {v(pr+1)}, {v(pi+1)}")
        c = "0" if kk == 0 else None
        A(f"v_mfma_f32_32x32x16_f16 {v(AC2R,16)}, {v(AF2+4*kk,4)}, {v(B2R+4*kk,4)}, {c or v(AC2R,16)}")
        A(f"v_mfma_f32_32x32x16_f16 {v(AC2I,16)}, {v(AF2+4*kk,4)}, {v(B2I+4*kk,4)}, {c or v(AC2I,16)}")
    if shadow2:
        shadow2()

def W_stores(layer, r0, r1, r2, lds=True):
    L = A.newlabel("Lw2")
    A(f"s_add_u32 s60, s{sWB}, {W_OFF + layer * W_SZ}")
    A(f"s_add_u32 s62, s60, {8192 + 112}")
    if lds:
        A("s_waitcnt lgkmcnt(2)")
    A(f"buffer_store_dwordx4 {v(r0,4)}, {v(vWG)}, {WS}, s60 offen sc1")
    if lds:
        A("s_waitcnt lgkmcnt(0)")
    A(f"buffer_store_dwordx4 {v(r1,4)}, {v(vWG1)}, {WS}, s60 offen sc1")
    A(f"s_cmp_ge_u32 s{WV}, 2")
    A(f"s_cbranch_scc1 {L}")
    if lds:
        A(f"ds_read2st64_b32 {v(r2,2)}, {v(vLWR0+2)} offset0:0 offset1:11")
        A(f"ds_read2st64_b32 {v(r2+2,2)}, {v(vLWR0+2)} offset0:22 offset1:33")
        A("s_waitcnt lgkmcnt(0)")
    A(f"buffer_store_dwordx4 {v(r2,4)}, {v(vWG)}, {WS}, s62 offen sc1")
    A.label(L)

def write_W(layer):
    k = 2 * layer
    for i in range(10):
        A(f"v_cvt_pk_f16_f32 {v(ACR+i)}, {v(AC2R+i)}, {v(AC2I+i)}")
        A(f"ds_write_b32 {v(vLWW)}, {v(ACR+i)} offset:{4*i}")
    A("s_waitcnt lgkmcnt(0)")
    A("s_barrier")
    for j in range(2):
        A(f"ds_read2st64_b32 {v(ACI+4*j,2)}, {v(vLWR0+j)} offset0:0 offset1:11")
        A(f"ds_read2st64_b32 {v(ACI+4*j+2,2)}, {v(vLWR0+j)} offset0:22 offset1:33")
    if EARLY_R == 0:
        arrive_issue(k, sME, AF2)
    W_stores(layer, ACI, ACI + 4, ACI + 8)
    if EARLY_R == 0:
        arrive_finish(k, sME, 15, AF2, 3)
    if (layer == 1 and DRAIN2) or (layer == 0 and DRAIN0):
        A("s_waitcnt vmcnt(0)")
        A("s_barrier")
        arrive_issue(k, sME, AF2)
        arrive_finish(k, sME, 15, AF2, 0)

def stage_Y(layer, first=None, shadow=None):
    c0, c1, c2, t = ACR, ACR + 4, ACR + 8, ACR + 16
    loop, L2, L4, L5, done = [A.newlabel("Ly") for _ in range(5)]
    A(f"s_mov_b32 s60, {Y_OFF + layer * Y_SZ}")
    A(f"s_mov_b32 s62, {SPIN}")
    for k in range(4):
        A(f"v_mov_b32 {v(c2+k)}, 0")
    if first:
        first()
    A("s_mov_b64 vcc, -1")
    A.label(loop)
    A("s_mov_b64 exec, vcc")
    A(f"buffer_load_dwordx4 {v(c0,4)}, {v(vY0)}, {WS}, s60 offen sc1")
    A(f"buffer_load_dwordx4 {v(c1,4)}, {v(vY1)}, {WS}, s60 offen sc1")
    A(f"s_cmp_ge_u32 s{WV}, 2")
    A(f"s_cbranch_scc1 {L2}")
    A(f"buffer_load_dwordx4 {v(c2,4)}, {v(vY2)}, {WS}, s60 offen sc1")
    A.label(L2)
    A("s_mov_b64 exec, -1")
    if shadow:
        Lsh = A.newlabel("Ly")
        A(f"s_cmp_lg_u32 s62, {SPIN}")
        A(f"s_cbranch_scc1 {Lsh}")
        shadow()
        A.label(Lsh)
    A("s_waitcnt vmcnt(0)")
    if layer == 0 or not DRAIN2:
        any_sentinel(range(c0, c0 + 12), t, done)
        spin_tail(loop, 62, opt("ysleep", 0))
    A.label(done)
    A(f"ds_write2st64_b32 {v(vLYW)}, {v(c0)}, {v(c0+1)} offset0:0 offset1:10")
    A(f"ds_write2st64_b32 {v(vLYW)}, {v(c0+2)}, {v(c0+3)} offset0:20 offset1:30")
    A(f"s_cmp_eq_u32 s{WV}, 0")
    A(f"s_cbranch_scc1 {L4}")
    for k in range(4):
        A(f"v_alignbit_b32 {v(t+k)}, {v(c1+3-k)}, {v(c1+3-k)}, 16")
    for k in range(4):
        A(f"v_mov_b32 {v(c1+k)}, {v(t+k)}")
    A.label(L4)
    A(f"ds_write2st64_b32 {v(vLYW)}, {v(c1)}, {v(c1+1)} offset0:4 offset1:14")
    A(f"ds_write2st64_b32 {v(vLYW)}, {v(c1+2)}, {v(c1+3)} offset0:24 offset1:34")
    A(f"s_cmp_ge_u32 s{WV}, 2")
    A(f"s_cbranch_scc1 {L5}")
    for k in range(4):
        A(f"v_alignbit_b32 {v(t+k)}, {v(c2+3-k)}, {v(c2+3-k)}, 16")
    A(f"ds_write2st64_b32 {v(vLYW)}, {v(t)}, {v(t+1)} offset0:8 offset1:18")
    A(f"ds_write2st64_b32 {v(vLYW)}, {v(t+2)}, {v(t+3)} offset0:28 offset1:38")
    A.label(L5)
    A("s_waitcnt lgkmcnt(0)")
    A("s_barrier")

def router_publish(layer, t, pa, pb):
    R_ = t
    for i in range(10):
        os_ = i & 1
        wv = v(WR + (i & ~1), 2)
        if i == 0:
            A(f"v_pk_mul_f32 {v(R_,2)}, {v(XN,2)}, {wv} op_sel:[0,{os_}] op_sel_hi:[1,{os_}]")
        else:
            A(f"v_pk_fma_f32 {v(R_,2)}, {v(XN+2*i,2)}, {wv}, {v(R_,2)} op_sel:[0,{os_},0] op_sel_hi:[1,{os_},1]")
    fill = []
    if not EXACT1:
        for u in range(5):
            fill.append(f"v_cvt_pk_bf16_f32 {v(pa+u)}, {v(XN+4*u)}, {v(XN+4*u+2)}")
            fill.append(f"v_cvt_pk_bf16_f32 {v(pb+u)}, {v(XN+4*u+1)}, {v(XN+4*u+3)}")
    def pad(n=2):
        for _ in range(n):
            if fill:
                A(fill.pop(0))
    pad()
    A(f"v_permlane32_swap_b32 {v(R_)}, {v(R_+1)}")
    A(f"v_add_f32 {v(R_)}, {v(R_)}, {v(R_+1)}")
    A(f"v_mov_b32 {v(R_+1)}, {v(R_)}")
    pad()
    A(f"v_permlane16_swap_b32 {v(R_)}, {v(R_+1)}")
    A(f"v_add_f32 {v(R_)}, {v(R_)}, {v(R_+1)}")
    for k in (8, 4, 2, 1):
        pad()
        A(f"v_add_f32_dpp {v(R_)}, {v(R_)}, {v(R_)} row_ror:{k} row_mask:0xf bank_mask:0xf")
    pad(10)
    A(f"v_cmp_le_f32 vcc, s{sTAU}, {v(R_)}")
    A(f"v_readlane_b32 s71, {v(R_)}, 32")
    A("s_mov_b64 s[56:57], vcc")
    for row, (p_, half) in enumerate(((pa, "vcc_lo"), (pb, "vcc_hi"))):
        Lr = A.newlabel("Lcand")
        A(f"s_cmp_eq_u32 {half}, 0")
        A(f"s_cbranch_scc1 {Lr}")
        A(f"buffer_store_dwordx4 {v(p_,4)}, {v(vTA)}, {WS}, s{sTB+row} offen sc1")
        A(f"buffer_store_dword {v(p_+4)}, {v(vTB)}, {WS}, s{sTB+row} offen sc1")
        A.label(Lr)
    A(f"s_lshl_b32 s70, s{WV}, 2")
    A(f"s_add_u32 s70, s70, {LDS_RG}")
    A(f"v_mov_b32 {v(R_+2)}, s70")
    A(f"v_cvt_pk_bf16_f32 {v(R_)}, {v(R_)}, s71")
    A(f"v_lshrrev_b32 {v(R_+1)}, 15, {v(R_)}")
    A(f"v_and_b32 {v(R_+1)}, 0x10001, {v(R_+1)}")
    A(f"v_mul_u32_u24 {v(R_+1)}, 0x7fff, {v(R_+1)}")
    A(f"v_or_b32 {v(R_+1)}, 0x80008000, {v(R_+1)}")
    A(f"v_xor_b32 {v(R_)}, {v(R_)}, {v(R_+1)}")
    A(f"v_min_u32 {v(R_)}, -2, {v(R_)}")
    A("s_mov_b64 exec, 1")
    A(f"ds_write_b32 {v(R_+2)}, {v(R_)}")
    A("s_mov_b64 exec, -1")
    A("s_waitcnt vmcnt(0) lgkmcnt(0)")
    A("s_barrier")
    L = A.newlabel("Lrp")
    A(f"s_cmp_lg_u32 s{WV}, 0")
    A(f"s_cbranch_scc1 {L}")
    A(f"ds_read_b128 {v(R_+4,4)}, {v(R_+2)}")
    A(f"v_lshlrev_b32 {v(R_+2)}, {RSH + 8}, v1")
    A(f"s_lshl_b32 s73, s{sRHO}, {RSH}")
    A(f"s_add_u32 s73, s73, {RG_OFF + layer * NRR * RG_REP}")
    set_exec((1 << NRR) - 1)
    A("s_waitcnt lgkmcnt(0)")
    A(f"buffer_store_dwordx4 {v(R_+4,4)}, {v(R_+2)}, {WS}, s73 offen sc1")
    A("s_mov_b64 exec, -1")
    A.label(L)

def roleR():
    A.label("L_roleR")
    prio(2)
    srd(8, 42, 2621440)
    A("s_and_b32 s60, s2, 7")
    A("s_lshr_b32 s61, s2, 3")
    A(f"s_lshr_b32 s{sA}, s61, 3")
    A("s_and_b32 s61, s61, 7")
    A("s_lshl_b32 s60, s60, 3")
    A("s_sub_u32 s62, 56, s60")
    A(f"s_cmp_lt_u32 s{sA}, 2")
    A("s_cselect_b32 s60, s60, s62")
    A(f"s_add_u32 s{sS2}, s60, s61")
    A(f"s_lshl_b32 s60, s{sA}, 9")
    A(f"s_lshl_b32 s61, s{WV}, 7")
    A(f"s_add_u32 s{sRA}, s60, s61")
    A(f"s_add_u32 s{sRA}, s{sRA}, s{sS2}")
    A(f"s_mul_i32 s{sXO}, s{sRA}, 1280")
    A(f"s_add_u32 s63, s{sXO}, {64 * 1280}")
    T = ACR
    n, h = T, T + 1
    A(f"v_and_b32 {v(n)}, 31, v1")
    A(f"v_lshrrev_b32 {v(h)}, 5, v1")
    A(f"v_mul_u32_u24 {v(vX)}, 640, {v(h)}")
    A(f"v_lshl_add_u32 {v(vX)}, {v(n)}, 1, {v(vX)}")
    XW = opt("xwide", 0)
    XR = AC2R + 8
    if XW:
        A(f"v_lshlrev_b32 {v(XR+12)}, 4, v1")
        A(f"v_add_u32 {v(XR+13)}, {1024 + 63 * 1280}, {v(XR+12)}")
        A(f"v_add_u32 {v(XR+14)}, 1024, {v(XR+12)}")
        A(f"v_cmp_gt_u32 vcc, 16, v1")
        A(f"buffer_load_dwordx4 {v(XR,4)}, {v(XR+12)}, {SRD1}, s{sXO} offen")
        A(f"v_cndmask_b32 {v(XR+14)}, {v(XR+13)}, {v(XR+14)}, vcc")
        A(f"buffer_load_dwordx4 {v(XR+4,4)}, {v(XR+14)}, {SRD1}, s{sXO} offen")
        set_exec(0xffffffff)
        A(f"buffer_load_dwordx4 {v(XR+8,4)}, {v(XR+13)}, {SRD1}, s{sXO} offen offset:1024")
        A("s_mov_b64 exec, -1")
        for i in range(20):
            A(f"v_mov_b32 {v(X+i)}, 0")
    else:
        for i in range(10):
            A(f"v_mov_b32 {v(X+2*i)}, 0")
            A(f"v_mov_b32 {v(X+2*i+1)}, 0")
            A(f"buffer_load_short_d16_hi {v(X+2*i)}, {v(vX)}, {SRD1}, s{sXO} offen offset:{64*i}")
            A(f"buffer_load_short_d16_hi {v(X+2*i+1)}, {v(vX)}, {SRD1}, s63 offen offset:{64*i}")
    NV = XN
    nonce_load(NV)
    ONES = XN + 4
    A(f"s_lshl_b32 s{sRHO}, s{sA}, 6")
    A(f"s_add_u32 s{sRHO}, s{sRHO}, s{sS2}")
    A(f"s_mul_i32 s{sWB}, s{sRHO}, {WROW}")
    for k in range(4):
        A(f"v_mov_b32 {v(ONES+k)}, -1")
    A(f"v_lshlrev_b32 {v(vWG)}, 4, v0")
    A(f"v_add_u32 {v(vWG1)}, {4096 + 112}, {v(vWG)}")
    A(f"v_add_u32 {v(T+2)}, 4096, {v(vWG)}")
    A(f"v_cmp_gt_u32 vcc, 65, v0")
    A(f"v_cndmask_b32 {v(vWG1)}, {v(vWG1)}, {v(T+2)}, vcc")
    A(f"v_lshlrev_b32 {v(T+4)}, 3, v0")
    A(f"s_lshl_b32 s61, s{sRHO}, 11")
    A(f"s_add_u32 s61, s61, {RESET_OFF}")
    A(f"buffer_store_dwordx2 {v(ONES,2)}, {v(T+4)}, {WS}, s61 offen sc1")
    LATEF = opt("latefill", 0)
    if not DRAIN0 and not LATEF:
        W_stores(0, ONES, ONES, ONES, lds=False)
    PREFR = opt("prefr", 0)
    if PREFR == 1:
        warm_weights(AC2R, 0, 32, PPART)
    e1, e1s, base, arg, c_, s_ = T + 6, T + 7, T + 8, T + 9, T + 10, T + 11
    hf_, wf, lc = T + 12, T + 13, T + 14
    G0 = T + 16
    A(f"v_bfe_u32 {v(e1)}, {v(n)}, 2, 1")
    A(f"v_mul_u32_u24 {v(e1)}, 10, {v(e1)}")
    A(f"v_and_b32 {v(arg)}, 3, {v(n)}")
    A(f"v_add_u32 {v(e1)}, {v(e1)}, {v(arg)}")
    A(f"v_lshrrev_b32 {v(arg)}, 3, {v(n)}")
    A(f"v_lshl_add_u32 {v(e1)}, {v(arg)}, 2, {v(e1)}")
    A(f"v_cvt_f32_u32 {v(e1)}, {v(e1)}")
    A(f"v_cvt_f32_u32 {v(hf_)}, {v(h)}")
    A(f"v_cvt_f32_u32 {v(wf)}, s{WV}")
    A(f"s_lshl_b32 s60, s{WV}, 10")
    A(f"s_add_u32 s60, s60, {LDS_CONST}")
    A(f"v_lshl_add_u32 {v(lc)}, v1, 4, s60")
    A(f"v_mul_f32 {v(e1s)}, {f32(1/20)}, {v(e1)}")
    A(f"v_mul_f32 {v(base)}, {f32(10.0)}, {v(hf_)}")
    A(f"v_fma_f32 {v(base)}, 4.0, {v(wf)}, {v(base)}")
    A(f"v_mul_f32 {v(base)}, {v(e1s)}, {v(base)}")
    A(f"s_cmp_lt_u32 s{WV}, 2")
    A(f"s_cselect_b64 s[64:65], -1, 0")
    for r in range(4):
        A(f"v_fmamk_f32 {v(arg)}, {v(e1s)}, {f32(r)}, {v(base)}")
        sincos(arg, c_, s_)
        A(f"v_cvt_pk_f16_f32 {v(G0+r)}, {v(c_)}, {v(s_)}")
        A(f"v_cvt_pk_f16_f32 {v(G0+4+r)}, -{v(s_)}, {v(c_)}")
        if r >= 2:
            A(f"v_cndmask_b32 {v(G0+r)}, 0, {v(G0+r)}, s[64:65]")
            A(f"v_cndmask_b32 {v(G0+4+r)}, 0, {v(G0+4+r)}, s[64:65]")
    A(f"ds_write_b128 {v(lc)}, {v(G0,4)}")
    A(f"ds_write_b128 {v(lc)}, {v(G0+4,4)} offset:4096")
    A(f"v_mul_f32 {v(wf)}, {f32(8.0)}, {v(wf)}")
    A(f"v_fma_f32 {v(wf)}, 4.0, {v(hf_)}, {v(wf)}")
    A(f"v_mul_f32 {v(e1s)}, {f32(1/640)}, {v(e1)}")
    A(f"v_mul_f32 {v(base)}, {v(e1s)}, {v(wf)}")
    for r in range(4):
        A(f"v_fmamk_f32 {v(arg)}, {v(e1s)}, {f32(r)}, {v(base)}")
        sincos(arg, G0 + 8 + r, G0 + 12 + r)
    A(f"ds_write_b128 {v(lc)}, {v(G0+8,4)} offset:8192")
    A(f"ds_write_b128 {v(lc)}, {v(G0+12,4)} offset:12288")
    A(f"v_cvt_f32_u32 {v(e1s)}, {v(n)}")
    A(f"v_mul_f32 {v(e1s)}, {f32(1/32)}, {v(e1s)}")
    A(f"v_mul_f32 {v(base)}, {v(e1s)}, {v(wf)}")
    for r in range(4):
        A(f"v_fmamk_f32 {v(arg)}, {v(e1s)}, {f32(r)}, {v(base)}")
        sincos(arg, c_, s_)
        A(f"v_cvt_pk_f16_f32 {v(G0+16+r)}, {v(c_)}, {v(s_)}")
        A(f"v_cvt_pk_f16_f32 {v(G0+20+r)}, -{v(s_)}, {v(c_)}")
    A(f"ds_write_b128 {v(lc)}, {v(G0+16,4)} offset:16384")
    A(f"ds_write_b128 {v(lc)}, {v(G0+20,4)} offset:20480")
    A(f"v_mov_b32 {v(AF1+10)}, 0")
    A(f"v_mov_b32 {v(AF1+11)}, 0")
    A(f"v_lshlrev_b32 {v(vLC)}, 4, v1")
    A(f"v_add_u32 {v(vLC)}, {LDS_CONST}, {v(vLC)}")
    A(f"v_mov_b32 {v(INV)}, {f32(1/640)}")
    A(f"s_mov_b32 s{s32f}, {f32(32.0)}")
    A(f"s_and_b32 s{sME}, s2, 15")
    A(f"v_mul_u32_u24 {v(vLWW)}, 21, {v(n)}")
    A(f"v_mad_u32_u24 {v(vLWW)}, {v(h)}, 10, {v(vLWW)}")
    A(f"s_mul_i32 s60, s{WV}, 704")
    A(f"s_add_u32 s60, s60, {LDS_W // 4}")
    A(f"v_add_lshl_u32 {v(vLWW)}, {v(vLWW)}, s60, 2")
    A("s_waitcnt lgkmcnt(0)")
    A("s_barrier")
    for (dst, ng, off) in ((B1R, 3, 0), (B1I, 3, 4096), (TWC, 4, 8192), (TWS, 4, 12288)):
        for gq in range(ng):
            A(f"ds_read_b128 {v(dst+4*gq,4)}, {v(vLC)} offset:{off + 1024*gq}")
    for j in range(3):
        A(f"v_add_u32 {v(arg)}, {256*j}, v0")
        A(f"v_mul_u32_u24 {v(c_)}, 3277, {v(arg)}")
        A(f"v_lshrrev_b32 {v(c_)}, 16, {v(c_)}")
        A(f"v_add_u32 {v(arg)}, {v(arg)}, {v(c_)}")
        A(f"v_lshlrev_b32 {v(arg)}, 2, {v(arg)}")
        A(f"v_add_u32 {v(vLWR0+j)}, {LDS_W}, {v(arg)}")
    A(f"v_lshlrev_b32 {v(vTA)}, 4, v1")
    A(f"v_lshlrev_b32 {v(vTB)}, 2, v1")
    A(f"v_add_u32 {v(vTB)}, 1024, {v(vTB)}")
    A(f"s_mul_i32 s{sTB}, s{sRA}, {T_REC}")
    A(f"s_add_u32 s{sTB}, s{sTB}, {T_OFF}")
    A(f"s_add_u32 s{sTB+1}, s{sTB}, {64 * T_REC}")
    stamp(0, dbg=(1, 0) if not opt("t0", 0) else None)
    ARV = 204
    A(f"s_waitcnt vmcnt({(1 if (DRAIN0 or LATEF) else 3) + (nloads(PPART) if PREFR == 1 else 0)})")
    nonce_take(NV)
    if LATEF:
        W_stores(0, ONES, ONES, ONES, lds=False)
    if XW:
        A(f"s_mul_i32 s60, s{WV}, 2560")
        A(f"v_add_u32 {v(XR+12)}, s60, {v(XR+12)}")
        A(f"v_add_u32 {v(XR+13)}, s60, {v(vX)}")
        A(f"ds_write_b128 {v(XR+12)}, {v(XR,4)}")
        A(f"ds_write_b128 {v(XR+12)}, {v(XR+4,4)} offset:1024")
        set_exec(0xffffffff)
        A(f"ds_write_b128 {v(XR+12)}, {v(XR+8,4)} offset:2048")
        A("s_mov_b64 exec, -1")
        A("s_waitcnt lgkmcnt(3)")
        for i in range(10):
            A(f"ds_read_u16_d16_hi {v(X+2*i)}, {v(XR+13)} offset:{64*i}")
            A(f"ds_read_u16_d16_hi {v(X+2*i+1)}, {v(XR+13)} offset:{1280+64*i}")
            if i == 5:
                A("s_waitcnt lgkmcnt(6)")
        A("s_waitcnt lgkmcnt(0)")
    stamp(10, dbg=(2, 0))
    if EARLY_R == 2:
        arrive_issue(0, sME, ARV)
    ln_stats(X, ACR)
    for (dst, ng, off) in ((B2R, 4, 16384), (B2I, 4, 20480)):
        for gq in range(ng):
            A(f"ds_read_b128 {v(dst+4*gq,4)}, {v(vLC)} offset:{off + 1024*gq}")
    ln_center_scale(X, XN, ACR, EXACT)
    to_f16(XN, ACR)
    if DRAIN0:
        A("s_waitcnt lgkmcnt(0)")
    else:
        A("s_waitcnt vmcnt(0) lgkmcnt(0)")
        A("s_barrier")
        arrive_issue(0, sME, XN + 8, AWR)
    def fill_xn1():
        for k in range(4):
            A(f"v_mov_b32 {v(XN+16+k)}, -1")
        store_rows(XN + 16, XN + 16, XN + 16, XN + 16, 0)
    row_dft(XN, None, (lambda: arrive_finish(0, sME, 15, XN + 8, 0, AWR)) if not DRAIN0 else None)
    stamp(11)
    write_W(0)
    stamp(1, dbg=(3, 0))
    if PREFR == 2:
        warm_weights(AC2R, 0, 32, PPART)
    srd(12, 52, 2621440)
    srd(16, 44, 1280)
    for i in range(10):
        A(f"v_mov_b32 {v(WR+i)}, 0")
        A(f"buffer_load_short_d16_hi {v(WR+i)}, {v(vX)}, {SRD3}, 0 offen offset:{64*i}")
    A(f"v_and_b32 {v(n)}, 31, v1")
    A(f"v_lshrrev_b32 {v(h)}, 5, v1")
    A(f"v_lshlrev_b32 {v(vLYW)}, 2, v0")
    A(f"v_mul_u32_u24 {v(vLYR)}, 320, {v(h)}")
    A(f"s_mul_i32 s60, s{WV}, 640")
    A(f"v_add3_u32 {v(vLYR)}, {v(vLYR)}, {v(n)}, s60")
    A(f"v_lshlrev_b32 {v(vLYR)}, 2, {v(vLYR)}")
    A(f"s_sub_u32 s60, 3, s{sA}")
    A(f"s_lshl_b32 s60, s60, 6")
    A(f"s_sub_u32 s61, 64, s{sS2}")
    A(f"s_add_u32 s60, s60, s61")
    A(f"s_lshl_b32 s60, s60, 4")
    A(f"s_lshl_b32 s61, s{sA}, 4")
    A(f"s_add_u32 s61, s61, {YM_OFF}")
    A(f"s_cmp_eq_u32 s{sS2}, 0")
    A(f"s_cselect_b32 s60, s61, s60")
    A(f"s_cselect_b32 s61, 6, 12")
    A(f"s_lshl_b32 s62, s{sRHO}, 4")
    A(f"v_lshlrev_b32 {v(vY0)}, 12, v0")
    A(f"v_add_u32 {v(vY0)}, s62, {v(vY0)}")
    A(f"v_sub_u32 {v(arg)}, 384, v0")
    A(f"v_lshlrev_b32 {v(arg)}, s61, {v(arg)}")
    A(f"v_add_u32 {v(vY1)}, s60, {v(arg)}")
    A(f"v_add_u32 {v(c_)}, {256 << 12}, {v(vY0)}")
    A(f"v_cmp_gt_u32 vcc, 64, v0")
    A(f"v_cndmask_b32 {v(vY1)}, {v(vY1)}, {v(c_)}, vcc")
    A(f"v_sub_u32 {v(arg)}, 128, v0")
    A(f"v_and_b32 {v(arg)}, 0xff, {v(arg)}")
    A(f"v_lshlrev_b32 {v(arg)}, s61, {v(arg)}")
    A(f"v_add_u32 {v(vY2)}, s60, {v(arg)}")
    A(f"s_mul_i32 s60, s{WV}, 5120")
    A(f"s_add_u32 s60, s60, {LDS_KX}")
    A(f"v_lshl_add_u32 {v(vKX)}, v1, 4, s60")
    A(f"s_and_b32 s{sREP}, s2, {NREP - 1}")
    A(f"s_lshl_b32 s{sREP}, s{sREP}, {FSH + 4}")
    A("s_waitcnt vmcnt(0)")
    tau_of(WR, ACR, 1.0)
    A(f"v_readfirstlane_b32 s{sTAU}, {v(ACR)}")
    if opt("touch", 0) > 1:
        touch(ACR, Y_OFF, 2 * Y_SZ)
    poll_flags(1, sREP, ACR)
    stamp(2, dbg=(7, 0))
    stage_Y(0)
    stamp(13)
    if not DRAIN2:
        for k in range(4):
            A(f"v_mov_b32 {v(AF2+k)}, -1")
        W_stores(1, AF2, AF2, AF2, lds=False)
    for i in range(10):
        A(f"ds_read_b32 {v(ACI+i)}, {v(vLYR)} offset:{128*i}")
    for i in range(10):
        A(f"s_waitcnt lgkmcnt({9-i})")
        A(f"v_fma_mix_f32 {v(X+2*i)}, {v(ACI+i)}, s{s32f}, {v(X+2*i)} op_sel:[0,0,0] op_sel_hi:[1,0,0]")
        A(f"v_fma_mix_f32 {v(X+2*i+1)}, {v(ACI+i)}, s{s32f}, {v(X+2*i+1)} op_sel:[1,0,0] op_sel_hi:[1,0,0]")
    PA, PB = AC2R, AC2R + 8
    pack_rows(X, PA, PB)
    unpack_rows(X, PA, PB)
    A(f"ds_write_b128 {v(vKX)}, {v(PA,4)} offset:2048")
    A(f"ds_write_b128 {v(vKX)}, {v(PB,4)} offset:3072")
    A(f"v_mov_b32 {v(PA+6)}, {v(PA+4)}")
    A(f"v_mov_b32 {v(PA+7)}, {v(PB+4)}")
    ln_stats(X, ACR)
    ln_center_scale(X, XN, ACR, EXACT1)
    if EXACT1:
        pack_rows(XN, PA + 16, PB + 16)
        unpack_rows(XN, PA + 16, PB + 16)
    stamp(14)
    router_publish(0, ACI, PA + 16, PB + 16)
    if not EXACT1:
        unpack_rows(XN, PA + 16, PB + 16)
    stamp(3, dbg=(8, 0))
    E2 = opt("e2", 1)
    if E2 == 1:
        arrive_issue(2, sME, AF2 + 8, AWR)
    A(f"v_mov_b32 {v(PA+4)}, {v(PA+20)}")
    A(f"v_mov_b32 {v(PA+5)}, {v(PB+20)}")
    A(f"ds_write_b128 {v(vKX)}, {v(PA+16,4)}")
    A(f"ds_write_b128 {v(vKX)}, {v(PB+16,4)} offset:1024")
    A(f"ds_write_b128 {v(vKX)}, {v(PA+4,4)} offset:4096")
    if EARLY_R == 2:
        arrive_issue(2, sME, ARV)
    for i in range(10):
        A(f"v_pk_add_f32 {v(X+2*i,2)}, {v(X+2*i,2)}, {v(XN+2*i,2)}")
        rnd_pair(X + 2 * i, X + 2 * i + 1, ACR + (i % 4))
    ln_stats(X, ACR)
    ln_center_scale(X, XN, ACR + 8, EXACT)
    to_f16(XN, ACR + 8)
    if EARLY_R == 2:
        arrive_finish(2, sME, 15, ARV, 0)
    if E2 == 0:
        arrive_issue(2, sME, XN + 14, AWR)
        row_dft(XN, None, lambda: arrive_finish(2, sME, 15, XN + 14, 0, AWR))
    elif E2 == 1:
        row_dft(XN, lambda: arrive_finish(2, sME, 15, AF2 + 8, 0, AWR))
    else:
        row_dft(XN, None, lambda: arrive_finish(2, sME, 15, 250 - 4, 0, AWR))
    stamp(16)
    if not opt("wlate", 0):
        write_W(1)
    stamp(4)
    A(f"s_mov_b32 s74, {X2_OFF}")
    def release(layer, row, stash, with_xn):
        R0 = ACR
        if stash:
            A(f"ds_read_b128 {v(R0,4)}, {v(vKX)} offset:{2048+1024*row}")
            A(f"ds_read_b128 {v(R0+8,4)}, {v(vKX)} offset:4096")
            if with_xn:
                A(f"ds_read_b128 {v(R0+12,4)}, {v(vKX)} offset:{1024*row}")
            x4, x1, n4, n1 = R0, R0 + 10 + row, R0 + 12, R0 + 8 + row
        else:
            P_ = PA if row == 0 else PB
            x4, x1, n4, n1 = P_, P_ + 4, P_ + 16, P_ + 20
        A(f"s_add_u32 s61, s{NONCE}, {6 + layer}")
        A(f"v_mov_b32 {v(R0+4)}, {v(MM+row)}")
        A(f"v_mov_b32 {v(R0+5)}, {v(RS+row)}")
        A(f"v_mov_b32 {v(R0+6)}, s61")
        A(f"v_mov_b32 {v(R0+7)}, s61")
        A("s_waitcnt lgkmcnt(0)")
        if with_xn:
            A(f"buffer_store_dwordx4 {v(n4,4)}, {v(vTA)}, {WS}, s{sTB+row} offen sc1")
            A(f"buffer_store_dword {v(n1)}, {v(vTB)}, {WS}, s{sTB+row} offen sc1")
        A(f"buffer_store_dwordx4 {v(x4,4)}, {v(vTA)}, {WS}, s{sTB+row} offen offset:1280 sc1")
        A(f"buffer_store_dword {v(x1)}, {v(vTB)}, {WS}, s{sTB+row} offen offset:1280 sc1")
        A("s_waitcnt vmcnt(0)")
        A("s_mov_b64 exec, 1")
        A(f"buffer_store_dwordx4 {v(R0+4,4)}, {v(vTA)}, {WS}, s{sTB+row} offen offset:2560 sc1")
        A("s_mov_b64 exec, -1")
    def release_candidates(layer, stash):
        for row in range(2):
            Ln = A.newlabel("Lrel")
            A(f"s_cmp_eq_u32 s{56+row}, 0")
            A(f"s_cbranch_scc1 {Ln}")
            release(layer, row, stash, False)
            A.label(Ln)
    def wait_sel(layer, stash):
        loop, done = A.newlabel("Lsel"), A.newlabel("Lseld")
        T2 = ACR + 16
        A(f"s_mov_b32 s60, {X2_OFF + SEL_OFF + 256 * layer}")
        A(f"v_and_b32 {v(T2)}, 7, v1")
        A(f"v_lshlrev_b32 {v(T2)}, 2, {v(T2)}")
        A(f"s_mov_b32 s62, {SPIN}")
        A.label(loop)
        A(f"buffer_load_dword {v(T2+1)}, {v(T2)}, {WS}, s60 offen sc1")
        A("s_waitcnt vmcnt(0)")
        A(f"v_cmp_eq_u32 vcc, -1, {v(T2+1)}")
        A(f"s_cbranch_vccz {done}")
        spin_tail(loop, 62, opt('selsleep', 4))
        A.label(done)
        for j in range(8):
            A(f"v_readlane_b32 s{sSEL+j}, {v(T2+1)}, {j}")
        for row in range(2):
            A(f"s_add_u32 s60, s{sRA}, {64 * row}")
            A(f"s_mov_b32 s{76+row}, -1")
            for j in range(8):
                A(f"s_cmp_eq_u32 s60, s{sSEL+j}")
                A(f"s_cselect_b32 s{76+row}, {j}, s{76+row}")
            Ln = A.newlabel("Lpush")
            A(f"s_cmp_lt_i32 s{76+row}, 0")
            A(f"s_cbranch_scc1 {Ln}")
            A(f"s_cmp_lg_u32 s{56+row}, 0")
            A(f"s_cbranch_scc1 {Ln}")
            release(layer, row, stash, True)
            A.label(Ln)
    release_candidates(0, True)
    vE0, vDF, vDM, vP2, vNW = vLWW, vLWR0, vLWR0 + 1, vLWR0 + 2, vWG
    n, h = ACR + 8, ACR + 9
    A(f"v_and_b32 {v(n)}, 31, v1")
    A(f"v_lshrrev_b32 {v(h)}, 5, v1")
    A(f"v_mul_u32_u24 {v(vE0)}, 20, {v(n)}")
    A(f"v_mad_u32_u24 {v(vE0)}, {v(h)}, 10, {v(vE0)}")
    vER = vLC
    A(f"v_and_b32 {v(vER)}, 31, {v(vE0)}")
    A(f"v_lshrrev_b32 {v(vDF)}, 5, {v(vE0)}")
    A(f"s_lshl_b32 s60, s{WV}, 2")
    A(f"s_add_u32 s60, s60, {LDS_W}")
    A(f"v_add_u32 {v(vE0)}, {v(vE0)}, {v(vDF)}")
    A(f"v_lshl_add_u32 {v(vE0)}, {v(vE0)}, 4, s60")
    A(f"v_mul_u32_u24 {v(vDF)}, 330, {v(h)}")
    A(f"v_add_u32 {v(vDF)}, {v(vDF)}, {v(n)}")
    A(f"v_sub_u32 {v(vDM)}, 362, {v(vDF)}")
    A(f"v_lshlrev_b32 {v(vDF)}, 4, {v(vDF)}")
    A(f"v_add_u32 {v(vDF)}, {LDS_W}, {v(vDF)}")
    A(f"v_cmp_eq_u32 vcc, 0, {v(n)}")
    A(f"v_addc_co_u32 {v(vDM)}, vcc, 0, {v(vDM)}, vcc")
    A(f"v_lshlrev_b32 {v(vDM)}, 4, {v(vDM)}")
    A(f"v_add_u32 {v(vDM)}, {LDS_W}, {v(vDM)}")
    A(f"s_lshl_b32 s60, s{WV}, 8")
    A(f"v_mul_u32_u24 {v(vP2)}, 10240, {v(h)}")
    A(f"v_lshl_add_u32 {v(vP2)}, {v(n)}, 3, {v(vP2)}")
    A(f"v_add_u32 {v(vP2)}, s60, {v(vP2)}")
    A(f"s_mul_i32 s60, s{WV}, 2560")
    A(f"s_add_u32 s60, s60, {LDS_NEW}")
    A(f"v_lshl_add_u32 {v(vNW)}, v1, 2, s60")
    A(f"s_add_u32 s75, s74, 4096")
    A(f"s_add_u32 s78, s74, 8192")
    ORDER = opt("order", 1)
    def sel_step():
        wait_sel(0, True)
        A(f"s_add_u32 s{sTB}, s{sTB}, {T_SZ}")
        A(f"s_add_u32 s{sTB+1}, s{sTB+1}, {T_SZ}")
        stamp(5)
    CU, CV = XN + 12, XN + 16
    def coefs():
        tr, ca, sa, cb, sb, ar, t0, t1_ = range(AF2, AF2 + 8)
        A(f"v_and_b32 {v(tr)}, 1, v1")
        A(f"v_lshlrev_b32 {v(tr)}, 6, {v(tr)}")
        A(f"v_add_u32 {v(tr)}, s{sRA}, {v(tr)}")
        A(f"s_mov_b32 s64, 0x00300003")
        A(f"s_mov_b32 s65, 0x30000300")
        for p in range(4):
            for (j, cc, ss) in ((2 * p, ca, sa), (2 * p + 1, cb, sb)):
                A(f"v_mul_u32_u24 {v(ar)}, s{sSEL+j}, {v(tr)}")
                A(f"v_and_b32 {v(ar)}, 0x7ff, {v(ar)}")
                A(f"v_cvt_f32_u32 {v(ar)}, {v(ar)}")
                A(f"v_mul_f32 {v(ar)}, {f32(1/2048)}, {v(ar)}")
                sincos(ar, cc, ss)
            A(f"v_sub_f32 {v(t0)}, {v(ca)}, {v(sb)}")
            A(f"v_add_f32 {v(t1_)}, {v(sa)}, {v(cb)}")
            A(f"v_mul_f32 {v(t0)}, 0.5, {v(t0)}")
            A(f"v_mul_f32 {v(t1_)}, 0.5, {v(t1_)}")
            A(f"v_cvt_pk_f16_f32 {v(CU+p)}, {v(t0)}, {v(t1_)}")
            A(f"v_add_f32 {v(t0)}, {v(ca)}, {v(sb)}")
            A(f"v_sub_f32 {v(t1_)}, {v(cb)}, {v(sa)}")
            A(f"v_mul_f32 {v(t0)}, 0.5, {v(t0)}")
            A(f"v_mul_f32 {v(t1_)}, 0.5, {v(t1_)}")
            A(f"v_cvt_pk_f16_f32 {v(CV+p)}, {v(t0)}, {v(t1_)}")
            A(f"v_cndmask_b32 {v(CU+p)}, 0, {v(CU+p)}, s[64:65]")
            A(f"v_cndmask_b32 {v(CV+p)}, 0, {v(CV+p)}, s[64:65]")

    RAW = AC2R
    def x2loads():
        for i in range(10):
            so = ("s74", "s75", "s78")[i // 4]
            A(f"buffer_load_dwordx2 {v(RAW+2*i,2)}, {v(vP2)}, {WS}, {so} offen offset:{1024*(i%4)} sc1")
    def wait_hint():
        loop, done = A.newlabel("Lx2"), A.newlabel("Lx2d")
        A(f"s_mov_b32 s62, {SPIN}")
        A(f"s_add_u32 s60, s74, {SEL_OFF + 128}")
        A(f"v_mov_b32 {v(ACR)}, 0")
        A.label(loop)
        A(f"buffer_load_dword {v(ACR+1)}, {v(ACR)}, {WS}, s60 offen sc1")
        A("s_waitcnt vmcnt(0)")
        A(f"v_cmp_eq_u32 vcc, -1, {v(ACR+1)}")
        A(f"s_cbranch_vccz {done}")
        spin_tail(loop, 62, opt("hintsleep", 2))
        A.label(done)
    alldone = A.newlabel("Lx2a")
    if ORDER == 1:
        poll_flags(3, sREP, ACR)
        stamp(6, dbg=(13, 0))
        stage_Y(1)
        sel_step()
        coefs()
        wait_hint()
    else:
        sel_step()
        coefs()
        poll_flags(3, sREP, ACR)
        wait_hint()
        stamp(6, dbg=(13, 0))
        stage_Y(1, None, x2loads)
        any_sentinel(range(RAW, RAW + 20), ACR, alldone)
    loop, done = A.newlabel("Lx2"), A.newlabel("Lx2d")
    A(f"s_mov_b32 s62, {SPIN}")
    A("s_mov_b64 vcc, -1")
    A.label(loop)
    A("s_mov_b64 exec, vcc")
    x2loads()
    A("s_mov_b64 exec, -1")
    A("s_waitcnt vmcnt(0)")
    any_sentinel(range(RAW, RAW + 20), ACR, done)
    spin_tail(loop, 62, opt("x2sleep", 0))
    A.label(done)
    A.label(alldone)
    stamp(7)
    Z = ACR + 12
    for i in range(10):
        A(f"v_lshlrev_b32 {v(Z+2*i)}, 16, {v(RAW+2*i)}")
        A(f"v_and_b32 {v(Z+2*i+1)}, 0xffff0000, {v(RAW+2*i)}")
    for i in range(10):
        A(f"ds_write_b32 {v(vNW)}, {v(RAW+2*i)} offset:{256*i}")
    ln_stats(Z, ACR + 2)
    ln_center_scale(Z, Z, ACR + 2, EXACT)
    to_f16(Z, ACR + 2, sub=lambda i: RAW + 2 * i + 1)
    CBL = [16 + 4 * i for i in range(6)] + [AF1, AF1 + 4, AF1 + 8, XN + 8]
    WA = TWC
    def shadow1():
        for i in range(10):
            A(f"ds_read_b32 {v(CBL[i]+2)}, {v(vLYR)} offset:{128*i}")
        for i in range(10):
            A(f"s_waitcnt lgkmcnt({9-i})")
            A(f"v_fma_mix_f32 {v(CBL[i])}, {v(CBL[i]+2)}, s{s32f}, {v(X+2*i)} op_sel:[0,0,0] op_sel_hi:[1,0,0]")
            A(f"v_fma_mix_f32 {v(CBL[i]+1)}, {v(CBL[i]+2)}, s{s32f}, {v(X+2*i+1)} op_sel:[1,0,0] op_sel_hi:[1,0,0]")
    def shadow2():
        for i in range(10):
            A(f"v_add_u32 {v(WA+i)}, {i}, {v(vER)}")
            A(f"v_bfe_u32 {v(WA+i)}, {v(WA+i)}, 5, 1")
            A(f"v_lshl_add_u32 {v(WA+i)}, {v(WA+i)}, 4, {v(vE0)}")
    A("s_waitcnt lgkmcnt(0)")
    row_dft(XN, shadow1, shadow2)
    stamp(18)
    for i in range(10):
        A(f"v_cvt_pk_f16_f32 {v(ACR+i)}, {v(AC2R+i)}, {v(AC2I+i)}")
        A(f"ds_write_b32 {v(WA+i)}, {v(ACR+i)} offset:{16*i}")
    A("s_mov_b64 exec, 1")
    A(f"ds_write_b32 {v(vE0)}, {v(ACR)} offset:{660*16}")
    A("s_mov_b64 exec, -1")
    A("s_waitcnt lgkmcnt(0)")
    A("s_barrier")
    FRL = [40 + 4 * q for q in range(16)] + [160 + 4 * q for q in range(4)]
    def corr(k):
        A(f"v_mfma_f32_16x16x32_f16 {v(CBL[k],4)}, {v(CU,4)}, {v(FRL[2*k],4)}, {v(CBL[k],4)}")
        A(f"v_mfma_f32_16x16x32_f16 {v(CBL[k],4)}, {v(CV,4)}, {v(FRL[2*k+1],4)}, {v(CBL[k],4)}")
    for i in range(10):
        A(f"ds_read_b128 {v(FRL[2*i],4)}, {v(vDF)} offset:{528*i}")
        A(f"ds_read_b128 {v(FRL[2*i+1],4)}, {v(vDM)} offset:{528*(9-i)}")
        if i >= 6:
            A(f"s_waitcnt lgkmcnt(12)")
            corr(i - 6)
    for k in range(4, 10):
        A(f"s_waitcnt lgkmcnt({2*(9-k)})")
        corr(k)
    stamp(19)
    for row in range(2):
        Lnext = A.newlabel("Lown")
        A(f"s_cmp_lt_i32 s{76+row}, 0")
        A(f"s_cbranch_scc1 {Lnext}")
        A(f"s_lshr_b32 s62, s{76+row}, 1")
        A("s_mul_i32 s62, s62, 2560")
        A(f"s_add_u32 s62, s62, {LDS_NEW}")
        A(f"s_and_b32 s61, s{76+row}, 1")
        A("s_lshl_b32 s61, s61, 4")
        A("s_sub_u32 s61, 16, s61")
        A(f"v_lshl_add_u32 {v(240)}, v1, 2, s62")
        for i in range(10):
            A(f"ds_read_b32 {v(241+i)}, {v(240)} offset:{256*i}")
        A("s_waitcnt lgkmcnt(0)")
        for i in range(10):
            A(f"v_lshlrev_b32 {v(241+i)}, s61, {v(241+i)}")
            A(f"v_and_b32 {v(241+i)}, 0xffff0000, {v(241+i)}")
            A(f"v_sub_f32 {v(241+i)}, {v(241+i)}, {v(X+2*i+row)}")
            A(f"v_add_f32 {v(CBL[i]+row)}, {v(CBL[i]+row)}, {v(241+i)}")
        A.label(Lnext)
    for u in range(5):
        A(f"v_cvt_pk_bf16_f32 {v(PA+u)}, {v(CBL[2*u])}, {v(CBL[2*u+1])}")
        A(f"v_cvt_pk_bf16_f32 {v(PB+u)}, {v(CBL[2*u]+1)}, {v(CBL[2*u+1]+1)}")
    unpack_rows(X, PA, PB)
    ln_stats(X, ACR)
    ln_center_scale(X, XN, ACR, EXACT1)
    if EXACT1:
        pack_rows(XN, PA + 16, PB + 16)
        unpack_rows(XN, PA + 16, PB + 16)
    stamp(20)
    router_publish(1, ACI + 8, PA + 16, PB + 16)
    if not EXACT1:
        unpack_rows(XN, PA + 16, PB + 16)
    stamp(8, dbg=(14, 0))
    OB = 16
    A(f"s_mul_i32 s60, s{WV}, 2560")
    A(f"v_add_u32 {v(OB)}, s60, {v(vX)}")
    for i in range(10):
        A(f"v_pk_add_f32 {v(X+2*i,2)}, {v(X+2*i,2)}, {v(XN+2*i,2)}")
        A(f"v_cvt_pk_bf16_f32 {v(OB+2+i)}, {v(X+2*i)}, {v(X+2*i+1)}")
        A(f"ds_write_b16 {v(OB)}, {v(OB+2+i)} offset:{64*i}")
        A(f"ds_write_b16_d16_hi {v(OB)}, {v(OB+2+i)} offset:{1280+64*i}")
    A(f"v_lshlrev_b32 {v(OB+1)}, 4, v1")
    A(f"v_add_u32 {v(OB)}, s60, {v(OB+1)}")
    A("s_waitcnt lgkmcnt(0)")
    for k in range(3):
        A(f"ds_read_b128 {v(OB+12+4*k,4)}, {v(OB)} offset:{1024*k}")
    A(f"v_add_u32 {v(OB+2)}, {1024 + 63 * 1280}, {v(OB+1)}")
    A(f"v_add_u32 {v(OB+3)}, 1024, {v(OB+1)}")
    A(f"v_cmp_gt_u32 vcc, 16, v1")
    A(f"v_cndmask_b32 {v(OB+3)}, {v(OB+2)}, {v(OB+3)}, vcc")
    def out_stores():
        A("s_waitcnt lgkmcnt(0)")
        A(f"buffer_store_dwordx4 {v(OB+12,4)}, {v(OB+1)}, {SRD2}, s{sXO} offen sc1")
        A(f"buffer_store_dwordx4 {v(OB+16,4)}, {v(OB+3)}, {SRD2}, s{sXO} offen sc1")
        set_exec(0xffffffff)
        A(f"buffer_store_dwordx4 {v(OB+20,4)}, {v(OB+2)}, {SRD2}, s{sXO} offen offset:1024 sc1")
        A("s_mov_b64 exec, -1")
    OD = opt("outdelay", 0)
    if OD:
        A(f"s_lshl_b32 s73, s{sRHO}, 4")
        A(f"s_add_u32 s73, s73, {RG_OFF + NRR * RG_REP}")
        A(f"v_mov_b32 {v(ACR)}, 0")
        for _ in range(OD):
            A(f"buffer_load_dword {v(ACR+1)}, {v(ACR)}, {WS}, s73 offen sc1")
            A("s_waitcnt vmcnt(0)")
    out_stores()
    release_candidates(1, False)
    wait_sel(1, False)
    stamp(22)
    stamp(9)
    A("s_endpgm")

def roleC():
    A.label("L_roleC")
    B1, TC, TS, A2, DT, RAW, AR, AI, P, AC, O, T = 16, 32, 48, 64, 128, 160, 176, 192, 208, 224, 240, 248
    sC, sCME, sCREP, sK, sW0, sW1, sY, sLAST = 22, 23, 24, 25, 26, 27, 28, 29
    nonce_load(T + 4)
    if opt("prefc", 1) == 1:
        warm_weights(AC, C0, 29, PPART)
    A(f"s_sub_u32 s60, s2, {C0}")
    A("s_and_b32 s61, s60, 7")
    A("s_lshr_b32 s62, s60, 3")
    A("s_lshr_b32 s63, s62, 2")
    A("s_lshl_b32 s63, s63, 5")
    A("s_lshl_b32 s61, s61, 2")
    A("s_and_b32 s62, s62, 3")
    A(f"s_add_u32 s{sC}, s63, s61")
    A(f"s_add_u32 s{sC}, s{sC}, s62")
    A(f"s_and_b32 s{sCME}, s2, 15")
    A(f"s_cmp_eq_u32 s{sCME}, 0")
    A(f"s_cselect_b32 s{sLAST}, 10, 9")
    A(f"s_and_b32 s{sCREP}, s2, {NREP - 1}")
    A(f"s_lshl_b32 s{sCREP}, s{sCREP}, {FSH + 4}")
    n, g, t1, gs, arg, base, st = RAW, RAW + 1, RAW + 2, RAW + 3, RAW + 4, RAW + 5, RAW + 6
    ca, sa, cb, sb, x0, x1 = RAW + 7, RAW + 8, RAW + 9, RAW + 10, RAW + 11, RAW + 12
    A(f"v_and_b32 {v(n)}, 15, v1")
    A(f"v_lshrrev_b32 {v(g)}, 4, v1")
    A(f"s_and_b32 s70, s{WV}, 1")
    A(f"s_lshl_b32 s70, s70, 4")
    A(f"s_lshr_b32 s61, s{WV}, 1")
    A(f"v_lshrrev_b32 v2, 1, v0")
    A(f"v_and_b32 v6, 1, v0")
    A(f"s_lshl_b32 s62, s{sC}, 1")
    A(f"v_add_u32 v3, s62, v6")
    A(f"v_min_u32 v3, 320, v3")
    A(f"v_sub_u32 v4, 640, v3")
    A(f"v_cmp_ne_u32 vcc, 0, v3")
    A(f"v_cndmask_b32 v4, 0, v4, vcc")
    A(f"v_add_u32 v5, 7, v4")
    A(f"v_cmp_lt_u32 vcc, 320, v4")
    A(f"v_cndmask_b32 v4, v4, v5, vcc")
    A(f"v_mul_u32_u24 v5, {WROW}, v2")
    A(f"v_mul_u32_u24 v6, 8256, v6")
    A(f"v_lshl_add_u32 v6, v2, 4, v6")
    A(f"v_lshl_add_u32 v2, v3, 4, v5")
    A(f"v_lshl_add_u32 v3, v4, 4, v5")
    A(f"s_mul_i32 s63, s61, 8256")
    A(f"v_lshlrev_b32 v7, 10, {v(g)}")
    A(f"v_lshl_add_u32 v7, {v(n)}, 4, v7")
    A(f"v_add_u32 v7, s63, v7")
    A(f"s_add_u32 s62, s62, s61")
    A(f"s_lshl_b32 s62, s62, 12")
    A(f"v_lshl_add_u32 v8, {v(g)}, 6, {v(n)}")
    A(f"v_add_u32 v8, s70, v8")
    A(f"v_lshl_add_u32 v8, v8, 4, s62")
    A(f"s_lshr_b32 s62, s62, 6")
    A(f"s_add_u32 s62, s62, {YM_OFF + 48}")
    A(f"v_lshlrev_b32 v9, 4, {v(g)}")
    A(f"v_sub_u32 v9, s62, v9")
    def Y_stores(r0, r1, rm, sy, prep=None):
        A(f"buffer_store_dwordx4 {v(r0,4)}, v8, {WS}, {sy} offen sc1")
        A(f"buffer_store_dwordx4 {v(r1,4)}, v8, {WS}, {sy} offen offset:512 sc1")
        Lm = A.newlabel("Lym")
        A(f"s_bitcmp1_b32 s{WV}, 0")
        A(f"s_cbranch_scc1 {Lm}")
        if prep:
            prep()
        set_exec(0x0001000100010001)
        A(f"buffer_store_dwordx4 {v(rm,4)}, v9, {WS}, {sy} offen sc1")
        A("s_mov_b64 exec, -1")
        A.label(Lm)
    A(f"s_waitcnt vmcnt({nloads(PPART) if opt('prefc', 1) == 1 else 0})")
    nonce_take(T + 4)
    Li = A.newlabel("Lci")
    A(f"s_sub_u32 s60, s2, {C0}")
    A(f"s_lshl_b32 s61, s{WV}, 4")
    A(f"s_or_b32 s60, s60, s61")
    A(f"s_cmp_ge_u32 s60, 16")
    A(f"s_cbranch_scc1 {Li}")
    cnt_init(sCME, range(4), T)
    A.label(Li)
    for k in range(4):
        A(f"v_mov_b32 {v(O+k)}, -1")
    for lay in range(2 if opt("y2fill", 2) == 0 else 1):
        A(f"s_mov_b32 s63, {Y_OFF + lay * Y_SZ}")
        Y_stores(O, O, O, "s63")
    if opt("prefc", 1) == 2:
        warm_weights(AC, C0, 29, PPART)
    A(f"v_add_u32 {v(t1)}, s70, {v(n)}")
    A(f"v_cvt_f32_u32 {v(t1)}, {v(t1)}")
    A(f"v_cvt_f32_u32 {v(gs)}, {v(g)}")
    A(f"v_mul_f32 {v(st)}, {f32(1/32)}, {v(t1)}")
    A(f"v_mul_f32 {v(base)}, {v(st)}, {v(gs)}")
    A(f"v_mul_f32 {v(base)}, {f32(8.0)}, {v(base)}")
    for w in range(4):
        A(f"v_fmamk_f32 {v(arg)}, {v(st)}, {f32(2*w)}, {v(base)}")
        sincos(arg, ca, sa)
        A(f"v_add_f32 {v(arg)}, {v(arg)}, {v(st)}")
        sincos(arg, cb, sb)
        A(f"v_sub_f32 {v(x0)}, {v(ca)}, {v(sb)}")
        A(f"v_add_f32 {v(x1)}, {v(sa)}, {v(cb)}")
        A(f"v_cvt_pk_f16_f32 {v(B1+w)}, {v(x0)}, {v(x1)}")
        A(f"v_cvt_pk_f16_f32 {v(B1+4+w)}, -{v(x1)}, {v(x0)}")
        A(f"v_add_f32 {v(x0)}, {v(ca)}, {v(sb)}")
        A(f"v_sub_f32 {v(x1)}, {v(cb)}, {v(sa)}")
        A(f"v_cvt_pk_f16_f32 {v(B1+8+w)}, {v(x0)}, {v(x1)}")
        A(f"v_cvt_pk_f16_f32 {v(B1+12+w)}, {v(x1)}, -{v(x0)}")
    A(f"v_mul_f32 {v(st)}, {f32(1/2048)}, {v(t1)}")
    A(f"v_mul_f32 {v(base)}, {v(st)}, {v(gs)}")
    A(f"v_mul_f32 {v(base)}, 4.0, {v(base)}")
    for j in range(4):
        for i in range(4):
            A(f"v_fmamk_f32 {v(arg)}, {v(st)}, {f32(16*j+i)}, {v(base)}")
            sincos(arg, ca, sa)
            A(f"v_mul_f32 {v(TC+4*j+i)}, {f32(1/64)}, {v(ca)}")
            A(f"v_mul_f32 {v(TS+4*j+i)}, {f32(1/64)}, {v(sa)}")
    A(f"v_lshrrev_b32 {v(x0)}, 2, {v(n)}")
    A(f"v_lshlrev_b32 {v(x0)}, 4, {v(x0)}")
    A(f"v_and_b32 {v(x1)}, 3, {v(n)}")
    A(f"v_lshl_add_u32 {v(x0)}, {v(x1)}, 1, {v(x0)}")
    A(f"s_lshr_b32 s60, s70, 1")
    A(f"s_lshr_b32 s61, s{WV}, 1")
    A(f"s_add_u32 s60, s60, s61")
    A(f"v_add_u32 {v(x0)}, s60, {v(x0)}")
    A(f"v_cvt_f32_u32 {v(x0)}, {v(x0)}")
    A(f"v_mul_f32 {v(st)}, {f32(1/64)}, {v(x0)}")
    A(f"v_mul_f32 {v(base)}, {v(st)}, {v(gs)}")
    A(f"v_mul_f32 {v(base)}, 4.0, {v(base)}")
    A(f"s_lshl_b32 s60, s{WV}, 12")
    A(f"s_add_u32 s60, s60, 24576")
    A(f"v_lshl_add_u32 {v(x1)}, v1, 4, s60")
    for j in range(4):
        for i in range(4):
            A(f"v_fmamk_f32 {v(arg)}, {v(st)}, {f32(16*j+i)}, {v(base)}")
            sincos(arg, ca, sa)
            A(f"v_cvt_pk_f16_f32 {v(DT+4*j+i)}, {v(ca)}, {v(sa)}")
        A(f"ds_write_b128 {v(x1)}, {v(DT+4*j,4)} offset:{1024*j}")
    A(f"v_lshlrev_b32 {v(x1)}, 4, v1")
    A("s_waitcnt lgkmcnt(0)")
    A("s_barrier")
    for q in range(16):
        A(f"ds_read_b128 {v(A2+4*q,4)}, {v(x1)} offset:{24576 + 1024*q}")
        if q == 7:
            A("s_waitcnt lgkmcnt(0)")
    A("s_waitcnt vmcnt(0)")
    prio(3)
    A(f"s_mov_b32 s{sK}, 0")
    A(f"s_mov_b32 s{sW0}, {W_OFF}")
    A(f"s_mov_b32 s{sY}, {Y_OFF}")
    if opt("touch", 0) > 1:
        touch(T, W_OFF, 2 * W_SZ)
    stamp(4, dbg=(4, C0))
    A.label("L_Cloop")
    A(f"s_add_u32 s{sW1}, s{sW0}, {128 * WROW}")
    poll_flags(f"s{sK}", sCREP, T)
    stamp(0, f"s{sK}", dbg=(5, C0, 0))
    loop, done = A.newlabel("Lcw"), A.newlabel("Lcwd")
    A(f"s_add_u32 s30, s{sK}, 1")
    AWC = opt("awc", 1)
    if EARLY_C >= 2:
        arrive_issue("s30", sCME, O, AWC)
    A(f"s_mov_b32 s62, {SPIN}")
    A.label(loop)
    A(f"buffer_load_dwordx4 {v(RAW,4)}, v2, {WS}, s{sW0} offen sc1")
    A(f"buffer_load_dwordx4 {v(RAW+4,4)}, v2, {WS}, s{sW1} offen sc1")
    A(f"buffer_load_dwordx4 {v(RAW+8,4)}, v3, {WS}, s{sW0} offen sc1")
    A(f"buffer_load_dwordx4 {v(RAW+12,4)}, v3, {WS}, s{sW1} offen sc1")
    A("s_mov_b32 s31, 0")
    for j in range(4):
        if j == 3 and EARLY_C >= 3:
            Lw = A.newlabel("Lce")
            A("s_waitcnt vmcnt(1)")
            A("s_cmp_eq_u32 s31, 1")
            A(f"s_cbranch_scc1 {Lw}")
            A("s_waitcnt vmcnt(0)")
            A.label(Lw)
        else:
            A(f"s_waitcnt vmcnt({3-j})")
        A(f"ds_write_b128 v6, {v(RAW+4*j,4)} offset:{(j>>1)*4096 + (j&1)*2048}")
        if EARLY_C >= 3 and j == EARLY_C - 3:
            Lq = A.newlabel("Lce")
            A(f"s_cmp_lg_u32 s62, {SPIN}")
            A(f"s_cbranch_scc1 {Lq}")
            arrive_finish("s30", sCME, f"s{sLAST}", O, 3 - j, AWC, "s31")
            A.label(Lq)
    any_sentinel(range(RAW, RAW + 16), T, done)
    spin_tail(loop, 62, 2)
    A.label(done)
    if EARLY_C == 1:
        arrive_issue("s30", sCME, O, AWC)
    A("s_waitcnt lgkmcnt(0)")
    A("s_barrier")
    stamp(1, f"s{sK}")
    for j in range(4):
        A(f"ds_read_b128 {v(DT+8*j,4)}, v7 offset:{256*j}")
        A(f"ds_read_b128 {v(DT+8*j+4,4)}, v7 offset:{4096+256*j}")
    if EARLY_C == 2:
        arrive_finish("s30", sCME, f"s{sLAST}", O, 0, AWC)
    for j in range(4):
        A(f"s_waitcnt lgkmcnt({7-2*j})")
        A(f"v_mfma_f32_16x16x32_f16 {v(AR+4*j,4)}, {v(DT+8*j,4)}, {v(B1,4)}, 0")
        A(f"v_mfma_f32_16x16x32_f16 {v(AI+4*j,4)}, {v(DT+8*j,4)}, {v(B1+4,4)}, 0")
        A(f"s_waitcnt lgkmcnt({6-2*j})")
        A(f"v_mfma_f32_16x16x32_f16 {v(AR+4*j,4)}, {v(DT+8*j+4,4)}, {v(B1+8,4)}, {v(AR+4*j,4)}")
        A(f"v_mfma_f32_16x16x32_f16 {v(AI+4*j,4)}, {v(DT+8*j+4,4)}, {v(B1+12,4)}, {v(AI+4*j,4)}")
    A(f"s_add_u32 s{sK}, s{sK}, 1")
    for j in range(4):
        for i in (4 * j, 4 * j + 2):
            pr, pi = RAW + (i % 4) * 2, RAW + (i % 4) * 2 + 2
            A(f"v_pk_mul_f32 {v(pr,2)}, {v(AR+i,2)}, {v(TC+i,2)}")
            A(f"v_pk_mul_f32 {v(pi,2)}, {v(AI+i,2)}, {v(TC+i,2)}")
            A(f"v_pk_fma_f32 {v(pr,2)}, {v(AI+i,2)}, {v(TS+i,2)}, {v(pr,2)}")
            A(f"v_pk_fma_f32 {v(pi,2)}, {v(AR+i,2)}, {v(TS+i,2)}, {v(pi,2)} neg_lo:[1,0,0] neg_hi:[1,0,0]")
            A(f"v_cvt_pk_f16_f32 {v(P+i)}, {v(pr)}, {v(pi)}")
            A(f"v_cvt_pk_f16_f32 {v(P+i+1)}, {v(pr+1)}, {v(pi+1)}")
        for jm in range(4):
            c = "0" if j == 0 else v(AC + 4 * jm, 4)
            A(f"v_mfma_f32_16x16x32_f16 {v(AC+4*jm,4)}, {v(A2+16*jm+4*j,4)}, {v(P+4*j,4)}, {c}")
        if j == opt("cfin", 1) and EARLY_C == 1:
            arrive_finish("s30", sCME, f"s{sLAST}", O, 0, AWC)
    for k in range(8):
        A(f"v_cvt_pk_f16_f32 {v(O+k)}, {v(AC+2*k)}, {v(AC+2*k+1)}")
    def prep():
        for gq in range(4):
            A(f"v_readlane_b32 s{60+gq}, {v(O)}, {16*((gq+1)%4)}")
        for gq in range(4):
            A(f"v_writelane_b32 {v(P+4)}, s{60+gq}, {16*gq}")
        for k in range(3):
            A(f"v_alignbit_b32 {v(P+k)}, {v(O+k+1)}, {v(O+k)}, 16")
        A(f"v_alignbit_b32 {v(P+3)}, {v(P+4)}, {v(O+3)}, 16")
    Y_stores(O, O + 4, P, f"s{sY}", prep)
    stamp(3, f"s{sK}", dbg=(6, C0, 1))
    A(f"s_add_u32 s{sK}, s{sK}, 1")
    A(f"s_add_u32 s{sW0}, s{sW0}, {W_SZ}")
    A(f"s_add_u32 s{sY}, s{sY}, {Y_SZ}")
    A(f"s_cmp_ge_u32 s{sK}, 4")
    A("s_cbranch_scc1 L_end")
    A("s_waitcnt vmcnt(0)")
    if opt("y2fill", 2) == 2:
        for k in range(4):
            A(f"v_mov_b32 {v(O+k)}, -1")
        Y_stores(O, O, O, f"s{sY}")
        A("s_waitcnt vmcnt(0)")
    if opt("y2fill", 2) == 1:
        lp, dn = A.newlabel("Lcy"), A.newlabel("Lcy")
        A(f"s_mov_b32 s60, {RG_OFF}")
        A(f"v_mov_b32 {v(T)}, 0")
        A(f"s_mov_b32 s62, {SPIN}")
        A.label(lp)
        A(f"buffer_load_dword {v(T+1)}, {v(T)}, {WS}, s60 offen sc1")
        A("s_waitcnt vmcnt(0)")
        A(f"v_cmp_eq_u32 vcc, -1, {v(T+1)}")
        A(f"s_cbranch_vccz {dn}")
        spin_tail(lp, 62, 4)
        A.label(dn)
        for k in range(4):
            A(f"v_mov_b32 {v(O+k)}, -1")
        Y_stores(O, O, O, f"s{sY}")
        A("s_waitcnt vmcnt(0)")
    A("s_branch L_Cloop")

SORT8 = [(0, 1), (2, 3), (4, 5), (6, 7), (0, 2), (1, 3), (4, 6), (5, 7), (1, 2), (5, 6), (0, 4), (3, 7),
         (1, 5), (2, 6), (1, 4), (3, 6), (2, 4), (3, 5), (3, 4)]

def topk_setup(CODE, vG, vLW, vLR, LDS0):
    A(f"v_lshrrev_b32 {v(CODE)}, 6, v0")
    A(f"v_lshlrev_b32 {v(CODE)}, 9, {v(CODE)}")
    A(f"v_add_u32 {v(CODE)}, {v(CODE)}, v1")
    A(f"v_sub_u32 {v(CODE)}, 2047, {v(CODE)}")
    for i in range(1, 8):
        A(f"v_subrev_u32 {v(CODE+i)}, {64*i}, {v(CODE)}")
    A(f"v_lshlrev_b32 {v(vG)}, {RSH}, v0")
    A(f"v_lshrrev_b32 {v(vLW)}, 4, v0")
    A(f"v_lshlrev_b32 {v(vLW)}, 5, {v(vLW)}")
    A(f"v_add_u32 {v(vLW)}, {LDS0}, {v(vLW)}")
    A(f"v_and_b32 {v(vLR)}, 15, v1")
    A(f"v_lshlrev_b32 {v(vLR)}, 5, {v(vLR)}")
    A(f"v_add_u32 {v(vLR)}, {LDS0}, {v(vLR)}")

def topk(K, CODE, vG, vLW, vLR, sRG, blk, dbg, mid=None):
    G = K + 16
    prio(0)
    for gate in ((True, False) if GATE else (False,)):
        loop, done = A.newlabel("Lrg"), A.newlabel("Lrgd")
        A(f"s_mov_b32 s62, {SPIN}")
        if gate:
            set_exec(0xff << 56)
        A.label(loop)
        A(f"buffer_load_dwordx4 {v(G,4)}, {v(vG)}, {WS}, s{sRG} offen sc1")
        A("s_waitcnt vmcnt(0)")
        any_sentinel(range(G, G + 4), K, done)
        spin_tail(loop, 62, opt("rsleep", 0))
        A.label(done)
        if gate:
            A("s_mov_b64 exec, -1")
    prio(3)
    stamp(3, "s27", dbg=dbg)
    A("s_mov_b32 s63, 0xffff0000")
    cur = list(range(K, K + 8))
    for k in range(4):
        A(f"v_lshl_or_b32 {v(cur[2*k])}, {v(G+k)}, 16, {v(CODE+2*k)}")
        A(f"v_and_or_b32 {v(cur[2*k+1])}, {v(G+k)}, s63, {v(CODE+2*k+1)}")
    free = list(range(K + 8, K + 24))

    def ce(i, j, dst=None):
        if dst is None:
            t = free.pop(0)
            A(f"v_max_u32 {v(t)}, {v(cur[i])}, {v(cur[j])}")
            A(f"v_min_u32 {v(cur[j])}, {v(cur[i])}, {v(cur[j])}")
            free.append(cur[i])
            cur[i] = t
        else:
            A(f"v_max_u32 {v(dst+i)}, {v(cur[i])}, {v(cur[j])}")
            A(f"v_min_u32 {v(dst+j)}, {v(cur[i])}, {v(cur[j])}")

    for (i, j) in SORT8:
        ce(i, j)
    pats = ["quad_perm:[1,0,3,2]", "quad_perm:[2,3,0,1]", "row_half_mirror", "row_mirror"]
    for rnd in range(2):
        for li, pat in enumerate(pats):
            new = [free.pop(0) for _ in range(8)]
            for i in (7, 6, 5, 4, 3, 2, 1, 0) if False else range(8):
                A(f"v_max_u32_dpp {v(new[i])}, {v(cur[7-i])}, {v(cur[i])} {pat} row_mask:0xf bank_mask:0xf")
            free.extend(cur)
            cur = new
            if rnd == 1 and li == 3:
                return cur
            for i in range(4):
                ce(i, i + 4)
            for i in (0, 1, 4, 5):
                ce(i, i + 2)
            if rnd == 0 and li == 3:
                for i in (0, 2, 4, 6):
                    ce(i, i + 1, dst=blk)
                set_exec(0x0001000100010001)
                A(f"ds_write_b128 {v(vLW)}, {v(blk,4)}")
                A(f"ds_write_b128 {v(vLW)}, {v(blk+4,4)} offset:16")
                A("s_mov_b64 exec, -1")
                A("s_waitcnt lgkmcnt(0)")
                A("s_barrier")
                A(f"ds_read_b128 {v(K,4)}, {v(vLR)}")
                A(f"ds_read_b128 {v(K+4,4)}, {v(vLR)} offset:16")
                A("s_waitcnt lgkmcnt(0)")
                if mid:
                    mid(K)
                cur = list(range(K, K + 8))
                free = list(range(K + 8, K + 24))
            else:
                for i in (6, 4, 2, 0):
                    ce(i, i + 1)

def load_weight_frags(jobs):
    total = sum(8 * j[3] for j in jobs)
    for (srdn, voff_of, soff_of, nsteps, dst, raw, vfull) in jobs:
        for k in range(nsteps):
            for q in range(8):
                d = raw + 8 * k + q
                if vfull is not None and k == vfull:
                    A(f"v_add_u32 {v(d)}, {soff_of(k, q)}, {v(voff_of(k))}")
                    A(f"buffer_load_dword {v(d)}, {v(d)}, {srdn}, 0 offen")
                    continue
                A(f"s_mov_b32 s60, {soff_of(k, q)}")
                A(f"buffer_load_dword {v(d)}, {v(voff_of(k))}, {srdn}, s60 offen")
    done = 0
    for (srdn, voff_of, soff_of, nsteps, dst, raw, vfull) in jobs:
        for k in range(nsteps):
            done += 8
            A(f"s_waitcnt vmcnt({min(63, total - done)})")
            r = raw + 8 * k
            for u in range(4):
                A(f"v_perm_b32 {v(dst + 8*k + u)}, {v(r+2*u+1)}, {v(r+2*u)}, s58")
                A(f"v_perm_b32 {v(dst + 8*k + 4 + u)}, {v(r+2*u+1)}, {v(r+2*u)}, s59")

def roleFa():
    A.label("L_roleFa")
    GW, UW, RAW, AFR, ACC, K, CODE = 16, 56, 96, 136, 156, 176, 200
    vG, vLW, vLR, vW1, vW2, vLP1, vLP2, vPW, vPR, vH = 2, 3, 4, 5, 6, 7, 8, 9, 10, 11
    sKAP, sRG, sT, sH, sL = 22, 23, 25, 26, 27
    T = 208
    nonce_load(T + 8)
    if opt("prefc", 1) == 1:
        warm_weights(T + 12, C0, 29, PPART)
    srd(8, 46, 2211840)
    srd(12, 48, 2211840)
    A(f"s_sub_u32 s60, s2, {FA0 - 1}")
    A(f"s_and_b32 s61, s60, 7")
    A(f"s_lshr_b32 s60, s60, 3")
    A(f"s_mul_i32 s{sKAP}, s61, 7")
    A(f"s_add_u32 s{sKAP}, s{sKAP}, s60")
    A(f"s_sub_u32 s{sKAP}, s{sKAP}, 1")
    A("s_mov_b32 s58, 0x05040100")
    A("s_mov_b32 s59, 0x07060302")
    n, g = T, T + 1
    A(f"v_and_b32 {v(n)}, 15, v1")
    A(f"v_lshrrev_b32 {v(g)}, 4, v1")
    A(f"s_lshr_b32 s60, s{WV}, 1")
    A(f"s_mul_i32 s60, s60, 320")
    A(f"s_and_b32 s61, s{WV}, 1")
    A(f"s_lshl_b32 s61, s61, 4")
    A(f"s_add_u32 s60, s60, s61")
    A(f"s_lshl_b32 s61, s{sKAP}, 6")
    A(f"v_lshl_add_u32 {v(T+2)}, {v(n)}, 2, s61")
    A(f"v_add_u32 {v(vW1)}, s60, {v(g)}")
    A(f"v_mul_u32_u24 {v(vW1)}, 3456, {v(vW1)}")
    A(f"v_add_u32 {v(vW1)}, {v(vW1)}, {v(T+2)}")
    A(f"v_lshl_add_u32 {v(vW2)}, {v(g)}, 2, s60")
    A(f"v_mul_u32_u24 {v(vW2)}, 3456, {v(vW2)}")
    A(f"v_add_u32 {v(vW2)}, {v(vW2)}, {v(T+2)}")
    voff = lambda k: vW1 if k < 4 else vW2
    soff = lambda k, q: ((32 * q + 4 * k) if k < 4 else (256 + 32 * (q & 1) + (q >> 1))) * 3456
    A("s_waitcnt vmcnt(0)")
    nonce_take(T + 8)
    A(f"s_and_b32 s29, s2, {NREP - 1}")
    A(f"s_lshl_b32 s29, s29, {FSH + 4}")
    if opt("prefc", 1) == 2:
        warm_weights(T + 12, C0, 29, PPART)
    poll_flags(0, 29, T + 4, opt("fsleep", 2))
    if opt("coop", 4):
        warm_coop(T + 12)
    srd(16, 44, 1280)
    A(f"v_and_b32 {v(T+2)}, 31, v1")
    A(f"v_lshrrev_b32 {v(T+3)}, 5, v1")
    A(f"v_mul_u32_u24 {v(T+3)}, 640, {v(T+3)}")
    A(f"v_lshl_add_u32 {v(T+2)}, {v(T+2)}, 1, {v(T+3)}")
    for i in range(10):
        A(f"v_mov_b32 {v(K+i)}, 0")
        A(f"buffer_load_short_d16_hi {v(K+i)}, {v(T+2)}, {SRD3}, 0 offen offset:{64*i}")
    A("s_waitcnt vmcnt(0)")
    tau_of(K, T + 2, 1.0 + 1.0 / 32)
    A(f"v_or_b32 {v(T+2)}, 0x80000000, {v(T+2)}")
    A(f"v_readfirstlane_b32 s36, {v(T+2)}")
    if opt("wide", 0):
        A(f"s_lshr_b32 s60, s{WV}, 1")
        A(f"s_mul_i32 s60, s60, 320")
        A(f"s_and_b32 s61, s{WV}, 1")
        A(f"s_lshl_b32 s61, s61, 4")
        A(f"s_add_u32 s60, s60, s61")
        A(f"v_lshrrev_b32 {v(T+4)}, 2, v1")
        A(f"v_add_u32 {v(T+4)}, s60, {v(T+4)}")
        A(f"v_mul_u32_u24 {v(T+4)}, 3456, {v(T+4)}")
        A(f"v_and_b32 {v(T+5)}, 3, v1")
        A(f"s_lshl_b32 s61, s{sKAP}, 6")
        A(f"v_lshl_add_u32 {v(T+5)}, {v(T+5)}, 4, s61")
        A(f"v_add_u32 {v(T+4)}, {v(T+4)}, {v(T+5)}")
        for j in range(10):
            A(f"s_mov_b32 s60, {32 * j * 3456}")
            A(f"buffer_load_dwordx4 {v(T+12,4)}, {v(T+4)}, {SRD1}, s60 offen")
            A(f"buffer_load_dwordx4 {v(T+12,4)}, {v(T+4)}, {SRD2}, s60 offen")
        if opt("wide", 0) == 2:
            A("s_waitcnt vmcnt(0)")
    load_weight_frags([(SRD1, voff, soff, 5, GW, RAW, None), (SRD2, voff, soff, 5, UW, RAW + 40, None)])
    topk_setup(CODE, vG, vLW, vLR, 24576)
    A(f"v_and_b32 {v(T+2)}, 7, v1")
    A(f"s_lshl_b32 s60, s{WV}, 8")
    A(f"v_lshl_add_u32 {v(vLP1)}, {v(T+2)}, 4, s60")
    A(f"s_lshl_b32 s60, s{WV}, 6")
    A(f"s_add_u32 s60, s60, 1024")
    A(f"v_lshl_add_u32 {v(vLP2)}, {v(T+2)}, 4, s60")
    A(f"s_mul_i32 s60, s{WV}, 2688")
    A(f"s_add_u32 s60, s60, 12288")
    A(f"v_lshrrev_b32 {v(T+3)}, 3, v1")
    A(f"v_mul_u32_u24 v13, 336, {v(T+3)}")
    A(f"v_lshl_add_u32 v13, {v(T+2)}, 4, v13")
    A(f"v_add_u32 v13, s60, v13")
    A(f"v_mul_u32_u24 v14, 336, {v(T+2)}")
    A(f"v_lshl_add_u32 v14, {v(g)}, 4, v14")
    A(f"v_add_u32 v14, s60, v14")
    A(f"s_lshl_b32 s60, s{WV}, 8")
    A(f"v_lshl_add_u32 v15, {v(g)}, 7, s60")
    A(f"s_lshl_b32 s60, s{WV}, 6")
    A(f"s_add_u32 s60, s60, 1024")
    A(f"v_mov_b32 {v(T+4)}, s60")
    A(f"v_cmp_gt_u32 vcc, 2, {v(g)}")
    A(f"v_cndmask_b32 v15, {v(T+4)}, v15, vcc")
    A(f"s_mul_i32 s60, s{WV}, 2560")
    A(f"v_mul_u32_u24 {v(vPW)}, 640, {v(g)}")
    A(f"v_lshl_add_u32 {v(vPW)}, {v(n)}, 3, {v(vPW)}")
    A(f"v_add_u32 {v(vPW)}, s60, {v(vPW)}")
    A(f"v_add_u32 {v(12)}, 1280, {v(vPW)}")
    A(f"v_mul_u32_u24 {v(vPR)}, 40, {v(T+3)}")
    A(f"s_lshl_b32 s60, s{WV}, 3")
    A(f"v_add3_u32 {v(vPR)}, {v(vPR)}, {v(T+2)}, s60")
    A(f"v_lshlrev_b32 {v(vPR)}, 2, {v(vPR)}")
    A(f"v_lshrrev_b32 {v(T+2)}, 1, v0")
    A(f"v_lshlrev_b32 {v(vH)}, 2, {v(T+2)}")
    A(f"s_lshl_b32 s{sH}, s{sKAP}, 9")
    A(f"s_add_u32 s{sH}, s{sH}, {H_OFF}")
    A(f"s_and_b32 s{sRG}, s2, {NRR - 1}")
    A(f"s_lshl_b32 s{sRG}, s{sRG}, {RSH + 8}")
    A(f"s_add_u32 s{sRG}, s{sRG}, {RG_OFF}")
    A(f"s_mov_b32 s{sT}, {T_OFF}")
    A(f"s_mov_b32 s28, {T_REC}")
    for (r, val) in ((30, 0x00FFFF00), (31, 0x00FFFF00), (32, 0xFF00FF00), (33, 0x00FF00FF)):
        A(f"s_mov_b32 s{r}, 0x{val:x}")
    A(f"s_mov_b32 s{sL}, 0")
    touch(T + 2, T_OFF, 2 * T_SZ)
    stamp(0, dbg=(9, FA0))
    poll_flags(1, 29, T, 8)
    prio(3)
    A.label("L_FaLoop")
    def warm_rows(K_):
        for e in range(opt("warm", 0)):
            A(f"v_and_b32 {v(T+8+e)}, 0x7ff, {v(K_+e)}")
            A(f"v_sub_u32 {v(T+8+e)}, 2047, {v(T+8+e)}")
            A(f"v_mad_u32_u24 {v(T+8+e)}, {v(T+8+e)}, s28, v15")
            A(f"buffer_load_dword {v(T+8+e)}, {v(T+8+e)}, {WS}, s{sT} offen sc1")
    c = topk(K, CODE, vG, vLW, vLR, sRG, T, (11, FA0, 0), warm_rows)
    stamp(4, "s27")
    A(f"v_cndmask_b32 {v(T)}, {v(c[0])}, {v(c[2])}, s[30:31]")
    A(f"v_cndmask_b32 {v(T+1)}, {v(c[4])}, {v(c[6])}, s[30:31]")
    A(f"v_cndmask_b32 {v(T)}, {v(T)}, {v(T+1)}, s[32:33]")
    A(f"v_and_b32 {v(T)}, 0x7ff, {v(T)}")
    A(f"v_sub_u32 {v(T)}, 2047, {v(T)}")
    A(f"v_mad_u32_u24 {v(T+1)}, {v(T)}, s28, {v(vLP1)}")
    A(f"v_mad_u32_u24 {v(T+2)}, {v(T)}, s28, {v(vLP2)}")
    loop, done = A.newlabel("Lga"), A.newlabel("Lgad")
    A(f"v_min3_u32 {v(T+3)}, {v(c[0])}, {v(c[1])}, {v(c[2])}")
    A(f"v_min3_u32 {v(T+4)}, {v(c[3])}, {v(c[4])}, {v(c[5])}")
    A(f"v_min3_u32 {v(T+3)}, {v(T+3)}, {v(c[6])}, {v(c[7])}")
    A(f"v_min_u32 {v(T+3)}, {v(T+3)}, {v(T+4)}")
    A(f"v_and_b32 {v(T+3)}, 0xffff0000, {v(T+3)}")
    A(f"v_cmp_gt_u32 vcc, s36, {v(T+3)}")
    A(f"s_cbranch_vccz {done}")
    A(f"v_mul_u32_u24 {v(T+3)}, s28, {v(T)}")
    A(f"s_add_u32 s61, s{NONCE}, 6")
    A(f"s_add_u32 s61, s61, s{sL}")
    A(f"s_mov_b32 s62, {SPIN}")
    A.label(loop)
    A(f"buffer_load_dword {v(T+4)}, {v(T+3)}, {WS}, s{sT} offen offset:2568 sc1")
    A("s_waitcnt vmcnt(0)")
    A(f"v_cmp_ne_u32 vcc, s61, {v(T+4)}")
    A(f"s_cbranch_vccz {done}")
    spin_tail(loop, 62, 2)
    A.label(done)
    GR = K
    A(f"buffer_load_dwordx4 {v(GR,4)}, {v(T+1)}, {WS}, s{sT} offen sc1")
    A(f"buffer_load_dwordx4 {v(GR+4,4)}, {v(T+1)}, {WS}, s{sT} offen offset:128 sc1")
    set_exec(0x0F0F0F0F0F0F0F0F)
    A(f"buffer_load_dwordx4 {v(GR+8,4)}, {v(T+2)}, {WS}, s{sT} offen sc1")
    A("s_mov_b64 exec, -1")
    A("s_waitcnt vmcnt(2)")
    A(f"ds_write_b128 v13, {v(GR,4)}")
    A("s_waitcnt vmcnt(1)")
    A(f"ds_write_b128 v13, {v(GR+4,4)} offset:128")
    A("s_waitcnt vmcnt(0)")
    set_exec(0x0F0F0F0F0F0F0F0F)
    A(f"ds_write_b128 v13, {v(GR+8,4)} offset:256")
    A("s_mov_b64 exec, -1")
    for ks in range(5):
        A(f"ds_read_b128 {v(AFR+4*ks,4)}, v14 offset:{64*ks}")
    for ks in range(5):
        A(f"s_waitcnt lgkmcnt({4-ks})")
        for a_, wb in enumerate((GW, GW + 4, UW, UW + 4)):
            cc = "0" if ks == 0 else v(ACC + 4 * a_, 4)
            A(f"v_mfma_f32_16x16x32_bf16 {v(ACC+4*a_,4)}, {v(AFR+4*ks,4)}, {v(wb+8*ks,4)}, {cc}")
    stamp(5, "s27")
    set_exec(0xffffffff)
    for mat in range(2):
        for r in range(4):
            A(f"ds_write2_b32 {v(vPW if mat == 0 else 12)}, {v(ACC+8*mat+r)}, {v(ACC+8*mat+4+r)} offset0:{40*r} offset1:{40*r+1}")
    A("s_mov_b64 exec, -1")
    A("s_waitcnt lgkmcnt(0)")
    A("s_barrier")
    for w in range(4):
        A(f"ds_read2st64_b32 {v(T+2*w,2)}, {v(vPR)} offset0:{10*w} offset1:{10*w+5}")
    A("s_waitcnt lgkmcnt(2)")
    A(f"v_pk_add_f32 {v(T,2)}, {v(T,2)}, {v(T+2,2)}")
    A("s_waitcnt lgkmcnt(0)")
    A(f"v_pk_add_f32 {v(T+4,2)}, {v(T+4,2)}, {v(T+6,2)}")
    A(f"v_pk_add_f32 {v(T,2)}, {v(T,2)}, {v(T+4,2)}")
    rnd_pair(T, T + 1, T + 2)
    A(f"v_mul_f32 {v(T+2)}, {f32(-1.4426950408889634)}, {v(T)}")
    A(f"v_exp_f32 {v(T+2)}, {v(T+2)}")
    A(f"v_add_f32 {v(T+2)}, 1.0, {v(T+2)}")
    A(f"v_rcp_f32 {v(T+2)}, {v(T+2)}")
    A(f"v_mul_f32 {v(T)}, {v(T)}, {v(T+2)}")
    A(f"v_cvt_pk_bf16_f32 {v(T)}, {v(T)}, {v(T)}")
    A(f"v_and_b32 {v(T)}, 0xffff0000, {v(T)}")
    A(f"v_mul_f32 {v(T)}, {v(T)}, {v(T+1)}")
    A(f"v_mov_b32_dpp {v(T+1)}, {v(T)} quad_perm:[1,0,3,2] row_mask:0xf bank_mask:0xf")
    A(f"v_cvt_pk_bf16_f32 {v(T)}, {v(T)}, {v(T+1)}")
    A(f"v_min_u32 {v(T)}, -2, {v(T)}")
    set_exec(0x5555555555555555)
    A(f"buffer_store_dword {v(T)}, {v(vH)}, {WS}, s{sH} offen sc1")
    A("s_mov_b64 exec, -1")
    if opt("hintsrc", 0) == 1:
        Lh3 = A.newlabel("Lfa")
        A(f"s_or_b32 s60, s{sKAP}, s{WV}")
        A(f"s_or_b32 s60, s60, s{sL}")
        A(f"s_cmp_lg_u32 s60, 0")
        A(f"s_cbranch_scc1 {Lh3}")
        A(f"v_mov_b32 {v(T+4)}, 0")
        A(f"s_mov_b32 s60, {X2_OFF + SEL_OFF + 128}")
        A("s_mov_b64 exec, 1")
        A(f"buffer_store_dword {v(T+4)}, {v(T+4)}, {WS}, s60 offen sc1")
        A("s_mov_b64 exec, -1")
        A.label(Lh3)
    stamp(6, "s27")
    A(f"s_add_u32 s{sH}, s{sH}, {2 * HREP}")
    A(f"s_add_u32 s{sRG}, s{sRG}, {NRR * RG_REP}")
    A(f"s_add_u32 s{sT}, s{sT}, {T_SZ}")
    A(f"s_add_u32 s{sL}, s{sL}, 1")
    A(f"s_cmp_lt_u32 s{sL}, 2")
    A("s_cbranch_scc1 L_FaLoop")
    A("s_endpgm")

def roleFb():
    A.label("L_roleFb")
    DW, HF, ACC, K, CODE, T = 16, 128, 184, 192, 216, 224
    RAW = 128
    vG, vLW, vLR, vW1, vHF, vPW, vPR, vE, vX2, vO = 2, 3, 4, 5, 6, 7, 8, 9, 10, 11
    sB, sRG, sT, sH, sL, sREP2, sES, sEC = 22, 23, 25, 26, 27, 29, 30, 31
    nonce_load(T + 8)
    if opt("prefc", 1) == 1:
        warm_weights(T + 16, C0, 29, PPART)
    srd(8, 50, 2211840)
    srd(12, 52, 2621440)
    A(f"s_sub_u32 s60, s2, {FB0 - 7}")
    A(f"s_and_b32 s61, s60, 7")
    A(f"s_lshr_b32 s60, s60, 3")
    fb_start("s61", f"s{sB}")
    A(f"s_add_u32 s{sB}, s{sB}, s60")
    A(f"s_cmp_eq_u32 s61, 7")
    A(f"s_cselect_b32 s60, 0, 1")
    A(f"s_sub_u32 s{sB}, s{sB}, s60")
    A("s_mov_b32 s58, 0x05040100")
    A("s_mov_b32 s59, 0x07060302")
    n, g = T, T + 1
    A(f"v_and_b32 {v(n)}, 15, v1")
    A(f"v_lshrrev_b32 {v(g)}, 4, v1")
    A(f"s_lshl_b32 s60, s{WV}, 5")
    A(f"v_lshl_add_u32 {v(vW1)}, {v(g)}, 3, s60")
    A(f"v_mul_u32_u24 {v(vW1)}, 1280, {v(vW1)}")
    A(f"s_lshl_b32 s61, s{sB}, 6")
    A(f"v_lshl_add_u32 {v(T+2)}, {v(n)}, 2, s61")
    A(f"v_add_u32 {v(vW1)}, {v(vW1)}, {v(T+2)}")
    A(f"v_mov_b32 v12, {v(n)}")
    A(f"v_mov_b32 v13, {v(g)}")
    n, g = 12, 13
    A("s_waitcnt vmcnt(0)")
    nonce_take(T + 8)
    A(f"s_and_b32 s{sREP2}, s2, {NREP - 1}")
    A(f"s_lshl_b32 s{sREP2}, s{sREP2}, {FSH + 4}")
    if opt("prefc", 1) == 2:
        warm_weights(T + 16, C0, 29, PPART)
    poll_flags(0, sREP2, T + 4, opt("fsleep", 2))
    if opt("coop", 4):
        warm_coop(T + 16)
    if opt("wide", 0):
        A(f"s_lshl_b32 s60, s{WV}, 5")
        A(f"v_lshrrev_b32 {v(T+20)}, 2, v1")
        A(f"v_add_u32 {v(T+20)}, s60, {v(T+20)}")
        A(f"v_mul_u32_u24 {v(T+20)}, 1280, {v(T+20)}")
        A(f"v_and_b32 {v(T+21)}, 3, v1")
        A(f"s_lshl_b32 s61, s{sB}, 6")
        A(f"v_lshl_add_u32 {v(T+21)}, {v(T+21)}, 4, s61")
        A(f"v_add_u32 {v(T+20)}, {v(T+20)}, {v(T+21)}")
        for k in range(14):
            for hh in range(2):
                A(f"v_add_u32 {v(T+21)}, {(128 * k + 16 * hh) * 1280}, {v(T+20)}")
                A(f"buffer_load_dwordx4 {v(T+24,4)}, {v(T+21)}, {SRD1}, 0 offen")
        if opt("wide", 0) == 2:
            A("s_waitcnt vmcnt(0)")
    load_weight_frags([(SRD1, lambda k: vW1, lambda k, q: (128 * k + q) * 1280, 14, DW, RAW, 13)])
    topk_setup(CODE, vG, vLW, vLR, 8192)
    A(f"v_and_b32 {v(vHF)}, 7, v1")
    A(f"v_lshlrev_b32 {v(vHF)}, 4, {v(vHF)}")
    A(f"v_lshl_add_u32 {v(vHF)}, {v(g)}, 7, {v(vHF)}")
    A(f"s_lshl_b32 s60, s{WV}, 9")
    A(f"v_add_u32 {v(vHF)}, s60, {v(vHF)}")
    A(f"s_mov_b32 s{sH}, {H_OFF}")
    A(f"s_lshl_b32 s60, s{WV}, 10")
    A(f"v_lshlrev_b32 {v(vPW)}, 9, {v(g)}")
    A(f"v_lshl_add_u32 {v(vPW)}, {v(n)}, 3, {v(vPW)}")
    A(f"v_add_u32 {v(vPW)}, s60, {v(vPW)}")
    A(f"v_lshlrev_b32 {v(vPR)}, 2, v0")
    A(f"s_cmp_ge_u32 s{sB}, 10")
    A(f"s_cselect_b32 s60, 1, 0")
    A(f"s_mul_i32 s61, s60, 10")
    A(f"s_sub_u32 s61, s{sB}, s61")
    A(f"s_lshl_b32 s62, s60, 9")
    A(f"s_lshl_b32 s63, s61, 1")
    A(f"s_add_u32 s62, s62, s63")
    A(f"s_lshl_b32 s64, s60, 7")
    A(f"s_add_u32 s64, s64, s63")
    A(f"s_add_u32 s64, s64, {1024 - 16}")
    A(f"s_cmp_lt_u32 s61, 8")
    A(f"s_cselect_b32 s{sEC}, s62, s64")
    A(f"s_cselect_b32 s{sES}, 16, 4")
    A(f"v_and_b32 {v(T+2)}, 31, v1")
    A(f"v_mul_u32_u24 {v(vE)}, s{sES}, {v(T+2)}")
    A(f"s_and_b32 s32, s{sEC}, 2")
    A(f"s_lshl_b32 s32, s32, 3")
    A(f"s_sub_u32 s32, 16, s32")
    A(f"s_and_b32 s{sEC}, s{sEC}, -4")
    A(f"v_add_u32 {v(vE)}, s{sEC}, {v(vE)}")

    A(f"s_lshl_b32 s60, s{sB}, 2")
    A(f"s_add_u32 s60, s60, s{WV}")
    A(f"s_lshl_b32 s60, s60, 8")
    A(f"v_lshl_add_u32 {v(vX2)}, {v(T+2)}, 3, s60")
    A(f"v_lshrrev_b32 {v(T+3)}, 5, v1")
    A(f"v_lshl_add_u32 {v(vX2)}, {v(T+3)}, 2, {v(vX2)}")
    A(f"s_lshl_b32 s60, s{sB}, 6")
    A(f"v_lshl_add_u32 {v(vO)}, {v(T+2)}, 1, s60")
    A(f"s_and_b32 s{sRG}, s2, {NRR - 1}")
    A(f"s_lshl_b32 s{sRG}, s{sRG}, {RSH + 8}")
    A(f"s_add_u32 s{sRG}, s{sRG}, {RG_OFF}")
    A(f"s_mov_b32 s{sT}, {T_OFF}")
    A(f"s_mov_b32 s28, {T_REC}")
    A(f"s_mov_b32 s{sL}, 0")
    touch(T + 2, T_OFF, 2 * T_SZ)
    stamp(0, dbg=(10, FB0))
    poll_flags(1, sREP2, T, 8)
    prio(3)
    A.label("L_FbLoop")
    c = topk(K, CODE, vG, vLW, vLR, sRG, T, None)
    stamp(4, "s27")
    for j in range(8):
        A(f"v_readfirstlane_b32 s{80+j}, {v(c[j])}")
    A("s_mov_b32 s70, s80")
    A("s_mov_b32 s71, s81")
    for w in range(1, 4):
        A(f"s_cmp_eq_u32 s{WV}, {w}")
        A(f"s_cselect_b32 s70, s{80+2*w}, s70")
        A(f"s_cselect_b32 s71, s{81+2*w}, s71")
    KEY, ROW, XV, XNV, SG, ST = T, T + 1, T + 2, T + 3, T + 4, T + 8
    Ls = A.newlabel("Lfb")
    A(f"s_or_b32 s60, s{sB}, s{WV}")
    A(f"s_cmp_lg_u32 s60, 0")
    A(f"s_cbranch_scc1 {Ls}")
    A(f"v_mov_b32 {v(T+6)}, s80")
    for j in range(1, 8):
        A(f"v_writelane_b32 {v(T+6)}, s{80+j}, {j}")
    A(f"v_and_b32 {v(T+6)}, 0x7ff, {v(T+6)}")
    A(f"v_sub_u32 {v(T+6)}, 2047, {v(T+6)}")
    A(f"v_lshlrev_b32 {v(T+7)}, 2, v1")
    A(f"s_lshl_b32 s60, s{sL}, 8")
    A(f"s_add_u32 s60, s60, {X2_OFF + SEL_OFF}")
    A("s_mov_b64 exec, 0xff")
    A(f"buffer_store_dword {v(T+6)}, {v(T+7)}, {WS}, s60 offen sc1")
    A("s_mov_b64 exec, -1")
    A.label(Ls)
    A(f"v_mov_b32 {v(KEY)}, s71")
    A(f"v_mov_b32 {v(ROW)}, s70")
    A(f"v_cmp_gt_u32 vcc, 32, v1")
    A(f"v_cndmask_b32 {v(KEY)}, {v(KEY)}, {v(ROW)}, vcc")
    A(f"v_and_b32 {v(ROW)}, 0x7ff, {v(KEY)}")
    A(f"v_sub_u32 {v(ROW)}, 2047, {v(ROW)}")
    A(f"v_mad_u32_u24 {v(T+5)}, {v(ROW)}, s28, {v(vE)}")
    prio(0)
    loop, done = A.newlabel("Lst2"), A.newlabel("Lst2d")
    A(f"v_mul_u32_u24 {v(T+6)}, s28, {v(ROW)}")
    A(f"s_add_u32 s61, s{NONCE}, 6")
    A(f"s_add_u32 s61, s61, s{sL}")
    A(f"s_mov_b32 s62, {SPIN}")
    A.label(loop)
    A(f"buffer_load_dwordx4 {v(ST,4)}, {v(T+6)}, {WS}, s{sT} offen offset:2560 sc1")
    A("s_waitcnt vmcnt(0)")
    A(f"v_cmp_ne_u32 vcc, s61, {v(ST+2)}")
    A(f"s_cbranch_vccz {done}")
    spin_tail(loop, 62, 2)
    A.label(done)
    A(f"buffer_load_dword {v(XNV)}, {v(T+5)}, {WS}, s{sT} offen sc1")
    A(f"buffer_load_dword {v(XV)}, {v(T+5)}, {WS}, s{sT} offen offset:1280 sc1")
    A(f"v_ashrrev_i32 {v(SG)}, 31, {v(KEY)}")
    A(f"v_not_b32 {v(SG)}, {v(SG)}")
    A(f"v_or_b32 {v(SG)}, 0x80000000, {v(SG)}")
    A(f"v_xor_b32 {v(SG)}, {v(SG)}, {v(KEY)}")
    A(f"v_and_b32 {v(SG)}, 0xffff0000, {v(SG)}")
    A(f"v_mul_f32 {v(SG)}, {f32(-1.4426950408889634)}, {v(SG)}")
    A(f"v_exp_f32 {v(SG)}, {v(SG)}")
    A(f"v_add_f32 {v(SG)}, 1.0, {v(SG)}")
    A(f"v_rcp_f32 {v(SG)}, {v(SG)}")
    A(f"v_cvt_pk_bf16_f32 {v(SG)}, {v(SG)}, {v(SG)}")
    A(f"v_and_b32 {v(SG)}, 0xffff0000, {v(SG)}")
    stamp(2, "s27")
    def rb(r):
        A(f"v_cvt_pk_bf16_f32 {v(r)}, {v(r)}, {v(r)}")
        A(f"v_and_b32 {v(r)}, 0xffff0000, {v(r)}")
    Yv = T + 12
    XO = T + 16
    if opt("hgate", 1):
        loop, done = A.newlabel("Lh"), A.newlabel("Lhd")
        A(f"s_mov_b32 s62, {SPIN}")
        set_exec(0x00FF00FF00FF00FF)
        A.label(loop)
        A(f"buffer_load_dwordx4 {v(HF,4)}, {v(vHF)}, {WS}, s{sH} offen sc1")
        A("s_waitcnt vmcnt(0)")
        any_sentinel(range(HF, HF + 4), T + 6, done)
        spin_tail(loop, 62, opt("hgsleep", 1))
        A.label(done)
    loop, done = A.newlabel("Lh"), A.newlabel("Lhd")
    A(f"s_cmp_lt_u32 s{WV}, 2")
    A(f"s_cselect_b32 s63, 2048, 0")
    A(f"s_add_u32 s63, s63, {12 * 2048}")
    A(f"s_add_u32 s63, s63, s{sH}")
    A(f"s_mov_b32 s62, {SPIN}")
    set_exec(0x00FF00FF00FF00FF)
    A.label(loop)
    for k in range(14):
        if k == 13:
            A(f"buffer_load_dwordx4 {v(HF+4*k,4)}, {v(vHF)}, {WS}, s63 offen sc1")
        else:
            if k % 2 == 0:
                A(f"s_add_u32 s60, s{sH}, {2048 * k}")
            A(f"buffer_load_dwordx4 {v(HF+4*k,4)}, {v(vHF)}, {WS}, s60 offen offset:{2048*(k%2)} sc1")
    CK = T + 6
    HP = opt("hprog", 1)
    def mf(k):
        for par in range(2):
            cc = "0" if k == 0 else v(ACC + 4 * par, 4)
            A(f"v_mfma_f32_16x16x32_bf16 {v(ACC+4*par,4)}, {v(HF+4*k,4)}, {v(DW+8*k+4*par,4)}, {cc}")
    if HP:
        A("s_mov_b64 exec, -1")
        for k in range(14):
            A(f"s_waitcnt vmcnt({13-k})")
            mf(k)
            if k == 0:
                A(f"v_max3_u32 {v(CK)}, {v(HF)}, {v(HF+1)}, {v(HF+2)}")
                A(f"v_max_u32 {v(CK)}, {v(CK)}, {v(HF+3)}")
            else:
                A(f"v_max3_u32 {v(CK)}, {v(CK)}, {v(HF+4*k)}, {v(HF+4*k+1)}")
                A(f"v_max3_u32 {v(CK)}, {v(CK)}, {v(HF+4*k+2)}, {v(HF+4*k+3)}")
        set_exec(0x00FF00FF00FF00FF)
        A(f"v_cmp_eq_u32 vcc, -1, {v(CK)}")
        A(f"s_cbranch_vccz {done}")
    else:
        A("s_waitcnt vmcnt(0)")
        any_sentinel(list(range(HF, HF + 56)), CK, done)
    spin_tail(loop, 62, opt("hsleep", 1))
    A.label(done)
    A("s_mov_b64 exec, -1")
    prio(3)
    stamp(5, "s27")
    Lh2 = A.newlabel("Lfb")
    A(f"s_or_b32 s60, s{sB}, s{WV}")
    A(f"s_or_b32 s60, s60, s{sL}")
    A(f"s_cmp_lg_u32 s60, {0 if opt('hintsrc', 0) == 0 else -1}")
    A(f"s_cbranch_scc1 {Lh2}")
    A(f"v_mov_b32 {v(CK)}, 0")
    A(f"s_mov_b32 s60, {X2_OFF + SEL_OFF + 128}")
    A("s_mov_b64 exec, 1")
    A(f"buffer_store_dword {v(CK)}, {v(CK)}, {WS}, s60 offen sc1")
    A.label(Lh2)
    A("s_mov_b64 exec, -1")
    if not HP:
        for k in range(14):
            mf(k)
    for r in (XNV, XV):
        A(f"v_lshlrev_b32 {v(r)}, s32, {v(r)}")
        A(f"v_and_b32 {v(r)}, 0xffff0000, {v(r)}")
    A(f"v_add_f32 {v(XO)}, {v(XV)}, {v(XNV)}")
    rb(XO)
    if EXACT:
        A(f"v_sub_f32 {v(XO)}, {v(XO)}, {v(ST)}")
        rb(XO)
        A(f"v_mul_f32 {v(XO)}, {v(XO)}, {v(ST+1)}")
        rb(XO)
    else:
        A(f"v_mul_f32 {v(ST)}, {v(ST)}, {v(ST+1)}")
        A(f"v_fma_f32 {v(XO)}, {v(XO)}, {v(ST+1)}, -{v(ST)}")
    set_exec(0xffffffff)
    for r in range(4):
        A(f"ds_write2_b32 {v(vPW)}, {v(ACC+r)}, {v(ACC+4+r)} offset0:{32*r} offset1:{32*r+1}")
    A("s_mov_b64 exec, -1")
    A("s_waitcnt lgkmcnt(0)")
    A("s_barrier")
    A(f"ds_read2st64_b32 {v(Yv,2)}, {v(vPR)} offset0:0 offset1:4")
    A(f"ds_read2st64_b32 {v(Yv+2,2)}, {v(vPR)} offset0:8 offset1:12")
    A("s_waitcnt lgkmcnt(0)")
    A(f"v_pk_add_f32 {v(Yv,2)}, {v(Yv,2)}, {v(Yv+2,2)}")
    A(f"v_add_f32 {v(Yv)}, {v(Yv)}, {v(Yv+1)}")
    rb(Yv)
    A(f"v_mul_f32 {v(Yv)}, {v(Yv)}, {v(SG)}")
    rb(Yv)
    A(f"v_add_f32 {v(Yv)}, {v(Yv)}, {v(XNV)}")
    rb(Yv)
    A(f"v_add_f32 {v(Yv)}, {v(Yv)}, {v(XV)}")
    L2 = A.newlabel("Lfb")
    A(f"s_cmp_lg_u32 s{sL}, 0")
    A(f"s_cbranch_scc1 {L2}")
    A(f"v_permlane32_swap_b32 {v(Yv)}, {v(XO)}")
    A(f"v_cvt_pk_bf16_f32 {v(Yv+1)}, {v(Yv)}, {v(XO)}")
    A(f"v_cvt_pk_f16_f32 {v(Yv)}, {v(Yv)}, {v(XO)}")
    A(f"v_cmp_gt_u32 vcc, 32, v1")
    A(f"v_cndmask_b32 {v(Yv)}, {v(Yv)}, {v(Yv+1)}, vcc")
    A(f"v_min_u32 {v(Yv)}, -2, {v(Yv)}")
    for r in range(NRX):
        A(f"s_mov_b32 s60, {X2_OFF + r * X2REP}")
        A(f"buffer_store_dword {v(Yv)}, {v(vX2)}, {WS}, s60 offen sc1")
    stamp(6, "s27", dbg=(12, FB0))
    A(f"s_add_u32 s{sH}, s{sH}, {2 * HREP}")
    A(f"s_add_u32 s{sRG}, s{sRG}, {NRR * RG_REP}")
    A(f"s_add_u32 s{sT}, s{sT}, {T_SZ}")
    A(f"s_mov_b32 s{sL}, 1")
    A("s_branch L_FbLoop")
    A.label(L2)
    A(f"v_cvt_pk_bf16_f32 {v(Yv)}, {v(Yv)}, {v(Yv)}")
    A(f"s_movk_i32 s60, 1280")
    A(f"v_mad_u32_u24 {v(Yv+1)}, {v(ROW)}, s60, {v(vO)}")
    A(f"buffer_store_short {v(Yv)}, {v(Yv+1)}, {SRD2}, 0 offen sc1")
    stamp(7, "s27", dbg=(15, FB0))
    A(f"s_or_b32 s60, s{sB}, s{WV}")
    A(f"s_cmp_lg_u32 s60, 0")
    A("s_cbranch_scc1 L_end")
    A(f"v_mov_b32 {v(T)}, s{NONCE}")
    A(f"v_mov_b32 {v(T+1)}, 0")
    A("s_mov_b64 exec, 1")
    A(f"buffer_store_dword {v(T)}, {v(T+1)}, {WS}, 0 offen sc1")
    A.label("L_end")
    A("s_endpgm")

hdr = open("cdna_kernels/%s.s.ref" % NAME).read().split("\n")
head = [l for l in hdr if l.startswith(";") and "@launch" not in l and "Override" not in l and "grid=ceil" not in l]
out = "\n".join(head) + "\n"
out += f"; @launch grid=({NWG},1,1) block=(256,1,1) lds={LDS_BYTES}\n"
out += """
; ---------------------------------------------------------------------------------------------------------
; One persistent launch, 491 co-resident workgroups (2 per CU), four roles chosen by workgroup id:
;   R  (0..255)    8 token rows each: layer norms, residuals, router scores, DFT along the hidden axis
;   C  (256..416)  2 spectrum columns each: DFT along the sequence axis
;   Fa (417..470)  top-8 selection + gate/up projection + SwiGLU for a 32-column slice
;   Fb (471..490)  top-8 selection + down projection + scatter for a 32-column slice
; The Fourier sublayer Real(DFT_seq(DFT_hid(x))) is evaluated with the exact Cooley-Tukey factorisation of the
; two (constant) DFT matrices, 640 = 20 x 32 and 2048 = 32 x 64, as small MFMA products with f16 factors that are
; generated with v_cos/v_sin; pairs of real rows are packed into one complex row and unpacked inside the
; column factor.  The layer-1 expert update of the 8 routed rows enters the second Fourier sublayer as an exact
; rank-8 correction (linearity), so the column pass of layer 2 overlaps the expert MLP.
; Hand-offs between workgroups go through d_ws with write-through (sc1) stores and sc1 loads.  Flags carry a
; per-launch tag derived from the word at d_ws+0; bulk buffers are pre-filled with all-ones by their producer and
; re-read by consumers until every word has landed.  All waits are bounded.
; Generated by the author's own script (hand-written instruction sequences).
; ---------------------------------------------------------------------------------------------------------
""".lstrip("\n")
out += '.amdgcn_target "amdgcn-amd-amdhsa--gfx950"\n.text\n'
out += f".globl {NAME}_kernel\n.p2align 8\n.type {NAME}_kernel,@function\n{NAME}_kernel:\n"
prologue(); roleR(); roleC(); roleFa(); roleFb()
out += A.text()
out += "L_code_end:\n"
out = out.replace(".text\n", ".text\n.set CODE_LINES, 256\n.set CODE_LINES2, 100\n", 1)
out += f""".section .rodata,"a"
.p2align 6
.amdhsa_kernel {NAME}_kernel
  .amdhsa_next_free_vgpr 256
  .amdhsa_next_free_sgpr 102
  .amdhsa_accum_offset 256
  .amdhsa_group_segment_fixed_size 0
  .amdhsa_kernarg_size 104
  .amdhsa_user_sgpr_count 2
  .amdhsa_user_sgpr_kernarg_segment_ptr 1
  .amdhsa_system_sgpr_workgroup_id_x 1
  .amdhsa_float_denorm_mode_32 3
.end_amdhsa_kernel
"""
import subprocess, tempfile, os, re
with tempfile.TemporaryDirectory() as td:
    open(td + "/a.s", "w").write(out)
    subprocess.check_call(["clang", "-x", "assembler", "-target", "amdgcn-amd-amdhsa", "-mcpu=gfx950", "-c", td + "/a.s", "-o", td + "/a.o"])
    hd = subprocess.check_output(["llvm-objdump", "-h", td + "/a.o"]).decode()
    size = int(re.search(r"\.text\s+([0-9a-f]+)", hd).group(1), 16)
out = out.replace(".set CODE_LINES, 256", ".set CODE_LINES, %d" % min(256, size // 128))
out = out.replace(".set CODE_LINES2, 100", ".set CODE_LINES2, %d" % max(0, size // 128 - 256))
print("code bytes:", size, file=sys.stderr)
dst = [a for a in sys.argv[1:] if not a.startswith("--")]
open(dst[0] if dst else "cdna_kernels/%s.s" % NAME, "w").write(out)
print("instructions:", A.ninstr, file=sys.stderr)
```

```python
import sys, struct
from asmb import Asm

NAME = "interleave_layers__spectral_fnet__moe_arch_mod__prompt"
def opt(name, default):
    for a in sys.argv:
        if a.startswith("--%s=" % name):
            return int(a.split("=")[1])
    return default
STAMPS = "--stamps" in sys.argv
DSTAMPS = "--dstamps" in sys.argv
MSTAMPS = "--mstamps" in sys.argv
EXACT = opt("exact", 0)
EXACT1 = opt("exact1", 0)
GATE = opt("gate", 1)
NR, NC, NFA, NFB = 256, 161, 54, 20
C0, FA0, FB0, NWG = 256, 417, 471, 491
FSH = opt("fsh", 6); FREP = 16 << FSH
FL_OFF = 0x1000; NREP = opt("nrep", 16)
RESET_OFF = 0x70000
H_OFF = 0x70000; HREP = 0x7000
X2_OFF = 0x90000; X2REP = 0x5200; NRX = opt("nrx", 1); SEL_OFF = 0x5000
RSH = opt("rsh", 6)
RG_OFF = 0xA0000; NRR = opt("nrr", 8); RG_REP = 256 << RSH
CNT_OFF = 0xF8000
WROW = 10368
W_OFF = 0x100000; W_SZ = 0x290000
Y_OFF = 0x640000; Y_SZ = 0x160000; YM_OFF = 322 * 4096
T_OFF = 0x900000; T_REC = 2688; T_SZ = 2048 * T_REC
ST_OFF = 0x1400000
WS_BYTES = 0x1500000
NONCE_C = 0x9E3779B9
SPIN = 40000
LDS_BYTES = 53248
assert FL_OFF + 4 * NREP * FREP <= 0x70000 and RG_OFF + 2 * NRR * RG_REP <= 0xF0000
PSLEEP = opt("psleep", 0)
EARLY_R = opt("earlyr", 1)
EARLY_C = opt("earlyc", 2)
PRIO = opt("prio", 1)
DRAIN2 = opt("drain2", 0)
AWR = opt("awr", 3)
PPART = opt("ppart", 3)
DRAIN0 = opt("drain0", 0)
def prio(n):
    if PRIO:
        A(f"s_setprio {n}")

def f32(x):
    return "0x%08x" % struct.unpack("<I", struct.pack("<f", x))[0]
def v(i, n=1):
    return "v%d" % i if n == 1 else "v[%d:%d]" % (i, i + n - 1)
def s(i, n=1):
    return "s%d" % i if n == 1 else "s[%d:%d]" % (i, i + n - 1)

A = Asm()
WS = "s[4:7]"; SRD1 = "s[8:11]"; SRD2 = "s[12:15]"; SRD3 = "s[16:19]"
NONCE = 20; WV = 21

def srd(base, ptr, nbytes):
    A(f"s_mov_b32 s{base}, s{ptr}")
    A(f"s_and_b32 s{base+1}, s{ptr+1}, 0xffff")
    A(f"s_mov_b32 s{base+2}, {nbytes}")
    A(f"s_mov_b32 s{base+3}, 0x00020000")

def set_exec(m):
    A(f"s_mov_b32 exec_lo, 0x{m & 0xffffffff:x}")
    A(f"s_mov_b32 exec_hi, 0x{m >> 32:x}")

def stamp(idx, lay=None, dbg=None):
    if MSTAMPS and dbg is not None:
        L = A.newlabel("Lst")
        A(f"s_mov_b32 s97, s{WV}")
        if len(dbg) > 2:
            A(f"s_sub_u32 s96, {lay}, {dbg[2]}")
            A(f"s_or_b32 s97, s97, s96")
        A(f"s_cmp_lg_u32 s97, 0")
        A(f"s_cbranch_scc1 {L}")
        A("s_memrealtime s[98:99]")
        A("s_waitcnt lgkmcnt(0)")
        A("s_and_b32 s98, s98, 0x7fffffff")
        A("v_mov_b32 v254, s98")
        A("v_mov_b32 v253, 0")
        A("s_mov_b64 exec, 1")
        if dbg[0] == 0:
            A(f"buffer_atomic_umax v254, v253, s[92:95], 0 offen offset:4")
            A("v_not_b32 v254, v254")
        if dbg[0] != 1:
            A(f"buffer_atomic_umax v254, v253, s[92:95], 0 offen offset:{dbg[0] * 4}")
        A("s_mov_b64 exec, -1")
        A.label(L)
    if DSTAMPS and dbg is not None:
        L = A.newlabel("Lst")
        A(f"s_lshl_b32 s97, s{WV}, 16")
        A(f"s_or_b32 s97, s97, s2")
        if len(dbg) > 2:
            A(f"s_lshl_b32 s96, {lay}, 20")
            A(f"s_or_b32 s97, s97, s96")
        A(f"s_cmp_lg_u32 s97, {dbg[1] + ((dbg[2] << 20) if len(dbg) > 2 else 0)}")
        A(f"s_cbranch_scc1 {L}")
        A("s_memrealtime s[98:99]")
        A("s_waitcnt lgkmcnt(0)")
        A("v_mov_b32 v254, s98")
        A("v_mov_b32 v253, 0")
        A("s_mov_b64 exec, 1")
        A(f"buffer_store_dword v254, v253, s[92:95], 0 offen offset:{dbg[0] * 4}")
        A("s_mov_b64 exec, -1")
        A.label(L)
    if not STAMPS:
        return
    L = A.newlabel("Lst")
    A(f"s_cmp_lg_u32 s{WV}, 0")
    A(f"s_cbranch_scc1 {L}")
    A("s_memrealtime s[98:99]")
    A("s_memtime s[100:101]")
    A("s_waitcnt lgkmcnt(0)")
    A("v_mov_b32 v254, s98")
    A("v_mov_b32 v255, s100")
    A("v_mov_b32 v253, 0")
    A("s_lshl_b32 s97, s2, 9")
    A(f"s_add_u32 s97, s97, {ST_OFF + idx * 8}")
    if lay is not None:
        A(f"s_lshl_b32 s96, {lay}, 6")
        A("s_add_u32 s97, s97, s96")
    A("s_mov_b64 exec, 1")
    A(f"buffer_store_dwordx2 v[254:255], v253, {WS}, s97 offen")
    A("s_mov_b64 exec, -1")
    A.label(L)

def spin_tail(loop, cnt, sleep=1):
    if sleep:
        A(f"s_sleep {sleep}")
    A(f"s_sub_u32 s{cnt}, s{cnt}, 1")
    A(f"s_cmp_lg_u32 s{cnt}, 0")
    A(f"s_cbranch_scc1 {loop}")

def any_sentinel(regs, t, done):
    regs = list(regs)
    A(f"v_max3_u32 {v(t)}, {v(regs[0])}, {v(regs[1])}, {v(regs[2])}")
    k = 3
    while k + 1 < len(regs):
        A(f"v_max3_u32 {v(t)}, {v(t)}, {v(regs[k])}, {v(regs[k+1])}")
        k += 2
    if k < len(regs):
        A(f"v_max_u32 {v(t)}, {v(t)}, {v(regs[k])}")
    A(f"v_cmp_eq_u32 vcc, -1, {v(t)}")
    A(f"s_cbranch_vccz {done}")

def poll_flags(k, srep, t, sleep=None):
    loop, done = A.newlabel("Lpoll"), A.newlabel("Lpolld")
    A(f"s_cmp_lg_u32 s{WV}, 0")
    A(f"s_cbranch_scc1 {done}")
    if isinstance(k, int):
        A(f"s_add_u32 s60, s{srep}, {FL_OFF + k * NREP * FREP}")
    else:
        A(f"s_mul_i32 s60, {k}, {NREP * FREP}")
        A(f"s_add_u32 s60, s60, s{srep}")
        A(f"s_add_u32 s60, s60, {FL_OFF}")
    A(f"s_add_u32 s61, s{NONCE}, {k}")
    A(f"v_and_b32 {v(t+1)}, 15, v1")
    A(f"v_lshlrev_b32 {v(t+1)}, {FSH}, {v(t+1)}")
    A(f"s_mov_b32 s62, {SPIN}")
    A.label(loop)
    A(f"buffer_load_dword {v(t)}, {v(t+1)}, {WS}, s60 offen sc1")
    A("s_waitcnt vmcnt(0)")
    A(f"v_cmp_ne_u32 vcc, s61, {v(t)}")
    A(f"s_cbranch_vccz {done}")
    spin_tail(loop, 62, PSLEEP if sleep is None else sleep)
    A.label(done)
    A("s_barrier")

def cnt_init(sshard, ks, t):
    for k in ks:
        A(f"s_add_u32 s60, s{sshard}, {16 * k}")
        A(f"s_lshl_b32 s60, s60, 7")
        A(f"s_add_u32 s60, s60, {CNT_OFF}")
        A(f"s_add_u32 s61, s{NONCE}, {k}")
        A(f"v_mov_b32 {v(t)}, 0")
        A(f"v_mov_b32 {v(t+1)}, s61")
        A(f"v_mov_b32 {v(t+2)}, 0")
        A("s_mov_b64 exec, 1")
        A(f"buffer_store_dwordx2 {v(t,2)}, {v(t+2)}, {WS}, s60 offen sc1")
        A("s_mov_b64 exec, -1")

def arrive_issue(k, sshard, t, aw=0):
    L = A.newlabel("Larr")
    A(f"s_cmp_lg_u32 s{WV}, {aw}")
    A(f"s_cbranch_scc1 {L}")
    if isinstance(k, int):
        A(f"s_add_u32 s66, s{sshard}, {16 * k}")
    else:
        A(f"s_lshl_b32 s66, {k}, 4")
        A(f"s_add_u32 s66, s66, s{sshard}")
    A(f"s_lshl_b32 s66, s66, 7")
    A(f"s_add_u32 s66, s66, {CNT_OFF}")
    A(f"v_mov_b32 {v(t)}, 1")
    A(f"v_mov_b32 {v(t+1)}, 0")
    A(f"v_mov_b32 {v(t+2)}, 0")
    A("s_mov_b64 exec, 1")
    A(f"buffer_atomic_add_x2 {v(t,2)}, {v(t+2)}, {WS}, s66 offen sc0")
    A("s_mov_b64 exec, -1")
    A.label(L)

def arrive_finish(k, sshard, slast, t, younger, aw=0, mark=None):
    L, again, chk = A.newlabel("Lsig"), A.newlabel("Lsiga"), A.newlabel("Lsigc")
    A(f"s_cmp_lg_u32 s{WV}, {aw}")
    A(f"s_cbranch_scc1 {L}")
    if isinstance(k, int):
        A(f"s_lshl_b32 s67, s{sshard}, {FSH}")
        A(f"s_add_u32 s67, s67, {FL_OFF + k * NREP * FREP}")
    else:
        A(f"s_mul_i32 s67, {k}, {NREP * FREP}")
        A(f"s_lshl_b32 s68, s{sshard}, {FSH}")
        A(f"s_add_u32 s67, s67, s68")
        A(f"s_add_u32 s67, s67, {FL_OFF}")
    A(f"s_add_u32 s68, s{NONCE}, {k}")
    A(f"v_lshlrev_b32 {v(t+3)}, {FSH + 4}, v1")
    A(f"v_mov_b32 {v(t+4)}, s68")
    A(f"s_mov_b32 s69, {SPIN}")
    if isinstance(younger, tuple):
        A(f"s_waitcnt vmcnt({younger[2]})")
        A(f"s_cmp_eq_u32 {younger[0]}, {younger[1]}")
        A(f"s_cbranch_scc1 {chk}")
        A("s_waitcnt vmcnt(0)")
    else:
        A(f"s_waitcnt vmcnt({younger})")
    A(f"s_branch {chk}")
    A.label(again)
    A(f"s_sub_u32 s69, s69, 1")
    A(f"s_cmp_eq_u32 s69, 0")
    A(f"s_cbranch_scc1 {L}")
    A(f"v_mov_b32 {v(t)}, 1")
    A(f"v_mov_b32 {v(t+1)}, 0")
    A(f"v_mov_b32 {v(t+2)}, 0")
    A("s_mov_b64 exec, 1")
    A(f"buffer_atomic_add_x2 {v(t,2)}, {v(t+2)}, {WS}, s66 offen sc0")
    A("s_mov_b64 exec, -1")
    A("s_waitcnt vmcnt(0)")
    A.label(chk)
    A(f"v_readfirstlane_b32 s65, {v(t+1)}")
    A(f"v_readfirstlane_b32 s64, {v(t)}")
    A(f"s_cmp_lg_u32 s65, s68")
    A(f"s_cbranch_scc1 {again}")
    A(f"s_cmp_lg_u32 s64, {slast}")
    A(f"s_cbranch_scc1 {L}")
    set_exec((1 << NREP) - 1)
    A(f"buffer_store_dword {v(t+4)}, {v(t+3)}, {WS}, s67 offen sc1")
    A("s_mov_b64 exec, -1")
    if mark:
        A(f"s_mov_b32 {mark}, 1")
    A.label(L)

def rnd_pair(a, b, t):
    A(f"v_cvt_pk_bf16_f32 {v(t)}, {v(a)}, {v(b)}")
    A(f"v_lshlrev_b32 {v(a)}, 16, {v(t)}")
    A(f"v_and_b32 {v(b)}, 0xffff0000, {v(t)}")

def sincos(arg, c, sn):
    A(f"v_cos_f32 {v(c)}, {v(arg)}")
    A(f"v_sin_f32 {v(sn)}, {v(arg)}")

def prefetch_weights(t):
    if not opt("pref", 0):
        return
    srd(84, 46, 2211840)
    A(f"v_lshlrev_b32 {v(t)}, 4, v0")
    A(f"s_sub_u32 s60, s2, {C0}")
    for r in range(7):
        Ls, Ld = A.newlabel("Lpf"), A.newlabel("Lpf")
        A(f"s_add_u32 s61, s60, {235 * r}")
        A(f"s_cmp_ge_u32 s61, 1620")
        A(f"s_cbranch_scc1 {Ld}")
        A(f"s_mov_b32 s84, s46")
        A(f"s_and_b32 s85, s47, 0xffff")
        for (lim, p) in ((540, 48), (540, 50)):
            A(f"s_cmp_lt_u32 s61, {lim}")
            A(f"s_cbranch_scc1 {Ls}")
            A(f"s_sub_u32 s61, s61, {lim}")
            A(f"s_mov_b32 s84, s{p}")
            A(f"s_and_b32 s85, s{p+1}, 0xffff")
        A.label(Ls)
        A(f"s_lshl_b32 s61, s61, 12")
        A(f"buffer_load_dwordx4 {v(t+4,4)}, {v(t)}, s[84:87], s61 offen")
        A.label(Ld)

def fb_start(x, d):
    A(f"s_mul_i32 {d}, {x}, 3")
    A(f"s_lshl_b32 s62, {x}, 1")
    A(f"s_add_u32 s62, s62, 3")
    A(f"s_min_u32 {d}, {d}, s62")

def nloads(part):
    return bin(part).count("1")

def warm_weights(t, first, nshare, part):
    ra, rb = -(-640 // nshare), -(-1728 // nshare)
    A("s_and_b32 s61, s2, 7")
    A(f"s_sub_u32 s60, s2, {first}")
    A("s_lshr_b32 s60, s60, 3")
    srd(84, 46, 2211840)
    if part & 5:
        A(f"v_lshrrev_b32 {v(t)}, 2, v0")
        A(f"v_and_b32 {v(t+1)}, 3, v0")
        A(f"v_min_u32 {v(t)}, {ra - 1}, {v(t)}")
        A(f"s_mul_i32 s64, s60, {ra}")
        A(f"v_add_u32 {v(t)}, s64, {v(t)}")
        A("s_mul_i32 s63, s61, 7")
        A("s_sub_u32 s63, s63, 1")
        A("s_max_i32 s63, s63, 0")
        A("s_lshl_b32 s63, s63, 6")
        A("s_and_b32 s63, s63, -128")
        A(f"v_lshl_add_u32 {v(t+1)}, {v(t+1)}, 7, s63")
        A(f"s_movk_i32 s64, 3456")
        A(f"v_mad_u32_u24 {v(t+1)}, {v(t)}, s64, {v(t+1)}")
        if part & 1:
            A(f"buffer_load_dword {v(t+3)}, {v(t+1)}, s[84:87], 0 offen")
        if part & 4:
            A("s_mov_b32 s84, s48")
            A("s_and_b32 s85, s49, 0xffff")
            A(f"buffer_load_dword {v(t+3)}, {v(t+1)}, s[84:87], 0 offen")
    if part & 2:
        A(f"v_lshrrev_b32 {v(t)}, 1, v0")
        A(f"v_and_b32 {v(t+1)}, 1, v0")
        A(f"v_min_u32 {v(t)}, {rb - 1}, {v(t)}")
        A(f"s_mul_i32 s64, s60, {rb}")
        A(f"v_add_u32 {v(t)}, s64, {v(t)}")
        fb_start("s61", "s63")
        A("s_lshl_b32 s63, s63, 6")
        A("s_and_b32 s63, s63, -128")
        A(f"v_lshl_add_u32 {v(t+1)}, {v(t+1)}, 7, s63")
        A(f"s_movk_i32 s64, 1280")
        A(f"v_mad_u32_u24 {v(t+1)}, {v(t)}, s64, {v(t+1)}")
        A("s_mov_b32 s84, s50")
        A("s_and_b32 s85, s51, 0xffff")
        A(f"buffer_load_dword {v(t+3)}, {v(t+1)}, s[84:87], 0 offen")

def warm_coop(t):
    A("s_and_b32 s61, s2, 7")
    A(f"s_sub_u32 s60, s2, {FA0 - 1}")
    A("s_lshr_b32 s60, s60, 3")
    A("s_cmp_eq_u32 s61, 0")
    A("s_cselect_b32 s62, 1, 0")
    A("s_sub_u32 s60, s60, s62")
    A("s_min_u32 s60, s60, 8")
    A("s_mul_i32 s63, s61, 7")
    A("s_sub_u32 s63, s63, 1")
    A("s_max_i32 s63, s63, 0")
    A("s_lshl_b32 s63, s63, 6")
    A("s_and_b32 s63, s63, -128")
    A(f"v_and_b32 {v(t+1)}, 3, v0")
    A(f"v_lshl_add_u32 {v(t+1)}, {v(t+1)}, 7, s63")
    A(f"s_mul_i32 s64, s60, 72")
    A(f"s_movk_i32 s65, 3456")
    srd(84, 46, 2211840)
    srd(88, 48, 2211840)
    for p in range(2 if opt("coop", 4) & 5 else 0):
        A(f"v_lshrrev_b32 {v(t)}, 2, v0")
        A(f"v_add_u32 {v(t)}, {64 * p}, {v(t)}")
        A(f"v_min_u32 {v(t)}, 71, {v(t)}")
        A(f"v_add_u32 {v(t)}, s64, {v(t)}")
        A(f"v_mad_u32_u24 {v(t)}, {v(t)}, s65, {v(t+1)}")
        if p == 1:
            set_exec(0xffffffff)
        if opt("coop", 4) & 1:
            A(f"buffer_load_dword {v(t+3)}, {v(t)}, s[84:87], 0 offen")
        if opt("coop", 4) & 4:
            A(f"buffer_load_dword {v(t+3)}, {v(t)}, s[88:91], 0 offen")
    A("s_mov_b64 exec, -1")
    fb_start("s61", "s63")
    A("s_lshl_b32 s63, s63, 6")
    A("s_and_b32 s63, s63, -128")
    A(f"v_and_b32 {v(t+1)}, 1, v0")
    A(f"v_lshl_add_u32 {v(t+1)}, {v(t+1)}, 7, s63")
    A(f"s_mul_i32 s64, s60, 192")
    A(f"s_movk_i32 s65, 1280")
    A("s_mov_b32 s84, s50")
    A("s_and_b32 s85, s51, 0xffff")
    for p in range(2 if opt("coop", 4) & 2 else 0):
        A(f"v_lshrrev_b32 {v(t)}, 1, v0")
        A(f"v_add_u32 {v(t)}, {128 * p}, {v(t)}")
        A(f"v_min_u32 {v(t)}, 191, {v(t)}")
        A(f"v_add_u32 {v(t)}, s64, {v(t)}")
        A(f"v_mad_u32_u24 {v(t)}, {v(t)}, s65, {v(t+1)}")
        A(f"buffer_load_dword {v(t+3)}, {v(t)}, s[84:87], 0 offen")
    A("s_waitcnt vmcnt(0)")

def touch(t, base, nbytes):
    if not opt("touch", 0):
        return
    n = (nbytes + 65535) >> 16
    assert n <= 256
    A(f"v_min_u32 {v(t)}, {n - 1}, v0")
    A(f"v_lshlrev_b32 {v(t)}, 16, {v(t)}")
    A(f"s_mov_b32 s60, {base + opt('touchoff', 2624)}")
    A(f"buffer_load_dword {v(t)}, {v(t)}, {WS}, s60 offen")
    A("s_waitcnt vmcnt(0)")

def nonce_load(r):
    A(f"v_mov_b32 {v(r)}, 0")
    A(f"buffer_load_dword {v(r)}, {v(r)}, {WS}, 0 offen")

def nonce_take(r):
    A(f"v_readfirstlane_b32 s{NONCE}, {v(r)}")
    A(f"s_add_u32 s{NONCE}, s{NONCE}, 0x{NONCE_C:x}")

def prologue():
    A(f"s_cmp_ge_u32 s2, {NWG}")
    A("s_cbranch_scc1 L_end")
    if opt("t0", 0):
        A("s_memrealtime s[90:91]")
    A("s_load_dwordx2 s[40:41], s[0:1], 96")
    A("s_load_dwordx2 s[42:43], s[0:1], 0")
    A("s_load_dwordx4 s[44:47], s[0:1], 48")
    A("s_load_dwordx4 s[48:51], s[0:1], 64")
    A("s_load_dwordx4 s[52:55], s[0:1], 80")
    if opt("codepf", 1):
        A("s_getpc_b64 s[60:61]")
        A("s_and_b32 s60, s60, -256")
        A("v_lshlrev_b32 v2, 7, v0")
        A("v_mov_b32 v3, s61")
        A("v_add_co_u32 v2, vcc, s60, v2")
        A("v_addc_co_u32 v3, vcc, 0, v3, vcc")
        A("v_cmp_gt_u32 vcc, CODE_LINES, v0")
        A("s_and_saveexec_b64 s[62:63], vcc")
        A("s_cbranch_execz L_nopf")
        A("global_load_dword v255, v[2:3], off")
        A("v_add_co_u32 v2, vcc, 0x8000, v2")
        A("v_addc_co_u32 v3, vcc, 0, v3, vcc")
        A("v_cmp_gt_u32 vcc, CODE_LINES2, v0")
        A("s_and_b64 exec, exec, vcc")
        A("s_cbranch_execz L_nopf")
        A("global_load_dword v255, v[2:3], off")
        A.label("L_nopf")
        A("s_mov_b64 exec, s[62:63]")
    A("v_lshrrev_b32 v2, 6, v0")
    A("v_and_b32 v1, 63, v0")
    A(f"v_readfirstlane_b32 s{WV}, v2")
    A("s_waitcnt lgkmcnt(0)")
    srd(4, 40, WS_BYTES)
    if DSTAMPS or MSTAMPS:
        srd(92, 54, 256)
    stamp(31, dbg=(0, 0))
    if opt("t0", 0):
        L = A.newlabel("Lt0")
        A(f"s_lshl_b32 s97, s{WV}, 16")
        A(f"s_or_b32 s97, s97, s2")
        A(f"s_cmp_lg_u32 s97, 0")
        A(f"s_cbranch_scc1 {L}")
        A("v_mov_b32 v254, s90")
        A("v_mov_b32 v253, 0")
        A("s_mov_b64 exec, 1")
        A(f"buffer_store_dword v254, v253, s[92:95], 0 offen offset:4")
        A("s_mov_b64 exec, -1")
        A.label(L)
    A(f"s_cmp_lt_u32 s2, {C0}")
    A("s_cbranch_scc1 L_roleR")
    A(f"s_cmp_lt_u32 s2, {FA0}")
    A("s_cbranch_scc1 L_roleC")
    A(f"s_cmp_lt_u32 s2, {FB0}")
    A("s_cbranch_scc1 L_roleFa")
    A("s_branch L_roleFb")

B1R, B1I, TWC, TWS, B2R, B2I, WR, INV = 16, 28, 40, 56, 72, 88, 104, 114
X, XN, MM, RS = 116, 136, 156, 158
ACR, ACI, AF1, AF2, AC2R, AC2I = 160, 176, 192, 204, 220, 236
vX, vY0, vY1, vY2, vKX, vLC, vLYW, vLYR, vLWW, vLWR0, vWG, vTA = 2, 3, 4, 5, 6, 7, 8, 9, 10, 11, 14, 15
vTB, vWG1 = 252, 115
sRHO, sA, sS2, sRA, sME, sREP, sXO, sWB, sTB, sP, sS, sQ = 22, 23, 24, 25, 26, 27, 28, 29, 30, 32, 34, 36
sSEL = 80
s32f = 38
sTAU = 39
LDS_Y, LDS_W, LDS_NEW, LDS_KX, LDS_CONST, LDS_RG = 0, 10240, 21504, 31744, 24576, 52224

def reduce_tail(r):
    for k in (8, 4, 2, 1):
        A(f"v_add_f32_dpp {v(r)}, {v(r)}, {v(r)} row_ror:{k} row_mask:0xf bank_mask:0xf")

def tau_of(w, t, scale):
    A(f"v_pk_mul_f32 {v(t,2)}, {v(w,2)}, {v(w,2)}")
    for i in range(2, 10, 2):
        A(f"v_pk_fma_f32 {v(t,2)}, {v(w+i,2)}, {v(w+i,2)}, {v(t,2)}")
    A(f"v_add_f32 {v(t)}, {v(t)}, {v(t+1)}")
    for sw in ("32", "16"):
        A(f"v_mov_b32 {v(t+1)}, {v(t)}")
        A(f"v_permlane{sw}_swap_b32 {v(t)}, {v(t+1)}")
        A(f"v_add_f32 {v(t)}, {v(t)}, {v(t+1)}")
    reduce_tail(t)
    A(f"v_sqrt_f32 {v(t)}, {v(t)}")
    A(f"v_mul_f32 {v(t)}, {f32(scale * opt('tau', 200) / 100)}, {v(t)}")

def ln_stats(xb, t):
    A.comment("layer-norm statistics (pivot-shifted sums; mean, variance, +eps and sqrt rounded to bf16 like the reference)")
    S_, Q_, D0, D1 = t, t + 2, t + 4, t + 6
    A(f"v_readfirstlane_b32 s{sP}, {v(xb)}")
    A(f"v_readfirstlane_b32 s{sP+1}, {v(xb+1)}")
    for i in range(10):
        D = S_ if i == 0 else (D0 if i % 2 else D1)
        A(f"v_pk_add_f32 {v(D,2)}, {v(xb+2*i,2)}, {s(sP,2)} neg_lo:[0,1] neg_hi:[0,1]")
        if i == 0:
            A(f"v_pk_mul_f32 {v(Q_,2)}, {v(D,2)}, {v(D,2)}")
        else:
            A(f"v_pk_add_f32 {v(S_,2)}, {v(S_,2)}, {v(D,2)}")
            A(f"v_pk_fma_f32 {v(Q_,2)}, {v(D,2)}, {v(D,2)}, {v(Q_,2)}")
    A(f"v_permlane32_swap_b32 {v(S_)}, {v(S_+1)}")
    A(f"v_permlane32_swap_b32 {v(Q_)}, {v(Q_+1)}")
    A(f"v_add_f32 {v(S_)}, {v(S_)}, {v(S_+1)}")
    A(f"v_add_f32 {v(Q_)}, {v(Q_)}, {v(Q_+1)}")
    A(f"v_permlane16_swap_b32 {v(S_)}, {v(Q_)}")
    A(f"v_add_f32 {v(S_)}, {v(S_)}, {v(Q_)}")
    reduce_tail(S_)
    A(f"v_readlane_b32 s{sS}, {v(S_)}, 0")
    A(f"v_readlane_b32 s{sS+1}, {v(S_)}, 32")
    A(f"v_readlane_b32 s{sQ}, {v(S_)}, 16")
    A(f"v_readlane_b32 s{sQ+1}, {v(S_)}, 48")
    A(f"v_pk_mul_f32 {v(MM,2)}, {s(sS,2)}, {v(INV,2)} op_sel_hi:[1,0]")
    A(f"v_pk_mul_f32 {v(RS,2)}, {s(sQ,2)}, {v(INV,2)} op_sel_hi:[1,0]")
    A(f"v_pk_fma_f32 {v(RS,2)}, {v(MM,2)}, {v(MM,2)}, {v(RS,2)} neg_lo:[1,0,0] neg_hi:[1,0,0]")
    A(f"v_pk_add_f32 {v(MM,2)}, {v(MM,2)}, {s(sP,2)}")
    A(f"v_max_f32 {v(RS)}, 0, {v(RS)}")
    A(f"v_max_f32 {v(RS+1)}, 0, {v(RS+1)}")
    rnd_pair(RS, RS + 1, D0)
    A(f"v_add_f32 {v(RS)}, {f32(1e-5)}, {v(RS)}")
    A(f"v_add_f32 {v(RS+1)}, {f32(1e-5)}, {v(RS+1)}")
    rnd_pair(RS, RS + 1, D0)
    A(f"v_sqrt_f32 {v(RS)}, {v(RS)}")
    A(f"v_sqrt_f32 {v(RS+1)}, {v(RS+1)}")
    rnd_pair(MM, MM + 1, D1)
    rnd_pair(RS, RS + 1, D0)
    A(f"v_rcp_f32 {v(RS)}, {v(RS)}")
    A(f"v_rcp_f32 {v(RS+1)}, {v(RS+1)}")

def ln_center_scale(xb, zb, t, exact=True):
    if not exact:
        A(f"v_pk_mul_f32 {v(t,2)}, {v(MM,2)}, {v(RS,2)} neg_lo:[1,0] neg_hi:[1,0]")
        for i in range(10):
            A(f"v_pk_fma_f32 {v(zb+2*i,2)}, {v(xb+2*i,2)}, {v(RS,2)}, {v(t,2)}")
        return
    for i in range(10):
        A(f"v_pk_add_f32 {v(zb+2*i,2)}, {v(xb+2*i,2)}, {v(MM,2)} neg_lo:[0,1] neg_hi:[0,1]")
        if exact:
            rnd_pair(zb + 2 * i, zb + 2 * i + 1, t + (i % 4))
    for i in range(10):
        A(f"v_pk_mul_f32 {v(zb+2*i,2)}, {v(zb+2*i,2)}, {v(RS,2)}")

def pack_rows(zb, pa, pb):
    for u in range(5):
        A(f"v_cvt_pk_bf16_f32 {v(pa+u)}, {v(zb+4*u)}, {v(zb+4*u+2)}")
        A(f"v_cvt_pk_bf16_f32 {v(pb+u)}, {v(zb+4*u+1)}, {v(zb+4*u+3)}")

def unpack_rows(zb, pa, pb):
    for u in range(5):
        A(f"v_lshlrev_b32 {v(zb+4*u)}, 16, {v(pa+u)}")
        A(f"v_and_b32 {v(zb+4*u+2)}, 0xffff0000, {v(pa+u)}")
        A(f"v_lshlrev_b32 {v(zb+4*u+1)}, 16, {v(pb+u)}")
        A(f"v_and_b32 {v(zb+4*u+3)}, 0xffff0000, {v(pb+u)}")

def store_rows(pa, pa4, pb, pb4, off, sb=sTB):
    A(f"buffer_store_dwordx4 {v(pa,4)}, {v(vTA)}, {WS}, s{sb} offen offset:{off} sc1")
    A(f"buffer_store_dword {v(pa4)}, {v(vTB)}, {WS}, s{sb} offen offset:{off} sc1")
    A(f"buffer_store_dwordx4 {v(pb,4)}, {v(vTA)}, {WS}, s{sb+1} offen offset:{off} sc1")
    A(f"buffer_store_dword {v(pb4)}, {v(vTB)}, {WS}, s{sb+1} offen offset:{off} sc1")

def to_f16(zb, t, sub=None):
    for i in range(10):
        if EXACT:
            rnd_pair(zb + 2 * i, zb + 2 * i + 1, t + (i % 4))
        A(f"v_cvt_pk_f16_f32 {v(AF1+i)}, {v(zb+2*i)}, {v(zb+2*i+1)}")
        if sub is not None:
            A(f"v_pk_add_f16 {v(AF1+i)}, {v(AF1+i)}, {v(sub(i))} neg_lo:[0,1] neg_hi:[0,1]")

def row_dft(t, shadow1=None, shadow2=None):
    for kk in range(3):
        c = "0" if kk == 0 else None
        A(f"v_mfma_f32_32x32x16_f16 {v(ACR,16)}, {v(AF1+4*kk,4)}, {v(B1R+4*kk,4)}, {c or v(ACR,16)}")
        A(f"v_mfma_f32_32x32x16_f16 {v(ACI,16)}, {v(AF1+4*kk,4)}, {v(B1I+4*kk,4)}, {c or v(ACI,16)}")
    if shadow1:
        shadow1()
    for kk in range(4):
        for i in (4 * kk, 4 * kk + 2):
            pr, pi = t + (i % 4) * 2, t + (i % 4) * 2 + 2
            A(f"v_pk_mul_f32 {v(pr,2)}, {v(ACR+i,2)}, {v(TWC+i,2)}")
            A(f"v_pk_mul_f32 {v(pi,2)}, {v(ACI+i,2)}, {v(TWC+i,2)}")
            A(f"v_pk_fma_f32 {v(pr,2)}, {v(ACI+i,2)}, {v(TWS+i,2)}, {v(pr,2)}")
            A(f"v_pk_fma_f32 {v(pi,2)}, {v(ACR+i,2)}, {v(TWS+i,2)}, {v(pi,2)} neg_lo:[1,0,0] neg_hi:[1,0,0]")
            A(f"v_cvt_pk_f16_f32 {v(AF2+i)}, {v(pr)}, {v(pi)}")
            A(f"v_cvt_pk_f16_f32 {v(AF2+i+1)}, {v(pr+1)}, {v(pi+1)}")
        c = "0" if kk == 0 else None
        A(f"v_mfma_f32_32x32x16_f16 {v(AC2R,16)}, {v(AF2+4*kk,4)}, {v(B2R+4*kk,4)}, {c or v(AC2R,16)}")
        A(f"v_mfma_f32_32x32x16_f16 {v(AC2I,16)}, {v(AF2+4*kk,4)}, {v(B2I+4*kk,4)}, {c or v(AC2I,16)}")
    if shadow2:
        shadow2()

def W_stores(layer, r0, r1, r2, lds=True):
    L = A.newlabel("Lw2")
    A(f"s_add_u32 s60, s{sWB}, {W_OFF + layer * W_SZ}")
    A(f"s_add_u32 s62, s60, {8192 + 112}")
    if lds:
        A("s_waitcnt lgkmcnt(2)")
    A(f"buffer_store_dwordx4 {v(r0,4)}, {v(vWG)}, {WS}, s60 offen sc1")
    if lds:
        A("s_waitcnt lgkmcnt(0)")
    A(f"buffer_store_dwordx4 {v(r1,4)}, {v(vWG1)}, {WS}, s60 offen sc1")
    A(f"s_cmp_ge_u32 s{WV}, 2")
    A(f"s_cbranch_scc1 {L}")
    if lds:
        A(f"ds_read2st64_b32 {v(r2,2)}, {v(vLWR0+2)} offset0:0 offset1:11")
        A(f"ds_read2st64_b32 {v(r2+2,2)}, {v(vLWR0+2)} offset0:22 offset1:33")
        A("s_waitcnt lgkmcnt(0)")
    A(f"buffer_store_dwordx4 {v(r2,4)}, {v(vWG)}, {WS}, s62 offen sc1")
    A.label(L)

def write_W(layer):
    k = 2 * layer
    for i in range(10):
        A(f"v_cvt_pk_f16_f32 {v(ACR+i)}, {v(AC2R+i)}, {v(AC2I+i)}")
        A(f"ds_write_b32 {v(vLWW)}, {v(ACR+i)} offset:{4*i}")
    A("s_waitcnt lgkmcnt(0)")
    A("s_barrier")
    for j in range(2):
        A(f"ds_read2st64_b32 {v(ACI+4*j,2)}, {v(vLWR0+j)} offset0:0 offset1:11")
        A(f"ds_read2st64_b32 {v(ACI+4*j+2,2)}, {v(vLWR0+j)} offset0:22 offset1:33")
    if EARLY_R == 0:
        arrive_issue(k, sME, AF2)
    W_stores(layer, ACI, ACI + 4, ACI + 8)
    if EARLY_R == 0:
        arrive_finish(k, sME, 15, AF2, 3)
    if (layer == 1 and DRAIN2) or (layer == 0 and DRAIN0):
        A("s_waitcnt vmcnt(0)")
        A("s_barrier")
        arrive_issue(k, sME, AF2)
        arrive_finish(k, sME, 15, AF2, 0)

def stage_Y(layer, first=None, shadow=None):
    c0, c1, c2, t = ACR, ACR + 4, ACR + 8, ACR + 16
    loop, L2, L4, L5, done = [A.newlabel("Ly") for _ in range(5)]
    A(f"s_mov_b32 s60, {Y_OFF + layer * Y_SZ}")
    A(f"s_mov_b32 s62, {SPIN}")
    for k in range(4):
        A(f"v_mov_b32 {v(c2+k)}, 0")
    if first:
        first()
    A("s_mov_b64 vcc, -1")
    A.label(loop)
    A("s_mov_b64 exec, vcc")
    A(f"buffer_load_dwordx4 {v(c0,4)}, {v(vY0)}, {WS}, s60 offen sc1")
    A(f"buffer_load_dwordx4 {v(c1,4)}, {v(vY1)}, {WS}, s60 offen sc1")
    A(f"s_cmp_ge_u32 s{WV}, 2")
    A(f"s_cbranch_scc1 {L2}")
    A(f"buffer_load_dwordx4 {v(c2,4)}, {v(vY2)}, {WS}, s60 offen sc1")
    A.label(L2)
    A("s_mov_b64 exec, -1")
    if shadow:
        Lsh = A.newlabel("Ly")
        A(f"s_cmp_lg_u32 s62, {SPIN}")
        A(f"s_cbranch_scc1 {Lsh}")
        shadow()
        A.label(Lsh)
    A("s_waitcnt vmcnt(0)")
    if layer == 0 or not DRAIN2:
        any_sentinel(range(c0, c0 + 12), t, done)
        spin_tail(loop, 62, opt("ysleep", 0))
    A.label(done)
    A(f"ds_write2st64_b32 {v(vLYW)}, {v(c0)}, {v(c0+1)} offset0:0 offset1:10")
    A(f"ds_write2st64_b32 {v(vLYW)}, {v(c0+2)}, {v(c0+3)} offset0:20 offset1:30")
    A(f"s_cmp_eq_u32 s{WV}, 0")
    A(f"s_cbranch_scc1 {L4}")
    for k in range(4):
        A(f"v_alignbit_b32 {v(t+k)}, {v(c1+3-k)}, {v(c1+3-k)}, 16")
    for k in range(4):
        A(f"v_mov_b32 {v(c1+k)}, {v(t+k)}")
    A.label(L4)
    A(f"ds_write2st64_b32 {v(vLYW)}, {v(c1)}, {v(c1+1)} offset0:4 offset1:14")
    A(f"ds_write2st64_b32 {v(vLYW)}, {v(c1+2)}, {v(c1+3)} offset0:24 offset1:34")
    A(f"s_cmp_ge_u32 s{WV}, 2")
    A(f"s_cbranch_scc1 {L5}")
    for k in range(4):
        A(f"v_alignbit_b32 {v(t+k)}, {v(c2+3-k)}, {v(c2+3-k)}, 16")
    A(f"ds_write2st64_b32 {v(vLYW)}, {v(t)}, {v(t+1)} offset0:8 offset1:18")
    A(f"ds_write2st64_b32 {v(vLYW)}, {v(t+2)}, {v(t+3)} offset0:28 offset1:38")
    A.label(L5)
    A("s_waitcnt lgkmcnt(0)")
    A("s_barrier")

def router_publish(layer, t, pa, pb):
    R_ = t
    for i in range(10):
        os_ = i & 1
        wv = v(WR + (i & ~1), 2)
        if i == 0:
            A(f"v_pk_mul_f32 {v(R_,2)}, {v(XN,2)}, {wv} op_sel:[0,{os_}] op_sel_hi:[1,{os_}]")
        else:
            A(f"v_pk_fma_f32 {v(R_,2)}, {v(XN+2*i,2)}, {wv}, {v(R_,2)} op_sel:[0,{os_},0] op_sel_hi:[1,{os_},1]")
    fill = []
    if not EXACT1:
        for u in range(5):
            fill.append(f"v_cvt_pk_bf16_f32 {v(pa+u)}, {v(XN+4*u)}, {v(XN+4*u+2)}")
            fill.append(f"v_cvt_pk_bf16_f32 {v(pb+u)}, {v(XN+4*u+1)}, {v(XN+4*u+3)}")
    def pad(n=2):
        for _ in range(n):
            if fill:
                A(fill.pop(0))
    pad()
    A(f"v_permlane32_swap_b32 {v(R_)}, {v(R_+1)}")
    A(f"v_add_f32 {v(R_)}, {v(R_)}, {v(R_+1)}")
    A(f"v_mov_b32 {v(R_+1)}, {v(R_)}")
    pad()
    A(f"v_permlane16_swap_b32 {v(R_)}, {v(R_+1)}")
    A(f"v_add_f32 {v(R_)}, {v(R_)}, {v(R_+1)}")
    for k in (8, 4, 2, 1):
        pad()
        A(f"v_add_f32_dpp {v(R_)}, {v(R_)}, {v(R_)} row_ror:{k} row_mask:0xf bank_mask:0xf")
    pad(10)
    A(f"v_cmp_le_f32 vcc, s{sTAU}, {v(R_)}")
    A(f"v_readlane_b32 s71, {v(R_)}, 32")
    A("s_mov_b64 s[56:57], vcc")
    for row, (p_, half) in enumerate(((pa, "vcc_lo"), (pb, "vcc_hi"))):
        Lr = A.newlabel("Lcand")
        A(f"s_cmp_eq_u32 {half}, 0")
        A(f"s_cbranch_scc1 {Lr}")
        A(f"buffer_store_dwordx4 {v(p_,4)}, {v(vTA)}, {WS}, s{sTB+row} offen sc1")
        A(f"buffer_store_dword {v(p_+4)}, {v(vTB)}, {WS}, s{sTB+row} offen sc1")
        A.label(Lr)
    A(f"s_lshl_b32 s70, s{WV}, 2")
    A(f"s_add_u32 s70, s70, {LDS_RG}")
    A(f"v_mov_b32 {v(R_+2)}, s70")
    A(f"v_cvt_pk_bf16_f32 {v(R_)}, {v(R_)}, s71")
    A(f"v_lshrrev_b32 {v(R_+1)}, 15, {v(R_)}")
    A(f"v_and_b32 {v(R_+1)}, 0x10001, {v(R_+1)}")
    A(f"v_mul_u32_u24 {v(R_+1)}, 0x7fff, {v(R_+1)}")
    A(f"v_or_b32 {v(R_+1)}, 0x80008000, {v(R_+1)}")
    A(f"v_xor_b32 {v(R_)}, {v(R_)}, {v(R_+1)}")
    A(f"v_min_u32 {v(R_)}, -2, {v(R_)}")
    A("s_mov_b64 exec, 1")
    A(f"ds_write_b32 {v(R_+2)}, {v(R_)}")
    A("s_mov_b64 exec, -1")
    A("s_waitcnt vmcnt(0) lgkmcnt(0)")
    A("s_barrier")
    L = A.newlabel("Lrp")
    A(f"s_cmp_lg_u32 s{WV}, 0")
    A(f"s_cbranch_scc1 {L}")
    A(f"ds_read_b128 {v(R_+4,4)}, {v(R_+2)}")
    A(f"v_lshlrev_b32 {v(R_+2)}, {RSH + 8}, v1")
    A(f"s_lshl_b32 s73, s{sRHO}, {RSH}")
    A(f"s_add_u32 s73, s73, {RG_OFF + layer * NRR * RG_REP}")
    set_exec((1 << NRR) - 1)
    A("s_waitcnt lgkmcnt(0)")
    A(f"buffer_store_dwordx4 {v(R_+4,4)}, {v(R_+2)}, {WS}, s73 offen sc1")
    A("s_mov_b64 exec, -1")
    A.label(L)

def roleR():
    A.label("L_roleR")
    prio(2)
    srd(8, 42, 2621440)
    A("s_and_b32 s60, s2, 7")
    A("s_lshr_b32 s61, s2, 3")
    A(f"s_lshr_b32 s{sA}, s61, 3")
    A("s_and_b32 s61, s61, 7")
    A("s_lshl_b32 s60, s60, 3")
    A("s_sub_u32 s62, 56, s60")
    A(f"s_cmp_lt_u32 s{sA}, 2")
    A("s_cselect_b32 s60, s60, s62")
    A(f"s_add_u32 s{sS2}, s60, s61")
    A(f"s_lshl_b32 s60, s{sA}, 9")
    A(f"s_lshl_b32 s61, s{WV}, 7")
    A(f"s_add_u32 s{sRA}, s60, s61")
    A(f"s_add_u32 s{sRA}, s{sRA}, s{sS2}")
    A(f"s_mul_i32 s{sXO}, s{sRA}, 1280")
    A(f"s_add_u32 s63, s{sXO}, {64 * 1280}")
    T = ACR
    n, h = T, T + 1
    A(f"v_and_b32 {v(n)}, 31, v1")
    A(f"v_lshrrev_b32 {v(h)}, 5, v1")
    A(f"v_mul_u32_u24 {v(vX)}, 640, {v(h)}")
    A(f"v_lshl_add_u32 {v(vX)}, {v(n)}, 1, {v(vX)}")
    XW = opt("xwide", 0)
    XR = AC2R + 8
    if XW:
        A(f"v_lshlrev_b32 {v(XR+12)}, 4, v1")
        A(f"v_add_u32 {v(XR+13)}, {1024 + 63 * 1280}, {v(XR+12)}")
        A(f"v_add_u32 {v(XR+14)}, 1024, {v(XR+12)}")
        A(f"v_cmp_gt_u32 vcc, 16, v1")
        A(f"buffer_load_dwordx4 {v(XR,4)}, {v(XR+12)}, {SRD1}, s{sXO} offen")
        A(f"v_cndmask_b32 {v(XR+14)}, {v(XR+13)}, {v(XR+14)}, vcc")
        A(f"buffer_load_dwordx4 {v(XR+4,4)}, {v(XR+14)}, {SRD1}, s{sXO} offen")
        set_exec(0xffffffff)
        A(f"buffer_load_dwordx4 {v(XR+8,4)}, {v(XR+13)}, {SRD1}, s{sXO} offen offset:1024")
        A("s_mov_b64 exec, -1")
        for i in range(20):
            A(f"v_mov_b32 {v(X+i)}, 0")
    else:
        for i in range(10):
            A(f"v_mov_b32 {v(X+2*i)}, 0")
            A(f"v_mov_b32 {v(X+2*i+1)}, 0")
            A(f"buffer_load_short_d16_hi {v(X+2*i)}, {v(vX)}, {SRD1}, s{sXO} offen offset:{64*i}")
            A(f"buffer_load_short_d16_hi {v(X+2*i+1)}, {v(vX)}, {SRD1}, s63 offen offset:{64*i}")
    NV = XN
    nonce_load(NV)
    ONES = XN + 4
    A(f"s_lshl_b32 s{sRHO}, s{sA}, 6")
    A(f"s_add_u32 s{sRHO}, s{sRHO}, s{sS2}")
    A(f"s_mul_i32 s{sWB}, s{sRHO}, {WROW}")
    for k in range(4):
        A(f"v_mov_b32 {v(ONES+k)}, -1")
    A(f"v_lshlrev_b32 {v(vWG)}, 4, v0")
    A(f"v_add_u32 {v(vWG1)}, {4096 + 112}, {v(vWG)}")
    A(f"v_add_u32 {v(T+2)}, 4096, {v(vWG)}")
    A(f"v_cmp_gt_u32 vcc, 65, v0")
    A(f"v_cndmask_b32 {v(vWG1)}, {v(vWG1)}, {v(T+2)}, vcc")
    A(f"v_lshlrev_b32 {v(T+4)}, 3, v0")
    A(f"s_lshl_b32 s61, s{sRHO}, 11")
    A(f"s_add_u32 s61, s61, {RESET_OFF}")
    A(f"buffer_store_dwordx2 {v(ONES,2)}, {v(T+4)}, {WS}, s61 offen sc1")
    LATEF = opt("latefill", 0)
    if not DRAIN0 and not LATEF:
        W_stores(0, ONES, ONES, ONES, lds=False)
    PREFR = opt("prefr", 0)
    if PREFR == 1:
        warm_weights(AC2R, 0, 32, PPART)
    e1, e1s, base, arg, c_, s_ = T + 6, T + 7, T + 8, T + 9, T + 10, T + 11
    hf_, wf, lc = T + 12, T + 13, T + 14
    G0 = T + 16
    A(f"v_bfe_u32 {v(e1)}, {v(n)}, 2, 1")
    A(f"v_mul_u32_u24 {v(e1)}, 10, {v(e1)}")
    A(f"v_and_b32 {v(arg)}, 3, {v(n)}")
    A(f"v_add_u32 {v(e1)}, {v(e1)}, {v(arg)}")
    A(f"v_lshrrev_b32 {v(arg)}, 3, {v(n)}")
    A(f"v_lshl_add_u32 {v(e1)}, {v(arg)}, 2, {v(e1)}")
    A(f"v_cvt_f32_u32 {v(e1)}, {v(e1)}")
    A(f"v_cvt_f32_u32 {v(hf_)}, {v(h)}")
    A(f"v_cvt_f32_u32 {v(wf)}, s{WV}")
    A(f"s_lshl_b32 s60, s{WV}, 10")
    A(f"s_add_u32 s60, s60, {LDS_CONST}")
    A(f"v_lshl_add_u32 {v(lc)}, v1, 4, s60")
    A(f"v_mul_f32 {v(e1s)}, {f32(1/20)}, {v(e1)}")
    A(f"v_mul_f32 {v(base)}, {f32(10.0)}, {v(hf_)}")
    A(f"v_fma_f32 {v(base)}, 4.0, {v(wf)}, {v(base)}")
    A(f"v_mul_f32 {v(base)}, {v(e1s)}, {v(base)}")
    A(f"s_cmp_lt_u32 s{WV}, 2")
    A(f"s_cselect_b64 s[64:65], -1, 0")
    for r in range(4):
        A(f"v_fmamk_f32 {v(arg)}, {v(e1s)}, {f32(r)}, {v(base)}")
        sincos(arg, c_, s_)
        A(f"v_cvt_pk_f16_f32 {v(G0+r)}, {v(c_)}, {v(s_)}")
        A(f"v_cvt_pk_f16_f32 {v(G0+4+r)}, -{v(s_)}, {v(c_)}")
        if r >= 2:
            A(f"v_cndmask_b32 {v(G0+r)}, 0, {v(G0+r)}, s[64:65]")
            A(f"v_cndmask_b32 {v(G0+4+r)}, 0, {v(G0+4+r)}, s[64:65]")
    A(f"ds_write_b128 {v(lc)}, {v(G0,4)}")
    A(f"ds_write_b128 {v(lc)}, {v(G0+4,4)} offset:4096")
    A(f"v_mul_f32 {v(wf)}, {f32(8.0)}, {v(wf)}")
    A(f"v_fma_f32 {v(wf)}, 4.0, {v(hf_)}, {v(wf)}")
    A(f"v_mul_f32 {v(e1s)}, {f32(1/640)}, {v(e1)}")
    A(f"v_mul_f32 {v(base)}, {v(e1s)}, {v(wf)}")
    for r in range(4):
        A(f"v_fmamk_f32 {v(arg)}, {v(e1s)}, {f32(r)}, {v(base)}")
        sincos(arg, G0 + 8 + r, G0 + 12 + r)
    A(f"ds_write_b128 {v(lc)}, {v(G0+8,4)} offset:8192")
    A(f"ds_write_b128 {v(lc)}, {v(G0+12,4)} offset:12288")
    A(f"v_cvt_f32_u32 {v(e1s)}, {v(n)}")
    A(f"v_mul_f32 {v(e1s)}, {f32(1/32)}, {v(e1s)}")
    A(f"v_mul_f32 {v(base)}, {v(e1s)}, {v(wf)}")
    for r in range(4):
        A(f"v_fmamk_f32 {v(arg)}, {v(e1s)}, {f32(r)}, {v(base)}")
        sincos(arg, c_, s_)
        A(f"v_cvt_pk_f16_f32 {v(G0+16+r)}, {v(c_)}, {v(s_)}")
        A(f"v_cvt_pk_f16_f32 {v(G0+20+r)}, -{v(s_)}, {v(c_)}")
    A(f"ds_write_b128 {v(lc)}, {v(G0+16,4)} offset:16384")
    A(f"ds_write_b128 {v(lc)}, {v(G0+20,4)} offset:20480")
    A(f"v_mov_b32 {v(AF1+10)}, 0")
    A(f"v_mov_b32 {v(AF1+11)}, 0")
    A(f"v_lshlrev_b32 {v(vLC)}, 4, v1")
    A(f"v_add_u32 {v(vLC)}, {LDS_CONST}, {v(vLC)}")
    A(f"v_mov_b32 {v(INV)}, {f32(1/640)}")
    A(f"s_mov_b32 s{s32f}, {f32(32.0)}")
    A(f"s_and_b32 s{sME}, s2, 15")
    A(f"v_mul_u32_u24 {v(vLWW)}, 21, {v(n)}")
    A(f"v_mad_u32_u24 {v(vLWW)}, {v(h)}, 10, {v(vLWW)}")
    A(f"s_mul_i32 s60, s{WV}, 704")
    A(f"s_add_u32 s60, s60, {LDS_W // 4}")
    A(f"v_add_lshl_u32 {v(vLWW)}, {v(vLWW)}, s60, 2")
    A("s_waitcnt lgkmcnt(0)")
    A("s_barrier")
    for (dst, ng, off) in ((B1R, 3, 0), (B1I, 3, 4096), (TWC, 4, 8192), (TWS, 4, 12288)):
        for gq in range(ng):
            A(f"ds_read_b128 {v(dst+4*gq,4)}, {v(vLC)} offset:{off + 1024*gq}")
    for j in range(3):
        A(f"v_add_u32 {v(arg)}, {256*j}, v0")
        A(f"v_mul_u32_u24 {v(c_)}, 3277, {v(arg)}")
        A(f"v_lshrrev_b32 {v(c_)}, 16, {v(c_)}")
        A(f"v_add_u32 {v(arg)}, {v(arg)}, {v(c_)}")
        A(f"v_lshlrev_b32 {v(arg)}, 2, {v(arg)}")
        A(f"v_add_u32 {v(vLWR0+j)}, {LDS_W}, {v(arg)}")
    A(f"v_lshlrev_b32 {v(vTA)}, 4, v1")
    A(f"v_lshlrev_b32 {v(vTB)}, 2, v1")
    A(f"v_add_u32 {v(vTB)}, 1024, {v(vTB)}")
    A(f"s_mul_i32 s{sTB}, s{sRA}, {T_REC}")
    A(f"s_add_u32 s{sTB}, s{sTB}, {T_OFF}")
    A(f"s_add_u32 s{sTB+1}, s{sTB}, {64 * T_REC}")
    stamp(0, dbg=(1, 0) if not opt("t0", 0) else None)
    ARV = 204
    A(f"s_waitcnt vmcnt({(1 if (DRAIN0 or LATEF) else 3) + (nloads(PPART) if PREFR == 1 else 0)})")
    nonce_take(NV)
    if LATEF:
        W_stores(0, ONES, ONES, ONES, lds=False)
    if XW:
        A(f"s_mul_i32 s60, s{WV}, 2560")
        A(f"v_add_u32 {v(XR+12)}, s60, {v(XR+12)}")
        A(f"v_add_u32 {v(XR+13)}, s60, {v(vX)}")
        A(f"ds_write_b128 {v(XR+12)}, {v(XR,4)}")
        A(f"ds_write_b128 {v(XR+12)}, {v(XR+4,4)} offset:1024")
        set_exec(0xffffffff)
        A(f"ds_write_b128 {v(XR+12)}, {v(XR+8,4)} offset:2048")
        A("s_mov_b64 exec, -1")
        A("s_waitcnt lgkmcnt(3)")
        for i in range(10):
            A(f"ds_read_u16_d16_hi {v(X+2*i)}, {v(XR+13)} offset:{64*i}")
            A(f"ds_read_u16_d16_hi {v(X+2*i+1)}, {v(XR+13)} offset:{1280+64*i}")
            if i == 5:
                A("s_waitcnt lgkmcnt(6)")
        A("s_waitcnt lgkmcnt(0)")
    stamp(10, dbg=(2, 0))
    if EARLY_R == 2:
        arrive_issue(0, sME, ARV)
    ln_stats(X, ACR)
    for (dst, ng, off) in ((B2R, 4, 16384), (B2I, 4, 20480)):
        for gq in range(ng):
            A(f"ds_read_b128 {v(dst+4*gq,4)}, {v(vLC)} offset:{off + 1024*gq}")
    ln_center_scale(X, XN, ACR, EXACT)
    to_f16(XN, ACR)
    if DRAIN0:
        A("s_waitcnt lgkmcnt(0)")
    else:
        A("s_waitcnt vmcnt(0) lgkmcnt(0)")
        A("s_barrier")
        arrive_issue(0, sME, XN + 8, AWR)
    def fill_xn1():
        for k in range(4):
            A(f"v_mov_b32 {v(XN+16+k)}, -1")
        store_rows(XN + 16, XN + 16, XN + 16, XN + 16, 0)
    row_dft(XN, None, (lambda: arrive_finish(0, sME, 15, XN + 8, 0, AWR)) if not DRAIN0 else None)
    stamp(11)
    write_W(0)
    stamp(1, dbg=(3, 0))
    if PREFR == 2:
        warm_weights(AC2R, 0, 32, PPART)
    srd(12, 52, 2621440)
    srd(16, 44, 1280)
    for i in range(10):
        A(f"v_mov_b32 {v(WR+i)}, 0")
        A(f"buffer_load_short_d16_hi {v(WR+i)}, {v(vX)}, {SRD3}, 0 offen offset:{64*i}")
    A(f"v_and_b32 {v(n)}, 31, v1")
    A(f"v_lshrrev_b32 {v(h)}, 5, v1")
    A(f"v_lshlrev_b32 {v(vLYW)}, 2, v0")
    A(f"v_mul_u32_u24 {v(vLYR)}, 320, {v(h)}")
    A(f"s_mul_i32 s60, s{WV}, 640")
    A(f"v_add3_u32 {v(vLYR)}, {v(vLYR)}, {v(n)}, s60")
    A(f"v_lshlrev_b32 {v(vLYR)}, 2, {v(vLYR)}")
    A(f"s_sub_u32 s60, 3, s{sA}")
    A(f"s_lshl_b32 s60, s60, 6")
    A(f"s_sub_u32 s61, 64, s{sS2}")
    A(f"s_add_u32 s60, s60, s61")
    A(f"s_lshl_b32 s60, s60, 4")
    A(f"s_lshl_b32 s61, s{sA}, 4")
    A(f"s_add_u32 s61, s61, {YM_OFF}")
    A(f"s_cmp_eq_u32 s{sS2}, 0")
    A(f"s_cselect_b32 s60, s61, s60")
    A(f"s_cselect_b32 s61, 6, 12")
    A(f"s_lshl_b32 s62, s{sRHO}, 4")
    A(f"v_lshlrev_b32 {v(vY0)}, 12, v0")
    A(f"v_add_u32 {v(vY0)}, s62, {v(vY0)}")
    A(f"v_sub_u32 {v(arg)}, 384, v0")
    A(f"v_lshlrev_b32 {v(arg)}, s61, {v(arg)}")
    A(f"v_add_u32 {v(vY1)}, s60, {v(arg)}")
    A(f"v_add_u32 {v(c_)}, {256 << 12}, {v(vY0)}")
    A(f"v_cmp_gt_u32 vcc, 64, v0")
    A(f"v_cndmask_b32 {v(vY1)}, {v(vY1)}, {v(c_)}, vcc")
    A(f"v_sub_u32 {v(arg)}, 128, v0")
    A(f"v_and_b32 {v(arg)}, 0xff, {v(arg)}")
    A(f"v_lshlrev_b32 {v(arg)}, s61, {v(arg)}")
    A(f"v_add_u32 {v(vY2)}, s60, {v(arg)}")
    A(f"s_mul_i32 s60, s{WV}, 5120")
    A(f"s_add_u32 s60, s60, {LDS_KX}")
    A(f"v_lshl_add_u32 {v(vKX)}, v1, 4, s60")
    A(f"s_and_b32 s{sREP}, s2, {NREP - 1}")
    A(f"s_lshl_b32 s{sREP}, s{sREP}, {FSH + 4}")
    A("s_waitcnt vmcnt(0)")
    tau_of(WR, ACR, 1.0)
    A(f"v_readfirstlane_b32 s{sTAU}, {v(ACR)}")
    if opt("touch", 0) > 1:
        touch(ACR, Y_OFF, 2 * Y_SZ)
    poll_flags(1, sREP, ACR)
    stamp(2, dbg=(7, 0))
    stage_Y(0)
    stamp(13)
    if not DRAIN2:
        for k in range(4):
            A(f"v_mov_b32 {v(AF2+k)}, -1")
        W_stores(1, AF2, AF2, AF2, lds=False)
    for i in range(10):
        A(f"ds_read_b32 {v(ACI+i)}, {v(vLYR)} offset:{128*i}")
    for i in range(10):
        A(f"s_waitcnt lgkmcnt({9-i})")
        A(f"v_fma_mix_f32 {v(X+2*i)}, {v(ACI+i)}, s{s32f}, {v(X+2*i)} op_sel:[0,0,0] op_sel_hi:[1,0,0]")
        A(f"v_fma_mix_f32 {v(X+2*i+1)}, {v(ACI+i)}, s{s32f}, {v(X+2*i+1)} op_sel:[1,0,0] op_sel_hi:[1,0,0]")
    PA, PB = AC2R, AC2R + 8
    pack_rows(X, PA, PB)
    unpack_rows(X, PA, PB)
    A(f"ds_write_b128 {v(vKX)}, {v(PA,4)} offset:2048")
    A(f"ds_write_b128 {v(vKX)}, {v(PB,4)} offset:3072")
    A(f"v_mov_b32 {v(PA+6)}, {v(PA+4)}")
    A(f"v_mov_b32 {v(PA+7)}, {v(PB+4)}")
    ln_stats(X, ACR)
    ln_center_scale(X, XN, ACR, EXACT1)
    if EXACT1:
        pack_rows(XN, PA + 16, PB + 16)
        unpack_rows(XN, PA + 16, PB + 16)
    stamp(14)
    router_publish(0, ACI, PA + 16, PB + 16)
    if not EXACT1:
        unpack_rows(XN, PA + 16, PB + 16)
    stamp(3, dbg=(8, 0))
    E2 = opt("e2", 1)
    if E2 == 1:
        arrive_issue(2, sME, AF2 + 8, AWR)
    A(f"v_mov_b32 {v(PA+4)}, {v(PA+20)}")
    A(f"v_mov_b32 {v(PA+5)}, {v(PB+20)}")
    A(f"ds_write_b128 {v(vKX)}, {v(PA+16,4)}")
    A(f"ds_write_b128 {v(vKX)}, {v(PB+16,4)} offset:1024")
    A(f"ds_write_b128 {v(vKX)}, {v(PA+4,4)} offset:4096")
    if EARLY_R == 2:
        arrive_issue(2, sME, ARV)
    for i in range(10):
        A(f"v_pk_add_f32 {v(X+2*i,2)}, {v(X+2*i,2)}, {v(XN+2*i,2)}")
        rnd_pair(X + 2 * i, X + 2 * i + 1, ACR + (i % 4))
    ln_stats(X, ACR)
    ln_center_scale(X, XN, ACR + 8, EXACT)
    to_f16(XN, ACR + 8)
    if EARLY_R == 2:
        arrive_finish(2, sME, 15, ARV, 0)
    if E2 == 0:
        arrive_issue(2, sME, XN + 14, AWR)
        row_dft(XN, None, lambda: arrive_finish(2, sME, 15, XN + 14, 0, AWR))
    elif E2 == 1:
        row_dft(XN, lambda: arrive_finish(2, sME, 15, AF2 + 8, 0, AWR))
    else:
        row_dft(XN, None, lambda: arrive_finish(2, sME, 15, 250 - 4, 0, AWR))
    stamp(16)
    if not opt("wlate", 0):
        write_W(1)
    stamp(4)
    A(f"s_mov_b32 s74, {X2_OFF}")
    def release(layer, row, stash, with_xn):
        R0 = ACR
        if stash:
            A(f"ds_read_b128 {v(R0,4)}, {v(vKX)} offset:{2048+1024*row}")
            A(f"ds_read_b128 {v(R0+8,4)}, {v(vKX)} offset:4096")
            if with_xn:
                A(f"ds_read_b128 {v(R0+12,4)}, {v(vKX)} offset:{1024*row}")
            x4, x1, n4, n1 = R0, R0 + 10 + row, R0 + 12, R0 + 8 + row
        else:
            P_ = PA if row == 0 else PB
            x4, x1, n4, n1 = P_, P_ + 4, P_ + 16, P_ + 20
        A(f"s_add_u32 s61, s{NONCE}, {6 + layer}")
        A(f"v_mov_b32 {v(R0+4)}, {v(MM+row)}")
        A(f"v_mov_b32 {v(R0+5)}, {v(RS+row)}")
        A(f"v_mov_b32 {v(R0+6)}, s61")
        A(f"v_mov_b32 {v(R0+7)}, s61")
        A("s_waitcnt lgkmcnt(0)")
        if with_xn:
            A(f"buffer_store_dwordx4 {v(n4,4)}, {v(vTA)}, {WS}, s{sTB+row} offen sc1")
            A(f"buffer_store_dword {v(n1)}, {v(vTB)}, {WS}, s{sTB+row} offen sc1")
        A(f"buffer_store_dwordx4 {v(x4,4)}, {v(vTA)}, {WS}, s{sTB+row} offen offset:1280 sc1")
        A(f"buffer_store_dword {v(x1)}, {v(vTB)}, {WS}, s{sTB+row} offen offset:1280 sc1")
        A("s_waitcnt vmcnt(0)")
        A("s_mov_b64 exec, 1")
        A(f"buffer_store_dwordx4 {v(R0+4,4)}, {v(vTA)}, {WS}, s{sTB+row} offen offset:2560 sc1")
        A("s_mov_b64 exec, -1")
    def release_candidates(layer, stash):
        for row in range(2):
            Ln = A.newlabel("Lrel")
            A(f"s_cmp_eq_u32 s{56+row}, 0")
            A(f"s_cbranch_scc1 {Ln}")
            release(layer, row, stash, False)
            A.label(Ln)
    def wait_sel(layer, stash):
        loop, done = A.newlabel("Lsel"), A.newlabel("Lseld")
        T2 = ACR + 16
        A(f"s_mov_b32 s60, {X2_OFF + SEL_OFF + 256 * layer}")
        A(f"v_and_b32 {v(T2)}, 7, v1")
        A(f"v_lshlrev_b32 {v(T2)}, 2, {v(T2)}")
        A(f"s_mov_b32 s62, {SPIN}")
        A.label(loop)
        A(f"buffer_load_dword {v(T2+1)}, {v(T2)}, {WS}, s60 offen sc1")
        A("s_waitcnt vmcnt(0)")
        A(f"v_cmp_eq_u32 vcc, -1, {v(T2+1)}")
        A(f"s_cbranch_vccz {done}")
        spin_tail(loop, 62, opt('selsleep', 4))
        A.label(done)
        for j in range(8):
            A(f"v_readlane_b32 s{sSEL+j}, {v(T2+1)}, {j}")
        for row in range(2):
            A(f"s_add_u32 s60, s{sRA}, {64 * row}")
            A(f"s_mov_b32 s{76+row}, -1")
            for j in range(8):
                A(f"s_cmp_eq_u32 s60, s{sSEL+j}")
                A(f"s_cselect_b32 s{76+row}, {j}, s{76+row}")
            Ln = A.newlabel("Lpush")
            A(f"s_cmp_lt_i32 s{76+row}, 0")
            A(f"s_cbranch_scc1 {Ln}")
            A(f"s_cmp_lg_u32 s{56+row}, 0")
            A(f"s_cbranch_scc1 {Ln}")
            release(layer, row, stash, True)
            A.label(Ln)
    release_candidates(0, True)
    vE0, vDF, vDM, vP2, vNW = vLWW, vLWR0, vLWR0 + 1, vLWR0 + 2, vWG
    n, h = ACR + 8, ACR + 9
    A(f"v_and_b32 {v(n)}, 31, v1")
    A(f"v_lshrrev_b32 {v(h)}, 5, v1")
    A(f"v_mul_u32_u24 {v(vE0)}, 20, {v(n)}")
    A(f"v_mad_u32_u24 {v(vE0)}, {v(h)}, 10, {v(vE0)}")
    vER = vLC
    A(f"v_and_b32 {v(vER)}, 31, {v(vE0)}")
    A(f"v_lshrrev_b32 {v(vDF)}, 5, {v(vE0)}")
    A(f"s_lshl_b32 s60, s{WV}, 2")
    A(f"s_add_u32 s60, s60, {LDS_W}")
    A(f"v_add_u32 {v(vE0)}, {v(vE0)}, {v(vDF)}")
    A(f"v_lshl_add_u32 {v(vE0)}, {v(vE0)}, 4, s60")
    A(f"v_mul_u32_u24 {v(vDF)}, 330, {v(h)}")
    A(f"v_add_u32 {v(vDF)}, {v(vDF)}, {v(n)}")
    A(f"v_sub_u32 {v(vDM)}, 362, {v(vDF)}")
    A(f"v_lshlrev_b32 {v(vDF)}, 4, {v(vDF)}")
    A(f"v_add_u32 {v(vDF)}, {LDS_W}, {v(vDF)}")
    A(f"v_cmp_eq_u32 vcc, 0, {v(n)}")
    A(f"v_addc_co_u32 {v(vDM)}, vcc, 0, {v(vDM)}, vcc")
    A(f"v_lshlrev_b32 {v(vDM)}, 4, {v(vDM)}")
    A(f"v_add_u32 {v(vDM)}, {LDS_W}, {v(vDM)}")
    A(f"s_lshl_b32 s60, s{WV}, 8")
    A(f"v_mul_u32_u24 {v(vP2)}, 10240, {v(h)}")
    A(f"v_lshl_add_u32 {v(vP2)}, {v(n)}, 3, {v(vP2)}")
    A(f"v_add_u32 {v(vP2)}, s60, {v(vP2)}")
    A(f"s_mul_i32 s60, s{WV}, 2560")
    A(f"s_add_u32 s60, s60, {LDS_NEW}")
    A(f"v_lshl_add_u32 {v(vNW)}, v1, 2, s60")
    A(f"s_add_u32 s75, s74, 4096")
    A(f"s_add_u32 s78, s74, 8192")
    ORDER = opt("order", 1)
    def sel_step():
        wait_sel(0, True)
        A(f"s_add_u32 s{sTB}, s{sTB}, {T_SZ}")
        A(f"s_add_u32 s{sTB+1}, s{sTB+1}, {T_SZ}")
        stamp(5)
    CU, CV = XN + 12, XN + 16
    def coefs():
        tr, ca, sa, cb, sb, ar, t0, t1_ = range(AF2, AF2 + 8)
        A(f"v_and_b32 {v(tr)}, 1, v1")
        A(f"v_lshlrev_b32 {v(tr)}, 6, {v(tr)}")
        A(f"v_add_u32 {v(tr)}, s{sRA}, {v(tr)}")
        A(f"s_mov_b32 s64, 0x00300003")
        A(f"s_mov_b32 s65, 0x30000300")
        for p in range(4):
            for (j, cc, ss) in ((2 * p, ca, sa), (2 * p + 1, cb, sb)):
                A(f"v_mul_u32_u24 {v(ar)}, s{sSEL+j}, {v(tr)}")
                A(f"v_and_b32 {v(ar)}, 0x7ff, {v(ar)}")
                A(f"v_cvt_f32_u32 {v(ar)}, {v(ar)}")
                A(f"v_mul_f32 {v(ar)}, {f32(1/2048)}, {v(ar)}")
                sincos(ar, cc, ss)
            A(f"v_sub_f32 {v(t0)}, {v(ca)}, {v(sb)}")
            A(f"v_add_f32 {v(t1_)}, {v(sa)}, {v(cb)}")
            A(f"v_mul_f32 {v(t0)}, 0.5, {v(t0)}")
            A(f"v_mul_f32 {v(t1_)}, 0.5, {v(t1_)}")
            A(f"v_cvt_pk_f16_f32 {v(CU+p)}, {v(t0)}, {v(t1_)}")
            A(f"v_add_f32 {v(t0)}, {v(ca)}, {v(sb)}")
            A(f"v_sub_f32 {v(t1_)}, {v(cb)}, {v(sa)}")
            A(f"v_mul_f32 {v(t0)}, 0.5, {v(t0)}")
            A(f"v_mul_f32 {v(t1_)}, 0.5, {v(t1_)}")
            A(f"v_cvt_pk_f16_f32 {v(CV+p)}, {v(t0)}, {v(t1_)}")
            A(f"v_cndmask_b32 {v(CU+p)}, 0, {v(CU+p)}, s[64:65]")
            A(f"v_cndmask_b32 {v(CV+p)}, 0, {v(CV+p)}, s[64:65]")

    RAW = AC2R
    def x2loads():
        for i in range(10):
            so = ("s74", "s75", "s78")[i // 4]
            A(f"buffer_load_dwordx2 {v(RAW+2*i,2)}, {v(vP2)}, {WS}, {so} offen offset:{1024*(i%4)} sc1")
    def wait_hint():
        loop, done = A.newlabel("Lx2"), A.newlabel("Lx2d")
        A(f"s_mov_b32 s62, {SPIN}")
        A(f"s_add_u32 s60, s74, {SEL_OFF + 128}")
        A(f"v_mov_b32 {v(ACR)}, 0")
        A.label(loop)
        A(f"buffer_load_dword {v(ACR+1)}, {v(ACR)}, {WS}, s60 offen sc1")
        A("s_waitcnt vmcnt(0)")
        A(f"v_cmp_eq_u32 vcc, -1, {v(ACR+1)}")
        A(f"s_cbranch_vccz {done}")
        spin_tail(loop, 62, opt("hintsleep", 2))
        A.label(done)
    alldone = A.newlabel("Lx2a")
    if ORDER == 1:
        poll_flags(3, sREP, ACR)
        stamp(6, dbg=(13, 0))
        stage_Y(1)
        sel_step()
        coefs()
        wait_hint()
    else:
        sel_step()
        coefs()
        poll_flags(3, sREP, ACR)
        wait_hint()
        stamp(6, dbg=(13, 0))
        stage_Y(1, None, x2loads)
        any_sentinel(range(RAW, RAW + 20), ACR, alldone)
    loop, done = A.newlabel("Lx2"), A.newlabel("Lx2d")
    A(f"s_mov_b32 s62, {SPIN}")
    A("s_mov_b64 vcc, -1")
    A.label(loop)
    A("s_mov_b64 exec, vcc")
    x2loads()
    A("s_mov_b64 exec, -1")
    A("s_waitcnt vmcnt(0)")
    any_sentinel(range(RAW, RAW + 20), ACR, done)
    spin_tail(loop, 62, opt("x2sleep", 0))
    A.label(done)
    A.label(alldone)
    stamp(7)
    Z = ACR + 12
    for i in range(10):
        A(f"v_lshlrev_b32 {v(Z+2*i)}, 16, {v(RAW+2*i)}")
        A(f"v_and_b32 {v(Z+2*i+1)}, 0xffff0000, {v(RAW+2*i)}")
    for i in range(10):
        A(f"ds_write_b32 {v(vNW)}, {v(RAW+2*i)} offset:{256*i}")
    ln_stats(Z, ACR + 2)
    ln_center_scale(Z, Z, ACR + 2, EXACT)
    to_f16(Z, ACR + 2, sub=lambda i: RAW + 2 * i + 1)
    CBL = [16 + 4 * i for i in range(6)] + [AF1, AF1 + 4, AF1 + 8, XN + 8]
    WA = TWC
    def shadow1():
        for i in range(10):
            A(f"ds_read_b32 {v(CBL[i]+2)}, {v(vLYR)} offset:{128*i}")
        for i in range(10):
            A(f"s_waitcnt lgkmcnt({9-i})")
            A(f"v_fma_mix_f32 {v(CBL[i])}, {v(CBL[i]+2)}, s{s32f}, {v(X+2*i)} op_sel:[0,0,0] op_sel_hi:[1,0,0]")
            A(f"v_fma_mix_f32 {v(CBL[i]+1)}, {v(CBL[i]+2)}, s{s32f}, {v(X+2*i+1)} op_sel:[1,0,0] op_sel_hi:[1,0,0]")
    def shadow2():
        for i in range(10):
            A(f"v_add_u32 {v(WA+i)}, {i}, {v(vER)}")
            A(f"v_bfe_u32 {v(WA+i)}, {v(WA+i)}, 5, 1")
            A(f"v_lshl_add_u32 {v(WA+i)}, {v(WA+i)}, 4, {v(vE0)}")
    A("s_waitcnt lgkmcnt(0)")
    row_dft(XN, shadow1, shadow2)
    stamp(18)
    for i in range(10):
        A(f"v_cvt_pk_f16_f32 {v(ACR+i)}, {v(AC2R+i)}, {v(AC2I+i)}")
        A(f"ds_write_b32 {v(WA+i)}, {v(ACR+i)} offset:{16*i}")
    A("s_mov_b64 exec, 1")
    A(f"ds_write_b32 {v(vE0)}, {v(ACR)} offset:{660*16}")
    A("s_mov_b64 exec, -1")
    A("s_waitcnt lgkmcnt(0)")
    A("s_barrier")
    FRL = [40 + 4 * q for q in range(16)] + [160 + 4 * q for q in range(4)]
    def corr(k):
        A(f"v_mfma_f32_16x16x32_f16 {v(CBL[k],4)}, {v(CU,4)}, {v(FRL[2*k],4)}, {v(CBL[k],4)}")
        A(f"v_mfma_f32_16x16x32_f16 {v(CBL[k],4)}, {v(CV,4)}, {v(FRL[2*k+1],4)}, {v(CBL[k],4)}")
    for i in range(10):
        A(f"ds_read_b128 {v(FRL[2*i],4)}, {v(vDF)} offset:{528*i}")
        A(f"ds_read_b128 {v(FRL[2*i+1],4)}, {v(vDM)} offset:{528*(9-i)}")
        if i >= 6:
            A(f"s_waitcnt lgkmcnt(12)")
            corr(i - 6)
    for k in range(4, 10):
        A(f"s_waitcnt lgkmcnt({2*(9-k)})")
        corr(k)
    stamp(19)
    for row in range(2):
        Lnext = A.newlabel("Lown")
        A(f"s_cmp_lt_i32 s{76+row}, 0")
        A(f"s_cbranch_scc1 {Lnext}")
        A(f"s_lshr_b32 s62, s{76+row}, 1")
        A("s_mul_i32 s62, s62, 2560")
        A(f"s_add_u32 s62, s62, {LDS_NEW}")
        A(f"s_and_b32 s61, s{76+row}, 1")
        A("s_lshl_b32 s61, s61, 4")
        A("s_sub_u32 s61, 16, s61")
        A(f"v_lshl_add_u32 {v(240)}, v1, 2, s62")
        for i in range(10):
            A(f"ds_read_b32 {v(241+i)}, {v(240)} offset:{256*i}")
        A("s_waitcnt lgkmcnt(0)")
        for i in range(10):
            A(f"v_lshlrev_b32 {v(241+i)}, s61, {v(241+i)}")
            A(f"v_and_b32 {v(241+i)}, 0xffff0000, {v(241+i)}")
            A(f"v_sub_f32 {v(241+i)}, {v(241+i)}, {v(X+2*i+row)}")
            A(f"v_add_f32 {v(CBL[i]+row)}, {v(CBL[i]+row)}, {v(241+i)}")
        A.label(Lnext)
    for u in range(5):
        A(f"v_cvt_pk_bf16_f32 {v(PA+u)}, {v(CBL[2*u])}, {v(CBL[2*u+1])}")
        A(f"v_cvt_pk_bf16_f32 {v(PB+u)}, {v(CBL[2*u]+1)}, {v(CBL[2*u+1]+1)}")
    unpack_rows(X, PA, PB)
    ln_stats(X, ACR)
    ln_center_scale(X, XN, ACR, EXACT1)
    if EXACT1:
        pack_rows(XN, PA + 16, PB + 16)
        unpack_rows(XN, PA + 16, PB + 16)
    stamp(20)
    router_publish(1, ACI + 8, PA + 16, PB + 16)
    if not EXACT1:
        unpack_rows(XN, PA + 16, PB + 16)
    stamp(8, dbg=(14, 0))
    OB = 16
    A(f"s_mul_i32 s60, s{WV}, 2560")
    A(f"v_add_u32 {v(OB)}, s60, {v(vX)}")
    for i in range(10):
        A(f"v_pk_add_f32 {v(X+2*i,2)}, {v(X+2*i,2)}, {v(XN+2*i,2)}")
        A(f"v_cvt_pk_bf16_f32 {v(OB+2+i)}, {v(X+2*i)}, {v(X+2*i+1)}")
        A(f"ds_write_b16 {v(OB)}, {v(OB+2+i)} offset:{64*i}")
        A(f"ds_write_b16_d16_hi {v(OB)}, {v(OB+2+i)} offset:{1280+64*i}")
    A(f"v_lshlrev_b32 {v(OB+1)}, 4, v1")
    A(f"v_add_u32 {v(OB)}, s60, {v(OB+1)}")
    A("s_waitcnt lgkmcnt(0)")
    for k in range(3):
        A(f"ds_read_b128 {v(OB+12+4*k,4)}, {v(OB)} offset:{1024*k}")
    A(f"v_add_u32 {v(OB+2)}, {1024 + 63 * 1280}, {v(OB+1)}")
    A(f"v_add_u32 {v(OB+3)}, 1024, {v(OB+1)}")
    A(f"v_cmp_gt_u32 vcc, 16, v1")
    A(f"v_cndmask_b32 {v(OB+3)}, {v(OB+2)}, {v(OB+3)}, vcc")
    def out_stores():
        A("s_waitcnt lgkmcnt(0)")
        A(f"buffer_store_dwordx4 {v(OB+12,4)}, {v(OB+1)}, {SRD2}, s{sXO} offen sc1")
        A(f"buffer_store_dwordx4 {v(OB+16,4)}, {v(OB+3)}, {SRD2}, s{sXO} offen sc1")
        set_exec(0xffffffff)
        A(f"buffer_store_dwordx4 {v(OB+20,4)}, {v(OB+2)}, {SRD2}, s{sXO} offen offset:1024 sc1")
        A("s_mov_b64 exec, -1")
    OD = opt("outdelay", 0)
    if OD:
        A(f"s_lshl_b32 s73, s{sRHO}, 4")
        A(f"s_add_u32 s73, s73, {RG_OFF + NRR * RG_REP}")
        A(f"v_mov_b32 {v(ACR)}, 0")
        for _ in range(OD):
            A(f"buffer_load_dword {v(ACR+1)}, {v(ACR)}, {WS}, s73 offen sc1")
            A("s_waitcnt vmcnt(0)")
    out_stores()
    release_candidates(1, False)
    wait_sel(1, False)
    stamp(22)
    stamp(9)
    A("s_endpgm")

def roleC():
    A.label("L_roleC")
    B1, TC, TS, A2, DT, RAW, AR, AI, P, AC, O, T = 16, 32, 48, 64, 128, 160, 176, 192, 208, 224, 240, 248
    sC, sCME, sCREP, sK, sW0, sW1, sY, sLAST = 22, 23, 24, 25, 26, 27, 28, 29
    nonce_load(T + 4)
    if opt("prefc", 1) == 1:
        warm_weights(AC, C0, 29, PPART)
    A(f"s_sub_u32 s60, s2, {C0}")
    A("s_and_b32 s61, s60, 7")
    A("s_lshr_b32 s62, s60, 3")
    A("s_lshr_b32 s63, s62, 2")
    A("s_lshl_b32 s63, s63, 5")
    A("s_lshl_b32 s61, s61, 2")
    A("s_and_b32 s62, s62, 3")
    A(f"s_add_u32 s{sC}, s63, s61")
    A(f"s_add_u32 s{sC}, s{sC}, s62")
    A(f"s_and_b32 s{sCME}, s2, 15")
    A(f"s_cmp_eq_u32 s{sCME}, 0")
    A(f"s_cselect_b32 s{sLAST}, 10, 9")
    A(f"s_and_b32 s{sCREP}, s2, {NREP - 1}")
    A(f"s_lshl_b32 s{sCREP}, s{sCREP}, {FSH + 4}")
    n, g, t1, gs, arg, base, st = RAW, RAW + 1, RAW + 2, RAW + 3, RAW + 4, RAW + 5, RAW + 6
    ca, sa, cb, sb, x0, x1 = RAW + 7, RAW + 8, RAW + 9, RAW + 10, RAW + 11, RAW + 12
    A(f"v_and_b32 {v(n)}, 15, v1")
    A(f"v_lshrrev_b32 {v(g)}, 4, v1")
    A(f"s_and_b32 s70, s{WV}, 1")
    A(f"s_lshl_b32 s70, s70, 4")
    A(f"s_lshr_b32 s61, s{WV}, 1")
    A(f"v_lshrrev_b32 v2, 1, v0")
    A(f"v_and_b32 v6, 1, v0")
    A(f"s_lshl_b32 s62, s{sC}, 1")
    A(f"v_add_u32 v3, s62, v6")
    A(f"v_min_u32 v3, 320, v3")
    A(f"v_sub_u32 v4, 640, v3")
    A(f"v_cmp_ne_u32 vcc, 0, v3")
    A(f"v_cndmask_b32 v4, 0, v4, vcc")
    A(f"v_add_u32 v5, 7, v4")
    A(f"v_cmp_lt_u32 vcc, 320, v4")
    A(f"v_cndmask_b32 v4, v4, v5, vcc")
    A(f"v_mul_u32_u24 v5, {WROW}, v2")
    A(f"v_mul_u32_u24 v6, 8256, v6")
    A(f"v_lshl_add_u32 v6, v2, 4, v6")
    A(f"v_lshl_add_u32 v2, v3, 4, v5")
    A(f"v_lshl_add_u32 v3, v4, 4, v5")
    A(f"s_mul_i32 s63, s61, 8256")
    A(f"v_lshlrev_b32 v7, 10, {v(g)}")
    A(f"v_lshl_add_u32 v7, {v(n)}, 4, v7")
    A(f"v_add_u32 v7, s63, v7")
    A(f"s_add_u32 s62, s62, s61")
    A(f"s_lshl_b32 s62, s62, 12")
    A(f"v_lshl_add_u32 v8, {v(g)}, 6, {v(n)}")
    A(f"v_add_u32 v8, s70, v8")
    A(f"v_lshl_add_u32 v8, v8, 4, s62")
    A(f"s_lshr_b32 s62, s62, 6")
    A(f"s_add_u32 s62, s62, {YM_OFF + 48}")
    A(f"v_lshlrev_b32 v9, 4, {v(g)}")
    A(f"v_sub_u32 v9, s62, v9")
    def Y_stores(r0, r1, rm, sy, prep=None):
        A(f"buffer_store_dwordx4 {v(r0,4)}, v8, {WS}, {sy} offen sc1")
        A(f"buffer_store_dwordx4 {v(r1,4)}, v8, {WS}, {sy} offen offset:512 sc1")
        Lm = A.newlabel("Lym")
        A(f"s_bitcmp1_b32 s{WV}, 0")
        A(f"s_cbranch_scc1 {Lm}")
        if prep:
            prep()
        set_exec(0x0001000100010001)
        A(f"buffer_store_dwordx4 {v(rm,4)}, v9, {WS}, {sy} offen sc1")
        A("s_mov_b64 exec, -1")
        A.label(Lm)
    A(f"s_waitcnt vmcnt({nloads(PPART) if opt('prefc', 1) == 1 else 0})")
    nonce_take(T + 4)
    Li = A.newlabel("Lci")
    A(f"s_sub_u32 s60, s2, {C0}")
    A(f"s_lshl_b32 s61, s{WV}, 4")
    A(f"s_or_b32 s60, s60, s61")
    A(f"s_cmp_ge_u32 s60, 16")
    A(f"s_cbranch_scc1 {Li}")
    cnt_init(sCME, range(4), T)
    A.label(Li)
    for k in range(4):
        A(f"v_mov_b32 {v(O+k)}, -1")
    for lay in range(2 if opt("y2fill", 2) == 0 else 1):
        A(f"s_mov_b32 s63, {Y_OFF + lay * Y_SZ}")
        Y_stores(O, O, O, "s63")
    if opt("prefc", 1) == 2:
        warm_weights(AC, C0, 29, PPART)
    A(f"v_add_u32 {v(t1)}, s70, {v(n)}")
    A(f"v_cvt_f32_u32 {v(t1)}, {v(t1)}")
    A(f"v_cvt_f32_u32 {v(gs)}, {v(g)}")
    A(f"v_mul_f32 {v(st)}, {f32(1/32)}, {v(t1)}")
    A(f"v_mul_f32 {v(base)}, {v(st)}, {v(gs)}")
    A(f"v_mul_f32 {v(base)}, {f32(8.0)}, {v(base)}")
    for w in range(4):
        A(f"v_fmamk_f32 {v(arg)}, {v(st)}, {f32(2*w)}, {v(base)}")
        sincos(arg, ca, sa)
        A(f"v_add_f32 {v(arg)}, {v(arg)}, {v(st)}")
        sincos(arg, cb, sb)
        A(f"v_sub_f32 {v(x0)}, {v(ca)}, {v(sb)}")
        A(f"v_add_f32 {v(x1)}, {v(sa)}, {v(cb)}")
        A(f"v_cvt_pk_f16_f32 {v(B1+w)}, {v(x0)}, {v(x1)}")
        A(f"v_cvt_pk_f16_f32 {v(B1+4+w)}, -{v(x1)}, {v(x0)}")
        A(f"v_add_f32 {v(x0)}, {v(ca)}, {v(sb)}")
        A(f"v_sub_f32 {v(x1)}, {v(cb)}, {v(sa)}")
        A(f"v_cvt_pk_f16_f32 {v(B1+8+w)}, {v(x0)}, {v(x1)}")
        A(f"v_cvt_pk_f16_f32 {v(B1+12+w)}, {v(x1)}, -{v(x0)}")
    A(f"v_mul_f32 {v(st)}, {f32(1/2048)}, {v(t1)}")
    A(f"v_mul_f32 {v(base)}, {v(st)}, {v(gs)}")
    A(f"v_mul_f32 {v(base)}, 4.0, {v(base)}")
    for j in range(4):
        for i in range(4):
            A(f"v_fmamk_f32 {v(arg)}, {v(st)}, {f32(16*j+i)}, {v(base)}")
            sincos(arg, ca, sa)
            A(f"v_mul_f32 {v(TC+4*j+i)}, {f32(1/64)}, {v(ca)}")
            A(f"v_mul_f32 {v(TS+4*j+i)}, {f32(1/64)}, {v(sa)}")
    A(f"v_lshrrev_b32 {v(x0)}, 2, {v(n)}")
    A(f"v_lshlrev_b32 {v(x0)}, 4, {v(x0)}")
    A(f"v_and_b32 {v(x1)}, 3, {v(n)}")
    A(f"v_lshl_add_u32 {v(x0)}, {v(x1)}, 1, {v(x0)}")
    A(f"s_lshr_b32 s60, s70, 1")
    A(f"s_lshr_b32 s61, s{WV}, 1")
    A(f"s_add_u32 s60, s60, s61")
    A(f"v_add_u32 {v(x0)}, s60, {v(x0)}")
    A(f"v_cvt_f32_u32 {v(x0)}, {v(x0)}")
    A(f"v_mul_f32 {v(st)}, {f32(1/64)}, {v(x0)}")
    A(f"v_mul_f32 {v(base)}, {v(st)}, {v(gs)}")
    A(f"v_mul_f32 {v(base)}, 4.0, {v(base)}")
    A(f"s_lshl_b32 s60, s{WV}, 12")
    A(f"s_add_u32 s60, s60, 24576")
    A(f"v_lshl_add_u32 {v(x1)}, v1, 4, s60")
    for j in range(4):
        for i in range(4):
            A(f"v_fmamk_f32 {v(arg)}, {v(st)}, {f32(16*j+i)}, {v(base)}")
            sincos(arg, ca, sa)
            A(f"v_cvt_pk_f16_f32 {v(DT+4*j+i)}, {v(ca)}, {v(sa)}")
        A(f"ds_write_b128 {v(x1)}, {v(DT+4*j,4)} offset:{1024*j}")
    A(f"v_lshlrev_b32 {v(x1)}, 4, v1")
    A("s_waitcnt lgkmcnt(0)")
    A("s_barrier")
    for q in range(16):
        A(f"ds_read_b128 {v(A2+4*q,4)}, {v(x1)} offset:{24576 + 1024*q}")
        if q == 7:
            A("s_waitcnt lgkmcnt(0)")
    A("s_waitcnt vmcnt(0)")
    prio(3)
    A(f"s_mov_b32 s{sK}, 0")
    A(f"s_mov_b32 s{sW0}, {W_OFF}")
    A(f"s_mov_b32 s{sY}, {Y_OFF}")
    if opt("touch", 0) > 1:
        touch(T, W_OFF, 2 * W_SZ)
    stamp(4, dbg=(4, C0))
    A.label("L_Cloop")
    A(f"s_add_u32 s{sW1}, s{sW0}, {128 * WROW}")
    poll_flags(f"s{sK}", sCREP, T)
    stamp(0, f"s{sK}", dbg=(5, C0, 0))
    loop, done = A.newlabel("Lcw"), A.newlabel("Lcwd")
    A(f"s_add_u32 s30, s{sK}, 1")
    AWC = opt("awc", 1)
    if EARLY_C >= 2:
        arrive_issue("s30", sCME, O, AWC)
    A(f"s_mov_b32 s62, {SPIN}")
    A.label(loop)
    A(f"buffer_load_dwordx4 {v(RAW,4)}, v2, {WS}, s{sW0} offen sc1")
    A(f"buffer_load_dwordx4 {v(RAW+4,4)}, v2, {WS}, s{sW1} offen sc1")
    A(f"buffer_load_dwordx4 {v(RAW+8,4)}, v3, {WS}, s{sW0} offen sc1")
    A(f"buffer_load_dwordx4 {v(RAW+12,4)}, v3, {WS}, s{sW1} offen sc1")
    A("s_mov_b32 s31, 0")
    for j in range(4):
        if j == 3 and EARLY_C >= 3:
            Lw = A.newlabel("Lce")
            A("s_waitcnt vmcnt(1)")
            A("s_cmp_eq_u32 s31, 1")
            A(f"s_cbranch_scc1 {Lw}")
            A("s_waitcnt vmcnt(0)")
            A.label(Lw)
        else:
            A(f"s_waitcnt vmcnt({3-j})")
        A(f"ds_write_b128 v6, {v(RAW+4*j,4)} offset:{(j>>1)*4096 + (j&1)*2048}")
        if EARLY_C >= 3 and j == EARLY_C - 3:
            Lq = A.newlabel("Lce")
            A(f"s_cmp_lg_u32 s62, {SPIN}")
            A(f"s_cbranch_scc1 {Lq}")
            arrive_finish("s30", sCME, f"s{sLAST}", O, 3 - j, AWC, "s31")
            A.label(Lq)
    any_sentinel(range(RAW, RAW + 16), T, done)
    spin_tail(loop, 62, 2)
    A.label(done)
    if EARLY_C == 1:
        arrive_issue("s30", sCME, O, AWC)
    A("s_waitcnt lgkmcnt(0)")
    A("s_barrier")
    stamp(1, f"s{sK}")
    for j in range(4):
        A(f"ds_read_b128 {v(DT+8*j,4)}, v7 offset:{256*j}")
        A(f"ds_read_b128 {v(DT+8*j+4,4)}, v7 offset:{4096+256*j}")
    if EARLY_C == 2:
        arrive_finish("s30", sCME, f"s{sLAST}", O, 0, AWC)
    for j in range(4):
        A(f"s_waitcnt lgkmcnt({7-2*j})")
        A(f"v_mfma_f32_16x16x32_f16 {v(AR+4*j,4)}, {v(DT+8*j,4)}, {v(B1,4)}, 0")
        A(f"v_mfma_f32_16x16x32_f16 {v(AI+4*j,4)}, {v(DT+8*j,4)}, {v(B1+4,4)}, 0")
        A(f"s_waitcnt lgkmcnt({6-2*j})")
        A(f"v_mfma_f32_16x16x32_f16 {v(AR+4*j,4)}, {v(DT+8*j+4,4)}, {v(B1+8,4)}, {v(AR+4*j,4)}")
        A(f"v_mfma_f32_16x16x32_f16 {v(AI+4*j,4)}, {v(DT+8*j+4,4)}, {v(B1+12,4)}, {v(AI+4*j,4)}")
    A(f"s_add_u32 s{sK}, s{sK}, 1")
    for j in range(4):
        for i in (4 * j, 4 * j + 2):
            pr, pi = RAW + (i % 4) * 2, RAW + (i % 4) * 2 + 2
            A(f"v_pk_mul_f32 {v(pr,2)}, {v(AR+i,2)}, {v(TC+i,2)}")
            A(f"v_pk_mul_f32 {v(pi,2)}, {v(AI+i,2)}, {v(TC+i,2)}")
            A(f"v_pk_fma_f32 {v(pr,2)}, {v(AI+i,2)}, {v(TS+i,2)}, {v(pr,2)}")
            A(f"v_pk_fma_f32 {v(pi,2)}, {v(AR+i,2)}, {v(TS+i,2)}, {v(pi,2)} neg_lo:[1,0,0] neg_hi:[1,0,0]")
            A(f"v_cvt_pk_f16_f32 {v(P+i)}, {v(pr)}, {v(pi)}")
            A(f"v_cvt_pk_f16_f32 {v(P+i+1)}, {v(pr+1)}, {v(pi+1)}")
        for jm in range(4):
            c = "0" if j == 0 else v(AC + 4 * jm, 4)
            A(f"v_mfma_f32_16x16x32_f16 {v(AC+4*jm,4)}, {v(A2+16*jm+4*j,4)}, {v(P+4*j,4)}, {c}")
        if j == opt("cfin", 1) and EARLY_C == 1:
            arrive_finish("s30", sCME, f"s{sLAST}", O, 0, AWC)
    for k in range(8):
        A(f"v_cvt_pk_f16_f32 {v(O+k)}, {v(AC+2*k)}, {v(AC+2*k+1)}")
    def prep():
        for gq in range(4):
            A(f"v_readlane_b32 s{60+gq}, {v(O)}, {16*((gq+1)%4)}")
        for gq in range(4):
            A(f"v_writelane_b32 {v(P+4)}, s{60+gq}, {16*gq}")
        for k in range(3):
            A(f"v_alignbit_b32 {v(P+k)}, {v(O+k+1)}, {v(O+k)}, 16")
        A(f"v_alignbit_b32 {v(P+3)}, {v(P+4)}, {v(O+3)}, 16")
    Y_stores(O, O + 4, P, f"s{sY}", prep)
    stamp(3, f"s{sK}", dbg=(6, C0, 1))
    A(f"s_add_u32 s{sK}, s{sK}, 1")
    A(f"s_add_u32 s{sW0}, s{sW0}, {W_SZ}")
    A(f"s_add_u32 s{sY}, s{sY}, {Y_SZ}")
    A(f"s_cmp_ge_u32 s{sK}, 4")
    A("s_cbranch_scc1 L_end")
    A("s_waitcnt vmcnt(0)")
    if opt("y2fill", 2) == 2:
        for k in range(4):
            A(f"v_mov_b32 {v(O+k)}, -1")
        Y_stores(O, O, O, f"s{sY}")
        A("s_waitcnt vmcnt(0)")
    if opt("y2fill", 2) == 1:
        lp, dn = A.newlabel("Lcy"), A.newlabel("Lcy")
        A(f"s_mov_b32 s60, {RG_OFF}")
        A(f"v_mov_b32 {v(T)}, 0")
        A(f"s_mov_b32 s62, {SPIN}")
        A.label(lp)
        A(f"buffer_load_dword {v(T+1)}, {v(T)}, {WS}, s60 offen sc1")
        A("s_waitcnt vmcnt(0)")
        A(f"v_cmp_eq_u32 vcc, -1, {v(T+1)}")
        A(f"s_cbranch_vccz {dn}")
        spin_tail(lp, 62, 4)
        A.label(dn)
        for k in range(4):
            A(f"v_mov_b32 {v(O+k)}, -1")
        Y_stores(O, O, O, f"s{sY}")
        A("s_waitcnt vmcnt(0)")
    A("s_branch L_Cloop")

SORT8 = [(0, 1), (2, 3), (4, 5), (6, 7), (0, 2), (1, 3), (4, 6), (5, 7), (1, 2), (5, 6), (0, 4), (3, 7),
         (1, 5), (2, 6), (1, 4), (3, 6), (2, 4), (3, 5), (3, 4)]

def topk_setup(CODE, vG, vLW, vLR, LDS0):
    A(f"v_lshrrev_b32 {v(CODE)}, 6, v0")
    A(f"v_lshlrev_b32 {v(CODE)}, 9, {v(CODE)}")
    A(f"v_add_u32 {v(CODE)}, {v(CODE)}, v1")
    A(f"v_sub_u32 {v(CODE)}, 2047, {v(CODE)}")
    for i in range(1, 8):
        A(f"v_subrev_u32 {v(CODE+i)}, {64*i}, {v(CODE)}")
    A(f"v_lshlrev_b32 {v(vG)}, {RSH}, v0")
    A(f"v_lshrrev_b32 {v(vLW)}, 4, v0")
    A(f"v_lshlrev_b32 {v(vLW)}, 5, {v(vLW)}")
    A(f"v_add_u32 {v(vLW)}, {LDS0}, {v(vLW)}")
    A(f"v_and_b32 {v(vLR)}, 15, v1")
    A(f"v_lshlrev_b32 {v(vLR)}, 5, {v(vLR)}")
    A(f"v_add_u32 {v(vLR)}, {LDS0}, {v(vLR)}")

def topk(K, CODE, vG, vLW, vLR, sRG, blk, dbg, mid=None, dry=False):
    G = K + 16
    prio(0)
    Ldry = A.newlabel("Ldry")
    if dry:
        A("s_cmp_eq_u32 s37, 1")
        A(f"s_cbranch_scc1 {Ldry}")
    for gate in ((True, False) if GATE else (False,)):
        loop, done = A.newlabel("Lrg"), A.newlabel("Lrgd")
        A(f"s_mov_b32 s62, {SPIN}")
        if gate:
            set_exec(0xff << 56)
        A.label(loop)
        A(f"buffer_load_dwordx4 {v(G,4)}, {v(vG)}, {WS}, s{sRG} offen sc1")
        A("s_waitcnt vmcnt(0)")
        any_sentinel(range(G, G + 4), K, done)
        spin_tail(loop, 62, opt("rsleep", 0))
        A.label(done)
        if gate:
            A("s_mov_b64 exec, -1")
    prio(3)
    stamp(3, "s27", dbg=dbg)
    A.label(Ldry)
    A("s_mov_b32 s63, 0xffff0000")
    cur = list(range(K, K + 8))
    for k in range(4):
        A(f"v_lshl_or_b32 {v(cur[2*k])}, {v(G+k)}, 16, {v(CODE+2*k)}")
        A(f"v_and_or_b32 {v(cur[2*k+1])}, {v(G+k)}, s63, {v(CODE+2*k+1)}")
    free = list(range(K + 8, K + 24))

    def ce(i, j, dst=None):
        if dst is None:
            t = free.pop(0)
            A(f"v_max_u32 {v(t)}, {v(cur[i])}, {v(cur[j])}")
            A(f"v_min_u32 {v(cur[j])}, {v(cur[i])}, {v(cur[j])}")
            free.append(cur[i])
            cur[i] = t
        else:
            A(f"v_max_u32 {v(dst+i)}, {v(cur[i])}, {v(cur[j])}")
            A(f"v_min_u32 {v(dst+j)}, {v(cur[i])}, {v(cur[j])}")

    for (i, j) in SORT8:
        ce(i, j)
    pats = ["quad_perm:[1,0,3,2]", "quad_perm:[2,3,0,1]", "row_half_mirror", "row_mirror"]
    for rnd in range(2):
        for li, pat in enumerate(pats):
            new = [free.pop(0) for _ in range(8)]
            for i in (7, 6, 5, 4, 3, 2, 1, 0) if False else range(8):
                A(f"v_max_u32_dpp {v(new[i])}, {v(cur[7-i])}, {v(cur[i])} {pat} row_mask:0xf bank_mask:0xf")
            free.extend(cur)
            cur = new
            if rnd == 1 and li == 3:
                return cur
            for i in range(4):
                ce(i, i + 4)
            for i in (0, 1, 4, 5):
                ce(i, i + 2)
            if rnd == 0 and li == 3:
                for i in (0, 2, 4, 6):
                    ce(i, i + 1, dst=blk)
                set_exec(0x0001000100010001)
                A(f"ds_write_b128 {v(vLW)}, {v(blk,4)}")
                A(f"ds_write_b128 {v(vLW)}, {v(blk+4,4)} offset:16")
                A("s_mov_b64 exec, -1")
                A("s_waitcnt lgkmcnt(0)")
                A("s_barrier")
                A(f"ds_read_b128 {v(K,4)}, {v(vLR)}")
                A(f"ds_read_b128 {v(K+4,4)}, {v(vLR)} offset:16")
                A("s_waitcnt lgkmcnt(0)")
                if mid:
                    mid(K)
                cur = list(range(K, K + 8))
                free = list(range(K + 8, K + 24))
            else:
                for i in (6, 4, 2, 0):
                    ce(i, i + 1)

def load_weight_frags(jobs):
    total = sum(8 * j[3] for j in jobs)
    for (srdn, voff_of, soff_of, nsteps, dst, raw, vfull) in jobs:
        for k in range(nsteps):
            for q in range(8):
                d = raw + 8 * k + q
                if vfull is not None and k == vfull:
                    A(f"v_add_u32 {v(d)}, {soff_of(k, q)}, {v(voff_of(k))}")
                    A(f"buffer_load_dword {v(d)}, {v(d)}, {srdn}, 0 offen")
                    continue
                A(f"s_mov_b32 s60, {soff_of(k, q)}")
                A(f"buffer_load_dword {v(d)}, {v(voff_of(k))}, {srdn}, s60 offen")
    done = 0
    for (srdn, voff_of, soff_of, nsteps, dst, raw, vfull) in jobs:
        for k in range(nsteps):
            done += 8
            A(f"s_waitcnt vmcnt({min(63, total - done)})")
            r = raw + 8 * k
            for u in range(4):
                A(f"v_perm_b32 {v(dst + 8*k + u)}, {v(r+2*u+1)}, {v(r+2*u)}, s58")
                A(f"v_perm_b32 {v(dst + 8*k + 4 + u)}, {v(r+2*u+1)}, {v(r+2*u)}, s59")

def roleFa():
    A.label("L_roleFa")
    GW, UW, RAW, AFR, ACC, K, CODE = 16, 56, 96, 136, 156, 176, 200
    vG, vLW, vLR, vW1, vW2, vLP1, vLP2, vPW, vPR, vH = 2, 3, 4, 5, 6, 7, 8, 9, 10, 11
    sKAP, sRG, sT, sH, sL = 22, 23, 25, 26, 27
    T = 208
    nonce_load(T + 8)
    if opt("prefc", 1) == 1:
        warm_weights(T + 12, C0, 29, PPART)
    srd(8, 46, 2211840)
    srd(12, 48, 2211840)
    A(f"s_sub_u32 s60, s2, {FA0 - 1}")
    A(f"s_and_b32 s61, s60, 7")
    A(f"s_lshr_b32 s60, s60, 3")
    A(f"s_mul_i32 s{sKAP}, s61, 7")
    A(f"s_add_u32 s{sKAP}, s{sKAP}, s60")
    A(f"s_sub_u32 s{sKAP}, s{sKAP}, 1")
    A("s_mov_b32 s58, 0x05040100")
    A("s_mov_b32 s59, 0x07060302")
    n, g = T, T + 1
    A(f"v_and_b32 {v(n)}, 15, v1")
    A(f"v_lshrrev_b32 {v(g)}, 4, v1")
    A(f"s_lshr_b32 s60, s{WV}, 1")
    A(f"s_mul_i32 s60, s60, 320")
    A(f"s_and_b32 s61, s{WV}, 1")
    A(f"s_lshl_b32 s61, s61, 4")
    A(f"s_add_u32 s60, s60, s61")
    A(f"s_lshl_b32 s61, s{sKAP}, 6")
    A(f"v_lshl_add_u32 {v(T+2)}, {v(n)}, 2, s61")
    A(f"v_add_u32 {v(vW1)}, s60, {v(g)}")
    A(f"v_mul_u32_u24 {v(vW1)}, 3456, {v(vW1)}")
    A(f"v_add_u32 {v(vW1)}, {v(vW1)}, {v(T+2)}")
    A(f"v_lshl_add_u32 {v(vW2)}, {v(g)}, 2, s60")
    A(f"v_mul_u32_u24 {v(vW2)}, 3456, {v(vW2)}")
    A(f"v_add_u32 {v(vW2)}, {v(vW2)}, {v(T+2)}")
    voff = lambda k: vW1 if k < 4 else vW2
    soff = lambda k, q: ((32 * q + 4 * k) if k < 4 else (256 + 32 * (q & 1) + (q >> 1))) * 3456
    A("s_waitcnt vmcnt(0)")
    nonce_take(T + 8)
    A(f"s_and_b32 s29, s2, {NREP - 1}")
    A(f"s_lshl_b32 s29, s29, {FSH + 4}")
    if opt("prefc", 1) == 2:
        warm_weights(T + 12, C0, 29, PPART)
    srd(16, 44, 1280)
    A(f"v_and_b32 {v(T+2)}, 31, v1")
    A(f"v_lshrrev_b32 {v(T+3)}, 5, v1")
    A(f"v_mul_u32_u24 {v(T+3)}, 640, {v(T+3)}")
    A(f"v_lshl_add_u32 {v(T+2)}, {v(T+2)}, 1, {v(T+3)}")
    for i in range(10):
        A(f"v_mov_b32 {v(K+i)}, 0")
        A(f"buffer_load_short_d16_hi {v(K+i)}, {v(T+2)}, {SRD3}, 0 offen offset:{64*i}")
    A("s_waitcnt vmcnt(0)")
    tau_of(K, T + 2, 1.0 + 1.0 / 32)
    A(f"v_or_b32 {v(T+2)}, 0x80000000, {v(T+2)}")
    A(f"v_readfirstlane_b32 s36, {v(T+2)}")
    poll_flags(0, 29, T + 4, opt("fsleep", 2))
    if opt("coop", 4):
        warm_coop(T + 12)
    if opt("wide", 0):
        A(f"s_lshr_b32 s60, s{WV}, 1")
        A(f"s_mul_i32 s60, s60, 320")
        A(f"s_and_b32 s61, s{WV}, 1")
        A(f"s_lshl_b32 s61, s61, 4")
        A(f"s_add_u32 s60, s60, s61")
        A(f"v_lshrrev_b32 {v(T+4)}, 2, v1")
        A(f"v_add_u32 {v(T+4)}, s60, {v(T+4)}")
        A(f"v_mul_u32_u24 {v(T+4)}, 3456, {v(T+4)}")
        A(f"v_and_b32 {v(T+5)}, 3, v1")
        A(f"s_lshl_b32 s61, s{sKAP}, 6")
        A(f"v_lshl_add_u32 {v(T+5)}, {v(T+5)}, 4, s61")
        A(f"v_add_u32 {v(T+4)}, {v(T+4)}, {v(T+5)}")
        for j in range(10):
            A(f"s_mov_b32 s60, {32 * j * 3456}")
            A(f"buffer_load_dwordx4 {v(T+12,4)}, {v(T+4)}, {SRD1}, s60 offen")
            A(f"buffer_load_dwordx4 {v(T+12,4)}, {v(T+4)}, {SRD2}, s60 offen")
        if opt("wide", 0) == 2:
            A("s_waitcnt vmcnt(0)")
    load_weight_frags([(SRD1, voff, soff, 5, GW, RAW, None), (SRD2, voff, soff, 5, UW, RAW + 40, None)])
    topk_setup(CODE, vG, vLW, vLR, 24576)
    A(f"v_and_b32 {v(T+2)}, 7, v1")
    A(f"s_lshl_b32 s60, s{WV}, 8")
    A(f"v_lshl_add_u32 {v(vLP1)}, {v(T+2)}, 4, s60")
    A(f"s_lshl_b32 s60, s{WV}, 6")
    A(f"s_add_u32 s60, s60, 1024")
    A(f"v_lshl_add_u32 {v(vLP2)}, {v(T+2)}, 4, s60")
    A(f"s_mul_i32 s60, s{WV}, 2688")
    A(f"s_add_u32 s60, s60, 12288")
    A(f"v_lshrrev_b32 {v(T+3)}, 3, v1")
    A(f"v_mul_u32_u24 v13, 336, {v(T+3)}")
    A(f"v_lshl_add_u32 v13, {v(T+2)}, 4, v13")
    A(f"v_add_u32 v13, s60, v13")
    A(f"v_mul_u32_u24 v14, 336, {v(T+2)}")
    A(f"v_lshl_add_u32 v14, {v(g)}, 4, v14")
    A(f"v_add_u32 v14, s60, v14")
    A(f"s_lshl_b32 s60, s{WV}, 8")
    A(f"v_lshl_add_u32 v15, {v(g)}, 7, s60")
    A(f"s_lshl_b32 s60, s{WV}, 6")
    A(f"s_add_u32 s60, s60, 1024")
    A(f"v_mov_b32 {v(T+4)}, s60")
    A(f"v_cmp_gt_u32 vcc, 2, {v(g)}")
    A(f"v_cndmask_b32 v15, {v(T+4)}, v15, vcc")
    A(f"s_mul_i32 s60, s{WV}, 2560")
    A(f"v_mul_u32_u24 {v(vPW)}, 640, {v(g)}")
    A(f"v_lshl_add_u32 {v(vPW)}, {v(n)}, 3, {v(vPW)}")
    A(f"v_add_u32 {v(vPW)}, s60, {v(vPW)}")
    A(f"v_add_u32 {v(12)}, 1280, {v(vPW)}")
    A(f"v_mul_u32_u24 {v(vPR)}, 40, {v(T+3)}")
    A(f"s_lshl_b32 s60, s{WV}, 3")
    A(f"v_add3_u32 {v(vPR)}, {v(vPR)}, {v(T+2)}, s60")
    A(f"v_lshlrev_b32 {v(vPR)}, 2, {v(vPR)}")
    A(f"v_lshrrev_b32 {v(T+2)}, 1, v0")
    A(f"v_lshlrev_b32 {v(vH)}, 2, {v(T+2)}")
    A(f"s_lshl_b32 s{sH}, s{sKAP}, 9")
    A(f"s_add_u32 s{sH}, s{sH}, {H_OFF}")
    A(f"s_and_b32 s{sRG}, s2, {NRR - 1}")
    A(f"s_lshl_b32 s{sRG}, s{sRG}, {RSH + 8}")
    A(f"s_add_u32 s{sRG}, s{sRG}, {RG_OFF}")
    A(f"s_mov_b32 s{sT}, {T_OFF}")
    A(f"s_mov_b32 s28, {T_REC}")
    for (r, val) in ((30, 0x00FFFF00), (31, 0x00FFFF00), (32, 0xFF00FF00), (33, 0x00FF00FF)):
        A(f"s_mov_b32 s{r}, 0x{val:x}")
    A(f"s_mov_b32 s{sL}, 0")
    touch(T + 2, T_OFF, 2 * T_SZ)
    stamp(0, dbg=(9, FA0))
    if opt("dry", 0):
        A("s_mov_b32 s37, 1")
        A("s_branch L_FaLoop")
    A.label("L_FaLoop_pre")
    poll_flags(1, 29, T, 8)
    A.label("L_FaLoop")
    def warm_rows(K_):
        for e in range(opt("warm", 0)):
            A(f"v_and_b32 {v(T+8+e)}, 0x7ff, {v(K_+e)}")
            A(f"v_sub_u32 {v(T+8+e)}, 2047, {v(T+8+e)}")
            A(f"v_mad_u32_u24 {v(T+8+e)}, {v(T+8+e)}, s28, v15")
            A(f"buffer_load_dword {v(T+8+e)}, {v(T+8+e)}, {WS}, s{sT} offen sc1")
    c = topk(K, CODE, vG, vLW, vLR, sRG, T, (11, FA0, 0), warm_rows, opt("dry", 0))
    if opt("dry", 0):
        A("s_cmp_eq_u32 s37, 1")
        A("s_mov_b32 s37, 0")
        A("s_cbranch_scc1 L_FaLoop_pre")
    stamp(4, "s27")
    A(f"v_cndmask_b32 {v(T)}, {v(c[0])}, {v(c[2])}, s[30:31]")
    A(f"v_cndmask_b32 {v(T+1)}, {v(c[4])}, {v(c[6])}, s[30:31]")
    A(f"v_cndmask_b32 {v(T)}, {v(T)}, {v(T+1)}, s[32:33]")
    A(f"v_and_b32 {v(T)}, 0x7ff, {v(T)}")
    A(f"v_sub_u32 {v(T)}, 2047, {v(T)}")
    A(f"v_mad_u32_u24 {v(T+1)}, {v(T)}, s28, {v(vLP1)}")
    A(f"v_mad_u32_u24 {v(T+2)}, {v(T)}, s28, {v(vLP2)}")
    loop, done = A.newlabel("Lga"), A.newlabel("Lgad")
    A(f"v_min3_u32 {v(T+3)}, {v(c[0])}, {v(c[1])}, {v(c[2])}")
    A(f"v_min3_u32 {v(T+4)}, {v(c[3])}, {v(c[4])}, {v(c[5])}")
    A(f"v_min3_u32 {v(T+3)}, {v(T+3)}, {v(c[6])}, {v(c[7])}")
    A(f"v_min_u32 {v(T+3)}, {v(T+3)}, {v(T+4)}")
    A(f"v_and_b32 {v(T+3)}, 0xffff0000, {v(T+3)}")
    A(f"v_cmp_gt_u32 vcc, s36, {v(T+3)}")
    A(f"s_cbranch_vccz {done}")
    A(f"v_mul_u32_u24 {v(T+3)}, s28, {v(T)}")
    A(f"s_add_u32 s61, s{NONCE}, 6")
    A(f"s_add_u32 s61, s61, s{sL}")
    A(f"s_mov_b32 s62, {SPIN}")
    A.label(loop)
    A(f"buffer_load_dword {v(T+4)}, {v(T+3)}, {WS}, s{sT} offen offset:2568 sc1")
    A("s_waitcnt vmcnt(0)")
    A(f"v_cmp_ne_u32 vcc, s61, {v(T+4)}")
    A(f"s_cbranch_vccz {done}")
    spin_tail(loop, 62, 2)
    A.label(done)
    GR = K
    A(f"buffer_load_dwordx4 {v(GR,4)}, {v(T+1)}, {WS}, s{sT} offen sc1")
    A(f"buffer_load_dwordx4 {v(GR+4,4)}, {v(T+1)}, {WS}, s{sT} offen offset:128 sc1")
    set_exec(0x0F0F0F0F0F0F0F0F)
    A(f"buffer_load_dwordx4 {v(GR+8,4)}, {v(T+2)}, {WS}, s{sT} offen sc1")
    A("s_mov_b64 exec, -1")
    A("s_waitcnt vmcnt(2)")
    A(f"ds_write_b128 v13, {v(GR,4)}")
    A("s_waitcnt vmcnt(1)")
    A(f"ds_write_b128 v13, {v(GR+4,4)} offset:128")
    A("s_waitcnt vmcnt(0)")
    set_exec(0x0F0F0F0F0F0F0F0F)
    A(f"ds_write_b128 v13, {v(GR+8,4)} offset:256")
    A("s_mov_b64 exec, -1")
    for ks in range(5):
        A(f"ds_read_b128 {v(AFR+4*ks,4)}, v14 offset:{64*ks}")
    for ks in range(5):
        A(f"s_waitcnt lgkmcnt({4-ks})")
        for a_, wb in enumerate((GW, GW + 4, UW, UW + 4)):
            cc = "0" if ks == 0 else v(ACC + 4 * a_, 4)
            A(f"v_mfma_f32_16x16x32_bf16 {v(ACC+4*a_,4)}, {v(AFR+4*ks,4)}, {v(wb+8*ks,4)}, {cc}")
    stamp(5, "s27")
    set_exec(0xffffffff)
    for mat in range(2):
        for r in range(4):
            A(f"ds_write2_b32 {v(vPW if mat == 0 else 12)}, {v(ACC+8*mat+r)}, {v(ACC+8*mat+4+r)} offset0:{40*r} offset1:{40*r+1}")
    A("s_mov_b64 exec, -1")
    A("s_waitcnt lgkmcnt(0)")
    A("s_barrier")
    for w in range(4):
        A(f"ds_read2st64_b32 {v(T+2*w,2)}, {v(vPR)} offset0:{10*w} offset1:{10*w+5}")
    A("s_waitcnt lgkmcnt(2)")
    A(f"v_pk_add_f32 {v(T,2)}, {v(T,2)}, {v(T+2,2)}")
    A("s_waitcnt lgkmcnt(0)")
    A(f"v_pk_add_f32 {v(T+4,2)}, {v(T+4,2)}, {v(T+6,2)}")
    A(f"v_pk_add_f32 {v(T,2)}, {v(T,2)}, {v(T+4,2)}")
    rnd_pair(T, T + 1, T + 2)
    A(f"v_mul_f32 {v(T+2)}, {f32(-1.4426950408889634)}, {v(T)}")
    A(f"v_exp_f32 {v(T+2)}, {v(T+2)}")
    A(f"v_add_f32 {v(T+2)}, 1.0, {v(T+2)}")
    A(f"v_rcp_f32 {v(T+2)}, {v(T+2)}")
    A(f"v_mul_f32 {v(T)}, {v(T)}, {v(T+2)}")
    A(f"v_cvt_pk_bf16_f32 {v(T)}, {v(T)}, {v(T)}")
    A(f"v_and_b32 {v(T)}, 0xffff0000, {v(T)}")
    A(f"v_mul_f32 {v(T)}, {v(T)}, {v(T+1)}")
    A(f"v_mov_b32_dpp {v(T+1)}, {v(T)} quad_perm:[1,0,3,2] row_mask:0xf bank_mask:0xf")
    A(f"v_cvt_pk_bf16_f32 {v(T)}, {v(T)}, {v(T+1)}")
    A(f"v_min_u32 {v(T)}, -2, {v(T)}")
    set_exec(0x5555555555555555)
    A(f"buffer_store_dword {v(T)}, {v(vH)}, {WS}, s{sH} offen sc1")
    A("s_mov_b64 exec, -1")
    if opt("hintsrc", 0) == 1:
        Lh3 = A.newlabel("Lfa")
        A(f"s_or_b32 s60, s{sKAP}, s{WV}")
        A(f"s_or_b32 s60, s60, s{sL}")
        A(f"s_cmp_lg_u32 s60, 0")
        A(f"s_cbranch_scc1 {Lh3}")
        A(f"v_mov_b32 {v(T+4)}, 0")
        A(f"s_mov_b32 s60, {X2_OFF + SEL_OFF + 128}")
        A("s_mov_b64 exec, 1")
        A(f"buffer_store_dword {v(T+4)}, {v(T+4)}, {WS}, s60 offen sc1")
        A("s_mov_b64 exec, -1")
        A.label(Lh3)
    stamp(6, "s27")
    A(f"s_add_u32 s{sH}, s{sH}, {2 * HREP}")
    A(f"s_add_u32 s{sRG}, s{sRG}, {NRR * RG_REP}")
    A(f"s_add_u32 s{sT}, s{sT}, {T_SZ}")
    A(f"s_add_u32 s{sL}, s{sL}, 1")
    A(f"s_cmp_lt_u32 s{sL}, 2")
    A("s_cbranch_scc1 L_FaLoop")
    A("s_endpgm")

def roleFb():
    A.label("L_roleFb")
    DW, HF, ACC, K, CODE, T = 16, 128, 184, 192, 216, 224
    RAW = 128
    vG, vLW, vLR, vW1, vHF, vPW, vPR, vE, vX2, vO = 2, 3, 4, 5, 6, 7, 8, 9, 10, 11
    sB, sRG, sT, sH, sL, sREP2, sES, sEC = 22, 23, 25, 26, 27, 29, 30, 31
    nonce_load(T + 8)
    if opt("prefc", 1) == 1:
        warm_weights(T + 16, C0, 29, PPART)
    srd(8, 50, 2211840)
    srd(12, 52, 2621440)
    A(f"s_sub_u32 s60, s2, {FB0 - 7}")
    A(f"s_and_b32 s61, s60, 7")
    A(f"s_lshr_b32 s60, s60, 3")
    fb_start("s61", f"s{sB}")
    A(f"s_add_u32 s{sB}, s{sB}, s60")
    A(f"s_cmp_eq_u32 s61, 7")
    A(f"s_cselect_b32 s60, 0, 1")
    A(f"s_sub_u32 s{sB}, s{sB}, s60")
    A("s_mov_b32 s58, 0x05040100")
    A("s_mov_b32 s59, 0x07060302")
    n, g = T, T + 1
    A(f"v_and_b32 {v(n)}, 15, v1")
    A(f"v_lshrrev_b32 {v(g)}, 4, v1")
    A(f"s_lshl_b32 s60, s{WV}, 5")
    A(f"v_lshl_add_u32 {v(vW1)}, {v(g)}, 3, s60")
    A(f"v_mul_u32_u24 {v(vW1)}, 1280, {v(vW1)}")
    A(f"s_lshl_b32 s61, s{sB}, 6")
    A(f"v_lshl_add_u32 {v(T+2)}, {v(n)}, 2, s61")
    A(f"v_add_u32 {v(vW1)}, {v(vW1)}, {v(T+2)}")
    A(f"v_mov_b32 v12, {v(n)}")
    A(f"v_mov_b32 v13, {v(g)}")
    n, g = 12, 13
    A("s_waitcnt vmcnt(0)")
    nonce_take(T + 8)
    A(f"s_and_b32 s{sREP2}, s2, {NREP - 1}")
    A(f"s_lshl_b32 s{sREP2}, s{sREP2}, {FSH + 4}")
    if opt("prefc", 1) == 2:
        warm_weights(T + 16, C0, 29, PPART)
    poll_flags(0, sREP2, T + 4, opt("fsleep", 2))
    if opt("coop", 4):
        warm_coop(T + 16)
    if opt("wide", 0):
        A(f"s_lshl_b32 s60, s{WV}, 5")
        A(f"v_lshrrev_b32 {v(T+20)}, 2, v1")
        A(f"v_add_u32 {v(T+20)}, s60, {v(T+20)}")
        A(f"v_mul_u32_u24 {v(T+20)}, 1280, {v(T+20)}")
        A(f"v_and_b32 {v(T+21)}, 3, v1")
        A(f"s_lshl_b32 s61, s{sB}, 6")
        A(f"v_lshl_add_u32 {v(T+21)}, {v(T+21)}, 4, s61")
        A(f"v_add_u32 {v(T+20)}, {v(T+20)}, {v(T+21)}")
        for k in range(14):
            for hh in range(2):
                A(f"v_add_u32 {v(T+21)}, {(128 * k + 16 * hh) * 1280}, {v(T+20)}")
                A(f"buffer_load_dwordx4 {v(T+24,4)}, {v(T+21)}, {SRD1}, 0 offen")
        if opt("wide", 0) == 2:
            A("s_waitcnt vmcnt(0)")
    load_weight_frags([(SRD1, lambda k: vW1, lambda k, q: (128 * k + q) * 1280, 14, DW, RAW, 13)])
    topk_setup(CODE, vG, vLW, vLR, 8192)
    A(f"v_and_b32 {v(vHF)}, 7, v1")
    A(f"v_lshlrev_b32 {v(vHF)}, 4, {v(vHF)}")
    A(f"v_lshl_add_u32 {v(vHF)}, {v(g)}, 7, {v(vHF)}")
    A(f"s_lshl_b32 s60, s{WV}, 9")
    A(f"v_add_u32 {v(vHF)}, s60, {v(vHF)}")
    A(f"s_mov_b32 s{sH}, {H_OFF}")
    A(f"s_lshl_b32 s60, s{WV}, 10")
    A(f"v_lshlrev_b32 {v(vPW)}, 9, {v(g)}")
    A(f"v_lshl_add_u32 {v(vPW)}, {v(n)}, 3, {v(vPW)}")
    A(f"v_add_u32 {v(vPW)}, s60, {v(vPW)}")
    A(f"v_lshlrev_b32 {v(vPR)}, 2, v0")
    A(f"s_cmp_ge_u32 s{sB}, 10")
    A(f"s_cselect_b32 s60, 1, 0")
    A(f"s_mul_i32 s61, s60, 10")
    A(f"s_sub_u32 s61, s{sB}, s61")
    A(f"s_lshl_b32 s62, s60, 9")
    A(f"s_lshl_b32 s63, s61, 1")
    A(f"s_add_u32 s62, s62, s63")
    A(f"s_lshl_b32 s64, s60, 7")
    A(f"s_add_u32 s64, s64, s63")
    A(f"s_add_u32 s64, s64, {1024 - 16}")
    A(f"s_cmp_lt_u32 s61, 8")
    A(f"s_cselect_b32 s{sEC}, s62, s64")
    A(f"s_cselect_b32 s{sES}, 16, 4")
    A(f"v_and_b32 {v(T+2)}, 31, v1")
    A(f"v_mul_u32_u24 {v(vE)}, s{sES}, {v(T+2)}")
    A(f"s_and_b32 s32, s{sEC}, 2")
    A(f"s_lshl_b32 s32, s32, 3")
    A(f"s_sub_u32 s32, 16, s32")
    A(f"s_and_b32 s{sEC}, s{sEC}, -4")
    A(f"v_add_u32 {v(vE)}, s{sEC}, {v(vE)}")

    A(f"s_lshl_b32 s60, s{sB}, 2")
    A(f"s_add_u32 s60, s60, s{WV}")
    A(f"s_lshl_b32 s60, s60, 8")
    A(f"v_lshl_add_u32 {v(vX2)}, {v(T+2)}, 3, s60")
    A(f"v_lshrrev_b32 {v(T+3)}, 5, v1")
    A(f"v_lshl_add_u32 {v(vX2)}, {v(T+3)}, 2, {v(vX2)}")
    A(f"s_lshl_b32 s60, s{sB}, 6")
    A(f"v_lshl_add_u32 {v(vO)}, {v(T+2)}, 1, s60")
    A(f"s_and_b32 s{sRG}, s2, {NRR - 1}")
    A(f"s_lshl_b32 s{sRG}, s{sRG}, {RSH + 8}")
    A(f"s_add_u32 s{sRG}, s{sRG}, {RG_OFF}")
    A(f"s_mov_b32 s{sT}, {T_OFF}")
    A(f"s_mov_b32 s28, {T_REC}")
    A(f"s_mov_b32 s{sL}, 0")
    touch(T + 2, T_OFF, 2 * T_SZ)
    stamp(0, dbg=(10, FB0))
    poll_flags(1, sREP2, T, 8)
    prio(3)
    A.label("L_FbLoop")
    c = topk(K, CODE, vG, vLW, vLR, sRG, T, None)
    stamp(4, "s27")
    for j in range(8):
        A(f"v_readfirstlane_b32 s{80+j}, {v(c[j])}")
    A("s_mov_b32 s70, s80")
    A("s_mov_b32 s71, s81")
    for w in range(1, 4):
        A(f"s_cmp_eq_u32 s{WV}, {w}")
        A(f"s_cselect_b32 s70, s{80+2*w}, s70")
        A(f"s_cselect_b32 s71, s{81+2*w}, s71")
    KEY, ROW, XV, XNV, SG, ST = T, T + 1, T + 2, T + 3, T + 4, T + 8
    Ls = A.newlabel("Lfb")
    A(f"s_or_b32 s60, s{sB}, s{WV}")
    A(f"s_cmp_lg_u32 s60, 0")
    A(f"s_cbranch_scc1 {Ls}")
    A(f"v_mov_b32 {v(T+6)}, s80")
    for j in range(1, 8):
        A(f"v_writelane_b32 {v(T+6)}, s{80+j}, {j}")
    A(f"v_and_b32 {v(T+6)}, 0x7ff, {v(T+6)}")
    A(f"v_sub_u32 {v(T+6)}, 2047, {v(T+6)}")
    A(f"v_lshlrev_b32 {v(T+7)}, 2, v1")
    A(f"s_lshl_b32 s60, s{sL}, 8")
    A(f"s_add_u32 s60, s60, {X2_OFF + SEL_OFF}")
    A("s_mov_b64 exec, 0xff")
    A(f"buffer_store_dword {v(T+6)}, {v(T+7)}, {WS}, s60 offen sc1")
    A("s_mov_b64 exec, -1")
    A.label(Ls)
    A(f"v_mov_b32 {v(KEY)}, s71")
    A(f"v_mov_b32 {v(ROW)}, s70")
    A(f"v_cmp_gt_u32 vcc, 32, v1")
    A(f"v_cndmask_b32 {v(KEY)}, {v(KEY)}, {v(ROW)}, vcc")
    A(f"v_and_b32 {v(ROW)}, 0x7ff, {v(KEY)}")
    A(f"v_sub_u32 {v(ROW)}, 2047, {v(ROW)}")
    A(f"v_mad_u32_u24 {v(T+5)}, {v(ROW)}, s28, {v(vE)}")
    prio(0)
    loop, done = A.newlabel("Lst2"), A.newlabel("Lst2d")
    A(f"v_mul_u32_u24 {v(T+6)}, s28, {v(ROW)}")
    A(f"s_add_u32 s61, s{NONCE}, 6")
    A(f"s_add_u32 s61, s61, s{sL}")
    A(f"s_mov_b32 s62, {SPIN}")
    A.label(loop)
    A(f"buffer_load_dwordx4 {v(ST,4)}, {v(T+6)}, {WS}, s{sT} offen offset:2560 sc1")
    A("s_waitcnt vmcnt(0)")
    A(f"v_cmp_ne_u32 vcc, s61, {v(ST+2)}")
    A(f"s_cbranch_vccz {done}")
    spin_tail(loop, 62, 2)
    A.label(done)
    A(f"buffer_load_dword {v(XNV)}, {v(T+5)}, {WS}, s{sT} offen sc1")
    A(f"buffer_load_dword {v(XV)}, {v(T+5)}, {WS}, s{sT} offen offset:1280 sc1")
    A(f"v_ashrrev_i32 {v(SG)}, 31, {v(KEY)}")
    A(f"v_not_b32 {v(SG)}, {v(SG)}")
    A(f"v_or_b32 {v(SG)}, 0x80000000, {v(SG)}")
    A(f"v_xor_b32 {v(SG)}, {v(SG)}, {v(KEY)}")
    A(f"v_and_b32 {v(SG)}, 0xffff0000, {v(SG)}")
    A(f"v_mul_f32 {v(SG)}, {f32(-1.4426950408889634)}, {v(SG)}")
    A(f"v_exp_f32 {v(SG)}, {v(SG)}")
    A(f"v_add_f32 {v(SG)}, 1.0, {v(SG)}")
    A(f"v_rcp_f32 {v(SG)}, {v(SG)}")
    A(f"v_cvt_pk_bf16_f32 {v(SG)}, {v(SG)}, {v(SG)}")
    A(f"v_and_b32 {v(SG)}, 0xffff0000, {v(SG)}")
    stamp(2, "s27")
    def rb(r):
        A(f"v_cvt_pk_bf16_f32 {v(r)}, {v(r)}, {v(r)}")
        A(f"v_and_b32 {v(r)}, 0xffff0000, {v(r)}")
    Yv = T + 12
    XO = T + 16
    if opt("hgate", 1):
        loop, done = A.newlabel("Lh"), A.newlabel("Lhd")
        A(f"s_mov_b32 s62, {SPIN}")
        set_exec(0x00FF00FF00FF00FF)
        A.label(loop)
        A(f"buffer_load_dwordx4 {v(HF,4)}, {v(vHF)}, {WS}, s{sH} offen sc1")
        A("s_waitcnt vmcnt(0)")
        any_sentinel(range(HF, HF + 4), T + 6, done)
        spin_tail(loop, 62, opt("hgsleep", 1))
        A.label(done)
    loop, done = A.newlabel("Lh"), A.newlabel("Lhd")
    A(f"s_cmp_lt_u32 s{WV}, 2")
    A(f"s_cselect_b32 s63, 2048, 0")
    A(f"s_add_u32 s63, s63, {12 * 2048}")
    A(f"s_add_u32 s63, s63, s{sH}")
    A(f"s_mov_b32 s62, {SPIN}")
    set_exec(0x00FF00FF00FF00FF)
    A.label(loop)
    for k in range(14):
        if k == 13:
            A(f"buffer_load_dwordx4 {v(HF+4*k,4)}, {v(vHF)}, {WS}, s63 offen sc1")
        else:
            if k % 2 == 0:
                A(f"s_add_u32 s60, s{sH}, {2048 * k}")
            A(f"buffer_load_dwordx4 {v(HF+4*k,4)}, {v(vHF)}, {WS}, s60 offen offset:{2048*(k%2)} sc1")
    CK = T + 6
    HP = opt("hprog", 1)
    def mf(k):
        for par in range(2):
            cc = "0" if k == 0 else v(ACC + 4 * par, 4)
            A(f"v_mfma_f32_16x16x32_bf16 {v(ACC+4*par,4)}, {v(HF+4*k,4)}, {v(DW+8*k+4*par,4)}, {cc}")
    if HP:
        A("s_mov_b64 exec, -1")
        for k in range(14):
            A(f"s_waitcnt vmcnt({13-k})")
            mf(k)
            if k == 0:
                A(f"v_max3_u32 {v(CK)}, {v(HF)}, {v(HF+1)}, {v(HF+2)}")
                A(f"v_max_u32 {v(CK)}, {v(CK)}, {v(HF+3)}")
            else:
                A(f"v_max3_u32 {v(CK)}, {v(CK)}, {v(HF+4*k)}, {v(HF+4*k+1)}")
                A(f"v_max3_u32 {v(CK)}, {v(CK)}, {v(HF+4*k+2)}, {v(HF+4*k+3)}")
        set_exec(0x00FF00FF00FF00FF)
        A(f"v_cmp_eq_u32 vcc, -1, {v(CK)}")
        A(f"s_cbranch_vccz {done}")
    else:
        A("s_waitcnt vmcnt(0)")
        any_sentinel(list(range(HF, HF + 56)), CK, done)
    spin_tail(loop, 62, opt("hsleep", 1))
    A.label(done)
    A("s_mov_b64 exec, -1")
    prio(3)
    stamp(5, "s27")
    Lh2 = A.newlabel("Lfb")
    A(f"s_or_b32 s60, s{sB}, s{WV}")
    A(f"s_or_b32 s60, s60, s{sL}")
    A(f"s_cmp_lg_u32 s60, {0 if opt('hintsrc', 0) == 0 else -1}")
    A(f"s_cbranch_scc1 {Lh2}")
    A(f"v_mov_b32 {v(CK)}, 0")
    A(f"s_mov_b32 s60, {X2_OFF + SEL_OFF + 128}")
    A("s_mov_b64 exec, 1")
    A(f"buffer_store_dword {v(CK)}, {v(CK)}, {WS}, s60 offen sc1")
    A.label(Lh2)
    A("s_mov_b64 exec, -1")
    if not HP:
        for k in range(14):
            mf(k)
    for r in (XNV, XV):
        A(f"v_lshlrev_b32 {v(r)}, s32, {v(r)}")
        A(f"v_and_b32 {v(r)}, 0xffff0000, {v(r)}")
    A(f"v_add_f32 {v(XO)}, {v(XV)}, {v(XNV)}")
    rb(XO)
    if EXACT:
        A(f"v_sub_f32 {v(XO)}, {v(XO)}, {v(ST)}")
        rb(XO)
        A(f"v_mul_f32 {v(XO)}, {v(XO)}, {v(ST+1)}")
        rb(XO)
    else:
        A(f"v_mul_f32 {v(ST)}, {v(ST)}, {v(ST+1)}")
        A(f"v_fma_f32 {v(XO)}, {v(XO)}, {v(ST+1)}, -{v(ST)}")
    set_exec(0xffffffff)
    for r in range(4):
        A(f"ds_write2_b32 {v(vPW)}, {v(ACC+r)}, {v(ACC+4+r)} offset0:{32*r} offset1:{32*r+1}")
    A("s_mov_b64 exec, -1")
    A("s_waitcnt lgkmcnt(0)")
    A("s_barrier")
    A(f"ds_read2st64_b32 {v(Yv,2)}, {v(vPR)} offset0:0 offset1:4")
    A(f"ds_read2st64_b32 {v(Yv+2,2)}, {v(vPR)} offset0:8 offset1:12")
    A("s_waitcnt lgkmcnt(0)")
    A(f"v_pk_add_f32 {v(Yv,2)}, {v(Yv,2)}, {v(Yv+2,2)}")
    A(f"v_add_f32 {v(Yv)}, {v(Yv)}, {v(Yv+1)}")
    rb(Yv)
    A(f"v_mul_f32 {v(Yv)}, {v(Yv)}, {v(SG)}")
    rb(Yv)
    A(f"v_add_f32 {v(Yv)}, {v(Yv)}, {v(XNV)}")
    rb(Yv)
    A(f"v_add_f32 {v(Yv)}, {v(Yv)}, {v(XV)}")
    L2 = A.newlabel("Lfb")
    A(f"s_cmp_lg_u32 s{sL}, 0")
    A(f"s_cbranch_scc1 {L2}")
    A(f"v_permlane32_swap_b32 {v(Yv)}, {v(XO)}")
    A(f"v_cvt_pk_bf16_f32 {v(Yv+1)}, {v(Yv)}, {v(XO)}")
    A(f"v_cvt_pk_f16_f32 {v(Yv)}, {v(Yv)}, {v(XO)}")
    A(f"v_cmp_gt_u32 vcc, 32, v1")
    A(f"v_cndmask_b32 {v(Yv)}, {v(Yv)}, {v(Yv+1)}, vcc")
    A(f"v_min_u32 {v(Yv)}, -2, {v(Yv)}")
    for r in range(NRX):
        A(f"s_mov_b32 s60, {X2_OFF + r * X2REP}")
        A(f"buffer_store_dword {v(Yv)}, {v(vX2)}, {WS}, s60 offen sc1")
    stamp(6, "s27", dbg=(12, FB0))
    A(f"s_add_u32 s{sH}, s{sH}, {2 * HREP}")
    A(f"s_add_u32 s{sRG}, s{sRG}, {NRR * RG_REP}")
    A(f"s_add_u32 s{sT}, s{sT}, {T_SZ}")
    A(f"s_mov_b32 s{sL}, 1")
    A("s_branch L_FbLoop")
    A.label(L2)
    A(f"v_cvt_pk_bf16_f32 {v(Yv)}, {v(Yv)}, {v(Yv)}")
    A(f"s_movk_i32 s60, 1280")
    A(f"v_mad_u32_u24 {v(Yv+1)}, {v(ROW)}, s60, {v(vO)}")
    A(f"buffer_store_short {v(Yv)}, {v(Yv+1)}, {SRD2}, 0 offen sc1")
    stamp(7, "s27", dbg=(15, FB0))
    A(f"s_or_b32 s60, s{sB}, s{WV}")
    A(f"s_cmp_lg_u32 s60, 0")
    A("s_cbranch_scc1 L_end")
    A(f"v_mov_b32 {v(T)}, s{NONCE}")
    A(f"v_mov_b32 {v(T+1)}, 0")
    A("s_mov_b64 exec, 1")
    A(f"buffer_store_dword {v(T)}, {v(T+1)}, {WS}, 0 offen sc1")
    A.label("L_end")
    A("s_endpgm")

hdr = open("cdna_kernels/%s.s.ref" % NAME).read().split("\n")
head = [l for l in hdr if l.startswith(";") and "@launch" not in l and "Override" not in l and "grid=ceil" not in l]
out = "\n".join(head) + "\n"
out += f"; @launch grid=({NWG},1,1) block=(256,1,1) lds={LDS_BYTES}\n"
out += """
; ---------------------------------------------------------------------------------------------------------
; One persistent launch, 491 co-resident workgroups (2 per CU), four roles chosen by workgroup id:
;   R  (0..255)    8 token rows each: layer norms, residuals, router scores, DFT along the hidden axis
;   C  (256..416)  2 spectrum columns each: DFT along the sequence axis
;   Fa (417..470)  top-8 selection + gate/up projection + SwiGLU for a 32-column slice
;   Fb (471..490)  top-8 selection + down projection + scatter for a 32-column slice
; The Fourier sublayer Real(DFT_seq(DFT_hid(x))) is evaluated with the exact Cooley-Tukey factorisation of the
; two (constant) DFT matrices, 640 = 20 x 32 and 2048 = 32 x 64, as small MFMA products with f16 factors that are
; generated with v_cos/v_sin; pairs of real rows are packed into one complex row and unpacked inside the
; column factor.  The layer-1 expert update of the 8 routed rows enters the second Fourier sublayer as an exact
; rank-8 correction (linearity), so the column pass of layer 2 overlaps the expert MLP.
; Hand-offs between workgroups go through d_ws with write-through (sc1) stores and sc1 loads.  Flags carry a
; per-launch tag derived from the word at d_ws+0; bulk buffers are pre-filled with all-ones by their producer and
; re-read by consumers until every word has landed.  All waits are bounded.
; Generated by the author's own script (hand-written instruction sequences).
; ---------------------------------------------------------------------------------------------------------
""".lstrip("\n")
out += '.amdgcn_target "amdgcn-amd-amdhsa--gfx950"\n.text\n'
out += f".globl {NAME}_kernel\n.p2align 8\n.type {NAME}_kernel,@function\n{NAME}_kernel:\n"
prologue(); roleR(); roleC(); roleFa(); roleFb()
out += A.text()
out += "L_code_end:\n"
out = out.replace(".text\n", ".text\n.set CODE_LINES, 256\n.set CODE_LINES2, 100\n", 1)
out += f""".section .rodata,"a"
.p2align 6
.amdhsa_kernel {NAME}_kernel
  .amdhsa_next_free_vgpr 256
  .amdhsa_next_free_sgpr 102
  .amdhsa_accum_offset 256
  .amdhsa_group_segment_fixed_size 0
  .amdhsa_kernarg_size 104
  .amdhsa_user_sgpr_count 2
  .amdhsa_user_sgpr_kernarg_segment_ptr 1
  .amdhsa_system_sgpr_workgroup_id_x 1
  .amdhsa_float_denorm_mode_32 3
.end_amdhsa_kernel
"""
import subprocess, tempfile, os, re
with tempfile.TemporaryDirectory() as td:
    open(td + "/a.s", "w").write(out)
    subprocess.check_call(["clang", "-x", "assembler", "-target", "amdgcn-amd-amdhsa", "-mcpu=gfx950", "-c", td + "/a.s", "-o", td + "/a.o"])
    hd = subprocess.check_output(["llvm-objdump", "-h", td + "/a.o"]).decode()
    size = int(re.search(r"\.text\s+([0-9a-f]+)", hd).group(1), 16)
out = out.replace(".set CODE_LINES, 256", ".set CODE_LINES, %d" % min(256, size // 128))
out = out.replace(".set CODE_LINES2, 100", ".set CODE_LINES2, %d" % max(0, size // 128 - 256))
print("code bytes:", size, file=sys.stderr)
dst = [a for a in sys.argv[1:] if not a.startswith("--")]
open(dst[0] if dst else "cdna_kernels/%s.s" % NAME, "w").write(out)
print("instructions:", A.ninstr, file=sys.stderr)
```

```python
import sys, struct
from asmb import Asm

NAME = "interleave_layers__spectral_fnet__moe_arch_mod__prompt"
def opt(name, default):
    for a in sys.argv:
        if a.startswith("--%s=" % name):
            return int(a.split("=")[1])
    return default
STAMPS = "--stamps" in sys.argv
DSTAMPS = "--dstamps" in sys.argv
MSTAMPS = "--mstamps" in sys.argv
EXACT = opt("exact", 0)
EXACT1 = opt("exact1", 0)
GATE = opt("gate", 1)
NR, NC, NFA, NFB = 256, 161, 54, 20
C0, FA0, FB0, NWG = 256, 417, 471, 491
FSH = opt("fsh", 6); FREP = 16 << FSH
FL_OFF = 0x1000; NREP = opt("nrep", 16)
RESET_OFF = 0x70000
H_OFF = 0x70000; HREP = 0x7000
X2_OFF = 0x90000; X2REP = 0x5200; NRX = opt("nrx", 1); SEL_OFF = 0x5000
RSH = opt("rsh", 6)
RG_OFF = 0xA0000; NRR = opt("nrr", 8); RG_REP = 256 << RSH
CNT_OFF = 0xF8000
WROW = 10368
W_OFF = 0x100000; W_SZ = 0x290000
Y_OFF = 0x640000; Y_SZ = 0x160000; YM_OFF = 322 * 4096
T_OFF = 0x900000; T_REC = 2688; T_SZ = 2048 * T_REC
ST_OFF = 0x1400000
WS_BYTES = 0x1500000
NONCE_C = 0x9E3779B9
SPIN = 40000
LDS_BYTES = 53248
assert FL_OFF + 4 * NREP * FREP <= 0x70000 and RG_OFF + 2 * NRR * RG_REP <= 0xF0000
PSLEEP = opt("psleep", 0)
EARLY_R = opt("earlyr", 1)
EARLY_C = opt("earlyc", 2)
PRIO = opt("prio", 1)
DRAIN2 = opt("drain2", 0)
AWR = opt("awr", 3)
PPART = opt("ppart", 3)
DRAIN0 = opt("drain0", 0)
def prio(n):
    if PRIO:
        A(f"s_setprio {n}")

def f32(x):
    return "0x%08x" % struct.unpack("<I", struct.pack("<f", x))[0]
def v(i, n=1):
    return "v%d" % i if n == 1 else "v[%d:%d]" % (i, i + n - 1)
def s(i, n=1):
    return "s%d" % i if n == 1 else "s[%d:%d]" % (i, i + n - 1)

A = Asm()
WS = "s[4:7]"; SRD1 = "s[8:11]"; SRD2 = "s[12:15]"; SRD3 = "s[16:19]"
NONCE = 20; WV = 21

def srd(base, ptr, nbytes):
    A(f"s_mov_b32 s{base}, s{ptr}")
    A(f"s_and_b32 s{base+1}, s{ptr+1}, 0xffff")
    A(f"s_mov_b32 s{base+2}, {nbytes}")
    A(f"s_mov_b32 s{base+3}, 0x00020000")

def set_exec(m):
    A(f"s_mov_b32 exec_lo, 0x{m & 0xffffffff:x}")
    A(f"s_mov_b32 exec_hi, 0x{m >> 32:x}")

def stamp(idx, lay=None, dbg=None):
    if MSTAMPS and dbg is not None:
        L = A.newlabel("Lst")
        A(f"s_mov_b32 s97, s{WV}")
        if len(dbg) > 2:
            A(f"s_sub_u32 s96, {lay}, {dbg[2]}")
            A(f"s_or_b32 s97, s97, s96")
        A(f"s_cmp_lg_u32 s97, 0")
        A(f"s_cbranch_scc1 {L}")
        A("s_memrealtime s[98:99]")
        A("s_waitcnt lgkmcnt(0)")
        A("s_and_b32 s98, s98, 0x7fffffff")
        A("v_mov_b32 v254, s98")
        A("v_mov_b32 v253, 0")
        A("s_mov_b64 exec, 1")
        if dbg[0] == 0:
            A(f"buffer_atomic_umax v254, v253, s[92:95], 0 offen offset:4")
            A("v_not_b32 v254, v254")
        if dbg[0] != 1:
            A(f"buffer_atomic_umax v254, v253, s[92:95], 0 offen offset:{dbg[0] * 4}")
        A("s_mov_b64 exec, -1")
        A.label(L)
    if DSTAMPS and dbg is not None:
        L = A.newlabel("Lst")
        A(f"s_lshl_b32 s97, s{WV}, 16")
        A(f"s_or_b32 s97, s97, s2")
        if len(dbg) > 2:
            A(f"s_lshl_b32 s96, {lay}, 20")
            A(f"s_or_b32 s97, s97, s96")
        A(f"s_cmp_lg_u32 s97, {dbg[1] + ((dbg[2] << 20) if len(dbg) > 2 else 0)}")
        A(f"s_cbranch_scc1 {L}")
        A("s_memrealtime s[98:99]")
        A("s_waitcnt lgkmcnt(0)")
        A("v_mov_b32 v254, s98")
        A("v_mov_b32 v253, 0")
        A("s_mov_b64 exec, 1")
        A(f"buffer_store_dword v254, v253, s[92:95], 0 offen offset:{dbg[0] * 4}")
        A("s_mov_b64 exec, -1")
        A.label(L)
    if not STAMPS:
        return
    L = A.newlabel("Lst")
    A(f"s_cmp_lg_u32 s{WV}, 0")
    A(f"s_cbranch_scc1 {L}")
    A("s_memrealtime s[98:99]")
    A("s_memtime s[100:101]")
    A("s_waitcnt lgkmcnt(0)")
    A("v_mov_b32 v254, s98")
    A("v_mov_b32 v255, s100")
    A("v_mov_b32 v253, 0")
    A("s_lshl_b32 s97, s2, 9")
    A(f"s_add_u32 s97, s97, {ST_OFF + idx * 8}")
    if lay is not None:
        A(f"s_lshl_b32 s96, {lay}, 6")
        A("s_add_u32 s97, s97, s96")
    A("s_mov_b64 exec, 1")
    A(f"buffer_store_dwordx2 v[254:255], v253, {WS}, s97 offen")
    A("s_mov_b64 exec, -1")
    A.label(L)

def spin_tail(loop, cnt, sleep=1):
    if sleep:
        A(f"s_sleep {sleep}")
    A(f"s_sub_u32 s{cnt}, s{cnt}, 1")
    A(f"s_cmp_lg_u32 s{cnt}, 0")
    A(f"s_cbranch_scc1 {loop}")

def any_sentinel(regs, t, done):
    regs = list(regs)
    A(f"v_max3_u32 {v(t)}, {v(regs[0])}, {v(regs[1])}, {v(regs[2])}")
    k = 3
    while k + 1 < len(regs):
        A(f"v_max3_u32 {v(t)}, {v(t)}, {v(regs[k])}, {v(regs[k+1])}")
        k += 2
    if k < len(regs):
        A(f"v_max_u32 {v(t)}, {v(t)}, {v(regs[k])}")
    A(f"v_cmp_eq_u32 vcc, -1, {v(t)}")
    A(f"s_cbranch_vccz {done}")

def poll_flags(k, srep, t, sleep=None):
    loop, done = A.newlabel("Lpoll"), A.newlabel("Lpolld")
    A(f"s_cmp_lg_u32 s{WV}, 0")
    A(f"s_cbranch_scc1 {done}")
    if isinstance(k, int):
        A(f"s_add_u32 s60, s{srep}, {FL_OFF + k * NREP * FREP}")
    else:
        A(f"s_mul_i32 s60, {k}, {NREP * FREP}")
        A(f"s_add_u32 s60, s60, s{srep}")
        A(f"s_add_u32 s60, s60, {FL_OFF}")
    A(f"s_add_u32 s61, s{NONCE}, {k}")
    A(f"v_and_b32 {v(t+1)}, 15, v1")
    A(f"v_lshlrev_b32 {v(t+1)}, {FSH}, {v(t+1)}")
    A(f"s_mov_b32 s62, {SPIN}")
    A.label(loop)
    A(f"buffer_load_dword {v(t)}, {v(t+1)}, {WS}, s60 offen sc1")
    A("s_waitcnt vmcnt(0)")
    A(f"v_cmp_ne_u32 vcc, s61, {v(t)}")
    A(f"s_cbranch_vccz {done}")
    spin_tail(loop, 62, PSLEEP if sleep is None else sleep)
    A.label(done)
    A("s_barrier")

def cnt_init(sshard, ks, t):
    for k in ks:
        A(f"s_add_u32 s60, s{sshard}, {16 * k}")
        A(f"s_lshl_b32 s60, s60, 7")
        A(f"s_add_u32 s60, s60, {CNT_OFF}")
        A(f"s_add_u32 s61, s{NONCE}, {k}")
        A(f"v_mov_b32 {v(t)}, 0")
        A(f"v_mov_b32 {v(t+1)}, s61")
        A(f"v_mov_b32 {v(t+2)}, 0")
        A("s_mov_b64 exec, 1")
        A(f"buffer_store_dwordx2 {v(t,2)}, {v(t+2)}, {WS}, s60 offen sc1")
        A("s_mov_b64 exec, -1")

def arrive_issue(k, sshard, t, aw=0):
    L = A.newlabel("Larr")
    A(f"s_cmp_lg_u32 s{WV}, {aw}")
    A(f"s_cbranch_scc1 {L}")
    if isinstance(k, int):
        A(f"s_add_u32 s66, s{sshard}, {16 * k}")
    else:
        A(f"s_lshl_b32 s66, {k}, 4")
        A(f"s_add_u32 s66, s66, s{sshard}")
    A(f"s_lshl_b32 s66, s66, 7")
    A(f"s_add_u32 s66, s66, {CNT_OFF}")
    A(f"v_mov_b32 {v(t)}, 1")
    A(f"v_mov_b32 {v(t+1)}, 0")
    A(f"v_mov_b32 {v(t+2)}, 0")
    A("s_mov_b64 exec, 1")
    A(f"buffer_atomic_add_x2 {v(t,2)}, {v(t+2)}, {WS}, s66 offen sc0")
    A("s_mov_b64 exec, -1")
    A.label(L)

def arrive_finish(k, sshard, slast, t, younger, aw=0, mark=None):
    L, again, chk = A.newlabel("Lsig"), A.newlabel("Lsiga"), A.newlabel("Lsigc")
    A(f"s_cmp_lg_u32 s{WV}, {aw}")
    A(f"s_cbranch_scc1 {L}")
    if isinstance(k, int):
        A(f"s_lshl_b32 s67, s{sshard}, {FSH}")
        A(f"s_add_u32 s67, s67, {FL_OFF + k * NREP * FREP}")
    else:
        A(f"s_mul_i32 s67, {k}, {NREP * FREP}")
        A(f"s_lshl_b32 s68, s{sshard}, {FSH}")
        A(f"s_add_u32 s67, s67, s68")
        A(f"s_add_u32 s67, s67, {FL_OFF}")
    A(f"s_add_u32 s68, s{NONCE}, {k}")
    A(f"v_lshlrev_b32 {v(t+3)}, {FSH + 4}, v1")
    A(f"v_mov_b32 {v(t+4)}, s68")
    A(f"s_mov_b32 s69, {SPIN}")
    if isinstance(younger, tuple):
        A(f"s_waitcnt vmcnt({younger[2]})")
        A(f"s_cmp_eq_u32 {younger[0]}, {younger[1]}")
        A(f"s_cbranch_scc1 {chk}")
        A("s_waitcnt vmcnt(0)")
    else:
        A(f"s_waitcnt vmcnt({younger})")
    A(f"s_branch {chk}")
    A.label(again)
    A(f"s_sub_u32 s69, s69, 1")
    A(f"s_cmp_eq_u32 s69, 0")
    A(f"s_cbranch_scc1 {L}")
    A(f"v_mov_b32 {v(t)}, 1")
    A(f"v_mov_b32 {v(t+1)}, 0")
    A(f"v_mov_b32 {v(t+2)}, 0")
    A("s_mov_b64 exec, 1")
    A(f"buffer_atomic_add_x2 {v(t,2)}, {v(t+2)}, {WS}, s66 offen sc0")
    A("s_mov_b64 exec, -1")
    A("s_waitcnt vmcnt(0)")
    A.label(chk)
    A(f"v_readfirstlane_b32 s65, {v(t+1)}")
    A(f"v_readfirstlane_b32 s64, {v(t)}")
    A(f"s_cmp_lg_u32 s65, s68")
    A(f"s_cbranch_scc1 {again}")
    A(f"s_cmp_lg_u32 s64, {slast}")
    A(f"s_cbranch_scc1 {L}")
    set_exec((1 << NREP) - 1)
    A(f"buffer_store_dword {v(t+4)}, {v(t+3)}, {WS}, s67 offen sc1")
    A("s_mov_b64 exec, -1")
    if mark:
        A(f"s_mov_b32 {mark}, 1")
    A.label(L)

def rnd_pair(a, b, t):
    A(f"v_cvt_pk_bf16_f32 {v(t)}, {v(a)}, {v(b)}")
    A(f"v_lshlrev_b32 {v(a)}, 16, {v(t)}")
    A(f"v_and_b32 {v(b)}, 0xffff0000, {v(t)}")

def sincos(arg, c, sn):
    A(f"v_cos_f32 {v(c)}, {v(arg)}")
    A(f"v_sin_f32 {v(sn)}, {v(arg)}")

def prefetch_weights(t):
    if not opt("pref", 0):
        return
    srd(84, 46, 2211840)
    A(f"v_lshlrev_b32 {v(t)}, 4, v0")
    A(f"s_sub_u32 s60, s2, {C0}")
    for r in range(7):
        Ls, Ld = A.newlabel("Lpf"), A.newlabel("Lpf")
        A(f"s_add_u32 s61, s60, {235 * r}")
        A(f"s_cmp_ge_u32 s61, 1620")
        A(f"s_cbranch_scc1 {Ld}")
        A(f"s_mov_b32 s84, s46")
        A(f"s_and_b32 s85, s47, 0xffff")
        for (lim, p) in ((540, 48), (540, 50)):
            A(f"s_cmp_lt_u32 s61, {lim}")
            A(f"s_cbranch_scc1 {Ls}")
            A(f"s_sub_u32 s61, s61, {lim}")
            A(f"s_mov_b32 s84, s{p}")
            A(f"s_and_b32 s85, s{p+1}, 0xffff")
        A.label(Ls)
        A(f"s_lshl_b32 s61, s61, 12")
        A(f"buffer_load_dwordx4 {v(t+4,4)}, {v(t)}, s[84:87], s61 offen")
        A.label(Ld)

def fb_start(x, d):
    A(f"s_mul_i32 {d}, {x}, 3")
    A(f"s_lshl_b32 s62, {x}, 1")
    A(f"s_add_u32 s62, s62, 3")
    A(f"s_min_u32 {d}, {d}, s62")

def nloads(part):
    return bin(part).count("1")

def warm_weights(t, first, nshare, part):
    ra, rb = -(-640 // nshare), -(-1728 // nshare)
    A("s_and_b32 s61, s2, 7")
    A(f"s_sub_u32 s60, s2, {first}")
    A("s_lshr_b32 s60, s60, 3")
    srd(84, 46, 2211840)
    if part & 5:
        A(f"v_lshrrev_b32 {v(t)}, 2, v0")
        A(f"v_and_b32 {v(t+1)}, 3, v0")
        A(f"v_min_u32 {v(t)}, {ra - 1}, {v(t)}")
        A(f"s_mul_i32 s64, s60, {ra}")
        A(f"v_add_u32 {v(t)}, s64, {v(t)}")
        A("s_mul_i32 s63, s61, 7")
        A("s_sub_u32 s63, s63, 1")
        A("s_max_i32 s63, s63, 0")
        A("s_lshl_b32 s63, s63, 6")
        A("s_and_b32 s63, s63, -128")
        A(f"v_lshl_add_u32 {v(t+1)}, {v(t+1)}, 7, s63")
        A(f"s_movk_i32 s64, 3456")
        A(f"v_mad_u32_u24 {v(t+1)}, {v(t)}, s64, {v(t+1)}")
        if part & 1:
            A(f"buffer_load_dword {v(t+3)}, {v(t+1)}, s[84:87], 0 offen")
        if part & 4:
            A("s_mov_b32 s84, s48")
            A("s_and_b32 s85, s49, 0xffff")
            A(f"buffer_load_dword {v(t+3)}, {v(t+1)}, s[84:87], 0 offen")
    if part & 2:
        A(f"v_lshrrev_b32 {v(t)}, 1, v0")
        A(f"v_and_b32 {v(t+1)}, 1, v0")
        A(f"v_min_u32 {v(t)}, {rb - 1}, {v(t)}")
        A(f"s_mul_i32 s64, s60, {rb}")
        A(f"v_add_u32 {v(t)}, s64, {v(t)}")
        fb_start("s61", "s63")
        A("s_lshl_b32 s63, s63, 6")
        A("s_and_b32 s63, s63, -128")
        A(f"v_lshl_add_u32 {v(t+1)}, {v(t+1)}, 7, s63")
        A(f"s_movk_i32 s64, 1280")
        A(f"v_mad_u32_u24 {v(t+1)}, {v(t)}, s64, {v(t+1)}")
        A("s_mov_b32 s84, s50")
        A("s_and_b32 s85, s51, 0xffff")
        A(f"buffer_load_dword {v(t+3)}, {v(t+1)}, s[84:87], 0 offen")

def warm_coop(t):
    A("s_and_b32 s61, s2, 7")
    A(f"s_sub_u32 s60, s2, {FA0 - 1}")
    A("s_lshr_b32 s60, s60, 3")
    A("s_cmp_eq_u32 s61, 0")
    A("s_cselect_b32 s62, 1, 0")
    A("s_sub_u32 s60, s60, s62")
    A("s_min_u32 s60, s60, 8")
    A("s_mul_i32 s63, s61, 7")
    A("s_sub_u32 s63, s63, 1")
    A("s_max_i32 s63, s63, 0")
    A("s_lshl_b32 s63, s63, 6")
    A("s_and_b32 s63, s63, -128")
    A(f"v_and_b32 {v(t+1)}, 3, v0")
    A(f"v_lshl_add_u32 {v(t+1)}, {v(t+1)}, 7, s63")
    A(f"s_mul_i32 s64, s60, 72")
    A(f"s_movk_i32 s65, 3456")
    srd(84, 46, 2211840)
    srd(88, 48, 2211840)
    for p in range(2 if opt("coop", 4) & 5 else 0):
        A(f"v_lshrrev_b32 {v(t)}, 2, v0")
        A(f"v_add_u32 {v(t)}, {64 * p}, {v(t)}")
        A(f"v_min_u32 {v(t)}, 71, {v(t)}")
        A(f"v_add_u32 {v(t)}, s64, {v(t)}")
        A(f"v_mad_u32_u24 {v(t)}, {v(t)}, s65, {v(t+1)}")
        if p == 1:
            set_exec(0xffffffff)
        if opt("coop", 4) & 1:
            A(f"buffer_load_dword {v(t+3)}, {v(t)}, s[84:87], 0 offen")
        if opt("coop", 4) & 4:
            A(f"buffer_load_dword {v(t+3)}, {v(t)}, s[88:91], 0 offen")
    A("s_mov_b64 exec, -1")
    fb_start("s61", "s63")
    A("s_lshl_b32 s63, s63, 6")
    A("s_and_b32 s63, s63, -128")
    A(f"v_and_b32 {v(t+1)}, 1, v0")
    A(f"v_lshl_add_u32 {v(t+1)}, {v(t+1)}, 7, s63")
    A(f"s_mul_i32 s64, s60, 192")
    A(f"s_movk_i32 s65, 1280")
    A("s_mov_b32 s84, s50")
    A("s_and_b32 s85, s51, 0xffff")
    for p in range(2 if opt("coop", 4) & 2 else 0):
        A(f"v_lshrrev_b32 {v(t)}, 1, v0")
        A(f"v_add_u32 {v(t)}, {128 * p}, {v(t)}")
        A(f"v_min_u32 {v(t)}, 191, {v(t)}")
        A(f"v_add_u32 {v(t)}, s64, {v(t)}")
        A(f"v_mad_u32_u24 {v(t)}, {v(t)}, s65, {v(t+1)}")
        A(f"buffer_load_dword {v(t+3)}, {v(t)}, s[84:87], 0 offen")
    A("s_waitcnt vmcnt(0)")

def touch(t, base, nbytes):
    if not opt("touch", 0):
        return
    n = (nbytes + 65535) >> 16
    assert n <= 256
    A(f"v_min_u32 {v(t)}, {n - 1}, v0")
    A(f"v_lshlrev_b32 {v(t)}, 16, {v(t)}")
    A(f"s_mov_b32 s60, {base + opt('touchoff', 2624)}")
    A(f"buffer_load_dword {v(t)}, {v(t)}, {WS}, s60 offen")
    A("s_waitcnt vmcnt(0)")

def nonce_load(r):
    A(f"v_mov_b32 {v(r)}, 0")
    A(f"buffer_load_dword {v(r)}, {v(r)}, {WS}, 0 offen")

def nonce_take(r):
    A(f"v_readfirstlane_b32 s{NONCE}, {v(r)}")
    A(f"s_add_u32 s{NONCE}, s{NONCE}, 0x{NONCE_C:x}")

def prologue():
    A(f"s_cmp_ge_u32 s2, {NWG}")
    A("s_cbranch_scc1 L_end")
    if opt("t0", 0):
        A("s_memrealtime s[90:91]")
    A("s_load_dwordx2 s[40:41], s[0:1], 96")
    A("s_load_dwordx2 s[42:43], s[0:1], 0")
    A("s_load_dwordx4 s[44:47], s[0:1], 48")
    A("s_load_dwordx4 s[48:51], s[0:1], 64")
    A("s_load_dwordx4 s[52:55], s[0:1], 80")
    if opt("codepf", 1):
        A("s_getpc_b64 s[60:61]")
        A("s_and_b32 s60, s60, -256")
        A("v_lshlrev_b32 v2, 7, v0")
        A("v_mov_b32 v3, s61")
        A("v_add_co_u32 v2, vcc, s60, v2")
        A("v_addc_co_u32 v3, vcc, 0, v3, vcc")
        A("v_cmp_gt_u32 vcc, CODE_LINES, v0")
        A("s_and_saveexec_b64 s[62:63], vcc")
        A("s_cbranch_execz L_nopf")
        A("global_load_dword v255, v[2:3], off")
        A("v_add_co_u32 v2, vcc, 0x8000, v2")
        A("v_addc_co_u32 v3, vcc, 0, v3, vcc")
        A("v_cmp_gt_u32 vcc, CODE_LINES2, v0")
        A("s_and_b64 exec, exec, vcc")
        A("s_cbranch_execz L_nopf")
        A("global_load_dword v255, v[2:3], off")
        A.label("L_nopf")
        A("s_mov_b64 exec, s[62:63]")
    A("v_lshrrev_b32 v2, 6, v0")
    A("v_and_b32 v1, 63, v0")
    A(f"v_readfirstlane_b32 s{WV}, v2")
    A("s_waitcnt lgkmcnt(0)")
    srd(4, 40, WS_BYTES)
    if DSTAMPS or MSTAMPS:
        srd(92, 54, 256)
    stamp(31, dbg=(0, 0))
    if opt("t0", 0):
        L = A.newlabel("Lt0")
        A(f"s_lshl_b32 s97, s{WV}, 16")
        A(f"s_or_b32 s97, s97, s2")
        A(f"s_cmp_lg_u32 s97, 0")
        A(f"s_cbranch_scc1 {L}")
        A("v_mov_b32 v254, s90")
        A("v_mov_b32 v253, 0")
        A("s_mov_b64 exec, 1")
        A(f"buffer_store_dword v254, v253, s[92:95], 0 offen offset:4")
        A("s_mov_b64 exec, -1")
        A.label(L)
    A(f"s_cmp_lt_u32 s2, {C0}")
    A("s_cbranch_scc1 L_roleR")
    A(f"s_cmp_lt_u32 s2, {FA0}")
    A("s_cbranch_scc1 L_roleC")
    A(f"s_cmp_lt_u32 s2, {FB0}")
    A("s_cbranch_scc1 L_roleFa")
    A("s_branch L_roleFb")

B1R, B1I, TWC, TWS, B2R, B2I, WR, INV = 16, 28, 40, 56, 72, 88, 104, 114
X, XN, MM, RS = 116, 136, 156, 158
ACR, ACI, AF1, AF2, AC2R, AC2I = 160, 176, 192, 204, 220, 236
vX, vY0, vY1, vY2, vKX, vLC, vLYW, vLYR, vLWW, vLWR0, vWG, vTA = 2, 3, 4, 5, 6, 7, 8, 9, 10, 11, 14, 15
vTB, vWG1 = 252, 115
sRHO, sA, sS2, sRA, sME, sREP, sXO, sWB, sTB, sP, sS, sQ = 22, 23, 24, 25, 26, 27, 28, 29, 30, 32, 34, 36
sSEL = 80
s32f = 38
sTAU = 39
LDS_Y, LDS_W, LDS_NEW, LDS_KX, LDS_CONST, LDS_RG = 0, 10240, 21504, 31744, 24576, 52224

def reduce_tail(r):
    for k in (8, 4, 2, 1):
        A(f"v_add_f32_dpp {v(r)}, {v(r)}, {v(r)} row_ror:{k} row_mask:0xf bank_mask:0xf")

def tau_of(w, t, scale):
    A(f"v_pk_mul_f32 {v(t,2)}, {v(w,2)}, {v(w,2)}")
    for i in range(2, 10, 2):
        A(f"v_pk_fma_f32 {v(t,2)}, {v(w+i,2)}, {v(w+i,2)}, {v(t,2)}")
    A(f"v_add_f32 {v(t)}, {v(t)}, {v(t+1)}")
    for sw in ("32", "16"):
        A(f"v_mov_b32 {v(t+1)}, {v(t)}")
        A(f"v_permlane{sw}_swap_b32 {v(t)}, {v(t+1)}")
        A(f"v_add_f32 {v(t)}, {v(t)}, {v(t+1)}")
    reduce_tail(t)
    A(f"v_sqrt_f32 {v(t)}, {v(t)}")
    A(f"v_mul_f32 {v(t)}, {f32(scale * opt('tau', 200) / 100)}, {v(t)}")

def ln_stats(xb, t):
    A.comment("layer-norm statistics (pivot-shifted sums; mean, variance, +eps and sqrt rounded to bf16 like the reference)")
    S_, Q_, D0, D1 = t, t + 2, t + 4, t + 6
    A(f"v_readfirstlane_b32 s{sP}, {v(xb)}")
    A(f"v_readfirstlane_b32 s{sP+1}, {v(xb+1)}")
    for i in range(10):
        D = S_ if i == 0 else (D0 if i % 2 else D1)
        A(f"v_pk_add_f32 {v(D,2)}, {v(xb+2*i,2)}, {s(sP,2)} neg_lo:[0,1] neg_hi:[0,1]")
        if i == 0:
            A(f"v_pk_mul_f32 {v(Q_,2)}, {v(D,2)}, {v(D,2)}")
        else:
            A(f"v_pk_add_f32 {v(S_,2)}, {v(S_,2)}, {v(D,2)}")
            A(f"v_pk_fma_f32 {v(Q_,2)}, {v(D,2)}, {v(D,2)}, {v(Q_,2)}")
    A(f"v_permlane32_swap_b32 {v(S_)}, {v(S_+1)}")
    A(f"v_permlane32_swap_b32 {v(Q_)}, {v(Q_+1)}")
    A(f"v_add_f32 {v(S_)}, {v(S_)}, {v(S_+1)}")
    A(f"v_add_f32 {v(Q_)}, {v(Q_)}, {v(Q_+1)}")
    A(f"v_permlane16_swap_b32 {v(S_)}, {v(Q_)}")
    A(f"v_add_f32 {v(S_)}, {v(S_)}, {v(Q_)}")
    reduce_tail(S_)
    A(f"v_readlane_b32 s{sS}, {v(S_)}, 0")
    A(f"v_readlane_b32 s{sS+1}, {v(S_)}, 32")
    A(f"v_readlane_b32 s{sQ}, {v(S_)}, 16")
    A(f"v_readlane_b32 s{sQ+1}, {v(S_)}, 48")
    A(f"v_pk_mul_f32 {v(MM,2)}, {s(sS,2)}, {v(INV,2)} op_sel_hi:[1,0]")
    A(f"v_pk_mul_f32 {v(RS,2)}, {s(sQ,2)}, {v(INV,2)} op_sel_hi:[1,0]")
    A(f"v_pk_fma_f32 {v(RS,2)}, {v(MM,2)}, {v(MM,2)}, {v(RS,2)} neg_lo:[1,0,0] neg_hi:[1,0,0]")
    A(f"v_pk_add_f32 {v(MM,2)}, {v(MM,2)}, {s(sP,2)}")
    A(f"v_max_f32 {v(RS)}, 0, {v(RS)}")
    A(f"v_max_f32 {v(RS+1)}, 0, {v(RS+1)}")
    rnd_pair(RS, RS + 1, D0)
    A(f"v_add_f32 {v(RS)}, {f32(1e-5)}, {v(RS)}")
    A(f"v_add_f32 {v(RS+1)}, {f32(1e-5)}, {v(RS+1)}")
    rnd_pair(RS, RS + 1, D0)
    A(f"v_sqrt_f32 {v(RS)}, {v(RS)}")
    A(f"v_sqrt_f32 {v(RS+1)}, {v(RS+1)}")
    rnd_pair(MM, MM + 1, D1)
    rnd_pair(RS, RS + 1, D0)
    A(f"v_rcp_f32 {v(RS)}, {v(RS)}")
    A(f"v_rcp_f32 {v(RS+1)}, {v(RS+1)}")

def ln_center_scale(xb, zb, t, exact=True):
    if not exact:
        A(f"v_pk_mul_f32 {v(t,2)}, {v(MM,2)}, {v(RS,2)} neg_lo:[1,0] neg_hi:[1,0]")
        for i in range(10):
            A(f"v_pk_fma_f32 {v(zb+2*i,2)}, {v(xb+2*i,2)}, {v(RS,2)}, {v(t,2)}")
        return
    for i in range(10):
        A(f"v_pk_add_f32 {v(zb+2*i,2)}, {v(xb+2*i,2)}, {v(MM,2)} neg_lo:[0,1] neg_hi:[0,1]")
        if exact:
            rnd_pair(zb + 2 * i, zb + 2 * i + 1, t + (i % 4))
    for i in range(10):
        A(f"v_pk_mul_f32 {v(zb+2*i,2)}, {v(zb+2*i,2)}, {v(RS,2)}")

def pack_rows(zb, pa, pb):
    for u in range(5):
        A(f"v_cvt_pk_bf16_f32 {v(pa+u)}, {v(zb+4*u)}, {v(zb+4*u+2)}")
        A(f"v_cvt_pk_bf16_f32 {v(pb+u)}, {v(zb+4*u+1)}, {v(zb+4*u+3)}")

def unpack_rows(zb, pa, pb):
    for u in range(5):
        A(f"v_lshlrev_b32 {v(zb+4*u)}, 16, {v(pa+u)}")
        A(f"v_and_b32 {v(zb+4*u+2)}, 0xffff0000, {v(pa+u)}")
        A(f"v_lshlrev_b32 {v(zb+4*u+1)}, 16, {v(pb+u)}")
        A(f"v_and_b32 {v(zb+4*u+3)}, 0xffff0000, {v(pb+u)}")

def store_rows(pa, pa4, pb, pb4, off, sb=sTB):
    A(f"buffer_store_dwordx4 {v(pa,4)}, {v(vTA)}, {WS}, s{sb} offen offset:{off} sc1")
    A(f"buffer_store_dword {v(pa4)}, {v(vTB)}, {WS}, s{sb} offen offset:{off} sc1")
    A(f"buffer_store_dwordx4 {v(pb,4)}, {v(vTA)}, {WS}, s{sb+1} offen offset:{off} sc1")
    A(f"buffer_store_dword {v(pb4)}, {v(vTB)}, {WS}, s{sb+1} offen offset:{off} sc1")

def to_f16(zb, t, sub=None):
    for i in range(10):
        if EXACT:
            rnd_pair(zb + 2 * i, zb + 2 * i + 1, t + (i % 4))
        A(f"v_cvt_pk_f16_f32 {v(AF1+i)}, {v(zb+2*i)}, {v(zb+2*i+1)}")
        if sub is not None:
            A(f"v_pk_add_f16 {v(AF1+i)}, {v(AF1+i)}, {v(sub(i))} neg_lo:[0,1] neg_hi:[0,1]")

def row_dft(t, shadow1=None, shadow2=None):
    for kk in range(3):
        c = "0" if kk == 0 else None
        A(f"v_mfma_f32_32x32x16_f16 {v(ACR,16)}, {v(AF1+4*kk,4)}, {v(B1R+4*kk,4)}, {c or v(ACR,16)}")
        A(f"v_mfma_f32_32x32x16_f16 {v(ACI,16)}, {v(AF1+4*kk,4)}, {v(B1I+4*kk,4)}, {c or v(ACI,16)}")
    if shadow1:
        shadow1()
    for kk in range(4):
        for i in (4 * kk, 4 * kk + 2):
            pr, pi = t + (i % 4) * 2, t + (i % 4) * 2 + 2
            A(f"v_pk_mul_f32 {v(pr,2)}, {v(ACR+i,2)}, {v(TWC+i,2)}")
            A(f"v_pk_mul_f32 {v(pi,2)}, {v(ACI+i,2)}, {v(TWC+i,2)}")
            A(f"v_pk_fma_f32 {v(pr,2)}, {v(ACI+i,2)}, {v(TWS+i,2)}, {v(pr,2)}")
            A(f"v_pk_fma_f32 {v(pi,2)}, {v(ACR+i,2)}, {v(TWS+i,2)}, {v(pi,2)} neg_lo:[1,0,0] neg_hi:[1,0,0]")
            A(f"v_cvt_pk_f16_f32 {v(AF2+i)}, {v(pr)}, {v(pi)}")
            A(f"v_cvt_pk_f16_f32 {v(AF2+i+1)}, {v(pr+1)}, {v(pi+1)}")
        c = "0" if kk == 0 else None
        A(f"v_mfma_f32_32x32x16_f16 {v(AC2R,16)}, {v(AF2+4*kk,4)}, {v(B2R+4*kk,4)}, {c or v(AC2R,16)}")
        A(f"v_mfma_f32_32x32x16_f16 {v(AC2I,16)}, {v(AF2+4*kk,4)}, {v(B2I+4*kk,4)}, {c or v(AC2I,16)}")
    if shadow2:
        shadow2()

def W_stores(layer, r0, r1, r2, lds=True):
    L = A.newlabel("Lw2")
    A(f"s_add_u32 s60, s{sWB}, {W_OFF + layer * W_SZ}")
    A(f"s_add_u32 s62, s60, {8192 + 112}")
    if lds:
        A("s_waitcnt lgkmcnt(2)")
    A(f"buffer_store_dwordx4 {v(r0,4)}, {v(vWG)}, {WS}, s60 offen sc1")
    if lds:
        A("s_waitcnt lgkmcnt(0)")
    A(f"buffer_store_dwordx4 {v(r1,4)}, {v(vWG1)}, {WS}, s60 offen sc1")
    A(f"s_cmp_ge_u32 s{WV}, 2")
    A(f"s_cbranch_scc1 {L}")
    if lds:
        A(f"ds_read2st64_b32 {v(r2,2)}, {v(vLWR0+2)} offset0:0 offset1:11")
        A(f"ds_read2st64_b32 {v(r2+2,2)}, {v(vLWR0+2)} offset0:22 offset1:33")
        A("s_waitcnt lgkmcnt(0)")
    A(f"buffer_store_dwordx4 {v(r2,4)}, {v(vWG)}, {WS}, s62 offen sc1")
    A.label(L)

def write_W(layer):
    k = 2 * layer
    for i in range(10):
        A(f"v_cvt_pk_f16_f32 {v(ACR+i)}, {v(AC2R+i)}, {v(AC2I+i)}")
        A(f"ds_write_b32 {v(vLWW)}, {v(ACR+i)} offset:{4*i}")
    A("s_waitcnt lgkmcnt(0)")
    A("s_barrier")
    for j in range(2):
        A(f"ds_read2st64_b32 {v(ACI+4*j,2)}, {v(vLWR0+j)} offset0:0 offset1:11")
        A(f"ds_read2st64_b32 {v(ACI+4*j+2,2)}, {v(vLWR0+j)} offset0:22 offset1:33")
    if EARLY_R == 0:
        arrive_issue(k, sME, AF2)
    W_stores(layer, ACI, ACI + 4, ACI + 8)
    if EARLY_R == 0:
        arrive_finish(k, sME, 15, AF2, 3)
    if (layer == 1 and DRAIN2) or (layer == 0 and DRAIN0):
        A("s_waitcnt vmcnt(0)")
        A("s_barrier")
        arrive_issue(k, sME, AF2)
        arrive_finish(k, sME, 15, AF2, 0)

def stage_Y(layer, first=None, shadow=None, landed=None):
    c0, c1, c2, t = ACR, ACR + 4, ACR + 8, ACR + 16
    loop, L2, L4, L5, done = [A.newlabel("Ly") for _ in range(5)]
    A(f"s_mov_b32 s60, {Y_OFF + layer * Y_SZ}")
    A(f"s_mov_b32 s62, {SPIN}")
    for k in range(4):
        A(f"v_mov_b32 {v(c2+k)}, 0")
    if first:
        first()
    A("s_mov_b64 vcc, -1")
    A.label(loop)
    A("s_mov_b64 exec, vcc")
    A(f"buffer_load_dwordx4 {v(c0,4)}, {v(vY0)}, {WS}, s60 offen sc1")
    A(f"buffer_load_dwordx4 {v(c1,4)}, {v(vY1)}, {WS}, s60 offen sc1")
    A(f"s_cmp_ge_u32 s{WV}, 2")
    A(f"s_cbranch_scc1 {L2}")
    A(f"buffer_load_dwordx4 {v(c2,4)}, {v(vY2)}, {WS}, s60 offen sc1")
    A.label(L2)
    A("s_mov_b64 exec, -1")
    if shadow:
        Lsh = A.newlabel("Ly")
        A(f"s_cmp_lg_u32 s62, {SPIN}")
        A(f"s_cbranch_scc1 {Lsh}")
        shadow()
        A.label(Lsh)
    A("s_waitcnt vmcnt(0)")
    if layer == 0 or not DRAIN2:
        any_sentinel(range(c0, c0 + 12), t, done)
        spin_tail(loop, 62, opt("ysleep", 0))
    A.label(done)
    if landed:
        landed()
    A(f"ds_write2st64_b32 {v(vLYW)}, {v(c0)}, {v(c0+1)} offset0:0 offset1:10")
    A(f"ds_write2st64_b32 {v(vLYW)}, {v(c0+2)}, {v(c0+3)} offset0:20 offset1:30")
    A(f"s_cmp_eq_u32 s{WV}, 0")
    A(f"s_cbranch_scc1 {L4}")
    for k in range(4):
        A(f"v_alignbit_b32 {v(t+k)}, {v(c1+3-k)}, {v(c1+3-k)}, 16")
    for k in range(4):
        A(f"v_mov_b32 {v(c1+k)}, {v(t+k)}")
    A.label(L4)
    A(f"ds_write2st64_b32 {v(vLYW)}, {v(c1)}, {v(c1+1)} offset0:4 offset1:14")
    A(f"ds_write2st64_b32 {v(vLYW)}, {v(c1+2)}, {v(c1+3)} offset0:24 offset1:34")
    A(f"s_cmp_ge_u32 s{WV}, 2")
    A(f"s_cbranch_scc1 {L5}")
    for k in range(4):
        A(f"v_alignbit_b32 {v(t+k)}, {v(c2+3-k)}, {v(c2+3-k)}, 16")
    A(f"ds_write2st64_b32 {v(vLYW)}, {v(t)}, {v(t+1)} offset0:8 offset1:18")
    A(f"ds_write2st64_b32 {v(vLYW)}, {v(t+2)}, {v(t+3)} offset0:28 offset1:38")
    A.label(L5)
    A("s_waitcnt lgkmcnt(0)")
    A("s_barrier")

def router_publish(layer, t, pa, pb):
    R_ = t
    for i in range(10):
        os_ = i & 1
        wv = v(WR + (i & ~1), 2)
        if i == 0:
            A(f"v_pk_mul_f32 {v(R_,2)}, {v(XN,2)}, {wv} op_sel:[0,{os_}] op_sel_hi:[1,{os_}]")
        else:
            A(f"v_pk_fma_f32 {v(R_,2)}, {v(XN+2*i,2)}, {wv}, {v(R_,2)} op_sel:[0,{os_},0] op_sel_hi:[1,{os_},1]")
    fill = []
    if not EXACT1:
        for u in range(5):
            fill.append(f"v_cvt_pk_bf16_f32 {v(pa+u)}, {v(XN+4*u)}, {v(XN+4*u+2)}")
            fill.append(f"v_cvt_pk_bf16_f32 {v(pb+u)}, {v(XN+4*u+1)}, {v(XN+4*u+3)}")
    def pad(n=2):
        for _ in range(n):
            if fill:
                A(fill.pop(0))
    pad()
    A(f"v_permlane32_swap_b32 {v(R_)}, {v(R_+1)}")
    A(f"v_add_f32 {v(R_)}, {v(R_)}, {v(R_+1)}")
    A(f"v_mov_b32 {v(R_+1)}, {v(R_)}")
    pad()
    A(f"v_permlane16_swap_b32 {v(R_)}, {v(R_+1)}")
    A(f"v_add_f32 {v(R_)}, {v(R_)}, {v(R_+1)}")
    for k in (8, 4, 2, 1):
        pad()
        A(f"v_add_f32_dpp {v(R_)}, {v(R_)}, {v(R_)} row_ror:{k} row_mask:0xf bank_mask:0xf")
    pad(10)
    A(f"v_cmp_le_f32 vcc, s{sTAU}, {v(R_)}")
    A(f"v_readlane_b32 s71, {v(R_)}, 32")
    A("s_mov_b64 s[56:57], vcc")
    for row, (p_, half) in enumerate(((pa, "vcc_lo"), (pb, "vcc_hi"))):
        Lr = A.newlabel("Lcand")
        A(f"s_cmp_eq_u32 {half}, 0")
        A(f"s_cbranch_scc1 {Lr}")
        A(f"buffer_store_dwordx4 {v(p_,4)}, {v(vTA)}, {WS}, s{sTB+row} offen sc1")
        A(f"buffer_store_dword {v(p_+4)}, {v(vTB)}, {WS}, s{sTB+row} offen sc1")
        A.label(Lr)
    A(f"s_lshl_b32 s70, s{WV}, 2")
    A(f"s_add_u32 s70, s70, {LDS_RG}")
    A(f"v_mov_b32 {v(R_+2)}, s70")
    A(f"v_cvt_pk_bf16_f32 {v(R_)}, {v(R_)}, s71")
    A(f"v_lshrrev_b32 {v(R_+1)}, 15, {v(R_)}")
    A(f"v_and_b32 {v(R_+1)}, 0x10001, {v(R_+1)}")
    A(f"v_mul_u32_u24 {v(R_+1)}, 0x7fff, {v(R_+1)}")
    A(f"v_or_b32 {v(R_+1)}, 0x80008000, {v(R_+1)}")
    A(f"v_xor_b32 {v(R_)}, {v(R_)}, {v(R_+1)}")
    A(f"v_min_u32 {v(R_)}, -2, {v(R_)}")
    A("s_mov_b64 exec, 1")
    A(f"ds_write_b32 {v(R_+2)}, {v(R_)}")
    A("s_mov_b64 exec, -1")
    A("s_waitcnt vmcnt(0) lgkmcnt(0)")
    A("s_barrier")
    L = A.newlabel("Lrp")
    A(f"s_cmp_lg_u32 s{WV}, 0")
    A(f"s_cbranch_scc1 {L}")
    A(f"ds_read_b128 {v(R_+4,4)}, {v(R_+2)}")
    A(f"v_lshlrev_b32 {v(R_+2)}, {RSH + 8}, v1")
    A(f"s_lshl_b32 s73, s{sRHO}, {RSH}")
    A(f"s_add_u32 s73, s73, {RG_OFF + layer * NRR * RG_REP}")
    set_exec((1 << NRR) - 1)
    A("s_waitcnt lgkmcnt(0)")
    A(f"buffer_store_dwordx4 {v(R_+4,4)}, {v(R_+2)}, {WS}, s73 offen sc1")
    A("s_mov_b64 exec, -1")
    A.label(L)

def roleR():
    A.label("L_roleR")
    prio(2)
    srd(8, 42, 2621440)
    A("s_and_b32 s60, s2, 7")
    A("s_lshr_b32 s61, s2, 3")
    A(f"s_lshr_b32 s{sA}, s61, 3")
    A("s_and_b32 s61, s61, 7")
    A("s_lshl_b32 s60, s60, 3")
    A("s_sub_u32 s62, 56, s60")
    A(f"s_cmp_lt_u32 s{sA}, 2")
    A("s_cselect_b32 s60, s60, s62")
    A(f"s_add_u32 s{sS2}, s60, s61")
    A(f"s_lshl_b32 s60, s{sA}, 9")
    A(f"s_lshl_b32 s61, s{WV}, 7")
    A(f"s_add_u32 s{sRA}, s60, s61")
    A(f"s_add_u32 s{sRA}, s{sRA}, s{sS2}")
    A(f"s_mul_i32 s{sXO}, s{sRA}, 1280")
    A(f"s_add_u32 s63, s{sXO}, {64 * 1280}")
    T = ACR
    n, h = T, T + 1
    A(f"v_and_b32 {v(n)}, 31, v1")
    A(f"v_lshrrev_b32 {v(h)}, 5, v1")
    A(f"v_mul_u32_u24 {v(vX)}, 640, {v(h)}")
    A(f"v_lshl_add_u32 {v(vX)}, {v(n)}, 1, {v(vX)}")
    XW = opt("xwide", 0)
    XR = AC2R + 8
    if XW:
        A(f"v_lshlrev_b32 {v(XR+12)}, 4, v1")
        A(f"v_add_u32 {v(XR+13)}, {1024 + 63 * 1280}, {v(XR+12)}")
        A(f"v_add_u32 {v(XR+14)}, 1024, {v(XR+12)}")
        A(f"v_cmp_gt_u32 vcc, 16, v1")
        A(f"buffer_load_dwordx4 {v(XR,4)}, {v(XR+12)}, {SRD1}, s{sXO} offen")
        A(f"v_cndmask_b32 {v(XR+14)}, {v(XR+13)}, {v(XR+14)}, vcc")
        A(f"buffer_load_dwordx4 {v(XR+4,4)}, {v(XR+14)}, {SRD1}, s{sXO} offen")
        set_exec(0xffffffff)
        A(f"buffer_load_dwordx4 {v(XR+8,4)}, {v(XR+13)}, {SRD1}, s{sXO} offen offset:1024")
        A("s_mov_b64 exec, -1")
        for i in range(20):
            A(f"v_mov_b32 {v(X+i)}, 0")
    else:
        for i in range(10):
            A(f"v_mov_b32 {v(X+2*i)}, 0")
            A(f"v_mov_b32 {v(X+2*i+1)}, 0")
            A(f"buffer_load_short_d16_hi {v(X+2*i)}, {v(vX)}, {SRD1}, s{sXO} offen offset:{64*i}")
            A(f"buffer_load_short_d16_hi {v(X+2*i+1)}, {v(vX)}, {SRD1}, s63 offen offset:{64*i}")
    NV = XN
    nonce_load(NV)
    ONES = XN + 4
    A(f"s_lshl_b32 s{sRHO}, s{sA}, 6")
    A(f"s_add_u32 s{sRHO}, s{sRHO}, s{sS2}")
    A(f"s_mul_i32 s{sWB}, s{sRHO}, {WROW}")
    for k in range(4):
        A(f"v_mov_b32 {v(ONES+k)}, -1")
    A(f"v_lshlrev_b32 {v(vWG)}, 4, v0")
    A(f"v_add_u32 {v(vWG1)}, {4096 + 112}, {v(vWG)}")
    A(f"v_add_u32 {v(T+2)}, 4096, {v(vWG)}")
    A(f"v_cmp_gt_u32 vcc, 65, v0")
    A(f"v_cndmask_b32 {v(vWG1)}, {v(vWG1)}, {v(T+2)}, vcc")
    A(f"v_lshlrev_b32 {v(T+4)}, 3, v0")
    A(f"s_lshl_b32 s61, s{sRHO}, 11")
    A(f"s_add_u32 s61, s61, {RESET_OFF}")
    A(f"buffer_store_dwordx2 {v(ONES,2)}, {v(T+4)}, {WS}, s61 offen sc1")
    LATEF = opt("latefill", 0)
    if not DRAIN0 and not LATEF:
        W_stores(0, ONES, ONES, ONES, lds=False)
    PREFR = opt("prefr", 0)
    if PREFR == 1:
        warm_weights(AC2R, 0, 32, PPART)
    e1, e1s, base, arg, c_, s_ = T + 6, T + 7, T + 8, T + 9, T + 10, T + 11
    hf_, wf, lc = T + 12, T + 13, T + 14
    G0 = T + 16
    A(f"v_bfe_u32 {v(e1)}, {v(n)}, 2, 1")
    A(f"v_mul_u32_u24 {v(e1)}, 10, {v(e1)}")
    A(f"v_and_b32 {v(arg)}, 3, {v(n)}")
    A(f"v_add_u32 {v(e1)}, {v(e1)}, {v(arg)}")
    A(f"v_lshrrev_b32 {v(arg)}, 3, {v(n)}")
    A(f"v_lshl_add_u32 {v(e1)}, {v(arg)}, 2, {v(e1)}")
    A(f"v_cvt_f32_u32 {v(e1)}, {v(e1)}")
    A(f"v_cvt_f32_u32 {v(hf_)}, {v(h)}")
    A(f"v_cvt_f32_u32 {v(wf)}, s{WV}")
    A(f"s_lshl_b32 s60, s{WV}, 10")
    A(f"s_add_u32 s60, s60, {LDS_CONST}")
    A(f"v_lshl_add_u32 {v(lc)}, v1, 4, s60")
    A(f"v_mul_f32 {v(e1s)}, {f32(1/20)}, {v(e1)}")
    A(f"v_mul_f32 {v(base)}, {f32(10.0)}, {v(hf_)}")
    A(f"v_fma_f32 {v(base)}, 4.0, {v(wf)}, {v(base)}")
    A(f"v_mul_f32 {v(base)}, {v(e1s)}, {v(base)}")
    A(f"s_cmp_lt_u32 s{WV}, 2")
    A(f"s_cselect_b64 s[64:65], -1, 0")
    for r in range(4):
        A(f"v_fmamk_f32 {v(arg)}, {v(e1s)}, {f32(r)}, {v(base)}")
        sincos(arg, c_, s_)
        A(f"v_cvt_pk_f16_f32 {v(G0+r)}, {v(c_)}, {v(s_)}")
        A(f"v_cvt_pk_f16_f32 {v(G0+4+r)}, -{v(s_)}, {v(c_)}")
        if r >= 2:
            A(f"v_cndmask_b32 {v(G0+r)}, 0, {v(G0+r)}, s[64:65]")
            A(f"v_cndmask_b32 {v(G0+4+r)}, 0, {v(G0+4+r)}, s[64:65]")
    A(f"ds_write_b128 {v(lc)}, {v(G0,4)}")
    A(f"ds_write_b128 {v(lc)}, {v(G0+4,4)} offset:4096")
    A(f"v_mul_f32 {v(wf)}, {f32(8.0)}, {v(wf)}")
    A(f"v_fma_f32 {v(wf)}, 4.0, {v(hf_)}, {v(wf)}")
    A(f"v_mul_f32 {v(e1s)}, {f32(1/640)}, {v(e1)}")
    A(f"v_mul_f32 {v(base)}, {v(e1s)}, {v(wf)}")
    for r in range(4):
        A(f"v_fmamk_f32 {v(arg)}, {v(e1s)}, {f32(r)}, {v(base)}")
        sincos(arg, G0 + 8 + r, G0 + 12 + r)
    A(f"ds_write_b128 {v(lc)}, {v(G0+8,4)} offset:8192")
    A(f"ds_write_b128 {v(lc)}, {v(G0+12,4)} offset:12288")
    A(f"v_cvt_f32_u32 {v(e1s)}, {v(n)}")
    A(f"v_mul_f32 {v(e1s)}, {f32(1/32)}, {v(e1s)}")
    A(f"v_mul_f32 {v(base)}, {v(e1s)}, {v(wf)}")
    for r in range(4):
        A(f"v_fmamk_f32 {v(arg)}, {v(e1s)}, {f32(r)}, {v(base)}")
        sincos(arg, c_, s_)
        A(f"v_cvt_pk_f16_f32 {v(G0+16+r)}, {v(c_)}, {v(s_)}")
        A(f"v_cvt_pk_f16_f32 {v(G0+20+r)}, -{v(s_)}, {v(c_)}")
    A(f"ds_write_b128 {v(lc)}, {v(G0+16,4)} offset:16384")
    A(f"ds_write_b128 {v(lc)}, {v(G0+20,4)} offset:20480")
    A(f"v_mov_b32 {v(AF1+10)}, 0")
    A(f"v_mov_b32 {v(AF1+11)}, 0")
    A(f"v_lshlrev_b32 {v(vLC)}, 4, v1")
    A(f"v_add_u32 {v(vLC)}, {LDS_CONST}, {v(vLC)}")
    A(f"v_mov_b32 {v(INV)}, {f32(1/640)}")
    A(f"s_mov_b32 s{s32f}, {f32(32.0)}")
    A(f"s_and_b32 s{sME}, s2, 15")
    A(f"v_mul_u32_u24 {v(vLWW)}, 21, {v(n)}")
    A(f"v_mad_u32_u24 {v(vLWW)}, {v(h)}, 10, {v(vLWW)}")
    A(f"s_mul_i32 s60, s{WV}, 704")
    A(f"s_add_u32 s60, s60, {LDS_W // 4}")
    A(f"v_add_lshl_u32 {v(vLWW)}, {v(vLWW)}, s60, 2")
    A("s_waitcnt lgkmcnt(0)")
    A("s_barrier")
    for (dst, ng, off) in ((B1R, 3, 0), (B1I, 3, 4096), (TWC, 4, 8192), (TWS, 4, 12288)):
        for gq in range(ng):
            A(f"ds_read_b128 {v(dst+4*gq,4)}, {v(vLC)} offset:{off + 1024*gq}")
    for j in range(3):
        A(f"v_add_u32 {v(arg)}, {256*j}, v0")
        A(f"v_mul_u32_u24 {v(c_)}, 3277, {v(arg)}")
        A(f"v_lshrrev_b32 {v(c_)}, 16, {v(c_)}")
        A(f"v_add_u32 {v(arg)}, {v(arg)}, {v(c_)}")
        A(f"v_lshlrev_b32 {v(arg)}, 2, {v(arg)}")
        A(f"v_add_u32 {v(vLWR0+j)}, {LDS_W}, {v(arg)}")
    A(f"v_lshlrev_b32 {v(vTA)}, 4, v1")
    A(f"v_lshlrev_b32 {v(vTB)}, 2, v1")
    A(f"v_add_u32 {v(vTB)}, 1024, {v(vTB)}")
    A(f"s_mul_i32 s{sTB}, s{sRA}, {T_REC}")
    A(f"s_add_u32 s{sTB}, s{sTB}, {T_OFF}")
    A(f"s_add_u32 s{sTB+1}, s{sTB}, {64 * T_REC}")
    stamp(0, dbg=(1, 0) if not opt("t0", 0) else None)
    ARV = 204
    A(f"s_waitcnt vmcnt({(1 if (DRAIN0 or LATEF) else 3) + (nloads(PPART) if PREFR == 1 else 0)})")
    nonce_take(NV)
    if LATEF:
        W_stores(0, ONES, ONES, ONES, lds=False)
    if XW:
        A(f"s_mul_i32 s60, s{WV}, 2560")
        A(f"v_add_u32 {v(XR+12)}, s60, {v(XR+12)}")
        A(f"v_add_u32 {v(XR+13)}, s60, {v(vX)}")
        A(f"ds_write_b128 {v(XR+12)}, {v(XR,4)}")
        A(f"ds_write_b128 {v(XR+12)}, {v(XR+4,4)} offset:1024")
        set_exec(0xffffffff)
        A(f"ds_write_b128 {v(XR+12)}, {v(XR+8,4)} offset:2048")
        A("s_mov_b64 exec, -1")
        A("s_waitcnt lgkmcnt(3)")
        for i in range(10):
            A(f"ds_read_u16_d16_hi {v(X+2*i)}, {v(XR+13)} offset:{64*i}")
            A(f"ds_read_u16_d16_hi {v(X+2*i+1)}, {v(XR+13)} offset:{1280+64*i}")
            if i == 5:
                A("s_waitcnt lgkmcnt(6)")
        A("s_waitcnt lgkmcnt(0)")
    stamp(10, dbg=(2, 0))
    if EARLY_R == 2:
        arrive_issue(0, sME, ARV)
    ln_stats(X, ACR)
    for (dst, ng, off) in ((B2R, 4, 16384), (B2I, 4, 20480)):
        for gq in range(ng):
            A(f"ds_read_b128 {v(dst+4*gq,4)}, {v(vLC)} offset:{off + 1024*gq}")
    ln_center_scale(X, XN, ACR, EXACT)
    to_f16(XN, ACR)
    if DRAIN0:
        A("s_waitcnt lgkmcnt(0)")
    else:
        A("s_waitcnt vmcnt(0) lgkmcnt(0)")
        A("s_barrier")
        arrive_issue(0, sME, XN + 8, AWR)
    def fill_xn1():
        for k in range(4):
            A(f"v_mov_b32 {v(XN+16+k)}, -1")
        store_rows(XN + 16, XN + 16, XN + 16, XN + 16, 0)
    row_dft(XN, None, (lambda: arrive_finish(0, sME, 15, XN + 8, 0, AWR)) if not DRAIN0 else None)
    stamp(11)
    write_W(0)
    stamp(1, dbg=(3, 0))
    if PREFR == 2:
        warm_weights(AC2R, 0, 32, PPART)
    srd(12, 52, 2621440)
    srd(16, 44, 1280)
    for i in range(10):
        A(f"v_mov_b32 {v(WR+i)}, 0")
        A(f"buffer_load_short_d16_hi {v(WR+i)}, {v(vX)}, {SRD3}, 0 offen offset:{64*i}")
    A(f"v_and_b32 {v(n)}, 31, v1")
    A(f"v_lshrrev_b32 {v(h)}, 5, v1")
    A(f"v_lshlrev_b32 {v(vLYW)}, 2, v0")
    A(f"v_mul_u32_u24 {v(vLYR)}, 320, {v(h)}")
    A(f"s_mul_i32 s60, s{WV}, 640")
    A(f"v_add3_u32 {v(vLYR)}, {v(vLYR)}, {v(n)}, s60")
    A(f"v_lshlrev_b32 {v(vLYR)}, 2, {v(vLYR)}")
    A(f"s_sub_u32 s60, 3, s{sA}")
    A(f"s_lshl_b32 s60, s60, 6")
    A(f"s_sub_u32 s61, 64, s{sS2}")
    A(f"s_add_u32 s60, s60, s61")
    A(f"s_lshl_b32 s60, s60, 4")
    A(f"s_lshl_b32 s61, s{sA}, 4")
    A(f"s_add_u32 s61, s61, {YM_OFF}")
    A(f"s_cmp_eq_u32 s{sS2}, 0")
    A(f"s_cselect_b32 s60, s61, s60")
    A(f"s_cselect_b32 s61, 6, 12")
    A(f"s_lshl_b32 s62, s{sRHO}, 4")
    A(f"v_lshlrev_b32 {v(vY0)}, 12, v0")
    A(f"v_add_u32 {v(vY0)}, s62, {v(vY0)}")
    A(f"v_sub_u32 {v(arg)}, 384, v0")
    A(f"v_lshlrev_b32 {v(arg)}, s61, {v(arg)}")
    A(f"v_add_u32 {v(vY1)}, s60, {v(arg)}")
    A(f"v_add_u32 {v(c_)}, {256 << 12}, {v(vY0)}")
    A(f"v_cmp_gt_u32 vcc, 64, v0")
    A(f"v_cndmask_b32 {v(vY1)}, {v(vY1)}, {v(c_)}, vcc")
    A(f"v_sub_u32 {v(arg)}, 128, v0")
    A(f"v_and_b32 {v(arg)}, 0xff, {v(arg)}")
    A(f"v_lshlrev_b32 {v(arg)}, s61, {v(arg)}")
    A(f"v_add_u32 {v(vY2)}, s60, {v(arg)}")
    A(f"s_mul_i32 s60, s{WV}, 5120")
    A(f"s_add_u32 s60, s60, {LDS_KX}")
    A(f"v_lshl_add_u32 {v(vKX)}, v1, 4, s60")
    A(f"s_and_b32 s{sREP}, s2, {NREP - 1}")
    A(f"s_lshl_b32 s{sREP}, s{sREP}, {FSH + 4}")
    A("s_waitcnt vmcnt(0)")
    tau_of(WR, ACR, 1.0)
    A(f"v_readfirstlane_b32 s{sTAU}, {v(ACR)}")
    if opt("touch", 0) > 1:
        touch(ACR, Y_OFF, 2 * Y_SZ)
    poll_flags(1, sREP, ACR)
    stamp(2, dbg=(7, 0))
    stage_Y(0)
    stamp(13)
    if not DRAIN2:
        for k in range(4):
            A(f"v_mov_b32 {v(AF2+k)}, -1")
        W_stores(1, AF2, AF2, AF2, lds=False)
    for i in range(10):
        A(f"ds_read_b32 {v(ACI+i)}, {v(vLYR)} offset:{128*i}")
    for i in range(10):
        A(f"s_waitcnt lgkmcnt({9-i})")
        A(f"v_fma_mix_f32 {v(X+2*i)}, {v(ACI+i)}, s{s32f}, {v(X+2*i)} op_sel:[0,0,0] op_sel_hi:[1,0,0]")
        A(f"v_fma_mix_f32 {v(X+2*i+1)}, {v(ACI+i)}, s{s32f}, {v(X+2*i+1)} op_sel:[1,0,0] op_sel_hi:[1,0,0]")
    PA, PB = AC2R, AC2R + 8
    pack_rows(X, PA, PB)
    unpack_rows(X, PA, PB)
    A(f"ds_write_b128 {v(vKX)}, {v(PA,4)} offset:2048")
    A(f"ds_write_b128 {v(vKX)}, {v(PB,4)} offset:3072")
    A(f"v_mov_b32 {v(PA+6)}, {v(PA+4)}")
    A(f"v_mov_b32 {v(PA+7)}, {v(PB+4)}")
    ln_stats(X, ACR)
    ln_center_scale(X, XN, ACR, EXACT1)
    if EXACT1:
        pack_rows(XN, PA + 16, PB + 16)
        unpack_rows(XN, PA + 16, PB + 16)
    stamp(14)
    router_publish(0, ACI, PA + 16, PB + 16)
    if not EXACT1:
        unpack_rows(XN, PA + 16, PB + 16)
    stamp(3, dbg=(8, 0))
    E2 = opt("e2", 1)
    if E2 == 1:
        arrive_issue(2, sME, AF2 + 8, AWR)
    A(f"v_mov_b32 {v(PA+4)}, {v(PA+20)}")
    A(f"v_mov_b32 {v(PA+5)}, {v(PB+20)}")
    A(f"ds_write_b128 {v(vKX)}, {v(PA+16,4)}")
    A(f"ds_write_b128 {v(vKX)}, {v(PB+16,4)} offset:1024")
    A(f"ds_write_b128 {v(vKX)}, {v(PA+4,4)} offset:4096")
    if EARLY_R == 2:
        arrive_issue(2, sME, ARV)
    for i in range(10):
        A(f"v_pk_add_f32 {v(X+2*i,2)}, {v(X+2*i,2)}, {v(XN+2*i,2)}")
        rnd_pair(X + 2 * i, X + 2 * i + 1, ACR + (i % 4))
    ln_stats(X, ACR)
    ln_center_scale(X, XN, ACR + 8, EXACT)
    to_f16(XN, ACR + 8)
    if EARLY_R == 2:
        arrive_finish(2, sME, 15, ARV, 0)
    if E2 == 0:
        arrive_issue(2, sME, XN + 14, AWR)
        row_dft(XN, None, lambda: arrive_finish(2, sME, 15, XN + 14, 0, AWR))
    elif E2 == 1:
        row_dft(XN, lambda: arrive_finish(2, sME, 15, AF2 + 8, 0, AWR))
    else:
        row_dft(XN, None, lambda: arrive_finish(2, sME, 15, 250 - 4, 0, AWR))
    stamp(16)
    if not opt("wlate", 0):
        write_W(1)
    stamp(4)
    A(f"s_mov_b32 s74, {X2_OFF}")
    def release(layer, row, stash, with_xn):
        R0 = ACR
        if stash:
            A(f"ds_read_b128 {v(R0,4)}, {v(vKX)} offset:{2048+1024*row}")
            A(f"ds_read_b128 {v(R0+8,4)}, {v(vKX)} offset:4096")
            if with_xn:
                A(f"ds_read_b128 {v(R0+12,4)}, {v(vKX)} offset:{1024*row}")
            x4, x1, n4, n1 = R0, R0 + 10 + row, R0 + 12, R0 + 8 + row
        else:
            P_ = PA if row == 0 else PB
            x4, x1, n4, n1 = P_, P_ + 4, P_ + 16, P_ + 20
        A(f"s_add_u32 s61, s{NONCE}, {6 + layer}")
        A(f"v_mov_b32 {v(R0+4)}, {v(MM+row)}")
        A(f"v_mov_b32 {v(R0+5)}, {v(RS+row)}")
        A(f"v_mov_b32 {v(R0+6)}, s61")
        A(f"v_mov_b32 {v(R0+7)}, s61")
        A("s_waitcnt lgkmcnt(0)")
        if with_xn:
            A(f"buffer_store_dwordx4 {v(n4,4)}, {v(vTA)}, {WS}, s{sTB+row} offen sc1")
            A(f"buffer_store_dword {v(n1)}, {v(vTB)}, {WS}, s{sTB+row} offen sc1")
        A(f"buffer_store_dwordx4 {v(x4,4)}, {v(vTA)}, {WS}, s{sTB+row} offen offset:1280 sc1")
        A(f"buffer_store_dword {v(x1)}, {v(vTB)}, {WS}, s{sTB+row} offen offset:1280 sc1")
        A("s_waitcnt vmcnt(0)")
        A("s_mov_b64 exec, 1")
        A(f"buffer_store_dwordx4 {v(R0+4,4)}, {v(vTA)}, {WS}, s{sTB+row} offen offset:2560 sc1")
        A("s_mov_b64 exec, -1")
    def release_candidates(layer, stash):
        for row in range(2):
            Ln = A.newlabel("Lrel")
            A(f"s_cmp_eq_u32 s{56+row}, 0")
            A(f"s_cbranch_scc1 {Ln}")
            release(layer, row, stash, False)
            A.label(Ln)
    def wait_sel(layer, stash):
        loop, done = A.newlabel("Lsel"), A.newlabel("Lseld")
        T2 = ACR + 16
        A(f"s_mov_b32 s60, {X2_OFF + SEL_OFF + 256 * layer}")
        A(f"v_and_b32 {v(T2)}, 7, v1")
        A(f"v_lshlrev_b32 {v(T2)}, 2, {v(T2)}")
        A(f"s_mov_b32 s62, {SPIN}")
        A.label(loop)
        A(f"buffer_load_dword {v(T2+1)}, {v(T2)}, {WS}, s60 offen sc1")
        A("s_waitcnt vmcnt(0)")
        A(f"v_cmp_eq_u32 vcc, -1, {v(T2+1)}")
        A(f"s_cbranch_vccz {done}")
        spin_tail(loop, 62, opt('selsleep', 4))
        A.label(done)
        for j in range(8):
            A(f"v_readlane_b32 s{sSEL+j}, {v(T2+1)}, {j}")
        for row in range(2):
            A(f"s_add_u32 s60, s{sRA}, {64 * row}")
            A(f"s_mov_b32 s{76+row}, -1")
            for j in range(8):
                A(f"s_cmp_eq_u32 s60, s{sSEL+j}")
                A(f"s_cselect_b32 s{76+row}, {j}, s{76+row}")
            Ln = A.newlabel("Lpush")
            A(f"s_cmp_lt_i32 s{76+row}, 0")
            A(f"s_cbranch_scc1 {Ln}")
            A(f"s_cmp_lg_u32 s{56+row}, 0")
            A(f"s_cbranch_scc1 {Ln}")
            release(layer, row, stash, True)
            A.label(Ln)
    release_candidates(0, True)
    vE0, vDF, vDM, vP2, vNW = vLWW, vLWR0, vLWR0 + 1, vLWR0 + 2, vWG
    n, h = ACR + 8, ACR + 9
    A(f"v_and_b32 {v(n)}, 31, v1")
    A(f"v_lshrrev_b32 {v(h)}, 5, v1")
    A(f"v_mul_u32_u24 {v(vE0)}, 20, {v(n)}")
    A(f"v_mad_u32_u24 {v(vE0)}, {v(h)}, 10, {v(vE0)}")
    vER = vLC
    A(f"v_and_b32 {v(vER)}, 31, {v(vE0)}")
    A(f"v_lshrrev_b32 {v(vDF)}, 5, {v(vE0)}")
    A(f"s_lshl_b32 s60, s{WV}, 2")
    A(f"s_add_u32 s60, s60, {LDS_W}")
    A(f"v_add_u32 {v(vE0)}, {v(vE0)}, {v(vDF)}")
    A(f"v_lshl_add_u32 {v(vE0)}, {v(vE0)}, 4, s60")
    A(f"v_mul_u32_u24 {v(vDF)}, 330, {v(h)}")
    A(f"v_add_u32 {v(vDF)}, {v(vDF)}, {v(n)}")
    A(f"v_sub_u32 {v(vDM)}, 362, {v(vDF)}")
    A(f"v_lshlrev_b32 {v(vDF)}, 4, {v(vDF)}")
    A(f"v_add_u32 {v(vDF)}, {LDS_W}, {v(vDF)}")
    A(f"v_cmp_eq_u32 vcc, 0, {v(n)}")
    A(f"v_addc_co_u32 {v(vDM)}, vcc, 0, {v(vDM)}, vcc")
    A(f"v_lshlrev_b32 {v(vDM)}, 4, {v(vDM)}")
    A(f"v_add_u32 {v(vDM)}, {LDS_W}, {v(vDM)}")
    A(f"s_lshl_b32 s60, s{WV}, 8")
    A(f"v_mul_u32_u24 {v(vP2)}, 10240, {v(h)}")
    A(f"v_lshl_add_u32 {v(vP2)}, {v(n)}, 3, {v(vP2)}")
    A(f"v_add_u32 {v(vP2)}, s60, {v(vP2)}")
    A(f"s_mul_i32 s60, s{WV}, 2560")
    A(f"s_add_u32 s60, s60, {LDS_NEW}")
    A(f"v_lshl_add_u32 {v(vNW)}, v1, 2, s60")
    A(f"s_add_u32 s75, s74, 4096")
    A(f"s_add_u32 s78, s74, 8192")
    ORDER = opt("order", 4)
    def sel_step():
        wait_sel(0, True)
        A(f"s_add_u32 s{sTB}, s{sTB}, {T_SZ}")
        A(f"s_add_u32 s{sTB+1}, s{sTB+1}, {T_SZ}")
        stamp(5)
    CU, CV = XN + 12, XN + 16
    def coefs():
        tr, ca, sa, cb, sb, ar, t0, t1_ = range(AF2, AF2 + 8)
        A(f"v_and_b32 {v(tr)}, 1, v1")
        A(f"v_lshlrev_b32 {v(tr)}, 6, {v(tr)}")
        A(f"v_add_u32 {v(tr)}, s{sRA}, {v(tr)}")
        A(f"s_mov_b32 s64, 0x00300003")
        A(f"s_mov_b32 s65, 0x30000300")
        for p in range(4):
            for (j, cc, ss) in ((2 * p, ca, sa), (2 * p + 1, cb, sb)):
                A(f"v_mul_u32_u24 {v(ar)}, s{sSEL+j}, {v(tr)}")
                A(f"v_and_b32 {v(ar)}, 0x7ff, {v(ar)}")
                A(f"v_cvt_f32_u32 {v(ar)}, {v(ar)}")
                A(f"v_mul_f32 {v(ar)}, {f32(1/2048)}, {v(ar)}")
                sincos(ar, cc, ss)
            A(f"v_sub_f32 {v(t0)}, {v(ca)}, {v(sb)}")
            A(f"v_add_f32 {v(t1_)}, {v(sa)}, {v(cb)}")
            A(f"v_mul_f32 {v(t0)}, 0.5, {v(t0)}")
            A(f"v_mul_f32 {v(t1_)}, 0.5, {v(t1_)}")
            A(f"v_cvt_pk_f16_f32 {v(CU+p)}, {v(t0)}, {v(t1_)}")
            A(f"v_add_f32 {v(t0)}, {v(ca)}, {v(sb)}")
            A(f"v_sub_f32 {v(t1_)}, {v(cb)}, {v(sa)}")
            A(f"v_mul_f32 {v(t0)}, 0.5, {v(t0)}")
            A(f"v_mul_f32 {v(t1_)}, 0.5, {v(t1_)}")
            A(f"v_cvt_pk_f16_f32 {v(CV+p)}, {v(t0)}, {v(t1_)}")
            A(f"v_cndmask_b32 {v(CU+p)}, 0, {v(CU+p)}, s[64:65]")
            A(f"v_cndmask_b32 {v(CV+p)}, 0, {v(CV+p)}, s[64:65]")

    RAW = AC2R
    def x2loads():
        for i in range(10):
            so = ("s74", "s75", "s78")[i // 4]
            A(f"buffer_load_dwordx2 {v(RAW+2*i,2)}, {v(vP2)}, {WS}, {so} offen offset:{1024*(i%4)} sc1")
    def wait_hint():
        loop, done = A.newlabel("Lx2"), A.newlabel("Lx2d")
        A(f"s_mov_b32 s62, {SPIN}")
        A(f"s_add_u32 s60, s74, {SEL_OFF + 128}")
        A(f"v_mov_b32 {v(ACR)}, 0")
        A.label(loop)
        A(f"buffer_load_dword {v(ACR+1)}, {v(ACR)}, {WS}, s60 offen sc1")
        A("s_waitcnt vmcnt(0)")
        A(f"v_cmp_eq_u32 vcc, -1, {v(ACR+1)}")
        A(f"s_cbranch_vccz {done}")
        spin_tail(loop, 62, opt("hintsleep", 2))
        A.label(done)
    alldone = A.newlabel("Lx2a")
    if ORDER == 6:
        sel_step()
        coefs()
        A(f"s_add_u32 s79, s74, {SEL_OFF + 128}")
        A(f"v_mov_b32 {v(AF2)}, 0")
        poll_flags(3, sREP, ACR)
        stamp(6, dbg=(13, 0))
        Lnh, Lslow = A.newlabel("Lx2n"), A.newlabel("Lx2s")
        def hint_load():
            A(f"buffer_load_dword {v(AF2+1)}, {v(AF2)}, {WS}, s79 offen sc1")
        def landed():
            A(f"v_readfirstlane_b32 s79, {v(AF2+1)}")
            A("s_cmp_eq_u32 s79, -1")
            A(f"s_cbranch_scc1 {Lnh}")
            x2loads()
            A.label(Lnh)
        stage_Y(1, None, hint_load, landed)
        A("s_cmp_eq_u32 s79, -1")
        A(f"s_cbranch_scc1 {Lslow}")
        A("s_waitcnt vmcnt(0)")
        any_sentinel(range(RAW, RAW + 20), ACR, alldone)
        A.label(Lslow)
        wait_hint()
    elif ORDER == 5:
        sel_step()
        coefs()
        poll_flags(3, sREP, ACR)
        stamp(6, dbg=(13, 0))
        stage_Y(1, None, x2loads)
        any_sentinel(range(RAW, RAW + 20), ACR, alldone)
        wait_hint()
    elif ORDER == 4:
        sel_step()
        coefs()
        poll_flags(3, sREP, ACR)
        stamp(6, dbg=(13, 0))
        stage_Y(1)
        wait_hint()
    elif ORDER == 1:
        poll_flags(3, sREP, ACR)
        stamp(6, dbg=(13, 0))
        stage_Y(1)
        sel_step()
        coefs()
        wait_hint()
    else:
        sel_step()
        coefs()
        poll_flags(3, sREP, ACR)
        wait_hint()
        stamp(6, dbg=(13, 0))
        stage_Y(1, None, x2loads)
        any_sentinel(range(RAW, RAW + 20), ACR, alldone)
    loop, done = A.newlabel("Lx2"), A.newlabel("Lx2d")
    A(f"s_mov_b32 s62, {SPIN}")
    A("s_mov_b64 vcc, -1")
    A.label(loop)
    A("s_mov_b64 exec, vcc")
    x2loads()
    A("s_mov_b64 exec, -1")
    A("s_waitcnt vmcnt(0)")
    any_sentinel(range(RAW, RAW + 20), ACR, done)
    spin_tail(loop, 62, opt("x2sleep", 0))
    A.label(done)
    A.label(alldone)
    stamp(7)
    Z = ACR + 12
    for i in range(10):
        A(f"v_lshlrev_b32 {v(Z+2*i)}, 16, {v(RAW+2*i)}")
        A(f"v_and_b32 {v(Z+2*i+1)}, 0xffff0000, {v(RAW+2*i)}")
    for i in range(10):
        A(f"ds_write_b32 {v(vNW)}, {v(RAW+2*i)} offset:{256*i}")
    ln_stats(Z, ACR + 2)
    ln_center_scale(Z, Z, ACR + 2, EXACT)
    to_f16(Z, ACR + 2, sub=lambda i: RAW + 2 * i + 1)
    CBL = [16 + 4 * i for i in range(6)] + [AF1, AF1 + 4, AF1 + 8, XN + 8]
    WA = TWC
    def shadow1():
        for i in range(10):
            A(f"ds_read_b32 {v(CBL[i]+2)}, {v(vLYR)} offset:{128*i}")
        for i in range(10):
            A(f"s_waitcnt lgkmcnt({9-i})")
            A(f"v_fma_mix_f32 {v(CBL[i])}, {v(CBL[i]+2)}, s{s32f}, {v(X+2*i)} op_sel:[0,0,0] op_sel_hi:[1,0,0]")
            A(f"v_fma_mix_f32 {v(CBL[i]+1)}, {v(CBL[i]+2)}, s{s32f}, {v(X+2*i+1)} op_sel:[1,0,0] op_sel_hi:[1,0,0]")
    def shadow2():
        for i in range(10):
            A(f"v_add_u32 {v(WA+i)}, {i}, {v(vER)}")
            A(f"v_bfe_u32 {v(WA+i)}, {v(WA+i)}, 5, 1")
            A(f"v_lshl_add_u32 {v(WA+i)}, {v(WA+i)}, 4, {v(vE0)}")
    A("s_waitcnt lgkmcnt(0)")
    row_dft(XN, shadow1, shadow2)
    stamp(18)
    for i in range(10):
        A(f"v_cvt_pk_f16_f32 {v(ACR+i)}, {v(AC2R+i)}, {v(AC2I+i)}")
        A(f"ds_write_b32 {v(WA+i)}, {v(ACR+i)} offset:{16*i}")
    A("s_mov_b64 exec, 1")
    A(f"ds_write_b32 {v(vE0)}, {v(ACR)} offset:{660*16}")
    A("s_mov_b64 exec, -1")
    A("s_waitcnt lgkmcnt(0)")
    A("s_barrier")
    FRL = [40 + 4 * q for q in range(16)] + [160 + 4 * q for q in range(4)]
    def corr(k):
        A(f"v_mfma_f32_16x16x32_f16 {v(CBL[k],4)}, {v(CU,4)}, {v(FRL[2*k],4)}, {v(CBL[k],4)}")
        A(f"v_mfma_f32_16x16x32_f16 {v(CBL[k],4)}, {v(CV,4)}, {v(FRL[2*k+1],4)}, {v(CBL[k],4)}")
    for i in range(10):
        A(f"ds_read_b128 {v(FRL[2*i],4)}, {v(vDF)} offset:{528*i}")
        A(f"ds_read_b128 {v(FRL[2*i+1],4)}, {v(vDM)} offset:{528*(9-i)}")
        if i >= 6:
            A(f"s_waitcnt lgkmcnt(12)")
            corr(i - 6)
    for k in range(4, 10):
        A(f"s_waitcnt lgkmcnt({2*(9-k)})")
        corr(k)
    stamp(19)
    for row in range(2):
        Lnext = A.newlabel("Lown")
        A(f"s_cmp_lt_i32 s{76+row}, 0")
        A(f"s_cbranch_scc1 {Lnext}")
        A(f"s_lshr_b32 s62, s{76+row}, 1")
        A("s_mul_i32 s62, s62, 2560")
        A(f"s_add_u32 s62, s62, {LDS_NEW}")
        A(f"s_and_b32 s61, s{76+row}, 1")
        A("s_lshl_b32 s61, s61, 4")
        A("s_sub_u32 s61, 16, s61")
        A(f"v_lshl_add_u32 {v(240)}, v1, 2, s62")
        for i in range(10):
            A(f"ds_read_b32 {v(241+i)}, {v(240)} offset:{256*i}")
        A("s_waitcnt lgkmcnt(0)")
        for i in range(10):
            A(f"v_lshlrev_b32 {v(241+i)}, s61, {v(241+i)}")
            A(f"v_and_b32 {v(241+i)}, 0xffff0000, {v(241+i)}")
            A(f"v_sub_f32 {v(241+i)}, {v(241+i)}, {v(X+2*i+row)}")
            A(f"v_add_f32 {v(CBL[i]+row)}, {v(CBL[i]+row)}, {v(241+i)}")
        A.label(Lnext)
    for u in range(5):
        A(f"v_cvt_pk_bf16_f32 {v(PA+u)}, {v(CBL[2*u])}, {v(CBL[2*u+1])}")
        A(f"v_cvt_pk_bf16_f32 {v(PB+u)}, {v(CBL[2*u]+1)}, {v(CBL[2*u+1]+1)}")
    unpack_rows(X, PA, PB)
    ln_stats(X, ACR)
    ln_center_scale(X, XN, ACR, EXACT1)
    if EXACT1:
        pack_rows(XN, PA + 16, PB + 16)
        unpack_rows(XN, PA + 16, PB + 16)
    stamp(20)
    router_publish(1, ACI + 8, PA + 16, PB + 16)
    if not EXACT1:
        unpack_rows(XN, PA + 16, PB + 16)
    stamp(8, dbg=(14, 0))
    OB = 16
    A(f"s_mul_i32 s60, s{WV}, 2560")
    A(f"v_add_u32 {v(OB)}, s60, {v(vX)}")
    for i in range(10):
        A(f"v_pk_add_f32 {v(X+2*i,2)}, {v(X+2*i,2)}, {v(XN+2*i,2)}")
        A(f"v_cvt_pk_bf16_f32 {v(OB+2+i)}, {v(X+2*i)}, {v(X+2*i+1)}")
        A(f"ds_write_b16 {v(OB)}, {v(OB+2+i)} offset:{64*i}")
        A(f"ds_write_b16_d16_hi {v(OB)}, {v(OB+2+i)} offset:{1280+64*i}")
    A(f"v_lshlrev_b32 {v(OB+1)}, 4, v1")
    A(f"v_add_u32 {v(OB)}, s60, {v(OB+1)}")
    A("s_waitcnt lgkmcnt(0)")
    for k in range(3):
        A(f"ds_read_b128 {v(OB+12+4*k,4)}, {v(OB)} offset:{1024*k}")
    A(f"v_add_u32 {v(OB+2)}, {1024 + 63 * 1280}, {v(OB+1)}")
    A(f"v_add_u32 {v(OB+3)}, 1024, {v(OB+1)}")
    A(f"v_cmp_gt_u32 vcc, 16, v1")
    A(f"v_cndmask_b32 {v(OB+3)}, {v(OB+2)}, {v(OB+3)}, vcc")
    def out_stores():
        A("s_waitcnt lgkmcnt(0)")
        A(f"buffer_store_dwordx4 {v(OB+12,4)}, {v(OB+1)}, {SRD2}, s{sXO} offen sc1")
        A(f"buffer_store_dwordx4 {v(OB+16,4)}, {v(OB+3)}, {SRD2}, s{sXO} offen sc1")
        set_exec(0xffffffff)
        A(f"buffer_store_dwordx4 {v(OB+20,4)}, {v(OB+2)}, {SRD2}, s{sXO} offen offset:1024 sc1")
        A("s_mov_b64 exec, -1")
    OD = opt("outdelay", 0)
    if OD:
        A(f"s_lshl_b32 s73, s{sRHO}, 4")
        A(f"s_add_u32 s73, s73, {RG_OFF + NRR * RG_REP}")
        A(f"v_mov_b32 {v(ACR)}, 0")
        for _ in range(OD):
            A(f"buffer_load_dword {v(ACR+1)}, {v(ACR)}, {WS}, s73 offen sc1")
            A("s_waitcnt vmcnt(0)")
    out_stores()
    release_candidates(1, False)
    wait_sel(1, False)
    stamp(22)
    stamp(9)
    A("s_endpgm")

def roleC():
    A.label("L_roleC")
    B1, TC, TS, A2, DT, RAW, AR, AI, P, AC, O, T = 16, 32, 48, 64, 128, 160, 176, 192, 208, 224, 240, 248
    sC, sCME, sCREP, sK, sW0, sW1, sY, sLAST = 22, 23, 24, 25, 26, 27, 28, 29
    nonce_load(T + 4)
    if opt("prefc", 1) == 1:
        warm_weights(AC, C0, 29, PPART)
    A(f"s_sub_u32 s60, s2, {C0}")
    A("s_and_b32 s61, s60, 7")
    A("s_lshr_b32 s62, s60, 3")
    A("s_lshr_b32 s63, s62, 2")
    A("s_lshl_b32 s63, s63, 5")
    A("s_lshl_b32 s61, s61, 2")
    A("s_and_b32 s62, s62, 3")
    A(f"s_add_u32 s{sC}, s63, s61")
    A(f"s_add_u32 s{sC}, s{sC}, s62")
    A(f"s_and_b32 s{sCME}, s2, 15")
    A(f"s_cmp_eq_u32 s{sCME}, 0")
    A(f"s_cselect_b32 s{sLAST}, 10, 9")
    A(f"s_and_b32 s{sCREP}, s2, {NREP - 1}")
    A(f"s_lshl_b32 s{sCREP}, s{sCREP}, {FSH + 4}")
    n, g, t1, gs, arg, base, st = RAW, RAW + 1, RAW + 2, RAW + 3, RAW + 4, RAW + 5, RAW + 6
    ca, sa, cb, sb, x0, x1 = RAW + 7, RAW + 8, RAW + 9, RAW + 10, RAW + 11, RAW + 12
    A(f"v_and_b32 {v(n)}, 15, v1")
    A(f"v_lshrrev_b32 {v(g)}, 4, v1")
    A(f"s_and_b32 s70, s{WV}, 1")
    A(f"s_lshl_b32 s70, s70, 4")
    A(f"s_lshr_b32 s61, s{WV}, 1")
    A(f"v_lshrrev_b32 v2, 1, v0")
    A(f"v_and_b32 v6, 1, v0")
    A(f"s_lshl_b32 s62, s{sC}, 1")
    A(f"v_add_u32 v3, s62, v6")
    A(f"v_min_u32 v3, 320, v3")
    A(f"v_sub_u32 v4, 640, v3")
    A(f"v_cmp_ne_u32 vcc, 0, v3")
    A(f"v_cndmask_b32 v4, 0, v4, vcc")
    A(f"v_add_u32 v5, 7, v4")
    A(f"v_cmp_lt_u32 vcc, 320, v4")
    A(f"v_cndmask_b32 v4, v4, v5, vcc")
    A(f"v_mul_u32_u24 v5, {WROW}, v2")
    A(f"v_mul_u32_u24 v6, 8256, v6")
    A(f"v_lshl_add_u32 v6, v2, 4, v6")
    A(f"v_lshl_add_u32 v2, v3, 4, v5")
    A(f"v_lshl_add_u32 v3, v4, 4, v5")
    A(f"s_mul_i32 s63, s61, 8256")
    A(f"v_lshlrev_b32 v7, 10, {v(g)}")
    A(f"v_lshl_add_u32 v7, {v(n)}, 4, v7")
    A(f"v_add_u32 v7, s63, v7")
    A(f"s_add_u32 s62, s62, s61")
    A(f"s_lshl_b32 s62, s62, 12")
    A(f"v_lshl_add_u32 v8, {v(g)}, 6, {v(n)}")
    A(f"v_add_u32 v8, s70, v8")
    A(f"v_lshl_add_u32 v8, v8, 4, s62")
    A(f"s_lshr_b32 s62, s62, 6")
    A(f"s_add_u32 s62, s62, {YM_OFF + 48}")
    A(f"v_lshlrev_b32 v9, 4, {v(g)}")
    A(f"v_sub_u32 v9, s62, v9")
    def Y_stores(r0, r1, rm, sy, prep=None):
        A(f"buffer_store_dwordx4 {v(r0,4)}, v8, {WS}, {sy} offen sc1")
        A(f"buffer_store_dwordx4 {v(r1,4)}, v8, {WS}, {sy} offen offset:512 sc1")
        Lm = A.newlabel("Lym")
        A(f"s_bitcmp1_b32 s{WV}, 0")
        A(f"s_cbranch_scc1 {Lm}")
        if prep:
            prep()
        set_exec(0x0001000100010001)
        A(f"buffer_store_dwordx4 {v(rm,4)}, v9, {WS}, {sy} offen sc1")
        A("s_mov_b64 exec, -1")
        A.label(Lm)
    A(f"s_waitcnt vmcnt({nloads(PPART) if opt('prefc', 1) == 1 else 0})")
    nonce_take(T + 4)
    Li = A.newlabel("Lci")
    A(f"s_sub_u32 s60, s2, {C0}")
    A(f"s_lshl_b32 s61, s{WV}, 4")
    A(f"s_or_b32 s60, s60, s61")
    A(f"s_cmp_ge_u32 s60, 16")
    A(f"s_cbranch_scc1 {Li}")
    cnt_init(sCME, range(4), T)
    A.label(Li)
    for k in range(4):
        A(f"v_mov_b32 {v(O+k)}, -1")
    for lay in range(2 if opt("y2fill", 2) == 0 else 1):
        A(f"s_mov_b32 s63, {Y_OFF + lay * Y_SZ}")
        Y_stores(O, O, O, "s63")
    if opt("prefc", 1) == 2:
        warm_weights(AC, C0, 29, PPART)
    A(f"v_add_u32 {v(t1)}, s70, {v(n)}")
    A(f"v_cvt_f32_u32 {v(t1)}, {v(t1)}")
    A(f"v_cvt_f32_u32 {v(gs)}, {v(g)}")
    A(f"v_mul_f32 {v(st)}, {f32(1/32)}, {v(t1)}")
    A(f"v_mul_f32 {v(base)}, {v(st)}, {v(gs)}")
    A(f"v_mul_f32 {v(base)}, {f32(8.0)}, {v(base)}")
    for w in range(4):
        A(f"v_fmamk_f32 {v(arg)}, {v(st)}, {f32(2*w)}, {v(base)}")
        sincos(arg, ca, sa)
        A(f"v_add_f32 {v(arg)}, {v(arg)}, {v(st)}")
        sincos(arg, cb, sb)
        A(f"v_sub_f32 {v(x0)}, {v(ca)}, {v(sb)}")
        A(f"v_add_f32 {v(x1)}, {v(sa)}, {v(cb)}")
        A(f"v_cvt_pk_f16_f32 {v(B1+w)}, {v(x0)}, {v(x1)}")
        A(f"v_cvt_pk_f16_f32 {v(B1+4+w)}, -{v(x1)}, {v(x0)}")
        A(f"v_add_f32 {v(x0)}, {v(ca)}, {v(sb)}")
        A(f"v_sub_f32 {v(x1)}, {v(cb)}, {v(sa)}")
        A(f"v_cvt_pk_f16_f32 {v(B1+8+w)}, {v(x0)}, {v(x1)}")
        A(f"v_cvt_pk_f16_f32 {v(B1+12+w)}, {v(x1)}, -{v(x0)}")
    A(f"v_mul_f32 {v(st)}, {f32(1/2048)}, {v(t1)}")
    A(f"v_mul_f32 {v(base)}, {v(st)}, {v(gs)}")
    A(f"v_mul_f32 {v(base)}, 4.0, {v(base)}")
    for j in range(4):
        for i in range(4):
            A(f"v_fmamk_f32 {v(arg)}, {v(st)}, {f32(16*j+i)}, {v(base)}")
            sincos(arg, ca, sa)
            A(f"v_mul_f32 {v(TC+4*j+i)}, {f32(1/64)}, {v(ca)}")
            A(f"v_mul_f32 {v(TS+4*j+i)}, {f32(1/64)}, {v(sa)}")
    A(f"v_lshrrev_b32 {v(x0)}, 2, {v(n)}")
    A(f"v_lshlrev_b32 {v(x0)}, 4, {v(x0)}")
    A(f"v_and_b32 {v(x1)}, 3, {v(n)}")
    A(f"v_lshl_add_u32 {v(x0)}, {v(x1)}, 1, {v(x0)}")
    A(f"s_lshr_b32 s60, s70, 1")
    A(f"s_lshr_b32 s61, s{WV}, 1")
    A(f"s_add_u32 s60, s60, s61")
    A(f"v_add_u32 {v(x0)}, s60, {v(x0)}")
    A(f"v_cvt_f32_u32 {v(x0)}, {v(x0)}")
    A(f"v_mul_f32 {v(st)}, {f32(1/64)}, {v(x0)}")
    A(f"v_mul_f32 {v(base)}, {v(st)}, {v(gs)}")
    A(f"v_mul_f32 {v(base)}, 4.0, {v(base)}")
    A(f"s_lshl_b32 s60, s{WV}, 12")
    A(f"s_add_u32 s60, s60, 24576")
    A(f"v_lshl_add_u32 {v(x1)}, v1, 4, s60")
    for j in range(4):
        for i in range(4):
            A(f"v_fmamk_f32 {v(arg)}, {v(st)}, {f32(16*j+i)}, {v(base)}")
            sincos(arg, ca, sa)
            A(f"v_cvt_pk_f16_f32 {v(DT+4*j+i)}, {v(ca)}, {v(sa)}")
        A(f"ds_write_b128 {v(x1)}, {v(DT+4*j,4)} offset:{1024*j}")
    A(f"v_lshlrev_b32 {v(x1)}, 4, v1")
    A("s_waitcnt lgkmcnt(0)")
    A("s_barrier")
    for q in range(16):
        A(f"ds_read_b128 {v(A2+4*q,4)}, {v(x1)} offset:{24576 + 1024*q}")
        if q == 7:
            A("s_waitcnt lgkmcnt(0)")
    A("s_waitcnt vmcnt(0)")
    prio(3)
    A(f"s_mov_b32 s{sK}, 0")
    A(f"s_mov_b32 s{sW0}, {W_OFF}")
    A(f"s_mov_b32 s{sY}, {Y_OFF}")
    if opt("touch", 0) > 1:
        touch(T, W_OFF, 2 * W_SZ)
    stamp(4, dbg=(4, C0))
    A.label("L_Cloop")
    A(f"s_add_u32 s{sW1}, s{sW0}, {128 * WROW}")
    poll_flags(f"s{sK}", sCREP, T)
    stamp(0, f"s{sK}", dbg=(5, C0, 0))
    loop, done = A.newlabel("Lcw"), A.newlabel("Lcwd")
    A(f"s_add_u32 s30, s{sK}, 1")
    AWC = opt("awc", 1)
    if EARLY_C >= 2:
        arrive_issue("s30", sCME, O, AWC)
    A(f"s_mov_b32 s62, {SPIN}")
    A.label(loop)
    A(f"buffer_load_dwordx4 {v(RAW,4)}, v2, {WS}, s{sW0} offen sc1")
    A(f"buffer_load_dwordx4 {v(RAW+4,4)}, v2, {WS}, s{sW1} offen sc1")
    A(f"buffer_load_dwordx4 {v(RAW+8,4)}, v3, {WS}, s{sW0} offen sc1")
    A(f"buffer_load_dwordx4 {v(RAW+12,4)}, v3, {WS}, s{sW1} offen sc1")
    A("s_mov_b32 s31, 0")
    for j in range(4):
        if j == 3 and EARLY_C >= 3:
            Lw = A.newlabel("Lce")
            A("s_waitcnt vmcnt(1)")
            A("s_cmp_eq_u32 s31, 1")
            A(f"s_cbranch_scc1 {Lw}")
            A("s_waitcnt vmcnt(0)")
            A.label(Lw)
        else:
            A(f"s_waitcnt vmcnt({3-j})")
        A(f"ds_write_b128 v6, {v(RAW+4*j,4)} offset:{(j>>1)*4096 + (j&1)*2048}")
        if EARLY_C >= 3 and j == EARLY_C - 3:
            Lq = A.newlabel("Lce")
            A(f"s_cmp_lg_u32 s62, {SPIN}")
            A(f"s_cbranch_scc1 {Lq}")
            arrive_finish("s30", sCME, f"s{sLAST}", O, 3 - j, AWC, "s31")
            A.label(Lq)
    any_sentinel(range(RAW, RAW + 16), T, done)
    spin_tail(loop, 62, 2)
    A.label(done)
    if EARLY_C == 1:
        arrive_issue("s30", sCME, O, AWC)
    A("s_waitcnt lgkmcnt(0)")
    A("s_barrier")
    stamp(1, f"s{sK}")
    for j in range(4):
        A(f"ds_read_b128 {v(DT+8*j,4)}, v7 offset:{256*j}")
        A(f"ds_read_b128 {v(DT+8*j+4,4)}, v7 offset:{4096+256*j}")
    if EARLY_C == 2:
        arrive_finish("s30", sCME, f"s{sLAST}", O, 0, AWC)
    for j in range(4):
        A(f"s_waitcnt lgkmcnt({7-2*j})")
        A(f"v_mfma_f32_16x16x32_f16 {v(AR+4*j,4)}, {v(DT+8*j,4)}, {v(B1,4)}, 0")
        A(f"v_mfma_f32_16x16x32_f16 {v(AI+4*j,4)}, {v(DT+8*j,4)}, {v(B1+4,4)}, 0")
        A(f"s_waitcnt lgkmcnt({6-2*j})")
        A(f"v_mfma_f32_16x16x32_f16 {v(AR+4*j,4)}, {v(DT+8*j+4,4)}, {v(B1+8,4)}, {v(AR+4*j,4)}")
        A(f"v_mfma_f32_16x16x32_f16 {v(AI+4*j,4)}, {v(DT+8*j+4,4)}, {v(B1+12,4)}, {v(AI+4*j,4)}")
    A(f"s_add_u32 s{sK}, s{sK}, 1")
    for j in range(4):
        for i in (4 * j, 4 * j + 2):
            pr, pi = RAW + (i % 4) * 2, RAW + (i % 4) * 2 + 2
            A(f"v_pk_mul_f32 {v(pr,2)}, {v(AR+i,2)}, {v(TC+i,2)}")
            A(f"v_pk_mul_f32 {v(pi,2)}, {v(AI+i,2)}, {v(TC+i,2)}")
            A(f"v_pk_fma_f32 {v(pr,2)}, {v(AI+i,2)}, {v(TS+i,2)}, {v(pr,2)}")
            A(f"v_pk_fma_f32 {v(pi,2)}, {v(AR+i,2)}, {v(TS+i,2)}, {v(pi,2)} neg_lo:[1,0,0] neg_hi:[1,0,0]")
            A(f"v_cvt_pk_f16_f32 {v(P+i)}, {v(pr)}, {v(pi)}")
            A(f"v_cvt_pk_f16_f32 {v(P+i+1)}, {v(pr+1)}, {v(pi+1)}")
        for jm in range(4):
            c = "0" if j == 0 else v(AC + 4 * jm, 4)
            A(f"v_mfma_f32_16x16x32_f16 {v(AC+4*jm,4)}, {v(A2+16*jm+4*j,4)}, {v(P+4*j,4)}, {c}")
        if j == opt("cfin", 1) and EARLY_C == 1:
            arrive_finish("s30", sCME, f"s{sLAST}", O, 0, AWC)
    for k in range(8):
        A(f"v_cvt_pk_f16_f32 {v(O+k)}, {v(AC+2*k)}, {v(AC+2*k+1)}")
    def prep():
        for gq in range(4):
            A(f"v_readlane_b32 s{60+gq}, {v(O)}, {16*((gq+1)%4)}")
        for gq in range(4):
            A(f"v_writelane_b32 {v(P+4)}, s{60+gq}, {16*gq}")
        for k in range(3):
            A(f"v_alignbit_b32 {v(P+k)}, {v(O+k+1)}, {v(O+k)}, 16")
        A(f"v_alignbit_b32 {v(P+3)}, {v(P+4)}, {v(O+3)}, 16")
    Y_stores(O, O + 4, P, f"s{sY}", prep)
    stamp(3, f"s{sK}", dbg=(6, C0, 1))
    A(f"s_add_u32 s{sK}, s{sK}, 1")
    A(f"s_add_u32 s{sW0}, s{sW0}, {W_SZ}")
    A(f"s_add_u32 s{sY}, s{sY}, {Y_SZ}")
    A(f"s_cmp_ge_u32 s{sK}, 4")
    A("s_cbranch_scc1 L_end")
    A("s_waitcnt vmcnt(0)")
    if opt("y2fill", 2) == 2:
        for k in range(4):
            A(f"v_mov_b32 {v(O+k)}, -1")
        Y_stores(O, O, O, f"s{sY}")
        A("s_waitcnt vmcnt(0)")
    if opt("y2fill", 2) == 1:
        lp, dn = A.newlabel("Lcy"), A.newlabel("Lcy")
        A(f"s_mov_b32 s60, {RG_OFF}")
        A(f"v_mov_b32 {v(T)}, 0")
        A(f"s_mov_b32 s62, {SPIN}")
        A.label(lp)
        A(f"buffer_load_dword {v(T+1)}, {v(T)}, {WS}, s60 offen sc1")
        A("s_waitcnt vmcnt(0)")
        A(f"v_cmp_eq_u32 vcc, -1, {v(T+1)}")
        A(f"s_cbranch_vccz {dn}")
        spin_tail(lp, 62, 4)
        A.label(dn)
        for k in range(4):
            A(f"v_mov_b32 {v(O+k)}, -1")
        Y_stores(O, O, O, f"s{sY}")
        A("s_waitcnt vmcnt(0)")
    A("s_branch L_Cloop")

SORT8 = [(0, 1), (2, 3), (4, 5), (6, 7), (0, 2), (1, 3), (4, 6), (5, 7), (1, 2), (5, 6), (0, 4), (3, 7),
         (1, 5), (2, 6), (1, 4), (3, 6), (2, 4), (3, 5), (3, 4)]

def topk_setup(CODE, vG, vLW, vLR, LDS0):
    A(f"v_lshrrev_b32 {v(CODE)}, 6, v0")
    A(f"v_lshlrev_b32 {v(CODE)}, 9, {v(CODE)}")
    A(f"v_add_u32 {v(CODE)}, {v(CODE)}, v1")
    A(f"v_sub_u32 {v(CODE)}, 2047, {v(CODE)}")
    for i in range(1, 8):
        A(f"v_subrev_u32 {v(CODE+i)}, {64*i}, {v(CODE)}")
    A(f"v_lshlrev_b32 {v(vG)}, {RSH}, v0")
    A(f"v_lshrrev_b32 {v(vLW)}, 4, v0")
    A(f"v_lshlrev_b32 {v(vLW)}, 5, {v(vLW)}")
    A(f"v_add_u32 {v(vLW)}, {LDS0}, {v(vLW)}")
    A(f"v_and_b32 {v(vLR)}, 15, v1")
    A(f"v_lshlrev_b32 {v(vLR)}, 5, {v(vLR)}")
    A(f"v_add_u32 {v(vLR)}, {LDS0}, {v(vLR)}")

def topk(K, CODE, vG, vLW, vLR, sRG, blk, dbg, mid=None, dry=False):
    G = K + 16
    prio(0)
    Ldry = A.newlabel("Ldry")
    if dry:
        A("s_cmp_eq_u32 s37, 1")
        A(f"s_cbranch_scc1 {Ldry}")
    for gate in (True, False):
        loop, done = A.newlabel("Lrg"), A.newlabel("Lrgd")
        A(f"s_mov_b32 s62, {SPIN}")
        if gate:
            set_exec(((1 << opt("gl", 2)) - 1) << (64 - opt("gl", 2)))
        A.label(loop)
        A(f"buffer_load_dwordx4 {v(G,4)}, {v(vG)}, {WS}, s{sRG} offen sc1")
        A("s_waitcnt vmcnt(0)")
        any_sentinel(range(G, G + 4), K, done)
        if opt("rlane", 0):
            A("s_mov_b64 exec, vcc")
        spin_tail(loop, 62, opt("rsleep", 0))
        A.label(done)
        A("s_mov_b64 exec, -1")
    prio(3)
    stamp(3, "s27", dbg=dbg)
    A.label(Ldry)
    A("s_mov_b32 s63, 0xffff0000")
    cur = list(range(K, K + 8))
    for k in range(4):
        A(f"v_lshl_or_b32 {v(cur[2*k])}, {v(G+k)}, 16, {v(CODE+2*k)}")
        A(f"v_and_or_b32 {v(cur[2*k+1])}, {v(G+k)}, s63, {v(CODE+2*k+1)}")
    free = list(range(K + 8, K + 24))

    def ce(i, j, dst=None):
        if dst is None:
            t = free.pop(0)
            A(f"v_max_u32 {v(t)}, {v(cur[i])}, {v(cur[j])}")
            A(f"v_min_u32 {v(cur[j])}, {v(cur[i])}, {v(cur[j])}")
            free.append(cur[i])
            cur[i] = t
        else:
            A(f"v_max_u32 {v(dst+i)}, {v(cur[i])}, {v(cur[j])}")
            A(f"v_min_u32 {v(dst+j)}, {v(cur[i])}, {v(cur[j])}")

    for (i, j) in SORT8:
        ce(i, j)
    pats = ["quad_perm:[1,0,3,2]", "quad_perm:[2,3,0,1]", "row_half_mirror", "row_mirror"]
    for rnd in range(2):
        for li, pat in enumerate(pats):
            new = [free.pop(0) for _ in range(8)]
            for i in (7, 6, 5, 4, 3, 2, 1, 0) if False else range(8):
                A(f"v_max_u32_dpp {v(new[i])}, {v(cur[7-i])}, {v(cur[i])} {pat} row_mask:0xf bank_mask:0xf")
            free.extend(cur)
            cur = new
            if rnd == 1 and li == 3:
                return cur
            for i in range(4):
                ce(i, i + 4)
            for i in (0, 1, 4, 5):
                ce(i, i + 2)
            if rnd == 0 and li == 3:
                for i in (0, 2, 4, 6):
                    ce(i, i + 1, dst=blk)
                set_exec(0x0001000100010001)
                A(f"ds_write_b128 {v(vLW)}, {v(blk,4)}")
                A(f"ds_write_b128 {v(vLW)}, {v(blk+4,4)} offset:16")
                A("s_mov_b64 exec, -1")
                A("s_waitcnt lgkmcnt(0)")
                A("s_barrier")
                A(f"ds_read_b128 {v(K,4)}, {v(vLR)}")
                A(f"ds_read_b128 {v(K+4,4)}, {v(vLR)} offset:16")
                A("s_waitcnt lgkmcnt(0)")
                if mid:
                    mid(K)
                cur = list(range(K, K + 8))
                free = list(range(K + 8, K + 24))
            else:
                for i in (6, 4, 2, 0):
                    ce(i, i + 1)

def load_weight_frags(jobs):
    total = sum(8 * j[3] for j in jobs)
    for (srdn, voff_of, soff_of, nsteps, dst, raw, vfull) in jobs:
        for k in range(nsteps):
            for q in range(8):
                d = raw + 8 * k + q
                if vfull is not None and k == vfull:
                    A(f"v_add_u32 {v(d)}, {soff_of(k, q)}, {v(voff_of(k))}")
                    A(f"buffer_load_dword {v(d)}, {v(d)}, {srdn}, 0 offen")
                    continue
                A(f"s_mov_b32 s60, {soff_of(k, q)}")
                A(f"buffer_load_dword {v(d)}, {v(voff_of(k))}, {srdn}, s60 offen")
    done = 0
    for (srdn, voff_of, soff_of, nsteps, dst, raw, vfull) in jobs:
        for k in range(nsteps):
            done += 8
            A(f"s_waitcnt vmcnt({min(63, total - done)})")
            r = raw + 8 * k
            for u in range(4):
                A(f"v_perm_b32 {v(dst + 8*k + u)}, {v(r+2*u+1)}, {v(r+2*u)}, s58")
                A(f"v_perm_b32 {v(dst + 8*k + 4 + u)}, {v(r+2*u+1)}, {v(r+2*u)}, s59")

def roleFa():
    A.label("L_roleFa")
    GW, UW, RAW, AFR, ACC, K, CODE = 16, 56, 96, 136, 156, 176, 200
    vG, vLW, vLR, vW1, vW2, vLP1, vLP2, vPW, vPR, vH = 2, 3, 4, 5, 6, 7, 8, 9, 10, 11
    sKAP, sRG, sT, sH, sL = 22, 23, 25, 26, 27
    T = 208
    nonce_load(T + 8)
    if opt("prefc", 1) == 1:
        warm_weights(T + 12, C0, 29, PPART)
    srd(8, 46, 2211840)
    srd(12, 48, 2211840)
    A(f"s_sub_u32 s60, s2, {FA0 - 1}")
    A(f"s_and_b32 s61, s60, 7")
    A(f"s_lshr_b32 s60, s60, 3")
    A(f"s_mul_i32 s{sKAP}, s61, 7")
    A(f"s_add_u32 s{sKAP}, s{sKAP}, s60")
    A(f"s_sub_u32 s{sKAP}, s{sKAP}, 1")
    A("s_mov_b32 s58, 0x05040100")
    A("s_mov_b32 s59, 0x07060302")
    n, g = T, T + 1
    A(f"v_and_b32 {v(n)}, 15, v1")
    A(f"v_lshrrev_b32 {v(g)}, 4, v1")
    A(f"s_lshr_b32 s60, s{WV}, 1")
    A(f"s_mul_i32 s60, s60, 320")
    A(f"s_and_b32 s61, s{WV}, 1")
    A(f"s_lshl_b32 s61, s61, 4")
    A(f"s_add_u32 s60, s60, s61")
    A(f"s_lshl_b32 s61, s{sKAP}, 6")
    A(f"v_lshl_add_u32 {v(T+2)}, {v(n)}, 2, s61")
    A(f"v_add_u32 {v(vW1)}, s60, {v(g)}")
    A(f"v_mul_u32_u24 {v(vW1)}, 3456, {v(vW1)}")
    A(f"v_add_u32 {v(vW1)}, {v(vW1)}, {v(T+2)}")
    A(f"v_lshl_add_u32 {v(vW2)}, {v(g)}, 2, s60")
    A(f"v_mul_u32_u24 {v(vW2)}, 3456, {v(vW2)}")
    A(f"v_add_u32 {v(vW2)}, {v(vW2)}, {v(T+2)}")
    voff = lambda k: vW1 if k < 4 else vW2
    soff = lambda k, q: ((32 * q + 4 * k) if k < 4 else (256 + 32 * (q & 1) + (q >> 1))) * 3456
    A("s_waitcnt vmcnt(0)")
    nonce_take(T + 8)
    A(f"s_and_b32 s29, s2, {NREP - 1}")
    A(f"s_lshl_b32 s29, s29, {FSH + 4}")
    if opt("prefc", 1) == 2:
        warm_weights(T + 12, C0, 29, PPART)
    srd(16, 44, 1280)
    A(f"v_and_b32 {v(T+2)}, 31, v1")
    A(f"v_lshrrev_b32 {v(T+3)}, 5, v1")
    A(f"v_mul_u32_u24 {v(T+3)}, 640, {v(T+3)}")
    A(f"v_lshl_add_u32 {v(T+2)}, {v(T+2)}, 1, {v(T+3)}")
    for i in range(10):
        A(f"v_mov_b32 {v(K+i)}, 0")
        A(f"buffer_load_short_d16_hi {v(K+i)}, {v(T+2)}, {SRD3}, 0 offen offset:{64*i}")
    A("s_waitcnt vmcnt(0)")
    tau_of(K, T + 2, 1.0 + 1.0 / 32)
    A(f"v_or_b32 {v(T+2)}, 0x80000000, {v(T+2)}")
    A(f"v_readfirstlane_b32 s36, {v(T+2)}")
    poll_flags(0, 29, T + 4, opt("fsleep", 2))
    if opt("coop", 4):
        warm_coop(T + 12)
    if opt("wide", 0):
        A(f"s_lshr_b32 s60, s{WV}, 1")
        A(f"s_mul_i32 s60, s60, 320")
        A(f"s_and_b32 s61, s{WV}, 1")
        A(f"s_lshl_b32 s61, s61, 4")
        A(f"s_add_u32 s60, s60, s61")
        A(f"v_lshrrev_b32 {v(T+4)}, 2, v1")
        A(f"v_add_u32 {v(T+4)}, s60, {v(T+4)}")
        A(f"v_mul_u32_u24 {v(T+4)}, 3456, {v(T+4)}")
        A(f"v_and_b32 {v(T+5)}, 3, v1")
        A(f"s_lshl_b32 s61, s{sKAP}, 6")
        A(f"v_lshl_add_u32 {v(T+5)}, {v(T+5)}, 4, s61")
        A(f"v_add_u32 {v(T+4)}, {v(T+4)}, {v(T+5)}")
        for j in range(10):
            A(f"s_mov_b32 s60, {32 * j * 3456}")
            A(f"buffer_load_dwordx4 {v(T+12,4)}, {v(T+4)}, {SRD1}, s60 offen")
            A(f"buffer_load_dwordx4 {v(T+12,4)}, {v(T+4)}, {SRD2}, s60 offen")
        if opt("wide", 0) == 2:
            A("s_waitcnt vmcnt(0)")
    load_weight_frags([(SRD1, voff, soff, 5, GW, RAW, None), (SRD2, voff, soff, 5, UW, RAW + 40, None)])
    topk_setup(CODE, vG, vLW, vLR, 24576)
    A(f"v_and_b32 {v(T+2)}, 7, v1")
    A(f"s_lshl_b32 s60, s{WV}, 8")
    A(f"v_lshl_add_u32 {v(vLP1)}, {v(T+2)}, 4, s60")
    A(f"s_lshl_b32 s60, s{WV}, 6")
    A(f"s_add_u32 s60, s60, 1024")
    A(f"v_lshl_add_u32 {v(vLP2)}, {v(T+2)}, 4, s60")
    A(f"s_mul_i32 s60, s{WV}, 2688")
    A(f"s_add_u32 s60, s60, 12288")
    A(f"v_lshrrev_b32 {v(T+3)}, 3, v1")
    A(f"v_mul_u32_u24 v13, 336, {v(T+3)}")
    A(f"v_lshl_add_u32 v13, {v(T+2)}, 4, v13")
    A(f"v_add_u32 v13, s60, v13")
    A(f"v_mul_u32_u24 v14, 336, {v(T+2)}")
    A(f"v_lshl_add_u32 v14, {v(g)}, 4, v14")
    A(f"v_add_u32 v14, s60, v14")
    A(f"s_lshl_b32 s60, s{WV}, 8")
    A(f"v_lshl_add_u32 v15, {v(g)}, 7, s60")
    A(f"s_lshl_b32 s60, s{WV}, 6")
    A(f"s_add_u32 s60, s60, 1024")
    A(f"v_mov_b32 {v(T+4)}, s60")
    A(f"v_cmp_gt_u32 vcc, 2, {v(g)}")
    A(f"v_cndmask_b32 v15, {v(T+4)}, v15, vcc")
    A(f"s_mul_i32 s60, s{WV}, 2560")
    A(f"v_mul_u32_u24 {v(vPW)}, 640, {v(g)}")
    A(f"v_lshl_add_u32 {v(vPW)}, {v(n)}, 3, {v(vPW)}")
    A(f"v_add_u32 {v(vPW)}, s60, {v(vPW)}")
    A(f"v_add_u32 {v(12)}, 1280, {v(vPW)}")
    A(f"v_mul_u32_u24 {v(vPR)}, 40, {v(T+3)}")
    A(f"s_lshl_b32 s60, s{WV}, 3")
    A(f"v_add3_u32 {v(vPR)}, {v(vPR)}, {v(T+2)}, s60")
    A(f"v_lshlrev_b32 {v(vPR)}, 2, {v(vPR)}")
    A(f"v_lshrrev_b32 {v(T+2)}, 1, v0")
    A(f"v_lshlrev_b32 {v(vH)}, 2, {v(T+2)}")
    A(f"s_lshl_b32 s{sH}, s{sKAP}, 9")
    A(f"s_add_u32 s{sH}, s{sH}, {H_OFF}")
    A(f"s_and_b32 s{sRG}, s2, {NRR - 1}")
    A(f"s_lshl_b32 s{sRG}, s{sRG}, {RSH + 8}")
    A(f"s_add_u32 s{sRG}, s{sRG}, {RG_OFF}")
    A(f"s_mov_b32 s{sT}, {T_OFF}")
    A(f"s_mov_b32 s28, {T_REC}")
    for (r, val) in ((30, 0x00FFFF00), (31, 0x00FFFF00), (32, 0xFF00FF00), (33, 0x00FF00FF)):
        A(f"s_mov_b32 s{r}, 0x{val:x}")
    A(f"s_mov_b32 s{sL}, 0")
    touch(T + 2, T_OFF, 2 * T_SZ)
    stamp(0, dbg=(9, FA0))
    if opt("dry", 0):
        A("s_mov_b32 s37, 1")
        A("s_branch L_FaLoop")
    A.label("L_FaLoop_pre")
    poll_flags(1, 29, T, 8)
    A.label("L_FaLoop")
    def warm_rows(K_):
        for e in range(opt("warm", 0)):
            A(f"v_and_b32 {v(T+8+e)}, 0x7ff, {v(K_+e)}")
            A(f"v_sub_u32 {v(T+8+e)}, 2047, {v(T+8+e)}")
            A(f"v_mad_u32_u24 {v(T+8+e)}, {v(T+8+e)}, s28, v15")
            A(f"buffer_load_dword {v(T+8+e)}, {v(T+8+e)}, {WS}, s{sT} offen sc1")
    c = topk(K, CODE, vG, vLW, vLR, sRG, T, (11, FA0, 0), warm_rows, opt("dry", 0))
    if opt("dry", 0):
        A("s_cmp_eq_u32 s37, 1")
        A("s_mov_b32 s37, 0")
        A("s_cbranch_scc1 L_FaLoop_pre")
    stamp(4, "s27")
    A(f"v_cndmask_b32 {v(T)}, {v(c[0])}, {v(c[2])}, s[30:31]")
    A(f"v_cndmask_b32 {v(T+1)}, {v(c[4])}, {v(c[6])}, s[30:31]")
    A(f"v_cndmask_b32 {v(T)}, {v(T)}, {v(T+1)}, s[32:33]")
    A(f"v_and_b32 {v(T)}, 0x7ff, {v(T)}")
    A(f"v_sub_u32 {v(T)}, 2047, {v(T)}")
    A(f"v_mad_u32_u24 {v(T+1)}, {v(T)}, s28, {v(vLP1)}")
    A(f"v_mad_u32_u24 {v(T+2)}, {v(T)}, s28, {v(vLP2)}")
    loop, done = A.newlabel("Lga"), A.newlabel("Lgad")
    A(f"v_min3_u32 {v(T+3)}, {v(c[0])}, {v(c[1])}, {v(c[2])}")
    A(f"v_min3_u32 {v(T+4)}, {v(c[3])}, {v(c[4])}, {v(c[5])}")
    A(f"v_min3_u32 {v(T+3)}, {v(T+3)}, {v(c[6])}, {v(c[7])}")
    A(f"v_min_u32 {v(T+3)}, {v(T+3)}, {v(T+4)}")
    A(f"v_and_b32 {v(T+3)}, 0xffff0000, {v(T+3)}")
    A(f"v_cmp_gt_u32 vcc, s36, {v(T+3)}")
    A(f"s_cbranch_vccz {done}")
    A(f"v_mul_u32_u24 {v(T+3)}, s28, {v(T)}")
    A(f"s_add_u32 s61, s{NONCE}, 6")
    A(f"s_add_u32 s61, s61, s{sL}")
    A(f"s_mov_b32 s62, {SPIN}")
    A.label(loop)
    A(f"buffer_load_dword {v(T+4)}, {v(T+3)}, {WS}, s{sT} offen offset:2568 sc1")
    A("s_waitcnt vmcnt(0)")
    A(f"v_cmp_ne_u32 vcc, s61, {v(T+4)}")
    A(f"s_cbranch_vccz {done}")
    spin_tail(loop, 62, 2)
    A.label(done)
    GR = K
    A(f"buffer_load_dwordx4 {v(GR,4)}, {v(T+1)}, {WS}, s{sT} offen sc1")
    A(f"buffer_load_dwordx4 {v(GR+4,4)}, {v(T+1)}, {WS}, s{sT} offen offset:128 sc1")
    set_exec(0x0F0F0F0F0F0F0F0F)
    A(f"buffer_load_dwordx4 {v(GR+8,4)}, {v(T+2)}, {WS}, s{sT} offen sc1")
    A("s_mov_b64 exec, -1")
    A("s_waitcnt vmcnt(2)")
    A(f"ds_write_b128 v13, {v(GR,4)}")
    A("s_waitcnt vmcnt(1)")
    A(f"ds_write_b128 v13, {v(GR+4,4)} offset:128")
    A("s_waitcnt vmcnt(0)")
    set_exec(0x0F0F0F0F0F0F0F0F)
    A(f"ds_write_b128 v13, {v(GR+8,4)} offset:256")
    A("s_mov_b64 exec, -1")
    for ks in range(5):
        A(f"ds_read_b128 {v(AFR+4*ks,4)}, v14 offset:{64*ks}")
    for ks in range(5):
        A(f"s_waitcnt lgkmcnt({4-ks})")
        for a_, wb in enumerate((GW, GW + 4, UW, UW + 4)):
            cc = "0" if ks == 0 else v(ACC + 4 * a_, 4)
            A(f"v_mfma_f32_16x16x32_bf16 {v(ACC+4*a_,4)}, {v(AFR+4*ks,4)}, {v(wb+8*ks,4)}, {cc}")
    stamp(5, "s27")
    set_exec(0xffffffff)
    for mat in range(2):
        for r in range(4):
            A(f"ds_write2_b32 {v(vPW if mat == 0 else 12)}, {v(ACC+8*mat+r)}, {v(ACC+8*mat+4+r)} offset0:{40*r} offset1:{40*r+1}")
    A("s_mov_b64 exec, -1")
    A("s_waitcnt lgkmcnt(0)")
    A("s_barrier")
    for w in range(4):
        A(f"ds_read2st64_b32 {v(T+2*w,2)}, {v(vPR)} offset0:{10*w} offset1:{10*w+5}")
    A("s_waitcnt lgkmcnt(2)")
    A(f"v_pk_add_f32 {v(T,2)}, {v(T,2)}, {v(T+2,2)}")
    A("s_waitcnt lgkmcnt(0)")
    A(f"v_pk_add_f32 {v(T+4,2)}, {v(T+4,2)}, {v(T+6,2)}")
    A(f"v_pk_add_f32 {v(T,2)}, {v(T,2)}, {v(T+4,2)}")
    rnd_pair(T, T + 1, T + 2)
    A(f"v_mul_f32 {v(T+2)}, {f32(-1.4426950408889634)}, {v(T)}")
    A(f"v_exp_f32 {v(T+2)}, {v(T+2)}")
    A(f"v_add_f32 {v(T+2)}, 1.0, {v(T+2)}")
    A(f"v_rcp_f32 {v(T+2)}, {v(T+2)}")
    A(f"v_mul_f32 {v(T)}, {v(T)}, {v(T+2)}")
    A(f"v_cvt_pk_bf16_f32 {v(T)}, {v(T)}, {v(T)}")
    A(f"v_and_b32 {v(T)}, 0xffff0000, {v(T)}")
    A(f"v_mul_f32 {v(T)}, {v(T)}, {v(T+1)}")
    A(f"v_mov_b32_dpp {v(T+1)}, {v(T)} quad_perm:[1,0,3,2] row_mask:0xf bank_mask:0xf")
    A(f"v_cvt_pk_bf16_f32 {v(T)}, {v(T)}, {v(T+1)}")
    A(f"v_min_u32 {v(T)}, -2, {v(T)}")
    set_exec(0x5555555555555555)
    A(f"buffer_store_dword {v(T)}, {v(vH)}, {WS}, s{sH} offen sc1")
    A("s_mov_b64 exec, -1")
    if opt("hintsrc", 0) == 1:
        Lh3 = A.newlabel("Lfa")
        A(f"s_or_b32 s60, s{sKAP}, s{WV}")
        A(f"s_or_b32 s60, s60, s{sL}")
        A(f"s_cmp_lg_u32 s60, 0")
        A(f"s_cbranch_scc1 {Lh3}")
        A(f"v_mov_b32 {v(T+4)}, 0")
        A(f"s_mov_b32 s60, {X2_OFF + SEL_OFF + 128}")
        A("s_mov_b64 exec, 1")
        A(f"buffer_store_dword {v(T+4)}, {v(T+4)}, {WS}, s60 offen sc1")
        A("s_mov_b64 exec, -1")
        A.label(Lh3)
    stamp(6, "s27")
    A(f"s_add_u32 s{sH}, s{sH}, {2 * HREP}")
    A(f"s_add_u32 s{sRG}, s{sRG}, {NRR * RG_REP}")
    A(f"s_add_u32 s{sT}, s{sT}, {T_SZ}")
    A(f"s_add_u32 s{sL}, s{sL}, 1")
    A(f"s_cmp_lt_u32 s{sL}, 2")
    A("s_cbranch_scc1 L_FaLoop")
    A("s_endpgm")

def roleFb():
    A.label("L_roleFb")
    DW, HF, ACC, K, CODE, T = 16, 128, 184, 192, 216, 224
    RAW = 128
    vG, vLW, vLR, vW1, vHF, vPW, vPR, vE, vX2, vO = 2, 3, 4, 5, 6, 7, 8, 9, 10, 11
    sB, sRG, sT, sH, sL, sREP2, sES, sEC = 22, 23, 25, 26, 27, 29, 30, 31
    nonce_load(T + 8)
    if opt("prefc", 1) == 1:
        warm_weights(T + 16, C0, 29, PPART)
    srd(8, 50, 2211840)
    srd(12, 52, 2621440)
    A(f"s_sub_u32 s60, s2, {FB0 - 7}")
    A(f"s_and_b32 s61, s60, 7")
    A(f"s_lshr_b32 s60, s60, 3")
    fb_start("s61", f"s{sB}")
    A(f"s_add_u32 s{sB}, s{sB}, s60")
    A(f"s_cmp_eq_u32 s61, 7")
    A(f"s_cselect_b32 s60, 0, 1")
    A(f"s_sub_u32 s{sB}, s{sB}, s60")
    A("s_mov_b32 s58, 0x05040100")
    A("s_mov_b32 s59, 0x07060302")
    n, g = T, T + 1
    A(f"v_and_b32 {v(n)}, 15, v1")
    A(f"v_lshrrev_b32 {v(g)}, 4, v1")
    A(f"s_lshl_b32 s60, s{WV}, 5")
    A(f"v_lshl_add_u32 {v(vW1)}, {v(g)}, 3, s60")
    A(f"v_mul_u32_u24 {v(vW1)}, 1280, {v(vW1)}")
    A(f"s_lshl_b32 s61, s{sB}, 6")
    A(f"v_lshl_add_u32 {v(T+2)}, {v(n)}, 2, s61")
    A(f"v_add_u32 {v(vW1)}, {v(vW1)}, {v(T+2)}")
    A(f"v_mov_b32 v12, {v(n)}")
    A(f"v_mov_b32 v13, {v(g)}")
    n, g = 12, 13
    A("s_waitcnt vmcnt(0)")
    nonce_take(T + 8)
    A(f"s_and_b32 s{sREP2}, s2, {NREP - 1}")
    A(f"s_lshl_b32 s{sREP2}, s{sREP2}, {FSH + 4}")
    if opt("prefc", 1) == 2:
        warm_weights(T + 16, C0, 29, PPART)
    poll_flags(0, sREP2, T + 4, opt("fsleep", 2))
    if opt("coop", 4):
        warm_coop(T + 16)
    if opt("wide", 0):
        A(f"s_lshl_b32 s60, s{WV}, 5")
        A(f"v_lshrrev_b32 {v(T+20)}, 2, v1")
        A(f"v_add_u32 {v(T+20)}, s60, {v(T+20)}")
        A(f"v_mul_u32_u24 {v(T+20)}, 1280, {v(T+20)}")
        A(f"v_and_b32 {v(T+21)}, 3, v1")
        A(f"s_lshl_b32 s61, s{sB}, 6")
        A(f"v_lshl_add_u32 {v(T+21)}, {v(T+21)}, 4, s61")
        A(f"v_add_u32 {v(T+20)}, {v(T+20)}, {v(T+21)}")
        for k in range(14):
            for hh in range(2):
                A(f"v_add_u32 {v(T+21)}, {(128 * k + 16 * hh) * 1280}, {v(T+20)}")
                A(f"buffer_load_dwordx4 {v(T+24,4)}, {v(T+21)}, {SRD1}, 0 offen")
        if opt("wide", 0) == 2:
            A("s_waitcnt vmcnt(0)")
    load_weight_frags([(SRD1, lambda k: vW1, lambda k, q: (128 * k + q) * 1280, 14, DW, RAW, 13)])
    topk_setup(CODE, vG, vLW, vLR, 8192)
    A(f"v_and_b32 {v(vHF)}, 7, v1")
    A(f"v_lshlrev_b32 {v(vHF)}, 4, {v(vHF)}")
    A(f"v_lshl_add_u32 {v(vHF)}, {v(g)}, 7, {v(vHF)}")
    A(f"s_lshl_b32 s60, s{WV}, 9")
    A(f"v_add_u32 {v(vHF)}, s60, {v(vHF)}")
    A(f"s_mov_b32 s{sH}, {H_OFF}")
    A(f"s_lshl_b32 s60, s{WV}, 10")
    A(f"v_lshlrev_b32 {v(vPW)}, 9, {v(g)}")
    A(f"v_lshl_add_u32 {v(vPW)}, {v(n)}, 3, {v(vPW)}")
    A(f"v_add_u32 {v(vPW)}, s60, {v(vPW)}")
    A(f"v_lshlrev_b32 {v(vPR)}, 2, v0")
    A(f"s_cmp_ge_u32 s{sB}, 10")
    A(f"s_cselect_b32 s60, 1, 0")
    A(f"s_mul_i32 s61, s60, 10")
    A(f"s_sub_u32 s61, s{sB}, s61")
    A(f"s_lshl_b32 s62, s60, 9")
    A(f"s_lshl_b32 s63, s61, 1")
    A(f"s_add_u32 s62, s62, s63")
    A(f"s_lshl_b32 s64, s60, 7")
    A(f"s_add_u32 s64, s64, s63")
    A(f"s_add_u32 s64, s64, {1024 - 16}")
    A(f"s_cmp_lt_u32 s61, 8")
    A(f"s_cselect_b32 s{sEC}, s62, s64")
    A(f"s_cselect_b32 s{sES}, 16, 4")
    A(f"v_and_b32 {v(T+2)}, 31, v1")
    A(f"v_mul_u32_u24 {v(vE)}, s{sES}, {v(T+2)}")
    A(f"s_and_b32 s32, s{sEC}, 2")
    A(f"s_lshl_b32 s32, s32, 3")
    A(f"s_sub_u32 s32, 16, s32")
    A(f"s_and_b32 s{sEC}, s{sEC}, -4")
    A(f"v_add_u32 {v(vE)}, s{sEC}, {v(vE)}")

    A(f"s_lshl_b32 s60, s{sB}, 2")
    A(f"s_add_u32 s60, s60, s{WV}")
    A(f"s_lshl_b32 s60, s60, 8")
    A(f"v_lshl_add_u32 {v(vX2)}, {v(T+2)}, 3, s60")
    A(f"v_lshrrev_b32 {v(T+3)}, 5, v1")
    A(f"v_lshl_add_u32 {v(vX2)}, {v(T+3)}, 2, {v(vX2)}")
    A(f"s_lshl_b32 s60, s{sB}, 6")
    A(f"v_lshl_add_u32 {v(vO)}, {v(T+2)}, 1, s60")
    A(f"s_and_b32 s{sRG}, s2, {NRR - 1}")
    A(f"s_lshl_b32 s{sRG}, s{sRG}, {RSH + 8}")
    A(f"s_add_u32 s{sRG}, s{sRG}, {RG_OFF}")
    A(f"s_mov_b32 s{sT}, {T_OFF}")
    A(f"s_mov_b32 s28, {T_REC}")
    A(f"s_mov_b32 s{sL}, 0")
    touch(T + 2, T_OFF, 2 * T_SZ)
    stamp(0, dbg=(10, FB0))
    poll_flags(1, sREP2, T, 8)
    prio(3)
    A.label("L_FbLoop")
    c = topk(K, CODE, vG, vLW, vLR, sRG, T, None)
    stamp(4, "s27")
    for j in range(8):
        A(f"v_readfirstlane_b32 s{80+j}, {v(c[j])}")
    A("s_mov_b32 s70, s80")
    A("s_mov_b32 s71, s81")
    for w in range(1, 4):
        A(f"s_cmp_eq_u32 s{WV}, {w}")
        A(f"s_cselect_b32 s70, s{80+2*w}, s70")
        A(f"s_cselect_b32 s71, s{81+2*w}, s71")
    KEY, ROW, XV, XNV, SG, ST = T, T + 1, T + 2, T + 3, T + 4, T + 8
    Ls = A.newlabel("Lfb")
    A(f"s_or_b32 s60, s{sB}, s{WV}")
    A(f"s_cmp_lg_u32 s60, 0")
    A(f"s_cbranch_scc1 {Ls}")
    A(f"v_mov_b32 {v(T+6)}, s80")
    for j in range(1, 8):
        A(f"v_writelane_b32 {v(T+6)}, s{80+j}, {j}")
    A(f"v_and_b32 {v(T+6)}, 0x7ff, {v(T+6)}")
    A(f"v_sub_u32 {v(T+6)}, 2047, {v(T+6)}")
    A(f"v_lshlrev_b32 {v(T+7)}, 2, v1")
    A(f"s_lshl_b32 s60, s{sL}, 8")
    A(f"s_add_u32 s60, s60, {X2_OFF + SEL_OFF}")
    A("s_mov_b64 exec, 0xff")
    A(f"buffer_store_dword {v(T+6)}, {v(T+7)}, {WS}, s60 offen sc1")
    A("s_mov_b64 exec, -1")
    A.label(Ls)
    A(f"v_mov_b32 {v(KEY)}, s71")
    A(f"v_mov_b32 {v(ROW)}, s70")
    A(f"v_cmp_gt_u32 vcc, 32, v1")
    A(f"v_cndmask_b32 {v(KEY)}, {v(KEY)}, {v(ROW)}, vcc")
    A(f"v_and_b32 {v(ROW)}, 0x7ff, {v(KEY)}")
    A(f"v_sub_u32 {v(ROW)}, 2047, {v(ROW)}")
    A(f"v_mad_u32_u24 {v(T+5)}, {v(ROW)}, s28, {v(vE)}")
    prio(0)
    loop, done = A.newlabel("Lst2"), A.newlabel("Lst2d")
    A(f"v_mul_u32_u24 {v(T+6)}, s28, {v(ROW)}")
    A(f"s_add_u32 s61, s{NONCE}, 6")
    A(f"s_add_u32 s61, s61, s{sL}")
    A(f"s_mov_b32 s62, {SPIN}")
    A.label(loop)
    A(f"buffer_load_dwordx4 {v(ST,4)}, {v(T+6)}, {WS}, s{sT} offen offset:2560 sc1")
    A("s_waitcnt vmcnt(0)")
    A(f"v_cmp_ne_u32 vcc, s61, {v(ST+2)}")
    A(f"s_cbranch_vccz {done}")
    spin_tail(loop, 62, 2)
    A.label(done)
    A(f"buffer_load_dword {v(XNV)}, {v(T+5)}, {WS}, s{sT} offen sc1")
    A(f"buffer_load_dword {v(XV)}, {v(T+5)}, {WS}, s{sT} offen offset:1280 sc1")
    A(f"v_ashrrev_i32 {v(SG)}, 31, {v(KEY)}")
    A(f"v_not_b32 {v(SG)}, {v(SG)}")
    A(f"v_or_b32 {v(SG)}, 0x80000000, {v(SG)}")
    A(f"v_xor_b32 {v(SG)}, {v(SG)}, {v(KEY)}")
    A(f"v_and_b32 {v(SG)}, 0xffff0000, {v(SG)}")
    A(f"v_mul_f32 {v(SG)}, {f32(-1.4426950408889634)}, {v(SG)}")
    A(f"v_exp_f32 {v(SG)}, {v(SG)}")
    A(f"v_add_f32 {v(SG)}, 1.0, {v(SG)}")
    A(f"v_rcp_f32 {v(SG)}, {v(SG)}")
    A(f"v_cvt_pk_bf16_f32 {v(SG)}, {v(SG)}, {v(SG)}")
    A(f"v_and_b32 {v(SG)}, 0xffff0000, {v(SG)}")
    stamp(2, "s27")
    def rb(r):
        A(f"v_cvt_pk_bf16_f32 {v(r)}, {v(r)}, {v(r)}")
        A(f"v_and_b32 {v(r)}, 0xffff0000, {v(r)}")
    Yv = T + 12
    XO = T + 16
    if opt("hgate", 1):
        loop, done = A.newlabel("Lh"), A.newlabel("Lhd")
        A(f"s_mov_b32 s62, {SPIN}")
        set_exec(0x00FF00FF00FF00FF)
        A.label(loop)
        A(f"buffer_load_dwordx4 {v(HF,4)}, {v(vHF)}, {WS}, s{sH} offen sc1")
        A("s_waitcnt vmcnt(0)")
        any_sentinel(range(HF, HF + 4), T + 6, done)
        spin_tail(loop, 62, opt("hgsleep", 1))
        A.label(done)
    loop, done = A.newlabel("Lh"), A.newlabel("Lhd")
    A(f"s_cmp_lt_u32 s{WV}, 2")
    A(f"s_cselect_b32 s63, 2048, 0")
    A(f"s_add_u32 s63, s63, {12 * 2048}")
    A(f"s_add_u32 s63, s63, s{sH}")
    A(f"s_mov_b32 s62, {SPIN}")
    set_exec(0x00FF00FF00FF00FF)
    A.label(loop)
    for k in range(14):
        if k == 13:
            A(f"buffer_load_dwordx4 {v(HF+4*k,4)}, {v(vHF)}, {WS}, s63 offen sc1")
        else:
            if k % 2 == 0:
                A(f"s_add_u32 s60, s{sH}, {2048 * k}")
            A(f"buffer_load_dwordx4 {v(HF+4*k,4)}, {v(vHF)}, {WS}, s60 offen offset:{2048*(k%2)} sc1")
    CK = T + 6
    HP = opt("hprog", 1)
    def mf(k):
        for par in range(2):
            cc = "0" if k == 0 else v(ACC + 4 * par, 4)
            A(f"v_mfma_f32_16x16x32_bf16 {v(ACC+4*par,4)}, {v(HF+4*k,4)}, {v(DW+8*k+4*par,4)}, {cc}")
    if HP:
        A("s_mov_b64 exec, -1")
        for k in range(14):
            A(f"s_waitcnt vmcnt({13-k})")
            mf(k)
            if k == 0:
                A(f"v_max3_u32 {v(CK)}, {v(HF)}, {v(HF+1)}, {v(HF+2)}")
                A(f"v_max_u32 {v(CK)}, {v(CK)}, {v(HF+3)}")
            else:
                A(f"v_max3_u32 {v(CK)}, {v(CK)}, {v(HF+4*k)}, {v(HF+4*k+1)}")
                A(f"v_max3_u32 {v(CK)}, {v(CK)}, {v(HF+4*k+2)}, {v(HF+4*k+3)}")
        set_exec(0x00FF00FF00FF00FF)
        A(f"v_cmp_eq_u32 vcc, -1, {v(CK)}")
        A(f"s_cbranch_vccz {done}")
    else:
        A("s_waitcnt vmcnt(0)")
        any_sentinel(list(range(HF, HF + 56)), CK, done)
    spin_tail(loop, 62, opt("hsleep", 1))
    A.label(done)
    A("s_mov_b64 exec, -1")
    prio(3)
    stamp(5, "s27")
    Lh2 = A.newlabel("Lfb")
    A(f"s_or_b32 s60, s{sB}, s{WV}")
    A(f"s_or_b32 s60, s60, s{sL}")
    A(f"s_cmp_lg_u32 s60, {0 if opt('hintsrc', 0) == 0 else -1}")
    A(f"s_cbranch_scc1 {Lh2}")
    A(f"v_mov_b32 {v(CK)}, 0")
    A(f"s_mov_b32 s60, {X2_OFF + SEL_OFF + 128}")
    A("s_mov_b64 exec, 1")
    A(f"buffer_store_dword {v(CK)}, {v(CK)}, {WS}, s60 offen sc1")
    A.label(Lh2)
    A("s_mov_b64 exec, -1")
    if not HP:
        for k in range(14):
            mf(k)
    for r in (XNV, XV):
        A(f"v_lshlrev_b32 {v(r)}, s32, {v(r)}")
        A(f"v_and_b32 {v(r)}, 0xffff0000, {v(r)}")
    A(f"v_add_f32 {v(XO)}, {v(XV)}, {v(XNV)}")
    rb(XO)
    if EXACT:
        A(f"v_sub_f32 {v(XO)}, {v(XO)}, {v(ST)}")
        rb(XO)
        A(f"v_mul_f32 {v(XO)}, {v(XO)}, {v(ST+1)}")
        rb(XO)
    else:
        A(f"v_mul_f32 {v(ST)}, {v(ST)}, {v(ST+1)}")
        A(f"v_fma_f32 {v(XO)}, {v(XO)}, {v(ST+1)}, -{v(ST)}")
    set_exec(0xffffffff)
    for r in range(4):
        A(f"ds_write2_b32 {v(vPW)}, {v(ACC+r)}, {v(ACC+4+r)} offset0:{32*r} offset1:{32*r+1}")
    A("s_mov_b64 exec, -1")
    A("s_waitcnt lgkmcnt(0)")
    A("s_barrier")
    A(f"ds_read2st64_b32 {v(Yv,2)}, {v(vPR)} offset0:0 offset1:4")
    A(f"ds_read2st64_b32 {v(Yv+2,2)}, {v(vPR)} offset0:8 offset1:12")
    A("s_waitcnt lgkmcnt(0)")
    A(f"v_pk_add_f32 {v(Yv,2)}, {v(Yv,2)}, {v(Yv+2,2)}")
    A(f"v_add_f32 {v(Yv)}, {v(Yv)}, {v(Yv+1)}")
    rb(Yv)
    A(f"v_mul_f32 {v(Yv)}, {v(Yv)}, {v(SG)}")
    rb(Yv)
    A(f"v_add_f32 {v(Yv)}, {v(Yv)}, {v(XNV)}")
    rb(Yv)
    A(f"v_add_f32 {v(Yv)}, {v(Yv)}, {v(XV)}")
    L2 = A.newlabel("Lfb")
    A(f"s_cmp_lg_u32 s{sL}, 0")
    A(f"s_cbranch_scc1 {L2}")
    A(f"v_permlane32_swap_b32 {v(Yv)}, {v(XO)}")
    A(f"v_cvt_pk_bf16_f32 {v(Yv+1)}, {v(Yv)}, {v(XO)}")
    A(f"v_cvt_pk_f16_f32 {v(Yv)}, {v(Yv)}, {v(XO)}")
    A(f"v_cmp_gt_u32 vcc, 32, v1")
    A(f"v_cndmask_b32 {v(Yv)}, {v(Yv)}, {v(Yv+1)}, vcc")
    A(f"v_min_u32 {v(Yv)}, -2, {v(Yv)}")
    for r in range(NRX):
        A(f"s_mov_b32 s60, {X2_OFF + r * X2REP}")
        A(f"buffer_store_dword {v(Yv)}, {v(vX2)}, {WS}, s60 offen sc1")
    stamp(6, "s27", dbg=(12, FB0))
    A(f"s_add_u32 s{sH}, s{sH}, {2 * HREP}")
    A(f"s_add_u32 s{sRG}, s{sRG}, {NRR * RG_REP}")
    A(f"s_add_u32 s{sT}, s{sT}, {T_SZ}")
    A(f"s_mov_b32 s{sL}, 1")
    A("s_branch L_FbLoop")
    A.label(L2)
    A(f"v_cvt_pk_bf16_f32 {v(Yv)}, {v(Yv)}, {v(Yv)}")
    A(f"s_movk_i32 s60, 1280")
    A(f"v_mad_u32_u24 {v(Yv+1)}, {v(ROW)}, s60, {v(vO)}")
    A(f"buffer_store_short {v(Yv)}, {v(Yv+1)}, {SRD2}, 0 offen sc1")
    stamp(7, "s27", dbg=(15, FB0))
    A(f"s_or_b32 s60, s{sB}, s{WV}")
    A(f"s_cmp_lg_u32 s60, 0")
    A("s_cbranch_scc1 L_end")
    A(f"v_mov_b32 {v(T)}, s{NONCE}")
    A(f"v_mov_b32 {v(T+1)}, 0")
    A("s_mov_b64 exec, 1")
    A(f"buffer_store_dword {v(T)}, {v(T+1)}, {WS}, 0 offen sc1")
    A.label("L_end")
    A("s_endpgm")

hdr = open("cdna_kernels/%s.s.ref" % NAME).read().split("\n")
head = [l for l in hdr if l.startswith(";") and "@launch" not in l and "Override" not in l and "grid=ceil" not in l]
out = "\n".join(head) + "\n"
out += f"; @launch grid=({NWG},1,1) block=(256,1,1) lds={LDS_BYTES}\n"
out += """
; ---------------------------------------------------------------------------------------------------------
; One persistent launch, 491 co-resident workgroups (2 per CU), four roles chosen by workgroup id:
;   R  (0..255)    8 token rows each: layer norms, residuals, router scores, DFT along the hidden axis
;   C  (256..416)  2 spectrum columns each: DFT along the sequence axis
;   Fa (417..470)  top-8 selection + gate/up projection + SwiGLU for a 32-column slice
;   Fb (471..490)  top-8 selection + down projection + scatter for a 32-column slice
; The Fourier sublayer Real(DFT_seq(DFT_hid(x))) is evaluated with the exact Cooley-Tukey factorisation of the
; two (constant) DFT matrices, 640 = 20 x 32 and 2048 = 32 x 64, as small MFMA products with f16 factors that are
; generated with v_cos/v_sin; pairs of real rows are packed into one complex row and unpacked inside the
; column factor.  The layer-1 expert update of the 8 routed rows enters the second Fourier sublayer as an exact
; rank-8 correction (linearity), so the column pass of layer 2 overlaps the expert MLP.
; Hand-offs between workgroups go through d_ws with write-through (sc1) stores and sc1 loads.  Flags carry a
; per-launch tag derived from the word at d_ws+0; bulk buffers are pre-filled with all-ones by their producer and
; re-read by consumers until every word has landed.  All waits are bounded.
; Generated by the author's own script (hand-written instruction sequences).
; ---------------------------------------------------------------------------------------------------------
""".lstrip("\n")
out += '.amdgcn_target "amdgcn-amd-amdhsa--gfx950"\n.text\n'
out += f".globl {NAME}_kernel\n.p2align 8\n.type {NAME}_kernel,@function\n{NAME}_kernel:\n"
prologue(); roleR(); roleC(); roleFa(); roleFb()
out += A.text()
out += "L_code_end:\n"
out = out.replace(".text\n", ".text\n.set CODE_LINES, 256\n.set CODE_LINES2, 100\n", 1)
out += f""".section .rodata,"a"
.p2align 6
.amdhsa_kernel {NAME}_kernel
  .amdhsa_next_free_vgpr 256
  .amdhsa_next_free_sgpr 102
  .amdhsa_accum_offset 256
  .amdhsa_group_segment_fixed_size 0
  .amdhsa_kernarg_size 104
  .amdhsa_user_sgpr_count 2
  .amdhsa_user_sgpr_kernarg_segment_ptr 1
  .amdhsa_system_sgpr_workgroup_id_x 1
  .amdhsa_float_denorm_mode_32 3
.end_amdhsa_kernel
"""
import subprocess, tempfile, os, re
with tempfile.TemporaryDirectory() as td:
    open(td + "/a.s", "w").write(out)
    subprocess.check_call(["clang", "-x", "assembler", "-target", "amdgcn-amd-amdhsa", "-mcpu=gfx950", "-c", td + "/a.s", "-o", td + "/a.o"])
    hd = subprocess.check_output(["llvm-objdump", "-h", td + "/a.o"]).decode()
    size = int(re.search(r"\.text\s+([0-9a-f]+)", hd).group(1), 16)
out = out.replace(".set CODE_LINES, 256", ".set CODE_LINES, %d" % min(256, size // 128))
out = out.replace(".set CODE_LINES2, 100", ".set CODE_LINES2, %d" % max(0, size // 128 - 256))
print("code bytes:", size, file=sys.stderr)
dst = [a for a in sys.argv[1:] if not a.startswith("--")]
open(dst[0] if dst else "cdna_kernels/%s.s" % NAME, "w").write(out)
print("instructions:", A.ninstr, file=sys.stderr)
```

```python
import sys, struct
from asmb import Asm

NAME = "interleave_layers__spectral_fnet__moe_arch_mod__prompt"
def opt(name, default):
    for a in sys.argv:
        if a.startswith("--%s=" % name):
            return int(a.split("=")[1])
    return default
STAMPS = "--stamps" in sys.argv
DSTAMPS = "--dstamps" in sys.argv
MSTAMPS = "--mstamps" in sys.argv
EXACT = opt("exact", 0)
EXACT1 = opt("exact1", 0)
GATE = opt("gate", 1)
NR, NC, NFA, NFB = 256, 161, 54, 20
C0, FA0, FB0, NWG = 256, 417, 471, 491
FSH = opt("fsh", 6); FREP = 16 << FSH
FL_OFF = 0x1000; NREP = opt("nrep", 16)
RESET_OFF = 0x70000
H_OFF = 0x70000; HREP = 0x7000
X2_OFF = 0x90000; X2REP = 0x5200; NRX = opt("nrx", 1); SEL_OFF = 0x5000
RSH = opt("rsh", 6)
RG_OFF = 0xA0000; NRR = opt("nrr", 8); RG_REP = 256 << RSH
CNT_OFF = 0xF8000
WROW = 10368
W_OFF = 0x100000; W_SZ = 0x290000
Y_OFF = 0x640000; Y_SZ = 0x160000; YCOL = opt('ycol', 4224); YM_OFF = 322 * YCOL
T_OFF = 0x900000; T_REC = 2688; T_SZ = 2048 * T_REC
ST_OFF = 0x1400000
WS_BYTES = 0x1500000
NONCE_C = 0x9E3779B9
SPIN = 40000
LDS_BYTES = 53248
assert FL_OFF + 4 * NREP * FREP <= 0x70000 and RG_OFF + 2 * NRR * RG_REP <= 0xF0000
PSLEEP = opt("psleep", 0)
EARLY_R = opt("earlyr", 1)
EARLY_C = opt("earlyc", 2)
PRIO = opt("prio", 1)
DRAIN2 = opt("drain2", 0)
AWR = opt("awr", 3)
PPART = opt("ppart", 3)
DRAIN0 = opt("drain0", 0)
def prio(n):
    if PRIO:
        A(f"s_setprio {n}")

def f32(x):
    return "0x%08x" % struct.unpack("<I", struct.pack("<f", x))[0]
def v(i, n=1):
    return "v%d" % i if n == 1 else "v[%d:%d]" % (i, i + n - 1)
def s(i, n=1):
    return "s%d" % i if n == 1 else "s[%d:%d]" % (i, i + n - 1)

A = Asm()
WS = "s[4:7]"; SRD1 = "s[8:11]"; SRD2 = "s[12:15]"; SRD3 = "s[16:19]"
NONCE = 20; WV = 21

def srd(base, ptr, nbytes):
    A(f"s_mov_b32 s{base}, s{ptr}")
    A(f"s_and_b32 s{base+1}, s{ptr+1}, 0xffff")
    A(f"s_mov_b32 s{base+2}, {nbytes}")
    A(f"s_mov_b32 s{base+3}, 0x00020000")

def set_exec(m):
    A(f"s_mov_b32 exec_lo, 0x{m & 0xffffffff:x}")
    A(f"s_mov_b32 exec_hi, 0x{m >> 32:x}")

def stamp(idx, lay=None, dbg=None):
    if MSTAMPS and dbg is not None:
        L = A.newlabel("Lst")
        A(f"s_mov_b32 s97, s{WV}")
        if len(dbg) > 2:
            A(f"s_sub_u32 s96, {lay}, {dbg[2]}")
            A(f"s_or_b32 s97, s97, s96")
        A(f"s_cmp_lg_u32 s97, 0")
        A(f"s_cbranch_scc1 {L}")
        A("s_memrealtime s[98:99]")
        A("s_waitcnt lgkmcnt(0)")
        A("s_and_b32 s98, s98, 0x7fffffff")
        A("v_mov_b32 v254, s98")
        A("v_mov_b32 v253, 0")
        A("s_mov_b64 exec, 1")
        if dbg[0] == 0:
            A(f"buffer_atomic_umax v254, v253, s[92:95], 0 offen offset:4")
            A("v_not_b32 v254, v254")
        if dbg[0] != 1:
            A(f"buffer_atomic_umax v254, v253, s[92:95], 0 offen offset:{dbg[0] * 4}")
        A("s_mov_b64 exec, -1")
        A.label(L)
    if DSTAMPS and dbg is not None:
        L = A.newlabel("Lst")
        A(f"s_lshl_b32 s97, s{WV}, 16")
        A(f"s_or_b32 s97, s97, s2")
        if len(dbg) > 2:
            A(f"s_lshl_b32 s96, {lay}, 20")
            A(f"s_or_b32 s97, s97, s96")
        A(f"s_cmp_lg_u32 s97, {dbg[1] + ((dbg[2] << 20) if len(dbg) > 2 else 0)}")
        A(f"s_cbranch_scc1 {L}")
        A("s_memrealtime s[98:99]")
        A("s_waitcnt lgkmcnt(0)")
        A("v_mov_b32 v254, s98")
        A("v_mov_b32 v253, 0")
        A("s_mov_b64 exec, 1")
        A(f"buffer_store_dword v254, v253, s[92:95], 0 offen offset:{dbg[0] * 4}")
        A("s_mov_b64 exec, -1")
        A.label(L)
    if not STAMPS:
        return
    L = A.newlabel("Lst")
    A(f"s_cmp_lg_u32 s{WV}, 0")
    A(f"s_cbranch_scc1 {L}")
    A("s_memrealtime s[98:99]")
    A("s_memtime s[100:101]")
    A("s_waitcnt lgkmcnt(0)")
    A("v_mov_b32 v254, s98")
    A("v_mov_b32 v255, s100")
    A("v_mov_b32 v253, 0")
    A("s_lshl_b32 s97, s2, 9")
    A(f"s_add_u32 s97, s97, {ST_OFF + idx * 8}")
    if lay is not None:
        A(f"s_lshl_b32 s96, {lay}, 6")
        A("s_add_u32 s97, s97, s96")
    A("s_mov_b64 exec, 1")
    A(f"buffer_store_dwordx2 v[254:255], v253, {WS}, s97 offen")
    A("s_mov_b64 exec, -1")
    A.label(L)

def spin_tail(loop, cnt, sleep=1):
    if sleep:
        A(f"s_sleep {sleep}")
    A(f"s_sub_u32 s{cnt}, s{cnt}, 1")
    A(f"s_cmp_lg_u32 s{cnt}, 0")
    A(f"s_cbranch_scc1 {loop}")

def any_sentinel(regs, t, done):
    regs = list(regs)
    A(f"v_max3_u32 {v(t)}, {v(regs[0])}, {v(regs[1])}, {v(regs[2])}")
    k = 3
    while k + 1 < len(regs):
        A(f"v_max3_u32 {v(t)}, {v(t)}, {v(regs[k])}, {v(regs[k+1])}")
        k += 2
    if k < len(regs):
        A(f"v_max_u32 {v(t)}, {v(t)}, {v(regs[k])}")
    A(f"v_cmp_eq_u32 vcc, -1, {v(t)}")
    A(f"s_cbranch_vccz {done}")

def poll_flags(k, srep, t, sleep=None):
    loop, done = A.newlabel("Lpoll"), A.newlabel("Lpolld")
    A(f"s_cmp_lg_u32 s{WV}, 0")
    A(f"s_cbranch_scc1 {done}")
    if isinstance(k, int):
        A(f"s_add_u32 s60, s{srep}, {FL_OFF + k * NREP * FREP}")
    else:
        A(f"s_mul_i32 s60, {k}, {NREP * FREP}")
        A(f"s_add_u32 s60, s60, s{srep}")
        A(f"s_add_u32 s60, s60, {FL_OFF}")
    A(f"s_add_u32 s61, s{NONCE}, {k}")
    A(f"v_and_b32 {v(t+1)}, 15, v1")
    A(f"v_lshlrev_b32 {v(t+1)}, {FSH}, {v(t+1)}")
    A(f"s_mov_b32 s62, {SPIN}")
    A.label(loop)
    A(f"buffer_load_dword {v(t)}, {v(t+1)}, {WS}, s60 offen sc1")
    A("s_waitcnt vmcnt(0)")
    A(f"v_cmp_ne_u32 vcc, s61, {v(t)}")
    A(f"s_cbranch_vccz {done}")
    spin_tail(loop, 62, PSLEEP if sleep is None else sleep)
    A.label(done)
    A("s_barrier")

def cnt_init(sshard, ks, t):
    for k in ks:
        A(f"s_add_u32 s60, s{sshard}, {16 * k}")
        A(f"s_lshl_b32 s60, s60, 7")
        A(f"s_add_u32 s60, s60, {CNT_OFF}")
        A(f"s_add_u32 s61, s{NONCE}, {k}")
        A(f"v_mov_b32 {v(t)}, 0")
        A(f"v_mov_b32 {v(t+1)}, s61")
        A(f"v_mov_b32 {v(t+2)}, 0")
        A("s_mov_b64 exec, 1")
        A(f"buffer_store_dwordx2 {v(t,2)}, {v(t+2)}, {WS}, s60 offen sc1")
        A("s_mov_b64 exec, -1")

def arrive_issue(k, sshard, t, aw=0):
    L = A.newlabel("Larr")
    A(f"s_cmp_lg_u32 s{WV}, {aw}")
    A(f"s_cbranch_scc1 {L}")
    if isinstance(k, int):
        A(f"s_add_u32 s66, s{sshard}, {16 * k}")
    else:
        A(f"s_lshl_b32 s66, {k}, 4")
        A(f"s_add_u32 s66, s66, s{sshard}")
    A(f"s_lshl_b32 s66, s66, 7")
    A(f"s_add_u32 s66, s66, {CNT_OFF}")
    A(f"v_mov_b32 {v(t)}, 1")
    A(f"v_mov_b32 {v(t+1)}, 0")
    A(f"v_mov_b32 {v(t+2)}, 0")
    A("s_mov_b64 exec, 1")
    A(f"buffer_atomic_add_x2 {v(t,2)}, {v(t+2)}, {WS}, s66 offen sc0")
    A("s_mov_b64 exec, -1")
    A.label(L)

def arrive_finish(k, sshard, slast, t, younger, aw=0, mark=None):
    L, again, chk = A.newlabel("Lsig"), A.newlabel("Lsiga"), A.newlabel("Lsigc")
    A(f"s_cmp_lg_u32 s{WV}, {aw}")
    A(f"s_cbranch_scc1 {L}")
    if isinstance(k, int):
        A(f"s_lshl_b32 s67, s{sshard}, {FSH}")
        A(f"s_add_u32 s67, s67, {FL_OFF + k * NREP * FREP}")
    else:
        A(f"s_mul_i32 s67, {k}, {NREP * FREP}")
        A(f"s_lshl_b32 s68, s{sshard}, {FSH}")
        A(f"s_add_u32 s67, s67, s68")
        A(f"s_add_u32 s67, s67, {FL_OFF}")
    A(f"s_add_u32 s68, s{NONCE}, {k}")
    A(f"v_lshlrev_b32 {v(t+3)}, {FSH + 4}, v1")
    A(f"v_mov_b32 {v(t+4)}, s68")
    A(f"s_mov_b32 s69, {SPIN}")
    if isinstance(younger, tuple):
        A(f"s_waitcnt vmcnt({younger[2]})")
        A(f"s_cmp_eq_u32 {younger[0]}, {younger[1]}")
        A(f"s_cbranch_scc1 {chk}")
        A("s_waitcnt vmcnt(0)")
    else:
        A(f"s_waitcnt vmcnt({younger})")
    A(f"s_branch {chk}")
    A.label(again)
    A(f"s_sub_u32 s69, s69, 1")
    A(f"s_cmp_eq_u32 s69, 0")
    A(f"s_cbranch_scc1 {L}")
    A(f"v_mov_b32 {v(t)}, 1")
    A(f"v_mov_b32 {v(t+1)}, 0")
    A(f"v_mov_b32 {v(t+2)}, 0")
    A("s_mov_b64 exec, 1")
    A(f"buffer_atomic_add_x2 {v(t,2)}, {v(t+2)}, {WS}, s66 offen sc0")
    A("s_mov_b64 exec, -1")
    A("s_waitcnt vmcnt(0)")
    A.label(chk)
    A(f"v_readfirstlane_b32 s65, {v(t+1)}")
    A(f"v_readfirstlane_b32 s64, {v(t)}")
    A(f"s_cmp_lg_u32 s65, s68")
    A(f"s_cbranch_scc1 {again}")
    A(f"s_cmp_lg_u32 s64, {slast}")
    A(f"s_cbranch_scc1 {L}")
    set_exec((1 << NREP) - 1)
    A(f"buffer_store_dword {v(t+4)}, {v(t+3)}, {WS}, s67 offen sc1")
    A("s_mov_b64 exec, -1")
    if mark:
        A(f"s_mov_b32 {mark}, 1")
    A.label(L)

def rnd_pair(a, b, t):
    A(f"v_cvt_pk_bf16_f32 {v(t)}, {v(a)}, {v(b)}")
    A(f"v_lshlrev_b32 {v(a)}, 16, {v(t)}")
    A(f"v_and_b32 {v(b)}, 0xffff0000, {v(t)}")

def sincos(arg, c, sn):
    A(f"v_cos_f32 {v(c)}, {v(arg)}")
    A(f"v_sin_f32 {v(sn)}, {v(arg)}")

def prefetch_weights(t):
    if not opt("pref", 0):
        return
    srd(84, 46, 2211840)
    A(f"v_lshlrev_b32 {v(t)}, 4, v0")
    A(f"s_sub_u32 s60, s2, {C0}")
    for r in range(7):
        Ls, Ld = A.newlabel("Lpf"), A.newlabel("Lpf")
        A(f"s_add_u32 s61, s60, {235 * r}")
        A(f"s_cmp_ge_u32 s61, 1620")
        A(f"s_cbranch_scc1 {Ld}")
        A(f"s_mov_b32 s84, s46")
        A(f"s_and_b32 s85, s47, 0xffff")
        for (lim, p) in ((540, 48), (540, 50)):
            A(f"s_cmp_lt_u32 s61, {lim}")
            A(f"s_cbranch_scc1 {Ls}")
            A(f"s_sub_u32 s61, s61, {lim}")
            A(f"s_mov_b32 s84, s{p}")
            A(f"s_and_b32 s85, s{p+1}, 0xffff")
        A.label(Ls)
        A(f"s_lshl_b32 s61, s61, 12")
        A(f"buffer_load_dwordx4 {v(t+4,4)}, {v(t)}, s[84:87], s61 offen")
        A.label(Ld)

def fb_start(x, d):
    A(f"s_mul_i32 {d}, {x}, 3")
    A(f"s_lshl_b32 s62, {x}, 1")
    A(f"s_add_u32 s62, s62, 3")
    A(f"s_min_u32 {d}, {d}, s62")

def nloads(part):
    return bin(part).count("1")

def warm_weights(t, first, nshare, part):
    ra, rb = -(-640 // nshare), -(-1728 // nshare)
    A("s_and_b32 s61, s2, 7")
    A(f"s_sub_u32 s60, s2, {first}")
    A("s_lshr_b32 s60, s60, 3")
    srd(84, 46, 2211840)
    if part & 5:
        A(f"v_lshrrev_b32 {v(t)}, 2, v0")
        A(f"v_and_b32 {v(t+1)}, 3, v0")
        A(f"v_min_u32 {v(t)}, {ra - 1}, {v(t)}")
        A(f"s_mul_i32 s64, s60, {ra}")
        A(f"v_add_u32 {v(t)}, s64, {v(t)}")
        A("s_mul_i32 s63, s61, 7")
        A("s_sub_u32 s63, s63, 1")
        A("s_max_i32 s63, s63, 0")
        A("s_lshl_b32 s63, s63, 6")
        A("s_and_b32 s63, s63, -128")
        A(f"v_lshl_add_u32 {v(t+1)}, {v(t+1)}, 7, s63")
        A(f"s_movk_i32 s64, 3456")
        A(f"v_mad_u32_u24 {v(t+1)}, {v(t)}, s64, {v(t+1)}")
        if part & 1:
            A(f"buffer_load_dword {v(t+3)}, {v(t+1)}, s[84:87], 0 offen")
        if part & 4:
            A("s_mov_b32 s84, s48")
            A("s_and_b32 s85, s49, 0xffff")
            A(f"buffer_load_dword {v(t+3)}, {v(t+1)}, s[84:87], 0 offen")
    if part & 2:
        A(f"v_lshrrev_b32 {v(t)}, 1, v0")
        A(f"v_and_b32 {v(t+1)}, 1, v0")
        A(f"v_min_u32 {v(t)}, {rb - 1}, {v(t)}")
        A(f"s_mul_i32 s64, s60, {rb}")
        A(f"v_add_u32 {v(t)}, s64, {v(t)}")
        fb_start("s61", "s63")
        A("s_lshl_b32 s63, s63, 6")
        A("s_and_b32 s63, s63, -128")
        A(f"v_lshl_add_u32 {v(t+1)}, {v(t+1)}, 7, s63")
        A(f"s_movk_i32 s64, 1280")
        A(f"v_mad_u32_u24 {v(t+1)}, {v(t)}, s64, {v(t+1)}")
        A("s_mov_b32 s84, s50")
        A("s_and_b32 s85, s51, 0xffff")
        A(f"buffer_load_dword {v(t+3)}, {v(t+1)}, s[84:87], 0 offen")

def warm_coop(t):
    A("s_and_b32 s61, s2, 7")
    A(f"s_sub_u32 s60, s2, {FA0 - 1}")
    A("s_lshr_b32 s60, s60, 3")
    A("s_cmp_eq_u32 s61, 0")
    A("s_cselect_b32 s62, 1, 0")
    A("s_sub_u32 s60, s60, s62")
    A("s_min_u32 s60, s60, 8")
    A("s_mul_i32 s63, s61, 7")
    A("s_sub_u32 s63, s63, 1")
    A("s_max_i32 s63, s63, 0")
    A("s_lshl_b32 s63, s63, 6")
    A("s_and_b32 s63, s63, -128")
    A(f"v_and_b32 {v(t+1)}, 3, v0")
    A(f"v_lshl_add_u32 {v(t+1)}, {v(t+1)}, 7, s63")
    A(f"s_mul_i32 s64, s60, 72")
    A(f"s_movk_i32 s65, 3456")
    srd(84, 46, 2211840)
    srd(88, 48, 2211840)
    for p in range(2 if opt("coop", 4) & 5 else 0):
        A(f"v_lshrrev_b32 {v(t)}, 2, v0")
        A(f"v_add_u32 {v(t)}, {64 * p}, {v(t)}")
        A(f"v_min_u32 {v(t)}, 71, {v(t)}")
        A(f"v_add_u32 {v(t)}, s64, {v(t)}")
        A(f"v_mad_u32_u24 {v(t)}, {v(t)}, s65, {v(t+1)}")
        if p == 1:
            set_exec(0xffffffff)
        if opt("coop", 4) & 1:
            A(f"buffer_load_dword {v(t+3)}, {v(t)}, s[84:87], 0 offen")
        if opt("coop", 4) & 4:
            A(f"buffer_load_dword {v(t+3)}, {v(t)}, s[88:91], 0 offen")
    A("s_mov_b64 exec, -1")
    fb_start("s61", "s63")
    A("s_lshl_b32 s63, s63, 6")
    A("s_and_b32 s63, s63, -128")
    A(f"v_and_b32 {v(t+1)}, 1, v0")
    A(f"v_lshl_add_u32 {v(t+1)}, {v(t+1)}, 7, s63")
    A(f"s_mul_i32 s64, s60, 192")
    A(f"s_movk_i32 s65, 1280")
    A("s_mov_b32 s84, s50")
    A("s_and_b32 s85, s51, 0xffff")
    for p in range(2 if opt("coop", 4) & 2 else 0):
        A(f"v_lshrrev_b32 {v(t)}, 1, v0")
        A(f"v_add_u32 {v(t)}, {128 * p}, {v(t)}")
        A(f"v_min_u32 {v(t)}, 191, {v(t)}")
        A(f"v_add_u32 {v(t)}, s64, {v(t)}")
        A(f"v_mad_u32_u24 {v(t)}, {v(t)}, s65, {v(t+1)}")
        A(f"buffer_load_dword {v(t+3)}, {v(t)}, s[84:87], 0 offen")
    A("s_waitcnt vmcnt(0)")

def touch(t, base, nbytes):
    if not opt("touch", 0):
        return
    n = (nbytes + 65535) >> 16
    assert n <= 256
    A(f"v_min_u32 {v(t)}, {n - 1}, v0")
    A(f"v_lshlrev_b32 {v(t)}, 16, {v(t)}")
    A(f"s_mov_b32 s60, {base + opt('touchoff', 2624)}")
    A(f"buffer_load_dword {v(t)}, {v(t)}, {WS}, s60 offen")
    A("s_waitcnt vmcnt(0)")

def nonce_load(r):
    A(f"v_mov_b32 {v(r)}, 0")
    A(f"buffer_load_dword {v(r)}, {v(r)}, {WS}, 0 offen")

def nonce_take(r):
    A(f"v_readfirstlane_b32 s{NONCE}, {v(r)}")
    A(f"s_add_u32 s{NONCE}, s{NONCE}, 0x{NONCE_C:x}")

def prologue():
    A(f"s_cmp_ge_u32 s2, {NWG}")
    A("s_cbranch_scc1 L_end")
    if opt("t0", 0):
        A("s_memrealtime s[90:91]")
    A("s_load_dwordx2 s[40:41], s[0:1], 96")
    A("s_load_dwordx2 s[42:43], s[0:1], 0")
    A("s_load_dwordx4 s[44:47], s[0:1], 48")
    A("s_load_dwordx4 s[48:51], s[0:1], 64")
    A("s_load_dwordx4 s[52:55], s[0:1], 80")
    if opt("codepf", 1):
        A("s_getpc_b64 s[60:61]")
        A("s_and_b32 s60, s60, -256")
        A("v_lshlrev_b32 v2, 7, v0")
        A("v_mov_b32 v3, s61")
        A("v_add_co_u32 v2, vcc, s60, v2")
        A("v_addc_co_u32 v3, vcc, 0, v3, vcc")
        A("v_cmp_gt_u32 vcc, CODE_LINES, v0")
        A("s_and_saveexec_b64 s[62:63], vcc")
        A("s_cbranch_execz L_nopf")
        A("global_load_dword v255, v[2:3], off")
        A("v_add_co_u32 v2, vcc, 0x8000, v2")
        A("v_addc_co_u32 v3, vcc, 0, v3, vcc")
        A("v_cmp_gt_u32 vcc, CODE_LINES2, v0")
        A("s_and_b64 exec, exec, vcc")
        A("s_cbranch_execz L_nopf")
        A("global_load_dword v255, v[2:3], off")
        A.label("L_nopf")
        A("s_mov_b64 exec, s[62:63]")
    A("v_lshrrev_b32 v2, 6, v0")
    A("v_and_b32 v1, 63, v0")
    A(f"v_readfirstlane_b32 s{WV}, v2")
    A("s_waitcnt lgkmcnt(0)")
    srd(4, 40, WS_BYTES)
    if DSTAMPS or MSTAMPS:
        srd(92, 54, 256)
    stamp(31, dbg=(0, 0))
    if opt("t0", 0):
        L = A.newlabel("Lt0")
        A(f"s_lshl_b32 s97, s{WV}, 16")
        A(f"s_or_b32 s97, s97, s2")
        A(f"s_cmp_lg_u32 s97, 0")
        A(f"s_cbranch_scc1 {L}")
        A("v_mov_b32 v254, s90")
        A("v_mov_b32 v253, 0")
        A("s_mov_b64 exec, 1")
        A(f"buffer_store_dword v254, v253, s[92:95], 0 offen offset:4")
        A("s_mov_b64 exec, -1")
        A.label(L)
    A(f"s_cmp_lt_u32 s2, {C0}")
    A("s_cbranch_scc1 L_roleR")
    A(f"s_cmp_lt_u32 s2, {FA0}")
    A("s_cbranch_scc1 L_roleC")
    A(f"s_cmp_lt_u32 s2, {FB0}")
    A("s_cbranch_scc1 L_roleFa")
    A("s_branch L_roleFb")

B1R, B1I, TWC, TWS, B2R, B2I, WR, INV = 16, 28, 40, 56, 72, 88, 104, 114
X, XN, MM, RS = 116, 136, 156, 158
ACR, ACI, AF1, AF2, AC2R, AC2I = 160, 176, 192, 204, 220, 236
vX, vY0, vY1, vY2, vKX, vLC, vLYW, vLYR, vLWW, vLWR0, vWG, vTA = 2, 3, 4, 5, 6, 7, 8, 9, 10, 11, 14, 15
vTB, vWG1 = 252, 115
sRHO, sA, sS2, sRA, sME, sREP, sXO, sWB, sTB, sP, sS, sQ = 22, 23, 24, 25, 26, 27, 28, 29, 30, 32, 34, 36
sSEL = 80
s32f = 38
sTAU = 39
LDS_Y, LDS_W, LDS_NEW, LDS_KX, LDS_CONST, LDS_RG = 0, 10240, 21504, 31744, 24576, 52224

def reduce_tail(r):
    for k in (8, 4, 2, 1):
        A(f"v_add_f32_dpp {v(r)}, {v(r)}, {v(r)} row_ror:{k} row_mask:0xf bank_mask:0xf")

def tau_of(w, t, scale):
    A(f"v_pk_mul_f32 {v(t,2)}, {v(w,2)}, {v(w,2)}")
    for i in range(2, 10, 2):
        A(f"v_pk_fma_f32 {v(t,2)}, {v(w+i,2)}, {v(w+i,2)}, {v(t,2)}")
    A(f"v_add_f32 {v(t)}, {v(t)}, {v(t+1)}")
    for sw in ("32", "16"):
        A(f"v_mov_b32 {v(t+1)}, {v(t)}")
        A(f"v_permlane{sw}_swap_b32 {v(t)}, {v(t+1)}")
        A(f"v_add_f32 {v(t)}, {v(t)}, {v(t+1)}")
    reduce_tail(t)
    A(f"v_sqrt_f32 {v(t)}, {v(t)}")
    A(f"v_mul_f32 {v(t)}, {f32(scale * opt('tau', 200) / 100)}, {v(t)}")

def ln_stats(xb, t):
    A.comment("layer-norm statistics (pivot-shifted sums; mean, variance, +eps and sqrt rounded to bf16 like the reference)")
    S_, Q_, D0, D1 = t, t + 2, t + 4, t + 6
    A(f"v_readfirstlane_b32 s{sP}, {v(xb)}")
    A(f"v_readfirstlane_b32 s{sP+1}, {v(xb+1)}")
    for i in range(10):
        D = S_ if i == 0 else (D0 if i % 2 else D1)
        A(f"v_pk_add_f32 {v(D,2)}, {v(xb+2*i,2)}, {s(sP,2)} neg_lo:[0,1] neg_hi:[0,1]")
        if i == 0:
            A(f"v_pk_mul_f32 {v(Q_,2)}, {v(D,2)}, {v(D,2)}")
        else:
            A(f"v_pk_add_f32 {v(S_,2)}, {v(S_,2)}, {v(D,2)}")
            A(f"v_pk_fma_f32 {v(Q_,2)}, {v(D,2)}, {v(D,2)}, {v(Q_,2)}")
    A(f"v_permlane32_swap_b32 {v(S_)}, {v(S_+1)}")
    A(f"v_permlane32_swap_b32 {v(Q_)}, {v(Q_+1)}")
    A(f"v_add_f32 {v(S_)}, {v(S_)}, {v(S_+1)}")
    A(f"v_add_f32 {v(Q_)}, {v(Q_)}, {v(Q_+1)}")
    A(f"v_permlane16_swap_b32 {v(S_)}, {v(Q_)}")
    A(f"v_add_f32 {v(S_)}, {v(S_)}, {v(Q_)}")
    reduce_tail(S_)
    A(f"v_readlane_b32 s{sS}, {v(S_)}, 0")
    A(f"v_readlane_b32 s{sS+1}, {v(S_)}, 32")
    A(f"v_readlane_b32 s{sQ}, {v(S_)}, 16")
    A(f"v_readlane_b32 s{sQ+1}, {v(S_)}, 48")
    A(f"v_pk_mul_f32 {v(MM,2)}, {s(sS,2)}, {v(INV,2)} op_sel_hi:[1,0]")
    A(f"v_pk_mul_f32 {v(RS,2)}, {s(sQ,2)}, {v(INV,2)} op_sel_hi:[1,0]")
    A(f"v_pk_fma_f32 {v(RS,2)}, {v(MM,2)}, {v(MM,2)}, {v(RS,2)} neg_lo:[1,0,0] neg_hi:[1,0,0]")
    A(f"v_pk_add_f32 {v(MM,2)}, {v(MM,2)}, {s(sP,2)}")
    A(f"v_max_f32 {v(RS)}, 0, {v(RS)}")
    A(f"v_max_f32 {v(RS+1)}, 0, {v(RS+1)}")
    rnd_pair(RS, RS + 1, D0)
    A(f"v_add_f32 {v(RS)}, {f32(1e-5)}, {v(RS)}")
    A(f"v_add_f32 {v(RS+1)}, {f32(1e-5)}, {v(RS+1)}")
    rnd_pair(RS, RS + 1, D0)
    A(f"v_sqrt_f32 {v(RS)}, {v(RS)}")
    A(f"v_sqrt_f32 {v(RS+1)}, {v(RS+1)}")
    rnd_pair(MM, MM + 1, D1)
    rnd_pair(RS, RS + 1, D0)
    A(f"v_rcp_f32 {v(RS)}, {v(RS)}")
    A(f"v_rcp_f32 {v(RS+1)}, {v(RS+1)}")

def ln_center_scale(xb, zb, t, exact=True):
    if not exact:
        A(f"v_pk_mul_f32 {v(t,2)}, {v(MM,2)}, {v(RS,2)} neg_lo:[1,0] neg_hi:[1,0]")
        for i in range(10):
            A(f"v_pk_fma_f32 {v(zb+2*i,2)}, {v(xb+2*i,2)}, {v(RS,2)}, {v(t,2)}")
        return
    for i in range(10):
        A(f"v_pk_add_f32 {v(zb+2*i,2)}, {v(xb+2*i,2)}, {v(MM,2)} neg_lo:[0,1] neg_hi:[0,1]")
        if exact:
            rnd_pair(zb + 2 * i, zb + 2 * i + 1, t + (i % 4))
    for i in range(10):
        A(f"v_pk_mul_f32 {v(zb+2*i,2)}, {v(zb+2*i,2)}, {v(RS,2)}")

def pack_rows(zb, pa, pb):
    for u in range(5):
        A(f"v_cvt_pk_bf16_f32 {v(pa+u)}, {v(zb+4*u)}, {v(zb+4*u+2)}")
        A(f"v_cvt_pk_bf16_f32 {v(pb+u)}, {v(zb+4*u+1)}, {v(zb+4*u+3)}")

def unpack_rows(zb, pa, pb):
    for u in range(5):
        A(f"v_lshlrev_b32 {v(zb+4*u)}, 16, {v(pa+u)}")
        A(f"v_and_b32 {v(zb+4*u+2)}, 0xffff0000, {v(pa+u)}")
        A(f"v_lshlrev_b32 {v(zb+4*u+1)}, 16, {v(pb+u)}")
        A(f"v_and_b32 {v(zb+4*u+3)}, 0xffff0000, {v(pb+u)}")

def store_rows(pa, pa4, pb, pb4, off, sb=sTB):
    A(f"buffer_store_dwordx4 {v(pa,4)}, {v(vTA)}, {WS}, s{sb} offen offset:{off} sc1")
    A(f"buffer_store_dword {v(pa4)}, {v(vTB)}, {WS}, s{sb} offen offset:{off} sc1")
    A(f"buffer_store_dwordx4 {v(pb,4)}, {v(vTA)}, {WS}, s{sb+1} offen offset:{off} sc1")
    A(f"buffer_store_dword {v(pb4)}, {v(vTB)}, {WS}, s{sb+1} offen offset:{off} sc1")

def to_f16(zb, t, sub=None):
    for i in range(10):
        if EXACT:
            rnd_pair(zb + 2 * i, zb + 2 * i + 1, t + (i % 4))
        A(f"v_cvt_pk_f16_f32 {v(AF1+i)}, {v(zb+2*i)}, {v(zb+2*i+1)}")
        if sub is not None:
            A(f"v_pk_add_f16 {v(AF1+i)}, {v(AF1+i)}, {v(sub(i))} neg_lo:[0,1] neg_hi:[0,1]")

def row_dft(t, shadow1=None, shadow2=None):
    for kk in range(3):
        c = "0" if kk == 0 else None
        A(f"v_mfma_f32_32x32x16_f16 {v(ACR,16)}, {v(AF1+4*kk,4)}, {v(B1R+4*kk,4)}, {c or v(ACR,16)}")
        A(f"v_mfma_f32_32x32x16_f16 {v(ACI,16)}, {v(AF1+4*kk,4)}, {v(B1I+4*kk,4)}, {c or v(ACI,16)}")
    if shadow1:
        shadow1()
    for kk in range(4):
        for i in (4 * kk, 4 * kk + 2):
            pr, pi = t + (i % 4) * 2, t + (i % 4) * 2 + 2
            A(f"v_pk_mul_f32 {v(pr,2)}, {v(ACR+i,2)}, {v(TWC+i,2)}")
            A(f"v_pk_mul_f32 {v(pi,2)}, {v(ACI+i,2)}, {v(TWC+i,2)}")
            A(f"v_pk_fma_f32 {v(pr,2)}, {v(ACI+i,2)}, {v(TWS+i,2)}, {v(pr,2)}")
            A(f"v_pk_fma_f32 {v(pi,2)}, {v(ACR+i,2)}, {v(TWS+i,2)}, {v(pi,2)} neg_lo:[1,0,0] neg_hi:[1,0,0]")
            A(f"v_cvt_pk_f16_f32 {v(AF2+i)}, {v(pr)}, {v(pi)}")
            A(f"v_cvt_pk_f16_f32 {v(AF2+i+1)}, {v(pr+1)}, {v(pi+1)}")
        c = "0" if kk == 0 else None
        A(f"v_mfma_f32_32x32x16_f16 {v(AC2R,16)}, {v(AF2+4*kk,4)}, {v(B2R+4*kk,4)}, {c or v(AC2R,16)}")
        A(f"v_mfma_f32_32x32x16_f16 {v(AC2I,16)}, {v(AF2+4*kk,4)}, {v(B2I+4*kk,4)}, {c or v(AC2I,16)}")
    if shadow2:
        shadow2()

def W_stores(layer, r0, r1, r2, lds=True):
    L = A.newlabel("Lw2")
    A(f"s_add_u32 s60, s{sWB}, {W_OFF + layer * W_SZ}")
    A(f"s_add_u32 s62, s60, {8192 + 112}")
    if lds:
        A("s_waitcnt lgkmcnt(2)")
    A(f"buffer_store_dwordx4 {v(r0,4)}, {v(vWG)}, {WS}, s60 offen sc1")
    if lds:
        A("s_waitcnt lgkmcnt(0)")
    A(f"buffer_store_dwordx4 {v(r1,4)}, {v(vWG1)}, {WS}, s60 offen sc1")
    A(f"s_cmp_ge_u32 s{WV}, 2")
    A(f"s_cbranch_scc1 {L}")
    if lds:
        A(f"ds_read2st64_b32 {v(r2,2)}, {v(vLWR0+2)} offset0:0 offset1:11")
        A(f"ds_read2st64_b32 {v(r2+2,2)}, {v(vLWR0+2)} offset0:22 offset1:33")
        A("s_waitcnt lgkmcnt(0)")
    A(f"buffer_store_dwordx4 {v(r2,4)}, {v(vWG)}, {WS}, s62 offen sc1")
    A.label(L)

def write_W(layer):
    k = 2 * layer
    for i in range(10):
        A(f"v_cvt_pk_f16_f32 {v(ACR+i)}, {v(AC2R+i)}, {v(AC2I+i)}")
        A(f"ds_write_b32 {v(vLWW)}, {v(ACR+i)} offset:{4*i}")
    A("s_waitcnt lgkmcnt(0)")
    A("s_barrier")
    for j in range(2):
        A(f"ds_read2st64_b32 {v(ACI+4*j,2)}, {v(vLWR0+j)} offset0:0 offset1:11")
        A(f"ds_read2st64_b32 {v(ACI+4*j+2,2)}, {v(vLWR0+j)} offset0:22 offset1:33")
    if EARLY_R == 0:
        arrive_issue(k, sME, AF2)
    W_stores(layer, ACI, ACI + 4, ACI + 8)
    if EARLY_R == 0:
        arrive_finish(k, sME, 15, AF2, 3)
    if (layer == 1 and DRAIN2) or (layer == 0 and DRAIN0):
        A("s_waitcnt vmcnt(0)")
        A("s_barrier")
        arrive_issue(k, sME, AF2)
        arrive_finish(k, sME, 15, AF2, 0)

def stage_Y(layer, first=None, shadow=None, landed=None):
    c0, c1, c2, t = ACR, ACR + 4, ACR + 8, ACR + 16
    loop, L2, L4, L5, done = [A.newlabel("Ly") for _ in range(5)]
    A(f"s_mov_b32 s60, {Y_OFF + layer * Y_SZ}")
    A(f"s_mov_b32 s62, {SPIN}")
    for k in range(4):
        A(f"v_mov_b32 {v(c2+k)}, 0")
    if first:
        first()
    A("s_mov_b64 vcc, -1")
    A.label(loop)
    A("s_mov_b64 exec, vcc")
    A(f"buffer_load_dwordx4 {v(c0,4)}, {v(vY0)}, {WS}, s60 offen sc1")
    A(f"buffer_load_dwordx4 {v(c1,4)}, {v(vY1)}, {WS}, s60 offen sc1")
    A(f"s_cmp_ge_u32 s{WV}, 2")
    A(f"s_cbranch_scc1 {L2}")
    A(f"buffer_load_dwordx4 {v(c2,4)}, {v(vY2)}, {WS}, s60 offen sc1")
    A.label(L2)
    A("s_mov_b64 exec, -1")
    if shadow:
        Lsh = A.newlabel("Ly")
        A(f"s_cmp_lg_u32 s62, {SPIN}")
        A(f"s_cbranch_scc1 {Lsh}")
        shadow()
        A.label(Lsh)
    A("s_waitcnt vmcnt(0)")
    if layer == 0 or not DRAIN2:
        any_sentinel(range(c0, c0 + 12), t, done)
        spin_tail(loop, 62, opt("ysleep", 0))
    A.label(done)
    if landed:
        landed()
    A(f"ds_write2st64_b32 {v(vLYW)}, {v(c0)}, {v(c0+1)} offset0:0 offset1:10")
    A(f"ds_write2st64_b32 {v(vLYW)}, {v(c0+2)}, {v(c0+3)} offset0:20 offset1:30")
    A(f"s_cmp_eq_u32 s{WV}, 0")
    A(f"s_cbranch_scc1 {L4}")
    for k in range(4):
        A(f"v_alignbit_b32 {v(t+k)}, {v(c1+3-k)}, {v(c1+3-k)}, 16")
    for k in range(4):
        A(f"v_mov_b32 {v(c1+k)}, {v(t+k)}")
    A.label(L4)
    A(f"ds_write2st64_b32 {v(vLYW)}, {v(c1)}, {v(c1+1)} offset0:4 offset1:14")
    A(f"ds_write2st64_b32 {v(vLYW)}, {v(c1+2)}, {v(c1+3)} offset0:24 offset1:34")
    A(f"s_cmp_ge_u32 s{WV}, 2")
    A(f"s_cbranch_scc1 {L5}")
    for k in range(4):
        A(f"v_alignbit_b32 {v(t+k)}, {v(c2+3-k)}, {v(c2+3-k)}, 16")
    A(f"ds_write2st64_b32 {v(vLYW)}, {v(t)}, {v(t+1)} offset0:8 offset1:18")
    A(f"ds_write2st64_b32 {v(vLYW)}, {v(t+2)}, {v(t+3)} offset0:28 offset1:38")
    A.label(L5)
    A("s_waitcnt lgkmcnt(0)")
    A("s_barrier")

def router_publish(layer, t, pa, pb):
    R_ = t
    for i in range(10):
        os_ = i & 1
        wv = v(WR + (i & ~1), 2)
        if i == 0:
            A(f"v_pk_mul_f32 {v(R_,2)}, {v(XN,2)}, {wv} op_sel:[0,{os_}] op_sel_hi:[1,{os_}]")
        else:
            A(f"v_pk_fma_f32 {v(R_,2)}, {v(XN+2*i,2)}, {wv}, {v(R_,2)} op_sel:[0,{os_},0] op_sel_hi:[1,{os_},1]")
    fill = []
    if not EXACT1:
        for u in range(5):
            fill.append(f"v_cvt_pk_bf16_f32 {v(pa+u)}, {v(XN+4*u)}, {v(XN+4*u+2)}")
            fill.append(f"v_cvt_pk_bf16_f32 {v(pb+u)}, {v(XN+4*u+1)}, {v(XN+4*u+3)}")
    def pad(n=2):
        for _ in range(n):
            if fill:
                A(fill.pop(0))
    pad()
    A(f"v_permlane32_swap_b32 {v(R_)}, {v(R_+1)}")
    A(f"v_add_f32 {v(R_)}, {v(R_)}, {v(R_+1)}")
    A(f"v_mov_b32 {v(R_+1)}, {v(R_)}")
    pad()
    A(f"v_permlane16_swap_b32 {v(R_)}, {v(R_+1)}")
    A(f"v_add_f32 {v(R_)}, {v(R_)}, {v(R_+1)}")
    for k in (8, 4, 2, 1):
        pad()
        A(f"v_add_f32_dpp {v(R_)}, {v(R_)}, {v(R_)} row_ror:{k} row_mask:0xf bank_mask:0xf")
    pad(10)
    A(f"v_cmp_le_f32 vcc, s{sTAU}, {v(R_)}")
    A(f"v_readlane_b32 s71, {v(R_)}, 32")
    A("s_mov_b64 s[56:57], vcc")
    for row, (p_, half) in enumerate(((pa, "vcc_lo"), (pb, "vcc_hi"))):
        Lr = A.newlabel("Lcand")
        A(f"s_cmp_eq_u32 {half}, 0")
        A(f"s_cbranch_scc1 {Lr}")
        A(f"buffer_store_dwordx4 {v(p_,4)}, {v(vTA)}, {WS}, s{sTB+row} offen sc1")
        A(f"buffer_store_dword {v(p_+4)}, {v(vTB)}, {WS}, s{sTB+row} offen sc1")
        A.label(Lr)
    A(f"s_lshl_b32 s70, s{WV}, 2")
    A(f"s_add_u32 s70, s70, {LDS_RG}")
    A(f"v_mov_b32 {v(R_+2)}, s70")
    A(f"v_cvt_pk_bf16_f32 {v(R_)}, {v(R_)}, s71")
    A(f"v_lshrrev_b32 {v(R_+1)}, 15, {v(R_)}")
    A(f"v_and_b32 {v(R_+1)}, 0x10001, {v(R_+1)}")
    A(f"v_mul_u32_u24 {v(R_+1)}, 0x7fff, {v(R_+1)}")
    A(f"v_or_b32 {v(R_+1)}, 0x80008000, {v(R_+1)}")
    A(f"v_xor_b32 {v(R_)}, {v(R_)}, {v(R_+1)}")
    A(f"v_min_u32 {v(R_)}, -2, {v(R_)}")
    A("s_mov_b64 exec, 1")
    A(f"ds_write_b32 {v(R_+2)}, {v(R_)}")
    A("s_mov_b64 exec, -1")
    A("s_waitcnt vmcnt(0) lgkmcnt(0)")
    A("s_barrier")
    L = A.newlabel("Lrp")
    A(f"s_cmp_lg_u32 s{WV}, 0")
    A(f"s_cbranch_scc1 {L}")
    A(f"ds_read_b128 {v(R_+4,4)}, {v(R_+2)}")
    A(f"v_lshlrev_b32 {v(R_+2)}, {RSH + 8}, v1")
    A(f"s_lshl_b32 s73, s{sRHO}, {RSH}")
    A(f"s_add_u32 s73, s73, {RG_OFF + layer * NRR * RG_REP}")
    set_exec((1 << NRR) - 1)
    A("s_waitcnt lgkmcnt(0)")
    A(f"buffer_store_dwordx4 {v(R_+4,4)}, {v(R_+2)}, {WS}, s73 offen sc1")
    A("s_mov_b64 exec, -1")
    A.label(L)

def roleR():
    A.label("L_roleR")
    prio(2)
    srd(8, 42, 2621440)
    A("s_and_b32 s60, s2, 7")
    A("s_lshr_b32 s61, s2, 3")
    A(f"s_lshr_b32 s{sA}, s61, 3")
    A("s_and_b32 s61, s61, 7")
    A("s_lshl_b32 s60, s60, 3")
    A("s_sub_u32 s62, 56, s60")
    A(f"s_cmp_lt_u32 s{sA}, 2")
    A("s_cselect_b32 s60, s60, s62")
    A(f"s_add_u32 s{sS2}, s60, s61")
    A(f"s_lshl_b32 s60, s{sA}, 9")
    A(f"s_lshl_b32 s61, s{WV}, 7")
    A(f"s_add_u32 s{sRA}, s60, s61")
    A(f"s_add_u32 s{sRA}, s{sRA}, s{sS2}")
    A(f"s_mul_i32 s{sXO}, s{sRA}, 1280")
    A(f"s_add_u32 s63, s{sXO}, {64 * 1280}")
    T = ACR
    n, h = T, T + 1
    A(f"v_and_b32 {v(n)}, 31, v1")
    A(f"v_lshrrev_b32 {v(h)}, 5, v1")
    A(f"v_mul_u32_u24 {v(vX)}, 640, {v(h)}")
    A(f"v_lshl_add_u32 {v(vX)}, {v(n)}, 1, {v(vX)}")
    XW = opt("xwide", 0)
    XR = AC2R + 8
    if XW:
        A(f"v_lshlrev_b32 {v(XR+12)}, 4, v1")
        A(f"v_add_u32 {v(XR+13)}, {1024 + 63 * 1280}, {v(XR+12)}")
        A(f"v_add_u32 {v(XR+14)}, 1024, {v(XR+12)}")
        A(f"v_cmp_gt_u32 vcc, 16, v1")
        A(f"buffer_load_dwordx4 {v(XR,4)}, {v(XR+12)}, {SRD1}, s{sXO} offen")
        A(f"v_cndmask_b32 {v(XR+14)}, {v(XR+13)}, {v(XR+14)}, vcc")
        A(f"buffer_load_dwordx4 {v(XR+4,4)}, {v(XR+14)}, {SRD1}, s{sXO} offen")
        set_exec(0xffffffff)
        A(f"buffer_load_dwordx4 {v(XR+8,4)}, {v(XR+13)}, {SRD1}, s{sXO} offen offset:1024")
        A("s_mov_b64 exec, -1")
        for i in range(20):
            A(f"v_mov_b32 {v(X+i)}, 0")
    else:
        for i in range(10):
            A(f"v_mov_b32 {v(X+2*i)}, 0")
            A(f"v_mov_b32 {v(X+2*i+1)}, 0")
            A(f"buffer_load_short_d16_hi {v(X+2*i)}, {v(vX)}, {SRD1}, s{sXO} offen offset:{64*i}")
            A(f"buffer_load_short_d16_hi {v(X+2*i+1)}, {v(vX)}, {SRD1}, s63 offen offset:{64*i}")
    NV = XN
    nonce_load(NV)
    ONES = XN + 4
    A(f"s_lshl_b32 s{sRHO}, s{sA}, 6")
    A(f"s_add_u32 s{sRHO}, s{sRHO}, s{sS2}")
    A(f"s_mul_i32 s{sWB}, s{sRHO}, {WROW}")
    for k in range(4):
        A(f"v_mov_b32 {v(ONES+k)}, -1")
    A(f"v_lshlrev_b32 {v(vWG)}, 4, v0")
    A(f"v_add_u32 {v(vWG1)}, {4096 + 112}, {v(vWG)}")
    A(f"v_add_u32 {v(T+2)}, 4096, {v(vWG)}")
    A(f"v_cmp_gt_u32 vcc, 65, v0")
    A(f"v_cndmask_b32 {v(vWG1)}, {v(vWG1)}, {v(T+2)}, vcc")
    A(f"v_lshlrev_b32 {v(T+4)}, 3, v0")
    A(f"s_lshl_b32 s61, s{sRHO}, 11")
    A(f"s_add_u32 s61, s61, {RESET_OFF}")
    A(f"buffer_store_dwordx2 {v(ONES,2)}, {v(T+4)}, {WS}, s61 offen sc1")
    LATEF = opt("latefill", 0)
    if not DRAIN0 and not LATEF:
        W_stores(0, ONES, ONES, ONES, lds=False)
    PREFR = opt("prefr", 0)
    if PREFR == 1:
        warm_weights(AC2R, 0, 32, PPART)
    e1, e1s, base, arg, c_, s_ = T + 6, T + 7, T + 8, T + 9, T + 10, T + 11
    hf_, wf, lc = T + 12, T + 13, T + 14
    G0 = T + 16
    A(f"v_bfe_u32 {v(e1)}, {v(n)}, 2, 1")
    A(f"v_mul_u32_u24 {v(e1)}, 10, {v(e1)}")
    A(f"v_and_b32 {v(arg)}, 3, {v(n)}")
    A(f"v_add_u32 {v(e1)}, {v(e1)}, {v(arg)}")
    A(f"v_lshrrev_b32 {v(arg)}, 3, {v(n)}")
    A(f"v_lshl_add_u32 {v(e1)}, {v(arg)}, 2, {v(e1)}")
    A(f"v_cvt_f32_u32 {v(e1)}, {v(e1)}")
    A(f"v_cvt_f32_u32 {v(hf_)}, {v(h)}")
    A(f"v_cvt_f32_u32 {v(wf)}, s{WV}")
    A(f"s_lshl_b32 s60, s{WV}, 10")
    A(f"s_add_u32 s60, s60, {LDS_CONST}")
    A(f"v_lshl_add_u32 {v(lc)}, v1, 4, s60")
    A(f"v_mul_f32 {v(e1s)}, {f32(1/20)}, {v(e1)}")
    A(f"v_mul_f32 {v(base)}, {f32(10.0)}, {v(hf_)}")
    A(f"v_fma_f32 {v(base)}, 4.0, {v(wf)}, {v(base)}")
    A(f"v_mul_f32 {v(base)}, {v(e1s)}, {v(base)}")
    A(f"s_cmp_lt_u32 s{WV}, 2")
    A(f"s_cselect_b64 s[64:65], -1, 0")
    for r in range(4):
        A(f"v_fmamk_f32 {v(arg)}, {v(e1s)}, {f32(r)}, {v(base)}")
        sincos(arg, c_, s_)
        A(f"v_cvt_pk_f16_f32 {v(G0+r)}, {v(c_)}, {v(s_)}")
        A(f"v_cvt_pk_f16_f32 {v(G0+4+r)}, -{v(s_)}, {v(c_)}")
        if r >= 2:
            A(f"v_cndmask_b32 {v(G0+r)}, 0, {v(G0+r)}, s[64:65]")
            A(f"v_cndmask_b32 {v(G0+4+r)}, 0, {v(G0+4+r)}, s[64:65]")
    A(f"ds_write_b128 {v(lc)}, {v(G0,4)}")
    A(f"ds_write_b128 {v(lc)}, {v(G0+4,4)} offset:4096")
    A(f"v_mul_f32 {v(wf)}, {f32(8.0)}, {v(wf)}")
    A(f"v_fma_f32 {v(wf)}, 4.0, {v(hf_)}, {v(wf)}")
    A(f"v_mul_f32 {v(e1s)}, {f32(1/640)}, {v(e1)}")
    A(f"v_mul_f32 {v(base)}, {v(e1s)}, {v(wf)}")
    for r in range(4):
        A(f"v_fmamk_f32 {v(arg)}, {v(e1s)}, {f32(r)}, {v(base)}")
        sincos(arg, G0 + 8 + r, G0 + 12 + r)
    A(f"ds_write_b128 {v(lc)}, {v(G0+8,4)} offset:8192")
    A(f"ds_write_b128 {v(lc)}, {v(G0+12,4)} offset:12288")
    A(f"v_cvt_f32_u32 {v(e1s)}, {v(n)}")
    A(f"v_mul_f32 {v(e1s)}, {f32(1/32)}, {v(e1s)}")
    A(f"v_mul_f32 {v(base)}, {v(e1s)}, {v(wf)}")
    for r in range(4):
        A(f"v_fmamk_f32 {v(arg)}, {v(e1s)}, {f32(r)}, {v(base)}")
        sincos(arg, c_, s_)
        A(f"v_cvt_pk_f16_f32 {v(G0+16+r)}, {v(c_)}, {v(s_)}")
        A(f"v_cvt_pk_f16_f32 {v(G0+20+r)}, -{v(s_)}, {v(c_)}")
    A(f"ds_write_b128 {v(lc)}, {v(G0+16,4)} offset:16384")
    A(f"ds_write_b128 {v(lc)}, {v(G0+20,4)} offset:20480")
    A(f"v_mov_b32 {v(AF1+10)}, 0")
    A(f"v_mov_b32 {v(AF1+11)}, 0")
    A(f"v_lshlrev_b32 {v(vLC)}, 4, v1")
    A(f"v_add_u32 {v(vLC)}, {LDS_CONST}, {v(vLC)}")
    A(f"v_mov_b32 {v(INV)}, {f32(1/640)}")
    A(f"s_mov_b32 s{s32f}, {f32(32.0)}")
    A(f"s_and_b32 s{sME}, s2, 15")
    A(f"v_mul_u32_u24 {v(vLWW)}, 21, {v(n)}")
    A(f"v_mad_u32_u24 {v(vLWW)}, {v(h)}, 10, {v(vLWW)}")
    A(f"s_mul_i32 s60, s{WV}, 704")
    A(f"s_add_u32 s60, s60, {LDS_W // 4}")
    A(f"v_add_lshl_u32 {v(vLWW)}, {v(vLWW)}, s60, 2")
    A("s_waitcnt lgkmcnt(0)")
    A("s_barrier")
    for (dst, ng, off) in ((B1R, 3, 0), (B1I, 3, 4096), (TWC, 4, 8192), (TWS, 4, 12288)):
        for gq in range(ng):
            A(f"ds_read_b128 {v(dst+4*gq,4)}, {v(vLC)} offset:{off + 1024*gq}")
    for j in range(3):
        A(f"v_add_u32 {v(arg)}, {256*j}, v0")
        A(f"v_mul_u32_u24 {v(c_)}, 3277, {v(arg)}")
        A(f"v_lshrrev_b32 {v(c_)}, 16, {v(c_)}")
        A(f"v_add_u32 {v(arg)}, {v(arg)}, {v(c_)}")
        A(f"v_lshlrev_b32 {v(arg)}, 2, {v(arg)}")
        A(f"v_add_u32 {v(vLWR0+j)}, {LDS_W}, {v(arg)}")
    A(f"v_lshlrev_b32 {v(vTA)}, 4, v1")
    A(f"v_lshlrev_b32 {v(vTB)}, 2, v1")
    A(f"v_add_u32 {v(vTB)}, 1024, {v(vTB)}")
    A(f"s_mul_i32 s{sTB}, s{sRA}, {T_REC}")
    A(f"s_add_u32 s{sTB}, s{sTB}, {T_OFF}")
    A(f"s_add_u32 s{sTB+1}, s{sTB}, {64 * T_REC}")
    stamp(0, dbg=(1, 0) if not opt("t0", 0) else None)
    ARV = 204
    A(f"s_waitcnt vmcnt({(1 if (DRAIN0 or LATEF) else 3) + (nloads(PPART) if PREFR == 1 else 0)})")
    nonce_take(NV)
    if LATEF:
        W_stores(0, ONES, ONES, ONES, lds=False)
    if XW:
        A(f"s_mul_i32 s60, s{WV}, 2560")
        A(f"v_add_u32 {v(XR+12)}, s60, {v(XR+12)}")
        A(f"v_add_u32 {v(XR+13)}, s60, {v(vX)}")
        A(f"ds_write_b128 {v(XR+12)}, {v(XR,4)}")
        A(f"ds_write_b128 {v(XR+12)}, {v(XR+4,4)} offset:1024")
        set_exec(0xffffffff)
        A(f"ds_write_b128 {v(XR+12)}, {v(XR+8,4)} offset:2048")
        A("s_mov_b64 exec, -1")
        A("s_waitcnt lgkmcnt(3)")
        for i in range(10):
            A(f"ds_read_u16_d16_hi {v(X+2*i)}, {v(XR+13)} offset:{64*i}")
            A(f"ds_read_u16_d16_hi {v(X+2*i+1)}, {v(XR+13)} offset:{1280+64*i}")
            if i == 5:
                A("s_waitcnt lgkmcnt(6)")
        A("s_waitcnt lgkmcnt(0)")
    stamp(10, dbg=(2, 0))
    if EARLY_R == 2:
        arrive_issue(0, sME, ARV)
    ln_stats(X, ACR)
    for (dst, ng, off) in ((B2R, 4, 16384), (B2I, 4, 20480)):
        for gq in range(ng):
            A(f"ds_read_b128 {v(dst+4*gq,4)}, {v(vLC)} offset:{off + 1024*gq}")
    ln_center_scale(X, XN, ACR, EXACT)
    to_f16(XN, ACR)
    if DRAIN0:
        A("s_waitcnt lgkmcnt(0)")
    else:
        A("s_waitcnt vmcnt(0) lgkmcnt(0)")
        A("s_barrier")
        arrive_issue(0, sME, XN + 8, AWR)
    def fill_xn1():
        for k in range(4):
            A(f"v_mov_b32 {v(XN+16+k)}, -1")
        store_rows(XN + 16, XN + 16, XN + 16, XN + 16, 0)
    row_dft(XN, None, (lambda: arrive_finish(0, sME, 15, XN + 8, 0, AWR)) if not DRAIN0 else None)
    stamp(11)
    write_W(0)
    stamp(1, dbg=(3, 0))
    if PREFR == 2:
        warm_weights(AC2R, 0, 32, PPART)
    srd(12, 52, 2621440)
    srd(16, 44, 1280)
    for i in range(10):
        A(f"v_mov_b32 {v(WR+i)}, 0")
        A(f"buffer_load_short_d16_hi {v(WR+i)}, {v(vX)}, {SRD3}, 0 offen offset:{64*i}")
    A(f"v_and_b32 {v(n)}, 31, v1")
    A(f"v_lshrrev_b32 {v(h)}, 5, v1")
    A(f"v_lshlrev_b32 {v(vLYW)}, 2, v0")
    A(f"v_mul_u32_u24 {v(vLYR)}, 320, {v(h)}")
    A(f"s_mul_i32 s60, s{WV}, 640")
    A(f"v_add3_u32 {v(vLYR)}, {v(vLYR)}, {v(n)}, s60")
    A(f"v_lshlrev_b32 {v(vLYR)}, 2, {v(vLYR)}")
    A(f"s_sub_u32 s60, 3, s{sA}")
    A(f"s_lshl_b32 s60, s60, 6")
    A(f"s_sub_u32 s61, 64, s{sS2}")
    A(f"s_add_u32 s60, s60, s61")
    A(f"s_lshl_b32 s60, s60, 4")
    A(f"s_lshl_b32 s61, s{sA}, 4")
    A(f"s_add_u32 s61, s61, {YM_OFF}")
    A(f"s_cmp_eq_u32 s{sS2}, 0")
    A(f"s_cselect_b32 s60, s61, s60")
    A(f"s_cselect_b32 s61, 64, {YCOL}")
    A(f"s_lshl_b32 s62, s{sRHO}, 4")
    A(f"v_mul_u32_u24 {v(vY0)}, {YCOL}, v0")
    A(f"v_add_u32 {v(vY0)}, s62, {v(vY0)}")
    A(f"v_sub_u32 {v(arg)}, 384, v0")
    A(f"v_mul_u32_u24 {v(arg)}, s61, {v(arg)}")
    A(f"v_add_u32 {v(vY1)}, s60, {v(arg)}")
    A(f"v_add_u32 {v(c_)}, {256 * YCOL}, {v(vY0)}")
    A(f"v_cmp_gt_u32 vcc, 64, v0")
    A(f"v_cndmask_b32 {v(vY1)}, {v(vY1)}, {v(c_)}, vcc")
    A(f"v_sub_u32 {v(arg)}, 128, v0")
    A(f"v_and_b32 {v(arg)}, 0xff, {v(arg)}")
    A(f"v_mul_u32_u24 {v(arg)}, s61, {v(arg)}")
    A(f"v_add_u32 {v(vY2)}, s60, {v(arg)}")
    A(f"s_mul_i32 s60, s{WV}, 5120")
    A(f"s_add_u32 s60, s60, {LDS_KX}")
    A(f"v_lshl_add_u32 {v(vKX)}, v1, 4, s60")
    A(f"s_and_b32 s{sREP}, s2, {NREP - 1}")
    A(f"s_lshl_b32 s{sREP}, s{sREP}, {FSH + 4}")
    A("s_waitcnt vmcnt(0)")
    tau_of(WR, ACR, 1.0)
    A(f"v_readfirstlane_b32 s{sTAU}, {v(ACR)}")
    if opt("touch", 0) > 1:
        touch(ACR, Y_OFF, 2 * Y_SZ)
    poll_flags(1, sREP, ACR)
    stamp(2, dbg=(7, 0))
    stage_Y(0)
    stamp(13)
    if not DRAIN2:
        for k in range(4):
            A(f"v_mov_b32 {v(AF2+k)}, -1")
        W_stores(1, AF2, AF2, AF2, lds=False)
    for i in range(10):
        A(f"ds_read_b32 {v(ACI+i)}, {v(vLYR)} offset:{128*i}")
    for i in range(10):
        A(f"s_waitcnt lgkmcnt({9-i})")
        A(f"v_fma_mix_f32 {v(X+2*i)}, {v(ACI+i)}, s{s32f}, {v(X+2*i)} op_sel:[0,0,0] op_sel_hi:[1,0,0]")
        A(f"v_fma_mix_f32 {v(X+2*i+1)}, {v(ACI+i)}, s{s32f}, {v(X+2*i+1)} op_sel:[1,0,0] op_sel_hi:[1,0,0]")
    PA, PB = AC2R, AC2R + 8
    pack_rows(X, PA, PB)
    unpack_rows(X, PA, PB)
    A(f"ds_write_b128 {v(vKX)}, {v(PA,4)} offset:2048")
    A(f"ds_write_b128 {v(vKX)}, {v(PB,4)} offset:3072")
    A(f"v_mov_b32 {v(PA+6)}, {v(PA+4)}")
    A(f"v_mov_b32 {v(PA+7)}, {v(PB+4)}")
    ln_stats(X, ACR)
    ln_center_scale(X, XN, ACR, EXACT1)
    if EXACT1:
        pack_rows(XN, PA + 16, PB + 16)
        unpack_rows(XN, PA + 16, PB + 16)
    stamp(14)
    router_publish(0, ACI, PA + 16, PB + 16)
    if not EXACT1:
        unpack_rows(XN, PA + 16, PB + 16)
    stamp(3, dbg=(8, 0))
    E2 = opt("e2", 1)
    if E2 == 1:
        arrive_issue(2, sME, AF2 + 8, AWR)
    A(f"v_mov_b32 {v(PA+4)}, {v(PA+20)}")
    A(f"v_mov_b32 {v(PA+5)}, {v(PB+20)}")
    A(f"ds_write_b128 {v(vKX)}, {v(PA+16,4)}")
    A(f"ds_write_b128 {v(vKX)}, {v(PB+16,4)} offset:1024")
    A(f"ds_write_b128 {v(vKX)}, {v(PA+4,4)} offset:4096")
    if EARLY_R == 2:
        arrive_issue(2, sME, ARV)
    for i in range(10):
        A(f"v_pk_add_f32 {v(X+2*i,2)}, {v(X+2*i,2)}, {v(XN+2*i,2)}")
        rnd_pair(X + 2 * i, X + 2 * i + 1, ACR + (i % 4))
    ln_stats(X, ACR)
    ln_center_scale(X, XN, ACR + 8, EXACT)
    to_f16(XN, ACR + 8)
    if EARLY_R == 2:
        arrive_finish(2, sME, 15, ARV, 0)
    if E2 == 0:
        arrive_issue(2, sME, XN + 14, AWR)
        row_dft(XN, None, lambda: arrive_finish(2, sME, 15, XN + 14, 0, AWR))
    elif E2 == 1:
        row_dft(XN, lambda: arrive_finish(2, sME, 15, AF2 + 8, 0, AWR))
    else:
        row_dft(XN, None, lambda: arrive_finish(2, sME, 15, 250 - 4, 0, AWR))
    stamp(16)
    if not opt("wlate", 0):
        write_W(1)
    stamp(4)
    A(f"s_mov_b32 s74, {X2_OFF}")
    def release(layer, row, stash, with_xn):
        R0 = ACR
        if stash:
            A(f"ds_read_b128 {v(R0,4)}, {v(vKX)} offset:{2048+1024*row}")
            A(f"ds_read_b128 {v(R0+8,4)}, {v(vKX)} offset:4096")
            if with_xn:
                A(f"ds_read_b128 {v(R0+12,4)}, {v(vKX)} offset:{1024*row}")
            x4, x1, n4, n1 = R0, R0 + 10 + row, R0 + 12, R0 + 8 + row
        else:
            P_ = PA if row == 0 else PB
            x4, x1, n4, n1 = P_, P_ + 4, P_ + 16, P_ + 20
        A(f"s_add_u32 s61, s{NONCE}, {6 + layer}")
        A(f"v_mov_b32 {v(R0+4)}, {v(MM+row)}")
        A(f"v_mov_b32 {v(R0+5)}, {v(RS+row)}")
        A(f"v_mov_b32 {v(R0+6)}, s61")
        A(f"v_mov_b32 {v(R0+7)}, s61")
        A("s_waitcnt lgkmcnt(0)")
        if with_xn:
            A(f"buffer_store_dwordx4 {v(n4,4)}, {v(vTA)}, {WS}, s{sTB+row} offen sc1")
            A(f"buffer_store_dword {v(n1)}, {v(vTB)}, {WS}, s{sTB+row} offen sc1")
        A(f"buffer_store_dwordx4 {v(x4,4)}, {v(vTA)}, {WS}, s{sTB+row} offen offset:1280 sc1")
        A(f"buffer_store_dword {v(x1)}, {v(vTB)}, {WS}, s{sTB+row} offen offset:1280 sc1")
        A("s_waitcnt vmcnt(0)")
        A("s_mov_b64 exec, 1")
        A(f"buffer_store_dwordx4 {v(R0+4,4)}, {v(vTA)}, {WS}, s{sTB+row} offen offset:2560 sc1")
        A("s_mov_b64 exec, -1")
    def release_candidates(layer, stash):
        for row in range(2):
            Ln = A.newlabel("Lrel")
            A(f"s_cmp_eq_u32 s{56+row}, 0")
            A(f"s_cbranch_scc1 {Ln}")
            release(layer, row, stash, False)
            A.label(Ln)
    def wait_sel(layer, stash):
        loop, done = A.newlabel("Lsel"), A.newlabel("Lseld")
        T2 = ACR + 16
        A(f"s_mov_b32 s60, {X2_OFF + SEL_OFF + 256 * layer}")
        A(f"v_and_b32 {v(T2)}, 7, v1")
        A(f"v_lshlrev_b32 {v(T2)}, 2, {v(T2)}")
        A(f"s_mov_b32 s62, {SPIN}")
        A.label(loop)
        A(f"buffer_load_dword {v(T2+1)}, {v(T2)}, {WS}, s60 offen sc1")
        A("s_waitcnt vmcnt(0)")
        A(f"v_cmp_eq_u32 vcc, -1, {v(T2+1)}")
        A(f"s_cbranch_vccz {done}")
        spin_tail(loop, 62, opt('selsleep', 4))
        A.label(done)
        for j in range(8):
            A(f"v_readlane_b32 s{sSEL+j}, {v(T2+1)}, {j}")
        for row in range(2):
            A(f"s_add_u32 s60, s{sRA}, {64 * row}")
            A(f"s_mov_b32 s{76+row}, -1")
            for j in range(8):
                A(f"s_cmp_eq_u32 s60, s{sSEL+j}")
                A(f"s_cselect_b32 s{76+row}, {j}, s{76+row}")
            Ln = A.newlabel("Lpush")
            A(f"s_cmp_lt_i32 s{76+row}, 0")
            A(f"s_cbranch_scc1 {Ln}")
            A(f"s_cmp_lg_u32 s{56+row}, 0")
            A(f"s_cbranch_scc1 {Ln}")
            release(layer, row, stash, True)
            A.label(Ln)
    release_candidates(0, True)
    vE0, vDF, vDM, vP2, vNW = vLWW, vLWR0, vLWR0 + 1, vLWR0 + 2, vWG
    n, h = ACR + 8, ACR + 9
    A(f"v_and_b32 {v(n)}, 31, v1")
    A(f"v_lshrrev_b32 {v(h)}, 5, v1")
    A(f"v_mul_u32_u24 {v(vE0)}, 20, {v(n)}")
    A(f"v_mad_u32_u24 {v(vE0)}, {v(h)}, 10, {v(vE0)}")
    vER = vLC
    A(f"v_and_b32 {v(vER)}, 31, {v(vE0)}")
    A(f"v_lshrrev_b32 {v(vDF)}, 5, {v(vE0)}")
    A(f"s_lshl_b32 s60, s{WV}, 2")
    A(f"s_add_u32 s60, s60, {LDS_W}")
    A(f"v_add_u32 {v(vE0)}, {v(vE0)}, {v(vDF)}")
    A(f"v_lshl_add_u32 {v(vE0)}, {v(vE0)}, 4, s60")
    A(f"v_mul_u32_u24 {v(vDF)}, 330, {v(h)}")
    A(f"v_add_u32 {v(vDF)}, {v(vDF)}, {v(n)}")
    A(f"v_sub_u32 {v(vDM)}, 362, {v(vDF)}")
    A(f"v_lshlrev_b32 {v(vDF)}, 4, {v(vDF)}")
    A(f"v_add_u32 {v(vDF)}, {LDS_W}, {v(vDF)}")
    A(f"v_cmp_eq_u32 vcc, 0, {v(n)}")
    A(f"v_addc_co_u32 {v(vDM)}, vcc, 0, {v(vDM)}, vcc")
    A(f"v_lshlrev_b32 {v(vDM)}, 4, {v(vDM)}")
    A(f"v_add_u32 {v(vDM)}, {LDS_W}, {v(vDM)}")
    A(f"s_lshl_b32 s60, s{WV}, 8")
    A(f"v_mul_u32_u24 {v(vP2)}, 10240, {v(h)}")
    A(f"v_lshl_add_u32 {v(vP2)}, {v(n)}, 3, {v(vP2)}")
    A(f"v_add_u32 {v(vP2)}, s60, {v(vP2)}")
    A(f"s_mul_i32 s60, s{WV}, 2560")
    A(f"s_add_u32 s60, s60, {LDS_NEW}")
    A(f"v_lshl_add_u32 {v(vNW)}, v1, 2, s60")
    A(f"s_add_u32 s75, s74, 4096")
    A(f"s_add_u32 s78, s74, 8192")
    ORDER = opt("order", 4)
    def sel_step():
        wait_sel(0, True)
        A(f"s_add_u32 s{sTB}, s{sTB}, {T_SZ}")
        A(f"s_add_u32 s{sTB+1}, s{sTB+1}, {T_SZ}")
        stamp(5)
    CU, CV = XN + 12, XN + 16
    def coefs():
        tr, ca, sa, cb, sb, ar, t0, t1_ = range(AF2, AF2 + 8)
        A(f"v_and_b32 {v(tr)}, 1, v1")
        A(f"v_lshlrev_b32 {v(tr)}, 6, {v(tr)}")
        A(f"v_add_u32 {v(tr)}, s{sRA}, {v(tr)}")
        A(f"s_mov_b32 s64, 0x00300003")
        A(f"s_mov_b32 s65, 0x30000300")
        for p in range(4):
            for (j, cc, ss) in ((2 * p, ca, sa), (2 * p + 1, cb, sb)):
                A(f"v_mul_u32_u24 {v(ar)}, s{sSEL+j}, {v(tr)}")
                A(f"v_and_b32 {v(ar)}, 0x7ff, {v(ar)}")
                A(f"v_cvt_f32_u32 {v(ar)}, {v(ar)}")
                A(f"v_mul_f32 {v(ar)}, {f32(1/2048)}, {v(ar)}")
                sincos(ar, cc, ss)
            A(f"v_sub_f32 {v(t0)}, {v(ca)}, {v(sb)}")
            A(f"v_add_f32 {v(t1_)}, {v(sa)}, {v(cb)}")
            A(f"v_mul_f32 {v(t0)}, 0.5, {v(t0)}")
            A(f"v_mul_f32 {v(t1_)}, 0.5, {v(t1_)}")
            A(f"v_cvt_pk_f16_f32 {v(CU+p)}, {v(t0)}, {v(t1_)}")
            A(f"v_add_f32 {v(t0)}, {v(ca)}, {v(sb)}")
            A(f"v_sub_f32 {v(t1_)}, {v(cb)}, {v(sa)}")
            A(f"v_mul_f32 {v(t0)}, 0.5, {v(t0)}")
            A(f"v_mul_f32 {v(t1_)}, 0.5, {v(t1_)}")
            A(f"v_cvt_pk_f16_f32 {v(CV+p)}, {v(t0)}, {v(t1_)}")
            A(f"v_cndmask_b32 {v(CU+p)}, 0, {v(CU+p)}, s[64:65]")
            A(f"v_cndmask_b32 {v(CV+p)}, 0, {v(CV+p)}, s[64:65]")

    RAW = AC2R
    def x2loads():
        for i in range(10):
            so = ("s74", "s75", "s78")[i // 4]
            A(f"buffer_load_dwordx2 {v(RAW+2*i,2)}, {v(vP2)}, {WS}, {so} offen offset:{1024*(i%4)} sc1")
    def wait_hint():
        loop, done = A.newlabel("Lx2"), A.newlabel("Lx2d")
        A(f"s_mov_b32 s62, {SPIN}")
        A(f"s_add_u32 s60, s74, {SEL_OFF + 128}")
        A(f"v_mov_b32 {v(ACR)}, 0")
        A.label(loop)
        A(f"buffer_load_dword {v(ACR+1)}, {v(ACR)}, {WS}, s60 offen sc1")
        A("s_waitcnt vmcnt(0)")
        A(f"v_cmp_eq_u32 vcc, -1, {v(ACR+1)}")
        A(f"s_cbranch_vccz {done}")
        spin_tail(loop, 62, opt("hintsleep", 2))
        A.label(done)
    alldone = A.newlabel("Lx2a")
    if ORDER == 6:
        sel_step()
        coefs()
        A(f"s_add_u32 s79, s74, {SEL_OFF + 128}")
        A(f"v_mov_b32 {v(AF2)}, 0")
        poll_flags(3, sREP, ACR)
        stamp(6, dbg=(13, 0))
        Lnh, Lslow = A.newlabel("Lx2n"), A.newlabel("Lx2s")
        def hint_load():
            A(f"buffer_load_dword {v(AF2+1)}, {v(AF2)}, {WS}, s79 offen sc1")
        def landed():
            A(f"v_readfirstlane_b32 s79, {v(AF2+1)}")
            A("s_cmp_eq_u32 s79, -1")
            A(f"s_cbranch_scc1 {Lnh}")
            x2loads()
            A.label(Lnh)
        stage_Y(1, None, hint_load, landed)
        A("s_cmp_eq_u32 s79, -1")
        A(f"s_cbranch_scc1 {Lslow}")
        A("s_waitcnt vmcnt(0)")
        any_sentinel(range(RAW, RAW + 20), ACR, alldone)
        A.label(Lslow)
        wait_hint()
    elif ORDER == 5:
        sel_step()
        coefs()
        poll_flags(3, sREP, ACR)
        stamp(6, dbg=(13, 0))
        stage_Y(1, None, x2loads)
        any_sentinel(range(RAW, RAW + 20), ACR, alldone)
        wait_hint()
    elif ORDER == 4:
        sel_step()
        coefs()
        poll_flags(3, sREP, ACR)
        stamp(6, dbg=(13, 0))
        stage_Y(1)
        wait_hint()
    elif ORDER == 1:
        poll_flags(3, sREP, ACR)
        stamp(6, dbg=(13, 0))
        stage_Y(1)
        sel_step()
        coefs()
        wait_hint()
    else:
        sel_step()
        coefs()
        poll_flags(3, sREP, ACR)
        wait_hint()
        stamp(6, dbg=(13, 0))
        stage_Y(1, None, x2loads)
        any_sentinel(range(RAW, RAW + 20), ACR, alldone)
    loop, done = A.newlabel("Lx2"), A.newlabel("Lx2d")
    A(f"s_mov_b32 s62, {SPIN}")
    A("s_mov_b64 vcc, -1")
    A.label(loop)
    A("s_mov_b64 exec, vcc")
    x2loads()
    A("s_mov_b64 exec, -1")
    A("s_waitcnt vmcnt(0)")
    any_sentinel(range(RAW, RAW + 20), ACR, done)
    spin_tail(loop, 62, opt("x2sleep", 0))
    A.label(done)
    A.label(alldone)
    stamp(7)
    Z = ACR + 12
    for i in range(10):
        A(f"v_lshlrev_b32 {v(Z+2*i)}, 16, {v(RAW+2*i)}")
        A(f"v_and_b32 {v(Z+2*i+1)}, 0xffff0000, {v(RAW+2*i)}")
    for i in range(10):
        A(f"ds_write_b32 {v(vNW)}, {v(RAW+2*i)} offset:{256*i}")
    ln_stats(Z, ACR + 2)
    ln_center_scale(Z, Z, ACR + 2, EXACT)
    to_f16(Z, ACR + 2, sub=lambda i: RAW + 2 * i + 1)
    CBL = [16 + 4 * i for i in range(6)] + [AF1, AF1 + 4, AF1 + 8, XN + 8]
    WA = TWC
    def shadow1():
        for i in range(10):
            A(f"ds_read_b32 {v(CBL[i]+2)}, {v(vLYR)} offset:{128*i}")
        for i in range(10):
            A(f"s_waitcnt lgkmcnt({9-i})")
            A(f"v_fma_mix_f32 {v(CBL[i])}, {v(CBL[i]+2)}, s{s32f}, {v(X+2*i)} op_sel:[0,0,0] op_sel_hi:[1,0,0]")
            A(f"v_fma_mix_f32 {v(CBL[i]+1)}, {v(CBL[i]+2)}, s{s32f}, {v(X+2*i+1)} op_sel:[1,0,0] op_sel_hi:[1,0,0]")
    def shadow2():
        for i in range(10):
            A(f"v_add_u32 {v(WA+i)}, {i}, {v(vER)}")
            A(f"v_bfe_u32 {v(WA+i)}, {v(WA+i)}, 5, 1")
            A(f"v_lshl_add_u32 {v(WA+i)}, {v(WA+i)}, 4, {v(vE0)}")
    A("s_waitcnt lgkmcnt(0)")
    row_dft(XN, shadow1, shadow2)
    stamp(18)
    for i in range(10):
        A(f"v_cvt_pk_f16_f32 {v(ACR+i)}, {v(AC2R+i)}, {v(AC2I+i)}")
        A(f"ds_write_b32 {v(WA+i)}, {v(ACR+i)} offset:{16*i}")
    A("s_mov_b64 exec, 1")
    A(f"ds_write_b32 {v(vE0)}, {v(ACR)} offset:{660*16}")
    A("s_mov_b64 exec, -1")
    A("s_waitcnt lgkmcnt(0)")
    A("s_barrier")
    FRL = [40 + 4 * q for q in range(16)] + [160 + 4 * q for q in range(4)]
    def corr(k):
        A(f"v_mfma_f32_16x16x32_f16 {v(CBL[k],4)}, {v(CU,4)}, {v(FRL[2*k],4)}, {v(CBL[k],4)}")
        A(f"v_mfma_f32_16x16x32_f16 {v(CBL[k],4)}, {v(CV,4)}, {v(FRL[2*k+1],4)}, {v(CBL[k],4)}")
    for i in range(10):
        A(f"ds_read_b128 {v(FRL[2*i],4)}, {v(vDF)} offset:{528*i}")
        A(f"ds_read_b128 {v(FRL[2*i+1],4)}, {v(vDM)} offset:{528*(9-i)}")
        if i >= 6:
            A(f"s_waitcnt lgkmcnt(12)")
            corr(i - 6)
    for k in range(4, 10):
        A(f"s_waitcnt lgkmcnt({2*(9-k)})")
        corr(k)
    stamp(19)
    for row in range(2):
        Lnext = A.newlabel("Lown")
        A(f"s_cmp_lt_i32 s{76+row}, 0")
        A(f"s_cbranch_scc1 {Lnext}")
        A(f"s_lshr_b32 s62, s{76+row}, 1")
        A("s_mul_i32 s62, s62, 2560")
        A(f"s_add_u32 s62, s62, {LDS_NEW}")
        A(f"s_and_b32 s61, s{76+row}, 1")
        A("s_lshl_b32 s61, s61, 4")
        A("s_sub_u32 s61, 16, s61")
        A(f"v_lshl_add_u32 {v(240)}, v1, 2, s62")
        for i in range(10):
            A(f"ds_read_b32 {v(241+i)}, {v(240)} offset:{256*i}")
        A("s_waitcnt lgkmcnt(0)")
        for i in range(10):
            A(f"v_lshlrev_b32 {v(241+i)}, s61, {v(241+i)}")
            A(f"v_and_b32 {v(241+i)}, 0xffff0000, {v(241+i)}")
            A(f"v_sub_f32 {v(241+i)}, {v(241+i)}, {v(X+2*i+row)}")
            A(f"v_add_f32 {v(CBL[i]+row)}, {v(CBL[i]+row)}, {v(241+i)}")
        A.label(Lnext)
    for u in range(5):
        A(f"v_cvt_pk_bf16_f32 {v(PA+u)}, {v(CBL[2*u])}, {v(CBL[2*u+1])}")
        A(f"v_cvt_pk_bf16_f32 {v(PB+u)}, {v(CBL[2*u]+1)}, {v(CBL[2*u+1]+1)}")
    unpack_rows(X, PA, PB)
    ln_stats(X, ACR)
    ln_center_scale(X, XN, ACR, EXACT1)
    if EXACT1:
        pack_rows(XN, PA + 16, PB + 16)
        unpack_rows(XN, PA + 16, PB + 16)
    stamp(20)
    router_publish(1, ACI + 8, PA + 16, PB + 16)
    if not EXACT1:
        unpack_rows(XN, PA + 16, PB + 16)
    stamp(8, dbg=(14, 0))
    OB = 16
    A(f"s_mul_i32 s60, s{WV}, 2560")
    A(f"v_add_u32 {v(OB)}, s60, {v(vX)}")
    for i in range(10):
        A(f"v_pk_add_f32 {v(X+2*i,2)}, {v(X+2*i,2)}, {v(XN+2*i,2)}")
        A(f"v_cvt_pk_bf16_f32 {v(OB+2+i)}, {v(X+2*i)}, {v(X+2*i+1)}")
        A(f"ds_write_b16 {v(OB)}, {v(OB+2+i)} offset:{64*i}")
        A(f"ds_write_b16_d16_hi {v(OB)}, {v(OB+2+i)} offset:{1280+64*i}")
    A(f"v_lshlrev_b32 {v(OB+1)}, 4, v1")
    A(f"v_add_u32 {v(OB)}, s60, {v(OB+1)}")
    A("s_waitcnt lgkmcnt(0)")
    for k in range(3):
        A(f"ds_read_b128 {v(OB+12+4*k,4)}, {v(OB)} offset:{1024*k}")
    A(f"v_add_u32 {v(OB+2)}, {1024 + 63 * 1280}, {v(OB+1)}")
    A(f"v_add_u32 {v(OB+3)}, 1024, {v(OB+1)}")
    A(f"v_cmp_gt_u32 vcc, 16, v1")
    A(f"v_cndmask_b32 {v(OB+3)}, {v(OB+2)}, {v(OB+3)}, vcc")
    def out_stores():
        A("s_waitcnt lgkmcnt(0)")
        A(f"buffer_store_dwordx4 {v(OB+12,4)}, {v(OB+1)}, {SRD2}, s{sXO} offen sc1")
        A(f"buffer_store_dwordx4 {v(OB+16,4)}, {v(OB+3)}, {SRD2}, s{sXO} offen sc1")
        set_exec(0xffffffff)
        A(f"buffer_store_dwordx4 {v(OB+20,4)}, {v(OB+2)}, {SRD2}, s{sXO} offen offset:1024 sc1")
        A("s_mov_b64 exec, -1")
    OD = opt("outdelay", 0)
    if OD:
        A(f"s_lshl_b32 s73, s{sRHO}, 4")
        A(f"s_add_u32 s73, s73, {RG_OFF + NRR * RG_REP}")
        A(f"v_mov_b32 {v(ACR)}, 0")
        for _ in range(OD):
            A(f"buffer_load_dword {v(ACR+1)}, {v(ACR)}, {WS}, s73 offen sc1")
            A("s_waitcnt vmcnt(0)")
    out_stores()
    release_candidates(1, False)
    wait_sel(1, False)
    stamp(22)
    stamp(9)
    A("s_endpgm")

def roleC():
    A.label("L_roleC")
    B1, TC, TS, A2, DT, RAW, AR, AI, P, AC, O, T = 16, 32, 48, 64, 128, 160, 176, 192, 208, 224, 240, 248
    sC, sCME, sCREP, sK, sW0, sW1, sY, sLAST = 22, 23, 24, 25, 26, 27, 28, 29
    nonce_load(T + 4)
    if opt("prefc", 1) == 1:
        warm_weights(AC, C0, 29, PPART)
    A(f"s_sub_u32 s60, s2, {C0}")
    A("s_and_b32 s61, s60, 7")
    A("s_lshr_b32 s62, s60, 3")
    A("s_lshr_b32 s63, s62, 2")
    A("s_lshl_b32 s63, s63, 5")
    A("s_lshl_b32 s61, s61, 2")
    A("s_and_b32 s62, s62, 3")
    A(f"s_add_u32 s{sC}, s63, s61")
    A(f"s_add_u32 s{sC}, s{sC}, s62")
    A(f"s_and_b32 s{sCME}, s2, 15")
    A(f"s_cmp_eq_u32 s{sCME}, 0")
    A(f"s_cselect_b32 s{sLAST}, 10, 9")
    A(f"s_and_b32 s{sCREP}, s2, {NREP - 1}")
    A(f"s_lshl_b32 s{sCREP}, s{sCREP}, {FSH + 4}")
    n, g, t1, gs, arg, base, st = RAW, RAW + 1, RAW + 2, RAW + 3, RAW + 4, RAW + 5, RAW + 6
    ca, sa, cb, sb, x0, x1 = RAW + 7, RAW + 8, RAW + 9, RAW + 10, RAW + 11, RAW + 12
    A(f"v_and_b32 {v(n)}, 15, v1")
    A(f"v_lshrrev_b32 {v(g)}, 4, v1")
    A(f"s_and_b32 s70, s{WV}, 1")
    A(f"s_lshl_b32 s70, s70, 4")
    A(f"s_lshr_b32 s61, s{WV}, 1")
    A(f"v_lshrrev_b32 v2, 1, v0")
    A(f"v_and_b32 v6, 1, v0")
    A(f"s_lshl_b32 s62, s{sC}, 1")
    A(f"v_add_u32 v3, s62, v6")
    A(f"v_min_u32 v3, 320, v3")
    A(f"v_sub_u32 v4, 640, v3")
    A(f"v_cmp_ne_u32 vcc, 0, v3")
    A(f"v_cndmask_b32 v4, 0, v4, vcc")
    A(f"v_add_u32 v5, 7, v4")
    A(f"v_cmp_lt_u32 vcc, 320, v4")
    A(f"v_cndmask_b32 v4, v4, v5, vcc")
    A(f"v_mul_u32_u24 v5, {WROW}, v2")
    A(f"v_mul_u32_u24 v6, 8256, v6")
    A(f"v_lshl_add_u32 v6, v2, 4, v6")
    A(f"v_lshl_add_u32 v2, v3, 4, v5")
    A(f"v_lshl_add_u32 v3, v4, 4, v5")
    A(f"s_mul_i32 s63, s61, 8256")
    A(f"v_lshlrev_b32 v7, 10, {v(g)}")
    A(f"v_lshl_add_u32 v7, {v(n)}, 4, v7")
    A(f"v_add_u32 v7, s63, v7")
    A(f"s_add_u32 s62, s62, s61")
    A(f"s_lshl_b32 s71, s62, 6")
    A(f"s_mul_i32 s62, s62, {YCOL}")
    A(f"v_lshl_add_u32 v8, {v(g)}, 6, {v(n)}")
    A(f"v_add_u32 v8, s70, v8")
    A(f"v_lshl_add_u32 v8, v8, 4, s62")
    A(f"s_add_u32 s62, s71, {YM_OFF + 48}")
    A(f"v_lshlrev_b32 v9, 4, {v(g)}")
    A(f"v_sub_u32 v9, s62, v9")
    def Y_stores(r0, r1, rm, sy, prep=None):
        A(f"buffer_store_dwordx4 {v(r0,4)}, v8, {WS}, {sy} offen sc1")
        A(f"buffer_store_dwordx4 {v(r1,4)}, v8, {WS}, {sy} offen offset:512 sc1")
        Lm = A.newlabel("Lym")
        A(f"s_bitcmp1_b32 s{WV}, 0")
        A(f"s_cbranch_scc1 {Lm}")
        if prep:
            prep()
        set_exec(0x0001000100010001)
        A(f"buffer_store_dwordx4 {v(rm,4)}, v9, {WS}, {sy} offen sc1")
        A("s_mov_b64 exec, -1")
        A.label(Lm)
    A(f"s_waitcnt vmcnt({nloads(PPART) if opt('prefc', 1) == 1 else 0})")
    nonce_take(T + 4)
    Li = A.newlabel("Lci")
    A(f"s_sub_u32 s60, s2, {C0}")
    A(f"s_lshl_b32 s61, s{WV}, 4")
    A(f"s_or_b32 s60, s60, s61")
    A(f"s_cmp_ge_u32 s60, 16")
    A(f"s_cbranch_scc1 {Li}")
    cnt_init(sCME, range(4), T)
    A.label(Li)
    for k in range(4):
        A(f"v_mov_b32 {v(O+k)}, -1")
    for lay in range(2 if opt("y2fill", 2) == 0 else 1):
        A(f"s_mov_b32 s63, {Y_OFF + lay * Y_SZ}")
        Y_stores(O, O, O, "s63")
    if opt("prefc", 1) == 2:
        warm_weights(AC, C0, 29, PPART)
    A(f"v_add_u32 {v(t1)}, s70, {v(n)}")
    A(f"v_cvt_f32_u32 {v(t1)}, {v(t1)}")
    A(f"v_cvt_f32_u32 {v(gs)}, {v(g)}")
    A(f"v_mul_f32 {v(st)}, {f32(1/32)}, {v(t1)}")
    A(f"v_mul_f32 {v(base)}, {v(st)}, {v(gs)}")
    A(f"v_mul_f32 {v(base)}, {f32(8.0)}, {v(base)}")
    for w in range(4):
        A(f"v_fmamk_f32 {v(arg)}, {v(st)}, {f32(2*w)}, {v(base)}")
        sincos(arg, ca, sa)
        A(f"v_add_f32 {v(arg)}, {v(arg)}, {v(st)}")
        sincos(arg, cb, sb)
        A(f"v_sub_f32 {v(x0)}, {v(ca)}, {v(sb)}")
        A(f"v_add_f32 {v(x1)}, {v(sa)}, {v(cb)}")
        A(f"v_cvt_pk_f16_f32 {v(B1+w)}, {v(x0)}, {v(x1)}")
        A(f"v_cvt_pk_f16_f32 {v(B1+4+w)}, -{v(x1)}, {v(x0)}")
        A(f"v_add_f32 {v(x0)}, {v(ca)}, {v(sb)}")
        A(f"v_sub_f32 {v(x1)}, {v(cb)}, {v(sa)}")
        A(f"v_cvt_pk_f16_f32 {v(B1+8+w)}, {v(x0)}, {v(x1)}")
        A(f"v_cvt_pk_f16_f32 {v(B1+12+w)}, {v(x1)}, -{v(x0)}")
    A(f"v_mul_f32 {v(st)}, {f32(1/2048)}, {v(t1)}")
    A(f"v_mul_f32 {v(base)}, {v(st)}, {v(gs)}")
    A(f"v_mul_f32 {v(base)}, 4.0, {v(base)}")
    for j in range(4):
        for i in range(4):
            A(f"v_fmamk_f32 {v(arg)}, {v(st)}, {f32(16*j+i)}, {v(base)}")
            sincos(arg, ca, sa)
            A(f"v_mul_f32 {v(TC+4*j+i)}, {f32(1/64)}, {v(ca)}")
            A(f"v_mul_f32 {v(TS+4*j+i)}, {f32(1/64)}, {v(sa)}")
    A(f"v_lshrrev_b32 {v(x0)}, 2, {v(n)}")
    A(f"v_lshlrev_b32 {v(x0)}, 4, {v(x0)}")
    A(f"v_and_b32 {v(x1)}, 3, {v(n)}")
    A(f"v_lshl_add_u32 {v(x0)}, {v(x1)}, 1, {v(x0)}")
    A(f"s_lshr_b32 s60, s70, 1")
    A(f"s_lshr_b32 s61, s{WV}, 1")
    A(f"s_add_u32 s60, s60, s61")
    A(f"v_add_u32 {v(x0)}, s60, {v(x0)}")
    A(f"v_cvt_f32_u32 {v(x0)}, {v(x0)}")
    A(f"v_mul_f32 {v(st)}, {f32(1/64)}, {v(x0)}")
    A(f"v_mul_f32 {v(base)}, {v(st)}, {v(gs)}")
    A(f"v_mul_f32 {v(base)}, 4.0, {v(base)}")
    A(f"s_lshl_b32 s60, s{WV}, 12")
    A(f"s_add_u32 s60, s60, 24576")
    A(f"v_lshl_add_u32 {v(x1)}, v1, 4, s60")
    for j in range(4):
        for i in range(4):
            A(f"v_fmamk_f32 {v(arg)}, {v(st)}, {f32(16*j+i)}, {v(base)}")
            sincos(arg, ca, sa)
            A(f"v_cvt_pk_f16_f32 {v(DT+4*j+i)}, {v(ca)}, {v(sa)}")
        A(f"ds_write_b128 {v(x1)}, {v(DT+4*j,4)} offset:{1024*j}")
    A(f"v_lshlrev_b32 {v(x1)}, 4, v1")
    A("s_waitcnt lgkmcnt(0)")
    A("s_barrier")
    for q in range(16):
        A(f"ds_read_b128 {v(A2+4*q,4)}, {v(x1)} offset:{24576 + 1024*q}")
        if q == 7:
            A("s_waitcnt lgkmcnt(0)")
    A("s_waitcnt vmcnt(0)")
    prio(3)
    A(f"s_mov_b32 s{sK}, 0")
    A(f"s_mov_b32 s{sW0}, {W_OFF}")
    A(f"s_mov_b32 s{sY}, {Y_OFF}")
    if opt("touch", 0) > 1:
        touch(T, W_OFF, 2 * W_SZ)
    stamp(4, dbg=(4, C0))
    A.label("L_Cloop")
    A(f"s_add_u32 s{sW1}, s{sW0}, {128 * WROW}")
    poll_flags(f"s{sK}", sCREP, T)
    stamp(0, f"s{sK}", dbg=(5, C0, 0))
    loop, done = A.newlabel("Lcw"), A.newlabel("Lcwd")
    A(f"s_add_u32 s30, s{sK}, 1")
    AWC = opt("awc", 1)
    if EARLY_C >= 2:
        arrive_issue("s30", sCME, O, AWC)
    A(f"s_mov_b32 s62, {SPIN}")
    A.label(loop)
    A(f"buffer_load_dwordx4 {v(RAW,4)}, v2, {WS}, s{sW0} offen sc1")
    A(f"buffer_load_dwordx4 {v(RAW+4,4)}, v2, {WS}, s{sW1} offen sc1")
    A(f"buffer_load_dwordx4 {v(RAW+8,4)}, v3, {WS}, s{sW0} offen sc1")
    A(f"buffer_load_dwordx4 {v(RAW+12,4)}, v3, {WS}, s{sW1} offen sc1")
    A("s_mov_b32 s31, 0")
    for j in range(4):
        if j == 3 and EARLY_C >= 3:
            Lw = A.newlabel("Lce")
            A("s_waitcnt vmcnt(1)")
            A("s_cmp_eq_u32 s31, 1")
            A(f"s_cbranch_scc1 {Lw}")
            A("s_waitcnt vmcnt(0)")
            A.label(Lw)
        else:
            A(f"s_waitcnt vmcnt({3-j})")
        A(f"ds_write_b128 v6, {v(RAW+4*j,4)} offset:{(j>>1)*4096 + (j&1)*2048}")
        if EARLY_C >= 3 and j == EARLY_C - 3:
            Lq = A.newlabel("Lce")
            A(f"s_cmp_lg_u32 s62, {SPIN}")
            A(f"s_cbranch_scc1 {Lq}")
            arrive_finish("s30", sCME, f"s{sLAST}", O, 3 - j, AWC, "s31")
            A.label(Lq)
    any_sentinel(range(RAW, RAW + 16), T, done)
    spin_tail(loop, 62, 2)
    A.label(done)
    if EARLY_C == 1:
        arrive_issue("s30", sCME, O, AWC)
    A("s_waitcnt lgkmcnt(0)")
    A("s_barrier")
    stamp(1, f"s{sK}")
    for j in range(4):
        A(f"ds_read_b128 {v(DT+8*j,4)}, v7 offset:{256*j}")
        A(f"ds_read_b128 {v(DT+8*j+4,4)}, v7 offset:{4096+256*j}")
    if EARLY_C == 2:
        arrive_finish("s30", sCME, f"s{sLAST}", O, 0, AWC)
    for j in range(4):
        A(f"s_waitcnt lgkmcnt({7-2*j})")
        A(f"v_mfma_f32_16x16x32_f16 {v(AR+4*j,4)}, {v(DT+8*j,4)}, {v(B1,4)}, 0")
        A(f"v_mfma_f32_16x16x32_f16 {v(AI+4*j,4)}, {v(DT+8*j,4)}, {v(B1+4,4)}, 0")
        A(f"s_waitcnt lgkmcnt({6-2*j})")
        A(f"v_mfma_f32_16x16x32_f16 {v(AR+4*j,4)}, {v(DT+8*j+4,4)}, {v(B1+8,4)}, {v(AR+4*j,4)}")
        A(f"v_mfma_f32_16x16x32_f16 {v(AI+4*j,4)}, {v(DT+8*j+4,4)}, {v(B1+12,4)}, {v(AI+4*j,4)}")
    A(f"s_add_u32 s{sK}, s{sK}, 1")
    for j in range(4):
        for i in (4 * j, 4 * j + 2):
            pr, pi = RAW + (i % 4) * 2, RAW + (i % 4) * 2 + 2
            A(f"v_pk_mul_f32 {v(pr,2)}, {v(AR+i,2)}, {v(TC+i,2)}")
            A(f"v_pk_mul_f32 {v(pi,2)}, {v(AI+i,2)}, {v(TC+i,2)}")
            A(f"v_pk_fma_f32 {v(pr,2)}, {v(AI+i,2)}, {v(TS+i,2)}, {v(pr,2)}")
            A(f"v_pk_fma_f32 {v(pi,2)}, {v(AR+i,2)}, {v(TS+i,2)}, {v(pi,2)} neg_lo:[1,0,0] neg_hi:[1,0,0]")
            A(f"v_cvt_pk_f16_f32 {v(P+i)}, {v(pr)}, {v(pi)}")
            A(f"v_cvt_pk_f16_f32 {v(P+i+1)}, {v(pr+1)}, {v(pi+1)}")
        for jm in range(4):
            c = "0" if j == 0 else v(AC + 4 * jm, 4)
            A(f"v_mfma_f32_16x16x32_f16 {v(AC+4*jm,4)}, {v(A2+16*jm+4*j,4)}, {v(P+4*j,4)}, {c}")
        if j == opt("cfin", 1) and EARLY_C == 1:
            arrive_finish("s30", sCME, f"s{sLAST}", O, 0, AWC)
    for k in range(8):
        A(f"v_cvt_pk_f16_f32 {v(O+k)}, {v(AC+2*k)}, {v(AC+2*k+1)}")
    def prep():
        for gq in range(4):
            A(f"v_readlane_b32 s{60+gq}, {v(O)}, {16*((gq+1)%4)}")
        for gq in range(4):
            A(f"v_writelane_b32 {v(P+4)}, s{60+gq}, {16*gq}")
        for k in range(3):
            A(f"v_alignbit_b32 {v(P+k)}, {v(O+k+1)}, {v(O+k)}, 16")
        A(f"v_alignbit_b32 {v(P+3)}, {v(P+4)}, {v(O+3)}, 16")
    Y_stores(O, O + 4, P, f"s{sY}", prep)
    stamp(3, f"s{sK}", dbg=(6, C0, 1))
    A(f"s_add_u32 s{sK}, s{sK}, 1")
    A(f"s_add_u32 s{sW0}, s{sW0}, {W_SZ}")
    A(f"s_add_u32 s{sY}, s{sY}, {Y_SZ}")
    A(f"s_cmp_ge_u32 s{sK}, 4")
    A("s_cbranch_scc1 L_end")
    A("s_waitcnt vmcnt(0)")
    if opt("y2fill", 2) == 2:
        for k in range(4):
            A(f"v_mov_b32 {v(O+k)}, -1")
        Y_stores(O, O, O, f"s{sY}")
        A("s_waitcnt vmcnt(0)")
    if opt("y2fill", 2) == 1:
        lp, dn = A.newlabel("Lcy"), A.newlabel("Lcy")
        A(f"s_mov_b32 s60, {RG_OFF}")
        A(f"v_mov_b32 {v(T)}, 0")
        A(f"s_mov_b32 s62, {SPIN}")
        A.label(lp)
        A(f"buffer_load_dword {v(T+1)}, {v(T)}, {WS}, s60 offen sc1")
        A("s_waitcnt vmcnt(0)")
        A(f"v_cmp_eq_u32 vcc, -1, {v(T+1)}")
        A(f"s_cbranch_vccz {dn}")
        spin_tail(lp, 62, 4)
        A.label(dn)
        for k in range(4):
            A(f"v_mov_b32 {v(O+k)}, -1")
        Y_stores(O, O, O, f"s{sY}")
        A("s_waitcnt vmcnt(0)")
    A("s_branch L_Cloop")

SORT8 = [(0, 1), (2, 3), (4, 5), (6, 7), (0, 2), (1, 3), (4, 6), (5, 7), (1, 2), (5, 6), (0, 4), (3, 7),
         (1, 5), (2, 6), (1, 4), (3, 6), (2, 4), (3, 5), (3, 4)]

def topk_setup(CODE, vG, vLW, vLR, LDS0):
    A(f"v_lshrrev_b32 {v(CODE)}, 6, v0")
    A(f"v_lshlrev_b32 {v(CODE)}, 9, {v(CODE)}")
    A(f"v_add_u32 {v(CODE)}, {v(CODE)}, v1")
    A(f"v_sub_u32 {v(CODE)}, 2047, {v(CODE)}")
    for i in range(1, 8):
        A(f"v_subrev_u32 {v(CODE+i)}, {64*i}, {v(CODE)}")
    A(f"v_lshlrev_b32 {v(vG)}, {RSH}, v0")
    A(f"v_lshrrev_b32 {v(vLW)}, 4, v0")
    A(f"v_lshlrev_b32 {v(vLW)}, 5, {v(vLW)}")
    A(f"v_add_u32 {v(vLW)}, {LDS0}, {v(vLW)}")
    A(f"v_and_b32 {v(vLR)}, 15, v1")
    A(f"v_lshlrev_b32 {v(vLR)}, 5, {v(vLR)}")
    A(f"v_add_u32 {v(vLR)}, {LDS0}, {v(vLR)}")

def topk(K, CODE, vG, vLW, vLR, sRG, blk, dbg, mid=None, dry=False):
    G = K + 16
    prio(0)
    Ldry = A.newlabel("Ldry")
    if dry:
        A("s_cmp_eq_u32 s37, 1")
        A(f"s_cbranch_scc1 {Ldry}")
    for gate in (True, False):
        loop, done = A.newlabel("Lrg"), A.newlabel("Lrgd")
        A(f"s_mov_b32 s62, {SPIN}")
        if gate:
            set_exec(((1 << opt("gl", 2)) - 1) << (64 - opt("gl", 2)))
        A.label(loop)
        A(f"buffer_load_dwordx4 {v(G,4)}, {v(vG)}, {WS}, s{sRG} offen sc1")
        A("s_waitcnt vmcnt(0)")
        any_sentinel(range(G, G + 4), K, done)
        if opt("rlane", 0):
            A("s_mov_b64 exec, vcc")
        spin_tail(loop, 62, opt("rsleep", 0))
        A.label(done)
        A("s_mov_b64 exec, -1")
    prio(3)
    stamp(3, "s27", dbg=dbg)
    A.label(Ldry)
    A("s_mov_b32 s63, 0xffff0000")
    cur = list(range(K, K + 8))
    for k in range(4):
        A(f"v_lshl_or_b32 {v(cur[2*k])}, {v(G+k)}, 16, {v(CODE+2*k)}")
        A(f"v_and_or_b32 {v(cur[2*k+1])}, {v(G+k)}, s63, {v(CODE+2*k+1)}")
    free = list(range(K + 8, K + 24))

    def ce(i, j, dst=None):
        if dst is None:
            t = free.pop(0)
            A(f"v_max_u32 {v(t)}, {v(cur[i])}, {v(cur[j])}")
            A(f"v_min_u32 {v(cur[j])}, {v(cur[i])}, {v(cur[j])}")
            free.append(cur[i])
            cur[i] = t
        else:
            A(f"v_max_u32 {v(dst+i)}, {v(cur[i])}, {v(cur[j])}")
            A(f"v_min_u32 {v(dst+j)}, {v(cur[i])}, {v(cur[j])}")

    for (i, j) in SORT8:
        ce(i, j)
    pats = ["quad_perm:[1,0,3,2]", "quad_perm:[2,3,0,1]", "row_half_mirror", "row_mirror"]
    for rnd in range(2):
        for li, pat in enumerate(pats):
            new = [free.pop(0) for _ in range(8)]
            for i in (7, 6, 5, 4, 3, 2, 1, 0) if False else range(8):
                A(f"v_max_u32_dpp {v(new[i])}, {v(cur[7-i])}, {v(cur[i])} {pat} row_mask:0xf bank_mask:0xf")
            free.extend(cur)
            cur = new
            if rnd == 1 and li == 3:
                return cur
            for i in range(4):
                ce(i, i + 4)
            for i in (0, 1, 4, 5):
                ce(i, i + 2)
            if rnd == 0 and li == 3:
                for i in (0, 2, 4, 6):
                    ce(i, i + 1, dst=blk)
                set_exec(0x0001000100010001)
                A(f"ds_write_b128 {v(vLW)}, {v(blk,4)}")
                A(f"ds_write_b128 {v(vLW)}, {v(blk+4,4)} offset:16")
                A("s_mov_b64 exec, -1")
                A("s_waitcnt lgkmcnt(0)")
                A("s_barrier")
                A(f"ds_read_b128 {v(K,4)}, {v(vLR)}")
                A(f"ds_read_b128 {v(K+4,4)}, {v(vLR)} offset:16")
                A("s_waitcnt lgkmcnt(0)")
                if mid:
                    mid(K)
                cur = list(range(K, K + 8))
                free = list(range(K + 8, K + 24))
            else:
                for i in (6, 4, 2, 0):
                    ce(i, i + 1)

def load_weight_frags(jobs):
    total = sum(8 * j[3] for j in jobs)
    for (srdn, voff_of, soff_of, nsteps, dst, raw, vfull) in jobs:
        for k in range(nsteps):
            for q in range(8):
                d = raw + 8 * k + q
                if vfull is not None and k == vfull:
                    A(f"v_add_u32 {v(d)}, {soff_of(k, q)}, {v(voff_of(k))}")
                    A(f"buffer_load_dword {v(d)}, {v(d)}, {srdn}, 0 offen")
                    continue
                A(f"s_mov_b32 s60, {soff_of(k, q)}")
                A(f"buffer_load_dword {v(d)}, {v(voff_of(k))}, {srdn}, s60 offen")
    done = 0
    for (srdn, voff_of, soff_of, nsteps, dst, raw, vfull) in jobs:
        for k in range(nsteps):
            done += 8
            A(f"s_waitcnt vmcnt({min(63, total - done)})")
            r = raw + 8 * k
            for u in range(4):
                A(f"v_perm_b32 {v(dst + 8*k + u)}, {v(r+2*u+1)}, {v(r+2*u)}, s58")
                A(f"v_perm_b32 {v(dst + 8*k + 4 + u)}, {v(r+2*u+1)}, {v(r+2*u)}, s59")

def roleFa():
    A.label("L_roleFa")
    GW, UW, RAW, AFR, ACC, K, CODE = 16, 56, 96, 136, 156, 176, 200
    vG, vLW, vLR, vW1, vW2, vLP1, vLP2, vPW, vPR, vH = 2, 3, 4, 5, 6, 7, 8, 9, 10, 11
    sKAP, sRG, sT, sH, sL = 22, 23, 25, 26, 27
    T = 208
    nonce_load(T + 8)
    if opt("prefc", 1) == 1:
        warm_weights(T + 12, C0, 29, PPART)
    srd(8, 46, 2211840)
    srd(12, 48, 2211840)
    A(f"s_sub_u32 s60, s2, {FA0 - 1}")
    A(f"s_and_b32 s61, s60, 7")
    A(f"s_lshr_b32 s60, s60, 3")
    A(f"s_mul_i32 s{sKAP}, s61, 7")
    A(f"s_add_u32 s{sKAP}, s{sKAP}, s60")
    A(f"s_sub_u32 s{sKAP}, s{sKAP}, 1")
    A("s_mov_b32 s58, 0x05040100")
    A("s_mov_b32 s59, 0x07060302")
    n, g = T, T + 1
    A(f"v_and_b32 {v(n)}, 15, v1")
    A(f"v_lshrrev_b32 {v(g)}, 4, v1")
    A(f"s_lshr_b32 s60, s{WV}, 1")
    A(f"s_mul_i32 s60, s60, 320")
    A(f"s_and_b32 s61, s{WV}, 1")
    A(f"s_lshl_b32 s61, s61, 4")
    A(f"s_add_u32 s60, s60, s61")
    A(f"s_lshl_b32 s61, s{sKAP}, 6")
    A(f"v_lshl_add_u32 {v(T+2)}, {v(n)}, 2, s61")
    A(f"v_add_u32 {v(vW1)}, s60, {v(g)}")
    A(f"v_mul_u32_u24 {v(vW1)}, 3456, {v(vW1)}")
    A(f"v_add_u32 {v(vW1)}, {v(vW1)}, {v(T+2)}")
    A(f"v_lshl_add_u32 {v(vW2)}, {v(g)}, 2, s60")
    A(f"v_mul_u32_u24 {v(vW2)}, 3456, {v(vW2)}")
    A(f"v_add_u32 {v(vW2)}, {v(vW2)}, {v(T+2)}")
    voff = lambda k: vW1 if k < 4 else vW2
    soff = lambda k, q: ((32 * q + 4 * k) if k < 4 else (256 + 32 * (q & 1) + (q >> 1))) * 3456
    A("s_waitcnt vmcnt(0)")
    nonce_take(T + 8)
    A(f"s_and_b32 s29, s2, {NREP - 1}")
    A(f"s_lshl_b32 s29, s29, {FSH + 4}")
    if opt("prefc", 1) == 2:
        warm_weights(T + 12, C0, 29, PPART)
    srd(16, 44, 1280)
    A(f"v_and_b32 {v(T+2)}, 31, v1")
    A(f"v_lshrrev_b32 {v(T+3)}, 5, v1")
    A(f"v_mul_u32_u24 {v(T+3)}, 640, {v(T+3)}")
    A(f"v_lshl_add_u32 {v(T+2)}, {v(T+2)}, 1, {v(T+3)}")
    for i in range(10):
        A(f"v_mov_b32 {v(K+i)}, 0")
        A(f"buffer_load_short_d16_hi {v(K+i)}, {v(T+2)}, {SRD3}, 0 offen offset:{64*i}")
    A("s_waitcnt vmcnt(0)")
    tau_of(K, T + 2, 1.0 + 1.0 / 32)
    A(f"v_or_b32 {v(T+2)}, 0x80000000, {v(T+2)}")
    A(f"v_readfirstlane_b32 s36, {v(T+2)}")
    poll_flags(0, 29, T + 4, opt("fsleep", 2))
    if opt("coop", 4):
        warm_coop(T + 12)
    if opt("wide", 0):
        A(f"s_lshr_b32 s60, s{WV}, 1")
        A(f"s_mul_i32 s60, s60, 320")
        A(f"s_and_b32 s61, s{WV}, 1")
        A(f"s_lshl_b32 s61, s61, 4")
        A(f"s_add_u32 s60, s60, s61")
        A(f"v_lshrrev_b32 {v(T+4)}, 2, v1")
        A(f"v_add_u32 {v(T+4)}, s60, {v(T+4)}")
        A(f"v_mul_u32_u24 {v(T+4)}, 3456, {v(T+4)}")
        A(f"v_and_b32 {v(T+5)}, 3, v1")
        A(f"s_lshl_b32 s61, s{sKAP}, 6")
        A(f"v_lshl_add_u32 {v(T+5)}, {v(T+5)}, 4, s61")
        A(f"v_add_u32 {v(T+4)}, {v(T+4)}, {v(T+5)}")
        for j in range(10):
            A(f"s_mov_b32 s60, {32 * j * 3456}")
            A(f"buffer_load_dwordx4 {v(T+12,4)}, {v(T+4)}, {SRD1}, s60 offen")
            A(f"buffer_load_dwordx4 {v(T+12,4)}, {v(T+4)}, {SRD2}, s60 offen")
        if opt("wide", 0) == 2:
            A("s_waitcnt vmcnt(0)")
    load_weight_frags([(SRD1, voff, soff, 5, GW, RAW, None), (SRD2, voff, soff, 5, UW, RAW + 40, None)])
    topk_setup(CODE, vG, vLW, vLR, 24576)
    A(f"v_and_b32 {v(T+2)}, 7, v1")
    A(f"s_lshl_b32 s60, s{WV}, 8")
    A(f"v_lshl_add_u32 {v(vLP1)}, {v(T+2)}, 4, s60")
    A(f"s_lshl_b32 s60, s{WV}, 6")
    A(f"s_add_u32 s60, s60, 1024")
    A(f"v_lshl_add_u32 {v(vLP2)}, {v(T+2)}, 4, s60")
    A(f"s_mul_i32 s60, s{WV}, 2688")
    A(f"s_add_u32 s60, s60, 12288")
    A(f"v_lshrrev_b32 {v(T+3)}, 3, v1")
    A(f"v_mul_u32_u24 v13, 336, {v(T+3)}")
    A(f"v_lshl_add_u32 v13, {v(T+2)}, 4, v13")
    A(f"v_add_u32 v13, s60, v13")
    A(f"v_mul_u32_u24 v14, 336, {v(T+2)}")
    A(f"v_lshl_add_u32 v14, {v(g)}, 4, v14")
    A(f"v_add_u32 v14, s60, v14")
    A(f"s_lshl_b32 s60, s{WV}, 8")
    A(f"v_lshl_add_u32 v15, {v(g)}, 7, s60")
    A(f"s_lshl_b32 s60, s{WV}, 6")
    A(f"s_add_u32 s60, s60, 1024")
    A(f"v_mov_b32 {v(T+4)}, s60")
    A(f"v_cmp_gt_u32 vcc, 2, {v(g)}")
    A(f"v_cndmask_b32 v15, {v(T+4)}, v15, vcc")
    A(f"s_mul_i32 s60, s{WV}, 2560")
    A(f"v_mul_u32_u24 {v(vPW)}, 640, {v(g)}")
    A(f"v_lshl_add_u32 {v(vPW)}, {v(n)}, 3, {v(vPW)}")
    A(f"v_add_u32 {v(vPW)}, s60, {v(vPW)}")
    A(f"v_add_u32 {v(12)}, 1280, {v(vPW)}")
    A(f"v_mul_u32_u24 {v(vPR)}, 40, {v(T+3)}")
    A(f"s_lshl_b32 s60, s{WV}, 3")
    A(f"v_add3_u32 {v(vPR)}, {v(vPR)}, {v(T+2)}, s60")
    A(f"v_lshlrev_b32 {v(vPR)}, 2, {v(vPR)}")
    A(f"v_lshrrev_b32 {v(T+2)}, 1, v0")
    A(f"v_lshlrev_b32 {v(vH)}, 2, {v(T+2)}")
    A(f"s_lshl_b32 s{sH}, s{sKAP}, 9")
    A(f"s_add_u32 s{sH}, s{sH}, {H_OFF}")
    A(f"s_and_b32 s{sRG}, s2, {NRR - 1}")
    A(f"s_lshl_b32 s{sRG}, s{sRG}, {RSH + 8}")
    A(f"s_add_u32 s{sRG}, s{sRG}, {RG_OFF}")
    A(f"s_mov_b32 s{sT}, {T_OFF}")
    A(f"s_mov_b32 s28, {T_REC}")
    for (r, val) in ((30, 0x00FFFF00), (31, 0x00FFFF00), (32, 0xFF00FF00), (33, 0x00FF00FF)):
        A(f"s_mov_b32 s{r}, 0x{val:x}")
    A(f"s_mov_b32 s{sL}, 0")
    touch(T + 2, T_OFF, 2 * T_SZ)
    stamp(0, dbg=(9, FA0))
    if opt("dry", 0):
        A("s_mov_b32 s37, 1")
        A("s_branch L_FaLoop")
    A.label("L_FaLoop_pre")
    poll_flags(1, 29, T, 8)
    A.label("L_FaLoop")
    def warm_rows(K_):
        for e in range(opt("warm", 0)):
            A(f"v_and_b32 {v(T+8+e)}, 0x7ff, {v(K_+e)}")
            A(f"v_sub_u32 {v(T+8+e)}, 2047, {v(T+8+e)}")
            A(f"v_mad_u32_u24 {v(T+8+e)}, {v(T+8+e)}, s28, v15")
            A(f"buffer_load_dword {v(T+8+e)}, {v(T+8+e)}, {WS}, s{sT} offen sc1")
    c = topk(K, CODE, vG, vLW, vLR, sRG, T, (11, FA0, 0), warm_rows, opt("dry", 0))
    if opt("dry", 0):
        A("s_cmp_eq_u32 s37, 1")
        A("s_mov_b32 s37, 0")
        A("s_cbranch_scc1 L_FaLoop_pre")
    stamp(4, "s27")
    A(f"v_cndmask_b32 {v(T)}, {v(c[0])}, {v(c[2])}, s[30:31]")
    A(f"v_cndmask_b32 {v(T+1)}, {v(c[4])}, {v(c[6])}, s[30:31]")
    A(f"v_cndmask_b32 {v(T)}, {v(T)}, {v(T+1)}, s[32:33]")
    A(f"v_and_b32 {v(T)}, 0x7ff, {v(T)}")
    A(f"v_sub_u32 {v(T)}, 2047, {v(T)}")
    A(f"v_mad_u32_u24 {v(T+1)}, {v(T)}, s28, {v(vLP1)}")
    A(f"v_mad_u32_u24 {v(T+2)}, {v(T)}, s28, {v(vLP2)}")
    loop, done = A.newlabel("Lga"), A.newlabel("Lgad")
    A(f"v_min3_u32 {v(T+3)}, {v(c[0])}, {v(c[1])}, {v(c[2])}")
    A(f"v_min3_u32 {v(T+4)}, {v(c[3])}, {v(c[4])}, {v(c[5])}")
    A(f"v_min3_u32 {v(T+3)}, {v(T+3)}, {v(c[6])}, {v(c[7])}")
    A(f"v_min_u32 {v(T+3)}, {v(T+3)}, {v(T+4)}")
    A(f"v_and_b32 {v(T+3)}, 0xffff0000, {v(T+3)}")
    A(f"v_cmp_gt_u32 vcc, s36, {v(T+3)}")
    A(f"s_cbranch_vccz {done}")
    A(f"v_mul_u32_u24 {v(T+3)}, s28, {v(T)}")
    A(f"s_add_u32 s61, s{NONCE}, 6")
    A(f"s_add_u32 s61, s61, s{sL}")
    A(f"s_mov_b32 s62, {SPIN}")
    A.label(loop)
    A(f"buffer_load_dword {v(T+4)}, {v(T+3)}, {WS}, s{sT} offen offset:2568 sc1")
    A("s_waitcnt vmcnt(0)")
    A(f"v_cmp_ne_u32 vcc, s61, {v(T+4)}")
    A(f"s_cbranch_vccz {done}")
    spin_tail(loop, 62, 2)
    A.label(done)
    GR = K
    A(f"buffer_load_dwordx4 {v(GR,4)}, {v(T+1)}, {WS}, s{sT} offen sc1")
    A(f"buffer_load_dwordx4 {v(GR+4,4)}, {v(T+1)}, {WS}, s{sT} offen offset:128 sc1")
    set_exec(0x0F0F0F0F0F0F0F0F)
    A(f"buffer_load_dwordx4 {v(GR+8,4)}, {v(T+2)}, {WS}, s{sT} offen sc1")
    A("s_mov_b64 exec, -1")
    A("s_waitcnt vmcnt(2)")
    A(f"ds_write_b128 v13, {v(GR,4)}")
    A("s_waitcnt vmcnt(1)")
    A(f"ds_write_b128 v13, {v(GR+4,4)} offset:128")
    A("s_waitcnt vmcnt(0)")
    set_exec(0x0F0F0F0F0F0F0F0F)
    A(f"ds_write_b128 v13, {v(GR+8,4)} offset:256")
    A("s_mov_b64 exec, -1")
    for ks in range(5):
        A(f"ds_read_b128 {v(AFR+4*ks,4)}, v14 offset:{64*ks}")
    for ks in range(5):
        A(f"s_waitcnt lgkmcnt({4-ks})")
        for a_, wb in enumerate((GW, GW + 4, UW, UW + 4)):
            cc = "0" if ks == 0 else v(ACC + 4 * a_, 4)
            A(f"v_mfma_f32_16x16x32_bf16 {v(ACC+4*a_,4)}, {v(AFR+4*ks,4)}, {v(wb+8*ks,4)}, {cc}")
    stamp(5, "s27")
    set_exec(0xffffffff)
    for mat in range(2):
        for r in range(4):
            A(f"ds_write2_b32 {v(vPW if mat == 0 else 12)}, {v(ACC+8*mat+r)}, {v(ACC+8*mat+4+r)} offset0:{40*r} offset1:{40*r+1}")
    A("s_mov_b64 exec, -1")
    A("s_waitcnt lgkmcnt(0)")
    A("s_barrier")
    for w in range(4):
        A(f"ds_read2st64_b32 {v(T+2*w,2)}, {v(vPR)} offset0:{10*w} offset1:{10*w+5}")
    A("s_waitcnt lgkmcnt(2)")
    A(f"v_pk_add_f32 {v(T,2)}, {v(T,2)}, {v(T+2,2)}")
    A("s_waitcnt lgkmcnt(0)")
    A(f"v_pk_add_f32 {v(T+4,2)}, {v(T+4,2)}, {v(T+6,2)}")
    A(f"v_pk_add_f32 {v(T,2)}, {v(T,2)}, {v(T+4,2)}")
    rnd_pair(T, T + 1, T + 2)
    A(f"v_mul_f32 {v(T+2)}, {f32(-1.4426950408889634)}, {v(T)}")
    A(f"v_exp_f32 {v(T+2)}, {v(T+2)}")
    A(f"v_add_f32 {v(T+2)}, 1.0, {v(T+2)}")
    A(f"v_rcp_f32 {v(T+2)}, {v(T+2)}")
    A(f"v_mul_f32 {v(T)}, {v(T)}, {v(T+2)}")
    A(f"v_cvt_pk_bf16_f32 {v(T)}, {v(T)}, {v(T)}")
    A(f"v_and_b32 {v(T)}, 0xffff0000, {v(T)}")
    A(f"v_mul_f32 {v(T)}, {v(T)}, {v(T+1)}")
    A(f"v_mov_b32_dpp {v(T+1)}, {v(T)} quad_perm:[1,0,3,2] row_mask:0xf bank_mask:0xf")
    A(f"v_cvt_pk_bf16_f32 {v(T)}, {v(T)}, {v(T+1)}")
    A(f"v_min_u32 {v(T)}, -2, {v(T)}")
    set_exec(0x5555555555555555)
    A(f"buffer_store_dword {v(T)}, {v(vH)}, {WS}, s{sH} offen sc1")
    A("s_mov_b64 exec, -1")
    if opt("hintsrc", 0) == 1:
        Lh3 = A.newlabel("Lfa")
        A(f"s_or_b32 s60, s{sKAP}, s{WV}")
        A(f"s_or_b32 s60, s60, s{sL}")
        A(f"s_cmp_lg_u32 s60, 0")
        A(f"s_cbranch_scc1 {Lh3}")
        A(f"v_mov_b32 {v(T+4)}, 0")
        A(f"s_mov_b32 s60, {X2_OFF + SEL_OFF + 128}")
        A("s_mov_b64 exec, 1")
        A(f"buffer_store_dword {v(T+4)}, {v(T+4)}, {WS}, s60 offen sc1")
        A("s_mov_b64 exec, -1")
        A.label(Lh3)
    stamp(6, "s27")
    A(f"s_add_u32 s{sH}, s{sH}, {2 * HREP}")
    A(f"s_add_u32 s{sRG}, s{sRG}, {NRR * RG_REP}")
    A(f"s_add_u32 s{sT}, s{sT}, {T_SZ}")
    A(f"s_add_u32 s{sL}, s{sL}, 1")
    A(f"s_cmp_lt_u32 s{sL}, 2")
    A("s_cbranch_scc1 L_FaLoop")
    A("s_endpgm")

def roleFb():
    A.label("L_roleFb")
    DW, HF, ACC, K, CODE, T = 16, 128, 184, 192, 216, 224
    RAW = 128
    vG, vLW, vLR, vW1, vHF, vPW, vPR, vE, vX2, vO = 2, 3, 4, 5, 6, 7, 8, 9, 10, 11
    sB, sRG, sT, sH, sL, sREP2, sES, sEC = 22, 23, 25, 26, 27, 29, 30, 31
    nonce_load(T + 8)
    if opt("prefc", 1) == 1:
        warm_weights(T + 16, C0, 29, PPART)
    srd(8, 50, 2211840)
    srd(12, 52, 2621440)
    A(f"s_sub_u32 s60, s2, {FB0 - 7}")
    A(f"s_and_b32 s61, s60, 7")
    A(f"s_lshr_b32 s60, s60, 3")
    fb_start("s61", f"s{sB}")
    A(f"s_add_u32 s{sB}, s{sB}, s60")
    A(f"s_cmp_eq_u32 s61, 7")
    A(f"s_cselect_b32 s60, 0, 1")
    A(f"s_sub_u32 s{sB}, s{sB}, s60")
    A("s_mov_b32 s58, 0x05040100")
    A("s_mov_b32 s59, 0x07060302")
    n, g = T, T + 1
    A(f"v_and_b32 {v(n)}, 15, v1")
    A(f"v_lshrrev_b32 {v(g)}, 4, v1")
    A(f"s_lshl_b32 s60, s{WV}, 5")
    A(f"v_lshl_add_u32 {v(vW1)}, {v(g)}, 3, s60")
    A(f"v_mul_u32_u24 {v(vW1)}, 1280, {v(vW1)}")
    A(f"s_lshl_b32 s61, s{sB}, 6")
    A(f"v_lshl_add_u32 {v(T+2)}, {v(n)}, 2, s61")
    A(f"v_add_u32 {v(vW1)}, {v(vW1)}, {v(T+2)}")
    A(f"v_mov_b32 v12, {v(n)}")
    A(f"v_mov_b32 v13, {v(g)}")
    n, g = 12, 13
    A("s_waitcnt vmcnt(0)")
    nonce_take(T + 8)
    A(f"s_and_b32 s{sREP2}, s2, {NREP - 1}")
    A(f"s_lshl_b32 s{sREP2}, s{sREP2}, {FSH + 4}")
    if opt("prefc", 1) == 2:
        warm_weights(T + 16, C0, 29, PPART)
    poll_flags(0, sREP2, T + 4, opt("fsleep", 2))
    if opt("coop", 4):
        warm_coop(T + 16)
    if opt("wide", 0):
        A(f"s_lshl_b32 s60, s{WV}, 5")
        A(f"v_lshrrev_b32 {v(T+20)}, 2, v1")
        A(f"v_add_u32 {v(T+20)}, s60, {v(T+20)}")
        A(f"v_mul_u32_u24 {v(T+20)}, 1280, {v(T+20)}")
        A(f"v_and_b32 {v(T+21)}, 3, v1")
        A(f"s_lshl_b32 s61, s{sB}, 6")
        A(f"v_lshl_add_u32 {v(T+21)}, {v(T+21)}, 4, s61")
        A(f"v_add_u32 {v(T+20)}, {v(T+20)}, {v(T+21)}")
        for k in range(14):
            for hh in range(2):
                A(f"v_add_u32 {v(T+21)}, {(128 * k + 16 * hh) * 1280}, {v(T+20)}")
                A(f"buffer_load_dwordx4 {v(T+24,4)}, {v(T+21)}, {SRD1}, 0 offen")
        if opt("wide", 0) == 2:
            A("s_waitcnt vmcnt(0)")
    load_weight_frags([(SRD1, lambda k: vW1, lambda k, q: (128 * k + q) * 1280, 14, DW, RAW, 13)])
    topk_setup(CODE, vG, vLW, vLR, 8192)
    A(f"v_and_b32 {v(vHF)}, 7, v1")
    A(f"v_lshlrev_b32 {v(vHF)}, 4, {v(vHF)}")
    A(f"v_lshl_add_u32 {v(vHF)}, {v(g)}, 7, {v(vHF)}")
    A(f"s_lshl_b32 s60, s{WV}, 9")
    A(f"v_add_u32 {v(vHF)}, s60, {v(vHF)}")
    A(f"s_mov_b32 s{sH}, {H_OFF}")
    A(f"s_lshl_b32 s60, s{WV}, 10")
    A(f"v_lshlrev_b32 {v(vPW)}, 9, {v(g)}")
    A(f"v_lshl_add_u32 {v(vPW)}, {v(n)}, 3, {v(vPW)}")
    A(f"v_add_u32 {v(vPW)}, s60, {v(vPW)}")
    A(f"v_lshlrev_b32 {v(vPR)}, 2, v0")
    A(f"s_cmp_ge_u32 s{sB}, 10")
    A(f"s_cselect_b32 s60, 1, 0")
    A(f"s_mul_i32 s61, s60, 10")
    A(f"s_sub_u32 s61, s{sB}, s61")
    A(f"s_lshl_b32 s62, s60, 9")
    A(f"s_lshl_b32 s63, s61, 1")
    A(f"s_add_u32 s62, s62, s63")
    A(f"s_lshl_b32 s64, s60, 7")
    A(f"s_add_u32 s64, s64, s63")
    A(f"s_add_u32 s64, s64, {1024 - 16}")
    A(f"s_cmp_lt_u32 s61, 8")
    A(f"s_cselect_b32 s{sEC}, s62, s64")
    A(f"s_cselect_b32 s{sES}, 16, 4")
    A(f"v_and_b32 {v(T+2)}, 31, v1")
    A(f"v_mul_u32_u24 {v(vE)}, s{sES}, {v(T+2)}")
    A(f"s_and_b32 s32, s{sEC}, 2")
    A(f"s_lshl_b32 s32, s32, 3")
    A(f"s_sub_u32 s32, 16, s32")
    A(f"s_and_b32 s{sEC}, s{sEC}, -4")
    A(f"v_add_u32 {v(vE)}, s{sEC}, {v(vE)}")

    A(f"s_lshl_b32 s60, s{sB}, 2")
    A(f"s_add_u32 s60, s60, s{WV}")
    A(f"s_lshl_b32 s60, s60, 8")
    A(f"v_lshl_add_u32 {v(vX2)}, {v(T+2)}, 3, s60")
    A(f"v_lshrrev_b32 {v(T+3)}, 5, v1")
    A(f"v_lshl_add_u32 {v(vX2)}, {v(T+3)}, 2, {v(vX2)}")
    A(f"s_lshl_b32 s60, s{sB}, 6")
    A(f"v_lshl_add_u32 {v(vO)}, {v(T+2)}, 1, s60")
    A(f"s_and_b32 s{sRG}, s2, {NRR - 1}")
    A(f"s_lshl_b32 s{sRG}, s{sRG}, {RSH + 8}")
    A(f"s_add_u32 s{sRG}, s{sRG}, {RG_OFF}")
    A(f"s_mov_b32 s{sT}, {T_OFF}")
    A(f"s_mov_b32 s28, {T_REC}")
    A(f"s_mov_b32 s{sL}, 0")
    touch(T + 2, T_OFF, 2 * T_SZ)
    stamp(0, dbg=(10, FB0))
    poll_flags(1, sREP2, T, 8)
    prio(3)
    A.label("L_FbLoop")
    c = topk(K, CODE, vG, vLW, vLR, sRG, T, None)
    stamp(4, "s27")
    for j in range(8):
        A(f"v_readfirstlane_b32 s{80+j}, {v(c[j])}")
    A("s_mov_b32 s70, s80")
    A("s_mov_b32 s71, s81")
    for w in range(1, 4):
        A(f"s_cmp_eq_u32 s{WV}, {w}")
        A(f"s_cselect_b32 s70, s{80+2*w}, s70")
        A(f"s_cselect_b32 s71, s{81+2*w}, s71")
    KEY, ROW, XV, XNV, SG, ST = T, T + 1, T + 2, T + 3, T + 4, T + 8
    Ls = A.newlabel("Lfb")
    A(f"s_or_b32 s60, s{sB}, s{WV}")
    A(f"s_cmp_lg_u32 s60, 0")
    A(f"s_cbranch_scc1 {Ls}")
    A(f"v_mov_b32 {v(T+6)}, s80")
    for j in range(1, 8):
        A(f"v_writelane_b32 {v(T+6)}, s{80+j}, {j}")
    A(f"v_and_b32 {v(T+6)}, 0x7ff, {v(T+6)}")
    A(f"v_sub_u32 {v(T+6)}, 2047, {v(T+6)}")
    A(f"v_lshlrev_b32 {v(T+7)}, 2, v1")
    A(f"s_lshl_b32 s60, s{sL}, 8")
    A(f"s_add_u32 s60, s60, {X2_OFF + SEL_OFF}")
    A("s_mov_b64 exec, 0xff")
    A(f"buffer_store_dword {v(T+6)}, {v(T+7)}, {WS}, s60 offen sc1")
    A("s_mov_b64 exec, -1")
    A.label(Ls)
    A(f"v_mov_b32 {v(KEY)}, s71")
    A(f"v_mov_b32 {v(ROW)}, s70")
    A(f"v_cmp_gt_u32 vcc, 32, v1")
    A(f"v_cndmask_b32 {v(KEY)}, {v(KEY)}, {v(ROW)}, vcc")
    A(f"v_and_b32 {v(ROW)}, 0x7ff, {v(KEY)}")
    A(f"v_sub_u32 {v(ROW)}, 2047, {v(ROW)}")
    A(f"v_mad_u32_u24 {v(T+5)}, {v(ROW)}, s28, {v(vE)}")
    prio(0)
    loop, done = A.newlabel("Lst2"), A.newlabel("Lst2d")
    A(f"v_mul_u32_u24 {v(T+6)}, s28, {v(ROW)}")
    A(f"s_add_u32 s61, s{NONCE}, 6")
    A(f"s_add_u32 s61, s61, s{sL}")
    A(f"s_mov_b32 s62, {SPIN}")
    A.label(loop)
    A(f"buffer_load_dwordx4 {v(ST,4)}, {v(T+6)}, {WS}, s{sT} offen offset:2560 sc1")
    A("s_waitcnt vmcnt(0)")
    A(f"v_cmp_ne_u32 vcc, s61, {v(ST+2)}")
    A(f"s_cbranch_vccz {done}")
    spin_tail(loop, 62, 2)
    A.label(done)
    A(f"buffer_load_dword {v(XNV)}, {v(T+5)}, {WS}, s{sT} offen sc1")
    A(f"buffer_load_dword {v(XV)}, {v(T+5)}, {WS}, s{sT} offen offset:1280 sc1")
    A(f"v_ashrrev_i32 {v(SG)}, 31, {v(KEY)}")
    A(f"v_not_b32 {v(SG)}, {v(SG)}")
    A(f"v_or_b32 {v(SG)}, 0x80000000, {v(SG)}")
    A(f"v_xor_b32 {v(SG)}, {v(SG)}, {v(KEY)}")
    A(f"v_and_b32 {v(SG)}, 0xffff0000, {v(SG)}")
    A(f"v_mul_f32 {v(SG)}, {f32(-1.4426950408889634)}, {v(SG)}")
    A(f"v_exp_f32 {v(SG)}, {v(SG)}")
    A(f"v_add_f32 {v(SG)}, 1.0, {v(SG)}")
    A(f"v_rcp_f32 {v(SG)}, {v(SG)}")
    A(f"v_cvt_pk_bf16_f32 {v(SG)}, {v(SG)}, {v(SG)}")
    A(f"v_and_b32 {v(SG)}, 0xffff0000, {v(SG)}")
    stamp(2, "s27")
    def rb(r):
        A(f"v_cvt_pk_bf16_f32 {v(r)}, {v(r)}, {v(r)}")
        A(f"v_and_b32 {v(r)}, 0xffff0000, {v(r)}")
    Yv = T + 12
    XO = T + 16
    if opt("hgate", 1):
        loop, done = A.newlabel("Lh"), A.newlabel("Lhd")
        A(f"s_mov_b32 s62, {SPIN}")
        set_exec(0x00FF00FF00FF00FF)
        A.label(loop)
        A(f"buffer_load_dwordx4 {v(HF,4)}, {v(vHF)}, {WS}, s{sH} offen sc1")
        A("s_waitcnt vmcnt(0)")
        any_sentinel(range(HF, HF + 4), T + 6, done)
        spin_tail(loop, 62, opt("hgsleep", 1))
        A.label(done)
    loop, done = A.newlabel("Lh"), A.newlabel("Lhd")
    A(f"s_cmp_lt_u32 s{WV}, 2")
    A(f"s_cselect_b32 s63, 2048, 0")
    A(f"s_add_u32 s63, s63, {12 * 2048}")
    A(f"s_add_u32 s63, s63, s{sH}")
    A(f"s_mov_b32 s62, {SPIN}")
    set_exec(0x00FF00FF00FF00FF)
    A.label(loop)
    for k in range(14):
        if k == 13:
            A(f"buffer_load_dwordx4 {v(HF+4*k,4)}, {v(vHF)}, {WS}, s63 offen sc1")
        else:
            if k % 2 == 0:
                A(f"s_add_u32 s60, s{sH}, {2048 * k}")
            A(f"buffer_load_dwordx4 {v(HF+4*k,4)}, {v(vHF)}, {WS}, s60 offen offset:{2048*(k%2)} sc1")
    CK = T + 6
    HP = opt("hprog", 1)
    def mf(k):
        for par in range(2):
            cc = "0" if k == 0 else v(ACC + 4 * par, 4)
            A(f"v_mfma_f32_16x16x32_bf16 {v(ACC+4*par,4)}, {v(HF+4*k,4)}, {v(DW+8*k+4*par,4)}, {cc}")
    if HP:
        A("s_mov_b64 exec, -1")
        for k in range(14):
            A(f"s_waitcnt vmcnt({13-k})")
            mf(k)
            if k == 0:
                A(f"v_max3_u32 {v(CK)}, {v(HF)}, {v(HF+1)}, {v(HF+2)}")
                A(f"v_max_u32 {v(CK)}, {v(CK)}, {v(HF+3)}")
            else:
                A(f"v_max3_u32 {v(CK)}, {v(CK)}, {v(HF+4*k)}, {v(HF+4*k+1)}")
                A(f"v_max3_u32 {v(CK)}, {v(CK)}, {v(HF+4*k+2)}, {v(HF+4*k+3)}")
        set_exec(0x00FF00FF00FF00FF)
        A(f"v_cmp_eq_u32 vcc, -1, {v(CK)}")
        A(f"s_cbranch_vccz {done}")
    else:
        A("s_waitcnt vmcnt(0)")
        any_sentinel(list(range(HF, HF + 56)), CK, done)
    spin_tail(loop, 62, opt("hsleep", 1))
    A.label(done)
    A("s_mov_b64 exec, -1")
    prio(3)
    stamp(5, "s27")
    Lh2 = A.newlabel("Lfb")
    A(f"s_or_b32 s60, s{sB}, s{WV}")
    A(f"s_or_b32 s60, s60, s{sL}")
    A(f"s_cmp_lg_u32 s60, {0 if opt('hintsrc', 0) == 0 else -1}")
    A(f"s_cbranch_scc1 {Lh2}")
    A(f"v_mov_b32 {v(CK)}, 0")
    A(f"s_mov_b32 s60, {X2_OFF + SEL_OFF + 128}")
    A("s_mov_b64 exec, 1")
    A(f"buffer_store_dword {v(CK)}, {v(CK)}, {WS}, s60 offen sc1")
    A.label(Lh2)
    A("s_mov_b64 exec, -1")
    if not HP:
        for k in range(14):
            mf(k)
    for r in (XNV, XV):
        A(f"v_lshlrev_b32 {v(r)}, s32, {v(r)}")
        A(f"v_and_b32 {v(r)}, 0xffff0000, {v(r)}")
    A(f"v_add_f32 {v(XO)}, {v(XV)}, {v(XNV)}")
    rb(XO)
    if EXACT:
        A(f"v_sub_f32 {v(XO)}, {v(XO)}, {v(ST)}")
        rb(XO)
        A(f"v_mul_f32 {v(XO)}, {v(XO)}, {v(ST+1)}")
        rb(XO)
    else:
        A(f"v_mul_f32 {v(ST)}, {v(ST)}, {v(ST+1)}")
        A(f"v_fma_f32 {v(XO)}, {v(XO)}, {v(ST+1)}, -{v(ST)}")
    set_exec(0xffffffff)
    for r in range(4):
        A(f"ds_write2_b32 {v(vPW)}, {v(ACC+r)}, {v(ACC+4+r)} offset0:{32*r} offset1:{32*r+1}")
    A("s_mov_b64 exec, -1")
    A("s_waitcnt lgkmcnt(0)")
    A("s_barrier")
    A(f"ds_read2st64_b32 {v(Yv,2)}, {v(vPR)} offset0:0 offset1:4")
    A(f"ds_read2st64_b32 {v(Yv+2,2)}, {v(vPR)} offset0:8 offset1:12")
    A("s_waitcnt lgkmcnt(0)")
    A(f"v_pk_add_f32 {v(Yv,2)}, {v(Yv,2)}, {v(Yv+2,2)}")
    A(f"v_add_f32 {v(Yv)}, {v(Yv)}, {v(Yv+1)}")
    rb(Yv)
    A(f"v_mul_f32 {v(Yv)}, {v(Yv)}, {v(SG)}")
    rb(Yv)
    A(f"v_add_f32 {v(Yv)}, {v(Yv)}, {v(XNV)}")
    rb(Yv)
    A(f"v_add_f32 {v(Yv)}, {v(Yv)}, {v(XV)}")
    L2 = A.newlabel("Lfb")
    A(f"s_cmp_lg_u32 s{sL}, 0")
    A(f"s_cbranch_scc1 {L2}")
    A(f"v_permlane32_swap_b32 {v(Yv)}, {v(XO)}")
    A(f"v_cvt_pk_bf16_f32 {v(Yv+1)}, {v(Yv)}, {v(XO)}")
    A(f"v_cvt_pk_f16_f32 {v(Yv)}, {v(Yv)}, {v(XO)}")
    A(f"v_cmp_gt_u32 vcc, 32, v1")
    A(f"v_cndmask_b32 {v(Yv)}, {v(Yv)}, {v(Yv+1)}, vcc")
    A(f"v_min_u32 {v(Yv)}, -2, {v(Yv)}")
    for r in range(NRX):
        A(f"s_mov_b32 s60, {X2_OFF + r * X2REP}")
        A(f"buffer_store_dword {v(Yv)}, {v(vX2)}, {WS}, s60 offen sc1")
    stamp(6, "s27", dbg=(12, FB0))
    A(f"s_add_u32 s{sH}, s{sH}, {2 * HREP}")
    A(f"s_add_u32 s{sRG}, s{sRG}, {NRR * RG_REP}")
    A(f"s_add_u32 s{sT}, s{sT}, {T_SZ}")
    A(f"s_mov_b32 s{sL}, 1")
    A("s_branch L_FbLoop")
    A.label(L2)
    A(f"v_cvt_pk_bf16_f32 {v(Yv)}, {v(Yv)}, {v(Yv)}")
    A(f"s_movk_i32 s60, 1280")
    A(f"v_mad_u32_u24 {v(Yv+1)}, {v(ROW)}, s60, {v(vO)}")
    A(f"buffer_store_short {v(Yv)}, {v(Yv+1)}, {SRD2}, 0 offen sc1")
    stamp(7, "s27", dbg=(15, FB0))
    A(f"s_or_b32 s60, s{sB}, s{WV}")
    A(f"s_cmp_lg_u32 s60, 0")
    A("s_cbranch_scc1 L_end")
    A(f"v_mov_b32 {v(T)}, s{NONCE}")
    A(f"v_mov_b32 {v(T+1)}, 0")
    A("s_mov_b64 exec, 1")
    A(f"buffer_store_dword {v(T)}, {v(T+1)}, {WS}, 0 offen sc1")
    A.label("L_end")
    A("s_endpgm")

hdr = open("cdna_kernels/%s.s.ref" % NAME).read().split("\n")
head = [l for l in hdr if l.startswith(";") and "@launch" not in l and "Override" not in l and "grid=ceil" not in l]
out = "\n".join(head) + "\n"
out += f"; @launch grid=({NWG},1,1) block=(256,1,1) lds={LDS_BYTES}\n"
out += """
; ---------------------------------------------------------------------------------------------------------
; One persistent launch, 491 co-resident workgroups (2 per CU), four roles chosen by workgroup id:
;   R  (0..255)    8 token rows each: layer norms, residuals, router scores, DFT along the hidden axis
;   C  (256..416)  2 spectrum columns each: DFT along the sequence axis
;   Fa (417..470)  top-8 selection + gate/up projection + SwiGLU for a 32-column slice
;   Fb (471..490)  top-8 selection + down projection + scatter for a 32-column slice
; The Fourier sublayer Real(DFT_seq(DFT_hid(x))) is evaluated with the exact Cooley-Tukey factorisation of the
; two (constant) DFT matrices, 640 = 20 x 32 and 2048 = 32 x 64, as small MFMA products with f16 factors that are
; generated with v_cos/v_sin; pairs of real rows are packed into one complex row and unpacked inside the
; column factor.  The layer-1 expert update of the 8 routed rows enters the second Fourier sublayer as an exact
; rank-8 correction (linearity), so the column pass of layer 2 overlaps the expert MLP.
; Hand-offs between workgroups go through d_ws with write-through (sc1) stores and sc1 loads.  Flags carry a
; per-launch tag derived from the word at d_ws+0; bulk buffers are pre-filled with all-ones by their producer and
; re-read by consumers until every word has landed.  All waits are bounded.
; Generated by the author's own script (hand-written instruction sequences).
; ---------------------------------------------------------------------------------------------------------
""".lstrip("\n")
out += '.amdgcn_target "amdgcn-amd-amdhsa--gfx950"\n.text\n'
out += f".globl {NAME}_kernel\n.p2align 8\n.type {NAME}_kernel,@function\n{NAME}_kernel:\n"
prologue(); roleR(); roleC(); roleFa(); roleFb()
out += A.text()
out += "L_code_end:\n"
out = out.replace(".text\n", ".text\n.set CODE_LINES, 256\n.set CODE_LINES2, 100\n", 1)
out += f""".section .rodata,"a"
.p2align 6
.amdhsa_kernel {NAME}_kernel
  .amdhsa_next_free_vgpr 256
  .amdhsa_next_free_sgpr 102
  .amdhsa_accum_offset 256
  .amdhsa_group_segment_fixed_size 0
  .amdhsa_kernarg_size 104
  .amdhsa_user_sgpr_count 2
  .amdhsa_user_sgpr_kernarg_segment_ptr 1
  .amdhsa_system_sgpr_workgroup_id_x 1
  .amdhsa_float_denorm_mode_32 3
.end_amdhsa_kernel
"""
import subprocess, tempfile, os, re
with tempfile.TemporaryDirectory() as td:
    open(td + "/a.s", "w").write(out)
    subprocess.check_call(["clang", "-x", "assembler", "-target", "amdgcn-amd-amdhsa", "-mcpu=gfx950", "-c", td + "/a.s", "-o", td + "/a.o"])
    hd = subprocess.check_output(["llvm-objdump", "-h", td + "/a.o"]).decode()
    size = int(re.search(r"\.text\s+([0-9a-f]+)", hd).group(1), 16)
out = out.replace(".set CODE_LINES, 256", ".set CODE_LINES, %d" % min(256, size // 128))
out = out.replace(".set CODE_LINES2, 100", ".set CODE_LINES2, %d" % max(0, size // 128 - 256))
print("code bytes:", size, file=sys.stderr)
dst = [a for a in sys.argv[1:] if not a.startswith("--")]
open(dst[0] if dst else "cdna_kernels/%s.s" % NAME, "w").write(out)
print("instructions:", A.ninstr, file=sys.stderr)
```
